```python
import torch

def _softmax(x, axis=-1):
    return torch.softmax(x, dim=axis)
def _gelu(x):
    return torch.nn.functional.gelu(x, approximate="tanh")
def _silu(x):
    return torch.nn.functional.silu(x)
def _sigmoid(x):
    return torch.sigmoid(x)
def _layernorm(x, axis=-1, eps=1e-5):
    m = x.mean(dim=axis, keepdim=True)
    v = x.var(dim=axis, keepdim=True, unbiased=False)
    return (x - m) / torch.sqrt(v + eps)
def _scatter_add(tgt, idx, src, axis=0):
    return tgt.clone().index_add_(axis, idx, src)
def _segment_sum(src, seg, n):
    out = torch.zeros((n,) + src.shape[1:], dtype=src.dtype)
    return out.index_add_(0, seg, src)
def _pad(x, pw):
    flat = tuple(v for pair in reversed(pw) for v in pair)
    return torch.nn.functional.pad(x, flat)

kernel_name = 'standalone__deep_cross_xdeepfm__recsys'

def setup_inputs():

    _w = (lambda a: (lambda t: t.to(torch.bfloat16) if t.is_floating_point() else t)(torch.as_tensor(a)))
    B, F, D, L = 4096, 26, 32, 3
    V = min(100000, 100000)
    Din = F * D
    return {
        "idx": _w((lambda lo, hi, *s: torch.randint(lo, hi, s))(0, V, B, F).to(torch.int64)),
        "table": _w((lambda *s: torch.randn(*s, dtype=torch.bfloat16) * 0.8)(V, D)),
        "ws_cin": _w((lambda *s: torch.randn(*s, dtype=torch.bfloat16) * 0.2)(L, F, F, F) * (1.0 / F)),
        "w_cin_out": _w((lambda *s: torch.randn(*s, dtype=torch.bfloat16) * 0.2)(L * F) * ((L * F) ** -0.5)),
        "w_dnn1": _w((lambda *s: torch.randn(*s, dtype=torch.bfloat16) * 0.8)(Din, Din) * (Din ** -0.5)),
        "b_dnn1": _w((lambda *s: torch.randn(*s, dtype=torch.bfloat16) * 1.6)(Din) * 0.1),
        "w_dnn2": _w((lambda *s: torch.randn(*s, dtype=torch.bfloat16) * 0.2)(Din) * (Din ** -0.5)),
        "b_out": _w((lambda *s: torch.randn(*s, dtype=torch.bfloat16) * 0.2)(1)),
    }

def reference(idx, table, ws_cin, w_cin_out, w_dnn1, b_dnn1, w_dnn2, b_out):
    x0 = table[idx]
    B = x0.shape[0]
    L = ws_cin.shape[0]
    xk = x0
    pooled = []
    for l in range(L):
        xk = torch.einsum('bid,bjd,hij->bhd', xk, x0, ws_cin[l])
        pooled.append(xk.sum(axis=-1))
    p_plus = torch.stack(pooled, axis=1).reshape(B, -1)
    logit_cin = p_plus @ w_cin_out
    h = x0.reshape(B, -1)
    h = _gelu(h @ w_dnn1 + b_dnn1)
    logit_dnn = h @ w_dnn2
    return logit_cin + logit_dnn + b_out
```

```python
class Q:
    def __init__(self, name, maxn):
        self.name = name; self.maxn = maxn; self.q = []
    def issue(self, tag):
        self.q.append(tag)
    def need(self, *tags):
        idx = -1
        for i, t in enumerate(self.q):
            if t in tags: idx = i
        if idx < 0: return None
        n = len(self.q) - idx - 1
        if n > self.maxn:
            n = self.maxn
        self.q = self.q[len(self.q) - n:] if n else []
        return n
    def clear(self): self.q = []

class Prog:
    def __init__(self):
        self.L = []
        self.vm = Q("vmcnt", 63)
        self.lg = Q("lgkmcnt", 15)
    def __call__(self, s):
        for x in s.split("\n"):
            x = x.strip()
            if x: self.L.append(x)
    def label(self, n): self.L.append(n + ":")
    def vmem(self, s, tag):
        self(s); self.vm.issue(tag)
        assert len(self.vm.q) <= 63, "too many outstanding vmem"
    def lds(self, s, tag):
        self(s); self.lg.issue(tag)
    def wait(self, vm=(), lg=()):
        if isinstance(vm, (str, tuple)) and not (isinstance(vm, tuple) and len(vm) == 0) and isinstance(vm, str): vm = (vm,)
        if isinstance(lg, str): lg = (lg,)
        a = self.vm.need(*vm) if vm else None
        b = self.lg.need(*lg) if lg else None
        parts = []
        if a is not None: parts.append(f"vmcnt({a})")
        if b is not None: parts.append(f"lgkmcnt({b})")
        if parts: self("s_waitcnt " + " ".join(parts))
    def wait0(self, vm=False, lg=False):
        parts = []
        if vm: parts.append("vmcnt(0)"); self.vm.clear()
        if lg: parts.append("lgkmcnt(0)"); self.lg.clear()
        self("s_waitcnt " + " ".join(parts))
    def text(self):
        out = []
        for x in self.L:
            out.append(x if x.endswith(":") or x.startswith(".") else "    " + x)
        return "\n".join(out) + "\n"
def vr(a, n=1):
    return f"v{a}" if n == 1 else f"v[{a}:{a+n-1}]"
def sr(a, n=1):
    return f"s{a}" if n == 1 else f"s[{a}:{a+n-1}]"
```

```python
F = 26
def pi(r):
    if r < 24: return (r & ~3) | ((r + 1) & 3)
    return 49 - r
def norm(p): return (min(p), max(p))
def build_slots():
    seen = set(); S = []
    for a in range(F):
        for b in range(a, F):
            p = (a, b)
            if p in seen: continue
            orb = [p]
            while True:
                q = norm((pi(orb[-1][0]), pi(orb[-1][1])))
                if q == p: break
                orb.append(q)
            seen.update(orb)
            S += orb[0::2]
    assert len(S) == 176
    S.sort(key=lambda p: (p[0] + p[1], p[0]))
    return S
S = build_slots()
LIN = [4*g + c for g in range(6) for c in (0, 2)] + [24]
assert len(LIN) == 13
cov = {}
for (a, b) in S:
    cov[norm((a, b))] = cov.get(norm((a, b)), 0) + 1
    q = norm((pi(a), pi(b))); cov[q] = cov.get(q, 0) + 1
assert len(cov) == 351 and sorted(k for k, v in cov.items() if v != 1) == [(24, 25)]
assert sorted(LIN + [pi(a) for a in LIN]) == list(range(26))
def m_of_i(i):
    return 28 if i == 25 else (25 if i == 28 else i)
def slot_pair(step, half, e):
    if step < 22:
        a, b = S[step*8 + e]
        return (a, b) if half == 0 else (pi(a), pi(b))
    u = (step - 22)*8 + e
    if u >= 13: return None
    a = LIN[u]
    return (a if half == 0 else pi(a), None)
if __name__ == "__main__":
    first = {}; last = {}
    for n, (a, b) in enumerate(S):
        for r in (a, b):
            first.setdefault(r, n//8); last[r] = n//8
    print([(r, first[r], last[r]) for r in range(26)])
```

```python
import sys, struct, math
from asmlib import *
from slots import *

NAME = "standalone__deep_cross_xdeepfm__recsys_kernel"
class Cfg:
    stamps = False
    D = 11
    NRES = 31
    R = 3
    prio_dnn = 2
    prio_cin = 0
    prio_prep = 3
    prefetch_code = True
    poll_sleep = 4
cfg = Cfg()

SLOT = 7168
XO = 12*SLOT
WO = XO + 16*1664
CO = WO + 96*528
LDS_SIZE = 163840
assert CO + 512 == LDS_SIZE
P_W3 = WO; P_M3T = WO + 36864; P_D1 = WO + 38912; P_W1 = WO + 43520; P_Z = WO + 45568; P_DUM = WO + 45824
C_R = lambda c: 4*c
C_F = lambda c: 32 + 4*c
C_PA, C_PB, C_PC, C_FLAG, C_WR = 64, 68, 72, 76, 80
MBOX = 0; WS_W = 131072; WS_END = WS_W + 26*1536; WS_STAMP = 1 << 20
S_IDX, S_TAB, S_W1, S_WCIN, S_WCO, S_B1, S_W2, S_WS = 4, 8, 12, 16, 20, 24, 28, 32
S_BOUT, S_OUT, S_DBG = 36, 38, 40
S_WAVE, S_RG, S_CP, S_FB, S_COL, S_W = 42, 43, 44, 45, 46, 47
S_T = 48
S_PC = 64
S_SPIN = 66
S_ST = 70
V_C, V_ONE, V_POLL = 236, 237, 238

def f2h(x): return "0x%08x" % struct.unpack("<I", struct.pack("<f", x))[0]

def build():
    p = Prog()
    nstamp = [0]
    lab = [0]
    def L(n):
        lab[0] += 1
        return f"L_{n}_{lab[0]}"
    def stamp(i):
        if cfg.stamps:
            p(f"s_memrealtime s[68:69]")
            p.wait0(lg=True)
            p(f"s_mov_b32 s{S_ST+i}, s68")
    def arrive(off, vc=V_C, vone=V_ONE):
        p("s_mov_b64 exec, 1")
        p.lds(f"ds_add_u32 v{vc}, v{vone} offset:{off}", "arr")
        p("s_mov_b64 exec, -1")
    def poll_issue(off, vc=V_C, vp=V_POLL):
        p.lds(f"ds_read_b32 v{vp}, v{vc} offset:{off}", "poll")
    def check(off, target, issued=False, sleep=0, vc=V_C, vp=V_POLL):
        ok = L("ok"); sp = L("spin")
        if issued:
            p.wait(lg="poll")
            p(f"v_readfirstlane_b32 s{S_T+15}, v{vp}")
            p(f"s_cmp_ge_u32 s{S_T+15}, {target}")
            p(f"s_cbranch_scc1 {ok}")
        p.label(sp)
        if sleep: p(f"s_sleep {sleep}")
        p(f"ds_read_b32 v{vp}, v{vc} offset:{off}")
        p("s_waitcnt lgkmcnt(0)")
        p(f"v_readfirstlane_b32 s{S_T+15}, v{vp}")
        p(f"s_sub_u32 s{S_SPIN}, s{S_SPIN}, 1")
        p("s_cbranch_scc1 L_end")
        p(f"s_cmp_ge_u32 s{S_T+15}, {target}")
        p(f"s_cbranch_scc0 {sp}")
        if not issued: p.lg.clear()
        p.label(ok)

    p(f".globl {NAME}\n.p2align 8\n.type {NAME},@function")
    p.label(NAME)
    p("s_cmp_ge_u32 s2, 0x100")
    p("s_cbranch_scc1 L_end")
    for s, off in ((S_IDX, 0), (S_W1, 32), (S_WCIN, 16), (S_WCO, 24), (S_TAB, 8), (S_B1, 40), (S_WS, 80), (S_W2, 48)):
        p(f"s_load_dwordx2 s[{s}:{s+1}], s[0:1], {off}")
    p(f"s_load_dwordx2 s[{S_BOUT}:{S_BOUT+1}], s[0:1], 56")
    p(f"s_load_dwordx2 s[{S_OUT}:{S_OUT+1}], s[0:1], 64")
    p(f"s_load_dwordx2 s[{S_DBG}:{S_DBG+1}], s[0:1], 72")
    if cfg.stamps:
        p(f"s_memrealtime s[{S_ST}:{S_ST+1}]")
        p(f"s_memtime s[100:101]")
    p("v_lshrrev_b32 v1, 6, v0")
    p("v_and_b32 v0, 63, v0")
    p(f"v_readfirstlane_b32 s{S_WAVE}, v1")
    p(f"v_lshlrev_b32 v{V_C}, 2, v0")
    p(f"v_add_u32 v{V_C}, {CO}, v{V_C}")
    p("v_mov_b32 v1, 0")
    p(f"ds_write_b32 v{V_C}, v1")
    p(f"v_mov_b32 v{V_ONE}, 1")
    for s, n in ((S_IDX, 4096*104), (S_TAB, 6400000), (S_W1, 832*1664), (S_WCIN, 105456), (S_WCO, 156),
                 (S_B1, 1664), (S_W2, 1664), (S_WS, WS_END)):
        p(f"s_mov_b32 s{s+2}, {n}")
        p(f"s_mov_b32 s{s+3}, 0x20000")
    p(f"s_mov_b32 s{S_SPIN}, 0x40000")
    p(f"s_and_b32 s{S_T}, s2, 7")
    p(f"s_lshr_b32 s{S_T+1}, s2, 6")
    p(f"s_lshl3_add_u32 s{S_RG}, s{S_T+1}, s{S_T}")
    p(f"s_bfe_u32 s{S_CP}, s2, 0x30003")
    p(f"s_lshl3_add_u32 s{S_FB}, s{S_RG}, s{S_CP}")
    p(f"s_and_b32 s{S_W}, s{S_WAVE}, 3")
    p(f"v_lshlrev_b32 v234, 4, v0")
    p(f"s_cmp_ge_u32 s{S_WAVE}, 4")
    p("s_cbranch_scc1 L_cin")

    ACC = lambda t, q: 8*t + 4*q
    BF = lambda t: 56 + 4*t
    IDX = lambda f, q: 84 + 4*(f >> 1) + 2*q + (f & 1)
    AR = lambda f, q: 136 + 8*(f % cfg.D) + 4*q
    VO = lambda n: 224 + n
    V_BLO, V_BHI, V_G16, V_L16, V_IA = 231, 232, 233, 234, 235
    RAW = 240
    S_SB, S_SM, S_K1, S_K2 = S_T+2, S_T+3, S_T+4, S_T+5
    if cfg.prio_dnn: p(f"s_setprio {cfg.prio_dnn}")
    p(f"s_mul_i32 s{S_COL}, s{S_CP}, 13")
    p(f"s_lshr_b32 s{S_COL}, s{S_COL}, 1")
    p(f"s_lshl_b32 s{S_COL}, s{S_COL}, 5")
    p(f"s_lshl2_add_u32 s{S_T}, s{S_RG}, s{S_W}")
    p(f"s_mul_i32 s{S_T}, s{S_T}, 3328")
    p(f"s_mul_i32 s{S_SM}, s{S_W}, {SLOT}")
    p(f"s_add_u32 s{S_T+1}, s{S_SM}, {8*SLOT}")
    p(f"s_mul_i32 s{S_SB}, s{S_W}, 53248")
    p(f"s_add_u32 s{S_SB}, s{S_SB}, s{S_COL}")
    p(f"s_mov_b32 m0, s{S_T+1}")
    p(f"s_movk_i32 s{S_K1}, 6656")
    p(f"s_movk_i32 s{S_K2}, 1440")
    p("v_lshlrev_b32 v2, 8, v0")
    p(f"v_add_u32 v3, 0x1000, v{V_L16}")
    def vo_calc(n):
        if n: p(f"v_add_u32 v4, {n*16384}, v2")
        p(f"v_mul_hi_u32_u24 v4, 0x124925, v{4 if n else 2}")
        p("v_bfe_u32 v5, v4, 2, 1")
        p("v_bfe_i32 v6, v4, 3, 1")
        p("v_add_u32 v5, v5, v6")
        p(f"v_mad_i32_i24 v5, v5, s{S_K1}, v{3 if n >= 4 else V_L16}")
        p(f"v_mad_u32_u24 v{VO(n)}, v4, s{S_K2}, v5")
    for n in range(4): vo_calc(n)
    p.wait0(lg=True)
    stamp(10)
    for n in range(4):
        p.vmem(f"buffer_load_dwordx4 v{V_L16}, s[{S_IDX}:{S_IDX+3}], s{S_T} offen offset:{1024*n} lds", "idx")
    def dma_ops(tag):
        g = []
        for n in range(7):
            pre = []
            if n == 0: pre = [f"s_mov_b32 m0, s{S_SM}", "s_nop 0"]
            if n == 4: pre = [f"s_add_u32 m0, s{S_SM}, 0x1000", "s_nop 0"]
            g.append((pre, f"buffer_load_dwordx4 v{VO(n)}, s[{S_W1}:{S_W1+3}], s{S_SB} offen offset:{1024*(n & 3)} lds", tag))
        return g
    def emit_dma(item):
        pre, ins, tag = item
        for x in pre: p(x)
        p.vmem(ins, tag)
    g = dma_ops("B0")
    for n in range(4): emit_dma(g[n])
    for n in range(4, 7): vo_calc(n)
    for n in range(4, 7): emit_dma(g[n])
    p(f"s_add_u32 s{S_SB}, s{S_SB}, 212992")
    p(f"s_add_u32 s{S_SM}, s{S_SM}, {4*SLOT}")
    for it in dma_ops("B1"): emit_dma(it)
    p(f"s_add_u32 s{S_SB}, s{S_SB}, 212992")
    p(f"s_add_u32 s{S_SM}, s{S_SM}, {4*SLOT}")
    p("v_lshrrev_b32 v1, 4, v0")
    p(f"v_lshlrev_b32 v239, 3, v1")
    for t in range(7):
        p.vmem(f"buffer_load_dwordx2 v[{RAW+2*t}:{RAW+2*t+1}], v239, s[{S_B1}:{S_B1+3}], s{S_COL} offen offset:{32*t}", "bias")
    stamp(11)
    p("s_barrier")
    p(f"v_lshlrev_b32 v{V_G16}, 4, v1")
    p("v_and_b32 v2, 15, v0")
    p(f"v_mul_u32_u24 v2, 104, v2")
    p(f"v_add_u32 v{V_IA}, s{S_T+1}, v2")
    p("v_lshrrev_b32 v2, 5, v0")
    p("v_bfe_u32 v3, v0, 2, 3")
    p("v_lshl_add_u32 v2, v2, 4, v3")
    p("v_mul_u32_u24 v2, 0xe0, v2")
    p("v_and_b32 v3, 3, v0")
    p(f"v_lshl_add_u32 v{V_BLO}, v3, 3, v2")
    p(f"v_add_u32 v{V_BHI}, {8*SLOT}, v{V_BLO}")
    p("v_mov_b32 v239, v0")
    p.wait(vm="idx")
    stamp(1)
    for m in range(13):
        p.lds(f"ds_read2_b64 v[{84+4*m}:{87+4*m}], v{V_IA} offset0:{m} offset1:{208+m}", f"ix{m}")
    def a_load(f):
        p.wait(lg=f"ix{f >> 1}")
        for q in range(2):
            p(f"v_lshl_add_u32 v{IDX(f, q)}, v{IDX(f, q)}, 6, v{V_G16}")
        for q in range(2):
            p.vmem(f"buffer_load_dwordx4 v[{AR(f, q)}:{AR(f, q)+3}], v{IDX(f, q)}, s[{S_TAB}:{S_TAB+3}], 0 offen", f"A{f}")
    for f in range(4): a_load(f)
    p.wait0(lg=True)
    for it in dma_ops("B2"): emit_dma(it)
    for f in range(4, cfg.D): a_load(f)
    stamp(12)
    p.wait(vm="bias")
    stamp(13)
    for t in range(7):
        for h in range(2):
            p(f"v_lshlrev_b32 v{ACC(t,0)+2*h}, 16, v{RAW+2*t+h}")
            p(f"v_and_b32 v{ACC(t,0)+2*h+1}, 0xffff0000, v{RAW+2*t+h}")
    arrive(C_R(0))
    check(C_R(0), 4)
    def b_read(f, t):
        s = f % 12
        base, off = (V_BLO, s*SLOT) if s < 8 else (V_BHI, (s-8)*SLOT)
        for r2 in range(2):
            p.lds(f"ds_read_b64_tr_b16 v[{BF(t)+2*r2}:{BF(t)+2*r2+1}], v{base} offset:{off + 32*t + 1792*r2}", f"b{f}_{t}")
    for t in range(7): b_read(0, t)
    stamp(2)
    pend = []
    for f in range(26):
        c, ph = divmod(f, 4)
        if ph == 2 and c + 1 <= 6:
            p.wait(vm=f"B{c+1}")
            arrive(C_R(c+1))
        if ph == 3 and c + 1 <= 6:
            check(C_R(c+1), 4, issued=True)
        if ph == 0 and 1 <= c <= 4:
            arrive(C_F(c-1))
        if ph == 1 and 1 <= c <= 4:
            check(C_F(c-1), 4, issued=True)
            p(f"s_add_u32 s{S_SB}, s{S_SB}, 212992")
            if (c+2) % 3 == 0: p(f"s_sub_u32 s{S_SM}, s{S_SM}, {8*SLOT}")
            else: p(f"s_add_u32 s{S_SM}, s{S_SM}, {4*SLOT}")
            pend = dma_ops(f"B{c+2}")
        for t in range(7):
            p.wait(vm=(f"A{f}",) if t == 0 else (), lg=f"b{f}_{t}")
            b = f"v[{BF(t)}:{BF(t)+3}]"
            a0, a1 = ACC(t, 0), ACC(t, 1)
            c1 = a0 if f == 0 else a1
            p(f"v_mfma_f32_16x16x32_bf16 v[{a1}:{a1+3}], {b}, v[{AR(f,1)}:{AR(f,1)+3}], v[{c1}:{c1+3}]")
            p(f"v_mfma_f32_16x16x32_bf16 v[{a0}:{a0+3}], {b}, v[{AR(f,0)}:{AR(f,0)+3}], v[{a0}:{a0+3}]")
            if f < 25: b_read(f+1, t)
            if pend: emit_dma(pend.pop(0))
            if t == 4:
                if ph == 2 and c + 1 <= 6: poll_issue(C_R(c+1))
                if ph == 0 and 1 <= c <= 4: poll_issue(C_F(c-1))
            if f == 18:
                if t == 0:
                    p("v_lshrrev_b32 v235, 4, v239")
                    p("v_lshlrev_b32 v235, 3, v235")
                p.vmem(f"buffer_load_dwordx2 v[{RAW+2*t}:{RAW+2*t+1}], v235, s[{S_W2}:{S_W2+3}], s{S_COL} offen offset:{32*t}", "w2")
        if f + cfg.D < 26: a_load(f + cfg.D)
        if f % 4 == 0: stamp(14 + f//4)
    stamp(3)
    CRAW = 74
    def cinit_loads(vlane, vt):
        p(f"v_lshrrev_b32 v{vt}, 5, v{vlane}")
        p(f"v_lshlrev_b32 v{vt+1}, 3, v{vt}")
        p(f"v_lshlrev_b32 v{vt}, 1, v{vt}")
        for a in range(3):
            p.vmem(f"buffer_load_dwordx2 v[{CRAW+2*a}:{CRAW+2*a+1}], v{vt+1}, s[{S_WCO}:{S_WCO+3}], 0 offen offset:{16*a}", "ci")
        p.vmem(f"buffer_load_ushort v{CRAW+6}, v{vt}, s[{S_WCO}:{S_WCO+3}], 0 offen offset:48", "ci")
        p(f"v_mov_b32 v{vt}, 0")
        p.vmem(f"global_load_ushort v{CRAW+7}, v{vt}, s[{S_BOUT}:{S_BOUT+1}]", "ci")
    W2R = lambda t, r: 88 + 4*t + r
    p.wait(vm="w2")
    cinit_loads(239, 84)
    for t in range(7):
        for h in range(2):
            p(f"v_lshlrev_b32 v{W2R(t,2*h)}, 16, v{RAW+2*t+h}")
            p(f"v_and_b32 v{W2R(t,2*h+1)}, 0xffff0000, v{RAW+2*t+h}")
    sk = L("even")
    p(f"s_bitcmp0_b32 s{S_CP}, 0")
    p(f"s_cbranch_scc1 {sk}")
    for r in range(4): p(f"v_mov_b32 v{W2R(0,r)}, 0")
    p.label(sk)
    k0 = -2.0*math.sqrt(2.0/math.pi)*math.log2(math.e)
    T1, T2, SUM, VC2 = 116, 120, 124, 128
    p(f"v_mov_b32 v{VC2}, {f2h(k0*0.044715)}")
    for r in range(4): p(f"v_mov_b32 v{SUM+r}, 0")
    for t in range(7):
        for q in range(2):
            x = ACC(t, q)
            for r in range(4): p(f"v_mul_f32 v{T1+r}, v{x+r}, v{x+r}")
            for r in range(4): p(f"v_fmaak_f32 v{T1+r}, v{T1+r}, v{VC2}, {f2h(k0)}")
            for r in range(4): p(f"v_mul_f32 v{T1+r}, v{T1+r}, v{x+r}")
            for r in range(4): p(f"v_exp_f32 v{T1+r}, v{T1+r}")
            for r in range(4): p(f"v_mul_f32 v{T2+r}, v{x+r}, v{W2R(t,r)}")
            for r in range(4): p(f"v_add_f32 v{T1+r}, 1.0, v{T1+r}")
            for r in range(4): p(f"v_rcp_f32 v{T1+r}, v{T1+r}")
            p("s_nop 0")
            for r in range(4): p(f"v_fmac_f32 v{SUM+2*q+(r&1)}, v{T1+r}, v{T2+r}")
    p(f"v_add_f32 v{SUM}, v{SUM}, v{SUM+1}")
    p(f"v_add_f32 v{SUM+2}, v{SUM+2}, v{SUM+3}")
    p("v_and_b32 v84, 15, v239")
    p("v_lshrrev_b32 v85, 5, v239")
    p(f"v_permlane32_swap_b32 v{SUM}, v{SUM+2}")
    p("v_lshl_add_u32 v84, v85, 4, v84")
    p(f"v_add_f32 v{SUM}, v{SUM}, v{SUM+2}")
    p("v_bfe_u32 v85, v239, 4, 1")
    p(f"v_mov_b32 v{SUM+1}, v{SUM}")
    p("v_lshlrev_b32 v84, 2, v84")
    p("v_lshl_add_u32 v84, v85, 30, v84")
    p(f"v_permlane16_swap_b32 v{SUM}, v{SUM+1}")
    p(f"s_lshl2_add_u32 s{S_T}, s{S_FB}, s{S_W}")
    p(f"v_add_f32 v{SUM}, v{SUM}, v{SUM+1}")
    p(f"s_lshl_b32 s{S_T}, s{S_T}, 7")
    p(f"v_mov_b32 v85, 0x7fc00000")
    p(f"v_cmp_eq_u32 vcc, -1, v{SUM}")
    p("s_nop 1")
    p(f"v_cndmask_b32 v{SUM}, v{SUM}, v85, vcc")
    check(C_WR, 4)
    p.vmem(f"buffer_store_dword v{SUM}, v84, s[{S_WS}:{S_WS+3}], s{S_T} offen sc1", "pub")
    stamp(4)
    S_ROW, S_N, S_RL = S_T+6, S_T+7, S_T+8
    p(f"s_lshl2_add_u32 s{S_ROW}, s{S_W}, 3")
    p(f"s_mov_b32 s{S_N}, 1")
    p(f"s_mov_b32 s{S_RL}, s{S_ROW}")
    p("v_mov_b32 v0, v239")
    if cfg.prio_dnn != cfg.prio_cin: p(f"s_setprio {cfg.prio_cin}")
    p("s_branch L_rows")

    p.vm.clear(); p.lg.clear()
    p.label("L_cin")
    S_C = S_W
    VT = 128
    TBL = 100
    VV = 110
    W3A = 96
    p(f"s_getpc_b64 s[{S_PC}:{S_PC+1}]")
    p.label("L_pc")
    p.wait0(lg=True)
    p(f"s_cmp_ge_u32 s{S_FB}, 26")
    p("s_cbranch_scc1 L_cidx")
    if cfg.prio_prep: p(f"s_setprio {cfg.prio_prep}")
    p(f"s_mul_i32 s{S_T}, s{S_C}, 9216")
    p(f"s_add_u32 s{S_T+1}, s{S_T}, 70304")
    p(f"s_add_u32 s{S_T}, s{S_T}, {P_W3}")
    for u in range(9):
        if u % 4 == 0:
            if u:
                p(f"s_add_u32 s{S_T}, s{S_T}, 0x1000")
                p(f"s_add_u32 s{S_T+1}, s{S_T+1}, 0x1000")
            p(f"s_mov_b32 m0, s{S_T}")
            p("s_nop 0")
        p(f"buffer_load_dwordx4 v234, s[{S_WCIN}:{S_WCIN+3}], s{S_T+1} offen offset:{1024*(u % 4)} lds")
    p("v_lshrrev_b32 v1, 4, v0")
    p("v_lshlrev_b32 v1, 4, v1")
    p(f"buffer_load_dwordx4 v[{W3A}:{W3A+3}], v1, s[{S_WCO}:{S_WCO+3}], 0 offen offset:104")
    p(f"s_and_b32 s{S_T}, s{S_C}, 1")
    p(f"s_lshl_b32 s{S_T}, s{S_T}, 11")
    p(f"s_add_u32 s{S_T}, s{S_T}, gather_table-L_pc")
    p("v_lshlrev_b32 v1, 5, v0")
    p(f"v_add_u32 v1, s{S_T}, v1")
    p(f"global_load_dwordx4 v[{TBL}:{TBL+3}], v1, s[{S_PC}:{S_PC+1}]")
    p(f"global_load_dwordx4 v[{TBL+4}:{TBL+7}], v1, s[{S_PC}:{S_PC+1}] offset:16")
    p(f"s_cmp_lg_u32 s{S_C}, 0")
    p("s_cbranch_scc1 L_pnot0")
    p("v_lshrrev_b32 v1, 5, v0")
    p("v_mul_u32_u24 v1, 0x2a40, v1")
    p("v_and_b32 v2, 31, v0")
    p("v_lshl_add_u32 v1, v2, 1, v1")
    p(f"s_mul_i32 s{S_T}, s{S_FB}, 52")
    p(f"s_add_u32 s{S_T}, s{S_T}, 35152")
    for u in range(16):
        if u and u % 4 == 0:
            p(f"s_add_u32 s{S_T}, s{S_T}, {(4 if u != 8 else 12)*1352}")
        p(f"buffer_load_ushort v{VV+u}, v1, s[{S_WCIN}:{S_WCIN+3}], s{S_T} offen offset:{1352*(u % 4)}")
    p.label("L_pnot0")
    p(f"s_cmp_lg_u32 s{S_C}, 1")
    p("s_cbranch_scc1 L_pnot1")
    p(f"s_mul_i32 s{S_T}, s{S_FB}, 1352")
    p(f"s_mov_b32 m0, {P_W1}")
    p("s_nop 0")
    for u in range(2):
        p(f"buffer_load_dwordx4 v234, s[{S_WCIN}:{S_WCIN+3}], s{S_T} offen offset:{1024*u} lds")
    p.label("L_pnot1")
    p("v_lshlrev_b32 v1, 2, v0")
    p(f"buffer_load_dword v126, v1, s[{S_WCO}:{S_WCO+3}], 0 offen offset:52")
    p("v_mov_b32 v2, 0")
    p("v_mov_b32 v3, 0")
    p(f"s_lshl_b32 s{S_T}, s{S_C}, 9")
    p(f"s_add_u32 s{S_T}, s{S_T}, {P_M3T}")
    p(f"v_lshl_add_u32 v4, v0, 3, s{S_T}")
    p("ds_write_b64 v4, v[2:3]")
    p(f"v_add_u32 v4, {P_Z}, v1")
    p("ds_write_b32 v4, v2")
    p(f"s_cmp_ge_u32 s{S_FB}, 16")
    p("s_cbranch_scc1 L_cidx")
    for r in range(4): p(f"v_mov_b32 v{4+r}, -1")
    p(f"s_lshl2_add_u32 s{S_T}, s{S_FB}, s{S_C}")
    p(f"s_lshl_b32 s{S_T}, s{S_T}, 11")
    for u in range(2):
        p(f"buffer_store_dwordx4 v[4:7], v234, s[{S_WS}:{S_WS+3}], s{S_T} offen offset:{1024*u} sc1")
    p.label("L_cidx")
    p(f"s_lshl2_add_u32 s{S_T+2}, s{S_FB}, s{S_C}")
    p(f"s_mul_i32 s{S_T+2}, s{S_T+2}, 416")
    p("v_and_b32 v1, 0x3c, v0")
    for n in range(7):
        p(f"buffer_load_dword v{VT+n}, v1, s[{S_IDX}:{S_IDX+3}], s{S_T+2} offen offset:{64*n}")
    if cfg.prefetch_code:
        sk = L("nopf")
        p(f"s_cmp_lg_u32 s{S_C}, 2")
        p(f"s_cbranch_scc1 {sk}")
        p(f"s_lshl_b32 s{S_T}, s{S_CP}, 12")
        p(f"v_lshl_add_u32 v2, v0, 6, s{S_T}")
        p(f"v_min_u32 v2, gather_table-L_pc, v2")
        p(f"global_load_dword v127, v2, s[{S_PC}:{S_PC+1}]")
        p.label(sk)
    cinit_loads(0, 8)
    p("s_barrier")
    p("v_and_b32 v1, 3, v0")
    p("v_lshlrev_b32 v1, 4, v1")
    p(f"s_mul_i32 s{S_T+3}, s{S_C}, 6656")
    p(f"s_add_u32 s{S_T+3}, s{S_T+3}, {XO}")
    p.wait0(vm=True)
    stamp(1)
    p(f"s_cmp_ge_u32 s{S_FB}, 26")
    p("s_cbranch_scc1 L_cx")
    p(f"s_cmp_lg_u32 s{S_C}, 3")
    p("s_cbranch_scc1 L_not3")
    p("v_lshlrev_b32 v2, 2, v0")
    p(f"v_add_u32 v2, {P_M3T + 26*64}, v2")
    p("s_mov_b64 exec, 0x1fff")
    p("ds_write_b32 v2, v126")
    p("s_mov_b64 exec, -1")
    p.label("L_not3")
    p.wait0(lg=True)
    arrive(C_PA)
    p.label("L_cx")
    for n in range(7):
        p(f"v_lshl_add_u32 v{VT+n}, v{VT+n}, 6, v1")
    for n in range(7):
        p(f"s_add_u32 m0, s{S_T+3}, {1024*n}")
        p("s_mov_b32 exec_hi, 0" if n == 6 else "s_nop 0")
        p(f"buffer_load_dwordx4 v{VT+n}, s[{S_TAB}:{S_TAB+3}], 0 offen lds")
    p("s_mov_b64 exec, -1")
    p(f"s_cmp_ge_u32 s{S_FB}, 26")
    p("s_cbranch_scc1 L_poll")
    AQ = 140
    p("v_bfe_u32 v1, v0, 2, 2")
    for q in range(4):
        p(f"v_cmp_eq_u32 vcc, {q}, v1")
        p("s_nop 1")
        for r in range(4): p(f"v_cndmask_b32 v{AQ+4*q+r}, 0, v{W3A+r}, vcc")
    p("v_lshrrev_b32 v4, 4, v0")
    p("v_lshl_add_u32 v4, v4, 3, v1")
    p("v_add_u32 v5, 4, v4")
    p("v_min_u32 v4, 25, v4")
    p("v_min_u32 v5, 25, v5")
    p("v_and_b32 v6, 3, v0")
    p(f"s_mul_i32 s{S_T}, s{S_C}, 384")
    p(f"s_add_u32 s{S_T}, s{S_T}, {P_W3}")
    p(f"v_lshl_add_u32 v6, v6, 3, s{S_T}")
    p(f"s_movk_i32 s{S_T+1}, 1352")
    p(f"v_mad_u32_u24 v2, v4, s{S_T+1}, v6")
    p(f"v_mad_u32_u24 v3, v5, s{S_T+1}, v6")
    p(f"s_mul_i32 s{S_T}, s{S_C}, 192")
    p(f"s_movk_i32 s{S_T+1}, -1662")
    p(f"v_mov_b32 v7, {P_DUM}")
    for u in range(3):
        p(f"v_add_u32 v4, s{S_T}, v0")
        if u < 2: p(f"s_add_u32 s{S_T}, s{S_T}, 64")
        p("v_mul_u32_u24 v5, 2521, v4")
        p("v_lshrrev_b32 v5, 16, v5")
        p("v_cmp_gt_u32 vcc, 0x2a4, v4")
        p("v_lshlrev_b32 v4, 6, v4")
        p(f"v_mad_i32_i24 v4, v5, s{S_T+1}, v4")
        p(f"v_add_u32 v4, {P_M3T}, v4")
        p(f"v_cndmask_b32 v{8+u}, v7, v4, vcc")
    VF = 156
    for u in range(8):
        p(f"v_lshl_or_b32 v{VF+u}, v{VV+2*u+1}, 16, v{VV+2*u}")
    GA = 164
    for u in range(8):
        p(f"v_and_b32 v{GA+2*u}, 0xffff, v{TBL+u}")
        p(f"v_lshrrev_b32 v{GA+2*u+1}, 16, v{TBL+u}")
    p(f"v_mov_b32 v11, {WO}")
    for u in range(16): p(f"v_add_u32 v{GA+u}, v11, v{GA+u}")
    check(C_PA, 4)
    stamp(9)
    MB = 180
    for T in range(12):
        p.lds(f"ds_read_b64_tr_b16 v[{MB+4*T}:{MB+4*T+1}], v2 offset:{32*T}", f"m{T}")
        p.lds(f"ds_read_b64_tr_b16 v[{MB+4*T+2}:{MB+4*T+3}], v3 offset:{32*T}", f"m{T}")
        if T >= 6:
            pass
    for T in range(12):
        u, q = divmod(T, 4)
        p.wait(lg=f"m{T}")
        cc = "0" if q == 0 else f"v[{12+4*u}:{15+4*u}]"
        p(f"v_mfma_f32_16x16x32_bf16 v[{12+4*u}:{15+4*u}], v[{AQ+4*q}:{AQ+4*q+3}], v[{MB+4*T}:{MB+4*T+3}], {cc}")
    p("s_nop 5")
    for u in range(3):
        p(f"v_cvt_pk_bf16_f32 v{24+u}, v{12+4*u}, v{12+4*u}")
    for u in range(3):
        p(f"ds_write_b16 v{8+u}, v{24+u}")
    p.wait0(lg=True)
    arrive(C_PB)
    p(f"s_cmp_ge_u32 s{S_C}, 2")
    p("s_cbranch_scc1 L_pdone")
    p("v_lshrrev_b32 v1, 1, v0")
    p("v_and_b32 v2, 1, v0")
    p(f"s_mul_i32 s{S_T}, s{S_FB}, 1536")
    p(f"s_add_u32 s{S_T}, s{S_T}, {WS_W}")
    p(f"s_cmp_eq_u32 s{S_C}, 0")
    p("s_cbranch_scc1 L_pT")
    p("v_lshlrev_b32 v1, 2, v1")
    for u in range(16): p(f"v_mov_b32 v{MB+u}, 0")
    for u in range(16): p(f"ds_read_u16_d16_hi v{MB+u}, v{GA+u}")
    p("s_mov_b32 exec_hi, 0xfff")
    p("s_branch L_pfin")
    p.label("L_pT")
    p("v_lshl_add_u32 v3, v1, 1, 1")
    p("v_add_u32 v1, 22, v1")
    p("v_min_u32 v1, v1, v3")
    p("v_lshlrev_b32 v1, 1, v1")
    p("v_and_b32 v3, 31, v0")
    p("v_lshrrev_b32 v4, 5, v0")
    p("v_lshlrev_b32 v5, 6, v3")
    p("v_lshl_add_u32 v5, v4, 4, v5")
    p(f"v_add_u32 v5, {P_M3T}, v5")
    p("v_mul_u32_u24 v3, 0x90, v3")
    p("v_lshl_add_u32 v3, v4, 4, v3")
    p(f"v_add_u32 v3, {P_D1}, v3")
    check(C_PB, 4)
    p("ds_read_b128 v[12:15], v5")
    p("ds_read_b128 v[16:19], v5 offset:32")
    p("s_waitcnt lgkmcnt(1)")
    p(f"v_mfma_f32_32x32x16_bf16 v[{MB}:{MB+15}], v[{VF}:{VF+3}], v[12:15], 0")
    p("s_waitcnt lgkmcnt(0)")
    p(f"v_mfma_f32_32x32x16_bf16 v[{MB}:{MB+15}], v[{VF+4}:{VF+7}], v[16:19], v[{MB}:{MB+15}]")
    p("s_nop 11")
    for a in range(4): p(f"ds_write_b128 v3, v[{MB+4*a}:{MB+4*a+3}] offset:{32*a}")
    p("s_waitcnt lgkmcnt(0)")
    for u in range(16): p(f"ds_read_b32 v{MB+u}, v{GA+u}")
    p("s_mov_b32 exec_hi, 0xffff")
    p.label("L_pfin")
    p("v_add_lshl_u32 v1, v1, v2, 4")
    p("s_waitcnt lgkmcnt(0)")
    for e in range(8): p(f"v_add_f32 v{MB+2*e}, v{MB+2*e}, v{MB+2*e+1}")
    for e in range(4): p(f"v_cvt_pk_bf16_f32 v{4+e}, v{MB+4*e}, v{MB+4*e+2}")
    p(f"buffer_store_dwordx4 v[4:7], v1, s[{S_WS}:{S_WS+3}], s{S_T} offen sc1")
    p("s_mov_b64 exec, -1")
    p.label("L_pdone")
    p.wait0(vm=True)
    stamp(6)
    p("s_mov_b64 exec, 1")
    p(f"ds_add_rtn_u32 v1, v{V_C}, v{V_ONE} offset:{C_PC}")
    p("v_mov_b32 v2, 0")
    p("s_waitcnt lgkmcnt(0)")
    p(f"v_readfirstlane_b32 s{S_T}, v1")
    p(f"s_cmp_lg_u32 s{S_T}, 3")
    p("s_cbranch_scc1 L_psig")
    p(f"global_atomic_add v1, v2, v{V_ONE}, s[{S_DBG}:{S_DBG+1}] sc0 sc1")
    p("s_waitcnt vmcnt(0)")
    p(f"v_readfirstlane_b32 s{S_T}, v1")
    p(f"s_cmp_lg_u32 s{S_T}, 25")
    p("s_cbranch_scc1 L_psig")
    p(f"global_store_dword v2, v{V_ONE}, s[{S_DBG}:{S_DBG+1}] offset:128 sc1")
    p.label("L_psig")
    p("s_mov_b64 exec, -1")
    p(f"s_setprio {cfg.prio_cin}")
    p.label("L_poll")
    p("v_lshrrev_b32 v1, 3, v0")
    p("v_and_b32 v2, 7, v0")
    p("v_mul_u32_u24 v3, 0x600, v1")
    p("v_lshl_add_u32 v3, v2, 4, v3")
    p("v_mul_u32_u24 v4, 0x210, v2")
    p(f"s_mul_i32 s{S_T}, s{S_C}, {24*528}")
    p(f"s_add_u32 s{S_T}, s{S_T}, {WO}")
    p(f"v_add_u32 v4, s{S_T}, v4")
    p("v_lshl_add_u32 v5, v1, 4, v4")
    p("v_cmp_eq_u32 vcc, 1, v1")
    p("v_add_u32 v6, 48, v5")
    p("v_subrev_u32 v7, 48, v5")
    p("v_cndmask_b32 v6, v5, v6, vcc")
    p("v_cmp_eq_u32 vcc, 4, v1")
    p(f"s_mul_i32 s{S_T}, s{S_C}, 384")
    p(f"s_add_u32 s{S_T}, s{S_T}, {WS_W}")
    p("v_cndmask_b32 v6, v6, v7, vcc")
    p(f"s_cmp_lg_u32 s{S_C}, 0")
    p("s_cbranch_scc1 L_pollo")
    p("v_mov_b32 v1, 0")
    p("s_mov_b64 exec, 1")
    p.label("L_pollg")
    p(f"global_load_dword v2, v1, s[{S_DBG}:{S_DBG+1}] offset:128 sc1")
    p("s_waitcnt vmcnt(0)")
    p(f"v_readfirstlane_b32 s{S_T+1}, v2")
    p(f"s_cmp_lg_u32 s{S_T+1}, 0")
    p("s_cbranch_scc1 L_pollgd")
    p(f"s_sleep {cfg.poll_sleep}")
    p(f"s_sub_u32 s{S_SPIN}, s{S_SPIN}, 1")
    p("s_cbranch_scc0 L_pollg")
    p("s_endpgm")
    p.label("L_pollgd")
    p(f"ds_add_u32 v{V_C}, v{V_ONE} offset:{C_FLAG}")
    p("s_mov_b64 exec, -1")
    p("s_branch L_wload")
    p.label("L_pollo")
    check(C_FLAG, 1, sleep=1)
    p.label("L_wload")
    stamp(2)
    p.vm.clear(); p.lg.clear()
    for J in range(4):
        if J: p(f"s_add_u32 s{S_T}, s{S_T}, 12288")
        for Fi in range(3):
            r = VT + 4*(3*J + Fi)
            p.vmem(f"buffer_load_dwordx4 v[{r}:{r+3}], v3, s[{S_WS}:{S_WS+3}], s{S_T} offen offset:{128*Fi} sc1", f"w{J}{Fi}")
    for J in range(4):
        for Fi in range(3):
            r = VT + 4*(3*J + Fi)
            p.wait(vm=f"w{J}{Fi}")
            p(f"ds_write_b128 v{6 if J == 3 else 5}, v[{r}:{r+3}] offset:{4224*Fi + 128*J}")
    p.wait0(lg=True)
    arrive(C_WR)
    p(f"s_lshl_b32 s{S_ROW}, s{S_C}, 2")
    p(f"s_mov_b32 s{S_N}, 3")
    p(f"s_add_u32 s{S_RL}, s{S_ROW}, 2")
    check(C_WR, 4)
    stamp(3)

    p.label("L_rows")
    AX, AT, CI, X0 = 0, 16, 32, 48
    Z = [74, 78]; PT = 82; ZL = 90
    XA = {1: 98, -3: 99, -1: 100}; WA = 101; SM = [102, 103, 104]; MBX = [105, 106, 107]; VMB = 108; VBO = 109; VL = 110
    RING = 112; RES = RING + 4*cfg.R
    assert RES + 4*cfg.NRES <= 256
    S_MB, S_NR = S_T+9, S_T+10
    p(f"v_mov_b32 v{VL}, v0")
    p(f"s_mov_b32 s{S_NR}, s{S_N}")
    p(f"s_mul_i32 s{S_T}, s{S_ROW}, 1664")
    p(f"s_add_u32 s{S_T}, s{S_T}, {XO}")
    p("v_and_b32 v1, 31, v0")
    p("v_lshrrev_b32 v2, 5, v0")
    p(f"v_lshl_add_u32 v3, v1, 1, s{S_T}")
    p(f"v_lshl_add_u32 v{XA[1]}, v2, 6, v3")
    p("v_mul_u32_u24 v4, 0xc0, v2")
    p(f"v_sub_u32 v{XA[-3]}, v3, v4")
    p("v_lshlrev_b32 v4, 6, v2")
    p(f"v_sub_u32 v{XA[-1]}, v3, v4")
    p("v_mul_u32_u24 v4, 0x210, v2")
    p("v_lshl_add_u32 v4, v1, 4, v4")
    p(f"v_add_u32 v{WA}, {WO}, v4")
    for r in range(26): p(f"v_mov_b32 v{X0+r}, 0")
    def x_read(r, d):
        p.lds(f"ds_read_u16_d16_hi v{X0+r}, v{XA[pi(r)-r]} offset:{64*r + d}", f"x{r}")
    for r in range(26): x_read(r, 0)
    order = []
    for n in range(22):
        order.append(("X", n)); order.append(("T", n))
        if n == 14: order.append(("T", 22))
        if n == 18: order.append(("T", 23))
    fr_of = lambda k, n: (2*n if k == "X" else 2*n + 1) if n < 22 else n + 22
    nn = 46 - cfg.NRES
    assert nn % cfg.R == 0
    nonres = [int((u + 0.5)*46/nn) for u in range(nn)]
    wreg = {}; rr = 0
    for k in range(46):
        if k in nonres: wreg[k] = RING + 4*(nonres.index(k) % cfg.R)
        else: wreg[k] = RES + 4*rr; rr += 1
    def w_read(k):
        p.lds(f"ds_read_b128 v[{wreg[k]}:{wreg[k]+3}], v{WA} offset:{1056*fr_of(*order[k])}", f"w{k}")
    p.wait0(vm=True)
    for a in range(3):
        for h in range(2):
            p(f"v_lshlrev_b32 v{CI+4*a+2*h}, 16, v{CRAW+2*a+h}")
            p(f"v_and_b32 v{CI+4*a+2*h+1}, 0xffff0000, v{CRAW+2*a+h}")
    p(f"v_lshlrev_b32 v{CI+12}, 16, v{CRAW+6}")
    for r in range(13, 16): p(f"v_mov_b32 v{CI+r}, 0")
    p(f"v_lshlrev_b32 v{VBO}, 16, v{CRAW+7}")
    for k in range(46):
        if k not in nonres or nonres.index(k) < cfg.R: w_read(k)
    p("v_lshrrev_b32 v1, 3, v0")
    p("v_min_u32 v1, 1, v1")
    p("v_lshlrev_b32 v2, 9, v0")
    p(f"v_lshl_add_u32 v{VMB}, v1, 30, v2")
    p(f"s_lshl4_add_u32 s{S_MB}, s{S_CP}, s{S_RL}")
    p(f"s_lshl_b32 s{S_T+1}, s{S_RG}, 7")
    p(f"s_add_u32 s{S_T+1}, s{S_T+1}, s{S_MB}")
    p(f"s_lshl_b32 s{S_T+11}, s{S_T+1}, 1")
    p(f"s_lshl_b32 s{S_T}, s{S_RG}, 10")
    p(f"s_add_u32 s{S_MB}, s{S_MB}, s{S_T}")
    p(f"s_sub_u32 s{S_MB}, s{S_MB}, 2")
    p(f"s_lshl_b32 s{S_MB}, s{S_MB}, 2")
    p.wait0(lg=True)
    def z_ops(n):
        ops = []
        for e in range(4):
            t = PT + 2*(e % 4)
            (a, b), (c, d) = S[8*n + 2*e], S[8*n + 2*e + 1]
            ops.append(("v", f"v_mul_f32 v{t}, v{X0+a}, v{X0+b}", (a, b)))
            ops.append(("v", f"v_mul_f32 v{t+1}, v{X0+c}, v{X0+d}", (c, d)))
        cv = [("v", f"v_cvt_pk_bf16_f32 v{Z[n % 2]+e}, v{PT+2*e}, v{PT+2*e+1}", ()) for e in range(4)]
        return ops[0:4] + cv[0:1] + ops[4:6] + cv[1:2] + ops[6:8] + cv[2:4]
    for o in z_ops(0): p(o[1])
    for d in XA.values(): p(f"v_add_u32 v{d}, 0x680, v{d}")
    stamp(5)
    def mfma(k):
        kind, n = order[k]
        zb = Z[n % 2] if n < 22 else ZL + 4*(n - 22)
        acc = AX if kind == "X" else AT
        cc = f"v[{acc}:{acc+15}]"
        if n == 0: cc = "0" if kind == "X" else f"v[{CI}:{CI+15}]"
        return f"v_mfma_f32_32x32x16_bf16 v[{acc}:{acc+15}], v[{wreg[k]}:{wreg[k]+3}], v[{zb}:{zb+3}], {cc}"
    lin_ops = []
    for u in range(8):
        a = LIN[min(2*u, 12)]; b = LIN[min(2*u + 1, 12)]
        lin_ops.append(("v", f"v_cvt_pk_bf16_f32 v{ZL+u}, v{X0+a}, v{X0+b}", (a, b)))
    def body(emit_mb):
        groups = [z_ops(n) for n in range(1, 22)] + [z_ops(0)]
        groups[10] = lin_ops[:7] + groups[10]
        flat = [(g, o) for g, ops in enumerate(groups) for o in ops]
        lastuse = {}
        for i, (g, o) in enumerate(flat):
            if g < 21:
                for r in o[2]: lastuse[r] = i
        for r in range(26): lastuse.setdefault(r, -1)
        k = 0
        for g, ops in enumerate(groups):
            mf = [kk for kk in range(46) if order[kk] in (("X", g), ("T", g))]
            if g == 14: mf.append(order.index(("T", 22)))
            if g == 18: mf.append(order.index(("T", 23)))
            items = []
            base = sum(len(x) for x in groups[:g])
            if g == 0:
                for r in range(26):
                    if lastuse[r] == -1: items.append(("x", r))
            for i, o in enumerate(ops):
                items.append(o)
                for r in range(26):
                    if lastuse[r] == base + i: items.append(("x", r))
            if g == 21:
                pos = [0, 0]
            else:
                n_it = len(items)
                pos = [2 + (j*n_it)//len(mf) for j in range(len(mf))]
            j = 0
            for i, it in enumerate(items + [None]):
                while j < len(mf) and pos[j] <= i:
                    kk = mf[j]
                    if g == 21 and j == 0: p("s_nop 1")
                    p.wait(lg=f"w{kk}")
                    p(mfma(kk))
                    if kk in nonres:
                        w_read(nonres[(nonres.index(kk) + cfg.R) % nn])
                    j += 1
                if it is None: break
                if it[0] == "x": x_read(it[1], 0)
                else:
                    p.wait(lg=tuple(f"x{r}" for r in it[2]))
                    p(it[1])
            if g == 15: emit_mb()
        p(f"v_mov_b32 v{SM[2]}, v{SM[1]}")
        p(f"v_mov_b32 v{SM[1]}, v{SM[0]}")
        for d in XA.values(): p(f"v_add_u32 v{d}, 0x680, v{d}")
        p(f"v_mul_f32 v{SM[0]}, v{AX}, v{AT}")
        p(f"v_mul_f32 v{PT}, v{AX+1}, v{AT+1}")
        for r in range(2, 13):
            p(f"v_fmac_f32 v{SM[0] if r % 2 == 0 else PT}, v{AX+r}, v{AT+r}")
        p(f"s_sub_u32 s{S_N}, s{S_N}, 1")
        p(f"v_add_f32 v{SM[0]}, v{SM[0]}, v{PT}")
    def mb_loads():
        for k in range(3):
            p(f"buffer_load_dword v{MBX[k]}, v{VMB}, s[{S_WS}:{S_WS+3}], s{S_MB} offen offset:{8-4*k} sc1")
    def emit_mb():
        sk = L("nomb")
        p(f"s_cmp_lg_u32 s{S_N}, 1")
        p(f"s_cbranch_scc1 {sk}")
        mb_loads()
        p.label(sk)
    p(f"v_mov_b32 v{ZL+7}, 0")
    save = p.L; p.L = []
    body(lambda: None)
    st1 = list(p.lg.q)
    p.L = save
    p(".p2align 3")
    p.label("L_row")
    body(emit_mb)
    assert st1 == p.lg.q
    p(f"s_cmp_lg_u32 s{S_N}, 0")
    p("s_cbranch_scc1 L_row")
    stamp(6 if False else 7)
    p.label("L_mbw")
    p("s_waitcnt vmcnt(0)")
    p(f"v_max3_u32 v1, v{MBX[0]}, v{MBX[1]}, v{MBX[2]}")
    p("v_cmp_eq_u32 vcc, -1, v1")
    p("s_nop 1")
    p("s_cmp_eq_u64 vcc, 0")
    p("s_cbranch_scc1 L_mbok")
    p("s_sleep 1")
    mb_loads()
    p(f"s_sub_u32 s{S_SPIN}, s{S_SPIN}, 1")
    p("s_cbranch_scc0 L_mbw")
    p("s_endpgm")
    p.label("L_mbok")
    for k in range(3): p(f"v_add_f32 v{SM[k]}, v{SM[k]}, v{MBX[k]}")
    for ctl in ("quad_perm:[1,0,3,2] row_mask:0xf", "quad_perm:[2,3,0,1] row_mask:0xf", "row_half_mirror row_mask:0xf",
                "row_mirror row_mask:0xf", "row_bcast:15 row_mask:0xa", "row_bcast:31 row_mask:0xc"):
        for k in range(3): p(f"v_add_f32_dpp v{SM[k]}, v{SM[k]}, v{SM[k]} {ctl} bank_mask:0xf")
    for k in range(3): p(f"v_add_f32 v{SM[k]}, v{SM[k]}, v{VBO}")
    for k in range(3): p(f"v_cvt_pk_bf16_f32 v{SM[k]}, v{SM[k]}, v{SM[k]}")
    p(f"v_mov_b32 v1, s{S_T+11}")
    p("s_mov_b32 exec_lo, 0")
    p("s_mov_b32 exec_hi, 0x80000000")
    p(f"global_store_short v1, v{SM[0]}, s[{S_OUT}:{S_OUT+1}]")
    p(f"s_cmp_eq_u32 s{S_NR}, 1")
    p("s_cbranch_scc1 L_fin")
    p(f"global_store_short v1, v{SM[1]}, s[{S_OUT}:{S_OUT+1}] offset:-2")
    p(f"global_store_short v1, v{SM[2]}, s[{S_OUT}:{S_OUT+1}] offset:-4")
    p.label("L_fin")
    if cfg.stamps:
        stamp(8)
        p("s_mov_b64 exec, 1")
        p(f"s_lshl3_add_u32 s{S_T}, s2, s{S_WAVE}")
        p(f"s_lshl_b32 s{S_T}, s{S_T}, 7")
        p(f"s_add_u32 s{S_T}, s{S_T}, {WS_STAMP}")
        p(f"v_mov_b32 v1, s{S_T}")
        p("s_memtime s[68:69]")
        p("s_waitcnt lgkmcnt(0)")
        p(f"s_sub_u32 s{S_ST+29}, s68, s100")
        for i in range(30):
            p(f"v_mov_b32 v2, s{S_ST+i}")
            p(f"global_store_dword v1, v2, s[{S_WS}:{S_WS+1}] offset:{4*i}")
    p.label("L_end")
    p("s_endpgm")
    p(".p2align 6")
    p(".type gather_table,@object")
    p.label("gather_table")
    zt = P_Z - WO
    for role in range(2):
        for lane in range(64):
            s, half = lane >> 1, lane & 1
            ad = []
            for e in range(8):
                pr = slot_pair(s, half, e) if s < (24 if role == 0 else 22) else None
                at = (lambda j, k: P_D1 - WO + k*144 + j*4) if role == 0 else (lambda j, k: P_W1 - WO + (j*26 + k)*2)
                if pr is None: ad += [zt, zt]
                elif pr[1] is None: ad += [at(pr[0], 26), zt]
                elif pr[0] == pr[1] or norm(pr) == (24, 25): ad += [at(*pr), zt]
                else: ad += [at(pr[0], pr[1]), at(pr[1], pr[0])]
            p(".short " + ", ".join(str(a) for a in ad))
    p(".size gather_table, 4096")
    return p

HEADER = """; xDeepFM (CIN + DNN) forward, one launch, 256 workgroups x 8 waves.
; Kernarg: idx, table, ws_cin, w_cin_out, w_dnn1, b_dnn1, w_dnn2, b_out, out, debug, ws
; @launch grid=(256,1,1) block=(512,1,1) lds=%d
.amdgcn_target "amdgcn-amd-amdhsa--gfx950"
.text
""" % LDS_SIZE
FOOTER = f""".section .rodata,"a"
.p2align 6
.amdhsa_kernel {NAME}
  .amdhsa_next_free_vgpr 256
  .amdhsa_next_free_sgpr 102
  .amdhsa_accum_offset 256
  .amdhsa_group_segment_fixed_size 0
  .amdhsa_kernarg_size 88
  .amdhsa_user_sgpr_count 2
  .amdhsa_user_sgpr_kernarg_segment_ptr 1
  .amdhsa_system_sgpr_workgroup_id_x 1
  .amdhsa_float_denorm_mode_32 3
.end_amdhsa_kernel
"""
if __name__ == "__main__":
    out = sys.argv[1]
    for a in sys.argv[2:]:
        k, v = a.split("=")
        setattr(cfg, k, type(getattr(cfg, k))(int(v)))
    open(out, "w").write(HEADER + build().text() + FOOTER)
```

```python
import sys, struct, math
from asmlib import *
from slots import *

NAME = "standalone__deep_cross_xdeepfm__recsys_kernel"
class Cfg:
    stamps = False
    NCIN = 4
    RA = 3
    NRES = 31
    R = 3
    prio_dnn = 2
    prio_cin = 0
    prio_prep = 3
    prefetch_code = True
    poll_sleep = 4
    pfB = 1
    probe = 0
    spin_sleep = 0
    preB = 3
    nt_tab = 0
    nt_x = 0
    nt_w1 = 0
    nt_idx = 0
    nt_pf = 0
cfg = Cfg()

SLOT = 7168
RB = 8
AO = RB*SLOT
XO = 12*SLOT
WO = XO + 16*1664
CO = WO + 96*528
LDS_SIZE = 163840
assert CO + 512 == LDS_SIZE
P_W3 = WO; P_M3T = WO + 36864; P_D1 = WO + 38912; P_W1 = WO + 43520; P_Z = WO + 45568; P_DUM = WO + 45824
C_S = lambda f: 4*f
C_I, C_PA, C_PB, C_PC, C_FLAG, C_WR = 112, 116, 120, 124, 128, 132
MBOX = 0; WS_W = 131072; WS_END = WS_W + 26*1536; WS_STAMP = 1 << 20
S_IDX, S_TAB, S_W1, S_WCIN, S_WCO, S_B1, S_W2, S_WS = 4, 8, 12, 16, 20, 24, 28, 32
S_BOUT, S_OUT, S_DBG = 36, 38, 40
S_WAVE, S_RG, S_CP, S_FB, S_COL, S_W = 42, 43, 44, 45, 46, 47
S_T = 48
S_PC = 64
S_SPIN = 66
S_ST = 70
V_C, V_ONE, V_POLL, V_L = 162, 163, 164, 165
STARTS = [0, 7, 13, 20, 27, 33, 40, 45]
NMASK = [0, 0, 1, 0, 0, 1, 0, 2]

def f2h(x): return "0x%08x" % struct.unpack("<I", struct.pack("<f", x))[0]
def nt(flag): return " nt" if flag else ""

def build():
    p = Prog()
    lab = [0]
    NR = 16//cfg.NCIN
    def L(n):
        lab[0] += 1
        return f"L_{n}_{lab[0]}"
    def stamp(i):
        if cfg.stamps:
            p(f"s_memrealtime s[68:69]")
            p.wait0(lg=True)
            p(f"s_mov_b32 s{S_ST+i}, s68")
    def stamps_out():
        if not cfg.stamps: return
        stamp(8)
        p("s_mov_b64 exec, 1")
        p(f"s_lshl4_add_u32 s{S_T}, s2, s{S_WAVE}")
        p(f"s_lshl_b32 s{S_T}, s{S_T}, 7")
        p(f"s_add_u32 s{S_T}, s{S_T}, {WS_STAMP}")
        p(f"v_mov_b32 v1, s{S_T}")
        p("s_memtime s[68:69]")
        p("s_waitcnt lgkmcnt(0)")
        p(f"s_sub_u32 s{S_ST+29}, s68, s100")
        for i in range(30):
            p(f"v_mov_b32 v2, s{S_ST+i}")
            p(f"global_store_dword v1, v2, s[{S_WS}:{S_WS+1}] offset:{4*i}")
    def arrive(off):
        p("s_mov_b64 exec, 1")
        p.lds(f"ds_add_u32 v{V_C}, v{V_ONE} offset:{off}", "arr")
        p("s_mov_b64 exec, -1")
    def poll_issue(off):
        p.lds(f"ds_read_b32 v{V_POLL}, v{V_C} offset:{off}", "poll")
    def check(off, target, issued=False, sleep=0):
        ok = L("ok"); sp = L("spin")
        if issued:
            p.wait(lg="poll")
            p(f"v_readfirstlane_b32 s{S_T+15}, v{V_POLL}")
            p(f"s_cmp_ge_u32 s{S_T+15}, {target}")
            p(f"s_cbranch_scc1 {ok}")
        p.label(sp)
        if sleep: p(f"s_sleep {sleep}")
        p(f"ds_read_b32 v{V_POLL}, v{V_C} offset:{off}")
        p("s_waitcnt lgkmcnt(0)")
        p(f"v_readfirstlane_b32 s{S_T+15}, v{V_POLL}")
        p(f"s_sub_u32 s{S_SPIN}, s{S_SPIN}, 1")
        p("s_cbranch_scc1 L_end")
        p(f"s_cmp_ge_u32 s{S_T+15}, {target}")
        p(f"s_cbranch_scc0 {sp}")
        if not issued: p.lg.clear()
        p.label(ok)

    p(f".globl {NAME}\n.p2align 8\n.type {NAME},@function")
    p.label(NAME)
    p("s_cmp_ge_u32 s2, 0x100")
    p("s_cbranch_scc1 L_end")
    for s, off in ((S_IDX, 0), (S_W1, 32), (S_WCIN, 16), (S_WCO, 24), (S_TAB, 8), (S_B1, 40), (S_WS, 80), (S_W2, 48)):
        p(f"s_load_dwordx2 s[{s}:{s+1}], s[0:1], {off}")
    p(f"s_load_dwordx2 s[{S_BOUT}:{S_BOUT+1}], s[0:1], 56")
    p(f"s_load_dwordx2 s[{S_OUT}:{S_OUT+1}], s[0:1], 64")
    p(f"s_load_dwordx2 s[{S_DBG}:{S_DBG+1}], s[0:1], 72")
    if cfg.stamps:
        p(f"s_memrealtime s[{S_ST}:{S_ST+1}]")
        p(f"s_memtime s[100:101]")
    p("v_lshrrev_b32 v1, 6, v0")
    p("v_and_b32 v0, 63, v0")
    p(f"v_readfirstlane_b32 s{S_WAVE}, v1")
    p(f"v_lshlrev_b32 v{V_C}, 2, v0")
    p(f"v_add_u32 v{V_C}, {CO}, v{V_C}")
    p("v_mov_b32 v1, 0")
    p(f"ds_write_b32 v{V_C}, v1")
    p(f"v_mov_b32 v{V_ONE}, 1")
    for s, n in ((S_IDX, 4096*104), (S_TAB, 6400000), (S_W1, 832*1664), (S_WCIN, 105456), (S_WCO, 156),
                 (S_B1, 1664), (S_W2, 1664), (S_WS, WS_END)):
        p(f"s_mov_b32 s{s+2}, {n}")
        p(f"s_mov_b32 s{s+3}, 0x20000")
    p(f"s_mov_b32 s{S_SPIN}, 0x40000")
    p(f"s_and_b32 s{S_T}, s2, 7")
    p(f"s_lshr_b32 s{S_T+1}, s2, 6")
    p(f"s_lshl3_add_u32 s{S_RG}, s{S_T+1}, s{S_T}")
    p(f"s_bfe_u32 s{S_CP}, s2, 0x30003")
    p(f"s_lshl3_add_u32 s{S_FB}, s{S_RG}, s{S_CP}")
    lo = sum(STARTS[i] << (8*i) for i in range(4)); hi = sum(STARTS[4+i] << (8*i) for i in range(4))
    p(f"s_mov_b32 s{S_T+2}, {hex(lo)}")
    p(f"s_mov_b32 s{S_T+3}, {hex(hi)}")
    p(f"s_lshl_b32 s{S_T}, s{S_CP}, 3")
    p(f"s_lshr_b64 s[{S_T+2}:{S_T+3}], s[{S_T+2}:{S_T+3}], s{S_T}")
    p(f"s_and_b32 s{S_COL}, s{S_T+2}, 63")
    p(f"s_lshl_b32 s{S_COL}, s{S_COL}, 5")
    p(f"v_lshlrev_b32 v{V_L}, 4, v0")
    p(f"s_cmp_ge_u32 s{S_WAVE}, 4")
    p("s_cbranch_scc1 L_cin")

    ACC = lambda t, q: 8*t + 4*q
    BF = lambda t: 56 + 4*t
    AR = lambda f, q: 84 + 8*(f % 2) + 4*q
    IDX = lambda f, q: 100 + 4*(f >> 1) + 2*q + (f & 1)
    VO = lambda u: 152 + u
    V_B, V_A, V_CH, V_LANE = 159, 160, 161, 165
    S_SB, S_M0, S_M1, S_AM, S_K1, S_K2 = S_T+2, S_T+3, S_T+4, S_T+5, S_T+6, S_T+7
    if cfg.prio_dnn: p(f"s_setprio {cfg.prio_dnn}")
    p(f"s_lshl2_add_u32 s{S_T}, s{S_RG}, s{S_WAVE}")
    p(f"s_mul_i32 s{S_T}, s{S_T}, 3328")
    p(f"s_mul_i32 s{S_AM}, s{S_WAVE}, {2048*cfg.RA}")
    p(f"s_add_u32 s{S_AM}, s{S_AM}, {AO}")
    p(f"s_mov_b32 m0, s{S_AM}")
    p(f"s_lshl_b32 s{S_M0}, s{S_WAVE}, 11")
    p(f"s_add_u32 s{S_M1}, s{S_M0}, 0x400")
    p(f"s_min_u32 s{S_M1}, s{S_M1}, 0x1800")
    p(f"s_movk_i32 s{S_K1}, 6656")
    p(f"s_movk_i32 s{S_K2}, 1440")
    for u in range(2):
        p(f"v_add_u32 v3, s{S_M0+u}, v{V_L}")
        p(f"v_lshlrev_b32 v4, 4, v3")
        p(f"v_mul_hi_u32_u24 v4, 0x124925, v4")
        p("v_bfe_u32 v5, v4, 2, 1")
        p("v_bfe_i32 v6, v4, 3, 1")
        p("v_add_u32 v5, v5, v6")
        p(f"v_mad_i32_i24 v5, v5, s{S_K1}, v3")
        p(f"v_mad_u32_u24 v{VO(u)}, v4, s{S_K2}, v5")
    p("v_lshrrev_b32 v1, 4, v0")
    p(f"v_lshlrev_b32 v2, 3, v1")
    p.wait0(lg=True)
    stamp(10)
    if cfg.probe:
        p("s_mul_i32 s90, s2, 24960")
        p("v_mov_b32 v8, s90")
        p("s_memrealtime s[92:93]")
        p("s_waitcnt lgkmcnt(0)")
        p(f"buffer_load_dword v9, v8, s[{S_TAB}:{S_TAB+3}], 0 offen")
        p("s_waitcnt vmcnt(0)")
        p("s_memrealtime s[94:95]")
        p("s_waitcnt lgkmcnt(0)")
        p(f"buffer_load_dword v9, v8, s[{S_TAB}:{S_TAB+3}], 0 offen offset:2048")
        p("s_waitcnt vmcnt(0)")
        p("s_memrealtime s[96:97]")
        p("s_waitcnt lgkmcnt(0)")
        p("s_sub_u32 s91, s96, s94")
        p("s_sub_u32 s90, s94, s92")
    for n in range(4):
        p.vmem(f"buffer_load_dwordx4 v{V_L}, s[{S_IDX}:{S_IDX+3}], s{S_T} offen offset:{1024*n}{nt(cfg.nt_idx)} lds", "idx")
    for t in range(7):
        p.vmem(f"buffer_load_dwordx2 v[{56+2*t}:{57+2*t}], v2, s[{S_B1}:{S_B1+3}], s{S_COL} offen offset:{32*t}", "bias")
    def b_dma(f, u):
        if u == 0:
            if f == 0: p(f"s_mov_b32 s{S_SB}, s{S_COL}")
            else: p(f"s_add_u32 s{S_SB}, s{S_SB}, 53248")
        p(f"s_add_u32 m0, s{S_M0+u}, {(f % RB)*SLOT}")
        p("s_nop 0")
        p.vmem(f"buffer_load_dwordx4 v{VO(u)}, s[{S_W1}:{S_W1+3}], s{S_SB} offen{nt(cfg.nt_w1)} lds", f"B{f}")
    for f in range(cfg.preB):
        for u in range(2): b_dma(f, u)
    stamp(11)
    p("s_barrier")
    p("v_lshrrev_b32 v2, 2, v0")
    p(f"v_mul_u32_u24 v2, 104, v2")
    p(f"v_add_u32 v7, s{S_AM}, v2")
    p("v_lshrrev_b32 v2, 5, v0")
    p("v_mul_u32_u24 v3, 3, v2")
    p("v_xor_b32 v3, v3, v0")
    p("v_and_b32 v3, 3, v3")
    p(f"v_lshlrev_b32 v{V_CH}, 4, v3")
    p("v_bfe_u32 v3, v0, 3, 1")
    p("v_mul_u32_u24 v3, 3, v3")
    p("v_xor_b32 v3, v3, v1")
    p("v_and_b32 v4, 15, v0")
    p("v_lshlrev_b32 v4, 6, v4")
    p("v_lshl_add_u32 v3, v3, 4, v4")
    p(f"v_add_u32 v{V_A}, s{S_AM}, v3")
    p("v_bfe_u32 v3, v0, 2, 3")
    p("v_lshl_add_u32 v2, v2, 4, v3")
    p("v_mul_u32_u24 v2, 0xe0, v2")
    p("v_and_b32 v3, 3, v0")
    p(f"v_lshl_add_u32 v{V_B}, v3, 3, v2")
    p(f"v_mov_b32 v{V_LANE}, v0")
    p.wait(vm="idx")
    stamp(1)
    for m in range(13):
        p.lds(f"ds_read2_b64 v[{100+4*m}:{103+4*m}], v7 offset0:{m} offset1:{208+m}", f"ix{m}")
    p.wait0(lg=True)
    def a_dma(f, q):
        p(f"s_add_u32 m0, s{S_AM}, {(f % cfg.RA)*2048 + 1024*q}")
        p(f"v_lshl_add_u32 v{IDX(f, q)}, v{IDX(f, q)}, 6, v{V_CH}")
        p.vmem(f"buffer_load_dwordx4 v{IDX(f, q)}, s[{S_TAB}:{S_TAB+3}], 0 offen{nt(cfg.nt_tab)} lds", f"A{f}")
    def a_read(f):
        p.wait(vm=f"A{f}")
        for q in range(2):
            p.lds(f"ds_read_b128 v[{AR(f, q)}:{AR(f, q)+3}], v{V_A} offset:{(f % cfg.RA)*2048 + 1024*q}", f"a{f}")
    nb = cfg.preB
    for f in range(cfg.RA):
        for q in range(2): a_dma(f, q)
        if nb < 3:
            for u in range(2): b_dma(nb, u)
            nb += 1
    stamp(12)
    p.wait(vm="bias")
    for t in range(7):
        for h in range(2):
            p(f"v_lshlrev_b32 v{ACC(t,0)+2*h}, 16, v{56+2*t+h}")
            p(f"v_and_b32 v{ACC(t,0)+2*h+1}, 0xffff0000, v{56+2*t+h}")
    p.wait(vm=("B0", "B1", "B2"))
    arrive(C_I)
    while nb < RB:
        for u in range(2): b_dma(nb, u)
        nb += 1
    stamp(13)
    check(C_I, 4)
    def b_read(f, t):
        for r2 in range(2):
            p.lds(f"ds_read_b64_tr_b16 v[{BF(t)+2*r2}:{BF(t)+2*r2+1}], v{V_B} offset:{(f % RB)*SLOT + 32*t + 1792*r2}", f"b{f}_{t}")
    for t in range(7): b_read(0, t)
    a_read(0)
    stamp(2)
    RAW = 100
    for f in range(26):
        for t in range(7):
            p.wait(lg=(f"b{f}_{t}", f"a{f}"))
            b = f"v[{BF(t)}:{BF(t)+3}]"
            a0, a1 = ACC(t, 0), ACC(t, 1)
            c1 = a0 if f == 0 else a1
            p(f"v_mfma_f32_16x16x32_bf16 v[{a1}:{a1+3}], {b}, v[{AR(f,1)}:{AR(f,1)+3}], v[{c1}:{c1+3}]")
            p(f"v_mfma_f32_16x16x32_bf16 v[{a0}:{a0+3}], {b}, v[{AR(f,0)}:{AR(f,0)+3}], v[{a0}:{a0+3}]")
            if f < 25: b_read(f+1, t)
            if t < 2 and f + cfg.RA < 26: a_dma(f + cfg.RA, t)
            if t == 2 and 1 <= f <= 23: poll_issue(C_S(f-1))
            if t == 4 and 1 <= f <= 23:
                check(C_S(f-1), 4, issued=True, sleep=cfg.spin_sleep)
                if f + 7 < 26: b_dma(f + 7, 0)
            if t == 5:
                if 1 <= f and f + 7 < 26: b_dma(f + 7, 1)
                if f < 25: a_read(f + 1)
            if f == 21:
                if t == 0:
                    p(f"v_lshrrev_b32 v166, 4, v{V_LANE}")
                    p("v_lshlrev_b32 v166, 3, v166")
                p.vmem(f"buffer_load_dwordx2 v[{RAW+2*t}:{RAW+2*t+1}], v166, s[{S_W2}:{S_W2+3}], s{S_COL} offen offset:{32*t}", "w2")
        if f <= 22:
            p.wait(vm=f"B{f+3}")
            arrive(C_S(f))
        if f % 4 == 0: stamp(14 + f//4)
    stamp(3)
    W2R = lambda t, r: 114 + 4*t + r
    p.wait(vm="w2")
    for t in range(7):
        for h in range(2):
            p(f"v_lshlrev_b32 v{W2R(t,2*h)}, 16, v{RAW+2*t+h}")
            p(f"v_and_b32 v{W2R(t,2*h+1)}, 0xffff0000, v{RAW+2*t+h}")
    sk = L("nomask")
    p(f"s_lshl_b32 s{S_T}, s{S_CP}, 1")
    p(f"s_lshr_b32 s{S_T}, {hex(sum(NMASK[i] << (2*i) for i in range(8)))}, s{S_T}")
    p(f"s_and_b32 s{S_T}, s{S_T}, 3")
    p(f"s_cbranch_scc0 {sk}")
    for r in range(4): p(f"v_mov_b32 v{W2R(0,r)}, 0")
    p(f"s_cmp_eq_u32 s{S_T}, 1")
    p(f"s_cbranch_scc1 {sk}")
    for r in range(4): p(f"v_mov_b32 v{W2R(1,r)}, 0")
    p.label(sk)
    k0 = -2.0*math.sqrt(2.0/math.pi)*math.log2(math.e)
    T1, T2, SUM, VC2 = 84, 88, 92, 96
    p(f"v_mov_b32 v{VC2}, {f2h(k0*0.044715)}")
    for r in range(4): p(f"v_mov_b32 v{SUM+r}, 0")
    for t in range(7):
        for q in range(2):
            x = ACC(t, q)
            for r in range(4): p(f"v_mul_f32 v{T1+r}, v{x+r}, v{x+r}")
            for r in range(4): p(f"v_fmaak_f32 v{T1+r}, v{T1+r}, v{VC2}, {f2h(k0)}")
            for r in range(4): p(f"v_mul_f32 v{T1+r}, v{T1+r}, v{x+r}")
            for r in range(4): p(f"v_exp_f32 v{T1+r}, v{T1+r}")
            for r in range(4): p(f"v_mul_f32 v{T2+r}, v{x+r}, v{W2R(t,r)}")
            for r in range(4): p(f"v_add_f32 v{T1+r}, 1.0, v{T1+r}")
            for r in range(4): p(f"v_rcp_f32 v{T1+r}, v{T1+r}")
            for r in range(4): p(f"v_fmac_f32 v{SUM+2*q+(r&1)}, v{T1+r}, v{T2+r}")
    p(f"v_add_f32 v{SUM}, v{SUM}, v{SUM+1}")
    p(f"v_add_f32 v{SUM+2}, v{SUM+2}, v{SUM+3}")
    p(f"v_and_b32 v84, 15, v{V_LANE}")
    p(f"v_lshrrev_b32 v85, 5, v{V_LANE}")
    p(f"v_permlane32_swap_b32 v{SUM}, v{SUM+2}")
    p("v_lshl_add_u32 v84, v85, 4, v84")
    p(f"v_add_f32 v{SUM}, v{SUM}, v{SUM+2}")
    p(f"v_bfe_u32 v85, v{V_LANE}, 4, 1")
    p(f"v_mov_b32 v{SUM+1}, v{SUM}")
    p("v_lshlrev_b32 v84, 2, v84")
    p("v_lshl_add_u32 v84, v85, 30, v84")
    p(f"v_permlane16_swap_b32 v{SUM}, v{SUM+1}")
    p(f"s_lshl2_add_u32 s{S_T}, s{S_FB}, s{S_WAVE}")
    p(f"v_add_f32 v{SUM}, v{SUM}, v{SUM+1}")
    p(f"s_lshl_b32 s{S_T}, s{S_T}, 7")
    p(f"v_mov_b32 v85, 0x7fc00000")
    p(f"v_cmp_eq_u32 vcc, -1, v{SUM}")
    p("s_nop 1")
    p(f"v_cndmask_b32 v{SUM}, v{SUM}, v85, vcc")
    check(C_FLAG, 1)
    p.vmem(f"buffer_store_dword v{SUM}, v84, s[{S_WS}:{S_WS+3}], s{S_T} offen sc1", "pub")
    stamp(4)
    if cfg.probe:
        p("v_mov_b32 v1, 0")
        p("v_mov_b32 v2, s90")
        p("v_mov_b32 v3, s91")
        p("s_cmp_lg_u32 s2, 77")
        p("s_cbranch_scc1 L_pr0")
        p(f"global_store_dwordx2 v1, v[2:3], s[{S_DBG}:{S_DBG+1}] offset:8")
        p.label("L_pr0")
        p("s_memrealtime s[92:93]")
        p("s_waitcnt lgkmcnt(0)")
        p(f"s_mul_i32 s90, s{89+cfg.probe}, 32")
        p("s_min_u32 s90, s90, 20000")
        p("s_cmp_lg_u32 s2, 77")
        p("s_cselect_b32 s90, 0, s90")
        p("s_add_u32 s92, s92, s90")
        p.label("L_pr")
        p("s_memrealtime s[94:95]")
        p("s_waitcnt lgkmcnt(0)")
        p("s_cmp_lt_u32 s94, s92")
        p("s_cbranch_scc1 L_pr")
    stamps_out()
    p("s_endpgm")

    p.vm.clear(); p.lg.clear()
    p.label("L_cin")
    S_C = S_W
    W3A, TBL, VV, AQ, VF, GA, MB, VT, CRAW = 28, 32, 40, 56, 72, 80, 96, 144, 152
    p(f"s_sub_u32 s{S_C}, s{S_WAVE}, 4")
    p(f"s_getpc_b64 s[{S_PC}:{S_PC+1}]")
    p.label("L_pc")
    p.wait0(lg=True)
    def cinit_loads():
        p(f"v_lshrrev_b32 v8, 5, v0")
        p(f"v_lshlrev_b32 v9, 3, v8")
        p(f"v_lshlrev_b32 v8, 1, v8")
        for a in range(3):
            p(f"buffer_load_dwordx2 v[{CRAW+2*a}:{CRAW+2*a+1}], v9, s[{S_WCO}:{S_WCO+3}], 0 offen offset:{16*a}")
        p(f"buffer_load_ushort v{CRAW+6}, v8, s[{S_WCO}:{S_WCO+3}], 0 offen offset:48")
        p(f"v_mov_b32 v8, 0")
        p(f"global_load_ushort v{CRAW+7}, v8, s[{S_BOUT}:{S_BOUT+1}]")
    if cfg.NCIN > 4:
        p(f"s_cmp_lt_u32 s{S_C}, 4")
        p("s_cbranch_scc1 L_chelp")
        cinit_loads()
        p("s_barrier")
        p("s_branch L_wwait")
        p.label("L_chelp")
    p(f"s_cmp_ge_u32 s{S_FB}, 26")
    p("s_cbranch_scc1 L_cidx")
    if cfg.prio_prep: p(f"s_setprio {cfg.prio_prep}")
    p(f"s_mul_i32 s{S_T}, s{S_C}, 9216")
    p(f"s_add_u32 s{S_T+1}, s{S_T}, 70304")
    p(f"s_add_u32 s{S_T}, s{S_T}, {P_W3}")
    for u in range(9):
        if u % 4 == 0:
            if u:
                p(f"s_add_u32 s{S_T}, s{S_T}, 0x1000")
                p(f"s_add_u32 s{S_T+1}, s{S_T+1}, 0x1000")
            p(f"s_mov_b32 m0, s{S_T}")
            p("s_nop 0")
        p(f"buffer_load_dwordx4 v{V_L}, s[{S_WCIN}:{S_WCIN+3}], s{S_T+1} offen offset:{1024*(u % 4)} lds")
    p("v_lshrrev_b32 v1, 4, v0")
    p("v_lshlrev_b32 v1, 4, v1")
    p(f"buffer_load_dwordx4 v[{W3A}:{W3A+3}], v1, s[{S_WCO}:{S_WCO+3}], 0 offen offset:104")
    p(f"s_and_b32 s{S_T}, s{S_C}, 1")
    p(f"s_lshl_b32 s{S_T}, s{S_T}, 11")
    p(f"s_add_u32 s{S_T}, s{S_T}, gather_table-L_pc")
    p("v_lshlrev_b32 v1, 5, v0")
    p(f"v_add_u32 v1, s{S_T}, v1")
    p(f"s_cmp_ge_u32 s{S_C}, 2")
    p("s_cbranch_scc1 L_pnot1")
    p(f"global_load_dwordx4 v[{TBL}:{TBL+3}], v1, s[{S_PC}:{S_PC+1}]")
    p(f"global_load_dwordx4 v[{TBL+4}:{TBL+7}], v1, s[{S_PC}:{S_PC+1}] offset:16")
    p(f"s_cmp_lg_u32 s{S_C}, 0")
    p("s_cbranch_scc1 L_pnot0")
    p("v_lshrrev_b32 v1, 5, v0")
    p("v_mul_u32_u24 v1, 0x2a40, v1")
    p("v_and_b32 v2, 31, v0")
    p("v_lshl_add_u32 v1, v2, 1, v1")
    p(f"s_mul_i32 s{S_T}, s{S_FB}, 52")
    p(f"s_add_u32 s{S_T}, s{S_T}, 35152")
    for u in range(16):
        if u and u % 4 == 0:
            p(f"s_add_u32 s{S_T}, s{S_T}, {(4 if u != 8 else 12)*1352}")
        p(f"buffer_load_ushort v{VV+u}, v1, s[{S_WCIN}:{S_WCIN+3}], s{S_T} offen offset:{1352*(u % 4)}")
    p("s_branch L_pnot1")
    p.label("L_pnot0")
    p(f"s_mul_i32 s{S_T}, s{S_FB}, 1352")
    p(f"s_mov_b32 m0, {P_W1}")
    p("s_nop 0")
    for u in range(2):
        p(f"buffer_load_dwordx4 v{V_L}, s[{S_WCIN}:{S_WCIN+3}], s{S_T} offen offset:{1024*u} lds")
    p.label("L_pnot1")
    p("v_lshlrev_b32 v1, 2, v0")
    p(f"buffer_load_dword v27, v1, s[{S_WCO}:{S_WCO+3}], 0 offen offset:52")
    p("v_mov_b32 v2, 0")
    p("v_mov_b32 v3, 0")
    p(f"s_lshl_b32 s{S_T}, s{S_C}, 9")
    p(f"s_add_u32 s{S_T}, s{S_T}, {P_M3T}")
    p(f"v_lshl_add_u32 v4, v0, 3, s{S_T}")
    p("ds_write_b64 v4, v[2:3]")
    p(f"v_add_u32 v4, {P_Z}, v1")
    p("ds_write_b32 v4, v2")
    p(f"s_cmp_ge_u32 s{S_FB}, 16")
    p("s_cbranch_scc1 L_cidx")
    for r in range(4): p(f"v_mov_b32 v{4+r}, -1")
    p(f"s_lshl2_add_u32 s{S_T}, s{S_FB}, s{S_C}")
    p(f"s_lshl_b32 s{S_T}, s{S_T}, 11")
    for u in range(2):
        p(f"buffer_store_dwordx4 v[4:7], v{V_L}, s[{S_WS}:{S_WS+3}], s{S_T} offen offset:{1024*u} sc1")
    p.label("L_cidx")
    p(f"s_mul_i32 s{S_T+2}, s{S_FB}, 1664")
    p(f"s_lshl2_add_u32 s{S_T+2}, s{S_C}, s{S_T+2}")
    p("v_lshrrev_b32 v1, 2, v0")
    p("v_mul_u32_u24 v1, 104, v1")
    for n in range(7):
        p(f"buffer_load_dword v{VT+n}, v1, s[{S_IDX}:{S_IDX+3}], s{S_T+2} offen offset:{16*n}{nt(cfg.nt_idx)}")
    if cfg.prefetch_code:
        sk = L("nopf")
        p(f"s_cmp_lg_u32 s{S_C}, 2")
        p(f"s_cbranch_scc1 {sk}")
        p(f"s_lshl_b32 s{S_T}, s{S_CP}, 12")
        p(f"v_lshl_add_u32 v2, v0, 6, s{S_T}")
        p(f"v_min_u32 v2, gather_table-{NAME}, v2")
        p(f"s_sub_u32 s{S_T}, s{S_PC}, L_pc-{NAME}")
        p(f"s_subb_u32 s{S_T+1}, s{S_PC+1}, 0")
        p(f"global_load_dword v151, v2, s[{S_T}:{S_T+1}]")
        p.label(sk)
    cinit_loads()
    p("s_barrier")
    p("v_and_b32 v1, 3, v0")
    p("v_lshlrev_b32 v1, 4, v1")
    p(f"s_lshl_b32 s{S_T+3}, s{S_C}, 10")
    p(f"s_add_u32 s{S_T+3}, s{S_T+3}, {XO}")
    p.wait0(vm=True)
    stamp(1)
    p(f"s_cmp_ge_u32 s{S_FB}, 26")
    p("s_cbranch_scc1 L_cx")
    p(f"s_cmp_lg_u32 s{S_C}, 3")
    p("s_cbranch_scc1 L_not3")
    p("v_lshlrev_b32 v2, 2, v0")
    p(f"v_add_u32 v2, {P_M3T + 26*64}, v2")
    p("s_mov_b64 exec, 0x1fff")
    p("ds_write_b32 v2, v27")
    p("s_mov_b64 exec, -1")
    p.label("L_not3")
    p.wait0(lg=True)
    arrive(C_PA)
    p.label("L_cx")
    for n in range(7):
        if n == 6:
            p(f"s_cmp_ge_u32 s{S_C}, 2")
            p("s_cbranch_scc1 L_cx2")
        p(f"s_add_u32 m0, s{S_T+3}, {4096*n}")
        p(f"v_lshl_add_u32 v{VT+n}, v{VT+n}, 6, v1")
        p(f"buffer_load_dwordx4 v{VT+n}, s[{S_TAB}:{S_TAB+3}], 0 offen{nt(cfg.nt_x)} lds")
    p.label("L_cx2")
    if cfg.pfB:
        sk = L("nopfb")
        p(f"s_cmp_eq_u32 s{S_C}, 0")
        p(f"s_cbranch_scc1 {sk}")
        p(f"s_lshr_b32 s{S_T}, s2, 6")
        p(f"s_lshl2_add_u32 s{S_T}, s{S_C}, s{S_T}")
        p(f"s_add_u32 s{S_T}, s{S_T}, 4")
        p(f"s_mul_i32 s{S_T}, s{S_T}, 53248")
        p(f"s_add_u32 s{S_T}, s{S_T}, s{S_COL}")
        p(f"s_add_u32 s{S_T+1}, s{S_T}, {12*53248}")
        p("v_lshrrev_b32 v2, 1, v0")
        p("v_mul_u32_u24 v2, 0x680, v2")
        p("v_and_b32 v3, 1, v0")
        p("v_mul_u32_u24 v3, 0xdc, v3")
        p("v_add_u32 v3, v3, v2")
        for u in range(2):
            p(f"buffer_load_dword v151, v3, s[{S_W1}:{S_W1+3}], s{S_T+u} offen{nt(cfg.nt_pf)}")
        p(f"s_lshr_b32 s{S_T+4}, 0x12, s{S_CP}")
        p(f"s_bitcmp0_b32 s{S_T+4}, 0")
        p(f"s_cbranch_scc1 {sk}")
        for u in range(2):
            p(f"buffer_load_dword v151, v2, s[{S_W1}:{S_W1+3}], s{S_T+u} offen offset:108{nt(cfg.nt_pf)}")
        p.label(sk)
    p(f"s_cmp_ge_u32 s{S_FB}, 26")
    p("s_cbranch_scc1 L_poll")
    p("v_bfe_u32 v1, v0, 2, 2")
    for q in range(4):
        p(f"v_cmp_eq_u32 vcc, {q}, v1")
        p("s_nop 1")
        for r in range(4): p(f"v_cndmask_b32 v{AQ+4*q+r}, 0, v{W3A+r}, vcc")
    p("v_lshrrev_b32 v4, 4, v0")
    p("v_lshl_add_u32 v4, v4, 3, v1")
    p("v_add_u32 v5, 4, v4")
    p("v_min_u32 v4, 25, v4")
    p("v_min_u32 v5, 25, v5")
    p("v_and_b32 v6, 3, v0")
    p(f"s_mul_i32 s{S_T}, s{S_C}, 384")
    p(f"s_add_u32 s{S_T}, s{S_T}, {P_W3}")
    p(f"v_lshl_add_u32 v6, v6, 3, s{S_T}")
    p(f"s_movk_i32 s{S_T+1}, 1352")
    p(f"v_mad_u32_u24 v2, v4, s{S_T+1}, v6")
    p(f"v_mad_u32_u24 v3, v5, s{S_T+1}, v6")
    check(C_PA, 4)
    stamp(9)
    for T in range(12):
        p.lds(f"ds_read_b64_tr_b16 v[{MB+4*T}:{MB+4*T+1}], v2 offset:{32*T}", f"m{T}")
        p.lds(f"ds_read_b64_tr_b16 v[{MB+4*T+2}:{MB+4*T+3}], v3 offset:{32*T}", f"m{T}")
    for T in range(12):
        u, q = divmod(T, 4)
        p.wait(lg=f"m{T}")
        cc = "0" if q == 0 else f"v[{12+4*u}:{15+4*u}]"
        p(f"v_mfma_f32_16x16x32_bf16 v[{12+4*u}:{15+4*u}], v[{AQ+4*q}:{AQ+4*q+3}], v[{MB+4*T}:{MB+4*T+3}], {cc}")
        if q == 1:
            if u == 0:
                p(f"s_mul_i32 s{S_T}, s{S_C}, 192")
                p(f"s_movk_i32 s{S_T+1}, -1662")
                p(f"v_mov_b32 v7, {P_DUM}")
            else: p(f"s_add_u32 s{S_T}, s{S_T}, 64")
            p(f"v_add_u32 v4, s{S_T}, v0")
            p("v_mul_u32_u24 v5, 2521, v4")
            p("v_lshrrev_b32 v5, 16, v5")
            p("v_cmp_gt_u32 vcc, 0x2a4, v4")
        if q == 2:
            p("v_lshlrev_b32 v4, 6, v4")
            p(f"v_mad_i32_i24 v4, v5, s{S_T+1}, v4")
            p(f"v_add_u32 v4, {P_M3T}, v4")
            p(f"v_cndmask_b32 v{8+u}, v7, v4, vcc")
    p("s_nop 5")
    for u in range(3):
        p(f"v_cvt_pk_bf16_f32 v{24+u}, v{12+4*u}, v{12+4*u}")
    for u in range(3):
        p(f"ds_write_b16 v{8+u}, v{24+u}")
    p.wait0(lg=True)
    arrive(C_PB)
    p(f"s_cmp_ge_u32 s{S_C}, 2")
    p("s_cbranch_scc1 L_pdone")
    p(f"v_mov_b32 v11, {WO}")
    for u in range(8):
        p(f"v_add_u32_sdwa v{GA+2*u}, v11, v{TBL+u} dst_sel:DWORD dst_unused:UNUSED_PAD src0_sel:DWORD src1_sel:WORD_0")
        p(f"v_add_u32_sdwa v{GA+2*u+1}, v11, v{TBL+u} dst_sel:DWORD dst_unused:UNUSED_PAD src0_sel:DWORD src1_sel:WORD_1")
    p("v_lshrrev_b32 v1, 1, v0")
    p("v_and_b32 v2, 1, v0")
    p(f"s_mul_i32 s{S_T}, s{S_FB}, 1536")
    p(f"s_add_u32 s{S_T}, s{S_T}, {WS_W}")
    p(f"s_cmp_eq_u32 s{S_C}, 0")
    p("s_cbranch_scc1 L_pT")
    p("v_lshlrev_b32 v1, 2, v1")
    for u in range(16): p(f"v_mov_b32 v{MB+u}, 0")
    for u in range(16): p(f"ds_read_u16_d16_hi v{MB+u}, v{GA+u}")
    p("s_mov_b32 exec_hi, 0xfff")
    p("s_branch L_pfin")
    p.label("L_pT")
    for u in range(8):
        p(f"v_lshl_or_b32 v{VF+u}, v{VV+2*u+1}, 16, v{VV+2*u}")
    p("v_and_b32 v3, 31, v0")
    p("v_lshrrev_b32 v4, 5, v0")
    p("v_lshlrev_b32 v5, 6, v3")
    p("v_lshl_add_u32 v5, v4, 4, v5")
    p(f"v_add_u32 v5, {P_M3T}, v5")
    check(C_PB, 4)
    p("ds_read_b128 v[12:15], v5")
    p("ds_read_b128 v[16:19], v5 offset:32")
    p("v_mul_u32_u24 v3, 0x90, v3")
    p("v_lshl_add_u32 v3, v4, 4, v3")
    p(f"v_add_u32 v3, {P_D1}, v3")
    p("s_waitcnt lgkmcnt(1)")
    p(f"v_mfma_f32_32x32x16_bf16 v[{MB}:{MB+15}], v[{VF}:{VF+3}], v[12:15], 0")
    p("s_waitcnt lgkmcnt(0)")
    p(f"v_mfma_f32_32x32x16_bf16 v[{MB}:{MB+15}], v[{VF+4}:{VF+7}], v[16:19], v[{MB}:{MB+15}]")
    p("v_lshl_add_u32 v4, v1, 1, 1")
    p("v_add_u32 v1, 22, v1")
    p("v_min_u32 v1, v1, v4")
    p("v_lshlrev_b32 v1, 1, v1")
    p("s_nop 7")
    for a in range(4): p(f"ds_write_b128 v3, v[{MB+4*a}:{MB+4*a+3}] offset:{32*a}")
    p("s_waitcnt lgkmcnt(0)")
    for u in range(16): p(f"ds_read_b32 v{MB+u}, v{GA+u}")
    p("s_mov_b32 exec_hi, 0xffff")
    p.label("L_pfin")
    p("v_add_lshl_u32 v1, v1, v2, 4")
    p("s_waitcnt lgkmcnt(0)")
    for e in range(8): p(f"v_add_f32 v{MB+2*e}, v{MB+2*e}, v{MB+2*e+1}")
    for e in range(4): p(f"v_cvt_pk_bf16_f32 v{4+e}, v{MB+4*e}, v{MB+4*e+2}")
    p(f"buffer_store_dwordx4 v[4:7], v1, s[{S_WS}:{S_WS+3}], s{S_T} offen sc1")
    p("s_mov_b64 exec, -1")
    p.label("L_pdone")
    stamp(21)
    p.wait0(vm=True)
    stamp(6)
    p("s_mov_b64 exec, 1")
    p(f"ds_add_rtn_u32 v1, v{V_C}, v{V_ONE} offset:{C_PC}")
    p("v_mov_b32 v2, 0")
    p("s_waitcnt lgkmcnt(0)")
    p(f"v_readfirstlane_b32 s{S_T}, v1")
    p(f"s_cmp_lg_u32 s{S_T}, 3")
    p("s_cbranch_scc1 L_psig")
    p(f"global_atomic_add v1, v2, v{V_ONE}, s[{S_DBG}:{S_DBG+1}] sc0 sc1")
    p("s_waitcnt vmcnt(0)")
    p(f"v_readfirstlane_b32 s{S_T}, v1")
    p(f"s_cmp_lg_u32 s{S_T}, 25")
    p("s_cbranch_scc1 L_psig")
    p(f"global_store_dword v2, v{V_ONE}, s[{S_DBG}:{S_DBG+1}] offset:128 sc1")
    p.label("L_psig")
    p("s_mov_b64 exec, -1")
    stamp(22)
    p.label("L_poll")
    p(f"s_setprio {cfg.prio_prep}")
    p("v_lshrrev_b32 v1, 3, v0")
    p("v_and_b32 v2, 7, v0")
    p("v_mul_u32_u24 v3, 0x600, v1")
    p("v_lshl_add_u32 v3, v2, 4, v3")
    p("v_mul_u32_u24 v4, 0x210, v2")
    p(f"s_mul_i32 s{S_T}, s{S_C}, {24*528}")
    p(f"s_add_u32 s{S_T}, s{S_T}, {WO}")
    p(f"v_add_u32 v4, s{S_T}, v4")
    p("v_lshl_add_u32 v5, v1, 4, v4")
    p("v_cmp_eq_u32 vcc, 1, v1")
    p("v_add_u32 v6, 48, v5")
    p("v_subrev_u32 v7, 48, v5")
    p("v_cndmask_b32 v6, v5, v6, vcc")
    p("v_cmp_eq_u32 vcc, 4, v1")
    p(f"s_mul_i32 s{S_T}, s{S_C}, 384")
    p(f"s_add_u32 s{S_T}, s{S_T}, {WS_W}")
    p("v_cndmask_b32 v6, v6, v7, vcc")
    p(f"s_cmp_lg_u32 s{S_C}, 0")
    p("s_cbranch_scc1 L_pollo")
    p("v_mov_b32 v1, 0")
    p("s_mov_b64 exec, 1")
    p.label("L_pollg")
    p(f"global_load_dword v2, v1, s[{S_DBG}:{S_DBG+1}] offset:128 sc1")
    p("s_waitcnt vmcnt(0)")
    p(f"v_readfirstlane_b32 s{S_T+1}, v2")
    p(f"s_cmp_lg_u32 s{S_T+1}, 0")
    p("s_cbranch_scc1 L_pollgd")
    p(f"s_sleep {cfg.poll_sleep}")
    p(f"s_sub_u32 s{S_SPIN}, s{S_SPIN}, 1")
    p("s_cbranch_scc0 L_pollg")
    p("s_endpgm")
    p.label("L_pollgd")
    p(f"ds_add_u32 v{V_C}, v{V_ONE} offset:{C_FLAG}")
    p("s_mov_b64 exec, -1")
    p("s_branch L_wload")
    p.label("L_pollo")
    check(C_FLAG, 1, sleep=1)
    p.label("L_wload")
    stamp(2)
    p.vm.clear(); p.lg.clear()
    for J in range(4):
        if J: p(f"s_add_u32 s{S_T}, s{S_T}, 12288")
        for Fi in range(3):
            r = MB + 4*(3*J + Fi)
            p.vmem(f"buffer_load_dwordx4 v[{r}:{r+3}], v3, s[{S_WS}:{S_WS+3}], s{S_T} offen offset:{128*Fi} sc1", f"w{J}{Fi}")
    for J in range(4):
        for Fi in range(3):
            r = MB + 4*(3*J + Fi)
            p.wait(vm=f"w{J}{Fi}")
            p(f"ds_write_b128 v{6 if J == 3 else 5}, v[{r}:{r+3}] offset:{4224*Fi + 128*J}")
    p.wait0(lg=True)
    arrive(C_WR)
    p.label("L_wwait")

    AX, AT, CI, X0 = 0, 16, 32, 48
    Z = [74, 78]; PT = 82; ZL = 90
    XA = {1: 98, -3: 99, -1: 100}; WA = 101; SM = [102, 103, 104, 105]; MBX = 106; VMB = 110; VBO = 111
    RING = 112; RES = RING + 4*cfg.R
    assert RES + 4*cfg.NRES <= (256 if cfg.NCIN == 4 else 168)
    S_N, S_MB, S_O = S_T+7, S_T+9, S_T+11
    p(f"s_mov_b32 s{S_N}, {NR}")
    p(f"s_mul_i32 s{S_T}, s{S_C}, {64*NR}")
    p(f"s_add_u32 s{S_T}, s{S_T}, {XO}")
    p("v_and_b32 v1, 31, v0")
    p("v_lshrrev_b32 v2, 5, v0")
    p(f"v_lshl_add_u32 v3, v1, 1, s{S_T}")
    p(f"v_lshl_add_u32 v{XA[1]}, v2, 10, v3")
    p("v_mul_u32_u24 v4, 0xc00, v2")
    p(f"v_sub_u32 v{XA[-3]}, v3, v4")
    p("v_lshlrev_b32 v4, 10, v2")
    p(f"v_sub_u32 v{XA[-1]}, v3, v4")
    p("v_mul_u32_u24 v4, 0x210, v2")
    p("v_lshl_add_u32 v4, v1, 4, v4")
    p(f"v_add_u32 v{WA}, {WO}, v4")
    for r in range(26): p(f"v_mov_b32 v{X0+r}, 0")
    p.wait0(vm=True)
    for a in range(3):
        for h in range(2):
            p(f"v_lshlrev_b32 v{CI+4*a+2*h}, 16, v{CRAW+2*a+h}")
            p(f"v_and_b32 v{CI+4*a+2*h+1}, 0xffff0000, v{CRAW+2*a+h}")
    p(f"v_lshlrev_b32 v{CI+12}, 16, v{CRAW+6}")
    for r in range(13, 16): p(f"v_mov_b32 v{CI+r}, 0")
    p(f"v_lshlrev_b32 v{VBO}, 16, v{CRAW+7}")
    p("v_lshrrev_b32 v1, 3, v0")
    p("v_min_u32 v1, 1, v1")
    p("v_lshlrev_b32 v2, 9, v0")
    p(f"v_lshl_add_u32 v{VMB}, v1, 30, v2")
    p(f"s_mul_i32 s{S_T}, s{S_C}, {NR}")
    p(f"s_lshl4_add_u32 s{S_MB}, s{S_CP}, s{S_T}")
    p(f"s_lshl_b32 s{S_T+1}, s{S_RG}, 7")
    p(f"s_add_u32 s{S_T+1}, s{S_T+1}, s{S_MB}")
    p(f"s_lshl_b32 s{S_O}, s{S_T+1}, 1")
    p(f"s_lshl_b32 s{S_T}, s{S_RG}, 10")
    p(f"s_add_u32 s{S_MB}, s{S_MB}, s{S_T}")
    p(f"s_lshl_b32 s{S_MB}, s{S_MB}, 2")
    p(f"v_mov_b32 v{ZL+7}, 0")
    check(C_WR, 4, sleep=1 if cfg.NCIN > 4 else 0)
    p(f"s_setprio {cfg.prio_cin}")
    stamp(3)
    def x_read(r):
        p.lds(f"ds_read_u16_d16_hi v{X0+r}, v{XA[pi(r)-r]} offset:{1024*r}", f"x{r}")
    for r in range(26): x_read(r)
    order = []
    for n in range(22):
        order.append(("X", n)); order.append(("T", n))
        if n == 14: order.append(("T", 22))
        if n == 18: order.append(("T", 23))
    fr_of = lambda k, n: (2*n if k == "X" else 2*n + 1) if n < 22 else n + 22
    nn = 46 - cfg.NRES
    assert nn % cfg.R == 0
    nonres = [int((u + 0.5)*46/nn) for u in range(nn)]
    wreg = {}; rr = 0
    for k in range(46):
        if k in nonres: wreg[k] = RING + 4*(nonres.index(k) % cfg.R)
        else: wreg[k] = RES + 4*rr; rr += 1
    def w_read(k):
        p.lds(f"ds_read_b128 v[{wreg[k]}:{wreg[k]+3}], v{WA} offset:{1056*fr_of(*order[k])}", f"w{k}")
    for k in range(46):
        if k not in nonres or nonres.index(k) < cfg.R: w_read(k)
    def z_ops(n):
        ops = []
        for e in range(4):
            t = PT + 2*(e % 4)
            (a, b), (c, d) = S[8*n + 2*e], S[8*n + 2*e + 1]
            ops.append(("v", f"v_mul_f32 v{t}, v{X0+a}, v{X0+b}", (a, b)))
            ops.append(("v", f"v_mul_f32 v{t+1}, v{X0+c}, v{X0+d}", (c, d)))
        cv = [("v", f"v_cvt_pk_bf16_f32 v{Z[n % 2]+e}, v{PT+2*e}, v{PT+2*e+1}", ()) for e in range(4)]
        return ops[0:4] + cv[0:1] + ops[4:6] + cv[1:2] + ops[6:8] + cv[2:4]
    for o in z_ops(0):
        p.wait(lg=tuple(f"x{r}" for r in o[2]))
        p(o[1])
    for d in XA.values(): p(f"v_add_u32 v{d}, 64, v{d}")
    p.wait0(lg=True)
    stamp(5)
    def mfma(k):
        kind, n = order[k]
        zb = Z[n % 2] if n < 22 else ZL + 4*(n - 22)
        acc = AX if kind == "X" else AT
        cc = f"v[{acc}:{acc+15}]"
        if n == 0: cc = "0" if kind == "X" else f"v[{CI}:{CI+15}]"
        return f"v_mfma_f32_32x32x16_bf16 v[{acc}:{acc+15}], v[{wreg[k]}:{wreg[k]+3}], v[{zb}:{zb+3}], {cc}"
    lin_ops = []
    for u in range(8):
        a = LIN[min(2*u, 12)]; b = LIN[min(2*u + 1, 12)]
        lin_ops.append(("v", f"v_cvt_pk_bf16_f32 v{ZL+u}, v{X0+a}, v{X0+b}", (a, b)))
    def body(emit_mb):
        groups = [z_ops(n) for n in range(1, 22)] + [z_ops(0)]
        groups[10] = lin_ops[:7] + groups[10]
        flat = [(g, o) for g, ops in enumerate(groups) for o in ops]
        lastuse = {}
        for i, (g, o) in enumerate(flat):
            if g < 21:
                for r in o[2]: lastuse[r] = i
        for r in range(26): lastuse.setdefault(r, -1)
        for g, ops in enumerate(groups):
            mf = [kk for kk in range(46) if order[kk] in (("X", g), ("T", g))]
            if g == 14: mf.append(order.index(("T", 22)))
            if g == 18: mf.append(order.index(("T", 23)))
            items = []
            base = sum(len(x) for x in groups[:g])
            if g == 0:
                for r in range(26):
                    if lastuse[r] == -1: items.append(("x", r))
            for i, o in enumerate(ops):
                items.append(o)
                for r in range(26):
                    if lastuse[r] == base + i: items.append(("x", r))
            if g == 21:
                pos = [0, 0]
            else:
                n_it = len(items)
                pos = [2 + (j*n_it)//len(mf) for j in range(len(mf))]
            j = 0
            for i, it in enumerate(items + [None]):
                while j < len(mf) and pos[j] <= i:
                    kk = mf[j]
                    if g == 21 and j == 0: p("s_nop 1")
                    p.wait(lg=f"w{kk}")
                    p(mfma(kk))
                    if kk in nonres:
                        w_read(nonres[(nonres.index(kk) + cfg.R) % nn])
                    j += 1
                if it is None: break
                if it[0] == "x": x_read(it[1])
                else:
                    p.wait(lg=tuple(f"x{r}" for r in it[2]))
                    p(it[1])
            if g == 15: emit_mb()
        for k in range(NR - 1): p(f"v_mov_b32 v{SM[k]}, v{SM[k+1]}")
        for d in XA.values(): p(f"v_add_u32 v{d}, 64, v{d}")
        s0 = SM[NR-1]
        p(f"v_mul_f32 v{s0}, v{AX}, v{AT}")
        p(f"v_mul_f32 v{PT}, v{AX+1}, v{AT+1}")
        for r in range(2, 13):
            p(f"v_fmac_f32 v{s0 if r % 2 == 0 else PT}, v{AX+r}, v{AT+r}")
        p(f"s_sub_u32 s{S_N}, s{S_N}, 1")
        p(f"v_add_f32 v{s0}, v{s0}, v{PT}")
    def mb_loads():
        p(f"buffer_load_dwordx{NR} v[{MBX}:{MBX+NR-1}], v{VMB}, s[{S_WS}:{S_WS+3}], s{S_MB} offen sc1")
    def emit_mb():
        sk = L("nomb")
        p(f"s_cmp_lg_u32 s{S_N}, 1")
        p(f"s_cbranch_scc1 {sk}")
        mb_loads()
        p.label(sk)
    save = p.L; p.L = []
    body(lambda: None)
    st1 = list(p.lg.q)
    p.L = save
    p(".p2align 3")
    p.label("L_row")
    body(emit_mb)
    assert st1 == p.lg.q
    if cfg.stamps:
        for i in range(3): p(f"s_mov_b32 s{S_ST+23+i}, s{S_ST+24+i}")
        stamp(26)
    p(f"s_cmp_lg_u32 s{S_N}, 0")
    p("s_cbranch_scc1 L_row")
    stamp(7)
    p.label("L_mbw")
    p("s_waitcnt vmcnt(0)")
    if NR == 4:
        p(f"v_max3_u32 v1, v{MBX}, v{MBX+1}, v{MBX+2}")
        p(f"v_max_u32 v1, v1, v{MBX+3}")
    else: p(f"v_max_u32 v1, v{MBX}, v{MBX+1}")
    p("v_cmp_eq_u32 vcc, -1, v1")
    p("s_nop 1")
    p("s_cmp_eq_u64 vcc, 0")
    p("s_cbranch_scc1 L_mbok")
    p("s_sleep 1")
    mb_loads()
    p(f"s_sub_u32 s{S_SPIN}, s{S_SPIN}, 1")
    p("s_cbranch_scc0 L_mbw")
    p("s_endpgm")
    p.label("L_mbok")
    for k in range(NR): p(f"v_add_f32 v{SM[k]}, v{SM[k]}, v{MBX+k}")
    for ctl in ("quad_perm:[1,0,3,2] row_mask:0xf", "quad_perm:[2,3,0,1] row_mask:0xf", "row_half_mirror row_mask:0xf",
                "row_mirror row_mask:0xf", "row_bcast:15 row_mask:0xa", "row_bcast:31 row_mask:0xc"):
        if NR == 2: p("s_nop 0")
        for k in range(NR): p(f"v_add_f32_dpp v{SM[k]}, v{SM[k]}, v{SM[k]} {ctl} bank_mask:0xf")
    for k in range(NR): p(f"v_add_f32 v{SM[k]}, v{SM[k]}, v{VBO}")
    for k in range(NR//2): p(f"v_cvt_pk_bf16_f32 v{2+k}, v{SM[2*k]}, v{SM[2*k+1]}")
    p(f"v_mov_b32 v1, s{S_O}")
    p("s_mov_b32 exec_lo, 0")
    p("s_mov_b32 exec_hi, 0x80000000")
    if NR == 4: p(f"global_store_dwordx2 v1, v[2:3], s[{S_OUT}:{S_OUT+1}]")
    else: p(f"global_store_dword v1, v2, s[{S_OUT}:{S_OUT+1}]")
    stamps_out()
    p.label("L_end")
    p("s_endpgm")
    p(".p2align 6")
    p(".type gather_table,@object")
    p.label("gather_table")
    zt = P_Z - WO
    for role in range(2):
        for lane in range(64):
            s, half = lane >> 1, lane & 1
            ad = []
            for e in range(8):
                pr = slot_pair(s, half, e) if s < (24 if role == 0 else 22) else None
                at = (lambda j, k: P_D1 - WO + k*144 + j*4) if role == 0 else (lambda j, k: P_W1 - WO + (j*26 + k)*2)
                if pr is None: ad += [zt, zt]
                elif pr[1] is None: ad += [at(pr[0], 26), zt]
                elif pr[0] == pr[1] or norm(pr) == (24, 25): ad += [at(*pr), zt]
                else: ad += [at(pr[0], pr[1]), at(pr[1], pr[0])]
            p(".short " + ", ".join(str(a) for a in ad))
    p(".size gather_table, 4096")
    return p

def header():
    return """; xDeepFM (CIN + DNN) forward, one launch, 256 workgroups.
; Kernarg: idx, table, ws_cin, w_cin_out, w_dnn1, b_dnn1, w_dnn2, b_out, out, debug, ws
; @launch grid=(256,1,1) block=(%d,1,1) lds=%d
.amdgcn_target "amdgcn-amd-amdhsa--gfx950"
.text
""" % (64*(4 + cfg.NCIN), LDS_SIZE)
def footer():
    nv = 256 if cfg.NCIN == 4 else 168
    return f""".section .rodata,"a"
.p2align 6
.amdhsa_kernel {NAME}
  .amdhsa_next_free_vgpr {nv}
  .amdhsa_next_free_sgpr 102
  .amdhsa_accum_offset {nv}
  .amdhsa_group_segment_fixed_size 0
  .amdhsa_kernarg_size 88
  .amdhsa_user_sgpr_count 2
  .amdhsa_user_sgpr_kernarg_segment_ptr 1
  .amdhsa_system_sgpr_workgroup_id_x 1
  .amdhsa_float_denorm_mode_32 3
.end_amdhsa_kernel
"""
if __name__ == "__main__":
    out = sys.argv[1]
    for a in sys.argv[2:]:
        k, v = a.split("=")
        setattr(cfg, k, type(getattr(cfg, k))(int(v)))
    open(out, "w").write(header() + build().text() + footer())
```

```python
import sys, struct, math
from asmlib import *
from slots import *

NAME = "standalone__deep_cross_xdeepfm__recsys_kernel"
class Cfg:
    stamps = False
    NCIN = 4
    RA = 3
    NRES = 31
    R = 3
    prio_dnn = 2
    prio_cin = 0
    prio_prep = 3
    prefetch_code = True
    poll_sleep = 4
    pfB = 1
    probe = 0
    spin_sleep = 0
    preB = 3
    nt_tab = 0
    nt_x = 0
    nt_w1 = 0
    nt_idx = 0
    nt_pf = 0
cfg = Cfg()

SLOT = 7168
RB = 8
AO = RB*SLOT
XO = 12*SLOT
WO = XO + 16*1664
CO = WO + 96*528
LDS_SIZE = 163840
assert CO + 512 == LDS_SIZE
P_W3 = WO; P_M3T = WO + 36864; P_D1 = WO + 38912; P_W1 = WO + 43520; P_Z = WO + 45568; P_DUM = WO + 45824
C_S = lambda f: 4*f
C_I, C_PA, C_PB, C_PC, C_FLAG, C_WR = 112, 116, 120, 124, 128, 132
MBOX = 0; WS_W = 131072; WS_END = WS_W + 26*1536; WS_STAMP = 1 << 20
S_IDX, S_TAB, S_W1, S_WCIN, S_WCO, S_B1, S_W2, S_WS = 4, 8, 12, 16, 20, 24, 28, 32
S_BOUT, S_OUT, S_DBG = 36, 38, 40
S_WAVE, S_RG, S_CP, S_FB, S_COL, S_W = 42, 43, 44, 45, 46, 47
S_T = 48
S_PC = 64
S_SPIN = 66
S_ST = 70
V_C, V_ONE, V_POLL, V_L = 162, 163, 164, 165
STARTS = [0, 7, 13, 20, 27, 33, 40, 45]
NMASK = [0, 0, 1, 0, 0, 1, 0, 2]

def f2h(x): return "0x%08x" % struct.unpack("<I", struct.pack("<f", x))[0]
def nt(flag): return " nt" if flag else ""

def build():
    p = Prog()
    lab = [0]
    NR = 16//cfg.NCIN
    def L(n):
        lab[0] += 1
        return f"L_{n}_{lab[0]}"
    def stamp(i):
        if cfg.stamps:
            p(f"s_memrealtime s[68:69]")
            p.wait0(lg=True)
            p(f"s_mov_b32 s{S_ST+i}, s68")
    def stamps_out():
        if not cfg.stamps: return
        stamp(8)
        p("s_mov_b64 exec, 1")
        p(f"s_lshl4_add_u32 s{S_T}, s2, s{S_WAVE}")
        p(f"s_lshl_b32 s{S_T}, s{S_T}, 7")
        p(f"s_add_u32 s{S_T}, s{S_T}, {WS_STAMP}")
        p(f"v_mov_b32 v1, s{S_T}")
        p("s_memtime s[68:69]")
        p("s_waitcnt lgkmcnt(0)")
        p(f"s_sub_u32 s{S_ST+29}, s68, s100")
        for i in range(30):
            p(f"v_mov_b32 v2, s{S_ST+i}")
            p(f"global_store_dword v1, v2, s[{S_WS}:{S_WS+1}] offset:{4*i}")
    def arrive(off):
        p("s_mov_b64 exec, 1")
        p.lds(f"ds_add_u32 v{V_C}, v{V_ONE} offset:{off}", "arr")
        p("s_mov_b64 exec, -1")
    def poll_issue(off):
        p.lds(f"ds_read_b32 v{V_POLL}, v{V_C} offset:{off}", "poll")
    def check(off, target, issued=False, sleep=0):
        ok = L("ok"); sp = L("spin")
        if issued:
            p.wait(lg="poll")
            p(f"v_readfirstlane_b32 s{S_T+15}, v{V_POLL}")
            p(f"s_cmp_ge_u32 s{S_T+15}, {target}")
            p(f"s_cbranch_scc1 {ok}")
        p.label(sp)
        if sleep: p(f"s_sleep {sleep}")
        p(f"ds_read_b32 v{V_POLL}, v{V_C} offset:{off}")
        p("s_waitcnt lgkmcnt(0)")
        p(f"v_readfirstlane_b32 s{S_T+15}, v{V_POLL}")
        p(f"s_sub_u32 s{S_SPIN}, s{S_SPIN}, 1")
        p("s_cbranch_scc1 L_end")
        p(f"s_cmp_ge_u32 s{S_T+15}, {target}")
        p(f"s_cbranch_scc0 {sp}")
        if not issued: p.lg.clear()
        p.label(ok)

    p(f".globl {NAME}\n.p2align 8\n.type {NAME},@function")
    p.label(NAME)
    p("s_cmp_ge_u32 s2, 0x100")
    p("s_cbranch_scc1 L_end")
    for s, off in ((S_IDX, 0), (S_W1, 32), (S_WCIN, 16), (S_WCO, 24), (S_TAB, 8), (S_B1, 40), (S_WS, 80), (S_W2, 48)):
        p(f"s_load_dwordx2 s[{s}:{s+1}], s[0:1], {off}")
    p(f"s_load_dwordx2 s[{S_BOUT}:{S_BOUT+1}], s[0:1], 56")
    p(f"s_load_dwordx2 s[{S_OUT}:{S_OUT+1}], s[0:1], 64")
    p(f"s_load_dwordx2 s[{S_DBG}:{S_DBG+1}], s[0:1], 72")
    if cfg.probe >= 3: p("s_memrealtime s[96:97]")
    if cfg.stamps:
        p(f"s_memrealtime s[{S_ST}:{S_ST+1}]")
        p(f"s_memtime s[100:101]")
    p("v_lshrrev_b32 v1, 6, v0")
    p("v_and_b32 v0, 63, v0")
    p(f"v_readfirstlane_b32 s{S_WAVE}, v1")
    p(f"v_lshlrev_b32 v{V_C}, 2, v0")
    p(f"v_add_u32 v{V_C}, {CO}, v{V_C}")
    p("v_mov_b32 v1, 0")
    p(f"ds_write_b32 v{V_C}, v1")
    p(f"v_mov_b32 v{V_ONE}, 1")
    for s, n in ((S_IDX, 4096*104), (S_TAB, 6400000), (S_W1, 832*1664), (S_WCIN, 105456), (S_WCO, 156),
                 (S_B1, 1664), (S_W2, 1664), (S_WS, WS_END)):
        p(f"s_mov_b32 s{s+2}, {n}")
        p(f"s_mov_b32 s{s+3}, 0x20000")
    p(f"s_mov_b32 s{S_SPIN}, 0x40000")
    p(f"s_and_b32 s{S_T}, s2, 7")
    p(f"s_lshr_b32 s{S_T+1}, s2, 6")
    p(f"s_lshl3_add_u32 s{S_RG}, s{S_T+1}, s{S_T}")
    p(f"s_bfe_u32 s{S_CP}, s2, 0x30003")
    p(f"s_lshl3_add_u32 s{S_FB}, s{S_RG}, s{S_CP}")
    lo = sum(STARTS[i] << (8*i) for i in range(4)); hi = sum(STARTS[4+i] << (8*i) for i in range(4))
    p(f"s_mov_b32 s{S_T+2}, {hex(lo)}")
    p(f"s_mov_b32 s{S_T+3}, {hex(hi)}")
    p(f"s_lshl_b32 s{S_T}, s{S_CP}, 3")
    p(f"s_lshr_b64 s[{S_T+2}:{S_T+3}], s[{S_T+2}:{S_T+3}], s{S_T}")
    p(f"s_and_b32 s{S_COL}, s{S_T+2}, 63")
    p(f"s_lshl_b32 s{S_COL}, s{S_COL}, 5")
    p(f"v_lshlrev_b32 v{V_L}, 4, v0")
    p(f"s_cmp_ge_u32 s{S_WAVE}, 4")
    p("s_cbranch_scc1 L_cin")

    ACC = lambda t, q: 8*t + 4*q
    BF = lambda t: 56 + 4*t
    AR = lambda f, q: 84 + 8*(f % 2) + 4*q
    IDX = lambda f, q: 100 + 4*(f >> 1) + 2*q + (f & 1)
    VO = lambda u: 152 + u
    V_B, V_A, V_CH, V_LANE = 159, 160, 161, 165
    S_SB, S_M0, S_M1, S_AM, S_K1, S_K2 = S_T+2, S_T+3, S_T+4, S_T+5, S_T+6, S_T+7
    if cfg.prio_dnn: p(f"s_setprio {cfg.prio_dnn}")
    p(f"s_lshl2_add_u32 s{S_T}, s{S_RG}, s{S_WAVE}")
    p(f"s_mul_i32 s{S_T}, s{S_T}, 3328")
    p(f"s_mul_i32 s{S_AM}, s{S_WAVE}, {2048*cfg.RA}")
    p(f"s_add_u32 s{S_AM}, s{S_AM}, {AO}")
    p(f"s_mov_b32 m0, s{S_AM}")
    p(f"s_lshl_b32 s{S_M0}, s{S_WAVE}, 11")
    p(f"s_add_u32 s{S_M1}, s{S_M0}, 0x400")
    p(f"s_min_u32 s{S_M1}, s{S_M1}, 0x1800")
    p(f"s_movk_i32 s{S_K1}, 6656")
    p(f"s_movk_i32 s{S_K2}, 1440")
    for u in range(2):
        p(f"v_add_u32 v3, s{S_M0+u}, v{V_L}")
        p(f"v_lshlrev_b32 v4, 4, v3")
        p(f"v_mul_hi_u32_u24 v4, 0x124925, v4")
        p("v_bfe_u32 v5, v4, 2, 1")
        p("v_bfe_i32 v6, v4, 3, 1")
        p("v_add_u32 v5, v5, v6")
        p(f"v_mad_i32_i24 v5, v5, s{S_K1}, v3")
        p(f"v_mad_u32_u24 v{VO(u)}, v4, s{S_K2}, v5")
    p("v_lshrrev_b32 v1, 4, v0")
    p(f"v_lshlrev_b32 v2, 3, v1")
    p.wait0(lg=True)
    stamp(10)
    if cfg.probe in (1, 2):
        p("s_mul_i32 s90, s2, 24960")
        p("v_mov_b32 v8, s90")
        p("s_memrealtime s[92:93]")
        p("s_waitcnt lgkmcnt(0)")
        p(f"buffer_load_dword v9, v8, s[{S_TAB}:{S_TAB+3}], 0 offen")
        p("s_waitcnt vmcnt(0)")
        p("s_memrealtime s[94:95]")
        p("s_waitcnt lgkmcnt(0)")
        p(f"buffer_load_dword v9, v8, s[{S_TAB}:{S_TAB+3}], 0 offen offset:2048")
        p("s_waitcnt vmcnt(0)")
        p("s_memrealtime s[96:97]")
        p("s_waitcnt lgkmcnt(0)")
        p("s_sub_u32 s91, s96, s94")
        p("s_sub_u32 s90, s94, s92")
    for n in range(4):
        p.vmem(f"buffer_load_dwordx4 v{V_L}, s[{S_IDX}:{S_IDX+3}], s{S_T} offen offset:{1024*n}{nt(cfg.nt_idx)} lds", "idx")
    for t in range(7):
        p.vmem(f"buffer_load_dwordx2 v[{56+2*t}:{57+2*t}], v2, s[{S_B1}:{S_B1+3}], s{S_COL} offen offset:{32*t}", "bias")
    def b_dma(f, u):
        if u == 0:
            if f == 0: p(f"s_mov_b32 s{S_SB}, s{S_COL}")
            else: p(f"s_add_u32 s{S_SB}, s{S_SB}, 53248")
        p(f"s_add_u32 m0, s{S_M0+u}, {(f % RB)*SLOT}")
        p("s_nop 0")
        p.vmem(f"buffer_load_dwordx4 v{VO(u)}, s[{S_W1}:{S_W1+3}], s{S_SB} offen{nt(cfg.nt_w1)} lds", f"B{f}")
    for f in range(cfg.preB):
        for u in range(2): b_dma(f, u)
    stamp(11)
    p("s_barrier")
    p("v_lshrrev_b32 v2, 2, v0")
    p(f"v_mul_u32_u24 v2, 104, v2")
    p(f"v_add_u32 v7, s{S_AM}, v2")
    p("v_lshrrev_b32 v2, 5, v0")
    p("v_mul_u32_u24 v3, 3, v2")
    p("v_xor_b32 v3, v3, v0")
    p("v_and_b32 v3, 3, v3")
    p(f"v_lshlrev_b32 v{V_CH}, 4, v3")
    p("v_bfe_u32 v3, v0, 3, 1")
    p("v_mul_u32_u24 v3, 3, v3")
    p("v_xor_b32 v3, v3, v1")
    p("v_and_b32 v4, 15, v0")
    p("v_lshlrev_b32 v4, 6, v4")
    p("v_lshl_add_u32 v3, v3, 4, v4")
    p(f"v_add_u32 v{V_A}, s{S_AM}, v3")
    p("v_bfe_u32 v3, v0, 2, 3")
    p("v_lshl_add_u32 v2, v2, 4, v3")
    p("v_mul_u32_u24 v2, 0xe0, v2")
    p("v_and_b32 v3, 3, v0")
    p(f"v_lshl_add_u32 v{V_B}, v3, 3, v2")
    p(f"v_mov_b32 v{V_LANE}, v0")
    p.wait(vm="idx")
    stamp(1)
    for m in range(13):
        p.lds(f"ds_read2_b64 v[{100+4*m}:{103+4*m}], v7 offset0:{m} offset1:{208+m}", f"ix{m}")
    p.wait0(lg=True)
    def a_dma(f, q):
        p(f"s_add_u32 m0, s{S_AM}, {(f % cfg.RA)*2048 + 1024*q}")
        p(f"v_lshl_add_u32 v{IDX(f, q)}, v{IDX(f, q)}, 6, v{V_CH}")
        p.vmem(f"buffer_load_dwordx4 v{IDX(f, q)}, s[{S_TAB}:{S_TAB+3}], 0 offen{nt(cfg.nt_tab)} lds", f"A{f}")
    def a_read(f):
        p.wait(vm=f"A{f}")
        for q in range(2):
            p.lds(f"ds_read_b128 v[{AR(f, q)}:{AR(f, q)+3}], v{V_A} offset:{(f % cfg.RA)*2048 + 1024*q}", f"a{f}")
    nb = cfg.preB
    for f in range(cfg.RA):
        for q in range(2): a_dma(f, q)
        if nb < 3:
            for u in range(2): b_dma(nb, u)
            nb += 1
    stamp(12)
    p.wait(vm="bias")
    for t in range(7):
        for h in range(2):
            p(f"v_lshlrev_b32 v{ACC(t,0)+2*h}, 16, v{56+2*t+h}")
            p(f"v_and_b32 v{ACC(t,0)+2*h+1}, 0xffff0000, v{56+2*t+h}")
    p.wait(vm=("B0", "B1", "B2"))
    arrive(C_I)
    while nb < RB:
        for u in range(2): b_dma(nb, u)
        nb += 1
    stamp(13)
    check(C_I, 4)
    def b_read(f, t):
        for r2 in range(2):
            p.lds(f"ds_read_b64_tr_b16 v[{BF(t)+2*r2}:{BF(t)+2*r2+1}], v{V_B} offset:{(f % RB)*SLOT + 32*t + 1792*r2}", f"b{f}_{t}")
    for t in range(7): b_read(0, t)
    a_read(0)
    stamp(2)
    RAW = 100
    for f in range(26):
        for t in range(7):
            p.wait(lg=(f"b{f}_{t}", f"a{f}"))
            b = f"v[{BF(t)}:{BF(t)+3}]"
            a0, a1 = ACC(t, 0), ACC(t, 1)
            c1 = a0 if f == 0 else a1
            p(f"v_mfma_f32_16x16x32_bf16 v[{a1}:{a1+3}], {b}, v[{AR(f,1)}:{AR(f,1)+3}], v[{c1}:{c1+3}]")
            p(f"v_mfma_f32_16x16x32_bf16 v[{a0}:{a0+3}], {b}, v[{AR(f,0)}:{AR(f,0)+3}], v[{a0}:{a0+3}]")
            if f < 25: b_read(f+1, t)
            if t < 2 and f + cfg.RA < 26: a_dma(f + cfg.RA, t)
            if t == 2 and 1 <= f <= 23: poll_issue(C_S(f-1))
            if t == 4 and 1 <= f <= 23:
                check(C_S(f-1), 4, issued=True, sleep=cfg.spin_sleep)
                if f + 7 < 26: b_dma(f + 7, 0)
            if t == 5:
                if 1 <= f and f + 7 < 26: b_dma(f + 7, 1)
                if f < 25: a_read(f + 1)
            if f == 21:
                if t == 0:
                    p(f"v_lshrrev_b32 v166, 4, v{V_LANE}")
                    p("v_lshlrev_b32 v166, 3, v166")
                p.vmem(f"buffer_load_dwordx2 v[{RAW+2*t}:{RAW+2*t+1}], v166, s[{S_W2}:{S_W2+3}], s{S_COL} offen offset:{32*t}", "w2")
        if f <= 22:
            p.wait(vm=f"B{f+3}")
            arrive(C_S(f))
        if f % 4 == 0: stamp(14 + f//4)
    stamp(3)
    W2R = lambda t, r: 114 + 4*t + r
    p.wait(vm="w2")
    for t in range(7):
        for h in range(2):
            p(f"v_lshlrev_b32 v{W2R(t,2*h)}, 16, v{RAW+2*t+h}")
            p(f"v_and_b32 v{W2R(t,2*h+1)}, 0xffff0000, v{RAW+2*t+h}")
    sk = L("nomask")
    p(f"s_lshl_b32 s{S_T}, s{S_CP}, 1")
    p(f"s_lshr_b32 s{S_T}, {hex(sum(NMASK[i] << (2*i) for i in range(8)))}, s{S_T}")
    p(f"s_and_b32 s{S_T}, s{S_T}, 3")
    p(f"s_cbranch_scc0 {sk}")
    for r in range(4): p(f"v_mov_b32 v{W2R(0,r)}, 0")
    p(f"s_cmp_eq_u32 s{S_T}, 1")
    p(f"s_cbranch_scc1 {sk}")
    for r in range(4): p(f"v_mov_b32 v{W2R(1,r)}, 0")
    p.label(sk)
    k0 = -2.0*math.sqrt(2.0/math.pi)*math.log2(math.e)
    T1, T2, SUM, VC2 = 84, 88, 92, 96
    p(f"v_mov_b32 v{VC2}, {f2h(k0*0.044715)}")
    for r in range(4): p(f"v_mov_b32 v{SUM+r}, 0")
    for t in range(7):
        for q in range(2):
            x = ACC(t, q)
            for r in range(4): p(f"v_mul_f32 v{T1+r}, v{x+r}, v{x+r}")
            for r in range(4): p(f"v_fmaak_f32 v{T1+r}, v{T1+r}, v{VC2}, {f2h(k0)}")
            for r in range(4): p(f"v_mul_f32 v{T1+r}, v{T1+r}, v{x+r}")
            for r in range(4): p(f"v_exp_f32 v{T1+r}, v{T1+r}")
            for r in range(4): p(f"v_mul_f32 v{T2+r}, v{x+r}, v{W2R(t,r)}")
            for r in range(4): p(f"v_add_f32 v{T1+r}, 1.0, v{T1+r}")
            for r in range(4): p(f"v_rcp_f32 v{T1+r}, v{T1+r}")
            for r in range(4): p(f"v_fmac_f32 v{SUM+2*q+(r&1)}, v{T1+r}, v{T2+r}")
    p(f"v_add_f32 v{SUM}, v{SUM}, v{SUM+1}")
    p(f"v_add_f32 v{SUM+2}, v{SUM+2}, v{SUM+3}")
    p(f"v_and_b32 v84, 15, v{V_LANE}")
    p(f"v_lshrrev_b32 v85, 5, v{V_LANE}")
    p(f"v_permlane32_swap_b32 v{SUM}, v{SUM+2}")
    p("v_lshl_add_u32 v84, v85, 4, v84")
    p(f"v_add_f32 v{SUM}, v{SUM}, v{SUM+2}")
    p(f"v_bfe_u32 v85, v{V_LANE}, 4, 1")
    p(f"v_mov_b32 v{SUM+1}, v{SUM}")
    p("v_lshlrev_b32 v84, 2, v84")
    p("v_lshl_add_u32 v84, v85, 30, v84")
    p(f"v_permlane16_swap_b32 v{SUM}, v{SUM+1}")
    p(f"s_lshl2_add_u32 s{S_T}, s{S_FB}, s{S_WAVE}")
    p(f"v_add_f32 v{SUM}, v{SUM}, v{SUM+1}")
    p(f"s_lshl_b32 s{S_T}, s{S_T}, 7")
    p(f"v_mov_b32 v85, 0x7fc00000")
    p(f"v_cmp_eq_u32 vcc, -1, v{SUM}")
    p("s_nop 1")
    p(f"v_cndmask_b32 v{SUM}, v{SUM}, v85, vcc")
    check(C_FLAG, 1)
    p.vmem(f"buffer_store_dword v{SUM}, v84, s[{S_WS}:{S_WS+3}], s{S_T} offen sc1", "pub")
    stamp(4)
    if cfg.probe:
        p("v_mov_b32 v1, 0")
        if cfg.probe >= 3:
            p("s_memrealtime s[92:93]")
            p("s_waitcnt lgkmcnt(0)")
            p("s_sub_u32 s90, s92, s96")
            p("s_mov_b32 s91, 0")
        p("v_mov_b32 v2, s90")
        p("v_mov_b32 v3, s91")
        p("s_cmp_lg_u32 s2, 77")
        p("s_cbranch_scc1 L_pr0")
        p(f"global_store_dwordx2 v1, v[2:3], s[{S_DBG}:{S_DBG+1}] offset:8")
        p.label("L_pr0")
        p("s_memrealtime s[92:93]")
        p("s_waitcnt lgkmcnt(0)")
        if cfg.probe >= 3:
            p("s_sub_u32 s90, s92, s96")
            p(f"s_mul_i32 s90, s90, {cfg.probe-1}")
        else: p(f"s_mul_i32 s90, s{89+cfg.probe}, 32")
        p("s_min_u32 s90, s90, 20000")
        p("s_cmp_lg_u32 s2, 77")
        p("s_cselect_b32 s90, 0, s90")
        p("s_add_u32 s92, s92, s90")
        p.label("L_pr")
        p("s_memrealtime s[94:95]")
        p("s_waitcnt lgkmcnt(0)")
        p("s_cmp_lt_u32 s94, s92")
        p("s_cbranch_scc1 L_pr")
    stamps_out()
    p("s_endpgm")

    p.vm.clear(); p.lg.clear()
    p.label("L_cin")
    S_C = S_W
    W3A, TBL, VV, AQ, VF, GA, MB, VT, CRAW = 28, 32, 40, 56, 72, 80, 96, 144, 152
    p(f"s_sub_u32 s{S_C}, s{S_WAVE}, 4")
    p(f"s_getpc_b64 s[{S_PC}:{S_PC+1}]")
    p.label("L_pc")
    p.wait0(lg=True)
    def cinit_loads():
        p(f"v_lshrrev_b32 v8, 5, v0")
        p(f"v_lshlrev_b32 v9, 3, v8")
        p(f"v_lshlrev_b32 v8, 1, v8")
        for a in range(3):
            p(f"buffer_load_dwordx2 v[{CRAW+2*a}:{CRAW+2*a+1}], v9, s[{S_WCO}:{S_WCO+3}], 0 offen offset:{16*a}")
        p(f"buffer_load_ushort v{CRAW+6}, v8, s[{S_WCO}:{S_WCO+3}], 0 offen offset:48")
        p(f"v_mov_b32 v8, 0")
        p(f"global_load_ushort v{CRAW+7}, v8, s[{S_BOUT}:{S_BOUT+1}]")
    if cfg.NCIN > 4:
        p(f"s_cmp_lt_u32 s{S_C}, 4")
        p("s_cbranch_scc1 L_chelp")
        cinit_loads()
        p("s_barrier")
        p("s_branch L_wwait")
        p.label("L_chelp")
    p(f"s_cmp_ge_u32 s{S_FB}, 26")
    p("s_cbranch_scc1 L_cidx")
    if cfg.prio_prep: p(f"s_setprio {cfg.prio_prep}")
    p(f"s_mul_i32 s{S_T}, s{S_C}, 9216")
    p(f"s_add_u32 s{S_T+1}, s{S_T}, 70304")
    p(f"s_add_u32 s{S_T}, s{S_T}, {P_W3}")
    for u in range(9):
        if u % 4 == 0:
            if u:
                p(f"s_add_u32 s{S_T}, s{S_T}, 0x1000")
                p(f"s_add_u32 s{S_T+1}, s{S_T+1}, 0x1000")
            p(f"s_mov_b32 m0, s{S_T}")
            p("s_nop 0")
        p(f"buffer_load_dwordx4 v{V_L}, s[{S_WCIN}:{S_WCIN+3}], s{S_T+1} offen offset:{1024*(u % 4)} lds")
    p("v_lshrrev_b32 v1, 4, v0")
    p("v_lshlrev_b32 v1, 4, v1")
    p(f"buffer_load_dwordx4 v[{W3A}:{W3A+3}], v1, s[{S_WCO}:{S_WCO+3}], 0 offen offset:104")
    p(f"s_and_b32 s{S_T}, s{S_C}, 1")
    p(f"s_lshl_b32 s{S_T}, s{S_T}, 11")
    p(f"s_add_u32 s{S_T}, s{S_T}, gather_table-L_pc")
    p("v_lshlrev_b32 v1, 5, v0")
    p(f"v_add_u32 v1, s{S_T}, v1")
    p(f"s_cmp_ge_u32 s{S_C}, 2")
    p("s_cbranch_scc1 L_pnot1")
    p(f"global_load_dwordx4 v[{TBL}:{TBL+3}], v1, s[{S_PC}:{S_PC+1}]")
    p(f"global_load_dwordx4 v[{TBL+4}:{TBL+7}], v1, s[{S_PC}:{S_PC+1}] offset:16")
    p(f"s_cmp_lg_u32 s{S_C}, 0")
    p("s_cbranch_scc1 L_pnot0")
    p("v_lshrrev_b32 v1, 5, v0")
    p("v_mul_u32_u24 v1, 0x2a40, v1")
    p("v_and_b32 v2, 31, v0")
    p("v_lshl_add_u32 v1, v2, 1, v1")
    p(f"s_mul_i32 s{S_T}, s{S_FB}, 52")
    p(f"s_add_u32 s{S_T}, s{S_T}, 35152")
    for u in range(16):
        if u and u % 4 == 0:
            p(f"s_add_u32 s{S_T}, s{S_T}, {(4 if u != 8 else 12)*1352}")
        p(f"buffer_load_ushort v{VV+u}, v1, s[{S_WCIN}:{S_WCIN+3}], s{S_T} offen offset:{1352*(u % 4)}")
    p("s_branch L_pnot1")
    p.label("L_pnot0")
    p(f"s_mul_i32 s{S_T}, s{S_FB}, 1352")
    p(f"s_mov_b32 m0, {P_W1}")
    p("s_nop 0")
    for u in range(2):
        p(f"buffer_load_dwordx4 v{V_L}, s[{S_WCIN}:{S_WCIN+3}], s{S_T} offen offset:{1024*u} lds")
    p.label("L_pnot1")
    p("v_lshlrev_b32 v1, 2, v0")
    p(f"buffer_load_dword v27, v1, s[{S_WCO}:{S_WCO+3}], 0 offen offset:52")
    p("v_mov_b32 v2, 0")
    p("v_mov_b32 v3, 0")
    p(f"s_lshl_b32 s{S_T}, s{S_C}, 9")
    p(f"s_add_u32 s{S_T}, s{S_T}, {P_M3T}")
    p(f"v_lshl_add_u32 v4, v0, 3, s{S_T}")
    p("ds_write_b64 v4, v[2:3]")
    p(f"v_add_u32 v4, {P_Z}, v1")
    p("ds_write_b32 v4, v2")
    p(f"s_cmp_ge_u32 s{S_FB}, 16")
    p("s_cbranch_scc1 L_cidx")
    for r in range(4): p(f"v_mov_b32 v{4+r}, -1")
    p(f"s_lshl2_add_u32 s{S_T}, s{S_FB}, s{S_C}")
    p(f"s_lshl_b32 s{S_T}, s{S_T}, 11")
    for u in range(2):
        p(f"buffer_store_dwordx4 v[4:7], v{V_L}, s[{S_WS}:{S_WS+3}], s{S_T} offen offset:{1024*u} sc1")
    p.label("L_cidx")
    p(f"s_mul_i32 s{S_T+2}, s{S_FB}, 1664")
    p(f"s_lshl2_add_u32 s{S_T+2}, s{S_C}, s{S_T+2}")
    p("v_lshrrev_b32 v1, 2, v0")
    p("v_mul_u32_u24 v1, 104, v1")
    for n in range(7):
        p(f"buffer_load_dword v{VT+n}, v1, s[{S_IDX}:{S_IDX+3}], s{S_T+2} offen offset:{16*n}{nt(cfg.nt_idx)}")
    if cfg.prefetch_code:
        sk = L("nopf")
        p(f"s_cmp_lg_u32 s{S_C}, 2")
        p(f"s_cbranch_scc1 {sk}")
        p(f"s_lshl_b32 s{S_T}, s{S_CP}, 12")
        p(f"v_lshl_add_u32 v2, v0, 6, s{S_T}")
        p(f"v_min_u32 v2, gather_table-{NAME}, v2")
        p(f"s_sub_u32 s{S_T}, s{S_PC}, L_pc-{NAME}")
        p(f"s_subb_u32 s{S_T+1}, s{S_PC+1}, 0")
        p(f"global_load_dword v151, v2, s[{S_T}:{S_T+1}]")
        p.label(sk)
    cinit_loads()
    p("s_barrier")
    p("v_and_b32 v1, 3, v0")
    p("v_lshlrev_b32 v1, 4, v1")
    p(f"s_lshl_b32 s{S_T+3}, s{S_C}, 10")
    p(f"s_add_u32 s{S_T+3}, s{S_T+3}, {XO}")
    p.wait0(vm=True)
    stamp(1)
    p(f"s_cmp_ge_u32 s{S_FB}, 26")
    p("s_cbranch_scc1 L_cx")
    p(f"s_cmp_lg_u32 s{S_C}, 3")
    p("s_cbranch_scc1 L_not3")
    p("v_lshlrev_b32 v2, 2, v0")
    p(f"v_add_u32 v2, {P_M3T + 26*64}, v2")
    p("s_mov_b64 exec, 0x1fff")
    p("ds_write_b32 v2, v27")
    p("s_mov_b64 exec, -1")
    p.label("L_not3")
    p.wait0(lg=True)
    arrive(C_PA)
    p.label("L_cx")
    for n in range(7):
        if n == 6:
            p(f"s_cmp_ge_u32 s{S_C}, 2")
            p("s_cbranch_scc1 L_cx2")
        p(f"s_add_u32 m0, s{S_T+3}, {4096*n}")
        p(f"v_lshl_add_u32 v{VT+n}, v{VT+n}, 6, v1")
        p(f"buffer_load_dwordx4 v{VT+n}, s[{S_TAB}:{S_TAB+3}], 0 offen{nt(cfg.nt_x)} lds")
    p.label("L_cx2")
    if cfg.pfB:
        sk = L("nopfb")
        p(f"s_cmp_eq_u32 s{S_C}, 0")
        p(f"s_cbranch_scc1 {sk}")
        p(f"s_lshr_b32 s{S_T}, s2, 6")
        p(f"s_lshl2_add_u32 s{S_T}, s{S_C}, s{S_T}")
        p(f"s_add_u32 s{S_T}, s{S_T}, 4")
        p(f"s_mul_i32 s{S_T}, s{S_T}, 53248")
        p(f"s_add_u32 s{S_T}, s{S_T}, s{S_COL}")
        p(f"s_add_u32 s{S_T+1}, s{S_T}, {12*53248}")
        p("v_lshrrev_b32 v2, 1, v0")
        p("v_mul_u32_u24 v2, 0x680, v2")
        p("v_and_b32 v3, 1, v0")
        p("v_mul_u32_u24 v3, 0xdc, v3")
        p("v_add_u32 v3, v3, v2")
        for u in range(2):
            p(f"buffer_load_dword v151, v3, s[{S_W1}:{S_W1+3}], s{S_T+u} offen{nt(cfg.nt_pf)}")
        p(f"s_lshr_b32 s{S_T+4}, 0x12, s{S_CP}")
        p(f"s_bitcmp0_b32 s{S_T+4}, 0")
        p(f"s_cbranch_scc1 {sk}")
        for u in range(2):
            p(f"buffer_load_dword v151, v2, s[{S_W1}:{S_W1+3}], s{S_T+u} offen offset:108{nt(cfg.nt_pf)}")
        p.label(sk)
    p(f"s_cmp_ge_u32 s{S_FB}, 26")
    p("s_cbranch_scc1 L_poll")
    p("v_bfe_u32 v1, v0, 2, 2")
    for q in range(4):
        p(f"v_cmp_eq_u32 vcc, {q}, v1")
        p("s_nop 1")
        for r in range(4): p(f"v_cndmask_b32 v{AQ+4*q+r}, 0, v{W3A+r}, vcc")
    p("v_lshrrev_b32 v4, 4, v0")
    p("v_lshl_add_u32 v4, v4, 3, v1")
    p("v_add_u32 v5, 4, v4")
    p("v_min_u32 v4, 25, v4")
    p("v_min_u32 v5, 25, v5")
    p("v_and_b32 v6, 3, v0")
    p(f"s_mul_i32 s{S_T}, s{S_C}, 384")
    p(f"s_add_u32 s{S_T}, s{S_T}, {P_W3}")
    p(f"v_lshl_add_u32 v6, v6, 3, s{S_T}")
    p(f"s_movk_i32 s{S_T+1}, 1352")
    p(f"v_mad_u32_u24 v2, v4, s{S_T+1}, v6")
    p(f"v_mad_u32_u24 v3, v5, s{S_T+1}, v6")
    check(C_PA, 4)
    stamp(9)
    for T in range(12):
        p.lds(f"ds_read_b64_tr_b16 v[{MB+4*T}:{MB+4*T+1}], v2 offset:{32*T}", f"m{T}")
        p.lds(f"ds_read_b64_tr_b16 v[{MB+4*T+2}:{MB+4*T+3}], v3 offset:{32*T}", f"m{T}")
    for T in range(12):
        u, q = divmod(T, 4)
        p.wait(lg=f"m{T}")
        cc = "0" if q == 0 else f"v[{12+4*u}:{15+4*u}]"
        p(f"v_mfma_f32_16x16x32_bf16 v[{12+4*u}:{15+4*u}], v[{AQ+4*q}:{AQ+4*q+3}], v[{MB+4*T}:{MB+4*T+3}], {cc}")
        if q == 1:
            if u == 0:
                p(f"s_mul_i32 s{S_T}, s{S_C}, 192")
                p(f"s_movk_i32 s{S_T+1}, -1662")
                p(f"v_mov_b32 v7, {P_DUM}")
            else: p(f"s_add_u32 s{S_T}, s{S_T}, 64")
            p(f"v_add_u32 v4, s{S_T}, v0")
            p("v_mul_u32_u24 v5, 2521, v4")
            p("v_lshrrev_b32 v5, 16, v5")
            p("v_cmp_gt_u32 vcc, 0x2a4, v4")
        if q == 2:
            p("v_lshlrev_b32 v4, 6, v4")
            p(f"v_mad_i32_i24 v4, v5, s{S_T+1}, v4")
            p(f"v_add_u32 v4, {P_M3T}, v4")
            p(f"v_cndmask_b32 v{8+u}, v7, v4, vcc")
    p("s_nop 5")
    for u in range(3):
        p(f"v_cvt_pk_bf16_f32 v{24+u}, v{12+4*u}, v{12+4*u}")
    for u in range(3):
        p(f"ds_write_b16 v{8+u}, v{24+u}")
    p.wait0(lg=True)
    arrive(C_PB)
    p(f"s_cmp_ge_u32 s{S_C}, 2")
    p("s_cbranch_scc1 L_pdone")
    p(f"v_mov_b32 v11, {WO}")
    for u in range(8):
        p(f"v_add_u32_sdwa v{GA+2*u}, v11, v{TBL+u} dst_sel:DWORD dst_unused:UNUSED_PAD src0_sel:DWORD src1_sel:WORD_0")
        p(f"v_add_u32_sdwa v{GA+2*u+1}, v11, v{TBL+u} dst_sel:DWORD dst_unused:UNUSED_PAD src0_sel:DWORD src1_sel:WORD_1")
    p("v_lshrrev_b32 v1, 1, v0")
    p("v_and_b32 v2, 1, v0")
    p(f"s_mul_i32 s{S_T}, s{S_FB}, 1536")
    p(f"s_add_u32 s{S_T}, s{S_T}, {WS_W}")
    p(f"s_cmp_eq_u32 s{S_C}, 0")
    p("s_cbranch_scc1 L_pT")
    p("v_lshlrev_b32 v1, 2, v1")
    for u in range(16): p(f"v_mov_b32 v{MB+u}, 0")
    for u in range(16): p(f"ds_read_u16_d16_hi v{MB+u}, v{GA+u}")
    p("s_mov_b32 exec_hi, 0xfff")
    p("s_branch L_pfin")
    p.label("L_pT")
    for u in range(8):
        p(f"v_lshl_or_b32 v{VF+u}, v{VV+2*u+1}, 16, v{VV+2*u}")
    p("v_and_b32 v3, 31, v0")
    p("v_lshrrev_b32 v4, 5, v0")
    p("v_lshlrev_b32 v5, 6, v3")
    p("v_lshl_add_u32 v5, v4, 4, v5")
    p(f"v_add_u32 v5, {P_M3T}, v5")
    check(C_PB, 4)
    p("ds_read_b128 v[12:15], v5")
    p("ds_read_b128 v[16:19], v5 offset:32")
    p("v_mul_u32_u24 v3, 0x90, v3")
    p("v_lshl_add_u32 v3, v4, 4, v3")
    p(f"v_add_u32 v3, {P_D1}, v3")
    p("s_waitcnt lgkmcnt(1)")
    p(f"v_mfma_f32_32x32x16_bf16 v[{MB}:{MB+15}], v[{VF}:{VF+3}], v[12:15], 0")
    p("s_waitcnt lgkmcnt(0)")
    p(f"v_mfma_f32_32x32x16_bf16 v[{MB}:{MB+15}], v[{VF+4}:{VF+7}], v[16:19], v[{MB}:{MB+15}]")
    p("v_lshl_add_u32 v4, v1, 1, 1")
    p("v_add_u32 v1, 22, v1")
    p("v_min_u32 v1, v1, v4")
    p("v_lshlrev_b32 v1, 1, v1")
    p("s_nop 7")
    for a in range(4): p(f"ds_write_b128 v3, v[{MB+4*a}:{MB+4*a+3}] offset:{32*a}")
    p("s_waitcnt lgkmcnt(0)")
    for u in range(16): p(f"ds_read_b32 v{MB+u}, v{GA+u}")
    p("s_mov_b32 exec_hi, 0xffff")
    p.label("L_pfin")
    p("v_add_lshl_u32 v1, v1, v2, 4")
    p("s_waitcnt lgkmcnt(0)")
    for e in range(8): p(f"v_add_f32 v{MB+2*e}, v{MB+2*e}, v{MB+2*e+1}")
    for e in range(4): p(f"v_cvt_pk_bf16_f32 v{4+e}, v{MB+4*e}, v{MB+4*e+2}")
    p(f"buffer_store_dwordx4 v[4:7], v1, s[{S_WS}:{S_WS+3}], s{S_T} offen sc1")
    p("s_mov_b64 exec, -1")
    p.label("L_pdone")
    stamp(21)
    p.wait0(vm=True)
    stamp(6)
    p("s_mov_b64 exec, 1")
    p(f"ds_add_rtn_u32 v1, v{V_C}, v{V_ONE} offset:{C_PC}")
    p("v_mov_b32 v2, 0")
    p("s_waitcnt lgkmcnt(0)")
    p(f"v_readfirstlane_b32 s{S_T}, v1")
    p(f"s_cmp_lg_u32 s{S_T}, 3")
    p("s_cbranch_scc1 L_psig")
    p(f"global_atomic_add v1, v2, v{V_ONE}, s[{S_DBG}:{S_DBG+1}] sc0 sc1")
    p("s_waitcnt vmcnt(0)")
    p(f"v_readfirstlane_b32 s{S_T}, v1")
    p(f"s_cmp_lg_u32 s{S_T}, 25")
    p("s_cbranch_scc1 L_psig")
    p(f"global_store_dword v2, v{V_ONE}, s[{S_DBG}:{S_DBG+1}] offset:128 sc1")
    p.label("L_psig")
    p("s_mov_b64 exec, -1")
    stamp(22)
    p.label("L_poll")
    p(f"s_setprio {cfg.prio_prep}")
    p("v_lshrrev_b32 v1, 3, v0")
    p("v_and_b32 v2, 7, v0")
    p("v_mul_u32_u24 v3, 0x600, v1")
    p("v_lshl_add_u32 v3, v2, 4, v3")
    p("v_mul_u32_u24 v4, 0x210, v2")
    p(f"s_mul_i32 s{S_T}, s{S_C}, {24*528}")
    p(f"s_add_u32 s{S_T}, s{S_T}, {WO}")
    p(f"v_add_u32 v4, s{S_T}, v4")
    p("v_lshl_add_u32 v5, v1, 4, v4")
    p("v_cmp_eq_u32 vcc, 1, v1")
    p("v_add_u32 v6, 48, v5")
    p("v_subrev_u32 v7, 48, v5")
    p("v_cndmask_b32 v6, v5, v6, vcc")
    p("v_cmp_eq_u32 vcc, 4, v1")
    p(f"s_mul_i32 s{S_T}, s{S_C}, 384")
    p(f"s_add_u32 s{S_T}, s{S_T}, {WS_W}")
    p("v_cndmask_b32 v6, v6, v7, vcc")
    p(f"s_cmp_lg_u32 s{S_C}, 0")
    p("s_cbranch_scc1 L_pollo")
    p("v_mov_b32 v1, 0")
    p("s_mov_b64 exec, 1")
    p.label("L_pollg")
    p(f"global_load_dword v2, v1, s[{S_DBG}:{S_DBG+1}] offset:128 sc1")
    p("s_waitcnt vmcnt(0)")
    p(f"v_readfirstlane_b32 s{S_T+1}, v2")
    p(f"s_cmp_lg_u32 s{S_T+1}, 0")
    p("s_cbranch_scc1 L_pollgd")
    p(f"s_sleep {cfg.poll_sleep}")
    p(f"s_sub_u32 s{S_SPIN}, s{S_SPIN}, 1")
    p("s_cbranch_scc0 L_pollg")
    p("s_endpgm")
    p.label("L_pollgd")
    p(f"ds_add_u32 v{V_C}, v{V_ONE} offset:{C_FLAG}")
    p("s_mov_b64 exec, -1")
    p("s_branch L_wload")
    p.label("L_pollo")
    check(C_FLAG, 1, sleep=1)
    p.label("L_wload")
    stamp(2)
    p.vm.clear(); p.lg.clear()
    for J in range(4):
        if J: p(f"s_add_u32 s{S_T}, s{S_T}, 12288")
        for Fi in range(3):
            r = MB + 4*(3*J + Fi)
            p.vmem(f"buffer_load_dwordx4 v[{r}:{r+3}], v3, s[{S_WS}:{S_WS+3}], s{S_T} offen offset:{128*Fi} sc1", f"w{J}{Fi}")
    for J in range(4):
        for Fi in range(3):
            r = MB + 4*(3*J + Fi)
            p.wait(vm=f"w{J}{Fi}")
            p(f"ds_write_b128 v{6 if J == 3 else 5}, v[{r}:{r+3}] offset:{4224*Fi + 128*J}")
    p.wait0(lg=True)
    arrive(C_WR)
    p.label("L_wwait")

    AX, AT, CI, X0 = 0, 16, 32, 48
    Z = [74, 78]; PT = 82; ZL = 90
    XA = {1: 98, -3: 99, -1: 100}; WA = 101; SM = [102, 103, 104, 105]; MBX = 106; VMB = 110; VBO = 111
    RING = 112; RES = RING + 4*cfg.R
    assert RES + 4*cfg.NRES <= (256 if cfg.NCIN == 4 else 168)
    S_N, S_MB, S_O = S_T+7, S_T+9, S_T+11
    p(f"s_mov_b32 s{S_N}, {NR}")
    p(f"s_mul_i32 s{S_T}, s{S_C}, {64*NR}")
    p(f"s_add_u32 s{S_T}, s{S_T}, {XO}")
    p("v_and_b32 v1, 31, v0")
    p("v_lshrrev_b32 v2, 5, v0")
    p(f"v_lshl_add_u32 v3, v1, 1, s{S_T}")
    p(f"v_lshl_add_u32 v{XA[1]}, v2, 10, v3")
    p("v_mul_u32_u24 v4, 0xc00, v2")
    p(f"v_sub_u32 v{XA[-3]}, v3, v4")
    p("v_lshlrev_b32 v4, 10, v2")
    p(f"v_sub_u32 v{XA[-1]}, v3, v4")
    p("v_mul_u32_u24 v4, 0x210, v2")
    p("v_lshl_add_u32 v4, v1, 4, v4")
    p(f"v_add_u32 v{WA}, {WO}, v4")
    for r in range(26): p(f"v_mov_b32 v{X0+r}, 0")
    p.wait0(vm=True)
    for a in range(3):
        for h in range(2):
            p(f"v_lshlrev_b32 v{CI+4*a+2*h}, 16, v{CRAW+2*a+h}")
            p(f"v_and_b32 v{CI+4*a+2*h+1}, 0xffff0000, v{CRAW+2*a+h}")
    p(f"v_lshlrev_b32 v{CI+12}, 16, v{CRAW+6}")
    for r in range(13, 16): p(f"v_mov_b32 v{CI+r}, 0")
    p(f"v_lshlrev_b32 v{VBO}, 16, v{CRAW+7}")
    p("v_lshrrev_b32 v1, 3, v0")
    p("v_min_u32 v1, 1, v1")
    p("v_lshlrev_b32 v2, 9, v0")
    p(f"v_lshl_add_u32 v{VMB}, v1, 30, v2")
    p(f"s_mul_i32 s{S_T}, s{S_C}, {NR}")
    p(f"s_lshl4_add_u32 s{S_MB}, s{S_CP}, s{S_T}")
    p(f"s_lshl_b32 s{S_T+1}, s{S_RG}, 7")
    p(f"s_add_u32 s{S_T+1}, s{S_T+1}, s{S_MB}")
    p(f"s_lshl_b32 s{S_O}, s{S_T+1}, 1")
    p(f"s_lshl_b32 s{S_T}, s{S_RG}, 10")
    p(f"s_add_u32 s{S_MB}, s{S_MB}, s{S_T}")
    p(f"s_lshl_b32 s{S_MB}, s{S_MB}, 2")
    p(f"v_mov_b32 v{ZL+7}, 0")
    check(C_WR, 4, sleep=1 if cfg.NCIN > 4 else 0)
    p(f"s_setprio {cfg.prio_cin}")
    stamp(3)
    def x_read(r):
        p.lds(f"ds_read_u16_d16_hi v{X0+r}, v{XA[pi(r)-r]} offset:{1024*r}", f"x{r}")
    for r in range(26): x_read(r)
    order = []
    for n in range(22):
        order.append(("X", n)); order.append(("T", n))
        if n == 14: order.append(("T", 22))
        if n == 18: order.append(("T", 23))
    fr_of = lambda k, n: (2*n if k == "X" else 2*n + 1) if n < 22 else n + 22
    nn = 46 - cfg.NRES
    assert nn % cfg.R == 0
    nonres = [int((u + 0.5)*46/nn) for u in range(nn)]
    wreg = {}; rr = 0
    for k in range(46):
        if k in nonres: wreg[k] = RING + 4*(nonres.index(k) % cfg.R)
        else: wreg[k] = RES + 4*rr; rr += 1
    def w_read(k):
        p.lds(f"ds_read_b128 v[{wreg[k]}:{wreg[k]+3}], v{WA} offset:{1056*fr_of(*order[k])}", f"w{k}")
    for k in range(46):
        if k not in nonres or nonres.index(k) < cfg.R: w_read(k)
    def z_ops(n):
        ops = []
        for e in range(4):
            t = PT + 2*(e % 4)
            (a, b), (c, d) = S[8*n + 2*e], S[8*n + 2*e + 1]
            ops.append(("v", f"v_mul_f32 v{t}, v{X0+a}, v{X0+b}", (a, b)))
            ops.append(("v", f"v_mul_f32 v{t+1}, v{X0+c}, v{X0+d}", (c, d)))
        cv = [("v", f"v_cvt_pk_bf16_f32 v{Z[n % 2]+e}, v{PT+2*e}, v{PT+2*e+1}", ()) for e in range(4)]
        return ops[0:4] + cv[0:1] + ops[4:6] + cv[1:2] + ops[6:8] + cv[2:4]
    for o in z_ops(0):
        p.wait(lg=tuple(f"x{r}" for r in o[2]))
        p(o[1])
    for d in XA.values(): p(f"v_add_u32 v{d}, 64, v{d}")
    p.wait0(lg=True)
    stamp(5)
    def mfma(k):
        kind, n = order[k]
        zb = Z[n % 2] if n < 22 else ZL + 4*(n - 22)
        acc = AX if kind == "X" else AT
        cc = f"v[{acc}:{acc+15}]"
        if n == 0: cc = "0" if kind == "X" else f"v[{CI}:{CI+15}]"
        return f"v_mfma_f32_32x32x16_bf16 v[{acc}:{acc+15}], v[{wreg[k]}:{wreg[k]+3}], v[{zb}:{zb+3}], {cc}"
    lin_ops = []
    for u in range(8):
        a = LIN[min(2*u, 12)]; b = LIN[min(2*u + 1, 12)]
        lin_ops.append(("v", f"v_cvt_pk_bf16_f32 v{ZL+u}, v{X0+a}, v{X0+b}", (a, b)))
    def body(emit_mb):
        groups = [z_ops(n) for n in range(1, 22)] + [z_ops(0)]
        groups[10] = lin_ops[:7] + groups[10]
        flat = [(g, o) for g, ops in enumerate(groups) for o in ops]
        lastuse = {}
        for i, (g, o) in enumerate(flat):
            if g < 21:
                for r in o[2]: lastuse[r] = i
        for r in range(26): lastuse.setdefault(r, -1)
        for g, ops in enumerate(groups):
            mf = [kk for kk in range(46) if order[kk] in (("X", g), ("T", g))]
            if g == 14: mf.append(order.index(("T", 22)))
            if g == 18: mf.append(order.index(("T", 23)))
            items = []
            base = sum(len(x) for x in groups[:g])
            if g == 0:
                for r in range(26):
                    if lastuse[r] == -1: items.append(("x", r))
            for i, o in enumerate(ops):
                items.append(o)
                for r in range(26):
                    if lastuse[r] == base + i: items.append(("x", r))
            if g == 21:
                pos = [0, 0]
            else:
                n_it = len(items)
                pos = [2 + (j*n_it)//len(mf) for j in range(len(mf))]
            j = 0
            for i, it in enumerate(items + [None]):
                while j < len(mf) and pos[j] <= i:
                    kk = mf[j]
                    if g == 21 and j == 0: p("s_nop 1")
                    p.wait(lg=f"w{kk}")
                    p(mfma(kk))
                    if kk in nonres:
                        w_read(nonres[(nonres.index(kk) + cfg.R) % nn])
                    j += 1
                if it is None: break
                if it[0] == "x": x_read(it[1])
                else:
                    p.wait(lg=tuple(f"x{r}" for r in it[2]))
                    p(it[1])
            if g == 15: emit_mb()
        for k in range(NR - 1): p(f"v_mov_b32 v{SM[k]}, v{SM[k+1]}")
        for d in XA.values(): p(f"v_add_u32 v{d}, 64, v{d}")
        s0 = SM[NR-1]
        p(f"v_mul_f32 v{s0}, v{AX}, v{AT}")
        p(f"v_mul_f32 v{PT}, v{AX+1}, v{AT+1}")
        for r in range(2, 13):
            p(f"v_fmac_f32 v{s0 if r % 2 == 0 else PT}, v{AX+r}, v{AT+r}")
        p(f"s_sub_u32 s{S_N}, s{S_N}, 1")
        p(f"v_add_f32 v{s0}, v{s0}, v{PT}")
    def mb_loads():
        p(f"buffer_load_dwordx{NR} v[{MBX}:{MBX+NR-1}], v{VMB}, s[{S_WS}:{S_WS+3}], s{S_MB} offen sc1")
    def emit_mb():
        sk = L("nomb")
        p(f"s_cmp_lg_u32 s{S_N}, 1")
        p(f"s_cbranch_scc1 {sk}")
        mb_loads()
        p.label(sk)
    save = p.L; p.L = []
    body(lambda: None)
    st1 = list(p.lg.q)
    p.L = save
    p(".p2align 3")
    p.label("L_row")
    body(emit_mb)
    assert st1 == p.lg.q
    if cfg.stamps:
        for i in range(3): p(f"s_mov_b32 s{S_ST+23+i}, s{S_ST+24+i}")
        stamp(26)
    p(f"s_cmp_lg_u32 s{S_N}, 0")
    p("s_cbranch_scc1 L_row")
    stamp(7)
    p.label("L_mbw")
    p("s_waitcnt vmcnt(0)")
    if NR == 4:
        p(f"v_max3_u32 v1, v{MBX}, v{MBX+1}, v{MBX+2}")
        p(f"v_max_u32 v1, v1, v{MBX+3}")
    else: p(f"v_max_u32 v1, v{MBX}, v{MBX+1}")
    p("v_cmp_eq_u32 vcc, -1, v1")
    p("s_nop 1")
    p("s_cmp_eq_u64 vcc, 0")
    p("s_cbranch_scc1 L_mbok")
    p("s_sleep 1")
    mb_loads()
    p(f"s_sub_u32 s{S_SPIN}, s{S_SPIN}, 1")
    p("s_cbranch_scc0 L_mbw")
    p("s_endpgm")
    p.label("L_mbok")
    for k in range(NR): p(f"v_add_f32 v{SM[k]}, v{SM[k]}, v{MBX+k}")
    for ctl in ("quad_perm:[1,0,3,2] row_mask:0xf", "quad_perm:[2,3,0,1] row_mask:0xf", "row_half_mirror row_mask:0xf",
                "row_mirror row_mask:0xf", "row_bcast:15 row_mask:0xa", "row_bcast:31 row_mask:0xc"):
        if NR == 2: p("s_nop 0")
        for k in range(NR): p(f"v_add_f32_dpp v{SM[k]}, v{SM[k]}, v{SM[k]} {ctl} bank_mask:0xf")
    for k in range(NR): p(f"v_add_f32 v{SM[k]}, v{SM[k]}, v{VBO}")
    for k in range(NR//2): p(f"v_cvt_pk_bf16_f32 v{2+k}, v{SM[2*k]}, v{SM[2*k+1]}")
    p(f"v_mov_b32 v1, s{S_O}")
    p("s_mov_b32 exec_lo, 0")
    p("s_mov_b32 exec_hi, 0x80000000")
    if NR == 4: p(f"global_store_dwordx2 v1, v[2:3], s[{S_OUT}:{S_OUT+1}]")
    else: p(f"global_store_dword v1, v2, s[{S_OUT}:{S_OUT+1}]")
    stamps_out()
    p.label("L_end")
    p("s_endpgm")
    p(".p2align 6")
    p(".type gather_table,@object")
    p.label("gather_table")
    zt = P_Z - WO
    for role in range(2):
        for lane in range(64):
            s, half = lane >> 1, lane & 1
            ad = []
            for e in range(8):
                pr = slot_pair(s, half, e) if s < (24 if role == 0 else 22) else None
                at = (lambda j, k: P_D1 - WO + k*144 + j*4) if role == 0 else (lambda j, k: P_W1 - WO + (j*26 + k)*2)
                if pr is None: ad += [zt, zt]
                elif pr[1] is None: ad += [at(pr[0], 26), zt]
                elif pr[0] == pr[1] or norm(pr) == (24, 25): ad += [at(*pr), zt]
                else: ad += [at(pr[0], pr[1]), at(pr[1], pr[0])]
            p(".short " + ", ".join(str(a) for a in ad))
    p(".size gather_table, 4096")
    return p

def header():
    return """; xDeepFM (CIN + DNN) forward, one launch, 256 workgroups.
; Kernarg: idx, table, ws_cin, w_cin_out, w_dnn1, b_dnn1, w_dnn2, b_out, out, debug, ws
; @launch grid=(256,1,1) block=(%d,1,1) lds=%d
.amdgcn_target "amdgcn-amd-amdhsa--gfx950"
.text
""" % (64*(4 + cfg.NCIN), LDS_SIZE)
def footer():
    nv = 256 if cfg.NCIN == 4 else 168
    return f""".section .rodata,"a"
.p2align 6
.amdhsa_kernel {NAME}
  .amdhsa_next_free_vgpr {nv}
  .amdhsa_next_free_sgpr 102
  .amdhsa_accum_offset {nv}
  .amdhsa_group_segment_fixed_size 0
  .amdhsa_kernarg_size 88
  .amdhsa_user_sgpr_count 2
  .amdhsa_user_sgpr_kernarg_segment_ptr 1
  .amdhsa_system_sgpr_workgroup_id_x 1
  .amdhsa_float_denorm_mode_32 3
.end_amdhsa_kernel
"""
if __name__ == "__main__":
    out = sys.argv[1]
    for a in sys.argv[2:]:
        k, v = a.split("=")
        setattr(cfg, k, type(getattr(cfg, k))(int(v)))
    open(out, "w").write(header() + build().text() + footer())
```

```python
import sys, struct, math
from asmlib import *
from slots import *

NAME = "standalone__deep_cross_xdeepfm__recsys_kernel"
class Cfg:
    stamps = 0
    NCIN = 4
    NRES = 31
    R = 3
    prio_dnn = 2
    prio_cin = 0
    prio_prep = 3
    prio_gelu = 2
    poll_sleep = 2
    spin_sleep = 0
    preB = 0
    rot = 0
    reuse = 1
    pfcode = 0
    order = 2
    ilv = 1
    direct = 1
    xfirst = 7
    late = 0
    prio_x = 3
    xgate = 0
    touch = 2
    gon = 3
    xwin = 2
    idle_sleep = 1
cfg = Cfg()

SLOT = 7168
RB = 8
RA = 3
IDXO = 6*SLOT
AO = RB*SLOT
JUNK = AO + 8*RA*1024
XO = 12*SLOT
WO = XO + 16*1664
CO = WO + 96*528
LDS_SIZE = 163840
assert CO + 512 == LDS_SIZE and JUNK + 1024 <= XO
P_W3 = WO; P_M3T = WO + 36864; P_D1 = WO + 38912; P_W1 = WO + 43520; P_Z = WO + 45568; P_DUM = WO + 45824
C_S = lambda f: 4*f + 4
C_I, C_PA, C_PB, C_XL, C_FLAG, C_WR, C_GO, C_XI = 112, 116, 120, 124, 128, 132, 136, 140
MBOX = 0; WS_W = 131072; WS_END = WS_W + 26*1536; WS_STAMP = 1 << 20
S_IDX, S_TAB, S_W1, S_WCIN, S_WCO, S_B1, S_W2, S_WS = 4, 8, 12, 16, 20, 24, 28, 32
S_OUT, S_DBG, S_BOUT = 36, 38, 40
S_WAVE, S_RG, S_CP, S_FB, S_COL, S_W = 42, 43, 44, 45, 46, 47
S_PC, S_SPIN, S_X = 48, 50, 51
KA = 52
S_T = 52
S_ST = 70
V_C, V_ONE, V_POLL, V_L = 162, 163, 164, 165
STARTS = [0, 7, 13, 20, 27, 33, 40, 45]
NMASK = [0, 0, 1, 0, 0, 1, 0, 2]
ROTS = [0, 8, 14, 20]
FRM = "0x20000"

def f2h(x): return "0x%08x" % struct.unpack("<I", struct.pack("<f", x))[0]

def build():
    p = Prog()
    lab = [0]
    NR = 16//cfg.NCIN
    rots = ROTS if cfg.rot else [0, 0, 0, 0]
    rotlit = hex(sum(r << (8*i) for i, r in enumerate(rots)))
    XGATE = [C_I] + [C_S(4*n - 2) for n in range(1, 7)]
    def L(n):
        lab[0] += 1
        return f"L_{n}_{lab[0]}"
    def stamp(i):
        if cfg.stamps:
            p(f"s_memrealtime s[68:69]" if cfg.stamps == 1 or i == 8 else "s_memtime s[68:69]")
            p.wait0(lg=True)
            if cfg.stamps == 1 or i == 8: p(f"s_mov_b32 s{S_ST+i}, s68")
            else:
                p("s_sub_u32 s68, s68, s100")
                p("s_lshr_b32 s68, s68, 4")
                p(f"s_add_u32 s{S_ST+i}, s68, s{S_ST}")
    def stamps_out():
        if not cfg.stamps: return
        stamp(8)
        p("s_mov_b64 exec, 1")
        p(f"s_lshl4_add_u32 s{S_T}, s2, s{S_WAVE}")
        p(f"s_lshl_b32 s{S_T}, s{S_T}, 7")
        p(f"s_add_u32 s{S_T}, s{S_T}, {WS_STAMP}")
        p(f"v_mov_b32 v1, s{S_T}")
        p("s_memtime s[68:69]")
        p("s_waitcnt lgkmcnt(0)")
        p(f"s_sub_u32 s{S_ST+29}, s68, s100")
        for i in range(30):
            p(f"v_mov_b32 v2, s{S_ST+i}")
            p(f"global_store_dword v1, v2, s[{S_WS}:{S_WS+1}] offset:{4*i}")
    def arrive(*offs):
        p("s_mov_b64 exec, 1")
        for off in offs: p.lds(f"ds_add_u32 v{V_C}, v{V_ONE} offset:{off}", "arr")
        p("s_mov_b64 exec, -1")
    def poll_issue(off):
        p.lds(f"ds_read_b32 v{V_POLL}, v{V_C} offset:{off}", "poll")
    def check(off, target, issued=False, sleep=0):
        ok = L("ok"); sp = L("spin")
        if issued:
            p.wait(lg="poll")
            p(f"v_readfirstlane_b32 s{S_X}, v{V_POLL}")
            p(f"s_cmp_ge_u32 s{S_X}, {target}")
            p(f"s_cbranch_scc1 {ok}")
        p.label(sp)
        if sleep: p(f"s_sleep {sleep}")
        p(f"ds_read_b32 v{V_POLL}, v{V_C} offset:{off}")
        p("s_waitcnt lgkmcnt(0)")
        p(f"v_readfirstlane_b32 s{S_X}, v{V_POLL}")
        p(f"s_sub_u32 s{S_SPIN}, s{S_SPIN}, 1")
        p("s_cbranch_scc1 L_end")
        p(f"s_cmp_ge_u32 s{S_X}, {target}")
        p(f"s_cbranch_scc0 {sp}")
        if not issued: p.lg.clear()
        p.label(ok)
    def srd(s, ka, n):
        if ka is not None: p(f"s_mov_b64 s[{s}:{s+1}], s[{KA+ka}:{KA+ka+1}]")
        p(f"s_mov_b32 s{s+2}, {n}")
        p(f"s_mov_b32 s{s+3}, {FRM}")
    def common_ids():
        p(f"s_bfe_u32 s{S_CP}, s2, 0x30003")
        p(f"s_lshl3_add_u32 s{S_FB}, s{S_RG}, s{S_CP}")
        p(f"s_mov_b32 s{S_SPIN}, 0x40000")
        p(f"v_lshlrev_b32 v{V_C}, 2, v0")
        p(f"v_add_u32 v{V_C}, {CO}, v{V_C}")
        p(f"v_mov_b32 v{V_ONE}, 1")
    def rot_to(s):
        p(f"s_lshr_b32 s{s}, s2, 6")
        p(f"s_lshl_b32 s{s}, s{s}, 3")
        p(f"s_lshr_b32 s{s}, {rotlit}, s{s}")
        p(f"s_and_b32 s{s}, s{s}, 31")

    p(f".globl {NAME}\n.p2align 8\n.type {NAME},@function")
    p.label(NAME)
    p(f"s_load_dwordx16 s[{KA}:{KA+15}], s[0:1], 0")
    p(f"s_load_dwordx4 s[{S_OUT}:{S_OUT+3}], s[0:1], 64")
    p(f"s_load_dwordx2 s[{S_WS}:{S_WS+1}], s[0:1], 80")
    if cfg.stamps:
        p(f"s_memrealtime s[{S_ST}:{S_ST+1}]")
        p(f"s_memtime s[100:101]")
    p("v_lshrrev_b32 v1, 6, v0")
    p("v_and_b32 v0, 63, v0")
    p(f"v_readfirstlane_b32 s{S_WAVE}, v1")
    p("s_cmp_ge_u32 s2, 0x100")
    p("s_cbranch_scc1 L_end")
    p(f"s_and_b32 s3, s2, 7")
    p(f"s_lshr_b32 s{S_RG}, s2, 6")
    p(f"s_lshl3_add_u32 s{S_RG}, s{S_RG}, s3")
    p(f"v_lshlrev_b32 v{V_L}, 4, v0")
    p(f"s_cmp_ge_u32 s{S_WAVE}, 4")
    p("s_cbranch_scc1 L_cin")
    p(f"s_lshl2_add_u32 s3, s{S_RG}, s{S_WAVE}")
    p(f"s_mul_i32 s3, s3, 3328")
    p(f"s_mul_i32 s{S_W}, s{S_WAVE}, 3328")
    p(f"s_add_u32 m0, s{S_W}, {IDXO}")
    srd(S_IDX, None, 4096*104)
    p.wait0(lg=True)
    p(f"s_mov_b64 s[{S_IDX}:{S_IDX+1}], s[{KA}:{KA+1}]")
    for n in range(4):
        p.vmem(f"buffer_load_dwordx4 v{V_L}, s[{S_IDX}:{S_IDX+3}], s3 offen offset:{1024*n} lds", "idx")
    p("s_branch L_dnn")
    dnn_vm = list(p.vm.q)

    p.vm.clear(); p.lg.clear()
    p.label("L_cin")
    S_C = S_W
    W3A, TBL, VV, AQ, VF, GA, MB, VT, CRAW = 28, 32, 40, 56, 72, 80, 96, 144, 152
    p(f"s_sub_u32 s{S_C}, s{S_WAVE}, 4")
    common_ids()
    srd(S_WCIN, None, 105456)
    srd(S_WCO, None, 156)
    srd(S_WS, None, WS_END)
    p(f"s_getpc_b64 s[{S_PC}:{S_PC+1}]")
    p.label("L_pc")
    p.wait0(lg=True)
    p(f"s_mov_b64 s[{S_WCIN}:{S_WCIN+1}], s[{KA+4}:{KA+5}]")
    p(f"s_mov_b64 s[{S_WCO}:{S_WCO+1}], s[{KA+6}:{KA+7}]")
    p(f"s_mov_b64 s[{S_BOUT}:{S_BOUT+1}], s[{KA+14}:{KA+15}]")
    srd(S_TAB, 2, 6400000)
    def cinit_loads():
        p(f"v_lshrrev_b32 v8, 5, v0")
        p(f"v_lshlrev_b32 v9, 3, v8")
        p(f"v_lshlrev_b32 v8, 1, v8")
        for a in range(3):
            p(f"buffer_load_dwordx2 v[{CRAW+2*a}:{CRAW+2*a+1}], v9, s[{S_WCO}:{S_WCO+3}], 0 offen offset:{16*a}")
        p(f"buffer_load_ushort v{CRAW+6}, v8, s[{S_WCO}:{S_WCO+3}], 0 offen offset:48")
        p(f"v_mov_b32 v8, 0")
        p(f"global_load_ushort v{CRAW+7}, v8, s[{S_BOUT}:{S_BOUT+1}]")
    p(f"s_mov_b64 s[{S_W1}:{S_W1+1}], s[{KA+8}:{KA+9}]")
    srd(S_W1, None, 832*1664)
    S_TB = S_T + 15
    p(f"v_lshlrev_b32 v160, 7, v0")
    p(f"s_lshr_b32 s{S_T+1}, s2, 3")
    p(f"s_sub_u32 s{S_T+1}, s{S_T+1}, 8")
    p(f"s_cbranch_scc1 L_notouch")
    p(f"s_mul_i32 s{S_T+1}, s{S_T+1}, {18*128}")
    p(f"s_mul_i32 s{S_TB}, s{S_C}, 53248")
    p(f"s_add_u32 s{S_TB}, s{S_TB}, s{S_T+1}")
    def touch(n0, n1):
        p("s_mov_b64 exec, 0x3ffff")
        for n in range(n0, n1):
            p(f"buffer_load_dword v161, v160, s[{S_W1}:{S_W1+3}], s{S_TB} offen")
            p(f"s_add_u32 s{S_TB}, s{S_TB}, {4*53248}")
        p("s_mov_b64 exec, -1")
    touch(0, cfg.touch)
    p.label("L_notouch")
    p(f"s_cmp_ge_u32 s{S_FB}, 26")
    p("s_cbranch_scc1 L_cbar")
    if cfg.prio_prep: p(f"s_setprio {cfg.prio_prep}")
    p(f"s_cmp_lg_u32 s{S_C}, 3")
    p("s_cbranch_scc1 L_pw3")
    for r in range(4): p(f"v_mov_b32 v{4+r}, -1")
    p(f"s_mul_i32 s{S_T}, s{S_FB}, 1536")
    p(f"s_add_u32 s{S_T}, s{S_T}, {WS_W}")
    p(f"buffer_store_dwordx4 v[4:7], v{V_L}, s[{S_WS}:{S_WS+3}], s{S_T} offen sc1")
    p("s_mov_b32 exec_hi, 0")
    p(f"buffer_store_dwordx4 v[4:7], v{V_L}, s[{S_WS}:{S_WS+3}], s{S_T} offen offset:1024 sc1")
    p("s_mov_b32 exec_hi, -1")
    p("v_lshlrev_b32 v1, 2, v0")
    p(f"buffer_load_dword v27, v1, s[{S_WCO}:{S_WCO+3}], 0 offen offset:52")
    p(f"s_cmp_ge_u32 s{S_FB}, 16")
    p("s_cbranch_scc1 L_pw3")
    p(f"s_lshl_b32 s{S_T}, s{S_FB}, 13")
    p(f"s_add_u32 s{S_T+1}, s{S_T}, 0x1000")
    for u in range(8):
        p(f"buffer_store_dwordx4 v[4:7], v{V_L}, s[{S_WS}:{S_WS+3}], s{S_T+u//4} offen offset:{1024*(u % 4)} sc1")
    p.label("L_pw3")
    p(f"s_mul_i32 s{S_T}, s{S_C}, 9216")
    p(f"s_add_u32 s{S_T+1}, s{S_T}, 70304")
    p(f"s_add_u32 s{S_T}, s{S_T}, {P_W3}")
    for u in range(9):
        if u % 4 == 0:
            if u: p(f"s_add_u32 s{S_T+1}, s{S_T+1}, 0x1000")
            p(f"s_add_u32 m0, s{S_T}, {1024*u}")
            p("s_nop 0")
        p(f"buffer_load_dwordx4 v{V_L}, s[{S_WCIN}:{S_WCIN+3}], s{S_T+1} offen offset:{1024*(u % 4)} lds")
    p("v_and_b32 v1, 0x30, v0")
    p(f"buffer_load_dwordx4 v[{W3A}:{W3A+3}], v1, s[{S_WCO}:{S_WCO+3}], 0 offen offset:104")
    p(f"s_cmp_ge_u32 s{S_C}, 2")
    p("s_cbranch_scc1 L_pz")
    p(f"s_lshl_b32 s{S_T}, s{S_C}, 11")
    p(f"s_add_u32 s{S_T}, s{S_T}, gather_table-L_pc")
    p(f"v_lshl_add_u32 v1, v0, 5, s{S_T}")
    p(f"s_cmp_lg_u32 s{S_C}, 0")
    p("s_cbranch_scc1 L_p1")
    p("v_lshrrev_b32 v3, 5, v0")
    p("v_mul_u32_u24 v3, 0x2a40, v3")
    p("v_and_b32 v2, 31, v0")
    p("v_lshl_add_u32 v3, v2, 1, v3")
    p(f"s_mul_i32 s{S_T}, s{S_FB}, 52")
    p(f"s_add_u32 s{S_T}, s{S_T}, 35152")
    for u in range(16):
        if u and u % 4 == 0:
            p(f"s_add_u32 s{S_T}, s{S_T}, {(4 if u != 8 else 12)*1352}")
        p(f"buffer_load_ushort v{VV+u}, v3, s[{S_WCIN}:{S_WCIN+3}], s{S_T} offen offset:{1352*(u % 4)}")
    p("s_branch L_p01")
    p.label("L_p1")
    p(f"s_mul_i32 s{S_T}, s{S_FB}, 1352")
    p(f"s_mov_b32 m0, {P_W1}")
    p("s_nop 0")
    for u in range(2):
        p(f"buffer_load_dwordx4 v{V_L}, s[{S_WCIN}:{S_WCIN+3}], s{S_T} offen offset:{1024*u} lds")
    p.label("L_p01")
    p(f"global_load_dwordx4 v[{TBL}:{TBL+3}], v1, s[{S_PC}:{S_PC+1}]")
    p(f"global_load_dwordx4 v[{TBL+4}:{TBL+7}], v1, s[{S_PC}:{S_PC+1}] offset:16")
    p.label("L_pz")
    p("v_mov_b32 v2, 0")
    p("v_mov_b32 v3, 0")
    p(f"s_lshl_b32 s{S_T}, s{S_C}, 9")
    p(f"s_add_u32 s{S_T}, s{S_T}, {P_M3T}")
    p(f"v_lshl_add_u32 v1, v0, 3, s{S_T}")
    p("ds_write_b64 v1, v[2:3]")
    p(f"v_add_u32 v1, {P_Z - CO}, v{V_C}")
    p("ds_write_b32 v1, v2")
    p.label("L_cbar")
    p("v_mov_b32 v2, 0")
    p(f"ds_write_b32 v{V_C}, v2")
    cinit_loads()
    if cfg.pfcode:
        sk = L("nopf")
        p(f"s_cmp_lg_u32 s{S_C}, 2")
        p(f"s_cbranch_scc1 {sk}")
        p(f"s_lshl_b32 s{S_T}, s{S_CP}, 12")
        p(f"v_lshl_add_u32 v2, v0, 6, s{S_T}")
        p(f"v_min_u32 v2, gather_table-L_pc, v2")
        p(f"global_load_dword v151, v2, s[{S_PC}:{S_PC+1}]")
        p.label(sk)
    p.wait0(lg=True)
    p("s_barrier")
    stamp(1)
    p(f"s_cmp_ge_u32 s{S_FB}, 26")
    p("s_cbranch_scc1 L_setup")
    p("v_bfe_u32 v1, v0, 2, 2")
    p("v_lshrrev_b32 v4, 4, v0")
    p("v_lshl_add_u32 v4, v4, 3, v1")
    p("v_add_u32 v5, 4, v4")
    p("v_min_u32 v4, 25, v4")
    p("v_min_u32 v5, 25, v5")
    p("v_and_b32 v6, 3, v0")
    p(f"s_mul_i32 s{S_T}, s{S_C}, 384")
    p(f"s_add_u32 s{S_T}, s{S_T}, {P_W3}")
    p(f"v_lshl_add_u32 v6, v6, 3, s{S_T}")
    p(f"s_movk_i32 s{S_T+1}, 1352")
    p(f"v_mad_u32_u24 v2, v4, s{S_T+1}, v6")
    p(f"v_mad_u32_u24 v3, v5, s{S_T+1}, v6")
    p(f"s_mul_i32 s{S_T}, s{S_C}, 192")
    p(f"s_movk_i32 s{S_T+1}, -1662")
    p(f"v_mov_b32 v7, {P_DUM}")
    for u in range(3):
        p(f"v_add_u32 v4, s{S_T}, v0")
        if u < 2: p(f"s_add_u32 s{S_T}, s{S_T}, 64")
        p("v_mul_u32_u24 v5, 2521, v4")
        p("v_lshrrev_b32 v5, 16, v5")
        p("v_cmp_gt_u32 vcc, 0x2a4, v4")
        p("v_lshlrev_b32 v4, 6, v4")
        p(f"v_mad_i32_i24 v4, v5, s{S_T+1}, v4")
        p(f"v_add_u32 v4, {P_M3T}, v4")
        p(f"v_cndmask_b32 v{8+u}, v7, v4, vcc")
    for q in range(4): p(f"v_cmp_eq_u32 s[{S_T+2*q}:{S_T+2*q+1}], {q}, v1")
    p(f"v_add_u32 v4, {P_M3T + 26*64 - CO}, v{V_C}")
    p.wait0(vm=True)
    stamp(10)
    p(f"s_cmp_lg_u32 s{S_C}, 3")
    p("s_cbranch_scc1 L_not3")
    p("s_mov_b64 exec, 0x1fff")
    p("ds_write_b32 v4, v27")
    p("v_mov_b32 v4, 0")
    p("s_mov_b64 exec, 1")
    p(f"global_atomic_add v27, v4, v{V_ONE}, s[{S_DBG}:{S_DBG+1}] sc0 sc1")
    p("s_waitcnt lgkmcnt(0)")
    p.label("L_not3")
    arrive(C_PA)
    for q in range(4):
        for r in range(4): p(f"v_cndmask_b32 v{AQ+4*q+r}, 0, v{W3A+r}, s[{S_T+2*q}:{S_T+2*q+1}]")
    check(C_PA, 4)
    stamp(9)
    for T in range(12):
        p.lds(f"ds_read_b64_tr_b16 v[{MB+4*T}:{MB+4*T+1}], v2 offset:{32*T}", f"m{T}")
        p.lds(f"ds_read_b64_tr_b16 v[{MB+4*T+2}:{MB+4*T+3}], v3 offset:{32*T}", f"m{T}")
        if T >= 4:
            U = T - 4; u, q = divmod(U, 4)
            p.wait(lg=f"m{U}")
            cc = "0" if q == 0 else f"v[{12+4*u}:{15+4*u}]"
            p(f"v_mfma_f32_16x16x32_bf16 v[{12+4*u}:{15+4*u}], v[{AQ+4*q}:{AQ+4*q+3}], v[{MB+4*U}:{MB+4*U+3}], {cc}")
    for U in range(8, 12):
        u, q = divmod(U, 4)
        p.wait(lg=f"m{U}")
        cc = "0" if q == 0 else f"v[{12+4*u}:{15+4*u}]"
        p(f"v_mfma_f32_16x16x32_bf16 v[{12+4*u}:{15+4*u}], v[{AQ+4*q}:{AQ+4*q+3}], v[{MB+4*U}:{MB+4*U+3}], {cc}")
    for u in range(2):
        p(f"v_cvt_pk_bf16_f32 v{24+u}, v{12+4*u}, v{12+4*u}")
        p(f"ds_write_b16 v{8+u}, v{24+u}")
    p("s_nop 3")
    p(f"v_cvt_pk_bf16_f32 v26, v20, v20")
    p(f"ds_write_b16 v10, v26")
    p.wait0(lg=True)
    arrive(C_PB)
    p(f"s_cmp_lt_u32 s{S_C}, 2")
    p("s_cbranch_scc1 L_pg")
    p(f"s_cmp_lg_u32 s{S_C}, 3")
    p("s_cbranch_scc1 L_pdone")
    p("v_mov_b32 v2, 0")
    p("s_waitcnt vmcnt(0)")
    p(f"v_readfirstlane_b32 s{S_T}, v27")
    p(f"s_cmp_lg_u32 s{S_T}, 25")
    p("s_cbranch_scc1 L_pdone")
    p("v_lshlrev_b32 v2, 6, v0")
    p("s_mov_b64 exec, 3")
    p(f"global_store_dword v2, v{V_ONE}, s[{S_DBG}:{S_DBG+1}] offset:128 sc1")
    p("s_mov_b64 exec, -1")
    p("s_branch L_pdone")
    p.label("L_pg")
    p(f"v_mov_b32 v11, {WO}")
    for u in range(8):
        p(f"v_add_u32_sdwa v{GA+2*u}, v11, v{TBL+u} dst_sel:DWORD dst_unused:UNUSED_PAD src0_sel:DWORD src1_sel:WORD_0")
        p(f"v_add_u32_sdwa v{GA+2*u+1}, v11, v{TBL+u} dst_sel:DWORD dst_unused:UNUSED_PAD src0_sel:DWORD src1_sel:WORD_1")
    p("v_lshrrev_b32 v1, 1, v0")
    p("v_and_b32 v2, 1, v0")
    p(f"s_mul_i32 s{S_T}, s{S_FB}, 1536")
    p(f"s_add_u32 s{S_T}, s{S_T}, {WS_W}")
    p(f"s_cmp_eq_u32 s{S_C}, 0")
    p("s_cbranch_scc1 L_pT")
    p("v_lshlrev_b32 v1, 2, v1")
    for u in range(16): p(f"v_mov_b32 v{MB+u}, 0")
    for u in range(16): p(f"ds_read_u16_d16_hi v{MB+u}, v{GA+u}")
    p("s_mov_b32 exec_hi, 0xfff")
    p("s_branch L_pfin")
    p.label("L_pT")
    p("v_and_b32 v3, 31, v0")
    p("v_lshrrev_b32 v4, 5, v0")
    p("v_lshlrev_b32 v5, 6, v3")
    p("v_lshl_add_u32 v5, v4, 4, v5")
    p(f"v_add_u32 v5, {P_M3T}, v5")
    for u in range(8):
        p(f"v_lshl_or_b32 v{VF+u}, v{VV+2*u+1}, 16, v{VV+2*u}")
    check(C_PB, 4)
    p("ds_read_b128 v[12:15], v5")
    p("ds_read_b128 v[16:19], v5 offset:32")
    p("v_mul_u32_u24 v3, 0x90, v3")
    p("v_lshl_add_u32 v3, v4, 4, v3")
    p(f"v_add_u32 v3, {P_D1}, v3")
    p("s_waitcnt lgkmcnt(1)")
    p(f"v_mfma_f32_32x32x16_bf16 v[{MB}:{MB+15}], v[{VF}:{VF+3}], v[12:15], 0")
    p("s_waitcnt lgkmcnt(0)")
    p(f"v_mfma_f32_32x32x16_bf16 v[{MB}:{MB+15}], v[{VF+4}:{VF+7}], v[16:19], v[{MB}:{MB+15}]")
    p("v_lshl_add_u32 v4, v1, 1, 1")
    p("v_add_u32 v1, 22, v1")
    p("v_min_u32 v1, v1, v4")
    p("v_lshlrev_b32 v1, 1, v1")
    p("s_nop 7")
    for a in range(4): p(f"ds_write_b128 v3, v[{MB+4*a}:{MB+4*a+3}] offset:{32*a}")
    for u in range(16): p(f"ds_read_b32 v{MB+16+u}, v{GA+u}")
    for u in range(16): pass
    p("s_mov_b32 exec_hi, 0xffff")
    p("v_add_lshl_u32 v1, v1, v2, 4")
    p("s_waitcnt lgkmcnt(0)")
    for e in range(8): p(f"v_add_f32 v{MB+2*e}, v{MB+16+2*e}, v{MB+16+2*e+1}")
    p("s_branch L_pst")
    p.label("L_pfin")
    p("v_add_lshl_u32 v1, v1, v2, 4")
    p("s_waitcnt lgkmcnt(0)")
    for e in range(8): p(f"v_add_f32 v{MB+2*e}, v{MB+2*e}, v{MB+2*e+1}")
    p.label("L_pst")
    for e in range(4): p(f"v_cvt_pk_bf16_f32 v{4+e}, v{MB+4*e}, v{MB+4*e+2}")
    for e in range(4): p(f"v_min_u32 v{4+e}, -2, v{4+e}")
    p(f"buffer_store_dwordx4 v[4:7], v1, s[{S_WS}:{S_WS+3}], s{S_T} offen sc1")
    p("s_mov_b64 exec, -1")
    p.label("L_pdone")
    stamp(21)

    p.label("L_setup")
    if cfg.stamps: p(f"s_mov_b32 s{S_ST+27}, 0")
    p(f"s_setprio {cfg.prio_prep}")
    p.vm.clear(); p.lg.clear()
    AX, AT, CI, X0 = 0, 16, 32, 48
    Z = [74, 78]; PT = 82; ZL = 90
    XA = {1: 98, -3: 99, -1: 100}; WA = 101; SM = [102, 103, 104, 105]; MBX = 106; VMB = 110; VBO = 111
    RING = 112; RES = RING + 4*cfg.R
    WT = 112
    assert RES + 4*cfg.NRES <= (256 if cfg.NCIN == 4 else 168)
    S_N, S_MB, S_O = S_T+7, S_T+9, S_T+11
    p(f"s_mov_b32 s{S_N}, {NR}")
    p(f"s_mul_i32 s{S_T+2}, s{S_C}, {NR}")
    p(f"s_lshl_b32 s{S_T}, s{S_T+2}, 6")
    p(f"s_add_u32 s{S_T}, s{S_T}, {XO}")
    p(f"s_cmp_ge_u32 s{S_T+2}, 8")
    p(f"s_cselect_b32 s{S_T+1}, 48, 0")
    p("v_and_b32 v1, 31, v0")
    p("v_lshrrev_b32 v2, 5, v0")
    p("v_lshlrev_b32 v3, 1, v1")
    p(f"v_xor_b32 v3, s{S_T+1}, v3")
    p(f"v_add_u32 v3, s{S_T}, v3")
    p(f"v_lshl_add_u32 v{XA[1]}, v2, 10, v3")
    p("v_mul_u32_u24 v4, 0xc00, v2")
    p(f"v_sub_u32 v{XA[-3]}, v3, v4")
    p("v_lshlrev_b32 v4, 10, v2")
    p(f"v_sub_u32 v{XA[-1]}, v3, v4")
    p("v_mul_u32_u24 v4, 0x210, v2")
    p("v_lshl_add_u32 v4, v1, 4, v4")
    p(f"v_add_u32 v{WA}, {WO}, v4")
    for r in range(26): p(f"v_mov_b32 v{X0+r}, 0")
    p.wait0(vm=True)
    for a in range(3):
        for h in range(2):
            p(f"v_lshlrev_b32 v{CI+4*a+2*h}, 16, v{CRAW+2*a+h}")
            p(f"v_and_b32 v{CI+4*a+2*h+1}, 0xffff0000, v{CRAW+2*a+h}")
    p(f"v_lshlrev_b32 v{CI+12}, 16, v{CRAW+6}")
    for r in range(13, 16): p(f"v_mov_b32 v{CI+r}, 0")
    p(f"v_lshlrev_b32 v{VBO}, 16, v{CRAW+7}")
    p("v_lshrrev_b32 v1, 3, v0")
    p("v_min_u32 v3, 1, v1")
    p("v_lshlrev_b32 v2, 9, v0")
    p(f"v_lshl_add_u32 v{VMB}, v3, 30, v2")
    p(f"s_lshl4_add_u32 s{S_MB}, s{S_CP}, s{S_T+2}")
    p(f"s_lshl_b32 s{S_T+1}, s{S_RG}, 7")
    p(f"s_add_u32 s{S_T+1}, s{S_T+1}, s{S_MB}")
    p(f"s_lshl_b32 s{S_O}, s{S_T+1}, 1")
    p(f"s_lshl_b32 s{S_T}, s{S_RG}, 10")
    p(f"s_add_u32 s{S_MB}, s{S_MB}, s{S_T}")
    p(f"s_lshl_b32 s{S_MB}, s{S_MB}, 2")
    p(f"v_mov_b32 v{ZL+7}, 0")
    p("v_and_b32 v2, 7, v0")
    p("v_mul_u32_u24 v3, 0x600, v1")
    p("v_lshl_add_u32 v3, v2, 4, v3")
    p("v_mul_u32_u24 v4, 0x210, v2")
    p(f"s_mul_i32 s{S_T}, s{S_C}, {24*528}")
    p(f"s_add_u32 s{S_T}, s{S_T}, {WO}")
    p(f"v_add_u32 v4, s{S_T}, v4")
    p("v_lshl_add_u32 v5, v1, 4, v4")
    p("v_cmp_eq_u32 vcc, 1, v1")
    p("v_add_u32 v6, 48, v5")
    p("v_subrev_u32 v7, 48, v5")
    p("v_cndmask_b32 v6, v5, v6, vcc")
    p("v_cmp_eq_u32 vcc, 4, v1")
    p(f"s_cmp_eq_u32 s{S_C}, 3")
    p(f"s_cselect_b32 s{S_T+1}, 4, 0")
    p("v_cndmask_b32 v6, v6, v7, vcc")
    p(f"v_and_b32 v7, s{S_T+1}, v2")
    p("v_lshl_add_u32 v7, v7, 28, v3")
    p("v_and_b32 v8, 31, v0")
    p("v_lshrrev_b32 v9, 5, v0")
    p("v_mul_u32_u24 v8, 0x600, v8")
    p("v_lshl_add_u32 v8, v9, 5, v8")
    p(f"s_mul_i32 s{S_T}, s{S_C}, 384")
    p(f"s_add_u32 s{S_T}, s{S_T}, {WS_W}")
    for J in range(1, 4): p(f"s_add_u32 s{S_T+2+J}, s{S_T}, {12288*J}")
    p("v_mov_b32 v10, 0")
    check(C_GO, 4, sleep=2)
    if cfg.late and cfg.touch < 7:
        sk = L("nolate")
        p("s_cmp_lt_u32 s2, 64")
        p(f"s_cbranch_scc1 {sk}")
        touch(cfg.touch, 7)
        p.label(sk)
    stamp(22)
    if cfg.direct:
        for off in (128, 192):
            p(f"s_load_dword s{S_X}, s[{S_DBG}:{S_DBG+1}], {off}")
            p("s_waitcnt lgkmcnt(0)")
            p(f"s_cmp_lg_u32 s{S_X}, 0")
            p("s_cbranch_scc1 L_wload")
    p(f"s_cmp_lg_u32 s{S_C}, 0")
    p("s_cbranch_scc1 L_pw")
    p.label("L_probe")
    p(f"global_load_dword v11, v10, s[{S_DBG}:{S_DBG+1}] offset:128 sc1")
    p(f"buffer_load_dword v9, v8, s[{S_WS}:{S_WS+3}], s{S_T} offen offset:256 sc1")
    p("s_waitcnt vmcnt(0)")
    p("v_add_u32 v11, -1, v11")
    p("v_max_u32 v9, v9, v11")
    p("v_cmp_eq_u32 vcc, -1, v9")
    p("s_nop 1")
    p("s_cmp_eq_u64 vcc, 0")
    p("s_cbranch_scc1 L_wload")
    p.label("L_retry")
    if cfg.stamps: p(f"s_add_u32 s{S_ST+27}, s{S_ST+27}, 1")
    p(f"s_sleep {cfg.poll_sleep}")
    p(f"s_sub_u32 s{S_SPIN}, s{S_SPIN}, 1")
    p("s_cbranch_scc0 L_probe")
    p("s_endpgm")
    p.label("L_pw")
    check(C_FLAG, 1, sleep=2)
    p("s_branch L_wl2")
    p.label("L_wload")
    arrive(C_FLAG)
    p.label("L_wl2")
    stamp(2)
    for J in range(4):
        for Fi in range(3):
            r = WT + 4*(3*J + Fi)
            p.vmem(f"buffer_load_dwordx4 v[{r}:{r+3}], v{7 if Fi == 2 else 3}, s[{S_WS}:{S_WS+3}], s{S_T+2+J if J else S_T} offen offset:{128*Fi} sc1", f"w{J}{Fi}")
    first = True
    for J in range(4):
        for Fi in range(3):
            r = WT + 4*(3*J + Fi)
            p.wait(vm=f"w{J}{Fi}")
            p(f"ds_write_b128 v{6 if J == 3 else 5}, v[{r}:{r+3}] offset:{4224*Fi + 128*J}")
            if first: p(f"v_max_u32 v9, v{r}, v{r+1}")
            else: p(f"v_max3_u32 v9, v{r}, v{r+1}, v9")
            p(f"v_max3_u32 v9, v{r+2}, v{r+3}, v9")
            first = False
    p("v_cmp_eq_u32 vcc, -1, v9")
    p("s_nop 1")
    p("s_cmp_eq_u64 vcc, 0")
    p("s_cbranch_scc0 L_retry")
    p.wait0(lg=True)
    arrive(C_WR)
    p.label("L_xz")
    check(C_XL, 4, sleep=cfg.idle_sleep)
    def x_read(r):
        p.lds(f"ds_read_u16_d16_hi v{X0+r}, v{XA[pi(r)-r]} offset:{1024*r}", f"x{r}")
    for r in range(26): x_read(r)
    def z_ops(n):
        ops = []
        for e in range(4):
            t = PT + 2*(e % 4)
            (a, b), (c, d) = S[8*n + 2*e], S[8*n + 2*e + 1]
            ops.append(("v", f"v_mul_f32 v{t}, v{X0+a}, v{X0+b}", (a, b)))
            ops.append(("v", f"v_mul_f32 v{t+1}, v{X0+c}, v{X0+d}", (c, d)))
        cv = [("v", f"v_cvt_pk_bf16_f32 v{Z[n % 2]+e}, v{PT+2*e}, v{PT+2*e+1}", ()) for e in range(4)]
        return ops[0:4] + cv[0:1] + ops[4:6] + cv[1:2] + ops[6:8] + cv[2:4]
    for o in z_ops(0):
        p.wait(lg=tuple(f"x{r}" for r in o[2]))
        p(o[1])
    for d in XA.values(): p(f"v_add_u32 v{d}, 64, v{d}")
    check(C_WR, 4, sleep=cfg.idle_sleep)
    p(f"s_setprio {cfg.prio_cin}")
    stamp(3)
    order = []
    for n in range(22):
        order.append(("X", n)); order.append(("T", n))
        if n == 14: order.append(("T", 22))
        if n == 18: order.append(("T", 23))
    fr_of = lambda k, n: (2*n if k == "X" else 2*n + 1) if n < 22 else n + 22
    nn = 46 - cfg.NRES
    assert nn % cfg.R == 0
    nonres = [int((u + 0.5)*46/nn) for u in range(nn)]
    wreg = {}; rr = 0
    for k in range(46):
        if k in nonres: wreg[k] = RING + 4*(nonres.index(k) % cfg.R)
        else: wreg[k] = RES + 4*rr; rr += 1
    def w_read(k):
        p.lds(f"ds_read_b128 v[{wreg[k]}:{wreg[k]+3}], v{WA} offset:{1056*fr_of(*order[k])}", f"w{k}")
    for k in range(46):
        if k not in nonres or nonres.index(k) < cfg.R: w_read(k)
    p.wait0(lg=True)
    stamp(5)
    def mfma(k):
        kind, n = order[k]
        zb = Z[n % 2] if n < 22 else ZL + 4*(n - 22)
        acc = AX if kind == "X" else AT
        cc = f"v[{acc}:{acc+15}]"
        if n == 0: cc = "0" if kind == "X" else f"v[{CI}:{CI+15}]"
        return f"v_mfma_f32_32x32x16_bf16 v[{acc}:{acc+15}], v[{wreg[k]}:{wreg[k]+3}], v[{zb}:{zb+3}], {cc}"
    lin_ops = []
    for u in range(8):
        a = LIN[min(2*u, 12)]; b = LIN[min(2*u + 1, 12)]
        lin_ops.append(("v", f"v_cvt_pk_bf16_f32 v{ZL+u}, v{X0+a}, v{X0+b}", (a, b)))
    def body(emit_mb):
        groups = [z_ops(n) for n in range(1, 22)] + [z_ops(0)]
        groups[10] = lin_ops[:7] + groups[10]
        flat = [(g, o) for g, ops in enumerate(groups) for o in ops]
        lastuse = {}
        for i, (g, o) in enumerate(flat):
            if g < 21:
                for r in o[2]: lastuse[r] = i
        for r in range(26): lastuse.setdefault(r, -1)
        for g, ops in enumerate(groups):
            mf = [kk for kk in range(46) if order[kk] in (("X", g), ("T", g))]
            if g == 14: mf.append(order.index(("T", 22)))
            if g == 18: mf.append(order.index(("T", 23)))
            items = []
            base = sum(len(x) for x in groups[:g])
            if g == 0:
                for r in range(26):
                    if lastuse[r] == -1: items.append(("x", r))
            for i, o in enumerate(ops):
                items.append(o)
                for r in range(26):
                    if lastuse[r] == base + i: items.append(("x", r))
            if g == 21:
                pos = [0, 0]
            else:
                n_it = len(items)
                pos = [2 + (j*n_it)//len(mf) for j in range(len(mf))]
            j = 0
            for i, it in enumerate(items + [None]):
                while j < len(mf) and pos[j] <= i:
                    kk = mf[j]
                    if g == 21 and j == 0: p("s_nop 1")
                    p.wait(lg=f"w{kk}")
                    p(mfma(kk))
                    if kk in nonres:
                        w_read(nonres[(nonres.index(kk) + cfg.R) % nn])
                    j += 1
                if it is None: break
                if it[0] == "x": x_read(it[1])
                else:
                    p.wait(lg=tuple(f"x{r}" for r in it[2]))
                    p(it[1])
            if g == 15: emit_mb()
        for k in range(NR - 1): p(f"v_mov_b32 v{SM[k]}, v{SM[k+1]}")
        for d in XA.values(): p(f"v_add_u32 v{d}, 64, v{d}")
        s0 = SM[NR-1]
        p(f"v_mul_f32 v{s0}, v{AX}, v{AT}")
        p(f"v_mul_f32 v{PT}, v{AX+1}, v{AT+1}")
        for r in range(2, 13):
            p(f"v_fmac_f32 v{s0 if r % 2 == 0 else PT}, v{AX+r}, v{AT+r}")
        p(f"s_sub_u32 s{S_N}, s{S_N}, 1")
        p(f"v_add_f32 v{s0}, v{s0}, v{PT}")
    def mb_loads():
        p(f"buffer_load_dwordx{NR} v[{MBX}:{MBX+NR-1}], v{VMB}, s[{S_WS}:{S_WS+3}], s{S_MB} offen sc1")
    def emit_mb():
        sk = L("nomb")
        p(f"s_cmp_lg_u32 s{S_N}, 1")
        p(f"s_cbranch_scc1 {sk}")
        mb_loads()
        p.label(sk)
    save = p.L; p.L = []
    body(lambda: None)
    st1 = list(p.lg.q)
    p.L = save
    p(".p2align 3")
    p.label("L_row")
    body(emit_mb)
    assert st1 == p.lg.q
    if cfg.stamps:
        for i in range(3): p(f"s_mov_b32 s{S_ST+23+i}, s{S_ST+24+i}")
        stamp(26)
    p(f"s_cmp_lg_u32 s{S_N}, 0")
    p("s_cbranch_scc1 L_row")
    p.label("L_mbw")
    p("s_waitcnt vmcnt(0)")
    if NR == 4:
        p(f"v_max3_u32 v1, v{MBX}, v{MBX+1}, v{MBX+2}")
        p(f"v_max_u32 v1, v1, v{MBX+3}")
    else: p(f"v_max_u32 v1, v{MBX}, v{MBX+1}")
    p("v_cmp_eq_u32 vcc, -1, v1")
    p("s_nop 1")
    p("s_cmp_eq_u64 vcc, 0")
    p("s_cbranch_scc1 L_mbok")
    p("s_sleep 1")
    mb_loads()
    p(f"s_sub_u32 s{S_SPIN}, s{S_SPIN}, 1")
    p("s_cbranch_scc0 L_mbw")
    p("s_endpgm")
    p.label("L_mbok")
    for k in range(NR): p(f"v_add_f32 v{SM[k]}, v{SM[k]}, v{MBX+k}")
    for ctl in ("quad_perm:[1,0,3,2] row_mask:0xf", "quad_perm:[2,3,0,1] row_mask:0xf", "row_half_mirror row_mask:0xf",
                "row_mirror row_mask:0xf", "row_bcast:15 row_mask:0xa", "row_bcast:31 row_mask:0xc"):
        if NR == 2: p("s_nop 0")
        for k in range(NR): p(f"v_add_f32_dpp v{SM[k]}, v{SM[k]}, v{SM[k]} {ctl} bank_mask:0xf")
    for k in range(NR): p(f"v_add_f32 v{SM[k]}, v{SM[k]}, v{VBO}")
    for k in range(NR//2): p(f"v_cvt_pk_bf16_f32 v{2+k}, v{SM[2*k]}, v{SM[2*k+1]}")
    p(f"v_mov_b32 v1, s{S_O}")
    p("s_mov_b32 exec_lo, 0")
    p("s_mov_b32 exec_hi, 0x80000000")
    if NR == 4: p(f"global_store_dwordx2 v1, v[2:3], s[{S_OUT}:{S_OUT+1}]")
    else: p(f"global_store_dword v1, v2, s[{S_OUT}:{S_OUT+1}]")
    stamps_out()
    p.label("L_end")
    p("s_endpgm")

    p.vm.q = dnn_vm; p.lg.clear()
    p(".p2align 6")
    p.label("L_dnn")
    ACC = lambda t, q: 8*t + 4*q
    BF = lambda t: 56 + 4*t
    AR = lambda f, q: 84 + 8*(f % 2) + 4*q
    IDX = lambda f, q: 100 + 4*(f >> 1) + 2*q + (f & 1)
    VO = lambda u: 152 + u
    V_B, V_A, V_CH, V_LANE = 154, [155, 156], [157, 158], 165
    S_SB, S_M0, S_M1, S_AM, S_K1, S_K2, S_ROT = S_T+2, S_T+3, S_T+4, S_T+5, S_T+6, S_T+7, S_T+8
    S_D = {6: S_T+9, 12: S_T+10, 18: S_T+11}
    S_ADJ = lambda f, q: ({6: 16, 12: 18, 18: 20}.get(f, 22)) + q
    if cfg.prio_dnn: p(f"s_setprio {cfg.prio_dnn}")
    srd(S_W1, 8, 832*1664)
    srd(S_B1, 10, 1664)
    srd(S_TAB, 2, 6400000)
    srd(S_W2, 12, 1664)
    srd(S_WS, None, WS_END)
    stamp(10)
    common_ids()
    lo = sum(STARTS[i] << (8*i) for i in range(4)); hi = sum(STARTS[4+i] << (8*i) for i in range(4))
    p(f"s_mov_b32 s{S_T+2}, {hex(lo)}")
    p(f"s_mov_b32 s{S_T+3}, {hex(hi)}")
    p(f"s_lshl_b32 s{S_T}, s{S_CP}, 3")
    p(f"s_lshr_b64 s[{S_T+2}:{S_T+3}], s[{S_T+2}:{S_T+3}], s{S_T}")
    p(f"s_and_b32 s{S_COL}, s{S_T+2}, 63")
    p(f"s_lshl_b32 s{S_COL}, s{S_COL}, 5")
    rot_to(S_ROT)
    p(f"s_mul_i32 s{S_SB}, s{S_ROT}, 53248")
    p(f"s_add_u32 s{S_SB}, s{S_SB}, s{S_COL}")
    p(f"s_lshl_b32 s{S_M0}, s{S_WAVE}, 11")
    p(f"s_add_u32 s{S_M1}, s{S_M0}, 0x400")
    p(f"s_min_u32 s{S_M1}, s{S_M1}, 0x1800")
    p(f"s_movk_i32 s{S_K1}, 6656")
    p(f"s_movk_i32 s{S_K2}, 1440")
    for u in range(2):
        p(f"v_add_u32 v3, s{S_M0+u}, v{V_L}")
        p(f"v_lshlrev_b32 v4, 4, v3")
        p(f"v_mul_hi_u32_u24 v4, 0x124925, v4")
        p("v_bfe_u32 v5, v4, 2, 1")
        p("v_bfe_i32 v6, v4, 3, 1")
        p("v_add_u32 v5, v5, v6")
        p(f"v_mad_i32_i24 v5, v5, s{S_K1}, v3")
        p(f"v_mad_u32_u24 v{VO(u)}, v4, s{S_K2}, v5")
    def b_dma(f, u):
        if u == 0 and f:
            p(f"s_add_u32 s{S_SB}, s{S_SB}, " + (f"s{S_D[f]}" if f in S_D else "53248"))
        p(f"s_add_u32 m0, s{S_M0+u}, {(f % RB)*SLOT}")
        p("s_nop 0")
        p.vmem(f"buffer_load_dwordx4 v{VO(u)}, s[{S_W1}:{S_W1+3}], s{S_SB} offen lds", f"B{f}")
    for f in range(cfg.preB):
        for u in range(2): b_dma(f, u)
    p("v_lshrrev_b32 v1, 4, v0")
    p(f"v_lshlrev_b32 v10, 3, v1")
    stamp(11)
    p(f"s_mul_i32 s{S_AM}, s{S_WAVE}, {2048*RA}")
    p(f"s_add_u32 s{S_AM}, s{S_AM}, {AO}")
    for f in S_D:
        p(f"s_cmp_eq_u32 s{S_ROT}, {26-f}")
        p(f"s_cselect_b32 s{S_D[f]}, {hex((53248 - 26*53248) & 0xffffffff)}, 53248" if False else
          f"s_cselect_b32 s{S_D[f]}, -25, 1")
        p(f"s_mul_i32 s{S_D[f]}, s{S_D[f]}, 53248")
    p("v_lshrrev_b32 v2, 2, v0")
    p(f"v_mul_u32_u24 v2, 104, v2")
    p(f"s_add_u32 s{S_W}, s{S_W}, {IDXO}")
    p(f"v_add_u32 v7, s{S_W}, v2")
    p("v_lshrrev_b32 v2, 5, v0")
    p("v_mul_u32_u24 v3, 3, v2")
    p("v_xor_b32 v3, v3, v0")
    p("v_and_b32 v3, 3, v3")
    p("v_lshlrev_b32 v8, 4, v3")
    p("v_bfe_u32 v3, v0, 3, 1")
    p("v_mul_u32_u24 v3, 3, v3")
    p("v_xor_b32 v3, v3, v1")
    p("v_and_b32 v4, 15, v0")
    p("v_lshlrev_b32 v4, 6, v4")
    p("v_lshl_add_u32 v9, v3, 4, v4")
    for q in range(2):
        p(f"s_lshl1_add_u32 s{S_T}, s{S_WAVE}, {q}")
        p(f"s_mov_b32 s{S_T+1}, " + (f"s{S_CP}" if cfg.reuse else "8"))
        p(f"s_lshl_b32 s{S_T+12}, s{S_ROT}, 10")
        p(f"s_add_u32 s{S_T+12}, s{S_T+12}, {XO}")
        p(f"s_add_u32 s{S_T+13}, s{S_AM}, {q*RA*1024}")
        p(f"s_cmp_eq_u32 s{S_T}, s{S_T+1}")
        p(f"s_cselect_b32 s{S_T+12}, s{S_T+12}, s{S_T+13}")
        p(f"s_cselect_b32 s{S_T+13}, 0x40000000, 0")
        p(f"s_cselect_b32 s{S_ADJ(0, q)}, 0, {-RA*1024}")
        p(f"s_cselect_b32 s{S_T+14}, s{S_ROT}, 1")
        p(f"v_add_u32 v{V_A[q]}, s{S_T+12}, v9")
        p(f"v_add_u32 v{V_CH[q]}, s{S_T+13}, v8")
        for f in S_D:
            p(f"s_cmp_eq_u32 s{S_T+14}, {26-f}")
            p(f"s_cselect_b32 s{S_ADJ(f, q)}, {-26*1024}, s{S_ADJ(0, q)}")
    p("v_bfe_u32 v3, v0, 2, 3")
    p("v_lshl_add_u32 v2, v2, 4, v3")
    p("v_mul_u32_u24 v2, 0xe0, v2")
    p("v_and_b32 v3, 3, v0")
    p(f"v_lshl_add_u32 v{V_B}, v3, 3, v2")
    p(f"v_mov_b32 v{V_LANE}, v0")
    assert not cfg.rot
    VT = 170
    p(f"s_mul_i32 s{S_T}, s{S_CP}, 1664")
    p(f"s_lshl2_add_u32 s{S_T}, s{S_WAVE}, s{S_T}")
    p(f"s_add_u32 s{S_T}, s{S_T}, {IDXO}")
    p("v_lshrrev_b32 v2, 2, v0")
    p("v_mul_u32_u24 v2, 104, v2")
    p(f"v_add_u32 v11, s{S_T}, v2")
    S_XM = S_T + 12
    p(f"s_lshl_b32 s{S_XM}, s{S_WAVE}, 10")
    p(f"s_add_u32 s{S_XM}, s{S_XM}, {XO}")
    p(f"s_add_u32 s{S_XM+1}, s{S_XM}, {6*4096}")
    p(f"s_cmp_ge_u32 s{S_WAVE}, 2")
    p(f"s_cselect_b32 s{S_XM+1}, {JUNK}, s{S_XM+1}")
    p(f"s_cselect_b32 s{S_T+1}, 0x40000000, 0")
    p(f"v_add_u32 v178, s{S_T+1}, v8")
    p("v_mov_b32 v177, v8")
    p.wait(vm="idx")
    p("s_barrier")
    stamp(1)
    for n in range(0, 6, 2):
        p.lds(f"ds_read2_b32 v[{VT+n}:{VT+n+1}], v11 offset0:{4*n} offset1:{4*n+4}", f"xi{n}")
    p.lds(f"ds_read_b32 v{VT+6}, v11 offset:96", "xi6")
    xdone = set()
    def x_dma(n):
        xdone.add(f"x{n}")
        p.wait(lg=f"xi{n & 6}")
        if n < 6: p(f"s_add_u32 m0, s{S_XM}, {4096*n}")
        else: p(f"s_mov_b32 m0, s{S_XM+1}")
        p(f"v_lshl_add_u32 v{VT+n}, v{VT+n}, 6, v{178 if n == 6 else 177}")
        p.vmem(f"buffer_load_dwordx4 v{VT+n}, s[{S_TAB}:{S_TAB+3}], 0 offen lds", f"x{n}")
    if cfg.rot:
        for v in range(4):
            if v < 3:
                nx = L("rv")
                p(f"s_cmp_lg_u32 s{S_ROT}, {rots[v]}")
                p(f"s_cbranch_scc1 {nx}")
            for m in range(13):
                a = (m + rots[v]//2) % 13
                p(f"ds_read2_b64 v[{100+4*m}:{103+4*m}], v7 offset0:{a} offset1:{208+a}")
            if v < 3:
                p("s_branch L_ixd")
                p.label(nx)
        p.label("L_ixd")
        for m in range(13): p.lg.issue(f"ix{m}")
    else:
        for m in range(13):
            p.lds(f"ds_read2_b64 v[{100+4*m}:{103+4*m}], v7 offset0:{m} offset1:{208+m}", f"ix{m}")
    def a_dma(f, q):
        p.wait(lg=f"ix{f >> 1}")
        p(f"s_add_u32 m0, s{S_AM}, {(f % RA)*1024 + q*RA*1024}")
        p(f"v_lshl_add_u32 v{IDX(f, q)}, v{IDX(f, q)}, 6, v{V_CH[q]}")
        p.vmem(f"buffer_load_dwordx4 v{IDX(f, q)}, s[{S_TAB}:{S_TAB+3}], 0 offen lds", f"A{f}")
    def a_read(f):
        if f and f % RA == 0:
            for q in range(2): p(f"v_add_u32 v{V_A[q]}, s{S_ADJ(f, q)}, v{V_A[q]}")
        p.wait(vm=f"A{f}")
        for q in range(2):
            p.lds(f"ds_read_b128 v[{AR(f, q)}:{AR(f, q)+3}], v{V_A[q]} offset:{f*1024}", f"a{f}")
    ORDERS = [
        ("x0 x1 x2 x3 x4 x5 x6 A0 B0 B1 bias", "B2 A1 B3 A2", "B4 B5", "B6 B7", ""),
        ("x0 x1 B0 B1 A0 bias", "x2 B2 x3 A1 x4", "x5 A2 x6 B3 B4", "B5 B6 B7", ""),
        ("x0 B0 x1 A0 B1 bias", "x2 B2 A1 x3", "x4 A2 B3 x5 B4 x6", "B5 B6 B7", ""),
        ("x0 x1 x2 B0 x3 A0 B1 bias", "x4 B2 x5 A1 x6", "A2 B3 B4", "B5 B6 B7", ""),
        ("x0 A0 B0 B1 bias", "x1 B2 A1 x2", "A2 x3 B3 x4 B4", "x5 B5 x6 B6 B7", ""),
    ]
    o_pre, o_mid, *o_f = [x.split() for x in ORDERS[cfg.order]]
    def item(it):
        if it == "bias":
            for t in range(7):
                p.vmem(f"buffer_load_dwordx2 v[{56+2*t}:{57+2*t}], v10, s[{S_B1}:{S_B1+3}], s{S_COL} offen offset:{32*t}", "bias")
        elif it[0] == "x": x_dma(int(it[1:]))
        elif it[0] == "A":
            for q in range(2): a_dma(int(it[1:]), q)
        else:
            for u in range(2): b_dma(int(it[1:]), u)
    for it in o_pre:
        if not (it[0] == "B" and int(it[1:]) < cfg.preB): item(it)
    for it in o_mid: item(it)
    stamp(12)
    p.wait(vm=("B0", "B1", "x0"), lg="ix12")
    arrive(C_I)
    p.wait(vm="bias")
    for t in range(7):
        for h in range(2):
            p(f"v_lshlrev_b32 v{ACC(t,0)+2*h}, 16, v{56+2*t+h}")
            p(f"v_and_b32 v{ACC(t,0)+2*h+1}, 0xffff0000, v{56+2*t+h}")
    stamp(13)
    check(C_I, 4)
    def b_read1(f, t, r2):
        p.lds(f"ds_read_b64_tr_b16 v[{BF(t)+2*r2}:{BF(t)+2*r2+1}], v{V_B} offset:{(f % RB)*SLOT + 32*t + 1792*r2}", f"b{f}_{t}")
    def b_read(f, t):
        for r2 in range(2): b_read1(f, t, r2)
    for t in range(7): b_read(0, t)
    a_read(0)
    sig = {"go": False, "xl": False}
    def s_arrive(f):
        assert f"x{(f+2)//4}" in xdone
        p.wait(vm=(f"B{f+3}", f"x{(f+2)//4}"))
        offs = [C_S(f)]
        issued = lambda n: f"x{n}" in xdone
        for k, n, c in (("go", cfg.gon, C_GO), ("xl", 6, C_XL)):
            if not sig[k] and all(issued(m) and f"x{m}" not in p.vm.q for m in range(n + 1)):
                sig[k] = True; offs.append(c)
        arrive(*offs)
    s_arrive(-1)
    stamp(2)
    RAW = 100
    for f in range(26):
        for t in range(7):
            p.wait(lg=(f"b{f}_{t}", f"a{f}"))
            b = f"v[{BF(t)}:{BF(t)+3}]"
            a0, a1 = ACC(t, 0), ACC(t, 1)
            c1 = a0 if f == 0 else a1
            p(f"v_mfma_f32_16x16x32_bf16 v[{a1}:{a1+3}], {b}, v[{AR(f,1)}:{AR(f,1)+3}], v[{c1}:{c1+3}]")
            if cfg.ilv:
                if t and f < 25: b_read1(f+1, t-1, 1)
                elif t == 0 and f: b_read1(f, 6, 1)
            p(f"v_mfma_f32_16x16x32_bf16 v[{a0}:{a0+3}], {b}, v[{AR(f,0)}:{AR(f,0)+3}], v[{a0}:{a0+3}]")
            if f < 25:
                if cfg.ilv: b_read1(f+1, t, 0)
                else: b_read(f+1, t)
            if f < 3 and o_f[f] and (t < 4 or f == 0):
                item(o_f[f].pop(0))
                if t == 3 and f:
                    while o_f[f]: item(o_f[f].pop(0))
            if (t in (5, 6) if f < 3 else t < 2) and f + RA < 26: a_dma(f + RA, t - 5 if f < 3 else t)
            if t == 2 and f <= 23: poll_issue(C_S(f-1))
            if t == 4 and f <= 23:
                check(C_S(f-1), 4, issued=True, sleep=cfg.spin_sleep)
                if 1 <= f and f + 7 < 26: b_dma(f + 7, 0)
            if t == 5:
                if 1 <= f and f + 7 < 26: b_dma(f + 7, 1)
                if f < 25: a_read(f + 1)
            if f == 21:
                if t == 0:
                    p(f"v_lshrrev_b32 v166, 4, v{V_LANE}")
                    p("v_lshlrev_b32 v166, 3, v166")
                p.vmem(f"buffer_load_dwordx2 v[{RAW+2*t}:{RAW+2*t+1}], v166, s[{S_W2}:{S_W2+3}], s{S_COL} offen offset:{32*t}", "w2")
        if f <= 22: s_arrive(f)
        if f % 4 == 0: stamp(14 + f//4)
    stamp(3)
    if cfg.prio_gelu != cfg.prio_dnn: p(f"s_setprio {cfg.prio_gelu}")
    W2R = lambda t, r: 114 + 4*t + r
    p.wait(vm="w2")
    for t in range(7):
        for h in range(2):
            p(f"v_lshlrev_b32 v{W2R(t,2*h)}, 16, v{RAW+2*t+h}")
            p(f"v_and_b32 v{W2R(t,2*h+1)}, 0xffff0000, v{RAW+2*t+h}")
    sk = L("nomask")
    p(f"s_lshl_b32 s{S_T}, s{S_CP}, 1")
    p(f"s_lshr_b32 s{S_T}, {hex(sum(NMASK[i] << (2*i) for i in range(8)))}, s{S_T}")
    p(f"s_and_b32 s{S_T}, s{S_T}, 3")
    p(f"s_cbranch_scc0 {sk}")
    for r in range(4): p(f"v_mov_b32 v{W2R(0,r)}, 0")
    p(f"s_cmp_eq_u32 s{S_T}, 1")
    p(f"s_cbranch_scc1 {sk}")
    for r in range(4): p(f"v_mov_b32 v{W2R(1,r)}, 0")
    p.label(sk)
    k0 = -2.0*math.sqrt(2.0/math.pi)*math.log2(math.e)
    T1, T2, SUM, VC2 = 84, 88, 92, 96
    p(f"v_mov_b32 v{VC2}, {f2h(k0*0.044715)}")
    for r in range(4): p(f"v_mov_b32 v{SUM+r}, 0")
    poll_issue(C_FLAG)
    for t in range(7):
        for q in range(2):
            x = ACC(t, q)
            for r in range(4): p(f"v_mul_f32 v{T1+r}, v{x+r}, v{x+r}")
            for r in range(4): p(f"v_fmaak_f32 v{T1+r}, v{T1+r}, v{VC2}, {f2h(k0)}")
            for r in range(4): p(f"v_mul_f32 v{T1+r}, v{T1+r}, v{x+r}")
            for r in range(4): p(f"v_exp_f32 v{T1+r}, v{T1+r}")
            for r in range(4): p(f"v_mul_f32 v{T2+r}, v{x+r}, v{W2R(t,r)}")
            for r in range(4): p(f"v_add_f32 v{T1+r}, 1.0, v{T1+r}")
            for r in range(4): p(f"v_rcp_f32 v{T1+r}, v{T1+r}")
            for r in range(4): p(f"v_fmac_f32 v{SUM+2*q+(r&1)}, v{T1+r}, v{T2+r}")
    p(f"v_add_f32 v{SUM}, v{SUM}, v{SUM+1}")
    p(f"v_add_f32 v{SUM+2}, v{SUM+2}, v{SUM+3}")
    p(f"v_and_b32 v84, 15, v{V_LANE}")
    p(f"v_lshrrev_b32 v85, 5, v{V_LANE}")
    p(f"v_permlane32_swap_b32 v{SUM}, v{SUM+2}")
    p("v_lshl_add_u32 v84, v85, 4, v84")
    p(f"v_add_f32 v{SUM}, v{SUM}, v{SUM+2}")
    p(f"v_bfe_u32 v85, v{V_LANE}, 4, 1")
    p(f"v_mov_b32 v{SUM+1}, v{SUM}")
    p("v_lshlrev_b32 v84, 2, v84")
    p("v_lshl_add_u32 v84, v85, 30, v84")
    p(f"v_permlane16_swap_b32 v{SUM}, v{SUM+1}")
    p(f"s_lshl2_add_u32 s{S_T}, s{S_FB}, s{S_WAVE}")
    p(f"v_add_f32 v{SUM}, v{SUM}, v{SUM+1}")
    p(f"s_lshl_b32 s{S_T}, s{S_T}, 7")
    p(f"v_min_u32 v{SUM}, -2, v{SUM}")
    check(C_FLAG, 1, issued=True)
    p.vmem(f"buffer_store_dword v{SUM}, v84, s[{S_WS}:{S_WS+3}], s{S_T} offen sc1", "pub")
    stamp(4)
    stamps_out()
    p("s_endpgm")

    p(".p2align 6")
    p(".type gather_table,@object")
    p.label("gather_table")
    zt = P_Z - WO
    for role in range(2):
        for lane in range(64):
            s, half = lane >> 1, lane & 1
            ad = []
            for e in range(8):
                pr = slot_pair(s, half, e) if s < (24 if role == 0 else 22) else None
                at = (lambda j, k: P_D1 - WO + k*144 + j*4) if role == 0 else (lambda j, k: P_W1 - WO + (j*26 + k)*2)
                if pr is None: ad += [zt, zt]
                elif pr[1] is None: ad += [at(pr[0], 26), zt]
                elif pr[0] == pr[1] or norm(pr) == (24, 25): ad += [at(*pr), zt]
                else: ad += [at(pr[0], pr[1]), at(pr[1], pr[0])]
            p(".short " + ", ".join(str(a) for a in ad))
    p(".size gather_table, 4096")
    return p

def header():
    return """; xDeepFM (CIN + DNN) forward, one launch, 256 workgroups.
; Kernarg: idx, table, ws_cin, w_cin_out, w_dnn1, b_dnn1, w_dnn2, b_out, out, debug, ws
; @launch grid=(256,1,1) block=(%d,1,1) lds=%d
.amdgcn_target "amdgcn-amd-amdhsa--gfx950"
.text
""" % (64*(4 + cfg.NCIN), LDS_SIZE)
def footer():
    nv = 256 if cfg.NCIN == 4 else 168
    return f""".section .rodata,"a"
.p2align 6
.amdhsa_kernel {NAME}
  .amdhsa_next_free_vgpr {nv}
  .amdhsa_next_free_sgpr 102
  .amdhsa_accum_offset {nv}
  .amdhsa_group_segment_fixed_size 0
  .amdhsa_kernarg_size 88
  .amdhsa_user_sgpr_count 2
  .amdhsa_user_sgpr_kernarg_segment_ptr 1
  .amdhsa_system_sgpr_workgroup_id_x 1
  .amdhsa_float_denorm_mode_32 3
.end_amdhsa_kernel
"""
if __name__ == "__main__":
    out = sys.argv[1]
    for a in sys.argv[2:]:
        k, v = a.split("=")
        setattr(cfg, k, type(getattr(cfg, k))(int(v)))
    open(out, "w").write(header() + build().text() + footer())
```

```python
import sys, struct, math
from asmlib import *
from slots import *

NAME = "standalone__deep_cross_xdeepfm__recsys_kernel"
class Cfg:
    stamps = 0
    NRES = 31
    R = 3
    prio_prep = 3
    prio_hi = 0
    poll_sleep = 2
    idle_sleep = 1
    gon = 5
    bal = 0
    lt0 = 2
    lt1 = 5
    early = 4
    look = 3
    catch0 = 4
    catch = 4
    etouch = 0
    dtouch = 1
    xwin = 3
    pfcode = 1
    flip = 2
    w2early = 1
    dpos = 4
    ltouch = 0
    pk = 1
    ctouch = 1
    wrot = 1
    direct = 1
    noprep = 0
    clrpos = 1
    pdelay = 1
    hold = 0
cfg = Cfg()

LDS_SIZE = 163840
XO = 0
WO = 8*7168
PS = WO + 96*528
P_W3 = PS; P_M3T = PS + 36864; P_D1 = PS + 38912; P_W1 = PS + 43520; P_Z = PS + 45568; P_DUM = PS + 45824
CO = LDS_SIZE - 512
IX2 = PS + 46080
assert P_DUM + 256 <= CO
C_PA, C_PB, C_XL, C_FLAG, C_GO, C_CL, C_PI = 0, 4, 8, 12, 16, 20, 24
RB = 7
BSZ = 13312
SLOT = BSZ + 8192
IDXO = RB*SLOT
assert IDXO + 8*1664 == LDS_SIZE
MBOX = 0; WS_W = 131072; BLK = 1664; WS_END = WS_W + 26*BLK; WS_STAMP = 1 << 20
S_IDX, S_TAB, S_W1, S_WCIN, S_WCO, S_B1, S_W2, S_WS = 4, 8, 12, 16, 20, 24, 28, 32
S_OUT, S_DBG, S_BOUT = 36, 38, 40
S_WAVE, S_RG, S_CP, S_FB, S_COL, S_W = 42, 43, 44, 45, 46, 47
S_PC, S_SPIN, S_X = 48, 50, 51
KA = 52
S_T = 52
S_ST = 70
V_C, V_ONE, V_POLL, V_L = 162, 163, 164, 165
FRM = "0x20000"

def f2h(x): return "0x%08x" % struct.unpack("<I", struct.pack("<f", x))[0]

def build():
    p = Prog()
    lab = [0]
    def L(n):
        lab[0] += 1
        return f"L_{n}_{lab[0]}"
    def stamp(i):
        if cfg.stamps and (cfg.stamps != 3 or i == 8):
            p(f"s_memrealtime s[68:69]" if cfg.stamps != 2 or i == 8 else "s_memtime s[68:69]")
            p.wait0(lg=True)
            if cfg.stamps != 2 or i == 8: p(f"s_mov_b32 s{S_ST+i}, s68")
            else:
                p("s_sub_u32 s68, s68, s100")
                p("s_lshr_b32 s68, s68, 4")
                p(f"s_add_u32 s{S_ST+i}, s68, s{S_ST}")
    def stamps_out():
        if not cfg.stamps: return
        stamp(8)
        p("s_mov_b64 exec, 1")
        p(f"s_lshl4_add_u32 s{S_T}, s2, s{S_WAVE}")
        p(f"s_lshl_b32 s{S_T}, s{S_T}, 7")
        p(f"s_add_u32 s{S_T}, s{S_T}, {WS_STAMP}")
        p(f"v_mov_b32 v1, s{S_T}")
        p("s_memtime s[68:69]")
        p("s_waitcnt lgkmcnt(0)")
        p(f"s_sub_u32 s{S_ST+29}, s68, s100")
        for i in range(30):
            p(f"v_mov_b32 v2, s{S_ST+i}")
            p(f"global_store_dword v1, v2, s[{S_WS}:{S_WS+1}] offset:{4*i}")
    def arrive(*offs):
        p("s_mov_b64 exec, 1")
        for off in offs: p.lds(f"ds_add_u32 v{V_C}, v{V_ONE} offset:{off}", "arr")
        p("s_mov_b64 exec, -1")
    def poll_issue(off):
        p.lds(f"ds_read_b32 v{V_POLL}, v{V_C} offset:{off}", "poll")
    def check(off, target, issued=False, sleep=0):
        ok = L("ok"); sp = L("spin")
        if issued:
            p.wait(lg="poll")
            p(f"v_readfirstlane_b32 s{S_X}, v{V_POLL}")
            p(f"s_cmp_ge_u32 s{S_X}, {target}")
            p(f"s_cbranch_scc1 {ok}")
        p.label(sp)
        if sleep: p(f"s_sleep {sleep}")
        p(f"ds_read_b32 v{V_POLL}, v{V_C} offset:{off}")
        p("s_waitcnt lgkmcnt(0)")
        p(f"v_readfirstlane_b32 s{S_X}, v{V_POLL}")
        p(f"s_sub_u32 s{S_SPIN}, s{S_SPIN}, 1")
        p("s_cbranch_scc1 L_end")
        p(f"s_cmp_ge_u32 s{S_X}, {target}")
        p(f"s_cbranch_scc0 {sp}")
        if not issued: p.lg.clear()
        p.label(ok)
    def srd(s, ka, n):
        if ka is not None: p(f"s_mov_b64 s[{s}:{s+1}], s[{KA+ka}:{KA+ka+1}]")
        p(f"s_mov_b32 s{s+2}, {n}")
        p(f"s_mov_b32 s{s+3}, {FRM}")
    def touch(vaddr, soff, mask):
        p(f"s_mov_b64 exec, {mask}" if mask < (1 << 31) else f"s_mov_b32 exec_hi, {hex(mask >> 32)}")
        p(f"buffer_load_dword v250, v{vaddr}, s[{S_W1}:{S_W1+3}], s{soff} offen")
        p("s_mov_b64 exec, -1")

    p(f".globl {NAME}\n.p2align 8\n.type {NAME},@function")
    p.label(NAME)
    p(f"s_load_dwordx16 s[{KA}:{KA+15}], s[0:1], 0")
    p(f"s_load_dwordx4 s[{S_OUT}:{S_OUT+3}], s[0:1], 64")
    p(f"s_load_dwordx2 s[{S_WS}:{S_WS+1}], s[0:1], 80")
    if cfg.stamps:
        p(f"s_memrealtime s[{S_ST}:{S_ST+1}]")
        p(f"s_memtime s[100:101]")
    p("v_lshrrev_b32 v1, 6, v0")
    p("v_and_b32 v0, 63, v0")
    p(f"v_readfirstlane_b32 s{S_WAVE}, v1")
    p("s_cmp_ge_u32 s2, 0x100")
    p("s_cbranch_scc1 L_end")
    p(f"s_and_b32 s3, s2, 7")
    p(f"s_lshr_b32 s{S_RG}, s2, 6")
    p(f"s_lshl3_add_u32 s{S_RG}, s{S_RG}, s3")
    p(f"s_bfe_u32 s{S_CP}, s2, 0x20004")
    p(f"v_lshlrev_b32 v{V_L}, 4, v0")
    p(f"v_lshlrev_b32 v160, 7, v0")
    srd(S_IDX, None, 4096*104)
    srd(S_W1, None, 832*1664)
    p("s_bitcmp1_b32 s2, 3")
    p("s_cbranch_scc1 L_cin")
    p(f"s_lshl3_add_u32 s3, s{S_RG}, s{S_WAVE}")
    p(f"s_mul_i32 s3, s3, 1664")
    p(f"s_mul_i32 s{S_W}, s{S_WAVE}, 1664")
    p(f"s_add_u32 m0, s{S_W}, {IDXO}")
    p(f"s_lshr_b32 s{S_X}, s2, 4")
    p(f"s_lshl3_add_u32 s{S_X}, s{S_X}, s{S_WAVE}")
    p(f"s_mul_i32 s{S_X}, s{S_X}, 2560")
    p.wait0(lg=True)
    p(f"s_mov_b64 s[{S_IDX}:{S_IDX+1}], s[{KA}:{KA+1}]")
    p(f"s_mov_b64 s[{S_W1}:{S_W1+1}], s[{KA+8}:{KA+9}]")
    for n in range(2):
        if n: p("s_mov_b32 exec_hi, 0xff")
        p.vmem(f"buffer_load_dwordx4 v{V_L}, s[{S_IDX}:{S_IDX+3}], s3 offen offset:{1024*n} lds", "idx")
    if not cfg.dtouch: p("s_mov_b32 exec_hi, -1")
    if cfg.dtouch:
        touch(160, S_X, 0xfffff); p.vm.issue("t")
    p("s_branch L_dnn")
    dnn_vm = list(p.vm.q)

    p.vm.clear(); p.lg.clear()
    p.label("L_cin")
    S_C = S_WAVE
    W3A, TBL, VV, AQ, VF, GA, MB, VT, CRAW = 28, 32, 40, 56, 72, 80, 96, 170, 152
    srd(S_WCO, None, 156)
    srd(S_WS, None, WS_END)
    p(f"s_mov_b32 s{S_SPIN}, 0x40000")
    p(f"v_lshlrev_b32 v{V_C}, 2, v0")
    p(f"v_add_u32 v{V_C}, {CO}, v{V_C}")
    p(f"v_mov_b32 v{V_ONE}, 1")
    p(f"s_cmp_ge_u32 s{S_WAVE}, 4")
    p("s_cbranch_scc1 L_xwave")
    srd(S_WCIN, None, 105456)
    p(f"s_cmp_eq_u32 s{S_CP}, 0")
    p(f"s_cselect_b32 s{S_FB}, s{S_RG}, 99")
    if cfg.noprep: p(f"s_mov_b32 s{S_FB}, 99")
    p(f"s_getpc_b64 s[{S_PC}:{S_PC+1}]")
    p.label("L_pc")
    p.wait0(lg=True)
    p(f"s_mov_b64 s[{S_WCIN}:{S_WCIN+1}], s[{KA+4}:{KA+5}]")
    p(f"s_mov_b64 s[{S_W1}:{S_W1+1}], s[{KA+8}:{KA+9}]")
    p(f"s_mov_b64 s[{S_WCO}:{S_WCO+1}], s[{KA+6}:{KA+7}]")
    p(f"s_mov_b64 s[{S_BOUT}:{S_BOUT+1}], s[{KA+14}:{KA+15}]")
    def cinit_loads():
        p(f"v_lshrrev_b32 v8, 5, v0")
        p(f"v_lshlrev_b32 v9, 3, v8")
        p(f"v_lshlrev_b32 v8, 1, v8")
        for a in range(3):
            p(f"buffer_load_dwordx2 v[{CRAW+2*a}:{CRAW+2*a+1}], v9, s[{S_WCO}:{S_WCO+3}], 0 offen offset:{16*a}")
        p(f"buffer_load_ushort v{CRAW+6}, v8, s[{S_WCO}:{S_WCO+3}], 0 offen offset:48")
        p(f"v_mov_b32 v8, 0")
        p(f"global_load_ushort v{CRAW+7}, v8, s[{S_BOUT}:{S_BOUT+1}]")
    if cfg.ctouch:
        p(f"s_cmp_eq_u32 s{S_CP}, 0")
        p("s_cbranch_scc1 L_noct")
        p(f"s_lshr_b32 s{S_T}, s2, 6")
        p(f"s_mul_i32 s{S_T}, s{S_T}, 3")
        p(f"s_add_u32 s{S_T}, s{S_T}, s{S_CP}")
        p(f"s_lshl2_add_u32 s{S_T}, s{S_T}, s{S_C}")
        nl, base = (6, 549) if cfg.pdelay else (18, 0)
        p(f"s_mul_i32 s{S_T}, s{S_T}, {nl*128}")
        p(f"s_add_u32 s{S_T}, s{S_T}, {(base - 4*nl)*128 & 0xffffffff}")
        p(f"s_mov_b64 exec, {(1 << nl) - 1}")
        p(f"buffer_load_dword v161, v160, s[{S_WCIN}:{S_WCIN+3}], s{S_T} offen")
        p("s_mov_b64 exec, -1")
        p("s_branch L_cbar")
        p.label("L_noct")
    p(f"s_cmp_ge_u32 s{S_FB}, 26")
    p("s_cbranch_scc1 L_cbar")
    if cfg.prio_prep: p(f"s_setprio {cfg.prio_prep}")
    def w3_dma():
        p(f"s_mul_i32 s{S_T}, s{S_C}, 9216")
        p(f"s_add_u32 s{S_T+1}, s{S_T}, 70304")
        p(f"s_add_u32 s{S_T}, s{S_T}, {P_W3}")
        for u in range(9):
            if u % 4 == 0:
                if u: p(f"s_add_u32 s{S_T+1}, s{S_T+1}, 0x1000")
                p(f"s_add_u32 m0, s{S_T}, {1024*u}")
                p("s_nop 0")
            p(f"buffer_load_dwordx4 v{V_L}, s[{S_WCIN}:{S_WCIN+3}], s{S_T+1} offen offset:{1024*(u % 4)} lds")
    if not cfg.pdelay: w3_dma()
    p("v_and_b32 v1, 0x30, v0")
    p(f"buffer_load_dwordx4 v[{W3A}:{W3A+3}], v1, s[{S_WCO}:{S_WCO+3}], 0 offen offset:104")
    p(f"s_cmp_ge_u32 s{S_C}, 2")
    p("s_cbranch_scc1 L_p23")
    p(f"s_lshl_b32 s{S_T}, s{S_C}, 11")
    p(f"s_add_u32 s{S_T}, s{S_T}, gather_table-L_pc")
    p(f"v_lshl_add_u32 v1, v0, 5, s{S_T}")
    p(f"s_cmp_lg_u32 s{S_C}, 0")
    p("s_cbranch_scc1 L_p1")
    p("v_lshrrev_b32 v3, 5, v0")
    p("v_mul_u32_u24 v3, 0x2a40, v3")
    p("v_and_b32 v2, 31, v0")
    p("v_lshl_add_u32 v3, v2, 1, v3")
    p(f"s_mul_i32 s{S_T}, s{S_FB}, 52")
    p(f"s_add_u32 s{S_T}, s{S_T}, 35152")
    for u in range(16):
        if u and u % 4 == 0:
            p(f"s_add_u32 s{S_T}, s{S_T}, {(4 if u != 8 else 12)*1352}")
        p(f"buffer_load_ushort v{VV+u}, v3, s[{S_WCIN}:{S_WCIN+3}], s{S_T} offen offset:{1352*(u % 4)}")
    p("s_branch L_p01")
    p.label("L_p1")
    p(f"s_mul_i32 s{S_T}, s{S_FB}, 1352")
    p(f"s_mov_b32 m0, {P_W1}")
    p("s_nop 0")
    for u in range(2):
        p(f"buffer_load_dwordx4 v{V_L}, s[{S_WCIN}:{S_WCIN+3}], s{S_T} offen offset:{1024*u} lds")
    p.label("L_p01")
    p(f"global_load_dwordx4 v[{TBL}:{TBL+3}], v1, s[{S_PC}:{S_PC+1}]")
    p(f"global_load_dwordx4 v[{TBL+4}:{TBL+7}], v1, s[{S_PC}:{S_PC+1}] offset:16")
    p("s_branch L_pw3")
    p.label("L_p23")
    p(f"s_cmp_lg_u32 s{S_C}, 3")
    p("s_cbranch_scc1 L_pw3")
    p("v_lshlrev_b32 v1, 2, v0")
    p(f"buffer_load_dword v27, v1, s[{S_WCO}:{S_WCO+3}], 0 offen offset:52")
    def clears(skip):
        for r in range(4): p(f"v_mov_b32 v{4+r}, -1")
        p(f"s_mul_i32 s{S_T}, s{S_FB}, {BLK}")
        p(f"s_add_u32 s{S_T}, s{S_T}, {WS_W}")
        p(f"buffer_store_dwordx4 v[4:7], v{V_L}, s[{S_WS}:{S_WS+3}], s{S_T} offen sc1")
        p("s_mov_b32 exec_hi, 0xff")
        p(f"buffer_store_dwordx4 v[4:7], v{V_L}, s[{S_WS}:{S_WS+3}], s{S_T} offen offset:1024 sc1")
        p("s_mov_b32 exec_hi, -1")
        p(f"s_cmp_ge_u32 s{S_FB}, 16")
        p(f"s_cbranch_scc1 {skip}")
        p(f"s_lshl_b32 s{S_T}, s{S_FB}, 13")
        p(f"s_add_u32 s{S_T+1}, s{S_T}, 0x1000")
        for u in range(8):
            p(f"buffer_store_dwordx4 v[4:7], v{V_L}, s[{S_WS}:{S_WS+3}], s{S_T+u//4} offen offset:{1024*(u % 4)} sc1")
    if cfg.clrpos == 0: clears("L_pw3")
    p.label("L_pw3")
    p("v_mov_b32 v2, 0")
    p("v_mov_b32 v3, 0")
    p(f"s_lshl_b32 s{S_T}, s{S_C}, 9")
    p(f"s_add_u32 s{S_T}, s{S_T}, {P_M3T}")
    p(f"v_lshl_add_u32 v1, v0, 3, s{S_T}")
    p("ds_write_b64 v1, v[2:3]")
    p(f"v_add_u32 v1, {P_Z - CO}, v{V_C}")
    p("ds_write_b32 v1, v2")
    p.label("L_cbar")
    if cfg.pfcode:
        sk = L("nopf")
        p(f"s_cmp_lg_u32 s{S_C}, 2")
        p(f"s_cbranch_scc1 {sk}")
        p(f"s_lshr_b32 s{S_T}, s2, 4")
        p(f"s_mul_i32 s{S_T}, s{S_T}, 2560")
        p(f"v_add_u32 v2, s{S_T}, v160")
        p(f"v_min_u32 v2, gather_table-L_pc+4092, v2")
        p("s_mov_b64 exec, 0xfffff")
        p(f"global_load_dword v161, v2, s[{S_PC}:{S_PC+1}]")
        p("s_mov_b64 exec, -1")
        p.label(sk)
    p("v_mov_b32 v2, 0")
    p(f"ds_write_b32 v{V_C}, v2")
    p.wait0(lg=True)
    p("s_barrier")
    stamp(1)
    p(f"s_cmp_lt_u32 s{S_FB}, 26")
    p("s_cbranch_scc1 L_prep")
    cinit_loads()
    p("s_waitcnt vmcnt(0)")
    p("s_branch L_setup")
    p.label("L_prep")
    if cfg.pdelay:
        w3_dma()
        arrive(C_PI)
    if cfg.clrpos:
        p(f"s_cmp_lg_u32 s{S_C}, 3")
        p("s_cbranch_scc1 L_nc")
        clears("L_nc")
        p("s_nop 0")
        p.label("L_nc")
    p("v_bfe_u32 v1, v0, 2, 2")
    p("v_lshrrev_b32 v4, 4, v0")
    p("v_lshl_add_u32 v4, v4, 3, v1")
    p("v_add_u32 v5, 4, v4")
    p("v_min_u32 v4, 25, v4")
    p("v_min_u32 v5, 25, v5")
    p("v_and_b32 v6, 3, v0")
    p(f"s_mul_i32 s{S_T}, s{S_C}, 384")
    p(f"s_add_u32 s{S_T}, s{S_T}, {P_W3}")
    p(f"v_lshl_add_u32 v6, v6, 3, s{S_T}")
    p(f"s_movk_i32 s{S_T+1}, 1352")
    p(f"v_mad_u32_u24 v2, v4, s{S_T+1}, v6")
    p(f"v_mad_u32_u24 v3, v5, s{S_T+1}, v6")
    p(f"s_mul_i32 s{S_T}, s{S_C}, 192")
    p(f"s_movk_i32 s{S_T+1}, -1662")
    p(f"v_mov_b32 v7, {P_DUM}")
    for u in range(3):
        p(f"v_add_u32 v4, s{S_T}, v0")
        if u < 2: p(f"s_add_u32 s{S_T}, s{S_T}, 64")
        p("v_mul_u32_u24 v5, 2521, v4")
        p("v_lshrrev_b32 v5, 16, v5")
        p("v_cmp_gt_u32 vcc, 0x2a4, v4")
        p("v_lshlrev_b32 v4, 6, v4")
        p(f"v_mad_i32_i24 v4, v5, s{S_T+1}, v4")
        p(f"v_add_u32 v4, {P_M3T}, v4")
        p(f"v_cndmask_b32 v{8+u}, v7, v4, vcc")
    for q in range(4): p(f"v_cmp_eq_u32 s[{S_T+2*q}:{S_T+2*q+1}], {q}, v1")
    p(f"v_add_u32 v4, {P_M3T + 26*64 - CO}, v{V_C}")
    if cfg.clrpos:
        p(f"s_cmp_lg_u32 s{S_C}, 3")
        p("s_cbranch_scc1 L_w0")
        p(f"s_cmp_ge_u32 s{S_FB}, 16")
        p("s_cbranch_scc1 L_w2")
        p("s_waitcnt vmcnt(10)")
        p("s_branch L_w3")
        p.label("L_w2")
        p("s_waitcnt vmcnt(2)")
        p.label("L_w3")
        stamp(10)
        p("s_mov_b64 exec, 0x1fff")
        p("ds_write_b32 v4, v27")
        p("s_waitcnt lgkmcnt(0)")
        p("s_branch L_not3")
        p.label("L_w0")
        p.wait0(vm=True)
        stamp(10)
    else:
        p.wait0(vm=True)
        stamp(10)
        p(f"s_cmp_lg_u32 s{S_C}, 3")
        p("s_cbranch_scc1 L_not3")
        p("s_mov_b64 exec, 0x1fff")
        p("ds_write_b32 v4, v27")
        p("v_mov_b32 v4, 0")
        p("s_mov_b64 exec, 1")
        p(f"global_atomic_add v27, v4, v{V_ONE}, s[{S_DBG}:{S_DBG+1}] sc0 sc1")
        p("s_waitcnt lgkmcnt(0)")
    p.label("L_not3")
    arrive(C_PA)
    for q in range(4):
        for r in range(4): p(f"v_cndmask_b32 v{AQ+4*q+r}, 0, v{W3A+r}, s[{S_T+2*q}:{S_T+2*q+1}]")
    check(C_PA, 4)
    stamp(9)
    for T in range(12):
        p.lds(f"ds_read_b64_tr_b16 v[{MB+4*T}:{MB+4*T+1}], v2 offset:{32*T}", f"m{T}")
        p.lds(f"ds_read_b64_tr_b16 v[{MB+4*T+2}:{MB+4*T+3}], v3 offset:{32*T}", f"m{T}")
        if T >= 4:
            U = T - 4; u, q = divmod(U, 4)
            p.wait(lg=f"m{U}")
            cc = "0" if q == 0 else f"v[{12+4*u}:{15+4*u}]"
            p(f"v_mfma_f32_16x16x32_bf16 v[{12+4*u}:{15+4*u}], v[{AQ+4*q}:{AQ+4*q+3}], v[{MB+4*U}:{MB+4*U+3}], {cc}")
    for U in range(8, 12):
        u, q = divmod(U, 4)
        p.wait(lg=f"m{U}")
        cc = "0" if q == 0 else f"v[{12+4*u}:{15+4*u}]"
        p(f"v_mfma_f32_16x16x32_bf16 v[{12+4*u}:{15+4*u}], v[{AQ+4*q}:{AQ+4*q+3}], v[{MB+4*U}:{MB+4*U+3}], {cc}")
    for u in range(2):
        p(f"v_cvt_pk_bf16_f32 v{24+u}, v{12+4*u}, v{12+4*u}")
        p(f"ds_write_b16 v{8+u}, v{24+u}")
    p("s_nop 3")
    p(f"v_cvt_pk_bf16_f32 v26, v20, v20")
    p(f"ds_write_b16 v10, v26")
    p.wait0(lg=True)
    arrive(C_PB)
    stamp(11)
    p(f"s_cmp_lt_u32 s{S_C}, 2")
    p("s_cbranch_scc1 L_pg")
    p(f"s_cmp_lg_u32 s{S_C}, 3")
    p("s_cbranch_scc1 L_pdone")
    p("v_lshlrev_b32 v2, 6, v0")
    if cfg.clrpos:
        p("s_waitcnt vmcnt(0)")
        stamp(12)
        p("s_mov_b64 exec, 1")
        p(f"ds_add_u32 v{V_C}, v{V_ONE} offset:{C_CL}")
        p(f"global_atomic_add v27, v2, v{V_ONE}, s[{S_DBG}:{S_DBG+1}] sc0 sc1")
        p("s_mov_b64 exec, -1")
    p("s_waitcnt vmcnt(0)")
    p(f"v_readfirstlane_b32 s{S_T}, v27")
    p(f"s_cmp_lg_u32 s{S_T}, 25")
    p("s_cbranch_scc1 L_pdone")
    p("s_mov_b64 exec, 3")
    p(f"global_store_dword v2, v{V_ONE}, s[{S_DBG}:{S_DBG+1}] offset:128 sc1")
    p("s_mov_b64 exec, -1")
    p("s_branch L_pdone")
    p.label("L_pg")
    p(f"v_mov_b32 v11, {PS}")
    for u in range(8):
        p(f"v_add_u32_sdwa v{GA+2*u}, v11, v{TBL+u} dst_sel:DWORD dst_unused:UNUSED_PAD src0_sel:DWORD src1_sel:WORD_0")
        p(f"v_add_u32_sdwa v{GA+2*u+1}, v11, v{TBL+u} dst_sel:DWORD dst_unused:UNUSED_PAD src0_sel:DWORD src1_sel:WORD_1")
    p("v_lshrrev_b32 v1, 1, v0")
    p("v_and_b32 v2, 1, v0")
    p(f"s_mul_i32 s{S_T}, s{S_FB}, {BLK}")
    p(f"s_add_u32 s{S_T}, s{S_T}, {WS_W}")
    p(f"s_cmp_eq_u32 s{S_C}, 0")
    p("s_cbranch_scc1 L_pT")
    p("v_lshlrev_b32 v1, 2, v1")
    for u in range(16): p(f"v_mov_b32 v{MB+u}, 0")
    for u in range(16): p(f"ds_read_u16_d16_hi v{MB+u}, v{GA+u}")
    p("s_mov_b32 exec_hi, 0xfff")
    p("s_branch L_pfin")
    p.label("L_pT")
    p("v_and_b32 v3, 31, v0")
    p("v_lshrrev_b32 v4, 5, v0")
    p("v_lshlrev_b32 v5, 6, v3")
    p("v_lshl_add_u32 v5, v4, 4, v5")
    p(f"v_add_u32 v5, {P_M3T}, v5")
    for u in range(8):
        p(f"v_lshl_or_b32 v{VF+u}, v{VV+2*u+1}, 16, v{VV+2*u}")
    check(C_PB, 4)
    stamp(12)
    p("ds_read_b128 v[12:15], v5")
    p("ds_read_b128 v[16:19], v5 offset:32")
    p("v_mul_u32_u24 v3, 0x90, v3")
    p("v_lshl_add_u32 v3, v4, 4, v3")
    p(f"v_add_u32 v3, {P_D1}, v3")
    p("s_waitcnt lgkmcnt(1)")
    p(f"v_mfma_f32_32x32x16_bf16 v[{MB}:{MB+15}], v[{VF}:{VF+3}], v[12:15], 0")
    p("s_waitcnt lgkmcnt(0)")
    p(f"v_mfma_f32_32x32x16_bf16 v[{MB}:{MB+15}], v[{VF+4}:{VF+7}], v[16:19], v[{MB}:{MB+15}]")
    p("v_lshl_add_u32 v4, v1, 1, 1")
    p("v_add_u32 v1, 22, v1")
    p("v_min_u32 v1, v1, v4")
    p("v_lshlrev_b32 v1, 1, v1")
    p("s_nop 7")
    for a in range(4): p(f"ds_write_b128 v3, v[{MB+4*a}:{MB+4*a+3}] offset:{32*a}")
    for u in range(16): p(f"ds_read_b32 v{MB+16+u}, v{GA+u}")
    for u in range(16): pass
    p("s_mov_b32 exec_hi, 0xffff")
    p("v_add_lshl_u32 v1, v1, v2, 4")
    p("s_waitcnt lgkmcnt(0)")
    for e in range(8): p(f"v_add_f32 v{MB+2*e}, v{MB+16+2*e}, v{MB+16+2*e+1}")
    p("s_branch L_pst")
    p.label("L_pfin")
    p("v_add_lshl_u32 v1, v1, v2, 4")
    p("s_waitcnt lgkmcnt(0)")
    for e in range(8): p(f"v_add_f32 v{MB+2*e}, v{MB+2*e}, v{MB+2*e+1}")
    p.label("L_pst")
    for e in range(4): p(f"v_cvt_pk_bf16_f32 v{4+e}, v{MB+4*e}, v{MB+4*e+2}")
    for e in range(4): p(f"v_min_u32 v{4+e}, -2, v{4+e}")
    if cfg.clrpos: check(C_CL, 1)
    p(f"buffer_store_dwordx4 v[4:7], v1, s[{S_WS}:{S_WS+3}], s{S_T} offen sc1")
    p(f"v_mov_b32 v8, s{S_C}")
    p("v_lshlrev_b32 v8, 2, v8")
    p("s_mov_b64 exec, 1")
    p(f"buffer_store_dword v{V_ONE}, v8, s[{S_WS}:{S_WS+3}], s{S_T} offen offset:1536 sc1")
    p("s_mov_b64 exec, -1")
    p.label("L_pdone")
    stamp(21)
    cinit_loads()
    p("s_waitcnt vmcnt(0)")
    p("s_branch L_setup")
    p.label("L_xwave")
    S_J, S_XA, S_XB, S_XM, S_TB = S_W, S_T+2, S_T+3, S_T+4, S_T+5
    p(f"s_sub_u32 s{S_J}, s{S_WAVE}, 4")
    p(f"s_lshl3_add_u32 s3, s{S_RG}, s{S_CP}")
    p(f"s_lshr_b32 s{S_FB}, s{S_J}, 1")
    p(f"s_lshl2_add_u32 s3, s{S_FB}, s3")
    p(f"s_mul_i32 s3, s3, 1664")
    p(f"s_and_b32 s{S_X}, s{S_J}, 1")
    p(f"s_mul_i32 s{S_X}, s{S_X}, 832")
    p(f"s_add_u32 s3, s3, s{S_X}")
    p(f"s_mul_i32 s{S_X}, s{S_J}, 832")
    p(f"s_add_u32 m0, s{S_X}, {IX2}")
    p(f"s_lshr_b32 s{S_X}, s2, 6")
    p(f"s_mul_i32 s{S_X}, s{S_X}, 3")
    p(f"s_add_u32 s{S_X}, s{S_X}, s{S_CP}")
    p(f"s_lshl2_add_u32 s{S_X}, s{S_X}, s{S_J}")
    p(f"s_mul_i32 s{S_X}, s{S_X}, {52*128}")
    p(f"s_add_u32 s{S_X}, s{S_X}, {(2496 - 4*52)*128}")
    p.wait0(lg=True)
    p(f"s_mov_b64 s[{S_IDX}:{S_IDX+1}], s[{KA}:{KA+1}]")
    p(f"s_mov_b64 s[{S_W1}:{S_W1+1}], s[{KA+8}:{KA+9}]")
    p("s_mov_b32 exec_hi, 0xfffff")
    p(f"buffer_load_dwordx4 v{V_L}, s[{S_IDX}:{S_IDX+3}], s3 offen lds")
    p("s_mov_b32 exec_hi, -1")
    p(f"s_mov_b64 s[{S_WCO}:{S_WCO+1}], s[{KA+6}:{KA+7}]")
    p(f"s_mov_b64 s[{S_BOUT}:{S_BOUT+1}], s[{KA+14}:{KA+15}]")
    srd(S_TAB, 2, 6400000)
    if cfg.etouch:
        p(f"s_cmp_eq_u32 s{S_CP}, 0")
        p("s_cbranch_scc1 L_noet")
        touch(160, S_X, (1 << 52) - 1)
        p("s_waitcnt vmcnt(1)")
        p.label("L_noet")
    p("v_lshrrev_b32 v1, 4, v0")
    p("v_and_b32 v2, 12, v0")
    p(f"s_mul_i32 s3, s{S_J}, 104")
    p(f"s_add_u32 s3, s3, {IX2}")
    p(f"v_add_u32 v2, s3, v2")
    p(f"s_movk_i32 s{S_X}, 416")
    p(f"v_mad_u32_u24 v3, v1, s{S_X}, v2")
    if cfg.bal:
        p(f"s_cmp_eq_u32 s{S_J}, 3")
        p(f"s_cselect_b32 s{S_X}, 104, 312")
        p(f"s_cselect_b32 s3, {13*104}, {20*104}")
        p(f"v_add_u32 v2, s3, v2")
        p(f"v_mad_u32_u24 v4, v1, s{S_X}, v2")
    else: p("v_add_u32 v4, 0x680, v3")
    p("v_and_b32 v1, 3, v0")
    p("v_lshlrev_b32 v5, 4, v1")
    p("v_bfe_u32 v1, v0, 3, 1")
    p("v_lshl_add_u32 v6, v1, 30, v5")
    p(f"s_mul_i32 s{S_XM}, s{S_J}, 7168")
    p(f"s_lshr_b32 s{S_TB}, s2, 4")
    p(f"s_lshl2_add_u32 s{S_TB}, s{S_TB}, s{S_J}")
    p(f"s_mul_i32 s{S_TB}, s{S_TB}, {46*128}")
    p(f"s_add_u32 s{S_TB}, s{S_TB}, {4992*128}")
    if cfg.pdelay:
        if cfg.etouch:
            p(f"s_cmp_lg_u32 s{S_CP}, 0")
            p("s_cbranch_scc1 L_noet2")
        p("s_waitcnt vmcnt(0)")
        p.label("L_noet2")
        p("s_barrier")
    else:
        p("s_barrier")
        if cfg.etouch:
            p(f"s_cmp_lg_u32 s{S_CP}, 0")
            p("s_cbranch_scc1 L_noet2")
        p("s_waitcnt vmcnt(0)")
        p.label("L_noet2")
    if (cfg.hold or cfg.pdelay) and not cfg.noprep:
        p(f"s_cmp_lg_u32 s{S_CP}, 0")
        p("s_cbranch_scc1 L_nohold")
        p(f"s_cmp_ge_u32 s{S_RG}, 26")
        p("s_cbranch_scc1 L_nohold")
        check(C_PA if cfg.hold else C_PI, 4, sleep=1)
        p.label("L_nohold")
    for u in range(2):
        for Q in range(0, 6, 2): p(f"ds_read2_b32 v[{VT+7*u+u+Q}:{VT+7*u+u+Q+1}], v{3+u} offset0:{4*Q} offset1:{4*Q+4}")
        p(f"ds_read_b32 v{VT+8*u+6}, v{3+u} offset:96")
    stamp(1)
    p.vm.clear()
    assert cfg.xwin < 14 and cfg.pdelay
    p.wait0(lg=True)
    go_done = False
    for Q in range(7):
        for u in range(2):
            n = 2*Q + u
            if n >= cfg.xwin:
                p.wait(vm=f"x{n - cfg.xwin}")
                if n - cfg.xwin == 2*cfg.gon + 1: arrive(C_GO); go_done = True
            p(f"s_add_u32 m0, s{S_XM}, {XO + 4*7168*u + 1024*Q}")
            p(f"v_lshl_add_u32 v{VT+8*u+Q}, v{VT+8*u+Q}, 6, v{6 if Q == 6 else 5}")
            p.vmem(f"buffer_load_dwordx4 v{VT+8*u+Q}, s[{S_TAB}:{S_TAB+3}], 0 offen lds", f"x{n}")
        for u, at in enumerate((cfg.lt0, cfg.lt1)):
            if at == Q and cfg.ltouch:
                touch(160, S_TB, (1 << 46) - 1); p.vm.issue("t")
                p(f"s_add_u32 s{S_TB}, s{S_TB}, {2944*128}")
    def late_touch():
        touch(160, S_TB, (1 << 46) - 1); p.vm.issue("t")
        p(f"s_add_u32 s{S_TB}, s{S_TB}, {2944*128}")
    cinit_loads()
    for _ in range(5): p.vm.issue("ci")
    if not go_done:
        p.wait(vm=f"x{2*cfg.gon+1}")
        arrive(C_GO)
    p.wait(vm="x13")
    arrive(C_XL)
    p.wait(vm="ci")
    for at in (cfg.lt0, cfg.lt1):
        if at == 7 and cfg.ltouch: late_touch()
    if cfg.ltouch and cfg.lt1 == 8: p(f"s_mov_b32 s{S_FB}, s{S_TB}")
    stamp(6)

    p.label("L_setup")
    if cfg.stamps: p(f"s_mov_b32 s{S_ST+27}, 0")
    p(f"s_setprio {cfg.prio_prep}")
    p.vm.clear(); p.lg.clear()
    AX, AT, CI, X0 = 0, 16, 32, 48
    Z = [74, 78]; PT = 82; ZL = 90
    XA = {1: 98, -3: 99, -1: 100}; WA = 101; SM = [102, 103, 104, 105]; MBX = 106; VMB = 110; VBO = 111
    RING = 112; RES = RING + 4*cfg.R
    WT = 112
    assert RES + 4*cfg.NRES <= 256
    NR = 4
    S_N, S_MB, S_O = S_T+7, S_T+9, S_T+11
    S_NR = S_T + 12
    p(f"s_and_b32 s{S_T+3}, s{S_WAVE}, 3")
    p(f"s_lshl_b32 s{S_T+2}, s{S_T+3}, 2")
    p(f"s_lshl_b32 s{S_T}, s{S_T+3}, 8")
    p(f"s_mov_b32 s{S_N}, 4")
    p(f"s_add_u32 s{S_T+2}, s{S_T+2}, 3")
    p(f"s_cmp_lt_u32 s{S_WAVE}, 4")
    p("s_cbranch_scc1 L_rowp")
    p(f"s_add_u32 s{S_T}, s{S_T}, {4*7168}")
    if cfg.bal:
        p(f"s_mov_b32 s{S_N}, 3")
        p(f"s_mul_i32 s{S_T+2}, s{S_T+3}, 3")
        p(f"s_add_u32 s{S_T+2}, s{S_T+2}, 70")
    else: p(f"s_add_u32 s{S_T+2}, s{S_T+2}, 64")
    p.label("L_rowp")
    p(f"s_lshl4_add_u32 s{S_T+2}, s{S_CP}, s{S_T+2}")
    p.label("L_setup2")
    p(f"s_mov_b32 s{S_NR}, s{S_N}")
    p("v_and_b32 v1, 31, v0")
    p("v_lshrrev_b32 v2, 5, v0")
    p(f"v_lshl_add_u32 v3, v1, 1, s{S_T}")
    p(f"v_lshl_add_u32 v{XA[1]}, v2, 6, v3")
    p("v_mul_u32_u24 v4, 0xc0, v2")
    p(f"v_sub_u32 v{XA[-3]}, v3, v4")
    p("v_lshlrev_b32 v4, 6, v2")
    p(f"v_sub_u32 v{XA[-1]}, v3, v4")
    p("v_mul_u32_u24 v4, 0x210, v2")
    p("v_lshl_add_u32 v4, v1, 4, v4")
    p(f"v_add_u32 v{WA}, {WO}, v4")
    for r in range(26): p(f"v_mov_b32 v{X0+r}, 0")
    for a in range(3):
        for h in range(2):
            p(f"v_lshlrev_b32 v{CI+4*a+2*h}, 16, v{CRAW+2*a+h}")
            p(f"v_and_b32 v{CI+4*a+2*h+1}, 0xffff0000, v{CRAW+2*a+h}")
    p(f"v_lshlrev_b32 v{CI+12}, 16, v{CRAW+6}")
    for r in range(13, 16): p(f"v_mov_b32 v{CI+r}, 0")
    p(f"v_lshlrev_b32 v{VBO}, 16, v{CRAW+7}")
    p("v_lshrrev_b32 v1, 3, v0")
    p("v_min_u32 v3, 1, v1")
    p("v_lshlrev_b32 v2, 9, v0")
    p(f"v_lshl_add_u32 v{VMB}, v3, 30, v2")
    p(f"s_lshl_b32 s{S_T+1}, s{S_RG}, 7")
    p(f"s_add_u32 s{S_T+1}, s{S_T+1}, s{S_T+2}")
    p(f"s_lshl_b32 s{S_O}, s{S_T+1}, 1")
    p(f"s_lshl_b32 s{S_T}, s{S_RG}, 10")
    p(f"s_add_u32 s{S_MB}, s{S_T+2}, s{S_T}")
    p(f"s_sub_u32 s{S_MB}, s{S_MB}, 3")
    p(f"s_lshl_b32 s{S_MB}, s{S_MB}, 2")
    p(f"v_mov_b32 v{ZL+7}, 0")
    p(f"s_cmp_ge_u32 s{S_WAVE}, 4")
    p("s_cbranch_scc1 L_xz")
    p("v_and_b32 v2, 7, v0")
    p(f"v_mul_u32_u24 v3, {BLK}, v1")
    p("v_lshl_add_u32 v3, v2, 4, v3")
    p("v_mul_u32_u24 v4, 0x210, v2")
    p(f"s_mul_i32 s{S_T}, s{S_C}, {24*528}")
    p(f"s_add_u32 s{S_T}, s{S_T}, {WO}")
    p(f"v_add_u32 v4, s{S_T}, v4")
    p("v_lshl_add_u32 v5, v1, 4, v4")
    p("v_cmp_eq_u32 vcc, 1, v1")
    p("v_add_u32 v6, 48, v5")
    p("v_subrev_u32 v7, 48, v5")
    p("v_cndmask_b32 v6, v5, v6, vcc")
    p("v_cmp_eq_u32 vcc, 4, v1")
    p(f"s_cmp_eq_u32 s{S_C}, 3")
    p(f"s_cselect_b32 s{S_T+1}, 4, 0")
    p("v_cndmask_b32 v6, v6, v7, vcc")
    p(f"v_and_b32 v7, s{S_T+1}, v2")
    p("v_lshl_add_u32 v7, v7, 28, v3")
    p("v_and_b32 v8, 31, v0")
    p("v_lshrrev_b32 v9, 5, v0")
    p(f"v_mul_u32_u24 v8, {BLK}, v8")
    p("v_lshl_add_u32 v8, v9, 2, v8")
    p(f"s_mul_i32 s{S_T}, s{S_C}, 384")
    p(f"s_add_u32 s{S_T}, s{S_T}, {WS_W}")
    p(f"s_and_b32 s{S_T+1}, s{S_CP}, {1 if cfg.wrot else 0}")
    p(f"s_mul_i32 s{S_T+2}, s{S_T+1}, 26624")
    for k in range(4):
        p(f"s_xor_b32 s{S_T+3+k}, s{S_T+2}, {26624*(k >> 1)}")
        p(f"s_add_u32 s{S_T+3+k}, s{S_T+3+k}, s{S_T}")
        if k & 1: p(f"s_add_u32 s{S_T+3+k}, s{S_T+3+k}, 13312")
    p(f"s_lshl_b32 s{S_T+2}, s{S_T+1}, 8")
    p(f"s_cmp_eq_u32 s{S_T+1}, 0")
    p("s_cselect_b64 vcc, -1, 0")
    p(f"v_add_u32 v12, s{S_T+2}, v5")
    p(f"s_xor_b32 s{S_T+2}, s{S_T+2}, 0x100")
    p("v_add_u32 v6, 0x180, v6")
    p("v_add_u32 v15, 0x80, v5")
    p(f"v_add_u32 v14, s{S_T+2}, v5")
    p("v_cndmask_b32 v13, v6, v15, vcc")
    p("v_cndmask_b32 v15, v15, v6, vcc")
    p("v_mov_b32 v10, 0")
    check(C_GO, 4, sleep=2)
    stamp(22)
    p(f"s_mov_b32 s{S_T+13}, {WS_W}")
    if cfg.noprep: p("s_branch L_wload")
    if cfg.direct:
        p(f"s_load_dword s{S_X}, s[{S_DBG}:{S_DBG+1}], 192")
        p("s_waitcnt lgkmcnt(0)")
        p(f"s_cmp_lg_u32 s{S_X}, 0")
        p("s_cbranch_scc1 L_wload")
    p(f"s_cmp_lg_u32 s{S_C}, 0")
    p("s_cbranch_scc1 L_pw")
    p.label("L_probe")
    p(f"global_load_dword v11, v10, s[{S_DBG}:{S_DBG+1}] offset:128 sc1")
    p(f"buffer_load_dword v9, v8, s[{S_WS}:{S_WS+3}], s{S_T+13} offen offset:1536 sc1")
    p("s_waitcnt vmcnt(0)")
    p("v_add_u32 v11, -1, v11")
    p("v_max_u32 v9, v9, v11")
    p("v_cmp_eq_u32 vcc, -1, v9")
    p("s_nop 1")
    p("s_cmp_eq_u64 vcc, 0")
    p("s_cbranch_scc1 L_wload")
    p.label("L_retry")
    if cfg.stamps: p(f"s_add_u32 s{S_ST+27}, s{S_ST+27}, 1")
    p(f"s_sleep {cfg.poll_sleep}")
    p(f"s_sub_u32 s{S_SPIN}, s{S_SPIN}, 1")
    p("s_cbranch_scc0 L_probe")
    p("s_endpgm")
    p.label("L_pw")
    check(C_FLAG, 1, sleep=2)
    p("s_branch L_wl2")
    p.label("L_wload")
    arrive(C_FLAG)
    p.label("L_wl2")
    stamp(2)
    for J in range(4):
        for Fi in range(3):
            r = WT + 4*(3*J + Fi)
            p.vmem(f"buffer_load_dwordx4 v[{r}:{r+3}], v{7 if Fi == 2 else 3}, s[{S_WS}:{S_WS+3}], s{S_T+3+J} offen offset:{128*Fi} sc1", f"w{J}{Fi}")
    first = True
    for J in range(4):
        for Fi in range(3):
            r = WT + 4*(3*J + Fi)
            p.wait(vm=f"w{J}{Fi}")
            p(f"ds_write_b128 v{12+J}, v[{r}:{r+3}] offset:{4224*Fi}")
            if first: p(f"v_max_u32 v9, v{r}, v{r+1}")
            else: p(f"v_max3_u32 v9, v{r}, v{r+1}, v9")
            p(f"v_max3_u32 v9, v{r+2}, v{r+3}, v9")
            first = False
    p("v_cmp_eq_u32 vcc, -1, v9")
    p("s_nop 1")
    p("s_cmp_eq_u64 vcc, 0")
    p("s_cbranch_scc0 L_retry")
    p.label("L_xz")
    check(C_XL, 4, sleep=cfg.idle_sleep)
    def x_read(r):
        p.lds(f"ds_read_u16_d16_hi v{X0+r}, v{XA[pi(r)-r]} offset:{1024*(r >> 2) + 64*(r & 3)}", f"x{r}")
    for r in range(26): x_read(r)
    def z_ops(n):
        ops = []
        for e in range(4):
            t = PT + 2*(e % 4)
            (a, b), (c, d) = S[8*n + 2*e], S[8*n + 2*e + 1]
            ops.append(("v", f"v_mul_f32 v{t}, v{X0+a}, v{X0+b}", (a, b)))
            ops.append(("v", f"v_mul_f32 v{t+1}, v{X0+c}, v{X0+d}", (c, d)))
        cv = [("v", f"v_cvt_pk_bf16_f32 v{Z[n % 2]+e}, v{PT+2*e}, v{PT+2*e+1}", ()) for e in range(4)]
        return ops[0:4] + cv[0:1] + ops[4:6] + cv[1:2] + ops[6:8] + cv[2:4]
    for o in z_ops(0):
        p.wait(lg=tuple(f"x{r}" for r in o[2]))
        p(o[1])
    for d in XA.values(): p(f"v_add_u32 v{d}, 0x1c00, v{d}")
    p.wait0(lg=True)
    p("s_barrier")
    if cfg.ltouch and cfg.lt1 == 8:
        p(f"s_cmp_lt_u32 s{S_WAVE}, 4")
        p("s_cbranch_scc1 L_go")
        touch(160, S_FB, (1 << 46) - 1)
    p.label("L_go")
    p("s_setprio 0")
    if cfg.flip:
        p(f"s_cmp_lt_u32 s{S_WAVE}, 4")
        p("s_cbranch_scc1 L_prio")
        p(f"s_setprio 1")
        p.label("L_prio")
    stamp(3)
    order = []
    for n in range(22):
        order.append(("X", n)); order.append(("T", n))
        if n == 14: order.append(("T", 22))
        if n == 18: order.append(("T", 23))
    fr_of = lambda k, n: (2*n if k == "X" else 2*n + 1) if n < 22 else n + 22
    nn = 46 - cfg.NRES
    assert nn % cfg.R == 0
    nonres = [int((u + 0.5)*46/nn) for u in range(nn)]
    wreg = {}; rr = 0
    for k in range(46):
        if k in nonres: wreg[k] = RING + 4*(nonres.index(k) % cfg.R)
        else: wreg[k] = RES + 4*rr; rr += 1
    def w_read(k):
        p.lds(f"ds_read_b128 v[{wreg[k]}:{wreg[k]+3}], v{WA} offset:{1056*fr_of(*order[k])}", f"w{k}")
    for k in range(46):
        if k not in nonres or nonres.index(k) < cfg.R: w_read(k)
    p.wait0(lg=True)
    stamp(5)
    def mfma(k):
        kind, n = order[k]
        zb = Z[n % 2] if n < 22 else ZL + 4*(n - 22)
        acc = AX if kind == "X" else AT
        cc = f"v[{acc}:{acc+15}]"
        if n == 0: cc = "0" if kind == "X" else f"v[{CI}:{CI+15}]"
        return f"v_mfma_f32_32x32x16_bf16 v[{acc}:{acc+15}], v[{wreg[k]}:{wreg[k]+3}], v[{zb}:{zb+3}], {cc}"
    lin_ops = []
    for u in range(8):
        a = LIN[min(2*u, 12)]; b = LIN[min(2*u + 1, 12)]
        lin_ops.append(("v", f"v_cvt_pk_bf16_f32 v{ZL+u}, v{X0+a}, v{X0+b}", (a, b)))
    def body(emit_mb):
        groups = [z_ops(n) for n in range(1, 22)] + [z_ops(0)]
        groups[10] = lin_ops[:7] + groups[10]
        flat = [(g, o) for g, ops in enumerate(groups) for o in ops]
        lastuse = {}
        for i, (g, o) in enumerate(flat):
            if g < 21:
                for r in o[2]: lastuse[r] = i
        for r in range(26): lastuse.setdefault(r, -1)
        for g, ops in enumerate(groups):
            mf = [kk for kk in range(46) if order[kk] in (("X", g), ("T", g))]
            if g == 14: mf.append(order.index(("T", 22)))
            if g == 18: mf.append(order.index(("T", 23)))
            items = []
            base = sum(len(x) for x in groups[:g])
            if g == 0:
                for r in range(26):
                    if lastuse[r] == -1: items.append(("x", r))
            for i, o in enumerate(ops):
                items.append(o)
                for r in range(26):
                    if lastuse[r] == base + i: items.append(("x", r))
            if g == 21:
                pos = [0, 0]
            else:
                n_it = len(items)
                pos = [2 + (j*n_it)//len(mf) for j in range(len(mf))]
            j = 0
            for i, it in enumerate(items + [None]):
                while j < len(mf) and pos[j] <= i:
                    kk = mf[j]
                    if g == 21 and j == 0: p("s_nop 1")
                    p.wait(lg=f"w{kk}")
                    p(mfma(kk))
                    if kk in nonres:
                        w_read(nonres[(nonres.index(kk) + cfg.R) % nn])
                    j += 1
                if it is None: break
                if it[0] == "x": x_read(it[1])
                else:
                    p.wait(lg=tuple(f"x{r}" for r in it[2]))
                    p(it[1])
            if g == 15: emit_mb()
        for k in range(NR - 1): p(f"v_mov_b32 v{SM[k]}, v{SM[k+1]}")
        for d in XA.values(): p(f"v_add_u32 v{d}, 0x1c00, v{d}")
        s0 = SM[NR-1]
        p(f"v_mul_f32 v{s0}, v{AX}, v{AT}")
        p(f"v_mul_f32 v{PT}, v{AX+1}, v{AT+1}")
        for r in range(2, 13):
            p(f"v_fmac_f32 v{s0 if r % 2 == 0 else PT}, v{AX+r}, v{AT+r}")
        p(f"s_sub_u32 s{S_N}, s{S_N}, 1")
        p(f"v_add_f32 v{s0}, v{s0}, v{PT}")
    def mb_loads():
        p(f"buffer_load_dwordx{NR} v[{MBX}:{MBX+NR-1}], v{VMB}, s[{S_WS}:{S_WS+3}], s{S_MB} offen sc1")
    def emit_mb():
        sk = L("nomb")
        p(f"s_cmp_lg_u32 s{S_N}, 1")
        p(f"s_cbranch_scc1 {sk}")
        mb_loads()
        p.label(sk)
    save = p.L; p.L = []
    body(lambda: None)
    st1 = list(p.lg.q)
    p.L = save
    p(".p2align 3")
    p.label("L_row")
    body(emit_mb)
    assert st1 == p.lg.q
    if cfg.stamps in (1, 2):
        for i in range(3): p(f"s_mov_b32 s{S_ST+23+i}, s{S_ST+24+i}")
        stamp(26)
    if cfg.flip:
        p(f"s_cmp_lg_u32 s{S_N}, {4 - cfg.flip}")
        p("s_cbranch_scc1 L_noflip")
        p("s_setprio 0")
        p.label("L_noflip")
    p(f"s_cmp_lg_u32 s{S_N}, 0")
    p("s_cbranch_scc1 L_row")
    p.label("L_mbw")
    p("s_waitcnt vmcnt(0)")
    if NR == 4:
        p(f"v_max3_u32 v1, v{MBX}, v{MBX+1}, v{MBX+2}")
        p(f"v_max_u32 v1, v1, v{MBX+3}")
    else: p(f"v_max_u32 v1, v{MBX}, v{MBX+1}")
    p("v_cmp_eq_u32 vcc, -1, v1")
    p("s_nop 1")
    p("s_cmp_eq_u64 vcc, 0")
    p("s_cbranch_scc1 L_mbok")
    p("s_sleep 1")
    mb_loads()
    p(f"s_sub_u32 s{S_SPIN}, s{S_SPIN}, 1")
    p("s_cbranch_scc0 L_mbw")
    p("s_endpgm")
    p.label("L_mbok")
    for k in range(NR): p(f"v_add_f32 v{SM[k]}, v{SM[k]}, v{MBX+k}")
    for ctl in ("quad_perm:[1,0,3,2] row_mask:0xf", "quad_perm:[2,3,0,1] row_mask:0xf", "row_half_mirror row_mask:0xf",
                "row_mirror row_mask:0xf", "row_bcast:15 row_mask:0xa", "row_bcast:31 row_mask:0xc"):
        if NR == 2: p("s_nop 0")
        for k in range(NR): p(f"v_add_f32_dpp v{SM[k]}, v{SM[k]}, v{SM[k]} {ctl} bank_mask:0xf")
    for k in range(NR): p(f"v_add_f32 v{SM[k]}, v{SM[k]}, v{VBO}")
    p(f"v_cvt_pk_bf16_f32 v2, v{SM[0]}, v{SM[1]}")
    p(f"v_cvt_pk_bf16_f32 v3, v{SM[2]}, v{SM[3]}")
    p(f"v_mov_b32 v1, s{S_O}")
    p("s_mov_b32 exec_lo, 0")
    p("s_mov_b32 exec_hi, 0x80000000")
    if cfg.bal:
        p(f"s_cmp_eq_u32 s{S_NR}, 4")
        p("s_cbranch_scc1 L_st4")
        p(f"global_store_short_d16_hi v1, v3, s[{S_OUT}:{S_OUT+1}]")
        p(f"s_cmp_eq_u32 s{S_NR}, 1")
        p("s_cbranch_scc1 L_std")
        p(f"global_store_short v1, v3, s[{S_OUT}:{S_OUT+1}] offset:-2")
        p(f"global_store_short_d16_hi v1, v2, s[{S_OUT}:{S_OUT+1}] offset:-4")
        p("s_branch L_std")
        p.label("L_st4")
    p(f"global_store_dwordx2 v1, v[2:3], s[{S_OUT}:{S_OUT+1}] offset:-6")
    p.label("L_std")
    stamps_out()
    p.label("L_end")
    p("s_endpgm")

    p.vm.q = dnn_vm; p.lg.clear()
    p(".p2align 6")
    p.label("L_dnn")
    ACC = lambda t, q: 8*t + 4*q
    BF = lambda t: 56 + 4*t
    AR = lambda f, q: 84 + 8*(f % 2) + 4*q
    IDX = lambda f: 100 + f
    VO = lambda u: 128 + u
    V_B, V_A, V_CH, V_LANE, V_G8 = [130, 131, 132], [133, 134, 135], 136, 137, 138
    RAW = 140; RAW2 = 200
    S_SB, S_M0, S_AM = S_T+2, S_T+3, S_T+4
    srd(S_B1, 10, 1664)
    srd(S_TAB, 2, 6400000)
    srd(S_W2, 12, 1664)
    srd(S_WS, None, WS_END)
    stamp(10)
    p(f"s_mov_b32 s{S_SPIN}, 0x40000")
    p(f"s_mul_i32 s{S_COL}, s{S_CP}, 416")
    S_M1, S_WR = S_T+5, S_T+6
    p(f"s_mov_b32 s{S_SB}, s{S_COL}")
    p(f"s_and_b32 s{S_WR}, s{S_WAVE}, 3")
    p(f"s_lshl_b32 s{S_T}, s{S_WAVE}, 1")
    p(f"s_sub_u32 s{S_T}, s{S_T}, 4")
    p(f"s_add_u32 s{S_T+1}, s{S_T}, 1")
    p(f"s_cmp_lt_u32 s{S_WAVE}, 4")
    p(f"s_cselect_b32 s{S_M0}, s{S_WAVE}, s{S_T}")
    p(f"s_cselect_b32 s{S_M1}, 12, s{S_T+1}")
    p(f"s_lshl_b32 s{S_M0}, s{S_M0}, 10")
    p(f"s_lshl_b32 s{S_M1}, s{S_M1}, 10")
    p(f"s_lshl_b32 s{S_AM}, s{S_WAVE}, 10")
    p(f"s_add_u32 s{S_AM}, s{S_AM}, {BSZ}")
    p(f"s_lshr_b32 s{S_T}, s{S_WAVE}, 2")
    p(f"s_mul_i32 s{S_T}, s{S_T}, 224")
    p(f"s_add_u32 s{S_COL}, s{S_COL}, s{S_T}")
    p(f"s_movk_i32 s{S_T+1}, 1248")
    p(f"s_movk_i32 s{S_T+7}, 6656")
    for u in range(2):
        p(f"v_add_u32 v3, s{(S_M0, S_M1)[u]}, v{V_L}")
        p("v_lshlrev_b32 v4, 4, v3")
        p("v_mul_hi_u32_u24 v4, 0x9d89e, v4")
        p("v_bfe_u32 v5, v4, 2, 1")
        p("v_bfe_i32 v6, v4, 3, 1")
        p("v_add_u32 v5, v5, v6")
        p(f"v_mad_i32_i24 v5, v5, s{S_T+7}, v3")
        p(f"v_mad_u32_u24 v{VO(u)}, v4, s{S_T+1}, v5")
    p("v_lshrrev_b32 v1, 4, v0")
    p(f"s_add_u32 s{S_T+1}, s{S_T}, {IDXO}")
    p(f"v_lshl_add_u32 v{V_G8}, v1, 3, s{S_T+1}")
    p("v_lshrrev_b32 v2, 2, v0")
    p(f"v_mul_u32_u24 v2, 104, v2")
    p(f"s_add_u32 s{S_W}, s{S_W}, {IDXO}")
    p(f"v_add_u32 v7, s{S_W}, v2")
    p("v_lshrrev_b32 v2, 5, v0")
    p("v_mul_u32_u24 v3, 3, v2")
    p("v_xor_b32 v3, v3, v0")
    p("v_and_b32 v3, 3, v3")
    p(f"v_lshlrev_b32 v{V_CH}, 4, v3")
    p("v_bfe_u32 v3, v0, 3, 1")
    p("v_mul_u32_u24 v3, 3, v3")
    p("v_xor_b32 v3, v3, v1")
    p("v_and_b32 v4, 15, v0")
    p("v_lshlrev_b32 v4, 6, v4")
    p("v_lshl_add_u32 v3, v3, 4, v4")
    p(f"s_and_b32 s{S_T+1}, s{S_WAVE}, 3")
    p(f"s_lshl_b32 s{S_T+1}, s{S_T+1}, 11")
    p(f"s_add_u32 s{S_T+1}, s{S_T+1}, {BSZ}")
    p(f"v_add_u32 v{V_A[0]}, s{S_T+1}, v3")
    p("v_bfe_u32 v3, v0, 2, 3")
    p("v_lshl_add_u32 v2, v2, 4, v3")
    p("v_mul_u32_u24 v2, 0x1a0, v2")
    p("v_and_b32 v3, 3, v0")
    p("v_lshl_add_u32 v2, v3, 3, v2")
    p(f"v_add_u32 v{V_B[0]}, s{S_T}, v2")
    for k in (1, 2):
        p(f"v_add_u32 v{V_A[k]}, {3*k*SLOT}, v{V_A[0]}")
        p(f"v_add_u32 v{V_B[k]}, {3*k*SLOT}, v{V_B[0]}")
    p(f"v_mov_b32 v{V_LANE}, v0")
    p.wait(vm="idx")
    stamp(1)
    for m in range(6):
        p.lds(f"ds_read2_b64 v[{100+4*m}:{103+4*m}], v7 offset0:{2*m} offset1:{2*m+1}", f"ix{m}")
    p.lds("ds_read_b64 v[124:125], v7 offset:96", "ix6")
    def a_dma(f):
        p.wait(lg=f"ix{f >> 2}")
        p(f"s_add_u32 m0, s{S_AM}, {(f % RB)*SLOT}")
        p(f"v_lshl_add_u32 v{IDX(f)}, v{IDX(f)}, 6, v{V_CH}")
        p.vmem(f"buffer_load_dwordx4 v{IDX(f)}, s[{S_TAB}:{S_TAB+3}], 0 offen lds", f"F{f}")
    def b_dma(f, u, T):
        if u == 1:
            if f: p(f"s_add_u32 s{S_SB}, s{S_SB}, 53248")
            sk = L("np")
            if T != 6:
                if T == 0:
                    p(f"s_cmp_ge_u32 s{S_WAVE}, 4")
                    p(f"s_cselect_b32 s{S_X}, {f & 3}, s{S_WR}")
                    p(f"s_cmp_lg_u32 s{S_X}, {f & 3}")
                else: p(f"s_cmp_lg_u32 s{S_WR}, {f & 3}")
                p(f"s_cbranch_scc1 {sk}")
            p(f"s_add_u32 m0, s{S_M1}, {(f % RB)*SLOT}")
            p("s_nop 0")
            p(f"buffer_load_dwordx4 v{VO(1)}, s[{S_W1}:{S_W1+3}], s{S_SB} offen lds")
            if T == 6: p.vm.issue(f"F{f}")
            else: p.label(sk)
        else:
            p(f"s_add_u32 m0, s{S_M0}, {(f % RB)*SLOT}")
            p("s_nop 0")
            p.vmem(f"buffer_load_dwordx4 v{VO(0)}, s[{S_W1}:{S_W1+3}], s{S_SB} offen lds", f"F{f}")
    def fill(f, T): a_dma(f); b_dma(f, 1, T); b_dma(f, 0, T)
    BWO = IDXO
    p(f"s_cmp_ge_u32 s{S_WAVE}, 2")
    p("s_cbranch_scc1 L_nobw")
    p(f"s_mul_i32 s{S_X}, s{S_CP}, 416")
    p(f"s_cmp_eq_u32 s{S_WAVE}, 0")
    p(f"s_cselect_b64 s[{S_W2}:{S_W2+1}], s[{S_B1}:{S_B1+1}], s[{S_W2}:{S_W2+1}]")
    p(f"s_mov_b32 m0, s{S_W}")
    p("s_mov_b64 exec, 0xfffffff")
    p("s_waitcnt lgkmcnt(0)")
    p(f"buffer_load_dwordx4 v{V_L}, s[{S_W2}:{S_W2+3}], s{S_X} offen lds")
    p("s_mov_b64 exec, -1")
    p.label("L_nobw")
    def lo(f): return (f % RB)//3, ((f % RB) % 3)*SLOT
    def b_read1(f, t, r2):
        k, off = lo(f)
        p.lds(f"ds_read_b64_tr_b16 v[{BF(t)+2*r2}:{BF(t)+2*r2+1}], v{V_B[k]} offset:{off + 32*t + 3328*r2}", f"b{f}_{t}")
    def a_read(f):
        k, off = lo(f)
        for q in range(2):
            p.lds(f"ds_read_b128 v[{AR(f, q)}:{AR(f, q)+3}], v{V_A[k]} offset:{off + 1024*q}", f"a{f}")
    p(f"s_cmp_ge_u32 s{S_WAVE}, 4")
    p("s_cbranch_scc1 L_dnn6")
    W2R = lambda t, r: 170 + 4*t + r
    def w2_unpack():
        return [x for t in range(7) for h in range(2) for x in
                (f"v_lshlrev_b32 v{W2R(t,2*h)}, 16, v{RAW2+2*t+h}", f"v_and_b32 v{W2R(t,2*h+1)}, 0xffff0000, v{RAW2+2*t+h}")]
    vm0, lg0 = list(p.vm.q), list(p.lg.q)
    def dnn_main(T):
        p.vm.q, p.lg.q = list(vm0), list(lg0)
        fill(0, T)
        fill(1, T)
        p.wait(vm="F0")
        p("s_barrier")
        stamp(12)
        for t in range(T):
            p.lds(f"ds_read_b64 v[{RAW+2*t}:{RAW+2*t+1}], v{V_G8} offset:{32*t}", "bias")
        a_read(0)
        for t in range(T):
            for r2 in range(2): b_read1(0, t, r2)
        p.wait(lg="bias")
        for t in range(T):
            for h in range(2):
                p(f"v_lshlrev_b32 v{ACC(t,0)+2*h}, 16, v{RAW+2*t+h}")
                p(f"v_and_b32 v{ACC(t,0)+2*h+1}, 0xffff0000, v{RAW+2*t+h}")
        for f in range(2, cfg.look): fill(f, T)
        p.wait(vm="F1")
        p("s_barrier")
        if T == 6 and cfg.prio_hi: p(f"s_setprio {cfg.prio_hi}")
        stamp(2)
        nxt = cfg.look
        w2ops = w2_unpack()
        for f in range(26):
            todo = []
            for _ in range(2 if cfg.catch0 <= f < cfg.catch0 + cfg.catch else 1):
                if nxt < 26 and nxt <= f + RB - 1:
                    todo += [(a_dma, (nxt,)), (b_dma, (nxt, 1, T)), (b_dma, (nxt, 0, T))]; nxt += 1
            n_it = len(todo)
            if f < cfg.early: at = [-1]*n_it
            elif cfg.dpos == 0: at = list(range(n_it))
            elif cfg.dpos == 1: at = [-1]*n_it if T == 7 else [T-1]*n_it
            elif cfg.dpos == 2: at = [(2*i + (T == 6)) if n_it <= 3 else i for i in range(n_it)]
            elif cfg.dpos == 3: at = [0]*n_it if T == 7 else [T-1]*n_it
            elif cfg.dpos == 4: at = [T-1]*n_it if T == 7 else [-1]*n_it
            elif cfg.dpos == 5: at = [i//(2 if n_it > 3 else 1) for i in range(n_it)] if T == 7 else [3 + i//(2 if n_it > 3 else 1) for i in range(n_it)]
            def drain(t):
                while todo and at[0] <= t:
                    at.pop(0); fn, ar = todo.pop(0); fn(*ar)
            drain(-1)
            for t in range(T):
                p.wait(lg=(f"b{f}_{t}", f"a{f}"))
                b = f"v[{BF(t)}:{BF(t)+3}]"
                a0, a1 = ACC(t, 0), ACC(t, 1)
                c1 = a0 if f == 0 else a1
                p(f"v_mfma_f32_16x16x32_bf16 v[{a1}:{a1+3}], {b}, v[{AR(f,1)}:{AR(f,1)+3}], v[{c1}:{c1+3}]")
                if t and f < 25: b_read1(f+1, t-1, 1)
                elif t == 0 and f: b_read1(f, T-1, 1)
                p(f"v_mfma_f32_16x16x32_bf16 v[{a0}:{a0+3}], {b}, v[{AR(f,0)}:{AR(f,0)+3}], v[{a0}:{a0+3}]")
                if f < 25: b_read1(f+1, t, 0)
                if t == 1 and f < 25: a_read(f + 1)
                drain(t)
                if f == 21:
                    for tt in ([t] if t < T - 1 else range(t, 7)):
                        p.lds(f"ds_read_b64 v[{RAW2+2*tt}:{RAW2+2*tt+1}], v{V_G8} offset:{1664 + 32*tt}", "w2")
                if cfg.w2early and f in (23, 24):
                    if f == 23 and t == 0: p.wait(lg="w2")
                    for _ in range(3):
                        if w2ops: p(w2ops.pop(0))
            assert not todo
            if f < 24:
                p.wait(vm=f"F{f+2}")
                p("s_barrier")
            if f % 4 == 0: stamp(14 + f//4)
        assert nxt == 26 and not (cfg.w2early and w2ops)
    dnn_main(7)
    p("s_branch L_gelu")
    p(".p2align 6")
    p.label("L_dnn6")
    dnn_main(6)
    p.label("L_gelu")
    stamp(3)
    p(f"s_load_dword s{S_X}, s[{S_DBG}:{S_DBG+1}], 128")
    if not cfg.w2early:
        p.wait0(vm=True)
        for x in w2_unpack(): p(x)
    k0 = -2.0*math.sqrt(2.0/math.pi)*math.log2(math.e)
    T1, T2, SUM, VC = 56, 64, 92, 72
    P = lambda a: f"v[{a}:{a+1}]"
    for r, c in enumerate((k0*0.044715, k0)):
        for h in range(2): p(f"v_mov_b32 v{VC+2*r+h}, {f2h(c)}")
    for r in range(4): p(f"v_mov_b32 v{SUM+r}, 0")
    for t in range(7):
        if t == 6:
            p(f"s_cmp_ge_u32 s{S_WAVE}, 4")
            p("s_cbranch_scc1 L_gelu6")
        x = ACC(t, 0)
        if cfg.pk:
            for r in range(0, 8, 2): p(f"v_pk_mul_f32 {P(T1+r)}, {P(x+r)}, {P(x+r)}")
            for r in range(0, 8, 2): p(f"v_pk_fma_f32 {P(T1+r)}, {P(T1+r)}, {P(VC)}, {P(VC+2)}")
            for r in range(0, 8, 2): p(f"v_pk_mul_f32 {P(T1+r)}, {P(T1+r)}, {P(x+r)}")
            for r in range(8): p(f"v_exp_f32 v{T1+r}, v{T1+r}")
            for r in range(0, 8, 2): p(f"v_pk_mul_f32 {P(T2+r)}, {P(x+r)}, {P(W2R(t, r & 3))}")
            for r in range(0, 8, 2): p(f"v_pk_add_f32 {P(T1+r)}, {P(T1+r)}, 1.0 op_sel_hi:[1,0]")
            for r in range(8): p(f"v_rcp_f32 v{T1+r}, v{T1+r}")
            for r in (0, 4, 2, 6): p(f"v_pk_fma_f32 {P(SUM+2*(r >> 2))}, {P(T1+r)}, {P(T2+r)}, {P(SUM+2*(r >> 2))}")
        else:
            for r in range(8): p(f"v_mul_f32 v{T1+r}, v{x+r}, v{x+r}")
            for r in range(8): p(f"v_fma_f32 v{T1+r}, v{T1+r}, v{VC}, v{VC+2}")
            for r in range(8): p(f"v_mul_f32 v{T1+r}, v{T1+r}, v{x+r}")
            for r in range(8): p(f"v_exp_f32 v{T1+r}, v{T1+r}")
            for r in range(8): p(f"v_mul_f32 v{T2+r}, v{x+r}, v{W2R(t, r & 3)}")
            for r in range(8): p(f"v_add_f32 v{T1+r}, 1.0, v{T1+r}")
            for r in range(8): p(f"v_rcp_f32 v{T1+r}, v{T1+r}")
            for r in range(8): p(f"v_fmac_f32 v{SUM+2*(r >> 2)+(r & 1)}, v{T1+r}, v{T2+r}")
    p.label("L_gelu6")
    p(f"v_add_f32 v{SUM}, v{SUM}, v{SUM+1}")
    p(f"v_add_f32 v{SUM+2}, v{SUM+2}, v{SUM+3}")
    p(f"v_and_b32 v84, 15, v{V_LANE}")
    p(f"v_lshrrev_b32 v85, 5, v{V_LANE}")
    p(f"v_permlane32_swap_b32 v{SUM}, v{SUM+2}")
    p("v_lshl_add_u32 v84, v85, 4, v84")
    p(f"v_add_f32 v{SUM}, v{SUM}, v{SUM+2}")
    p(f"v_bfe_u32 v85, v{V_LANE}, 4, 1")
    p(f"v_mov_b32 v{SUM+1}, v{SUM}")
    p("v_lshlrev_b32 v84, 2, v84")
    p("v_lshl_add_u32 v84, v85, 30, v84")
    p(f"v_permlane16_swap_b32 v{SUM}, v{SUM+1}")
    p(f"s_lshl2_add_u32 s{S_T}, s{S_RG}, s{S_CP}")
    p(f"v_add_f32 v{SUM}, v{SUM}, v{SUM+1}")
    p(f"s_lshl3_add_u32 s{S_T}, s{S_T}, s{S_WAVE}")
    p(f"s_lshl_b32 s{S_T}, s{S_T}, 7")
    p(f"v_min_u32 v{SUM}, -2, v{SUM}")
    p("s_waitcnt lgkmcnt(0)")
    if cfg.noprep: p("s_branch L_pub")
    p(f"s_cmp_lg_u32 s{S_X}, 0")
    p("s_cbranch_scc1 L_pub")
    p("v_mov_b32 v85, 0")
    p.label("L_dflag")
    p(f"global_load_dword v86, v85, s[{S_DBG}:{S_DBG+1}] offset:128 sc1")
    p("s_waitcnt vmcnt(0)")
    p(f"v_readfirstlane_b32 s{S_X}, v86")
    p(f"s_cmp_lg_u32 s{S_X}, 0")
    p("s_cbranch_scc1 L_pub")
    p("s_sleep 4")
    p(f"s_sub_u32 s{S_SPIN}, s{S_SPIN}, 1")
    p("s_cbranch_scc0 L_dflag")
    p("s_endpgm")
    p.label("L_pub")
    p(f"buffer_store_dword v{SUM}, v84, s[{S_WS}:{S_WS+3}], s{S_T} offen sc1")
    stamp(4)
    stamps_out()
    p("s_endpgm")

    p(".p2align 6")
    p(".type gather_table,@object")
    p.label("gather_table")
    zt = P_Z - PS
    for role in range(2):
        for lane in range(64):
            s, half = lane >> 1, lane & 1
            ad = []
            for e in range(8):
                pr = slot_pair(s, half, e) if s < (24 if role == 0 else 22) else None
                at = (lambda j, k: P_D1 - PS + k*144 + j*4) if role == 0 else (lambda j, k: P_W1 - PS + (j*26 + k)*2)
                if pr is None: ad += [zt, zt]
                elif pr[1] is None: ad += [at(pr[0], 26), zt]
                elif pr[0] == pr[1] or norm(pr) == (24, 25): ad += [at(*pr), zt]
                else: ad += [at(pr[0], pr[1]), at(pr[1], pr[0])]
            p(".short " + ", ".join(str(a) for a in ad))
    p(".size gather_table, 4096")
    return p

def header():
    return """; xDeepFM (CIN + DNN) forward, one launch, 256 workgroups (S1).
; Kernarg: idx, table, ws_cin, w_cin_out, w_dnn1, b_dnn1, w_dnn2, b_out, out, debug, ws
; @launch grid=(256,1,1) block=(512,1,1) lds=%d
.amdgcn_target "amdgcn-amd-amdhsa--gfx950"
.text
""" % LDS_SIZE
def footer():
    nv = 256
    return f""".section .rodata,"a"
.p2align 6
.amdhsa_kernel {NAME}
  .amdhsa_next_free_vgpr {nv}
  .amdhsa_next_free_sgpr 102
  .amdhsa_accum_offset {nv}
  .amdhsa_group_segment_fixed_size 0
  .amdhsa_kernarg_size 88
  .amdhsa_user_sgpr_count 2
  .amdhsa_user_sgpr_kernarg_segment_ptr 1
  .amdhsa_system_sgpr_workgroup_id_x 1
  .amdhsa_float_denorm_mode_32 3
.end_amdhsa_kernel
"""
if __name__ == "__main__":
    out = sys.argv[1]
    for a in sys.argv[2:]:
        k, v = a.split("=")
        setattr(cfg, k, type(getattr(cfg, k))(int(v)))
    open(out, "w").write(header() + build().text() + footer())
```

```python
import sys, struct, math
from asmlib import *
from slots import *

NAME = "standalone__deep_cross_xdeepfm__recsys_kernel"
class Cfg:
    stamps = 0
    NRES = 31
    R = 3
    prio_prep = 3
    prio_hi = 0
    poll_sleep = 2
    idle_sleep = 1
    gon = 5
    bal = 0
    lt0 = 2
    lt1 = 5
    early = 4
    look = 3
    catch0 = 4
    catch = 4
    etouch = 0
    dtouch = 1
    xwin = 3
    pfcode = 1
    flip = 2
    w2early = 1
    dpos = 4
    ltouch = 0
    pk = 1
    ctouch = 1
    wrot = 1
    direct = 1
    probe = 0
    noprep = 0
    clrpos = 1
    pdelay = 1
    hold = 0
cfg = Cfg()

LDS_SIZE = 163840
XO = 0
WO = 8*7168
PS = WO + 96*528
P_W3 = PS; P_M3T = PS + 36864; P_D1 = PS + 38912; P_W1 = PS + 43520; P_Z = PS + 45568; P_DUM = PS + 45824
CO = LDS_SIZE - 512
IX2 = PS + 46080
assert P_DUM + 256 <= CO
C_PA, C_PB, C_XL, C_FLAG, C_GO, C_CL, C_PI = 0, 4, 8, 12, 16, 20, 24
RB = 7
BSZ = 13312
SLOT = BSZ + 8192
IDXO = RB*SLOT
assert IDXO + 8*1664 == LDS_SIZE
MBOX = 0; WS_W = 131072; BLK = 1664; WS_END = WS_W + 26*BLK; WS_STAMP = 1 << 20
S_IDX, S_TAB, S_W1, S_WCIN, S_WCO, S_B1, S_W2, S_WS = 4, 8, 12, 16, 20, 24, 28, 32
S_OUT, S_DBG, S_BOUT = 36, 38, 40
S_WAVE, S_RG, S_CP, S_FB, S_COL, S_W = 42, 43, 44, 45, 46, 47
S_PC, S_SPIN, S_X = 48, 50, 51
KA = 52
S_T = 52
S_ST = 70
V_C, V_ONE, V_POLL, V_L = 162, 163, 164, 165
FRM = "0x20000"

def f2h(x): return "0x%08x" % struct.unpack("<I", struct.pack("<f", x))[0]

def build():
    p = Prog()
    lab = [0]
    def L(n):
        lab[0] += 1
        return f"L_{n}_{lab[0]}"
    def stamp(i):
        if cfg.stamps and (cfg.stamps != 3 or i == 8):
            p(f"s_memrealtime s[68:69]" if cfg.stamps != 2 or i == 8 else "s_memtime s[68:69]")
            p.wait0(lg=True)
            if cfg.stamps != 2 or i == 8: p(f"s_mov_b32 s{S_ST+i}, s68")
            else:
                p("s_sub_u32 s68, s68, s100")
                p("s_lshr_b32 s68, s68, 4")
                p(f"s_add_u32 s{S_ST+i}, s68, s{S_ST}")
    def stamps_out():
        if not cfg.stamps: return
        stamp(8)
        p("s_mov_b64 exec, 1")
        p(f"s_lshl4_add_u32 s{S_T}, s2, s{S_WAVE}")
        p(f"s_lshl_b32 s{S_T}, s{S_T}, 7")
        p(f"s_add_u32 s{S_T}, s{S_T}, {WS_STAMP}")
        p(f"v_mov_b32 v1, s{S_T}")
        p("s_memtime s[68:69]")
        p("s_waitcnt lgkmcnt(0)")
        p(f"s_sub_u32 s{S_ST+29}, s68, s100")
        for i in range(30):
            p(f"v_mov_b32 v2, s{S_ST+i}")
            p(f"global_store_dword v1, v2, s[{S_WS}:{S_WS+1}] offset:{4*i}")
    def arrive(*offs):
        p("s_mov_b64 exec, 1")
        for off in offs: p.lds(f"ds_add_u32 v{V_C}, v{V_ONE} offset:{off}", "arr")
        p("s_mov_b64 exec, -1")
    def poll_issue(off):
        p.lds(f"ds_read_b32 v{V_POLL}, v{V_C} offset:{off}", "poll")
    def check(off, target, issued=False, sleep=0):
        ok = L("ok"); sp = L("spin")
        if issued:
            p.wait(lg="poll")
            p(f"v_readfirstlane_b32 s{S_X}, v{V_POLL}")
            p(f"s_cmp_ge_u32 s{S_X}, {target}")
            p(f"s_cbranch_scc1 {ok}")
        p.label(sp)
        if sleep: p(f"s_sleep {sleep}")
        p(f"ds_read_b32 v{V_POLL}, v{V_C} offset:{off}")
        p("s_waitcnt lgkmcnt(0)")
        p(f"v_readfirstlane_b32 s{S_X}, v{V_POLL}")
        p(f"s_sub_u32 s{S_SPIN}, s{S_SPIN}, 1")
        p("s_cbranch_scc1 L_end")
        p(f"s_cmp_ge_u32 s{S_X}, {target}")
        p(f"s_cbranch_scc0 {sp}")
        if not issued: p.lg.clear()
        p.label(ok)
    def srd(s, ka, n):
        if ka is not None: p(f"s_mov_b64 s[{s}:{s+1}], s[{KA+ka}:{KA+ka+1}]")
        p(f"s_mov_b32 s{s+2}, {n}")
        p(f"s_mov_b32 s{s+3}, {FRM}")
    def touch(vaddr, soff, mask):
        p(f"s_mov_b64 exec, {mask}" if mask < (1 << 31) else f"s_mov_b32 exec_hi, {hex(mask >> 32)}")
        p(f"buffer_load_dword v250, v{vaddr}, s[{S_W1}:{S_W1+3}], s{soff} offen")
        p("s_mov_b64 exec, -1")

    p(f".globl {NAME}\n.p2align 8\n.type {NAME},@function")
    p.label(NAME)
    p(f"s_load_dwordx16 s[{KA}:{KA+15}], s[0:1], 0")
    p(f"s_load_dwordx4 s[{S_OUT}:{S_OUT+3}], s[0:1], 64")
    p(f"s_load_dwordx2 s[{S_WS}:{S_WS+1}], s[0:1], 80")
    if cfg.probe: p("s_memrealtime s[96:97]")
    if cfg.stamps:
        p(f"s_memrealtime s[{S_ST}:{S_ST+1}]")
        p(f"s_memtime s[100:101]")
    p("v_lshrrev_b32 v1, 6, v0")
    p("v_and_b32 v0, 63, v0")
    p(f"v_readfirstlane_b32 s{S_WAVE}, v1")
    p("s_cmp_ge_u32 s2, 0x100")
    p("s_cbranch_scc1 L_end")
    p(f"s_and_b32 s3, s2, 7")
    p(f"s_lshr_b32 s{S_RG}, s2, 6")
    p(f"s_lshl3_add_u32 s{S_RG}, s{S_RG}, s3")
    p(f"s_bfe_u32 s{S_CP}, s2, 0x20004")
    p(f"v_lshlrev_b32 v{V_L}, 4, v0")
    p(f"v_lshlrev_b32 v160, 7, v0")
    srd(S_IDX, None, 4096*104)
    srd(S_W1, None, 832*1664)
    p("s_bitcmp1_b32 s2, 3")
    p("s_cbranch_scc1 L_cin")
    p(f"s_lshl3_add_u32 s3, s{S_RG}, s{S_WAVE}")
    p(f"s_mul_i32 s3, s3, 1664")
    p(f"s_mul_i32 s{S_W}, s{S_WAVE}, 1664")
    p(f"s_add_u32 m0, s{S_W}, {IDXO}")
    p(f"s_lshr_b32 s{S_X}, s2, 4")
    p(f"s_lshl3_add_u32 s{S_X}, s{S_X}, s{S_WAVE}")
    p(f"s_mul_i32 s{S_X}, s{S_X}, 2560")
    p.wait0(lg=True)
    p(f"s_mov_b64 s[{S_IDX}:{S_IDX+1}], s[{KA}:{KA+1}]")
    p(f"s_mov_b64 s[{S_W1}:{S_W1+1}], s[{KA+8}:{KA+9}]")
    for n in range(2):
        if n: p("s_mov_b32 exec_hi, 0xff")
        p.vmem(f"buffer_load_dwordx4 v{V_L}, s[{S_IDX}:{S_IDX+3}], s3 offen offset:{1024*n} lds", "idx")
    if not cfg.dtouch: p("s_mov_b32 exec_hi, -1")
    if cfg.dtouch:
        touch(160, S_X, 0xfffff); p.vm.issue("t")
    p("s_branch L_dnn")
    dnn_vm = list(p.vm.q)

    p.vm.clear(); p.lg.clear()
    p.label("L_cin")
    S_C = S_WAVE
    W3A, TBL, VV, AQ, VF, GA, MB, VT, CRAW = 28, 32, 40, 56, 72, 80, 96, 170, 152
    srd(S_WCO, None, 156)
    srd(S_WS, None, WS_END)
    p(f"s_mov_b32 s{S_SPIN}, 0x40000")
    p(f"v_lshlrev_b32 v{V_C}, 2, v0")
    p(f"v_add_u32 v{V_C}, {CO}, v{V_C}")
    p(f"v_mov_b32 v{V_ONE}, 1")
    p(f"s_cmp_ge_u32 s{S_WAVE}, 4")
    p("s_cbranch_scc1 L_xwave")
    srd(S_WCIN, None, 105456)
    p(f"s_cmp_eq_u32 s{S_CP}, 0")
    p(f"s_cselect_b32 s{S_FB}, s{S_RG}, 99")
    if cfg.noprep: p(f"s_mov_b32 s{S_FB}, 99")
    p(f"s_getpc_b64 s[{S_PC}:{S_PC+1}]")
    p.label("L_pc")
    p.wait0(lg=True)
    p(f"s_mov_b64 s[{S_WCIN}:{S_WCIN+1}], s[{KA+4}:{KA+5}]")
    p(f"s_mov_b64 s[{S_W1}:{S_W1+1}], s[{KA+8}:{KA+9}]")
    p(f"s_mov_b64 s[{S_WCO}:{S_WCO+1}], s[{KA+6}:{KA+7}]")
    p(f"s_mov_b64 s[{S_BOUT}:{S_BOUT+1}], s[{KA+14}:{KA+15}]")
    def cinit_loads():
        p(f"v_lshrrev_b32 v8, 5, v0")
        p(f"v_lshlrev_b32 v9, 3, v8")
        p(f"v_lshlrev_b32 v8, 1, v8")
        for a in range(3):
            p(f"buffer_load_dwordx2 v[{CRAW+2*a}:{CRAW+2*a+1}], v9, s[{S_WCO}:{S_WCO+3}], 0 offen offset:{16*a}")
        p(f"buffer_load_ushort v{CRAW+6}, v8, s[{S_WCO}:{S_WCO+3}], 0 offen offset:48")
        p(f"v_mov_b32 v8, 0")
        p(f"global_load_ushort v{CRAW+7}, v8, s[{S_BOUT}:{S_BOUT+1}]")
    if cfg.ctouch:
        p(f"s_cmp_eq_u32 s{S_CP}, 0")
        p("s_cbranch_scc1 L_noct")
        p(f"s_lshr_b32 s{S_T}, s2, 6")
        p(f"s_mul_i32 s{S_T}, s{S_T}, 3")
        p(f"s_add_u32 s{S_T}, s{S_T}, s{S_CP}")
        p(f"s_lshl2_add_u32 s{S_T}, s{S_T}, s{S_C}")
        nl, base = (6, 549) if cfg.pdelay else (18, 0)
        p(f"s_mul_i32 s{S_T}, s{S_T}, {nl*128}")
        p(f"s_add_u32 s{S_T}, s{S_T}, {(base - 4*nl)*128 & 0xffffffff}")
        p(f"s_mov_b64 exec, {(1 << nl) - 1}")
        p(f"buffer_load_dword v161, v160, s[{S_WCIN}:{S_WCIN+3}], s{S_T} offen")
        p("s_mov_b64 exec, -1")
        p("s_branch L_cbar")
        p.label("L_noct")
    p(f"s_cmp_ge_u32 s{S_FB}, 26")
    p("s_cbranch_scc1 L_cbar")
    if cfg.prio_prep: p(f"s_setprio {cfg.prio_prep}")
    def w3_dma():
        p(f"s_mul_i32 s{S_T}, s{S_C}, 9216")
        p(f"s_add_u32 s{S_T+1}, s{S_T}, 70304")
        p(f"s_add_u32 s{S_T}, s{S_T}, {P_W3}")
        for u in range(9):
            if u % 4 == 0:
                if u: p(f"s_add_u32 s{S_T+1}, s{S_T+1}, 0x1000")
                p(f"s_add_u32 m0, s{S_T}, {1024*u}")
                p("s_nop 0")
            p(f"buffer_load_dwordx4 v{V_L}, s[{S_WCIN}:{S_WCIN+3}], s{S_T+1} offen offset:{1024*(u % 4)} lds")
    if not cfg.pdelay: w3_dma()
    p("v_and_b32 v1, 0x30, v0")
    p(f"buffer_load_dwordx4 v[{W3A}:{W3A+3}], v1, s[{S_WCO}:{S_WCO+3}], 0 offen offset:104")
    p(f"s_cmp_ge_u32 s{S_C}, 2")
    p("s_cbranch_scc1 L_p23")
    p(f"s_lshl_b32 s{S_T}, s{S_C}, 11")
    p(f"s_add_u32 s{S_T}, s{S_T}, gather_table-L_pc")
    p(f"v_lshl_add_u32 v1, v0, 5, s{S_T}")
    p(f"s_cmp_lg_u32 s{S_C}, 0")
    p("s_cbranch_scc1 L_p1")
    p("v_lshrrev_b32 v3, 5, v0")
    p("v_mul_u32_u24 v3, 0x2a40, v3")
    p("v_and_b32 v2, 31, v0")
    p("v_lshl_add_u32 v3, v2, 1, v3")
    p(f"s_mul_i32 s{S_T}, s{S_FB}, 52")
    p(f"s_add_u32 s{S_T}, s{S_T}, 35152")
    for u in range(16):
        if u and u % 4 == 0:
            p(f"s_add_u32 s{S_T}, s{S_T}, {(4 if u != 8 else 12)*1352}")
        p(f"buffer_load_ushort v{VV+u}, v3, s[{S_WCIN}:{S_WCIN+3}], s{S_T} offen offset:{1352*(u % 4)}")
    p("s_branch L_p01")
    p.label("L_p1")
    p(f"s_mul_i32 s{S_T}, s{S_FB}, 1352")
    p(f"s_mov_b32 m0, {P_W1}")
    p("s_nop 0")
    for u in range(2):
        p(f"buffer_load_dwordx4 v{V_L}, s[{S_WCIN}:{S_WCIN+3}], s{S_T} offen offset:{1024*u} lds")
    p.label("L_p01")
    p(f"global_load_dwordx4 v[{TBL}:{TBL+3}], v1, s[{S_PC}:{S_PC+1}]")
    p(f"global_load_dwordx4 v[{TBL+4}:{TBL+7}], v1, s[{S_PC}:{S_PC+1}] offset:16")
    p("s_branch L_pw3")
    p.label("L_p23")
    p(f"s_cmp_lg_u32 s{S_C}, 3")
    p("s_cbranch_scc1 L_pw3")
    p("v_lshlrev_b32 v1, 2, v0")
    p(f"buffer_load_dword v27, v1, s[{S_WCO}:{S_WCO+3}], 0 offen offset:52")
    def clears(skip):
        for r in range(4): p(f"v_mov_b32 v{4+r}, -1")
        p(f"s_mul_i32 s{S_T}, s{S_FB}, {BLK}")
        p(f"s_add_u32 s{S_T}, s{S_T}, {WS_W}")
        p(f"buffer_store_dwordx4 v[4:7], v{V_L}, s[{S_WS}:{S_WS+3}], s{S_T} offen sc1")
        p("s_mov_b32 exec_hi, 0xff")
        p(f"buffer_store_dwordx4 v[4:7], v{V_L}, s[{S_WS}:{S_WS+3}], s{S_T} offen offset:1024 sc1")
        p("s_mov_b32 exec_hi, -1")
        p(f"s_cmp_ge_u32 s{S_FB}, 16")
        p(f"s_cbranch_scc1 {skip}")
        p(f"s_lshl_b32 s{S_T}, s{S_FB}, 13")
        p(f"s_add_u32 s{S_T+1}, s{S_T}, 0x1000")
        for u in range(8):
            p(f"buffer_store_dwordx4 v[4:7], v{V_L}, s[{S_WS}:{S_WS+3}], s{S_T+u//4} offen offset:{1024*(u % 4)} sc1")
    if cfg.clrpos == 0: clears("L_pw3")
    p.label("L_pw3")
    p("v_mov_b32 v2, 0")
    p("v_mov_b32 v3, 0")
    p(f"s_lshl_b32 s{S_T}, s{S_C}, 9")
    p(f"s_add_u32 s{S_T}, s{S_T}, {P_M3T}")
    p(f"v_lshl_add_u32 v1, v0, 3, s{S_T}")
    p("ds_write_b64 v1, v[2:3]")
    p(f"v_add_u32 v1, {P_Z - CO}, v{V_C}")
    p("ds_write_b32 v1, v2")
    p.label("L_cbar")
    if cfg.pfcode:
        sk = L("nopf")
        p(f"s_cmp_lg_u32 s{S_C}, 2")
        p(f"s_cbranch_scc1 {sk}")
        p(f"s_lshr_b32 s{S_T}, s2, 4")
        p(f"s_mul_i32 s{S_T}, s{S_T}, 2560")
        p(f"v_add_u32 v2, s{S_T}, v160")
        p(f"v_min_u32 v2, gather_table-L_pc+4092, v2")
        p("s_mov_b64 exec, 0xfffff")
        p(f"global_load_dword v161, v2, s[{S_PC}:{S_PC+1}]")
        p("s_mov_b64 exec, -1")
        p.label(sk)
    p("v_mov_b32 v2, 0")
    p(f"ds_write_b32 v{V_C}, v2")
    p.wait0(lg=True)
    p("s_barrier")
    stamp(1)
    p(f"s_cmp_lt_u32 s{S_FB}, 26")
    p("s_cbranch_scc1 L_prep")
    cinit_loads()
    p("s_waitcnt vmcnt(0)")
    p("s_branch L_setup")
    p.label("L_prep")
    if cfg.pdelay:
        w3_dma()
        arrive(C_PI)
    if cfg.clrpos:
        p(f"s_cmp_lg_u32 s{S_C}, 3")
        p("s_cbranch_scc1 L_nc")
        clears("L_nc")
        p("s_nop 0")
        p.label("L_nc")
    p("v_bfe_u32 v1, v0, 2, 2")
    p("v_lshrrev_b32 v4, 4, v0")
    p("v_lshl_add_u32 v4, v4, 3, v1")
    p("v_add_u32 v5, 4, v4")
    p("v_min_u32 v4, 25, v4")
    p("v_min_u32 v5, 25, v5")
    p("v_and_b32 v6, 3, v0")
    p(f"s_mul_i32 s{S_T}, s{S_C}, 384")
    p(f"s_add_u32 s{S_T}, s{S_T}, {P_W3}")
    p(f"v_lshl_add_u32 v6, v6, 3, s{S_T}")
    p(f"s_movk_i32 s{S_T+1}, 1352")
    p(f"v_mad_u32_u24 v2, v4, s{S_T+1}, v6")
    p(f"v_mad_u32_u24 v3, v5, s{S_T+1}, v6")
    p(f"s_mul_i32 s{S_T}, s{S_C}, 192")
    p(f"s_movk_i32 s{S_T+1}, -1662")
    p(f"v_mov_b32 v7, {P_DUM}")
    for u in range(3):
        p(f"v_add_u32 v4, s{S_T}, v0")
        if u < 2: p(f"s_add_u32 s{S_T}, s{S_T}, 64")
        p("v_mul_u32_u24 v5, 2521, v4")
        p("v_lshrrev_b32 v5, 16, v5")
        p("v_cmp_gt_u32 vcc, 0x2a4, v4")
        p("v_lshlrev_b32 v4, 6, v4")
        p(f"v_mad_i32_i24 v4, v5, s{S_T+1}, v4")
        p(f"v_add_u32 v4, {P_M3T}, v4")
        p(f"v_cndmask_b32 v{8+u}, v7, v4, vcc")
    for q in range(4): p(f"v_cmp_eq_u32 s[{S_T+2*q}:{S_T+2*q+1}], {q}, v1")
    p(f"v_add_u32 v4, {P_M3T + 26*64 - CO}, v{V_C}")
    if cfg.clrpos:
        p(f"s_cmp_lg_u32 s{S_C}, 3")
        p("s_cbranch_scc1 L_w0")
        p(f"s_cmp_ge_u32 s{S_FB}, 16")
        p("s_cbranch_scc1 L_w2")
        p("s_waitcnt vmcnt(10)")
        p("s_branch L_w3")
        p.label("L_w2")
        p("s_waitcnt vmcnt(2)")
        p.label("L_w3")
        stamp(10)
        p("s_mov_b64 exec, 0x1fff")
        p("ds_write_b32 v4, v27")
        p("s_waitcnt lgkmcnt(0)")
        p("s_branch L_not3")
        p.label("L_w0")
        p.wait0(vm=True)
        stamp(10)
    else:
        p.wait0(vm=True)
        stamp(10)
        p(f"s_cmp_lg_u32 s{S_C}, 3")
        p("s_cbranch_scc1 L_not3")
        p("s_mov_b64 exec, 0x1fff")
        p("ds_write_b32 v4, v27")
        p("v_mov_b32 v4, 0")
        p("s_mov_b64 exec, 1")
        p(f"global_atomic_add v27, v4, v{V_ONE}, s[{S_DBG}:{S_DBG+1}] sc0 sc1")
        p("s_waitcnt lgkmcnt(0)")
    p.label("L_not3")
    arrive(C_PA)
    for q in range(4):
        for r in range(4): p(f"v_cndmask_b32 v{AQ+4*q+r}, 0, v{W3A+r}, s[{S_T+2*q}:{S_T+2*q+1}]")
    check(C_PA, 4)
    stamp(9)
    for T in range(12):
        p.lds(f"ds_read_b64_tr_b16 v[{MB+4*T}:{MB+4*T+1}], v2 offset:{32*T}", f"m{T}")
        p.lds(f"ds_read_b64_tr_b16 v[{MB+4*T+2}:{MB+4*T+3}], v3 offset:{32*T}", f"m{T}")
        if T >= 4:
            U = T - 4; u, q = divmod(U, 4)
            p.wait(lg=f"m{U}")
            cc = "0" if q == 0 else f"v[{12+4*u}:{15+4*u}]"
            p(f"v_mfma_f32_16x16x32_bf16 v[{12+4*u}:{15+4*u}], v[{AQ+4*q}:{AQ+4*q+3}], v[{MB+4*U}:{MB+4*U+3}], {cc}")
    for U in range(8, 12):
        u, q = divmod(U, 4)
        p.wait(lg=f"m{U}")
        cc = "0" if q == 0 else f"v[{12+4*u}:{15+4*u}]"
        p(f"v_mfma_f32_16x16x32_bf16 v[{12+4*u}:{15+4*u}], v[{AQ+4*q}:{AQ+4*q+3}], v[{MB+4*U}:{MB+4*U+3}], {cc}")
    for u in range(2):
        p(f"v_cvt_pk_bf16_f32 v{24+u}, v{12+4*u}, v{12+4*u}")
        p(f"ds_write_b16 v{8+u}, v{24+u}")
    p("s_nop 3")
    p(f"v_cvt_pk_bf16_f32 v26, v20, v20")
    p(f"ds_write_b16 v10, v26")
    p.wait0(lg=True)
    arrive(C_PB)
    stamp(11)
    p(f"s_cmp_lt_u32 s{S_C}, 2")
    p("s_cbranch_scc1 L_pg")
    p(f"s_cmp_lg_u32 s{S_C}, 3")
    p("s_cbranch_scc1 L_pdone")
    p("v_lshlrev_b32 v2, 6, v0")
    if cfg.clrpos:
        p("s_waitcnt vmcnt(0)")
        stamp(12)
        p("s_mov_b64 exec, 1")
        p(f"ds_add_u32 v{V_C}, v{V_ONE} offset:{C_CL}")
        p(f"global_atomic_add v27, v2, v{V_ONE}, s[{S_DBG}:{S_DBG+1}] sc0 sc1")
        p("s_mov_b64 exec, -1")
    p("s_waitcnt vmcnt(0)")
    p(f"v_readfirstlane_b32 s{S_T}, v27")
    p(f"s_cmp_lg_u32 s{S_T}, 25")
    p("s_cbranch_scc1 L_pdone")
    p("s_mov_b64 exec, 3")
    p(f"global_store_dword v2, v{V_ONE}, s[{S_DBG}:{S_DBG+1}] offset:128 sc1")
    p("s_mov_b64 exec, -1")
    p("s_branch L_pdone")
    p.label("L_pg")
    p(f"v_mov_b32 v11, {PS}")
    for u in range(8):
        p(f"v_add_u32_sdwa v{GA+2*u}, v11, v{TBL+u} dst_sel:DWORD dst_unused:UNUSED_PAD src0_sel:DWORD src1_sel:WORD_0")
        p(f"v_add_u32_sdwa v{GA+2*u+1}, v11, v{TBL+u} dst_sel:DWORD dst_unused:UNUSED_PAD src0_sel:DWORD src1_sel:WORD_1")
    p("v_lshrrev_b32 v1, 1, v0")
    p("v_and_b32 v2, 1, v0")
    p(f"s_mul_i32 s{S_T}, s{S_FB}, {BLK}")
    p(f"s_add_u32 s{S_T}, s{S_T}, {WS_W}")
    p(f"s_cmp_eq_u32 s{S_C}, 0")
    p("s_cbranch_scc1 L_pT")
    p("v_lshlrev_b32 v1, 2, v1")
    for u in range(16): p(f"v_mov_b32 v{MB+u}, 0")
    for u in range(16): p(f"ds_read_u16_d16_hi v{MB+u}, v{GA+u}")
    p("s_mov_b32 exec_hi, 0xfff")
    p("s_branch L_pfin")
    p.label("L_pT")
    p("v_and_b32 v3, 31, v0")
    p("v_lshrrev_b32 v4, 5, v0")
    p("v_lshlrev_b32 v5, 6, v3")
    p("v_lshl_add_u32 v5, v4, 4, v5")
    p(f"v_add_u32 v5, {P_M3T}, v5")
    for u in range(8):
        p(f"v_lshl_or_b32 v{VF+u}, v{VV+2*u+1}, 16, v{VV+2*u}")
    check(C_PB, 4)
    stamp(12)
    p("ds_read_b128 v[12:15], v5")
    p("ds_read_b128 v[16:19], v5 offset:32")
    p("v_mul_u32_u24 v3, 0x90, v3")
    p("v_lshl_add_u32 v3, v4, 4, v3")
    p(f"v_add_u32 v3, {P_D1}, v3")
    p("s_waitcnt lgkmcnt(1)")
    p(f"v_mfma_f32_32x32x16_bf16 v[{MB}:{MB+15}], v[{VF}:{VF+3}], v[12:15], 0")
    p("s_waitcnt lgkmcnt(0)")
    p(f"v_mfma_f32_32x32x16_bf16 v[{MB}:{MB+15}], v[{VF+4}:{VF+7}], v[16:19], v[{MB}:{MB+15}]")
    p("v_lshl_add_u32 v4, v1, 1, 1")
    p("v_add_u32 v1, 22, v1")
    p("v_min_u32 v1, v1, v4")
    p("v_lshlrev_b32 v1, 1, v1")
    p("s_nop 7")
    for a in range(4): p(f"ds_write_b128 v3, v[{MB+4*a}:{MB+4*a+3}] offset:{32*a}")
    for u in range(16): p(f"ds_read_b32 v{MB+16+u}, v{GA+u}")
    for u in range(16): pass
    p("s_mov_b32 exec_hi, 0xffff")
    p("v_add_lshl_u32 v1, v1, v2, 4")
    p("s_waitcnt lgkmcnt(0)")
    for e in range(8): p(f"v_add_f32 v{MB+2*e}, v{MB+16+2*e}, v{MB+16+2*e+1}")
    p("s_branch L_pst")
    p.label("L_pfin")
    p("v_add_lshl_u32 v1, v1, v2, 4")
    p("s_waitcnt lgkmcnt(0)")
    for e in range(8): p(f"v_add_f32 v{MB+2*e}, v{MB+2*e}, v{MB+2*e+1}")
    p.label("L_pst")
    for e in range(4): p(f"v_cvt_pk_bf16_f32 v{4+e}, v{MB+4*e}, v{MB+4*e+2}")
    for e in range(4): p(f"v_min_u32 v{4+e}, -2, v{4+e}")
    if cfg.clrpos: check(C_CL, 1)
    p(f"buffer_store_dwordx4 v[4:7], v1, s[{S_WS}:{S_WS+3}], s{S_T} offen sc1")
    p(f"v_mov_b32 v8, s{S_C}")
    p("v_lshlrev_b32 v8, 2, v8")
    p("s_mov_b64 exec, 1")
    p(f"buffer_store_dword v{V_ONE}, v8, s[{S_WS}:{S_WS+3}], s{S_T} offen offset:1536 sc1")
    p("s_mov_b64 exec, -1")
    p.label("L_pdone")
    stamp(21)
    cinit_loads()
    p("s_waitcnt vmcnt(0)")
    p("s_branch L_setup")
    p.label("L_xwave")
    S_J, S_XA, S_XB, S_XM, S_TB = S_W, S_T+2, S_T+3, S_T+4, S_T+5
    p(f"s_sub_u32 s{S_J}, s{S_WAVE}, 4")
    p(f"s_lshl3_add_u32 s3, s{S_RG}, s{S_CP}")
    p(f"s_lshr_b32 s{S_FB}, s{S_J}, 1")
    p(f"s_lshl2_add_u32 s3, s{S_FB}, s3")
    p(f"s_mul_i32 s3, s3, 1664")
    p(f"s_and_b32 s{S_X}, s{S_J}, 1")
    p(f"s_mul_i32 s{S_X}, s{S_X}, 832")
    p(f"s_add_u32 s3, s3, s{S_X}")
    p(f"s_mul_i32 s{S_X}, s{S_J}, 832")
    p(f"s_add_u32 m0, s{S_X}, {IX2}")
    p(f"s_lshr_b32 s{S_X}, s2, 6")
    p(f"s_mul_i32 s{S_X}, s{S_X}, 3")
    p(f"s_add_u32 s{S_X}, s{S_X}, s{S_CP}")
    p(f"s_lshl2_add_u32 s{S_X}, s{S_X}, s{S_J}")
    p(f"s_mul_i32 s{S_X}, s{S_X}, {52*128}")
    p(f"s_add_u32 s{S_X}, s{S_X}, {(2496 - 4*52)*128}")
    p.wait0(lg=True)
    p(f"s_mov_b64 s[{S_IDX}:{S_IDX+1}], s[{KA}:{KA+1}]")
    p(f"s_mov_b64 s[{S_W1}:{S_W1+1}], s[{KA+8}:{KA+9}]")
    p("s_mov_b32 exec_hi, 0xfffff")
    p(f"buffer_load_dwordx4 v{V_L}, s[{S_IDX}:{S_IDX+3}], s3 offen lds")
    p("s_mov_b32 exec_hi, -1")
    p(f"s_mov_b64 s[{S_WCO}:{S_WCO+1}], s[{KA+6}:{KA+7}]")
    p(f"s_mov_b64 s[{S_BOUT}:{S_BOUT+1}], s[{KA+14}:{KA+15}]")
    srd(S_TAB, 2, 6400000)
    if cfg.etouch:
        p(f"s_cmp_eq_u32 s{S_CP}, 0")
        p("s_cbranch_scc1 L_noet")
        touch(160, S_X, (1 << 52) - 1)
        p("s_waitcnt vmcnt(1)")
        p.label("L_noet")
    p("v_lshrrev_b32 v1, 4, v0")
    p("v_and_b32 v2, 12, v0")
    p(f"s_mul_i32 s3, s{S_J}, 104")
    p(f"s_add_u32 s3, s3, {IX2}")
    p(f"v_add_u32 v2, s3, v2")
    p(f"s_movk_i32 s{S_X}, 416")
    p(f"v_mad_u32_u24 v3, v1, s{S_X}, v2")
    if cfg.bal:
        p(f"s_cmp_eq_u32 s{S_J}, 3")
        p(f"s_cselect_b32 s{S_X}, 104, 312")
        p(f"s_cselect_b32 s3, {13*104}, {20*104}")
        p(f"v_add_u32 v2, s3, v2")
        p(f"v_mad_u32_u24 v4, v1, s{S_X}, v2")
    else: p("v_add_u32 v4, 0x680, v3")
    p("v_and_b32 v1, 3, v0")
    p("v_lshlrev_b32 v5, 4, v1")
    p("v_bfe_u32 v1, v0, 3, 1")
    p("v_lshl_add_u32 v6, v1, 30, v5")
    p(f"s_mul_i32 s{S_XM}, s{S_J}, 7168")
    p(f"s_lshr_b32 s{S_TB}, s2, 4")
    p(f"s_lshl2_add_u32 s{S_TB}, s{S_TB}, s{S_J}")
    p(f"s_mul_i32 s{S_TB}, s{S_TB}, {46*128}")
    p(f"s_add_u32 s{S_TB}, s{S_TB}, {4992*128}")
    if cfg.pdelay:
        if cfg.etouch:
            p(f"s_cmp_lg_u32 s{S_CP}, 0")
            p("s_cbranch_scc1 L_noet2")
        p("s_waitcnt vmcnt(0)")
        p.label("L_noet2")
        p("s_barrier")
    else:
        p("s_barrier")
        if cfg.etouch:
            p(f"s_cmp_lg_u32 s{S_CP}, 0")
            p("s_cbranch_scc1 L_noet2")
        p("s_waitcnt vmcnt(0)")
        p.label("L_noet2")
    if (cfg.hold or cfg.pdelay) and not cfg.noprep:
        p(f"s_cmp_lg_u32 s{S_CP}, 0")
        p("s_cbranch_scc1 L_nohold")
        p(f"s_cmp_ge_u32 s{S_RG}, 26")
        p("s_cbranch_scc1 L_nohold")
        check(C_PA if cfg.hold else C_PI, 4, sleep=1)
        p.label("L_nohold")
    for u in range(2):
        for Q in range(0, 6, 2): p(f"ds_read2_b32 v[{VT+7*u+u+Q}:{VT+7*u+u+Q+1}], v{3+u} offset0:{4*Q} offset1:{4*Q+4}")
        p(f"ds_read_b32 v{VT+8*u+6}, v{3+u} offset:96")
    stamp(1)
    p.vm.clear()
    assert cfg.xwin < 14 and cfg.pdelay
    p.wait0(lg=True)
    go_done = False
    for Q in range(7):
        for u in range(2):
            n = 2*Q + u
            if n >= cfg.xwin:
                p.wait(vm=f"x{n - cfg.xwin}")
                if n - cfg.xwin == 2*cfg.gon + 1: arrive(C_GO); go_done = True
            p(f"s_add_u32 m0, s{S_XM}, {XO + 4*7168*u + 1024*Q}")
            p(f"v_lshl_add_u32 v{VT+8*u+Q}, v{VT+8*u+Q}, 6, v{6 if Q == 6 else 5}")
            p.vmem(f"buffer_load_dwordx4 v{VT+8*u+Q}, s[{S_TAB}:{S_TAB+3}], 0 offen lds", f"x{n}")
        for u, at in enumerate((cfg.lt0, cfg.lt1)):
            if at == Q and cfg.ltouch:
                touch(160, S_TB, (1 << 46) - 1); p.vm.issue("t")
                p(f"s_add_u32 s{S_TB}, s{S_TB}, {2944*128}")
    def late_touch():
        touch(160, S_TB, (1 << 46) - 1); p.vm.issue("t")
        p(f"s_add_u32 s{S_TB}, s{S_TB}, {2944*128}")
    cinit_loads()
    for _ in range(5): p.vm.issue("ci")
    if not go_done:
        p.wait(vm=f"x{2*cfg.gon+1}")
        arrive(C_GO)
    p.wait(vm="x13")
    arrive(C_XL)
    p.wait(vm="ci")
    for at in (cfg.lt0, cfg.lt1):
        if at == 7 and cfg.ltouch: late_touch()
    if cfg.ltouch and cfg.lt1 == 8: p(f"s_mov_b32 s{S_FB}, s{S_TB}")
    stamp(6)

    p.label("L_setup")
    if cfg.stamps: p(f"s_mov_b32 s{S_ST+27}, 0")
    p(f"s_setprio {cfg.prio_prep}")
    p.vm.clear(); p.lg.clear()
    AX, AT, CI, X0 = 0, 16, 32, 48
    Z = [74, 78]; PT = 82; ZL = 90
    XA = {1: 98, -3: 99, -1: 100}; WA = 101; SM = [102, 103, 104, 105]; MBX = 106; VMB = 110; VBO = 111
    RING = 112; RES = RING + 4*cfg.R
    WT = 112
    assert RES + 4*cfg.NRES <= 256
    NR = 4
    S_N, S_MB, S_O = S_T+7, S_T+9, S_T+11
    S_NR = S_T + 12
    p(f"s_and_b32 s{S_T+3}, s{S_WAVE}, 3")
    p(f"s_lshl_b32 s{S_T+2}, s{S_T+3}, 2")
    p(f"s_lshl_b32 s{S_T}, s{S_T+3}, 8")
    p(f"s_mov_b32 s{S_N}, 4")
    p(f"s_add_u32 s{S_T+2}, s{S_T+2}, 3")
    p(f"s_cmp_lt_u32 s{S_WAVE}, 4")
    p("s_cbranch_scc1 L_rowp")
    p(f"s_add_u32 s{S_T}, s{S_T}, {4*7168}")
    if cfg.bal:
        p(f"s_mov_b32 s{S_N}, 3")
        p(f"s_mul_i32 s{S_T+2}, s{S_T+3}, 3")
        p(f"s_add_u32 s{S_T+2}, s{S_T+2}, 70")
    else: p(f"s_add_u32 s{S_T+2}, s{S_T+2}, 64")
    p.label("L_rowp")
    p(f"s_lshl4_add_u32 s{S_T+2}, s{S_CP}, s{S_T+2}")
    p.label("L_setup2")
    p(f"s_mov_b32 s{S_NR}, s{S_N}")
    p("v_and_b32 v1, 31, v0")
    p("v_lshrrev_b32 v2, 5, v0")
    p(f"v_lshl_add_u32 v3, v1, 1, s{S_T}")
    p(f"v_lshl_add_u32 v{XA[1]}, v2, 6, v3")
    p("v_mul_u32_u24 v4, 0xc0, v2")
    p(f"v_sub_u32 v{XA[-3]}, v3, v4")
    p("v_lshlrev_b32 v4, 6, v2")
    p(f"v_sub_u32 v{XA[-1]}, v3, v4")
    p("v_mul_u32_u24 v4, 0x210, v2")
    p("v_lshl_add_u32 v4, v1, 4, v4")
    p(f"v_add_u32 v{WA}, {WO}, v4")
    for r in range(26): p(f"v_mov_b32 v{X0+r}, 0")
    for a in range(3):
        for h in range(2):
            p(f"v_lshlrev_b32 v{CI+4*a+2*h}, 16, v{CRAW+2*a+h}")
            p(f"v_and_b32 v{CI+4*a+2*h+1}, 0xffff0000, v{CRAW+2*a+h}")
    p(f"v_lshlrev_b32 v{CI+12}, 16, v{CRAW+6}")
    for r in range(13, 16): p(f"v_mov_b32 v{CI+r}, 0")
    p(f"v_lshlrev_b32 v{VBO}, 16, v{CRAW+7}")
    p("v_lshrrev_b32 v1, 3, v0")
    p("v_min_u32 v3, 1, v1")
    p("v_lshlrev_b32 v2, 9, v0")
    p(f"v_lshl_add_u32 v{VMB}, v3, 30, v2")
    p(f"s_lshl_b32 s{S_T+1}, s{S_RG}, 7")
    p(f"s_add_u32 s{S_T+1}, s{S_T+1}, s{S_T+2}")
    p(f"s_lshl_b32 s{S_O}, s{S_T+1}, 1")
    p(f"s_lshl_b32 s{S_T}, s{S_RG}, 10")
    p(f"s_add_u32 s{S_MB}, s{S_T+2}, s{S_T}")
    p(f"s_sub_u32 s{S_MB}, s{S_MB}, 3")
    p(f"s_lshl_b32 s{S_MB}, s{S_MB}, 2")
    p(f"v_mov_b32 v{ZL+7}, 0")
    p(f"s_cmp_ge_u32 s{S_WAVE}, 4")
    p("s_cbranch_scc1 L_xz")
    p("v_and_b32 v2, 7, v0")
    p(f"v_mul_u32_u24 v3, {BLK}, v1")
    p("v_lshl_add_u32 v3, v2, 4, v3")
    p("v_mul_u32_u24 v4, 0x210, v2")
    p(f"s_mul_i32 s{S_T}, s{S_C}, {24*528}")
    p(f"s_add_u32 s{S_T}, s{S_T}, {WO}")
    p(f"v_add_u32 v4, s{S_T}, v4")
    p("v_lshl_add_u32 v5, v1, 4, v4")
    p("v_cmp_eq_u32 vcc, 1, v1")
    p("v_add_u32 v6, 48, v5")
    p("v_subrev_u32 v7, 48, v5")
    p("v_cndmask_b32 v6, v5, v6, vcc")
    p("v_cmp_eq_u32 vcc, 4, v1")
    p(f"s_cmp_eq_u32 s{S_C}, 3")
    p(f"s_cselect_b32 s{S_T+1}, 4, 0")
    p("v_cndmask_b32 v6, v6, v7, vcc")
    p(f"v_and_b32 v7, s{S_T+1}, v2")
    p("v_lshl_add_u32 v7, v7, 28, v3")
    p("v_and_b32 v8, 31, v0")
    p("v_lshrrev_b32 v9, 5, v0")
    p(f"v_mul_u32_u24 v8, {BLK}, v8")
    p("v_lshl_add_u32 v8, v9, 2, v8")
    p(f"s_mul_i32 s{S_T}, s{S_C}, 384")
    p(f"s_add_u32 s{S_T}, s{S_T}, {WS_W}")
    p(f"s_and_b32 s{S_T+1}, s{S_CP}, {1 if cfg.wrot else 0}")
    p(f"s_mul_i32 s{S_T+2}, s{S_T+1}, 26624")
    for k in range(4):
        p(f"s_xor_b32 s{S_T+3+k}, s{S_T+2}, {26624*(k >> 1)}")
        p(f"s_add_u32 s{S_T+3+k}, s{S_T+3+k}, s{S_T}")
        if k & 1: p(f"s_add_u32 s{S_T+3+k}, s{S_T+3+k}, 13312")
    p(f"s_lshl_b32 s{S_T+2}, s{S_T+1}, 8")
    p(f"s_cmp_eq_u32 s{S_T+1}, 0")
    p("s_cselect_b64 vcc, -1, 0")
    p(f"v_add_u32 v12, s{S_T+2}, v5")
    p(f"s_xor_b32 s{S_T+2}, s{S_T+2}, 0x100")
    p("v_add_u32 v6, 0x180, v6")
    p("v_add_u32 v15, 0x80, v5")
    p(f"v_add_u32 v14, s{S_T+2}, v5")
    p("v_cndmask_b32 v13, v6, v15, vcc")
    p("v_cndmask_b32 v15, v15, v6, vcc")
    p("v_mov_b32 v10, 0")
    check(C_GO, 4, sleep=2)
    stamp(22)
    p(f"s_mov_b32 s{S_T+13}, {WS_W}")
    if cfg.noprep: p("s_branch L_wload")
    if cfg.direct:
        p(f"s_load_dword s{S_X}, s[{S_DBG}:{S_DBG+1}], 192")
        p("s_waitcnt lgkmcnt(0)")
        p(f"s_cmp_lg_u32 s{S_X}, 0")
        p("s_cbranch_scc1 L_wload")
    p(f"s_cmp_lg_u32 s{S_C}, 0")
    p("s_cbranch_scc1 L_pw")
    p.label("L_probe")
    p(f"global_load_dword v11, v10, s[{S_DBG}:{S_DBG+1}] offset:128 sc1")
    p(f"buffer_load_dword v9, v8, s[{S_WS}:{S_WS+3}], s{S_T+13} offen offset:1536 sc1")
    p("s_waitcnt vmcnt(0)")
    p("v_add_u32 v11, -1, v11")
    p("v_max_u32 v9, v9, v11")
    p("v_cmp_eq_u32 vcc, -1, v9")
    p("s_nop 1")
    p("s_cmp_eq_u64 vcc, 0")
    p("s_cbranch_scc1 L_wload")
    p.label("L_retry")
    if cfg.stamps: p(f"s_add_u32 s{S_ST+27}, s{S_ST+27}, 1")
    p(f"s_sleep {cfg.poll_sleep}")
    p(f"s_sub_u32 s{S_SPIN}, s{S_SPIN}, 1")
    p("s_cbranch_scc0 L_probe")
    p("s_endpgm")
    p.label("L_pw")
    check(C_FLAG, 1, sleep=2)
    p("s_branch L_wl2")
    p.label("L_wload")
    arrive(C_FLAG)
    p.label("L_wl2")
    stamp(2)
    for J in range(4):
        for Fi in range(3):
            r = WT + 4*(3*J + Fi)
            p.vmem(f"buffer_load_dwordx4 v[{r}:{r+3}], v{7 if Fi == 2 else 3}, s[{S_WS}:{S_WS+3}], s{S_T+3+J} offen offset:{128*Fi} sc1", f"w{J}{Fi}")
    first = True
    for J in range(4):
        for Fi in range(3):
            r = WT + 4*(3*J + Fi)
            p.wait(vm=f"w{J}{Fi}")
            p(f"ds_write_b128 v{12+J}, v[{r}:{r+3}] offset:{4224*Fi}")
            if first: p(f"v_max_u32 v9, v{r}, v{r+1}")
            else: p(f"v_max3_u32 v9, v{r}, v{r+1}, v9")
            p(f"v_max3_u32 v9, v{r+2}, v{r+3}, v9")
            first = False
    p("v_cmp_eq_u32 vcc, -1, v9")
    p("s_nop 1")
    p("s_cmp_eq_u64 vcc, 0")
    p("s_cbranch_scc0 L_retry")
    p.label("L_xz")
    check(C_XL, 4, sleep=cfg.idle_sleep)
    def x_read(r):
        p.lds(f"ds_read_u16_d16_hi v{X0+r}, v{XA[pi(r)-r]} offset:{1024*(r >> 2) + 64*(r & 3)}", f"x{r}")
    for r in range(26): x_read(r)
    def z_ops(n):
        ops = []
        for e in range(4):
            t = PT + 2*(e % 4)
            (a, b), (c, d) = S[8*n + 2*e], S[8*n + 2*e + 1]
            ops.append(("v", f"v_mul_f32 v{t}, v{X0+a}, v{X0+b}", (a, b)))
            ops.append(("v", f"v_mul_f32 v{t+1}, v{X0+c}, v{X0+d}", (c, d)))
        cv = [("v", f"v_cvt_pk_bf16_f32 v{Z[n % 2]+e}, v{PT+2*e}, v{PT+2*e+1}", ()) for e in range(4)]
        return ops[0:4] + cv[0:1] + ops[4:6] + cv[1:2] + ops[6:8] + cv[2:4]
    for o in z_ops(0):
        p.wait(lg=tuple(f"x{r}" for r in o[2]))
        p(o[1])
    for d in XA.values(): p(f"v_add_u32 v{d}, 0x1c00, v{d}")
    p.wait0(lg=True)
    p("s_barrier")
    if cfg.ltouch and cfg.lt1 == 8:
        p(f"s_cmp_lt_u32 s{S_WAVE}, 4")
        p("s_cbranch_scc1 L_go")
        touch(160, S_FB, (1 << 46) - 1)
    p.label("L_go")
    p("s_setprio 0")
    if cfg.flip:
        p(f"s_cmp_lt_u32 s{S_WAVE}, 4")
        p("s_cbranch_scc1 L_prio")
        p(f"s_setprio 1")
        p.label("L_prio")
    stamp(3)
    order = []
    for n in range(22):
        order.append(("X", n)); order.append(("T", n))
        if n == 14: order.append(("T", 22))
        if n == 18: order.append(("T", 23))
    fr_of = lambda k, n: (2*n if k == "X" else 2*n + 1) if n < 22 else n + 22
    nn = 46 - cfg.NRES
    assert nn % cfg.R == 0
    nonres = [int((u + 0.5)*46/nn) for u in range(nn)]
    wreg = {}; rr = 0
    for k in range(46):
        if k in nonres: wreg[k] = RING + 4*(nonres.index(k) % cfg.R)
        else: wreg[k] = RES + 4*rr; rr += 1
    def w_read(k):
        p.lds(f"ds_read_b128 v[{wreg[k]}:{wreg[k]+3}], v{WA} offset:{1056*fr_of(*order[k])}", f"w{k}")
    for k in range(46):
        if k not in nonres or nonres.index(k) < cfg.R: w_read(k)
    p.wait0(lg=True)
    stamp(5)
    def mfma(k):
        kind, n = order[k]
        zb = Z[n % 2] if n < 22 else ZL + 4*(n - 22)
        acc = AX if kind == "X" else AT
        cc = f"v[{acc}:{acc+15}]"
        if n == 0: cc = "0" if kind == "X" else f"v[{CI}:{CI+15}]"
        return f"v_mfma_f32_32x32x16_bf16 v[{acc}:{acc+15}], v[{wreg[k]}:{wreg[k]+3}], v[{zb}:{zb+3}], {cc}"
    lin_ops = []
    for u in range(8):
        a = LIN[min(2*u, 12)]; b = LIN[min(2*u + 1, 12)]
        lin_ops.append(("v", f"v_cvt_pk_bf16_f32 v{ZL+u}, v{X0+a}, v{X0+b}", (a, b)))
    def body(emit_mb):
        groups = [z_ops(n) for n in range(1, 22)] + [z_ops(0)]
        groups[10] = lin_ops[:7] + groups[10]
        flat = [(g, o) for g, ops in enumerate(groups) for o in ops]
        lastuse = {}
        for i, (g, o) in enumerate(flat):
            if g < 21:
                for r in o[2]: lastuse[r] = i
        for r in range(26): lastuse.setdefault(r, -1)
        for g, ops in enumerate(groups):
            mf = [kk for kk in range(46) if order[kk] in (("X", g), ("T", g))]
            if g == 14: mf.append(order.index(("T", 22)))
            if g == 18: mf.append(order.index(("T", 23)))
            items = []
            base = sum(len(x) for x in groups[:g])
            if g == 0:
                for r in range(26):
                    if lastuse[r] == -1: items.append(("x", r))
            for i, o in enumerate(ops):
                items.append(o)
                for r in range(26):
                    if lastuse[r] == base + i: items.append(("x", r))
            if g == 21:
                pos = [0, 0]
            else:
                n_it = len(items)
                pos = [2 + (j*n_it)//len(mf) for j in range(len(mf))]
            j = 0
            for i, it in enumerate(items + [None]):
                while j < len(mf) and pos[j] <= i:
                    kk = mf[j]
                    if g == 21 and j == 0: p("s_nop 1")
                    p.wait(lg=f"w{kk}")
                    p(mfma(kk))
                    if kk in nonres:
                        w_read(nonres[(nonres.index(kk) + cfg.R) % nn])
                    j += 1
                if it is None: break
                if it[0] == "x": x_read(it[1])
                else:
                    p.wait(lg=tuple(f"x{r}" for r in it[2]))
                    p(it[1])
            if g == 15: emit_mb()
        for k in range(NR - 1): p(f"v_mov_b32 v{SM[k]}, v{SM[k+1]}")
        for d in XA.values(): p(f"v_add_u32 v{d}, 0x1c00, v{d}")
        s0 = SM[NR-1]
        p(f"v_mul_f32 v{s0}, v{AX}, v{AT}")
        p(f"v_mul_f32 v{PT}, v{AX+1}, v{AT+1}")
        for r in range(2, 13):
            p(f"v_fmac_f32 v{s0 if r % 2 == 0 else PT}, v{AX+r}, v{AT+r}")
        p(f"s_sub_u32 s{S_N}, s{S_N}, 1")
        p(f"v_add_f32 v{s0}, v{s0}, v{PT}")
    def mb_loads():
        p(f"buffer_load_dwordx{NR} v[{MBX}:{MBX+NR-1}], v{VMB}, s[{S_WS}:{S_WS+3}], s{S_MB} offen sc1")
    def emit_mb():
        sk = L("nomb")
        p(f"s_cmp_lg_u32 s{S_N}, 1")
        p(f"s_cbranch_scc1 {sk}")
        mb_loads()
        p.label(sk)
    save = p.L; p.L = []
    body(lambda: None)
    st1 = list(p.lg.q)
    p.L = save
    p(".p2align 3")
    p.label("L_row")
    body(emit_mb)
    assert st1 == p.lg.q
    if cfg.stamps in (1, 2):
        for i in range(3): p(f"s_mov_b32 s{S_ST+23+i}, s{S_ST+24+i}")
        stamp(26)
    if cfg.flip:
        p(f"s_cmp_lg_u32 s{S_N}, {4 - cfg.flip}")
        p("s_cbranch_scc1 L_noflip")
        p("s_setprio 0")
        p.label("L_noflip")
    p(f"s_cmp_lg_u32 s{S_N}, 0")
    p("s_cbranch_scc1 L_row")
    p.label("L_mbw")
    p("s_waitcnt vmcnt(0)")
    if NR == 4:
        p(f"v_max3_u32 v1, v{MBX}, v{MBX+1}, v{MBX+2}")
        p(f"v_max_u32 v1, v1, v{MBX+3}")
    else: p(f"v_max_u32 v1, v{MBX}, v{MBX+1}")
    p("v_cmp_eq_u32 vcc, -1, v1")
    p("s_nop 1")
    p("s_cmp_eq_u64 vcc, 0")
    p("s_cbranch_scc1 L_mbok")
    p("s_sleep 1")
    mb_loads()
    p(f"s_sub_u32 s{S_SPIN}, s{S_SPIN}, 1")
    p("s_cbranch_scc0 L_mbw")
    p("s_endpgm")
    p.label("L_mbok")
    for k in range(NR): p(f"v_add_f32 v{SM[k]}, v{SM[k]}, v{MBX+k}")
    for ctl in ("quad_perm:[1,0,3,2] row_mask:0xf", "quad_perm:[2,3,0,1] row_mask:0xf", "row_half_mirror row_mask:0xf",
                "row_mirror row_mask:0xf", "row_bcast:15 row_mask:0xa", "row_bcast:31 row_mask:0xc"):
        if NR == 2: p("s_nop 0")
        for k in range(NR): p(f"v_add_f32_dpp v{SM[k]}, v{SM[k]}, v{SM[k]} {ctl} bank_mask:0xf")
    for k in range(NR): p(f"v_add_f32 v{SM[k]}, v{SM[k]}, v{VBO}")
    p(f"v_cvt_pk_bf16_f32 v2, v{SM[0]}, v{SM[1]}")
    p(f"v_cvt_pk_bf16_f32 v3, v{SM[2]}, v{SM[3]}")
    p(f"v_mov_b32 v1, s{S_O}")
    p("s_mov_b32 exec_lo, 0")
    p("s_mov_b32 exec_hi, 0x80000000")
    if cfg.bal:
        p(f"s_cmp_eq_u32 s{S_NR}, 4")
        p("s_cbranch_scc1 L_st4")
        p(f"global_store_short_d16_hi v1, v3, s[{S_OUT}:{S_OUT+1}]")
        p(f"s_cmp_eq_u32 s{S_NR}, 1")
        p("s_cbranch_scc1 L_std")
        p(f"global_store_short v1, v3, s[{S_OUT}:{S_OUT+1}] offset:-2")
        p(f"global_store_short_d16_hi v1, v2, s[{S_OUT}:{S_OUT+1}] offset:-4")
        p("s_branch L_std")
        p.label("L_st4")
    p(f"global_store_dwordx2 v1, v[2:3], s[{S_OUT}:{S_OUT+1}] offset:-6")
    p.label("L_std")
    stamps_out()
    p.label("L_end")
    p("s_endpgm")

    p.vm.q = dnn_vm; p.lg.clear()
    p(".p2align 6")
    p.label("L_dnn")
    ACC = lambda t, q: 8*t + 4*q
    BF = lambda t: 56 + 4*t
    AR = lambda f, q: 84 + 8*(f % 2) + 4*q
    IDX = lambda f: 100 + f
    VO = lambda u: 128 + u
    V_B, V_A, V_CH, V_LANE, V_G8 = [130, 131, 132], [133, 134, 135], 136, 137, 138
    RAW = 140; RAW2 = 200
    S_SB, S_M0, S_AM = S_T+2, S_T+3, S_T+4
    if cfg.probe:
        p("s_cmp_ge_u32 s2, 8")
        p("s_cbranch_scc1 L_pr1")
        p("s_lshl_b32 s90, s2, 2")
        p("v_mov_b32 v1, s90")
        p("v_mov_b32 v2, s96")
        p(f"global_store_dword v1, v2, s[{S_DBG}:{S_DBG+1}] offset:8 sc1")
        p("s_waitcnt vmcnt(0)")
        p.label("L_pr1")
    srd(S_B1, 10, 1664)
    srd(S_TAB, 2, 6400000)
    srd(S_W2, 12, 1664)
    srd(S_WS, None, WS_END)
    stamp(10)
    p(f"s_mov_b32 s{S_SPIN}, 0x40000")
    p(f"s_mul_i32 s{S_COL}, s{S_CP}, 416")
    S_M1, S_WR = S_T+5, S_T+6
    p(f"s_mov_b32 s{S_SB}, s{S_COL}")
    p(f"s_and_b32 s{S_WR}, s{S_WAVE}, 3")
    p(f"s_lshl_b32 s{S_T}, s{S_WAVE}, 1")
    p(f"s_sub_u32 s{S_T}, s{S_T}, 4")
    p(f"s_add_u32 s{S_T+1}, s{S_T}, 1")
    p(f"s_cmp_lt_u32 s{S_WAVE}, 4")
    p(f"s_cselect_b32 s{S_M0}, s{S_WAVE}, s{S_T}")
    p(f"s_cselect_b32 s{S_M1}, 12, s{S_T+1}")
    p(f"s_lshl_b32 s{S_M0}, s{S_M0}, 10")
    p(f"s_lshl_b32 s{S_M1}, s{S_M1}, 10")
    p(f"s_lshl_b32 s{S_AM}, s{S_WAVE}, 10")
    p(f"s_add_u32 s{S_AM}, s{S_AM}, {BSZ}")
    p(f"s_lshr_b32 s{S_T}, s{S_WAVE}, 2")
    p(f"s_mul_i32 s{S_T}, s{S_T}, 224")
    p(f"s_add_u32 s{S_COL}, s{S_COL}, s{S_T}")
    p(f"s_movk_i32 s{S_T+1}, 1248")
    p(f"s_movk_i32 s{S_T+7}, 6656")
    for u in range(2):
        p(f"v_add_u32 v3, s{(S_M0, S_M1)[u]}, v{V_L}")
        p("v_lshlrev_b32 v4, 4, v3")
        p("v_mul_hi_u32_u24 v4, 0x9d89e, v4")
        p("v_bfe_u32 v5, v4, 2, 1")
        p("v_bfe_i32 v6, v4, 3, 1")
        p("v_add_u32 v5, v5, v6")
        p(f"v_mad_i32_i24 v5, v5, s{S_T+7}, v3")
        p(f"v_mad_u32_u24 v{VO(u)}, v4, s{S_T+1}, v5")
    p("v_lshrrev_b32 v1, 4, v0")
    p(f"s_add_u32 s{S_T+1}, s{S_T}, {IDXO}")
    p(f"v_lshl_add_u32 v{V_G8}, v1, 3, s{S_T+1}")
    p("v_lshrrev_b32 v2, 2, v0")
    p(f"v_mul_u32_u24 v2, 104, v2")
    p(f"s_add_u32 s{S_W}, s{S_W}, {IDXO}")
    p(f"v_add_u32 v7, s{S_W}, v2")
    p("v_lshrrev_b32 v2, 5, v0")
    p("v_mul_u32_u24 v3, 3, v2")
    p("v_xor_b32 v3, v3, v0")
    p("v_and_b32 v3, 3, v3")
    p(f"v_lshlrev_b32 v{V_CH}, 4, v3")
    p("v_bfe_u32 v3, v0, 3, 1")
    p("v_mul_u32_u24 v3, 3, v3")
    p("v_xor_b32 v3, v3, v1")
    p("v_and_b32 v4, 15, v0")
    p("v_lshlrev_b32 v4, 6, v4")
    p("v_lshl_add_u32 v3, v3, 4, v4")
    p(f"s_and_b32 s{S_T+1}, s{S_WAVE}, 3")
    p(f"s_lshl_b32 s{S_T+1}, s{S_T+1}, 11")
    p(f"s_add_u32 s{S_T+1}, s{S_T+1}, {BSZ}")
    p(f"v_add_u32 v{V_A[0]}, s{S_T+1}, v3")
    p("v_bfe_u32 v3, v0, 2, 3")
    p("v_lshl_add_u32 v2, v2, 4, v3")
    p("v_mul_u32_u24 v2, 0x1a0, v2")
    p("v_and_b32 v3, 3, v0")
    p("v_lshl_add_u32 v2, v3, 3, v2")
    p(f"v_add_u32 v{V_B[0]}, s{S_T}, v2")
    for k in (1, 2):
        p(f"v_add_u32 v{V_A[k]}, {3*k*SLOT}, v{V_A[0]}")
        p(f"v_add_u32 v{V_B[k]}, {3*k*SLOT}, v{V_B[0]}")
    p(f"v_mov_b32 v{V_LANE}, v0")
    p.wait(vm="idx")
    stamp(1)
    for m in range(6):
        p.lds(f"ds_read2_b64 v[{100+4*m}:{103+4*m}], v7 offset0:{2*m} offset1:{2*m+1}", f"ix{m}")
    p.lds("ds_read_b64 v[124:125], v7 offset:96", "ix6")
    def a_dma(f):
        p.wait(lg=f"ix{f >> 2}")
        p(f"s_add_u32 m0, s{S_AM}, {(f % RB)*SLOT}")
        p(f"v_lshl_add_u32 v{IDX(f)}, v{IDX(f)}, 6, v{V_CH}")
        p.vmem(f"buffer_load_dwordx4 v{IDX(f)}, s[{S_TAB}:{S_TAB+3}], 0 offen lds", f"F{f}")
    def b_dma(f, u, T):
        if u == 1:
            if f: p(f"s_add_u32 s{S_SB}, s{S_SB}, 53248")
            sk = L("np")
            if T != 6:
                if T == 0:
                    p(f"s_cmp_ge_u32 s{S_WAVE}, 4")
                    p(f"s_cselect_b32 s{S_X}, {f & 3}, s{S_WR}")
                    p(f"s_cmp_lg_u32 s{S_X}, {f & 3}")
                else: p(f"s_cmp_lg_u32 s{S_WR}, {f & 3}")
                p(f"s_cbranch_scc1 {sk}")
            p(f"s_add_u32 m0, s{S_M1}, {(f % RB)*SLOT}")
            p("s_nop 0")
            p(f"buffer_load_dwordx4 v{VO(1)}, s[{S_W1}:{S_W1+3}], s{S_SB} offen lds")
            if T == 6: p.vm.issue(f"F{f}")
            else: p.label(sk)
        else:
            p(f"s_add_u32 m0, s{S_M0}, {(f % RB)*SLOT}")
            p("s_nop 0")
            p.vmem(f"buffer_load_dwordx4 v{VO(0)}, s[{S_W1}:{S_W1+3}], s{S_SB} offen lds", f"F{f}")
    def fill(f, T): a_dma(f); b_dma(f, 1, T); b_dma(f, 0, T)
    BWO = IDXO
    p(f"s_cmp_ge_u32 s{S_WAVE}, 2")
    p("s_cbranch_scc1 L_nobw")
    p(f"s_mul_i32 s{S_X}, s{S_CP}, 416")
    p(f"s_cmp_eq_u32 s{S_WAVE}, 0")
    p(f"s_cselect_b64 s[{S_W2}:{S_W2+1}], s[{S_B1}:{S_B1+1}], s[{S_W2}:{S_W2+1}]")
    p(f"s_mov_b32 m0, s{S_W}")
    p("s_mov_b64 exec, 0xfffffff")
    p("s_waitcnt lgkmcnt(0)")
    p(f"buffer_load_dwordx4 v{V_L}, s[{S_W2}:{S_W2+3}], s{S_X} offen lds")
    p("s_mov_b64 exec, -1")
    p.label("L_nobw")
    def lo(f): return (f % RB)//3, ((f % RB) % 3)*SLOT
    def b_read1(f, t, r2):
        k, off = lo(f)
        p.lds(f"ds_read_b64_tr_b16 v[{BF(t)+2*r2}:{BF(t)+2*r2+1}], v{V_B[k]} offset:{off + 32*t + 3328*r2}", f"b{f}_{t}")
    def a_read(f):
        k, off = lo(f)
        for q in range(2):
            p.lds(f"ds_read_b128 v[{AR(f, q)}:{AR(f, q)+3}], v{V_A[k]} offset:{off + 1024*q}", f"a{f}")
    p(f"s_cmp_ge_u32 s{S_WAVE}, 4")
    p("s_cbranch_scc1 L_dnn6")
    W2R = lambda t, r: 170 + 4*t + r
    def w2_unpack():
        return [x for t in range(7) for h in range(2) for x in
                (f"v_lshlrev_b32 v{W2R(t,2*h)}, 16, v{RAW2+2*t+h}", f"v_and_b32 v{W2R(t,2*h+1)}, 0xffff0000, v{RAW2+2*t+h}")]
    vm0, lg0 = list(p.vm.q), list(p.lg.q)
    def dnn_main(T):
        p.vm.q, p.lg.q = list(vm0), list(lg0)
        fill(0, T)
        fill(1, T)
        p.wait(vm="F0")
        p("s_barrier")
        stamp(12)
        for t in range(T):
            p.lds(f"ds_read_b64 v[{RAW+2*t}:{RAW+2*t+1}], v{V_G8} offset:{32*t}", "bias")
        a_read(0)
        for t in range(T):
            for r2 in range(2): b_read1(0, t, r2)
        p.wait(lg="bias")
        for t in range(T):
            for h in range(2):
                p(f"v_lshlrev_b32 v{ACC(t,0)+2*h}, 16, v{RAW+2*t+h}")
                p(f"v_and_b32 v{ACC(t,0)+2*h+1}, 0xffff0000, v{RAW+2*t+h}")
        for f in range(2, cfg.look): fill(f, T)
        p.wait(vm="F1")
        p("s_barrier")
        if T == 6 and cfg.prio_hi: p(f"s_setprio {cfg.prio_hi}")
        stamp(2)
        nxt = cfg.look
        w2ops = w2_unpack()
        for f in range(26):
            todo = []
            for _ in range(2 if cfg.catch0 <= f < cfg.catch0 + cfg.catch else 1):
                if nxt < 26 and nxt <= f + RB - 1:
                    todo += [(a_dma, (nxt,)), (b_dma, (nxt, 1, T)), (b_dma, (nxt, 0, T))]; nxt += 1
            n_it = len(todo)
            if f < cfg.early: at = [-1]*n_it
            elif cfg.dpos == 0: at = list(range(n_it))
            elif cfg.dpos == 1: at = [-1]*n_it if T == 7 else [T-1]*n_it
            elif cfg.dpos == 2: at = [(2*i + (T == 6)) if n_it <= 3 else i for i in range(n_it)]
            elif cfg.dpos == 3: at = [0]*n_it if T == 7 else [T-1]*n_it
            elif cfg.dpos == 4: at = [T-1]*n_it if T == 7 else [-1]*n_it
            elif cfg.dpos == 5: at = [i//(2 if n_it > 3 else 1) for i in range(n_it)] if T == 7 else [3 + i//(2 if n_it > 3 else 1) for i in range(n_it)]
            def drain(t):
                while todo and at[0] <= t:
                    at.pop(0); fn, ar = todo.pop(0); fn(*ar)
            drain(-1)
            for t in range(T):
                p.wait(lg=(f"b{f}_{t}", f"a{f}"))
                b = f"v[{BF(t)}:{BF(t)+3}]"
                a0, a1 = ACC(t, 0), ACC(t, 1)
                c1 = a0 if f == 0 else a1
                p(f"v_mfma_f32_16x16x32_bf16 v[{a1}:{a1+3}], {b}, v[{AR(f,1)}:{AR(f,1)+3}], v[{c1}:{c1+3}]")
                if t and f < 25: b_read1(f+1, t-1, 1)
                elif t == 0 and f: b_read1(f, T-1, 1)
                p(f"v_mfma_f32_16x16x32_bf16 v[{a0}:{a0+3}], {b}, v[{AR(f,0)}:{AR(f,0)+3}], v[{a0}:{a0+3}]")
                if f < 25: b_read1(f+1, t, 0)
                if t == 1 and f < 25: a_read(f + 1)
                drain(t)
                if f == 21:
                    for tt in ([t] if t < T - 1 else range(t, 7)):
                        p.lds(f"ds_read_b64 v[{RAW2+2*tt}:{RAW2+2*tt+1}], v{V_G8} offset:{1664 + 32*tt}", "w2")
                if cfg.w2early and f in (23, 24):
                    if f == 23 and t == 0: p.wait(lg="w2")
                    for _ in range(3):
                        if w2ops: p(w2ops.pop(0))
            assert not todo
            if f < 24:
                p.wait(vm=f"F{f+2}")
                p("s_barrier")
            if f % 4 == 0: stamp(14 + f//4)
        assert nxt == 26 and not (cfg.w2early and w2ops)
    dnn_main(7)
    p("s_branch L_gelu")
    p(".p2align 6")
    p.label("L_dnn6")
    dnn_main(6)
    p.label("L_gelu")
    stamp(3)
    p(f"s_load_dword s{S_X}, s[{S_DBG}:{S_DBG+1}], 128")
    if not cfg.w2early:
        p.wait0(vm=True)
        for x in w2_unpack(): p(x)
    k0 = -2.0*math.sqrt(2.0/math.pi)*math.log2(math.e)
    T1, T2, SUM, VC = 56, 64, 92, 72
    P = lambda a: f"v[{a}:{a+1}]"
    for r, c in enumerate((k0*0.044715, k0)):
        for h in range(2): p(f"v_mov_b32 v{VC+2*r+h}, {f2h(c)}")
    for r in range(4): p(f"v_mov_b32 v{SUM+r}, 0")
    for t in range(7):
        if t == 6:
            p(f"s_cmp_ge_u32 s{S_WAVE}, 4")
            p("s_cbranch_scc1 L_gelu6")
        x = ACC(t, 0)
        if cfg.pk:
            for r in range(0, 8, 2): p(f"v_pk_mul_f32 {P(T1+r)}, {P(x+r)}, {P(x+r)}")
            for r in range(0, 8, 2): p(f"v_pk_fma_f32 {P(T1+r)}, {P(T1+r)}, {P(VC)}, {P(VC+2)}")
            for r in range(0, 8, 2): p(f"v_pk_mul_f32 {P(T1+r)}, {P(T1+r)}, {P(x+r)}")
            for r in range(8): p(f"v_exp_f32 v{T1+r}, v{T1+r}")
            for r in range(0, 8, 2): p(f"v_pk_mul_f32 {P(T2+r)}, {P(x+r)}, {P(W2R(t, r & 3))}")
            for r in range(0, 8, 2): p(f"v_pk_add_f32 {P(T1+r)}, {P(T1+r)}, 1.0 op_sel_hi:[1,0]")
            for r in range(8): p(f"v_rcp_f32 v{T1+r}, v{T1+r}")
            for r in (0, 4, 2, 6): p(f"v_pk_fma_f32 {P(SUM+2*(r >> 2))}, {P(T1+r)}, {P(T2+r)}, {P(SUM+2*(r >> 2))}")
        else:
            for r in range(8): p(f"v_mul_f32 v{T1+r}, v{x+r}, v{x+r}")
            for r in range(8): p(f"v_fma_f32 v{T1+r}, v{T1+r}, v{VC}, v{VC+2}")
            for r in range(8): p(f"v_mul_f32 v{T1+r}, v{T1+r}, v{x+r}")
            for r in range(8): p(f"v_exp_f32 v{T1+r}, v{T1+r}")
            for r in range(8): p(f"v_mul_f32 v{T2+r}, v{x+r}, v{W2R(t, r & 3)}")
            for r in range(8): p(f"v_add_f32 v{T1+r}, 1.0, v{T1+r}")
            for r in range(8): p(f"v_rcp_f32 v{T1+r}, v{T1+r}")
            for r in range(8): p(f"v_fmac_f32 v{SUM+2*(r >> 2)+(r & 1)}, v{T1+r}, v{T2+r}")
    p.label("L_gelu6")
    p(f"v_add_f32 v{SUM}, v{SUM}, v{SUM+1}")
    p(f"v_add_f32 v{SUM+2}, v{SUM+2}, v{SUM+3}")
    p(f"v_and_b32 v84, 15, v{V_LANE}")
    p(f"v_lshrrev_b32 v85, 5, v{V_LANE}")
    p(f"v_permlane32_swap_b32 v{SUM}, v{SUM+2}")
    p("v_lshl_add_u32 v84, v85, 4, v84")
    p(f"v_add_f32 v{SUM}, v{SUM}, v{SUM+2}")
    p(f"v_bfe_u32 v85, v{V_LANE}, 4, 1")
    p(f"v_mov_b32 v{SUM+1}, v{SUM}")
    p("v_lshlrev_b32 v84, 2, v84")
    p("v_lshl_add_u32 v84, v85, 30, v84")
    p(f"v_permlane16_swap_b32 v{SUM}, v{SUM+1}")
    p(f"s_lshl2_add_u32 s{S_T}, s{S_RG}, s{S_CP}")
    p(f"v_add_f32 v{SUM}, v{SUM}, v{SUM+1}")
    p(f"s_lshl3_add_u32 s{S_T}, s{S_T}, s{S_WAVE}")
    p(f"s_lshl_b32 s{S_T}, s{S_T}, 7")
    p(f"v_min_u32 v{SUM}, -2, v{SUM}")
    p("s_waitcnt lgkmcnt(0)")
    if cfg.noprep: p("s_branch L_pub")
    p(f"s_cmp_lg_u32 s{S_X}, 0")
    p("s_cbranch_scc1 L_pub")
    p("v_mov_b32 v85, 0")
    p.label("L_dflag")
    p(f"global_load_dword v86, v85, s[{S_DBG}:{S_DBG+1}] offset:128 sc1")
    p("s_waitcnt vmcnt(0)")
    p(f"v_readfirstlane_b32 s{S_X}, v86")
    p(f"s_cmp_lg_u32 s{S_X}, 0")
    p("s_cbranch_scc1 L_pub")
    p("s_sleep 4")
    p(f"s_sub_u32 s{S_SPIN}, s{S_SPIN}, 1")
    p("s_cbranch_scc0 L_dflag")
    p("s_endpgm")
    p.label("L_pub")
    p(f"buffer_store_dword v{SUM}, v84, s[{S_WS}:{S_WS+3}], s{S_T} offen sc1")
    stamp(4)
    if cfg.probe:
        p("s_cmp_lg_u32 s2, 0")
        p("s_cbranch_scc1 L_pr2")
        p(f"v_lshlrev_b32 v1, 2, v{V_LANE}")
        p(f"global_load_dword v2, v1, s[{S_DBG}:{S_DBG+1}] offset:8 sc1")
        p("s_waitcnt vmcnt(0)")
        for i in range(8): p(f"v_readlane_b32 s{80+i}, v2, {i}")
        p("s_mov_b32 s90, s80"); p("s_mov_b32 s91, s80")
        for i in range(1, 8):
            p(f"s_min_u32 s90, s90, s{80+i}"); p(f"s_max_u32 s91, s91, s{80+i}")
        if cfg.probe == 1: p("s_sub_u32 s90, s91, s90")
        else: p(f"s_sub_u32 s90, s{80+cfg.probe-2}, s90")
        p("s_mul_i32 s90, s90, 20")
        p("s_min_u32 s90, s90, 20000")
        p("s_memrealtime s[92:93]"); p("s_waitcnt lgkmcnt(0)")
        p("s_add_u32 s92, s92, s90")
        p.label("L_pr")
        p("s_memrealtime s[94:95]"); p("s_waitcnt lgkmcnt(0)")
        p("s_cmp_lt_u32 s94, s92")
        p("s_cbranch_scc1 L_pr")
        p.label("L_pr2")
    stamps_out()
    p("s_endpgm")

    p(".p2align 6")
    p(".type gather_table,@object")
    p.label("gather_table")
    zt = P_Z - PS
    for role in range(2):
        for lane in range(64):
            s, half = lane >> 1, lane & 1
            ad = []
            for e in range(8):
                pr = slot_pair(s, half, e) if s < (24 if role == 0 else 22) else None
                at = (lambda j, k: P_D1 - PS + k*144 + j*4) if role == 0 else (lambda j, k: P_W1 - PS + (j*26 + k)*2)
                if pr is None: ad += [zt, zt]
                elif pr[1] is None: ad += [at(pr[0], 26), zt]
                elif pr[0] == pr[1] or norm(pr) == (24, 25): ad += [at(*pr), zt]
                else: ad += [at(pr[0], pr[1]), at(pr[1], pr[0])]
            p(".short " + ", ".join(str(a) for a in ad))
    p(".size gather_table, 4096")
    return p

def header():
    return """; xDeepFM (CIN + DNN) forward, one launch, 256 workgroups (S1).
; Kernarg: idx, table, ws_cin, w_cin_out, w_dnn1, b_dnn1, w_dnn2, b_out, out, debug, ws
; @launch grid=(256,1,1) block=(512,1,1) lds=%d
.amdgcn_target "amdgcn-amd-amdhsa--gfx950"
.text
""" % LDS_SIZE
def footer():
    nv = 256
    return f""".section .rodata,"a"
.p2align 6
.amdhsa_kernel {NAME}
  .amdhsa_next_free_vgpr {nv}
  .amdhsa_next_free_sgpr 102
  .amdhsa_accum_offset {nv}
  .amdhsa_group_segment_fixed_size 0
  .amdhsa_kernarg_size 88
  .amdhsa_user_sgpr_count 2
  .amdhsa_user_sgpr_kernarg_segment_ptr 1
  .amdhsa_system_sgpr_workgroup_id_x 1
  .amdhsa_float_denorm_mode_32 3
.end_amdhsa_kernel
"""
if __name__ == "__main__":
    out = sys.argv[1]
    for a in sys.argv[2:]:
        k, v = a.split("=")
        setattr(cfg, k, type(getattr(cfg, k))(int(v)))
    open(out, "w").write(header() + build().text() + footer())
```

```python
import sys, struct, math
from asmlib import *
from slots import *

NAME = "standalone__deep_cross_xdeepfm__recsys_kernel"
class Cfg:
    stamps = 0
    NRES = 31
    R = 3
    prio_prep = 3
    prio_hi = 0
    poll_sleep = 2
    idle_sleep = 1
    gon = 5
    bal = 0
    lt0 = 2
    lt1 = 5
    early = 4
    look = 3
    cmask = 0
    catch0 = 4
    catch = 4
    etouch = 0
    dtouch = 1
    xwin = 3
    pfcode = 1
    flip = 2
    w2early = 1
    dpos = 4
    ltouch = 0
    pk = 1
    ctouch = 1
    wrot = 1
    direct = 1
    probe = 0
    dbench = 0
    nodma = 0
    nobar = 0
    lb = 21
    tailprio = 0
    b2 = 26
    sw = 26
    chk = 3
    barp = 1
    arp = 1
    noprep = 0
    clrpos = 1
    xstart = 0
    xbar = 3
    pdelay = 1
    hold = 0
cfg = Cfg()

LDS_SIZE = 163840
XO = 0
WO = 8*7168
PS = WO + 96*528
P_W3 = PS; P_M3T = PS + 36864; P_D1 = PS + 38912; P_W1 = PS + 43520; P_Z = PS + 45568; P_DUM = PS + 45824
CO = LDS_SIZE - 512
IX2 = PS + 46080
assert P_DUM + 256 <= CO
C_PA, C_PB, C_XL, C_FLAG, C_GO, C_CL, C_PI = 0, 4, 8, 12, 16, 20, 24
RB = 7
BSZ = 13312
SLOT = BSZ + 8192
IDXO = RB*SLOT
assert IDXO + 8*1664 == LDS_SIZE
MBOX = 0; WS_W = 131072; BLK = 1664; WS_END = WS_W + 26*BLK; WS_STAMP = 1 << 20
S_IDX, S_TAB, S_W1, S_WCIN, S_WCO, S_B1, S_W2, S_WS = 4, 8, 12, 16, 20, 24, 28, 32
S_OUT, S_DBG, S_BOUT = 36, 38, 40
S_WAVE, S_RG, S_CP, S_FB, S_COL, S_W = 42, 43, 44, 45, 46, 47
S_PC, S_SPIN, S_X = 48, 50, 51
KA = 52
S_T = 52
S_ST = 70
V_C, V_ONE, V_POLL, V_L = 162, 163, 164, 165
FRM = "0x20000"

def f2h(x): return "0x%08x" % struct.unpack("<I", struct.pack("<f", x))[0]

def build():
    p = Prog()
    lab = [0]
    def L(n):
        lab[0] += 1
        return f"L_{n}_{lab[0]}"
    def stamp(i):
        if cfg.stamps and (cfg.stamps != 3 or i == 8):
            p(f"s_memrealtime s[68:69]" if cfg.stamps != 2 or i == 8 else "s_memtime s[68:69]")
            p.wait0(lg=True)
            if cfg.stamps != 2 or i == 8: p(f"s_mov_b32 s{S_ST+i}, s68")
            else:
                p("s_sub_u32 s68, s68, s100")
                p("s_lshr_b32 s68, s68, 4")
                p(f"s_add_u32 s{S_ST+i}, s68, s{S_ST}")
    def stamps_out():
        if not cfg.stamps: return
        stamp(8)
        p("s_mov_b64 exec, 1")
        p(f"s_lshl4_add_u32 s{S_T}, s2, s{S_WAVE}")
        p(f"s_lshl_b32 s{S_T}, s{S_T}, 7")
        p(f"s_add_u32 s{S_T}, s{S_T}, {WS_STAMP}")
        p(f"v_mov_b32 v1, s{S_T}")
        p("s_memtime s[68:69]")
        p("s_waitcnt lgkmcnt(0)")
        p(f"s_sub_u32 s{S_ST+29}, s68, s100")
        for i in range(30):
            p(f"v_mov_b32 v2, s{S_ST+i}")
            p(f"global_store_dword v1, v2, s[{S_WS}:{S_WS+1}] offset:{4*i}")
    def arrive(*offs):
        p("s_mov_b64 exec, 1")
        for off in offs: p.lds(f"ds_add_u32 v{V_C}, v{V_ONE} offset:{off}", "arr")
        p("s_mov_b64 exec, -1")
    def poll_issue(off):
        p.lds(f"ds_read_b32 v{V_POLL}, v{V_C} offset:{off}", "poll")
    def check(off, target, issued=False, sleep=0):
        ok = L("ok"); sp = L("spin")
        if issued:
            p.wait(lg="poll")
            p(f"v_readfirstlane_b32 s{S_X}, v{V_POLL}")
            p(f"s_cmp_ge_u32 s{S_X}, {target}")
            p(f"s_cbranch_scc1 {ok}")
        p.label(sp)
        if sleep: p(f"s_sleep {sleep}")
        p(f"ds_read_b32 v{V_POLL}, v{V_C} offset:{off}")
        p("s_waitcnt lgkmcnt(0)")
        p(f"v_readfirstlane_b32 s{S_X}, v{V_POLL}")
        p(f"s_sub_u32 s{S_SPIN}, s{S_SPIN}, 1")
        p("s_cbranch_scc1 L_end")
        p(f"s_cmp_ge_u32 s{S_X}, {target}")
        p(f"s_cbranch_scc0 {sp}")
        if not issued: p.lg.clear()
        p.label(ok)
    def srd(s, ka, n):
        if ka is not None: p(f"s_mov_b64 s[{s}:{s+1}], s[{KA+ka}:{KA+ka+1}]")
        p(f"s_mov_b32 s{s+2}, {n}")
        p(f"s_mov_b32 s{s+3}, {FRM}")
    def touch(vaddr, soff, mask):
        p(f"s_mov_b64 exec, {mask}" if mask < (1 << 31) else f"s_mov_b32 exec_hi, {hex(mask >> 32)}")
        p(f"buffer_load_dword v250, v{vaddr}, s[{S_W1}:{S_W1+3}], s{soff} offen")
        p("s_mov_b64 exec, -1")

    def producer_index():
        p(f"s_lshr_b32 s{S_FB}, s2, 6")
        p(f"s_sub_u32 s{S_FB}, s{S_RG}, s{S_FB}")
        p(f"s_sub_u32 s{S_FB}, s{S_FB}, 1")
        p(f"s_and_b32 s{S_X}, s2, 0x37")
        p(f"s_sub_u32 s{S_X}, s{S_X}, 1")
        p(f"s_cmp_lt_u32 s{S_X}, 7")
        p(f"s_cselect_b32 s{S_FB}, s{S_FB}, 99")

    def last_marker(skip):
        p("v_lshlrev_b32 v2, 6, v0")
        p("s_waitcnt vmcnt(0)")
        stamp(12)
        p(f"v_readfirstlane_b32 s{S_X}, v27")
        p("s_mov_b64 exec, 3")
        p(f"s_cmp_lg_u32 s{S_X}, {26 + 32 - 1}")
        p(f"s_cbranch_scc1 {skip}")
        p(f"global_store_dword v2, v{V_ONE}, s[{S_DBG}:{S_DBG+1}] offset:128 sc1")

    p(f".globl {NAME}\n.p2align 8\n.type {NAME},@function")
    p.label(NAME)
    p(f"s_load_dwordx16 s[{KA}:{KA+15}], s[0:1], 0")
    p(f"s_load_dwordx4 s[{S_OUT}:{S_OUT+3}], s[0:1], 64")
    p(f"s_load_dwordx2 s[{S_WS}:{S_WS+1}], s[0:1], 80")
    if cfg.probe: p("s_memrealtime s[96:97]")
    if cfg.stamps:
        p(f"s_memrealtime s[{S_ST}:{S_ST+1}]")
        p(f"s_memtime s[100:101]")
    p("v_lshrrev_b32 v1, 6, v0")
    p("v_and_b32 v0, 63, v0")
    p(f"v_readfirstlane_b32 s{S_WAVE}, v1")
    p("s_cmp_ge_u32 s2, 0x100")
    p("s_cbranch_scc1 L_end")
    p(f"s_and_b32 s3, s2, 7")
    p(f"s_lshr_b32 s{S_RG}, s2, 6")
    p(f"s_lshl3_add_u32 s{S_RG}, s{S_RG}, s3")
    p(f"s_bfe_u32 s{S_CP}, s2, 0x20004")
    p(f"v_lshlrev_b32 v{V_L}, 4, v0")
    p(f"v_lshlrev_b32 v160, 7, v0")
    srd(S_IDX, None, 4096*104)
    srd(S_W1, None, 832*1664)
    p("s_bitcmp1_b32 s2, 3")
    p("s_cbranch_scc1 L_cin")
    p(f"s_lshl3_add_u32 s3, s{S_RG}, s{S_WAVE}")
    p(f"s_mul_i32 s3, s3, 1664")
    p(f"s_mul_i32 s{S_W}, s{S_WAVE}, 1664")
    p(f"s_add_u32 m0, s{S_W}, {IDXO}")
    p(f"s_lshr_b32 s{S_X}, s2, 4")
    p(f"s_lshl3_add_u32 s{S_X}, s{S_X}, s{S_WAVE}")
    p(f"s_mul_i32 s{S_X}, s{S_X}, 2560")
    p.wait0(lg=True)
    p(f"s_mov_b64 s[{S_IDX}:{S_IDX+1}], s[{KA}:{KA+1}]")
    p(f"s_mov_b64 s[{S_W1}:{S_W1+1}], s[{KA+8}:{KA+9}]")
    for n in range(2):
        if n: p("s_mov_b32 exec_hi, 0xff")
        p.vmem(f"buffer_load_dwordx4 v{V_L}, s[{S_IDX}:{S_IDX+3}], s3 offen offset:{1024*n} lds", "idx")
    if not cfg.dtouch: p("s_mov_b32 exec_hi, -1")
    if cfg.dtouch:
        touch(160, S_X, 0xfffff); p.vm.issue("t")
    p("s_branch L_dnn")
    dnn_vm = list(p.vm.q)

    p.vm.clear(); p.lg.clear()
    p.label("L_cin")
    if cfg.dbench: p("s_endpgm")
    S_C = S_WAVE
    W3A, TBL, VV, AQ, VF, GA, MB, VT, CRAW = 28, 32, 40, 56, 72, 80, 96, 170, 152
    srd(S_WCO, None, 156)
    srd(S_WS, None, WS_END)
    p(f"s_mov_b32 s{S_SPIN}, 0x40000")
    p(f"v_lshlrev_b32 v{V_C}, 2, v0")
    p(f"v_add_u32 v{V_C}, {CO}, v{V_C}")
    p(f"v_mov_b32 v{V_ONE}, 1")
    p(f"s_cmp_ge_u32 s{S_WAVE}, 4")
    p("s_cbranch_scc1 L_xwave")
    srd(S_WCIN, None, 105456)
    producer_index()
    if cfg.noprep: p(f"s_mov_b32 s{S_FB}, 99")
    p(f"s_getpc_b64 s[{S_PC}:{S_PC+1}]")
    p.label("L_pc")
    p.wait0(lg=True)
    p(f"s_mov_b64 s[{S_WCIN}:{S_WCIN+1}], s[{KA+4}:{KA+5}]")
    p(f"s_mov_b64 s[{S_W1}:{S_W1+1}], s[{KA+8}:{KA+9}]")
    p(f"s_mov_b64 s[{S_WCO}:{S_WCO+1}], s[{KA+6}:{KA+7}]")
    p(f"s_mov_b64 s[{S_BOUT}:{S_BOUT+1}], s[{KA+14}:{KA+15}]")
    def cinit_loads():
        p(f"v_lshrrev_b32 v8, 5, v0")
        p(f"v_lshlrev_b32 v9, 3, v8")
        p(f"v_lshlrev_b32 v8, 1, v8")
        for a in range(3):
            p(f"buffer_load_dwordx2 v[{CRAW+2*a}:{CRAW+2*a+1}], v9, s[{S_WCO}:{S_WCO+3}], 0 offen offset:{16*a}")
        p(f"buffer_load_ushort v{CRAW+6}, v8, s[{S_WCO}:{S_WCO+3}], 0 offen offset:48")
        p(f"v_mov_b32 v8, 0")
        p(f"global_load_ushort v{CRAW+7}, v8, s[{S_BOUT}:{S_BOUT+1}]")
    p(f"s_lshl2_add_u32 s{S_T+3}, s{S_CP}, s{S_C}")
    p(f"s_cmp_lg_u32 s{S_T+3}, 4")
    p("s_cbranch_scc1 L_nomc")
    for r in range(4): p(f"v_mov_b32 v{4+r}, -1")
    p(f"s_lshl_b32 s{S_T}, s{S_RG}, 12")
    for u in range(4):
        p(f"buffer_store_dwordx4 v[4:7], v{V_L}, s[{S_WS}:{S_WS+3}], s{S_T} offen offset:{1024*u} sc1")
    p.label("L_nomc")
    p(f"s_cmp_ge_u32 s{S_FB}, 26")
    p("s_cbranch_scc1 L_cbar")
    if cfg.prio_prep: p(f"s_setprio {cfg.prio_prep}")
    p(f"s_mul_i32 s{S_T+2}, s{S_FB}, {BLK}")
    p(f"s_add_u32 s{S_T+2}, s{S_T+2}, {WS_W}")
    p(f"s_mul_i32 s{S_T}, s{S_C}, 9216")
    p(f"s_add_u32 s{S_T+1}, s{S_T}, 70304")
    p(f"s_add_u32 s{S_T}, s{S_T}, {P_W3}")
    for u in range(9):
        if u % 4 == 0:
            if u: p(f"s_add_u32 s{S_T+1}, s{S_T+1}, 0x1000")
            p(f"s_add_u32 m0, s{S_T}, {1024*u}")
            p("s_nop 0")
        p(f"buffer_load_dwordx4 v{V_L}, s[{S_WCIN}:{S_WCIN+3}], s{S_T+1} offen offset:{1024*(u % 4)} lds")
    p("v_and_b32 v2, 0x30, v0")
    p("v_bfe_u32 v1, v0, 2, 2")
    for q in range(4):
        p(f"v_xor_b32 v3, {q}, v1")
        p("v_lshl_add_u32 v3, v3, 28, v2")
        p(f"buffer_load_dwordx4 v[{AQ+4*q}:{AQ+4*q+3}], v3, s[{S_WCO}:{S_WCO+3}], 0 offen offset:104")
    p(f"s_cmp_ge_u32 s{S_C}, 2")
    p("s_cbranch_scc1 L_p23")
    p(f"s_lshl_b32 s{S_T}, s{S_C}, 11")
    p(f"s_add_u32 s{S_T}, s{S_T}, gather_table-L_pc")
    p(f"v_lshl_add_u32 v1, v0, 5, s{S_T}")
    p(f"global_load_dwordx4 v[{TBL}:{TBL+3}], v1, s[{S_PC}:{S_PC+1}]")
    p(f"global_load_dwordx4 v[{TBL+4}:{TBL+7}], v1, s[{S_PC}:{S_PC+1}] offset:16")
    p(f"s_cmp_lg_u32 s{S_C}, 0")
    p("s_cbranch_scc1 L_p1")
    p("v_lshrrev_b32 v3, 5, v0")
    p("v_mul_u32_u24 v3, 0x2a40, v3")
    p("v_and_b32 v2, 31, v0")
    p("v_lshl_add_u32 v3, v2, 1, v3")
    p(f"s_mul_i32 s{S_T}, s{S_FB}, 52")
    p(f"s_add_u32 s{S_T}, s{S_T}, 35152")
    for u in range(16):
        if u and u % 4 == 0:
            p(f"s_add_u32 s{S_T}, s{S_T}, {(4 if u != 8 else 12)*1352}")
        p(f"buffer_load_ushort v{VV+u}, v3, s[{S_WCIN}:{S_WCIN+3}], s{S_T} offen offset:{1352*(u % 4)}")
    p("s_branch L_pz")
    p.label("L_p1")
    p(f"s_mul_i32 s{S_T}, s{S_FB}, 1352")
    p(f"s_mov_b32 m0, {P_W1}")
    p("s_nop 0")
    for u in range(2):
        p(f"buffer_load_dwordx4 v{V_L}, s[{S_WCIN}:{S_WCIN+3}], s{S_T} offen offset:{1024*u} lds")
    p("s_branch L_pz")
    p.label("L_p23")
    p(f"s_cmp_lg_u32 s{S_C}, 3")
    p("s_cbranch_scc1 L_pz")
    p("v_lshlrev_b32 v1, 2, v0")
    p(f"buffer_load_dword v27, v1, s[{S_WCO}:{S_WCO+3}], 0 offen offset:52")
    p.label("L_pz")
    p("v_mov_b32 v2, 0")
    p("v_mov_b32 v3, 0")
    p(f"s_lshl_b32 s{S_T}, s{S_C}, 9")
    p(f"s_add_u32 s{S_T}, s{S_T}, {P_M3T}")
    p(f"v_lshl_add_u32 v1, v0, 3, s{S_T}")
    p("ds_write_b64 v1, v[2:3]")
    p(f"v_add_u32 v1, {P_Z - CO}, v{V_C}")
    p("ds_write_b32 v1, v2")
    p.label("L_cbar")
    if cfg.pfcode:
        sk = L("nopf")
        p(f"s_cmp_lg_u32 s{S_C}, 2")
        p(f"s_cbranch_scc1 {sk}")
        p(f"s_lshr_b32 s{S_T}, s2, 4")
        p(f"s_mul_i32 s{S_T}, s{S_T}, 2560")
        p(f"v_add_u32 v2, s{S_T}, v160")
        p(f"v_min_u32 v2, gather_table-L_pc+4092, v2")
        p("s_mov_b64 exec, 0xfffff")
        p(f"global_load_dword v161, v2, s[{S_PC}:{S_PC+1}]")
        p("s_mov_b64 exec, -1")
        p.label(sk)
    p("v_mov_b32 v2, 0")
    p(f"ds_write_b32 v{V_C}, v2")
    p.wait0(lg=True)
    p("s_barrier")
    stamp(1)
    p(f"s_cmp_lt_u32 s{S_FB}, 26")
    p("s_cbranch_scc1 L_prep")
    cinit_loads()
    p("s_waitcnt vmcnt(0)")
    stamp(13)
    p(f"s_cmp_lg_u32 s{S_T+3}, 4")
    p("s_cbranch_scc1 L_setup")
    p("v_mov_b32 v4, 0")
    p("s_mov_b64 exec, 1")
    p(f"global_atomic_add v27, v4, v{V_ONE}, s[{S_DBG}:{S_DBG+1}] sc0 sc1")
    p("s_mov_b64 exec, -1")
    last_marker("L_mx")
    p.label("L_mx")
    p("s_mov_b64 exec, -1")
    p("s_branch L_setup")
    p.label("L_prep")
    p("v_bfe_u32 v1, v0, 2, 2")
    p("v_lshrrev_b32 v4, 4, v0")
    p("v_lshl_add_u32 v4, v4, 3, v1")
    p("v_add_u32 v5, 4, v4")
    p("v_min_u32 v4, 25, v4")
    p("v_min_u32 v5, 25, v5")
    p("v_and_b32 v6, 3, v0")
    p(f"s_mul_i32 s{S_T}, s{S_C}, 384")
    p(f"s_add_u32 s{S_T}, s{S_T}, {P_W3}")
    p(f"v_lshl_add_u32 v6, v6, 3, s{S_T}")
    p(f"s_movk_i32 s{S_T+1}, 1352")
    p(f"v_mad_u32_u24 v2, v4, s{S_T+1}, v6")
    p(f"v_mad_u32_u24 v3, v5, s{S_T+1}, v6")
    p(f"s_mul_i32 s{S_T}, s{S_C}, 192")
    p(f"s_movk_i32 s{S_T+1}, -1662")
    p(f"v_mov_b32 v7, {P_DUM}")
    for u in range(3):
        p(f"v_add_u32 v4, s{S_T}, v0")
        if u < 2: p(f"s_add_u32 s{S_T}, s{S_T}, 64")
        p("v_mul_u32_u24 v5, 2521, v4")
        p("v_lshrrev_b32 v5, 16, v5")
        p("v_cmp_gt_u32 vcc, 0x2a4, v4")
        p("v_lshlrev_b32 v4, 6, v4")
        p(f"v_mad_i32_i24 v4, v5, s{S_T+1}, v4")
        p(f"v_add_u32 v4, {P_M3T}, v4")
        p(f"v_cndmask_b32 v{8+u}, v7, v4, vcc")
    p("v_and_b32 v5, 31, v0")
    p("v_lshrrev_b32 v4, 5, v0")
    p("v_lshlrev_b32 v6, 6, v5")
    p("v_lshl_add_u32 v6, v4, 4, v6")
    p(f"v_add_u32 v28, {P_M3T}, v6")
    p("v_mul_u32_u24 v5, 0x90, v5")
    p("v_lshl_add_u32 v5, v4, 4, v5")
    p(f"v_add_u32 v29, {P_D1}, v5")
    p("v_lshrrev_b32 v1, 1, v0")
    p("v_lshl_add_u32 v4, v1, 1, 1")
    p("v_add_u32 v5, 22, v1")
    p("v_min_u32 v4, v5, v4")
    p("v_lshlrev_b32 v5, 1, v1")
    p(f"s_cmp_eq_u32 s{S_C}, 0")
    p("s_cselect_b64 vcc, -1, 0")
    p("v_and_b32 v6, 1, v0")
    p(f"v_mov_b32 v11, {PS}")
    p("v_cndmask_b32 v4, v5, v4, vcc")
    p("v_lshl_add_u32 v4, v4, 1, v6")
    p("v_lshlrev_b32 v30, 4, v4")
    p(f"v_add_u32 v4, {P_M3T + 26*64 - CO}, v{V_C}")
    p(f"s_cmp_lg_u32 s{S_C}, 3")
    p.wait0(vm=True)
    p("s_cbranch_scc1 L_w1")
    p("s_mov_b64 exec, 0x1fff")
    p("ds_write_b32 v4, v27")
    p("s_mov_b64 exec, -1")
    p.label("L_w1")
    stamp(10)
    p("s_barrier")
    extra = []
    for u in range(8):
        extra.append(f"v_add_u32_sdwa v{GA+2*u}, v11, v{TBL+u} dst_sel:DWORD dst_unused:UNUSED_PAD src0_sel:DWORD src1_sel:WORD_0")
        extra.append(f"v_add_u32_sdwa v{GA+2*u+1}, v11, v{TBL+u} dst_sel:DWORD dst_unused:UNUSED_PAD src0_sel:DWORD src1_sel:WORD_1")
    for u in range(8): extra.append(f"v_lshl_or_b32 v{VF+u}, v{VV+2*u+1}, 16, v{VV+2*u}")
    def m3_mfma(U):
        u, q = divmod(U, 4)
        p.wait(lg=f"m{U}")
        cc = "0" if q == 0 else f"v[{12+4*u}:{15+4*u}]"
        p(f"v_mfma_f32_16x16x32_bf16 v[{12+4*u}:{15+4*u}], v[{AQ+4*q}:{AQ+4*q+3}], v[{MB+4*U}:{MB+4*U+3}], {cc}")
    for T in range(12):
        p.lds(f"ds_read_b64_tr_b16 v[{MB+4*T}:{MB+4*T+1}], v2 offset:{32*T}", f"m{T}")
        p.lds(f"ds_read_b64_tr_b16 v[{MB+4*T+2}:{MB+4*T+3}], v3 offset:{32*T}", f"m{T}")
        if T == 5:
            for _ in range(8): p(extra.pop(0))
        if T >= 6: m3_mfma(T - 6)
    for U in range(6, 12):
        m3_mfma(U)
        if U == 8:
            p("v_cvt_pk_bf16_f32 v24, v12, v12")
            p("ds_write_b16 v8, v24")
        else:
            for _ in range(2): p(extra.pop(0))
    p("v_cvt_pk_bf16_f32 v25, v16, v16")
    p("ds_write_b16 v9, v25")
    while extra: p(extra.pop(0))
    p(f"v_cvt_pk_bf16_f32 v26, v20, v20")
    p(f"ds_write_b16 v10, v26")
    p.wait0(lg=True)
    p("s_barrier")
    stamp(11)
    p(f"s_cmp_eq_u32 s{S_C}, 0")
    p("s_cbranch_scc1 L_pT")
    p(f"s_cmp_lg_u32 s{S_C}, 1")
    p("s_cbranch_scc1 L_pdone")
    for u in range(16): p(f"v_mov_b32 v{MB+16+u}, 0")
    for u in range(16): p(f"ds_read_u16_d16_hi v{MB+16+u}, v{GA+u}")
    p("s_mov_b32 exec_hi, 0xfff")
    p("s_branch L_pst")
    p.label("L_pT")
    p("ds_read_b128 v[12:15], v28")
    p("ds_read_b128 v[16:19], v28 offset:32")
    p("s_waitcnt lgkmcnt(1)")
    p(f"v_mfma_f32_32x32x16_bf16 v[{MB}:{MB+15}], v[{VF}:{VF+3}], v[12:15], 0")
    p("s_waitcnt lgkmcnt(0)")
    p(f"v_mfma_f32_32x32x16_bf16 v[{MB}:{MB+15}], v[{VF+4}:{VF+7}], v[16:19], v[{MB}:{MB+15}]")
    p("s_nop 11")
    for a in range(4): p(f"ds_write_b128 v29, v[{MB+4*a}:{MB+4*a+3}] offset:{32*a}")
    for u in range(16): p(f"ds_read_b32 v{MB+16+u}, v{GA+u}")
    p("s_mov_b32 exec_hi, 0xffff")
    p.label("L_pst")
    for e in range(8):
        if e % 2 == 0: p(f"s_waitcnt lgkmcnt({12 - 2*e})")
        p(f"v_add_f32 v{MB+16+2*e}, v{MB+16+2*e}, v{MB+16+2*e+1}")
        if e % 2:
            p(f"v_cvt_pk_bf16_f32 v{4+e//2}, v{MB+14+2*e}, v{MB+16+2*e}")
            p(f"v_min_u32 v{4+e//2}, -2, v{4+e//2}")
    p(f"buffer_store_dwordx4 v[4:7], v30, s[{S_WS}:{S_WS+3}], s{S_T+2} offen sc1")
    p(f"v_mov_b32 v8, s{S_C}")
    p("v_lshlrev_b32 v8, 2, v8")
    p("s_mov_b64 exec, 1")
    p(f"buffer_store_dword v{V_ONE}, v8, s[{S_WS}:{S_WS+3}], s{S_T+2} offen offset:1536 sc1")
    p.label("L_pdx")
    p("s_mov_b64 exec, -1")
    p.label("L_pdone")
    stamp(21)
    cinit_loads()
    p("s_waitcnt vmcnt(0)")
    p("s_branch L_setup")
    p.label("L_xwave")
    S_J, S_XA, S_XB, S_XM, S_TB = S_W, S_T+2, S_T+3, S_T+4, S_T+5
    p(f"s_sub_u32 s{S_J}, s{S_WAVE}, 4")
    p(f"s_lshl3_add_u32 s3, s{S_RG}, s{S_CP}")
    p(f"s_lshr_b32 s{S_FB}, s{S_J}, 1")
    p(f"s_lshl2_add_u32 s3, s{S_FB}, s3")
    p(f"s_mul_i32 s3, s3, 1664")
    p(f"s_and_b32 s{S_X}, s{S_J}, 1")
    p(f"s_mul_i32 s{S_X}, s{S_X}, 832")
    p(f"s_add_u32 s3, s3, s{S_X}")
    p(f"s_mul_i32 s{S_X}, s{S_J}, 832")
    p(f"s_add_u32 m0, s{S_X}, {IX2}")
    p(f"s_lshr_b32 s{S_X}, s2, 6")
    p(f"s_mul_i32 s{S_X}, s{S_X}, 3")
    p(f"s_add_u32 s{S_X}, s{S_X}, s{S_CP}")
    p(f"s_lshl2_add_u32 s{S_X}, s{S_X}, s{S_J}")
    p(f"s_mul_i32 s{S_X}, s{S_X}, {52*128}")
    p(f"s_add_u32 s{S_X}, s{S_X}, {(2496 - 4*52)*128}")
    p.wait0(lg=True)
    p(f"s_mov_b64 s[{S_IDX}:{S_IDX+1}], s[{KA}:{KA+1}]")
    p(f"s_mov_b64 s[{S_W1}:{S_W1+1}], s[{KA+8}:{KA+9}]")
    p("s_mov_b32 exec_hi, 0xfffff")
    p(f"buffer_load_dwordx4 v{V_L}, s[{S_IDX}:{S_IDX+3}], s3 offen lds")
    p("s_mov_b32 exec_hi, -1")
    p(f"s_mov_b64 s[{S_WCO}:{S_WCO+1}], s[{KA+6}:{KA+7}]")
    p(f"s_mov_b64 s[{S_BOUT}:{S_BOUT+1}], s[{KA+14}:{KA+15}]")
    srd(S_TAB, 2, 6400000)
    if cfg.etouch:
        p(f"s_cmp_eq_u32 s{S_CP}, 0")
        p("s_cbranch_scc1 L_noet")
        touch(160, S_X, (1 << 52) - 1)
        p("s_waitcnt vmcnt(1)")
        p.label("L_noet")
    p("v_lshrrev_b32 v1, 4, v0")
    p("v_and_b32 v2, 12, v0")
    p(f"s_mul_i32 s3, s{S_J}, 104")
    p(f"s_add_u32 s3, s3, {IX2}")
    p(f"v_add_u32 v2, s3, v2")
    p(f"s_movk_i32 s{S_X}, 416")
    p(f"v_mad_u32_u24 v3, v1, s{S_X}, v2")
    if cfg.bal:
        p(f"s_cmp_eq_u32 s{S_J}, 3")
        p(f"s_cselect_b32 s{S_X}, 104, 312")
        p(f"s_cselect_b32 s3, {13*104}, {20*104}")
        p(f"v_add_u32 v2, s3, v2")
        p(f"v_mad_u32_u24 v4, v1, s{S_X}, v2")
    else: p("v_add_u32 v4, 0x680, v3")
    p("v_and_b32 v1, 3, v0")
    p("v_lshlrev_b32 v5, 4, v1")
    p("v_bfe_u32 v1, v0, 3, 1")
    p("v_lshl_add_u32 v6, v1, 30, v5")
    p(f"s_mul_i32 s{S_XM}, s{S_J}, 7168")
    p(f"s_lshr_b32 s{S_TB}, s2, 4")
    p(f"s_lshl2_add_u32 s{S_TB}, s{S_TB}, s{S_J}")
    p(f"s_mul_i32 s{S_TB}, s{S_TB}, {46*128}")
    p(f"s_add_u32 s{S_TB}, s{S_TB}, {4992*128}")
    assert not cfg.etouch
    producer_index()
    S_PR = S_T + 6
    p(f"s_cmp_eq_u32 s{S_J}, 0")
    p(f"s_cselect_b32 s{S_PR}, s{S_FB}, 99")
    p(f"s_cmp_ge_u32 s{S_PR}, 26")
    p("s_cbranch_scc1 L_noclr")
    for r in range(4): p(f"v_mov_b32 v{12+r}, -1")
    p(f"s_mul_i32 s{S_T}, s{S_FB}, {BLK}")
    p(f"s_add_u32 s{S_T}, s{S_T}, {WS_W}")
    p(f"buffer_store_dwordx4 v[12:15], v{V_L}, s[{S_WS}:{S_WS+3}], s{S_T} offen sc1")
    p("s_mov_b32 exec_hi, 0xff")
    p(f"buffer_store_dwordx4 v[12:15], v{V_L}, s[{S_WS}:{S_WS+3}], s{S_T} offen offset:1024 sc1")
    p("s_mov_b32 exec_hi, -1")
    p("s_waitcnt vmcnt(2)")
    p("s_branch L_clr")
    p.label("L_noclr")
    p("s_waitcnt vmcnt(0)")
    p.label("L_clr")
    p("s_barrier")
    for u in range(2):
        for Q in range(0, 6, 2): p(f"ds_read2_b32 v[{VT+7*u+u+Q}:{VT+7*u+u+Q+1}], v{3+u} offset0:{4*Q} offset1:{4*Q+4}")
        p(f"ds_read_b32 v{VT+8*u+6}, v{3+u} offset:96")
    stamp(1)
    p.vm.clear()
    assert cfg.xwin < 14
    p.wait0(lg=True)
    go_done = False
    for Q in range(7):
        for u in range(2):
            n = 2*Q + u
            if n == cfg.xbar and not cfg.noprep:
                p(f"s_cmp_ge_u32 s{S_FB}, 26")
                p("s_cbranch_scc1 L_nobar")
                p("s_barrier")
                p(f"s_waitcnt vmcnt({n})")
                p(f"s_cmp_ge_u32 s{S_PR}, 26")
                p("s_cbranch_scc1 L_noat")
                p("v_mov_b32 v12, 0")
                p("s_mov_b64 exec, 1")
                p(f"global_atomic_add v27, v12, v{V_ONE}, s[{S_DBG}:{S_DBG+1}] sc0 sc1")
                p("s_mov_b64 exec, -1")
                p.label("L_noat")
                p("s_barrier")
                p(f"s_cmp_ge_u32 s{S_PR}, 26")
                p("s_cbranch_scc1 L_nobar")
                last_marker("L_lm")
                p.label("L_lm")
                p("s_mov_b64 exec, -1")
                p.label("L_nobar")
            if n == cfg.xstart and n: p.wait(vm="x0")
            if n >= cfg.xwin:
                p.wait(vm=f"x{n - cfg.xwin}")
                if n - cfg.xwin == 2*cfg.gon + 1: arrive(C_GO); go_done = True
            p(f"s_add_u32 m0, s{S_XM}, {XO + 4*7168*u + 1024*Q}")
            p(f"v_lshl_add_u32 v{VT+8*u+Q}, v{VT+8*u+Q}, 6, v{6 if Q == 6 else 5}")
            p.vmem(f"buffer_load_dwordx4 v{VT+8*u+Q}, s[{S_TAB}:{S_TAB+3}], 0 offen lds", f"x{n}")
        for u, at in enumerate((cfg.lt0, cfg.lt1)):
            if at == Q and cfg.ltouch:
                touch(160, S_TB, (1 << 46) - 1); p.vm.issue("t")
                p(f"s_add_u32 s{S_TB}, s{S_TB}, {2944*128}")
    def late_touch():
        touch(160, S_TB, (1 << 46) - 1); p.vm.issue("t")
        p(f"s_add_u32 s{S_TB}, s{S_TB}, {2944*128}")
    cinit_loads()
    for _ in range(5): p.vm.issue("ci")
    if not go_done:
        p.wait(vm=f"x{2*cfg.gon+1}")
        arrive(C_GO)
    p.wait(vm="x13")
    arrive(C_XL)
    p.wait(vm="ci")
    for at in (cfg.lt0, cfg.lt1):
        if at == 7 and cfg.ltouch: late_touch()
    if cfg.ltouch and cfg.lt1 == 8: p(f"s_mov_b32 s{S_FB}, s{S_TB}")
    stamp(6)

    p.label("L_setup")
    if cfg.stamps: p(f"s_mov_b32 s{S_ST+27}, 0")
    p(f"s_setprio {cfg.prio_prep}")
    p.vm.clear(); p.lg.clear()
    AX, AT, CI, X0 = 0, 16, 32, 48
    Z = [74, 78]; PT = 82; ZL = 90
    XA = {1: 98, -3: 99, -1: 100}; WA = 101; SM = [102, 103, 104, 105]; MBX = 106; VMB = 110; VBO = 111
    RING = 112; RES = RING + 4*cfg.R
    WT = 112
    assert RES + 4*cfg.NRES <= 256
    NR = 4
    S_N, S_MB, S_O = S_T+7, S_T+9, S_T+11
    S_NR = S_T + 12
    p(f"s_and_b32 s{S_T+3}, s{S_WAVE}, 3")
    p(f"s_lshl_b32 s{S_T+2}, s{S_T+3}, 2")
    p(f"s_lshl_b32 s{S_T}, s{S_T+3}, 8")
    p(f"s_mov_b32 s{S_N}, 4")
    p(f"s_add_u32 s{S_T+2}, s{S_T+2}, 3")
    p(f"s_cmp_lt_u32 s{S_WAVE}, 4")
    p("s_cbranch_scc1 L_rowp")
    p(f"s_add_u32 s{S_T}, s{S_T}, {4*7168}")
    if cfg.bal:
        p(f"s_mov_b32 s{S_N}, 3")
        p(f"s_mul_i32 s{S_T+2}, s{S_T+3}, 3")
        p(f"s_add_u32 s{S_T+2}, s{S_T+2}, 70")
    else: p(f"s_add_u32 s{S_T+2}, s{S_T+2}, 64")
    p.label("L_rowp")
    p(f"s_lshl4_add_u32 s{S_T+2}, s{S_CP}, s{S_T+2}")
    p.label("L_setup2")
    p(f"s_mov_b32 s{S_NR}, s{S_N}")
    p("v_and_b32 v1, 31, v0")
    p("v_lshrrev_b32 v2, 5, v0")
    p(f"v_lshl_add_u32 v3, v1, 1, s{S_T}")
    p(f"v_lshl_add_u32 v{XA[1]}, v2, 6, v3")
    p("v_mul_u32_u24 v4, 0xc0, v2")
    p(f"v_sub_u32 v{XA[-3]}, v3, v4")
    p("v_lshlrev_b32 v4, 6, v2")
    p(f"v_sub_u32 v{XA[-1]}, v3, v4")
    p("v_mul_u32_u24 v4, 0x210, v2")
    p("v_lshl_add_u32 v4, v1, 4, v4")
    p(f"v_add_u32 v{WA}, {WO}, v4")
    for r in range(26): p(f"v_mov_b32 v{X0+r}, 0")
    for a in range(3):
        for h in range(2):
            p(f"v_lshlrev_b32 v{CI+4*a+2*h}, 16, v{CRAW+2*a+h}")
            p(f"v_and_b32 v{CI+4*a+2*h+1}, 0xffff0000, v{CRAW+2*a+h}")
    p(f"v_lshlrev_b32 v{CI+12}, 16, v{CRAW+6}")
    for r in range(13, 16): p(f"v_mov_b32 v{CI+r}, 0")
    p(f"v_lshlrev_b32 v{VBO}, 16, v{CRAW+7}")
    p("v_lshrrev_b32 v1, 3, v0")
    p("v_min_u32 v3, 1, v1")
    p("v_lshlrev_b32 v2, 9, v0")
    p(f"v_lshl_add_u32 v{VMB}, v3, 30, v2")
    p(f"s_lshl_b32 s{S_T+1}, s{S_RG}, 7")
    p(f"s_add_u32 s{S_T+1}, s{S_T+1}, s{S_T+2}")
    p(f"s_lshl_b32 s{S_O}, s{S_T+1}, 1")
    p(f"s_lshl_b32 s{S_T}, s{S_RG}, 10")
    p(f"s_add_u32 s{S_MB}, s{S_T+2}, s{S_T}")
    p(f"s_sub_u32 s{S_MB}, s{S_MB}, 3")
    p(f"s_lshl_b32 s{S_MB}, s{S_MB}, 2")
    p(f"v_mov_b32 v{ZL+7}, 0")
    p(f"s_cmp_ge_u32 s{S_WAVE}, 4")
    p("s_cbranch_scc1 L_xz")
    p("v_and_b32 v2, 7, v0")
    p(f"v_mul_u32_u24 v3, {BLK}, v1")
    p("v_lshl_add_u32 v3, v2, 4, v3")
    p("v_mul_u32_u24 v4, 0x210, v2")
    p(f"s_mul_i32 s{S_T}, s{S_C}, {24*528}")
    p(f"s_add_u32 s{S_T}, s{S_T}, {WO}")
    p(f"v_add_u32 v4, s{S_T}, v4")
    p("v_lshl_add_u32 v5, v1, 4, v4")
    p("v_cmp_eq_u32 vcc, 1, v1")
    p("v_add_u32 v6, 48, v5")
    p("v_subrev_u32 v7, 48, v5")
    p("v_cndmask_b32 v6, v5, v6, vcc")
    p("v_cmp_eq_u32 vcc, 4, v1")
    p(f"s_cmp_eq_u32 s{S_C}, 3")
    p(f"s_cselect_b32 s{S_T+1}, 4, 0")
    p("v_cndmask_b32 v6, v6, v7, vcc")
    p(f"v_and_b32 v7, s{S_T+1}, v2")
    p("v_lshl_add_u32 v7, v7, 28, v3")
    p("v_and_b32 v8, 31, v0")
    p("v_lshrrev_b32 v9, 5, v0")
    p(f"v_mul_u32_u24 v8, {BLK}, v8")
    p("v_lshl_add_u32 v8, v9, 2, v8")
    p(f"s_mul_i32 s{S_T}, s{S_C}, 384")
    p(f"s_add_u32 s{S_T}, s{S_T}, {WS_W}")
    p(f"s_and_b32 s{S_T+1}, s{S_CP}, {1 if cfg.wrot else 0}")
    p(f"s_mul_i32 s{S_T+2}, s{S_T+1}, 26624")
    for k in range(4):
        p(f"s_xor_b32 s{S_T+3+k}, s{S_T+2}, {26624*(k >> 1)}")
        p(f"s_add_u32 s{S_T+3+k}, s{S_T+3+k}, s{S_T}")
        if k & 1: p(f"s_add_u32 s{S_T+3+k}, s{S_T+3+k}, 13312")
    p(f"s_lshl_b32 s{S_T+2}, s{S_T+1}, 8")
    p(f"s_cmp_eq_u32 s{S_T+1}, 0")
    p("s_cselect_b64 vcc, -1, 0")
    p(f"v_add_u32 v12, s{S_T+2}, v5")
    p(f"s_xor_b32 s{S_T+2}, s{S_T+2}, 0x100")
    p("v_add_u32 v6, 0x180, v6")
    p("v_add_u32 v15, 0x80, v5")
    p(f"v_add_u32 v14, s{S_T+2}, v5")
    p("v_cndmask_b32 v13, v6, v15, vcc")
    p("v_cndmask_b32 v15, v15, v6, vcc")
    p("v_mov_b32 v10, 0")
    check(C_GO, 4, sleep=2)
    stamp(22)
    p(f"s_mov_b32 s{S_T+13}, {WS_W}")
    if cfg.noprep: p("s_branch L_wload")
    if cfg.direct:
        p(f"s_load_dword s{S_X}, s[{S_DBG}:{S_DBG+1}], 192")
        p("s_waitcnt lgkmcnt(0)")
        p(f"s_cmp_lg_u32 s{S_X}, 0")
        p("s_cbranch_scc1 L_wload")
        if cfg.stamps: p(f"s_add_u32 s{S_ST+27}, s{S_ST+27}, 100")
    p(f"s_cmp_lg_u32 s{S_C}, 0")
    p("s_cbranch_scc1 L_pw")
    p.label("L_probe")
    p(f"global_load_dword v11, v10, s[{S_DBG}:{S_DBG+1}] offset:128 sc1")
    p(f"buffer_load_dword v9, v8, s[{S_WS}:{S_WS+3}], s{S_T+13} offen offset:1536 sc1")
    p("s_waitcnt vmcnt(0)")
    p("v_add_u32 v11, -1, v11")
    p("v_max_u32 v9, v9, v11")
    p("v_cmp_eq_u32 vcc, -1, v9")
    p("s_nop 1")
    p("s_cmp_eq_u64 vcc, 0")
    p("s_cbranch_scc1 L_wload")
    p.label("L_retry")
    if cfg.stamps: p(f"s_add_u32 s{S_ST+27}, s{S_ST+27}, 1")
    p(f"s_sleep {cfg.poll_sleep}")
    p(f"s_sub_u32 s{S_SPIN}, s{S_SPIN}, 1")
    p("s_cbranch_scc0 L_probe")
    p("s_endpgm")
    p.label("L_pw")
    check(C_FLAG, 1, sleep=2)
    p("s_branch L_wl2")
    p.label("L_wload")
    arrive(C_FLAG)
    p.label("L_wl2")
    stamp(2)
    for J in range(4):
        for Fi in range(3):
            r = WT + 4*(3*J + Fi)
            p.vmem(f"buffer_load_dwordx4 v[{r}:{r+3}], v{7 if Fi == 2 else 3}, s[{S_WS}:{S_WS+3}], s{S_T+3+J} offen offset:{128*Fi} sc1", f"w{J}{Fi}")
    first = True
    for J in range(4):
        for Fi in range(3):
            r = WT + 4*(3*J + Fi)
            p.wait(vm=f"w{J}{Fi}")
            p(f"ds_write_b128 v{12+J}, v[{r}:{r+3}] offset:{4224*Fi}")
            if first: p(f"v_max_u32 v9, v{r}, v{r+1}")
            else: p(f"v_max3_u32 v9, v{r}, v{r+1}, v9")
            p(f"v_max3_u32 v9, v{r+2}, v{r+3}, v9")
            first = False
    p("v_cmp_eq_u32 vcc, -1, v9")
    p("s_nop 1")
    p("s_cmp_eq_u64 vcc, 0")
    p("s_cbranch_scc0 L_retry")
    p.label("L_xz")
    check(C_XL, 4, sleep=cfg.idle_sleep)
    def x_read(r):
        p.lds(f"ds_read_u16_d16_hi v{X0+r}, v{XA[pi(r)-r]} offset:{1024*(r >> 2) + 64*(r & 3)}", f"x{r}")
    for r in range(26): x_read(r)
    def z_ops(n):
        ops = []
        for e in range(4):
            t = PT + 2*(e % 4)
            (a, b), (c, d) = S[8*n + 2*e], S[8*n + 2*e + 1]
            ops.append(("v", f"v_mul_f32 v{t}, v{X0+a}, v{X0+b}", (a, b)))
            ops.append(("v", f"v_mul_f32 v{t+1}, v{X0+c}, v{X0+d}", (c, d)))
        cv = [("v", f"v_cvt_pk_bf16_f32 v{Z[n % 2]+e}, v{PT+2*e}, v{PT+2*e+1}", ()) for e in range(4)]
        return ops[0:4] + cv[0:1] + ops[4:6] + cv[1:2] + ops[6:8] + cv[2:4]
    for o in z_ops(0):
        p.wait(lg=tuple(f"x{r}" for r in o[2]))
        p(o[1])
    for d in XA.values(): p(f"v_add_u32 v{d}, 0x1c00, v{d}")
    p.wait0(lg=True)
    p("s_barrier")
    if cfg.ltouch and cfg.lt1 == 8:
        p(f"s_cmp_lt_u32 s{S_WAVE}, 4")
        p("s_cbranch_scc1 L_go")
        touch(160, S_FB, (1 << 46) - 1)
    p.label("L_go")
    p("s_setprio 0")
    if cfg.flip:
        p(f"s_cmp_lt_u32 s{S_WAVE}, 4")
        p("s_cbranch_scc1 L_prio")
        p(f"s_setprio 1")
        p.label("L_prio")
    stamp(3)
    order = []
    for n in range(22):
        order.append(("X", n)); order.append(("T", n))
        if n == 14: order.append(("T", 22))
        if n == 18: order.append(("T", 23))
    fr_of = lambda k, n: (2*n if k == "X" else 2*n + 1) if n < 22 else n + 22
    nn = 46 - cfg.NRES
    assert nn % cfg.R == 0
    nonres = [int((u + 0.5)*46/nn) for u in range(nn)]
    wreg = {}; rr = 0
    for k in range(46):
        if k in nonres: wreg[k] = RING + 4*(nonres.index(k) % cfg.R)
        else: wreg[k] = RES + 4*rr; rr += 1
    def w_read(k):
        p.lds(f"ds_read_b128 v[{wreg[k]}:{wreg[k]+3}], v{WA} offset:{1056*fr_of(*order[k])}", f"w{k}")
    for k in range(46):
        if k not in nonres or nonres.index(k) < cfg.R: w_read(k)
    p.wait0(lg=True)
    stamp(5)
    def mfma(k):
        kind, n = order[k]
        zb = Z[n % 2] if n < 22 else ZL + 4*(n - 22)
        acc = AX if kind == "X" else AT
        cc = f"v[{acc}:{acc+15}]"
        if n == 0: cc = "0" if kind == "X" else f"v[{CI}:{CI+15}]"
        return f"v_mfma_f32_32x32x16_bf16 v[{acc}:{acc+15}], v[{wreg[k]}:{wreg[k]+3}], v[{zb}:{zb+3}], {cc}"
    lin_ops = []
    for u in range(8):
        a = LIN[min(2*u, 12)]; b = LIN[min(2*u + 1, 12)]
        lin_ops.append(("v", f"v_cvt_pk_bf16_f32 v{ZL+u}, v{X0+a}, v{X0+b}", (a, b)))
    def body(emit_mb):
        groups = [z_ops(n) for n in range(1, 22)] + [z_ops(0)]
        groups[10] = lin_ops[:7] + groups[10]
        flat = [(g, o) for g, ops in enumerate(groups) for o in ops]
        lastuse = {}
        for i, (g, o) in enumerate(flat):
            if g < 21:
                for r in o[2]: lastuse[r] = i
        for r in range(26): lastuse.setdefault(r, -1)
        for g, ops in enumerate(groups):
            mf = [kk for kk in range(46) if order[kk] in (("X", g), ("T", g))]
            if g == 14: mf.append(order.index(("T", 22)))
            if g == 18: mf.append(order.index(("T", 23)))
            items = []
            base = sum(len(x) for x in groups[:g])
            if g == 0:
                for r in range(26):
                    if lastuse[r] == -1: items.append(("x", r))
            for i, o in enumerate(ops):
                items.append(o)
                for r in range(26):
                    if lastuse[r] == base + i: items.append(("x", r))
            if g == 21:
                pos = [0, 0]
            else:
                n_it = len(items)
                pos = [2 + (j*n_it)//len(mf) for j in range(len(mf))]
            j = 0
            for i, it in enumerate(items + [None]):
                while j < len(mf) and pos[j] <= i:
                    kk = mf[j]
                    if g == 21 and j == 0: p("s_nop 1")
                    p.wait(lg=f"w{kk}")
                    p(mfma(kk))
                    if kk in nonres:
                        w_read(nonres[(nonres.index(kk) + cfg.R) % nn])
                    j += 1
                if it is None: break
                if it[0] == "x": x_read(it[1])
                else:
                    p.wait(lg=tuple(f"x{r}" for r in it[2]))
                    p(it[1])
            if g == 15: emit_mb()
        for k in range(NR - 1): p(f"v_mov_b32 v{SM[k]}, v{SM[k+1]}")
        for d in XA.values(): p(f"v_add_u32 v{d}, 0x1c00, v{d}")
        s0 = SM[NR-1]
        p(f"v_mul_f32 v{s0}, v{AX}, v{AT}")
        p(f"v_mul_f32 v{PT}, v{AX+1}, v{AT+1}")
        for r in range(2, 13):
            p(f"v_fmac_f32 v{s0 if r % 2 == 0 else PT}, v{AX+r}, v{AT+r}")
        p(f"s_sub_u32 s{S_N}, s{S_N}, 1")
        p(f"v_add_f32 v{s0}, v{s0}, v{PT}")
    def mb_loads():
        p(f"buffer_load_dwordx{NR} v[{MBX}:{MBX+NR-1}], v{VMB}, s[{S_WS}:{S_WS+3}], s{S_MB} offen sc1")
    def emit_mb():
        sk = L("nomb")
        p(f"s_cmp_lg_u32 s{S_N}, 1")
        p(f"s_cbranch_scc1 {sk}")
        mb_loads()
        p.label(sk)
    save = p.L; p.L = []
    body(lambda: None)
    st1 = list(p.lg.q)
    p.L = save
    p(".p2align 3")
    p.label("L_row")
    body(emit_mb)
    assert st1 == p.lg.q
    if cfg.stamps in (1, 2):
        for i in range(3): p(f"s_mov_b32 s{S_ST+23+i}, s{S_ST+24+i}")
        stamp(26)
    if cfg.flip:
        p(f"s_cmp_lg_u32 s{S_N}, {4 - cfg.flip}")
        p("s_cbranch_scc1 L_noflip")
        p("s_setprio 0")
        p.label("L_noflip")
    p(f"s_cmp_lg_u32 s{S_N}, 0")
    p("s_cbranch_scc1 L_row")
    p.label("L_mbw")
    p("s_waitcnt vmcnt(0)")
    if NR == 4:
        p(f"v_max3_u32 v1, v{MBX}, v{MBX+1}, v{MBX+2}")
        p(f"v_max_u32 v1, v1, v{MBX+3}")
    else: p(f"v_max_u32 v1, v{MBX}, v{MBX+1}")
    p("v_cmp_eq_u32 vcc, -1, v1")
    p("s_nop 1")
    p("s_cmp_eq_u64 vcc, 0")
    p("s_cbranch_scc1 L_mbok")
    p("s_sleep 1")
    mb_loads()
    p(f"s_sub_u32 s{S_SPIN}, s{S_SPIN}, 1")
    p("s_cbranch_scc0 L_mbw")
    p("s_endpgm")
    p.label("L_mbok")
    for k in range(NR): p(f"v_add_f32 v{SM[k]}, v{SM[k]}, v{MBX+k}")
    for ctl in ("quad_perm:[1,0,3,2] row_mask:0xf", "quad_perm:[2,3,0,1] row_mask:0xf", "row_half_mirror row_mask:0xf",
                "row_mirror row_mask:0xf", "row_bcast:15 row_mask:0xa", "row_bcast:31 row_mask:0xc"):
        if NR == 2: p("s_nop 0")
        for k in range(NR): p(f"v_add_f32_dpp v{SM[k]}, v{SM[k]}, v{SM[k]} {ctl} bank_mask:0xf")
    for k in range(NR): p(f"v_add_f32 v{SM[k]}, v{SM[k]}, v{VBO}")
    p(f"v_cvt_pk_bf16_f32 v2, v{SM[0]}, v{SM[1]}")
    p(f"v_cvt_pk_bf16_f32 v3, v{SM[2]}, v{SM[3]}")
    p(f"v_mov_b32 v1, s{S_O}")
    p("s_mov_b32 exec_lo, 0")
    p("s_mov_b32 exec_hi, 0x80000000")
    if cfg.bal:
        p(f"s_cmp_eq_u32 s{S_NR}, 4")
        p("s_cbranch_scc1 L_st4")
        p(f"global_store_short_d16_hi v1, v3, s[{S_OUT}:{S_OUT+1}]")
        p(f"s_cmp_eq_u32 s{S_NR}, 1")
        p("s_cbranch_scc1 L_std")
        p(f"global_store_short v1, v3, s[{S_OUT}:{S_OUT+1}] offset:-2")
        p(f"global_store_short_d16_hi v1, v2, s[{S_OUT}:{S_OUT+1}] offset:-4")
        p("s_branch L_std")
        p.label("L_st4")
    p(f"global_store_dwordx2 v1, v[2:3], s[{S_OUT}:{S_OUT+1}] offset:-6")
    p.label("L_std")
    stamps_out()
    p.label("L_end")
    p("s_endpgm")

    p.vm.q = dnn_vm; p.lg.clear()
    p(".p2align 6")
    p.label("L_dnn")
    ACC = lambda t, q: 8*t + 4*q
    BF = lambda t: 56 + 4*t
    AR = lambda f, q: 84 + 8*(f % 2) + 4*q
    IDX = lambda f: 100 + f
    VO = lambda u: 128 + u
    V_B, V_A, V_CH, V_LANE, V_G8 = [130, 131, 132], [133, 134, 135], 136, 137, 138
    RAW = 140; RAW2 = 200
    S_SB, S_M0, S_AM = S_T+2, S_T+3, S_T+4
    if cfg.probe:
        p("s_cmp_ge_u32 s2, 8")
        p("s_cbranch_scc1 L_pr1")
        p("s_lshl_b32 s90, s2, 2")
        p("v_mov_b32 v1, s90")
        p("v_mov_b32 v2, s96")
        p(f"global_store_dword v1, v2, s[{S_DBG}:{S_DBG+1}] offset:8 sc1")
        p("s_waitcnt vmcnt(0)")
        p.label("L_pr1")
    srd(S_B1, 10, 1664)
    srd(S_TAB, 2, 6400000)
    srd(S_W2, 12, 1664)
    srd(S_WS, None, WS_END)
    stamp(10)
    p(f"s_mov_b32 s{S_SPIN}, 0x40000")
    p(f"s_mul_i32 s{S_COL}, s{S_CP}, 416")
    S_M1, S_WR = S_T+5, S_T+6
    p(f"s_mov_b32 s{S_SB}, s{S_COL}")
    p(f"s_and_b32 s{S_WR}, s{S_WAVE}, 3")
    p(f"s_lshl_b32 s{S_T}, s{S_WAVE}, 1")
    p(f"s_sub_u32 s{S_T}, s{S_T}, 4")
    p(f"s_add_u32 s{S_T+1}, s{S_T}, 1")
    p(f"s_cmp_lt_u32 s{S_WAVE}, 4")
    p(f"s_cselect_b32 s{S_M0}, s{S_WAVE}, s{S_T}")
    p(f"s_cselect_b32 s{S_M1}, 12, s{S_T+1}")
    p(f"s_lshl_b32 s{S_M0}, s{S_M0}, 10")
    p(f"s_lshl_b32 s{S_M1}, s{S_M1}, 10")
    p(f"s_lshl_b32 s{S_AM}, s{S_WAVE}, 10")
    p(f"s_add_u32 s{S_AM}, s{S_AM}, {BSZ}")
    p(f"s_lshr_b32 s{S_T}, s{S_WAVE}, 2")
    p(f"s_mul_i32 s{S_T}, s{S_T}, 224")
    p(f"s_add_u32 s{S_COL}, s{S_COL}, s{S_T}")
    p(f"s_movk_i32 s{S_T+1}, 1248")
    p(f"s_movk_i32 s{S_T+7}, 6656")
    for u in range(2):
        p(f"v_add_u32 v3, s{(S_M0, S_M1)[u]}, v{V_L}")
        p("v_lshlrev_b32 v4, 4, v3")
        p("v_mul_hi_u32_u24 v4, 0x9d89e, v4")
        p("v_bfe_u32 v5, v4, 2, 1")
        p("v_bfe_i32 v6, v4, 3, 1")
        p("v_add_u32 v5, v5, v6")
        p(f"v_mad_i32_i24 v5, v5, s{S_T+7}, v3")
        p(f"v_mad_u32_u24 v{VO(u)}, v4, s{S_T+1}, v5")
    p("v_lshrrev_b32 v1, 4, v0")
    p(f"s_add_u32 s{S_T+1}, s{S_T}, {IDXO}")
    p(f"v_lshl_add_u32 v{V_G8}, v1, 3, s{S_T+1}")
    p("v_lshrrev_b32 v2, 2, v0")
    p(f"v_mul_u32_u24 v2, 104, v2")
    p(f"s_add_u32 s{S_W}, s{S_W}, {IDXO}")
    p(f"v_add_u32 v139, s{S_W}, v2")
    p("v_lshrrev_b32 v2, 5, v0")
    p("v_mul_u32_u24 v3, 3, v2")
    p("v_xor_b32 v3, v3, v0")
    p("v_and_b32 v3, 3, v3")
    p(f"v_lshlrev_b32 v{V_CH}, 4, v3")
    p("v_bfe_u32 v3, v0, 3, 1")
    p("v_mul_u32_u24 v3, 3, v3")
    p("v_xor_b32 v3, v3, v1")
    p("v_and_b32 v4, 15, v0")
    p("v_lshlrev_b32 v4, 6, v4")
    p("v_lshl_add_u32 v3, v3, 4, v4")
    p(f"s_and_b32 s{S_T+1}, s{S_WAVE}, 3")
    p(f"s_lshl_b32 s{S_T+1}, s{S_T+1}, 11")
    p(f"s_add_u32 s{S_T+1}, s{S_T+1}, {BSZ}")
    p(f"v_add_u32 v{V_A[0]}, s{S_T+1}, v3")
    p("v_bfe_u32 v3, v0, 2, 3")
    p("v_lshl_add_u32 v2, v2, 4, v3")
    p("v_mul_u32_u24 v2, 0x1a0, v2")
    p("v_and_b32 v3, 3, v0")
    p("v_lshl_add_u32 v2, v3, 3, v2")
    p(f"v_add_u32 v{V_B[0]}, s{S_T}, v2")
    for k in (1, 2):
        p(f"v_add_u32 v{V_A[k]}, {3*k*SLOT}, v{V_A[0]}")
        p(f"v_add_u32 v{V_B[k]}, {3*k*SLOT}, v{V_B[0]}")
    p(f"v_mov_b32 v{V_LANE}, v0")
    p.wait(vm="idx")
    stamp(1)
    if cfg.dbench:
        p("s_mov_b32 s3, 0")
        p.label("L_again")
    for m in range(6):
        p.lds(f"ds_read2_b64 v[{100+4*m}:{103+4*m}], v139 offset0:{2*m} offset1:{2*m+1}", f"ix{m}")
    p.lds("ds_read_b64 v[124:125], v139 offset:96", "ix6")
    def a_dma(f):
        p.wait(lg=f"ix{f >> 2}")
        p(f"s_add_u32 m0, s{S_AM}, {(f % RB)*SLOT}")
        p(f"v_lshl_add_u32 v{IDX(f)}, v{IDX(f)}, 6, v{V_CH}")
        p.vmem(f"buffer_load_dwordx4 v{IDX(f)}, s[{S_TAB}:{S_TAB+3}], 0 offen lds", f"F{f}")
    def b_dma(f, u, T):
        if u == 1:
            if f: p(f"s_add_u32 s{S_SB}, s{S_SB}, 53248")
            sk = L("np")
            if T != 6:
                if T == 0:
                    p(f"s_cmp_ge_u32 s{S_WAVE}, 4")
                    p(f"s_cselect_b32 s{S_X}, {f & 3}, s{S_WR}")
                    p(f"s_cmp_lg_u32 s{S_X}, {f & 3}")
                else: p(f"s_cmp_lg_u32 s{S_WR}, {f & 3}")
                p(f"s_cbranch_scc1 {sk}")
            p(f"s_add_u32 m0, s{S_M1}, {(f % RB)*SLOT}")
            p("s_nop 0")
            p(f"buffer_load_dwordx4 v{VO(1)}, s[{S_W1}:{S_W1+3}], s{S_SB} offen lds")
            if T == 6: p.vm.issue(f"F{f}")
            else: p.label(sk)
        else:
            p(f"s_add_u32 m0, s{S_M0}, {(f % RB)*SLOT}")
            p("s_nop 0")
            p.vmem(f"buffer_load_dwordx4 v{VO(0)}, s[{S_W1}:{S_W1+3}], s{S_SB} offen lds", f"F{f}")
    def fill(f, T): a_dma(f); b_dma(f, 1, T); b_dma(f, 0, T)
    BWO = IDXO
    p(f"s_cmp_ge_u32 s{S_WAVE}, {0 if cfg.dbench else 2}")
    p("s_cbranch_scc1 L_nobw")
    p(f"s_mul_i32 s{S_X}, s{S_CP}, 416")
    p(f"s_cmp_eq_u32 s{S_WAVE}, 0")
    p(f"s_cselect_b64 s[{S_W2}:{S_W2+1}], s[{S_B1}:{S_B1+1}], s[{S_W2}:{S_W2+1}]")
    p(f"s_mov_b32 m0, s{S_W}")
    p("s_mov_b64 exec, 0xfffffff")
    p("s_waitcnt lgkmcnt(0)")
    p(f"buffer_load_dwordx4 v{V_L}, s[{S_W2}:{S_W2+3}], s{S_X} offen lds")
    p("s_mov_b64 exec, -1")
    p.label("L_nobw")
    if cfg.sw < 26:
        p(f"v_lshlrev_b32 v{V_C}, 2, v{V_LANE}")
        p(f"v_add_u32 v{V_C}, {IDXO + 2*1664}, v{V_C}")
        p(f"v_mov_b32 v{V_ONE}, 1")
        p(f"s_cmp_lg_u32 s{S_WAVE}, 2")
        p("s_cbranch_scc1 L_noz")
        p(f"v_mov_b32 v{V_POLL}, 0")
        p("s_waitcnt lgkmcnt(0)")
        p(f"ds_write_b32 v{V_C}, v{V_POLL}")
        p("s_waitcnt lgkmcnt(0)")
        p.label("L_noz")
    def lo(f): return (f % RB)//3, ((f % RB) % 3)*SLOT
    def b_read1(f, t, r2):
        k, off = lo(f)
        p.lds(f"ds_read_b64_tr_b16 v[{BF(t)+2*r2}:{BF(t)+2*r2+1}], v{V_B[k]} offset:{off + 32*t + 3328*r2}", f"b{f}_{t}")
    def a_read(f):
        k, off = lo(f)
        for q in range(2):
            p.lds(f"ds_read_b128 v[{AR(f, q)}:{AR(f, q)+3}], v{V_A[k]} offset:{off + 1024*q}", f"a{f}")
    p(f"s_cmp_ge_u32 s{S_WAVE}, 4")
    p("s_cbranch_scc1 L_dnn6")
    W2R = lambda t, r: 170 + 4*t + r
    def w2_unpack():
        return [x for t in range(7) for h in range(2) for x in
                (f"v_lshlrev_b32 v{W2R(t,2*h)}, 16, v{RAW2+2*t+h}", f"v_and_b32 v{W2R(t,2*h+1)}, 0xffff0000, v{RAW2+2*t+h}")]
    vm0, lg0 = list(p.vm.q), list(p.lg.q)
    def dnn_main(T):
        p.vm.q, p.lg.q = list(vm0), list(lg0)
        fill(0, T)
        fill(1, T)
        p.wait(vm="F0")
        p("s_barrier")
        stamp(12)
        for t in range(T):
            p.lds(f"ds_read_b64 v[{RAW+2*t}:{RAW+2*t+1}], v{V_G8} offset:{32*t}", "bias")
        a_read(0)
        for t in range(T):
            for r2 in range(2): b_read1(0, t, r2)
        p.wait(lg="bias")
        for t in range(T):
            for h in range(2):
                p(f"v_lshlrev_b32 v{ACC(t,0)+2*h}, 16, v{RAW+2*t+h}")
                p(f"v_and_b32 v{ACC(t,0)+2*h+1}, 0xffff0000, v{RAW+2*t+h}")
        for f in range(2, cfg.look): fill(f, T)
        p.wait(vm=tuple(f"F{k}" for k in range(cfg.barp + 1)))
        p("s_barrier")
        if T == 6 and cfg.prio_hi: p(f"s_setprio {cfg.prio_hi}")
        stamp(2)
        nxt = cfg.look
        w2ops = w2_unpack()
        free = -1; landed = cfg.barp
        for f in range(26):
            todo = []
            soft = f > cfg.sw and f <= 23
            top = f < cfg.early or (cfg.dpos == 4 and T == 6) or (cfg.dpos == 1 and T == 7)
            lim = (f - 1 if soft and not top else free) + RB
            nfill = 2 if (cfg.cmask >> f & 1 if cfg.cmask else cfg.catch0 <= f < cfg.catch0 + cfg.catch) else 1
            if f >= cfg.b2: nfill = (2 if (f % 2 == 0) == ((T == 6) == (cfg.dpos == 4)) else 0)
            for _ in range(nfill):
                if nxt < 26 and nxt <= lim:
                    todo += [(a_dma, (nxt,)), (b_dma, (nxt, 1, T)), (b_dma, (nxt, 0, T))]; nxt += 1
            if cfg.nodma and f >= 4:
                keep = []
                for fn, ar in todo:
                    if (fn is a_dma and cfg.nodma & 1) or (fn is b_dma and cfg.nodma & 2): continue
                    keep.append((fn, ar))
                todo[:] = keep
            n_it = len(todo)
            if f < cfg.early: at = [-1]*n_it
            elif cfg.dpos == 0: at = list(range(n_it))
            elif cfg.dpos == 1: at = [-1]*n_it if T == 7 else [T-1]*n_it
            elif cfg.dpos == 2: at = [(2*i + (T == 6)) if n_it <= 3 else i for i in range(n_it)]
            elif cfg.dpos == 3: at = [0]*n_it if T == 7 else [T-1]*n_it
            elif cfg.dpos == 4: at = [T-1]*n_it if T == 7 else [-1]*n_it
            elif cfg.dpos == 5: at = [i//(2 if n_it > 3 else 1) for i in range(n_it)] if T == 7 else [3 + i//(2 if n_it > 3 else 1) for i in range(n_it)]
            if soft and not top: at = [min(max(a, cfg.chk + i*(cfg.dpos in (0, 2))), T-1) for i, a in enumerate(at)]
            assert f == 25 or f + 1 <= landed
            def drain(t):
                while todo and at[0] <= t:
                    at.pop(0); fn, ar = todo.pop(0); fn(*ar)
            drain(-1)
            for t in range(T):
                p.wait(lg=(f"b{f}_{t}", f"a{f}"))
                b = f"v[{BF(t)}:{BF(t)+3}]"
                a0, a1 = ACC(t, 0), ACC(t, 1)
                c1 = a0 if f == 0 else a1
                p(f"v_mfma_f32_16x16x32_bf16 v[{a1}:{a1+3}], {b}, v[{AR(f,1)}:{AR(f,1)+3}], v[{c1}:{c1+3}]")
                if t and f < 25: b_read1(f+1, t-1, 1)
                elif t == 0 and f: b_read1(f, T-1, 1)
                p(f"v_mfma_f32_16x16x32_bf16 v[{a0}:{a0+3}], {b}, v[{AR(f,0)}:{AR(f,0)+3}], v[{a0}:{a0+3}]")
                if f < 25: b_read1(f+1, t, 0)
                if t == cfg.arp and f < 25: a_read(f + 1)
                if soft and t == cfg.chk - 2: poll_issue(4*(f-1))
                if soft and t == cfg.chk:
                    check(4*(f-1), 8, issued=True)
                    free = f - 1; landed = f + 2
                drain(t)
                if f == 21:
                    for tt in ([t] if t < T - 1 else range(t, 7)):
                        p.lds(f"ds_read_b64 v[{RAW2+2*tt}:{RAW2+2*tt+1}], v{V_G8} offset:{1664 + 32*tt}", "w2")
                if cfg.w2early and f in (23, 24):
                    if f == 23 and t == 0: p.wait(lg="w2")
                    for _ in range(3):
                        if w2ops: p(w2ops.pop(0))
            assert not todo
            if f >= cfg.sw:
                if f <= 22:
                    assert nxt > f + 3
                    p.wait(vm=tuple(f"F{k}" for k in range(f + 4)))
                    arrive(4*f)
            elif f <= cfg.lb and (f + 1) % cfg.barp == 0 and (f < cfg.b2 or f % 2):
                last = min(f + 1 + cfg.barp + (f + 1 == cfg.sw or f + 1 >= cfg.b2), 25) if f < cfg.lb else 25
                assert nxt > last
                p.wait(vm=tuple(f"F{k}" for k in range(last + 1)))
                if not cfg.nobar: p("s_barrier")
                free = f; landed = last
            if f == cfg.lb and cfg.tailprio is not None and T == cfg.tailprio: p("s_setprio 1")
            if f % 4 == 0 and (not cfg.dbench or f in (8, 20)): stamp(14 + f//4)
        assert nxt == 26 and not (cfg.w2early and w2ops)
    dnn_main(7)
    p("s_branch L_gelu")
    p(".p2align 6")
    p.label("L_dnn6")
    dnn_main(6)
    p.label("L_gelu")
    if cfg.dbench:
        p("s_barrier")
        p(f"s_mul_i32 s{S_SB}, s{S_CP}, 416")
        p("s_add_u32 s3, s3, 1")
        p("s_cmp_lt_u32 s3, 2")
        p("s_cbranch_scc1 L_again")
    stamp(3)
    p(f"s_load_dword s{S_X}, s[{S_DBG}:{S_DBG+1}], 128")
    if not cfg.w2early:
        p.wait0(vm=True)
        for x in w2_unpack(): p(x)
    k0 = -2.0*math.sqrt(2.0/math.pi)*math.log2(math.e)
    T1, T2, SUM, VC = 56, 64, 92, 72
    P = lambda a: f"v[{a}:{a+1}]"
    for r, c in enumerate((k0*0.044715, k0)):
        for h in range(2): p(f"v_mov_b32 v{VC+2*r+h}, {f2h(c)}")
    for r in range(4): p(f"v_mov_b32 v{SUM+r}, 0")
    for t in range(7):
        if t == 6:
            p(f"s_cmp_ge_u32 s{S_WAVE}, 4")
            p("s_cbranch_scc1 L_gelu6")
        x = ACC(t, 0)
        if cfg.pk:
            for r in range(0, 8, 2): p(f"v_pk_mul_f32 {P(T1+r)}, {P(x+r)}, {P(x+r)}")
            for r in range(0, 8, 2): p(f"v_pk_fma_f32 {P(T1+r)}, {P(T1+r)}, {P(VC)}, {P(VC+2)}")
            for r in range(0, 8, 2): p(f"v_pk_mul_f32 {P(T1+r)}, {P(T1+r)}, {P(x+r)}")
            for r in range(8): p(f"v_exp_f32 v{T1+r}, v{T1+r}")
            for r in range(0, 8, 2): p(f"v_pk_mul_f32 {P(T2+r)}, {P(x+r)}, {P(W2R(t, r & 3))}")
            for r in range(0, 8, 2): p(f"v_pk_add_f32 {P(T1+r)}, {P(T1+r)}, 1.0 op_sel_hi:[1,0]")
            for r in range(8): p(f"v_rcp_f32 v{T1+r}, v{T1+r}")
            for r in (0, 4, 2, 6): p(f"v_pk_fma_f32 {P(SUM+2*(r >> 2))}, {P(T1+r)}, {P(T2+r)}, {P(SUM+2*(r >> 2))}")
        else:
            for r in range(8): p(f"v_mul_f32 v{T1+r}, v{x+r}, v{x+r}")
            for r in range(8): p(f"v_fma_f32 v{T1+r}, v{T1+r}, v{VC}, v{VC+2}")
            for r in range(8): p(f"v_mul_f32 v{T1+r}, v{T1+r}, v{x+r}")
            for r in range(8): p(f"v_exp_f32 v{T1+r}, v{T1+r}")
            for r in range(8): p(f"v_mul_f32 v{T2+r}, v{x+r}, v{W2R(t, r & 3)}")
            for r in range(8): p(f"v_add_f32 v{T1+r}, 1.0, v{T1+r}")
            for r in range(8): p(f"v_rcp_f32 v{T1+r}, v{T1+r}")
            for r in range(8): p(f"v_fmac_f32 v{SUM+2*(r >> 2)+(r & 1)}, v{T1+r}, v{T2+r}")
    p.label("L_gelu6")
    p(f"v_add_f32 v{SUM}, v{SUM}, v{SUM+1}")
    p(f"v_add_f32 v{SUM+2}, v{SUM+2}, v{SUM+3}")
    p(f"v_and_b32 v84, 15, v{V_LANE}")
    p(f"v_lshrrev_b32 v85, 5, v{V_LANE}")
    p(f"v_permlane32_swap_b32 v{SUM}, v{SUM+2}")
    p("v_lshl_add_u32 v84, v85, 4, v84")
    p(f"v_add_f32 v{SUM}, v{SUM}, v{SUM+2}")
    p(f"v_bfe_u32 v85, v{V_LANE}, 4, 1")
    p(f"v_mov_b32 v{SUM+1}, v{SUM}")
    p("v_lshlrev_b32 v84, 2, v84")
    p("v_lshl_add_u32 v84, v85, 30, v84")
    p(f"v_permlane16_swap_b32 v{SUM}, v{SUM+1}")
    p(f"s_lshl2_add_u32 s{S_T}, s{S_RG}, s{S_CP}")
    p(f"v_add_f32 v{SUM}, v{SUM}, v{SUM+1}")
    p(f"s_lshl3_add_u32 s{S_T}, s{S_T}, s{S_WAVE}")
    p(f"s_lshl_b32 s{S_T}, s{S_T}, 7")
    p(f"v_min_u32 v{SUM}, -2, v{SUM}")
    p("s_waitcnt lgkmcnt(0)")
    if cfg.noprep or cfg.dbench: p("s_branch L_pub")
    p(f"s_cmp_lg_u32 s{S_X}, 0")
    p("s_cbranch_scc1 L_pub")
    p("v_mov_b32 v85, 0")
    p.label("L_dflag")
    p(f"global_load_dword v86, v85, s[{S_DBG}:{S_DBG+1}] offset:128 sc1")
    p("s_waitcnt vmcnt(0)")
    p(f"v_readfirstlane_b32 s{S_X}, v86")
    p(f"s_cmp_lg_u32 s{S_X}, 0")
    p("s_cbranch_scc1 L_pub")
    p("s_sleep 4")
    p(f"s_sub_u32 s{S_SPIN}, s{S_SPIN}, 1")
    p("s_cbranch_scc0 L_dflag")
    p("s_endpgm")
    p.label("L_pub")
    p(f"buffer_store_dword v{SUM}, v84, s[{S_WS}:{S_WS+3}], s{S_T} offen sc1")
    stamp(4)
    if cfg.probe:
        p("s_cmp_lg_u32 s2, 0")
        p("s_cbranch_scc1 L_pr2")
        p(f"v_lshlrev_b32 v1, 2, v{V_LANE}")
        p(f"global_load_dword v2, v1, s[{S_DBG}:{S_DBG+1}] offset:8 sc1")
        p("s_waitcnt vmcnt(0)")
        for i in range(8): p(f"v_readlane_b32 s{80+i}, v2, {i}")
        p("s_mov_b32 s90, s80"); p("s_mov_b32 s91, s80")
        for i in range(1, 8):
            p(f"s_min_u32 s90, s90, s{80+i}"); p(f"s_max_u32 s91, s91, s{80+i}")
        if cfg.probe == 1: p("s_sub_u32 s90, s91, s90")
        else: p(f"s_sub_u32 s90, s{80+cfg.probe-2}, s90")
        p("s_mul_i32 s90, s90, 20")
        p("s_min_u32 s90, s90, 20000")
        p("s_memrealtime s[92:93]"); p("s_waitcnt lgkmcnt(0)")
        p("s_add_u32 s92, s92, s90")
        p.label("L_pr")
        p("s_memrealtime s[94:95]"); p("s_waitcnt lgkmcnt(0)")
        p("s_cmp_lt_u32 s94, s92")
        p("s_cbranch_scc1 L_pr")
        p.label("L_pr2")
    stamps_out()
    p("s_endpgm")

    p(".p2align 6")
    p(".type gather_table,@object")
    p.label("gather_table")
    zt = P_Z - PS
    for role in range(2):
        for lane in range(64):
            s, half = lane >> 1, lane & 1
            ad = []
            for e in range(8):
                pr = slot_pair(s, half, e) if s < (24 if role == 0 else 22) else None
                at = (lambda j, k: P_D1 - PS + k*144 + j*4) if role == 0 else (lambda j, k: P_W1 - PS + (j*26 + k)*2)
                if pr is None: ad += [zt, zt]
                elif pr[1] is None: ad += [at(pr[0], 26), zt]
                elif pr[0] == pr[1] or norm(pr) == (24, 25): ad += [at(*pr), zt]
                else: ad += [at(pr[0], pr[1]), at(pr[1], pr[0])]
            p(".short " + ", ".join(str(a) for a in ad))
    p(".size gather_table, 4096")
    return p

def header():
    return """; xDeepFM (CIN + DNN) forward, one launch, 256 workgroups (S1).
; Kernarg: idx, table, ws_cin, w_cin_out, w_dnn1, b_dnn1, w_dnn2, b_out, out, debug, ws
; @launch grid=(256,1,1) block=(512,1,1) lds=%d
.amdgcn_target "amdgcn-amd-amdhsa--gfx950"
.text
""" % LDS_SIZE
def footer():
    nv = 256
    return f""".section .rodata,"a"
.p2align 6
.amdhsa_kernel {NAME}
  .amdhsa_next_free_vgpr {nv}
  .amdhsa_next_free_sgpr 102
  .amdhsa_accum_offset {nv}
  .amdhsa_group_segment_fixed_size 0
  .amdhsa_kernarg_size 88
  .amdhsa_user_sgpr_count 2
  .amdhsa_user_sgpr_kernarg_segment_ptr 1
  .amdhsa_system_sgpr_workgroup_id_x 1
  .amdhsa_float_denorm_mode_32 3
.end_amdhsa_kernel
"""
if __name__ == "__main__":
    out = sys.argv[1]
    for a in sys.argv[2:]:
        k, v = a.split("=")
        setattr(cfg, k, type(getattr(cfg, k))(int(v)))
    open(out, "w").write(header() + build().text() + footer())
```

```python
import sys, struct, math
from asmlib import *
from slots import *

NAME = "standalone__deep_cross_xdeepfm__recsys_kernel"
class Cfg:
    stamps = 0
    NRES = 31
    R = 3
    prio_prep = 3
    prio_hi = 0
    poll_sleep = 2
    idle_sleep = 1
    gon = 5
    bal = 0
    lt0 = 2
    lt1 = 5
    early = 4
    look = 3
    cmask = 0
    catch0 = 4
    catch = 4
    etouch = 0
    dtouch = 1
    xwin = 3
    pfcode = 1
    flip = 2
    w2early = 1
    dpos = 4
    ltouch = 0
    pk = 1
    ctouch = 1
    wrot = 1
    direct = 1
    pst = -1
    pwg = 0
    pwave = 0
    probe = 0
    dbench = 0
    nodma = 0
    nobar = 0
    lb = 21
    tailprio = 0
    b2 = 26
    sw = 26
    chk = 3
    barp = 1
    arp = 1
    noprep = 0
    clrpos = 1
    xstart = 0
    xbar = 3
    pdelay = 1
    hold = 0
cfg = Cfg()

LDS_SIZE = 163840
XO = 0
WO = 8*7168
PS = WO + 96*528
P_W3 = PS; P_M3T = PS + 36864; P_D1 = PS + 38912; P_W1 = PS + 43520; P_Z = PS + 45568; P_DUM = PS + 45824
CO = LDS_SIZE - 512
IX2 = PS + 46080
assert P_DUM + 256 <= CO
C_PA, C_PB, C_XL, C_FLAG, C_GO, C_CL, C_PI = 0, 4, 8, 12, 16, 20, 24
RB = 7
BSZ = 13312
SLOT = BSZ + 8192
IDXO = RB*SLOT
assert IDXO + 8*1664 == LDS_SIZE
MBOX = 0; WS_W = 131072; BLK = 1664; WS_END = WS_W + 26*BLK; WS_STAMP = 1 << 20
S_IDX, S_TAB, S_W1, S_WCIN, S_WCO, S_B1, S_W2, S_WS = 4, 8, 12, 16, 20, 24, 28, 32
S_OUT, S_DBG, S_BOUT = 36, 38, 40
S_WAVE, S_RG, S_CP, S_FB, S_COL, S_W = 42, 43, 44, 45, 46, 47
S_PC, S_SPIN, S_X = 48, 50, 51
KA = 52
S_T = 52
S_ST = 70
V_C, V_ONE, V_POLL, V_L = 162, 163, 164, 165
FRM = "0x20000"

def f2h(x): return "0x%08x" % struct.unpack("<I", struct.pack("<f", x))[0]

def build():
    p = Prog()
    lab = [0]
    def L(n):
        lab[0] += 1
        return f"L_{n}_{lab[0]}"
    def stamp(i):
        if cfg.pst == i:
            p("s_memrealtime s[92:93]")
            p.wait0(lg=True)
        if cfg.stamps and (cfg.stamps != 3 or i == 8):
            p(f"s_memrealtime s[68:69]" if cfg.stamps != 2 or i == 8 else "s_memtime s[68:69]")
            p.wait0(lg=True)
            if cfg.stamps != 2 or i == 8: p(f"s_mov_b32 s{S_ST+i}, s68")
            else:
                p("s_sub_u32 s68, s68, s100")
                p("s_lshr_b32 s68, s68, 4")
                p(f"s_add_u32 s{S_ST+i}, s68, s{S_ST}")
    def stamps_out():
        if cfg.pst >= 0:
            stamp(8)
            sk = L("npr"); lp = L("pr")
            p(f"s_cmp_lg_u32 s2, {cfg.pwg}")
            p(f"s_cbranch_scc1 {sk}")
            p(f"s_cmp_lg_u32 s{S_WAVE}, {cfg.pwave}")
            p(f"s_cbranch_scc1 {sk}")
            if cfg.pst == 0: p("s_mov_b32 s92, s96")
            p("s_sub_u32 s90, s92, s96")
            p("s_mul_i32 s90, s90, 4")
            p("s_add_u32 s90, s90, 2000")
            p("s_min_u32 s90, s90, 20000")
            p("s_add_u32 s90, s90, s96")
            p.label(lp)
            p("s_sleep 1")
            p("s_memrealtime s[94:95]"); p("s_waitcnt lgkmcnt(0)")
            p("s_cmp_lt_u32 s94, s90")
            p(f"s_cbranch_scc1 {lp}")
            p.label(sk)
        if not cfg.stamps: return
        stamp(8)
        p("s_mov_b64 exec, 1")
        p(f"s_lshl4_add_u32 s{S_T}, s2, s{S_WAVE}")
        p(f"s_lshl_b32 s{S_T}, s{S_T}, 7")
        p(f"s_add_u32 s{S_T}, s{S_T}, {WS_STAMP}")
        p(f"v_mov_b32 v1, s{S_T}")
        p("s_memtime s[68:69]")
        p("s_waitcnt lgkmcnt(0)")
        p(f"s_sub_u32 s{S_ST+29}, s68, s100")
        for i in range(30):
            p(f"v_mov_b32 v2, s{S_ST+i}")
            p(f"global_store_dword v1, v2, s[{S_WS}:{S_WS+1}] offset:{4*i}")
    def arrive(*offs):
        p("s_mov_b64 exec, 1")
        for off in offs: p.lds(f"ds_add_u32 v{V_C}, v{V_ONE} offset:{off}", "arr")
        p("s_mov_b64 exec, -1")
    def poll_issue(off):
        p.lds(f"ds_read_b32 v{V_POLL}, v{V_C} offset:{off}", "poll")
    def check(off, target, issued=False, sleep=0):
        ok = L("ok"); sp = L("spin")
        if issued:
            p.wait(lg="poll")
            p(f"v_readfirstlane_b32 s{S_X}, v{V_POLL}")
            p(f"s_cmp_ge_u32 s{S_X}, {target}")
            p(f"s_cbranch_scc1 {ok}")
        p.label(sp)
        if sleep: p(f"s_sleep {sleep}")
        p(f"ds_read_b32 v{V_POLL}, v{V_C} offset:{off}")
        p("s_waitcnt lgkmcnt(0)")
        p(f"v_readfirstlane_b32 s{S_X}, v{V_POLL}")
        p(f"s_sub_u32 s{S_SPIN}, s{S_SPIN}, 1")
        p("s_cbranch_scc1 L_end")
        p(f"s_cmp_ge_u32 s{S_X}, {target}")
        p(f"s_cbranch_scc0 {sp}")
        if not issued: p.lg.clear()
        p.label(ok)
    def srd(s, ka, n):
        if ka is not None: p(f"s_mov_b64 s[{s}:{s+1}], s[{KA+ka}:{KA+ka+1}]")
        p(f"s_mov_b32 s{s+2}, {n}")
        p(f"s_mov_b32 s{s+3}, {FRM}")
    def touch(vaddr, soff, mask):
        p(f"s_mov_b64 exec, {mask}" if mask < (1 << 31) else f"s_mov_b32 exec_hi, {hex(mask >> 32)}")
        p(f"buffer_load_dword v250, v{vaddr}, s[{S_W1}:{S_W1+3}], s{soff} offen")
        p("s_mov_b64 exec, -1")

    def producer_index():
        p(f"s_lshr_b32 s{S_FB}, s2, 6")
        p(f"s_sub_u32 s{S_FB}, s{S_RG}, s{S_FB}")
        p(f"s_sub_u32 s{S_FB}, s{S_FB}, 1")
        p(f"s_and_b32 s{S_X}, s2, 0x37")
        p(f"s_sub_u32 s{S_X}, s{S_X}, 1")
        p(f"s_cmp_lt_u32 s{S_X}, 7")
        p(f"s_cselect_b32 s{S_FB}, s{S_FB}, 99")

    def last_marker(skip):
        p("v_lshlrev_b32 v2, 6, v0")
        p("s_waitcnt vmcnt(0)")
        stamp(12)
        p(f"v_readfirstlane_b32 s{S_X}, v27")
        p("s_mov_b64 exec, 3")
        p(f"s_cmp_lg_u32 s{S_X}, {26 + 32 - 1}")
        p(f"s_cbranch_scc1 {skip}")
        p(f"global_store_dword v2, v{V_ONE}, s[{S_DBG}:{S_DBG+1}] offset:128 sc1")

    p(f".globl {NAME}\n.p2align 8\n.type {NAME},@function")
    p.label(NAME)
    p(f"s_load_dwordx16 s[{KA}:{KA+15}], s[0:1], 0")
    p(f"s_load_dwordx4 s[{S_OUT}:{S_OUT+3}], s[0:1], 64")
    p(f"s_load_dwordx2 s[{S_WS}:{S_WS+1}], s[0:1], 80")
    if cfg.probe or cfg.pst >= 0: p("s_memrealtime s[96:97]")
    if cfg.stamps:
        p(f"s_memrealtime s[{S_ST}:{S_ST+1}]")
        p(f"s_memtime s[100:101]")
    p("v_lshrrev_b32 v1, 6, v0")
    p("v_and_b32 v0, 63, v0")
    p(f"v_readfirstlane_b32 s{S_WAVE}, v1")
    p("s_cmp_ge_u32 s2, 0x100")
    p("s_cbranch_scc1 L_end")
    p(f"s_and_b32 s3, s2, 7")
    p(f"s_lshr_b32 s{S_RG}, s2, 6")
    p(f"s_lshl3_add_u32 s{S_RG}, s{S_RG}, s3")
    p(f"s_bfe_u32 s{S_CP}, s2, 0x20004")
    p(f"v_lshlrev_b32 v{V_L}, 4, v0")
    p(f"v_lshlrev_b32 v160, 7, v0")
    srd(S_IDX, None, 4096*104)
    srd(S_W1, None, 832*1664)
    p("s_bitcmp1_b32 s2, 3")
    p("s_cbranch_scc1 L_cin")
    p(f"s_lshl3_add_u32 s3, s{S_RG}, s{S_WAVE}")
    p(f"s_mul_i32 s3, s3, 1664")
    p(f"s_mul_i32 s{S_W}, s{S_WAVE}, 1664")
    p(f"s_add_u32 m0, s{S_W}, {IDXO}")
    p(f"s_lshr_b32 s{S_X}, s2, 4")
    p(f"s_lshl3_add_u32 s{S_X}, s{S_X}, s{S_WAVE}")
    p(f"s_mul_i32 s{S_X}, s{S_X}, 2560")
    p.wait0(lg=True)
    p(f"s_mov_b64 s[{S_IDX}:{S_IDX+1}], s[{KA}:{KA+1}]")
    p(f"s_mov_b64 s[{S_W1}:{S_W1+1}], s[{KA+8}:{KA+9}]")
    for n in range(2):
        if n: p("s_mov_b32 exec_hi, 0xff")
        p.vmem(f"buffer_load_dwordx4 v{V_L}, s[{S_IDX}:{S_IDX+3}], s3 offen offset:{1024*n} lds", "idx")
    if not cfg.dtouch: p("s_mov_b32 exec_hi, -1")
    if cfg.dtouch:
        touch(160, S_X, 0xfffff); p.vm.issue("t")
    p("s_branch L_dnn")
    dnn_vm = list(p.vm.q)

    p.vm.clear(); p.lg.clear()
    p.label("L_cin")
    if cfg.dbench: p("s_endpgm")
    S_C = S_WAVE
    W3A, TBL, VV, AQ, VF, GA, MB, VT, CRAW = 28, 32, 40, 56, 72, 80, 96, 170, 152
    srd(S_WCO, None, 156)
    srd(S_WS, None, WS_END)
    p(f"s_mov_b32 s{S_SPIN}, 0x40000")
    p(f"v_lshlrev_b32 v{V_C}, 2, v0")
    p(f"v_add_u32 v{V_C}, {CO}, v{V_C}")
    p(f"v_mov_b32 v{V_ONE}, 1")
    p(f"s_cmp_ge_u32 s{S_WAVE}, 4")
    p("s_cbranch_scc1 L_xwave")
    srd(S_WCIN, None, 105456)
    producer_index()
    if cfg.noprep: p(f"s_mov_b32 s{S_FB}, 99")
    p(f"s_getpc_b64 s[{S_PC}:{S_PC+1}]")
    p.label("L_pc")
    p.wait0(lg=True)
    p(f"s_mov_b64 s[{S_WCIN}:{S_WCIN+1}], s[{KA+4}:{KA+5}]")
    p(f"s_mov_b64 s[{S_W1}:{S_W1+1}], s[{KA+8}:{KA+9}]")
    p(f"s_mov_b64 s[{S_WCO}:{S_WCO+1}], s[{KA+6}:{KA+7}]")
    p(f"s_mov_b64 s[{S_BOUT}:{S_BOUT+1}], s[{KA+14}:{KA+15}]")
    def cinit_loads():
        p(f"v_lshrrev_b32 v8, 5, v0")
        p(f"v_lshlrev_b32 v9, 3, v8")
        p(f"v_lshlrev_b32 v8, 1, v8")
        for a in range(3):
            p(f"buffer_load_dwordx2 v[{CRAW+2*a}:{CRAW+2*a+1}], v9, s[{S_WCO}:{S_WCO+3}], 0 offen offset:{16*a}")
        p(f"buffer_load_ushort v{CRAW+6}, v8, s[{S_WCO}:{S_WCO+3}], 0 offen offset:48")
        p(f"v_mov_b32 v8, 0")
        p(f"global_load_ushort v{CRAW+7}, v8, s[{S_BOUT}:{S_BOUT+1}]")
    p(f"s_and_b32 s{S_T}, s2, 0x37")
    p(f"s_cmp_eq_u32 s{S_T}, 0x21")
    p(f"s_cselect_b32 s{S_T+1}, 1, 0")
    p(f"s_cselect_b32 s{S_T}, 0x11, s{S_T}")
    p(f"s_sub_u32 s{S_T}, s{S_T}, 0x11")
    p(f"s_cmp_lt_u32 s{S_T}, 7")
    p(f"s_cselect_b32 s{S_T+3}, s{S_C}, 1")
    p(f"s_add_u32 s{S_T+3}, s{S_T+3}, 4")
    p(f"s_cmp_lg_u32 s{S_T+3}, 4")
    p("s_cbranch_scc1 L_nomc")
    for r in range(4): p(f"v_mov_b32 v{4+r}, -1")
    p(f"s_sub_u32 s{S_T}, s{S_RG}, s{S_T+1}")
    p(f"s_lshl_b32 s{S_T}, s{S_T}, 12")
    for u in range(4):
        p(f"buffer_store_dwordx4 v[4:7], v{V_L}, s[{S_WS}:{S_WS+3}], s{S_T} offen offset:{1024*u} sc1")
    p.label("L_nomc")
    p(f"s_cmp_ge_u32 s{S_FB}, 26")
    p("s_cbranch_scc1 L_cbar")
    if cfg.prio_prep: p(f"s_setprio {cfg.prio_prep}")
    p(f"s_mul_i32 s{S_T+2}, s{S_FB}, {BLK}")
    p(f"s_add_u32 s{S_T+2}, s{S_T+2}, {WS_W}")
    p(f"s_mul_i32 s{S_T}, s{S_C}, 9216")
    p(f"s_add_u32 s{S_T+1}, s{S_T}, 70304")
    p(f"s_add_u32 s{S_T}, s{S_T}, {P_W3}")
    for u in range(9):
        if u % 4 == 0:
            if u: p(f"s_add_u32 s{S_T+1}, s{S_T+1}, 0x1000")
            p(f"s_add_u32 m0, s{S_T}, {1024*u}")
            p("s_nop 0")
        p(f"buffer_load_dwordx4 v{V_L}, s[{S_WCIN}:{S_WCIN+3}], s{S_T+1} offen offset:{1024*(u % 4)} lds")
    p("v_and_b32 v2, 0x30, v0")
    p("v_bfe_u32 v1, v0, 2, 2")
    for q in range(4):
        p(f"v_xor_b32 v3, {q}, v1")
        p("v_lshl_add_u32 v3, v3, 28, v2")
        p(f"buffer_load_dwordx4 v[{AQ+4*q}:{AQ+4*q+3}], v3, s[{S_WCO}:{S_WCO+3}], 0 offen offset:104")
    p(f"s_cmp_ge_u32 s{S_C}, 2")
    p("s_cbranch_scc1 L_p23")
    p(f"s_lshl_b32 s{S_T}, s{S_C}, 11")
    p(f"s_add_u32 s{S_T}, s{S_T}, gather_table-L_pc")
    p(f"v_lshl_add_u32 v1, v0, 5, s{S_T}")
    p(f"global_load_dwordx4 v[{TBL}:{TBL+3}], v1, s[{S_PC}:{S_PC+1}]")
    p(f"global_load_dwordx4 v[{TBL+4}:{TBL+7}], v1, s[{S_PC}:{S_PC+1}] offset:16")
    p(f"s_cmp_lg_u32 s{S_C}, 0")
    p("s_cbranch_scc1 L_p1")
    p("v_lshrrev_b32 v3, 5, v0")
    p("v_mul_u32_u24 v3, 0x2a40, v3")
    p("v_and_b32 v2, 31, v0")
    p("v_lshl_add_u32 v3, v2, 1, v3")
    p(f"s_mul_i32 s{S_T}, s{S_FB}, 52")
    p(f"s_add_u32 s{S_T}, s{S_T}, 35152")
    for u in range(16):
        if u and u % 4 == 0:
            p(f"s_add_u32 s{S_T}, s{S_T}, {(4 if u != 8 else 12)*1352}")
        p(f"buffer_load_ushort v{VV+u}, v3, s[{S_WCIN}:{S_WCIN+3}], s{S_T} offen offset:{1352*(u % 4)}")
    p("s_branch L_pz")
    p.label("L_p1")
    p(f"s_mul_i32 s{S_T}, s{S_FB}, 1352")
    p(f"s_mov_b32 m0, {P_W1}")
    p("s_nop 0")
    for u in range(2):
        p(f"buffer_load_dwordx4 v{V_L}, s[{S_WCIN}:{S_WCIN+3}], s{S_T} offen offset:{1024*u} lds")
    p("s_branch L_pz")
    p.label("L_p23")
    p(f"s_cmp_lg_u32 s{S_C}, 3")
    p("s_cbranch_scc1 L_pz")
    p("v_lshlrev_b32 v1, 2, v0")
    p(f"buffer_load_dword v27, v1, s[{S_WCO}:{S_WCO+3}], 0 offen offset:52")
    p.label("L_pz")
    p("v_mov_b32 v2, 0")
    p("v_mov_b32 v3, 0")
    p(f"s_lshl_b32 s{S_T}, s{S_C}, 9")
    p(f"s_add_u32 s{S_T}, s{S_T}, {P_M3T}")
    p(f"v_lshl_add_u32 v1, v0, 3, s{S_T}")
    p("ds_write_b64 v1, v[2:3]")
    p(f"v_add_u32 v1, {P_Z - CO}, v{V_C}")
    p("ds_write_b32 v1, v2")
    p.label("L_cbar")
    if cfg.pfcode:
        sk = L("nopf")
        p(f"s_cmp_lg_u32 s{S_C}, 2")
        p(f"s_cbranch_scc1 {sk}")
        p(f"s_lshr_b32 s{S_T}, s2, 4")
        p(f"s_mul_i32 s{S_T}, s{S_T}, 2560")
        p(f"v_add_u32 v2, s{S_T}, v160")
        p(f"v_min_u32 v2, gather_table-L_pc+4092, v2")
        p("s_mov_b64 exec, 0xfffff")
        p(f"global_load_dword v161, v2, s[{S_PC}:{S_PC+1}]")
        p("s_mov_b64 exec, -1")
        p.label(sk)
    p("v_mov_b32 v2, 0")
    p(f"ds_write_b32 v{V_C}, v2")
    p.wait0(lg=True)
    p("s_barrier")
    stamp(1)
    p(f"s_cmp_lt_u32 s{S_FB}, 26")
    p("s_cbranch_scc1 L_prep")
    cinit_loads()
    p("s_waitcnt vmcnt(0)")
    stamp(13)
    p(f"s_cmp_lg_u32 s{S_T+3}, 4")
    p("s_cbranch_scc1 L_setup")
    p("v_mov_b32 v4, 0")
    p("s_mov_b64 exec, 1")
    p(f"global_atomic_add v27, v4, v{V_ONE}, s[{S_DBG}:{S_DBG+1}] sc0 sc1")
    p("s_mov_b64 exec, -1")
    last_marker("L_mx")
    p.label("L_mx")
    p("s_mov_b64 exec, -1")
    p("s_branch L_setup")
    p.label("L_prep")
    p("v_bfe_u32 v1, v0, 2, 2")
    p("v_lshrrev_b32 v4, 4, v0")
    p("v_lshl_add_u32 v4, v4, 3, v1")
    p("v_add_u32 v5, 4, v4")
    p("v_min_u32 v4, 25, v4")
    p("v_min_u32 v5, 25, v5")
    p("v_and_b32 v6, 3, v0")
    p(f"s_mul_i32 s{S_T}, s{S_C}, 384")
    p(f"s_add_u32 s{S_T}, s{S_T}, {P_W3}")
    p(f"v_lshl_add_u32 v6, v6, 3, s{S_T}")
    p(f"s_movk_i32 s{S_T+1}, 1352")
    p(f"v_mad_u32_u24 v2, v4, s{S_T+1}, v6")
    p(f"v_mad_u32_u24 v3, v5, s{S_T+1}, v6")
    p(f"s_mul_i32 s{S_T}, s{S_C}, 192")
    p(f"s_movk_i32 s{S_T+1}, -1662")
    p(f"v_mov_b32 v7, {P_DUM}")
    for u in range(3):
        p(f"v_add_u32 v4, s{S_T}, v0")
        if u < 2: p(f"s_add_u32 s{S_T}, s{S_T}, 64")
        p("v_mul_u32_u24 v5, 2521, v4")
        p("v_lshrrev_b32 v5, 16, v5")
        p("v_cmp_gt_u32 vcc, 0x2a4, v4")
        p("v_lshlrev_b32 v4, 6, v4")
        p(f"v_mad_i32_i24 v4, v5, s{S_T+1}, v4")
        p(f"v_add_u32 v4, {P_M3T}, v4")
        p(f"v_cndmask_b32 v{8+u}, v7, v4, vcc")
    p("v_and_b32 v5, 31, v0")
    p("v_lshrrev_b32 v4, 5, v0")
    p("v_lshlrev_b32 v6, 6, v5")
    p("v_lshl_add_u32 v6, v4, 4, v6")
    p(f"v_add_u32 v28, {P_M3T}, v6")
    p("v_mul_u32_u24 v5, 0x90, v5")
    p("v_lshl_add_u32 v5, v4, 4, v5")
    p(f"v_add_u32 v29, {P_D1}, v5")
    p("v_lshrrev_b32 v1, 1, v0")
    p("v_lshl_add_u32 v4, v1, 1, 1")
    p("v_add_u32 v5, 22, v1")
    p("v_min_u32 v4, v5, v4")
    p("v_lshlrev_b32 v5, 1, v1")
    p(f"s_cmp_eq_u32 s{S_C}, 0")
    p("s_cselect_b64 vcc, -1, 0")
    p("v_and_b32 v6, 1, v0")
    p(f"v_mov_b32 v11, {PS}")
    p("v_cndmask_b32 v4, v5, v4, vcc")
    p("v_lshl_add_u32 v4, v4, 1, v6")
    p("v_lshlrev_b32 v30, 4, v4")
    p(f"v_add_u32 v4, {P_M3T + 26*64 - CO}, v{V_C}")
    p(f"s_cmp_lg_u32 s{S_C}, 3")
    p.wait0(vm=True)
    p("s_cbranch_scc1 L_w1")
    p("s_mov_b64 exec, 0x1fff")
    p("ds_write_b32 v4, v27")
    p("s_mov_b64 exec, -1")
    p.label("L_w1")
    stamp(10)
    p("s_barrier")
    extra = []
    for u in range(8):
        extra.append(f"v_add_u32_sdwa v{GA+2*u}, v11, v{TBL+u} dst_sel:DWORD dst_unused:UNUSED_PAD src0_sel:DWORD src1_sel:WORD_0")
        extra.append(f"v_add_u32_sdwa v{GA+2*u+1}, v11, v{TBL+u} dst_sel:DWORD dst_unused:UNUSED_PAD src0_sel:DWORD src1_sel:WORD_1")
    for u in range(8): extra.append(f"v_lshl_or_b32 v{VF+u}, v{VV+2*u+1}, 16, v{VV+2*u}")
    def m3_mfma(U):
        u, q = divmod(U, 4)
        p.wait(lg=f"m{U}")
        cc = "0" if q == 0 else f"v[{12+4*u}:{15+4*u}]"
        p(f"v_mfma_f32_16x16x32_bf16 v[{12+4*u}:{15+4*u}], v[{AQ+4*q}:{AQ+4*q+3}], v[{MB+4*U}:{MB+4*U+3}], {cc}")
    for T in range(12):
        p.lds(f"ds_read_b64_tr_b16 v[{MB+4*T}:{MB+4*T+1}], v2 offset:{32*T}", f"m{T}")
        p.lds(f"ds_read_b64_tr_b16 v[{MB+4*T+2}:{MB+4*T+3}], v3 offset:{32*T}", f"m{T}")
        if T == 5:
            for _ in range(8): p(extra.pop(0))
        if T >= 6: m3_mfma(T - 6)
    for U in range(6, 12):
        m3_mfma(U)
        if U == 8:
            p("v_cvt_pk_bf16_f32 v24, v12, v12")
            p("ds_write_b16 v8, v24")
        else:
            for _ in range(2): p(extra.pop(0))
    p("v_cvt_pk_bf16_f32 v25, v16, v16")
    p("ds_write_b16 v9, v25")
    while extra: p(extra.pop(0))
    p(f"v_cvt_pk_bf16_f32 v26, v20, v20")
    p(f"ds_write_b16 v10, v26")
    p.wait0(lg=True)
    p("s_barrier")
    stamp(11)
    p(f"s_cmp_eq_u32 s{S_C}, 0")
    p("s_cbranch_scc1 L_pT")
    p(f"s_cmp_lg_u32 s{S_C}, 1")
    p("s_cbranch_scc1 L_pdone")
    for u in range(16): p(f"v_mov_b32 v{MB+16+u}, 0")
    for u in range(16): p(f"ds_read_u16_d16_hi v{MB+16+u}, v{GA+u}")
    p("s_mov_b32 exec_hi, 0xfff")
    p("s_branch L_pst")
    p.label("L_pT")
    p("ds_read_b128 v[12:15], v28")
    p("ds_read_b128 v[16:19], v28 offset:32")
    p("s_waitcnt lgkmcnt(1)")
    p(f"v_mfma_f32_32x32x16_bf16 v[{MB}:{MB+15}], v[{VF}:{VF+3}], v[12:15], 0")
    p("s_waitcnt lgkmcnt(0)")
    p(f"v_mfma_f32_32x32x16_bf16 v[{MB}:{MB+15}], v[{VF+4}:{VF+7}], v[16:19], v[{MB}:{MB+15}]")
    p("s_nop 11")
    for a in range(4): p(f"ds_write_b128 v29, v[{MB+4*a}:{MB+4*a+3}] offset:{32*a}")
    for u in range(16): p(f"ds_read_b32 v{MB+16+u}, v{GA+u}")
    p("s_mov_b32 exec_hi, 0xffff")
    p.label("L_pst")
    for e in range(8):
        if e % 2 == 0: p(f"s_waitcnt lgkmcnt({12 - 2*e})")
        p(f"v_add_f32 v{MB+16+2*e}, v{MB+16+2*e}, v{MB+16+2*e+1}")
        if e % 2:
            p(f"v_cvt_pk_bf16_f32 v{4+e//2}, v{MB+14+2*e}, v{MB+16+2*e}")
            p(f"v_min_u32 v{4+e//2}, -2, v{4+e//2}")
    p(f"buffer_store_dwordx4 v[4:7], v30, s[{S_WS}:{S_WS+3}], s{S_T+2} offen sc1")
    p(f"v_mov_b32 v8, s{S_C}")
    p("v_lshlrev_b32 v8, 2, v8")
    p("s_mov_b64 exec, 1")
    p(f"buffer_store_dword v{V_ONE}, v8, s[{S_WS}:{S_WS+3}], s{S_T+2} offen offset:1536 sc1")
    p.label("L_pdx")
    p("s_mov_b64 exec, -1")
    p.label("L_pdone")
    stamp(21)
    cinit_loads()
    p("s_waitcnt vmcnt(0)")
    p("s_branch L_setup")
    p.label("L_xwave")
    S_J, S_XA, S_XB, S_XM, S_TB = S_W, S_T+2, S_T+3, S_T+4, S_T+5
    p(f"s_sub_u32 s{S_J}, s{S_WAVE}, 4")
    p(f"s_lshl3_add_u32 s3, s{S_RG}, s{S_CP}")
    p(f"s_lshr_b32 s{S_FB}, s{S_J}, 1")
    p(f"s_lshl2_add_u32 s3, s{S_FB}, s3")
    p(f"s_mul_i32 s3, s3, 1664")
    p(f"s_and_b32 s{S_X}, s{S_J}, 1")
    p(f"s_mul_i32 s{S_X}, s{S_X}, 832")
    p(f"s_add_u32 s3, s3, s{S_X}")
    p(f"s_mul_i32 s{S_X}, s{S_J}, 832")
    p(f"s_add_u32 m0, s{S_X}, {IX2}")
    p(f"s_lshr_b32 s{S_X}, s2, 6")
    p(f"s_mul_i32 s{S_X}, s{S_X}, 3")
    p(f"s_add_u32 s{S_X}, s{S_X}, s{S_CP}")
    p(f"s_lshl2_add_u32 s{S_X}, s{S_X}, s{S_J}")
    p(f"s_mul_i32 s{S_X}, s{S_X}, {52*128}")
    p(f"s_add_u32 s{S_X}, s{S_X}, {(2496 - 4*52)*128}")
    p.wait0(lg=True)
    p(f"s_mov_b64 s[{S_IDX}:{S_IDX+1}], s[{KA}:{KA+1}]")
    p(f"s_mov_b64 s[{S_W1}:{S_W1+1}], s[{KA+8}:{KA+9}]")
    p("s_mov_b32 exec_hi, 0xfffff")
    p(f"buffer_load_dwordx4 v{V_L}, s[{S_IDX}:{S_IDX+3}], s3 offen lds")
    p("s_mov_b32 exec_hi, -1")
    p(f"s_mov_b64 s[{S_WCO}:{S_WCO+1}], s[{KA+6}:{KA+7}]")
    p(f"s_mov_b64 s[{S_BOUT}:{S_BOUT+1}], s[{KA+14}:{KA+15}]")
    srd(S_TAB, 2, 6400000)
    if cfg.etouch:
        p(f"s_cmp_eq_u32 s{S_CP}, 0")
        p("s_cbranch_scc1 L_noet")
        touch(160, S_X, (1 << 52) - 1)
        p("s_waitcnt vmcnt(1)")
        p.label("L_noet")
    p("v_lshrrev_b32 v1, 4, v0")
    p("v_and_b32 v2, 12, v0")
    p(f"s_mul_i32 s3, s{S_J}, 104")
    p(f"s_add_u32 s3, s3, {IX2}")
    p(f"v_add_u32 v2, s3, v2")
    p(f"s_movk_i32 s{S_X}, 416")
    p(f"v_mad_u32_u24 v3, v1, s{S_X}, v2")
    if cfg.bal:
        p(f"s_cmp_eq_u32 s{S_J}, 3")
        p(f"s_cselect_b32 s{S_X}, 104, 312")
        p(f"s_cselect_b32 s3, {13*104}, {20*104}")
        p(f"v_add_u32 v2, s3, v2")
        p(f"v_mad_u32_u24 v4, v1, s{S_X}, v2")
    else: p("v_add_u32 v4, 0x680, v3")
    p("v_and_b32 v1, 3, v0")
    p("v_lshlrev_b32 v5, 4, v1")
    p("v_bfe_u32 v1, v0, 3, 1")
    p("v_lshl_add_u32 v6, v1, 30, v5")
    p(f"s_mul_i32 s{S_XM}, s{S_J}, 7168")
    p(f"s_lshr_b32 s{S_TB}, s2, 4")
    p(f"s_lshl2_add_u32 s{S_TB}, s{S_TB}, s{S_J}")
    p(f"s_mul_i32 s{S_TB}, s{S_TB}, {46*128}")
    p(f"s_add_u32 s{S_TB}, s{S_TB}, {4992*128}")
    assert not cfg.etouch
    producer_index()
    S_PR = S_T + 6
    p(f"s_cmp_eq_u32 s{S_J}, 0")
    p(f"s_cselect_b32 s{S_PR}, s{S_FB}, 99")
    p(f"s_cmp_ge_u32 s{S_PR}, 26")
    p("s_cbranch_scc1 L_noclr")
    for r in range(4): p(f"v_mov_b32 v{12+r}, -1")
    p(f"s_mul_i32 s{S_T}, s{S_FB}, {BLK}")
    p(f"s_add_u32 s{S_T}, s{S_T}, {WS_W}")
    p(f"buffer_store_dwordx4 v[12:15], v{V_L}, s[{S_WS}:{S_WS+3}], s{S_T} offen sc1")
    p("s_mov_b32 exec_hi, 0xff")
    p(f"buffer_store_dwordx4 v[12:15], v{V_L}, s[{S_WS}:{S_WS+3}], s{S_T} offen offset:1024 sc1")
    p("s_mov_b32 exec_hi, -1")
    p("s_waitcnt vmcnt(2)")
    p("s_branch L_clr")
    p.label("L_noclr")
    p("s_waitcnt vmcnt(0)")
    p.label("L_clr")
    p("s_barrier")
    for u in range(2):
        for Q in range(0, 6, 2): p(f"ds_read2_b32 v[{VT+7*u+u+Q}:{VT+7*u+u+Q+1}], v{3+u} offset0:{4*Q} offset1:{4*Q+4}")
        p(f"ds_read_b32 v{VT+8*u+6}, v{3+u} offset:96")
    stamp(1)
    p.vm.clear()
    assert cfg.xwin < 14
    p.wait0(lg=True)
    go_done = False
    for Q in range(7):
        for u in range(2):
            n = 2*Q + u
            if n == cfg.xbar and not cfg.noprep:
                p(f"s_cmp_ge_u32 s{S_FB}, 26")
                p("s_cbranch_scc1 L_nobar")
                p("s_barrier")
                p(f"s_waitcnt vmcnt({n})")
                p(f"s_cmp_ge_u32 s{S_PR}, 26")
                p("s_cbranch_scc1 L_noat")
                p("v_mov_b32 v12, 0")
                p("s_mov_b64 exec, 1")
                p(f"global_atomic_add v27, v12, v{V_ONE}, s[{S_DBG}:{S_DBG+1}] sc0 sc1")
                p("s_mov_b64 exec, -1")
                p.label("L_noat")
                p("s_barrier")
                p(f"s_cmp_ge_u32 s{S_PR}, 26")
                p("s_cbranch_scc1 L_nobar")
                last_marker("L_lm")
                p.label("L_lm")
                p("s_mov_b64 exec, -1")
                p.label("L_nobar")
            if n == cfg.xstart and n: p.wait(vm="x0")
            if n >= cfg.xwin:
                p.wait(vm=f"x{n - cfg.xwin}")
                if n - cfg.xwin == 2*cfg.gon + 1: arrive(C_GO); go_done = True
            p(f"s_add_u32 m0, s{S_XM}, {XO + 4*7168*u + 1024*Q}")
            p(f"v_lshl_add_u32 v{VT+8*u+Q}, v{VT+8*u+Q}, 6, v{6 if Q == 6 else 5}")
            p.vmem(f"buffer_load_dwordx4 v{VT+8*u+Q}, s[{S_TAB}:{S_TAB+3}], 0 offen lds", f"x{n}")
        for u, at in enumerate((cfg.lt0, cfg.lt1)):
            if at == Q and cfg.ltouch:
                touch(160, S_TB, (1 << 46) - 1); p.vm.issue("t")
                p(f"s_add_u32 s{S_TB}, s{S_TB}, {2944*128}")
    def late_touch():
        touch(160, S_TB, (1 << 46) - 1); p.vm.issue("t")
        p(f"s_add_u32 s{S_TB}, s{S_TB}, {2944*128}")
    cinit_loads()
    for _ in range(5): p.vm.issue("ci")
    if not go_done:
        p.wait(vm=f"x{2*cfg.gon+1}")
        arrive(C_GO)
    p.wait(vm="x13")
    arrive(C_XL)
    p.wait(vm="ci")
    for at in (cfg.lt0, cfg.lt1):
        if at == 7 and cfg.ltouch: late_touch()
    if cfg.ltouch and cfg.lt1 == 8: p(f"s_mov_b32 s{S_FB}, s{S_TB}")
    stamp(6)

    p.label("L_setup")
    if cfg.stamps: p(f"s_mov_b32 s{S_ST+27}, 0")
    p(f"s_setprio {cfg.prio_prep}")
    p.vm.clear(); p.lg.clear()
    AX, AT, CI, X0 = 0, 16, 32, 48
    Z = [74, 78]; PT = 82; ZL = 90
    XA = {1: 98, -3: 99, -1: 100}; WA = 101; SM = [102, 103, 104, 105]; MBX = 106; VMB = 110; VBO = 111
    RING = 112; RES = RING + 4*cfg.R
    WT = 112
    assert RES + 4*cfg.NRES <= 256
    NR = 4
    S_N, S_MB, S_O = S_T+7, S_T+9, S_T+11
    S_NR = S_T + 12
    p(f"s_and_b32 s{S_T+3}, s{S_WAVE}, 3")
    p(f"s_lshl_b32 s{S_T+2}, s{S_T+3}, 2")
    p(f"s_lshl_b32 s{S_T}, s{S_T+3}, 8")
    p(f"s_mov_b32 s{S_N}, 4")
    p(f"s_add_u32 s{S_T+2}, s{S_T+2}, 3")
    p(f"s_cmp_lt_u32 s{S_WAVE}, 4")
    p("s_cbranch_scc1 L_rowp")
    p(f"s_add_u32 s{S_T}, s{S_T}, {4*7168}")
    if cfg.bal:
        p(f"s_mov_b32 s{S_N}, 3")
        p(f"s_mul_i32 s{S_T+2}, s{S_T+3}, 3")
        p(f"s_add_u32 s{S_T+2}, s{S_T+2}, 70")
    else: p(f"s_add_u32 s{S_T+2}, s{S_T+2}, 64")
    p.label("L_rowp")
    p(f"s_lshl4_add_u32 s{S_T+2}, s{S_CP}, s{S_T+2}")
    p.label("L_setup2")
    p(f"s_mov_b32 s{S_NR}, s{S_N}")
    p("v_and_b32 v1, 31, v0")
    p("v_lshrrev_b32 v2, 5, v0")
    p(f"v_lshl_add_u32 v3, v1, 1, s{S_T}")
    p(f"v_lshl_add_u32 v{XA[1]}, v2, 6, v3")
    p("v_mul_u32_u24 v4, 0xc0, v2")
    p(f"v_sub_u32 v{XA[-3]}, v3, v4")
    p("v_lshlrev_b32 v4, 6, v2")
    p(f"v_sub_u32 v{XA[-1]}, v3, v4")
    p("v_mul_u32_u24 v4, 0x210, v2")
    p("v_lshl_add_u32 v4, v1, 4, v4")
    p(f"v_add_u32 v{WA}, {WO}, v4")
    for r in range(26): p(f"v_mov_b32 v{X0+r}, 0")
    for a in range(3):
        for h in range(2):
            p(f"v_lshlrev_b32 v{CI+4*a+2*h}, 16, v{CRAW+2*a+h}")
            p(f"v_and_b32 v{CI+4*a+2*h+1}, 0xffff0000, v{CRAW+2*a+h}")
    p(f"v_lshlrev_b32 v{CI+12}, 16, v{CRAW+6}")
    for r in range(13, 16): p(f"v_mov_b32 v{CI+r}, 0")
    p(f"v_lshlrev_b32 v{VBO}, 16, v{CRAW+7}")
    p("v_lshrrev_b32 v1, 3, v0")
    p("v_min_u32 v3, 1, v1")
    p("v_lshlrev_b32 v2, 9, v0")
    p(f"v_lshl_add_u32 v{VMB}, v3, 30, v2")
    p(f"s_lshl_b32 s{S_T+1}, s{S_RG}, 7")
    p(f"s_add_u32 s{S_T+1}, s{S_T+1}, s{S_T+2}")
    p(f"s_lshl_b32 s{S_O}, s{S_T+1}, 1")
    p(f"s_lshl_b32 s{S_T}, s{S_RG}, 10")
    p(f"s_add_u32 s{S_MB}, s{S_T+2}, s{S_T}")
    p(f"s_sub_u32 s{S_MB}, s{S_MB}, 3")
    p(f"s_lshl_b32 s{S_MB}, s{S_MB}, 2")
    p(f"v_mov_b32 v{ZL+7}, 0")
    p(f"s_cmp_ge_u32 s{S_WAVE}, 4")
    p("s_cbranch_scc1 L_xz")
    p("v_and_b32 v2, 7, v0")
    p(f"v_mul_u32_u24 v3, {BLK}, v1")
    p("v_lshl_add_u32 v3, v2, 4, v3")
    p("v_mul_u32_u24 v4, 0x210, v2")
    p(f"s_mul_i32 s{S_T}, s{S_C}, {24*528}")
    p(f"s_add_u32 s{S_T}, s{S_T}, {WO}")
    p(f"v_add_u32 v4, s{S_T}, v4")
    p("v_lshl_add_u32 v5, v1, 4, v4")
    p("v_cmp_eq_u32 vcc, 1, v1")
    p("v_add_u32 v6, 48, v5")
    p("v_subrev_u32 v7, 48, v5")
    p("v_cndmask_b32 v6, v5, v6, vcc")
    p("v_cmp_eq_u32 vcc, 4, v1")
    p(f"s_cmp_eq_u32 s{S_C}, 3")
    p(f"s_cselect_b32 s{S_T+1}, 4, 0")
    p("v_cndmask_b32 v6, v6, v7, vcc")
    p(f"v_and_b32 v7, s{S_T+1}, v2")
    p("v_lshl_add_u32 v7, v7, 28, v3")
    p("v_and_b32 v8, 31, v0")
    p("v_lshrrev_b32 v9, 5, v0")
    p(f"v_mul_u32_u24 v8, {BLK}, v8")
    p("v_lshl_add_u32 v8, v9, 2, v8")
    p(f"s_mul_i32 s{S_T}, s{S_C}, 384")
    p(f"s_add_u32 s{S_T}, s{S_T}, {WS_W}")
    p(f"s_and_b32 s{S_T+1}, s{S_CP}, {1 if cfg.wrot else 0}")
    p(f"s_mul_i32 s{S_T+2}, s{S_T+1}, 26624")
    for k in range(4):
        p(f"s_xor_b32 s{S_T+3+k}, s{S_T+2}, {26624*(k >> 1)}")
        p(f"s_add_u32 s{S_T+3+k}, s{S_T+3+k}, s{S_T}")
        if k & 1: p(f"s_add_u32 s{S_T+3+k}, s{S_T+3+k}, 13312")
    p(f"s_lshl_b32 s{S_T+2}, s{S_T+1}, 8")
    p(f"s_cmp_eq_u32 s{S_T+1}, 0")
    p("s_cselect_b64 vcc, -1, 0")
    p(f"v_add_u32 v12, s{S_T+2}, v5")
    p(f"s_xor_b32 s{S_T+2}, s{S_T+2}, 0x100")
    p("v_add_u32 v6, 0x180, v6")
    p("v_add_u32 v15, 0x80, v5")
    p(f"v_add_u32 v14, s{S_T+2}, v5")
    p("v_cndmask_b32 v13, v6, v15, vcc")
    p("v_cndmask_b32 v15, v15, v6, vcc")
    p("v_mov_b32 v10, 0")
    check(C_GO, 4, sleep=2)
    stamp(22)
    p(f"s_mov_b32 s{S_T+13}, {WS_W}")
    if cfg.noprep: p("s_branch L_wload")
    if cfg.direct:
        p(f"s_load_dword s{S_X}, s[{S_DBG}:{S_DBG+1}], 192")
        p("s_waitcnt lgkmcnt(0)")
        p(f"s_cmp_lg_u32 s{S_X}, 0")
        p("s_cbranch_scc1 L_wload")
        if cfg.stamps: p(f"s_add_u32 s{S_ST+27}, s{S_ST+27}, 100")
    p(f"s_cmp_lg_u32 s{S_C}, 0")
    p("s_cbranch_scc1 L_pw")
    p.label("L_probe")
    p(f"global_load_dword v11, v10, s[{S_DBG}:{S_DBG+1}] offset:128 sc1")
    p(f"buffer_load_dword v9, v8, s[{S_WS}:{S_WS+3}], s{S_T+13} offen offset:1536 sc1")
    p("s_waitcnt vmcnt(0)")
    p("v_add_u32 v11, -1, v11")
    p("v_max_u32 v9, v9, v11")
    p("v_cmp_eq_u32 vcc, -1, v9")
    p("s_nop 1")
    p("s_cmp_eq_u64 vcc, 0")
    p("s_cbranch_scc1 L_wload")
    p.label("L_retry")
    if cfg.stamps: p(f"s_add_u32 s{S_ST+27}, s{S_ST+27}, 1")
    p(f"s_sleep {cfg.poll_sleep}")
    p(f"s_sub_u32 s{S_SPIN}, s{S_SPIN}, 1")
    p("s_cbranch_scc0 L_probe")
    p("s_endpgm")
    p.label("L_pw")
    check(C_FLAG, 1, sleep=2)
    p("s_branch L_wl2")
    p.label("L_wload")
    arrive(C_FLAG)
    p.label("L_wl2")
    stamp(2)
    for J in range(4):
        for Fi in range(3):
            r = WT + 4*(3*J + Fi)
            p.vmem(f"buffer_load_dwordx4 v[{r}:{r+3}], v{7 if Fi == 2 else 3}, s[{S_WS}:{S_WS+3}], s{S_T+3+J} offen offset:{128*Fi} sc1", f"w{J}{Fi}")
    first = True
    for J in range(4):
        for Fi in range(3):
            r = WT + 4*(3*J + Fi)
            p.wait(vm=f"w{J}{Fi}")
            p(f"ds_write_b128 v{12+J}, v[{r}:{r+3}] offset:{4224*Fi}")
            if first: p(f"v_max_u32 v9, v{r}, v{r+1}")
            else: p(f"v_max3_u32 v9, v{r}, v{r+1}, v9")
            p(f"v_max3_u32 v9, v{r+2}, v{r+3}, v9")
            first = False
    p("v_cmp_eq_u32 vcc, -1, v9")
    p("s_nop 1")
    p("s_cmp_eq_u64 vcc, 0")
    p("s_cbranch_scc0 L_retry")
    p.label("L_xz")
    check(C_XL, 4, sleep=cfg.idle_sleep)
    def x_read(r):
        p.lds(f"ds_read_u16_d16_hi v{X0+r}, v{XA[pi(r)-r]} offset:{1024*(r >> 2) + 64*(r & 3)}", f"x{r}")
    for r in range(26): x_read(r)
    def z_ops(n):
        ops = []
        for e in range(4):
            t = PT + 2*(e % 4)
            (a, b), (c, d) = S[8*n + 2*e], S[8*n + 2*e + 1]
            ops.append(("v", f"v_mul_f32 v{t}, v{X0+a}, v{X0+b}", (a, b)))
            ops.append(("v", f"v_mul_f32 v{t+1}, v{X0+c}, v{X0+d}", (c, d)))
        cv = [("v", f"v_cvt_pk_bf16_f32 v{Z[n % 2]+e}, v{PT+2*e}, v{PT+2*e+1}", ()) for e in range(4)]
        return ops[0:4] + cv[0:1] + ops[4:6] + cv[1:2] + ops[6:8] + cv[2:4]
    for o in z_ops(0):
        p.wait(lg=tuple(f"x{r}" for r in o[2]))
        p(o[1])
    for d in XA.values(): p(f"v_add_u32 v{d}, 0x1c00, v{d}")
    p.wait0(lg=True)
    p("s_barrier")
    if cfg.ltouch and cfg.lt1 == 8:
        p(f"s_cmp_lt_u32 s{S_WAVE}, 4")
        p("s_cbranch_scc1 L_go")
        touch(160, S_FB, (1 << 46) - 1)
    p.label("L_go")
    p("s_setprio 0")
    if cfg.flip:
        p(f"s_cmp_lt_u32 s{S_WAVE}, 4")
        p("s_cbranch_scc1 L_prio")
        p(f"s_setprio 1")
        p.label("L_prio")
    stamp(3)
    order = []
    for n in range(22):
        order.append(("X", n)); order.append(("T", n))
        if n == 14: order.append(("T", 22))
        if n == 18: order.append(("T", 23))
    fr_of = lambda k, n: (2*n if k == "X" else 2*n + 1) if n < 22 else n + 22
    nn = 46 - cfg.NRES
    assert nn % cfg.R == 0
    nonres = [int((u + 0.5)*46/nn) for u in range(nn)]
    wreg = {}; rr = 0
    for k in range(46):
        if k in nonres: wreg[k] = RING + 4*(nonres.index(k) % cfg.R)
        else: wreg[k] = RES + 4*rr; rr += 1
    def w_read(k):
        p.lds(f"ds_read_b128 v[{wreg[k]}:{wreg[k]+3}], v{WA} offset:{1056*fr_of(*order[k])}", f"w{k}")
    for k in range(46):
        if k not in nonres or nonres.index(k) < cfg.R: w_read(k)
    p.wait0(lg=True)
    stamp(5)
    def mfma(k):
        kind, n = order[k]
        zb = Z[n % 2] if n < 22 else ZL + 4*(n - 22)
        acc = AX if kind == "X" else AT
        cc = f"v[{acc}:{acc+15}]"
        if n == 0: cc = "0" if kind == "X" else f"v[{CI}:{CI+15}]"
        return f"v_mfma_f32_32x32x16_bf16 v[{acc}:{acc+15}], v[{wreg[k]}:{wreg[k]+3}], v[{zb}:{zb+3}], {cc}"
    lin_ops = []
    for u in range(8):
        a = LIN[min(2*u, 12)]; b = LIN[min(2*u + 1, 12)]
        lin_ops.append(("v", f"v_cvt_pk_bf16_f32 v{ZL+u}, v{X0+a}, v{X0+b}", (a, b)))
    def body(emit_mb):
        groups = [z_ops(n) for n in range(1, 22)] + [z_ops(0)]
        groups[10] = lin_ops[:7] + groups[10]
        flat = [(g, o) for g, ops in enumerate(groups) for o in ops]
        lastuse = {}
        for i, (g, o) in enumerate(flat):
            if g < 21:
                for r in o[2]: lastuse[r] = i
        for r in range(26): lastuse.setdefault(r, -1)
        for g, ops in enumerate(groups):
            mf = [kk for kk in range(46) if order[kk] in (("X", g), ("T", g))]
            if g == 14: mf.append(order.index(("T", 22)))
            if g == 18: mf.append(order.index(("T", 23)))
            items = []
            base = sum(len(x) for x in groups[:g])
            if g == 0:
                for r in range(26):
                    if lastuse[r] == -1: items.append(("x", r))
            for i, o in enumerate(ops):
                items.append(o)
                for r in range(26):
                    if lastuse[r] == base + i: items.append(("x", r))
            if g == 21:
                pos = [0, 0]
            else:
                n_it = len(items)
                pos = [2 + (j*n_it)//len(mf) for j in range(len(mf))]
            j = 0
            for i, it in enumerate(items + [None]):
                while j < len(mf) and pos[j] <= i:
                    kk = mf[j]
                    if g == 21 and j == 0: p("s_nop 1")
                    p.wait(lg=f"w{kk}")
                    p(mfma(kk))
                    if kk in nonres:
                        w_read(nonres[(nonres.index(kk) + cfg.R) % nn])
                    j += 1
                if it is None: break
                if it[0] == "x": x_read(it[1])
                else:
                    p.wait(lg=tuple(f"x{r}" for r in it[2]))
                    p(it[1])
            if g == 15: emit_mb()
        for k in range(NR - 1): p(f"v_mov_b32 v{SM[k]}, v{SM[k+1]}")
        for d in XA.values(): p(f"v_add_u32 v{d}, 0x1c00, v{d}")
        s0 = SM[NR-1]
        p(f"v_mul_f32 v{s0}, v{AX}, v{AT}")
        p(f"v_mul_f32 v{PT}, v{AX+1}, v{AT+1}")
        for r in range(2, 13):
            p(f"v_fmac_f32 v{s0 if r % 2 == 0 else PT}, v{AX+r}, v{AT+r}")
        p(f"s_sub_u32 s{S_N}, s{S_N}, 1")
        p(f"v_add_f32 v{s0}, v{s0}, v{PT}")
    def mb_loads():
        p(f"buffer_load_dwordx{NR} v[{MBX}:{MBX+NR-1}], v{VMB}, s[{S_WS}:{S_WS+3}], s{S_MB} offen sc1")
    def emit_mb():
        sk = L("nomb")
        p(f"s_cmp_lg_u32 s{S_N}, 1")
        p(f"s_cbranch_scc1 {sk}")
        mb_loads()
        p.label(sk)
    save = p.L; p.L = []
    body(lambda: None)
    st1 = list(p.lg.q)
    p.L = save
    p(".p2align 3")
    p.label("L_row")
    body(emit_mb)
    assert st1 == p.lg.q
    if cfg.stamps in (1, 2):
        for i in range(3): p(f"s_mov_b32 s{S_ST+23+i}, s{S_ST+24+i}")
        stamp(26)
    if cfg.flip:
        p(f"s_cmp_lg_u32 s{S_N}, {4 - cfg.flip}")
        p("s_cbranch_scc1 L_noflip")
        p("s_setprio 0")
        p.label("L_noflip")
    p(f"s_cmp_lg_u32 s{S_N}, 0")
    p("s_cbranch_scc1 L_row")
    p.label("L_mbw")
    p("s_waitcnt vmcnt(0)")
    if NR == 4:
        p(f"v_max3_u32 v1, v{MBX}, v{MBX+1}, v{MBX+2}")
        p(f"v_max_u32 v1, v1, v{MBX+3}")
    else: p(f"v_max_u32 v1, v{MBX}, v{MBX+1}")
    p("v_cmp_eq_u32 vcc, -1, v1")
    p("s_nop 1")
    p("s_cmp_eq_u64 vcc, 0")
    p("s_cbranch_scc1 L_mbok")
    p("s_sleep 1")
    mb_loads()
    p(f"s_sub_u32 s{S_SPIN}, s{S_SPIN}, 1")
    p("s_cbranch_scc0 L_mbw")
    p("s_endpgm")
    p.label("L_mbok")
    for k in range(NR): p(f"v_add_f32 v{SM[k]}, v{SM[k]}, v{MBX+k}")
    for ctl in ("quad_perm:[1,0,3,2] row_mask:0xf", "quad_perm:[2,3,0,1] row_mask:0xf", "row_half_mirror row_mask:0xf",
                "row_mirror row_mask:0xf", "row_bcast:15 row_mask:0xa", "row_bcast:31 row_mask:0xc"):
        if NR == 2: p("s_nop 0")
        for k in range(NR): p(f"v_add_f32_dpp v{SM[k]}, v{SM[k]}, v{SM[k]} {ctl} bank_mask:0xf")
    for k in range(NR): p(f"v_add_f32 v{SM[k]}, v{SM[k]}, v{VBO}")
    p(f"v_cvt_pk_bf16_f32 v2, v{SM[0]}, v{SM[1]}")
    p(f"v_cvt_pk_bf16_f32 v3, v{SM[2]}, v{SM[3]}")
    p(f"v_mov_b32 v1, s{S_O}")
    p("s_mov_b32 exec_lo, 0")
    p("s_mov_b32 exec_hi, 0x80000000")
    if cfg.bal:
        p(f"s_cmp_eq_u32 s{S_NR}, 4")
        p("s_cbranch_scc1 L_st4")
        p(f"global_store_short_d16_hi v1, v3, s[{S_OUT}:{S_OUT+1}]")
        p(f"s_cmp_eq_u32 s{S_NR}, 1")
        p("s_cbranch_scc1 L_std")
        p(f"global_store_short v1, v3, s[{S_OUT}:{S_OUT+1}] offset:-2")
        p(f"global_store_short_d16_hi v1, v2, s[{S_OUT}:{S_OUT+1}] offset:-4")
        p("s_branch L_std")
        p.label("L_st4")
    p(f"global_store_dwordx2 v1, v[2:3], s[{S_OUT}:{S_OUT+1}] offset:-6")
    p.label("L_std")
    stamps_out()
    p.label("L_end")
    p("s_endpgm")

    p.vm.q = dnn_vm; p.lg.clear()
    p(".p2align 6")
    p.label("L_dnn")
    ACC = lambda t, q: 8*t + 4*q
    BF = lambda t: 56 + 4*t
    AR = lambda f, q: 84 + 8*(f % 2) + 4*q
    IDX = lambda f: 100 + f
    VO = lambda u: 128 + u
    V_B, V_A, V_CH, V_LANE, V_G8 = [130, 131, 132], [133, 134, 135], 136, 137, 138
    RAW = 140; RAW2 = 200
    S_SB, S_M0, S_AM = S_T+2, S_T+3, S_T+4
    if cfg.probe:
        p("s_cmp_ge_u32 s2, 8")
        p("s_cbranch_scc1 L_pr1")
        p("s_lshl_b32 s90, s2, 2")
        p("v_mov_b32 v1, s90")
        p("v_mov_b32 v2, s96")
        p(f"global_store_dword v1, v2, s[{S_DBG}:{S_DBG+1}] offset:8 sc1")
        p("s_waitcnt vmcnt(0)")
        p.label("L_pr1")
    srd(S_B1, 10, 1664)
    srd(S_TAB, 2, 6400000)
    srd(S_W2, 12, 1664)
    srd(S_WS, None, WS_END)
    stamp(10)
    p(f"s_mov_b32 s{S_SPIN}, 0x40000")
    p(f"s_mul_i32 s{S_COL}, s{S_CP}, 416")
    S_M1, S_WR = S_T+5, S_T+6
    p(f"s_mov_b32 s{S_SB}, s{S_COL}")
    p(f"s_and_b32 s{S_WR}, s{S_WAVE}, 3")
    p(f"s_lshl_b32 s{S_T}, s{S_WAVE}, 1")
    p(f"s_sub_u32 s{S_T}, s{S_T}, 4")
    p(f"s_add_u32 s{S_T+1}, s{S_T}, 1")
    p(f"s_cmp_lt_u32 s{S_WAVE}, 4")
    p(f"s_cselect_b32 s{S_M0}, s{S_WAVE}, s{S_T}")
    p(f"s_cselect_b32 s{S_M1}, 12, s{S_T+1}")
    p(f"s_lshl_b32 s{S_M0}, s{S_M0}, 10")
    p(f"s_lshl_b32 s{S_M1}, s{S_M1}, 10")
    p(f"s_lshl_b32 s{S_AM}, s{S_WAVE}, 10")
    p(f"s_add_u32 s{S_AM}, s{S_AM}, {BSZ}")
    p(f"s_lshr_b32 s{S_T}, s{S_WAVE}, 2")
    p(f"s_mul_i32 s{S_T}, s{S_T}, 224")
    p(f"s_add_u32 s{S_COL}, s{S_COL}, s{S_T}")
    p(f"s_movk_i32 s{S_T+1}, 1248")
    p(f"s_movk_i32 s{S_T+7}, 6656")
    for u in range(2):
        p(f"v_add_u32 v3, s{(S_M0, S_M1)[u]}, v{V_L}")
        p("v_lshlrev_b32 v4, 4, v3")
        p("v_mul_hi_u32_u24 v4, 0x9d89e, v4")
        p("v_bfe_u32 v5, v4, 2, 1")
        p("v_bfe_i32 v6, v4, 3, 1")
        p("v_add_u32 v5, v5, v6")
        p(f"v_mad_i32_i24 v5, v5, s{S_T+7}, v3")
        p(f"v_mad_u32_u24 v{VO(u)}, v4, s{S_T+1}, v5")
    p("v_lshrrev_b32 v1, 4, v0")
    p(f"s_add_u32 s{S_T+1}, s{S_T}, {IDXO}")
    p(f"v_lshl_add_u32 v{V_G8}, v1, 3, s{S_T+1}")
    p("v_lshrrev_b32 v2, 2, v0")
    p(f"v_mul_u32_u24 v2, 104, v2")
    p(f"s_add_u32 s{S_W}, s{S_W}, {IDXO}")
    p(f"v_add_u32 v139, s{S_W}, v2")
    p("v_lshrrev_b32 v2, 5, v0")
    p("v_mul_u32_u24 v3, 3, v2")
    p("v_xor_b32 v3, v3, v0")
    p("v_and_b32 v3, 3, v3")
    p(f"v_lshlrev_b32 v{V_CH}, 4, v3")
    p("v_bfe_u32 v3, v0, 3, 1")
    p("v_mul_u32_u24 v3, 3, v3")
    p("v_xor_b32 v3, v3, v1")
    p("v_and_b32 v4, 15, v0")
    p("v_lshlrev_b32 v4, 6, v4")
    p("v_lshl_add_u32 v3, v3, 4, v4")
    p(f"s_and_b32 s{S_T+1}, s{S_WAVE}, 3")
    p(f"s_lshl_b32 s{S_T+1}, s{S_T+1}, 11")
    p(f"s_add_u32 s{S_T+1}, s{S_T+1}, {BSZ}")
    p(f"v_add_u32 v{V_A[0]}, s{S_T+1}, v3")
    p("v_bfe_u32 v3, v0, 2, 3")
    p("v_lshl_add_u32 v2, v2, 4, v3")
    p("v_mul_u32_u24 v2, 0x1a0, v2")
    p("v_and_b32 v3, 3, v0")
    p("v_lshl_add_u32 v2, v3, 3, v2")
    p(f"v_add_u32 v{V_B[0]}, s{S_T}, v2")
    for k in (1, 2):
        p(f"v_add_u32 v{V_A[k]}, {3*k*SLOT}, v{V_A[0]}")
        p(f"v_add_u32 v{V_B[k]}, {3*k*SLOT}, v{V_B[0]}")
    p(f"v_mov_b32 v{V_LANE}, v0")
    p.wait(vm="idx")
    stamp(1)
    if cfg.dbench:
        p("s_mov_b32 s3, 0")
        p.label("L_again")
    for m in range(6):
        p.lds(f"ds_read2_b64 v[{100+4*m}:{103+4*m}], v139 offset0:{2*m} offset1:{2*m+1}", f"ix{m}")
    p.lds("ds_read_b64 v[124:125], v139 offset:96", "ix6")
    def a_dma(f):
        p.wait(lg=f"ix{f >> 2}")
        p(f"s_add_u32 m0, s{S_AM}, {(f % RB)*SLOT}")
        p(f"v_lshl_add_u32 v{IDX(f)}, v{IDX(f)}, 6, v{V_CH}")
        p.vmem(f"buffer_load_dwordx4 v{IDX(f)}, s[{S_TAB}:{S_TAB+3}], 0 offen lds", f"F{f}")
    def b_dma(f, u, T):
        if u == 1:
            if f: p(f"s_add_u32 s{S_SB}, s{S_SB}, 53248")
            sk = L("np")
            if T != 6:
                if T == 0:
                    p(f"s_cmp_ge_u32 s{S_WAVE}, 4")
                    p(f"s_cselect_b32 s{S_X}, {f & 3}, s{S_WR}")
                    p(f"s_cmp_lg_u32 s{S_X}, {f & 3}")
                else: p(f"s_cmp_lg_u32 s{S_WR}, {f & 3}")
                p(f"s_cbranch_scc1 {sk}")
            p(f"s_add_u32 m0, s{S_M1}, {(f % RB)*SLOT}")
            p("s_nop 0")
            p(f"buffer_load_dwordx4 v{VO(1)}, s[{S_W1}:{S_W1+3}], s{S_SB} offen lds")
            if T == 6: p.vm.issue(f"F{f}")
            else: p.label(sk)
        else:
            p(f"s_add_u32 m0, s{S_M0}, {(f % RB)*SLOT}")
            p("s_nop 0")
            p.vmem(f"buffer_load_dwordx4 v{VO(0)}, s[{S_W1}:{S_W1+3}], s{S_SB} offen lds", f"F{f}")
    def fill(f, T): a_dma(f); b_dma(f, 1, T); b_dma(f, 0, T)
    BWO = IDXO
    p(f"s_cmp_ge_u32 s{S_WAVE}, {0 if cfg.dbench else 2}")
    p("s_cbranch_scc1 L_nobw")
    p(f"s_mul_i32 s{S_X}, s{S_CP}, 416")
    p(f"s_cmp_eq_u32 s{S_WAVE}, 0")
    p(f"s_cselect_b64 s[{S_W2}:{S_W2+1}], s[{S_B1}:{S_B1+1}], s[{S_W2}:{S_W2+1}]")
    p(f"s_mov_b32 m0, s{S_W}")
    p("s_mov_b64 exec, 0xfffffff")
    p("s_waitcnt lgkmcnt(0)")
    p(f"buffer_load_dwordx4 v{V_L}, s[{S_W2}:{S_W2+3}], s{S_X} offen lds")
    p("s_mov_b64 exec, -1")
    p.label("L_nobw")
    if cfg.sw < 26:
        p(f"v_lshlrev_b32 v{V_C}, 2, v{V_LANE}")
        p(f"v_add_u32 v{V_C}, {IDXO + 2*1664}, v{V_C}")
        p(f"v_mov_b32 v{V_ONE}, 1")
        p(f"s_cmp_lg_u32 s{S_WAVE}, 2")
        p("s_cbranch_scc1 L_noz")
        p(f"v_mov_b32 v{V_POLL}, 0")
        p("s_waitcnt lgkmcnt(0)")
        p(f"ds_write_b32 v{V_C}, v{V_POLL}")
        p("s_waitcnt lgkmcnt(0)")
        p.label("L_noz")
    def lo(f): return (f % RB)//3, ((f % RB) % 3)*SLOT
    def b_read1(f, t, r2):
        k, off = lo(f)
        p.lds(f"ds_read_b64_tr_b16 v[{BF(t)+2*r2}:{BF(t)+2*r2+1}], v{V_B[k]} offset:{off + 32*t + 3328*r2}", f"b{f}_{t}")
    def a_read(f):
        k, off = lo(f)
        for q in range(2):
            p.lds(f"ds_read_b128 v[{AR(f, q)}:{AR(f, q)+3}], v{V_A[k]} offset:{off + 1024*q}", f"a{f}")
    p(f"s_cmp_ge_u32 s{S_WAVE}, 4")
    p("s_cbranch_scc1 L_dnn6")
    W2R = lambda t, r: 170 + 4*t + r
    def w2_unpack():
        return [x for t in range(7) for h in range(2) for x in
                (f"v_lshlrev_b32 v{W2R(t,2*h)}, 16, v{RAW2+2*t+h}", f"v_and_b32 v{W2R(t,2*h+1)}, 0xffff0000, v{RAW2+2*t+h}")]
    vm0, lg0 = list(p.vm.q), list(p.lg.q)
    def dnn_main(T):
        p.vm.q, p.lg.q = list(vm0), list(lg0)
        fill(0, T)
        fill(1, T)
        p.wait(vm="F0")
        p("s_barrier")
        stamp(12)
        for t in range(T):
            p.lds(f"ds_read_b64 v[{RAW+2*t}:{RAW+2*t+1}], v{V_G8} offset:{32*t}", "bias")
        a_read(0)
        for t in range(T):
            for r2 in range(2): b_read1(0, t, r2)
        p.wait(lg="bias")
        for t in range(T):
            for h in range(2):
                p(f"v_lshlrev_b32 v{ACC(t,0)+2*h}, 16, v{RAW+2*t+h}")
                p(f"v_and_b32 v{ACC(t,0)+2*h+1}, 0xffff0000, v{RAW+2*t+h}")
        for f in range(2, cfg.look): fill(f, T)
        p.wait(vm=tuple(f"F{k}" for k in range(cfg.barp + 1)))
        p("s_barrier")
        if T == 6 and cfg.prio_hi: p(f"s_setprio {cfg.prio_hi}")
        stamp(2)
        nxt = cfg.look
        w2ops = w2_unpack()
        free = -1; landed = cfg.barp
        for f in range(26):
            todo = []
            soft = f > cfg.sw and f <= 23
            top = f < cfg.early or (cfg.dpos == 4 and T == 6) or (cfg.dpos == 1 and T == 7)
            lim = (f - 1 if soft and not top else free) + RB
            nfill = 2 if (cfg.cmask >> f & 1 if cfg.cmask else cfg.catch0 <= f < cfg.catch0 + cfg.catch) else 1
            if f >= cfg.b2: nfill = (2 if (f % 2 == 0) == ((T == 6) == (cfg.dpos == 4)) else 0)
            for _ in range(nfill):
                if nxt < 26 and nxt <= lim:
                    todo += [(a_dma, (nxt,)), (b_dma, (nxt, 1, T)), (b_dma, (nxt, 0, T))]; nxt += 1
            if cfg.nodma and f >= 4:
                keep = []
                for fn, ar in todo:
                    if (fn is a_dma and cfg.nodma & 1) or (fn is b_dma and cfg.nodma & 2): continue
                    keep.append((fn, ar))
                todo[:] = keep
            n_it = len(todo)
            if f < cfg.early: at = [-1]*n_it
            elif cfg.dpos == 0: at = list(range(n_it))
            elif cfg.dpos == 1: at = [-1]*n_it if T == 7 else [T-1]*n_it
            elif cfg.dpos == 2: at = [(2*i + (T == 6)) if n_it <= 3 else i for i in range(n_it)]
            elif cfg.dpos == 3: at = [0]*n_it if T == 7 else [T-1]*n_it
            elif cfg.dpos == 4: at = [T-1]*n_it if T == 7 else [-1]*n_it
            elif cfg.dpos == 5: at = [i//(2 if n_it > 3 else 1) for i in range(n_it)] if T == 7 else [3 + i//(2 if n_it > 3 else 1) for i in range(n_it)]
            if soft and not top: at = [min(max(a, cfg.chk + i*(cfg.dpos in (0, 2))), T-1) for i, a in enumerate(at)]
            assert f == 25 or f + 1 <= landed
            def drain(t):
                while todo and at[0] <= t:
                    at.pop(0); fn, ar = todo.pop(0); fn(*ar)
            drain(-1)
            for t in range(T):
                p.wait(lg=(f"b{f}_{t}", f"a{f}"))
                b = f"v[{BF(t)}:{BF(t)+3}]"
                a0, a1 = ACC(t, 0), ACC(t, 1)
                c1 = a0 if f == 0 else a1
                p(f"v_mfma_f32_16x16x32_bf16 v[{a1}:{a1+3}], {b}, v[{AR(f,1)}:{AR(f,1)+3}], v[{c1}:{c1+3}]")
                if t and f < 25: b_read1(f+1, t-1, 1)
                elif t == 0 and f: b_read1(f, T-1, 1)
                p(f"v_mfma_f32_16x16x32_bf16 v[{a0}:{a0+3}], {b}, v[{AR(f,0)}:{AR(f,0)+3}], v[{a0}:{a0+3}]")
                if f < 25: b_read1(f+1, t, 0)
                if t == cfg.arp and f < 25: a_read(f + 1)
                if soft and t == cfg.chk - 2: poll_issue(4*(f-1))
                if soft and t == cfg.chk:
                    check(4*(f-1), 8, issued=True)
                    free = f - 1; landed = f + 2
                drain(t)
                if f == 21:
                    for tt in ([t] if t < T - 1 else range(t, 7)):
                        p.lds(f"ds_read_b64 v[{RAW2+2*tt}:{RAW2+2*tt+1}], v{V_G8} offset:{1664 + 32*tt}", "w2")
                if cfg.w2early and f in (23, 24):
                    if f == 23 and t == 0: p.wait(lg="w2")
                    for _ in range(3):
                        if w2ops: p(w2ops.pop(0))
            assert not todo
            if f >= cfg.sw:
                if f <= 22:
                    assert nxt > f + 3
                    p.wait(vm=tuple(f"F{k}" for k in range(f + 4)))
                    arrive(4*f)
            elif f <= cfg.lb and (f + 1) % cfg.barp == 0 and (f < cfg.b2 or f % 2):
                last = min(f + 1 + cfg.barp + (f + 1 == cfg.sw or f + 1 >= cfg.b2), 25) if f < cfg.lb else 25
                assert nxt > last
                p.wait(vm=tuple(f"F{k}" for k in range(last + 1)))
                if not cfg.nobar: p("s_barrier")
                free = f; landed = last
            if f == cfg.lb and cfg.tailprio is not None and T == cfg.tailprio: p("s_setprio 1")
            if f % 4 == 0 and (not cfg.dbench or f in (8, 20)): stamp(14 + f//4)
        assert nxt == 26 and not (cfg.w2early and w2ops)
    dnn_main(7)
    p("s_branch L_gelu")
    p(".p2align 6")
    p.label("L_dnn6")
    dnn_main(6)
    p.label("L_gelu")
    if cfg.dbench:
        p("s_barrier")
        p(f"s_mul_i32 s{S_SB}, s{S_CP}, 416")
        p("s_add_u32 s3, s3, 1")
        p("s_cmp_lt_u32 s3, 2")
        p("s_cbranch_scc1 L_again")
    stamp(3)
    p(f"s_load_dword s{S_X}, s[{S_DBG}:{S_DBG+1}], 128")
    if not cfg.w2early:
        p.wait0(vm=True)
        for x in w2_unpack(): p(x)
    k0 = -2.0*math.sqrt(2.0/math.pi)*math.log2(math.e)
    T1, T2, SUM, VC = 56, 64, 92, 72
    P = lambda a: f"v[{a}:{a+1}]"
    for r, c in enumerate((k0*0.044715, k0)):
        for h in range(2): p(f"v_mov_b32 v{VC+2*r+h}, {f2h(c)}")
    for r in range(4): p(f"v_mov_b32 v{SUM+r}, 0")
    for t in range(7):
        if t == 6:
            p(f"s_cmp_ge_u32 s{S_WAVE}, 4")
            p("s_cbranch_scc1 L_gelu6")
        x = ACC(t, 0)
        if cfg.pk:
            for r in range(0, 8, 2): p(f"v_pk_mul_f32 {P(T1+r)}, {P(x+r)}, {P(x+r)}")
            for r in range(0, 8, 2): p(f"v_pk_fma_f32 {P(T1+r)}, {P(T1+r)}, {P(VC)}, {P(VC+2)}")
            for r in range(0, 8, 2): p(f"v_pk_mul_f32 {P(T1+r)}, {P(T1+r)}, {P(x+r)}")
            for r in range(8): p(f"v_exp_f32 v{T1+r}, v{T1+r}")
            for r in range(0, 8, 2): p(f"v_pk_mul_f32 {P(T2+r)}, {P(x+r)}, {P(W2R(t, r & 3))}")
            for r in range(0, 8, 2): p(f"v_pk_add_f32 {P(T1+r)}, {P(T1+r)}, 1.0 op_sel_hi:[1,0]")
            for r in range(8): p(f"v_rcp_f32 v{T1+r}, v{T1+r}")
            for r in (0, 4, 2, 6): p(f"v_pk_fma_f32 {P(SUM+2*(r >> 2))}, {P(T1+r)}, {P(T2+r)}, {P(SUM+2*(r >> 2))}")
        else:
            for r in range(8): p(f"v_mul_f32 v{T1+r}, v{x+r}, v{x+r}")
            for r in range(8): p(f"v_fma_f32 v{T1+r}, v{T1+r}, v{VC}, v{VC+2}")
            for r in range(8): p(f"v_mul_f32 v{T1+r}, v{T1+r}, v{x+r}")
            for r in range(8): p(f"v_exp_f32 v{T1+r}, v{T1+r}")
            for r in range(8): p(f"v_mul_f32 v{T2+r}, v{x+r}, v{W2R(t, r & 3)}")
            for r in range(8): p(f"v_add_f32 v{T1+r}, 1.0, v{T1+r}")
            for r in range(8): p(f"v_rcp_f32 v{T1+r}, v{T1+r}")
            for r in range(8): p(f"v_fmac_f32 v{SUM+2*(r >> 2)+(r & 1)}, v{T1+r}, v{T2+r}")
    p.label("L_gelu6")
    p(f"v_add_f32 v{SUM}, v{SUM}, v{SUM+1}")
    p(f"v_add_f32 v{SUM+2}, v{SUM+2}, v{SUM+3}")
    p(f"v_and_b32 v84, 15, v{V_LANE}")
    p(f"v_lshrrev_b32 v85, 5, v{V_LANE}")
    p(f"v_permlane32_swap_b32 v{SUM}, v{SUM+2}")
    p("v_lshl_add_u32 v84, v85, 4, v84")
    p(f"v_add_f32 v{SUM}, v{SUM}, v{SUM+2}")
    p(f"v_bfe_u32 v85, v{V_LANE}, 4, 1")
    p(f"v_mov_b32 v{SUM+1}, v{SUM}")
    p("v_lshlrev_b32 v84, 2, v84")
    p("v_lshl_add_u32 v84, v85, 30, v84")
    p(f"v_permlane16_swap_b32 v{SUM}, v{SUM+1}")
    p(f"s_lshl2_add_u32 s{S_T}, s{S_RG}, s{S_CP}")
    p(f"v_add_f32 v{SUM}, v{SUM}, v{SUM+1}")
    p(f"s_lshl3_add_u32 s{S_T}, s{S_T}, s{S_WAVE}")
    p(f"s_lshl_b32 s{S_T}, s{S_T}, 7")
    p(f"v_min_u32 v{SUM}, -2, v{SUM}")
    p("s_waitcnt lgkmcnt(0)")
    if cfg.noprep or cfg.dbench: p("s_branch L_pub")
    p(f"s_cmp_lg_u32 s{S_X}, 0")
    p("s_cbranch_scc1 L_pub")
    p("v_mov_b32 v85, 0")
    p.label("L_dflag")
    p(f"global_load_dword v86, v85, s[{S_DBG}:{S_DBG+1}] offset:128 sc1")
    p("s_waitcnt vmcnt(0)")
    p(f"v_readfirstlane_b32 s{S_X}, v86")
    p(f"s_cmp_lg_u32 s{S_X}, 0")
    p("s_cbranch_scc1 L_pub")
    p("s_sleep 4")
    p(f"s_sub_u32 s{S_SPIN}, s{S_SPIN}, 1")
    p("s_cbranch_scc0 L_dflag")
    p("s_endpgm")
    p.label("L_pub")
    p(f"buffer_store_dword v{SUM}, v84, s[{S_WS}:{S_WS+3}], s{S_T} offen sc1")
    stamp(4)
    if cfg.probe:
        p("s_cmp_lg_u32 s2, 0")
        p("s_cbranch_scc1 L_pr2")
        p(f"v_lshlrev_b32 v1, 2, v{V_LANE}")
        p(f"global_load_dword v2, v1, s[{S_DBG}:{S_DBG+1}] offset:8 sc1")
        p("s_waitcnt vmcnt(0)")
        for i in range(8): p(f"v_readlane_b32 s{80+i}, v2, {i}")
        p("s_mov_b32 s90, s80"); p("s_mov_b32 s91, s80")
        for i in range(1, 8):
            p(f"s_min_u32 s90, s90, s{80+i}"); p(f"s_max_u32 s91, s91, s{80+i}")
        if cfg.probe == 1: p("s_sub_u32 s90, s91, s90")
        else: p(f"s_sub_u32 s90, s{80+cfg.probe-2}, s90")
        p("s_mul_i32 s90, s90, 20")
        p("s_min_u32 s90, s90, 20000")
        p("s_memrealtime s[92:93]"); p("s_waitcnt lgkmcnt(0)")
        p("s_add_u32 s92, s92, s90")
        p.label("L_pr")
        p("s_memrealtime s[94:95]"); p("s_waitcnt lgkmcnt(0)")
        p("s_cmp_lt_u32 s94, s92")
        p("s_cbranch_scc1 L_pr")
        p.label("L_pr2")
    stamps_out()
    p("s_endpgm")

    p(".p2align 6")
    p(".type gather_table,@object")
    p.label("gather_table")
    zt = P_Z - PS
    for role in range(2):
        for lane in range(64):
            s, half = lane >> 1, lane & 1
            ad = []
            for e in range(8):
                pr = slot_pair(s, half, e) if s < (24 if role == 0 else 22) else None
                at = (lambda j, k: P_D1 - PS + k*144 + j*4) if role == 0 else (lambda j, k: P_W1 - PS + (j*26 + k)*2)
                if pr is None: ad += [zt, zt]
                elif pr[1] is None: ad += [at(pr[0], 26), zt]
                elif pr[0] == pr[1] or norm(pr) == (24, 25): ad += [at(*pr), zt]
                else: ad += [at(pr[0], pr[1]), at(pr[1], pr[0])]
            p(".short " + ", ".join(str(a) for a in ad))
    p(".size gather_table, 4096")
    return p

def header():
    return """; xDeepFM (CIN + DNN) forward, one launch, 256 workgroups (S1).
; Kernarg: idx, table, ws_cin, w_cin_out, w_dnn1, b_dnn1, w_dnn2, b_out, out, debug, ws
; @launch grid=(256,1,1) block=(512,1,1) lds=%d
.amdgcn_target "amdgcn-amd-amdhsa--gfx950"
.text
""" % LDS_SIZE
def footer():
    nv = 256
    return f""".section .rodata,"a"
.p2align 6
.amdhsa_kernel {NAME}
  .amdhsa_next_free_vgpr {nv}
  .amdhsa_next_free_sgpr 102
  .amdhsa_accum_offset {nv}
  .amdhsa_group_segment_fixed_size 0
  .amdhsa_kernarg_size 88
  .amdhsa_user_sgpr_count 2
  .amdhsa_user_sgpr_kernarg_segment_ptr 1
  .amdhsa_system_sgpr_workgroup_id_x 1
  .amdhsa_float_denorm_mode_32 3
.end_amdhsa_kernel
"""
if __name__ == "__main__":
    out = sys.argv[1]
    for a in sys.argv[2:]:
        k, v = a.split("=")
        setattr(cfg, k, type(getattr(cfg, k))(int(v)))
    open(out, "w").write(header() + build().text() + footer())
```

```python
import sys, struct, math
from asmlib import *
from slots import *

NAME = "standalone__deep_cross_xdeepfm__recsys_kernel"
class Cfg:
    stamps = 0
    NRES = 31
    R = 3
    prio_prep = 3
    prio_hi = 0
    poll_sleep = 2
    idle_sleep = 1
    gon = 5
    bal = 0
    lt0 = 2
    lt1 = 5
    early = 4
    look = 3
    cmask = 0
    catch0 = 4
    catch = 4
    etouch = 0
    dtouch = 1
    xwin = 3
    pfcode = 1
    flip = 2
    w2early = 1
    dpos = 4
    ltouch = 0
    pk = 1
    ctouch = 1
    wrot = 1
    direct = 1
    pst = -1
    pcyc = 0
    pwg = 0
    pwave = 0
    probe = 0
    dbench = 0
    nodma = 0
    nobar = 0
    lb = 21
    tailprio = 0
    b2 = 26
    sw = 26
    chk = 3
    barp = 1
    arp = 1
    noprep = 0
    clrpos = 1
    xstart = 0
    xbar = 3
    pdelay = 1
    hold = 0
cfg = Cfg()

LDS_SIZE = 163840
XO = 0
WO = 8*7168
PS = WO + 96*528
P_W3 = PS; P_M3T = PS + 36864; P_D1 = PS + 38912; P_W1 = PS + 43520; P_Z = PS + 45568; P_DUM = PS + 45824
CO = LDS_SIZE - 512
IX2 = PS + 46080
assert P_DUM + 256 <= CO
C_PA, C_PB, C_XL, C_FLAG, C_GO, C_CL, C_PI = 0, 4, 8, 12, 16, 20, 24
RB = 7
BSZ = 13312
SLOT = BSZ + 8192
IDXO = RB*SLOT
assert IDXO + 8*1664 == LDS_SIZE
MBOX = 0; WS_W = 131072; BLK = 1664; WS_END = WS_W + 26*BLK; WS_STAMP = 1 << 20
S_IDX, S_TAB, S_W1, S_WCIN, S_WCO, S_B1, S_W2, S_WS = 4, 8, 12, 16, 20, 24, 28, 32
S_OUT, S_DBG, S_BOUT = 36, 38, 40
S_WAVE, S_RG, S_CP, S_FB, S_COL, S_W = 42, 43, 44, 45, 46, 47
S_PC, S_SPIN, S_X = 48, 50, 51
KA = 52
S_T = 52
S_ST = 70
V_C, V_ONE, V_POLL, V_L = 162, 163, 164, 165
FRM = "0x20000"

def f2h(x): return "0x%08x" % struct.unpack("<I", struct.pack("<f", x))[0]

def build():
    p = Prog()
    lab = [0]
    def L(n):
        lab[0] += 1
        return f"L_{n}_{lab[0]}"
    def stamp(i):
        if cfg.pst == i:
            p("s_memtime s[92:93]" if cfg.pcyc else "s_memrealtime s[92:93]")
            p.wait0(lg=True)
        if cfg.stamps and (cfg.stamps != 3 or i == 8):
            p(f"s_memrealtime s[68:69]" if cfg.stamps != 2 or i == 8 else "s_memtime s[68:69]")
            p.wait0(lg=True)
            if cfg.stamps != 2 or i == 8: p(f"s_mov_b32 s{S_ST+i}, s68")
            else:
                p("s_sub_u32 s68, s68, s100")
                p("s_lshr_b32 s68, s68, 4")
                p(f"s_add_u32 s{S_ST+i}, s68, s{S_ST}")
    def stamps_out():
        if cfg.pst >= 0:
            stamp(8)
            sk = L("npr"); lp = L("pr")
            p(f"s_cmp_lg_u32 s2, {cfg.pwg}")
            p(f"s_cbranch_scc1 {sk}")
            p(f"s_cmp_lg_u32 s{S_WAVE}, {cfg.pwave}")
            p(f"s_cbranch_scc1 {sk}")
            if cfg.pst == 0: p("s_mov_b32 s92, s96")
            if cfg.pcyc:
                p("s_sub_u32 s90, s92, s98")
                p("s_lshr_b32 s90, s90, 3")
            else:
                p("s_sub_u32 s90, s92, s96")
                p("s_mul_i32 s90, s90, 4")
            p("s_add_u32 s90, s90, 2000")
            p("s_min_u32 s90, s90, 20000")
            p("s_add_u32 s90, s90, s96")
            p.label(lp)
            p("s_sleep 1")
            p("s_memrealtime s[94:95]"); p("s_waitcnt lgkmcnt(0)")
            p("s_cmp_lt_u32 s94, s90")
            p(f"s_cbranch_scc1 {lp}")
            p.label(sk)
        if not cfg.stamps: return
        stamp(8)
        p("s_mov_b64 exec, 1")
        p(f"s_lshl4_add_u32 s{S_T}, s2, s{S_WAVE}")
        p(f"s_lshl_b32 s{S_T}, s{S_T}, 7")
        p(f"s_add_u32 s{S_T}, s{S_T}, {WS_STAMP}")
        p(f"v_mov_b32 v1, s{S_T}")
        p("s_memtime s[68:69]")
        p("s_waitcnt lgkmcnt(0)")
        p(f"s_sub_u32 s{S_ST+29}, s68, s100")
        for i in range(30):
            p(f"v_mov_b32 v2, s{S_ST+i}")
            p(f"global_store_dword v1, v2, s[{S_WS}:{S_WS+1}] offset:{4*i}")
    def arrive(*offs):
        p("s_mov_b64 exec, 1")
        for off in offs: p.lds(f"ds_add_u32 v{V_C}, v{V_ONE} offset:{off}", "arr")
        p("s_mov_b64 exec, -1")
    def poll_issue(off):
        p.lds(f"ds_read_b32 v{V_POLL}, v{V_C} offset:{off}", "poll")
    def check(off, target, issued=False, sleep=0):
        ok = L("ok"); sp = L("spin")
        if issued:
            p.wait(lg="poll")
            p(f"v_readfirstlane_b32 s{S_X}, v{V_POLL}")
            p(f"s_cmp_ge_u32 s{S_X}, {target}")
            p(f"s_cbranch_scc1 {ok}")
        p.label(sp)
        if sleep: p(f"s_sleep {sleep}")
        p(f"ds_read_b32 v{V_POLL}, v{V_C} offset:{off}")
        p("s_waitcnt lgkmcnt(0)")
        p(f"v_readfirstlane_b32 s{S_X}, v{V_POLL}")
        p(f"s_sub_u32 s{S_SPIN}, s{S_SPIN}, 1")
        p("s_cbranch_scc1 L_end")
        p(f"s_cmp_ge_u32 s{S_X}, {target}")
        p(f"s_cbranch_scc0 {sp}")
        if not issued: p.lg.clear()
        p.label(ok)
    def srd(s, ka, n):
        if ka is not None: p(f"s_mov_b64 s[{s}:{s+1}], s[{KA+ka}:{KA+ka+1}]")
        p(f"s_mov_b32 s{s+2}, {n}")
        p(f"s_mov_b32 s{s+3}, {FRM}")
    def touch(vaddr, soff, mask):
        p(f"s_mov_b64 exec, {mask}" if mask < (1 << 31) else f"s_mov_b32 exec_hi, {hex(mask >> 32)}")
        p(f"buffer_load_dword v250, v{vaddr}, s[{S_W1}:{S_W1+3}], s{soff} offen")
        p("s_mov_b64 exec, -1")

    def producer_index():
        p(f"s_lshr_b32 s{S_FB}, s2, 6")
        p(f"s_sub_u32 s{S_FB}, s{S_RG}, s{S_FB}")
        p(f"s_sub_u32 s{S_FB}, s{S_FB}, 1")
        p(f"s_and_b32 s{S_X}, s2, 0x37")
        p(f"s_sub_u32 s{S_X}, s{S_X}, 1")
        p(f"s_cmp_lt_u32 s{S_X}, 7")
        p(f"s_cselect_b32 s{S_FB}, s{S_FB}, 99")

    def last_marker(skip):
        p("v_lshlrev_b32 v2, 6, v0")
        p("s_waitcnt vmcnt(0)")
        stamp(12)
        p(f"v_readfirstlane_b32 s{S_X}, v27")
        p("s_mov_b64 exec, 3")
        p(f"s_cmp_lg_u32 s{S_X}, {26 + 32 - 1}")
        p(f"s_cbranch_scc1 {skip}")
        p(f"global_store_dword v2, v{V_ONE}, s[{S_DBG}:{S_DBG+1}] offset:128 sc1")

    p(f".globl {NAME}\n.p2align 8\n.type {NAME},@function")
    p.label(NAME)
    p(f"s_load_dwordx16 s[{KA}:{KA+15}], s[0:1], 0")
    p(f"s_load_dwordx4 s[{S_OUT}:{S_OUT+3}], s[0:1], 64")
    p(f"s_load_dwordx2 s[{S_WS}:{S_WS+1}], s[0:1], 80")
    if cfg.probe or cfg.pst >= 0: p("s_memrealtime s[96:97]")
    if cfg.pcyc: p("s_memtime s[98:99]")
    if cfg.stamps:
        p(f"s_memrealtime s[{S_ST}:{S_ST+1}]")
        p(f"s_memtime s[100:101]")
    p("v_lshrrev_b32 v1, 6, v0")
    p("v_and_b32 v0, 63, v0")
    p(f"v_readfirstlane_b32 s{S_WAVE}, v1")
    p("s_cmp_ge_u32 s2, 0x100")
    p("s_cbranch_scc1 L_end")
    p(f"s_and_b32 s3, s2, 7")
    p(f"s_lshr_b32 s{S_RG}, s2, 6")
    p(f"s_lshl3_add_u32 s{S_RG}, s{S_RG}, s3")
    p(f"s_bfe_u32 s{S_CP}, s2, 0x20004")
    p(f"v_lshlrev_b32 v{V_L}, 4, v0")
    p(f"v_lshlrev_b32 v160, 7, v0")
    srd(S_IDX, None, 4096*104)
    srd(S_W1, None, 832*1664)
    p("s_bitcmp1_b32 s2, 3")
    p("s_cbranch_scc1 L_cin")
    p(f"s_lshl3_add_u32 s3, s{S_RG}, s{S_WAVE}")
    p(f"s_mul_i32 s3, s3, 1664")
    p(f"s_mul_i32 s{S_W}, s{S_WAVE}, 1664")
    p(f"s_add_u32 m0, s{S_W}, {IDXO}")
    p(f"s_lshr_b32 s{S_X}, s2, 4")
    p(f"s_lshl3_add_u32 s{S_X}, s{S_X}, s{S_WAVE}")
    p(f"s_mul_i32 s{S_X}, s{S_X}, 2560")
    p.wait0(lg=True)
    p(f"s_mov_b64 s[{S_IDX}:{S_IDX+1}], s[{KA}:{KA+1}]")
    p(f"s_mov_b64 s[{S_W1}:{S_W1+1}], s[{KA+8}:{KA+9}]")
    for n in range(2):
        if n: p("s_mov_b32 exec_hi, 0xff")
        p.vmem(f"buffer_load_dwordx4 v{V_L}, s[{S_IDX}:{S_IDX+3}], s3 offen offset:{1024*n} lds", "idx")
    if not cfg.dtouch: p("s_mov_b32 exec_hi, -1")
    if cfg.dtouch:
        touch(160, S_X, 0xfffff); p.vm.issue("t")
    p("s_branch L_dnn")
    dnn_vm = list(p.vm.q)

    p.vm.clear(); p.lg.clear()
    p.label("L_cin")
    if cfg.dbench: p("s_endpgm")
    S_C = S_WAVE
    W3A, TBL, VV, AQ, VF, GA, MB, VT, CRAW = 28, 32, 40, 56, 72, 80, 96, 170, 152
    srd(S_WCO, None, 156)
    srd(S_WS, None, WS_END)
    p(f"s_mov_b32 s{S_SPIN}, 0x40000")
    p(f"v_lshlrev_b32 v{V_C}, 2, v0")
    p(f"v_add_u32 v{V_C}, {CO}, v{V_C}")
    p(f"v_mov_b32 v{V_ONE}, 1")
    p(f"s_cmp_ge_u32 s{S_WAVE}, 4")
    p("s_cbranch_scc1 L_xwave")
    srd(S_WCIN, None, 105456)
    producer_index()
    if cfg.noprep: p(f"s_mov_b32 s{S_FB}, 99")
    p(f"s_getpc_b64 s[{S_PC}:{S_PC+1}]")
    p.label("L_pc")
    p.wait0(lg=True)
    p(f"s_mov_b64 s[{S_WCIN}:{S_WCIN+1}], s[{KA+4}:{KA+5}]")
    p(f"s_mov_b64 s[{S_W1}:{S_W1+1}], s[{KA+8}:{KA+9}]")
    p(f"s_mov_b64 s[{S_WCO}:{S_WCO+1}], s[{KA+6}:{KA+7}]")
    p(f"s_mov_b64 s[{S_BOUT}:{S_BOUT+1}], s[{KA+14}:{KA+15}]")
    def cinit_loads():
        p(f"v_lshrrev_b32 v8, 5, v0")
        p(f"v_lshlrev_b32 v9, 3, v8")
        p(f"v_lshlrev_b32 v8, 1, v8")
        for a in range(3):
            p(f"buffer_load_dwordx2 v[{CRAW+2*a}:{CRAW+2*a+1}], v9, s[{S_WCO}:{S_WCO+3}], 0 offen offset:{16*a}")
        p(f"buffer_load_ushort v{CRAW+6}, v8, s[{S_WCO}:{S_WCO+3}], 0 offen offset:48")
        p(f"v_mov_b32 v8, 0")
        p(f"global_load_ushort v{CRAW+7}, v8, s[{S_BOUT}:{S_BOUT+1}]")
    p(f"s_and_b32 s{S_T}, s2, 0x37")
    p(f"s_cmp_eq_u32 s{S_T}, 0x21")
    p(f"s_cselect_b32 s{S_T+1}, 1, 0")
    p(f"s_cselect_b32 s{S_T}, 0x11, s{S_T}")
    p(f"s_sub_u32 s{S_T}, s{S_T}, 0x11")
    p(f"s_cmp_lt_u32 s{S_T}, 7")
    p(f"s_cselect_b32 s{S_T+3}, s{S_C}, 1")
    p(f"s_add_u32 s{S_T+3}, s{S_T+3}, 4")
    p(f"s_cmp_lg_u32 s{S_T+3}, 4")
    p("s_cbranch_scc1 L_nomc")
    for r in range(4): p(f"v_mov_b32 v{4+r}, -1")
    p(f"s_sub_u32 s{S_T}, s{S_RG}, s{S_T+1}")
    p(f"s_lshl_b32 s{S_T}, s{S_T}, 12")
    for u in range(4):
        p(f"buffer_store_dwordx4 v[4:7], v{V_L}, s[{S_WS}:{S_WS+3}], s{S_T} offen offset:{1024*u} sc1")
    p.label("L_nomc")
    p(f"s_cmp_ge_u32 s{S_FB}, 26")
    p("s_cbranch_scc1 L_cbar")
    if cfg.prio_prep: p(f"s_setprio {cfg.prio_prep}")
    p(f"s_mul_i32 s{S_T+2}, s{S_FB}, {BLK}")
    p(f"s_add_u32 s{S_T+2}, s{S_T+2}, {WS_W}")
    p(f"s_mul_i32 s{S_T}, s{S_C}, 9216")
    p(f"s_add_u32 s{S_T+1}, s{S_T}, 70304")
    p(f"s_add_u32 s{S_T}, s{S_T}, {P_W3}")
    for u in range(9):
        if u % 4 == 0:
            if u: p(f"s_add_u32 s{S_T+1}, s{S_T+1}, 0x1000")
            p(f"s_add_u32 m0, s{S_T}, {1024*u}")
            p("s_nop 0")
        p(f"buffer_load_dwordx4 v{V_L}, s[{S_WCIN}:{S_WCIN+3}], s{S_T+1} offen offset:{1024*(u % 4)} lds")
    p("v_and_b32 v2, 0x30, v0")
    p("v_bfe_u32 v1, v0, 2, 2")
    for q in range(4):
        p(f"v_xor_b32 v3, {q}, v1")
        p("v_lshl_add_u32 v3, v3, 28, v2")
        p(f"buffer_load_dwordx4 v[{AQ+4*q}:{AQ+4*q+3}], v3, s[{S_WCO}:{S_WCO+3}], 0 offen offset:104")
    p(f"s_cmp_ge_u32 s{S_C}, 2")
    p("s_cbranch_scc1 L_p23")
    p(f"s_lshl_b32 s{S_T}, s{S_C}, 11")
    p(f"s_add_u32 s{S_T}, s{S_T}, gather_table-L_pc")
    p(f"v_lshl_add_u32 v1, v0, 5, s{S_T}")
    p(f"global_load_dwordx4 v[{TBL}:{TBL+3}], v1, s[{S_PC}:{S_PC+1}]")
    p(f"global_load_dwordx4 v[{TBL+4}:{TBL+7}], v1, s[{S_PC}:{S_PC+1}] offset:16")
    p(f"s_cmp_lg_u32 s{S_C}, 0")
    p("s_cbranch_scc1 L_p1")
    p("v_lshrrev_b32 v3, 5, v0")
    p("v_mul_u32_u24 v3, 0x2a40, v3")
    p("v_and_b32 v2, 31, v0")
    p("v_lshl_add_u32 v3, v2, 1, v3")
    p(f"s_mul_i32 s{S_T}, s{S_FB}, 52")
    p(f"s_add_u32 s{S_T}, s{S_T}, 35152")
    for u in range(16):
        if u and u % 4 == 0:
            p(f"s_add_u32 s{S_T}, s{S_T}, {(4 if u != 8 else 12)*1352}")
        p(f"buffer_load_ushort v{VV+u}, v3, s[{S_WCIN}:{S_WCIN+3}], s{S_T} offen offset:{1352*(u % 4)}")
    p("s_branch L_pz")
    p.label("L_p1")
    p(f"s_mul_i32 s{S_T}, s{S_FB}, 1352")
    p(f"s_mov_b32 m0, {P_W1}")
    p("s_nop 0")
    for u in range(2):
        p(f"buffer_load_dwordx4 v{V_L}, s[{S_WCIN}:{S_WCIN+3}], s{S_T} offen offset:{1024*u} lds")
    p("s_branch L_pz")
    p.label("L_p23")
    p(f"s_cmp_lg_u32 s{S_C}, 3")
    p("s_cbranch_scc1 L_pz")
    p("v_lshlrev_b32 v1, 2, v0")
    p(f"buffer_load_dword v27, v1, s[{S_WCO}:{S_WCO+3}], 0 offen offset:52")
    p.label("L_pz")
    p("v_mov_b32 v2, 0")
    p("v_mov_b32 v3, 0")
    p(f"s_lshl_b32 s{S_T}, s{S_C}, 9")
    p(f"s_add_u32 s{S_T}, s{S_T}, {P_M3T}")
    p(f"v_lshl_add_u32 v1, v0, 3, s{S_T}")
    p("ds_write_b64 v1, v[2:3]")
    p(f"v_add_u32 v1, {P_Z - CO}, v{V_C}")
    p("ds_write_b32 v1, v2")
    p.label("L_cbar")
    if cfg.pfcode:
        sk = L("nopf")
        p(f"s_cmp_lg_u32 s{S_C}, 2")
        p(f"s_cbranch_scc1 {sk}")
        p(f"s_lshr_b32 s{S_T}, s2, 4")
        p(f"s_mul_i32 s{S_T}, s{S_T}, 2560")
        p(f"v_add_u32 v2, s{S_T}, v160")
        p(f"v_min_u32 v2, gather_table-L_pc+4092, v2")
        p("s_mov_b64 exec, 0xfffff")
        p(f"global_load_dword v161, v2, s[{S_PC}:{S_PC+1}]")
        p("s_mov_b64 exec, -1")
        p.label(sk)
    p("v_mov_b32 v2, 0")
    p(f"ds_write_b32 v{V_C}, v2")
    p.wait0(lg=True)
    p("s_barrier")
    stamp(1)
    p(f"s_cmp_lt_u32 s{S_FB}, 26")
    p("s_cbranch_scc1 L_prep")
    cinit_loads()
    p("s_waitcnt vmcnt(0)")
    stamp(13)
    p(f"s_cmp_lg_u32 s{S_T+3}, 4")
    p("s_cbranch_scc1 L_setup")
    p("v_mov_b32 v4, 0")
    p("s_mov_b64 exec, 1")
    p(f"global_atomic_add v27, v4, v{V_ONE}, s[{S_DBG}:{S_DBG+1}] sc0 sc1")
    p("s_mov_b64 exec, -1")
    last_marker("L_mx")
    p.label("L_mx")
    p("s_mov_b64 exec, -1")
    p("s_branch L_setup")
    p.label("L_prep")
    p("v_bfe_u32 v1, v0, 2, 2")
    p("v_lshrrev_b32 v4, 4, v0")
    p("v_lshl_add_u32 v4, v4, 3, v1")
    p("v_add_u32 v5, 4, v4")
    p("v_min_u32 v4, 25, v4")
    p("v_min_u32 v5, 25, v5")
    p("v_and_b32 v6, 3, v0")
    p(f"s_mul_i32 s{S_T}, s{S_C}, 384")
    p(f"s_add_u32 s{S_T}, s{S_T}, {P_W3}")
    p(f"v_lshl_add_u32 v6, v6, 3, s{S_T}")
    p(f"s_movk_i32 s{S_T+1}, 1352")
    p(f"v_mad_u32_u24 v2, v4, s{S_T+1}, v6")
    p(f"v_mad_u32_u24 v3, v5, s{S_T+1}, v6")
    p(f"s_mul_i32 s{S_T}, s{S_C}, 192")
    p(f"s_movk_i32 s{S_T+1}, -1662")
    p(f"v_mov_b32 v7, {P_DUM}")
    for u in range(3):
        p(f"v_add_u32 v4, s{S_T}, v0")
        if u < 2: p(f"s_add_u32 s{S_T}, s{S_T}, 64")
        p("v_mul_u32_u24 v5, 2521, v4")
        p("v_lshrrev_b32 v5, 16, v5")
        p("v_cmp_gt_u32 vcc, 0x2a4, v4")
        p("v_lshlrev_b32 v4, 6, v4")
        p(f"v_mad_i32_i24 v4, v5, s{S_T+1}, v4")
        p(f"v_add_u32 v4, {P_M3T}, v4")
        p(f"v_cndmask_b32 v{8+u}, v7, v4, vcc")
    p("v_and_b32 v5, 31, v0")
    p("v_lshrrev_b32 v4, 5, v0")
    p("v_lshlrev_b32 v6, 6, v5")
    p("v_lshl_add_u32 v6, v4, 4, v6")
    p(f"v_add_u32 v28, {P_M3T}, v6")
    p("v_mul_u32_u24 v5, 0x90, v5")
    p("v_lshl_add_u32 v5, v4, 4, v5")
    p(f"v_add_u32 v29, {P_D1}, v5")
    p("v_lshrrev_b32 v1, 1, v0")
    p("v_lshl_add_u32 v4, v1, 1, 1")
    p("v_add_u32 v5, 22, v1")
    p("v_min_u32 v4, v5, v4")
    p("v_lshlrev_b32 v5, 1, v1")
    p(f"s_cmp_eq_u32 s{S_C}, 0")
    p("s_cselect_b64 vcc, -1, 0")
    p("v_and_b32 v6, 1, v0")
    p(f"v_mov_b32 v11, {PS}")
    p("v_cndmask_b32 v4, v5, v4, vcc")
    p("v_lshl_add_u32 v4, v4, 1, v6")
    p("v_lshlrev_b32 v30, 4, v4")
    p(f"v_add_u32 v4, {P_M3T + 26*64 - CO}, v{V_C}")
    p(f"s_cmp_lg_u32 s{S_C}, 3")
    p.wait0(vm=True)
    p("s_cbranch_scc1 L_w1")
    p("s_mov_b64 exec, 0x1fff")
    p("ds_write_b32 v4, v27")
    p("s_mov_b64 exec, -1")
    p.label("L_w1")
    stamp(10)
    p("s_barrier")
    extra = []
    for u in range(8):
        extra.append(f"v_add_u32_sdwa v{GA+2*u}, v11, v{TBL+u} dst_sel:DWORD dst_unused:UNUSED_PAD src0_sel:DWORD src1_sel:WORD_0")
        extra.append(f"v_add_u32_sdwa v{GA+2*u+1}, v11, v{TBL+u} dst_sel:DWORD dst_unused:UNUSED_PAD src0_sel:DWORD src1_sel:WORD_1")
    for u in range(8): extra.append(f"v_lshl_or_b32 v{VF+u}, v{VV+2*u+1}, 16, v{VV+2*u}")
    def m3_mfma(U):
        u, q = divmod(U, 4)
        p.wait(lg=f"m{U}")
        cc = "0" if q == 0 else f"v[{12+4*u}:{15+4*u}]"
        p(f"v_mfma_f32_16x16x32_bf16 v[{12+4*u}:{15+4*u}], v[{AQ+4*q}:{AQ+4*q+3}], v[{MB+4*U}:{MB+4*U+3}], {cc}")
    for T in range(12):
        p.lds(f"ds_read_b64_tr_b16 v[{MB+4*T}:{MB+4*T+1}], v2 offset:{32*T}", f"m{T}")
        p.lds(f"ds_read_b64_tr_b16 v[{MB+4*T+2}:{MB+4*T+3}], v3 offset:{32*T}", f"m{T}")
        if T == 5:
            for _ in range(8): p(extra.pop(0))
        if T >= 6: m3_mfma(T - 6)
    for U in range(6, 12):
        m3_mfma(U)
        if U == 8:
            p("v_cvt_pk_bf16_f32 v24, v12, v12")
            p("ds_write_b16 v8, v24")
        else:
            for _ in range(2): p(extra.pop(0))
    p("v_cvt_pk_bf16_f32 v25, v16, v16")
    p("ds_write_b16 v9, v25")
    while extra: p(extra.pop(0))
    p(f"v_cvt_pk_bf16_f32 v26, v20, v20")
    p(f"ds_write_b16 v10, v26")
    p.wait0(lg=True)
    p("s_barrier")
    stamp(11)
    p(f"s_cmp_eq_u32 s{S_C}, 0")
    p("s_cbranch_scc1 L_pT")
    p(f"s_cmp_lg_u32 s{S_C}, 1")
    p("s_cbranch_scc1 L_pdone")
    for u in range(16): p(f"v_mov_b32 v{MB+16+u}, 0")
    for u in range(16): p(f"ds_read_u16_d16_hi v{MB+16+u}, v{GA+u}")
    p("s_mov_b32 exec_hi, 0xfff")
    p("s_branch L_pst")
    p.label("L_pT")
    p("ds_read_b128 v[12:15], v28")
    p("ds_read_b128 v[16:19], v28 offset:32")
    p("s_waitcnt lgkmcnt(1)")
    p(f"v_mfma_f32_32x32x16_bf16 v[{MB}:{MB+15}], v[{VF}:{VF+3}], v[12:15], 0")
    p("s_waitcnt lgkmcnt(0)")
    p(f"v_mfma_f32_32x32x16_bf16 v[{MB}:{MB+15}], v[{VF+4}:{VF+7}], v[16:19], v[{MB}:{MB+15}]")
    p("s_nop 11")
    for a in range(4): p(f"ds_write_b128 v29, v[{MB+4*a}:{MB+4*a+3}] offset:{32*a}")
    for u in range(16): p(f"ds_read_b32 v{MB+16+u}, v{GA+u}")
    p("s_mov_b32 exec_hi, 0xffff")
    p.label("L_pst")
    for e in range(8):
        if e % 2 == 0: p(f"s_waitcnt lgkmcnt({12 - 2*e})")
        p(f"v_add_f32 v{MB+16+2*e}, v{MB+16+2*e}, v{MB+16+2*e+1}")
        if e % 2:
            p(f"v_cvt_pk_bf16_f32 v{4+e//2}, v{MB+14+2*e}, v{MB+16+2*e}")
            p(f"v_min_u32 v{4+e//2}, -2, v{4+e//2}")
    p(f"buffer_store_dwordx4 v[4:7], v30, s[{S_WS}:{S_WS+3}], s{S_T+2} offen sc1")
    p(f"v_mov_b32 v8, s{S_C}")
    p("v_lshlrev_b32 v8, 2, v8")
    p("s_mov_b64 exec, 1")
    p(f"buffer_store_dword v{V_ONE}, v8, s[{S_WS}:{S_WS+3}], s{S_T+2} offen offset:1536 sc1")
    p.label("L_pdx")
    p("s_mov_b64 exec, -1")
    p.label("L_pdone")
    stamp(21)
    cinit_loads()
    p("s_waitcnt vmcnt(0)")
    p("s_branch L_setup")
    p.label("L_xwave")
    S_J, S_XA, S_XB, S_XM, S_TB = S_W, S_T+2, S_T+3, S_T+4, S_T+5
    p(f"s_sub_u32 s{S_J}, s{S_WAVE}, 4")
    p(f"s_lshl3_add_u32 s3, s{S_RG}, s{S_CP}")
    p(f"s_lshr_b32 s{S_FB}, s{S_J}, 1")
    p(f"s_lshl2_add_u32 s3, s{S_FB}, s3")
    p(f"s_mul_i32 s3, s3, 1664")
    p(f"s_and_b32 s{S_X}, s{S_J}, 1")
    p(f"s_mul_i32 s{S_X}, s{S_X}, 832")
    p(f"s_add_u32 s3, s3, s{S_X}")
    p(f"s_mul_i32 s{S_X}, s{S_J}, 832")
    p(f"s_add_u32 m0, s{S_X}, {IX2}")
    p(f"s_lshr_b32 s{S_X}, s2, 6")
    p(f"s_mul_i32 s{S_X}, s{S_X}, 3")
    p(f"s_add_u32 s{S_X}, s{S_X}, s{S_CP}")
    p(f"s_lshl2_add_u32 s{S_X}, s{S_X}, s{S_J}")
    p(f"s_mul_i32 s{S_X}, s{S_X}, {52*128}")
    p(f"s_add_u32 s{S_X}, s{S_X}, {(2496 - 4*52)*128}")
    p.wait0(lg=True)
    p(f"s_mov_b64 s[{S_IDX}:{S_IDX+1}], s[{KA}:{KA+1}]")
    p(f"s_mov_b64 s[{S_W1}:{S_W1+1}], s[{KA+8}:{KA+9}]")
    p("s_mov_b32 exec_hi, 0xfffff")
    p(f"buffer_load_dwordx4 v{V_L}, s[{S_IDX}:{S_IDX+3}], s3 offen lds")
    p("s_mov_b32 exec_hi, -1")
    p(f"s_mov_b64 s[{S_WCO}:{S_WCO+1}], s[{KA+6}:{KA+7}]")
    p(f"s_mov_b64 s[{S_BOUT}:{S_BOUT+1}], s[{KA+14}:{KA+15}]")
    srd(S_TAB, 2, 6400000)
    if cfg.etouch:
        p(f"s_cmp_eq_u32 s{S_CP}, 0")
        p("s_cbranch_scc1 L_noet")
        touch(160, S_X, (1 << 52) - 1)
        p("s_waitcnt vmcnt(1)")
        p.label("L_noet")
    p("v_lshrrev_b32 v1, 4, v0")
    p("v_and_b32 v2, 12, v0")
    p(f"s_mul_i32 s3, s{S_J}, 104")
    p(f"s_add_u32 s3, s3, {IX2}")
    p(f"v_add_u32 v2, s3, v2")
    p(f"s_movk_i32 s{S_X}, 416")
    p(f"v_mad_u32_u24 v3, v1, s{S_X}, v2")
    if cfg.bal:
        p(f"s_cmp_eq_u32 s{S_J}, 3")
        p(f"s_cselect_b32 s{S_X}, 104, 312")
        p(f"s_cselect_b32 s3, {13*104}, {20*104}")
        p(f"v_add_u32 v2, s3, v2")
        p(f"v_mad_u32_u24 v4, v1, s{S_X}, v2")
    else: p("v_add_u32 v4, 0x680, v3")
    p("v_and_b32 v1, 3, v0")
    p("v_lshlrev_b32 v5, 4, v1")
    p("v_bfe_u32 v1, v0, 3, 1")
    p("v_lshl_add_u32 v6, v1, 30, v5")
    p(f"s_mul_i32 s{S_XM}, s{S_J}, 7168")
    p(f"s_lshr_b32 s{S_TB}, s2, 4")
    p(f"s_lshl2_add_u32 s{S_TB}, s{S_TB}, s{S_J}")
    p(f"s_mul_i32 s{S_TB}, s{S_TB}, {46*128}")
    p(f"s_add_u32 s{S_TB}, s{S_TB}, {4992*128}")
    assert not cfg.etouch
    producer_index()
    S_PR = S_T + 6
    p(f"s_cmp_eq_u32 s{S_J}, 0")
    p(f"s_cselect_b32 s{S_PR}, s{S_FB}, 99")
    p(f"s_cmp_ge_u32 s{S_PR}, 26")
    p("s_cbranch_scc1 L_noclr")
    for r in range(4): p(f"v_mov_b32 v{12+r}, -1")
    p(f"s_mul_i32 s{S_T}, s{S_FB}, {BLK}")
    p(f"s_add_u32 s{S_T}, s{S_T}, {WS_W}")
    p(f"buffer_store_dwordx4 v[12:15], v{V_L}, s[{S_WS}:{S_WS+3}], s{S_T} offen sc1")
    p("s_mov_b32 exec_hi, 0xff")
    p(f"buffer_store_dwordx4 v[12:15], v{V_L}, s[{S_WS}:{S_WS+3}], s{S_T} offen offset:1024 sc1")
    p("s_mov_b32 exec_hi, -1")
    p("s_waitcnt vmcnt(2)")
    p("s_branch L_clr")
    p.label("L_noclr")
    p("s_waitcnt vmcnt(0)")
    p.label("L_clr")
    p("s_barrier")
    for u in range(2):
        for Q in range(0, 6, 2): p(f"ds_read2_b32 v[{VT+7*u+u+Q}:{VT+7*u+u+Q+1}], v{3+u} offset0:{4*Q} offset1:{4*Q+4}")
        p(f"ds_read_b32 v{VT+8*u+6}, v{3+u} offset:96")
    stamp(1)
    p.vm.clear()
    assert cfg.xwin < 14
    p.wait0(lg=True)
    go_done = False
    for Q in range(7):
        for u in range(2):
            n = 2*Q + u
            if n == cfg.xbar and not cfg.noprep:
                p(f"s_cmp_ge_u32 s{S_FB}, 26")
                p("s_cbranch_scc1 L_nobar")
                p("s_barrier")
                p(f"s_waitcnt vmcnt({n})")
                p(f"s_cmp_ge_u32 s{S_PR}, 26")
                p("s_cbranch_scc1 L_noat")
                p("v_mov_b32 v12, 0")
                p("s_mov_b64 exec, 1")
                p(f"global_atomic_add v27, v12, v{V_ONE}, s[{S_DBG}:{S_DBG+1}] sc0 sc1")
                p("s_mov_b64 exec, -1")
                p.label("L_noat")
                p("s_barrier")
                p(f"s_cmp_ge_u32 s{S_PR}, 26")
                p("s_cbranch_scc1 L_nobar")
                last_marker("L_lm")
                p.label("L_lm")
                p("s_mov_b64 exec, -1")
                p.label("L_nobar")
            if n == cfg.xstart and n: p.wait(vm="x0")
            if n >= cfg.xwin:
                p.wait(vm=f"x{n - cfg.xwin}")
                if n - cfg.xwin == 2*cfg.gon + 1: arrive(C_GO); go_done = True
            p(f"s_add_u32 m0, s{S_XM}, {XO + 4*7168*u + 1024*Q}")
            p(f"v_lshl_add_u32 v{VT+8*u+Q}, v{VT+8*u+Q}, 6, v{6 if Q == 6 else 5}")
            p.vmem(f"buffer_load_dwordx4 v{VT+8*u+Q}, s[{S_TAB}:{S_TAB+3}], 0 offen lds", f"x{n}")
        for u, at in enumerate((cfg.lt0, cfg.lt1)):
            if at == Q and cfg.ltouch:
                touch(160, S_TB, (1 << 46) - 1); p.vm.issue("t")
                p(f"s_add_u32 s{S_TB}, s{S_TB}, {2944*128}")
    def late_touch():
        touch(160, S_TB, (1 << 46) - 1); p.vm.issue("t")
        p(f"s_add_u32 s{S_TB}, s{S_TB}, {2944*128}")
    cinit_loads()
    for _ in range(5): p.vm.issue("ci")
    if not go_done:
        p.wait(vm=f"x{2*cfg.gon+1}")
        arrive(C_GO)
    p.wait(vm="x13")
    arrive(C_XL)
    p.wait(vm="ci")
    for at in (cfg.lt0, cfg.lt1):
        if at == 7 and cfg.ltouch: late_touch()
    if cfg.ltouch and cfg.lt1 == 8: p(f"s_mov_b32 s{S_FB}, s{S_TB}")
    stamp(6)

    p.label("L_setup")
    if cfg.stamps: p(f"s_mov_b32 s{S_ST+27}, 0")
    p(f"s_setprio {cfg.prio_prep}")
    p.vm.clear(); p.lg.clear()
    AX, AT, CI, X0 = 0, 16, 32, 48
    Z = [74, 78]; PT = 82; ZL = 90
    XA = {1: 98, -3: 99, -1: 100}; WA = 101; SM = [102, 103, 104, 105]; MBX = 106; VMB = 110; VBO = 111
    RING = 112; RES = RING + 4*cfg.R
    WT = 112
    assert RES + 4*cfg.NRES <= 256
    NR = 4
    S_N, S_MB, S_O = S_T+7, S_T+9, S_T+11
    S_NR = S_T + 12
    p(f"s_and_b32 s{S_T+3}, s{S_WAVE}, 3")
    p(f"s_lshl_b32 s{S_T+2}, s{S_T+3}, 2")
    p(f"s_lshl_b32 s{S_T}, s{S_T+3}, 8")
    p(f"s_mov_b32 s{S_N}, 4")
    p(f"s_add_u32 s{S_T+2}, s{S_T+2}, 3")
    p(f"s_cmp_lt_u32 s{S_WAVE}, 4")
    p("s_cbranch_scc1 L_rowp")
    p(f"s_add_u32 s{S_T}, s{S_T}, {4*7168}")
    if cfg.bal:
        p(f"s_mov_b32 s{S_N}, 3")
        p(f"s_mul_i32 s{S_T+2}, s{S_T+3}, 3")
        p(f"s_add_u32 s{S_T+2}, s{S_T+2}, 70")
    else: p(f"s_add_u32 s{S_T+2}, s{S_T+2}, 64")
    p.label("L_rowp")
    p(f"s_lshl4_add_u32 s{S_T+2}, s{S_CP}, s{S_T+2}")
    p.label("L_setup2")
    p(f"s_mov_b32 s{S_NR}, s{S_N}")
    p("v_and_b32 v1, 31, v0")
    p("v_lshrrev_b32 v2, 5, v0")
    p(f"v_lshl_add_u32 v3, v1, 1, s{S_T}")
    p(f"v_lshl_add_u32 v{XA[1]}, v2, 6, v3")
    p("v_mul_u32_u24 v4, 0xc0, v2")
    p(f"v_sub_u32 v{XA[-3]}, v3, v4")
    p("v_lshlrev_b32 v4, 6, v2")
    p(f"v_sub_u32 v{XA[-1]}, v3, v4")
    p("v_mul_u32_u24 v4, 0x210, v2")
    p("v_lshl_add_u32 v4, v1, 4, v4")
    p(f"v_add_u32 v{WA}, {WO}, v4")
    for r in range(26): p(f"v_mov_b32 v{X0+r}, 0")
    for a in range(3):
        for h in range(2):
            p(f"v_lshlrev_b32 v{CI+4*a+2*h}, 16, v{CRAW+2*a+h}")
            p(f"v_and_b32 v{CI+4*a+2*h+1}, 0xffff0000, v{CRAW+2*a+h}")
    p(f"v_lshlrev_b32 v{CI+12}, 16, v{CRAW+6}")
    for r in range(13, 16): p(f"v_mov_b32 v{CI+r}, 0")
    p(f"v_lshlrev_b32 v{VBO}, 16, v{CRAW+7}")
    p("v_lshrrev_b32 v1, 3, v0")
    p("v_min_u32 v3, 1, v1")
    p("v_lshlrev_b32 v2, 9, v0")
    p(f"v_lshl_add_u32 v{VMB}, v3, 30, v2")
    p(f"s_lshl_b32 s{S_T+1}, s{S_RG}, 7")
    p(f"s_add_u32 s{S_T+1}, s{S_T+1}, s{S_T+2}")
    p(f"s_lshl_b32 s{S_O}, s{S_T+1}, 1")
    p(f"s_lshl_b32 s{S_T}, s{S_RG}, 10")
    p(f"s_add_u32 s{S_MB}, s{S_T+2}, s{S_T}")
    p(f"s_sub_u32 s{S_MB}, s{S_MB}, 3")
    p(f"s_lshl_b32 s{S_MB}, s{S_MB}, 2")
    p(f"v_mov_b32 v{ZL+7}, 0")
    p(f"s_cmp_ge_u32 s{S_WAVE}, 4")
    p("s_cbranch_scc1 L_xz")
    p("v_and_b32 v2, 7, v0")
    p(f"v_mul_u32_u24 v3, {BLK}, v1")
    p("v_lshl_add_u32 v3, v2, 4, v3")
    p("v_mul_u32_u24 v4, 0x210, v2")
    p(f"s_mul_i32 s{S_T}, s{S_C}, {24*528}")
    p(f"s_add_u32 s{S_T}, s{S_T}, {WO}")
    p(f"v_add_u32 v4, s{S_T}, v4")
    p("v_lshl_add_u32 v5, v1, 4, v4")
    p("v_cmp_eq_u32 vcc, 1, v1")
    p("v_add_u32 v6, 48, v5")
    p("v_subrev_u32 v7, 48, v5")
    p("v_cndmask_b32 v6, v5, v6, vcc")
    p("v_cmp_eq_u32 vcc, 4, v1")
    p(f"s_cmp_eq_u32 s{S_C}, 3")
    p(f"s_cselect_b32 s{S_T+1}, 4, 0")
    p("v_cndmask_b32 v6, v6, v7, vcc")
    p(f"v_and_b32 v7, s{S_T+1}, v2")
    p("v_lshl_add_u32 v7, v7, 28, v3")
    p("v_and_b32 v8, 31, v0")
    p("v_lshrrev_b32 v9, 5, v0")
    p(f"v_mul_u32_u24 v8, {BLK}, v8")
    p("v_lshl_add_u32 v8, v9, 2, v8")
    p(f"s_mul_i32 s{S_T}, s{S_C}, 384")
    p(f"s_add_u32 s{S_T}, s{S_T}, {WS_W}")
    p(f"s_and_b32 s{S_T+1}, s{S_CP}, {1 if cfg.wrot else 0}")
    p(f"s_mul_i32 s{S_T+2}, s{S_T+1}, 26624")
    for k in range(4):
        p(f"s_xor_b32 s{S_T+3+k}, s{S_T+2}, {26624*(k >> 1)}")
        p(f"s_add_u32 s{S_T+3+k}, s{S_T+3+k}, s{S_T}")
        if k & 1: p(f"s_add_u32 s{S_T+3+k}, s{S_T+3+k}, 13312")
    p(f"s_lshl_b32 s{S_T+2}, s{S_T+1}, 8")
    p(f"s_cmp_eq_u32 s{S_T+1}, 0")
    p("s_cselect_b64 vcc, -1, 0")
    p(f"v_add_u32 v12, s{S_T+2}, v5")
    p(f"s_xor_b32 s{S_T+2}, s{S_T+2}, 0x100")
    p("v_add_u32 v6, 0x180, v6")
    p("v_add_u32 v15, 0x80, v5")
    p(f"v_add_u32 v14, s{S_T+2}, v5")
    p("v_cndmask_b32 v13, v6, v15, vcc")
    p("v_cndmask_b32 v15, v15, v6, vcc")
    p("v_mov_b32 v10, 0")
    check(C_GO, 4, sleep=2)
    stamp(22)
    p(f"s_mov_b32 s{S_T+13}, {WS_W}")
    if cfg.noprep: p("s_branch L_wload")
    if cfg.direct:
        p(f"s_load_dword s{S_X}, s[{S_DBG}:{S_DBG+1}], 192")
        p("s_waitcnt lgkmcnt(0)")
        p(f"s_cmp_lg_u32 s{S_X}, 0")
        p("s_cbranch_scc1 L_wload")
        if cfg.stamps: p(f"s_add_u32 s{S_ST+27}, s{S_ST+27}, 100")
    p(f"s_cmp_lg_u32 s{S_C}, 0")
    p("s_cbranch_scc1 L_pw")
    p.label("L_probe")
    p(f"global_load_dword v11, v10, s[{S_DBG}:{S_DBG+1}] offset:128 sc1")
    p(f"buffer_load_dword v9, v8, s[{S_WS}:{S_WS+3}], s{S_T+13} offen offset:1536 sc1")
    p("s_waitcnt vmcnt(0)")
    p("v_add_u32 v11, -1, v11")
    p("v_max_u32 v9, v9, v11")
    p("v_cmp_eq_u32 vcc, -1, v9")
    p("s_nop 1")
    p("s_cmp_eq_u64 vcc, 0")
    p("s_cbranch_scc1 L_wload")
    p.label("L_retry")
    if cfg.stamps: p(f"s_add_u32 s{S_ST+27}, s{S_ST+27}, 1")
    p(f"s_sleep {cfg.poll_sleep}")
    p(f"s_sub_u32 s{S_SPIN}, s{S_SPIN}, 1")
    p("s_cbranch_scc0 L_probe")
    p("s_endpgm")
    p.label("L_pw")
    check(C_FLAG, 1, sleep=2)
    p("s_branch L_wl2")
    p.label("L_wload")
    arrive(C_FLAG)
    p.label("L_wl2")
    stamp(2)
    for J in range(4):
        for Fi in range(3):
            r = WT + 4*(3*J + Fi)
            p.vmem(f"buffer_load_dwordx4 v[{r}:{r+3}], v{7 if Fi == 2 else 3}, s[{S_WS}:{S_WS+3}], s{S_T+3+J} offen offset:{128*Fi} sc1", f"w{J}{Fi}")
    first = True
    for J in range(4):
        for Fi in range(3):
            r = WT + 4*(3*J + Fi)
            p.wait(vm=f"w{J}{Fi}")
            p(f"ds_write_b128 v{12+J}, v[{r}:{r+3}] offset:{4224*Fi}")
            if first: p(f"v_max_u32 v9, v{r}, v{r+1}")
            else: p(f"v_max3_u32 v9, v{r}, v{r+1}, v9")
            p(f"v_max3_u32 v9, v{r+2}, v{r+3}, v9")
            first = False
    p("v_cmp_eq_u32 vcc, -1, v9")
    p("s_nop 1")
    p("s_cmp_eq_u64 vcc, 0")
    p("s_cbranch_scc0 L_retry")
    p.label("L_xz")
    check(C_XL, 4, sleep=cfg.idle_sleep)
    def x_read(r):
        p.lds(f"ds_read_u16_d16_hi v{X0+r}, v{XA[pi(r)-r]} offset:{1024*(r >> 2) + 64*(r & 3)}", f"x{r}")
    for r in range(26): x_read(r)
    def z_ops(n):
        ops = []
        for e in range(4):
            t = PT + 2*(e % 4)
            (a, b), (c, d) = S[8*n + 2*e], S[8*n + 2*e + 1]
            ops.append(("v", f"v_mul_f32 v{t}, v{X0+a}, v{X0+b}", (a, b)))
            ops.append(("v", f"v_mul_f32 v{t+1}, v{X0+c}, v{X0+d}", (c, d)))
        cv = [("v", f"v_cvt_pk_bf16_f32 v{Z[n % 2]+e}, v{PT+2*e}, v{PT+2*e+1}", ()) for e in range(4)]
        return ops[0:4] + cv[0:1] + ops[4:6] + cv[1:2] + ops[6:8] + cv[2:4]
    for o in z_ops(0):
        p.wait(lg=tuple(f"x{r}" for r in o[2]))
        p(o[1])
    for d in XA.values(): p(f"v_add_u32 v{d}, 0x1c00, v{d}")
    p.wait0(lg=True)
    p("s_barrier")
    if cfg.ltouch and cfg.lt1 == 8:
        p(f"s_cmp_lt_u32 s{S_WAVE}, 4")
        p("s_cbranch_scc1 L_go")
        touch(160, S_FB, (1 << 46) - 1)
    p.label("L_go")
    p("s_setprio 0")
    if cfg.flip:
        p(f"s_cmp_lt_u32 s{S_WAVE}, 4")
        p("s_cbranch_scc1 L_prio")
        p(f"s_setprio 1")
        p.label("L_prio")
    stamp(3)
    order = []
    for n in range(22):
        order.append(("X", n)); order.append(("T", n))
        if n == 14: order.append(("T", 22))
        if n == 18: order.append(("T", 23))
    fr_of = lambda k, n: (2*n if k == "X" else 2*n + 1) if n < 22 else n + 22
    nn = 46 - cfg.NRES
    assert nn % cfg.R == 0
    nonres = [int((u + 0.5)*46/nn) for u in range(nn)]
    wreg = {}; rr = 0
    for k in range(46):
        if k in nonres: wreg[k] = RING + 4*(nonres.index(k) % cfg.R)
        else: wreg[k] = RES + 4*rr; rr += 1
    def w_read(k):
        p.lds(f"ds_read_b128 v[{wreg[k]}:{wreg[k]+3}], v{WA} offset:{1056*fr_of(*order[k])}", f"w{k}")
    for k in range(46):
        if k not in nonres or nonres.index(k) < cfg.R: w_read(k)
    p.wait0(lg=True)
    stamp(5)
    def mfma(k):
        kind, n = order[k]
        zb = Z[n % 2] if n < 22 else ZL + 4*(n - 22)
        acc = AX if kind == "X" else AT
        cc = f"v[{acc}:{acc+15}]"
        if n == 0: cc = "0" if kind == "X" else f"v[{CI}:{CI+15}]"
        return f"v_mfma_f32_32x32x16_bf16 v[{acc}:{acc+15}], v[{wreg[k]}:{wreg[k]+3}], v[{zb}:{zb+3}], {cc}"
    lin_ops = []
    for u in range(8):
        a = LIN[min(2*u, 12)]; b = LIN[min(2*u + 1, 12)]
        lin_ops.append(("v", f"v_cvt_pk_bf16_f32 v{ZL+u}, v{X0+a}, v{X0+b}", (a, b)))
    def body(emit_mb):
        groups = [z_ops(n) for n in range(1, 22)] + [z_ops(0)]
        groups[10] = lin_ops[:7] + groups[10]
        flat = [(g, o) for g, ops in enumerate(groups) for o in ops]
        lastuse = {}
        for i, (g, o) in enumerate(flat):
            if g < 21:
                for r in o[2]: lastuse[r] = i
        for r in range(26): lastuse.setdefault(r, -1)
        for g, ops in enumerate(groups):
            mf = [kk for kk in range(46) if order[kk] in (("X", g), ("T", g))]
            if g == 14: mf.append(order.index(("T", 22)))
            if g == 18: mf.append(order.index(("T", 23)))
            items = []
            base = sum(len(x) for x in groups[:g])
            if g == 0:
                for r in range(26):
                    if lastuse[r] == -1: items.append(("x", r))
            for i, o in enumerate(ops):
                items.append(o)
                for r in range(26):
                    if lastuse[r] == base + i: items.append(("x", r))
            if g == 21:
                pos = [0, 0]
            else:
                n_it = len(items)
                pos = [2 + (j*n_it)//len(mf) for j in range(len(mf))]
            j = 0
            for i, it in enumerate(items + [None]):
                while j < len(mf) and pos[j] <= i:
                    kk = mf[j]
                    if g == 21 and j == 0: p("s_nop 1")
                    p.wait(lg=f"w{kk}")
                    p(mfma(kk))
                    if kk in nonres:
                        w_read(nonres[(nonres.index(kk) + cfg.R) % nn])
                    j += 1
                if it is None: break
                if it[0] == "x": x_read(it[1])
                else:
                    p.wait(lg=tuple(f"x{r}" for r in it[2]))
                    p(it[1])
            if g == 15: emit_mb()
        for k in range(NR - 1): p(f"v_mov_b32 v{SM[k]}, v{SM[k+1]}")
        for d in XA.values(): p(f"v_add_u32 v{d}, 0x1c00, v{d}")
        s0 = SM[NR-1]
        p(f"v_mul_f32 v{s0}, v{AX}, v{AT}")
        p(f"v_mul_f32 v{PT}, v{AX+1}, v{AT+1}")
        for r in range(2, 13):
            p(f"v_fmac_f32 v{s0 if r % 2 == 0 else PT}, v{AX+r}, v{AT+r}")
        p(f"s_sub_u32 s{S_N}, s{S_N}, 1")
        p(f"v_add_f32 v{s0}, v{s0}, v{PT}")
    def mb_loads():
        p(f"buffer_load_dwordx{NR} v[{MBX}:{MBX+NR-1}], v{VMB}, s[{S_WS}:{S_WS+3}], s{S_MB} offen sc1")
    def emit_mb():
        sk = L("nomb")
        p(f"s_cmp_lg_u32 s{S_N}, 1")
        p(f"s_cbranch_scc1 {sk}")
        mb_loads()
        p.label(sk)
    save = p.L; p.L = []
    body(lambda: None)
    st1 = list(p.lg.q)
    p.L = save
    p(".p2align 3")
    p.label("L_row")
    body(emit_mb)
    assert st1 == p.lg.q
    if cfg.stamps in (1, 2):
        for i in range(3): p(f"s_mov_b32 s{S_ST+23+i}, s{S_ST+24+i}")
        stamp(26)
    if cfg.flip:
        p(f"s_cmp_lg_u32 s{S_N}, {4 - cfg.flip}")
        p("s_cbranch_scc1 L_noflip")
        p("s_setprio 0")
        p.label("L_noflip")
    p(f"s_cmp_lg_u32 s{S_N}, 0")
    p("s_cbranch_scc1 L_row")
    p.label("L_mbw")
    p("s_waitcnt vmcnt(0)")
    if NR == 4:
        p(f"v_max3_u32 v1, v{MBX}, v{MBX+1}, v{MBX+2}")
        p(f"v_max_u32 v1, v1, v{MBX+3}")
    else: p(f"v_max_u32 v1, v{MBX}, v{MBX+1}")
    p("v_cmp_eq_u32 vcc, -1, v1")
    p("s_nop 1")
    p("s_cmp_eq_u64 vcc, 0")
    p("s_cbranch_scc1 L_mbok")
    p("s_sleep 1")
    mb_loads()
    p(f"s_sub_u32 s{S_SPIN}, s{S_SPIN}, 1")
    p("s_cbranch_scc0 L_mbw")
    p("s_endpgm")
    p.label("L_mbok")
    for k in range(NR): p(f"v_add_f32 v{SM[k]}, v{SM[k]}, v{MBX+k}")
    for ctl in ("quad_perm:[1,0,3,2] row_mask:0xf", "quad_perm:[2,3,0,1] row_mask:0xf", "row_half_mirror row_mask:0xf",
                "row_mirror row_mask:0xf", "row_bcast:15 row_mask:0xa", "row_bcast:31 row_mask:0xc"):
        if NR == 2: p("s_nop 0")
        for k in range(NR): p(f"v_add_f32_dpp v{SM[k]}, v{SM[k]}, v{SM[k]} {ctl} bank_mask:0xf")
    for k in range(NR): p(f"v_add_f32 v{SM[k]}, v{SM[k]}, v{VBO}")
    p(f"v_cvt_pk_bf16_f32 v2, v{SM[0]}, v{SM[1]}")
    p(f"v_cvt_pk_bf16_f32 v3, v{SM[2]}, v{SM[3]}")
    p(f"v_mov_b32 v1, s{S_O}")
    p("s_mov_b32 exec_lo, 0")
    p("s_mov_b32 exec_hi, 0x80000000")
    if cfg.bal:
        p(f"s_cmp_eq_u32 s{S_NR}, 4")
        p("s_cbranch_scc1 L_st4")
        p(f"global_store_short_d16_hi v1, v3, s[{S_OUT}:{S_OUT+1}]")
        p(f"s_cmp_eq_u32 s{S_NR}, 1")
        p("s_cbranch_scc1 L_std")
        p(f"global_store_short v1, v3, s[{S_OUT}:{S_OUT+1}] offset:-2")
        p(f"global_store_short_d16_hi v1, v2, s[{S_OUT}:{S_OUT+1}] offset:-4")
        p("s_branch L_std")
        p.label("L_st4")
    p(f"global_store_dwordx2 v1, v[2:3], s[{S_OUT}:{S_OUT+1}] offset:-6")
    p.label("L_std")
    stamps_out()
    p.label("L_end")
    p("s_endpgm")

    p.vm.q = dnn_vm; p.lg.clear()
    p(".p2align 6")
    p.label("L_dnn")
    ACC = lambda t, q: 8*t + 4*q
    BF = lambda t: 56 + 4*t
    AR = lambda f, q: 84 + 8*(f % 2) + 4*q
    IDX = lambda f: 100 + f
    VO = lambda u: 128 + u
    V_B, V_A, V_CH, V_LANE, V_G8 = [130, 131, 132], [133, 134, 135], 136, 137, 138
    RAW = 140; RAW2 = 200
    S_SB, S_M0, S_AM = S_T+2, S_T+3, S_T+4
    if cfg.probe:
        p("s_cmp_ge_u32 s2, 8")
        p("s_cbranch_scc1 L_pr1")
        p("s_lshl_b32 s90, s2, 2")
        p("v_mov_b32 v1, s90")
        p("v_mov_b32 v2, s96")
        p(f"global_store_dword v1, v2, s[{S_DBG}:{S_DBG+1}] offset:8 sc1")
        p("s_waitcnt vmcnt(0)")
        p.label("L_pr1")
    srd(S_B1, 10, 1664)
    srd(S_TAB, 2, 6400000)
    srd(S_W2, 12, 1664)
    srd(S_WS, None, WS_END)
    stamp(10)
    p(f"s_mov_b32 s{S_SPIN}, 0x40000")
    p(f"s_mul_i32 s{S_COL}, s{S_CP}, 416")
    S_M1, S_WR = S_T+5, S_T+6
    p(f"s_mov_b32 s{S_SB}, s{S_COL}")
    p(f"s_and_b32 s{S_WR}, s{S_WAVE}, 3")
    p(f"s_lshl_b32 s{S_T}, s{S_WAVE}, 1")
    p(f"s_sub_u32 s{S_T}, s{S_T}, 4")
    p(f"s_add_u32 s{S_T+1}, s{S_T}, 1")
    p(f"s_cmp_lt_u32 s{S_WAVE}, 4")
    p(f"s_cselect_b32 s{S_M0}, s{S_WAVE}, s{S_T}")
    p(f"s_cselect_b32 s{S_M1}, 12, s{S_T+1}")
    p(f"s_lshl_b32 s{S_M0}, s{S_M0}, 10")
    p(f"s_lshl_b32 s{S_M1}, s{S_M1}, 10")
    p(f"s_lshl_b32 s{S_AM}, s{S_WAVE}, 10")
    p(f"s_add_u32 s{S_AM}, s{S_AM}, {BSZ}")
    p(f"s_lshr_b32 s{S_T}, s{S_WAVE}, 2")
    p(f"s_mul_i32 s{S_T}, s{S_T}, 224")
    p(f"s_add_u32 s{S_COL}, s{S_COL}, s{S_T}")
    p(f"s_movk_i32 s{S_T+1}, 1248")
    p(f"s_movk_i32 s{S_T+7}, 6656")
    for u in range(2):
        p(f"v_add_u32 v3, s{(S_M0, S_M1)[u]}, v{V_L}")
        p("v_lshlrev_b32 v4, 4, v3")
        p("v_mul_hi_u32_u24 v4, 0x9d89e, v4")
        p("v_bfe_u32 v5, v4, 2, 1")
        p("v_bfe_i32 v6, v4, 3, 1")
        p("v_add_u32 v5, v5, v6")
        p(f"v_mad_i32_i24 v5, v5, s{S_T+7}, v3")
        p(f"v_mad_u32_u24 v{VO(u)}, v4, s{S_T+1}, v5")
    p("v_lshrrev_b32 v1, 4, v0")
    p(f"s_add_u32 s{S_T+1}, s{S_T}, {IDXO}")
    p(f"v_lshl_add_u32 v{V_G8}, v1, 3, s{S_T+1}")
    p("v_lshrrev_b32 v2, 2, v0")
    p(f"v_mul_u32_u24 v2, 104, v2")
    p(f"s_add_u32 s{S_W}, s{S_W}, {IDXO}")
    p(f"v_add_u32 v139, s{S_W}, v2")
    p("v_lshrrev_b32 v2, 5, v0")
    p("v_mul_u32_u24 v3, 3, v2")
    p("v_xor_b32 v3, v3, v0")
    p("v_and_b32 v3, 3, v3")
    p(f"v_lshlrev_b32 v{V_CH}, 4, v3")
    p("v_bfe_u32 v3, v0, 3, 1")
    p("v_mul_u32_u24 v3, 3, v3")
    p("v_xor_b32 v3, v3, v1")
    p("v_and_b32 v4, 15, v0")
    p("v_lshlrev_b32 v4, 6, v4")
    p("v_lshl_add_u32 v3, v3, 4, v4")
    p(f"s_and_b32 s{S_T+1}, s{S_WAVE}, 3")
    p(f"s_lshl_b32 s{S_T+1}, s{S_T+1}, 11")
    p(f"s_add_u32 s{S_T+1}, s{S_T+1}, {BSZ}")
    p(f"v_add_u32 v{V_A[0]}, s{S_T+1}, v3")
    p("v_bfe_u32 v3, v0, 2, 3")
    p("v_lshl_add_u32 v2, v2, 4, v3")
    p("v_mul_u32_u24 v2, 0x1a0, v2")
    p("v_and_b32 v3, 3, v0")
    p("v_lshl_add_u32 v2, v3, 3, v2")
    p(f"v_add_u32 v{V_B[0]}, s{S_T}, v2")
    for k in (1, 2):
        p(f"v_add_u32 v{V_A[k]}, {3*k*SLOT}, v{V_A[0]}")
        p(f"v_add_u32 v{V_B[k]}, {3*k*SLOT}, v{V_B[0]}")
    p(f"v_mov_b32 v{V_LANE}, v0")
    p.wait(vm="idx")
    stamp(1)
    if cfg.dbench:
        p("s_mov_b32 s3, 0")
        p.label("L_again")
    for m in range(6):
        p.lds(f"ds_read2_b64 v[{100+4*m}:{103+4*m}], v139 offset0:{2*m} offset1:{2*m+1}", f"ix{m}")
    p.lds("ds_read_b64 v[124:125], v139 offset:96", "ix6")
    def a_dma(f):
        p.wait(lg=f"ix{f >> 2}")
        p(f"s_add_u32 m0, s{S_AM}, {(f % RB)*SLOT}")
        p(f"v_lshl_add_u32 v{IDX(f)}, v{IDX(f)}, 6, v{V_CH}")
        p.vmem(f"buffer_load_dwordx4 v{IDX(f)}, s[{S_TAB}:{S_TAB+3}], 0 offen lds", f"F{f}")
    def b_dma(f, u, T):
        if u == 1:
            if f: p(f"s_add_u32 s{S_SB}, s{S_SB}, 53248")
            sk = L("np")
            if T != 6:
                if T == 0:
                    p(f"s_cmp_ge_u32 s{S_WAVE}, 4")
                    p(f"s_cselect_b32 s{S_X}, {f & 3}, s{S_WR}")
                    p(f"s_cmp_lg_u32 s{S_X}, {f & 3}")
                else: p(f"s_cmp_lg_u32 s{S_WR}, {f & 3}")
                p(f"s_cbranch_scc1 {sk}")
            p(f"s_add_u32 m0, s{S_M1}, {(f % RB)*SLOT}")
            p("s_nop 0")
            p(f"buffer_load_dwordx4 v{VO(1)}, s[{S_W1}:{S_W1+3}], s{S_SB} offen lds")
            if T == 6: p.vm.issue(f"F{f}")
            else: p.label(sk)
        else:
            p(f"s_add_u32 m0, s{S_M0}, {(f % RB)*SLOT}")
            p("s_nop 0")
            p.vmem(f"buffer_load_dwordx4 v{VO(0)}, s[{S_W1}:{S_W1+3}], s{S_SB} offen lds", f"F{f}")
    def fill(f, T): a_dma(f); b_dma(f, 1, T); b_dma(f, 0, T)
    BWO = IDXO
    p(f"s_cmp_ge_u32 s{S_WAVE}, {0 if cfg.dbench else 2}")
    p("s_cbranch_scc1 L_nobw")
    p(f"s_mul_i32 s{S_X}, s{S_CP}, 416")
    p(f"s_cmp_eq_u32 s{S_WAVE}, 0")
    p(f"s_cselect_b64 s[{S_W2}:{S_W2+1}], s[{S_B1}:{S_B1+1}], s[{S_W2}:{S_W2+1}]")
    p(f"s_mov_b32 m0, s{S_W}")
    p("s_mov_b64 exec, 0xfffffff")
    p("s_waitcnt lgkmcnt(0)")
    p(f"buffer_load_dwordx4 v{V_L}, s[{S_W2}:{S_W2+3}], s{S_X} offen lds")
    p("s_mov_b64 exec, -1")
    p.label("L_nobw")
    if cfg.sw < 26:
        p(f"v_lshlrev_b32 v{V_C}, 2, v{V_LANE}")
        p(f"v_add_u32 v{V_C}, {IDXO + 2*1664}, v{V_C}")
        p(f"v_mov_b32 v{V_ONE}, 1")
        p(f"s_cmp_lg_u32 s{S_WAVE}, 2")
        p("s_cbranch_scc1 L_noz")
        p(f"v_mov_b32 v{V_POLL}, 0")
        p("s_waitcnt lgkmcnt(0)")
        p(f"ds_write_b32 v{V_C}, v{V_POLL}")
        p("s_waitcnt lgkmcnt(0)")
        p.label("L_noz")
    def lo(f): return (f % RB)//3, ((f % RB) % 3)*SLOT
    def b_read1(f, t, r2):
        k, off = lo(f)
        p.lds(f"ds_read_b64_tr_b16 v[{BF(t)+2*r2}:{BF(t)+2*r2+1}], v{V_B[k]} offset:{off + 32*t + 3328*r2}", f"b{f}_{t}")
    def a_read(f):
        k, off = lo(f)
        for q in range(2):
            p.lds(f"ds_read_b128 v[{AR(f, q)}:{AR(f, q)+3}], v{V_A[k]} offset:{off + 1024*q}", f"a{f}")
    p(f"s_cmp_ge_u32 s{S_WAVE}, 4")
    p("s_cbranch_scc1 L_dnn6")
    W2R = lambda t, r: 170 + 4*t + r
    def w2_unpack():
        return [x for t in range(7) for h in range(2) for x in
                (f"v_lshlrev_b32 v{W2R(t,2*h)}, 16, v{RAW2+2*t+h}", f"v_and_b32 v{W2R(t,2*h+1)}, 0xffff0000, v{RAW2+2*t+h}")]
    vm0, lg0 = list(p.vm.q), list(p.lg.q)
    def dnn_main(T):
        p.vm.q, p.lg.q = list(vm0), list(lg0)
        fill(0, T)
        fill(1, T)
        p.wait(vm="F0")
        p("s_barrier")
        stamp(12)
        for t in range(T):
            p.lds(f"ds_read_b64 v[{RAW+2*t}:{RAW+2*t+1}], v{V_G8} offset:{32*t}", "bias")
        a_read(0)
        for t in range(T):
            for r2 in range(2): b_read1(0, t, r2)
        p.wait(lg="bias")
        for t in range(T):
            for h in range(2):
                p(f"v_lshlrev_b32 v{ACC(t,0)+2*h}, 16, v{RAW+2*t+h}")
                p(f"v_and_b32 v{ACC(t,0)+2*h+1}, 0xffff0000, v{RAW+2*t+h}")
        for f in range(2, cfg.look): fill(f, T)
        p.wait(vm=tuple(f"F{k}" for k in range(cfg.barp + 1)))
        p("s_barrier")
        if T == 6 and cfg.prio_hi: p(f"s_setprio {cfg.prio_hi}")
        stamp(2)
        nxt = cfg.look
        w2ops = w2_unpack()
        free = -1; landed = cfg.barp
        for f in range(26):
            todo = []
            soft = f > cfg.sw and f <= 23
            top = f < cfg.early or (cfg.dpos == 4 and T == 6) or (cfg.dpos == 1 and T == 7)
            lim = (f - 1 if soft and not top else free) + RB
            nfill = 2 if (cfg.cmask >> f & 1 if cfg.cmask else cfg.catch0 <= f < cfg.catch0 + cfg.catch) else 1
            if f >= cfg.b2: nfill = (2 if (f % 2 == 0) == ((T == 6) == (cfg.dpos == 4)) else 0)
            for _ in range(nfill):
                if nxt < 26 and nxt <= lim:
                    todo += [(a_dma, (nxt,)), (b_dma, (nxt, 1, T)), (b_dma, (nxt, 0, T))]; nxt += 1
            if cfg.nodma and f >= 4:
                keep = []
                for fn, ar in todo:
                    if (fn is a_dma and cfg.nodma & 1) or (fn is b_dma and cfg.nodma & 2): continue
                    keep.append((fn, ar))
                todo[:] = keep
            n_it = len(todo)
            if f < cfg.early: at = [-1]*n_it
            elif cfg.dpos == 0: at = list(range(n_it))
            elif cfg.dpos == 1: at = [-1]*n_it if T == 7 else [T-1]*n_it
            elif cfg.dpos == 2: at = [(2*i + (T == 6)) if n_it <= 3 else i for i in range(n_it)]
            elif cfg.dpos == 3: at = [0]*n_it if T == 7 else [T-1]*n_it
            elif cfg.dpos == 4: at = [T-1]*n_it if T == 7 else [-1]*n_it
            elif cfg.dpos == 5: at = [i//(2 if n_it > 3 else 1) for i in range(n_it)] if T == 7 else [3 + i//(2 if n_it > 3 else 1) for i in range(n_it)]
            if soft and not top: at = [min(max(a, cfg.chk + i*(cfg.dpos in (0, 2))), T-1) for i, a in enumerate(at)]
            assert f == 25 or f + 1 <= landed
            def drain(t):
                while todo and at[0] <= t:
                    at.pop(0); fn, ar = todo.pop(0); fn(*ar)
            drain(-1)
            for t in range(T):
                p.wait(lg=(f"b{f}_{t}", f"a{f}"))
                b = f"v[{BF(t)}:{BF(t)+3}]"
                a0, a1 = ACC(t, 0), ACC(t, 1)
                c1 = a0 if f == 0 else a1
                p(f"v_mfma_f32_16x16x32_bf16 v[{a1}:{a1+3}], {b}, v[{AR(f,1)}:{AR(f,1)+3}], v[{c1}:{c1+3}]")
                if t and f < 25: b_read1(f+1, t-1, 1)
                elif t == 0 and f: b_read1(f, T-1, 1)
                p(f"v_mfma_f32_16x16x32_bf16 v[{a0}:{a0+3}], {b}, v[{AR(f,0)}:{AR(f,0)+3}], v[{a0}:{a0+3}]")
                if f < 25: b_read1(f+1, t, 0)
                if t == cfg.arp and f < 25: a_read(f + 1)
                if soft and t == cfg.chk - 2: poll_issue(4*(f-1))
                if soft and t == cfg.chk:
                    check(4*(f-1), 8, issued=True)
                    free = f - 1; landed = f + 2
                drain(t)
                if f == 21:
                    for tt in ([t] if t < T - 1 else range(t, 7)):
                        p.lds(f"ds_read_b64 v[{RAW2+2*tt}:{RAW2+2*tt+1}], v{V_G8} offset:{1664 + 32*tt}", "w2")
                if cfg.w2early and f in (23, 24):
                    if f == 23 and t == 0: p.wait(lg="w2")
                    for _ in range(3):
                        if w2ops: p(w2ops.pop(0))
            assert not todo
            if f >= cfg.sw:
                if f <= 22:
                    assert nxt > f + 3
                    p.wait(vm=tuple(f"F{k}" for k in range(f + 4)))
                    arrive(4*f)
            elif f <= cfg.lb and (f + 1) % cfg.barp == 0 and (f < cfg.b2 or f % 2):
                last = min(f + 1 + cfg.barp + (f + 1 == cfg.sw or f + 1 >= cfg.b2), 25) if f < cfg.lb else 25
                assert nxt > last
                p.wait(vm=tuple(f"F{k}" for k in range(last + 1)))
                if not cfg.nobar: p("s_barrier")
                free = f; landed = last
            if f == cfg.lb and cfg.tailprio is not None and T == cfg.tailprio: p("s_setprio 1")
            if f % 4 == 0 and (not cfg.dbench or f in (8, 20)): stamp(14 + f//4)
        assert nxt == 26 and not (cfg.w2early and w2ops)
    dnn_main(7)
    p("s_branch L_gelu")
    p(".p2align 6")
    p.label("L_dnn6")
    dnn_main(6)
    p.label("L_gelu")
    if cfg.dbench:
        p("s_barrier")
        p(f"s_mul_i32 s{S_SB}, s{S_CP}, 416")
        p("s_add_u32 s3, s3, 1")
        p("s_cmp_lt_u32 s3, 2")
        p("s_cbranch_scc1 L_again")
    stamp(3)
    p(f"s_load_dword s{S_X}, s[{S_DBG}:{S_DBG+1}], 128")
    if not cfg.w2early:
        p.wait0(vm=True)
        for x in w2_unpack(): p(x)
    k0 = -2.0*math.sqrt(2.0/math.pi)*math.log2(math.e)
    T1, T2, SUM, VC = 56, 64, 92, 72
    P = lambda a: f"v[{a}:{a+1}]"
    for r, c in enumerate((k0*0.044715, k0)):
        for h in range(2): p(f"v_mov_b32 v{VC+2*r+h}, {f2h(c)}")
    for r in range(4): p(f"v_mov_b32 v{SUM+r}, 0")
    for t in range(7):
        if t == 6:
            p(f"s_cmp_ge_u32 s{S_WAVE}, 4")
            p("s_cbranch_scc1 L_gelu6")
        x = ACC(t, 0)
        if cfg.pk:
            for r in range(0, 8, 2): p(f"v_pk_mul_f32 {P(T1+r)}, {P(x+r)}, {P(x+r)}")
            for r in range(0, 8, 2): p(f"v_pk_fma_f32 {P(T1+r)}, {P(T1+r)}, {P(VC)}, {P(VC+2)}")
            for r in range(0, 8, 2): p(f"v_pk_mul_f32 {P(T1+r)}, {P(T1+r)}, {P(x+r)}")
            for r in range(8): p(f"v_exp_f32 v{T1+r}, v{T1+r}")
            for r in range(0, 8, 2): p(f"v_pk_mul_f32 {P(T2+r)}, {P(x+r)}, {P(W2R(t, r & 3))}")
            for r in range(0, 8, 2): p(f"v_pk_add_f32 {P(T1+r)}, {P(T1+r)}, 1.0 op_sel_hi:[1,0]")
            for r in range(8): p(f"v_rcp_f32 v{T1+r}, v{T1+r}")
            for r in (0, 4, 2, 6): p(f"v_pk_fma_f32 {P(SUM+2*(r >> 2))}, {P(T1+r)}, {P(T2+r)}, {P(SUM+2*(r >> 2))}")
        else:
            for r in range(8): p(f"v_mul_f32 v{T1+r}, v{x+r}, v{x+r}")
            for r in range(8): p(f"v_fma_f32 v{T1+r}, v{T1+r}, v{VC}, v{VC+2}")
            for r in range(8): p(f"v_mul_f32 v{T1+r}, v{T1+r}, v{x+r}")
            for r in range(8): p(f"v_exp_f32 v{T1+r}, v{T1+r}")
            for r in range(8): p(f"v_mul_f32 v{T2+r}, v{x+r}, v{W2R(t, r & 3)}")
            for r in range(8): p(f"v_add_f32 v{T1+r}, 1.0, v{T1+r}")
            for r in range(8): p(f"v_rcp_f32 v{T1+r}, v{T1+r}")
            for r in range(8): p(f"v_fmac_f32 v{SUM+2*(r >> 2)+(r & 1)}, v{T1+r}, v{T2+r}")
    p.label("L_gelu6")
    p(f"v_add_f32 v{SUM}, v{SUM}, v{SUM+1}")
    p(f"v_add_f32 v{SUM+2}, v{SUM+2}, v{SUM+3}")
    p(f"v_and_b32 v84, 15, v{V_LANE}")
    p(f"v_lshrrev_b32 v85, 5, v{V_LANE}")
    p(f"v_permlane32_swap_b32 v{SUM}, v{SUM+2}")
    p("v_lshl_add_u32 v84, v85, 4, v84")
    p(f"v_add_f32 v{SUM}, v{SUM}, v{SUM+2}")
    p(f"v_bfe_u32 v85, v{V_LANE}, 4, 1")
    p(f"v_mov_b32 v{SUM+1}, v{SUM}")
    p("v_lshlrev_b32 v84, 2, v84")
    p("v_lshl_add_u32 v84, v85, 30, v84")
    p(f"v_permlane16_swap_b32 v{SUM}, v{SUM+1}")
    p(f"s_lshl2_add_u32 s{S_T}, s{S_RG}, s{S_CP}")
    p(f"v_add_f32 v{SUM}, v{SUM}, v{SUM+1}")
    p(f"s_lshl3_add_u32 s{S_T}, s{S_T}, s{S_WAVE}")
    p(f"s_lshl_b32 s{S_T}, s{S_T}, 7")
    p(f"v_min_u32 v{SUM}, -2, v{SUM}")
    p("s_waitcnt lgkmcnt(0)")
    if cfg.noprep or cfg.dbench: p("s_branch L_pub")
    p(f"s_cmp_lg_u32 s{S_X}, 0")
    p("s_cbranch_scc1 L_pub")
    p("v_mov_b32 v85, 0")
    p.label("L_dflag")
    p(f"global_load_dword v86, v85, s[{S_DBG}:{S_DBG+1}] offset:128 sc1")
    p("s_waitcnt vmcnt(0)")
    p(f"v_readfirstlane_b32 s{S_X}, v86")
    p(f"s_cmp_lg_u32 s{S_X}, 0")
    p("s_cbranch_scc1 L_pub")
    p("s_sleep 4")
    p(f"s_sub_u32 s{S_SPIN}, s{S_SPIN}, 1")
    p("s_cbranch_scc0 L_dflag")
    p("s_endpgm")
    p.label("L_pub")
    p(f"buffer_store_dword v{SUM}, v84, s[{S_WS}:{S_WS+3}], s{S_T} offen sc1")
    stamp(4)
    if cfg.probe:
        p("s_cmp_lg_u32 s2, 0")
        p("s_cbranch_scc1 L_pr2")
        p(f"v_lshlrev_b32 v1, 2, v{V_LANE}")
        p(f"global_load_dword v2, v1, s[{S_DBG}:{S_DBG+1}] offset:8 sc1")
        p("s_waitcnt vmcnt(0)")
        for i in range(8): p(f"v_readlane_b32 s{80+i}, v2, {i}")
        p("s_mov_b32 s90, s80"); p("s_mov_b32 s91, s80")
        for i in range(1, 8):
            p(f"s_min_u32 s90, s90, s{80+i}"); p(f"s_max_u32 s91, s91, s{80+i}")
        if cfg.probe == 1: p("s_sub_u32 s90, s91, s90")
        else: p(f"s_sub_u32 s90, s{80+cfg.probe-2}, s90")
        p("s_mul_i32 s90, s90, 20")
        p("s_min_u32 s90, s90, 20000")
        p("s_memrealtime s[92:93]"); p("s_waitcnt lgkmcnt(0)")
        p("s_add_u32 s92, s92, s90")
        p.label("L_pr")
        p("s_memrealtime s[94:95]"); p("s_waitcnt lgkmcnt(0)")
        p("s_cmp_lt_u32 s94, s92")
        p("s_cbranch_scc1 L_pr")
        p.label("L_pr2")
    stamps_out()
    p("s_endpgm")

    p(".p2align 6")
    p(".type gather_table,@object")
    p.label("gather_table")
    zt = P_Z - PS
    for role in range(2):
        for lane in range(64):
            s, half = lane >> 1, lane & 1
            ad = []
            for e in range(8):
                pr = slot_pair(s, half, e) if s < (24 if role == 0 else 22) else None
                at = (lambda j, k: P_D1 - PS + k*144 + j*4) if role == 0 else (lambda j, k: P_W1 - PS + (j*26 + k)*2)
                if pr is None: ad += [zt, zt]
                elif pr[1] is None: ad += [at(pr[0], 26), zt]
                elif pr[0] == pr[1] or norm(pr) == (24, 25): ad += [at(*pr), zt]
                else: ad += [at(pr[0], pr[1]), at(pr[1], pr[0])]
            p(".short " + ", ".join(str(a) for a in ad))
    p(".size gather_table, 4096")
    return p

def header():
    return """; xDeepFM (CIN + DNN) forward, one launch, 256 workgroups (S1).
; Kernarg: idx, table, ws_cin, w_cin_out, w_dnn1, b_dnn1, w_dnn2, b_out, out, debug, ws
; @launch grid=(256,1,1) block=(512,1,1) lds=%d
.amdgcn_target "amdgcn-amd-amdhsa--gfx950"
.text
""" % LDS_SIZE
def footer():
    nv = 256
    return f""".section .rodata,"a"
.p2align 6
.amdhsa_kernel {NAME}
  .amdhsa_next_free_vgpr {nv}
  .amdhsa_next_free_sgpr 102
  .amdhsa_accum_offset {nv}
  .amdhsa_group_segment_fixed_size 0
  .amdhsa_kernarg_size 88
  .amdhsa_user_sgpr_count 2
  .amdhsa_user_sgpr_kernarg_segment_ptr 1
  .amdhsa_system_sgpr_workgroup_id_x 1
  .amdhsa_float_denorm_mode_32 3
.end_amdhsa_kernel
"""
if __name__ == "__main__":
    out = sys.argv[1]
    for a in sys.argv[2:]:
        k, v = a.split("=")
        setattr(cfg, k, type(getattr(cfg, k))(int(v)))
    open(out, "w").write(header() + build().text() + footer())
```

```python
import sys, struct, math
from asmlib import *
from slots import *

NAME = "standalone__deep_cross_xdeepfm__recsys_kernel"
class Cfg:
    stamps = 0
    NRES = 31
    R = 3
    prio_prep = 3
    prio_hi = 0
    poll_sleep = 2
    idle_sleep = 1
    gon = 5
    bal = 0
    lt0 = 2
    lt1 = 5
    early = 4
    look = 3
    cmask = 0
    catch0 = 4
    catch = 4
    etouch = 0
    dtouch = 1
    xwin = 3
    pfcode = 1
    flip = 2
    w2early = 1
    dpos = 4
    ltouch = 0
    pk = 1
    ctouch = 1
    wrot = 1
    direct = 1
    pst = -1
    pcyc = 0
    plat = 0
    pwg = 0
    pwave = 0
    probe = 0
    dbench = 0
    nodma = 0
    nobar = 0
    lb = 21
    tailprio = 0
    b2 = 26
    sw = 26
    chk = 3
    barp = 1
    arp = 1
    noprep = 0
    clrpos = 1
    xstart = 0
    xbar = 3
    pdelay = 1
    hold = 0
cfg = Cfg()

LDS_SIZE = 163840
XO = 0
WO = 8*7168
PS = WO + 96*528
P_W3 = PS; P_M3T = PS + 36864; P_D1 = PS + 38912; P_W1 = PS + 43520; P_Z = PS + 45568; P_DUM = PS + 45824
CO = LDS_SIZE - 512
IX2 = PS + 46080
assert P_DUM + 256 <= CO
C_PA, C_PB, C_XL, C_FLAG, C_GO, C_CL, C_PI = 0, 4, 8, 12, 16, 20, 24
RB = 7
BSZ = 13312
SLOT = BSZ + 8192
IDXO = RB*SLOT
assert IDXO + 8*1664 == LDS_SIZE
MBOX = 0; WS_W = 131072; BLK = 1664; WS_END = WS_W + 26*BLK; WS_STAMP = 1 << 20
S_IDX, S_TAB, S_W1, S_WCIN, S_WCO, S_B1, S_W2, S_WS = 4, 8, 12, 16, 20, 24, 28, 32
S_OUT, S_DBG, S_BOUT = 36, 38, 40
S_WAVE, S_RG, S_CP, S_FB, S_COL, S_W = 42, 43, 44, 45, 46, 47
S_PC, S_SPIN, S_X = 48, 50, 51
KA = 52
S_T = 52
S_ST = 70
V_C, V_ONE, V_POLL, V_L = 162, 163, 164, 165
FRM = "0x20000"

def f2h(x): return "0x%08x" % struct.unpack("<I", struct.pack("<f", x))[0]

def build():
    p = Prog()
    lab = [0]
    def L(n):
        lab[0] += 1
        return f"L_{n}_{lab[0]}"
    def stamp(i):
        if cfg.pst == i:
            p("s_memtime s[92:93]" if cfg.pcyc else "s_memrealtime s[92:93]")
            p.wait0(lg=True)
        if cfg.stamps and (cfg.stamps != 3 or i == 8):
            p(f"s_memrealtime s[68:69]" if cfg.stamps != 2 or i == 8 else "s_memtime s[68:69]")
            p.wait0(lg=True)
            if cfg.stamps != 2 or i == 8: p(f"s_mov_b32 s{S_ST+i}, s68")
            else:
                p("s_sub_u32 s68, s68, s100")
                p("s_lshr_b32 s68, s68, 4")
                p(f"s_add_u32 s{S_ST+i}, s68, s{S_ST}")
    def stamps_out():
        if cfg.pst >= 0:
            stamp(8)
            sk = L("npr"); lp = L("pr")
            p(f"s_cmp_lg_u32 s2, {cfg.pwg}")
            p(f"s_cbranch_scc1 {sk}")
            p(f"s_cmp_lg_u32 s{S_WAVE}, {cfg.pwave}")
            p(f"s_cbranch_scc1 {sk}")
            if cfg.pst == 0: p("s_mov_b32 s92, s96")
            if cfg.pcyc:
                p("s_sub_u32 s90, s92, s98")
                p("s_lshr_b32 s90, s90, 3")
            else:
                p("s_sub_u32 s90, s92, s96")
                p("s_mul_i32 s90, s90, 4")
            p("s_add_u32 s90, s90, 2000")
            p("s_min_u32 s90, s90, 20000")
            p("s_add_u32 s90, s90, s96")
            p.label(lp)
            p("s_sleep 1")
            p("s_memrealtime s[94:95]"); p("s_waitcnt lgkmcnt(0)")
            p("s_cmp_lt_u32 s94, s90")
            p(f"s_cbranch_scc1 {lp}")
            p.label(sk)
        if not cfg.stamps: return
        stamp(8)
        p("s_mov_b64 exec, 1")
        p(f"s_lshl4_add_u32 s{S_T}, s2, s{S_WAVE}")
        p(f"s_lshl_b32 s{S_T}, s{S_T}, 7")
        p(f"s_add_u32 s{S_T}, s{S_T}, {WS_STAMP}")
        p(f"v_mov_b32 v1, s{S_T}")
        p("s_memtime s[68:69]")
        p("s_waitcnt lgkmcnt(0)")
        p(f"s_sub_u32 s{S_ST+29}, s68, s100")
        for i in range(30):
            p(f"v_mov_b32 v2, s{S_ST+i}")
            p(f"global_store_dword v1, v2, s[{S_WS}:{S_WS+1}] offset:{4*i}")
    def arrive(*offs):
        p("s_mov_b64 exec, 1")
        for off in offs: p.lds(f"ds_add_u32 v{V_C}, v{V_ONE} offset:{off}", "arr")
        p("s_mov_b64 exec, -1")
    def poll_issue(off):
        p.lds(f"ds_read_b32 v{V_POLL}, v{V_C} offset:{off}", "poll")
    def check(off, target, issued=False, sleep=0):
        ok = L("ok"); sp = L("spin")
        if issued:
            p.wait(lg="poll")
            p(f"v_readfirstlane_b32 s{S_X}, v{V_POLL}")
            p(f"s_cmp_ge_u32 s{S_X}, {target}")
            p(f"s_cbranch_scc1 {ok}")
        p.label(sp)
        if sleep: p(f"s_sleep {sleep}")
        p(f"ds_read_b32 v{V_POLL}, v{V_C} offset:{off}")
        p("s_waitcnt lgkmcnt(0)")
        p(f"v_readfirstlane_b32 s{S_X}, v{V_POLL}")
        p(f"s_sub_u32 s{S_SPIN}, s{S_SPIN}, 1")
        p("s_cbranch_scc1 L_end")
        p(f"s_cmp_ge_u32 s{S_X}, {target}")
        p(f"s_cbranch_scc0 {sp}")
        if not issued: p.lg.clear()
        p.label(ok)
    def srd(s, ka, n):
        if ka is not None: p(f"s_mov_b64 s[{s}:{s+1}], s[{KA+ka}:{KA+ka+1}]")
        p(f"s_mov_b32 s{s+2}, {n}")
        p(f"s_mov_b32 s{s+3}, {FRM}")
    def touch(vaddr, soff, mask):
        p(f"s_mov_b64 exec, {mask}" if mask < (1 << 31) else f"s_mov_b32 exec_hi, {hex(mask >> 32)}")
        p(f"buffer_load_dword v250, v{vaddr}, s[{S_W1}:{S_W1+3}], s{soff} offen")
        p("s_mov_b64 exec, -1")

    def producer_index():
        p(f"s_lshr_b32 s{S_FB}, s2, 6")
        p(f"s_sub_u32 s{S_FB}, s{S_RG}, s{S_FB}")
        p(f"s_sub_u32 s{S_FB}, s{S_FB}, 1")
        p(f"s_and_b32 s{S_X}, s2, 0x37")
        p(f"s_sub_u32 s{S_X}, s{S_X}, 1")
        p(f"s_cmp_lt_u32 s{S_X}, 7")
        p(f"s_cselect_b32 s{S_FB}, s{S_FB}, 99")

    def last_marker(skip):
        p("v_lshlrev_b32 v2, 6, v0")
        p("s_waitcnt vmcnt(0)")
        stamp(12)
        p(f"v_readfirstlane_b32 s{S_X}, v27")
        p("s_mov_b64 exec, 3")
        p(f"s_cmp_lg_u32 s{S_X}, {26 + 32 - 1}")
        p(f"s_cbranch_scc1 {skip}")
        p(f"global_store_dword v2, v{V_ONE}, s[{S_DBG}:{S_DBG+1}] offset:128 sc1")

    p(f".globl {NAME}\n.p2align 8\n.type {NAME},@function")
    p.label(NAME)
    p(f"s_load_dwordx16 s[{KA}:{KA+15}], s[0:1], 0")
    p(f"s_load_dwordx4 s[{S_OUT}:{S_OUT+3}], s[0:1], 64")
    p(f"s_load_dwordx2 s[{S_WS}:{S_WS+1}], s[0:1], 80")
    if cfg.probe or cfg.pst >= 0: p("s_memrealtime s[96:97]")
    if cfg.pcyc: p("s_memtime s[98:99]")
    if cfg.stamps:
        p(f"s_memrealtime s[{S_ST}:{S_ST+1}]")
        p(f"s_memtime s[100:101]")
    p("v_lshrrev_b32 v1, 6, v0")
    p("v_and_b32 v0, 63, v0")
    p(f"v_readfirstlane_b32 s{S_WAVE}, v1")
    p("s_cmp_ge_u32 s2, 0x100")
    p("s_cbranch_scc1 L_end")
    p(f"s_and_b32 s3, s2, 7")
    p(f"s_lshr_b32 s{S_RG}, s2, 6")
    p(f"s_lshl3_add_u32 s{S_RG}, s{S_RG}, s3")
    p(f"s_bfe_u32 s{S_CP}, s2, 0x20004")
    p(f"v_lshlrev_b32 v{V_L}, 4, v0")
    p(f"v_lshlrev_b32 v160, 7, v0")
    srd(S_IDX, None, 4096*104)
    srd(S_W1, None, 832*1664)
    p("s_bitcmp1_b32 s2, 3")
    p("s_cbranch_scc1 L_cin")
    p(f"s_lshl3_add_u32 s3, s{S_RG}, s{S_WAVE}")
    p(f"s_mul_i32 s3, s3, 1664")
    p(f"s_mul_i32 s{S_W}, s{S_WAVE}, 1664")
    p(f"s_add_u32 m0, s{S_W}, {IDXO}")
    p(f"s_lshr_b32 s{S_X}, s2, 4")
    p(f"s_lshl3_add_u32 s{S_X}, s{S_X}, s{S_WAVE}")
    p(f"s_mul_i32 s{S_X}, s{S_X}, 2560")
    p.wait0(lg=True)
    p(f"s_mov_b64 s[{S_IDX}:{S_IDX+1}], s[{KA}:{KA+1}]")
    p(f"s_mov_b64 s[{S_W1}:{S_W1+1}], s[{KA+8}:{KA+9}]")
    for n in range(2):
        if n: p("s_mov_b32 exec_hi, 0xff")
        p.vmem(f"buffer_load_dwordx4 v{V_L}, s[{S_IDX}:{S_IDX+3}], s3 offen offset:{1024*n} lds", "idx")
    if not cfg.dtouch: p("s_mov_b32 exec_hi, -1")
    if cfg.dtouch:
        touch(160, S_X, 0xfffff); p.vm.issue("t")
    p("s_branch L_dnn")
    dnn_vm = list(p.vm.q)

    p.vm.clear(); p.lg.clear()
    p.label("L_cin")
    if cfg.dbench: p("s_endpgm")
    S_C = S_WAVE
    W3A, TBL, VV, AQ, VF, GA, MB, VT, CRAW = 28, 32, 40, 56, 72, 80, 96, 170, 152
    srd(S_WCO, None, 156)
    srd(S_WS, None, WS_END)
    p(f"s_mov_b32 s{S_SPIN}, 0x40000")
    p(f"v_lshlrev_b32 v{V_C}, 2, v0")
    p(f"v_add_u32 v{V_C}, {CO}, v{V_C}")
    p(f"v_mov_b32 v{V_ONE}, 1")
    p(f"s_cmp_ge_u32 s{S_WAVE}, 4")
    p("s_cbranch_scc1 L_xwave")
    srd(S_WCIN, None, 105456)
    producer_index()
    if cfg.noprep: p(f"s_mov_b32 s{S_FB}, 99")
    p(f"s_getpc_b64 s[{S_PC}:{S_PC+1}]")
    p.label("L_pc")
    p.wait0(lg=True)
    p(f"s_mov_b64 s[{S_WCIN}:{S_WCIN+1}], s[{KA+4}:{KA+5}]")
    p(f"s_mov_b64 s[{S_W1}:{S_W1+1}], s[{KA+8}:{KA+9}]")
    p(f"s_mov_b64 s[{S_WCO}:{S_WCO+1}], s[{KA+6}:{KA+7}]")
    p(f"s_mov_b64 s[{S_BOUT}:{S_BOUT+1}], s[{KA+14}:{KA+15}]")
    def cinit_loads():
        p(f"v_lshrrev_b32 v8, 5, v0")
        p(f"v_lshlrev_b32 v9, 3, v8")
        p(f"v_lshlrev_b32 v8, 1, v8")
        for a in range(3):
            p(f"buffer_load_dwordx2 v[{CRAW+2*a}:{CRAW+2*a+1}], v9, s[{S_WCO}:{S_WCO+3}], 0 offen offset:{16*a}")
        p(f"buffer_load_ushort v{CRAW+6}, v8, s[{S_WCO}:{S_WCO+3}], 0 offen offset:48")
        p(f"v_mov_b32 v8, 0")
        p(f"global_load_ushort v{CRAW+7}, v8, s[{S_BOUT}:{S_BOUT+1}]")
    p(f"s_and_b32 s{S_T}, s2, 0x37")
    p(f"s_cmp_eq_u32 s{S_T}, 0x21")
    p(f"s_cselect_b32 s{S_T+1}, 1, 0")
    p(f"s_cselect_b32 s{S_T}, 0x11, s{S_T}")
    p(f"s_sub_u32 s{S_T}, s{S_T}, 0x11")
    p(f"s_cmp_lt_u32 s{S_T}, 7")
    p(f"s_cselect_b32 s{S_T+3}, s{S_C}, 1")
    p(f"s_add_u32 s{S_T+3}, s{S_T+3}, 4")
    p(f"s_cmp_lg_u32 s{S_T+3}, 4")
    p("s_cbranch_scc1 L_nomc")
    for r in range(4): p(f"v_mov_b32 v{4+r}, -1")
    p(f"s_sub_u32 s{S_T}, s{S_RG}, s{S_T+1}")
    p(f"s_lshl_b32 s{S_T}, s{S_T}, 12")
    for u in range(4):
        p(f"buffer_store_dwordx4 v[4:7], v{V_L}, s[{S_WS}:{S_WS+3}], s{S_T} offen offset:{1024*u} sc1")
    p.label("L_nomc")
    p(f"s_cmp_ge_u32 s{S_FB}, 26")
    p("s_cbranch_scc1 L_cbar")
    if cfg.prio_prep: p(f"s_setprio {cfg.prio_prep}")
    p(f"s_mul_i32 s{S_T+2}, s{S_FB}, {BLK}")
    p(f"s_add_u32 s{S_T+2}, s{S_T+2}, {WS_W}")
    p(f"s_mul_i32 s{S_T}, s{S_C}, 9216")
    p(f"s_add_u32 s{S_T+1}, s{S_T}, 70304")
    p(f"s_add_u32 s{S_T}, s{S_T}, {P_W3}")
    for u in range(9):
        if u % 4 == 0:
            if u: p(f"s_add_u32 s{S_T+1}, s{S_T+1}, 0x1000")
            p(f"s_add_u32 m0, s{S_T}, {1024*u}")
            p("s_nop 0")
        p(f"buffer_load_dwordx4 v{V_L}, s[{S_WCIN}:{S_WCIN+3}], s{S_T+1} offen offset:{1024*(u % 4)} lds")
    p("v_and_b32 v2, 0x30, v0")
    p("v_bfe_u32 v1, v0, 2, 2")
    for q in range(4):
        p(f"v_xor_b32 v3, {q}, v1")
        p("v_lshl_add_u32 v3, v3, 28, v2")
        p(f"buffer_load_dwordx4 v[{AQ+4*q}:{AQ+4*q+3}], v3, s[{S_WCO}:{S_WCO+3}], 0 offen offset:104")
    p(f"s_cmp_ge_u32 s{S_C}, 2")
    p("s_cbranch_scc1 L_p23")
    p(f"s_lshl_b32 s{S_T}, s{S_C}, 11")
    p(f"s_add_u32 s{S_T}, s{S_T}, gather_table-L_pc")
    p(f"v_lshl_add_u32 v1, v0, 5, s{S_T}")
    p(f"global_load_dwordx4 v[{TBL}:{TBL+3}], v1, s[{S_PC}:{S_PC+1}]")
    p(f"global_load_dwordx4 v[{TBL+4}:{TBL+7}], v1, s[{S_PC}:{S_PC+1}] offset:16")
    p(f"s_cmp_lg_u32 s{S_C}, 0")
    p("s_cbranch_scc1 L_p1")
    p("v_lshrrev_b32 v3, 5, v0")
    p("v_mul_u32_u24 v3, 0x2a40, v3")
    p("v_and_b32 v2, 31, v0")
    p("v_lshl_add_u32 v3, v2, 1, v3")
    p(f"s_mul_i32 s{S_T}, s{S_FB}, 52")
    p(f"s_add_u32 s{S_T}, s{S_T}, 35152")
    for u in range(16):
        if u and u % 4 == 0:
            p(f"s_add_u32 s{S_T}, s{S_T}, {(4 if u != 8 else 12)*1352}")
        p(f"buffer_load_ushort v{VV+u}, v3, s[{S_WCIN}:{S_WCIN+3}], s{S_T} offen offset:{1352*(u % 4)}")
    p("s_branch L_pz")
    p.label("L_p1")
    p(f"s_mul_i32 s{S_T}, s{S_FB}, 1352")
    p(f"s_mov_b32 m0, {P_W1}")
    p("s_nop 0")
    for u in range(2):
        p(f"buffer_load_dwordx4 v{V_L}, s[{S_WCIN}:{S_WCIN+3}], s{S_T} offen offset:{1024*u} lds")
    p("s_branch L_pz")
    p.label("L_p23")
    p(f"s_cmp_lg_u32 s{S_C}, 3")
    p("s_cbranch_scc1 L_pz")
    p("v_lshlrev_b32 v1, 2, v0")
    p(f"buffer_load_dword v27, v1, s[{S_WCO}:{S_WCO+3}], 0 offen offset:52")
    p.label("L_pz")
    p("v_mov_b32 v2, 0")
    p("v_mov_b32 v3, 0")
    p(f"s_lshl_b32 s{S_T}, s{S_C}, 9")
    p(f"s_add_u32 s{S_T}, s{S_T}, {P_M3T}")
    p(f"v_lshl_add_u32 v1, v0, 3, s{S_T}")
    p("ds_write_b64 v1, v[2:3]")
    p(f"v_add_u32 v1, {P_Z - CO}, v{V_C}")
    p("ds_write_b32 v1, v2")
    p.label("L_cbar")
    if cfg.pfcode:
        sk = L("nopf")
        p(f"s_cmp_lg_u32 s{S_C}, 2")
        p(f"s_cbranch_scc1 {sk}")
        p(f"s_lshr_b32 s{S_T}, s2, 4")
        p(f"s_mul_i32 s{S_T}, s{S_T}, 2560")
        p(f"v_add_u32 v2, s{S_T}, v160")
        p(f"v_min_u32 v2, gather_table-L_pc+4092, v2")
        p("s_mov_b64 exec, 0xfffff")
        p(f"global_load_dword v161, v2, s[{S_PC}:{S_PC+1}]")
        p("s_mov_b64 exec, -1")
        p.label(sk)
    p("v_mov_b32 v2, 0")
    p(f"ds_write_b32 v{V_C}, v2")
    p.wait0(lg=True)
    p("s_barrier")
    stamp(1)
    p(f"s_cmp_lt_u32 s{S_FB}, 26")
    p("s_cbranch_scc1 L_prep")
    cinit_loads()
    p("s_waitcnt vmcnt(0)")
    stamp(13)
    p(f"s_cmp_lg_u32 s{S_T+3}, 4")
    p("s_cbranch_scc1 L_setup")
    p("v_mov_b32 v4, 0")
    p("s_mov_b64 exec, 1")
    p(f"global_atomic_add v27, v4, v{V_ONE}, s[{S_DBG}:{S_DBG+1}] sc0 sc1")
    p("s_mov_b64 exec, -1")
    last_marker("L_mx")
    p.label("L_mx")
    p("s_mov_b64 exec, -1")
    p("s_branch L_setup")
    p.label("L_prep")
    p("v_bfe_u32 v1, v0, 2, 2")
    p("v_lshrrev_b32 v4, 4, v0")
    p("v_lshl_add_u32 v4, v4, 3, v1")
    p("v_add_u32 v5, 4, v4")
    p("v_min_u32 v4, 25, v4")
    p("v_min_u32 v5, 25, v5")
    p("v_and_b32 v6, 3, v0")
    p(f"s_mul_i32 s{S_T}, s{S_C}, 384")
    p(f"s_add_u32 s{S_T}, s{S_T}, {P_W3}")
    p(f"v_lshl_add_u32 v6, v6, 3, s{S_T}")
    p(f"s_movk_i32 s{S_T+1}, 1352")
    p(f"v_mad_u32_u24 v2, v4, s{S_T+1}, v6")
    p(f"v_mad_u32_u24 v3, v5, s{S_T+1}, v6")
    p(f"s_mul_i32 s{S_T}, s{S_C}, 192")
    p(f"s_movk_i32 s{S_T+1}, -1662")
    p(f"v_mov_b32 v7, {P_DUM}")
    for u in range(3):
        p(f"v_add_u32 v4, s{S_T}, v0")
        if u < 2: p(f"s_add_u32 s{S_T}, s{S_T}, 64")
        p("v_mul_u32_u24 v5, 2521, v4")
        p("v_lshrrev_b32 v5, 16, v5")
        p("v_cmp_gt_u32 vcc, 0x2a4, v4")
        p("v_lshlrev_b32 v4, 6, v4")
        p(f"v_mad_i32_i24 v4, v5, s{S_T+1}, v4")
        p(f"v_add_u32 v4, {P_M3T}, v4")
        p(f"v_cndmask_b32 v{8+u}, v7, v4, vcc")
    p("v_and_b32 v5, 31, v0")
    p("v_lshrrev_b32 v4, 5, v0")
    p("v_lshlrev_b32 v6, 6, v5")
    p("v_lshl_add_u32 v6, v4, 4, v6")
    p(f"v_add_u32 v28, {P_M3T}, v6")
    p("v_mul_u32_u24 v5, 0x90, v5")
    p("v_lshl_add_u32 v5, v4, 4, v5")
    p(f"v_add_u32 v29, {P_D1}, v5")
    p("v_lshrrev_b32 v1, 1, v0")
    p("v_lshl_add_u32 v4, v1, 1, 1")
    p("v_add_u32 v5, 22, v1")
    p("v_min_u32 v4, v5, v4")
    p("v_lshlrev_b32 v5, 1, v1")
    p(f"s_cmp_eq_u32 s{S_C}, 0")
    p("s_cselect_b64 vcc, -1, 0")
    p("v_and_b32 v6, 1, v0")
    p(f"v_mov_b32 v11, {PS}")
    p("v_cndmask_b32 v4, v5, v4, vcc")
    p("v_lshl_add_u32 v4, v4, 1, v6")
    p("v_lshlrev_b32 v30, 4, v4")
    p(f"v_add_u32 v4, {P_M3T + 26*64 - CO}, v{V_C}")
    p(f"s_cmp_lg_u32 s{S_C}, 3")
    p.wait0(vm=True)
    p("s_cbranch_scc1 L_w1")
    p("s_mov_b64 exec, 0x1fff")
    p("ds_write_b32 v4, v27")
    p("s_mov_b64 exec, -1")
    p.label("L_w1")
    stamp(10)
    p("s_barrier")
    extra = []
    for u in range(8):
        extra.append(f"v_add_u32_sdwa v{GA+2*u}, v11, v{TBL+u} dst_sel:DWORD dst_unused:UNUSED_PAD src0_sel:DWORD src1_sel:WORD_0")
        extra.append(f"v_add_u32_sdwa v{GA+2*u+1}, v11, v{TBL+u} dst_sel:DWORD dst_unused:UNUSED_PAD src0_sel:DWORD src1_sel:WORD_1")
    for u in range(8): extra.append(f"v_lshl_or_b32 v{VF+u}, v{VV+2*u+1}, 16, v{VV+2*u}")
    def m3_mfma(U):
        u, q = divmod(U, 4)
        p.wait(lg=f"m{U}")
        cc = "0" if q == 0 else f"v[{12+4*u}:{15+4*u}]"
        p(f"v_mfma_f32_16x16x32_bf16 v[{12+4*u}:{15+4*u}], v[{AQ+4*q}:{AQ+4*q+3}], v[{MB+4*U}:{MB+4*U+3}], {cc}")
    for T in range(12):
        p.lds(f"ds_read_b64_tr_b16 v[{MB+4*T}:{MB+4*T+1}], v2 offset:{32*T}", f"m{T}")
        p.lds(f"ds_read_b64_tr_b16 v[{MB+4*T+2}:{MB+4*T+3}], v3 offset:{32*T}", f"m{T}")
        if T == 5:
            for _ in range(8): p(extra.pop(0))
        if T >= 6: m3_mfma(T - 6)
    for U in range(6, 12):
        m3_mfma(U)
        if U == 8:
            p("v_cvt_pk_bf16_f32 v24, v12, v12")
            p("ds_write_b16 v8, v24")
        else:
            for _ in range(2): p(extra.pop(0))
    p("v_cvt_pk_bf16_f32 v25, v16, v16")
    p("ds_write_b16 v9, v25")
    while extra: p(extra.pop(0))
    p(f"v_cvt_pk_bf16_f32 v26, v20, v20")
    p(f"ds_write_b16 v10, v26")
    p.wait0(lg=True)
    p("s_barrier")
    stamp(11)
    p(f"s_cmp_eq_u32 s{S_C}, 0")
    p("s_cbranch_scc1 L_pT")
    p(f"s_cmp_lg_u32 s{S_C}, 1")
    p("s_cbranch_scc1 L_pdone")
    for u in range(16): p(f"v_mov_b32 v{MB+16+u}, 0")
    for u in range(16): p(f"ds_read_u16_d16_hi v{MB+16+u}, v{GA+u}")
    p("s_mov_b32 exec_hi, 0xfff")
    p("s_branch L_pst")
    p.label("L_pT")
    p("ds_read_b128 v[12:15], v28")
    p("ds_read_b128 v[16:19], v28 offset:32")
    p("s_waitcnt lgkmcnt(1)")
    p(f"v_mfma_f32_32x32x16_bf16 v[{MB}:{MB+15}], v[{VF}:{VF+3}], v[12:15], 0")
    p("s_waitcnt lgkmcnt(0)")
    p(f"v_mfma_f32_32x32x16_bf16 v[{MB}:{MB+15}], v[{VF+4}:{VF+7}], v[16:19], v[{MB}:{MB+15}]")
    p("s_nop 11")
    for a in range(4): p(f"ds_write_b128 v29, v[{MB+4*a}:{MB+4*a+3}] offset:{32*a}")
    for u in range(16): p(f"ds_read_b32 v{MB+16+u}, v{GA+u}")
    p("s_mov_b32 exec_hi, 0xffff")
    p.label("L_pst")
    for e in range(8):
        if e % 2 == 0: p(f"s_waitcnt lgkmcnt({12 - 2*e})")
        p(f"v_add_f32 v{MB+16+2*e}, v{MB+16+2*e}, v{MB+16+2*e+1}")
        if e % 2:
            p(f"v_cvt_pk_bf16_f32 v{4+e//2}, v{MB+14+2*e}, v{MB+16+2*e}")
            p(f"v_min_u32 v{4+e//2}, -2, v{4+e//2}")
    p(f"buffer_store_dwordx4 v[4:7], v30, s[{S_WS}:{S_WS+3}], s{S_T+2} offen sc1")
    p(f"v_mov_b32 v8, s{S_C}")
    p("v_lshlrev_b32 v8, 2, v8")
    p("s_mov_b64 exec, 1")
    p(f"buffer_store_dword v{V_ONE}, v8, s[{S_WS}:{S_WS+3}], s{S_T+2} offen offset:1536 sc1")
    p.label("L_pdx")
    p("s_mov_b64 exec, -1")
    p.label("L_pdone")
    stamp(21)
    cinit_loads()
    p("s_waitcnt vmcnt(0)")
    p("s_branch L_setup")
    p.label("L_xwave")
    S_J, S_XA, S_XB, S_XM, S_TB = S_W, S_T+2, S_T+3, S_T+4, S_T+5
    p(f"s_sub_u32 s{S_J}, s{S_WAVE}, 4")
    p(f"s_lshl3_add_u32 s3, s{S_RG}, s{S_CP}")
    p(f"s_lshr_b32 s{S_FB}, s{S_J}, 1")
    p(f"s_lshl2_add_u32 s3, s{S_FB}, s3")
    p(f"s_mul_i32 s3, s3, 1664")
    p(f"s_and_b32 s{S_X}, s{S_J}, 1")
    p(f"s_mul_i32 s{S_X}, s{S_X}, 832")
    p(f"s_add_u32 s3, s3, s{S_X}")
    p(f"s_mul_i32 s{S_X}, s{S_J}, 832")
    p(f"s_add_u32 m0, s{S_X}, {IX2}")
    p(f"s_lshr_b32 s{S_X}, s2, 6")
    p(f"s_mul_i32 s{S_X}, s{S_X}, 3")
    p(f"s_add_u32 s{S_X}, s{S_X}, s{S_CP}")
    p(f"s_lshl2_add_u32 s{S_X}, s{S_X}, s{S_J}")
    p(f"s_mul_i32 s{S_X}, s{S_X}, {52*128}")
    p(f"s_add_u32 s{S_X}, s{S_X}, {(2496 - 4*52)*128}")
    p.wait0(lg=True)
    p(f"s_mov_b64 s[{S_IDX}:{S_IDX+1}], s[{KA}:{KA+1}]")
    p(f"s_mov_b64 s[{S_W1}:{S_W1+1}], s[{KA+8}:{KA+9}]")
    p("s_mov_b32 exec_hi, 0xfffff")
    p(f"buffer_load_dwordx4 v{V_L}, s[{S_IDX}:{S_IDX+3}], s3 offen lds")
    p("s_mov_b32 exec_hi, -1")
    p(f"s_mov_b64 s[{S_WCO}:{S_WCO+1}], s[{KA+6}:{KA+7}]")
    p(f"s_mov_b64 s[{S_BOUT}:{S_BOUT+1}], s[{KA+14}:{KA+15}]")
    srd(S_TAB, 2, 6400000)
    if cfg.etouch:
        p(f"s_cmp_eq_u32 s{S_CP}, 0")
        p("s_cbranch_scc1 L_noet")
        touch(160, S_X, (1 << 52) - 1)
        p("s_waitcnt vmcnt(1)")
        p.label("L_noet")
    p("v_lshrrev_b32 v1, 4, v0")
    p("v_and_b32 v2, 12, v0")
    p(f"s_mul_i32 s3, s{S_J}, 104")
    p(f"s_add_u32 s3, s3, {IX2}")
    p(f"v_add_u32 v2, s3, v2")
    p(f"s_movk_i32 s{S_X}, 416")
    p(f"v_mad_u32_u24 v3, v1, s{S_X}, v2")
    if cfg.bal:
        p(f"s_cmp_eq_u32 s{S_J}, 3")
        p(f"s_cselect_b32 s{S_X}, 104, 312")
        p(f"s_cselect_b32 s3, {13*104}, {20*104}")
        p(f"v_add_u32 v2, s3, v2")
        p(f"v_mad_u32_u24 v4, v1, s{S_X}, v2")
    else: p("v_add_u32 v4, 0x680, v3")
    p("v_and_b32 v1, 3, v0")
    p("v_lshlrev_b32 v5, 4, v1")
    p("v_bfe_u32 v1, v0, 3, 1")
    p("v_lshl_add_u32 v6, v1, 30, v5")
    p(f"s_mul_i32 s{S_XM}, s{S_J}, 7168")
    p(f"s_lshr_b32 s{S_TB}, s2, 4")
    p(f"s_lshl2_add_u32 s{S_TB}, s{S_TB}, s{S_J}")
    p(f"s_mul_i32 s{S_TB}, s{S_TB}, {46*128}")
    p(f"s_add_u32 s{S_TB}, s{S_TB}, {4992*128}")
    assert not cfg.etouch
    producer_index()
    S_PR = S_T + 6
    p(f"s_cmp_eq_u32 s{S_J}, 0")
    p(f"s_cselect_b32 s{S_PR}, s{S_FB}, 99")
    p(f"s_cmp_ge_u32 s{S_PR}, 26")
    p("s_cbranch_scc1 L_noclr")
    for r in range(4): p(f"v_mov_b32 v{12+r}, -1")
    p(f"s_mul_i32 s{S_T}, s{S_FB}, {BLK}")
    p(f"s_add_u32 s{S_T}, s{S_T}, {WS_W}")
    p(f"buffer_store_dwordx4 v[12:15], v{V_L}, s[{S_WS}:{S_WS+3}], s{S_T} offen sc1")
    p("s_mov_b32 exec_hi, 0xff")
    p(f"buffer_store_dwordx4 v[12:15], v{V_L}, s[{S_WS}:{S_WS+3}], s{S_T} offen offset:1024 sc1")
    p("s_mov_b32 exec_hi, -1")
    p("s_waitcnt vmcnt(2)")
    p("s_branch L_clr")
    p.label("L_noclr")
    p("s_waitcnt vmcnt(0)")
    p.label("L_clr")
    p("s_barrier")
    for u in range(2):
        for Q in range(0, 6, 2): p(f"ds_read2_b32 v[{VT+7*u+u+Q}:{VT+7*u+u+Q+1}], v{3+u} offset0:{4*Q} offset1:{4*Q+4}")
        p(f"ds_read_b32 v{VT+8*u+6}, v{3+u} offset:96")
    stamp(1)
    p.vm.clear()
    assert cfg.xwin < 14
    p.wait0(lg=True)
    go_done = False
    for Q in range(7):
        for u in range(2):
            n = 2*Q + u
            if n == cfg.xbar and not cfg.noprep:
                p(f"s_cmp_ge_u32 s{S_FB}, 26")
                p("s_cbranch_scc1 L_nobar")
                p("s_barrier")
                p(f"s_waitcnt vmcnt({n})")
                p(f"s_cmp_ge_u32 s{S_PR}, 26")
                p("s_cbranch_scc1 L_noat")
                p("v_mov_b32 v12, 0")
                p("s_mov_b64 exec, 1")
                p(f"global_atomic_add v27, v12, v{V_ONE}, s[{S_DBG}:{S_DBG+1}] sc0 sc1")
                p("s_mov_b64 exec, -1")
                p.label("L_noat")
                p("s_barrier")
                p(f"s_cmp_ge_u32 s{S_PR}, 26")
                p("s_cbranch_scc1 L_nobar")
                last_marker("L_lm")
                p.label("L_lm")
                p("s_mov_b64 exec, -1")
                p.label("L_nobar")
            if n == cfg.xstart and n: p.wait(vm="x0")
            if n >= cfg.xwin:
                p.wait(vm=f"x{n - cfg.xwin}")
                if n - cfg.xwin == 2*cfg.gon + 1: arrive(C_GO); go_done = True
            p(f"s_add_u32 m0, s{S_XM}, {XO + 4*7168*u + 1024*Q}")
            p(f"v_lshl_add_u32 v{VT+8*u+Q}, v{VT+8*u+Q}, 6, v{6 if Q == 6 else 5}")
            p.vmem(f"buffer_load_dwordx4 v{VT+8*u+Q}, s[{S_TAB}:{S_TAB+3}], 0 offen lds", f"x{n}")
        for u, at in enumerate((cfg.lt0, cfg.lt1)):
            if at == Q and cfg.ltouch:
                touch(160, S_TB, (1 << 46) - 1); p.vm.issue("t")
                p(f"s_add_u32 s{S_TB}, s{S_TB}, {2944*128}")
    def late_touch():
        touch(160, S_TB, (1 << 46) - 1); p.vm.issue("t")
        p(f"s_add_u32 s{S_TB}, s{S_TB}, {2944*128}")
    cinit_loads()
    for _ in range(5): p.vm.issue("ci")
    if not go_done:
        p.wait(vm=f"x{2*cfg.gon+1}")
        arrive(C_GO)
    p.wait(vm="x13")
    arrive(C_XL)
    p.wait(vm="ci")
    for at in (cfg.lt0, cfg.lt1):
        if at == 7 and cfg.ltouch: late_touch()
    if cfg.ltouch and cfg.lt1 == 8: p(f"s_mov_b32 s{S_FB}, s{S_TB}")
    stamp(6)

    p.label("L_setup")
    if cfg.stamps: p(f"s_mov_b32 s{S_ST+27}, 0")
    p(f"s_setprio {cfg.prio_prep}")
    p.vm.clear(); p.lg.clear()
    AX, AT, CI, X0 = 0, 16, 32, 48
    Z = [74, 78]; PT = 82; ZL = 90
    XA = {1: 98, -3: 99, -1: 100}; WA = 101; SM = [102, 103, 104, 105]; MBX = 106; VMB = 110; VBO = 111
    RING = 112; RES = RING + 4*cfg.R
    WT = 112
    assert RES + 4*cfg.NRES <= 256
    NR = 4
    S_N, S_MB, S_O = S_T+7, S_T+9, S_T+11
    S_NR = S_T + 12
    p(f"s_and_b32 s{S_T+3}, s{S_WAVE}, 3")
    p(f"s_lshl_b32 s{S_T+2}, s{S_T+3}, 2")
    p(f"s_lshl_b32 s{S_T}, s{S_T+3}, 8")
    p(f"s_mov_b32 s{S_N}, 4")
    p(f"s_add_u32 s{S_T+2}, s{S_T+2}, 3")
    p(f"s_cmp_lt_u32 s{S_WAVE}, 4")
    p("s_cbranch_scc1 L_rowp")
    p(f"s_add_u32 s{S_T}, s{S_T}, {4*7168}")
    if cfg.bal:
        p(f"s_mov_b32 s{S_N}, 3")
        p(f"s_mul_i32 s{S_T+2}, s{S_T+3}, 3")
        p(f"s_add_u32 s{S_T+2}, s{S_T+2}, 70")
    else: p(f"s_add_u32 s{S_T+2}, s{S_T+2}, 64")
    p.label("L_rowp")
    p(f"s_lshl4_add_u32 s{S_T+2}, s{S_CP}, s{S_T+2}")
    p.label("L_setup2")
    p(f"s_mov_b32 s{S_NR}, s{S_N}")
    p("v_and_b32 v1, 31, v0")
    p("v_lshrrev_b32 v2, 5, v0")
    p(f"v_lshl_add_u32 v3, v1, 1, s{S_T}")
    p(f"v_lshl_add_u32 v{XA[1]}, v2, 6, v3")
    p("v_mul_u32_u24 v4, 0xc0, v2")
    p(f"v_sub_u32 v{XA[-3]}, v3, v4")
    p("v_lshlrev_b32 v4, 6, v2")
    p(f"v_sub_u32 v{XA[-1]}, v3, v4")
    p("v_mul_u32_u24 v4, 0x210, v2")
    p("v_lshl_add_u32 v4, v1, 4, v4")
    p(f"v_add_u32 v{WA}, {WO}, v4")
    for r in range(26): p(f"v_mov_b32 v{X0+r}, 0")
    for a in range(3):
        for h in range(2):
            p(f"v_lshlrev_b32 v{CI+4*a+2*h}, 16, v{CRAW+2*a+h}")
            p(f"v_and_b32 v{CI+4*a+2*h+1}, 0xffff0000, v{CRAW+2*a+h}")
    p(f"v_lshlrev_b32 v{CI+12}, 16, v{CRAW+6}")
    for r in range(13, 16): p(f"v_mov_b32 v{CI+r}, 0")
    p(f"v_lshlrev_b32 v{VBO}, 16, v{CRAW+7}")
    p("v_lshrrev_b32 v1, 3, v0")
    p("v_min_u32 v3, 1, v1")
    p("v_lshlrev_b32 v2, 9, v0")
    p(f"v_lshl_add_u32 v{VMB}, v3, 30, v2")
    p(f"s_lshl_b32 s{S_T+1}, s{S_RG}, 7")
    p(f"s_add_u32 s{S_T+1}, s{S_T+1}, s{S_T+2}")
    p(f"s_lshl_b32 s{S_O}, s{S_T+1}, 1")
    p(f"s_lshl_b32 s{S_T}, s{S_RG}, 10")
    p(f"s_add_u32 s{S_MB}, s{S_T+2}, s{S_T}")
    p(f"s_sub_u32 s{S_MB}, s{S_MB}, 3")
    p(f"s_lshl_b32 s{S_MB}, s{S_MB}, 2")
    p(f"v_mov_b32 v{ZL+7}, 0")
    p(f"s_cmp_ge_u32 s{S_WAVE}, 4")
    p("s_cbranch_scc1 L_xz")
    p("v_and_b32 v2, 7, v0")
    p(f"v_mul_u32_u24 v3, {BLK}, v1")
    p("v_lshl_add_u32 v3, v2, 4, v3")
    p("v_mul_u32_u24 v4, 0x210, v2")
    p(f"s_mul_i32 s{S_T}, s{S_C}, {24*528}")
    p(f"s_add_u32 s{S_T}, s{S_T}, {WO}")
    p(f"v_add_u32 v4, s{S_T}, v4")
    p("v_lshl_add_u32 v5, v1, 4, v4")
    p("v_cmp_eq_u32 vcc, 1, v1")
    p("v_add_u32 v6, 48, v5")
    p("v_subrev_u32 v7, 48, v5")
    p("v_cndmask_b32 v6, v5, v6, vcc")
    p("v_cmp_eq_u32 vcc, 4, v1")
    p(f"s_cmp_eq_u32 s{S_C}, 3")
    p(f"s_cselect_b32 s{S_T+1}, 4, 0")
    p("v_cndmask_b32 v6, v6, v7, vcc")
    p(f"v_and_b32 v7, s{S_T+1}, v2")
    p("v_lshl_add_u32 v7, v7, 28, v3")
    p("v_and_b32 v8, 31, v0")
    p("v_lshrrev_b32 v9, 5, v0")
    p(f"v_mul_u32_u24 v8, {BLK}, v8")
    p("v_lshl_add_u32 v8, v9, 2, v8")
    p(f"s_mul_i32 s{S_T}, s{S_C}, 384")
    p(f"s_add_u32 s{S_T}, s{S_T}, {WS_W}")
    p(f"s_and_b32 s{S_T+1}, s{S_CP}, {1 if cfg.wrot else 0}")
    p(f"s_mul_i32 s{S_T+2}, s{S_T+1}, 26624")
    for k in range(4):
        p(f"s_xor_b32 s{S_T+3+k}, s{S_T+2}, {26624*(k >> 1)}")
        p(f"s_add_u32 s{S_T+3+k}, s{S_T+3+k}, s{S_T}")
        if k & 1: p(f"s_add_u32 s{S_T+3+k}, s{S_T+3+k}, 13312")
    p(f"s_lshl_b32 s{S_T+2}, s{S_T+1}, 8")
    p(f"s_cmp_eq_u32 s{S_T+1}, 0")
    p("s_cselect_b64 vcc, -1, 0")
    p(f"v_add_u32 v12, s{S_T+2}, v5")
    p(f"s_xor_b32 s{S_T+2}, s{S_T+2}, 0x100")
    p("v_add_u32 v6, 0x180, v6")
    p("v_add_u32 v15, 0x80, v5")
    p(f"v_add_u32 v14, s{S_T+2}, v5")
    p("v_cndmask_b32 v13, v6, v15, vcc")
    p("v_cndmask_b32 v15, v15, v6, vcc")
    p("v_mov_b32 v10, 0")
    check(C_GO, 4, sleep=2)
    stamp(22)
    p(f"s_mov_b32 s{S_T+13}, {WS_W}")
    if cfg.noprep: p("s_branch L_wload")
    if cfg.direct:
        p(f"s_load_dword s{S_X}, s[{S_DBG}:{S_DBG+1}], 192")
        p("s_waitcnt lgkmcnt(0)")
        p(f"s_cmp_lg_u32 s{S_X}, 0")
        p("s_cbranch_scc1 L_wload")
        if cfg.stamps: p(f"s_add_u32 s{S_ST+27}, s{S_ST+27}, 100")
    p(f"s_cmp_lg_u32 s{S_C}, 0")
    p("s_cbranch_scc1 L_pw")
    p.label("L_probe")
    p(f"global_load_dword v11, v10, s[{S_DBG}:{S_DBG+1}] offset:128 sc1")
    p(f"buffer_load_dword v9, v8, s[{S_WS}:{S_WS+3}], s{S_T+13} offen offset:1536 sc1")
    p("s_waitcnt vmcnt(0)")
    p("v_add_u32 v11, -1, v11")
    p("v_max_u32 v9, v9, v11")
    p("v_cmp_eq_u32 vcc, -1, v9")
    p("s_nop 1")
    p("s_cmp_eq_u64 vcc, 0")
    p("s_cbranch_scc1 L_wload")
    p.label("L_retry")
    if cfg.stamps: p(f"s_add_u32 s{S_ST+27}, s{S_ST+27}, 1")
    p(f"s_sleep {cfg.poll_sleep}")
    p(f"s_sub_u32 s{S_SPIN}, s{S_SPIN}, 1")
    p("s_cbranch_scc0 L_probe")
    p("s_endpgm")
    p.label("L_pw")
    check(C_FLAG, 1, sleep=2)
    p("s_branch L_wl2")
    p.label("L_wload")
    arrive(C_FLAG)
    p.label("L_wl2")
    stamp(2)
    for J in range(4):
        for Fi in range(3):
            r = WT + 4*(3*J + Fi)
            p.vmem(f"buffer_load_dwordx4 v[{r}:{r+3}], v{7 if Fi == 2 else 3}, s[{S_WS}:{S_WS+3}], s{S_T+3+J} offen offset:{128*Fi} sc1", f"w{J}{Fi}")
    first = True
    for J in range(4):
        for Fi in range(3):
            r = WT + 4*(3*J + Fi)
            p.wait(vm=f"w{J}{Fi}")
            p(f"ds_write_b128 v{12+J}, v[{r}:{r+3}] offset:{4224*Fi}")
            if first: p(f"v_max_u32 v9, v{r}, v{r+1}")
            else: p(f"v_max3_u32 v9, v{r}, v{r+1}, v9")
            p(f"v_max3_u32 v9, v{r+2}, v{r+3}, v9")
            first = False
    p("v_cmp_eq_u32 vcc, -1, v9")
    p("s_nop 1")
    p("s_cmp_eq_u64 vcc, 0")
    p("s_cbranch_scc0 L_retry")
    p.label("L_xz")
    check(C_XL, 4, sleep=cfg.idle_sleep)
    def x_read(r):
        p.lds(f"ds_read_u16_d16_hi v{X0+r}, v{XA[pi(r)-r]} offset:{1024*(r >> 2) + 64*(r & 3)}", f"x{r}")
    for r in range(26): x_read(r)
    def z_ops(n):
        ops = []
        for e in range(4):
            t = PT + 2*(e % 4)
            (a, b), (c, d) = S[8*n + 2*e], S[8*n + 2*e + 1]
            ops.append(("v", f"v_mul_f32 v{t}, v{X0+a}, v{X0+b}", (a, b)))
            ops.append(("v", f"v_mul_f32 v{t+1}, v{X0+c}, v{X0+d}", (c, d)))
        cv = [("v", f"v_cvt_pk_bf16_f32 v{Z[n % 2]+e}, v{PT+2*e}, v{PT+2*e+1}", ()) for e in range(4)]
        return ops[0:4] + cv[0:1] + ops[4:6] + cv[1:2] + ops[6:8] + cv[2:4]
    for o in z_ops(0):
        p.wait(lg=tuple(f"x{r}" for r in o[2]))
        p(o[1])
    for d in XA.values(): p(f"v_add_u32 v{d}, 0x1c00, v{d}")
    p.wait0(lg=True)
    p("s_barrier")
    if cfg.ltouch and cfg.lt1 == 8:
        p(f"s_cmp_lt_u32 s{S_WAVE}, 4")
        p("s_cbranch_scc1 L_go")
        touch(160, S_FB, (1 << 46) - 1)
    p.label("L_go")
    p("s_setprio 0")
    if cfg.flip:
        p(f"s_cmp_lt_u32 s{S_WAVE}, 4")
        p("s_cbranch_scc1 L_prio")
        p(f"s_setprio 1")
        p.label("L_prio")
    stamp(3)
    order = []
    for n in range(22):
        order.append(("X", n)); order.append(("T", n))
        if n == 14: order.append(("T", 22))
        if n == 18: order.append(("T", 23))
    fr_of = lambda k, n: (2*n if k == "X" else 2*n + 1) if n < 22 else n + 22
    nn = 46 - cfg.NRES
    assert nn % cfg.R == 0
    nonres = [int((u + 0.5)*46/nn) for u in range(nn)]
    wreg = {}; rr = 0
    for k in range(46):
        if k in nonres: wreg[k] = RING + 4*(nonres.index(k) % cfg.R)
        else: wreg[k] = RES + 4*rr; rr += 1
    def w_read(k):
        p.lds(f"ds_read_b128 v[{wreg[k]}:{wreg[k]+3}], v{WA} offset:{1056*fr_of(*order[k])}", f"w{k}")
    for k in range(46):
        if k not in nonres or nonres.index(k) < cfg.R: w_read(k)
    p.wait0(lg=True)
    stamp(5)
    def mfma(k):
        kind, n = order[k]
        zb = Z[n % 2] if n < 22 else ZL + 4*(n - 22)
        acc = AX if kind == "X" else AT
        cc = f"v[{acc}:{acc+15}]"
        if n == 0: cc = "0" if kind == "X" else f"v[{CI}:{CI+15}]"
        return f"v_mfma_f32_32x32x16_bf16 v[{acc}:{acc+15}], v[{wreg[k]}:{wreg[k]+3}], v[{zb}:{zb+3}], {cc}"
    lin_ops = []
    for u in range(8):
        a = LIN[min(2*u, 12)]; b = LIN[min(2*u + 1, 12)]
        lin_ops.append(("v", f"v_cvt_pk_bf16_f32 v{ZL+u}, v{X0+a}, v{X0+b}", (a, b)))
    def body(emit_mb):
        groups = [z_ops(n) for n in range(1, 22)] + [z_ops(0)]
        groups[10] = lin_ops[:7] + groups[10]
        flat = [(g, o) for g, ops in enumerate(groups) for o in ops]
        lastuse = {}
        for i, (g, o) in enumerate(flat):
            if g < 21:
                for r in o[2]: lastuse[r] = i
        for r in range(26): lastuse.setdefault(r, -1)
        for g, ops in enumerate(groups):
            mf = [kk for kk in range(46) if order[kk] in (("X", g), ("T", g))]
            if g == 14: mf.append(order.index(("T", 22)))
            if g == 18: mf.append(order.index(("T", 23)))
            items = []
            base = sum(len(x) for x in groups[:g])
            if g == 0:
                for r in range(26):
                    if lastuse[r] == -1: items.append(("x", r))
            for i, o in enumerate(ops):
                items.append(o)
                for r in range(26):
                    if lastuse[r] == base + i: items.append(("x", r))
            if g == 21:
                pos = [0, 0]
            else:
                n_it = len(items)
                pos = [2 + (j*n_it)//len(mf) for j in range(len(mf))]
            j = 0
            for i, it in enumerate(items + [None]):
                while j < len(mf) and pos[j] <= i:
                    kk = mf[j]
                    if g == 21 and j == 0: p("s_nop 1")
                    p.wait(lg=f"w{kk}")
                    p(mfma(kk))
                    if kk in nonres:
                        w_read(nonres[(nonres.index(kk) + cfg.R) % nn])
                    j += 1
                if it is None: break
                if it[0] == "x": x_read(it[1])
                else:
                    p.wait(lg=tuple(f"x{r}" for r in it[2]))
                    p(it[1])
            if g == 15: emit_mb()
        for k in range(NR - 1): p(f"v_mov_b32 v{SM[k]}, v{SM[k+1]}")
        for d in XA.values(): p(f"v_add_u32 v{d}, 0x1c00, v{d}")
        s0 = SM[NR-1]
        p(f"v_mul_f32 v{s0}, v{AX}, v{AT}")
        p(f"v_mul_f32 v{PT}, v{AX+1}, v{AT+1}")
        for r in range(2, 13):
            p(f"v_fmac_f32 v{s0 if r % 2 == 0 else PT}, v{AX+r}, v{AT+r}")
        p(f"s_sub_u32 s{S_N}, s{S_N}, 1")
        p(f"v_add_f32 v{s0}, v{s0}, v{PT}")
    def mb_loads():
        p(f"buffer_load_dwordx{NR} v[{MBX}:{MBX+NR-1}], v{VMB}, s[{S_WS}:{S_WS+3}], s{S_MB} offen sc1")
    def emit_mb():
        sk = L("nomb")
        p(f"s_cmp_lg_u32 s{S_N}, 1")
        p(f"s_cbranch_scc1 {sk}")
        mb_loads()
        p.label(sk)
    save = p.L; p.L = []
    body(lambda: None)
    st1 = list(p.lg.q)
    p.L = save
    p(".p2align 3")
    p.label("L_row")
    body(emit_mb)
    assert st1 == p.lg.q
    if cfg.stamps in (1, 2):
        for i in range(3): p(f"s_mov_b32 s{S_ST+23+i}, s{S_ST+24+i}")
        stamp(26)
    if cfg.flip:
        p(f"s_cmp_lg_u32 s{S_N}, {4 - cfg.flip}")
        p("s_cbranch_scc1 L_noflip")
        p("s_setprio 0")
        p.label("L_noflip")
    p(f"s_cmp_lg_u32 s{S_N}, 0")
    p("s_cbranch_scc1 L_row")
    p.label("L_mbw")
    p("s_waitcnt vmcnt(0)")
    if NR == 4:
        p(f"v_max3_u32 v1, v{MBX}, v{MBX+1}, v{MBX+2}")
        p(f"v_max_u32 v1, v1, v{MBX+3}")
    else: p(f"v_max_u32 v1, v{MBX}, v{MBX+1}")
    p("v_cmp_eq_u32 vcc, -1, v1")
    p("s_nop 1")
    p("s_cmp_eq_u64 vcc, 0")
    p("s_cbranch_scc1 L_mbok")
    p("s_sleep 1")
    mb_loads()
    p(f"s_sub_u32 s{S_SPIN}, s{S_SPIN}, 1")
    p("s_cbranch_scc0 L_mbw")
    p("s_endpgm")
    p.label("L_mbok")
    for k in range(NR): p(f"v_add_f32 v{SM[k]}, v{SM[k]}, v{MBX+k}")
    for ctl in ("quad_perm:[1,0,3,2] row_mask:0xf", "quad_perm:[2,3,0,1] row_mask:0xf", "row_half_mirror row_mask:0xf",
                "row_mirror row_mask:0xf", "row_bcast:15 row_mask:0xa", "row_bcast:31 row_mask:0xc"):
        if NR == 2: p("s_nop 0")
        for k in range(NR): p(f"v_add_f32_dpp v{SM[k]}, v{SM[k]}, v{SM[k]} {ctl} bank_mask:0xf")
    for k in range(NR): p(f"v_add_f32 v{SM[k]}, v{SM[k]}, v{VBO}")
    p(f"v_cvt_pk_bf16_f32 v2, v{SM[0]}, v{SM[1]}")
    p(f"v_cvt_pk_bf16_f32 v3, v{SM[2]}, v{SM[3]}")
    p(f"v_mov_b32 v1, s{S_O}")
    p("s_mov_b32 exec_lo, 0")
    p("s_mov_b32 exec_hi, 0x80000000")
    if cfg.bal:
        p(f"s_cmp_eq_u32 s{S_NR}, 4")
        p("s_cbranch_scc1 L_st4")
        p(f"global_store_short_d16_hi v1, v3, s[{S_OUT}:{S_OUT+1}]")
        p(f"s_cmp_eq_u32 s{S_NR}, 1")
        p("s_cbranch_scc1 L_std")
        p(f"global_store_short v1, v3, s[{S_OUT}:{S_OUT+1}] offset:-2")
        p(f"global_store_short_d16_hi v1, v2, s[{S_OUT}:{S_OUT+1}] offset:-4")
        p("s_branch L_std")
        p.label("L_st4")
    p(f"global_store_dwordx2 v1, v[2:3], s[{S_OUT}:{S_OUT+1}] offset:-6")
    p.label("L_std")
    stamps_out()
    p.label("L_end")
    p("s_endpgm")

    p.vm.q = dnn_vm; p.lg.clear()
    p(".p2align 6")
    p.label("L_dnn")
    ACC = lambda t, q: 8*t + 4*q
    BF = lambda t: 56 + 4*t
    AR = lambda f, q: 84 + 8*(f % 2) + 4*q
    IDX = lambda f: 100 + f
    VO = lambda u: 128 + u
    V_B, V_A, V_CH, V_LANE, V_G8 = [130, 131, 132], [133, 134, 135], 136, 137, 138
    RAW = 140; RAW2 = 200
    S_SB, S_M0, S_AM = S_T+2, S_T+3, S_T+4
    if cfg.probe:
        p("s_cmp_ge_u32 s2, 8")
        p("s_cbranch_scc1 L_pr1")
        p("s_lshl_b32 s90, s2, 2")
        p("v_mov_b32 v1, s90")
        p("v_mov_b32 v2, s96")
        p(f"global_store_dword v1, v2, s[{S_DBG}:{S_DBG+1}] offset:8 sc1")
        p("s_waitcnt vmcnt(0)")
        p.label("L_pr1")
    srd(S_B1, 10, 1664)
    srd(S_TAB, 2, 6400000)
    srd(S_W2, 12, 1664)
    srd(S_WS, None, WS_END)
    if cfg.plat:
        sr_, off = {1: (S_TAB, 3000320), 2: (S_W1, 1300096), 3: (S_WS, 4096), 4: (S_TAB, 5000320)}[cfg.plat]
        p("s_waitcnt vmcnt(0)")
        p(f"v_mov_b32 v1, {off}")
        p(f"buffer_load_dword v2, v1, s[{sr_}:{sr_+3}], 0 offen offset:2048")
        p("s_waitcnt vmcnt(0)")
        p("s_lshl_b32 s90, s2, 7")
        p("s_memrealtime s[94:95]")
        p("s_waitcnt lgkmcnt(0)")
        p(f"buffer_load_dword v2, v1, s[{sr_}:{sr_+3}], s90 offen offset:4)".replace(")", ""))
        p("s_waitcnt vmcnt(0)")
        p("s_memrealtime s[92:93]")
        p("s_waitcnt lgkmcnt(0)")
        p("s_sub_u32 s92, s92, s94")
        p("s_mul_i32 s92, s92, 10")
        p("s_add_u32 s92, s92, s96")
    stamp(10)
    p(f"s_mov_b32 s{S_SPIN}, 0x40000")
    p(f"s_mul_i32 s{S_COL}, s{S_CP}, 416")
    S_M1, S_WR = S_T+5, S_T+6
    p(f"s_mov_b32 s{S_SB}, s{S_COL}")
    p(f"s_and_b32 s{S_WR}, s{S_WAVE}, 3")
    p(f"s_lshl_b32 s{S_T}, s{S_WAVE}, 1")
    p(f"s_sub_u32 s{S_T}, s{S_T}, 4")
    p(f"s_add_u32 s{S_T+1}, s{S_T}, 1")
    p(f"s_cmp_lt_u32 s{S_WAVE}, 4")
    p(f"s_cselect_b32 s{S_M0}, s{S_WAVE}, s{S_T}")
    p(f"s_cselect_b32 s{S_M1}, 12, s{S_T+1}")
    p(f"s_lshl_b32 s{S_M0}, s{S_M0}, 10")
    p(f"s_lshl_b32 s{S_M1}, s{S_M1}, 10")
    p(f"s_lshl_b32 s{S_AM}, s{S_WAVE}, 10")
    p(f"s_add_u32 s{S_AM}, s{S_AM}, {BSZ}")
    p(f"s_lshr_b32 s{S_T}, s{S_WAVE}, 2")
    p(f"s_mul_i32 s{S_T}, s{S_T}, 224")
    p(f"s_add_u32 s{S_COL}, s{S_COL}, s{S_T}")
    p(f"s_movk_i32 s{S_T+1}, 1248")
    p(f"s_movk_i32 s{S_T+7}, 6656")
    for u in range(2):
        p(f"v_add_u32 v3, s{(S_M0, S_M1)[u]}, v{V_L}")
        p("v_lshlrev_b32 v4, 4, v3")
        p("v_mul_hi_u32_u24 v4, 0x9d89e, v4")
        p("v_bfe_u32 v5, v4, 2, 1")
        p("v_bfe_i32 v6, v4, 3, 1")
        p("v_add_u32 v5, v5, v6")
        p(f"v_mad_i32_i24 v5, v5, s{S_T+7}, v3")
        p(f"v_mad_u32_u24 v{VO(u)}, v4, s{S_T+1}, v5")
    p("v_lshrrev_b32 v1, 4, v0")
    p(f"s_add_u32 s{S_T+1}, s{S_T}, {IDXO}")
    p(f"v_lshl_add_u32 v{V_G8}, v1, 3, s{S_T+1}")
    p("v_lshrrev_b32 v2, 2, v0")
    p(f"v_mul_u32_u24 v2, 104, v2")
    p(f"s_add_u32 s{S_W}, s{S_W}, {IDXO}")
    p(f"v_add_u32 v139, s{S_W}, v2")
    p("v_lshrrev_b32 v2, 5, v0")
    p("v_mul_u32_u24 v3, 3, v2")
    p("v_xor_b32 v3, v3, v0")
    p("v_and_b32 v3, 3, v3")
    p(f"v_lshlrev_b32 v{V_CH}, 4, v3")
    p("v_bfe_u32 v3, v0, 3, 1")
    p("v_mul_u32_u24 v3, 3, v3")
    p("v_xor_b32 v3, v3, v1")
    p("v_and_b32 v4, 15, v0")
    p("v_lshlrev_b32 v4, 6, v4")
    p("v_lshl_add_u32 v3, v3, 4, v4")
    p(f"s_and_b32 s{S_T+1}, s{S_WAVE}, 3")
    p(f"s_lshl_b32 s{S_T+1}, s{S_T+1}, 11")
    p(f"s_add_u32 s{S_T+1}, s{S_T+1}, {BSZ}")
    p(f"v_add_u32 v{V_A[0]}, s{S_T+1}, v3")
    p("v_bfe_u32 v3, v0, 2, 3")
    p("v_lshl_add_u32 v2, v2, 4, v3")
    p("v_mul_u32_u24 v2, 0x1a0, v2")
    p("v_and_b32 v3, 3, v0")
    p("v_lshl_add_u32 v2, v3, 3, v2")
    p(f"v_add_u32 v{V_B[0]}, s{S_T}, v2")
    for k in (1, 2):
        p(f"v_add_u32 v{V_A[k]}, {3*k*SLOT}, v{V_A[0]}")
        p(f"v_add_u32 v{V_B[k]}, {3*k*SLOT}, v{V_B[0]}")
    p(f"v_mov_b32 v{V_LANE}, v0")
    p.wait(vm="idx")
    stamp(1)
    if cfg.dbench:
        p("s_mov_b32 s3, 0")
        p.label("L_again")
    for m in range(6):
        p.lds(f"ds_read2_b64 v[{100+4*m}:{103+4*m}], v139 offset0:{2*m} offset1:{2*m+1}", f"ix{m}")
    p.lds("ds_read_b64 v[124:125], v139 offset:96", "ix6")
    def a_dma(f):
        p.wait(lg=f"ix{f >> 2}")
        p(f"s_add_u32 m0, s{S_AM}, {(f % RB)*SLOT}")
        p(f"v_lshl_add_u32 v{IDX(f)}, v{IDX(f)}, 6, v{V_CH}")
        p.vmem(f"buffer_load_dwordx4 v{IDX(f)}, s[{S_TAB}:{S_TAB+3}], 0 offen lds", f"F{f}")
    def b_dma(f, u, T):
        if u == 1:
            if f: p(f"s_add_u32 s{S_SB}, s{S_SB}, 53248")
            sk = L("np")
            if T != 6:
                if T == 0:
                    p(f"s_cmp_ge_u32 s{S_WAVE}, 4")
                    p(f"s_cselect_b32 s{S_X}, {f & 3}, s{S_WR}")
                    p(f"s_cmp_lg_u32 s{S_X}, {f & 3}")
                else: p(f"s_cmp_lg_u32 s{S_WR}, {f & 3}")
                p(f"s_cbranch_scc1 {sk}")
            p(f"s_add_u32 m0, s{S_M1}, {(f % RB)*SLOT}")
            p("s_nop 0")
            p(f"buffer_load_dwordx4 v{VO(1)}, s[{S_W1}:{S_W1+3}], s{S_SB} offen lds")
            if T == 6: p.vm.issue(f"F{f}")
            else: p.label(sk)
        else:
            p(f"s_add_u32 m0, s{S_M0}, {(f % RB)*SLOT}")
            p("s_nop 0")
            p.vmem(f"buffer_load_dwordx4 v{VO(0)}, s[{S_W1}:{S_W1+3}], s{S_SB} offen lds", f"F{f}")
    def fill(f, T): a_dma(f); b_dma(f, 1, T); b_dma(f, 0, T)
    BWO = IDXO
    p(f"s_cmp_ge_u32 s{S_WAVE}, {0 if cfg.dbench else 2}")
    p("s_cbranch_scc1 L_nobw")
    p(f"s_mul_i32 s{S_X}, s{S_CP}, 416")
    p(f"s_cmp_eq_u32 s{S_WAVE}, 0")
    p(f"s_cselect_b64 s[{S_W2}:{S_W2+1}], s[{S_B1}:{S_B1+1}], s[{S_W2}:{S_W2+1}]")
    p(f"s_mov_b32 m0, s{S_W}")
    p("s_mov_b64 exec, 0xfffffff")
    p("s_waitcnt lgkmcnt(0)")
    p(f"buffer_load_dwordx4 v{V_L}, s[{S_W2}:{S_W2+3}], s{S_X} offen lds")
    p("s_mov_b64 exec, -1")
    p.label("L_nobw")
    if cfg.sw < 26:
        p(f"v_lshlrev_b32 v{V_C}, 2, v{V_LANE}")
        p(f"v_add_u32 v{V_C}, {IDXO + 2*1664}, v{V_C}")
        p(f"v_mov_b32 v{V_ONE}, 1")
        p(f"s_cmp_lg_u32 s{S_WAVE}, 2")
        p("s_cbranch_scc1 L_noz")
        p(f"v_mov_b32 v{V_POLL}, 0")
        p("s_waitcnt lgkmcnt(0)")
        p(f"ds_write_b32 v{V_C}, v{V_POLL}")
        p("s_waitcnt lgkmcnt(0)")
        p.label("L_noz")
    def lo(f): return (f % RB)//3, ((f % RB) % 3)*SLOT
    def b_read1(f, t, r2):
        k, off = lo(f)
        p.lds(f"ds_read_b64_tr_b16 v[{BF(t)+2*r2}:{BF(t)+2*r2+1}], v{V_B[k]} offset:{off + 32*t + 3328*r2}", f"b{f}_{t}")
    def a_read(f):
        k, off = lo(f)
        for q in range(2):
            p.lds(f"ds_read_b128 v[{AR(f, q)}:{AR(f, q)+3}], v{V_A[k]} offset:{off + 1024*q}", f"a{f}")
    p(f"s_cmp_ge_u32 s{S_WAVE}, 4")
    p("s_cbranch_scc1 L_dnn6")
    W2R = lambda t, r: 170 + 4*t + r
    def w2_unpack():
        return [x for t in range(7) for h in range(2) for x in
                (f"v_lshlrev_b32 v{W2R(t,2*h)}, 16, v{RAW2+2*t+h}", f"v_and_b32 v{W2R(t,2*h+1)}, 0xffff0000, v{RAW2+2*t+h}")]
    vm0, lg0 = list(p.vm.q), list(p.lg.q)
    def dnn_main(T):
        p.vm.q, p.lg.q = list(vm0), list(lg0)
        fill(0, T)
        fill(1, T)
        p.wait(vm="F0")
        p("s_barrier")
        stamp(12)
        for t in range(T):
            p.lds(f"ds_read_b64 v[{RAW+2*t}:{RAW+2*t+1}], v{V_G8} offset:{32*t}", "bias")
        a_read(0)
        for t in range(T):
            for r2 in range(2): b_read1(0, t, r2)
        p.wait(lg="bias")
        for t in range(T):
            for h in range(2):
                p(f"v_lshlrev_b32 v{ACC(t,0)+2*h}, 16, v{RAW+2*t+h}")
                p(f"v_and_b32 v{ACC(t,0)+2*h+1}, 0xffff0000, v{RAW+2*t+h}")
        for f in range(2, cfg.look): fill(f, T)
        p.wait(vm=tuple(f"F{k}" for k in range(cfg.barp + 1)))
        p("s_barrier")
        if T == 6 and cfg.prio_hi: p(f"s_setprio {cfg.prio_hi}")
        stamp(2)
        nxt = cfg.look
        w2ops = w2_unpack()
        free = -1; landed = cfg.barp
        for f in range(26):
            todo = []
            soft = f > cfg.sw and f <= 23
            top = f < cfg.early or (cfg.dpos == 4 and T == 6) or (cfg.dpos == 1 and T == 7)
            lim = (f - 1 if soft and not top else free) + RB
            nfill = 2 if (cfg.cmask >> f & 1 if cfg.cmask else cfg.catch0 <= f < cfg.catch0 + cfg.catch) else 1
            if f >= cfg.b2: nfill = (2 if (f % 2 == 0) == ((T == 6) == (cfg.dpos == 4)) else 0)
            for _ in range(nfill):
                if nxt < 26 and nxt <= lim:
                    todo += [(a_dma, (nxt,)), (b_dma, (nxt, 1, T)), (b_dma, (nxt, 0, T))]; nxt += 1
            if cfg.nodma and f >= 4:
                keep = []
                for fn, ar in todo:
                    if (fn is a_dma and cfg.nodma & 1) or (fn is b_dma and cfg.nodma & 2): continue
                    keep.append((fn, ar))
                todo[:] = keep
            n_it = len(todo)
            if f < cfg.early: at = [-1]*n_it
            elif cfg.dpos == 0: at = list(range(n_it))
            elif cfg.dpos == 1: at = [-1]*n_it if T == 7 else [T-1]*n_it
            elif cfg.dpos == 2: at = [(2*i + (T == 6)) if n_it <= 3 else i for i in range(n_it)]
            elif cfg.dpos == 3: at = [0]*n_it if T == 7 else [T-1]*n_it
            elif cfg.dpos == 4: at = [T-1]*n_it if T == 7 else [-1]*n_it
            elif cfg.dpos == 5: at = [i//(2 if n_it > 3 else 1) for i in range(n_it)] if T == 7 else [3 + i//(2 if n_it > 3 else 1) for i in range(n_it)]
            if soft and not top: at = [min(max(a, cfg.chk + i*(cfg.dpos in (0, 2))), T-1) for i, a in enumerate(at)]
            assert f == 25 or f + 1 <= landed
            def drain(t):
                while todo and at[0] <= t:
                    at.pop(0); fn, ar = todo.pop(0); fn(*ar)
            drain(-1)
            for t in range(T):
                p.wait(lg=(f"b{f}_{t}", f"a{f}"))
                b = f"v[{BF(t)}:{BF(t)+3}]"
                a0, a1 = ACC(t, 0), ACC(t, 1)
                c1 = a0 if f == 0 else a1
                p(f"v_mfma_f32_16x16x32_bf16 v[{a1}:{a1+3}], {b}, v[{AR(f,1)}:{AR(f,1)+3}], v[{c1}:{c1+3}]")
                if t and f < 25: b_read1(f+1, t-1, 1)
                elif t == 0 and f: b_read1(f, T-1, 1)
                p(f"v_mfma_f32_16x16x32_bf16 v[{a0}:{a0+3}], {b}, v[{AR(f,0)}:{AR(f,0)+3}], v[{a0}:{a0+3}]")
                if f < 25: b_read1(f+1, t, 0)
                if t == cfg.arp and f < 25: a_read(f + 1)
                if soft and t == cfg.chk - 2: poll_issue(4*(f-1))
                if soft and t == cfg.chk:
                    check(4*(f-1), 8, issued=True)
                    free = f - 1; landed = f + 2
                drain(t)
                if f == 21:
                    for tt in ([t] if t < T - 1 else range(t, 7)):
                        p.lds(f"ds_read_b64 v[{RAW2+2*tt}:{RAW2+2*tt+1}], v{V_G8} offset:{1664 + 32*tt}", "w2")
                if cfg.w2early and f in (23, 24):
                    if f == 23 and t == 0: p.wait(lg="w2")
                    for _ in range(3):
                        if w2ops: p(w2ops.pop(0))
            assert not todo
            if f >= cfg.sw:
                if f <= 22:
                    assert nxt > f + 3
                    p.wait(vm=tuple(f"F{k}" for k in range(f + 4)))
                    arrive(4*f)
            elif f <= cfg.lb and (f + 1) % cfg.barp == 0 and (f < cfg.b2 or f % 2):
                last = min(f + 1 + cfg.barp + (f + 1 == cfg.sw or f + 1 >= cfg.b2), 25) if f < cfg.lb else 25
                assert nxt > last
                p.wait(vm=tuple(f"F{k}" for k in range(last + 1)))
                if not cfg.nobar: p("s_barrier")
                free = f; landed = last
            if f == cfg.lb and cfg.tailprio is not None and T == cfg.tailprio: p("s_setprio 1")
            if f % 4 == 0 and (not cfg.dbench or f in (8, 20)): stamp(14 + f//4)
        assert nxt == 26 and not (cfg.w2early and w2ops)
    dnn_main(7)
    p("s_branch L_gelu")
    p(".p2align 6")
    p.label("L_dnn6")
    dnn_main(6)
    p.label("L_gelu")
    if cfg.dbench:
        p("s_barrier")
        p(f"s_mul_i32 s{S_SB}, s{S_CP}, 416")
        p("s_add_u32 s3, s3, 1")
        p("s_cmp_lt_u32 s3, 2")
        p("s_cbranch_scc1 L_again")
    stamp(3)
    p(f"s_load_dword s{S_X}, s[{S_DBG}:{S_DBG+1}], 128")
    if not cfg.w2early:
        p.wait0(vm=True)
        for x in w2_unpack(): p(x)
    k0 = -2.0*math.sqrt(2.0/math.pi)*math.log2(math.e)
    T1, T2, SUM, VC = 56, 64, 92, 72
    P = lambda a: f"v[{a}:{a+1}]"
    for r, c in enumerate((k0*0.044715, k0)):
        for h in range(2): p(f"v_mov_b32 v{VC+2*r+h}, {f2h(c)}")
    for r in range(4): p(f"v_mov_b32 v{SUM+r}, 0")
    for t in range(7):
        if t == 6:
            p(f"s_cmp_ge_u32 s{S_WAVE}, 4")
            p("s_cbranch_scc1 L_gelu6")
        x = ACC(t, 0)
        if cfg.pk:
            for r in range(0, 8, 2): p(f"v_pk_mul_f32 {P(T1+r)}, {P(x+r)}, {P(x+r)}")
            for r in range(0, 8, 2): p(f"v_pk_fma_f32 {P(T1+r)}, {P(T1+r)}, {P(VC)}, {P(VC+2)}")
            for r in range(0, 8, 2): p(f"v_pk_mul_f32 {P(T1+r)}, {P(T1+r)}, {P(x+r)}")
            for r in range(8): p(f"v_exp_f32 v{T1+r}, v{T1+r}")
            for r in range(0, 8, 2): p(f"v_pk_mul_f32 {P(T2+r)}, {P(x+r)}, {P(W2R(t, r & 3))}")
            for r in range(0, 8, 2): p(f"v_pk_add_f32 {P(T1+r)}, {P(T1+r)}, 1.0 op_sel_hi:[1,0]")
            for r in range(8): p(f"v_rcp_f32 v{T1+r}, v{T1+r}")
            for r in (0, 4, 2, 6): p(f"v_pk_fma_f32 {P(SUM+2*(r >> 2))}, {P(T1+r)}, {P(T2+r)}, {P(SUM+2*(r >> 2))}")
        else:
            for r in range(8): p(f"v_mul_f32 v{T1+r}, v{x+r}, v{x+r}")
            for r in range(8): p(f"v_fma_f32 v{T1+r}, v{T1+r}, v{VC}, v{VC+2}")
            for r in range(8): p(f"v_mul_f32 v{T1+r}, v{T1+r}, v{x+r}")
            for r in range(8): p(f"v_exp_f32 v{T1+r}, v{T1+r}")
            for r in range(8): p(f"v_mul_f32 v{T2+r}, v{x+r}, v{W2R(t, r & 3)}")
            for r in range(8): p(f"v_add_f32 v{T1+r}, 1.0, v{T1+r}")
            for r in range(8): p(f"v_rcp_f32 v{T1+r}, v{T1+r}")
            for r in range(8): p(f"v_fmac_f32 v{SUM+2*(r >> 2)+(r & 1)}, v{T1+r}, v{T2+r}")
    p.label("L_gelu6")
    p(f"v_add_f32 v{SUM}, v{SUM}, v{SUM+1}")
    p(f"v_add_f32 v{SUM+2}, v{SUM+2}, v{SUM+3}")
    p(f"v_and_b32 v84, 15, v{V_LANE}")
    p(f"v_lshrrev_b32 v85, 5, v{V_LANE}")
    p(f"v_permlane32_swap_b32 v{SUM}, v{SUM+2}")
    p("v_lshl_add_u32 v84, v85, 4, v84")
    p(f"v_add_f32 v{SUM}, v{SUM}, v{SUM+2}")
    p(f"v_bfe_u32 v85, v{V_LANE}, 4, 1")
    p(f"v_mov_b32 v{SUM+1}, v{SUM}")
    p("v_lshlrev_b32 v84, 2, v84")
    p("v_lshl_add_u32 v84, v85, 30, v84")
    p(f"v_permlane16_swap_b32 v{SUM}, v{SUM+1}")
    p(f"s_lshl2_add_u32 s{S_T}, s{S_RG}, s{S_CP}")
    p(f"v_add_f32 v{SUM}, v{SUM}, v{SUM+1}")
    p(f"s_lshl3_add_u32 s{S_T}, s{S_T}, s{S_WAVE}")
    p(f"s_lshl_b32 s{S_T}, s{S_T}, 7")
    p(f"v_min_u32 v{SUM}, -2, v{SUM}")
    p("s_waitcnt lgkmcnt(0)")
    if cfg.noprep or cfg.dbench: p("s_branch L_pub")
    p(f"s_cmp_lg_u32 s{S_X}, 0")
    p("s_cbranch_scc1 L_pub")
    p("v_mov_b32 v85, 0")
    p.label("L_dflag")
    p(f"global_load_dword v86, v85, s[{S_DBG}:{S_DBG+1}] offset:128 sc1")
    p("s_waitcnt vmcnt(0)")
    p(f"v_readfirstlane_b32 s{S_X}, v86")
    p(f"s_cmp_lg_u32 s{S_X}, 0")
    p("s_cbranch_scc1 L_pub")
    p("s_sleep 4")
    p(f"s_sub_u32 s{S_SPIN}, s{S_SPIN}, 1")
    p("s_cbranch_scc0 L_dflag")
    p("s_endpgm")
    p.label("L_pub")
    p(f"buffer_store_dword v{SUM}, v84, s[{S_WS}:{S_WS+3}], s{S_T} offen sc1")
    stamp(4)
    if cfg.probe:
        p("s_cmp_lg_u32 s2, 0")
        p("s_cbranch_scc1 L_pr2")
        p(f"v_lshlrev_b32 v1, 2, v{V_LANE}")
        p(f"global_load_dword v2, v1, s[{S_DBG}:{S_DBG+1}] offset:8 sc1")
        p("s_waitcnt vmcnt(0)")
        for i in range(8): p(f"v_readlane_b32 s{80+i}, v2, {i}")
        p("s_mov_b32 s90, s80"); p("s_mov_b32 s91, s80")
        for i in range(1, 8):
            p(f"s_min_u32 s90, s90, s{80+i}"); p(f"s_max_u32 s91, s91, s{80+i}")
        if cfg.probe == 1: p("s_sub_u32 s90, s91, s90")
        else: p(f"s_sub_u32 s90, s{80+cfg.probe-2}, s90")
        p("s_mul_i32 s90, s90, 20")
        p("s_min_u32 s90, s90, 20000")
        p("s_memrealtime s[92:93]"); p("s_waitcnt lgkmcnt(0)")
        p("s_add_u32 s92, s92, s90")
        p.label("L_pr")
        p("s_memrealtime s[94:95]"); p("s_waitcnt lgkmcnt(0)")
        p("s_cmp_lt_u32 s94, s92")
        p("s_cbranch_scc1 L_pr")
        p.label("L_pr2")
    stamps_out()
    p("s_endpgm")

    p(".p2align 6")
    p(".type gather_table,@object")
    p.label("gather_table")
    zt = P_Z - PS
    for role in range(2):
        for lane in range(64):
            s, half = lane >> 1, lane & 1
            ad = []
            for e in range(8):
                pr = slot_pair(s, half, e) if s < (24 if role == 0 else 22) else None
                at = (lambda j, k: P_D1 - PS + k*144 + j*4) if role == 0 else (lambda j, k: P_W1 - PS + (j*26 + k)*2)
                if pr is None: ad += [zt, zt]
                elif pr[1] is None: ad += [at(pr[0], 26), zt]
                elif pr[0] == pr[1] or norm(pr) == (24, 25): ad += [at(*pr), zt]
                else: ad += [at(pr[0], pr[1]), at(pr[1], pr[0])]
            p(".short " + ", ".join(str(a) for a in ad))
    p(".size gather_table, 4096")
    return p

def header():
    return """; xDeepFM (CIN + DNN) forward, one launch, 256 workgroups (S1).
; Kernarg: idx, table, ws_cin, w_cin_out, w_dnn1, b_dnn1, w_dnn2, b_out, out, debug, ws
; @launch grid=(256,1,1) block=(512,1,1) lds=%d
.amdgcn_target "amdgcn-amd-amdhsa--gfx950"
.text
""" % LDS_SIZE
def footer():
    nv = 256
    return f""".section .rodata,"a"
.p2align 6
.amdhsa_kernel {NAME}
  .amdhsa_next_free_vgpr {nv}
  .amdhsa_next_free_sgpr 102
  .amdhsa_accum_offset {nv}
  .amdhsa_group_segment_fixed_size 0
  .amdhsa_kernarg_size 88
  .amdhsa_user_sgpr_count 2
  .amdhsa_user_sgpr_kernarg_segment_ptr 1
  .amdhsa_system_sgpr_workgroup_id_x 1
  .amdhsa_float_denorm_mode_32 3
.end_amdhsa_kernel
"""
if __name__ == "__main__":
    out = sys.argv[1]
    for a in sys.argv[2:]:
        k, v = a.split("=")
        setattr(cfg, k, type(getattr(cfg, k))(int(v)))
    open(out, "w").write(header() + build().text() + footer())
```

```python
import sys, struct, math
from asmlib import *
from slots import *

NAME = "standalone__deep_cross_xdeepfm__recsys_kernel"
class Cfg:
    stamps = 0
    NRES = 31
    R = 3
    prio_prep = 3
    prio_hi = 0
    poll_sleep = 2
    idle_sleep = 1
    gon = 5
    bal = 0
    lt0 = 2
    lt1 = 5
    early = 4
    look = 3
    cmask = 0
    catch0 = 4
    catch = 4
    etouch = 0
    dtouch = 1
    xwin = 3
    pfcode = 1
    flip = 2
    w2early = 1
    dpos = 4
    ltouch = 0
    pk = 1
    ctouch = 1
    wrot = 1
    direct = 1
    pst = -1
    pcyc = 0
    pxa = -1
    plat = 0
    pwg = 0
    pwave = 0
    probe = 0
    dbench = 0
    nodma = 0
    nobar = 0
    lb = 21
    tailprio = 0
    b2 = 26
    sw = 26
    chk = 3
    barp = 1
    arp = 1
    noprep = 0
    clrpos = 1
    xstart = 0
    xbar = 3
    pdelay = 1
    hold = 0
cfg = Cfg()

LDS_SIZE = 163840
XO = 0
WO = 8*7168
PS = WO + 96*528
P_W3 = PS; P_M3T = PS + 36864; P_D1 = PS + 38912; P_W1 = PS + 43520; P_Z = PS + 45568; P_DUM = PS + 45824
CO = LDS_SIZE - 512
IX2 = PS + 46080
assert P_DUM + 256 <= CO
C_PA, C_PB, C_XL, C_FLAG, C_GO, C_CL, C_PI = 0, 4, 8, 12, 16, 20, 24
RB = 7
BSZ = 13312
SLOT = BSZ + 8192
IDXO = RB*SLOT
assert IDXO + 8*1664 == LDS_SIZE
MBOX = 0; WS_W = 131072; BLK = 1664; WS_END = WS_W + 26*BLK; WS_STAMP = 1 << 20
S_IDX, S_TAB, S_W1, S_WCIN, S_WCO, S_B1, S_W2, S_WS = 4, 8, 12, 16, 20, 24, 28, 32
S_OUT, S_DBG, S_BOUT = 36, 38, 40
S_WAVE, S_RG, S_CP, S_FB, S_COL, S_W = 42, 43, 44, 45, 46, 47
S_PC, S_SPIN, S_X = 48, 50, 51
KA = 52
S_T = 52
S_ST = 70
V_C, V_ONE, V_POLL, V_L = 162, 163, 164, 165
FRM = "0x20000"

def f2h(x): return "0x%08x" % struct.unpack("<I", struct.pack("<f", x))[0]

def build():
    p = Prog()
    lab = [0]
    def L(n):
        lab[0] += 1
        return f"L_{n}_{lab[0]}"
    def stamp(i):
        if cfg.pst == i:
            p("s_memtime s[92:93]" if cfg.pcyc else "s_memrealtime s[92:93]")
            p.wait0(lg=True)
        if cfg.stamps and (cfg.stamps != 3 or i == 8):
            p(f"s_memrealtime s[68:69]" if cfg.stamps != 2 or i == 8 else "s_memtime s[68:69]")
            p.wait0(lg=True)
            if cfg.stamps != 2 or i == 8: p(f"s_mov_b32 s{S_ST+i}, s68")
            else:
                p("s_sub_u32 s68, s68, s100")
                p("s_lshr_b32 s68, s68, 4")
                p(f"s_add_u32 s{S_ST+i}, s68, s{S_ST}")
    def stamps_out():
        if cfg.pst >= 0:
            stamp(8)
            sk = L("npr"); lp = L("pr")
            p(f"s_cmp_lg_u32 s2, {cfg.pwg}")
            p(f"s_cbranch_scc1 {sk}")
            p(f"s_cmp_lg_u32 s{S_WAVE}, {cfg.pwave}")
            p(f"s_cbranch_scc1 {sk}")
            if cfg.pst == 0: p("s_mov_b32 s92, s96")
            if cfg.pxa >= 0:
                p("s_mov_b64 exec, -1")
                p("v_mov_b32 v1, 0")
                p(f"global_load_dword v2, v1, s[{S_DBG}:{S_DBG+1}] offset:8 sc1")
                p("s_waitcnt vmcnt(0)")
                p("v_readfirstlane_b32 s90, v2")
                p("s_cmp_lg_u32 s90, s91")
                p("s_cselect_b32 s90, 250, 0")
                p("s_add_u32 s92, s92, s90")
            if cfg.pcyc:
                p("s_sub_u32 s90, s92, s98")
                p("s_lshr_b32 s90, s90, 3")
            else:
                p("s_sub_u32 s90, s92, s96")
                p("s_mul_i32 s90, s90, 4")
            p("s_add_u32 s90, s90, 2000")
            p("s_min_u32 s90, s90, 20000")
            p("s_add_u32 s90, s90, s96")
            p.label(lp)
            p("s_sleep 1")
            p("s_memrealtime s[94:95]"); p("s_waitcnt lgkmcnt(0)")
            p("s_cmp_lt_u32 s94, s90")
            p(f"s_cbranch_scc1 {lp}")
            p.label(sk)
        if not cfg.stamps: return
        stamp(8)
        p("s_mov_b64 exec, 1")
        p(f"s_lshl4_add_u32 s{S_T}, s2, s{S_WAVE}")
        p(f"s_lshl_b32 s{S_T}, s{S_T}, 7")
        p(f"s_add_u32 s{S_T}, s{S_T}, {WS_STAMP}")
        p(f"v_mov_b32 v1, s{S_T}")
        p("s_memtime s[68:69]")
        p("s_waitcnt lgkmcnt(0)")
        p(f"s_sub_u32 s{S_ST+29}, s68, s100")
        for i in range(30):
            p(f"v_mov_b32 v2, s{S_ST+i}")
            p(f"global_store_dword v1, v2, s[{S_WS}:{S_WS+1}] offset:{4*i}")
    def arrive(*offs):
        p("s_mov_b64 exec, 1")
        for off in offs: p.lds(f"ds_add_u32 v{V_C}, v{V_ONE} offset:{off}", "arr")
        p("s_mov_b64 exec, -1")
    def poll_issue(off):
        p.lds(f"ds_read_b32 v{V_POLL}, v{V_C} offset:{off}", "poll")
    def check(off, target, issued=False, sleep=0):
        ok = L("ok"); sp = L("spin")
        if issued:
            p.wait(lg="poll")
            p(f"v_readfirstlane_b32 s{S_X}, v{V_POLL}")
            p(f"s_cmp_ge_u32 s{S_X}, {target}")
            p(f"s_cbranch_scc1 {ok}")
        p.label(sp)
        if sleep: p(f"s_sleep {sleep}")
        p(f"ds_read_b32 v{V_POLL}, v{V_C} offset:{off}")
        p("s_waitcnt lgkmcnt(0)")
        p(f"v_readfirstlane_b32 s{S_X}, v{V_POLL}")
        p(f"s_sub_u32 s{S_SPIN}, s{S_SPIN}, 1")
        p("s_cbranch_scc1 L_end")
        p(f"s_cmp_ge_u32 s{S_X}, {target}")
        p(f"s_cbranch_scc0 {sp}")
        if not issued: p.lg.clear()
        p.label(ok)
    def srd(s, ka, n):
        if ka is not None: p(f"s_mov_b64 s[{s}:{s+1}], s[{KA+ka}:{KA+ka+1}]")
        p(f"s_mov_b32 s{s+2}, {n}")
        p(f"s_mov_b32 s{s+3}, {FRM}")
    def touch(vaddr, soff, mask):
        p(f"s_mov_b64 exec, {mask}" if mask < (1 << 31) else f"s_mov_b32 exec_hi, {hex(mask >> 32)}")
        p(f"buffer_load_dword v250, v{vaddr}, s[{S_W1}:{S_W1+3}], s{soff} offen")
        p("s_mov_b64 exec, -1")

    def producer_index():
        p(f"s_lshr_b32 s{S_FB}, s2, 6")
        p(f"s_sub_u32 s{S_FB}, s{S_RG}, s{S_FB}")
        p(f"s_sub_u32 s{S_FB}, s{S_FB}, 1")
        p(f"s_and_b32 s{S_X}, s2, 0x37")
        p(f"s_sub_u32 s{S_X}, s{S_X}, 1")
        p(f"s_cmp_lt_u32 s{S_X}, 7")
        p(f"s_cselect_b32 s{S_FB}, s{S_FB}, 99")

    def last_marker(skip):
        p("v_lshlrev_b32 v2, 6, v0")
        p("s_waitcnt vmcnt(0)")
        stamp(12)
        p(f"v_readfirstlane_b32 s{S_X}, v27")
        p("s_mov_b64 exec, 3")
        p(f"s_cmp_lg_u32 s{S_X}, {26 + 32 - 1}")
        p(f"s_cbranch_scc1 {skip}")
        p(f"global_store_dword v2, v{V_ONE}, s[{S_DBG}:{S_DBG+1}] offset:128 sc1")

    p(f".globl {NAME}\n.p2align 8\n.type {NAME},@function")
    p.label(NAME)
    p(f"s_load_dwordx16 s[{KA}:{KA+15}], s[0:1], 0")
    p(f"s_load_dwordx4 s[{S_OUT}:{S_OUT+3}], s[0:1], 64")
    p(f"s_load_dwordx2 s[{S_WS}:{S_WS+1}], s[0:1], 80")
    if cfg.probe or cfg.pst >= 0: p("s_memrealtime s[96:97]")
    if cfg.pcyc: p("s_memtime s[98:99]")
    if cfg.stamps:
        p(f"s_memrealtime s[{S_ST}:{S_ST+1}]")
        p(f"s_memtime s[100:101]")
    p("v_lshrrev_b32 v1, 6, v0")
    p("v_and_b32 v0, 63, v0")
    p(f"v_readfirstlane_b32 s{S_WAVE}, v1")
    p("s_cmp_ge_u32 s2, 0x100")
    p("s_cbranch_scc1 L_end")
    p(f"s_and_b32 s3, s2, 7")
    p(f"s_lshr_b32 s{S_RG}, s2, 6")
    p(f"s_lshl3_add_u32 s{S_RG}, s{S_RG}, s3")
    p(f"s_bfe_u32 s{S_CP}, s2, 0x20004")
    p(f"v_lshlrev_b32 v{V_L}, 4, v0")
    p(f"v_lshlrev_b32 v160, 7, v0")
    srd(S_IDX, None, 4096*104)
    srd(S_W1, None, 832*1664)
    p("s_bitcmp1_b32 s2, 3")
    p("s_cbranch_scc1 L_cin")
    p(f"s_lshl3_add_u32 s3, s{S_RG}, s{S_WAVE}")
    p(f"s_mul_i32 s3, s3, 1664")
    p(f"s_mul_i32 s{S_W}, s{S_WAVE}, 1664")
    p(f"s_add_u32 m0, s{S_W}, {IDXO}")
    p(f"s_lshr_b32 s{S_X}, s2, 4")
    p(f"s_lshl3_add_u32 s{S_X}, s{S_X}, s{S_WAVE}")
    p(f"s_mul_i32 s{S_X}, s{S_X}, 2560")
    p.wait0(lg=True)
    p(f"s_mov_b64 s[{S_IDX}:{S_IDX+1}], s[{KA}:{KA+1}]")
    p(f"s_mov_b64 s[{S_W1}:{S_W1+1}], s[{KA+8}:{KA+9}]")
    for n in range(2):
        if n: p("s_mov_b32 exec_hi, 0xff")
        p.vmem(f"buffer_load_dwordx4 v{V_L}, s[{S_IDX}:{S_IDX+3}], s3 offen offset:{1024*n} lds", "idx")
    if not cfg.dtouch: p("s_mov_b32 exec_hi, -1")
    if cfg.dtouch:
        touch(160, S_X, 0xfffff); p.vm.issue("t")
    p("s_branch L_dnn")
    dnn_vm = list(p.vm.q)

    p.vm.clear(); p.lg.clear()
    p.label("L_cin")
    if cfg.dbench: p("s_endpgm")
    S_C = S_WAVE
    W3A, TBL, VV, AQ, VF, GA, MB, VT, CRAW = 28, 32, 40, 56, 72, 80, 96, 170, 152
    srd(S_WCO, None, 156)
    srd(S_WS, None, WS_END)
    p(f"s_mov_b32 s{S_SPIN}, 0x40000")
    p(f"v_lshlrev_b32 v{V_C}, 2, v0")
    p(f"v_add_u32 v{V_C}, {CO}, v{V_C}")
    p(f"v_mov_b32 v{V_ONE}, 1")
    p(f"s_cmp_ge_u32 s{S_WAVE}, 4")
    p("s_cbranch_scc1 L_xwave")
    srd(S_WCIN, None, 105456)
    producer_index()
    if cfg.noprep: p(f"s_mov_b32 s{S_FB}, 99")
    p(f"s_getpc_b64 s[{S_PC}:{S_PC+1}]")
    p.label("L_pc")
    p.wait0(lg=True)
    p(f"s_mov_b64 s[{S_WCIN}:{S_WCIN+1}], s[{KA+4}:{KA+5}]")
    p(f"s_mov_b64 s[{S_W1}:{S_W1+1}], s[{KA+8}:{KA+9}]")
    p(f"s_mov_b64 s[{S_WCO}:{S_WCO+1}], s[{KA+6}:{KA+7}]")
    p(f"s_mov_b64 s[{S_BOUT}:{S_BOUT+1}], s[{KA+14}:{KA+15}]")
    def cinit_loads():
        p(f"v_lshrrev_b32 v8, 5, v0")
        p(f"v_lshlrev_b32 v9, 3, v8")
        p(f"v_lshlrev_b32 v8, 1, v8")
        for a in range(3):
            p(f"buffer_load_dwordx2 v[{CRAW+2*a}:{CRAW+2*a+1}], v9, s[{S_WCO}:{S_WCO+3}], 0 offen offset:{16*a}")
        p(f"buffer_load_ushort v{CRAW+6}, v8, s[{S_WCO}:{S_WCO+3}], 0 offen offset:48")
        p(f"v_mov_b32 v8, 0")
        p(f"global_load_ushort v{CRAW+7}, v8, s[{S_BOUT}:{S_BOUT+1}]")
    p(f"s_and_b32 s{S_T}, s2, 0x37")
    p(f"s_cmp_eq_u32 s{S_T}, 0x21")
    p(f"s_cselect_b32 s{S_T+1}, 1, 0")
    p(f"s_cselect_b32 s{S_T}, 0x11, s{S_T}")
    p(f"s_sub_u32 s{S_T}, s{S_T}, 0x11")
    p(f"s_cmp_lt_u32 s{S_T}, 7")
    p(f"s_cselect_b32 s{S_T+3}, s{S_C}, 1")
    p(f"s_add_u32 s{S_T+3}, s{S_T+3}, 4")
    p(f"s_cmp_lg_u32 s{S_T+3}, 4")
    p("s_cbranch_scc1 L_nomc")
    for r in range(4): p(f"v_mov_b32 v{4+r}, -1")
    p(f"s_sub_u32 s{S_T}, s{S_RG}, s{S_T+1}")
    p(f"s_lshl_b32 s{S_T}, s{S_T}, 12")
    for u in range(4):
        p(f"buffer_store_dwordx4 v[4:7], v{V_L}, s[{S_WS}:{S_WS+3}], s{S_T} offen offset:{1024*u} sc1")
    p.label("L_nomc")
    p(f"s_cmp_ge_u32 s{S_FB}, 26")
    p("s_cbranch_scc1 L_cbar")
    if cfg.prio_prep: p(f"s_setprio {cfg.prio_prep}")
    p(f"s_mul_i32 s{S_T+2}, s{S_FB}, {BLK}")
    p(f"s_add_u32 s{S_T+2}, s{S_T+2}, {WS_W}")
    p(f"s_mul_i32 s{S_T}, s{S_C}, 9216")
    p(f"s_add_u32 s{S_T+1}, s{S_T}, 70304")
    p(f"s_add_u32 s{S_T}, s{S_T}, {P_W3}")
    for u in range(9):
        if u % 4 == 0:
            if u: p(f"s_add_u32 s{S_T+1}, s{S_T+1}, 0x1000")
            p(f"s_add_u32 m0, s{S_T}, {1024*u}")
            p("s_nop 0")
        p(f"buffer_load_dwordx4 v{V_L}, s[{S_WCIN}:{S_WCIN+3}], s{S_T+1} offen offset:{1024*(u % 4)} lds")
    p("v_and_b32 v2, 0x30, v0")
    p("v_bfe_u32 v1, v0, 2, 2")
    for q in range(4):
        p(f"v_xor_b32 v3, {q}, v1")
        p("v_lshl_add_u32 v3, v3, 28, v2")
        p(f"buffer_load_dwordx4 v[{AQ+4*q}:{AQ+4*q+3}], v3, s[{S_WCO}:{S_WCO+3}], 0 offen offset:104")
    p(f"s_cmp_ge_u32 s{S_C}, 2")
    p("s_cbranch_scc1 L_p23")
    p(f"s_lshl_b32 s{S_T}, s{S_C}, 11")
    p(f"s_add_u32 s{S_T}, s{S_T}, gather_table-L_pc")
    p(f"v_lshl_add_u32 v1, v0, 5, s{S_T}")
    p(f"global_load_dwordx4 v[{TBL}:{TBL+3}], v1, s[{S_PC}:{S_PC+1}]")
    p(f"global_load_dwordx4 v[{TBL+4}:{TBL+7}], v1, s[{S_PC}:{S_PC+1}] offset:16")
    p(f"s_cmp_lg_u32 s{S_C}, 0")
    p("s_cbranch_scc1 L_p1")
    p("v_lshrrev_b32 v3, 5, v0")
    p("v_mul_u32_u24 v3, 0x2a40, v3")
    p("v_and_b32 v2, 31, v0")
    p("v_lshl_add_u32 v3, v2, 1, v3")
    p(f"s_mul_i32 s{S_T}, s{S_FB}, 52")
    p(f"s_add_u32 s{S_T}, s{S_T}, 35152")
    for u in range(16):
        if u and u % 4 == 0:
            p(f"s_add_u32 s{S_T}, s{S_T}, {(4 if u != 8 else 12)*1352}")
        p(f"buffer_load_ushort v{VV+u}, v3, s[{S_WCIN}:{S_WCIN+3}], s{S_T} offen offset:{1352*(u % 4)}")
    p("s_branch L_pz")
    p.label("L_p1")
    p(f"s_mul_i32 s{S_T}, s{S_FB}, 1352")
    p(f"s_mov_b32 m0, {P_W1}")
    p("s_nop 0")
    for u in range(2):
        p(f"buffer_load_dwordx4 v{V_L}, s[{S_WCIN}:{S_WCIN+3}], s{S_T} offen offset:{1024*u} lds")
    p("s_branch L_pz")
    p.label("L_p23")
    p(f"s_cmp_lg_u32 s{S_C}, 3")
    p("s_cbranch_scc1 L_pz")
    p("v_lshlrev_b32 v1, 2, v0")
    p(f"buffer_load_dword v27, v1, s[{S_WCO}:{S_WCO+3}], 0 offen offset:52")
    p.label("L_pz")
    p("v_mov_b32 v2, 0")
    p("v_mov_b32 v3, 0")
    p(f"s_lshl_b32 s{S_T}, s{S_C}, 9")
    p(f"s_add_u32 s{S_T}, s{S_T}, {P_M3T}")
    p(f"v_lshl_add_u32 v1, v0, 3, s{S_T}")
    p("ds_write_b64 v1, v[2:3]")
    p(f"v_add_u32 v1, {P_Z - CO}, v{V_C}")
    p("ds_write_b32 v1, v2")
    p.label("L_cbar")
    if cfg.pfcode:
        sk = L("nopf")
        p(f"s_cmp_lg_u32 s{S_C}, 2")
        p(f"s_cbranch_scc1 {sk}")
        p(f"s_lshr_b32 s{S_T}, s2, 4")
        p(f"s_mul_i32 s{S_T}, s{S_T}, 2560")
        p(f"v_add_u32 v2, s{S_T}, v160")
        p(f"v_min_u32 v2, gather_table-L_pc+4092, v2")
        p("s_mov_b64 exec, 0xfffff")
        p(f"global_load_dword v161, v2, s[{S_PC}:{S_PC+1}]")
        p("s_mov_b64 exec, -1")
        p.label(sk)
    p("v_mov_b32 v2, 0")
    p(f"ds_write_b32 v{V_C}, v2")
    p.wait0(lg=True)
    p("s_barrier")
    stamp(1)
    p(f"s_cmp_lt_u32 s{S_FB}, 26")
    p("s_cbranch_scc1 L_prep")
    cinit_loads()
    p("s_waitcnt vmcnt(0)")
    stamp(13)
    p(f"s_cmp_lg_u32 s{S_T+3}, 4")
    p("s_cbranch_scc1 L_setup")
    p("v_mov_b32 v4, 0")
    p("s_mov_b64 exec, 1")
    p(f"global_atomic_add v27, v4, v{V_ONE}, s[{S_DBG}:{S_DBG+1}] sc0 sc1")
    p("s_mov_b64 exec, -1")
    last_marker("L_mx")
    p.label("L_mx")
    p("s_mov_b64 exec, -1")
    p("s_branch L_setup")
    p.label("L_prep")
    p("v_bfe_u32 v1, v0, 2, 2")
    p("v_lshrrev_b32 v4, 4, v0")
    p("v_lshl_add_u32 v4, v4, 3, v1")
    p("v_add_u32 v5, 4, v4")
    p("v_min_u32 v4, 25, v4")
    p("v_min_u32 v5, 25, v5")
    p("v_and_b32 v6, 3, v0")
    p(f"s_mul_i32 s{S_T}, s{S_C}, 384")
    p(f"s_add_u32 s{S_T}, s{S_T}, {P_W3}")
    p(f"v_lshl_add_u32 v6, v6, 3, s{S_T}")
    p(f"s_movk_i32 s{S_T+1}, 1352")
    p(f"v_mad_u32_u24 v2, v4, s{S_T+1}, v6")
    p(f"v_mad_u32_u24 v3, v5, s{S_T+1}, v6")
    p(f"s_mul_i32 s{S_T}, s{S_C}, 192")
    p(f"s_movk_i32 s{S_T+1}, -1662")
    p(f"v_mov_b32 v7, {P_DUM}")
    for u in range(3):
        p(f"v_add_u32 v4, s{S_T}, v0")
        if u < 2: p(f"s_add_u32 s{S_T}, s{S_T}, 64")
        p("v_mul_u32_u24 v5, 2521, v4")
        p("v_lshrrev_b32 v5, 16, v5")
        p("v_cmp_gt_u32 vcc, 0x2a4, v4")
        p("v_lshlrev_b32 v4, 6, v4")
        p(f"v_mad_i32_i24 v4, v5, s{S_T+1}, v4")
        p(f"v_add_u32 v4, {P_M3T}, v4")
        p(f"v_cndmask_b32 v{8+u}, v7, v4, vcc")
    p("v_and_b32 v5, 31, v0")
    p("v_lshrrev_b32 v4, 5, v0")
    p("v_lshlrev_b32 v6, 6, v5")
    p("v_lshl_add_u32 v6, v4, 4, v6")
    p(f"v_add_u32 v28, {P_M3T}, v6")
    p("v_mul_u32_u24 v5, 0x90, v5")
    p("v_lshl_add_u32 v5, v4, 4, v5")
    p(f"v_add_u32 v29, {P_D1}, v5")
    p("v_lshrrev_b32 v1, 1, v0")
    p("v_lshl_add_u32 v4, v1, 1, 1")
    p("v_add_u32 v5, 22, v1")
    p("v_min_u32 v4, v5, v4")
    p("v_lshlrev_b32 v5, 1, v1")
    p(f"s_cmp_eq_u32 s{S_C}, 0")
    p("s_cselect_b64 vcc, -1, 0")
    p("v_and_b32 v6, 1, v0")
    p(f"v_mov_b32 v11, {PS}")
    p("v_cndmask_b32 v4, v5, v4, vcc")
    p("v_lshl_add_u32 v4, v4, 1, v6")
    p("v_lshlrev_b32 v30, 4, v4")
    p(f"v_add_u32 v4, {P_M3T + 26*64 - CO}, v{V_C}")
    p(f"s_cmp_lg_u32 s{S_C}, 3")
    p.wait0(vm=True)
    p("s_cbranch_scc1 L_w1")
    p("s_mov_b64 exec, 0x1fff")
    p("ds_write_b32 v4, v27")
    p("s_mov_b64 exec, -1")
    p.label("L_w1")
    stamp(10)
    p("s_barrier")
    extra = []
    for u in range(8):
        extra.append(f"v_add_u32_sdwa v{GA+2*u}, v11, v{TBL+u} dst_sel:DWORD dst_unused:UNUSED_PAD src0_sel:DWORD src1_sel:WORD_0")
        extra.append(f"v_add_u32_sdwa v{GA+2*u+1}, v11, v{TBL+u} dst_sel:DWORD dst_unused:UNUSED_PAD src0_sel:DWORD src1_sel:WORD_1")
    for u in range(8): extra.append(f"v_lshl_or_b32 v{VF+u}, v{VV+2*u+1}, 16, v{VV+2*u}")
    def m3_mfma(U):
        u, q = divmod(U, 4)
        p.wait(lg=f"m{U}")
        cc = "0" if q == 0 else f"v[{12+4*u}:{15+4*u}]"
        p(f"v_mfma_f32_16x16x32_bf16 v[{12+4*u}:{15+4*u}], v[{AQ+4*q}:{AQ+4*q+3}], v[{MB+4*U}:{MB+4*U+3}], {cc}")
    for T in range(12):
        p.lds(f"ds_read_b64_tr_b16 v[{MB+4*T}:{MB+4*T+1}], v2 offset:{32*T}", f"m{T}")
        p.lds(f"ds_read_b64_tr_b16 v[{MB+4*T+2}:{MB+4*T+3}], v3 offset:{32*T}", f"m{T}")
        if T == 5:
            for _ in range(8): p(extra.pop(0))
        if T >= 6: m3_mfma(T - 6)
    for U in range(6, 12):
        m3_mfma(U)
        if U == 8:
            p("v_cvt_pk_bf16_f32 v24, v12, v12")
            p("ds_write_b16 v8, v24")
        else:
            for _ in range(2): p(extra.pop(0))
    p("v_cvt_pk_bf16_f32 v25, v16, v16")
    p("ds_write_b16 v9, v25")
    while extra: p(extra.pop(0))
    p(f"v_cvt_pk_bf16_f32 v26, v20, v20")
    p(f"ds_write_b16 v10, v26")
    p.wait0(lg=True)
    p("s_barrier")
    stamp(11)
    p(f"s_cmp_eq_u32 s{S_C}, 0")
    p("s_cbranch_scc1 L_pT")
    p(f"s_cmp_lg_u32 s{S_C}, 1")
    p("s_cbranch_scc1 L_pdone")
    for u in range(16): p(f"v_mov_b32 v{MB+16+u}, 0")
    for u in range(16): p(f"ds_read_u16_d16_hi v{MB+16+u}, v{GA+u}")
    p("s_mov_b32 exec_hi, 0xfff")
    p("s_branch L_pst")
    p.label("L_pT")
    p("ds_read_b128 v[12:15], v28")
    p("ds_read_b128 v[16:19], v28 offset:32")
    p("s_waitcnt lgkmcnt(1)")
    p(f"v_mfma_f32_32x32x16_bf16 v[{MB}:{MB+15}], v[{VF}:{VF+3}], v[12:15], 0")
    p("s_waitcnt lgkmcnt(0)")
    p(f"v_mfma_f32_32x32x16_bf16 v[{MB}:{MB+15}], v[{VF+4}:{VF+7}], v[16:19], v[{MB}:{MB+15}]")
    p("s_nop 11")
    for a in range(4): p(f"ds_write_b128 v29, v[{MB+4*a}:{MB+4*a+3}] offset:{32*a}")
    for u in range(16): p(f"ds_read_b32 v{MB+16+u}, v{GA+u}")
    p("s_mov_b32 exec_hi, 0xffff")
    p.label("L_pst")
    for e in range(8):
        if e % 2 == 0: p(f"s_waitcnt lgkmcnt({12 - 2*e})")
        p(f"v_add_f32 v{MB+16+2*e}, v{MB+16+2*e}, v{MB+16+2*e+1}")
        if e % 2:
            p(f"v_cvt_pk_bf16_f32 v{4+e//2}, v{MB+14+2*e}, v{MB+16+2*e}")
            p(f"v_min_u32 v{4+e//2}, -2, v{4+e//2}")
    p(f"buffer_store_dwordx4 v[4:7], v30, s[{S_WS}:{S_WS+3}], s{S_T+2} offen sc1")
    p(f"v_mov_b32 v8, s{S_C}")
    p("v_lshlrev_b32 v8, 2, v8")
    p("s_mov_b64 exec, 1")
    p(f"buffer_store_dword v{V_ONE}, v8, s[{S_WS}:{S_WS+3}], s{S_T+2} offen offset:1536 sc1")
    p.label("L_pdx")
    p("s_mov_b64 exec, -1")
    p.label("L_pdone")
    stamp(21)
    cinit_loads()
    p("s_waitcnt vmcnt(0)")
    p("s_branch L_setup")
    p.label("L_xwave")
    S_J, S_XA, S_XB, S_XM, S_TB = S_W, S_T+2, S_T+3, S_T+4, S_T+5
    p(f"s_sub_u32 s{S_J}, s{S_WAVE}, 4")
    p(f"s_lshl3_add_u32 s3, s{S_RG}, s{S_CP}")
    p(f"s_lshr_b32 s{S_FB}, s{S_J}, 1")
    p(f"s_lshl2_add_u32 s3, s{S_FB}, s3")
    p(f"s_mul_i32 s3, s3, 1664")
    p(f"s_and_b32 s{S_X}, s{S_J}, 1")
    p(f"s_mul_i32 s{S_X}, s{S_X}, 832")
    p(f"s_add_u32 s3, s3, s{S_X}")
    p(f"s_mul_i32 s{S_X}, s{S_J}, 832")
    p(f"s_add_u32 m0, s{S_X}, {IX2}")
    p(f"s_lshr_b32 s{S_X}, s2, 6")
    p(f"s_mul_i32 s{S_X}, s{S_X}, 3")
    p(f"s_add_u32 s{S_X}, s{S_X}, s{S_CP}")
    p(f"s_lshl2_add_u32 s{S_X}, s{S_X}, s{S_J}")
    p(f"s_mul_i32 s{S_X}, s{S_X}, {52*128}")
    p(f"s_add_u32 s{S_X}, s{S_X}, {(2496 - 4*52)*128}")
    p.wait0(lg=True)
    p(f"s_mov_b64 s[{S_IDX}:{S_IDX+1}], s[{KA}:{KA+1}]")
    p(f"s_mov_b64 s[{S_W1}:{S_W1+1}], s[{KA+8}:{KA+9}]")
    p("s_mov_b32 exec_hi, 0xfffff")
    p(f"buffer_load_dwordx4 v{V_L}, s[{S_IDX}:{S_IDX+3}], s3 offen lds")
    p("s_mov_b32 exec_hi, -1")
    p(f"s_mov_b64 s[{S_WCO}:{S_WCO+1}], s[{KA+6}:{KA+7}]")
    p(f"s_mov_b64 s[{S_BOUT}:{S_BOUT+1}], s[{KA+14}:{KA+15}]")
    srd(S_TAB, 2, 6400000)
    if cfg.etouch:
        p(f"s_cmp_eq_u32 s{S_CP}, 0")
        p("s_cbranch_scc1 L_noet")
        touch(160, S_X, (1 << 52) - 1)
        p("s_waitcnt vmcnt(1)")
        p.label("L_noet")
    p("v_lshrrev_b32 v1, 4, v0")
    p("v_and_b32 v2, 12, v0")
    p(f"s_mul_i32 s3, s{S_J}, 104")
    p(f"s_add_u32 s3, s3, {IX2}")
    p(f"v_add_u32 v2, s3, v2")
    p(f"s_movk_i32 s{S_X}, 416")
    p(f"v_mad_u32_u24 v3, v1, s{S_X}, v2")
    if cfg.bal:
        p(f"s_cmp_eq_u32 s{S_J}, 3")
        p(f"s_cselect_b32 s{S_X}, 104, 312")
        p(f"s_cselect_b32 s3, {13*104}, {20*104}")
        p(f"v_add_u32 v2, s3, v2")
        p(f"v_mad_u32_u24 v4, v1, s{S_X}, v2")
    else: p("v_add_u32 v4, 0x680, v3")
    p("v_and_b32 v1, 3, v0")
    p("v_lshlrev_b32 v5, 4, v1")
    p("v_bfe_u32 v1, v0, 3, 1")
    p("v_lshl_add_u32 v6, v1, 30, v5")
    p(f"s_mul_i32 s{S_XM}, s{S_J}, 7168")
    p(f"s_lshr_b32 s{S_TB}, s2, 4")
    p(f"s_lshl2_add_u32 s{S_TB}, s{S_TB}, s{S_J}")
    p(f"s_mul_i32 s{S_TB}, s{S_TB}, {46*128}")
    p(f"s_add_u32 s{S_TB}, s{S_TB}, {4992*128}")
    assert not cfg.etouch
    producer_index()
    S_PR = S_T + 6
    p(f"s_cmp_eq_u32 s{S_J}, 0")
    p(f"s_cselect_b32 s{S_PR}, s{S_FB}, 99")
    p(f"s_cmp_ge_u32 s{S_PR}, 26")
    p("s_cbranch_scc1 L_noclr")
    for r in range(4): p(f"v_mov_b32 v{12+r}, -1")
    p(f"s_mul_i32 s{S_T}, s{S_FB}, {BLK}")
    p(f"s_add_u32 s{S_T}, s{S_T}, {WS_W}")
    p(f"buffer_store_dwordx4 v[12:15], v{V_L}, s[{S_WS}:{S_WS+3}], s{S_T} offen sc1")
    p("s_mov_b32 exec_hi, 0xff")
    p(f"buffer_store_dwordx4 v[12:15], v{V_L}, s[{S_WS}:{S_WS+3}], s{S_T} offen offset:1024 sc1")
    p("s_mov_b32 exec_hi, -1")
    p("s_waitcnt vmcnt(2)")
    p("s_branch L_clr")
    p.label("L_noclr")
    p("s_waitcnt vmcnt(0)")
    p.label("L_clr")
    p("s_barrier")
    for u in range(2):
        for Q in range(0, 6, 2): p(f"ds_read2_b32 v[{VT+7*u+u+Q}:{VT+7*u+u+Q+1}], v{3+u} offset0:{4*Q} offset1:{4*Q+4}")
        p(f"ds_read_b32 v{VT+8*u+6}, v{3+u} offset:96")
    stamp(1)
    p.vm.clear()
    assert cfg.xwin < 14
    p.wait0(lg=True)
    go_done = False
    for Q in range(7):
        for u in range(2):
            n = 2*Q + u
            if n == cfg.xbar and not cfg.noprep:
                p(f"s_cmp_ge_u32 s{S_FB}, 26")
                p("s_cbranch_scc1 L_nobar")
                p("s_barrier")
                p(f"s_waitcnt vmcnt({n})")
                p(f"s_cmp_ge_u32 s{S_PR}, 26")
                p("s_cbranch_scc1 L_noat")
                p("v_mov_b32 v12, 0")
                p("s_mov_b64 exec, 1")
                p(f"global_atomic_add v27, v12, v{V_ONE}, s[{S_DBG}:{S_DBG+1}] sc0 sc1")
                p("s_mov_b64 exec, -1")
                p.label("L_noat")
                p("s_barrier")
                p(f"s_cmp_ge_u32 s{S_PR}, 26")
                p("s_cbranch_scc1 L_nobar")
                last_marker("L_lm")
                p.label("L_lm")
                p("s_mov_b64 exec, -1")
                p.label("L_nobar")
            if n == cfg.xstart and n: p.wait(vm="x0")
            if n >= cfg.xwin:
                p.wait(vm=f"x{n - cfg.xwin}")
                if n - cfg.xwin == 2*cfg.gon + 1: arrive(C_GO); go_done = True
            p(f"s_add_u32 m0, s{S_XM}, {XO + 4*7168*u + 1024*Q}")
            p(f"v_lshl_add_u32 v{VT+8*u+Q}, v{VT+8*u+Q}, 6, v{6 if Q == 6 else 5}")
            p.vmem(f"buffer_load_dwordx4 v{VT+8*u+Q}, s[{S_TAB}:{S_TAB+3}], 0 offen lds", f"x{n}")
        for u, at in enumerate((cfg.lt0, cfg.lt1)):
            if at == Q and cfg.ltouch:
                touch(160, S_TB, (1 << 46) - 1); p.vm.issue("t")
                p(f"s_add_u32 s{S_TB}, s{S_TB}, {2944*128}")
    def late_touch():
        touch(160, S_TB, (1 << 46) - 1); p.vm.issue("t")
        p(f"s_add_u32 s{S_TB}, s{S_TB}, {2944*128}")
    cinit_loads()
    for _ in range(5): p.vm.issue("ci")
    if not go_done:
        p.wait(vm=f"x{2*cfg.gon+1}")
        arrive(C_GO)
    p.wait(vm="x13")
    arrive(C_XL)
    p.wait(vm="ci")
    for at in (cfg.lt0, cfg.lt1):
        if at == 7 and cfg.ltouch: late_touch()
    if cfg.ltouch and cfg.lt1 == 8: p(f"s_mov_b32 s{S_FB}, s{S_TB}")
    stamp(6)

    p.label("L_setup")
    if cfg.stamps: p(f"s_mov_b32 s{S_ST+27}, 0")
    p(f"s_setprio {cfg.prio_prep}")
    p.vm.clear(); p.lg.clear()
    AX, AT, CI, X0 = 0, 16, 32, 48
    Z = [74, 78]; PT = 82; ZL = 90
    XA = {1: 98, -3: 99, -1: 100}; WA = 101; SM = [102, 103, 104, 105]; MBX = 106; VMB = 110; VBO = 111
    RING = 112; RES = RING + 4*cfg.R
    WT = 112
    assert RES + 4*cfg.NRES <= 256
    NR = 4
    S_N, S_MB, S_O = S_T+7, S_T+9, S_T+11
    S_NR = S_T + 12
    p(f"s_and_b32 s{S_T+3}, s{S_WAVE}, 3")
    p(f"s_lshl_b32 s{S_T+2}, s{S_T+3}, 2")
    p(f"s_lshl_b32 s{S_T}, s{S_T+3}, 8")
    p(f"s_mov_b32 s{S_N}, 4")
    p(f"s_add_u32 s{S_T+2}, s{S_T+2}, 3")
    p(f"s_cmp_lt_u32 s{S_WAVE}, 4")
    p("s_cbranch_scc1 L_rowp")
    p(f"s_add_u32 s{S_T}, s{S_T}, {4*7168}")
    if cfg.bal:
        p(f"s_mov_b32 s{S_N}, 3")
        p(f"s_mul_i32 s{S_T+2}, s{S_T+3}, 3")
        p(f"s_add_u32 s{S_T+2}, s{S_T+2}, 70")
    else: p(f"s_add_u32 s{S_T+2}, s{S_T+2}, 64")
    p.label("L_rowp")
    p(f"s_lshl4_add_u32 s{S_T+2}, s{S_CP}, s{S_T+2}")
    p.label("L_setup2")
    p(f"s_mov_b32 s{S_NR}, s{S_N}")
    p("v_and_b32 v1, 31, v0")
    p("v_lshrrev_b32 v2, 5, v0")
    p(f"v_lshl_add_u32 v3, v1, 1, s{S_T}")
    p(f"v_lshl_add_u32 v{XA[1]}, v2, 6, v3")
    p("v_mul_u32_u24 v4, 0xc0, v2")
    p(f"v_sub_u32 v{XA[-3]}, v3, v4")
    p("v_lshlrev_b32 v4, 6, v2")
    p(f"v_sub_u32 v{XA[-1]}, v3, v4")
    p("v_mul_u32_u24 v4, 0x210, v2")
    p("v_lshl_add_u32 v4, v1, 4, v4")
    p(f"v_add_u32 v{WA}, {WO}, v4")
    for r in range(26): p(f"v_mov_b32 v{X0+r}, 0")
    for a in range(3):
        for h in range(2):
            p(f"v_lshlrev_b32 v{CI+4*a+2*h}, 16, v{CRAW+2*a+h}")
            p(f"v_and_b32 v{CI+4*a+2*h+1}, 0xffff0000, v{CRAW+2*a+h}")
    p(f"v_lshlrev_b32 v{CI+12}, 16, v{CRAW+6}")
    for r in range(13, 16): p(f"v_mov_b32 v{CI+r}, 0")
    p(f"v_lshlrev_b32 v{VBO}, 16, v{CRAW+7}")
    p("v_lshrrev_b32 v1, 3, v0")
    p("v_min_u32 v3, 1, v1")
    p("v_lshlrev_b32 v2, 9, v0")
    p(f"v_lshl_add_u32 v{VMB}, v3, 30, v2")
    p(f"s_lshl_b32 s{S_T+1}, s{S_RG}, 7")
    p(f"s_add_u32 s{S_T+1}, s{S_T+1}, s{S_T+2}")
    p(f"s_lshl_b32 s{S_O}, s{S_T+1}, 1")
    p(f"s_lshl_b32 s{S_T}, s{S_RG}, 10")
    p(f"s_add_u32 s{S_MB}, s{S_T+2}, s{S_T}")
    p(f"s_sub_u32 s{S_MB}, s{S_MB}, 3")
    p(f"s_lshl_b32 s{S_MB}, s{S_MB}, 2")
    p(f"v_mov_b32 v{ZL+7}, 0")
    p(f"s_cmp_ge_u32 s{S_WAVE}, 4")
    p("s_cbranch_scc1 L_xz")
    p("v_and_b32 v2, 7, v0")
    p(f"v_mul_u32_u24 v3, {BLK}, v1")
    p("v_lshl_add_u32 v3, v2, 4, v3")
    p("v_mul_u32_u24 v4, 0x210, v2")
    p(f"s_mul_i32 s{S_T}, s{S_C}, {24*528}")
    p(f"s_add_u32 s{S_T}, s{S_T}, {WO}")
    p(f"v_add_u32 v4, s{S_T}, v4")
    p("v_lshl_add_u32 v5, v1, 4, v4")
    p("v_cmp_eq_u32 vcc, 1, v1")
    p("v_add_u32 v6, 48, v5")
    p("v_subrev_u32 v7, 48, v5")
    p("v_cndmask_b32 v6, v5, v6, vcc")
    p("v_cmp_eq_u32 vcc, 4, v1")
    p(f"s_cmp_eq_u32 s{S_C}, 3")
    p(f"s_cselect_b32 s{S_T+1}, 4, 0")
    p("v_cndmask_b32 v6, v6, v7, vcc")
    p(f"v_and_b32 v7, s{S_T+1}, v2")
    p("v_lshl_add_u32 v7, v7, 28, v3")
    p("v_and_b32 v8, 31, v0")
    p("v_lshrrev_b32 v9, 5, v0")
    p(f"v_mul_u32_u24 v8, {BLK}, v8")
    p("v_lshl_add_u32 v8, v9, 2, v8")
    p(f"s_mul_i32 s{S_T}, s{S_C}, 384")
    p(f"s_add_u32 s{S_T}, s{S_T}, {WS_W}")
    p(f"s_and_b32 s{S_T+1}, s{S_CP}, {1 if cfg.wrot else 0}")
    p(f"s_mul_i32 s{S_T+2}, s{S_T+1}, 26624")
    for k in range(4):
        p(f"s_xor_b32 s{S_T+3+k}, s{S_T+2}, {26624*(k >> 1)}")
        p(f"s_add_u32 s{S_T+3+k}, s{S_T+3+k}, s{S_T}")
        if k & 1: p(f"s_add_u32 s{S_T+3+k}, s{S_T+3+k}, 13312")
    p(f"s_lshl_b32 s{S_T+2}, s{S_T+1}, 8")
    p(f"s_cmp_eq_u32 s{S_T+1}, 0")
    p("s_cselect_b64 vcc, -1, 0")
    p(f"v_add_u32 v12, s{S_T+2}, v5")
    p(f"s_xor_b32 s{S_T+2}, s{S_T+2}, 0x100")
    p("v_add_u32 v6, 0x180, v6")
    p("v_add_u32 v15, 0x80, v5")
    p(f"v_add_u32 v14, s{S_T+2}, v5")
    p("v_cndmask_b32 v13, v6, v15, vcc")
    p("v_cndmask_b32 v15, v15, v6, vcc")
    p("v_mov_b32 v10, 0")
    check(C_GO, 4, sleep=2)
    stamp(22)
    p(f"s_mov_b32 s{S_T+13}, {WS_W}")
    if cfg.noprep: p("s_branch L_wload")
    if cfg.direct:
        p(f"s_load_dword s{S_X}, s[{S_DBG}:{S_DBG+1}], 192")
        p("s_waitcnt lgkmcnt(0)")
        p(f"s_cmp_lg_u32 s{S_X}, 0")
        p("s_cbranch_scc1 L_wload")
        if cfg.stamps: p(f"s_add_u32 s{S_ST+27}, s{S_ST+27}, 100")
    p(f"s_cmp_lg_u32 s{S_C}, 0")
    p("s_cbranch_scc1 L_pw")
    p.label("L_probe")
    p(f"global_load_dword v11, v10, s[{S_DBG}:{S_DBG+1}] offset:128 sc1")
    p(f"buffer_load_dword v9, v8, s[{S_WS}:{S_WS+3}], s{S_T+13} offen offset:1536 sc1")
    p("s_waitcnt vmcnt(0)")
    p("v_add_u32 v11, -1, v11")
    p("v_max_u32 v9, v9, v11")
    p("v_cmp_eq_u32 vcc, -1, v9")
    p("s_nop 1")
    p("s_cmp_eq_u64 vcc, 0")
    p("s_cbranch_scc1 L_wload")
    p.label("L_retry")
    if cfg.stamps: p(f"s_add_u32 s{S_ST+27}, s{S_ST+27}, 1")
    p(f"s_sleep {cfg.poll_sleep}")
    p(f"s_sub_u32 s{S_SPIN}, s{S_SPIN}, 1")
    p("s_cbranch_scc0 L_probe")
    p("s_endpgm")
    p.label("L_pw")
    check(C_FLAG, 1, sleep=2)
    p("s_branch L_wl2")
    p.label("L_wload")
    arrive(C_FLAG)
    p.label("L_wl2")
    stamp(2)
    for J in range(4):
        for Fi in range(3):
            r = WT + 4*(3*J + Fi)
            p.vmem(f"buffer_load_dwordx4 v[{r}:{r+3}], v{7 if Fi == 2 else 3}, s[{S_WS}:{S_WS+3}], s{S_T+3+J} offen offset:{128*Fi} sc1", f"w{J}{Fi}")
    first = True
    for J in range(4):
        for Fi in range(3):
            r = WT + 4*(3*J + Fi)
            p.wait(vm=f"w{J}{Fi}")
            p(f"ds_write_b128 v{12+J}, v[{r}:{r+3}] offset:{4224*Fi}")
            if first: p(f"v_max_u32 v9, v{r}, v{r+1}")
            else: p(f"v_max3_u32 v9, v{r}, v{r+1}, v9")
            p(f"v_max3_u32 v9, v{r+2}, v{r+3}, v9")
            first = False
    p("v_cmp_eq_u32 vcc, -1, v9")
    p("s_nop 1")
    p("s_cmp_eq_u64 vcc, 0")
    p("s_cbranch_scc0 L_retry")
    p.label("L_xz")
    check(C_XL, 4, sleep=cfg.idle_sleep)
    def x_read(r):
        p.lds(f"ds_read_u16_d16_hi v{X0+r}, v{XA[pi(r)-r]} offset:{1024*(r >> 2) + 64*(r & 3)}", f"x{r}")
    for r in range(26): x_read(r)
    def z_ops(n):
        ops = []
        for e in range(4):
            t = PT + 2*(e % 4)
            (a, b), (c, d) = S[8*n + 2*e], S[8*n + 2*e + 1]
            ops.append(("v", f"v_mul_f32 v{t}, v{X0+a}, v{X0+b}", (a, b)))
            ops.append(("v", f"v_mul_f32 v{t+1}, v{X0+c}, v{X0+d}", (c, d)))
        cv = [("v", f"v_cvt_pk_bf16_f32 v{Z[n % 2]+e}, v{PT+2*e}, v{PT+2*e+1}", ()) for e in range(4)]
        return ops[0:4] + cv[0:1] + ops[4:6] + cv[1:2] + ops[6:8] + cv[2:4]
    for o in z_ops(0):
        p.wait(lg=tuple(f"x{r}" for r in o[2]))
        p(o[1])
    for d in XA.values(): p(f"v_add_u32 v{d}, 0x1c00, v{d}")
    p.wait0(lg=True)
    p("s_barrier")
    if cfg.ltouch and cfg.lt1 == 8:
        p(f"s_cmp_lt_u32 s{S_WAVE}, 4")
        p("s_cbranch_scc1 L_go")
        touch(160, S_FB, (1 << 46) - 1)
    p.label("L_go")
    p("s_setprio 0")
    if cfg.flip:
        p(f"s_cmp_lt_u32 s{S_WAVE}, 4")
        p("s_cbranch_scc1 L_prio")
        p(f"s_setprio 1")
        p.label("L_prio")
    stamp(3)
    order = []
    for n in range(22):
        order.append(("X", n)); order.append(("T", n))
        if n == 14: order.append(("T", 22))
        if n == 18: order.append(("T", 23))
    fr_of = lambda k, n: (2*n if k == "X" else 2*n + 1) if n < 22 else n + 22
    nn = 46 - cfg.NRES
    assert nn % cfg.R == 0
    nonres = [int((u + 0.5)*46/nn) for u in range(nn)]
    wreg = {}; rr = 0
    for k in range(46):
        if k in nonres: wreg[k] = RING + 4*(nonres.index(k) % cfg.R)
        else: wreg[k] = RES + 4*rr; rr += 1
    def w_read(k):
        p.lds(f"ds_read_b128 v[{wreg[k]}:{wreg[k]+3}], v{WA} offset:{1056*fr_of(*order[k])}", f"w{k}")
    for k in range(46):
        if k not in nonres or nonres.index(k) < cfg.R: w_read(k)
    p.wait0(lg=True)
    stamp(5)
    def mfma(k):
        kind, n = order[k]
        zb = Z[n % 2] if n < 22 else ZL + 4*(n - 22)
        acc = AX if kind == "X" else AT
        cc = f"v[{acc}:{acc+15}]"
        if n == 0: cc = "0" if kind == "X" else f"v[{CI}:{CI+15}]"
        return f"v_mfma_f32_32x32x16_bf16 v[{acc}:{acc+15}], v[{wreg[k]}:{wreg[k]+3}], v[{zb}:{zb+3}], {cc}"
    lin_ops = []
    for u in range(8):
        a = LIN[min(2*u, 12)]; b = LIN[min(2*u + 1, 12)]
        lin_ops.append(("v", f"v_cvt_pk_bf16_f32 v{ZL+u}, v{X0+a}, v{X0+b}", (a, b)))
    def body(emit_mb):
        groups = [z_ops(n) for n in range(1, 22)] + [z_ops(0)]
        groups[10] = lin_ops[:7] + groups[10]
        flat = [(g, o) for g, ops in enumerate(groups) for o in ops]
        lastuse = {}
        for i, (g, o) in enumerate(flat):
            if g < 21:
                for r in o[2]: lastuse[r] = i
        for r in range(26): lastuse.setdefault(r, -1)
        for g, ops in enumerate(groups):
            mf = [kk for kk in range(46) if order[kk] in (("X", g), ("T", g))]
            if g == 14: mf.append(order.index(("T", 22)))
            if g == 18: mf.append(order.index(("T", 23)))
            items = []
            base = sum(len(x) for x in groups[:g])
            if g == 0:
                for r in range(26):
                    if lastuse[r] == -1: items.append(("x", r))
            for i, o in enumerate(ops):
                items.append(o)
                for r in range(26):
                    if lastuse[r] == base + i: items.append(("x", r))
            if g == 21:
                pos = [0, 0]
            else:
                n_it = len(items)
                pos = [2 + (j*n_it)//len(mf) for j in range(len(mf))]
            j = 0
            for i, it in enumerate(items + [None]):
                while j < len(mf) and pos[j] <= i:
                    kk = mf[j]
                    if g == 21 and j == 0: p("s_nop 1")
                    p.wait(lg=f"w{kk}")
                    p(mfma(kk))
                    if kk in nonres:
                        w_read(nonres[(nonres.index(kk) + cfg.R) % nn])
                    j += 1
                if it is None: break
                if it[0] == "x": x_read(it[1])
                else:
                    p.wait(lg=tuple(f"x{r}" for r in it[2]))
                    p(it[1])
            if g == 15: emit_mb()
        for k in range(NR - 1): p(f"v_mov_b32 v{SM[k]}, v{SM[k+1]}")
        for d in XA.values(): p(f"v_add_u32 v{d}, 0x1c00, v{d}")
        s0 = SM[NR-1]
        p(f"v_mul_f32 v{s0}, v{AX}, v{AT}")
        p(f"v_mul_f32 v{PT}, v{AX+1}, v{AT+1}")
        for r in range(2, 13):
            p(f"v_fmac_f32 v{s0 if r % 2 == 0 else PT}, v{AX+r}, v{AT+r}")
        p(f"s_sub_u32 s{S_N}, s{S_N}, 1")
        p(f"v_add_f32 v{s0}, v{s0}, v{PT}")
    def mb_loads():
        p(f"buffer_load_dwordx{NR} v[{MBX}:{MBX+NR-1}], v{VMB}, s[{S_WS}:{S_WS+3}], s{S_MB} offen sc1")
    def emit_mb():
        sk = L("nomb")
        p(f"s_cmp_lg_u32 s{S_N}, 1")
        p(f"s_cbranch_scc1 {sk}")
        mb_loads()
        p.label(sk)
    save = p.L; p.L = []
    body(lambda: None)
    st1 = list(p.lg.q)
    p.L = save
    p(".p2align 3")
    p.label("L_row")
    body(emit_mb)
    assert st1 == p.lg.q
    if cfg.stamps in (1, 2):
        for i in range(3): p(f"s_mov_b32 s{S_ST+23+i}, s{S_ST+24+i}")
        stamp(26)
    if cfg.flip:
        p(f"s_cmp_lg_u32 s{S_N}, {4 - cfg.flip}")
        p("s_cbranch_scc1 L_noflip")
        p("s_setprio 0")
        p.label("L_noflip")
    p(f"s_cmp_lg_u32 s{S_N}, 0")
    p("s_cbranch_scc1 L_row")
    p.label("L_mbw")
    p("s_waitcnt vmcnt(0)")
    if NR == 4:
        p(f"v_max3_u32 v1, v{MBX}, v{MBX+1}, v{MBX+2}")
        p(f"v_max_u32 v1, v1, v{MBX+3}")
    else: p(f"v_max_u32 v1, v{MBX}, v{MBX+1}")
    p("v_cmp_eq_u32 vcc, -1, v1")
    p("s_nop 1")
    p("s_cmp_eq_u64 vcc, 0")
    p("s_cbranch_scc1 L_mbok")
    p("s_sleep 1")
    mb_loads()
    p(f"s_sub_u32 s{S_SPIN}, s{S_SPIN}, 1")
    p("s_cbranch_scc0 L_mbw")
    p("s_endpgm")
    p.label("L_mbok")
    for k in range(NR): p(f"v_add_f32 v{SM[k]}, v{SM[k]}, v{MBX+k}")
    for ctl in ("quad_perm:[1,0,3,2] row_mask:0xf", "quad_perm:[2,3,0,1] row_mask:0xf", "row_half_mirror row_mask:0xf",
                "row_mirror row_mask:0xf", "row_bcast:15 row_mask:0xa", "row_bcast:31 row_mask:0xc"):
        if NR == 2: p("s_nop 0")
        for k in range(NR): p(f"v_add_f32_dpp v{SM[k]}, v{SM[k]}, v{SM[k]} {ctl} bank_mask:0xf")
    for k in range(NR): p(f"v_add_f32 v{SM[k]}, v{SM[k]}, v{VBO}")
    p(f"v_cvt_pk_bf16_f32 v2, v{SM[0]}, v{SM[1]}")
    p(f"v_cvt_pk_bf16_f32 v3, v{SM[2]}, v{SM[3]}")
    p(f"v_mov_b32 v1, s{S_O}")
    p("s_mov_b32 exec_lo, 0")
    p("s_mov_b32 exec_hi, 0x80000000")
    if cfg.bal:
        p(f"s_cmp_eq_u32 s{S_NR}, 4")
        p("s_cbranch_scc1 L_st4")
        p(f"global_store_short_d16_hi v1, v3, s[{S_OUT}:{S_OUT+1}]")
        p(f"s_cmp_eq_u32 s{S_NR}, 1")
        p("s_cbranch_scc1 L_std")
        p(f"global_store_short v1, v3, s[{S_OUT}:{S_OUT+1}] offset:-2")
        p(f"global_store_short_d16_hi v1, v2, s[{S_OUT}:{S_OUT+1}] offset:-4")
        p("s_branch L_std")
        p.label("L_st4")
    p(f"global_store_dwordx2 v1, v[2:3], s[{S_OUT}:{S_OUT+1}] offset:-6")
    p.label("L_std")
    stamps_out()
    p.label("L_end")
    p("s_endpgm")

    p.vm.q = dnn_vm; p.lg.clear()
    p(".p2align 6")
    p.label("L_dnn")
    ACC = lambda t, q: 8*t + 4*q
    BF = lambda t: 56 + 4*t
    AR = lambda f, q: 84 + 8*(f % 2) + 4*q
    IDX = lambda f: 100 + f
    VO = lambda u: 128 + u
    V_B, V_A, V_CH, V_LANE, V_G8 = [130, 131, 132], [133, 134, 135], 136, 137, 138
    RAW = 140; RAW2 = 200
    S_SB, S_M0, S_AM = S_T+2, S_T+3, S_T+4
    if cfg.probe:
        p("s_cmp_ge_u32 s2, 8")
        p("s_cbranch_scc1 L_pr1")
        p("s_lshl_b32 s90, s2, 2")
        p("v_mov_b32 v1, s90")
        p("v_mov_b32 v2, s96")
        p(f"global_store_dword v1, v2, s[{S_DBG}:{S_DBG+1}] offset:8 sc1")
        p("s_waitcnt vmcnt(0)")
        p.label("L_pr1")
    srd(S_B1, 10, 1664)
    srd(S_TAB, 2, 6400000)
    srd(S_W2, 12, 1664)
    srd(S_WS, None, WS_END)
    if cfg.pxa >= 0:
        p("s_getreg_b32 s91, hwreg(HW_REG_XCC_ID)")
        p("s_and_b32 s91, s91, 15")
        p(f"s_cmp_lg_u32 s2, {cfg.pxa}")
        p("s_cbranch_scc1 L_pxa")
        p("v_mov_b32 v1, 0")
        p("v_mov_b32 v2, s91")
        p(f"global_store_dword v1, v2, s[{S_DBG}:{S_DBG+1}] offset:8 sc1")
        p("s_waitcnt vmcnt(0)")
        p.label("L_pxa")
    if cfg.plat:
        sr_, off = {1: (S_TAB, 3000320), 2: (S_W1, 1300096), 3: (S_WS, 4096), 4: (S_TAB, 5000320)}[cfg.plat]
        p("s_waitcnt vmcnt(0)")
        p(f"v_mov_b32 v1, {off}")
        p(f"buffer_load_dword v2, v1, s[{sr_}:{sr_+3}], 0 offen offset:2048")
        p("s_waitcnt vmcnt(0)")
        p("s_lshl_b32 s90, s2, 7")
        p("s_memrealtime s[94:95]")
        p("s_waitcnt lgkmcnt(0)")
        p(f"buffer_load_dword v2, v1, s[{sr_}:{sr_+3}], s90 offen offset:4)".replace(")", ""))
        p("s_waitcnt vmcnt(0)")
        p("s_memrealtime s[92:93]")
        p("s_waitcnt lgkmcnt(0)")
        p("s_sub_u32 s92, s92, s94")
        p("s_mul_i32 s92, s92, 10")
        p("s_add_u32 s92, s92, s96")
    stamp(10)
    p(f"s_mov_b32 s{S_SPIN}, 0x40000")
    p(f"s_mul_i32 s{S_COL}, s{S_CP}, 416")
    S_M1, S_WR = S_T+5, S_T+6
    p(f"s_mov_b32 s{S_SB}, s{S_COL}")
    p(f"s_and_b32 s{S_WR}, s{S_WAVE}, 3")
    p(f"s_lshl_b32 s{S_T}, s{S_WAVE}, 1")
    p(f"s_sub_u32 s{S_T}, s{S_T}, 4")
    p(f"s_add_u32 s{S_T+1}, s{S_T}, 1")
    p(f"s_cmp_lt_u32 s{S_WAVE}, 4")
    p(f"s_cselect_b32 s{S_M0}, s{S_WAVE}, s{S_T}")
    p(f"s_cselect_b32 s{S_M1}, 12, s{S_T+1}")
    p(f"s_lshl_b32 s{S_M0}, s{S_M0}, 10")
    p(f"s_lshl_b32 s{S_M1}, s{S_M1}, 10")
    p(f"s_lshl_b32 s{S_AM}, s{S_WAVE}, 10")
    p(f"s_add_u32 s{S_AM}, s{S_AM}, {BSZ}")
    p(f"s_lshr_b32 s{S_T}, s{S_WAVE}, 2")
    p(f"s_mul_i32 s{S_T}, s{S_T}, 224")
    p(f"s_add_u32 s{S_COL}, s{S_COL}, s{S_T}")
    p(f"s_movk_i32 s{S_T+1}, 1248")
    p(f"s_movk_i32 s{S_T+7}, 6656")
    for u in range(2):
        p(f"v_add_u32 v3, s{(S_M0, S_M1)[u]}, v{V_L}")
        p("v_lshlrev_b32 v4, 4, v3")
        p("v_mul_hi_u32_u24 v4, 0x9d89e, v4")
        p("v_bfe_u32 v5, v4, 2, 1")
        p("v_bfe_i32 v6, v4, 3, 1")
        p("v_add_u32 v5, v5, v6")
        p(f"v_mad_i32_i24 v5, v5, s{S_T+7}, v3")
        p(f"v_mad_u32_u24 v{VO(u)}, v4, s{S_T+1}, v5")
    p("v_lshrrev_b32 v1, 4, v0")
    p(f"s_add_u32 s{S_T+1}, s{S_T}, {IDXO}")
    p(f"v_lshl_add_u32 v{V_G8}, v1, 3, s{S_T+1}")
    p("v_lshrrev_b32 v2, 2, v0")
    p(f"v_mul_u32_u24 v2, 104, v2")
    p(f"s_add_u32 s{S_W}, s{S_W}, {IDXO}")
    p(f"v_add_u32 v139, s{S_W}, v2")
    p("v_lshrrev_b32 v2, 5, v0")
    p("v_mul_u32_u24 v3, 3, v2")
    p("v_xor_b32 v3, v3, v0")
    p("v_and_b32 v3, 3, v3")
    p(f"v_lshlrev_b32 v{V_CH}, 4, v3")
    p("v_bfe_u32 v3, v0, 3, 1")
    p("v_mul_u32_u24 v3, 3, v3")
    p("v_xor_b32 v3, v3, v1")
    p("v_and_b32 v4, 15, v0")
    p("v_lshlrev_b32 v4, 6, v4")
    p("v_lshl_add_u32 v3, v3, 4, v4")
    p(f"s_and_b32 s{S_T+1}, s{S_WAVE}, 3")
    p(f"s_lshl_b32 s{S_T+1}, s{S_T+1}, 11")
    p(f"s_add_u32 s{S_T+1}, s{S_T+1}, {BSZ}")
    p(f"v_add_u32 v{V_A[0]}, s{S_T+1}, v3")
    p("v_bfe_u32 v3, v0, 2, 3")
    p("v_lshl_add_u32 v2, v2, 4, v3")
    p("v_mul_u32_u24 v2, 0x1a0, v2")
    p("v_and_b32 v3, 3, v0")
    p("v_lshl_add_u32 v2, v3, 3, v2")
    p(f"v_add_u32 v{V_B[0]}, s{S_T}, v2")
    for k in (1, 2):
        p(f"v_add_u32 v{V_A[k]}, {3*k*SLOT}, v{V_A[0]}")
        p(f"v_add_u32 v{V_B[k]}, {3*k*SLOT}, v{V_B[0]}")
    p(f"v_mov_b32 v{V_LANE}, v0")
    p.wait(vm="idx")
    stamp(1)
    if cfg.dbench:
        p("s_mov_b32 s3, 0")
        p.label("L_again")
    for m in range(6):
        p.lds(f"ds_read2_b64 v[{100+4*m}:{103+4*m}], v139 offset0:{2*m} offset1:{2*m+1}", f"ix{m}")
    p.lds("ds_read_b64 v[124:125], v139 offset:96", "ix6")
    def a_dma(f):
        p.wait(lg=f"ix{f >> 2}")
        p(f"s_add_u32 m0, s{S_AM}, {(f % RB)*SLOT}")
        p(f"v_lshl_add_u32 v{IDX(f)}, v{IDX(f)}, 6, v{V_CH}")
        p.vmem(f"buffer_load_dwordx4 v{IDX(f)}, s[{S_TAB}:{S_TAB+3}], 0 offen lds", f"F{f}")
    def b_dma(f, u, T):
        if u == 1:
            if f: p(f"s_add_u32 s{S_SB}, s{S_SB}, 53248")
            sk = L("np")
            if T != 6:
                if T == 0:
                    p(f"s_cmp_ge_u32 s{S_WAVE}, 4")
                    p(f"s_cselect_b32 s{S_X}, {f & 3}, s{S_WR}")
                    p(f"s_cmp_lg_u32 s{S_X}, {f & 3}")
                else: p(f"s_cmp_lg_u32 s{S_WR}, {f & 3}")
                p(f"s_cbranch_scc1 {sk}")
            p(f"s_add_u32 m0, s{S_M1}, {(f % RB)*SLOT}")
            p("s_nop 0")
            p(f"buffer_load_dwordx4 v{VO(1)}, s[{S_W1}:{S_W1+3}], s{S_SB} offen lds")
            if T == 6: p.vm.issue(f"F{f}")
            else: p.label(sk)
        else:
            p(f"s_add_u32 m0, s{S_M0}, {(f % RB)*SLOT}")
            p("s_nop 0")
            p.vmem(f"buffer_load_dwordx4 v{VO(0)}, s[{S_W1}:{S_W1+3}], s{S_SB} offen lds", f"F{f}")
    def fill(f, T): a_dma(f); b_dma(f, 1, T); b_dma(f, 0, T)
    BWO = IDXO
    p(f"s_cmp_ge_u32 s{S_WAVE}, {0 if cfg.dbench else 2}")
    p("s_cbranch_scc1 L_nobw")
    p(f"s_mul_i32 s{S_X}, s{S_CP}, 416")
    p(f"s_cmp_eq_u32 s{S_WAVE}, 0")
    p(f"s_cselect_b64 s[{S_W2}:{S_W2+1}], s[{S_B1}:{S_B1+1}], s[{S_W2}:{S_W2+1}]")
    p(f"s_mov_b32 m0, s{S_W}")
    p("s_mov_b64 exec, 0xfffffff")
    p("s_waitcnt lgkmcnt(0)")
    p(f"buffer_load_dwordx4 v{V_L}, s[{S_W2}:{S_W2+3}], s{S_X} offen lds")
    p("s_mov_b64 exec, -1")
    p.label("L_nobw")
    if cfg.sw < 26:
        p(f"v_lshlrev_b32 v{V_C}, 2, v{V_LANE}")
        p(f"v_add_u32 v{V_C}, {IDXO + 2*1664}, v{V_C}")
        p(f"v_mov_b32 v{V_ONE}, 1")
        p(f"s_cmp_lg_u32 s{S_WAVE}, 2")
        p("s_cbranch_scc1 L_noz")
        p(f"v_mov_b32 v{V_POLL}, 0")
        p("s_waitcnt lgkmcnt(0)")
        p(f"ds_write_b32 v{V_C}, v{V_POLL}")
        p("s_waitcnt lgkmcnt(0)")
        p.label("L_noz")
    def lo(f): return (f % RB)//3, ((f % RB) % 3)*SLOT
    def b_read1(f, t, r2):
        k, off = lo(f)
        p.lds(f"ds_read_b64_tr_b16 v[{BF(t)+2*r2}:{BF(t)+2*r2+1}], v{V_B[k]} offset:{off + 32*t + 3328*r2}", f"b{f}_{t}")
    def a_read(f):
        k, off = lo(f)
        for q in range(2):
            p.lds(f"ds_read_b128 v[{AR(f, q)}:{AR(f, q)+3}], v{V_A[k]} offset:{off + 1024*q}", f"a{f}")
    p(f"s_cmp_ge_u32 s{S_WAVE}, 4")
    p("s_cbranch_scc1 L_dnn6")
    W2R = lambda t, r: 170 + 4*t + r
    def w2_unpack():
        return [x for t in range(7) for h in range(2) for x in
                (f"v_lshlrev_b32 v{W2R(t,2*h)}, 16, v{RAW2+2*t+h}", f"v_and_b32 v{W2R(t,2*h+1)}, 0xffff0000, v{RAW2+2*t+h}")]
    vm0, lg0 = list(p.vm.q), list(p.lg.q)
    def dnn_main(T):
        p.vm.q, p.lg.q = list(vm0), list(lg0)
        fill(0, T)
        fill(1, T)
        p.wait(vm="F0")
        p("s_barrier")
        stamp(12)
        for t in range(T):
            p.lds(f"ds_read_b64 v[{RAW+2*t}:{RAW+2*t+1}], v{V_G8} offset:{32*t}", "bias")
        a_read(0)
        for t in range(T):
            for r2 in range(2): b_read1(0, t, r2)
        p.wait(lg="bias")
        for t in range(T):
            for h in range(2):
                p(f"v_lshlrev_b32 v{ACC(t,0)+2*h}, 16, v{RAW+2*t+h}")
                p(f"v_and_b32 v{ACC(t,0)+2*h+1}, 0xffff0000, v{RAW+2*t+h}")
        for f in range(2, cfg.look): fill(f, T)
        p.wait(vm=tuple(f"F{k}" for k in range(cfg.barp + 1)))
        p("s_barrier")
        if T == 6 and cfg.prio_hi: p(f"s_setprio {cfg.prio_hi}")
        stamp(2)
        nxt = cfg.look
        w2ops = w2_unpack()
        free = -1; landed = cfg.barp
        for f in range(26):
            todo = []
            soft = f > cfg.sw and f <= 23
            top = f < cfg.early or (cfg.dpos == 4 and T == 6) or (cfg.dpos == 1 and T == 7)
            lim = (f - 1 if soft and not top else free) + RB
            nfill = 2 if (cfg.cmask >> f & 1 if cfg.cmask else cfg.catch0 <= f < cfg.catch0 + cfg.catch) else 1
            if f >= cfg.b2: nfill = (2 if (f % 2 == 0) == ((T == 6) == (cfg.dpos == 4)) else 0)
            for _ in range(nfill):
                if nxt < 26 and nxt <= lim:
                    todo += [(a_dma, (nxt,)), (b_dma, (nxt, 1, T)), (b_dma, (nxt, 0, T))]; nxt += 1
            if cfg.nodma and f >= 4:
                keep = []
                for fn, ar in todo:
                    if (fn is a_dma and cfg.nodma & 1) or (fn is b_dma and cfg.nodma & 2): continue
                    keep.append((fn, ar))
                todo[:] = keep
            n_it = len(todo)
            if f < cfg.early: at = [-1]*n_it
            elif cfg.dpos == 0: at = list(range(n_it))
            elif cfg.dpos == 1: at = [-1]*n_it if T == 7 else [T-1]*n_it
            elif cfg.dpos == 2: at = [(2*i + (T == 6)) if n_it <= 3 else i for i in range(n_it)]
            elif cfg.dpos == 3: at = [0]*n_it if T == 7 else [T-1]*n_it
            elif cfg.dpos == 4: at = [T-1]*n_it if T == 7 else [-1]*n_it
            elif cfg.dpos == 5: at = [i//(2 if n_it > 3 else 1) for i in range(n_it)] if T == 7 else [3 + i//(2 if n_it > 3 else 1) for i in range(n_it)]
            if soft and not top: at = [min(max(a, cfg.chk + i*(cfg.dpos in (0, 2))), T-1) for i, a in enumerate(at)]
            assert f == 25 or f + 1 <= landed
            def drain(t):
                while todo and at[0] <= t:
                    at.pop(0); fn, ar = todo.pop(0); fn(*ar)
            drain(-1)
            for t in range(T):
                p.wait(lg=(f"b{f}_{t}", f"a{f}"))
                b = f"v[{BF(t)}:{BF(t)+3}]"
                a0, a1 = ACC(t, 0), ACC(t, 1)
                c1 = a0 if f == 0 else a1
                p(f"v_mfma_f32_16x16x32_bf16 v[{a1}:{a1+3}], {b}, v[{AR(f,1)}:{AR(f,1)+3}], v[{c1}:{c1+3}]")
                if t and f < 25: b_read1(f+1, t-1, 1)
                elif t == 0 and f: b_read1(f, T-1, 1)
                p(f"v_mfma_f32_16x16x32_bf16 v[{a0}:{a0+3}], {b}, v[{AR(f,0)}:{AR(f,0)+3}], v[{a0}:{a0+3}]")
                if f < 25: b_read1(f+1, t, 0)
                if t == cfg.arp and f < 25: a_read(f + 1)
                if soft and t == cfg.chk - 2: poll_issue(4*(f-1))
                if soft and t == cfg.chk:
                    check(4*(f-1), 8, issued=True)
                    free = f - 1; landed = f + 2
                drain(t)
                if f == 21:
                    for tt in ([t] if t < T - 1 else range(t, 7)):
                        p.lds(f"ds_read_b64 v[{RAW2+2*tt}:{RAW2+2*tt+1}], v{V_G8} offset:{1664 + 32*tt}", "w2")
                if cfg.w2early and f in (23, 24):
                    if f == 23 and t == 0: p.wait(lg="w2")
                    for _ in range(3):
                        if w2ops: p(w2ops.pop(0))
            assert not todo
            if f >= cfg.sw:
                if f <= 22:
                    assert nxt > f + 3
                    p.wait(vm=tuple(f"F{k}" for k in range(f + 4)))
                    arrive(4*f)
            elif f <= cfg.lb and (f + 1) % cfg.barp == 0 and (f < cfg.b2 or f % 2):
                last = min(f + 1 + cfg.barp + (f + 1 == cfg.sw or f + 1 >= cfg.b2), 25) if f < cfg.lb else 25
                assert nxt > last
                p.wait(vm=tuple(f"F{k}" for k in range(last + 1)))
                if not cfg.nobar: p("s_barrier")
                free = f; landed = last
            if f == cfg.lb and cfg.tailprio is not None and T == cfg.tailprio: p("s_setprio 1")
            if f % 4 == 0 and (not cfg.dbench or f in (8, 20)): stamp(14 + f//4)
        assert nxt == 26 and not (cfg.w2early and w2ops)
    dnn_main(7)
    p("s_branch L_gelu")
    p(".p2align 6")
    p.label("L_dnn6")
    dnn_main(6)
    p.label("L_gelu")
    if cfg.dbench:
        p("s_barrier")
        p(f"s_mul_i32 s{S_SB}, s{S_CP}, 416")
        p("s_add_u32 s3, s3, 1")
        p("s_cmp_lt_u32 s3, 2")
        p("s_cbranch_scc1 L_again")
    stamp(3)
    p(f"s_load_dword s{S_X}, s[{S_DBG}:{S_DBG+1}], 128")
    if not cfg.w2early:
        p.wait0(vm=True)
        for x in w2_unpack(): p(x)
    k0 = -2.0*math.sqrt(2.0/math.pi)*math.log2(math.e)
    T1, T2, SUM, VC = 56, 64, 92, 72
    P = lambda a: f"v[{a}:{a+1}]"
    for r, c in enumerate((k0*0.044715, k0)):
        for h in range(2): p(f"v_mov_b32 v{VC+2*r+h}, {f2h(c)}")
    for r in range(4): p(f"v_mov_b32 v{SUM+r}, 0")
    for t in range(7):
        if t == 6:
            p(f"s_cmp_ge_u32 s{S_WAVE}, 4")
            p("s_cbranch_scc1 L_gelu6")
        x = ACC(t, 0)
        if cfg.pk:
            for r in range(0, 8, 2): p(f"v_pk_mul_f32 {P(T1+r)}, {P(x+r)}, {P(x+r)}")
            for r in range(0, 8, 2): p(f"v_pk_fma_f32 {P(T1+r)}, {P(T1+r)}, {P(VC)}, {P(VC+2)}")
            for r in range(0, 8, 2): p(f"v_pk_mul_f32 {P(T1+r)}, {P(T1+r)}, {P(x+r)}")
            for r in range(8): p(f"v_exp_f32 v{T1+r}, v{T1+r}")
            for r in range(0, 8, 2): p(f"v_pk_mul_f32 {P(T2+r)}, {P(x+r)}, {P(W2R(t, r & 3))}")
            for r in range(0, 8, 2): p(f"v_pk_add_f32 {P(T1+r)}, {P(T1+r)}, 1.0 op_sel_hi:[1,0]")
            for r in range(8): p(f"v_rcp_f32 v{T1+r}, v{T1+r}")
            for r in (0, 4, 2, 6): p(f"v_pk_fma_f32 {P(SUM+2*(r >> 2))}, {P(T1+r)}, {P(T2+r)}, {P(SUM+2*(r >> 2))}")
        else:
            for r in range(8): p(f"v_mul_f32 v{T1+r}, v{x+r}, v{x+r}")
            for r in range(8): p(f"v_fma_f32 v{T1+r}, v{T1+r}, v{VC}, v{VC+2}")
            for r in range(8): p(f"v_mul_f32 v{T1+r}, v{T1+r}, v{x+r}")
            for r in range(8): p(f"v_exp_f32 v{T1+r}, v{T1+r}")
            for r in range(8): p(f"v_mul_f32 v{T2+r}, v{x+r}, v{W2R(t, r & 3)}")
            for r in range(8): p(f"v_add_f32 v{T1+r}, 1.0, v{T1+r}")
            for r in range(8): p(f"v_rcp_f32 v{T1+r}, v{T1+r}")
            for r in range(8): p(f"v_fmac_f32 v{SUM+2*(r >> 2)+(r & 1)}, v{T1+r}, v{T2+r}")
    p.label("L_gelu6")
    p(f"v_add_f32 v{SUM}, v{SUM}, v{SUM+1}")
    p(f"v_add_f32 v{SUM+2}, v{SUM+2}, v{SUM+3}")
    p(f"v_and_b32 v84, 15, v{V_LANE}")
    p(f"v_lshrrev_b32 v85, 5, v{V_LANE}")
    p(f"v_permlane32_swap_b32 v{SUM}, v{SUM+2}")
    p("v_lshl_add_u32 v84, v85, 4, v84")
    p(f"v_add_f32 v{SUM}, v{SUM}, v{SUM+2}")
    p(f"v_bfe_u32 v85, v{V_LANE}, 4, 1")
    p(f"v_mov_b32 v{SUM+1}, v{SUM}")
    p("v_lshlrev_b32 v84, 2, v84")
    p("v_lshl_add_u32 v84, v85, 30, v84")
    p(f"v_permlane16_swap_b32 v{SUM}, v{SUM+1}")
    p(f"s_lshl2_add_u32 s{S_T}, s{S_RG}, s{S_CP}")
    p(f"v_add_f32 v{SUM}, v{SUM}, v{SUM+1}")
    p(f"s_lshl3_add_u32 s{S_T}, s{S_T}, s{S_WAVE}")
    p(f"s_lshl_b32 s{S_T}, s{S_T}, 7")
    p(f"v_min_u32 v{SUM}, -2, v{SUM}")
    p("s_waitcnt lgkmcnt(0)")
    if cfg.noprep or cfg.dbench: p("s_branch L_pub")
    p(f"s_cmp_lg_u32 s{S_X}, 0")
    p("s_cbranch_scc1 L_pub")
    p("v_mov_b32 v85, 0")
    p.label("L_dflag")
    p(f"global_load_dword v86, v85, s[{S_DBG}:{S_DBG+1}] offset:128 sc1")
    p("s_waitcnt vmcnt(0)")
    p(f"v_readfirstlane_b32 s{S_X}, v86")
    p(f"s_cmp_lg_u32 s{S_X}, 0")
    p("s_cbranch_scc1 L_pub")
    p("s_sleep 4")
    p(f"s_sub_u32 s{S_SPIN}, s{S_SPIN}, 1")
    p("s_cbranch_scc0 L_dflag")
    p("s_endpgm")
    p.label("L_pub")
    p(f"buffer_store_dword v{SUM}, v84, s[{S_WS}:{S_WS+3}], s{S_T} offen sc1")
    stamp(4)
    if cfg.probe:
        p("s_cmp_lg_u32 s2, 0")
        p("s_cbranch_scc1 L_pr2")
        p(f"v_lshlrev_b32 v1, 2, v{V_LANE}")
        p(f"global_load_dword v2, v1, s[{S_DBG}:{S_DBG+1}] offset:8 sc1")
        p("s_waitcnt vmcnt(0)")
        for i in range(8): p(f"v_readlane_b32 s{80+i}, v2, {i}")
        p("s_mov_b32 s90, s80"); p("s_mov_b32 s91, s80")
        for i in range(1, 8):
            p(f"s_min_u32 s90, s90, s{80+i}"); p(f"s_max_u32 s91, s91, s{80+i}")
        if cfg.probe == 1: p("s_sub_u32 s90, s91, s90")
        else: p(f"s_sub_u32 s90, s{80+cfg.probe-2}, s90")
        p("s_mul_i32 s90, s90, 20")
        p("s_min_u32 s90, s90, 20000")
        p("s_memrealtime s[92:93]"); p("s_waitcnt lgkmcnt(0)")
        p("s_add_u32 s92, s92, s90")
        p.label("L_pr")
        p("s_memrealtime s[94:95]"); p("s_waitcnt lgkmcnt(0)")
        p("s_cmp_lt_u32 s94, s92")
        p("s_cbranch_scc1 L_pr")
        p.label("L_pr2")
    stamps_out()
    p("s_endpgm")

    p(".p2align 6")
    p(".type gather_table,@object")
    p.label("gather_table")
    zt = P_Z - PS
    for role in range(2):
        for lane in range(64):
            s, half = lane >> 1, lane & 1
            ad = []
            for e in range(8):
                pr = slot_pair(s, half, e) if s < (24 if role == 0 else 22) else None
                at = (lambda j, k: P_D1 - PS + k*144 + j*4) if role == 0 else (lambda j, k: P_W1 - PS + (j*26 + k)*2)
                if pr is None: ad += [zt, zt]
                elif pr[1] is None: ad += [at(pr[0], 26), zt]
                elif pr[0] == pr[1] or norm(pr) == (24, 25): ad += [at(*pr), zt]
                else: ad += [at(pr[0], pr[1]), at(pr[1], pr[0])]
            p(".short " + ", ".join(str(a) for a in ad))
    p(".size gather_table, 4096")
    return p

def header():
    return """; xDeepFM (CIN + DNN) forward, one launch, 256 workgroups (S1).
; Kernarg: idx, table, ws_cin, w_cin_out, w_dnn1, b_dnn1, w_dnn2, b_out, out, debug, ws
; @launch grid=(256,1,1) block=(512,1,1) lds=%d
.amdgcn_target "amdgcn-amd-amdhsa--gfx950"
.text
""" % LDS_SIZE
def footer():
    nv = 256
    return f""".section .rodata,"a"
.p2align 6
.amdhsa_kernel {NAME}
  .amdhsa_next_free_vgpr {nv}
  .amdhsa_next_free_sgpr 102
  .amdhsa_accum_offset {nv}
  .amdhsa_group_segment_fixed_size 0
  .amdhsa_kernarg_size 88
  .amdhsa_user_sgpr_count 2
  .amdhsa_user_sgpr_kernarg_segment_ptr 1
  .amdhsa_system_sgpr_workgroup_id_x 1
  .amdhsa_float_denorm_mode_32 3
.end_amdhsa_kernel
"""
if __name__ == "__main__":
    out = sys.argv[1]
    for a in sys.argv[2:]:
        k, v = a.split("=")
        setattr(cfg, k, type(getattr(cfg, k))(int(v)))
    open(out, "w").write(header() + build().text() + footer())
```

```python
import sys, struct, math
from asmlib import *
from slots import *

NAME = "standalone__deep_cross_xdeepfm__recsys_kernel"
class Cfg:
    stamps = 0
    NRES = 31
    R = 3
    prio_prep = 3
    prio_hi = 0
    poll_sleep = 2
    idle_sleep = 1
    gon = 5
    bal = 0
    lt0 = 2
    lt1 = 5
    early = 4
    look = 3
    cmask = 0
    catch0 = 4
    catch = 4
    etouch = 0
    dtouch = 1
    mtouch = 1
    ttouch = 0
    xwin = 4
    pfcode = 1
    flip = 2
    w2early = 1
    dpos = 4
    ltouch = 0
    pk = 1
    ctouch = 1
    wrot = 1
    direct = 1
    pst = -1
    pcyc = 0
    pxa = -1
    plat = 0
    pwg = 0
    pwave = 0
    probe = 0
    dbench = 0
    nodma = 0
    nobar = 0
    lb = 21
    tailprio = 0
    b2 = 26
    sw = 26
    chk = 3
    barp = 1
    arp = 1
    noprep = 0
    clrpos = 1
    xstart = 0
    xbar = 4
    pdelay = 1
    hold = 0
cfg = Cfg()

LDS_SIZE = 163840
XO = 0
WO = 8*7168
PS = WO + 96*528
P_W3 = PS; P_M3T = PS + 36864; P_D1 = PS + 38912; P_W1 = PS + 43520; P_Z = PS + 45568; P_DUM = PS + 45824
CO = LDS_SIZE - 512
IX2 = PS + 46080
assert P_DUM + 256 <= CO
C_PA, C_PB, C_XL, C_FLAG, C_GO, C_CL, C_PI = 0, 4, 8, 12, 16, 20, 24
RB = 7
BSZ = 13312
SLOT = BSZ + 8192
IDXO = RB*SLOT
assert IDXO + 8*1664 == LDS_SIZE
MBOX = 0; WS_W = 131072; BLK = 1664; WS_END = WS_W + 26*BLK; WS_STAMP = 1 << 20
S_IDX, S_TAB, S_W1, S_WCIN, S_WCO, S_B1, S_W2, S_WS = 4, 8, 12, 16, 20, 24, 28, 32
S_OUT, S_DBG, S_BOUT = 36, 38, 40
S_WAVE, S_RG, S_CP, S_FB, S_COL, S_W = 42, 43, 44, 45, 46, 47
S_PC, S_SPIN, S_X = 48, 50, 51
KA = 52
S_T = 52
S_ST = 70
V_C, V_ONE, V_POLL, V_L = 162, 163, 164, 165
FRM = "0x20000"

def f2h(x): return "0x%08x" % struct.unpack("<I", struct.pack("<f", x))[0]

def build():
    p = Prog()
    lab = [0]
    def L(n):
        lab[0] += 1
        return f"L_{n}_{lab[0]}"
    def stamp(i):
        if cfg.pst == i:
            p("s_memtime s[92:93]" if cfg.pcyc else "s_memrealtime s[92:93]")
            p.wait0(lg=True)
        if cfg.stamps and (cfg.stamps != 3 or i == 8):
            p(f"s_memrealtime s[68:69]" if cfg.stamps != 2 or i == 8 else "s_memtime s[68:69]")
            p.wait0(lg=True)
            if cfg.stamps != 2 or i == 8: p(f"s_mov_b32 s{S_ST+i}, s68")
            else:
                p("s_sub_u32 s68, s68, s100")
                p("s_lshr_b32 s68, s68, 4")
                p(f"s_add_u32 s{S_ST+i}, s68, s{S_ST}")
    def stamps_out():
        if cfg.pst >= 0:
            stamp(8)
            sk = L("npr"); lp = L("pr")
            p(f"s_cmp_lg_u32 s2, {cfg.pwg}")
            p(f"s_cbranch_scc1 {sk}")
            p(f"s_cmp_lg_u32 s{S_WAVE}, {cfg.pwave}")
            p(f"s_cbranch_scc1 {sk}")
            if cfg.pst == 0: p("s_mov_b32 s92, s96")
            if cfg.pxa >= 0:
                p("s_mov_b64 exec, -1")
                p("v_mov_b32 v1, 0")
                p(f"global_load_dword v2, v1, s[{S_DBG}:{S_DBG+1}] offset:8 sc1")
                p("s_waitcnt vmcnt(0)")
                p("v_readfirstlane_b32 s90, v2")
                p("s_cmp_lg_u32 s90, s91")
                p("s_cselect_b32 s90, 250, 0")
                p("s_add_u32 s92, s92, s90")
            if cfg.pcyc:
                p("s_sub_u32 s90, s92, s98")
                p("s_lshr_b32 s90, s90, 3")
            else:
                p("s_sub_u32 s90, s92, s96")
                p("s_mul_i32 s90, s90, 4")
            p("s_mov_b64 exec, 1")
            p("v_mov_b32 v1, 0")
            p("v_mov_b32 v2, s90")
            p(f"global_store_dword v1, v2, s[{S_DBG}:{S_DBG+1}] offset:4")
            p("s_add_u32 s90, s90, 2000")
            p("s_min_u32 s90, s90, 20000")
            p("s_add_u32 s90, s90, s96")
            p.label(lp)
            p("s_sleep 1")
            p("s_memrealtime s[94:95]"); p("s_waitcnt lgkmcnt(0)")
            p("s_cmp_lt_u32 s94, s90")
            p(f"s_cbranch_scc1 {lp}")
            p.label(sk)
        if not cfg.stamps: return
        stamp(8)
        p("s_mov_b64 exec, 1")
        p(f"s_lshl4_add_u32 s{S_T}, s2, s{S_WAVE}")
        p(f"s_lshl_b32 s{S_T}, s{S_T}, 7")
        p(f"s_add_u32 s{S_T}, s{S_T}, {WS_STAMP}")
        p(f"v_mov_b32 v1, s{S_T}")
        p("s_memtime s[68:69]")
        p("s_waitcnt lgkmcnt(0)")
        p(f"s_sub_u32 s{S_ST+29}, s68, s100")
        for i in range(30):
            p(f"v_mov_b32 v2, s{S_ST+i}")
            p(f"global_store_dword v1, v2, s[{S_WS}:{S_WS+1}] offset:{4*i}")
    def arrive(*offs):
        p("s_mov_b64 exec, 1")
        for off in offs: p.lds(f"ds_add_u32 v{V_C}, v{V_ONE} offset:{off}", "arr")
        p("s_mov_b64 exec, -1")
    def poll_issue(off):
        p.lds(f"ds_read_b32 v{V_POLL}, v{V_C} offset:{off}", "poll")
    def check(off, target, issued=False, sleep=0):
        ok = L("ok"); sp = L("spin")
        if issued:
            p.wait(lg="poll")
            p(f"v_readfirstlane_b32 s{S_X}, v{V_POLL}")
            p(f"s_cmp_ge_u32 s{S_X}, {target}")
            p(f"s_cbranch_scc1 {ok}")
        p.label(sp)
        if sleep: p(f"s_sleep {sleep}")
        p(f"ds_read_b32 v{V_POLL}, v{V_C} offset:{off}")
        p("s_waitcnt lgkmcnt(0)")
        p(f"v_readfirstlane_b32 s{S_X}, v{V_POLL}")
        p(f"s_sub_u32 s{S_SPIN}, s{S_SPIN}, 1")
        p("s_cbranch_scc1 L_end")
        p(f"s_cmp_ge_u32 s{S_X}, {target}")
        p(f"s_cbranch_scc0 {sp}")
        if not issued: p.lg.clear()
        p.label(ok)
    def srd(s, ka, n):
        if ka is not None: p(f"s_mov_b64 s[{s}:{s+1}], s[{KA+ka}:{KA+ka+1}]")
        p(f"s_mov_b32 s{s+2}, {n}")
        p(f"s_mov_b32 s{s+3}, {FRM}")
    def touch(vaddr, soff, mask):
        p(f"s_mov_b64 exec, {mask}" if mask < (1 << 31) else f"s_mov_b32 exec_hi, {hex(mask >> 32)}")
        p(f"buffer_load_dword v250, v{vaddr}, s[{S_W1}:{S_W1+3}], s{soff} offen")
        p("s_mov_b64 exec, -1")

    def producer_index():
        p(f"s_lshr_b32 s{S_FB}, s2, 6")
        p(f"s_sub_u32 s{S_FB}, s{S_RG}, s{S_FB}")
        p(f"s_sub_u32 s{S_FB}, s{S_FB}, 1")
        p(f"s_and_b32 s{S_X}, s2, 0x37")
        p(f"s_sub_u32 s{S_X}, s{S_X}, 1")
        p(f"s_cmp_lt_u32 s{S_X}, 7")
        p(f"s_cselect_b32 s{S_FB}, s{S_FB}, 99")

    def last_marker(skip):
        p("v_lshlrev_b32 v2, 6, v0")
        p("s_waitcnt vmcnt(0)")
        stamp(12)
        p(f"v_readfirstlane_b32 s{S_X}, v27")
        p("s_mov_b64 exec, 3")
        p(f"s_cmp_lg_u32 s{S_X}, {26 + 32 - 1}")
        p(f"s_cbranch_scc1 {skip}")
        p(f"global_store_dword v2, v{V_ONE}, s[{S_DBG}:{S_DBG+1}] offset:128 sc1")

    p(f".globl {NAME}\n.p2align 8\n.type {NAME},@function")
    p.label(NAME)
    p(f"s_load_dwordx16 s[{KA}:{KA+15}], s[0:1], 0")
    p(f"s_load_dwordx4 s[{S_OUT}:{S_OUT+3}], s[0:1], 64")
    p(f"s_load_dwordx2 s[{S_WS}:{S_WS+1}], s[0:1], 80")
    if cfg.probe or cfg.pst >= 0: p("s_memrealtime s[96:97]")
    if cfg.pcyc: p("s_memtime s[98:99]")
    if cfg.stamps:
        p(f"s_memrealtime s[{S_ST}:{S_ST+1}]")
        p(f"s_memtime s[100:101]")
    p("v_lshrrev_b32 v1, 6, v0")
    p("v_and_b32 v0, 63, v0")
    p(f"v_readfirstlane_b32 s{S_WAVE}, v1")
    p("s_cmp_ge_u32 s2, 0x100")
    p("s_cbranch_scc1 L_end")
    p(f"s_and_b32 s3, s2, 7")
    p(f"s_lshr_b32 s{S_RG}, s2, 6")
    p(f"s_lshl3_add_u32 s{S_RG}, s{S_RG}, s3")
    p(f"s_bfe_u32 s{S_CP}, s2, 0x20004")
    p(f"v_lshlrev_b32 v{V_L}, 4, v0")
    p(f"v_lshlrev_b32 v160, 7, v0")
    srd(S_IDX, None, 4096*104)
    srd(S_W1, None, 832*1664)
    p("s_bitcmp1_b32 s2, 3")
    p("s_cbranch_scc1 L_cin")
    p(f"s_lshl3_add_u32 s3, s{S_RG}, s{S_WAVE}")
    p(f"s_mul_i32 s3, s3, 1664")
    p(f"s_mul_i32 s{S_W}, s{S_WAVE}, 1664")
    p(f"s_add_u32 m0, s{S_W}, {IDXO}")
    p(f"s_lshr_b32 s{S_X}, s2, 4")
    p(f"s_lshl3_add_u32 s{S_X}, s{S_X}, s{S_WAVE}")
    p(f"s_mul_i32 s{S_X}, s{S_X}, 2560")
    p.wait0(lg=True)
    p(f"s_mov_b64 s[{S_IDX}:{S_IDX+1}], s[{KA}:{KA+1}]")
    p(f"s_mov_b64 s[{S_W1}:{S_W1+1}], s[{KA+8}:{KA+9}]")
    for n in range(2):
        if n: p("s_mov_b32 exec_hi, 0xff")
        p.vmem(f"buffer_load_dwordx4 v{V_L}, s[{S_IDX}:{S_IDX+3}], s3 offen offset:{1024*n} lds", "idx")
    if not cfg.dtouch: p("s_mov_b32 exec_hi, -1")
    if cfg.dtouch:
        touch(160, S_X, 0xfffff); p.vm.issue("t")
    p("s_branch L_dnn")
    dnn_vm = list(p.vm.q)

    p.vm.clear(); p.lg.clear()
    p.label("L_cin")
    if cfg.dbench: p("s_endpgm")
    S_C = S_WAVE
    W3A, TBL, VV, AQ, VF, GA, MB, VT, CRAW = 28, 32, 40, 56, 72, 80, 96, 170, 152
    srd(S_WCO, None, 156)
    srd(S_WS, None, WS_END)
    p(f"s_mov_b32 s{S_SPIN}, 0x40000")
    p(f"v_lshlrev_b32 v{V_C}, 2, v0")
    p(f"v_add_u32 v{V_C}, {CO}, v{V_C}")
    p(f"v_mov_b32 v{V_ONE}, 1")
    p(f"s_cmp_ge_u32 s{S_WAVE}, 4")
    p("s_cbranch_scc1 L_xwave")
    srd(S_WCIN, None, 105456)
    producer_index()
    if cfg.noprep: p(f"s_mov_b32 s{S_FB}, 99")
    p(f"s_getpc_b64 s[{S_PC}:{S_PC+1}]")
    p.label("L_pc")
    p.wait0(lg=True)
    p(f"s_mov_b64 s[{S_WCIN}:{S_WCIN+1}], s[{KA+4}:{KA+5}]")
    if cfg.ttouch: srd(S_TAB, 2, 6400000)
    p(f"s_mov_b64 s[{S_W1}:{S_W1+1}], s[{KA+8}:{KA+9}]")
    p(f"s_mov_b64 s[{S_WCO}:{S_WCO+1}], s[{KA+6}:{KA+7}]")
    p(f"s_mov_b64 s[{S_BOUT}:{S_BOUT+1}], s[{KA+14}:{KA+15}]")
    def cinit_loads():
        p(f"v_lshrrev_b32 v8, 5, v0")
        p(f"v_lshlrev_b32 v9, 3, v8")
        p(f"v_lshlrev_b32 v8, 1, v8")
        for a in range(3):
            p(f"buffer_load_dwordx2 v[{CRAW+2*a}:{CRAW+2*a+1}], v9, s[{S_WCO}:{S_WCO+3}], 0 offen offset:{16*a}")
        p(f"buffer_load_ushort v{CRAW+6}, v8, s[{S_WCO}:{S_WCO+3}], 0 offen offset:48")
        p(f"v_mov_b32 v8, 0")
        p(f"global_load_ushort v{CRAW+7}, v8, s[{S_BOUT}:{S_BOUT+1}]")
    p(f"s_and_b32 s{S_T}, s2, 0x37")
    p(f"s_cmp_eq_u32 s{S_T}, 0x21")
    p(f"s_cselect_b32 s{S_T+1}, 1, 0")
    p(f"s_cselect_b32 s{S_T}, 0x11, s{S_T}")
    p(f"s_sub_u32 s{S_T}, s{S_T}, 0x11")
    p(f"s_cmp_lt_u32 s{S_T}, 7")
    p(f"s_cselect_b32 s{S_T+3}, s{S_C}, 1")
    p(f"s_add_u32 s{S_T+3}, s{S_T+3}, 4")
    p(f"s_cmp_lg_u32 s{S_T+3}, 4")
    p("s_cbranch_scc1 L_nomc")
    for r in range(4): p(f"v_mov_b32 v{4+r}, -1")
    p(f"s_sub_u32 s{S_T}, s{S_RG}, s{S_T+1}")
    p(f"s_lshl_b32 s{S_T}, s{S_T}, 12")
    for u in range(4):
        p(f"buffer_store_dwordx4 v[4:7], v{V_L}, s[{S_WS}:{S_WS+3}], s{S_T} offen offset:{1024*u} sc1")
    p.label("L_nomc")
    if cfg.mtouch or cfg.ttouch or cfg.ctouch:
        p(f"s_cmp_eq_u32 s{S_CP}, 0")
        p("s_cbranch_scc1 L_nomt")
        p(f"s_mul_i32 s{S_T}, s{S_RG}, 3")
        p(f"s_add_u32 s{S_T}, s{S_T}, s{S_CP}")
        p(f"s_lshl2_add_u32 s{S_T}, s{S_T}, s{S_C}")
        p(f"s_sub_u32 s{S_T}, s{S_T}, 4")
        if cfg.ctouch:
            p(f"s_lshr_b32 s{S_T+1}, s2, 6")
            p(f"s_mul_i32 s{S_T+1}, s{S_T+1}, 3")
            p(f"s_add_u32 s{S_T+1}, s{S_T+1}, s{S_CP}")
            p(f"s_lshl2_add_u32 s{S_T+1}, s{S_T+1}, s{S_C}")
            p(f"s_mul_i32 s{S_T+1}, s{S_T+1}, {6*128}")
            p(f"s_add_u32 s{S_T+1}, s{S_T+1}, {(549 - 24)*128}")
            p("s_mov_b64 exec, 63")
            p(f"buffer_load_dword v250, v160, s[{S_WCIN}:{S_WCIN+3}], s{S_T+1} offen")
            p("s_mov_b64 exec, -1")
        if cfg.mtouch:
            p(f"s_mul_i32 s{S_T+1}, s{S_T}, {22*128}")
            p(f"s_add_u32 s{S_T+1}, s{S_T+1}, {2496*128}")
            touch(160, S_T+1, (1 << 22) - 1)
        if cfg.ttouch:
            p(f"s_mul_i32 s{S_T+1}, s{S_T}, {cfg.ttouch*128}")
            p(f"s_mov_b64 exec, {(1 << cfg.ttouch) - 1}" if cfg.ttouch < 31 else f"s_mov_b32 exec_hi, {hex(((1 << cfg.ttouch) - 1) >> 32)}")
            p(f"buffer_load_dword v250, v160, s[{S_TAB}:{S_TAB+3}], s{S_T+1} offen")
            p("s_mov_b64 exec, -1")
        p("s_branch L_cbar")
        p.label("L_nomt")
    p(f"s_cmp_ge_u32 s{S_FB}, 26")
    p("s_cbranch_scc1 L_cbar")
    if cfg.prio_prep: p(f"s_setprio {cfg.prio_prep}")
    p(f"s_mul_i32 s{S_T+2}, s{S_FB}, {BLK}")
    p(f"s_add_u32 s{S_T+2}, s{S_T+2}, {WS_W}")
    p(f"s_mul_i32 s{S_T}, s{S_C}, 9216")
    p(f"s_add_u32 s{S_T+1}, s{S_T}, 70304")
    p(f"s_add_u32 s{S_T}, s{S_T}, {P_W3}")
    for u in range(9):
        if u % 4 == 0:
            if u: p(f"s_add_u32 s{S_T+1}, s{S_T+1}, 0x1000")
            p(f"s_add_u32 m0, s{S_T}, {1024*u}")
            p("s_nop 0")
        p(f"buffer_load_dwordx4 v{V_L}, s[{S_WCIN}:{S_WCIN+3}], s{S_T+1} offen offset:{1024*(u % 4)} lds")
    p("v_and_b32 v2, 0x30, v0")
    p("v_bfe_u32 v1, v0, 2, 2")
    for q in range(4):
        p(f"v_xor_b32 v3, {q}, v1")
        p("v_lshl_add_u32 v3, v3, 28, v2")
        p(f"buffer_load_dwordx4 v[{AQ+4*q}:{AQ+4*q+3}], v3, s[{S_WCO}:{S_WCO+3}], 0 offen offset:104")
    p(f"s_cmp_ge_u32 s{S_C}, 2")
    p("s_cbranch_scc1 L_p23")
    p(f"s_lshl_b32 s{S_T}, s{S_C}, 11")
    p(f"s_add_u32 s{S_T}, s{S_T}, gather_table-L_pc")
    p(f"v_lshl_add_u32 v1, v0, 5, s{S_T}")
    p(f"global_load_dwordx4 v[{TBL}:{TBL+3}], v1, s[{S_PC}:{S_PC+1}]")
    p(f"global_load_dwordx4 v[{TBL+4}:{TBL+7}], v1, s[{S_PC}:{S_PC+1}] offset:16")
    p(f"s_cmp_lg_u32 s{S_C}, 0")
    p("s_cbranch_scc1 L_p1")
    p("v_lshrrev_b32 v3, 5, v0")
    p("v_mul_u32_u24 v3, 0x2a40, v3")
    p("v_and_b32 v2, 31, v0")
    p("v_lshl_add_u32 v3, v2, 1, v3")
    p(f"s_mul_i32 s{S_T}, s{S_FB}, 52")
    p(f"s_add_u32 s{S_T}, s{S_T}, 35152")
    for u in range(16):
        if u and u % 4 == 0:
            p(f"s_add_u32 s{S_T}, s{S_T}, {(4 if u != 8 else 12)*1352}")
        p(f"buffer_load_ushort v{VV+u}, v3, s[{S_WCIN}:{S_WCIN+3}], s{S_T} offen offset:{1352*(u % 4)}")
    p("s_branch L_pz")
    p.label("L_p1")
    p(f"s_mul_i32 s{S_T}, s{S_FB}, 1352")
    p(f"s_mov_b32 m0, {P_W1}")
    p("s_nop 0")
    for u in range(2):
        p(f"buffer_load_dwordx4 v{V_L}, s[{S_WCIN}:{S_WCIN+3}], s{S_T} offen offset:{1024*u} lds")
    p("s_branch L_pz")
    p.label("L_p23")
    p(f"s_cmp_lg_u32 s{S_C}, 3")
    p("s_cbranch_scc1 L_pz")
    p("v_lshlrev_b32 v1, 2, v0")
    p(f"buffer_load_dword v27, v1, s[{S_WCO}:{S_WCO+3}], 0 offen offset:52")
    p.label("L_pz")
    p("v_mov_b32 v2, 0")
    p("v_mov_b32 v3, 0")
    p(f"s_lshl_b32 s{S_T}, s{S_C}, 9")
    p(f"s_add_u32 s{S_T}, s{S_T}, {P_M3T}")
    p(f"v_lshl_add_u32 v1, v0, 3, s{S_T}")
    p("ds_write_b64 v1, v[2:3]")
    p(f"v_add_u32 v1, {P_Z - CO}, v{V_C}")
    p("ds_write_b32 v1, v2")
    p.label("L_cbar")
    if cfg.pfcode:
        sk = L("nopf")
        p(f"s_cmp_lg_u32 s{S_C}, 2")
        p(f"s_cbranch_scc1 {sk}")
        p(f"s_lshr_b32 s{S_T}, s2, 4")
        p(f"s_mul_i32 s{S_T}, s{S_T}, 2560")
        p(f"v_add_u32 v2, s{S_T}, v160")
        p(f"v_min_u32 v2, gather_table-L_pc+4092, v2")
        p("s_mov_b64 exec, 0xfffff")
        p(f"global_load_dword v161, v2, s[{S_PC}:{S_PC+1}]")
        p("s_mov_b64 exec, -1")
        p.label(sk)
    p("v_mov_b32 v2, 0")
    p(f"ds_write_b32 v{V_C}, v2")
    p.wait0(lg=True)
    p("s_barrier")
    stamp(1)
    p(f"s_cmp_lt_u32 s{S_FB}, 26")
    p("s_cbranch_scc1 L_prep")
    cinit_loads()
    p("s_waitcnt vmcnt(0)")
    stamp(13)
    p(f"s_cmp_lg_u32 s{S_T+3}, 4")
    p("s_cbranch_scc1 L_setup")
    p("v_mov_b32 v4, 0")
    p("s_mov_b64 exec, 1")
    p(f"global_atomic_add v27, v4, v{V_ONE}, s[{S_DBG}:{S_DBG+1}] sc0 sc1")
    p("s_mov_b64 exec, -1")
    last_marker("L_mx")
    p.label("L_mx")
    p("s_mov_b64 exec, -1")
    p("s_branch L_setup")
    p.label("L_prep")
    p("v_bfe_u32 v1, v0, 2, 2")
    p("v_lshrrev_b32 v4, 4, v0")
    p("v_lshl_add_u32 v4, v4, 3, v1")
    p("v_add_u32 v5, 4, v4")
    p("v_min_u32 v4, 25, v4")
    p("v_min_u32 v5, 25, v5")
    p("v_and_b32 v6, 3, v0")
    p(f"s_mul_i32 s{S_T}, s{S_C}, 384")
    p(f"s_add_u32 s{S_T}, s{S_T}, {P_W3}")
    p(f"v_lshl_add_u32 v6, v6, 3, s{S_T}")
    p(f"s_movk_i32 s{S_T+1}, 1352")
    p(f"v_mad_u32_u24 v2, v4, s{S_T+1}, v6")
    p(f"v_mad_u32_u24 v3, v5, s{S_T+1}, v6")
    p(f"s_mul_i32 s{S_T}, s{S_C}, 192")
    p(f"s_movk_i32 s{S_T+1}, -1662")
    p(f"v_mov_b32 v7, {P_DUM}")
    for u in range(3):
        p(f"v_add_u32 v4, s{S_T}, v0")
        if u < 2: p(f"s_add_u32 s{S_T}, s{S_T}, 64")
        p("v_mul_u32_u24 v5, 2521, v4")
        p("v_lshrrev_b32 v5, 16, v5")
        p("v_cmp_gt_u32 vcc, 0x2a4, v4")
        p("v_lshlrev_b32 v4, 6, v4")
        p(f"v_mad_i32_i24 v4, v5, s{S_T+1}, v4")
        p(f"v_add_u32 v4, {P_M3T}, v4")
        p(f"v_cndmask_b32 v{8+u}, v7, v4, vcc")
    p("v_and_b32 v5, 31, v0")
    p("v_lshrrev_b32 v4, 5, v0")
    p("v_lshlrev_b32 v6, 6, v5")
    p("v_lshl_add_u32 v6, v4, 4, v6")
    p(f"v_add_u32 v28, {P_M3T}, v6")
    p("v_mul_u32_u24 v5, 0x90, v5")
    p("v_lshl_add_u32 v5, v4, 4, v5")
    p(f"v_add_u32 v29, {P_D1}, v5")
    p("v_lshrrev_b32 v1, 1, v0")
    p("v_lshl_add_u32 v4, v1, 1, 1")
    p("v_add_u32 v5, 22, v1")
    p("v_min_u32 v4, v5, v4")
    p("v_lshlrev_b32 v5, 1, v1")
    p(f"s_cmp_eq_u32 s{S_C}, 0")
    p("s_cselect_b64 vcc, -1, 0")
    p("v_and_b32 v6, 1, v0")
    p(f"v_mov_b32 v11, {PS}")
    p("v_cndmask_b32 v4, v5, v4, vcc")
    p("v_lshl_add_u32 v4, v4, 1, v6")
    p("v_lshlrev_b32 v30, 4, v4")
    p(f"v_add_u32 v4, {P_M3T + 26*64 - CO}, v{V_C}")
    p(f"s_cmp_lg_u32 s{S_C}, 3")
    p.wait0(vm=True)
    p("s_cbranch_scc1 L_w1")
    p("s_mov_b64 exec, 0x1fff")
    p("ds_write_b32 v4, v27")
    p("s_mov_b64 exec, -1")
    p.label("L_w1")
    stamp(10)
    p("s_barrier")
    extra = []
    for u in range(8):
        extra.append(f"v_add_u32_sdwa v{GA+2*u}, v11, v{TBL+u} dst_sel:DWORD dst_unused:UNUSED_PAD src0_sel:DWORD src1_sel:WORD_0")
        extra.append(f"v_add_u32_sdwa v{GA+2*u+1}, v11, v{TBL+u} dst_sel:DWORD dst_unused:UNUSED_PAD src0_sel:DWORD src1_sel:WORD_1")
    for u in range(8): extra.append(f"v_lshl_or_b32 v{VF+u}, v{VV+2*u+1}, 16, v{VV+2*u}")
    def m3_mfma(U):
        u, q = divmod(U, 4)
        p.wait(lg=f"m{U}")
        cc = "0" if q == 0 else f"v[{12+4*u}:{15+4*u}]"
        p(f"v_mfma_f32_16x16x32_bf16 v[{12+4*u}:{15+4*u}], v[{AQ+4*q}:{AQ+4*q+3}], v[{MB+4*U}:{MB+4*U+3}], {cc}")
    for T in range(12):
        p.lds(f"ds_read_b64_tr_b16 v[{MB+4*T}:{MB+4*T+1}], v2 offset:{32*T}", f"m{T}")
        p.lds(f"ds_read_b64_tr_b16 v[{MB+4*T+2}:{MB+4*T+3}], v3 offset:{32*T}", f"m{T}")
        if T == 5:
            for _ in range(8): p(extra.pop(0))
        if T >= 6: m3_mfma(T - 6)
    for U in range(6, 12):
        m3_mfma(U)
        if U == 8:
            p("v_cvt_pk_bf16_f32 v24, v12, v12")
            p("ds_write_b16 v8, v24")
        else:
            for _ in range(2): p(extra.pop(0))
    p("v_cvt_pk_bf16_f32 v25, v16, v16")
    p("ds_write_b16 v9, v25")
    while extra: p(extra.pop(0))
    p(f"v_cvt_pk_bf16_f32 v26, v20, v20")
    p(f"ds_write_b16 v10, v26")
    p.wait0(lg=True)
    p("s_barrier")
    stamp(11)
    p(f"s_cmp_eq_u32 s{S_C}, 0")
    p("s_cbranch_scc1 L_pT")
    p(f"s_cmp_lg_u32 s{S_C}, 1")
    p("s_cbranch_scc1 L_pdone")
    for u in range(16): p(f"v_mov_b32 v{MB+16+u}, 0")
    for u in range(16): p(f"ds_read_u16_d16_hi v{MB+16+u}, v{GA+u}")
    p("s_mov_b32 exec_hi, 0xfff")
    p("s_branch L_pst")
    p.label("L_pT")
    p("ds_read_b128 v[12:15], v28")
    p("ds_read_b128 v[16:19], v28 offset:32")
    p("s_waitcnt lgkmcnt(1)")
    p(f"v_mfma_f32_32x32x16_bf16 v[{MB}:{MB+15}], v[{VF}:{VF+3}], v[12:15], 0")
    p("s_waitcnt lgkmcnt(0)")
    p(f"v_mfma_f32_32x32x16_bf16 v[{MB}:{MB+15}], v[{VF+4}:{VF+7}], v[16:19], v[{MB}:{MB+15}]")
    p("s_nop 11")
    for a in range(4): p(f"ds_write_b128 v29, v[{MB+4*a}:{MB+4*a+3}] offset:{32*a}")
    for u in range(16): p(f"ds_read_b32 v{MB+16+u}, v{GA+u}")
    p("s_mov_b32 exec_hi, 0xffff")
    p.label("L_pst")
    for e in range(8):
        if e % 2 == 0: p(f"s_waitcnt lgkmcnt({12 - 2*e})")
        p(f"v_add_f32 v{MB+16+2*e}, v{MB+16+2*e}, v{MB+16+2*e+1}")
        if e % 2:
            p(f"v_cvt_pk_bf16_f32 v{4+e//2}, v{MB+14+2*e}, v{MB+16+2*e}")
            p(f"v_min_u32 v{4+e//2}, -2, v{4+e//2}")
    p(f"buffer_store_dwordx4 v[4:7], v30, s[{S_WS}:{S_WS+3}], s{S_T+2} offen sc1")
    p(f"v_mov_b32 v8, s{S_C}")
    p("v_lshlrev_b32 v8, 2, v8")
    p("s_mov_b64 exec, 1")
    p(f"buffer_store_dword v{V_ONE}, v8, s[{S_WS}:{S_WS+3}], s{S_T+2} offen offset:1536 sc1")
    p.label("L_pdx")
    p("s_mov_b64 exec, -1")
    p.label("L_pdone")
    stamp(21)
    cinit_loads()
    p("s_waitcnt vmcnt(0)")
    p("s_branch L_setup")
    p.label("L_xwave")
    S_J, S_XA, S_XB, S_XM, S_TB = S_W, S_T+2, S_T+3, S_T+4, S_T+5
    p(f"s_sub_u32 s{S_J}, s{S_WAVE}, 4")
    p(f"s_lshl3_add_u32 s3, s{S_RG}, s{S_CP}")
    p(f"s_lshr_b32 s{S_FB}, s{S_J}, 1")
    p(f"s_lshl2_add_u32 s3, s{S_FB}, s3")
    p(f"s_mul_i32 s3, s3, 1664")
    p(f"s_and_b32 s{S_X}, s{S_J}, 1")
    p(f"s_mul_i32 s{S_X}, s{S_X}, 832")
    p(f"s_add_u32 s3, s3, s{S_X}")
    p(f"s_mul_i32 s{S_X}, s{S_J}, 832")
    p(f"s_add_u32 m0, s{S_X}, {IX2}")
    p(f"s_lshr_b32 s{S_X}, s2, 6")
    p(f"s_mul_i32 s{S_X}, s{S_X}, 3")
    p(f"s_add_u32 s{S_X}, s{S_X}, s{S_CP}")
    p(f"s_lshl2_add_u32 s{S_X}, s{S_X}, s{S_J}")
    p(f"s_mul_i32 s{S_X}, s{S_X}, {52*128}")
    p(f"s_add_u32 s{S_X}, s{S_X}, {(2496 - 4*52)*128}")
    p.wait0(lg=True)
    p(f"s_mov_b64 s[{S_IDX}:{S_IDX+1}], s[{KA}:{KA+1}]")
    p(f"s_mov_b64 s[{S_W1}:{S_W1+1}], s[{KA+8}:{KA+9}]")
    p("s_mov_b32 exec_hi, 0xfffff")
    p(f"buffer_load_dwordx4 v{V_L}, s[{S_IDX}:{S_IDX+3}], s3 offen lds")
    p("s_mov_b32 exec_hi, -1")
    p(f"s_mov_b64 s[{S_WCO}:{S_WCO+1}], s[{KA+6}:{KA+7}]")
    p(f"s_mov_b64 s[{S_BOUT}:{S_BOUT+1}], s[{KA+14}:{KA+15}]")
    srd(S_TAB, 2, 6400000)
    if cfg.etouch:
        p(f"s_cmp_eq_u32 s{S_CP}, 0")
        p("s_cbranch_scc1 L_noet")
        touch(160, S_X, (1 << 52) - 1)
        p("s_waitcnt vmcnt(1)")
        p.label("L_noet")
    p("v_lshrrev_b32 v1, 4, v0")
    p("v_and_b32 v2, 12, v0")
    p(f"s_mul_i32 s3, s{S_J}, 104")
    p(f"s_add_u32 s3, s3, {IX2}")
    p(f"v_add_u32 v2, s3, v2")
    p(f"s_movk_i32 s{S_X}, 416")
    p(f"v_mad_u32_u24 v3, v1, s{S_X}, v2")
    if cfg.bal:
        p(f"s_cmp_eq_u32 s{S_J}, 3")
        p(f"s_cselect_b32 s{S_X}, 104, 312")
        p(f"s_cselect_b32 s3, {13*104}, {20*104}")
        p(f"v_add_u32 v2, s3, v2")
        p(f"v_mad_u32_u24 v4, v1, s{S_X}, v2")
    else: p("v_add_u32 v4, 0x680, v3")
    p("v_and_b32 v1, 3, v0")
    p("v_lshlrev_b32 v5, 4, v1")
    p("v_bfe_u32 v1, v0, 3, 1")
    p("v_lshl_add_u32 v6, v1, 30, v5")
    p(f"s_mul_i32 s{S_XM}, s{S_J}, 7168")
    p(f"s_lshr_b32 s{S_TB}, s2, 4")
    p(f"s_lshl2_add_u32 s{S_TB}, s{S_TB}, s{S_J}")
    p(f"s_mul_i32 s{S_TB}, s{S_TB}, {46*128}")
    p(f"s_add_u32 s{S_TB}, s{S_TB}, {4992*128}")
    assert not cfg.etouch
    producer_index()
    S_PR = S_T + 6
    p(f"s_cmp_eq_u32 s{S_J}, 0")
    p(f"s_cselect_b32 s{S_PR}, s{S_FB}, 99")
    p(f"s_cmp_ge_u32 s{S_PR}, 26")
    p("s_cbranch_scc1 L_noclr")
    for r in range(4): p(f"v_mov_b32 v{12+r}, -1")
    p(f"s_mul_i32 s{S_T}, s{S_FB}, {BLK}")
    p(f"s_add_u32 s{S_T}, s{S_T}, {WS_W}")
    p(f"buffer_store_dwordx4 v[12:15], v{V_L}, s[{S_WS}:{S_WS+3}], s{S_T} offen sc1")
    p("s_mov_b32 exec_hi, 0xff")
    p(f"buffer_store_dwordx4 v[12:15], v{V_L}, s[{S_WS}:{S_WS+3}], s{S_T} offen offset:1024 sc1")
    p("s_mov_b32 exec_hi, -1")
    p("s_waitcnt vmcnt(2)")
    p("s_branch L_clr")
    p.label("L_noclr")
    p("s_waitcnt vmcnt(0)")
    p.label("L_clr")
    p("s_barrier")
    for u in range(2):
        for Q in range(0, 6, 2): p(f"ds_read2_b32 v[{VT+7*u+u+Q}:{VT+7*u+u+Q+1}], v{3+u} offset0:{4*Q} offset1:{4*Q+4}")
        p(f"ds_read_b32 v{VT+8*u+6}, v{3+u} offset:96")
    stamp(1)
    p.vm.clear()
    assert cfg.xwin < 14
    p.wait0(lg=True)
    go_done = False
    for Q in range(7):
        for u in range(2):
            n = 2*Q + u
            if n == cfg.xbar and not cfg.noprep:
                p(f"s_cmp_ge_u32 s{S_FB}, 26")
                p("s_cbranch_scc1 L_nobar")
                p("s_barrier")
                p(f"s_waitcnt vmcnt({n})")
                p(f"s_cmp_ge_u32 s{S_PR}, 26")
                p("s_cbranch_scc1 L_noat")
                p("v_mov_b32 v12, 0")
                p("s_mov_b64 exec, 1")
                p(f"global_atomic_add v27, v12, v{V_ONE}, s[{S_DBG}:{S_DBG+1}] sc0 sc1")
                p("s_mov_b64 exec, -1")
                p.label("L_noat")
                p("s_barrier")
                p(f"s_cmp_ge_u32 s{S_PR}, 26")
                p("s_cbranch_scc1 L_nobar")
                last_marker("L_lm")
                p.label("L_lm")
                p("s_mov_b64 exec, -1")
                p.label("L_nobar")
            if n == cfg.xstart and n: p.wait(vm="x0")
            if n >= cfg.xwin:
                p.wait(vm=f"x{n - cfg.xwin}")
                if n - cfg.xwin == 2*cfg.gon + 1: arrive(C_GO); go_done = True
            p(f"s_add_u32 m0, s{S_XM}, {XO + 4*7168*u + 1024*Q}")
            p(f"v_lshl_add_u32 v{VT+8*u+Q}, v{VT+8*u+Q}, 6, v{6 if Q == 6 else 5}")
            p.vmem(f"buffer_load_dwordx4 v{VT+8*u+Q}, s[{S_TAB}:{S_TAB+3}], 0 offen lds", f"x{n}")
        for u, at in enumerate((cfg.lt0, cfg.lt1)):
            if at == Q and cfg.ltouch:
                touch(160, S_TB, (1 << 46) - 1); p.vm.issue("t")
                p(f"s_add_u32 s{S_TB}, s{S_TB}, {2944*128}")
    def late_touch():
        touch(160, S_TB, (1 << 46) - 1); p.vm.issue("t")
        p(f"s_add_u32 s{S_TB}, s{S_TB}, {2944*128}")
    cinit_loads()
    for _ in range(5): p.vm.issue("ci")
    if not go_done:
        p.wait(vm=f"x{2*cfg.gon+1}")
        arrive(C_GO)
    p.wait(vm="x13")
    arrive(C_XL)
    p.wait(vm="ci")
    for at in (cfg.lt0, cfg.lt1):
        if at == 7 and cfg.ltouch: late_touch()
    if cfg.ltouch and cfg.lt1 == 8: p(f"s_mov_b32 s{S_FB}, s{S_TB}")
    stamp(6)

    p.label("L_setup")
    if cfg.stamps: p(f"s_mov_b32 s{S_ST+27}, 0")
    p(f"s_setprio {cfg.prio_prep}")
    p.vm.clear(); p.lg.clear()
    AX, AT, CI, X0 = 0, 16, 32, 48
    Z = [74, 78]; PT = 82; ZL = 90
    XA = {1: 98, -3: 99, -1: 100}; WA = 101; SM = [102, 103, 104, 105]; MBX = 106; VMB = 110; VBO = 111
    RING = 112; RES = RING + 4*cfg.R
    WT = 112
    assert RES + 4*cfg.NRES <= 256
    NR = 4
    S_N, S_MB, S_O = S_T+7, S_T+9, S_T+11
    S_NR = S_T + 12
    p(f"s_and_b32 s{S_T+3}, s{S_WAVE}, 3")
    p(f"s_lshl_b32 s{S_T+2}, s{S_T+3}, 2")
    p(f"s_lshl_b32 s{S_T}, s{S_T+3}, 8")
    p(f"s_mov_b32 s{S_N}, 4")
    p(f"s_add_u32 s{S_T+2}, s{S_T+2}, 3")
    p(f"s_cmp_lt_u32 s{S_WAVE}, 4")
    p("s_cbranch_scc1 L_rowp")
    p(f"s_add_u32 s{S_T}, s{S_T}, {4*7168}")
    if cfg.bal:
        p(f"s_mov_b32 s{S_N}, 3")
        p(f"s_mul_i32 s{S_T+2}, s{S_T+3}, 3")
        p(f"s_add_u32 s{S_T+2}, s{S_T+2}, 70")
    else: p(f"s_add_u32 s{S_T+2}, s{S_T+2}, 64")
    p.label("L_rowp")
    p(f"s_lshl4_add_u32 s{S_T+2}, s{S_CP}, s{S_T+2}")
    p.label("L_setup2")
    p(f"s_mov_b32 s{S_NR}, s{S_N}")
    p("v_and_b32 v1, 31, v0")
    p("v_lshrrev_b32 v2, 5, v0")
    p(f"v_lshl_add_u32 v3, v1, 1, s{S_T}")
    p(f"v_lshl_add_u32 v{XA[1]}, v2, 6, v3")
    p("v_mul_u32_u24 v4, 0xc0, v2")
    p(f"v_sub_u32 v{XA[-3]}, v3, v4")
    p("v_lshlrev_b32 v4, 6, v2")
    p(f"v_sub_u32 v{XA[-1]}, v3, v4")
    p("v_mul_u32_u24 v4, 0x210, v2")
    p("v_lshl_add_u32 v4, v1, 4, v4")
    p(f"v_add_u32 v{WA}, {WO}, v4")
    for r in range(26): p(f"v_mov_b32 v{X0+r}, 0")
    for a in range(3):
        for h in range(2):
            p(f"v_lshlrev_b32 v{CI+4*a+2*h}, 16, v{CRAW+2*a+h}")
            p(f"v_and_b32 v{CI+4*a+2*h+1}, 0xffff0000, v{CRAW+2*a+h}")
    p(f"v_lshlrev_b32 v{CI+12}, 16, v{CRAW+6}")
    for r in range(13, 16): p(f"v_mov_b32 v{CI+r}, 0")
    p(f"v_lshlrev_b32 v{VBO}, 16, v{CRAW+7}")
    p("v_lshrrev_b32 v1, 3, v0")
    p("v_min_u32 v3, 1, v1")
    p("v_lshlrev_b32 v2, 9, v0")
    p(f"v_lshl_add_u32 v{VMB}, v3, 30, v2")
    p(f"s_lshl_b32 s{S_T+1}, s{S_RG}, 7")
    p(f"s_add_u32 s{S_T+1}, s{S_T+1}, s{S_T+2}")
    p(f"s_lshl_b32 s{S_O}, s{S_T+1}, 1")
    p(f"s_lshl_b32 s{S_T}, s{S_RG}, 10")
    p(f"s_add_u32 s{S_MB}, s{S_T+2}, s{S_T}")
    p(f"s_sub_u32 s{S_MB}, s{S_MB}, 3")
    p(f"s_lshl_b32 s{S_MB}, s{S_MB}, 2")
    p(f"v_mov_b32 v{ZL+7}, 0")
    p(f"s_cmp_ge_u32 s{S_WAVE}, 4")
    p("s_cbranch_scc1 L_xz")
    p("v_and_b32 v2, 7, v0")
    p(f"v_mul_u32_u24 v3, {BLK}, v1")
    p("v_lshl_add_u32 v3, v2, 4, v3")
    p("v_mul_u32_u24 v4, 0x210, v2")
    p(f"s_mul_i32 s{S_T}, s{S_C}, {24*528}")
    p(f"s_add_u32 s{S_T}, s{S_T}, {WO}")
    p(f"v_add_u32 v4, s{S_T}, v4")
    p("v_lshl_add_u32 v5, v1, 4, v4")
    p("v_cmp_eq_u32 vcc, 1, v1")
    p("v_add_u32 v6, 48, v5")
    p("v_subrev_u32 v7, 48, v5")
    p("v_cndmask_b32 v6, v5, v6, vcc")
    p("v_cmp_eq_u32 vcc, 4, v1")
    p(f"s_cmp_eq_u32 s{S_C}, 3")
    p(f"s_cselect_b32 s{S_T+1}, 4, 0")
    p("v_cndmask_b32 v6, v6, v7, vcc")
    p(f"v_and_b32 v7, s{S_T+1}, v2")
    p("v_lshl_add_u32 v7, v7, 28, v3")
    p("v_and_b32 v8, 31, v0")
    p("v_lshrrev_b32 v9, 5, v0")
    p(f"v_mul_u32_u24 v8, {BLK}, v8")
    p("v_lshl_add_u32 v8, v9, 2, v8")
    p(f"s_mul_i32 s{S_T}, s{S_C}, 384")
    p(f"s_add_u32 s{S_T}, s{S_T}, {WS_W}")
    p(f"s_and_b32 s{S_T+1}, s{S_CP}, {1 if cfg.wrot else 0}")
    p(f"s_mul_i32 s{S_T+2}, s{S_T+1}, 26624")
    for k in range(4):
        p(f"s_xor_b32 s{S_T+3+k}, s{S_T+2}, {26624*(k >> 1)}")
        p(f"s_add_u32 s{S_T+3+k}, s{S_T+3+k}, s{S_T}")
        if k & 1: p(f"s_add_u32 s{S_T+3+k}, s{S_T+3+k}, 13312")
    p(f"s_lshl_b32 s{S_T+2}, s{S_T+1}, 8")
    p(f"s_cmp_eq_u32 s{S_T+1}, 0")
    p("s_cselect_b64 vcc, -1, 0")
    p(f"v_add_u32 v12, s{S_T+2}, v5")
    p(f"s_xor_b32 s{S_T+2}, s{S_T+2}, 0x100")
    p("v_add_u32 v6, 0x180, v6")
    p("v_add_u32 v15, 0x80, v5")
    p(f"v_add_u32 v14, s{S_T+2}, v5")
    p("v_cndmask_b32 v13, v6, v15, vcc")
    p("v_cndmask_b32 v15, v15, v6, vcc")
    p("v_mov_b32 v10, 0")
    check(C_GO, 4, sleep=2)
    stamp(22)
    p(f"s_mov_b32 s{S_T+13}, {WS_W}")
    if cfg.noprep: p("s_branch L_wload")
    if cfg.direct:
        p(f"s_load_dword s{S_X}, s[{S_DBG}:{S_DBG+1}], 192")
        p("s_waitcnt lgkmcnt(0)")
        p(f"s_cmp_lg_u32 s{S_X}, 0")
        p("s_cbranch_scc1 L_wload")
        if cfg.stamps: p(f"s_add_u32 s{S_ST+27}, s{S_ST+27}, 100")
    p(f"s_cmp_lg_u32 s{S_C}, 0")
    p("s_cbranch_scc1 L_pw")
    p.label("L_probe")
    p(f"global_load_dword v11, v10, s[{S_DBG}:{S_DBG+1}] offset:128 sc1")
    p(f"buffer_load_dword v9, v8, s[{S_WS}:{S_WS+3}], s{S_T+13} offen offset:1536 sc1")
    p("s_waitcnt vmcnt(0)")
    p("v_add_u32 v11, -1, v11")
    p("v_max_u32 v9, v9, v11")
    p("v_cmp_eq_u32 vcc, -1, v9")
    p("s_nop 1")
    p("s_cmp_eq_u64 vcc, 0")
    p("s_cbranch_scc1 L_wload")
    p.label("L_retry")
    if cfg.stamps: p(f"s_add_u32 s{S_ST+27}, s{S_ST+27}, 1")
    p(f"s_sleep {cfg.poll_sleep}")
    p(f"s_sub_u32 s{S_SPIN}, s{S_SPIN}, 1")
    p("s_cbranch_scc0 L_probe")
    p("s_endpgm")
    p.label("L_pw")
    check(C_FLAG, 1, sleep=2)
    p("s_branch L_wl2")
    p.label("L_wload")
    arrive(C_FLAG)
    p.label("L_wl2")
    stamp(2)
    for J in range(4):
        for Fi in range(3):
            r = WT + 4*(3*J + Fi)
            p.vmem(f"buffer_load_dwordx4 v[{r}:{r+3}], v{7 if Fi == 2 else 3}, s[{S_WS}:{S_WS+3}], s{S_T+3+J} offen offset:{128*Fi} sc1", f"w{J}{Fi}")
    first = True
    for J in range(4):
        for Fi in range(3):
            r = WT + 4*(3*J + Fi)
            p.wait(vm=f"w{J}{Fi}")
            p(f"ds_write_b128 v{12+J}, v[{r}:{r+3}] offset:{4224*Fi}")
            if first: p(f"v_max_u32 v9, v{r}, v{r+1}")
            else: p(f"v_max3_u32 v9, v{r}, v{r+1}, v9")
            p(f"v_max3_u32 v9, v{r+2}, v{r+3}, v9")
            first = False
    p("v_cmp_eq_u32 vcc, -1, v9")
    p("s_nop 1")
    p("s_cmp_eq_u64 vcc, 0")
    p("s_cbranch_scc0 L_retry")
    p.label("L_xz")
    check(C_XL, 4, sleep=cfg.idle_sleep)
    def x_read(r):
        p.lds(f"ds_read_u16_d16_hi v{X0+r}, v{XA[pi(r)-r]} offset:{1024*(r >> 2) + 64*(r & 3)}", f"x{r}")
    for r in range(26): x_read(r)
    def z_ops(n):
        ops = []
        for e in range(4):
            t = PT + 2*(e % 4)
            (a, b), (c, d) = S[8*n + 2*e], S[8*n + 2*e + 1]
            ops.append(("v", f"v_mul_f32 v{t}, v{X0+a}, v{X0+b}", (a, b)))
            ops.append(("v", f"v_mul_f32 v{t+1}, v{X0+c}, v{X0+d}", (c, d)))
        cv = [("v", f"v_cvt_pk_bf16_f32 v{Z[n % 2]+e}, v{PT+2*e}, v{PT+2*e+1}", ()) for e in range(4)]
        return ops[0:4] + cv[0:1] + ops[4:6] + cv[1:2] + ops[6:8] + cv[2:4]
    for o in z_ops(0):
        p.wait(lg=tuple(f"x{r}" for r in o[2]))
        p(o[1])
    for d in XA.values(): p(f"v_add_u32 v{d}, 0x1c00, v{d}")
    p.wait0(lg=True)
    p("s_barrier")
    if cfg.ltouch and cfg.lt1 == 8:
        p(f"s_cmp_lt_u32 s{S_WAVE}, 4")
        p("s_cbranch_scc1 L_go")
        touch(160, S_FB, (1 << 46) - 1)
    p.label("L_go")
    p("s_setprio 0")
    if cfg.flip:
        p(f"s_cmp_lt_u32 s{S_WAVE}, 4")
        p("s_cbranch_scc1 L_prio")
        p(f"s_setprio 1")
        p.label("L_prio")
    stamp(3)
    order = []
    for n in range(22):
        order.append(("X", n)); order.append(("T", n))
        if n == 14: order.append(("T", 22))
        if n == 18: order.append(("T", 23))
    fr_of = lambda k, n: (2*n if k == "X" else 2*n + 1) if n < 22 else n + 22
    nn = 46 - cfg.NRES
    assert nn % cfg.R == 0
    nonres = [int((u + 0.5)*46/nn) for u in range(nn)]
    wreg = {}; rr = 0
    for k in range(46):
        if k in nonres: wreg[k] = RING + 4*(nonres.index(k) % cfg.R)
        else: wreg[k] = RES + 4*rr; rr += 1
    def w_read(k):
        p.lds(f"ds_read_b128 v[{wreg[k]}:{wreg[k]+3}], v{WA} offset:{1056*fr_of(*order[k])}", f"w{k}")
    for k in range(46):
        if k not in nonres or nonres.index(k) < cfg.R: w_read(k)
    p.wait0(lg=True)
    stamp(5)
    def mfma(k):
        kind, n = order[k]
        zb = Z[n % 2] if n < 22 else ZL + 4*(n - 22)
        acc = AX if kind == "X" else AT
        cc = f"v[{acc}:{acc+15}]"
        if n == 0: cc = "0" if kind == "X" else f"v[{CI}:{CI+15}]"
        return f"v_mfma_f32_32x32x16_bf16 v[{acc}:{acc+15}], v[{wreg[k]}:{wreg[k]+3}], v[{zb}:{zb+3}], {cc}"
    lin_ops = []
    for u in range(8):
        a = LIN[min(2*u, 12)]; b = LIN[min(2*u + 1, 12)]
        lin_ops.append(("v", f"v_cvt_pk_bf16_f32 v{ZL+u}, v{X0+a}, v{X0+b}", (a, b)))
    def body(emit_mb):
        groups = [z_ops(n) for n in range(1, 22)] + [z_ops(0)]
        groups[10] = lin_ops[:7] + groups[10]
        flat = [(g, o) for g, ops in enumerate(groups) for o in ops]
        lastuse = {}
        for i, (g, o) in enumerate(flat):
            if g < 21:
                for r in o[2]: lastuse[r] = i
        for r in range(26): lastuse.setdefault(r, -1)
        for g, ops in enumerate(groups):
            mf = [kk for kk in range(46) if order[kk] in (("X", g), ("T", g))]
            if g == 14: mf.append(order.index(("T", 22)))
            if g == 18: mf.append(order.index(("T", 23)))
            items = []
            base = sum(len(x) for x in groups[:g])
            if g == 0:
                for r in range(26):
                    if lastuse[r] == -1: items.append(("x", r))
            for i, o in enumerate(ops):
                items.append(o)
                for r in range(26):
                    if lastuse[r] == base + i: items.append(("x", r))
            if g == 21:
                pos = [0, 0]
            else:
                n_it = len(items)
                pos = [2 + (j*n_it)//len(mf) for j in range(len(mf))]
            j = 0
            for i, it in enumerate(items + [None]):
                while j < len(mf) and pos[j] <= i:
                    kk = mf[j]
                    if g == 21 and j == 0: p("s_nop 1")
                    p.wait(lg=f"w{kk}")
                    p(mfma(kk))
                    if kk in nonres:
                        w_read(nonres[(nonres.index(kk) + cfg.R) % nn])
                    j += 1
                if it is None: break
                if it[0] == "x": x_read(it[1])
                else:
                    p.wait(lg=tuple(f"x{r}" for r in it[2]))
                    p(it[1])
            if g == 15: emit_mb()
        for k in range(NR - 1): p(f"v_mov_b32 v{SM[k]}, v{SM[k+1]}")
        for d in XA.values(): p(f"v_add_u32 v{d}, 0x1c00, v{d}")
        s0 = SM[NR-1]
        p(f"v_mul_f32 v{s0}, v{AX}, v{AT}")
        p(f"v_mul_f32 v{PT}, v{AX+1}, v{AT+1}")
        for r in range(2, 13):
            p(f"v_fmac_f32 v{s0 if r % 2 == 0 else PT}, v{AX+r}, v{AT+r}")
        p(f"s_sub_u32 s{S_N}, s{S_N}, 1")
        p(f"v_add_f32 v{s0}, v{s0}, v{PT}")
    def mb_loads():
        p(f"buffer_load_dwordx{NR} v[{MBX}:{MBX+NR-1}], v{VMB}, s[{S_WS}:{S_WS+3}], s{S_MB} offen sc1")
    def emit_mb():
        sk = L("nomb")
        p(f"s_cmp_lg_u32 s{S_N}, 1")
        p(f"s_cbranch_scc1 {sk}")
        mb_loads()
        p.label(sk)
    save = p.L; p.L = []
    body(lambda: None)
    st1 = list(p.lg.q)
    p.L = save
    p(".p2align 3")
    p.label("L_row")
    body(emit_mb)
    assert st1 == p.lg.q
    if cfg.stamps in (1, 2):
        for i in range(3): p(f"s_mov_b32 s{S_ST+23+i}, s{S_ST+24+i}")
        stamp(26)
    if cfg.flip:
        p(f"s_cmp_lg_u32 s{S_N}, {4 - cfg.flip}")
        p("s_cbranch_scc1 L_noflip")
        p("s_setprio 0")
        p.label("L_noflip")
    p(f"s_cmp_lg_u32 s{S_N}, 0")
    p("s_cbranch_scc1 L_row")
    p.label("L_mbw")
    p("s_waitcnt vmcnt(0)")
    if NR == 4:
        p(f"v_max3_u32 v1, v{MBX}, v{MBX+1}, v{MBX+2}")
        p(f"v_max_u32 v1, v1, v{MBX+3}")
    else: p(f"v_max_u32 v1, v{MBX}, v{MBX+1}")
    p("v_cmp_eq_u32 vcc, -1, v1")
    p("s_nop 1")
    p("s_cmp_eq_u64 vcc, 0")
    p("s_cbranch_scc1 L_mbok")
    p("s_sleep 1")
    mb_loads()
    p(f"s_sub_u32 s{S_SPIN}, s{S_SPIN}, 1")
    p("s_cbranch_scc0 L_mbw")
    p("s_endpgm")
    p.label("L_mbok")
    for k in range(NR): p(f"v_add_f32 v{SM[k]}, v{SM[k]}, v{MBX+k}")
    for ctl in ("quad_perm:[1,0,3,2] row_mask:0xf", "quad_perm:[2,3,0,1] row_mask:0xf", "row_half_mirror row_mask:0xf",
                "row_mirror row_mask:0xf", "row_bcast:15 row_mask:0xa", "row_bcast:31 row_mask:0xc"):
        if NR == 2: p("s_nop 0")
        for k in range(NR): p(f"v_add_f32_dpp v{SM[k]}, v{SM[k]}, v{SM[k]} {ctl} bank_mask:0xf")
    for k in range(NR): p(f"v_add_f32 v{SM[k]}, v{SM[k]}, v{VBO}")
    p(f"v_cvt_pk_bf16_f32 v2, v{SM[0]}, v{SM[1]}")
    p(f"v_cvt_pk_bf16_f32 v3, v{SM[2]}, v{SM[3]}")
    p(f"v_mov_b32 v1, s{S_O}")
    p("s_mov_b32 exec_lo, 0")
    p("s_mov_b32 exec_hi, 0x80000000")
    if cfg.bal:
        p(f"s_cmp_eq_u32 s{S_NR}, 4")
        p("s_cbranch_scc1 L_st4")
        p(f"global_store_short_d16_hi v1, v3, s[{S_OUT}:{S_OUT+1}]")
        p(f"s_cmp_eq_u32 s{S_NR}, 1")
        p("s_cbranch_scc1 L_std")
        p(f"global_store_short v1, v3, s[{S_OUT}:{S_OUT+1}] offset:-2")
        p(f"global_store_short_d16_hi v1, v2, s[{S_OUT}:{S_OUT+1}] offset:-4")
        p("s_branch L_std")
        p.label("L_st4")
    p(f"global_store_dwordx2 v1, v[2:3], s[{S_OUT}:{S_OUT+1}] offset:-6")
    p.label("L_std")
    stamps_out()
    p.label("L_end")
    p("s_endpgm")

    p.vm.q = dnn_vm; p.lg.clear()
    p(".p2align 6")
    p.label("L_dnn")
    ACC = lambda t, q: 8*t + 4*q
    BF = lambda t: 56 + 4*t
    AR = lambda f, q: 84 + 8*(f % 2) + 4*q
    IDX = lambda f: 100 + f
    VO = lambda u: 128 + u
    V_B, V_A, V_CH, V_LANE, V_G8 = [130, 131, 132], [133, 134, 135], 136, 137, 138
    RAW = 140; RAW2 = 200
    S_SB, S_M0, S_AM = S_T+2, S_T+3, S_T+4
    if cfg.probe:
        p("s_cmp_ge_u32 s2, 8")
        p("s_cbranch_scc1 L_pr1")
        p("s_lshl_b32 s90, s2, 2")
        p("v_mov_b32 v1, s90")
        p("v_mov_b32 v2, s96")
        p(f"global_store_dword v1, v2, s[{S_DBG}:{S_DBG+1}] offset:8 sc1")
        p("s_waitcnt vmcnt(0)")
        p.label("L_pr1")
    srd(S_B1, 10, 1664)
    srd(S_TAB, 2, 6400000)
    srd(S_W2, 12, 1664)
    srd(S_WS, None, WS_END)
    if cfg.pxa >= 0:
        p("s_getreg_b32 s91, hwreg(HW_REG_XCC_ID)")
        p("s_and_b32 s91, s91, 15")
        p(f"s_cmp_lg_u32 s2, {cfg.pxa}")
        p("s_cbranch_scc1 L_pxa")
        p("v_mov_b32 v1, 0")
        p("v_mov_b32 v2, s91")
        p(f"global_store_dword v1, v2, s[{S_DBG}:{S_DBG+1}] offset:8 sc1")
        p("s_waitcnt vmcnt(0)")
        p.label("L_pxa")
    if cfg.plat:
        sr_, off = {1: (S_TAB, 3000320), 2: (S_W1, 1300096), 3: (S_WS, 4096), 4: (S_TAB, 5000320)}[cfg.plat]
        p("s_waitcnt vmcnt(0)")
        p(f"v_mov_b32 v1, {off}")
        p(f"buffer_load_dword v2, v1, s[{sr_}:{sr_+3}], 0 offen offset:2048")
        p("s_waitcnt vmcnt(0)")
        p("s_lshl_b32 s90, s2, 7")
        p("s_memrealtime s[94:95]")
        p("s_waitcnt lgkmcnt(0)")
        p(f"buffer_load_dword v2, v1, s[{sr_}:{sr_+3}], s90 offen offset:4)".replace(")", ""))
        p("s_waitcnt vmcnt(0)")
        p("s_memrealtime s[92:93]")
        p("s_waitcnt lgkmcnt(0)")
        p("s_sub_u32 s92, s92, s94")
        p("s_mul_i32 s92, s92, 10")
        p("s_add_u32 s92, s92, s96")
    stamp(10)
    p(f"s_mov_b32 s{S_SPIN}, 0x40000")
    p(f"s_mul_i32 s{S_COL}, s{S_CP}, 416")
    S_M1, S_WR = S_T+5, S_T+6
    p(f"s_mov_b32 s{S_SB}, s{S_COL}")
    p(f"s_and_b32 s{S_WR}, s{S_WAVE}, 3")
    p(f"s_lshl_b32 s{S_T}, s{S_WAVE}, 1")
    p(f"s_sub_u32 s{S_T}, s{S_T}, 4")
    p(f"s_add_u32 s{S_T+1}, s{S_T}, 1")
    p(f"s_cmp_lt_u32 s{S_WAVE}, 4")
    p(f"s_cselect_b32 s{S_M0}, s{S_WAVE}, s{S_T}")
    p(f"s_cselect_b32 s{S_M1}, 12, s{S_T+1}")
    p(f"s_lshl_b32 s{S_M0}, s{S_M0}, 10")
    p(f"s_lshl_b32 s{S_M1}, s{S_M1}, 10")
    p(f"s_lshl_b32 s{S_AM}, s{S_WAVE}, 10")
    p(f"s_add_u32 s{S_AM}, s{S_AM}, {BSZ}")
    p(f"s_lshr_b32 s{S_T}, s{S_WAVE}, 2")
    p(f"s_mul_i32 s{S_T}, s{S_T}, 224")
    p(f"s_add_u32 s{S_COL}, s{S_COL}, s{S_T}")
    p(f"s_movk_i32 s{S_T+1}, 1248")
    p(f"s_movk_i32 s{S_T+7}, 6656")
    for u in range(2):
        p(f"v_add_u32 v3, s{(S_M0, S_M1)[u]}, v{V_L}")
        p("v_lshlrev_b32 v4, 4, v3")
        p("v_mul_hi_u32_u24 v4, 0x9d89e, v4")
        p("v_bfe_u32 v5, v4, 2, 1")
        p("v_bfe_i32 v6, v4, 3, 1")
        p("v_add_u32 v5, v5, v6")
        p(f"v_mad_i32_i24 v5, v5, s{S_T+7}, v3")
        p(f"v_mad_u32_u24 v{VO(u)}, v4, s{S_T+1}, v5")
    p("v_lshrrev_b32 v1, 4, v0")
    p(f"s_add_u32 s{S_T+1}, s{S_T}, {IDXO}")
    p(f"v_lshl_add_u32 v{V_G8}, v1, 3, s{S_T+1}")
    p("v_lshrrev_b32 v2, 2, v0")
    p(f"v_mul_u32_u24 v2, 104, v2")
    p(f"s_add_u32 s{S_W}, s{S_W}, {IDXO}")
    p(f"v_add_u32 v139, s{S_W}, v2")
    p("v_lshrrev_b32 v2, 5, v0")
    p("v_mul_u32_u24 v3, 3, v2")
    p("v_xor_b32 v3, v3, v0")
    p("v_and_b32 v3, 3, v3")
    p(f"v_lshlrev_b32 v{V_CH}, 4, v3")
    p("v_bfe_u32 v3, v0, 3, 1")
    p("v_mul_u32_u24 v3, 3, v3")
    p("v_xor_b32 v3, v3, v1")
    p("v_and_b32 v4, 15, v0")
    p("v_lshlrev_b32 v4, 6, v4")
    p("v_lshl_add_u32 v3, v3, 4, v4")
    p(f"s_and_b32 s{S_T+1}, s{S_WAVE}, 3")
    p(f"s_lshl_b32 s{S_T+1}, s{S_T+1}, 11")
    p(f"s_add_u32 s{S_T+1}, s{S_T+1}, {BSZ}")
    p(f"v_add_u32 v{V_A[0]}, s{S_T+1}, v3")
    p("v_bfe_u32 v3, v0, 2, 3")
    p("v_lshl_add_u32 v2, v2, 4, v3")
    p("v_mul_u32_u24 v2, 0x1a0, v2")
    p("v_and_b32 v3, 3, v0")
    p("v_lshl_add_u32 v2, v3, 3, v2")
    p(f"v_add_u32 v{V_B[0]}, s{S_T}, v2")
    for k in (1, 2):
        p(f"v_add_u32 v{V_A[k]}, {3*k*SLOT}, v{V_A[0]}")
        p(f"v_add_u32 v{V_B[k]}, {3*k*SLOT}, v{V_B[0]}")
    p(f"v_mov_b32 v{V_LANE}, v0")
    p.wait(vm="idx")
    stamp(1)
    if cfg.dbench:
        p("s_mov_b32 s3, 0")
        p.label("L_again")
    for m in range(6):
        p.lds(f"ds_read2_b64 v[{100+4*m}:{103+4*m}], v139 offset0:{2*m} offset1:{2*m+1}", f"ix{m}")
    p.lds("ds_read_b64 v[124:125], v139 offset:96", "ix6")
    def a_dma(f):
        p.wait(lg=f"ix{f >> 2}")
        p(f"s_add_u32 m0, s{S_AM}, {(f % RB)*SLOT}")
        p(f"v_lshl_add_u32 v{IDX(f)}, v{IDX(f)}, 6, v{V_CH}")
        p.vmem(f"buffer_load_dwordx4 v{IDX(f)}, s[{S_TAB}:{S_TAB+3}], 0 offen lds", f"F{f}")
    def b_dma(f, u, T):
        if u == 1:
            if f: p(f"s_add_u32 s{S_SB}, s{S_SB}, 53248")
            sk = L("np")
            if T != 6:
                if T == 0:
                    p(f"s_cmp_ge_u32 s{S_WAVE}, 4")
                    p(f"s_cselect_b32 s{S_X}, {f & 3}, s{S_WR}")
                    p(f"s_cmp_lg_u32 s{S_X}, {f & 3}")
                else: p(f"s_cmp_lg_u32 s{S_WR}, {f & 3}")
                p(f"s_cbranch_scc1 {sk}")
            p(f"s_add_u32 m0, s{S_M1}, {(f % RB)*SLOT}")
            p("s_nop 0")
            p(f"buffer_load_dwordx4 v{VO(1)}, s[{S_W1}:{S_W1+3}], s{S_SB} offen lds")
            if T == 6: p.vm.issue(f"F{f}")
            else: p.label(sk)
        else:
            p(f"s_add_u32 m0, s{S_M0}, {(f % RB)*SLOT}")
            p("s_nop 0")
            p.vmem(f"buffer_load_dwordx4 v{VO(0)}, s[{S_W1}:{S_W1+3}], s{S_SB} offen lds", f"F{f}")
    def fill(f, T): a_dma(f); b_dma(f, 1, T); b_dma(f, 0, T)
    BWO = IDXO
    p(f"s_cmp_ge_u32 s{S_WAVE}, {0 if cfg.dbench else 2}")
    p("s_cbranch_scc1 L_nobw")
    p(f"s_mul_i32 s{S_X}, s{S_CP}, 416")
    p(f"s_cmp_eq_u32 s{S_WAVE}, 0")
    p(f"s_cselect_b64 s[{S_W2}:{S_W2+1}], s[{S_B1}:{S_B1+1}], s[{S_W2}:{S_W2+1}]")
    p(f"s_mov_b32 m0, s{S_W}")
    p("s_mov_b64 exec, 0xfffffff")
    p("s_waitcnt lgkmcnt(0)")
    p(f"buffer_load_dwordx4 v{V_L}, s[{S_W2}:{S_W2+3}], s{S_X} offen lds")
    p("s_mov_b64 exec, -1")
    p.label("L_nobw")
    if cfg.sw < 26:
        p(f"v_lshlrev_b32 v{V_C}, 2, v{V_LANE}")
        p(f"v_add_u32 v{V_C}, {IDXO + 2*1664}, v{V_C}")
        p(f"v_mov_b32 v{V_ONE}, 1")
        p(f"s_cmp_lg_u32 s{S_WAVE}, 2")
        p("s_cbranch_scc1 L_noz")
        p(f"v_mov_b32 v{V_POLL}, 0")
        p("s_waitcnt lgkmcnt(0)")
        p(f"ds_write_b32 v{V_C}, v{V_POLL}")
        p("s_waitcnt lgkmcnt(0)")
        p.label("L_noz")
    def lo(f): return (f % RB)//3, ((f % RB) % 3)*SLOT
    def b_read1(f, t, r2):
        k, off = lo(f)
        p.lds(f"ds_read_b64_tr_b16 v[{BF(t)+2*r2}:{BF(t)+2*r2+1}], v{V_B[k]} offset:{off + 32*t + 3328*r2}", f"b{f}_{t}")
    def a_read(f):
        k, off = lo(f)
        for q in range(2):
            p.lds(f"ds_read_b128 v[{AR(f, q)}:{AR(f, q)+3}], v{V_A[k]} offset:{off + 1024*q}", f"a{f}")
    p(f"s_cmp_ge_u32 s{S_WAVE}, 4")
    p("s_cbranch_scc1 L_dnn6")
    W2R = lambda t, r: 170 + 4*t + r
    def w2_unpack():
        return [x for t in range(7) for h in range(2) for x in
                (f"v_lshlrev_b32 v{W2R(t,2*h)}, 16, v{RAW2+2*t+h}", f"v_and_b32 v{W2R(t,2*h+1)}, 0xffff0000, v{RAW2+2*t+h}")]
    vm0, lg0 = list(p.vm.q), list(p.lg.q)
    def dnn_main(T):
        p.vm.q, p.lg.q = list(vm0), list(lg0)
        fill(0, T)
        fill(1, T)
        p.wait(vm="F0")
        p("s_barrier")
        stamp(12)
        for t in range(T):
            p.lds(f"ds_read_b64 v[{RAW+2*t}:{RAW+2*t+1}], v{V_G8} offset:{32*t}", "bias")
        a_read(0)
        for t in range(T):
            for r2 in range(2): b_read1(0, t, r2)
        p.wait(lg="bias")
        for t in range(T):
            for h in range(2):
                p(f"v_lshlrev_b32 v{ACC(t,0)+2*h}, 16, v{RAW+2*t+h}")
                p(f"v_and_b32 v{ACC(t,0)+2*h+1}, 0xffff0000, v{RAW+2*t+h}")
        for f in range(2, cfg.look): fill(f, T)
        p.wait(vm=tuple(f"F{k}" for k in range(cfg.barp + 1)))
        p("s_barrier")
        if T == 6 and cfg.prio_hi: p(f"s_setprio {cfg.prio_hi}")
        stamp(2)
        nxt = cfg.look
        w2ops = w2_unpack()
        free = -1; landed = cfg.barp
        for f in range(26):
            todo = []
            soft = f > cfg.sw and f <= 23
            top = f < cfg.early or (cfg.dpos == 4 and T == 6) or (cfg.dpos == 1 and T == 7)
            lim = (f - 1 if soft and not top else free) + RB
            nfill = 2 if (cfg.cmask >> f & 1 if cfg.cmask else cfg.catch0 <= f < cfg.catch0 + cfg.catch) else 1
            if f >= cfg.b2: nfill = (2 if (f % 2 == 0) == ((T == 6) == (cfg.dpos == 4)) else 0)
            for _ in range(nfill):
                if nxt < 26 and nxt <= lim:
                    todo += [(a_dma, (nxt,)), (b_dma, (nxt, 1, T)), (b_dma, (nxt, 0, T))]; nxt += 1
            if cfg.nodma and f >= 4:
                keep = []
                for fn, ar in todo:
                    if (fn is a_dma and cfg.nodma & 1) or (fn is b_dma and cfg.nodma & 2): continue
                    keep.append((fn, ar))
                todo[:] = keep
            n_it = len(todo)
            if f < cfg.early: at = [-1]*n_it
            elif cfg.dpos == 0: at = list(range(n_it))
            elif cfg.dpos == 1: at = [-1]*n_it if T == 7 else [T-1]*n_it
            elif cfg.dpos == 2: at = [(2*i + (T == 6)) if n_it <= 3 else i for i in range(n_it)]
            elif cfg.dpos == 3: at = [0]*n_it if T == 7 else [T-1]*n_it
            elif cfg.dpos == 4: at = [T-1]*n_it if T == 7 else [-1]*n_it
            elif cfg.dpos == 5: at = [i//(2 if n_it > 3 else 1) for i in range(n_it)] if T == 7 else [3 + i//(2 if n_it > 3 else 1) for i in range(n_it)]
            if soft and not top: at = [min(max(a, cfg.chk + i*(cfg.dpos in (0, 2))), T-1) for i, a in enumerate(at)]
            assert f == 25 or f + 1 <= landed
            def drain(t):
                while todo and at[0] <= t:
                    at.pop(0); fn, ar = todo.pop(0); fn(*ar)
            drain(-1)
            for t in range(T):
                p.wait(lg=(f"b{f}_{t}", f"a{f}"))
                b = f"v[{BF(t)}:{BF(t)+3}]"
                a0, a1 = ACC(t, 0), ACC(t, 1)
                c1 = a0 if f == 0 else a1
                p(f"v_mfma_f32_16x16x32_bf16 v[{a1}:{a1+3}], {b}, v[{AR(f,1)}:{AR(f,1)+3}], v[{c1}:{c1+3}]")
                if t and f < 25: b_read1(f+1, t-1, 1)
                elif t == 0 and f: b_read1(f, T-1, 1)
                p(f"v_mfma_f32_16x16x32_bf16 v[{a0}:{a0+3}], {b}, v[{AR(f,0)}:{AR(f,0)+3}], v[{a0}:{a0+3}]")
                if f < 25: b_read1(f+1, t, 0)
                if t == cfg.arp and f < 25: a_read(f + 1)
                if soft and t == cfg.chk - 2: poll_issue(4*(f-1))
                if soft and t == cfg.chk:
                    check(4*(f-1), 8, issued=True)
                    free = f - 1; landed = f + 2
                drain(t)
                if f == 21:
                    for tt in ([t] if t < T - 1 else range(t, 7)):
                        p.lds(f"ds_read_b64 v[{RAW2+2*tt}:{RAW2+2*tt+1}], v{V_G8} offset:{1664 + 32*tt}", "w2")
                if cfg.w2early and f in (23, 24):
                    if f == 23 and t == 0: p.wait(lg="w2")
                    for _ in range(3):
                        if w2ops: p(w2ops.pop(0))
            assert not todo
            if f >= cfg.sw:
                if f <= 22:
                    assert nxt > f + 3
                    p.wait(vm=tuple(f"F{k}" for k in range(f + 4)))
                    arrive(4*f)
            elif f <= cfg.lb and (f + 1) % cfg.barp == 0 and (f < cfg.b2 or f % 2):
                last = min(f + 1 + cfg.barp + (f + 1 == cfg.sw or f + 1 >= cfg.b2), 25) if f < cfg.lb else 25
                assert nxt > last
                p.wait(vm=tuple(f"F{k}" for k in range(last + 1)))
                if not cfg.nobar: p("s_barrier")
                free = f; landed = last
            if f == cfg.lb and cfg.tailprio is not None and T == cfg.tailprio: p("s_setprio 1")
            if f % 4 == 0 and (not cfg.dbench or f in (8, 20)): stamp(14 + f//4)
        assert nxt == 26 and not (cfg.w2early and w2ops)
    dnn_main(7)
    p("s_branch L_gelu")
    p(".p2align 6")
    p.label("L_dnn6")
    dnn_main(6)
    p.label("L_gelu")
    if cfg.dbench:
        p("s_barrier")
        p(f"s_mul_i32 s{S_SB}, s{S_CP}, 416")
        p("s_add_u32 s3, s3, 1")
        p("s_cmp_lt_u32 s3, 2")
        p("s_cbranch_scc1 L_again")
    stamp(3)
    p(f"s_load_dword s{S_X}, s[{S_DBG}:{S_DBG+1}], 128")
    if not cfg.w2early:
        p.wait0(vm=True)
        for x in w2_unpack(): p(x)
    k0 = -2.0*math.sqrt(2.0/math.pi)*math.log2(math.e)
    T1, T2, SUM, VC = 56, 64, 92, 72
    P = lambda a: f"v[{a}:{a+1}]"
    for r, c in enumerate((k0*0.044715, k0)):
        for h in range(2): p(f"v_mov_b32 v{VC+2*r+h}, {f2h(c)}")
    for r in range(4): p(f"v_mov_b32 v{SUM+r}, 0")
    for t in range(7):
        if t == 6:
            p(f"s_cmp_ge_u32 s{S_WAVE}, 4")
            p("s_cbranch_scc1 L_gelu6")
        x = ACC(t, 0)
        if cfg.pk:
            for r in range(0, 8, 2): p(f"v_pk_mul_f32 {P(T1+r)}, {P(x+r)}, {P(x+r)}")
            for r in range(0, 8, 2): p(f"v_pk_fma_f32 {P(T1+r)}, {P(T1+r)}, {P(VC)}, {P(VC+2)}")
            for r in range(0, 8, 2): p(f"v_pk_mul_f32 {P(T1+r)}, {P(T1+r)}, {P(x+r)}")
            for r in range(8): p(f"v_exp_f32 v{T1+r}, v{T1+r}")
            for r in range(0, 8, 2): p(f"v_pk_mul_f32 {P(T2+r)}, {P(x+r)}, {P(W2R(t, r & 3))}")
            for r in range(0, 8, 2): p(f"v_pk_add_f32 {P(T1+r)}, {P(T1+r)}, 1.0 op_sel_hi:[1,0]")
            for r in range(8): p(f"v_rcp_f32 v{T1+r}, v{T1+r}")
            for r in (0, 4, 2, 6): p(f"v_pk_fma_f32 {P(SUM+2*(r >> 2))}, {P(T1+r)}, {P(T2+r)}, {P(SUM+2*(r >> 2))}")
        else:
            for r in range(8): p(f"v_mul_f32 v{T1+r}, v{x+r}, v{x+r}")
            for r in range(8): p(f"v_fma_f32 v{T1+r}, v{T1+r}, v{VC}, v{VC+2}")
            for r in range(8): p(f"v_mul_f32 v{T1+r}, v{T1+r}, v{x+r}")
            for r in range(8): p(f"v_exp_f32 v{T1+r}, v{T1+r}")
            for r in range(8): p(f"v_mul_f32 v{T2+r}, v{x+r}, v{W2R(t, r & 3)}")
            for r in range(8): p(f"v_add_f32 v{T1+r}, 1.0, v{T1+r}")
            for r in range(8): p(f"v_rcp_f32 v{T1+r}, v{T1+r}")
            for r in range(8): p(f"v_fmac_f32 v{SUM+2*(r >> 2)+(r & 1)}, v{T1+r}, v{T2+r}")
    p.label("L_gelu6")
    p(f"v_add_f32 v{SUM}, v{SUM}, v{SUM+1}")
    p(f"v_add_f32 v{SUM+2}, v{SUM+2}, v{SUM+3}")
    p(f"v_and_b32 v84, 15, v{V_LANE}")
    p(f"v_lshrrev_b32 v85, 5, v{V_LANE}")
    p(f"v_permlane32_swap_b32 v{SUM}, v{SUM+2}")
    p("v_lshl_add_u32 v84, v85, 4, v84")
    p(f"v_add_f32 v{SUM}, v{SUM}, v{SUM+2}")
    p(f"v_bfe_u32 v85, v{V_LANE}, 4, 1")
    p(f"v_mov_b32 v{SUM+1}, v{SUM}")
    p("v_lshlrev_b32 v84, 2, v84")
    p("v_lshl_add_u32 v84, v85, 30, v84")
    p(f"v_permlane16_swap_b32 v{SUM}, v{SUM+1}")
    p(f"s_lshl2_add_u32 s{S_T}, s{S_RG}, s{S_CP}")
    p(f"v_add_f32 v{SUM}, v{SUM}, v{SUM+1}")
    p(f"s_lshl3_add_u32 s{S_T}, s{S_T}, s{S_WAVE}")
    p(f"s_lshl_b32 s{S_T}, s{S_T}, 7")
    p(f"v_min_u32 v{SUM}, -2, v{SUM}")
    p("s_waitcnt lgkmcnt(0)")
    if cfg.noprep or cfg.dbench: p("s_branch L_pub")
    p(f"s_cmp_lg_u32 s{S_X}, 0")
    p("s_cbranch_scc1 L_pub")
    p("v_mov_b32 v85, 0")
    p.label("L_dflag")
    p(f"global_load_dword v86, v85, s[{S_DBG}:{S_DBG+1}] offset:128 sc1")
    p("s_waitcnt vmcnt(0)")
    p(f"v_readfirstlane_b32 s{S_X}, v86")
    p(f"s_cmp_lg_u32 s{S_X}, 0")
    p("s_cbranch_scc1 L_pub")
    p("s_sleep 4")
    p(f"s_sub_u32 s{S_SPIN}, s{S_SPIN}, 1")
    p("s_cbranch_scc0 L_dflag")
    p("s_endpgm")
    p.label("L_pub")
    p(f"buffer_store_dword v{SUM}, v84, s[{S_WS}:{S_WS+3}], s{S_T} offen sc1")
    stamp(4)
    if cfg.probe:
        p("s_cmp_lg_u32 s2, 0")
        p("s_cbranch_scc1 L_pr2")
        p(f"v_lshlrev_b32 v1, 2, v{V_LANE}")
        p(f"global_load_dword v2, v1, s[{S_DBG}:{S_DBG+1}] offset:8 sc1")
        p("s_waitcnt vmcnt(0)")
        for i in range(8): p(f"v_readlane_b32 s{80+i}, v2, {i}")
        p("s_mov_b32 s90, s80"); p("s_mov_b32 s91, s80")
        for i in range(1, 8):
            p(f"s_min_u32 s90, s90, s{80+i}"); p(f"s_max_u32 s91, s91, s{80+i}")
        if cfg.probe == 1: p("s_sub_u32 s90, s91, s90")
        else: p(f"s_sub_u32 s90, s{80+cfg.probe-2}, s90")
        p("s_mul_i32 s90, s90, 20")
        p("s_min_u32 s90, s90, 20000")
        p("s_memrealtime s[92:93]"); p("s_waitcnt lgkmcnt(0)")
        p("s_add_u32 s92, s92, s90")
        p.label("L_pr")
        p("s_memrealtime s[94:95]"); p("s_waitcnt lgkmcnt(0)")
        p("s_cmp_lt_u32 s94, s92")
        p("s_cbranch_scc1 L_pr")
        p.label("L_pr2")
    stamps_out()
    p("s_endpgm")

    p(".p2align 6")
    p(".type gather_table,@object")
    p.label("gather_table")
    zt = P_Z - PS
    for role in range(2):
        for lane in range(64):
            s, half = lane >> 1, lane & 1
            ad = []
            for e in range(8):
                pr = slot_pair(s, half, e) if s < (24 if role == 0 else 22) else None
                at = (lambda j, k: P_D1 - PS + k*144 + j*4) if role == 0 else (lambda j, k: P_W1 - PS + (j*26 + k)*2)
                if pr is None: ad += [zt, zt]
                elif pr[1] is None: ad += [at(pr[0], 26), zt]
                elif pr[0] == pr[1] or norm(pr) == (24, 25): ad += [at(*pr), zt]
                else: ad += [at(pr[0], pr[1]), at(pr[1], pr[0])]
            p(".short " + ", ".join(str(a) for a in ad))
    p(".size gather_table, 4096")
    return p

def header():
    return """; xDeepFM (CIN + DNN) forward, one launch, 256 workgroups (S1).
; Kernarg: idx, table, ws_cin, w_cin_out, w_dnn1, b_dnn1, w_dnn2, b_out, out, debug, ws
; @launch grid=(256,1,1) block=(512,1,1) lds=%d
.amdgcn_target "amdgcn-amd-amdhsa--gfx950"
.text
""" % LDS_SIZE
def footer():
    nv = 256
    return f""".section .rodata,"a"
.p2align 6
.amdhsa_kernel {NAME}
  .amdhsa_next_free_vgpr {nv}
  .amdhsa_next_free_sgpr 102
  .amdhsa_accum_offset {nv}
  .amdhsa_group_segment_fixed_size 0
  .amdhsa_kernarg_size 88
  .amdhsa_user_sgpr_count 2
  .amdhsa_user_sgpr_kernarg_segment_ptr 1
  .amdhsa_system_sgpr_workgroup_id_x 1
  .amdhsa_float_denorm_mode_32 3
.end_amdhsa_kernel
"""
if __name__ == "__main__":
    out = sys.argv[1]
    for a in sys.argv[2:]:
        k, v = a.split("=")
        setattr(cfg, k, type(getattr(cfg, k))(int(v)))
    open(out, "w").write(header() + build().text() + footer())
```

```python
import sys, struct, math
from asmlib import *
from slots import *

NAME = "standalone__deep_cross_xdeepfm__recsys_kernel"
class Cfg:
    stamps = 0
    NRES = 31
    R = 3
    prio_prep = 3
    prio_hi = 0
    poll_sleep = 2
    idle_sleep = 1
    gon = 5
    bal = 0
    lt0 = 2
    lt1 = 5
    early = 4
    look = 3
    cmask = 0
    catch0 = 4
    catch = 4
    etouch = 0
    dtouch = 1
    mtouch = 1
    ttouch = 0
    xwin = 4
    pfcode = 1
    flip = 2
    w2early = 1
    dpos = 4
    ltouch = 0
    pk = 1
    ctouch = 1
    wrot = 1
    direct = 1
    pre = 1
    pst = -1
    pcyc = 0
    pxa = -1
    plat = 0
    pwg = 0
    pwave = 0
    probe = 0
    dbench = 0
    nodma = 0
    nobar = 0
    lb = 21
    tailprio = 0
    b2 = 26
    sw = 26
    chk = 3
    barp = 1
    arp = 1
    noprep = 0
    clrpos = 1
    xstart = 0
    xbar = 4
    pdelay = 1
    hold = 0
cfg = Cfg()

LDS_SIZE = 163840
XO = 0
WO = 8*7168
PS = WO + 96*528
P_W3 = PS; P_M3T = PS + 36864; P_D1 = PS + 38912; P_W1 = PS + 43520; P_Z = PS + 45568; P_DUM = PS + 45824
CO = LDS_SIZE - 512
IX2 = PS + 46080
assert P_DUM + 256 <= CO
C_PA, C_PB, C_XL, C_FLAG, C_GO, C_G0, C_PI = 0, 4, 8, 12, 16, 20, 24
RB = 7
BSZ = 13312
SLOT = BSZ + 8192
IDXO = RB*SLOT
assert IDXO + 8*1664 == LDS_SIZE
MBOX = 0; WS_W = 131072; BLK = 1664; WS_END = WS_W + 26*BLK; WS_STAMP = 1 << 20
S_IDX, S_TAB, S_W1, S_WCIN, S_WCO, S_B1, S_W2, S_WS = 4, 8, 12, 16, 20, 24, 28, 32
S_OUT, S_DBG, S_BOUT = 36, 38, 40
S_WAVE, S_RG, S_CP, S_FB, S_COL, S_W = 42, 43, 44, 45, 46, 47
S_PC, S_SPIN, S_X = 48, 50, 51
KA = 52
S_T = 52
S_ST = 70
V_C, V_ONE, V_POLL, V_L = 162, 163, 164, 165
FRM = "0x20000"

def f2h(x): return "0x%08x" % struct.unpack("<I", struct.pack("<f", x))[0]

def build():
    p = Prog()
    lab = [0]
    def L(n):
        lab[0] += 1
        return f"L_{n}_{lab[0]}"
    def stamp(i):
        if cfg.pst == i:
            p("s_memtime s[92:93]" if cfg.pcyc else "s_memrealtime s[92:93]")
            p.wait0(lg=True)
        if cfg.stamps and (cfg.stamps != 3 or i == 8):
            p(f"s_memrealtime s[68:69]" if cfg.stamps != 2 or i == 8 else "s_memtime s[68:69]")
            p.wait0(lg=True)
            if cfg.stamps != 2 or i == 8: p(f"s_mov_b32 s{S_ST+i}, s68")
            else:
                p("s_sub_u32 s68, s68, s100")
                p("s_lshr_b32 s68, s68, 4")
                p(f"s_add_u32 s{S_ST+i}, s68, s{S_ST}")
    def stamps_out():
        if cfg.pst >= 0:
            stamp(8)
            sk = L("npr"); lp = L("pr")
            p(f"s_cmp_lg_u32 s2, {cfg.pwg}")
            p(f"s_cbranch_scc1 {sk}")
            p(f"s_cmp_lg_u32 s{S_WAVE}, {cfg.pwave}")
            p(f"s_cbranch_scc1 {sk}")
            if cfg.pst == 0: p("s_mov_b32 s92, s96")
            if cfg.pxa >= 0:
                p("s_mov_b64 exec, -1")
                p("v_mov_b32 v1, 0")
                p(f"global_load_dword v2, v1, s[{S_DBG}:{S_DBG+1}] offset:8 sc1")
                p("s_waitcnt vmcnt(0)")
                p("v_readfirstlane_b32 s90, v2")
                p("s_cmp_lg_u32 s90, s91")
                p("s_cselect_b32 s90, 250, 0")
                p("s_add_u32 s92, s92, s90")
            if cfg.pcyc:
                p("s_sub_u32 s90, s92, s98")
                p("s_lshr_b32 s90, s90, 3")
            else:
                p("s_sub_u32 s90, s92, s96")
                p("s_mul_i32 s90, s90, 4")
            p("s_mov_b64 exec, 1")
            p("v_mov_b32 v1, 0")
            p("v_mov_b32 v2, s90")
            p(f"global_store_dword v1, v2, s[{S_DBG}:{S_DBG+1}] offset:4")
            p("s_add_u32 s90, s90, 2000")
            p("s_min_u32 s90, s90, 20000")
            p("s_add_u32 s90, s90, s96")
            p.label(lp)
            p("s_sleep 1")
            p("s_memrealtime s[94:95]"); p("s_waitcnt lgkmcnt(0)")
            p("s_cmp_lt_u32 s94, s90")
            p(f"s_cbranch_scc1 {lp}")
            p.label(sk)
        if not cfg.stamps: return
        stamp(8)
        p("s_mov_b64 exec, 1")
        p(f"s_lshl4_add_u32 s{S_T}, s2, s{S_WAVE}")
        p(f"s_lshl_b32 s{S_T}, s{S_T}, 7")
        p(f"s_add_u32 s{S_T}, s{S_T}, {WS_STAMP}")
        p(f"v_mov_b32 v1, s{S_T}")
        p("s_memtime s[68:69]")
        p("s_waitcnt lgkmcnt(0)")
        p(f"s_sub_u32 s{S_ST+29}, s68, s100")
        for i in range(30):
            p(f"v_mov_b32 v2, s{S_ST+i}")
            p(f"global_store_dword v1, v2, s[{S_WS}:{S_WS+1}] offset:{4*i}")
    def arrive(*offs):
        p("s_mov_b64 exec, 1")
        for off in offs: p.lds(f"ds_add_u32 v{V_C}, v{V_ONE} offset:{off}", "arr")
        p("s_mov_b64 exec, -1")
    def poll_issue(off):
        p.lds(f"ds_read_b32 v{V_POLL}, v{V_C} offset:{off}", "poll")
    def check(off, target, issued=False, sleep=0):
        ok = L("ok"); sp = L("spin")
        if issued:
            p.wait(lg="poll")
            p(f"v_readfirstlane_b32 s{S_X}, v{V_POLL}")
            p(f"s_cmp_ge_u32 s{S_X}, {target}")
            p(f"s_cbranch_scc1 {ok}")
        p.label(sp)
        if sleep: p(f"s_sleep {sleep}")
        p(f"ds_read_b32 v{V_POLL}, v{V_C} offset:{off}")
        p("s_waitcnt lgkmcnt(0)")
        p(f"v_readfirstlane_b32 s{S_X}, v{V_POLL}")
        p(f"s_sub_u32 s{S_SPIN}, s{S_SPIN}, 1")
        p("s_cbranch_scc1 L_end")
        p(f"s_cmp_ge_u32 s{S_X}, {target}")
        p(f"s_cbranch_scc0 {sp}")
        if not issued: p.lg.clear()
        p.label(ok)
    def srd(s, ka, n):
        if ka is not None: p(f"s_mov_b64 s[{s}:{s+1}], s[{KA+ka}:{KA+ka+1}]")
        p(f"s_mov_b32 s{s+2}, {n}")
        p(f"s_mov_b32 s{s+3}, {FRM}")
    def touch(vaddr, soff, mask):
        p(f"s_mov_b64 exec, {mask}" if mask < (1 << 31) else f"s_mov_b32 exec_hi, {hex(mask >> 32)}")
        p(f"buffer_load_dword v250, v{vaddr}, s[{S_W1}:{S_W1+3}], s{soff} offen")
        p("s_mov_b64 exec, -1")

    def producer_index():
        p(f"s_lshr_b32 s{S_FB}, s2, 6")
        p(f"s_sub_u32 s{S_FB}, s{S_RG}, s{S_FB}")
        p(f"s_sub_u32 s{S_FB}, s{S_FB}, 1")
        p(f"s_and_b32 s{S_X}, s2, 0x37")
        p(f"s_sub_u32 s{S_X}, s{S_X}, 1")
        p(f"s_cmp_lt_u32 s{S_X}, 7")
        p(f"s_cselect_b32 s{S_FB}, s{S_FB}, 99")

    def last_marker(skip):
        p("v_lshlrev_b32 v2, 6, v0")
        p("s_waitcnt vmcnt(0)")
        stamp(12)
        p(f"v_readfirstlane_b32 s{S_X}, v27")
        p("s_mov_b64 exec, 3")
        p(f"s_cmp_lg_u32 s{S_X}, {26 + 32 - 1}")
        p(f"s_cbranch_scc1 {skip}")
        p(f"global_store_dword v2, v{V_ONE}, s[{S_DBG}:{S_DBG+1}] offset:128 sc1")

    p(f".globl {NAME}\n.p2align 8\n.type {NAME},@function")
    p.label(NAME)
    p(f"s_load_dwordx16 s[{KA}:{KA+15}], s[0:1], 0")
    p(f"s_load_dwordx4 s[{S_OUT}:{S_OUT+3}], s[0:1], 64")
    p(f"s_load_dwordx2 s[{S_WS}:{S_WS+1}], s[0:1], 80")
    if cfg.probe or cfg.pst >= 0: p("s_memrealtime s[96:97]")
    if cfg.pcyc: p("s_memtime s[98:99]")
    if cfg.stamps:
        p(f"s_memrealtime s[{S_ST}:{S_ST+1}]")
        p(f"s_memtime s[100:101]")
    p("v_lshrrev_b32 v1, 6, v0")
    p("v_and_b32 v0, 63, v0")
    p(f"v_readfirstlane_b32 s{S_WAVE}, v1")
    p("s_cmp_ge_u32 s2, 0x100")
    p("s_cbranch_scc1 L_end")
    p(f"s_and_b32 s3, s2, 7")
    p(f"s_lshr_b32 s{S_RG}, s2, 6")
    p(f"s_lshl3_add_u32 s{S_RG}, s{S_RG}, s3")
    p(f"s_bfe_u32 s{S_CP}, s2, 0x20004")
    p(f"v_lshlrev_b32 v{V_L}, 4, v0")
    p(f"v_lshlrev_b32 v160, 7, v0")
    srd(S_IDX, None, 4096*104)
    srd(S_W1, None, 832*1664)
    p("s_bitcmp1_b32 s2, 3")
    p("s_cbranch_scc1 L_cin")
    p(f"s_lshl3_add_u32 s3, s{S_RG}, s{S_WAVE}")
    p(f"s_mul_i32 s3, s3, 1664")
    p(f"s_mul_i32 s{S_W}, s{S_WAVE}, 1664")
    p(f"s_add_u32 m0, s{S_W}, {IDXO}")
    p(f"s_lshr_b32 s{S_X}, s2, 4")
    p(f"s_lshl3_add_u32 s{S_X}, s{S_X}, s{S_WAVE}")
    p(f"s_mul_i32 s{S_X}, s{S_X}, 2560")
    p.wait0(lg=True)
    p(f"s_mov_b64 s[{S_IDX}:{S_IDX+1}], s[{KA}:{KA+1}]")
    p(f"s_mov_b64 s[{S_W1}:{S_W1+1}], s[{KA+8}:{KA+9}]")
    for n in range(2):
        if n: p("s_mov_b32 exec_hi, 0xff")
        p.vmem(f"buffer_load_dwordx4 v{V_L}, s[{S_IDX}:{S_IDX+3}], s3 offen offset:{1024*n} lds", "idx")
    if not cfg.dtouch: p("s_mov_b32 exec_hi, -1")
    if cfg.dtouch:
        touch(160, S_X, 0xfffff); p.vm.issue("t")
    p("s_branch L_dnn")
    dnn_vm = list(p.vm.q)

    p.vm.clear(); p.lg.clear()
    p.label("L_cin")
    if cfg.dbench: p("s_endpgm")
    S_C = S_WAVE
    W3A, TBL, VV, AQ, VF, GA, MB, VT, CRAW = 28, 32, 40, 56, 72, 80, 96, 170, 152
    srd(S_WCO, None, 156)
    srd(S_WS, None, WS_END)
    p(f"s_mov_b32 s{S_SPIN}, 0x40000")
    p(f"v_lshlrev_b32 v{V_C}, 2, v0")
    p(f"v_add_u32 v{V_C}, {CO}, v{V_C}")
    p(f"v_mov_b32 v{V_ONE}, 1")
    p(f"s_cmp_ge_u32 s{S_WAVE}, 4")
    p("s_cbranch_scc1 L_xwave")
    srd(S_WCIN, None, 105456)
    producer_index()
    if cfg.noprep: p(f"s_mov_b32 s{S_FB}, 99")
    p(f"s_getpc_b64 s[{S_PC}:{S_PC+1}]")
    p.label("L_pc")
    p.wait0(lg=True)
    p(f"s_mov_b64 s[{S_WCIN}:{S_WCIN+1}], s[{KA+4}:{KA+5}]")
    if cfg.ttouch: srd(S_TAB, 2, 6400000)
    p(f"s_mov_b64 s[{S_W1}:{S_W1+1}], s[{KA+8}:{KA+9}]")
    p(f"s_mov_b64 s[{S_WCO}:{S_WCO+1}], s[{KA+6}:{KA+7}]")
    p(f"s_mov_b64 s[{S_BOUT}:{S_BOUT+1}], s[{KA+14}:{KA+15}]")
    def cinit_loads():
        p(f"v_lshrrev_b32 v8, 5, v0")
        p(f"v_lshlrev_b32 v9, 3, v8")
        p(f"v_lshlrev_b32 v8, 1, v8")
        for a in range(3):
            p(f"buffer_load_dwordx2 v[{CRAW+2*a}:{CRAW+2*a+1}], v9, s[{S_WCO}:{S_WCO+3}], 0 offen offset:{16*a}")
        p(f"buffer_load_ushort v{CRAW+6}, v8, s[{S_WCO}:{S_WCO+3}], 0 offen offset:48")
        p(f"v_mov_b32 v8, 0")
        p(f"global_load_ushort v{CRAW+7}, v8, s[{S_BOUT}:{S_BOUT+1}]")
    p(f"s_and_b32 s{S_T}, s2, 0x37")
    p(f"s_cmp_eq_u32 s{S_T}, 0x21")
    p(f"s_cselect_b32 s{S_T+1}, 1, 0")
    p(f"s_cselect_b32 s{S_T}, 0x11, s{S_T}")
    p(f"s_sub_u32 s{S_T}, s{S_T}, 0x11")
    p(f"s_cmp_lt_u32 s{S_T}, 7")
    p(f"s_cselect_b32 s{S_T+3}, s{S_C}, 1")
    p(f"s_add_u32 s{S_T+3}, s{S_T+3}, 4")
    p(f"s_cmp_lg_u32 s{S_T+3}, 4")
    p("s_cbranch_scc1 L_nomc")
    for r in range(4): p(f"v_mov_b32 v{4+r}, -1")
    p(f"s_sub_u32 s{S_T}, s{S_RG}, s{S_T+1}")
    p(f"s_lshl_b32 s{S_T}, s{S_T}, 12")
    for u in range(4):
        p(f"buffer_store_dwordx4 v[4:7], v{V_L}, s[{S_WS}:{S_WS+3}], s{S_T} offen offset:{1024*u} sc1")
    p.label("L_nomc")
    if cfg.mtouch or cfg.ttouch or cfg.ctouch:
        p(f"s_cmp_eq_u32 s{S_CP}, 0")
        p("s_cbranch_scc1 L_nomt")
        p(f"s_mul_i32 s{S_T}, s{S_RG}, 3")
        p(f"s_add_u32 s{S_T}, s{S_T}, s{S_CP}")
        p(f"s_lshl2_add_u32 s{S_T}, s{S_T}, s{S_C}")
        p(f"s_sub_u32 s{S_T}, s{S_T}, 4")
        if cfg.ctouch:
            p(f"s_lshr_b32 s{S_T+1}, s2, 6")
            p(f"s_mul_i32 s{S_T+1}, s{S_T+1}, 3")
            p(f"s_add_u32 s{S_T+1}, s{S_T+1}, s{S_CP}")
            p(f"s_lshl2_add_u32 s{S_T+1}, s{S_T+1}, s{S_C}")
            p(f"s_mul_i32 s{S_T+1}, s{S_T+1}, {6*128}")
            p(f"s_add_u32 s{S_T+1}, s{S_T+1}, {(549 - 24)*128}")
            p("s_mov_b64 exec, 63")
            p(f"buffer_load_dword v250, v160, s[{S_WCIN}:{S_WCIN+3}], s{S_T+1} offen")
            p("s_mov_b64 exec, -1")
        if cfg.mtouch:
            p(f"s_mul_i32 s{S_T+1}, s{S_T}, {22*128}")
            p(f"s_add_u32 s{S_T+1}, s{S_T+1}, {2496*128}")
            touch(160, S_T+1, (1 << 22) - 1)
        if cfg.ttouch:
            p(f"s_mul_i32 s{S_T+1}, s{S_T}, {cfg.ttouch*128}")
            p(f"s_mov_b64 exec, {(1 << cfg.ttouch) - 1}" if cfg.ttouch < 31 else f"s_mov_b32 exec_hi, {hex(((1 << cfg.ttouch) - 1) >> 32)}")
            p(f"buffer_load_dword v250, v160, s[{S_TAB}:{S_TAB+3}], s{S_T+1} offen")
            p("s_mov_b64 exec, -1")
        p("s_branch L_cbar")
        p.label("L_nomt")
    p(f"s_cmp_ge_u32 s{S_FB}, 26")
    p("s_cbranch_scc1 L_cbar")
    if cfg.prio_prep: p(f"s_setprio {cfg.prio_prep}")
    p(f"s_mul_i32 s{S_T+2}, s{S_FB}, {BLK}")
    p(f"s_add_u32 s{S_T+2}, s{S_T+2}, {WS_W}")
    p(f"s_mul_i32 s{S_T}, s{S_C}, 9216")
    p(f"s_add_u32 s{S_T+1}, s{S_T}, 70304")
    p(f"s_add_u32 s{S_T}, s{S_T}, {P_W3}")
    for u in range(9):
        if u % 4 == 0:
            if u: p(f"s_add_u32 s{S_T+1}, s{S_T+1}, 0x1000")
            p(f"s_add_u32 m0, s{S_T}, {1024*u}")
            p("s_nop 0")
        p(f"buffer_load_dwordx4 v{V_L}, s[{S_WCIN}:{S_WCIN+3}], s{S_T+1} offen offset:{1024*(u % 4)} lds")
    p("v_and_b32 v2, 0x30, v0")
    p("v_bfe_u32 v1, v0, 2, 2")
    for q in range(4):
        p(f"v_xor_b32 v3, {q}, v1")
        p("v_lshl_add_u32 v3, v3, 28, v2")
        p(f"buffer_load_dwordx4 v[{AQ+4*q}:{AQ+4*q+3}], v3, s[{S_WCO}:{S_WCO+3}], 0 offen offset:104")
    p(f"s_cmp_ge_u32 s{S_C}, 2")
    p("s_cbranch_scc1 L_p23")
    p(f"s_lshl_b32 s{S_T}, s{S_C}, 11")
    p(f"s_add_u32 s{S_T}, s{S_T}, gather_table-L_pc")
    p(f"v_lshl_add_u32 v1, v0, 5, s{S_T}")
    p(f"global_load_dwordx4 v[{TBL}:{TBL+3}], v1, s[{S_PC}:{S_PC+1}]")
    p(f"global_load_dwordx4 v[{TBL+4}:{TBL+7}], v1, s[{S_PC}:{S_PC+1}] offset:16")
    p(f"s_cmp_lg_u32 s{S_C}, 0")
    p("s_cbranch_scc1 L_p1")
    p("v_lshrrev_b32 v3, 5, v0")
    p("v_mul_u32_u24 v3, 0x2a40, v3")
    p("v_and_b32 v2, 31, v0")
    p("v_lshl_add_u32 v3, v2, 1, v3")
    p(f"s_mul_i32 s{S_T}, s{S_FB}, 52")
    p(f"s_add_u32 s{S_T}, s{S_T}, 35152")
    for u in range(16):
        if u and u % 4 == 0:
            p(f"s_add_u32 s{S_T}, s{S_T}, {(4 if u != 8 else 12)*1352}")
        p(f"buffer_load_ushort v{VV+u}, v3, s[{S_WCIN}:{S_WCIN+3}], s{S_T} offen offset:{1352*(u % 4)}")
    p("s_branch L_pz")
    p.label("L_p1")
    p(f"s_mul_i32 s{S_T}, s{S_FB}, 1352")
    p(f"s_mov_b32 m0, {P_W1}")
    p("s_nop 0")
    for u in range(2):
        p(f"buffer_load_dwordx4 v{V_L}, s[{S_WCIN}:{S_WCIN+3}], s{S_T} offen offset:{1024*u} lds")
    p("s_branch L_pz")
    p.label("L_p23")
    p(f"s_cmp_lg_u32 s{S_C}, 3")
    p("s_cbranch_scc1 L_pz")
    p("v_lshlrev_b32 v1, 2, v0")
    p(f"buffer_load_dword v27, v1, s[{S_WCO}:{S_WCO+3}], 0 offen offset:52")
    p.label("L_pz")
    p("v_mov_b32 v2, 0")
    p("v_mov_b32 v3, 0")
    p(f"s_lshl_b32 s{S_T}, s{S_C}, 9")
    p(f"s_add_u32 s{S_T}, s{S_T}, {P_M3T}")
    p(f"v_lshl_add_u32 v1, v0, 3, s{S_T}")
    p("ds_write_b64 v1, v[2:3]")
    p(f"v_add_u32 v1, {P_Z - CO}, v{V_C}")
    p("ds_write_b32 v1, v2")
    p.label("L_cbar")
    if cfg.pfcode:
        sk = L("nopf")
        p(f"s_cmp_lg_u32 s{S_C}, 2")
        p(f"s_cbranch_scc1 {sk}")
        p(f"s_lshr_b32 s{S_T}, s2, 4")
        p(f"s_mul_i32 s{S_T}, s{S_T}, 2560")
        p(f"v_add_u32 v2, s{S_T}, v160")
        p(f"v_min_u32 v2, gather_table-L_pc+4092, v2")
        p("s_mov_b64 exec, 0xfffff")
        p(f"global_load_dword v161, v2, s[{S_PC}:{S_PC+1}]")
        p("s_mov_b64 exec, -1")
        p.label(sk)
    p("v_mov_b32 v2, 0")
    p(f"ds_write_b32 v{V_C}, v2")
    p.wait0(lg=True)
    p("s_barrier")
    stamp(1)
    p(f"s_cmp_lt_u32 s{S_FB}, 26")
    p("s_cbranch_scc1 L_prep")
    cinit_loads()
    p("s_waitcnt vmcnt(0)")
    stamp(13)
    p(f"s_cmp_lg_u32 s{S_T+3}, 4")
    p("s_cbranch_scc1 L_setup")
    p("v_mov_b32 v4, 0")
    p("s_mov_b64 exec, 1")
    p(f"global_atomic_add v27, v4, v{V_ONE}, s[{S_DBG}:{S_DBG+1}] sc0 sc1")
    p("s_mov_b64 exec, -1")
    last_marker("L_mx")
    p.label("L_mx")
    p("s_mov_b64 exec, -1")
    p("s_branch L_setup")
    p.label("L_prep")
    p("v_bfe_u32 v1, v0, 2, 2")
    p("v_lshrrev_b32 v4, 4, v0")
    p("v_lshl_add_u32 v4, v4, 3, v1")
    p("v_add_u32 v5, 4, v4")
    p("v_min_u32 v4, 25, v4")
    p("v_min_u32 v5, 25, v5")
    p("v_and_b32 v6, 3, v0")
    p(f"s_mul_i32 s{S_T}, s{S_C}, 384")
    p(f"s_add_u32 s{S_T}, s{S_T}, {P_W3}")
    p(f"v_lshl_add_u32 v6, v6, 3, s{S_T}")
    p(f"s_movk_i32 s{S_T+1}, 1352")
    p(f"v_mad_u32_u24 v2, v4, s{S_T+1}, v6")
    p(f"v_mad_u32_u24 v3, v5, s{S_T+1}, v6")
    p(f"s_mul_i32 s{S_T}, s{S_C}, 192")
    p(f"s_movk_i32 s{S_T+1}, -1662")
    p(f"v_mov_b32 v7, {P_DUM}")
    for u in range(3):
        p(f"v_add_u32 v4, s{S_T}, v0")
        if u < 2: p(f"s_add_u32 s{S_T}, s{S_T}, 64")
        p("v_mul_u32_u24 v5, 2521, v4")
        p("v_lshrrev_b32 v5, 16, v5")
        p("v_cmp_gt_u32 vcc, 0x2a4, v4")
        p("v_lshlrev_b32 v4, 6, v4")
        p(f"v_mad_i32_i24 v4, v5, s{S_T+1}, v4")
        p(f"v_add_u32 v4, {P_M3T}, v4")
        p(f"v_cndmask_b32 v{8+u}, v7, v4, vcc")
    p("v_and_b32 v5, 31, v0")
    p("v_lshrrev_b32 v4, 5, v0")
    p("v_lshlrev_b32 v6, 6, v5")
    p("v_lshl_add_u32 v6, v4, 4, v6")
    p(f"v_add_u32 v28, {P_M3T}, v6")
    p("v_mul_u32_u24 v5, 0x90, v5")
    p("v_lshl_add_u32 v5, v4, 4, v5")
    p(f"v_add_u32 v29, {P_D1}, v5")
    p("v_lshrrev_b32 v1, 1, v0")
    p("v_lshl_add_u32 v4, v1, 1, 1")
    p("v_add_u32 v5, 22, v1")
    p("v_min_u32 v4, v5, v4")
    p("v_lshlrev_b32 v5, 1, v1")
    p(f"s_cmp_eq_u32 s{S_C}, 0")
    p("s_cselect_b64 vcc, -1, 0")
    p("v_and_b32 v6, 1, v0")
    p(f"v_mov_b32 v11, {PS}")
    p("v_cndmask_b32 v4, v5, v4, vcc")
    p("v_lshl_add_u32 v4, v4, 1, v6")
    p("v_lshlrev_b32 v30, 4, v4")
    p(f"v_add_u32 v4, {P_M3T + 26*64 - CO}, v{V_C}")
    p(f"s_cmp_lg_u32 s{S_C}, 3")
    p.wait0(vm=True)
    p("s_cbranch_scc1 L_w1")
    p("s_mov_b64 exec, 0x1fff")
    p("ds_write_b32 v4, v27")
    p("s_mov_b64 exec, -1")
    p.label("L_w1")
    stamp(10)
    p("s_barrier")
    extra = []
    for u in range(8):
        extra.append(f"v_add_u32_sdwa v{GA+2*u}, v11, v{TBL+u} dst_sel:DWORD dst_unused:UNUSED_PAD src0_sel:DWORD src1_sel:WORD_0")
        extra.append(f"v_add_u32_sdwa v{GA+2*u+1}, v11, v{TBL+u} dst_sel:DWORD dst_unused:UNUSED_PAD src0_sel:DWORD src1_sel:WORD_1")
    for u in range(8): extra.append(f"v_lshl_or_b32 v{VF+u}, v{VV+2*u+1}, 16, v{VV+2*u}")
    def m3_mfma(U):
        u, q = divmod(U, 4)
        p.wait(lg=f"m{U}")
        cc = "0" if q == 0 else f"v[{12+4*u}:{15+4*u}]"
        p(f"v_mfma_f32_16x16x32_bf16 v[{12+4*u}:{15+4*u}], v[{AQ+4*q}:{AQ+4*q+3}], v[{MB+4*U}:{MB+4*U+3}], {cc}")
    for T in range(12):
        p.lds(f"ds_read_b64_tr_b16 v[{MB+4*T}:{MB+4*T+1}], v2 offset:{32*T}", f"m{T}")
        p.lds(f"ds_read_b64_tr_b16 v[{MB+4*T+2}:{MB+4*T+3}], v3 offset:{32*T}", f"m{T}")
        if T == 5:
            for _ in range(8): p(extra.pop(0))
        if T >= 6: m3_mfma(T - 6)
    for U in range(6, 12):
        m3_mfma(U)
        if U == 8:
            p("v_cvt_pk_bf16_f32 v24, v12, v12")
            p("ds_write_b16 v8, v24")
        else:
            for _ in range(2): p(extra.pop(0))
    p("v_cvt_pk_bf16_f32 v25, v16, v16")
    p("ds_write_b16 v9, v25")
    while extra: p(extra.pop(0))
    p(f"v_cvt_pk_bf16_f32 v26, v20, v20")
    p(f"ds_write_b16 v10, v26")
    p.wait0(lg=True)
    p("s_barrier")
    stamp(11)
    p(f"s_cmp_eq_u32 s{S_C}, 0")
    p("s_cbranch_scc1 L_pT")
    p(f"s_cmp_lg_u32 s{S_C}, 1")
    p("s_cbranch_scc1 L_pdone")
    for u in range(16): p(f"v_mov_b32 v{MB+16+u}, 0")
    for u in range(16): p(f"ds_read_u16_d16_hi v{MB+16+u}, v{GA+u}")
    p("s_mov_b32 exec_hi, 0xfff")
    p("s_branch L_pst")
    p.label("L_pT")
    p("ds_read_b128 v[12:15], v28")
    p("ds_read_b128 v[16:19], v28 offset:32")
    p("s_waitcnt lgkmcnt(1)")
    p(f"v_mfma_f32_32x32x16_bf16 v[{MB}:{MB+15}], v[{VF}:{VF+3}], v[12:15], 0")
    p("s_waitcnt lgkmcnt(0)")
    p(f"v_mfma_f32_32x32x16_bf16 v[{MB}:{MB+15}], v[{VF+4}:{VF+7}], v[16:19], v[{MB}:{MB+15}]")
    p("s_nop 11")
    for a in range(4): p(f"ds_write_b128 v29, v[{MB+4*a}:{MB+4*a+3}] offset:{32*a}")
    for u in range(16): p(f"ds_read_b32 v{MB+16+u}, v{GA+u}")
    p("s_mov_b32 exec_hi, 0xffff")
    p.label("L_pst")
    for e in range(8):
        if e % 2 == 0: p(f"s_waitcnt lgkmcnt({12 - 2*e})")
        p(f"v_add_f32 v{MB+16+2*e}, v{MB+16+2*e}, v{MB+16+2*e+1}")
        if e % 2:
            p(f"v_cvt_pk_bf16_f32 v{4+e//2}, v{MB+14+2*e}, v{MB+16+2*e}")
            p(f"v_min_u32 v{4+e//2}, -2, v{4+e//2}")
    p(f"buffer_store_dwordx4 v[4:7], v30, s[{S_WS}:{S_WS+3}], s{S_T+2} offen sc1")
    p(f"v_mov_b32 v8, s{S_C}")
    p("v_lshlrev_b32 v8, 2, v8")
    p("s_mov_b64 exec, 1")
    p(f"buffer_store_dword v{V_ONE}, v8, s[{S_WS}:{S_WS+3}], s{S_T+2} offen offset:1536 sc1")
    p.label("L_pdx")
    p("s_mov_b64 exec, -1")
    p.label("L_pdone")
    stamp(21)
    cinit_loads()
    p("s_waitcnt vmcnt(0)")
    p("s_branch L_setup")
    p.label("L_xwave")
    S_J, S_XA, S_XB, S_XM, S_TB = S_W, S_T+2, S_T+3, S_T+4, S_T+5
    p(f"s_sub_u32 s{S_J}, s{S_WAVE}, 4")
    p(f"s_lshl3_add_u32 s3, s{S_RG}, s{S_CP}")
    p(f"s_lshr_b32 s{S_FB}, s{S_J}, 1")
    p(f"s_lshl2_add_u32 s3, s{S_FB}, s3")
    p(f"s_mul_i32 s3, s3, 1664")
    p(f"s_and_b32 s{S_X}, s{S_J}, 1")
    p(f"s_mul_i32 s{S_X}, s{S_X}, 832")
    p(f"s_add_u32 s3, s3, s{S_X}")
    p(f"s_mul_i32 s{S_X}, s{S_J}, 832")
    p(f"s_add_u32 m0, s{S_X}, {IX2}")
    p(f"s_lshr_b32 s{S_X}, s2, 6")
    p(f"s_mul_i32 s{S_X}, s{S_X}, 3")
    p(f"s_add_u32 s{S_X}, s{S_X}, s{S_CP}")
    p(f"s_lshl2_add_u32 s{S_X}, s{S_X}, s{S_J}")
    p(f"s_mul_i32 s{S_X}, s{S_X}, {52*128}")
    p(f"s_add_u32 s{S_X}, s{S_X}, {(2496 - 4*52)*128}")
    p.wait0(lg=True)
    p(f"s_mov_b64 s[{S_IDX}:{S_IDX+1}], s[{KA}:{KA+1}]")
    p(f"s_mov_b64 s[{S_W1}:{S_W1+1}], s[{KA+8}:{KA+9}]")
    p("s_mov_b32 exec_hi, 0xfffff")
    p(f"buffer_load_dwordx4 v{V_L}, s[{S_IDX}:{S_IDX+3}], s3 offen lds")
    p("s_mov_b32 exec_hi, -1")
    p(f"s_mov_b64 s[{S_WCO}:{S_WCO+1}], s[{KA+6}:{KA+7}]")
    p(f"s_mov_b64 s[{S_BOUT}:{S_BOUT+1}], s[{KA+14}:{KA+15}]")
    srd(S_TAB, 2, 6400000)
    if cfg.etouch:
        p(f"s_cmp_eq_u32 s{S_CP}, 0")
        p("s_cbranch_scc1 L_noet")
        touch(160, S_X, (1 << 52) - 1)
        p("s_waitcnt vmcnt(1)")
        p.label("L_noet")
    p("v_lshrrev_b32 v1, 4, v0")
    p("v_and_b32 v2, 12, v0")
    p(f"s_mul_i32 s3, s{S_J}, 104")
    p(f"s_add_u32 s3, s3, {IX2}")
    p(f"v_add_u32 v2, s3, v2")
    p(f"s_movk_i32 s{S_X}, 416")
    p(f"v_mad_u32_u24 v3, v1, s{S_X}, v2")
    if cfg.bal:
        p(f"s_cmp_eq_u32 s{S_J}, 3")
        p(f"s_cselect_b32 s{S_X}, 104, 312")
        p(f"s_cselect_b32 s3, {13*104}, {20*104}")
        p(f"v_add_u32 v2, s3, v2")
        p(f"v_mad_u32_u24 v4, v1, s{S_X}, v2")
    else: p("v_add_u32 v4, 0x680, v3")
    p("v_and_b32 v1, 3, v0")
    p("v_lshlrev_b32 v5, 4, v1")
    p("v_bfe_u32 v1, v0, 3, 1")
    p("v_lshl_add_u32 v6, v1, 30, v5")
    p(f"s_mul_i32 s{S_XM}, s{S_J}, 7168")
    p(f"s_lshr_b32 s{S_TB}, s2, 4")
    p(f"s_lshl2_add_u32 s{S_TB}, s{S_TB}, s{S_J}")
    p(f"s_mul_i32 s{S_TB}, s{S_TB}, {46*128}")
    p(f"s_add_u32 s{S_TB}, s{S_TB}, {4992*128}")
    assert not cfg.etouch
    producer_index()
    S_PR = S_T + 6
    p(f"s_cmp_eq_u32 s{S_J}, 0")
    p(f"s_cselect_b32 s{S_PR}, s{S_FB}, 99")
    p(f"s_cmp_ge_u32 s{S_PR}, 26")
    p("s_cbranch_scc1 L_noclr")
    for r in range(4): p(f"v_mov_b32 v{12+r}, -1")
    p(f"s_mul_i32 s{S_T}, s{S_FB}, {BLK}")
    p(f"s_add_u32 s{S_T}, s{S_T}, {WS_W}")
    p(f"buffer_store_dwordx4 v[12:15], v{V_L}, s[{S_WS}:{S_WS+3}], s{S_T} offen sc1")
    p("s_mov_b32 exec_hi, 0xff")
    p(f"buffer_store_dwordx4 v[12:15], v{V_L}, s[{S_WS}:{S_WS+3}], s{S_T} offen offset:1024 sc1")
    p("s_mov_b32 exec_hi, -1")
    p("s_waitcnt vmcnt(2)")
    p("s_branch L_clr")
    p.label("L_noclr")
    p("s_waitcnt vmcnt(0)")
    p.label("L_clr")
    p("s_barrier")
    for u in range(2):
        for Q in range(0, 6, 2): p(f"ds_read2_b32 v[{VT+7*u+u+Q}:{VT+7*u+u+Q+1}], v{3+u} offset0:{4*Q} offset1:{4*Q+4}")
        p(f"ds_read_b32 v{VT+8*u+6}, v{3+u} offset:96")
    stamp(1)
    p.vm.clear()
    assert cfg.xwin < 14
    p.wait0(lg=True)
    go_done = False; g0_done = False
    for Q in range(7):
        for u in range(2):
            n = 2*Q + u
            if n == cfg.xbar and not cfg.noprep:
                p(f"s_cmp_ge_u32 s{S_FB}, 26")
                p("s_cbranch_scc1 L_nobar")
                p("s_barrier")
                p(f"s_waitcnt vmcnt({n})")
                p(f"s_cmp_ge_u32 s{S_PR}, 26")
                p("s_cbranch_scc1 L_noat")
                p("v_mov_b32 v12, 0")
                p("s_mov_b64 exec, 1")
                p(f"global_atomic_add v27, v12, v{V_ONE}, s[{S_DBG}:{S_DBG+1}] sc0 sc1")
                p("s_mov_b64 exec, -1")
                p.label("L_noat")
                p("s_barrier")
                p(f"s_cmp_ge_u32 s{S_PR}, 26")
                p("s_cbranch_scc1 L_nobar")
                last_marker("L_lm")
                p.label("L_lm")
                p("s_mov_b64 exec, -1")
                p.label("L_nobar")
            if n == cfg.xstart and n: p.wait(vm="x0")
            if n >= cfg.xwin:
                p.wait(vm=f"x{n - cfg.xwin}")
                if n - cfg.xwin == 2*cfg.gon + 1: arrive(C_GO); go_done = True
                if cfg.pre and n - cfg.xwin == 2*(cfg.gon - cfg.pre) + 1: arrive(C_G0); g0_done = True
            p(f"s_add_u32 m0, s{S_XM}, {XO + 4*7168*u + 1024*Q}")
            p(f"v_lshl_add_u32 v{VT+8*u+Q}, v{VT+8*u+Q}, 6, v{6 if Q == 6 else 5}")
            p.vmem(f"buffer_load_dwordx4 v{VT+8*u+Q}, s[{S_TAB}:{S_TAB+3}], 0 offen lds", f"x{n}")
        for u, at in enumerate((cfg.lt0, cfg.lt1)):
            if at == Q and cfg.ltouch:
                touch(160, S_TB, (1 << 46) - 1); p.vm.issue("t")
                p(f"s_add_u32 s{S_TB}, s{S_TB}, {2944*128}")
    def late_touch():
        touch(160, S_TB, (1 << 46) - 1); p.vm.issue("t")
        p(f"s_add_u32 s{S_TB}, s{S_TB}, {2944*128}")
    cinit_loads()
    for _ in range(5): p.vm.issue("ci")
    if cfg.pre and not g0_done:
        p.wait(vm=f"x{2*(cfg.gon - cfg.pre)+1}")
        arrive(C_G0)
    if not go_done:
        p.wait(vm=f"x{2*cfg.gon+1}")
        arrive(C_GO)
    p.wait(vm="x13")
    arrive(C_XL)
    p.wait(vm="ci")
    for at in (cfg.lt0, cfg.lt1):
        if at == 7 and cfg.ltouch: late_touch()
    if cfg.ltouch and cfg.lt1 == 8: p(f"s_mov_b32 s{S_FB}, s{S_TB}")
    stamp(6)

    p.label("L_setup")
    if cfg.stamps: p(f"s_mov_b32 s{S_ST+27}, 0")
    p(f"s_setprio {cfg.prio_prep}")
    p.vm.clear(); p.lg.clear()
    AX, AT, CI, X0 = 0, 16, 32, 48
    Z = [74, 78]; PT = 82; ZL = 90
    XA = {1: 98, -3: 99, -1: 100}; WA = 101; SM = [102, 103, 104, 105]; MBX = 106; VMB = 110; VBO = 111
    RING = 112; RES = RING + 4*cfg.R
    WT = 112
    assert RES + 4*cfg.NRES <= 256
    NR = 4
    S_N, S_MB, S_O = S_T+7, S_T+9, S_T+11
    S_NR = S_T + 12
    p(f"s_and_b32 s{S_T+3}, s{S_WAVE}, 3")
    p(f"s_lshl_b32 s{S_T+2}, s{S_T+3}, 2")
    p(f"s_lshl_b32 s{S_T}, s{S_T+3}, 8")
    p(f"s_mov_b32 s{S_N}, 4")
    p(f"s_add_u32 s{S_T+2}, s{S_T+2}, 3")
    p(f"s_cmp_lt_u32 s{S_WAVE}, 4")
    p("s_cbranch_scc1 L_rowp")
    p(f"s_add_u32 s{S_T}, s{S_T}, {4*7168}")
    if cfg.bal:
        p(f"s_mov_b32 s{S_N}, 3")
        p(f"s_mul_i32 s{S_T+2}, s{S_T+3}, 3")
        p(f"s_add_u32 s{S_T+2}, s{S_T+2}, 70")
    else: p(f"s_add_u32 s{S_T+2}, s{S_T+2}, 64")
    p.label("L_rowp")
    p(f"s_lshl4_add_u32 s{S_T+2}, s{S_CP}, s{S_T+2}")
    p.label("L_setup2")
    p(f"s_mov_b32 s{S_NR}, s{S_N}")
    p("v_and_b32 v1, 31, v0")
    p("v_lshrrev_b32 v2, 5, v0")
    p(f"v_lshl_add_u32 v3, v1, 1, s{S_T}")
    p(f"v_lshl_add_u32 v{XA[1]}, v2, 6, v3")
    p("v_mul_u32_u24 v4, 0xc0, v2")
    p(f"v_sub_u32 v{XA[-3]}, v3, v4")
    p("v_lshlrev_b32 v4, 6, v2")
    p(f"v_sub_u32 v{XA[-1]}, v3, v4")
    p("v_mul_u32_u24 v4, 0x210, v2")
    p("v_lshl_add_u32 v4, v1, 4, v4")
    p(f"v_add_u32 v{WA}, {WO}, v4")
    for r in range(26): p(f"v_mov_b32 v{X0+r}, 0")
    for a in range(3):
        for h in range(2):
            p(f"v_lshlrev_b32 v{CI+4*a+2*h}, 16, v{CRAW+2*a+h}")
            p(f"v_and_b32 v{CI+4*a+2*h+1}, 0xffff0000, v{CRAW+2*a+h}")
    p(f"v_lshlrev_b32 v{CI+12}, 16, v{CRAW+6}")
    for r in range(13, 16): p(f"v_mov_b32 v{CI+r}, 0")
    p(f"v_lshlrev_b32 v{VBO}, 16, v{CRAW+7}")
    p("v_lshrrev_b32 v1, 3, v0")
    p("v_min_u32 v3, 1, v1")
    p("v_lshlrev_b32 v2, 9, v0")
    p(f"v_lshl_add_u32 v{VMB}, v3, 30, v2")
    p(f"s_lshl_b32 s{S_T+1}, s{S_RG}, 7")
    p(f"s_add_u32 s{S_T+1}, s{S_T+1}, s{S_T+2}")
    p(f"s_lshl_b32 s{S_O}, s{S_T+1}, 1")
    p(f"s_lshl_b32 s{S_T}, s{S_RG}, 10")
    p(f"s_add_u32 s{S_MB}, s{S_T+2}, s{S_T}")
    p(f"s_sub_u32 s{S_MB}, s{S_MB}, 3")
    p(f"s_lshl_b32 s{S_MB}, s{S_MB}, 2")
    p(f"v_mov_b32 v{ZL+7}, 0")
    p(f"s_cmp_ge_u32 s{S_WAVE}, 4")
    p("s_cbranch_scc1 L_xz")
    p("v_and_b32 v2, 7, v0")
    p(f"v_mul_u32_u24 v3, {BLK}, v1")
    p("v_lshl_add_u32 v3, v2, 4, v3")
    p("v_mul_u32_u24 v4, 0x210, v2")
    p(f"s_mul_i32 s{S_T}, s{S_C}, {24*528}")
    p(f"s_add_u32 s{S_T}, s{S_T}, {WO}")
    p(f"v_add_u32 v4, s{S_T}, v4")
    p("v_lshl_add_u32 v5, v1, 4, v4")
    p("v_cmp_eq_u32 vcc, 1, v1")
    p("v_add_u32 v6, 48, v5")
    p("v_subrev_u32 v7, 48, v5")
    p("v_cndmask_b32 v6, v5, v6, vcc")
    p("v_cmp_eq_u32 vcc, 4, v1")
    p(f"s_cmp_eq_u32 s{S_C}, 3")
    p(f"s_cselect_b32 s{S_T+1}, 4, 0")
    p("v_cndmask_b32 v6, v6, v7, vcc")
    p(f"v_and_b32 v7, s{S_T+1}, v2")
    p("v_lshl_add_u32 v7, v7, 28, v3")
    p("v_and_b32 v8, 31, v0")
    p("v_lshrrev_b32 v9, 5, v0")
    p(f"v_mul_u32_u24 v8, {BLK}, v8")
    p("v_lshl_add_u32 v8, v9, 2, v8")
    p(f"s_mul_i32 s{S_T}, s{S_C}, 384")
    p(f"s_add_u32 s{S_T}, s{S_T}, {WS_W}")
    p(f"s_and_b32 s{S_T+1}, s{S_CP}, {1 if cfg.wrot else 0}")
    p(f"s_mul_i32 s{S_T+2}, s{S_T+1}, 26624")
    for k in range(4):
        p(f"s_xor_b32 s{S_T+3+k}, s{S_T+2}, {26624*(k >> 1)}")
        p(f"s_add_u32 s{S_T+3+k}, s{S_T+3+k}, s{S_T}")
        if k & 1: p(f"s_add_u32 s{S_T+3+k}, s{S_T+3+k}, 13312")
    p(f"s_lshl_b32 s{S_T+2}, s{S_T+1}, 8")
    p(f"s_cmp_eq_u32 s{S_T+1}, 0")
    p("s_cselect_b64 vcc, -1, 0")
    p(f"v_add_u32 v12, s{S_T+2}, v5")
    p(f"s_xor_b32 s{S_T+2}, s{S_T+2}, 0x100")
    p("v_add_u32 v6, 0x180, v6")
    p("v_add_u32 v15, 0x80, v5")
    p(f"v_add_u32 v14, s{S_T+2}, v5")
    p("v_cndmask_b32 v13, v6, v15, vcc")
    p("v_cndmask_b32 v15, v15, v6, vcc")
    p("v_mov_b32 v10, 0")
    if cfg.pre:
        check(C_G0, 4, sleep=2)
        p(f"s_load_dword s{S_T+14}, s[{S_DBG}:{S_DBG+1}], 192")
    check(C_GO, 4, sleep=2)
    stamp(22)
    p(f"s_mov_b32 s{S_T+13}, {WS_W}")
    if cfg.noprep: p("s_branch L_wload")
    if cfg.direct:
        if not cfg.pre:
            p(f"s_load_dword s{S_T+14}, s[{S_DBG}:{S_DBG+1}], 192")
            p("s_waitcnt lgkmcnt(0)")
        p(f"s_cmp_lg_u32 s{S_T+14}, 0")
        p("s_cbranch_scc1 L_wload")
        if cfg.stamps: p(f"s_add_u32 s{S_ST+27}, s{S_ST+27}, 100")
    p(f"s_cmp_lg_u32 s{S_C}, 0")
    p("s_cbranch_scc1 L_pw")
    p.label("L_probe")
    p(f"global_load_dword v11, v10, s[{S_DBG}:{S_DBG+1}] offset:128 sc1")
    p(f"buffer_load_dword v9, v8, s[{S_WS}:{S_WS+3}], s{S_T+13} offen offset:1536 sc1")
    p("s_waitcnt vmcnt(0)")
    p("v_add_u32 v11, -1, v11")
    p("v_max_u32 v9, v9, v11")
    p("v_cmp_eq_u32 vcc, -1, v9")
    p("s_nop 1")
    p("s_cmp_eq_u64 vcc, 0")
    p("s_cbranch_scc1 L_wload")
    p.label("L_retry")
    if cfg.stamps: p(f"s_add_u32 s{S_ST+27}, s{S_ST+27}, 1")
    p(f"s_sleep {cfg.poll_sleep}")
    p(f"s_sub_u32 s{S_SPIN}, s{S_SPIN}, 1")
    p("s_cbranch_scc0 L_probe")
    p("s_endpgm")
    p.label("L_pw")
    check(C_FLAG, 1, sleep=2)
    p("s_branch L_wl2")
    p.label("L_wload")
    arrive(C_FLAG)
    p.label("L_wl2")
    stamp(2)
    for J in range(4):
        for Fi in range(3):
            r = WT + 4*(3*J + Fi)
            p.vmem(f"buffer_load_dwordx4 v[{r}:{r+3}], v{7 if Fi == 2 else 3}, s[{S_WS}:{S_WS+3}], s{S_T+3+J} offen offset:{128*Fi} sc1", f"w{J}{Fi}")
    first = True
    for J in range(4):
        for Fi in range(3):
            r = WT + 4*(3*J + Fi)
            p.wait(vm=f"w{J}{Fi}")
            p(f"ds_write_b128 v{12+J}, v[{r}:{r+3}] offset:{4224*Fi}")
            if first: p(f"v_max_u32 v9, v{r}, v{r+1}")
            else: p(f"v_max3_u32 v9, v{r}, v{r+1}, v9")
            p(f"v_max3_u32 v9, v{r+2}, v{r+3}, v9")
            first = False
    p("v_cmp_eq_u32 vcc, -1, v9")
    p("s_nop 1")
    p("s_cmp_eq_u64 vcc, 0")
    p("s_cbranch_scc0 L_retry")
    p.label("L_xz")
    check(C_XL, 4, sleep=cfg.idle_sleep)
    def x_read(r):
        p.lds(f"ds_read_u16_d16_hi v{X0+r}, v{XA[pi(r)-r]} offset:{1024*(r >> 2) + 64*(r & 3)}", f"x{r}")
    for r in range(26): x_read(r)
    def z_ops(n):
        ops = []
        for e in range(4):
            t = PT + 2*(e % 4)
            (a, b), (c, d) = S[8*n + 2*e], S[8*n + 2*e + 1]
            ops.append(("v", f"v_mul_f32 v{t}, v{X0+a}, v{X0+b}", (a, b)))
            ops.append(("v", f"v_mul_f32 v{t+1}, v{X0+c}, v{X0+d}", (c, d)))
        cv = [("v", f"v_cvt_pk_bf16_f32 v{Z[n % 2]+e}, v{PT+2*e}, v{PT+2*e+1}", ()) for e in range(4)]
        return ops[0:4] + cv[0:1] + ops[4:6] + cv[1:2] + ops[6:8] + cv[2:4]
    for o in z_ops(0):
        p.wait(lg=tuple(f"x{r}" for r in o[2]))
        p(o[1])
    for d in XA.values(): p(f"v_add_u32 v{d}, 0x1c00, v{d}")
    p.wait0(lg=True)
    p("s_barrier")
    if cfg.ltouch and cfg.lt1 == 8:
        p(f"s_cmp_lt_u32 s{S_WAVE}, 4")
        p("s_cbranch_scc1 L_go")
        touch(160, S_FB, (1 << 46) - 1)
    p.label("L_go")
    p("s_setprio 0")
    if cfg.flip:
        p(f"s_cmp_lt_u32 s{S_WAVE}, 4")
        p("s_cbranch_scc1 L_prio")
        p(f"s_setprio 1")
        p.label("L_prio")
    stamp(3)
    order = []
    for n in range(22):
        order.append(("X", n)); order.append(("T", n))
        if n == 14: order.append(("T", 22))
        if n == 18: order.append(("T", 23))
    fr_of = lambda k, n: (2*n if k == "X" else 2*n + 1) if n < 22 else n + 22
    nn = 46 - cfg.NRES
    assert nn % cfg.R == 0
    nonres = [int((u + 0.5)*46/nn) for u in range(nn)]
    wreg = {}; rr = 0
    for k in range(46):
        if k in nonres: wreg[k] = RING + 4*(nonres.index(k) % cfg.R)
        else: wreg[k] = RES + 4*rr; rr += 1
    def w_read(k):
        p.lds(f"ds_read_b128 v[{wreg[k]}:{wreg[k]+3}], v{WA} offset:{1056*fr_of(*order[k])}", f"w{k}")
    for k in range(46):
        if k not in nonres or nonres.index(k) < cfg.R: w_read(k)
    p.wait0(lg=True)
    stamp(5)
    def mfma(k):
        kind, n = order[k]
        zb = Z[n % 2] if n < 22 else ZL + 4*(n - 22)
        acc = AX if kind == "X" else AT
        cc = f"v[{acc}:{acc+15}]"
        if n == 0: cc = "0" if kind == "X" else f"v[{CI}:{CI+15}]"
        return f"v_mfma_f32_32x32x16_bf16 v[{acc}:{acc+15}], v[{wreg[k]}:{wreg[k]+3}], v[{zb}:{zb+3}], {cc}"
    lin_ops = []
    for u in range(8):
        a = LIN[min(2*u, 12)]; b = LIN[min(2*u + 1, 12)]
        lin_ops.append(("v", f"v_cvt_pk_bf16_f32 v{ZL+u}, v{X0+a}, v{X0+b}", (a, b)))
    def body(emit_mb):
        groups = [z_ops(n) for n in range(1, 22)] + [z_ops(0)]
        groups[10] = lin_ops[:7] + groups[10]
        flat = [(g, o) for g, ops in enumerate(groups) for o in ops]
        lastuse = {}
        for i, (g, o) in enumerate(flat):
            if g < 21:
                for r in o[2]: lastuse[r] = i
        for r in range(26): lastuse.setdefault(r, -1)
        for g, ops in enumerate(groups):
            mf = [kk for kk in range(46) if order[kk] in (("X", g), ("T", g))]
            if g == 14: mf.append(order.index(("T", 22)))
            if g == 18: mf.append(order.index(("T", 23)))
            items = []
            base = sum(len(x) for x in groups[:g])
            if g == 0:
                for r in range(26):
                    if lastuse[r] == -1: items.append(("x", r))
            for i, o in enumerate(ops):
                items.append(o)
                for r in range(26):
                    if lastuse[r] == base + i: items.append(("x", r))
            if g == 21:
                pos = [0, 0]
            else:
                n_it = len(items)
                pos = [2 + (j*n_it)//len(mf) for j in range(len(mf))]
            j = 0
            for i, it in enumerate(items + [None]):
                while j < len(mf) and pos[j] <= i:
                    kk = mf[j]
                    if g == 21 and j == 0: p("s_nop 1")
                    p.wait(lg=f"w{kk}")
                    p(mfma(kk))
                    if kk in nonres:
                        w_read(nonres[(nonres.index(kk) + cfg.R) % nn])
                    j += 1
                if it is None: break
                if it[0] == "x": x_read(it[1])
                else:
                    p.wait(lg=tuple(f"x{r}" for r in it[2]))
                    p(it[1])
            if g == 15: emit_mb()
        for k in range(NR - 1): p(f"v_mov_b32 v{SM[k]}, v{SM[k+1]}")
        for d in XA.values(): p(f"v_add_u32 v{d}, 0x1c00, v{d}")
        s0 = SM[NR-1]
        p(f"v_mul_f32 v{s0}, v{AX}, v{AT}")
        p(f"v_mul_f32 v{PT}, v{AX+1}, v{AT+1}")
        for r in range(2, 13):
            p(f"v_fmac_f32 v{s0 if r % 2 == 0 else PT}, v{AX+r}, v{AT+r}")
        p(f"s_sub_u32 s{S_N}, s{S_N}, 1")
        p(f"v_add_f32 v{s0}, v{s0}, v{PT}")
    def mb_loads():
        p(f"buffer_load_dwordx{NR} v[{MBX}:{MBX+NR-1}], v{VMB}, s[{S_WS}:{S_WS+3}], s{S_MB} offen sc1")
    def emit_mb():
        sk = L("nomb")
        p(f"s_cmp_lg_u32 s{S_N}, 1")
        p(f"s_cbranch_scc1 {sk}")
        mb_loads()
        p.label(sk)
    save = p.L; p.L = []
    body(lambda: None)
    st1 = list(p.lg.q)
    p.L = save
    p(".p2align 3")
    p.label("L_row")
    body(emit_mb)
    assert st1 == p.lg.q
    if cfg.stamps in (1, 2):
        for i in range(3): p(f"s_mov_b32 s{S_ST+23+i}, s{S_ST+24+i}")
        stamp(26)
    if cfg.flip:
        p(f"s_cmp_lg_u32 s{S_N}, {4 - cfg.flip}")
        p("s_cbranch_scc1 L_noflip")
        p("s_setprio 0")
        p.label("L_noflip")
    p(f"s_cmp_lg_u32 s{S_N}, 0")
    p("s_cbranch_scc1 L_row")
    p.label("L_mbw")
    p("s_waitcnt vmcnt(0)")
    if NR == 4:
        p(f"v_max3_u32 v1, v{MBX}, v{MBX+1}, v{MBX+2}")
        p(f"v_max_u32 v1, v1, v{MBX+3}")
    else: p(f"v_max_u32 v1, v{MBX}, v{MBX+1}")
    p("v_cmp_eq_u32 vcc, -1, v1")
    p("s_nop 1")
    p("s_cmp_eq_u64 vcc, 0")
    p("s_cbranch_scc1 L_mbok")
    p("s_sleep 1")
    mb_loads()
    p(f"s_sub_u32 s{S_SPIN}, s{S_SPIN}, 1")
    p("s_cbranch_scc0 L_mbw")
    p("s_endpgm")
    p.label("L_mbok")
    for k in range(NR): p(f"v_add_f32 v{SM[k]}, v{SM[k]}, v{MBX+k}")
    for ctl in ("quad_perm:[1,0,3,2] row_mask:0xf", "quad_perm:[2,3,0,1] row_mask:0xf", "row_half_mirror row_mask:0xf",
                "row_mirror row_mask:0xf", "row_bcast:15 row_mask:0xa", "row_bcast:31 row_mask:0xc"):
        if NR == 2: p("s_nop 0")
        for k in range(NR): p(f"v_add_f32_dpp v{SM[k]}, v{SM[k]}, v{SM[k]} {ctl} bank_mask:0xf")
    for k in range(NR): p(f"v_add_f32 v{SM[k]}, v{SM[k]}, v{VBO}")
    p(f"v_cvt_pk_bf16_f32 v2, v{SM[0]}, v{SM[1]}")
    p(f"v_cvt_pk_bf16_f32 v3, v{SM[2]}, v{SM[3]}")
    p(f"v_mov_b32 v1, s{S_O}")
    p("s_mov_b32 exec_lo, 0")
    p("s_mov_b32 exec_hi, 0x80000000")
    if cfg.bal:
        p(f"s_cmp_eq_u32 s{S_NR}, 4")
        p("s_cbranch_scc1 L_st4")
        p(f"global_store_short_d16_hi v1, v3, s[{S_OUT}:{S_OUT+1}]")
        p(f"s_cmp_eq_u32 s{S_NR}, 1")
        p("s_cbranch_scc1 L_std")
        p(f"global_store_short v1, v3, s[{S_OUT}:{S_OUT+1}] offset:-2")
        p(f"global_store_short_d16_hi v1, v2, s[{S_OUT}:{S_OUT+1}] offset:-4")
        p("s_branch L_std")
        p.label("L_st4")
    p(f"global_store_dwordx2 v1, v[2:3], s[{S_OUT}:{S_OUT+1}] offset:-6")
    p.label("L_std")
    stamps_out()
    p.label("L_end")
    p("s_endpgm")

    p.vm.q = dnn_vm; p.lg.clear()
    p(".p2align 6")
    p.label("L_dnn")
    ACC = lambda t, q: 8*t + 4*q
    BF = lambda t: 56 + 4*t
    AR = lambda f, q: 84 + 8*(f % 2) + 4*q
    IDX = lambda f: 100 + f
    VO = lambda u: 128 + u
    V_B, V_A, V_CH, V_LANE, V_G8 = [130, 131, 132], [133, 134, 135], 136, 137, 138
    RAW = 140; RAW2 = 200
    S_SB, S_M0, S_AM = S_T+2, S_T+3, S_T+4
    if cfg.probe:
        p("s_cmp_ge_u32 s2, 8")
        p("s_cbranch_scc1 L_pr1")
        p("s_lshl_b32 s90, s2, 2")
        p("v_mov_b32 v1, s90")
        p("v_mov_b32 v2, s96")
        p(f"global_store_dword v1, v2, s[{S_DBG}:{S_DBG+1}] offset:8 sc1")
        p("s_waitcnt vmcnt(0)")
        p.label("L_pr1")
    srd(S_B1, 10, 1664)
    srd(S_TAB, 2, 6400000)
    srd(S_W2, 12, 1664)
    srd(S_WS, None, WS_END)
    if cfg.pxa >= 0:
        p("s_getreg_b32 s91, hwreg(HW_REG_XCC_ID)")
        p("s_and_b32 s91, s91, 15")
        p(f"s_cmp_lg_u32 s2, {cfg.pxa}")
        p("s_cbranch_scc1 L_pxa")
        p("v_mov_b32 v1, 0")
        p("v_mov_b32 v2, s91")
        p(f"global_store_dword v1, v2, s[{S_DBG}:{S_DBG+1}] offset:8 sc1")
        p("s_waitcnt vmcnt(0)")
        p.label("L_pxa")
    if cfg.plat:
        sr_, off = {1: (S_TAB, 3000320), 2: (S_W1, 1300096), 3: (S_WS, 4096), 4: (S_TAB, 5000320)}[cfg.plat]
        p("s_waitcnt vmcnt(0)")
        p(f"v_mov_b32 v1, {off}")
        p(f"buffer_load_dword v2, v1, s[{sr_}:{sr_+3}], 0 offen offset:2048")
        p("s_waitcnt vmcnt(0)")
        p("s_lshl_b32 s90, s2, 7")
        p("s_memrealtime s[94:95]")
        p("s_waitcnt lgkmcnt(0)")
        p(f"buffer_load_dword v2, v1, s[{sr_}:{sr_+3}], s90 offen offset:4)".replace(")", ""))
        p("s_waitcnt vmcnt(0)")
        p("s_memrealtime s[92:93]")
        p("s_waitcnt lgkmcnt(0)")
        p("s_sub_u32 s92, s92, s94")
        p("s_mul_i32 s92, s92, 10")
        p("s_add_u32 s92, s92, s96")
    stamp(10)
    p(f"s_mov_b32 s{S_SPIN}, 0x40000")
    p(f"s_mul_i32 s{S_COL}, s{S_CP}, 416")
    S_M1, S_WR = S_T+5, S_T+6
    p(f"s_mov_b32 s{S_SB}, s{S_COL}")
    p(f"s_and_b32 s{S_WR}, s{S_WAVE}, 3")
    p(f"s_lshl_b32 s{S_T}, s{S_WAVE}, 1")
    p(f"s_sub_u32 s{S_T}, s{S_T}, 4")
    p(f"s_add_u32 s{S_T+1}, s{S_T}, 1")
    p(f"s_cmp_lt_u32 s{S_WAVE}, 4")
    p(f"s_cselect_b32 s{S_M0}, s{S_WAVE}, s{S_T}")
    p(f"s_cselect_b32 s{S_M1}, 12, s{S_T+1}")
    p(f"s_lshl_b32 s{S_M0}, s{S_M0}, 10")
    p(f"s_lshl_b32 s{S_M1}, s{S_M1}, 10")
    p(f"s_lshl_b32 s{S_AM}, s{S_WAVE}, 10")
    p(f"s_add_u32 s{S_AM}, s{S_AM}, {BSZ}")
    p(f"s_lshr_b32 s{S_T}, s{S_WAVE}, 2")
    p(f"s_mul_i32 s{S_T}, s{S_T}, 224")
    p(f"s_add_u32 s{S_COL}, s{S_COL}, s{S_T}")
    p(f"s_movk_i32 s{S_T+1}, 1248")
    p(f"s_movk_i32 s{S_T+7}, 6656")
    for u in range(2):
        p(f"v_add_u32 v3, s{(S_M0, S_M1)[u]}, v{V_L}")
        p("v_lshlrev_b32 v4, 4, v3")
        p("v_mul_hi_u32_u24 v4, 0x9d89e, v4")
        p("v_bfe_u32 v5, v4, 2, 1")
        p("v_bfe_i32 v6, v4, 3, 1")
        p("v_add_u32 v5, v5, v6")
        p(f"v_mad_i32_i24 v5, v5, s{S_T+7}, v3")
        p(f"v_mad_u32_u24 v{VO(u)}, v4, s{S_T+1}, v5")
    p("v_lshrrev_b32 v1, 4, v0")
    p(f"s_add_u32 s{S_T+1}, s{S_T}, {IDXO}")
    p(f"v_lshl_add_u32 v{V_G8}, v1, 3, s{S_T+1}")
    p("v_lshrrev_b32 v2, 2, v0")
    p(f"v_mul_u32_u24 v2, 104, v2")
    p(f"s_add_u32 s{S_W}, s{S_W}, {IDXO}")
    p(f"v_add_u32 v139, s{S_W}, v2")
    p("v_lshrrev_b32 v2, 5, v0")
    p("v_mul_u32_u24 v3, 3, v2")
    p("v_xor_b32 v3, v3, v0")
    p("v_and_b32 v3, 3, v3")
    p(f"v_lshlrev_b32 v{V_CH}, 4, v3")
    p("v_bfe_u32 v3, v0, 3, 1")
    p("v_mul_u32_u24 v3, 3, v3")
    p("v_xor_b32 v3, v3, v1")
    p("v_and_b32 v4, 15, v0")
    p("v_lshlrev_b32 v4, 6, v4")
    p("v_lshl_add_u32 v3, v3, 4, v4")
    p(f"s_and_b32 s{S_T+1}, s{S_WAVE}, 3")
    p(f"s_lshl_b32 s{S_T+1}, s{S_T+1}, 11")
    p(f"s_add_u32 s{S_T+1}, s{S_T+1}, {BSZ}")
    p(f"v_add_u32 v{V_A[0]}, s{S_T+1}, v3")
    p("v_bfe_u32 v3, v0, 2, 3")
    p("v_lshl_add_u32 v2, v2, 4, v3")
    p("v_mul_u32_u24 v2, 0x1a0, v2")
    p("v_and_b32 v3, 3, v0")
    p("v_lshl_add_u32 v2, v3, 3, v2")
    p(f"v_add_u32 v{V_B[0]}, s{S_T}, v2")
    for k in (1, 2):
        p(f"v_add_u32 v{V_A[k]}, {3*k*SLOT}, v{V_A[0]}")
        p(f"v_add_u32 v{V_B[k]}, {3*k*SLOT}, v{V_B[0]}")
    p(f"v_mov_b32 v{V_LANE}, v0")
    p.wait(vm="idx")
    stamp(1)
    if cfg.dbench:
        p("s_mov_b32 s3, 0")
        p.label("L_again")
    for m in range(6):
        p.lds(f"ds_read2_b64 v[{100+4*m}:{103+4*m}], v139 offset0:{2*m} offset1:{2*m+1}", f"ix{m}")
    p.lds("ds_read_b64 v[124:125], v139 offset:96", "ix6")
    def a_dma(f):
        p.wait(lg=f"ix{f >> 2}")
        p(f"s_add_u32 m0, s{S_AM}, {(f % RB)*SLOT}")
        p(f"v_lshl_add_u32 v{IDX(f)}, v{IDX(f)}, 6, v{V_CH}")
        p.vmem(f"buffer_load_dwordx4 v{IDX(f)}, s[{S_TAB}:{S_TAB+3}], 0 offen lds", f"F{f}")
    def b_dma(f, u, T):
        if u == 1:
            if f: p(f"s_add_u32 s{S_SB}, s{S_SB}, 53248")
            sk = L("np")
            if T != 6:
                if T == 0:
                    p(f"s_cmp_ge_u32 s{S_WAVE}, 4")
                    p(f"s_cselect_b32 s{S_X}, {f & 3}, s{S_WR}")
                    p(f"s_cmp_lg_u32 s{S_X}, {f & 3}")
                else: p(f"s_cmp_lg_u32 s{S_WR}, {f & 3}")
                p(f"s_cbranch_scc1 {sk}")
            p(f"s_add_u32 m0, s{S_M1}, {(f % RB)*SLOT}")
            p("s_nop 0")
            p(f"buffer_load_dwordx4 v{VO(1)}, s[{S_W1}:{S_W1+3}], s{S_SB} offen lds")
            if T == 6: p.vm.issue(f"F{f}")
            else: p.label(sk)
        else:
            p(f"s_add_u32 m0, s{S_M0}, {(f % RB)*SLOT}")
            p("s_nop 0")
            p.vmem(f"buffer_load_dwordx4 v{VO(0)}, s[{S_W1}:{S_W1+3}], s{S_SB} offen lds", f"F{f}")
    def fill(f, T): a_dma(f); b_dma(f, 1, T); b_dma(f, 0, T)
    BWO = IDXO
    p(f"s_cmp_ge_u32 s{S_WAVE}, {0 if cfg.dbench else 2}")
    p("s_cbranch_scc1 L_nobw")
    p(f"s_mul_i32 s{S_X}, s{S_CP}, 416")
    p(f"s_cmp_eq_u32 s{S_WAVE}, 0")
    p(f"s_cselect_b64 s[{S_W2}:{S_W2+1}], s[{S_B1}:{S_B1+1}], s[{S_W2}:{S_W2+1}]")
    p(f"s_mov_b32 m0, s{S_W}")
    p("s_mov_b64 exec, 0xfffffff")
    p("s_waitcnt lgkmcnt(0)")
    p(f"buffer_load_dwordx4 v{V_L}, s[{S_W2}:{S_W2+3}], s{S_X} offen lds")
    p("s_mov_b64 exec, -1")
    p.label("L_nobw")
    if cfg.sw < 26:
        p(f"v_lshlrev_b32 v{V_C}, 2, v{V_LANE}")
        p(f"v_add_u32 v{V_C}, {IDXO + 2*1664}, v{V_C}")
        p(f"v_mov_b32 v{V_ONE}, 1")
        p(f"s_cmp_lg_u32 s{S_WAVE}, 2")
        p("s_cbranch_scc1 L_noz")
        p(f"v_mov_b32 v{V_POLL}, 0")
        p("s_waitcnt lgkmcnt(0)")
        p(f"ds_write_b32 v{V_C}, v{V_POLL}")
        p("s_waitcnt lgkmcnt(0)")
        p.label("L_noz")
    def lo(f): return (f % RB)//3, ((f % RB) % 3)*SLOT
    def b_read1(f, t, r2):
        k, off = lo(f)
        p.lds(f"ds_read_b64_tr_b16 v[{BF(t)+2*r2}:{BF(t)+2*r2+1}], v{V_B[k]} offset:{off + 32*t + 3328*r2}", f"b{f}_{t}")
    def a_read(f):
        k, off = lo(f)
        for q in range(2):
            p.lds(f"ds_read_b128 v[{AR(f, q)}:{AR(f, q)+3}], v{V_A[k]} offset:{off + 1024*q}", f"a{f}")
    p(f"s_cmp_ge_u32 s{S_WAVE}, 4")
    p("s_cbranch_scc1 L_dnn6")
    W2R = lambda t, r: 170 + 4*t + r
    def w2_unpack():
        return [x for t in range(7) for h in range(2) for x in
                (f"v_lshlrev_b32 v{W2R(t,2*h)}, 16, v{RAW2+2*t+h}", f"v_and_b32 v{W2R(t,2*h+1)}, 0xffff0000, v{RAW2+2*t+h}")]
    vm0, lg0 = list(p.vm.q), list(p.lg.q)
    def dnn_main(T):
        p.vm.q, p.lg.q = list(vm0), list(lg0)
        fill(0, T)
        fill(1, T)
        p.wait(vm="F0")
        p("s_barrier")
        stamp(12)
        for t in range(T):
            p.lds(f"ds_read_b64 v[{RAW+2*t}:{RAW+2*t+1}], v{V_G8} offset:{32*t}", "bias")
        a_read(0)
        for t in range(T):
            for r2 in range(2): b_read1(0, t, r2)
        p.wait(lg="bias")
        for t in range(T):
            for h in range(2):
                p(f"v_lshlrev_b32 v{ACC(t,0)+2*h}, 16, v{RAW+2*t+h}")
                p(f"v_and_b32 v{ACC(t,0)+2*h+1}, 0xffff0000, v{RAW+2*t+h}")
        for f in range(2, cfg.look): fill(f, T)
        p.wait(vm=tuple(f"F{k}" for k in range(cfg.barp + 1)))
        p("s_barrier")
        if T == 6 and cfg.prio_hi: p(f"s_setprio {cfg.prio_hi}")
        stamp(2)
        nxt = cfg.look
        w2ops = w2_unpack()
        free = -1; landed = cfg.barp
        for f in range(26):
            todo = []
            soft = f > cfg.sw and f <= 23
            top = f < cfg.early or (cfg.dpos == 4 and T == 6) or (cfg.dpos == 1 and T == 7)
            lim = (f - 1 if soft and not top else free) + RB
            nfill = 2 if (cfg.cmask >> f & 1 if cfg.cmask else cfg.catch0 <= f < cfg.catch0 + cfg.catch) else 1
            if f >= cfg.b2: nfill = (2 if (f % 2 == 0) == ((T == 6) == (cfg.dpos == 4)) else 0)
            for _ in range(nfill):
                if nxt < 26 and nxt <= lim:
                    todo += [(a_dma, (nxt,)), (b_dma, (nxt, 1, T)), (b_dma, (nxt, 0, T))]; nxt += 1
            if cfg.nodma and f >= 4:
                keep = []
                for fn, ar in todo:
                    if (fn is a_dma and cfg.nodma & 1) or (fn is b_dma and cfg.nodma & 2): continue
                    keep.append((fn, ar))
                todo[:] = keep
            n_it = len(todo)
            if f < cfg.early: at = [-1]*n_it
            elif cfg.dpos == 0: at = list(range(n_it))
            elif cfg.dpos == 1: at = [-1]*n_it if T == 7 else [T-1]*n_it
            elif cfg.dpos == 2: at = [(2*i + (T == 6)) if n_it <= 3 else i for i in range(n_it)]
            elif cfg.dpos == 3: at = [0]*n_it if T == 7 else [T-1]*n_it
            elif cfg.dpos == 4: at = [T-1]*n_it if T == 7 else [-1]*n_it
            elif cfg.dpos == 5: at = [i//(2 if n_it > 3 else 1) for i in range(n_it)] if T == 7 else [3 + i//(2 if n_it > 3 else 1) for i in range(n_it)]
            if soft and not top: at = [min(max(a, cfg.chk + i*(cfg.dpos in (0, 2))), T-1) for i, a in enumerate(at)]
            assert f == 25 or f + 1 <= landed
            def drain(t):
                while todo and at[0] <= t:
                    at.pop(0); fn, ar = todo.pop(0); fn(*ar)
            drain(-1)
            for t in range(T):
                p.wait(lg=(f"b{f}_{t}", f"a{f}"))
                b = f"v[{BF(t)}:{BF(t)+3}]"
                a0, a1 = ACC(t, 0), ACC(t, 1)
                c1 = a0 if f == 0 else a1
                p(f"v_mfma_f32_16x16x32_bf16 v[{a1}:{a1+3}], {b}, v[{AR(f,1)}:{AR(f,1)+3}], v[{c1}:{c1+3}]")
                if t and f < 25: b_read1(f+1, t-1, 1)
                elif t == 0 and f: b_read1(f, T-1, 1)
                p(f"v_mfma_f32_16x16x32_bf16 v[{a0}:{a0+3}], {b}, v[{AR(f,0)}:{AR(f,0)+3}], v[{a0}:{a0+3}]")
                if f < 25: b_read1(f+1, t, 0)
                if t == cfg.arp and f < 25: a_read(f + 1)
                if soft and t == cfg.chk - 2: poll_issue(4*(f-1))
                if soft and t == cfg.chk:
                    check(4*(f-1), 8, issued=True)
                    free = f - 1; landed = f + 2
                drain(t)
                if f == 21:
                    for tt in ([t] if t < T - 1 else range(t, 7)):
                        p.lds(f"ds_read_b64 v[{RAW2+2*tt}:{RAW2+2*tt+1}], v{V_G8} offset:{1664 + 32*tt}", "w2")
                if cfg.w2early and f in (23, 24):
                    if f == 23 and t == 0: p.wait(lg="w2")
                    for _ in range(3):
                        if w2ops: p(w2ops.pop(0))
            assert not todo
            if f >= cfg.sw:
                if f <= 22:
                    assert nxt > f + 3
                    p.wait(vm=tuple(f"F{k}" for k in range(f + 4)))
                    arrive(4*f)
            elif f <= cfg.lb and (f + 1) % cfg.barp == 0 and (f < cfg.b2 or f % 2):
                last = min(f + 1 + cfg.barp + (f + 1 == cfg.sw or f + 1 >= cfg.b2), 25) if f < cfg.lb else 25
                assert nxt > last
                p.wait(vm=tuple(f"F{k}" for k in range(last + 1)))
                if not cfg.nobar: p("s_barrier")
                free = f; landed = last
            if f == cfg.lb and cfg.tailprio is not None and T == cfg.tailprio: p("s_setprio 1")
            if f % 4 == 0 and (not cfg.dbench or f in (8, 20)): stamp(14 + f//4)
        assert nxt == 26 and not (cfg.w2early and w2ops)
    dnn_main(7)
    p("s_branch L_gelu")
    p(".p2align 6")
    p.label("L_dnn6")
    dnn_main(6)
    p.label("L_gelu")
    if cfg.dbench:
        p("s_barrier")
        p(f"s_mul_i32 s{S_SB}, s{S_CP}, 416")
        p("s_add_u32 s3, s3, 1")
        p("s_cmp_lt_u32 s3, 2")
        p("s_cbranch_scc1 L_again")
    stamp(3)
    p(f"s_load_dword s{S_X}, s[{S_DBG}:{S_DBG+1}], 128")
    if not cfg.w2early:
        p.wait0(vm=True)
        for x in w2_unpack(): p(x)
    k0 = -2.0*math.sqrt(2.0/math.pi)*math.log2(math.e)
    T1, T2, SUM, VC = 56, 64, 92, 72
    P = lambda a: f"v[{a}:{a+1}]"
    for r, c in enumerate((k0*0.044715, k0)):
        for h in range(2): p(f"v_mov_b32 v{VC+2*r+h}, {f2h(c)}")
    for r in range(4): p(f"v_mov_b32 v{SUM+r}, 0")
    for t in range(7):
        if t == 6:
            p(f"s_cmp_ge_u32 s{S_WAVE}, 4")
            p("s_cbranch_scc1 L_gelu6")
        x = ACC(t, 0)
        if cfg.pk:
            for r in range(0, 8, 2): p(f"v_pk_mul_f32 {P(T1+r)}, {P(x+r)}, {P(x+r)}")
            for r in range(0, 8, 2): p(f"v_pk_fma_f32 {P(T1+r)}, {P(T1+r)}, {P(VC)}, {P(VC+2)}")
            for r in range(0, 8, 2): p(f"v_pk_mul_f32 {P(T1+r)}, {P(T1+r)}, {P(x+r)}")
            for r in range(8): p(f"v_exp_f32 v{T1+r}, v{T1+r}")
            for r in range(0, 8, 2): p(f"v_pk_mul_f32 {P(T2+r)}, {P(x+r)}, {P(W2R(t, r & 3))}")
            for r in range(0, 8, 2): p(f"v_pk_add_f32 {P(T1+r)}, {P(T1+r)}, 1.0 op_sel_hi:[1,0]")
            for r in range(8): p(f"v_rcp_f32 v{T1+r}, v{T1+r}")
            for r in (0, 4, 2, 6): p(f"v_pk_fma_f32 {P(SUM+2*(r >> 2))}, {P(T1+r)}, {P(T2+r)}, {P(SUM+2*(r >> 2))}")
        else:
            for r in range(8): p(f"v_mul_f32 v{T1+r}, v{x+r}, v{x+r}")
            for r in range(8): p(f"v_fma_f32 v{T1+r}, v{T1+r}, v{VC}, v{VC+2}")
            for r in range(8): p(f"v_mul_f32 v{T1+r}, v{T1+r}, v{x+r}")
            for r in range(8): p(f"v_exp_f32 v{T1+r}, v{T1+r}")
            for r in range(8): p(f"v_mul_f32 v{T2+r}, v{x+r}, v{W2R(t, r & 3)}")
            for r in range(8): p(f"v_add_f32 v{T1+r}, 1.0, v{T1+r}")
            for r in range(8): p(f"v_rcp_f32 v{T1+r}, v{T1+r}")
            for r in range(8): p(f"v_fmac_f32 v{SUM+2*(r >> 2)+(r & 1)}, v{T1+r}, v{T2+r}")
    p.label("L_gelu6")
    p(f"v_add_f32 v{SUM}, v{SUM}, v{SUM+1}")
    p(f"v_add_f32 v{SUM+2}, v{SUM+2}, v{SUM+3}")
    p(f"v_and_b32 v84, 15, v{V_LANE}")
    p(f"v_lshrrev_b32 v85, 5, v{V_LANE}")
    p(f"v_permlane32_swap_b32 v{SUM}, v{SUM+2}")
    p("v_lshl_add_u32 v84, v85, 4, v84")
    p(f"v_add_f32 v{SUM}, v{SUM}, v{SUM+2}")
    p(f"v_bfe_u32 v85, v{V_LANE}, 4, 1")
    p(f"v_mov_b32 v{SUM+1}, v{SUM}")
    p("v_lshlrev_b32 v84, 2, v84")
    p("v_lshl_add_u32 v84, v85, 30, v84")
    p(f"v_permlane16_swap_b32 v{SUM}, v{SUM+1}")
    p(f"s_lshl2_add_u32 s{S_T}, s{S_RG}, s{S_CP}")
    p(f"v_add_f32 v{SUM}, v{SUM}, v{SUM+1}")
    p(f"s_lshl3_add_u32 s{S_T}, s{S_T}, s{S_WAVE}")
    p(f"s_lshl_b32 s{S_T}, s{S_T}, 7")
    p(f"v_min_u32 v{SUM}, -2, v{SUM}")
    p("s_waitcnt lgkmcnt(0)")
    if cfg.noprep or cfg.dbench: p("s_branch L_pub")
    p(f"s_cmp_lg_u32 s{S_X}, 0")
    p("s_cbranch_scc1 L_pub")
    p("v_mov_b32 v85, 0")
    p.label("L_dflag")
    p(f"global_load_dword v86, v85, s[{S_DBG}:{S_DBG+1}] offset:128 sc1")
    p("s_waitcnt vmcnt(0)")
    p(f"v_readfirstlane_b32 s{S_X}, v86")
    p(f"s_cmp_lg_u32 s{S_X}, 0")
    p("s_cbranch_scc1 L_pub")
    p("s_sleep 4")
    p(f"s_sub_u32 s{S_SPIN}, s{S_SPIN}, 1")
    p("s_cbranch_scc0 L_dflag")
    p("s_endpgm")
    p.label("L_pub")
    p(f"buffer_store_dword v{SUM}, v84, s[{S_WS}:{S_WS+3}], s{S_T} offen sc1")
    stamp(4)
    if cfg.probe:
        p("s_cmp_lg_u32 s2, 0")
        p("s_cbranch_scc1 L_pr2")
        p(f"v_lshlrev_b32 v1, 2, v{V_LANE}")
        p(f"global_load_dword v2, v1, s[{S_DBG}:{S_DBG+1}] offset:8 sc1")
        p("s_waitcnt vmcnt(0)")
        for i in range(8): p(f"v_readlane_b32 s{80+i}, v2, {i}")
        p("s_mov_b32 s90, s80"); p("s_mov_b32 s91, s80")
        for i in range(1, 8):
            p(f"s_min_u32 s90, s90, s{80+i}"); p(f"s_max_u32 s91, s91, s{80+i}")
        if cfg.probe == 1: p("s_sub_u32 s90, s91, s90")
        else: p(f"s_sub_u32 s90, s{80+cfg.probe-2}, s90")
        p("s_mul_i32 s90, s90, 20")
        p("s_min_u32 s90, s90, 20000")
        p("s_memrealtime s[92:93]"); p("s_waitcnt lgkmcnt(0)")
        p("s_add_u32 s92, s92, s90")
        p.label("L_pr")
        p("s_memrealtime s[94:95]"); p("s_waitcnt lgkmcnt(0)")
        p("s_cmp_lt_u32 s94, s92")
        p("s_cbranch_scc1 L_pr")
        p.label("L_pr2")
    stamps_out()
    p("s_endpgm")

    p(".p2align 6")
    p(".type gather_table,@object")
    p.label("gather_table")
    zt = P_Z - PS
    for role in range(2):
        for lane in range(64):
            s, half = lane >> 1, lane & 1
            ad = []
            for e in range(8):
                pr = slot_pair(s, half, e) if s < (24 if role == 0 else 22) else None
                at = (lambda j, k: P_D1 - PS + k*144 + j*4) if role == 0 else (lambda j, k: P_W1 - PS + (j*26 + k)*2)
                if pr is None: ad += [zt, zt]
                elif pr[1] is None: ad += [at(pr[0], 26), zt]
                elif pr[0] == pr[1] or norm(pr) == (24, 25): ad += [at(*pr), zt]
                else: ad += [at(pr[0], pr[1]), at(pr[1], pr[0])]
            p(".short " + ", ".join(str(a) for a in ad))
    p(".size gather_table, 4096")
    return p

def header():
    return """; xDeepFM (CIN + DNN) forward, one launch, 256 workgroups (S1).
; Kernarg: idx, table, ws_cin, w_cin_out, w_dnn1, b_dnn1, w_dnn2, b_out, out, debug, ws
; @launch grid=(256,1,1) block=(512,1,1) lds=%d
.amdgcn_target "amdgcn-amd-amdhsa--gfx950"
.text
""" % LDS_SIZE
def footer():
    nv = 256
    return f""".section .rodata,"a"
.p2align 6
.amdhsa_kernel {NAME}
  .amdhsa_next_free_vgpr {nv}
  .amdhsa_next_free_sgpr 102
  .amdhsa_accum_offset {nv}
  .amdhsa_group_segment_fixed_size 0
  .amdhsa_kernarg_size 88
  .amdhsa_user_sgpr_count 2
  .amdhsa_user_sgpr_kernarg_segment_ptr 1
  .amdhsa_system_sgpr_workgroup_id_x 1
  .amdhsa_float_denorm_mode_32 3
.end_amdhsa_kernel
"""
if __name__ == "__main__":
    out = sys.argv[1]
    for a in sys.argv[2:]:
        k, v = a.split("=")
        setattr(cfg, k, type(getattr(cfg, k))(int(v)))
    open(out, "w").write(header() + build().text() + footer())
```

```python
import sys, struct, math
from asmlib import *
from slots import *

NAME = "standalone__deep_cross_xdeepfm__recsys_kernel"
class Cfg:
    stamps = 0
    NRES = 31
    R = 3
    prio_prep = 3
    prio_hi = 0
    poll_sleep = 2
    idle_sleep = 1
    gon = 4
    bal = 0
    lt0 = 2
    lt1 = 5
    early = 4
    look = 3
    cmask = 0
    catch0 = 4
    catch = 4
    etouch = 0
    dtouch = 1
    mtouch = 1
    ttouch = 0
    xwin = 4
    pfcode = 1
    flip = 2
    w2early = 1
    dpos = 4
    ltouch = 0
    pk = 1
    ctouch = 1
    wrot = 1
    direct = 1
    w3last = 1
    ntx = 0
    nta = 0
    nti = 0
    pre = 0
    pst = -1
    pcyc = 0
    pxa = -1
    plat = 0
    pwg = 0
    pwave = 0
    probe = 0
    dbench = 0
    nodma = 0
    nobar = 0
    lb = 21
    tailprio = 0
    b2 = 26
    sw = 26
    chk = 3
    barp = 1
    arp = 1
    noprep = 0
    clrpos = 1
    xstart = 0
    xbar = 4
    pdelay = 1
    hold = 0
cfg = Cfg()

LDS_SIZE = 163840
XO = 0
WO = 8*7168
PS = WO + 96*528
P_W3 = PS; P_M3T = PS + 36864; P_D1 = PS + 38912; P_W1 = PS + 43520; P_Z = PS + 45568; P_DUM = PS + 45824
CO = LDS_SIZE - 512
IX2 = PS + 46080
assert P_DUM + 256 <= CO
C_PA, C_PB, C_XL, C_FLAG, C_GO, C_G0, C_PI = 0, 4, 8, 12, 16, 20, 24
RB = 7
BSZ = 13312
SLOT = BSZ + 8192
IDXO = RB*SLOT
assert IDXO + 8*1664 == LDS_SIZE
MBOX = 0; WS_W = 131072; BLK = 1664; WS_END = WS_W + 26*BLK; WS_STAMP = 1 << 20
S_IDX, S_TAB, S_W1, S_WCIN, S_WCO, S_B1, S_W2, S_WS = 4, 8, 12, 16, 20, 24, 28, 32
S_OUT, S_DBG, S_BOUT = 36, 38, 40
S_WAVE, S_RG, S_CP, S_FB, S_COL, S_W = 42, 43, 44, 45, 46, 47
S_PC, S_SPIN, S_X = 48, 50, 51
KA = 52
S_T = 52
S_ST = 70
V_C, V_ONE, V_POLL, V_L = 162, 163, 164, 165
FRM = "0x20000"

def f2h(x): return "0x%08x" % struct.unpack("<I", struct.pack("<f", x))[0]

def build():
    p = Prog()
    lab = [0]
    def L(n):
        lab[0] += 1
        return f"L_{n}_{lab[0]}"
    def stamp(i):
        if cfg.pst == i:
            p("s_memtime s[92:93]" if cfg.pcyc else "s_memrealtime s[92:93]")
            p.wait0(lg=True)
        if cfg.stamps and (cfg.stamps != 3 or i == 8):
            p(f"s_memrealtime s[68:69]" if cfg.stamps != 2 or i == 8 else "s_memtime s[68:69]")
            p.wait0(lg=True)
            if cfg.stamps != 2 or i == 8: p(f"s_mov_b32 s{S_ST+i}, s68")
            else:
                p("s_sub_u32 s68, s68, s100")
                p("s_lshr_b32 s68, s68, 4")
                p(f"s_add_u32 s{S_ST+i}, s68, s{S_ST}")
    def stamps_out():
        if cfg.pst >= 0:
            stamp(8)
            sk = L("npr"); lp = L("pr")
            p(f"s_cmp_lg_u32 s2, {cfg.pwg}")
            p(f"s_cbranch_scc1 {sk}")
            p(f"s_cmp_lg_u32 s{S_WAVE}, {cfg.pwave}")
            p(f"s_cbranch_scc1 {sk}")
            if cfg.pst == 0: p("s_mov_b32 s92, s96")
            if cfg.pxa >= 0:
                p("s_mov_b64 exec, -1")
                p("v_mov_b32 v1, 0")
                p(f"global_load_dword v2, v1, s[{S_DBG}:{S_DBG+1}] offset:8 sc1")
                p("s_waitcnt vmcnt(0)")
                p("v_readfirstlane_b32 s90, v2")
                p("s_cmp_lg_u32 s90, s91")
                p("s_cselect_b32 s90, 250, 0")
                p("s_add_u32 s92, s92, s90")
            if cfg.pcyc:
                p("s_sub_u32 s90, s92, s98")
                p("s_lshr_b32 s90, s90, 3")
            else:
                p("s_sub_u32 s90, s92, s96")
                p("s_mul_i32 s90, s90, 4")
            p("s_mov_b64 exec, 1")
            p("v_mov_b32 v1, 0")
            p("v_mov_b32 v2, s90")
            p(f"global_store_dword v1, v2, s[{S_DBG}:{S_DBG+1}] offset:4")
            p("s_add_u32 s90, s90, 2000")
            p("s_min_u32 s90, s90, 20000")
            p("s_add_u32 s90, s90, s96")
            p.label(lp)
            p("s_sleep 1")
            p("s_memrealtime s[94:95]"); p("s_waitcnt lgkmcnt(0)")
            p("s_cmp_lt_u32 s94, s90")
            p(f"s_cbranch_scc1 {lp}")
            p.label(sk)
        if not cfg.stamps: return
        stamp(8)
        p("s_mov_b64 exec, 1")
        p(f"s_lshl4_add_u32 s{S_T}, s2, s{S_WAVE}")
        p(f"s_lshl_b32 s{S_T}, s{S_T}, 7")
        p(f"s_add_u32 s{S_T}, s{S_T}, {WS_STAMP}")
        p(f"v_mov_b32 v1, s{S_T}")
        p("s_memtime s[68:69]")
        p("s_waitcnt lgkmcnt(0)")
        p(f"s_sub_u32 s{S_ST+29}, s68, s100")
        for i in range(30):
            p(f"v_mov_b32 v2, s{S_ST+i}")
            p(f"global_store_dword v1, v2, s[{S_WS}:{S_WS+1}] offset:{4*i}")
    def arrive(*offs):
        p("s_mov_b64 exec, 1")
        for off in offs: p.lds(f"ds_add_u32 v{V_C}, v{V_ONE} offset:{off}", "arr")
        p("s_mov_b64 exec, -1")
    def poll_issue(off):
        p.lds(f"ds_read_b32 v{V_POLL}, v{V_C} offset:{off}", "poll")
    def check(off, target, issued=False, sleep=0):
        ok = L("ok"); sp = L("spin")
        if issued:
            p.wait(lg="poll")
            p(f"v_readfirstlane_b32 s{S_X}, v{V_POLL}")
            p(f"s_cmp_ge_u32 s{S_X}, {target}")
            p(f"s_cbranch_scc1 {ok}")
        p.label(sp)
        if sleep: p(f"s_sleep {sleep}")
        p(f"ds_read_b32 v{V_POLL}, v{V_C} offset:{off}")
        p("s_waitcnt lgkmcnt(0)")
        p(f"v_readfirstlane_b32 s{S_X}, v{V_POLL}")
        p(f"s_sub_u32 s{S_SPIN}, s{S_SPIN}, 1")
        p("s_cbranch_scc1 L_end")
        p(f"s_cmp_ge_u32 s{S_X}, {target}")
        p(f"s_cbranch_scc0 {sp}")
        if not issued: p.lg.clear()
        p.label(ok)
    def srd(s, ka, n):
        if ka is not None: p(f"s_mov_b64 s[{s}:{s+1}], s[{KA+ka}:{KA+ka+1}]")
        p(f"s_mov_b32 s{s+2}, {n}")
        p(f"s_mov_b32 s{s+3}, {FRM}")
    def touch(vaddr, soff, mask):
        p(f"s_mov_b64 exec, {mask}" if mask < (1 << 31) else f"s_mov_b32 exec_hi, {hex(mask >> 32)}")
        p(f"buffer_load_dword v250, v{vaddr}, s[{S_W1}:{S_W1+3}], s{soff} offen")
        p("s_mov_b64 exec, -1")

    def producer_index():
        p(f"s_lshr_b32 s{S_FB}, s2, 6")
        p(f"s_sub_u32 s{S_FB}, s{S_RG}, s{S_FB}")
        p(f"s_sub_u32 s{S_FB}, s{S_FB}, 1")
        p(f"s_and_b32 s{S_X}, s2, 0x37")
        p(f"s_sub_u32 s{S_X}, s{S_X}, 1")
        p(f"s_cmp_lt_u32 s{S_X}, 7")
        p(f"s_cselect_b32 s{S_FB}, s{S_FB}, 99")

    S_FL = 16
    def flags_load(off): p(f"s_load_dwordx8 s[{S_FL}:{S_FL+7}], s[{S_DBG}:{S_DBG+1}], {off}")
    def flags_test():
        p(f"s_or_b32 s{S_FL+6}, s{S_FL+6}, 0x01010000")
        p(f"s_and_b64 s[{S_FL}:{S_FL+1}], s[{S_FL}:{S_FL+1}], s[{S_FL+2}:{S_FL+3}]")
        p(f"s_and_b64 s[{S_FL}:{S_FL+1}], s[{S_FL}:{S_FL+1}], s[{S_FL+4}:{S_FL+5}]")
        p(f"s_and_b32 s{S_FL}, s{S_FL}, s{S_FL+1}")
        p(f"s_and_b32 s{S_FL}, s{S_FL}, s{S_FL+6}")
        p(f"s_cmp_eq_u32 s{S_FL}, 0x01010101")

    p(f".globl {NAME}\n.p2align 8\n.type {NAME},@function")
    p.label(NAME)
    p(f"s_load_dwordx16 s[{KA}:{KA+15}], s[0:1], 0")
    p(f"s_load_dwordx4 s[{S_OUT}:{S_OUT+3}], s[0:1], 64")
    p(f"s_load_dwordx2 s[{S_WS}:{S_WS+1}], s[0:1], 80")
    if cfg.probe or cfg.pst >= 0: p("s_memrealtime s[96:97]")
    if cfg.pcyc: p("s_memtime s[98:99]")
    if cfg.stamps:
        p(f"s_memrealtime s[{S_ST}:{S_ST+1}]")
        p(f"s_memtime s[100:101]")
    p("v_lshrrev_b32 v1, 6, v0")
    p("v_and_b32 v0, 63, v0")
    p(f"v_readfirstlane_b32 s{S_WAVE}, v1")
    p("s_cmp_ge_u32 s2, 0x100")
    p("s_cbranch_scc1 L_end")
    p(f"s_and_b32 s3, s2, 7")
    p(f"s_lshr_b32 s{S_RG}, s2, 6")
    p(f"s_lshl3_add_u32 s{S_RG}, s{S_RG}, s3")
    p(f"s_bfe_u32 s{S_CP}, s2, 0x20004")
    p(f"v_lshlrev_b32 v{V_L}, 4, v0")
    p(f"v_lshlrev_b32 v160, 7, v0")
    srd(S_IDX, None, 4096*104)
    srd(S_W1, None, 832*1664)
    p("s_bitcmp1_b32 s2, 3")
    p("s_cbranch_scc1 L_cin")
    p(f"s_lshl3_add_u32 s3, s{S_RG}, s{S_WAVE}")
    p(f"s_mul_i32 s3, s3, 1664")
    p(f"s_mul_i32 s{S_W}, s{S_WAVE}, 1664")
    p(f"s_add_u32 m0, s{S_W}, {IDXO}")
    p(f"s_lshr_b32 s{S_X}, s2, 4")
    p(f"s_lshl3_add_u32 s{S_X}, s{S_X}, s{S_WAVE}")
    p(f"s_mul_i32 s{S_X}, s{S_X}, 2560")
    p.wait0(lg=True)
    p(f"s_mov_b64 s[{S_IDX}:{S_IDX+1}], s[{KA}:{KA+1}]")
    p(f"s_mov_b64 s[{S_W1}:{S_W1+1}], s[{KA+8}:{KA+9}]")
    for n in range(2):
        if n: p("s_mov_b32 exec_hi, 0xff")
        p.vmem(f"buffer_load_dwordx4 v{V_L}, s[{S_IDX}:{S_IDX+3}], s3 offen offset:{1024*n}{' nt' if cfg.nti else ''} lds", "idx")
    if not cfg.dtouch: p("s_mov_b32 exec_hi, -1")
    if cfg.dtouch:
        touch(160, S_X, 0xfffff); p.vm.issue("t")
    p("s_branch L_dnn")
    dnn_vm = list(p.vm.q)

    p.vm.clear(); p.lg.clear()
    p.label("L_cin")
    if cfg.dbench: p("s_endpgm")
    S_C = S_WAVE
    W3A, TBL, VV, AQ, VF, GA, MB, VT, CRAW = 28, 32, 40, 56, 72, 80, 96, 170, 152
    srd(S_WCO, None, 156)
    srd(S_WS, None, WS_END)
    p(f"s_mov_b32 s{S_SPIN}, 0x40000")
    p(f"v_lshlrev_b32 v{V_C}, 2, v0")
    p(f"v_add_u32 v{V_C}, {CO}, v{V_C}")
    p(f"v_mov_b32 v{V_ONE}, 1")
    p(f"s_cmp_ge_u32 s{S_WAVE}, 4")
    p("s_cbranch_scc1 L_xwave")
    srd(S_WCIN, None, 105456)
    producer_index()
    if cfg.noprep: p(f"s_mov_b32 s{S_FB}, 99")
    p(f"s_getpc_b64 s[{S_PC}:{S_PC+1}]")
    p.label("L_pc")
    p.wait0(lg=True)
    p(f"s_mov_b64 s[{S_WCIN}:{S_WCIN+1}], s[{KA+4}:{KA+5}]")
    if cfg.ttouch: srd(S_TAB, 2, 6400000)
    p(f"s_mov_b64 s[{S_W1}:{S_W1+1}], s[{KA+8}:{KA+9}]")
    p(f"s_mov_b64 s[{S_WCO}:{S_WCO+1}], s[{KA+6}:{KA+7}]")
    p(f"s_mov_b64 s[{S_BOUT}:{S_BOUT+1}], s[{KA+14}:{KA+15}]")
    def cinit_loads():
        p(f"v_lshrrev_b32 v8, 5, v0")
        p(f"v_lshlrev_b32 v9, 3, v8")
        p(f"v_lshlrev_b32 v8, 1, v8")
        for a in range(3):
            p(f"buffer_load_dwordx2 v[{CRAW+2*a}:{CRAW+2*a+1}], v9, s[{S_WCO}:{S_WCO+3}], 0 offen offset:{16*a}")
        p(f"buffer_load_ushort v{CRAW+6}, v8, s[{S_WCO}:{S_WCO+3}], 0 offen offset:48")
        p(f"v_mov_b32 v8, 0")
        p(f"global_load_ushort v{CRAW+7}, v8, s[{S_BOUT}:{S_BOUT+1}]")
    if cfg.mtouch or cfg.ttouch or cfg.ctouch:
        p(f"s_cmp_eq_u32 s{S_CP}, 0")
        p("s_cbranch_scc1 L_nomt")
        p(f"s_mul_i32 s{S_T}, s{S_RG}, 3")
        p(f"s_add_u32 s{S_T}, s{S_T}, s{S_CP}")
        p(f"s_lshl2_add_u32 s{S_T}, s{S_T}, s{S_C}")
        p(f"s_sub_u32 s{S_T}, s{S_T}, 4")
        if cfg.ctouch:
            p(f"s_lshr_b32 s{S_T+1}, s2, 6")
            p(f"s_mul_i32 s{S_T+1}, s{S_T+1}, 3")
            p(f"s_add_u32 s{S_T+1}, s{S_T+1}, s{S_CP}")
            p(f"s_lshl2_add_u32 s{S_T+1}, s{S_T+1}, s{S_C}")
            p(f"s_mul_i32 s{S_T+1}, s{S_T+1}, {6*128}")
            p(f"s_add_u32 s{S_T+1}, s{S_T+1}, {(549 - 24)*128}")
            p("s_mov_b64 exec, 63")
            p(f"buffer_load_dword v250, v160, s[{S_WCIN}:{S_WCIN+3}], s{S_T+1} offen")
            p("s_mov_b64 exec, -1")
        if cfg.mtouch:
            p(f"s_mul_i32 s{S_T+1}, s{S_T}, {22*128}")
            p(f"s_add_u32 s{S_T+1}, s{S_T+1}, {2496*128}")
            touch(160, S_T+1, (1 << 22) - 1)
        if cfg.ttouch:
            p(f"s_mul_i32 s{S_T+1}, s{S_T}, {cfg.ttouch*128}")
            p(f"s_mov_b64 exec, {(1 << cfg.ttouch) - 1}" if cfg.ttouch < 31 else f"s_mov_b32 exec_hi, {hex(((1 << cfg.ttouch) - 1) >> 32)}")
            p(f"buffer_load_dword v250, v160, s[{S_TAB}:{S_TAB+3}], s{S_T+1} offen")
            p("s_mov_b64 exec, -1")
        p("s_branch L_cbar")
        p.label("L_nomt")
    p(f"s_cmp_ge_u32 s{S_FB}, 26")
    p("s_cbranch_scc1 L_cbar")
    if cfg.prio_prep: p(f"s_setprio {cfg.prio_prep}")
    p(f"s_mul_i32 s{S_T+2}, s{S_FB}, {BLK}")
    p(f"s_add_u32 s{S_T+2}, s{S_T+2}, {WS_W}")
    def w3_dma():
        p(f"s_mul_i32 s{S_T}, s{S_C}, 9216")
        p(f"s_add_u32 s{S_T+1}, s{S_T}, 70304")
        p(f"s_add_u32 s{S_T}, s{S_T}, {P_W3}")
        for u in range(9):
            if u % 4 == 0:
                if u: p(f"s_add_u32 s{S_T+1}, s{S_T+1}, 0x1000")
                p(f"s_add_u32 m0, s{S_T}, {1024*u}")
                p("s_nop 0")
            p(f"buffer_load_dwordx4 v{V_L}, s[{S_WCIN}:{S_WCIN+3}], s{S_T+1} offen offset:{1024*(u % 4)} lds")
    if not cfg.w3last: w3_dma()
    p("v_and_b32 v2, 0x30, v0")
    p("v_bfe_u32 v1, v0, 2, 2")
    for q in range(4):
        p(f"v_xor_b32 v3, {q}, v1")
        p("v_lshl_add_u32 v3, v3, 28, v2")
        p(f"buffer_load_dwordx4 v[{AQ+4*q}:{AQ+4*q+3}], v3, s[{S_WCO}:{S_WCO+3}], 0 offen offset:104")
    p(f"s_cmp_ge_u32 s{S_C}, 2")
    p("s_cbranch_scc1 L_p23")
    p(f"s_lshl_b32 s{S_T}, s{S_C}, 11")
    p(f"s_add_u32 s{S_T}, s{S_T}, gather_table-L_pc")
    p(f"v_lshl_add_u32 v1, v0, 5, s{S_T}")
    p(f"global_load_dwordx4 v[{TBL}:{TBL+3}], v1, s[{S_PC}:{S_PC+1}]")
    p(f"global_load_dwordx4 v[{TBL+4}:{TBL+7}], v1, s[{S_PC}:{S_PC+1}] offset:16")
    p(f"s_cmp_lg_u32 s{S_C}, 0")
    p("s_cbranch_scc1 L_p1")
    p("v_lshrrev_b32 v3, 5, v0")
    p("v_mul_u32_u24 v3, 0x2a40, v3")
    p("v_and_b32 v2, 31, v0")
    p("v_lshl_add_u32 v3, v2, 1, v3")
    p(f"s_mul_i32 s{S_T}, s{S_FB}, 52")
    p(f"s_add_u32 s{S_T}, s{S_T}, 35152")
    for u in range(16):
        if u and u % 4 == 0:
            p(f"s_add_u32 s{S_T}, s{S_T}, {(4 if u != 8 else 12)*1352}")
        p(f"buffer_load_ushort v{VV+u}, v3, s[{S_WCIN}:{S_WCIN+3}], s{S_T} offen offset:{1352*(u % 4)}")
    p("s_branch L_pz")
    p.label("L_p1")
    p(f"s_mul_i32 s{S_T}, s{S_FB}, 1352")
    p(f"s_mov_b32 m0, {P_W1}")
    p("s_nop 0")
    for u in range(2):
        p(f"buffer_load_dwordx4 v{V_L}, s[{S_WCIN}:{S_WCIN+3}], s{S_T} offen offset:{1024*u} lds")
    p("s_branch L_pz")
    p.label("L_p23")
    p(f"s_cmp_lg_u32 s{S_C}, 3")
    p("s_cbranch_scc1 L_pz")
    p("v_lshlrev_b32 v1, 2, v0")
    p(f"buffer_load_dword v27, v1, s[{S_WCO}:{S_WCO+3}], 0 offen offset:52")
    for r in range(4): p(f"v_mov_b32 v{4+r}, -1")
    p(f"buffer_store_dwordx4 v[4:7], v{V_L}, s[{S_WS}:{S_WS+3}], s{S_T+2} offen sc1")
    p("s_mov_b32 exec_hi, 0xff")
    p(f"buffer_store_dwordx4 v[4:7], v{V_L}, s[{S_WS}:{S_WS+3}], s{S_T+2} offen offset:1024 sc1")
    p("s_mov_b32 exec_hi, -1")
    p(f"s_mul_i32 s{S_T}, s{S_FB}, 5120")
    p(f"s_min_u32 s{S_T}, s{S_T}, {131072 - 5120}")
    p(f"s_add_u32 s{S_T+1}, s{S_T}, 0x1000")
    for u in range(5):
        p(f"buffer_store_dwordx4 v[4:7], v{V_L}, s[{S_WS}:{S_WS+3}], s{S_T+u//4} offen offset:{1024*(u % 4)} sc1")
    p.label("L_pz")
    if cfg.w3last: w3_dma()
    p("v_mov_b32 v2, 0")
    p("v_mov_b32 v3, 0")
    p(f"s_lshl_b32 s{S_T}, s{S_C}, 9")
    p(f"s_add_u32 s{S_T}, s{S_T}, {P_M3T}")
    p(f"v_lshl_add_u32 v1, v0, 3, s{S_T}")
    p("ds_write_b64 v1, v[2:3]")
    p(f"v_add_u32 v1, {P_Z - CO}, v{V_C}")
    p("ds_write_b32 v1, v2")
    p.label("L_cbar")
    if cfg.pfcode:
        sk = L("nopf")
        p(f"s_cmp_lg_u32 s{S_C}, 2")
        p(f"s_cbranch_scc1 {sk}")
        p(f"s_lshr_b32 s{S_T}, s2, 4")
        p(f"s_mul_i32 s{S_T}, s{S_T}, 2560")
        p(f"v_add_u32 v2, s{S_T}, v160")
        p(f"v_min_u32 v2, gather_table-L_pc+4092, v2")
        p("s_mov_b64 exec, 0xfffff")
        p(f"global_load_dword v161, v2, s[{S_PC}:{S_PC+1}]")
        p("s_mov_b64 exec, -1")
        p.label(sk)
    p("v_mov_b32 v2, 0")
    p(f"ds_write_b32 v{V_C}, v2")
    p.wait0(lg=True)
    p("s_barrier")
    stamp(1)
    p(f"s_cmp_lt_u32 s{S_FB}, 26")
    p("s_cbranch_scc1 L_prep")
    cinit_loads()
    p("s_waitcnt vmcnt(0)")
    p("s_branch L_setup")
    p.label("L_prep")
    p("v_bfe_u32 v1, v0, 2, 2")
    p("v_lshrrev_b32 v4, 4, v0")
    p("v_lshl_add_u32 v4, v4, 3, v1")
    p("v_add_u32 v5, 4, v4")
    p("v_min_u32 v4, 25, v4")
    p("v_min_u32 v5, 25, v5")
    p("v_and_b32 v6, 3, v0")
    p(f"s_mul_i32 s{S_T}, s{S_C}, 384")
    p(f"s_add_u32 s{S_T}, s{S_T}, {P_W3}")
    p(f"v_lshl_add_u32 v6, v6, 3, s{S_T}")
    p(f"s_movk_i32 s{S_T+1}, 1352")
    p(f"v_mad_u32_u24 v2, v4, s{S_T+1}, v6")
    p(f"v_mad_u32_u24 v3, v5, s{S_T+1}, v6")
    p(f"s_mul_i32 s{S_T}, s{S_C}, 192")
    p(f"s_movk_i32 s{S_T+1}, -1662")
    p(f"v_mov_b32 v7, {P_DUM}")
    for u in range(3):
        p(f"v_add_u32 v4, s{S_T}, v0")
        if u < 2: p(f"s_add_u32 s{S_T}, s{S_T}, 64")
        p("v_mul_u32_u24 v5, 2521, v4")
        p("v_lshrrev_b32 v5, 16, v5")
        p("v_cmp_gt_u32 vcc, 0x2a4, v4")
        p("v_lshlrev_b32 v4, 6, v4")
        p(f"v_mad_i32_i24 v4, v5, s{S_T+1}, v4")
        p(f"v_add_u32 v4, {P_M3T}, v4")
        p(f"v_cndmask_b32 v{8+u}, v7, v4, vcc")
    p("v_and_b32 v5, 31, v0")
    p("v_lshrrev_b32 v4, 5, v0")
    p("v_lshlrev_b32 v6, 6, v5")
    p("v_lshl_add_u32 v6, v4, 4, v6")
    p(f"v_add_u32 v28, {P_M3T}, v6")
    p("v_mul_u32_u24 v5, 0x90, v5")
    p("v_lshl_add_u32 v5, v4, 4, v5")
    p(f"v_add_u32 v29, {P_D1}, v5")
    p("v_lshrrev_b32 v1, 1, v0")
    p("v_lshl_add_u32 v4, v1, 1, 1")
    p("v_add_u32 v5, 22, v1")
    p("v_min_u32 v4, v5, v4")
    p("v_lshlrev_b32 v5, 1, v1")
    p(f"s_cmp_eq_u32 s{S_C}, 0")
    p("s_cselect_b64 vcc, -1, 0")
    p("v_and_b32 v6, 1, v0")
    p(f"v_mov_b32 v11, {PS}")
    p("v_cndmask_b32 v4, v5, v4, vcc")
    p("v_lshl_add_u32 v4, v4, 1, v6")
    p("v_lshlrev_b32 v30, 4, v4")
    p(f"v_add_u32 v4, {P_M3T + 26*64 - CO}, v{V_C}")
    p(f"s_cmp_lg_u32 s{S_C}, 3")
    p("s_cbranch_scc1 L_w0")
    assert cfg.w3last
    p("s_waitcnt vmcnt(9)")
    p("s_mov_b64 exec, 0x1fff")
    p("ds_write_b32 v4, v27")
    p(f"v_lshl_add_u32 v4, v0, 6, s{S_FB}")
    p("s_mov_b64 exec, 3")
    p(f"global_store_byte v4, v{V_ONE}, s[{S_DBG}:{S_DBG+1}] offset:128 sc1")
    p("s_mov_b64 exec, -1")
    stamp(13)
    p("s_waitcnt vmcnt(1)")
    p("s_branch L_w1")
    p.label("L_w0")
    p.wait0(vm=True)
    p.label("L_w1")
    stamp(10)
    p("s_barrier")
    extra = []
    for u in range(8):
        extra.append(f"v_add_u32_sdwa v{GA+2*u}, v11, v{TBL+u} dst_sel:DWORD dst_unused:UNUSED_PAD src0_sel:DWORD src1_sel:WORD_0")
        extra.append(f"v_add_u32_sdwa v{GA+2*u+1}, v11, v{TBL+u} dst_sel:DWORD dst_unused:UNUSED_PAD src0_sel:DWORD src1_sel:WORD_1")
    for u in range(8): extra.append(f"v_lshl_or_b32 v{VF+u}, v{VV+2*u+1}, 16, v{VV+2*u}")
    def m3_mfma(U):
        u, q = divmod(U, 4)
        p.wait(lg=f"m{U}")
        cc = "0" if q == 0 else f"v[{12+4*u}:{15+4*u}]"
        p(f"v_mfma_f32_16x16x32_bf16 v[{12+4*u}:{15+4*u}], v[{AQ+4*q}:{AQ+4*q+3}], v[{MB+4*U}:{MB+4*U+3}], {cc}")
    for T in range(12):
        p.lds(f"ds_read_b64_tr_b16 v[{MB+4*T}:{MB+4*T+1}], v2 offset:{32*T}", f"m{T}")
        p.lds(f"ds_read_b64_tr_b16 v[{MB+4*T+2}:{MB+4*T+3}], v3 offset:{32*T}", f"m{T}")
        if T == 5:
            for _ in range(8): p(extra.pop(0))
        if T >= 6: m3_mfma(T - 6)
    for U in range(6, 12):
        m3_mfma(U)
        if U == 8:
            p("v_cvt_pk_bf16_f32 v24, v12, v12")
            p("ds_write_b16 v8, v24")
        else:
            for _ in range(2): p(extra.pop(0))
    p("v_cvt_pk_bf16_f32 v25, v16, v16")
    p("ds_write_b16 v9, v25")
    while extra: p(extra.pop(0))
    p(f"v_cvt_pk_bf16_f32 v26, v20, v20")
    p(f"ds_write_b16 v10, v26")
    p.wait0(lg=True)
    p("s_barrier")
    stamp(11)
    p(f"s_cmp_eq_u32 s{S_C}, 0")
    p("s_cbranch_scc1 L_pT")
    p(f"s_cmp_lg_u32 s{S_C}, 1")
    p("s_cbranch_scc1 L_pdone")
    for u in range(16): p(f"v_mov_b32 v{MB+16+u}, 0")
    for u in range(16): p(f"ds_read_u16_d16_hi v{MB+16+u}, v{GA+u}")
    p("s_mov_b32 exec_hi, 0xfff")
    p("s_branch L_pst")
    p.label("L_pT")
    p("ds_read_b128 v[12:15], v28")
    p("ds_read_b128 v[16:19], v28 offset:32")
    p("s_waitcnt lgkmcnt(1)")
    p(f"v_mfma_f32_32x32x16_bf16 v[{MB}:{MB+15}], v[{VF}:{VF+3}], v[12:15], 0")
    p("s_waitcnt lgkmcnt(0)")
    p(f"v_mfma_f32_32x32x16_bf16 v[{MB}:{MB+15}], v[{VF+4}:{VF+7}], v[16:19], v[{MB}:{MB+15}]")
    p("s_nop 11")
    for a in range(4): p(f"ds_write_b128 v29, v[{MB+4*a}:{MB+4*a+3}] offset:{32*a}")
    for u in range(16): p(f"ds_read_b32 v{MB+16+u}, v{GA+u}")
    p("s_mov_b32 exec_hi, 0xffff")
    p.label("L_pst")
    for e in range(8):
        if e % 2 == 0: p(f"s_waitcnt lgkmcnt({12 - 2*e})")
        p(f"v_add_f32 v{MB+16+2*e}, v{MB+16+2*e}, v{MB+16+2*e+1}")
        if e % 2:
            p(f"v_cvt_pk_bf16_f32 v{4+e//2}, v{MB+14+2*e}, v{MB+16+2*e}")
            p(f"v_min_u32 v{4+e//2}, -2, v{4+e//2}")
    p(f"buffer_store_dwordx4 v[4:7], v30, s[{S_WS}:{S_WS+3}], s{S_T+2} offen sc1")
    p(f"v_mov_b32 v8, s{S_C}")
    p("v_lshlrev_b32 v8, 2, v8")
    p("s_mov_b64 exec, 1")
    p(f"buffer_store_dword v{V_ONE}, v8, s[{S_WS}:{S_WS+3}], s{S_T+2} offen offset:1536 sc1")
    p.label("L_pdx")
    p("s_mov_b64 exec, -1")
    p.label("L_pdone")
    stamp(21)
    cinit_loads()
    p("s_waitcnt vmcnt(0)")
    p("s_branch L_setup")
    p.label("L_xwave")
    S_J, S_XA, S_XB, S_XM, S_TB = S_W, S_T+2, S_T+3, S_T+4, S_T+5
    p(f"s_sub_u32 s{S_J}, s{S_WAVE}, 4")
    p(f"s_lshl3_add_u32 s3, s{S_RG}, s{S_CP}")
    p(f"s_lshr_b32 s{S_FB}, s{S_J}, 1")
    p(f"s_lshl2_add_u32 s3, s{S_FB}, s3")
    p(f"s_mul_i32 s3, s3, 1664")
    p(f"s_and_b32 s{S_X}, s{S_J}, 1")
    p(f"s_mul_i32 s{S_X}, s{S_X}, 832")
    p(f"s_add_u32 s3, s3, s{S_X}")
    p(f"s_mul_i32 s{S_X}, s{S_J}, 832")
    p(f"s_add_u32 m0, s{S_X}, {IX2}")
    p(f"s_lshr_b32 s{S_X}, s2, 6")
    p(f"s_mul_i32 s{S_X}, s{S_X}, 3")
    p(f"s_add_u32 s{S_X}, s{S_X}, s{S_CP}")
    p(f"s_lshl2_add_u32 s{S_X}, s{S_X}, s{S_J}")
    p(f"s_mul_i32 s{S_X}, s{S_X}, {52*128}")
    p(f"s_add_u32 s{S_X}, s{S_X}, {(2496 - 4*52)*128}")
    p.wait0(lg=True)
    p(f"s_mov_b64 s[{S_IDX}:{S_IDX+1}], s[{KA}:{KA+1}]")
    p(f"s_mov_b64 s[{S_W1}:{S_W1+1}], s[{KA+8}:{KA+9}]")
    p("s_mov_b32 exec_hi, 0xfffff")
    p(f"buffer_load_dwordx4 v{V_L}, s[{S_IDX}:{S_IDX+3}], s3 offen{' nt' if cfg.nti else ''} lds")
    p("s_mov_b32 exec_hi, -1")
    p(f"s_mov_b64 s[{S_WCO}:{S_WCO+1}], s[{KA+6}:{KA+7}]")
    p(f"s_mov_b64 s[{S_BOUT}:{S_BOUT+1}], s[{KA+14}:{KA+15}]")
    srd(S_TAB, 2, 6400000)
    if cfg.etouch:
        p(f"s_cmp_eq_u32 s{S_CP}, 0")
        p("s_cbranch_scc1 L_noet")
        touch(160, S_X, (1 << 52) - 1)
        p("s_waitcnt vmcnt(1)")
        p.label("L_noet")
    p("v_lshrrev_b32 v1, 4, v0")
    p("v_and_b32 v2, 12, v0")
    p(f"s_mul_i32 s3, s{S_J}, 104")
    p(f"s_add_u32 s3, s3, {IX2}")
    p(f"v_add_u32 v2, s3, v2")
    p(f"s_movk_i32 s{S_X}, 416")
    p(f"v_mad_u32_u24 v3, v1, s{S_X}, v2")
    if cfg.bal:
        p(f"s_cmp_eq_u32 s{S_J}, 3")
        p(f"s_cselect_b32 s{S_X}, 104, 312")
        p(f"s_cselect_b32 s3, {13*104}, {20*104}")
        p(f"v_add_u32 v2, s3, v2")
        p(f"v_mad_u32_u24 v4, v1, s{S_X}, v2")
    else: p("v_add_u32 v4, 0x680, v3")
    p("v_and_b32 v1, 3, v0")
    p("v_lshlrev_b32 v5, 4, v1")
    p("v_bfe_u32 v1, v0, 3, 1")
    p("v_lshl_add_u32 v6, v1, 30, v5")
    p(f"s_mul_i32 s{S_XM}, s{S_J}, 7168")
    p(f"s_lshr_b32 s{S_TB}, s2, 4")
    p(f"s_lshl2_add_u32 s{S_TB}, s{S_TB}, s{S_J}")
    p(f"s_mul_i32 s{S_TB}, s{S_TB}, {46*128}")
    p(f"s_add_u32 s{S_TB}, s{S_TB}, {4992*128}")
    assert not cfg.etouch
    producer_index()
    p("s_waitcnt vmcnt(0)")
    p("s_barrier")
    for u in range(2):
        for Q in range(0, 6, 2): p(f"ds_read2_b32 v[{VT+7*u+u+Q}:{VT+7*u+u+Q+1}], v{3+u} offset0:{4*Q} offset1:{4*Q+4}")
        p(f"ds_read_b32 v{VT+8*u+6}, v{3+u} offset:96")
    stamp(1)
    p.vm.clear()
    assert cfg.xwin < 14
    p.wait0(lg=True)
    go_done = False; g0_done = False
    for Q in range(7):
        for u in range(2):
            n = 2*Q + u
            if n == cfg.xbar and not cfg.noprep:
                p(f"s_cmp_ge_u32 s{S_FB}, 26")
                p("s_cbranch_scc1 L_nobar")
                p("s_barrier")
                p("s_barrier")
                p.label("L_nobar")
            if n == cfg.xstart and n: p.wait(vm="x0")
            if n >= cfg.xwin:
                p.wait(vm=f"x{n - cfg.xwin}")
                if n - cfg.xwin == 2*cfg.gon + 1: arrive(C_GO); go_done = True
                if cfg.pre and n - cfg.xwin == 2*(cfg.gon - cfg.pre) + 1: arrive(C_G0); g0_done = True
            p(f"s_add_u32 m0, s{S_XM}, {XO + 4*7168*u + 1024*Q}")
            p(f"v_lshl_add_u32 v{VT+8*u+Q}, v{VT+8*u+Q}, 6, v{6 if Q == 6 else 5}")
            p.vmem(f"buffer_load_dwordx4 v{VT+8*u+Q}, s[{S_TAB}:{S_TAB+3}], 0 offen{' nt' if cfg.ntx else ''} lds", f"x{n}")
        for u, at in enumerate((cfg.lt0, cfg.lt1)):
            if at == Q and cfg.ltouch:
                touch(160, S_TB, (1 << 46) - 1); p.vm.issue("t")
                p(f"s_add_u32 s{S_TB}, s{S_TB}, {2944*128}")
    def late_touch():
        touch(160, S_TB, (1 << 46) - 1); p.vm.issue("t")
        p(f"s_add_u32 s{S_TB}, s{S_TB}, {2944*128}")
    cinit_loads()
    for _ in range(5): p.vm.issue("ci")
    if cfg.pre and not g0_done:
        p.wait(vm=f"x{2*(cfg.gon - cfg.pre)+1}")
        arrive(C_G0)
    if not go_done:
        p.wait(vm=f"x{2*cfg.gon+1}")
        arrive(C_GO)
    p.wait(vm="x13")
    arrive(C_XL)
    p.wait(vm="ci")
    for at in (cfg.lt0, cfg.lt1):
        if at == 7 and cfg.ltouch: late_touch()
    if cfg.ltouch and cfg.lt1 == 8: p(f"s_mov_b32 s{S_FB}, s{S_TB}")
    stamp(6)

    p.label("L_setup")
    if cfg.stamps: p(f"s_mov_b32 s{S_ST+27}, 0")
    p(f"s_setprio {cfg.prio_prep}")
    p.vm.clear(); p.lg.clear()
    AX, AT, CI, X0 = 0, 16, 32, 48
    Z = [74, 78]; PT = 82; ZL = 90
    XA = {1: 98, -3: 99, -1: 100}; WA = 101; SM = [102, 103, 104, 105]; MBX = 106; VMB = 110; VBO = 111
    RING = 112; RES = RING + 4*cfg.R
    WT = 112
    assert RES + 4*cfg.NRES <= 256
    NR = 4
    S_N, S_MB, S_O = S_T+7, S_T+9, S_T+11
    S_NR = S_T + 12
    p(f"s_and_b32 s{S_T+3}, s{S_WAVE}, 3")
    p(f"s_lshl_b32 s{S_T+2}, s{S_T+3}, 2")
    p(f"s_lshl_b32 s{S_T}, s{S_T+3}, 8")
    p(f"s_mov_b32 s{S_N}, 4")
    p(f"s_add_u32 s{S_T+2}, s{S_T+2}, 3")
    p(f"s_cmp_lt_u32 s{S_WAVE}, 4")
    p("s_cbranch_scc1 L_rowp")
    p(f"s_add_u32 s{S_T}, s{S_T}, {4*7168}")
    if cfg.bal:
        p(f"s_mov_b32 s{S_N}, 3")
        p(f"s_mul_i32 s{S_T+2}, s{S_T+3}, 3")
        p(f"s_add_u32 s{S_T+2}, s{S_T+2}, 70")
    else: p(f"s_add_u32 s{S_T+2}, s{S_T+2}, 64")
    p.label("L_rowp")
    p(f"s_lshl4_add_u32 s{S_T+2}, s{S_CP}, s{S_T+2}")
    p.label("L_setup2")
    p(f"s_mov_b32 s{S_NR}, s{S_N}")
    p("v_and_b32 v1, 31, v0")
    p("v_lshrrev_b32 v2, 5, v0")
    p(f"v_lshl_add_u32 v3, v1, 1, s{S_T}")
    p(f"v_lshl_add_u32 v{XA[1]}, v2, 6, v3")
    p("v_mul_u32_u24 v4, 0xc0, v2")
    p(f"v_sub_u32 v{XA[-3]}, v3, v4")
    p("v_lshlrev_b32 v4, 6, v2")
    p(f"v_sub_u32 v{XA[-1]}, v3, v4")
    p("v_mul_u32_u24 v4, 0x210, v2")
    p("v_lshl_add_u32 v4, v1, 4, v4")
    p(f"v_add_u32 v{WA}, {WO}, v4")
    for r in range(26): p(f"v_mov_b32 v{X0+r}, 0")
    for a in range(3):
        for h in range(2):
            p(f"v_lshlrev_b32 v{CI+4*a+2*h}, 16, v{CRAW+2*a+h}")
            p(f"v_and_b32 v{CI+4*a+2*h+1}, 0xffff0000, v{CRAW+2*a+h}")
    p(f"v_lshlrev_b32 v{CI+12}, 16, v{CRAW+6}")
    for r in range(13, 16): p(f"v_mov_b32 v{CI+r}, 0")
    p(f"v_lshlrev_b32 v{VBO}, 16, v{CRAW+7}")
    p("v_lshrrev_b32 v1, 3, v0")
    p("v_min_u32 v3, 1, v1")
    p("v_lshlrev_b32 v2, 9, v0")
    p(f"v_lshl_add_u32 v{VMB}, v3, 30, v2")
    p(f"s_lshl_b32 s{S_T+1}, s{S_RG}, 7")
    p(f"s_add_u32 s{S_T+1}, s{S_T+1}, s{S_T+2}")
    p(f"s_lshl_b32 s{S_O}, s{S_T+1}, 1")
    p(f"s_lshl_b32 s{S_T}, s{S_RG}, 10")
    p(f"s_add_u32 s{S_MB}, s{S_T+2}, s{S_T}")
    p(f"s_sub_u32 s{S_MB}, s{S_MB}, 3")
    p(f"s_lshl_b32 s{S_MB}, s{S_MB}, 2")
    p(f"v_mov_b32 v{ZL+7}, 0")
    p(f"s_cmp_ge_u32 s{S_WAVE}, 4")
    p("s_cbranch_scc1 L_xz")
    p("v_and_b32 v2, 7, v0")
    p(f"v_mul_u32_u24 v3, {BLK}, v1")
    p("v_lshl_add_u32 v3, v2, 4, v3")
    p("v_mul_u32_u24 v4, 0x210, v2")
    p(f"s_mul_i32 s{S_T}, s{S_C}, {24*528}")
    p(f"s_add_u32 s{S_T}, s{S_T}, {WO}")
    p(f"v_add_u32 v4, s{S_T}, v4")
    p("v_lshl_add_u32 v5, v1, 4, v4")
    p("v_cmp_eq_u32 vcc, 1, v1")
    p("v_add_u32 v6, 48, v5")
    p("v_subrev_u32 v7, 48, v5")
    p("v_cndmask_b32 v6, v5, v6, vcc")
    p("v_cmp_eq_u32 vcc, 4, v1")
    p(f"s_cmp_eq_u32 s{S_C}, 3")
    p(f"s_cselect_b32 s{S_T+1}, 4, 0")
    p("v_cndmask_b32 v6, v6, v7, vcc")
    p(f"v_and_b32 v7, s{S_T+1}, v2")
    p("v_lshl_add_u32 v7, v7, 28, v3")
    p("v_and_b32 v8, 31, v0")
    p("v_lshrrev_b32 v9, 5, v0")
    p(f"v_mul_u32_u24 v8, {BLK}, v8")
    p("v_lshl_add_u32 v8, v9, 2, v8")
    p(f"s_mul_i32 s{S_T}, s{S_C}, 384")
    p(f"s_add_u32 s{S_T}, s{S_T}, {WS_W}")
    p(f"s_and_b32 s{S_T+1}, s{S_CP}, {1 if cfg.wrot else 0}")
    p(f"s_mul_i32 s{S_T+2}, s{S_T+1}, 26624")
    for k in range(4):
        p(f"s_xor_b32 s{S_T+3+k}, s{S_T+2}, {26624*(k >> 1)}")
        p(f"s_add_u32 s{S_T+3+k}, s{S_T+3+k}, s{S_T}")
        if k & 1: p(f"s_add_u32 s{S_T+3+k}, s{S_T+3+k}, 13312")
    p(f"s_lshl_b32 s{S_T+2}, s{S_T+1}, 8")
    p(f"s_cmp_eq_u32 s{S_T+1}, 0")
    p("s_cselect_b64 vcc, -1, 0")
    p(f"v_add_u32 v12, s{S_T+2}, v5")
    p(f"s_xor_b32 s{S_T+2}, s{S_T+2}, 0x100")
    p("v_add_u32 v6, 0x180, v6")
    p("v_add_u32 v15, 0x80, v5")
    p(f"v_add_u32 v14, s{S_T+2}, v5")
    p("v_cndmask_b32 v13, v6, v15, vcc")
    p("v_cndmask_b32 v15, v15, v6, vcc")
    p("v_min_u32 v10, 25, v0")
    if cfg.pre:
        check(C_G0, 4, sleep=2)
        flags_load(192)
    check(C_GO, 4, sleep=2)
    stamp(22)
    p(f"s_mov_b32 s{S_T+13}, {WS_W}")
    if cfg.noprep: p("s_branch L_wload")
    if cfg.direct:
        if not cfg.pre:
            flags_load(192)
            p("s_waitcnt lgkmcnt(0)")
        flags_test()
        p("s_cbranch_scc1 L_wload")
        if cfg.stamps: p(f"s_add_u32 s{S_ST+27}, s{S_ST+27}, 100")
    p(f"s_cmp_lg_u32 s{S_C}, 0")
    p("s_cbranch_scc1 L_pw")
    p.label("L_probe")
    p(f"global_load_ubyte v11, v10, s[{S_DBG}:{S_DBG+1}] offset:192 sc1")
    p(f"buffer_load_dword v9, v8, s[{S_WS}:{S_WS+3}], s{S_T+13} offen offset:1536 sc1")
    p("s_waitcnt vmcnt(0)")
    p("v_add_u32 v11, -1, v11")
    p("v_max_u32 v9, v9, v11")
    p("v_cmp_eq_u32 vcc, -1, v9")
    p("s_nop 1")
    p("s_cmp_eq_u64 vcc, 0")
    p("s_cbranch_scc1 L_wload")
    p.label("L_retry")
    if cfg.stamps: p(f"s_add_u32 s{S_ST+27}, s{S_ST+27}, 1")
    p(f"s_sleep {cfg.poll_sleep}")
    p(f"s_sub_u32 s{S_SPIN}, s{S_SPIN}, 1")
    p("s_cbranch_scc0 L_probe")
    p("s_endpgm")
    p.label("L_pw")
    check(C_FLAG, 1, sleep=2)
    p("s_branch L_wl2")
    p.label("L_wload")
    arrive(C_FLAG)
    p.label("L_wl2")
    stamp(2)
    for J in range(4):
        for Fi in range(3):
            r = WT + 4*(3*J + Fi)
            p.vmem(f"buffer_load_dwordx4 v[{r}:{r+3}], v{7 if Fi == 2 else 3}, s[{S_WS}:{S_WS+3}], s{S_T+3+J} offen offset:{128*Fi} sc1", f"w{J}{Fi}")
    first = True
    for J in range(4):
        for Fi in range(3):
            r = WT + 4*(3*J + Fi)
            p.wait(vm=f"w{J}{Fi}")
            p(f"ds_write_b128 v{12+J}, v[{r}:{r+3}] offset:{4224*Fi}")
            if first: p(f"v_max_u32 v9, v{r}, v{r+1}")
            else: p(f"v_max3_u32 v9, v{r}, v{r+1}, v9")
            p(f"v_max3_u32 v9, v{r+2}, v{r+3}, v9")
            first = False
    p("v_cmp_eq_u32 vcc, -1, v9")
    p("s_nop 1")
    p("s_cmp_eq_u64 vcc, 0")
    p("s_cbranch_scc0 L_retry")
    p.label("L_xz")
    check(C_XL, 4, sleep=cfg.idle_sleep)
    def x_read(r):
        p.lds(f"ds_read_u16_d16_hi v{X0+r}, v{XA[pi(r)-r]} offset:{1024*(r >> 2) + 64*(r & 3)}", f"x{r}")
    for r in range(26): x_read(r)
    def z_ops(n):
        ops = []
        for e in range(4):
            t = PT + 2*(e % 4)
            (a, b), (c, d) = S[8*n + 2*e], S[8*n + 2*e + 1]
            ops.append(("v", f"v_mul_f32 v{t}, v{X0+a}, v{X0+b}", (a, b)))
            ops.append(("v", f"v_mul_f32 v{t+1}, v{X0+c}, v{X0+d}", (c, d)))
        cv = [("v", f"v_cvt_pk_bf16_f32 v{Z[n % 2]+e}, v{PT+2*e}, v{PT+2*e+1}", ()) for e in range(4)]
        return ops[0:4] + cv[0:1] + ops[4:6] + cv[1:2] + ops[6:8] + cv[2:4]
    for o in z_ops(0):
        p.wait(lg=tuple(f"x{r}" for r in o[2]))
        p(o[1])
    for d in XA.values(): p(f"v_add_u32 v{d}, 0x1c00, v{d}")
    p.wait0(lg=True)
    p("s_barrier")
    if cfg.ltouch and cfg.lt1 == 8:
        p(f"s_cmp_lt_u32 s{S_WAVE}, 4")
        p("s_cbranch_scc1 L_go")
        touch(160, S_FB, (1 << 46) - 1)
    p.label("L_go")
    p("s_setprio 0")
    if cfg.flip:
        p(f"s_cmp_lt_u32 s{S_WAVE}, 4")
        p("s_cbranch_scc1 L_prio")
        p(f"s_setprio 1")
        p.label("L_prio")
    stamp(3)
    order = []
    for n in range(22):
        order.append(("X", n)); order.append(("T", n))
        if n == 14: order.append(("T", 22))
        if n == 18: order.append(("T", 23))
    fr_of = lambda k, n: (2*n if k == "X" else 2*n + 1) if n < 22 else n + 22
    nn = 46 - cfg.NRES
    assert nn % cfg.R == 0
    nonres = [int((u + 0.5)*46/nn) for u in range(nn)]
    wreg = {}; rr = 0
    for k in range(46):
        if k in nonres: wreg[k] = RING + 4*(nonres.index(k) % cfg.R)
        else: wreg[k] = RES + 4*rr; rr += 1
    def w_read(k):
        p.lds(f"ds_read_b128 v[{wreg[k]}:{wreg[k]+3}], v{WA} offset:{1056*fr_of(*order[k])}", f"w{k}")
    for k in range(46):
        if k not in nonres or nonres.index(k) < cfg.R: w_read(k)
    p.wait0(lg=True)
    stamp(5)
    def mfma(k):
        kind, n = order[k]
        zb = Z[n % 2] if n < 22 else ZL + 4*(n - 22)
        acc = AX if kind == "X" else AT
        cc = f"v[{acc}:{acc+15}]"
        if n == 0: cc = "0" if kind == "X" else f"v[{CI}:{CI+15}]"
        return f"v_mfma_f32_32x32x16_bf16 v[{acc}:{acc+15}], v[{wreg[k]}:{wreg[k]+3}], v[{zb}:{zb+3}], {cc}"
    lin_ops = []
    for u in range(8):
        a = LIN[min(2*u, 12)]; b = LIN[min(2*u + 1, 12)]
        lin_ops.append(("v", f"v_cvt_pk_bf16_f32 v{ZL+u}, v{X0+a}, v{X0+b}", (a, b)))
    def body(emit_mb):
        groups = [z_ops(n) for n in range(1, 22)] + [z_ops(0)]
        groups[10] = lin_ops[:7] + groups[10]
        flat = [(g, o) for g, ops in enumerate(groups) for o in ops]
        lastuse = {}
        for i, (g, o) in enumerate(flat):
            if g < 21:
                for r in o[2]: lastuse[r] = i
        for r in range(26): lastuse.setdefault(r, -1)
        for g, ops in enumerate(groups):
            mf = [kk for kk in range(46) if order[kk] in (("X", g), ("T", g))]
            if g == 14: mf.append(order.index(("T", 22)))
            if g == 18: mf.append(order.index(("T", 23)))
            items = []
            base = sum(len(x) for x in groups[:g])
            if g == 0:
                for r in range(26):
                    if lastuse[r] == -1: items.append(("x", r))
            for i, o in enumerate(ops):
                items.append(o)
                for r in range(26):
                    if lastuse[r] == base + i: items.append(("x", r))
            if g == 21:
                pos = [0, 0]
            else:
                n_it = len(items)
                pos = [2 + (j*n_it)//len(mf) for j in range(len(mf))]
            j = 0
            for i, it in enumerate(items + [None]):
                while j < len(mf) and pos[j] <= i:
                    kk = mf[j]
                    if g == 21 and j == 0: p("s_nop 1")
                    p.wait(lg=f"w{kk}")
                    p(mfma(kk))
                    if kk in nonres:
                        w_read(nonres[(nonres.index(kk) + cfg.R) % nn])
                    j += 1
                if it is None: break
                if it[0] == "x": x_read(it[1])
                else:
                    p.wait(lg=tuple(f"x{r}" for r in it[2]))
                    p(it[1])
            if g == 15: emit_mb()
        for k in range(NR - 1): p(f"v_mov_b32 v{SM[k]}, v{SM[k+1]}")
        for d in XA.values(): p(f"v_add_u32 v{d}, 0x1c00, v{d}")
        s0 = SM[NR-1]
        p(f"v_mul_f32 v{s0}, v{AX}, v{AT}")
        p(f"v_mul_f32 v{PT}, v{AX+1}, v{AT+1}")
        for r in range(2, 13):
            p(f"v_fmac_f32 v{s0 if r % 2 == 0 else PT}, v{AX+r}, v{AT+r}")
        p(f"s_sub_u32 s{S_N}, s{S_N}, 1")
        p(f"v_add_f32 v{s0}, v{s0}, v{PT}")
    def mb_loads():
        p(f"buffer_load_dwordx{NR} v[{MBX}:{MBX+NR-1}], v{VMB}, s[{S_WS}:{S_WS+3}], s{S_MB} offen sc1")
    def emit_mb():
        sk = L("nomb")
        p(f"s_cmp_lg_u32 s{S_N}, 1")
        p(f"s_cbranch_scc1 {sk}")
        mb_loads()
        p.label(sk)
    save = p.L; p.L = []
    body(lambda: None)
    st1 = list(p.lg.q)
    p.L = save
    p(".p2align 3")
    p.label("L_row")
    body(emit_mb)
    assert st1 == p.lg.q
    if cfg.stamps in (1, 2):
        for i in range(3): p(f"s_mov_b32 s{S_ST+23+i}, s{S_ST+24+i}")
        stamp(26)
    if cfg.flip:
        p(f"s_cmp_lg_u32 s{S_N}, {4 - cfg.flip}")
        p("s_cbranch_scc1 L_noflip")
        p("s_setprio 0")
        p.label("L_noflip")
    p(f"s_cmp_lg_u32 s{S_N}, 0")
    p("s_cbranch_scc1 L_row")
    p.label("L_mbw")
    p("s_waitcnt vmcnt(0)")
    if NR == 4:
        p(f"v_max3_u32 v1, v{MBX}, v{MBX+1}, v{MBX+2}")
        p(f"v_max_u32 v1, v1, v{MBX+3}")
    else: p(f"v_max_u32 v1, v{MBX}, v{MBX+1}")
    p("v_cmp_eq_u32 vcc, -1, v1")
    p("s_nop 1")
    p("s_cmp_eq_u64 vcc, 0")
    p("s_cbranch_scc1 L_mbok")
    p("s_sleep 1")
    mb_loads()
    p(f"s_sub_u32 s{S_SPIN}, s{S_SPIN}, 1")
    p("s_cbranch_scc0 L_mbw")
    p("s_endpgm")
    p.label("L_mbok")
    for k in range(NR): p(f"v_add_f32 v{SM[k]}, v{SM[k]}, v{MBX+k}")
    for ctl in ("quad_perm:[1,0,3,2] row_mask:0xf", "quad_perm:[2,3,0,1] row_mask:0xf", "row_half_mirror row_mask:0xf",
                "row_mirror row_mask:0xf", "row_bcast:15 row_mask:0xa", "row_bcast:31 row_mask:0xc"):
        if NR == 2: p("s_nop 0")
        for k in range(NR): p(f"v_add_f32_dpp v{SM[k]}, v{SM[k]}, v{SM[k]} {ctl} bank_mask:0xf")
    for k in range(NR): p(f"v_add_f32 v{SM[k]}, v{SM[k]}, v{VBO}")
    p(f"v_cvt_pk_bf16_f32 v2, v{SM[0]}, v{SM[1]}")
    p(f"v_cvt_pk_bf16_f32 v3, v{SM[2]}, v{SM[3]}")
    p(f"v_mov_b32 v1, s{S_O}")
    p("s_mov_b32 exec_lo, 0")
    p("s_mov_b32 exec_hi, 0x80000000")
    if cfg.bal:
        p(f"s_cmp_eq_u32 s{S_NR}, 4")
        p("s_cbranch_scc1 L_st4")
        p(f"global_store_short_d16_hi v1, v3, s[{S_OUT}:{S_OUT+1}]")
        p(f"s_cmp_eq_u32 s{S_NR}, 1")
        p("s_cbranch_scc1 L_std")
        p(f"global_store_short v1, v3, s[{S_OUT}:{S_OUT+1}] offset:-2")
        p(f"global_store_short_d16_hi v1, v2, s[{S_OUT}:{S_OUT+1}] offset:-4")
        p("s_branch L_std")
        p.label("L_st4")
    p(f"global_store_dwordx2 v1, v[2:3], s[{S_OUT}:{S_OUT+1}] offset:-6")
    p.label("L_std")
    stamps_out()
    p.label("L_end")
    p("s_endpgm")

    p.vm.q = dnn_vm; p.lg.clear()
    p(".p2align 6")
    p.label("L_dnn")
    ACC = lambda t, q: 8*t + 4*q
    BF = lambda t: 56 + 4*t
    AR = lambda f, q: 84 + 8*(f % 2) + 4*q
    IDX = lambda f: 100 + f
    VO = lambda u: 128 + u
    V_B, V_A, V_CH, V_LANE, V_G8 = [130, 131, 132], [133, 134, 135], 136, 137, 138
    RAW = 140; RAW2 = 200
    S_SB, S_M0, S_AM = S_T+2, S_T+3, S_T+4
    if cfg.probe:
        p("s_cmp_ge_u32 s2, 8")
        p("s_cbranch_scc1 L_pr1")
        p("s_lshl_b32 s90, s2, 2")
        p("v_mov_b32 v1, s90")
        p("v_mov_b32 v2, s96")
        p(f"global_store_dword v1, v2, s[{S_DBG}:{S_DBG+1}] offset:8 sc1")
        p("s_waitcnt vmcnt(0)")
        p.label("L_pr1")
    srd(S_B1, 10, 1664)
    srd(S_TAB, 2, 6400000)
    srd(S_W2, 12, 1664)
    srd(S_WS, None, WS_END)
    if cfg.pxa >= 0:
        p("s_getreg_b32 s91, hwreg(HW_REG_XCC_ID)")
        p("s_and_b32 s91, s91, 15")
        p(f"s_cmp_lg_u32 s2, {cfg.pxa}")
        p("s_cbranch_scc1 L_pxa")
        p("v_mov_b32 v1, 0")
        p("v_mov_b32 v2, s91")
        p(f"global_store_dword v1, v2, s[{S_DBG}:{S_DBG+1}] offset:8 sc1")
        p("s_waitcnt vmcnt(0)")
        p.label("L_pxa")
    if cfg.plat:
        sr_, off = {1: (S_TAB, 3000320), 2: (S_W1, 1300096), 3: (S_WS, 4096), 4: (S_TAB, 5000320)}[cfg.plat]
        p("s_waitcnt vmcnt(0)")
        p(f"v_mov_b32 v1, {off}")
        p(f"buffer_load_dword v2, v1, s[{sr_}:{sr_+3}], 0 offen offset:2048")
        p("s_waitcnt vmcnt(0)")
        p("s_lshl_b32 s90, s2, 7")
        p("s_memrealtime s[94:95]")
        p("s_waitcnt lgkmcnt(0)")
        p(f"buffer_load_dword v2, v1, s[{sr_}:{sr_+3}], s90 offen offset:4)".replace(")", ""))
        p("s_waitcnt vmcnt(0)")
        p("s_memrealtime s[92:93]")
        p("s_waitcnt lgkmcnt(0)")
        p("s_sub_u32 s92, s92, s94")
        p("s_mul_i32 s92, s92, 10")
        p("s_add_u32 s92, s92, s96")
    stamp(10)
    p(f"s_mov_b32 s{S_SPIN}, 0x40000")
    p(f"s_mul_i32 s{S_COL}, s{S_CP}, 416")
    S_M1, S_WR = S_T+5, S_T+6
    p(f"s_mov_b32 s{S_SB}, s{S_COL}")
    p(f"s_and_b32 s{S_WR}, s{S_WAVE}, 3")
    p(f"s_lshl_b32 s{S_T}, s{S_WAVE}, 1")
    p(f"s_sub_u32 s{S_T}, s{S_T}, 4")
    p(f"s_add_u32 s{S_T+1}, s{S_T}, 1")
    p(f"s_cmp_lt_u32 s{S_WAVE}, 4")
    p(f"s_cselect_b32 s{S_M0}, s{S_WAVE}, s{S_T}")
    p(f"s_cselect_b32 s{S_M1}, 12, s{S_T+1}")
    p(f"s_lshl_b32 s{S_M0}, s{S_M0}, 10")
    p(f"s_lshl_b32 s{S_M1}, s{S_M1}, 10")
    p(f"s_lshl_b32 s{S_AM}, s{S_WAVE}, 10")
    p(f"s_add_u32 s{S_AM}, s{S_AM}, {BSZ}")
    p(f"s_lshr_b32 s{S_T}, s{S_WAVE}, 2")
    p(f"s_mul_i32 s{S_T}, s{S_T}, 224")
    p(f"s_add_u32 s{S_COL}, s{S_COL}, s{S_T}")
    p(f"s_movk_i32 s{S_T+1}, 1248")
    p(f"s_movk_i32 s{S_T+7}, 6656")
    for u in range(2):
        p(f"v_add_u32 v3, s{(S_M0, S_M1)[u]}, v{V_L}")
        p("v_lshlrev_b32 v4, 4, v3")
        p("v_mul_hi_u32_u24 v4, 0x9d89e, v4")
        p("v_bfe_u32 v5, v4, 2, 1")
        p("v_bfe_i32 v6, v4, 3, 1")
        p("v_add_u32 v5, v5, v6")
        p(f"v_mad_i32_i24 v5, v5, s{S_T+7}, v3")
        p(f"v_mad_u32_u24 v{VO(u)}, v4, s{S_T+1}, v5")
    p("v_lshrrev_b32 v1, 4, v0")
    p(f"s_add_u32 s{S_T+1}, s{S_T}, {IDXO}")
    p(f"v_lshl_add_u32 v{V_G8}, v1, 3, s{S_T+1}")
    p("v_lshrrev_b32 v2, 2, v0")
    p(f"v_mul_u32_u24 v2, 104, v2")
    p(f"s_add_u32 s{S_W}, s{S_W}, {IDXO}")
    p(f"v_add_u32 v139, s{S_W}, v2")
    p("v_lshrrev_b32 v2, 5, v0")
    p("v_mul_u32_u24 v3, 3, v2")
    p("v_xor_b32 v3, v3, v0")
    p("v_and_b32 v3, 3, v3")
    p(f"v_lshlrev_b32 v{V_CH}, 4, v3")
    p("v_bfe_u32 v3, v0, 3, 1")
    p("v_mul_u32_u24 v3, 3, v3")
    p("v_xor_b32 v3, v3, v1")
    p("v_and_b32 v4, 15, v0")
    p("v_lshlrev_b32 v4, 6, v4")
    p("v_lshl_add_u32 v3, v3, 4, v4")
    p(f"s_and_b32 s{S_T+1}, s{S_WAVE}, 3")
    p(f"s_lshl_b32 s{S_T+1}, s{S_T+1}, 11")
    p(f"s_add_u32 s{S_T+1}, s{S_T+1}, {BSZ}")
    p(f"v_add_u32 v{V_A[0]}, s{S_T+1}, v3")
    p("v_bfe_u32 v3, v0, 2, 3")
    p("v_lshl_add_u32 v2, v2, 4, v3")
    p("v_mul_u32_u24 v2, 0x1a0, v2")
    p("v_and_b32 v3, 3, v0")
    p("v_lshl_add_u32 v2, v3, 3, v2")
    p(f"v_add_u32 v{V_B[0]}, s{S_T}, v2")
    for k in (1, 2):
        p(f"v_add_u32 v{V_A[k]}, {3*k*SLOT}, v{V_A[0]}")
        p(f"v_add_u32 v{V_B[k]}, {3*k*SLOT}, v{V_B[0]}")
    p(f"v_mov_b32 v{V_LANE}, v0")
    p.wait(vm="idx")
    stamp(1)
    if cfg.dbench:
        p("s_mov_b32 s3, 0")
        p.label("L_again")
    for m in range(6):
        p.lds(f"ds_read2_b64 v[{100+4*m}:{103+4*m}], v139 offset0:{2*m} offset1:{2*m+1}", f"ix{m}")
    p.lds("ds_read_b64 v[124:125], v139 offset:96", "ix6")
    def a_dma(f):
        p.wait(lg=f"ix{f >> 2}")
        p(f"s_add_u32 m0, s{S_AM}, {(f % RB)*SLOT}")
        p(f"v_lshl_add_u32 v{IDX(f)}, v{IDX(f)}, 6, v{V_CH}")
        p.vmem(f"buffer_load_dwordx4 v{IDX(f)}, s[{S_TAB}:{S_TAB+3}], 0 offen{' nt' if f < cfg.nta else ''} lds", f"F{f}")
    def b_dma(f, u, T):
        if u == 1:
            if f: p(f"s_add_u32 s{S_SB}, s{S_SB}, 53248")
            sk = L("np")
            if T != 6:
                if T == 0:
                    p(f"s_cmp_ge_u32 s{S_WAVE}, 4")
                    p(f"s_cselect_b32 s{S_X}, {f & 3}, s{S_WR}")
                    p(f"s_cmp_lg_u32 s{S_X}, {f & 3}")
                else: p(f"s_cmp_lg_u32 s{S_WR}, {f & 3}")
                p(f"s_cbranch_scc1 {sk}")
            p(f"s_add_u32 m0, s{S_M1}, {(f % RB)*SLOT}")
            p("s_nop 0")
            p(f"buffer_load_dwordx4 v{VO(1)}, s[{S_W1}:{S_W1+3}], s{S_SB} offen lds")
            if T == 6: p.vm.issue(f"F{f}")
            else: p.label(sk)
        else:
            p(f"s_add_u32 m0, s{S_M0}, {(f % RB)*SLOT}")
            p("s_nop 0")
            p.vmem(f"buffer_load_dwordx4 v{VO(0)}, s[{S_W1}:{S_W1+3}], s{S_SB} offen lds", f"F{f}")
    def fill(f, T): a_dma(f); b_dma(f, 1, T); b_dma(f, 0, T)
    BWO = IDXO
    p(f"s_cmp_ge_u32 s{S_WAVE}, {0 if cfg.dbench else 2}")
    p("s_cbranch_scc1 L_nobw")
    p(f"s_mul_i32 s{S_X}, s{S_CP}, 416")
    p(f"s_cmp_eq_u32 s{S_WAVE}, 0")
    p(f"s_cselect_b64 s[{S_W2}:{S_W2+1}], s[{S_B1}:{S_B1+1}], s[{S_W2}:{S_W2+1}]")
    p(f"s_mov_b32 m0, s{S_W}")
    p("s_mov_b64 exec, 0xfffffff")
    p("s_waitcnt lgkmcnt(0)")
    p(f"buffer_load_dwordx4 v{V_L}, s[{S_W2}:{S_W2+3}], s{S_X} offen lds")
    p("s_mov_b64 exec, -1")
    p.label("L_nobw")
    if cfg.sw < 26:
        p(f"v_lshlrev_b32 v{V_C}, 2, v{V_LANE}")
        p(f"v_add_u32 v{V_C}, {IDXO + 2*1664}, v{V_C}")
        p(f"v_mov_b32 v{V_ONE}, 1")
        p(f"s_cmp_lg_u32 s{S_WAVE}, 2")
        p("s_cbranch_scc1 L_noz")
        p(f"v_mov_b32 v{V_POLL}, 0")
        p("s_waitcnt lgkmcnt(0)")
        p(f"ds_write_b32 v{V_C}, v{V_POLL}")
        p("s_waitcnt lgkmcnt(0)")
        p.label("L_noz")
    def lo(f): return (f % RB)//3, ((f % RB) % 3)*SLOT
    def b_read1(f, t, r2):
        k, off = lo(f)
        p.lds(f"ds_read_b64_tr_b16 v[{BF(t)+2*r2}:{BF(t)+2*r2+1}], v{V_B[k]} offset:{off + 32*t + 3328*r2}", f"b{f}_{t}")
    def a_read(f):
        k, off = lo(f)
        for q in range(2):
            p.lds(f"ds_read_b128 v[{AR(f, q)}:{AR(f, q)+3}], v{V_A[k]} offset:{off + 1024*q}", f"a{f}")
    p(f"s_cmp_ge_u32 s{S_WAVE}, 4")
    p("s_cbranch_scc1 L_dnn6")
    W2R = lambda t, r: 170 + 4*t + r
    def w2_unpack():
        return [x for t in range(7) for h in range(2) for x in
                (f"v_lshlrev_b32 v{W2R(t,2*h)}, 16, v{RAW2+2*t+h}", f"v_and_b32 v{W2R(t,2*h+1)}, 0xffff0000, v{RAW2+2*t+h}")]
    vm0, lg0 = list(p.vm.q), list(p.lg.q)
    def dnn_main(T):
        p.vm.q, p.lg.q = list(vm0), list(lg0)
        fill(0, T)
        fill(1, T)
        p.wait(vm="F0")
        p("s_barrier")
        stamp(12)
        for t in range(T):
            p.lds(f"ds_read_b64 v[{RAW+2*t}:{RAW+2*t+1}], v{V_G8} offset:{32*t}", "bias")
        a_read(0)
        for t in range(T):
            for r2 in range(2): b_read1(0, t, r2)
        p.wait(lg="bias")
        for t in range(T):
            for h in range(2):
                p(f"v_lshlrev_b32 v{ACC(t,0)+2*h}, 16, v{RAW+2*t+h}")
                p(f"v_and_b32 v{ACC(t,0)+2*h+1}, 0xffff0000, v{RAW+2*t+h}")
        for f in range(2, cfg.look): fill(f, T)
        p.wait(vm=tuple(f"F{k}" for k in range(cfg.barp + 1)))
        p("s_barrier")
        if T == 6 and cfg.prio_hi: p(f"s_setprio {cfg.prio_hi}")
        stamp(2)
        nxt = cfg.look
        w2ops = w2_unpack()
        free = -1; landed = cfg.barp
        for f in range(26):
            todo = []
            soft = f > cfg.sw and f <= 23
            top = f < cfg.early or (cfg.dpos == 4 and T == 6) or (cfg.dpos == 1 and T == 7)
            lim = (f - 1 if soft and not top else free) + RB
            nfill = 2 if (cfg.cmask >> f & 1 if cfg.cmask else cfg.catch0 <= f < cfg.catch0 + cfg.catch) else 1
            if f >= cfg.b2: nfill = (2 if (f % 2 == 0) == ((T == 6) == (cfg.dpos == 4)) else 0)
            for _ in range(nfill):
                if nxt < 26 and nxt <= lim:
                    todo += [(a_dma, (nxt,)), (b_dma, (nxt, 1, T)), (b_dma, (nxt, 0, T))]; nxt += 1
            if cfg.nodma and f >= 4:
                keep = []
                for fn, ar in todo:
                    if (fn is a_dma and cfg.nodma & 1) or (fn is b_dma and cfg.nodma & 2): continue
                    keep.append((fn, ar))
                todo[:] = keep
            n_it = len(todo)
            if f < cfg.early: at = [-1]*n_it
            elif cfg.dpos == 0: at = list(range(n_it))
            elif cfg.dpos == 1: at = [-1]*n_it if T == 7 else [T-1]*n_it
            elif cfg.dpos == 2: at = [(2*i + (T == 6)) if n_it <= 3 else i for i in range(n_it)]
            elif cfg.dpos == 3: at = [0]*n_it if T == 7 else [T-1]*n_it
            elif cfg.dpos == 4: at = [T-1]*n_it if T == 7 else [-1]*n_it
            elif cfg.dpos == 5: at = [i//(2 if n_it > 3 else 1) for i in range(n_it)] if T == 7 else [3 + i//(2 if n_it > 3 else 1) for i in range(n_it)]
            if soft and not top: at = [min(max(a, cfg.chk + i*(cfg.dpos in (0, 2))), T-1) for i, a in enumerate(at)]
            assert f == 25 or f + 1 <= landed
            def drain(t):
                while todo and at[0] <= t:
                    at.pop(0); fn, ar = todo.pop(0); fn(*ar)
            drain(-1)
            for t in range(T):
                p.wait(lg=(f"b{f}_{t}", f"a{f}"))
                b = f"v[{BF(t)}:{BF(t)+3}]"
                a0, a1 = ACC(t, 0), ACC(t, 1)
                c1 = a0 if f == 0 else a1
                p(f"v_mfma_f32_16x16x32_bf16 v[{a1}:{a1+3}], {b}, v[{AR(f,1)}:{AR(f,1)+3}], v[{c1}:{c1+3}]")
                if t and f < 25: b_read1(f+1, t-1, 1)
                elif t == 0 and f: b_read1(f, T-1, 1)
                p(f"v_mfma_f32_16x16x32_bf16 v[{a0}:{a0+3}], {b}, v[{AR(f,0)}:{AR(f,0)+3}], v[{a0}:{a0+3}]")
                if f < 25: b_read1(f+1, t, 0)
                if t == cfg.arp and f < 25: a_read(f + 1)
                if soft and t == cfg.chk - 2: poll_issue(4*(f-1))
                if soft and t == cfg.chk:
                    check(4*(f-1), 8, issued=True)
                    free = f - 1; landed = f + 2
                drain(t)
                if f == 21:
                    for tt in ([t] if t < T - 1 else range(t, 7)):
                        p.lds(f"ds_read_b64 v[{RAW2+2*tt}:{RAW2+2*tt+1}], v{V_G8} offset:{1664 + 32*tt}", "w2")
                if cfg.w2early and f in (23, 24):
                    if f == 23 and t == 0: p.wait(lg="w2")
                    for _ in range(3):
                        if w2ops: p(w2ops.pop(0))
            assert not todo
            if f >= cfg.sw:
                if f <= 22:
                    assert nxt > f + 3
                    p.wait(vm=tuple(f"F{k}" for k in range(f + 4)))
                    arrive(4*f)
            elif f <= cfg.lb and (f + 1) % cfg.barp == 0 and (f < cfg.b2 or f % 2):
                last = min(f + 1 + cfg.barp + (f + 1 == cfg.sw or f + 1 >= cfg.b2), 25) if f < cfg.lb else 25
                assert nxt > last
                p.wait(vm=tuple(f"F{k}" for k in range(last + 1)))
                if not cfg.nobar: p("s_barrier")
                free = f; landed = last
            if f == cfg.lb and cfg.tailprio is not None and T == cfg.tailprio: p("s_setprio 1")
            if f % 4 == 0 and (not cfg.dbench or f in (8, 20)): stamp(14 + f//4)
        assert nxt == 26 and not (cfg.w2early and w2ops)
    dnn_main(7)
    p("s_branch L_gelu")
    p(".p2align 6")
    p.label("L_dnn6")
    dnn_main(6)
    p.label("L_gelu")
    if cfg.dbench:
        p("s_barrier")
        p(f"s_mul_i32 s{S_SB}, s{S_CP}, 416")
        p("s_add_u32 s3, s3, 1")
        p("s_cmp_lt_u32 s3, 2")
        p("s_cbranch_scc1 L_again")
    stamp(3)
    flags_load(128)
    if not cfg.w2early:
        p.wait0(vm=True)
        for x in w2_unpack(): p(x)
    k0 = -2.0*math.sqrt(2.0/math.pi)*math.log2(math.e)
    T1, T2, SUM, VC = 56, 64, 92, 72
    P = lambda a: f"v[{a}:{a+1}]"
    for r, c in enumerate((k0*0.044715, k0)):
        for h in range(2): p(f"v_mov_b32 v{VC+2*r+h}, {f2h(c)}")
    for r in range(4): p(f"v_mov_b32 v{SUM+r}, 0")
    for t in range(7):
        if t == 6:
            p(f"s_cmp_ge_u32 s{S_WAVE}, 4")
            p("s_cbranch_scc1 L_gelu6")
        x = ACC(t, 0)
        if cfg.pk:
            for r in range(0, 8, 2): p(f"v_pk_mul_f32 {P(T1+r)}, {P(x+r)}, {P(x+r)}")
            for r in range(0, 8, 2): p(f"v_pk_fma_f32 {P(T1+r)}, {P(T1+r)}, {P(VC)}, {P(VC+2)}")
            for r in range(0, 8, 2): p(f"v_pk_mul_f32 {P(T1+r)}, {P(T1+r)}, {P(x+r)}")
            for r in range(8): p(f"v_exp_f32 v{T1+r}, v{T1+r}")
            for r in range(0, 8, 2): p(f"v_pk_mul_f32 {P(T2+r)}, {P(x+r)}, {P(W2R(t, r & 3))}")
            for r in range(0, 8, 2): p(f"v_pk_add_f32 {P(T1+r)}, {P(T1+r)}, 1.0 op_sel_hi:[1,0]")
            for r in range(8): p(f"v_rcp_f32 v{T1+r}, v{T1+r}")
            for r in (0, 4, 2, 6): p(f"v_pk_fma_f32 {P(SUM+2*(r >> 2))}, {P(T1+r)}, {P(T2+r)}, {P(SUM+2*(r >> 2))}")
        else:
            for r in range(8): p(f"v_mul_f32 v{T1+r}, v{x+r}, v{x+r}")
            for r in range(8): p(f"v_fma_f32 v{T1+r}, v{T1+r}, v{VC}, v{VC+2}")
            for r in range(8): p(f"v_mul_f32 v{T1+r}, v{T1+r}, v{x+r}")
            for r in range(8): p(f"v_exp_f32 v{T1+r}, v{T1+r}")
            for r in range(8): p(f"v_mul_f32 v{T2+r}, v{x+r}, v{W2R(t, r & 3)}")
            for r in range(8): p(f"v_add_f32 v{T1+r}, 1.0, v{T1+r}")
            for r in range(8): p(f"v_rcp_f32 v{T1+r}, v{T1+r}")
            for r in range(8): p(f"v_fmac_f32 v{SUM+2*(r >> 2)+(r & 1)}, v{T1+r}, v{T2+r}")
    p.label("L_gelu6")
    p(f"v_add_f32 v{SUM}, v{SUM}, v{SUM+1}")
    p(f"v_add_f32 v{SUM+2}, v{SUM+2}, v{SUM+3}")
    p(f"v_and_b32 v84, 15, v{V_LANE}")
    p(f"v_lshrrev_b32 v85, 5, v{V_LANE}")
    p(f"v_permlane32_swap_b32 v{SUM}, v{SUM+2}")
    p("v_lshl_add_u32 v84, v85, 4, v84")
    p(f"v_add_f32 v{SUM}, v{SUM}, v{SUM+2}")
    p(f"v_bfe_u32 v85, v{V_LANE}, 4, 1")
    p(f"v_mov_b32 v{SUM+1}, v{SUM}")
    p("v_lshlrev_b32 v84, 2, v84")
    p("v_lshl_add_u32 v84, v85, 30, v84")
    p(f"v_permlane16_swap_b32 v{SUM}, v{SUM+1}")
    p(f"s_lshl2_add_u32 s{S_T}, s{S_RG}, s{S_CP}")
    p(f"v_add_f32 v{SUM}, v{SUM}, v{SUM+1}")
    p(f"s_lshl3_add_u32 s{S_T}, s{S_T}, s{S_WAVE}")
    p(f"s_lshl_b32 s{S_T}, s{S_T}, 7")
    p(f"v_min_u32 v{SUM}, -2, v{SUM}")
    p("s_waitcnt lgkmcnt(0)")
    if cfg.noprep or cfg.dbench: p("s_branch L_pub")
    flags_test()
    p("s_cbranch_scc1 L_pub")
    p(f"v_min_u32 v85, 25, v{V_LANE}")
    p.label("L_dflag")
    p(f"global_load_ubyte v86, v85, s[{S_DBG}:{S_DBG+1}] offset:128 sc1")
    p("s_waitcnt vmcnt(0)")
    p("v_cmp_eq_u32 vcc, 0, v86")
    p("s_nop 1")
    p("s_cmp_eq_u64 vcc, 0")
    p("s_cbranch_scc1 L_pub")
    p("s_sleep 4")
    p(f"s_sub_u32 s{S_SPIN}, s{S_SPIN}, 1")
    p("s_cbranch_scc0 L_dflag")
    p("s_endpgm")
    p.label("L_pub")
    p(f"buffer_store_dword v{SUM}, v84, s[{S_WS}:{S_WS+3}], s{S_T} offen sc1")
    stamp(4)
    if cfg.probe:
        p("s_cmp_lg_u32 s2, 0")
        p("s_cbranch_scc1 L_pr2")
        p(f"v_lshlrev_b32 v1, 2, v{V_LANE}")
        p(f"global_load_dword v2, v1, s[{S_DBG}:{S_DBG+1}] offset:8 sc1")
        p("s_waitcnt vmcnt(0)")
        for i in range(8): p(f"v_readlane_b32 s{80+i}, v2, {i}")
        p("s_mov_b32 s90, s80"); p("s_mov_b32 s91, s80")
        for i in range(1, 8):
            p(f"s_min_u32 s90, s90, s{80+i}"); p(f"s_max_u32 s91, s91, s{80+i}")
        if cfg.probe == 1: p("s_sub_u32 s90, s91, s90")
        else: p(f"s_sub_u32 s90, s{80+cfg.probe-2}, s90")
        p("s_mul_i32 s90, s90, 20")
        p("s_min_u32 s90, s90, 20000")
        p("s_memrealtime s[92:93]"); p("s_waitcnt lgkmcnt(0)")
        p("s_add_u32 s92, s92, s90")
        p.label("L_pr")
        p("s_memrealtime s[94:95]"); p("s_waitcnt lgkmcnt(0)")
        p("s_cmp_lt_u32 s94, s92")
        p("s_cbranch_scc1 L_pr")
        p.label("L_pr2")
    stamps_out()
    p("s_endpgm")

    p(".p2align 6")
    p(".type gather_table,@object")
    p.label("gather_table")
    zt = P_Z - PS
    for role in range(2):
        for lane in range(64):
            s, half = lane >> 1, lane & 1
            ad = []
            for e in range(8):
                pr = slot_pair(s, half, e) if s < (24 if role == 0 else 22) else None
                at = (lambda j, k: P_D1 - PS + k*144 + j*4) if role == 0 else (lambda j, k: P_W1 - PS + (j*26 + k)*2)
                if pr is None: ad += [zt, zt]
                elif pr[1] is None: ad += [at(pr[0], 26), zt]
                elif pr[0] == pr[1] or norm(pr) == (24, 25): ad += [at(*pr), zt]
                else: ad += [at(pr[0], pr[1]), at(pr[1], pr[0])]
            p(".short " + ", ".join(str(a) for a in ad))
    p(".size gather_table, 4096")
    return p

def header():
    return """; xDeepFM (CIN + DNN) forward, one launch, 256 workgroups (S1).
; Kernarg: idx, table, ws_cin, w_cin_out, w_dnn1, b_dnn1, w_dnn2, b_out, out, debug, ws
; @launch grid=(256,1,1) block=(512,1,1) lds=%d
.amdgcn_target "amdgcn-amd-amdhsa--gfx950"
.text
""" % LDS_SIZE
def footer():
    nv = 256
    return f""".section .rodata,"a"
.p2align 6
.amdhsa_kernel {NAME}
  .amdhsa_next_free_vgpr {nv}
  .amdhsa_next_free_sgpr 102
  .amdhsa_accum_offset {nv}
  .amdhsa_group_segment_fixed_size 0
  .amdhsa_kernarg_size 88
  .amdhsa_user_sgpr_count 2
  .amdhsa_user_sgpr_kernarg_segment_ptr 1
  .amdhsa_system_sgpr_workgroup_id_x 1
  .amdhsa_float_denorm_mode_32 3
.end_amdhsa_kernel
"""
if __name__ == "__main__":
    out = sys.argv[1]
    for a in sys.argv[2:]:
        k, v = a.split("=")
        setattr(cfg, k, type(getattr(cfg, k))(int(v)))
    open(out, "w").write(header() + build().text() + footer())
```

```python
import sys, struct, math
from asmlib import *
from slots import *

NAME = "standalone__deep_cross_xdeepfm__recsys_kernel"
class Cfg:
    stamps = 0
    NRES = 31
    R = 3
    prio_prep = 3
    prio_hi = 0
    poll_sleep = 2
    idle_sleep = 1
    gon = 4
    bal = 0
    lt0 = 2
    lt1 = 5
    early = 4
    look = 3
    cmask = 0
    catch0 = 4
    catch = 4
    etouch = 0
    dtouch = 1
    mtouch = 1
    ttouch = 0
    xwin = 4
    pfcode = 1
    flip = 2
    w2early = 1
    dpos = 4
    ltouch = 0
    pk = 1
    ctouch = 1
    wrot = 1
    direct = 1
    w3last = 1
    ntx = 0
    nta = 0
    nti = 0
    pre = 0
    pst = -1
    pcyc = 0
    pxa = -1
    plat = 0
    pwg = 0
    pwave = 0
    probe = 0
    dbench = 0
    nodma = 0
    nobar = 0
    lb = 21
    tailprio = 0
    b2 = 26
    sw = 26
    chk = 3
    barp = 1
    arp = 1
    noprep = 0
    clrpos = 1
    xstart = 0
    xbar = 4
    pdelay = 1
    hold = 0
cfg = Cfg()

LDS_SIZE = 163840
XO = 0
WO = 8*7168
PS = WO + 96*528
P_W3 = PS; P_M3T = PS + 36864; P_D1 = PS + 38912; P_W1 = PS + 43520; P_Z = PS + 45568; P_DUM = PS + 45824
CO = LDS_SIZE - 512
IX2 = PS + 46080
assert P_DUM + 256 <= CO
C_PA, C_PB, C_XL, C_FLAG, C_GO, C_G0, C_PI = 0, 4, 8, 12, 16, 20, 24
RB = 7
BSZ = 13312
SLOT = BSZ + 8192
IDXO = RB*SLOT
assert IDXO + 8*1664 == LDS_SIZE
MBOX = 0; WS_W = 131072; BLK = 1664; WS_END = WS_W + 26*BLK; WS_STAMP = 1 << 20
S_IDX, S_TAB, S_W1, S_WCIN, S_WCO, S_B1, S_W2, S_WS = 4, 8, 12, 16, 20, 24, 28, 32
S_OUT, S_DBG, S_BOUT = 36, 38, 40
S_WAVE, S_RG, S_CP, S_FB, S_COL, S_W = 42, 43, 44, 45, 46, 47
S_PC, S_SPIN, S_X = 48, 50, 51
KA = 52
S_T = 52
S_ST = 70
V_C, V_ONE, V_POLL, V_L = 162, 163, 164, 165
FRM = "0x20000"

def f2h(x): return "0x%08x" % struct.unpack("<I", struct.pack("<f", x))[0]

def build():
    p = Prog()
    lab = [0]
    def L(n):
        lab[0] += 1
        return f"L_{n}_{lab[0]}"
    def stamp(i):
        if cfg.pst == i:
            p("s_memtime s[92:93]" if cfg.pcyc else "s_memrealtime s[92:93]")
            p.wait0(lg=True)
        if cfg.stamps and (cfg.stamps != 3 or i == 8):
            p(f"s_memrealtime s[68:69]" if cfg.stamps != 2 or i == 8 else "s_memtime s[68:69]")
            p.wait0(lg=True)
            if cfg.stamps != 2 or i == 8: p(f"s_mov_b32 s{S_ST+i}, s68")
            else:
                p("s_sub_u32 s68, s68, s100")
                p("s_lshr_b32 s68, s68, 4")
                p(f"s_add_u32 s{S_ST+i}, s68, s{S_ST}")
    def stamps_out():
        if cfg.pst >= 0:
            stamp(8)
            sk = L("npr"); lp = L("pr")
            p(f"s_cmp_lg_u32 s2, {cfg.pwg}")
            p(f"s_cbranch_scc1 {sk}")
            p(f"s_cmp_lg_u32 s{S_WAVE}, {cfg.pwave}")
            p(f"s_cbranch_scc1 {sk}")
            if cfg.pst == 0: p("s_mov_b32 s92, s96")
            if cfg.pst == 28:
                p(f"s_cmp_lg_u32 s{S_ST+27}, 0")
                p("s_cselect_b32 s92, 125, 0")
                p(f"s_cmp_ge_u32 s{S_ST+27}, 100")
                p("s_cselect_b32 s92, 250, s92")
                p(f"s_cmp_ge_u32 s{S_ST+27}, 101")
                p("s_cselect_b32 s92, 375, s92")
                p("s_add_u32 s92, s92, s96")
            if cfg.pxa >= 0:
                p("s_mov_b64 exec, -1")
                p("v_mov_b32 v1, 0")
                p(f"global_load_dword v2, v1, s[{S_DBG}:{S_DBG+1}] offset:8 sc1")
                p("s_waitcnt vmcnt(0)")
                p("v_readfirstlane_b32 s90, v2")
                p("s_cmp_lg_u32 s90, s91")
                p("s_cselect_b32 s90, 250, 0")
                p("s_add_u32 s92, s92, s90")
            if cfg.pcyc:
                p("s_sub_u32 s90, s92, s98")
                p("s_lshr_b32 s90, s90, 3")
            else:
                p("s_sub_u32 s90, s92, s96")
                p("s_mul_i32 s90, s90, 4")
            p("s_mov_b64 exec, 1")
            p("v_mov_b32 v1, 0")
            p("v_mov_b32 v2, s90")
            p(f"global_store_dword v1, v2, s[{S_DBG}:{S_DBG+1}] offset:4")
            p("s_add_u32 s90, s90, 2000")
            p("s_min_u32 s90, s90, 20000")
            p("s_add_u32 s90, s90, s96")
            p.label(lp)
            p("s_sleep 1")
            p("s_memrealtime s[94:95]"); p("s_waitcnt lgkmcnt(0)")
            p("s_cmp_lt_u32 s94, s90")
            p(f"s_cbranch_scc1 {lp}")
            p.label(sk)
        if not cfg.stamps: return
        stamp(8)
        p("s_mov_b64 exec, 1")
        p(f"s_lshl4_add_u32 s{S_T}, s2, s{S_WAVE}")
        p(f"s_lshl_b32 s{S_T}, s{S_T}, 7")
        p(f"s_add_u32 s{S_T}, s{S_T}, {WS_STAMP}")
        p(f"v_mov_b32 v1, s{S_T}")
        p("s_memtime s[68:69]")
        p("s_waitcnt lgkmcnt(0)")
        p(f"s_sub_u32 s{S_ST+29}, s68, s100")
        for i in range(30):
            p(f"v_mov_b32 v2, s{S_ST+i}")
            p(f"global_store_dword v1, v2, s[{S_WS}:{S_WS+1}] offset:{4*i}")
    def arrive(*offs):
        p("s_mov_b64 exec, 1")
        for off in offs: p.lds(f"ds_add_u32 v{V_C}, v{V_ONE} offset:{off}", "arr")
        p("s_mov_b64 exec, -1")
    def poll_issue(off):
        p.lds(f"ds_read_b32 v{V_POLL}, v{V_C} offset:{off}", "poll")
    def check(off, target, issued=False, sleep=0):
        ok = L("ok"); sp = L("spin")
        if issued:
            p.wait(lg="poll")
            p(f"v_readfirstlane_b32 s{S_X}, v{V_POLL}")
            p(f"s_cmp_ge_u32 s{S_X}, {target}")
            p(f"s_cbranch_scc1 {ok}")
        p.label(sp)
        if sleep: p(f"s_sleep {sleep}")
        p(f"ds_read_b32 v{V_POLL}, v{V_C} offset:{off}")
        p("s_waitcnt lgkmcnt(0)")
        p(f"v_readfirstlane_b32 s{S_X}, v{V_POLL}")
        p(f"s_sub_u32 s{S_SPIN}, s{S_SPIN}, 1")
        p("s_cbranch_scc1 L_end")
        p(f"s_cmp_ge_u32 s{S_X}, {target}")
        p(f"s_cbranch_scc0 {sp}")
        if not issued: p.lg.clear()
        p.label(ok)
    def srd(s, ka, n):
        if ka is not None: p(f"s_mov_b64 s[{s}:{s+1}], s[{KA+ka}:{KA+ka+1}]")
        p(f"s_mov_b32 s{s+2}, {n}")
        p(f"s_mov_b32 s{s+3}, {FRM}")
    def touch(vaddr, soff, mask):
        p(f"s_mov_b64 exec, {mask}" if mask < (1 << 31) else f"s_mov_b32 exec_hi, {hex(mask >> 32)}")
        p(f"buffer_load_dword v250, v{vaddr}, s[{S_W1}:{S_W1+3}], s{soff} offen")
        p("s_mov_b64 exec, -1")

    def producer_index():
        p(f"s_lshr_b32 s{S_FB}, s2, 6")
        p(f"s_sub_u32 s{S_FB}, s{S_RG}, s{S_FB}")
        p(f"s_sub_u32 s{S_FB}, s{S_FB}, 1")
        p(f"s_and_b32 s{S_X}, s2, 0x37")
        p(f"s_sub_u32 s{S_X}, s{S_X}, 1")
        p(f"s_cmp_lt_u32 s{S_X}, 7")
        p(f"s_cselect_b32 s{S_FB}, s{S_FB}, 99")

    S_FL = 16
    def flags_load(off): p(f"s_load_dwordx8 s[{S_FL}:{S_FL+7}], s[{S_DBG}:{S_DBG+1}], {off}")
    def flags_test():
        p(f"s_or_b32 s{S_FL+6}, s{S_FL+6}, 0x01010000")
        p(f"s_and_b64 s[{S_FL}:{S_FL+1}], s[{S_FL}:{S_FL+1}], s[{S_FL+2}:{S_FL+3}]")
        p(f"s_and_b64 s[{S_FL}:{S_FL+1}], s[{S_FL}:{S_FL+1}], s[{S_FL+4}:{S_FL+5}]")
        p(f"s_and_b32 s{S_FL}, s{S_FL}, s{S_FL+1}")
        p(f"s_and_b32 s{S_FL}, s{S_FL}, s{S_FL+6}")
        p(f"s_cmp_eq_u32 s{S_FL}, 0x01010101")

    p(f".globl {NAME}\n.p2align 8\n.type {NAME},@function")
    p.label(NAME)
    p(f"s_load_dwordx16 s[{KA}:{KA+15}], s[0:1], 0")
    p(f"s_load_dwordx4 s[{S_OUT}:{S_OUT+3}], s[0:1], 64")
    p(f"s_load_dwordx2 s[{S_WS}:{S_WS+1}], s[0:1], 80")
    if cfg.probe or cfg.pst >= 0: p("s_memrealtime s[96:97]" if cfg.pst != 28 else "s_memrealtime s[96:97]")
    if cfg.pcyc: p("s_memtime s[98:99]")
    if cfg.stamps:
        p(f"s_memrealtime s[{S_ST}:{S_ST+1}]")
        p(f"s_memtime s[100:101]")
    p("v_lshrrev_b32 v1, 6, v0")
    p("v_and_b32 v0, 63, v0")
    p(f"v_readfirstlane_b32 s{S_WAVE}, v1")
    p("s_cmp_ge_u32 s2, 0x100")
    p("s_cbranch_scc1 L_end")
    p(f"s_and_b32 s3, s2, 7")
    p(f"s_lshr_b32 s{S_RG}, s2, 6")
    p(f"s_lshl3_add_u32 s{S_RG}, s{S_RG}, s3")
    p(f"s_bfe_u32 s{S_CP}, s2, 0x20004")
    p(f"v_lshlrev_b32 v{V_L}, 4, v0")
    p(f"v_lshlrev_b32 v160, 7, v0")
    srd(S_IDX, None, 4096*104)
    srd(S_W1, None, 832*1664)
    p("s_bitcmp1_b32 s2, 3")
    p("s_cbranch_scc1 L_cin")
    p(f"s_lshl3_add_u32 s3, s{S_RG}, s{S_WAVE}")
    p(f"s_mul_i32 s3, s3, 1664")
    p(f"s_mul_i32 s{S_W}, s{S_WAVE}, 1664")
    p(f"s_add_u32 m0, s{S_W}, {IDXO}")
    p(f"s_lshr_b32 s{S_X}, s2, 4")
    p(f"s_lshl3_add_u32 s{S_X}, s{S_X}, s{S_WAVE}")
    p(f"s_mul_i32 s{S_X}, s{S_X}, 2560")
    p.wait0(lg=True)
    p(f"s_mov_b64 s[{S_IDX}:{S_IDX+1}], s[{KA}:{KA+1}]")
    p(f"s_mov_b64 s[{S_W1}:{S_W1+1}], s[{KA+8}:{KA+9}]")
    for n in range(2):
        if n: p("s_mov_b32 exec_hi, 0xff")
        p.vmem(f"buffer_load_dwordx4 v{V_L}, s[{S_IDX}:{S_IDX+3}], s3 offen offset:{1024*n}{' nt' if cfg.nti else ''} lds", "idx")
    if not cfg.dtouch: p("s_mov_b32 exec_hi, -1")
    if cfg.dtouch:
        touch(160, S_X, 0xfffff); p.vm.issue("t")
    p("s_branch L_dnn")
    dnn_vm = list(p.vm.q)

    p.vm.clear(); p.lg.clear()
    p.label("L_cin")
    if cfg.dbench: p("s_endpgm")
    S_C = S_WAVE
    W3A, TBL, VV, AQ, VF, GA, MB, VT, CRAW = 28, 32, 40, 56, 72, 80, 96, 170, 152
    srd(S_WCO, None, 156)
    srd(S_WS, None, WS_END)
    p(f"s_mov_b32 s{S_SPIN}, 0x40000")
    p(f"v_lshlrev_b32 v{V_C}, 2, v0")
    p(f"v_add_u32 v{V_C}, {CO}, v{V_C}")
    p(f"v_mov_b32 v{V_ONE}, 1")
    p(f"s_cmp_ge_u32 s{S_WAVE}, 4")
    p("s_cbranch_scc1 L_xwave")
    srd(S_WCIN, None, 105456)
    producer_index()
    if cfg.noprep: p(f"s_mov_b32 s{S_FB}, 99")
    p(f"s_getpc_b64 s[{S_PC}:{S_PC+1}]")
    p.label("L_pc")
    p.wait0(lg=True)
    p(f"s_mov_b64 s[{S_WCIN}:{S_WCIN+1}], s[{KA+4}:{KA+5}]")
    if cfg.ttouch: srd(S_TAB, 2, 6400000)
    p(f"s_mov_b64 s[{S_W1}:{S_W1+1}], s[{KA+8}:{KA+9}]")
    p(f"s_mov_b64 s[{S_WCO}:{S_WCO+1}], s[{KA+6}:{KA+7}]")
    p(f"s_mov_b64 s[{S_BOUT}:{S_BOUT+1}], s[{KA+14}:{KA+15}]")
    def cinit_loads():
        p(f"v_lshrrev_b32 v8, 5, v0")
        p(f"v_lshlrev_b32 v9, 3, v8")
        p(f"v_lshlrev_b32 v8, 1, v8")
        for a in range(3):
            p(f"buffer_load_dwordx2 v[{CRAW+2*a}:{CRAW+2*a+1}], v9, s[{S_WCO}:{S_WCO+3}], 0 offen offset:{16*a}")
        p(f"buffer_load_ushort v{CRAW+6}, v8, s[{S_WCO}:{S_WCO+3}], 0 offen offset:48")
        p(f"v_mov_b32 v8, 0")
        p(f"global_load_ushort v{CRAW+7}, v8, s[{S_BOUT}:{S_BOUT+1}]")
    if cfg.mtouch or cfg.ttouch or cfg.ctouch:
        p(f"s_cmp_eq_u32 s{S_CP}, 0")
        p("s_cbranch_scc1 L_nomt")
        p(f"s_mul_i32 s{S_T}, s{S_RG}, 3")
        p(f"s_add_u32 s{S_T}, s{S_T}, s{S_CP}")
        p(f"s_lshl2_add_u32 s{S_T}, s{S_T}, s{S_C}")
        p(f"s_sub_u32 s{S_T}, s{S_T}, 4")
        if cfg.ctouch:
            p(f"s_lshr_b32 s{S_T+1}, s2, 6")
            p(f"s_mul_i32 s{S_T+1}, s{S_T+1}, 3")
            p(f"s_add_u32 s{S_T+1}, s{S_T+1}, s{S_CP}")
            p(f"s_lshl2_add_u32 s{S_T+1}, s{S_T+1}, s{S_C}")
            p(f"s_mul_i32 s{S_T+1}, s{S_T+1}, {6*128}")
            p(f"s_add_u32 s{S_T+1}, s{S_T+1}, {(549 - 24)*128}")
            p("s_mov_b64 exec, 63")
            p(f"buffer_load_dword v250, v160, s[{S_WCIN}:{S_WCIN+3}], s{S_T+1} offen")
            p("s_mov_b64 exec, -1")
        if cfg.mtouch:
            p(f"s_mul_i32 s{S_T+1}, s{S_T}, {22*128}")
            p(f"s_add_u32 s{S_T+1}, s{S_T+1}, {2496*128}")
            touch(160, S_T+1, (1 << 22) - 1)
        if cfg.ttouch:
            p(f"s_mul_i32 s{S_T+1}, s{S_T}, {cfg.ttouch*128}")
            p(f"s_mov_b64 exec, {(1 << cfg.ttouch) - 1}" if cfg.ttouch < 31 else f"s_mov_b32 exec_hi, {hex(((1 << cfg.ttouch) - 1) >> 32)}")
            p(f"buffer_load_dword v250, v160, s[{S_TAB}:{S_TAB+3}], s{S_T+1} offen")
            p("s_mov_b64 exec, -1")
        p("s_branch L_cbar")
        p.label("L_nomt")
    p(f"s_cmp_ge_u32 s{S_FB}, 26")
    p("s_cbranch_scc1 L_cbar")
    if cfg.prio_prep: p(f"s_setprio {cfg.prio_prep}")
    p(f"s_mul_i32 s{S_T+2}, s{S_FB}, {BLK}")
    p(f"s_add_u32 s{S_T+2}, s{S_T+2}, {WS_W}")
    def w3_dma():
        p(f"s_mul_i32 s{S_T}, s{S_C}, 9216")
        p(f"s_add_u32 s{S_T+1}, s{S_T}, 70304")
        p(f"s_add_u32 s{S_T}, s{S_T}, {P_W3}")
        for u in range(9):
            if u % 4 == 0:
                if u: p(f"s_add_u32 s{S_T+1}, s{S_T+1}, 0x1000")
                p(f"s_add_u32 m0, s{S_T}, {1024*u}")
                p("s_nop 0")
            p(f"buffer_load_dwordx4 v{V_L}, s[{S_WCIN}:{S_WCIN+3}], s{S_T+1} offen offset:{1024*(u % 4)} lds")
    if not cfg.w3last: w3_dma()
    p("v_and_b32 v2, 0x30, v0")
    p("v_bfe_u32 v1, v0, 2, 2")
    for q in range(4):
        p(f"v_xor_b32 v3, {q}, v1")
        p("v_lshl_add_u32 v3, v3, 28, v2")
        p(f"buffer_load_dwordx4 v[{AQ+4*q}:{AQ+4*q+3}], v3, s[{S_WCO}:{S_WCO+3}], 0 offen offset:104")
    p(f"s_cmp_ge_u32 s{S_C}, 2")
    p("s_cbranch_scc1 L_p23")
    p(f"s_lshl_b32 s{S_T}, s{S_C}, 11")
    p(f"s_add_u32 s{S_T}, s{S_T}, gather_table-L_pc")
    p(f"v_lshl_add_u32 v1, v0, 5, s{S_T}")
    p(f"global_load_dwordx4 v[{TBL}:{TBL+3}], v1, s[{S_PC}:{S_PC+1}]")
    p(f"global_load_dwordx4 v[{TBL+4}:{TBL+7}], v1, s[{S_PC}:{S_PC+1}] offset:16")
    p(f"s_cmp_lg_u32 s{S_C}, 0")
    p("s_cbranch_scc1 L_p1")
    p("v_lshrrev_b32 v3, 5, v0")
    p("v_mul_u32_u24 v3, 0x2a40, v3")
    p("v_and_b32 v2, 31, v0")
    p("v_lshl_add_u32 v3, v2, 1, v3")
    p(f"s_mul_i32 s{S_T}, s{S_FB}, 52")
    p(f"s_add_u32 s{S_T}, s{S_T}, 35152")
    for u in range(16):
        if u and u % 4 == 0:
            p(f"s_add_u32 s{S_T}, s{S_T}, {(4 if u != 8 else 12)*1352}")
        p(f"buffer_load_ushort v{VV+u}, v3, s[{S_WCIN}:{S_WCIN+3}], s{S_T} offen offset:{1352*(u % 4)}")
    p("s_branch L_pz")
    p.label("L_p1")
    p(f"s_mul_i32 s{S_T}, s{S_FB}, 1352")
    p(f"s_mov_b32 m0, {P_W1}")
    p("s_nop 0")
    for u in range(2):
        p(f"buffer_load_dwordx4 v{V_L}, s[{S_WCIN}:{S_WCIN+3}], s{S_T} offen offset:{1024*u} lds")
    p("s_branch L_pz")
    p.label("L_p23")
    p(f"s_cmp_lg_u32 s{S_C}, 3")
    p("s_cbranch_scc1 L_pz")
    p("v_lshlrev_b32 v1, 2, v0")
    p(f"buffer_load_dword v27, v1, s[{S_WCO}:{S_WCO+3}], 0 offen offset:52")
    for r in range(4): p(f"v_mov_b32 v{4+r}, -1")
    p(f"buffer_store_dwordx4 v[4:7], v{V_L}, s[{S_WS}:{S_WS+3}], s{S_T+2} offen sc1")
    p("s_mov_b32 exec_hi, 0xff")
    p(f"buffer_store_dwordx4 v[4:7], v{V_L}, s[{S_WS}:{S_WS+3}], s{S_T+2} offen offset:1024 sc1")
    p("s_mov_b32 exec_hi, -1")
    p(f"s_mul_i32 s{S_T}, s{S_FB}, 5120")
    p(f"s_min_u32 s{S_T}, s{S_T}, {131072 - 5120}")
    p(f"s_add_u32 s{S_T+1}, s{S_T}, 0x1000")
    for u in range(5):
        p(f"buffer_store_dwordx4 v[4:7], v{V_L}, s[{S_WS}:{S_WS+3}], s{S_T+u//4} offen offset:{1024*(u % 4)} sc1")
    p.label("L_pz")
    if cfg.w3last: w3_dma()
    p("v_mov_b32 v2, 0")
    p("v_mov_b32 v3, 0")
    p(f"s_lshl_b32 s{S_T}, s{S_C}, 9")
    p(f"s_add_u32 s{S_T}, s{S_T}, {P_M3T}")
    p(f"v_lshl_add_u32 v1, v0, 3, s{S_T}")
    p("ds_write_b64 v1, v[2:3]")
    p(f"v_add_u32 v1, {P_Z - CO}, v{V_C}")
    p("ds_write_b32 v1, v2")
    p.label("L_cbar")
    if cfg.pfcode:
        sk = L("nopf")
        p(f"s_cmp_lg_u32 s{S_C}, 2")
        p(f"s_cbranch_scc1 {sk}")
        p(f"s_lshr_b32 s{S_T}, s2, 4")
        p(f"s_mul_i32 s{S_T}, s{S_T}, 2560")
        p(f"v_add_u32 v2, s{S_T}, v160")
        p(f"v_min_u32 v2, gather_table-L_pc+4092, v2")
        p("s_mov_b64 exec, 0xfffff")
        p(f"global_load_dword v161, v2, s[{S_PC}:{S_PC+1}]")
        p("s_mov_b64 exec, -1")
        p.label(sk)
    p("v_mov_b32 v2, 0")
    p(f"ds_write_b32 v{V_C}, v2")
    p.wait0(lg=True)
    p("s_barrier")
    stamp(1)
    p(f"s_cmp_lt_u32 s{S_FB}, 26")
    p("s_cbranch_scc1 L_prep")
    cinit_loads()
    p("s_waitcnt vmcnt(0)")
    p("s_branch L_setup")
    p.label("L_prep")
    p("v_bfe_u32 v1, v0, 2, 2")
    p("v_lshrrev_b32 v4, 4, v0")
    p("v_lshl_add_u32 v4, v4, 3, v1")
    p("v_add_u32 v5, 4, v4")
    p("v_min_u32 v4, 25, v4")
    p("v_min_u32 v5, 25, v5")
    p("v_and_b32 v6, 3, v0")
    p(f"s_mul_i32 s{S_T}, s{S_C}, 384")
    p(f"s_add_u32 s{S_T}, s{S_T}, {P_W3}")
    p(f"v_lshl_add_u32 v6, v6, 3, s{S_T}")
    p(f"s_movk_i32 s{S_T+1}, 1352")
    p(f"v_mad_u32_u24 v2, v4, s{S_T+1}, v6")
    p(f"v_mad_u32_u24 v3, v5, s{S_T+1}, v6")
    p(f"s_mul_i32 s{S_T}, s{S_C}, 192")
    p(f"s_movk_i32 s{S_T+1}, -1662")
    p(f"v_mov_b32 v7, {P_DUM}")
    for u in range(3):
        p(f"v_add_u32 v4, s{S_T}, v0")
        if u < 2: p(f"s_add_u32 s{S_T}, s{S_T}, 64")
        p("v_mul_u32_u24 v5, 2521, v4")
        p("v_lshrrev_b32 v5, 16, v5")
        p("v_cmp_gt_u32 vcc, 0x2a4, v4")
        p("v_lshlrev_b32 v4, 6, v4")
        p(f"v_mad_i32_i24 v4, v5, s{S_T+1}, v4")
        p(f"v_add_u32 v4, {P_M3T}, v4")
        p(f"v_cndmask_b32 v{8+u}, v7, v4, vcc")
    p("v_and_b32 v5, 31, v0")
    p("v_lshrrev_b32 v4, 5, v0")
    p("v_lshlrev_b32 v6, 6, v5")
    p("v_lshl_add_u32 v6, v4, 4, v6")
    p(f"v_add_u32 v28, {P_M3T}, v6")
    p("v_mul_u32_u24 v5, 0x90, v5")
    p("v_lshl_add_u32 v5, v4, 4, v5")
    p(f"v_add_u32 v29, {P_D1}, v5")
    p("v_lshrrev_b32 v1, 1, v0")
    p("v_lshl_add_u32 v4, v1, 1, 1")
    p("v_add_u32 v5, 22, v1")
    p("v_min_u32 v4, v5, v4")
    p("v_lshlrev_b32 v5, 1, v1")
    p(f"s_cmp_eq_u32 s{S_C}, 0")
    p("s_cselect_b64 vcc, -1, 0")
    p("v_and_b32 v6, 1, v0")
    p(f"v_mov_b32 v11, {PS}")
    p("v_cndmask_b32 v4, v5, v4, vcc")
    p("v_lshl_add_u32 v4, v4, 1, v6")
    p("v_lshlrev_b32 v30, 4, v4")
    p(f"v_add_u32 v4, {P_M3T + 26*64 - CO}, v{V_C}")
    p(f"s_cmp_lg_u32 s{S_C}, 3")
    p("s_cbranch_scc1 L_w0")
    assert cfg.w3last
    p("s_waitcnt vmcnt(9)")
    p("s_mov_b64 exec, 0x1fff")
    p("ds_write_b32 v4, v27")
    p(f"v_lshl_add_u32 v4, v0, 6, s{S_FB}")
    p("s_mov_b64 exec, 3")
    p(f"global_store_byte v4, v{V_ONE}, s[{S_DBG}:{S_DBG+1}] offset:128 sc1")
    p("s_mov_b64 exec, -1")
    stamp(13)
    p("s_waitcnt vmcnt(1)")
    p("s_branch L_w1")
    p.label("L_w0")
    p.wait0(vm=True)
    p.label("L_w1")
    stamp(10)
    p("s_barrier")
    extra = []
    for u in range(8):
        extra.append(f"v_add_u32_sdwa v{GA+2*u}, v11, v{TBL+u} dst_sel:DWORD dst_unused:UNUSED_PAD src0_sel:DWORD src1_sel:WORD_0")
        extra.append(f"v_add_u32_sdwa v{GA+2*u+1}, v11, v{TBL+u} dst_sel:DWORD dst_unused:UNUSED_PAD src0_sel:DWORD src1_sel:WORD_1")
    for u in range(8): extra.append(f"v_lshl_or_b32 v{VF+u}, v{VV+2*u+1}, 16, v{VV+2*u}")
    def m3_mfma(U):
        u, q = divmod(U, 4)
        p.wait(lg=f"m{U}")
        cc = "0" if q == 0 else f"v[{12+4*u}:{15+4*u}]"
        p(f"v_mfma_f32_16x16x32_bf16 v[{12+4*u}:{15+4*u}], v[{AQ+4*q}:{AQ+4*q+3}], v[{MB+4*U}:{MB+4*U+3}], {cc}")
    for T in range(12):
        p.lds(f"ds_read_b64_tr_b16 v[{MB+4*T}:{MB+4*T+1}], v2 offset:{32*T}", f"m{T}")
        p.lds(f"ds_read_b64_tr_b16 v[{MB+4*T+2}:{MB+4*T+3}], v3 offset:{32*T}", f"m{T}")
        if T == 5:
            for _ in range(8): p(extra.pop(0))
        if T >= 6: m3_mfma(T - 6)
    for U in range(6, 12):
        m3_mfma(U)
        if U == 8:
            p("v_cvt_pk_bf16_f32 v24, v12, v12")
            p("ds_write_b16 v8, v24")
        else:
            for _ in range(2): p(extra.pop(0))
    p("v_cvt_pk_bf16_f32 v25, v16, v16")
    p("ds_write_b16 v9, v25")
    while extra: p(extra.pop(0))
    p(f"v_cvt_pk_bf16_f32 v26, v20, v20")
    p(f"ds_write_b16 v10, v26")
    p.wait0(lg=True)
    p("s_barrier")
    stamp(11)
    p(f"s_cmp_eq_u32 s{S_C}, 0")
    p("s_cbranch_scc1 L_pT")
    p(f"s_cmp_lg_u32 s{S_C}, 1")
    p("s_cbranch_scc1 L_pdone")
    for u in range(16): p(f"v_mov_b32 v{MB+16+u}, 0")
    for u in range(16): p(f"ds_read_u16_d16_hi v{MB+16+u}, v{GA+u}")
    p("s_mov_b32 exec_hi, 0xfff")
    p("s_branch L_pst")
    p.label("L_pT")
    p("ds_read_b128 v[12:15], v28")
    p("ds_read_b128 v[16:19], v28 offset:32")
    p("s_waitcnt lgkmcnt(1)")
    p(f"v_mfma_f32_32x32x16_bf16 v[{MB}:{MB+15}], v[{VF}:{VF+3}], v[12:15], 0")
    p("s_waitcnt lgkmcnt(0)")
    p(f"v_mfma_f32_32x32x16_bf16 v[{MB}:{MB+15}], v[{VF+4}:{VF+7}], v[16:19], v[{MB}:{MB+15}]")
    p("s_nop 11")
    for a in range(4): p(f"ds_write_b128 v29, v[{MB+4*a}:{MB+4*a+3}] offset:{32*a}")
    for u in range(16): p(f"ds_read_b32 v{MB+16+u}, v{GA+u}")
    p("s_mov_b32 exec_hi, 0xffff")
    p.label("L_pst")
    for e in range(8):
        if e % 2 == 0: p(f"s_waitcnt lgkmcnt({12 - 2*e})")
        p(f"v_add_f32 v{MB+16+2*e}, v{MB+16+2*e}, v{MB+16+2*e+1}")
        if e % 2:
            p(f"v_cvt_pk_bf16_f32 v{4+e//2}, v{MB+14+2*e}, v{MB+16+2*e}")
            p(f"v_min_u32 v{4+e//2}, -2, v{4+e//2}")
    p(f"buffer_store_dwordx4 v[4:7], v30, s[{S_WS}:{S_WS+3}], s{S_T+2} offen sc1")
    p(f"v_mov_b32 v8, s{S_C}")
    p("v_lshlrev_b32 v8, 2, v8")
    p("s_mov_b64 exec, 1")
    p(f"buffer_store_dword v{V_ONE}, v8, s[{S_WS}:{S_WS+3}], s{S_T+2} offen offset:1536 sc1")
    p.label("L_pdx")
    p("s_mov_b64 exec, -1")
    p.label("L_pdone")
    stamp(21)
    cinit_loads()
    p("s_waitcnt vmcnt(0)")
    p("s_branch L_setup")
    p.label("L_xwave")
    S_J, S_XA, S_XB, S_XM, S_TB = S_W, S_T+2, S_T+3, S_T+4, S_T+5
    p(f"s_sub_u32 s{S_J}, s{S_WAVE}, 4")
    p(f"s_lshl3_add_u32 s3, s{S_RG}, s{S_CP}")
    p(f"s_lshr_b32 s{S_FB}, s{S_J}, 1")
    p(f"s_lshl2_add_u32 s3, s{S_FB}, s3")
    p(f"s_mul_i32 s3, s3, 1664")
    p(f"s_and_b32 s{S_X}, s{S_J}, 1")
    p(f"s_mul_i32 s{S_X}, s{S_X}, 832")
    p(f"s_add_u32 s3, s3, s{S_X}")
    p(f"s_mul_i32 s{S_X}, s{S_J}, 832")
    p(f"s_add_u32 m0, s{S_X}, {IX2}")
    p(f"s_lshr_b32 s{S_X}, s2, 6")
    p(f"s_mul_i32 s{S_X}, s{S_X}, 3")
    p(f"s_add_u32 s{S_X}, s{S_X}, s{S_CP}")
    p(f"s_lshl2_add_u32 s{S_X}, s{S_X}, s{S_J}")
    p(f"s_mul_i32 s{S_X}, s{S_X}, {52*128}")
    p(f"s_add_u32 s{S_X}, s{S_X}, {(2496 - 4*52)*128}")
    p.wait0(lg=True)
    p(f"s_mov_b64 s[{S_IDX}:{S_IDX+1}], s[{KA}:{KA+1}]")
    p(f"s_mov_b64 s[{S_W1}:{S_W1+1}], s[{KA+8}:{KA+9}]")
    p("s_mov_b32 exec_hi, 0xfffff")
    p(f"buffer_load_dwordx4 v{V_L}, s[{S_IDX}:{S_IDX+3}], s3 offen{' nt' if cfg.nti else ''} lds")
    p("s_mov_b32 exec_hi, -1")
    p(f"s_mov_b64 s[{S_WCO}:{S_WCO+1}], s[{KA+6}:{KA+7}]")
    p(f"s_mov_b64 s[{S_BOUT}:{S_BOUT+1}], s[{KA+14}:{KA+15}]")
    srd(S_TAB, 2, 6400000)
    if cfg.etouch:
        p(f"s_cmp_eq_u32 s{S_CP}, 0")
        p("s_cbranch_scc1 L_noet")
        touch(160, S_X, (1 << 52) - 1)
        p("s_waitcnt vmcnt(1)")
        p.label("L_noet")
    p("v_lshrrev_b32 v1, 4, v0")
    p("v_and_b32 v2, 12, v0")
    p(f"s_mul_i32 s3, s{S_J}, 104")
    p(f"s_add_u32 s3, s3, {IX2}")
    p(f"v_add_u32 v2, s3, v2")
    p(f"s_movk_i32 s{S_X}, 416")
    p(f"v_mad_u32_u24 v3, v1, s{S_X}, v2")
    if cfg.bal:
        p(f"s_cmp_eq_u32 s{S_J}, 3")
        p(f"s_cselect_b32 s{S_X}, 104, 312")
        p(f"s_cselect_b32 s3, {13*104}, {20*104}")
        p(f"v_add_u32 v2, s3, v2")
        p(f"v_mad_u32_u24 v4, v1, s{S_X}, v2")
    else: p("v_add_u32 v4, 0x680, v3")
    p("v_and_b32 v1, 3, v0")
    p("v_lshlrev_b32 v5, 4, v1")
    p("v_bfe_u32 v1, v0, 3, 1")
    p("v_lshl_add_u32 v6, v1, 30, v5")
    p(f"s_mul_i32 s{S_XM}, s{S_J}, 7168")
    p(f"s_lshr_b32 s{S_TB}, s2, 4")
    p(f"s_lshl2_add_u32 s{S_TB}, s{S_TB}, s{S_J}")
    p(f"s_mul_i32 s{S_TB}, s{S_TB}, {46*128}")
    p(f"s_add_u32 s{S_TB}, s{S_TB}, {4992*128}")
    assert not cfg.etouch
    producer_index()
    p("s_waitcnt vmcnt(0)")
    p("s_barrier")
    for u in range(2):
        for Q in range(0, 6, 2): p(f"ds_read2_b32 v[{VT+7*u+u+Q}:{VT+7*u+u+Q+1}], v{3+u} offset0:{4*Q} offset1:{4*Q+4}")
        p(f"ds_read_b32 v{VT+8*u+6}, v{3+u} offset:96")
    stamp(1)
    p.vm.clear()
    assert cfg.xwin < 14
    p.wait0(lg=True)
    go_done = False; g0_done = False
    for Q in range(7):
        for u in range(2):
            n = 2*Q + u
            if n == cfg.xbar and not cfg.noprep:
                p(f"s_cmp_ge_u32 s{S_FB}, 26")
                p("s_cbranch_scc1 L_nobar")
                p("s_barrier")
                p("s_barrier")
                p.label("L_nobar")
            if n == cfg.xstart and n: p.wait(vm="x0")
            if n >= cfg.xwin:
                p.wait(vm=f"x{n - cfg.xwin}")
                if n - cfg.xwin == 2*cfg.gon + 1: arrive(C_GO); go_done = True
                if cfg.pre and n - cfg.xwin == 2*(cfg.gon - cfg.pre) + 1: arrive(C_G0); g0_done = True
            p(f"s_add_u32 m0, s{S_XM}, {XO + 4*7168*u + 1024*Q}")
            p(f"v_lshl_add_u32 v{VT+8*u+Q}, v{VT+8*u+Q}, 6, v{6 if Q == 6 else 5}")
            p.vmem(f"buffer_load_dwordx4 v{VT+8*u+Q}, s[{S_TAB}:{S_TAB+3}], 0 offen{' nt' if cfg.ntx else ''} lds", f"x{n}")
        for u, at in enumerate((cfg.lt0, cfg.lt1)):
            if at == Q and cfg.ltouch:
                touch(160, S_TB, (1 << 46) - 1); p.vm.issue("t")
                p(f"s_add_u32 s{S_TB}, s{S_TB}, {2944*128}")
    def late_touch():
        touch(160, S_TB, (1 << 46) - 1); p.vm.issue("t")
        p(f"s_add_u32 s{S_TB}, s{S_TB}, {2944*128}")
    cinit_loads()
    for _ in range(5): p.vm.issue("ci")
    if cfg.pre and not g0_done:
        p.wait(vm=f"x{2*(cfg.gon - cfg.pre)+1}")
        arrive(C_G0)
    if not go_done:
        p.wait(vm=f"x{2*cfg.gon+1}")
        arrive(C_GO)
    p.wait(vm="x13")
    arrive(C_XL)
    p.wait(vm="ci")
    for at in (cfg.lt0, cfg.lt1):
        if at == 7 and cfg.ltouch: late_touch()
    if cfg.ltouch and cfg.lt1 == 8: p(f"s_mov_b32 s{S_FB}, s{S_TB}")
    stamp(6)

    p.label("L_setup")
    if cfg.stamps or cfg.pst == 28: p(f"s_mov_b32 s{S_ST+27}, 0")
    p(f"s_setprio {cfg.prio_prep}")
    p.vm.clear(); p.lg.clear()
    AX, AT, CI, X0 = 0, 16, 32, 48
    Z = [74, 78]; PT = 82; ZL = 90
    XA = {1: 98, -3: 99, -1: 100}; WA = 101; SM = [102, 103, 104, 105]; MBX = 106; VMB = 110; VBO = 111
    RING = 112; RES = RING + 4*cfg.R
    WT = 112
    assert RES + 4*cfg.NRES <= 256
    NR = 4
    S_N, S_MB, S_O = S_T+7, S_T+9, S_T+11
    S_NR = S_T + 12
    p(f"s_and_b32 s{S_T+3}, s{S_WAVE}, 3")
    p(f"s_lshl_b32 s{S_T+2}, s{S_T+3}, 2")
    p(f"s_lshl_b32 s{S_T}, s{S_T+3}, 8")
    p(f"s_mov_b32 s{S_N}, 4")
    p(f"s_add_u32 s{S_T+2}, s{S_T+2}, 3")
    p(f"s_cmp_lt_u32 s{S_WAVE}, 4")
    p("s_cbranch_scc1 L_rowp")
    p(f"s_add_u32 s{S_T}, s{S_T}, {4*7168}")
    if cfg.bal:
        p(f"s_mov_b32 s{S_N}, 3")
        p(f"s_mul_i32 s{S_T+2}, s{S_T+3}, 3")
        p(f"s_add_u32 s{S_T+2}, s{S_T+2}, 70")
    else: p(f"s_add_u32 s{S_T+2}, s{S_T+2}, 64")
    p.label("L_rowp")
    p(f"s_lshl4_add_u32 s{S_T+2}, s{S_CP}, s{S_T+2}")
    p.label("L_setup2")
    p(f"s_mov_b32 s{S_NR}, s{S_N}")
    p("v_and_b32 v1, 31, v0")
    p("v_lshrrev_b32 v2, 5, v0")
    p(f"v_lshl_add_u32 v3, v1, 1, s{S_T}")
    p(f"v_lshl_add_u32 v{XA[1]}, v2, 6, v3")
    p("v_mul_u32_u24 v4, 0xc0, v2")
    p(f"v_sub_u32 v{XA[-3]}, v3, v4")
    p("v_lshlrev_b32 v4, 6, v2")
    p(f"v_sub_u32 v{XA[-1]}, v3, v4")
    p("v_mul_u32_u24 v4, 0x210, v2")
    p("v_lshl_add_u32 v4, v1, 4, v4")
    p(f"v_add_u32 v{WA}, {WO}, v4")
    for r in range(26): p(f"v_mov_b32 v{X0+r}, 0")
    for a in range(3):
        for h in range(2):
            p(f"v_lshlrev_b32 v{CI+4*a+2*h}, 16, v{CRAW+2*a+h}")
            p(f"v_and_b32 v{CI+4*a+2*h+1}, 0xffff0000, v{CRAW+2*a+h}")
    p(f"v_lshlrev_b32 v{CI+12}, 16, v{CRAW+6}")
    for r in range(13, 16): p(f"v_mov_b32 v{CI+r}, 0")
    p(f"v_lshlrev_b32 v{VBO}, 16, v{CRAW+7}")
    p("v_lshrrev_b32 v1, 3, v0")
    p("v_min_u32 v3, 1, v1")
    p("v_lshlrev_b32 v2, 9, v0")
    p(f"v_lshl_add_u32 v{VMB}, v3, 30, v2")
    p(f"s_lshl_b32 s{S_T+1}, s{S_RG}, 7")
    p(f"s_add_u32 s{S_T+1}, s{S_T+1}, s{S_T+2}")
    p(f"s_lshl_b32 s{S_O}, s{S_T+1}, 1")
    p(f"s_lshl_b32 s{S_T}, s{S_RG}, 10")
    p(f"s_add_u32 s{S_MB}, s{S_T+2}, s{S_T}")
    p(f"s_sub_u32 s{S_MB}, s{S_MB}, 3")
    p(f"s_lshl_b32 s{S_MB}, s{S_MB}, 2")
    p(f"v_mov_b32 v{ZL+7}, 0")
    p(f"s_cmp_ge_u32 s{S_WAVE}, 4")
    p("s_cbranch_scc1 L_xz")
    p("v_and_b32 v2, 7, v0")
    p(f"v_mul_u32_u24 v3, {BLK}, v1")
    p("v_lshl_add_u32 v3, v2, 4, v3")
    p("v_mul_u32_u24 v4, 0x210, v2")
    p(f"s_mul_i32 s{S_T}, s{S_C}, {24*528}")
    p(f"s_add_u32 s{S_T}, s{S_T}, {WO}")
    p(f"v_add_u32 v4, s{S_T}, v4")
    p("v_lshl_add_u32 v5, v1, 4, v4")
    p("v_cmp_eq_u32 vcc, 1, v1")
    p("v_add_u32 v6, 48, v5")
    p("v_subrev_u32 v7, 48, v5")
    p("v_cndmask_b32 v6, v5, v6, vcc")
    p("v_cmp_eq_u32 vcc, 4, v1")
    p(f"s_cmp_eq_u32 s{S_C}, 3")
    p(f"s_cselect_b32 s{S_T+1}, 4, 0")
    p("v_cndmask_b32 v6, v6, v7, vcc")
    p(f"v_and_b32 v7, s{S_T+1}, v2")
    p("v_lshl_add_u32 v7, v7, 28, v3")
    p("v_and_b32 v8, 31, v0")
    p("v_lshrrev_b32 v9, 5, v0")
    p(f"v_mul_u32_u24 v8, {BLK}, v8")
    p("v_lshl_add_u32 v8, v9, 2, v8")
    p(f"s_mul_i32 s{S_T}, s{S_C}, 384")
    p(f"s_add_u32 s{S_T}, s{S_T}, {WS_W}")
    p(f"s_and_b32 s{S_T+1}, s{S_CP}, {1 if cfg.wrot else 0}")
    p(f"s_mul_i32 s{S_T+2}, s{S_T+1}, 26624")
    for k in range(4):
        p(f"s_xor_b32 s{S_T+3+k}, s{S_T+2}, {26624*(k >> 1)}")
        p(f"s_add_u32 s{S_T+3+k}, s{S_T+3+k}, s{S_T}")
        if k & 1: p(f"s_add_u32 s{S_T+3+k}, s{S_T+3+k}, 13312")
    p(f"s_lshl_b32 s{S_T+2}, s{S_T+1}, 8")
    p(f"s_cmp_eq_u32 s{S_T+1}, 0")
    p("s_cselect_b64 vcc, -1, 0")
    p(f"v_add_u32 v12, s{S_T+2}, v5")
    p(f"s_xor_b32 s{S_T+2}, s{S_T+2}, 0x100")
    p("v_add_u32 v6, 0x180, v6")
    p("v_add_u32 v15, 0x80, v5")
    p(f"v_add_u32 v14, s{S_T+2}, v5")
    p("v_cndmask_b32 v13, v6, v15, vcc")
    p("v_cndmask_b32 v15, v15, v6, vcc")
    p("v_min_u32 v10, 25, v0")
    if cfg.pre:
        check(C_G0, 4, sleep=2)
        flags_load(192)
    check(C_GO, 4, sleep=2)
    stamp(22)
    p(f"s_mov_b32 s{S_T+13}, {WS_W}")
    if cfg.noprep: p("s_branch L_wload")
    if cfg.direct:
        if not cfg.pre:
            flags_load(192)
            p("s_waitcnt lgkmcnt(0)")
        flags_test()
        p("s_cbranch_scc1 L_wload")
        if cfg.stamps or cfg.pst == 28: p(f"s_add_u32 s{S_ST+27}, s{S_ST+27}, 100")
    p(f"s_cmp_lg_u32 s{S_C}, 0")
    p("s_cbranch_scc1 L_pw")
    p.label("L_probe")
    p(f"global_load_ubyte v11, v10, s[{S_DBG}:{S_DBG+1}] offset:192 sc1")
    p(f"buffer_load_dword v9, v8, s[{S_WS}:{S_WS+3}], s{S_T+13} offen offset:1536 sc1")
    p("s_waitcnt vmcnt(0)")
    p("v_add_u32 v11, -1, v11")
    p("v_max_u32 v9, v9, v11")
    p("v_cmp_eq_u32 vcc, -1, v9")
    p("s_nop 1")
    p("s_cmp_eq_u64 vcc, 0")
    p("s_cbranch_scc1 L_wload")
    p.label("L_retry")
    if cfg.stamps or cfg.pst == 28: p(f"s_add_u32 s{S_ST+27}, s{S_ST+27}, 1")
    p(f"s_sleep {cfg.poll_sleep}")
    p(f"s_sub_u32 s{S_SPIN}, s{S_SPIN}, 1")
    p("s_cbranch_scc0 L_probe")
    p("s_endpgm")
    p.label("L_pw")
    check(C_FLAG, 1, sleep=2)
    p("s_branch L_wl2")
    p.label("L_wload")
    arrive(C_FLAG)
    p.label("L_wl2")
    stamp(2)
    for J in range(4):
        for Fi in range(3):
            r = WT + 4*(3*J + Fi)
            p.vmem(f"buffer_load_dwordx4 v[{r}:{r+3}], v{7 if Fi == 2 else 3}, s[{S_WS}:{S_WS+3}], s{S_T+3+J} offen offset:{128*Fi} sc1", f"w{J}{Fi}")
    first = True
    for J in range(4):
        for Fi in range(3):
            r = WT + 4*(3*J + Fi)
            p.wait(vm=f"w{J}{Fi}")
            p(f"ds_write_b128 v{12+J}, v[{r}:{r+3}] offset:{4224*Fi}")
            if first: p(f"v_max_u32 v9, v{r}, v{r+1}")
            else: p(f"v_max3_u32 v9, v{r}, v{r+1}, v9")
            p(f"v_max3_u32 v9, v{r+2}, v{r+3}, v9")
            first = False
    p("v_cmp_eq_u32 vcc, -1, v9")
    p("s_nop 1")
    p("s_cmp_eq_u64 vcc, 0")
    p("s_cbranch_scc0 L_retry")
    p.label("L_xz")
    check(C_XL, 4, sleep=cfg.idle_sleep)
    def x_read(r):
        p.lds(f"ds_read_u16_d16_hi v{X0+r}, v{XA[pi(r)-r]} offset:{1024*(r >> 2) + 64*(r & 3)}", f"x{r}")
    for r in range(26): x_read(r)
    def z_ops(n):
        ops = []
        for e in range(4):
            t = PT + 2*(e % 4)
            (a, b), (c, d) = S[8*n + 2*e], S[8*n + 2*e + 1]
            ops.append(("v", f"v_mul_f32 v{t}, v{X0+a}, v{X0+b}", (a, b)))
            ops.append(("v", f"v_mul_f32 v{t+1}, v{X0+c}, v{X0+d}", (c, d)))
        cv = [("v", f"v_cvt_pk_bf16_f32 v{Z[n % 2]+e}, v{PT+2*e}, v{PT+2*e+1}", ()) for e in range(4)]
        return ops[0:4] + cv[0:1] + ops[4:6] + cv[1:2] + ops[6:8] + cv[2:4]
    for o in z_ops(0):
        p.wait(lg=tuple(f"x{r}" for r in o[2]))
        p(o[1])
    for d in XA.values(): p(f"v_add_u32 v{d}, 0x1c00, v{d}")
    p.wait0(lg=True)
    p("s_barrier")
    if cfg.ltouch and cfg.lt1 == 8:
        p(f"s_cmp_lt_u32 s{S_WAVE}, 4")
        p("s_cbranch_scc1 L_go")
        touch(160, S_FB, (1 << 46) - 1)
    p.label("L_go")
    p("s_setprio 0")
    if cfg.flip:
        p(f"s_cmp_lt_u32 s{S_WAVE}, 4")
        p("s_cbranch_scc1 L_prio")
        p(f"s_setprio 1")
        p.label("L_prio")
    stamp(3)
    order = []
    for n in range(22):
        order.append(("X", n)); order.append(("T", n))
        if n == 14: order.append(("T", 22))
        if n == 18: order.append(("T", 23))
    fr_of = lambda k, n: (2*n if k == "X" else 2*n + 1) if n < 22 else n + 22
    nn = 46 - cfg.NRES
    assert nn % cfg.R == 0
    nonres = [int((u + 0.5)*46/nn) for u in range(nn)]
    wreg = {}; rr = 0
    for k in range(46):
        if k in nonres: wreg[k] = RING + 4*(nonres.index(k) % cfg.R)
        else: wreg[k] = RES + 4*rr; rr += 1
    def w_read(k):
        p.lds(f"ds_read_b128 v[{wreg[k]}:{wreg[k]+3}], v{WA} offset:{1056*fr_of(*order[k])}", f"w{k}")
    for k in range(46):
        if k not in nonres or nonres.index(k) < cfg.R: w_read(k)
    p.wait0(lg=True)
    stamp(5)
    def mfma(k):
        kind, n = order[k]
        zb = Z[n % 2] if n < 22 else ZL + 4*(n - 22)
        acc = AX if kind == "X" else AT
        cc = f"v[{acc}:{acc+15}]"
        if n == 0: cc = "0" if kind == "X" else f"v[{CI}:{CI+15}]"
        return f"v_mfma_f32_32x32x16_bf16 v[{acc}:{acc+15}], v[{wreg[k]}:{wreg[k]+3}], v[{zb}:{zb+3}], {cc}"
    lin_ops = []
    for u in range(8):
        a = LIN[min(2*u, 12)]; b = LIN[min(2*u + 1, 12)]
        lin_ops.append(("v", f"v_cvt_pk_bf16_f32 v{ZL+u}, v{X0+a}, v{X0+b}", (a, b)))
    def body(emit_mb):
        groups = [z_ops(n) for n in range(1, 22)] + [z_ops(0)]
        groups[10] = lin_ops[:7] + groups[10]
        flat = [(g, o) for g, ops in enumerate(groups) for o in ops]
        lastuse = {}
        for i, (g, o) in enumerate(flat):
            if g < 21:
                for r in o[2]: lastuse[r] = i
        for r in range(26): lastuse.setdefault(r, -1)
        for g, ops in enumerate(groups):
            mf = [kk for kk in range(46) if order[kk] in (("X", g), ("T", g))]
            if g == 14: mf.append(order.index(("T", 22)))
            if g == 18: mf.append(order.index(("T", 23)))
            items = []
            base = sum(len(x) for x in groups[:g])
            if g == 0:
                for r in range(26):
                    if lastuse[r] == -1: items.append(("x", r))
            for i, o in enumerate(ops):
                items.append(o)
                for r in range(26):
                    if lastuse[r] == base + i: items.append(("x", r))
            if g == 21:
                pos = [0, 0]
            else:
                n_it = len(items)
                pos = [2 + (j*n_it)//len(mf) for j in range(len(mf))]
            j = 0
            for i, it in enumerate(items + [None]):
                while j < len(mf) and pos[j] <= i:
                    kk = mf[j]
                    if g == 21 and j == 0: p("s_nop 1")
                    p.wait(lg=f"w{kk}")
                    p(mfma(kk))
                    if kk in nonres:
                        w_read(nonres[(nonres.index(kk) + cfg.R) % nn])
                    j += 1
                if it is None: break
                if it[0] == "x": x_read(it[1])
                else:
                    p.wait(lg=tuple(f"x{r}" for r in it[2]))
                    p(it[1])
            if g == 15: emit_mb()
        for k in range(NR - 1): p(f"v_mov_b32 v{SM[k]}, v{SM[k+1]}")
        for d in XA.values(): p(f"v_add_u32 v{d}, 0x1c00, v{d}")
        s0 = SM[NR-1]
        p(f"v_mul_f32 v{s0}, v{AX}, v{AT}")
        p(f"v_mul_f32 v{PT}, v{AX+1}, v{AT+1}")
        for r in range(2, 13):
            p(f"v_fmac_f32 v{s0 if r % 2 == 0 else PT}, v{AX+r}, v{AT+r}")
        p(f"s_sub_u32 s{S_N}, s{S_N}, 1")
        p(f"v_add_f32 v{s0}, v{s0}, v{PT}")
    def mb_loads():
        p(f"buffer_load_dwordx{NR} v[{MBX}:{MBX+NR-1}], v{VMB}, s[{S_WS}:{S_WS+3}], s{S_MB} offen sc1")
    def emit_mb():
        sk = L("nomb")
        p(f"s_cmp_lg_u32 s{S_N}, 1")
        p(f"s_cbranch_scc1 {sk}")
        mb_loads()
        p.label(sk)
    save = p.L; p.L = []
    body(lambda: None)
    st1 = list(p.lg.q)
    p.L = save
    p(".p2align 3")
    p.label("L_row")
    body(emit_mb)
    assert st1 == p.lg.q
    if cfg.stamps in (1, 2):
        for i in range(3): p(f"s_mov_b32 s{S_ST+23+i}, s{S_ST+24+i}")
        stamp(26)
    if cfg.flip:
        p(f"s_cmp_lg_u32 s{S_N}, {4 - cfg.flip}")
        p("s_cbranch_scc1 L_noflip")
        p("s_setprio 0")
        p.label("L_noflip")
    p(f"s_cmp_lg_u32 s{S_N}, 0")
    p("s_cbranch_scc1 L_row")
    p.label("L_mbw")
    p("s_waitcnt vmcnt(0)")
    if NR == 4:
        p(f"v_max3_u32 v1, v{MBX}, v{MBX+1}, v{MBX+2}")
        p(f"v_max_u32 v1, v1, v{MBX+3}")
    else: p(f"v_max_u32 v1, v{MBX}, v{MBX+1}")
    p("v_cmp_eq_u32 vcc, -1, v1")
    p("s_nop 1")
    p("s_cmp_eq_u64 vcc, 0")
    p("s_cbranch_scc1 L_mbok")
    p("s_sleep 1")
    mb_loads()
    p(f"s_sub_u32 s{S_SPIN}, s{S_SPIN}, 1")
    p("s_cbranch_scc0 L_mbw")
    p("s_endpgm")
    p.label("L_mbok")
    for k in range(NR): p(f"v_add_f32 v{SM[k]}, v{SM[k]}, v{MBX+k}")
    for ctl in ("quad_perm:[1,0,3,2] row_mask:0xf", "quad_perm:[2,3,0,1] row_mask:0xf", "row_half_mirror row_mask:0xf",
                "row_mirror row_mask:0xf", "row_bcast:15 row_mask:0xa", "row_bcast:31 row_mask:0xc"):
        if NR == 2: p("s_nop 0")
        for k in range(NR): p(f"v_add_f32_dpp v{SM[k]}, v{SM[k]}, v{SM[k]} {ctl} bank_mask:0xf")
    for k in range(NR): p(f"v_add_f32 v{SM[k]}, v{SM[k]}, v{VBO}")
    p(f"v_cvt_pk_bf16_f32 v2, v{SM[0]}, v{SM[1]}")
    p(f"v_cvt_pk_bf16_f32 v3, v{SM[2]}, v{SM[3]}")
    p(f"v_mov_b32 v1, s{S_O}")
    p("s_mov_b32 exec_lo, 0")
    p("s_mov_b32 exec_hi, 0x80000000")
    if cfg.bal:
        p(f"s_cmp_eq_u32 s{S_NR}, 4")
        p("s_cbranch_scc1 L_st4")
        p(f"global_store_short_d16_hi v1, v3, s[{S_OUT}:{S_OUT+1}]")
        p(f"s_cmp_eq_u32 s{S_NR}, 1")
        p("s_cbranch_scc1 L_std")
        p(f"global_store_short v1, v3, s[{S_OUT}:{S_OUT+1}] offset:-2")
        p(f"global_store_short_d16_hi v1, v2, s[{S_OUT}:{S_OUT+1}] offset:-4")
        p("s_branch L_std")
        p.label("L_st4")
    p(f"global_store_dwordx2 v1, v[2:3], s[{S_OUT}:{S_OUT+1}] offset:-6")
    p.label("L_std")
    stamps_out()
    p.label("L_end")
    p("s_endpgm")

    p.vm.q = dnn_vm; p.lg.clear()
    p(".p2align 6")
    p.label("L_dnn")
    ACC = lambda t, q: 8*t + 4*q
    BF = lambda t: 56 + 4*t
    AR = lambda f, q: 84 + 8*(f % 2) + 4*q
    IDX = lambda f: 100 + f
    VO = lambda u: 128 + u
    V_B, V_A, V_CH, V_LANE, V_G8 = [130, 131, 132], [133, 134, 135], 136, 137, 138
    RAW = 140; RAW2 = 200
    S_SB, S_M0, S_AM = S_T+2, S_T+3, S_T+4
    if cfg.probe:
        p("s_cmp_ge_u32 s2, 8")
        p("s_cbranch_scc1 L_pr1")
        p("s_lshl_b32 s90, s2, 2")
        p("v_mov_b32 v1, s90")
        p("v_mov_b32 v2, s96")
        p(f"global_store_dword v1, v2, s[{S_DBG}:{S_DBG+1}] offset:8 sc1")
        p("s_waitcnt vmcnt(0)")
        p.label("L_pr1")
    srd(S_B1, 10, 1664)
    srd(S_TAB, 2, 6400000)
    srd(S_W2, 12, 1664)
    srd(S_WS, None, WS_END)
    if cfg.pxa >= 0:
        p("s_getreg_b32 s91, hwreg(HW_REG_XCC_ID)")
        p("s_and_b32 s91, s91, 15")
        p(f"s_cmp_lg_u32 s2, {cfg.pxa}")
        p("s_cbranch_scc1 L_pxa")
        p("v_mov_b32 v1, 0")
        p("v_mov_b32 v2, s91")
        p(f"global_store_dword v1, v2, s[{S_DBG}:{S_DBG+1}] offset:8 sc1")
        p("s_waitcnt vmcnt(0)")
        p.label("L_pxa")
    if cfg.plat:
        sr_, off = {1: (S_TAB, 3000320), 2: (S_W1, 1300096), 3: (S_WS, 4096), 4: (S_TAB, 5000320)}[cfg.plat]
        p("s_waitcnt vmcnt(0)")
        p(f"v_mov_b32 v1, {off}")
        p(f"buffer_load_dword v2, v1, s[{sr_}:{sr_+3}], 0 offen offset:2048")
        p("s_waitcnt vmcnt(0)")
        p("s_lshl_b32 s90, s2, 7")
        p("s_memrealtime s[94:95]")
        p("s_waitcnt lgkmcnt(0)")
        p(f"buffer_load_dword v2, v1, s[{sr_}:{sr_+3}], s90 offen offset:4)".replace(")", ""))
        p("s_waitcnt vmcnt(0)")
        p("s_memrealtime s[92:93]")
        p("s_waitcnt lgkmcnt(0)")
        p("s_sub_u32 s92, s92, s94")
        p("s_mul_i32 s92, s92, 10")
        p("s_add_u32 s92, s92, s96")
    stamp(10)
    p(f"s_mov_b32 s{S_SPIN}, 0x40000")
    p(f"s_mul_i32 s{S_COL}, s{S_CP}, 416")
    S_M1, S_WR = S_T+5, S_T+6
    p(f"s_mov_b32 s{S_SB}, s{S_COL}")
    p(f"s_and_b32 s{S_WR}, s{S_WAVE}, 3")
    p(f"s_lshl_b32 s{S_T}, s{S_WAVE}, 1")
    p(f"s_sub_u32 s{S_T}, s{S_T}, 4")
    p(f"s_add_u32 s{S_T+1}, s{S_T}, 1")
    p(f"s_cmp_lt_u32 s{S_WAVE}, 4")
    p(f"s_cselect_b32 s{S_M0}, s{S_WAVE}, s{S_T}")
    p(f"s_cselect_b32 s{S_M1}, 12, s{S_T+1}")
    p(f"s_lshl_b32 s{S_M0}, s{S_M0}, 10")
    p(f"s_lshl_b32 s{S_M1}, s{S_M1}, 10")
    p(f"s_lshl_b32 s{S_AM}, s{S_WAVE}, 10")
    p(f"s_add_u32 s{S_AM}, s{S_AM}, {BSZ}")
    p(f"s_lshr_b32 s{S_T}, s{S_WAVE}, 2")
    p(f"s_mul_i32 s{S_T}, s{S_T}, 224")
    p(f"s_add_u32 s{S_COL}, s{S_COL}, s{S_T}")
    p(f"s_movk_i32 s{S_T+1}, 1248")
    p(f"s_movk_i32 s{S_T+7}, 6656")
    for u in range(2):
        p(f"v_add_u32 v3, s{(S_M0, S_M1)[u]}, v{V_L}")
        p("v_lshlrev_b32 v4, 4, v3")
        p("v_mul_hi_u32_u24 v4, 0x9d89e, v4")
        p("v_bfe_u32 v5, v4, 2, 1")
        p("v_bfe_i32 v6, v4, 3, 1")
        p("v_add_u32 v5, v5, v6")
        p(f"v_mad_i32_i24 v5, v5, s{S_T+7}, v3")
        p(f"v_mad_u32_u24 v{VO(u)}, v4, s{S_T+1}, v5")
    p("v_lshrrev_b32 v1, 4, v0")
    p(f"s_add_u32 s{S_T+1}, s{S_T}, {IDXO}")
    p(f"v_lshl_add_u32 v{V_G8}, v1, 3, s{S_T+1}")
    p("v_lshrrev_b32 v2, 2, v0")
    p(f"v_mul_u32_u24 v2, 104, v2")
    p(f"s_add_u32 s{S_W}, s{S_W}, {IDXO}")
    p(f"v_add_u32 v139, s{S_W}, v2")
    p("v_lshrrev_b32 v2, 5, v0")
    p("v_mul_u32_u24 v3, 3, v2")
    p("v_xor_b32 v3, v3, v0")
    p("v_and_b32 v3, 3, v3")
    p(f"v_lshlrev_b32 v{V_CH}, 4, v3")
    p("v_bfe_u32 v3, v0, 3, 1")
    p("v_mul_u32_u24 v3, 3, v3")
    p("v_xor_b32 v3, v3, v1")
    p("v_and_b32 v4, 15, v0")
    p("v_lshlrev_b32 v4, 6, v4")
    p("v_lshl_add_u32 v3, v3, 4, v4")
    p(f"s_and_b32 s{S_T+1}, s{S_WAVE}, 3")
    p(f"s_lshl_b32 s{S_T+1}, s{S_T+1}, 11")
    p(f"s_add_u32 s{S_T+1}, s{S_T+1}, {BSZ}")
    p(f"v_add_u32 v{V_A[0]}, s{S_T+1}, v3")
    p("v_bfe_u32 v3, v0, 2, 3")
    p("v_lshl_add_u32 v2, v2, 4, v3")
    p("v_mul_u32_u24 v2, 0x1a0, v2")
    p("v_and_b32 v3, 3, v0")
    p("v_lshl_add_u32 v2, v3, 3, v2")
    p(f"v_add_u32 v{V_B[0]}, s{S_T}, v2")
    for k in (1, 2):
        p(f"v_add_u32 v{V_A[k]}, {3*k*SLOT}, v{V_A[0]}")
        p(f"v_add_u32 v{V_B[k]}, {3*k*SLOT}, v{V_B[0]}")
    p(f"v_mov_b32 v{V_LANE}, v0")
    p.wait(vm="idx")
    stamp(1)
    if cfg.dbench:
        p("s_mov_b32 s3, 0")
        p.label("L_again")
    for m in range(6):
        p.lds(f"ds_read2_b64 v[{100+4*m}:{103+4*m}], v139 offset0:{2*m} offset1:{2*m+1}", f"ix{m}")
    p.lds("ds_read_b64 v[124:125], v139 offset:96", "ix6")
    def a_dma(f):
        p.wait(lg=f"ix{f >> 2}")
        p(f"s_add_u32 m0, s{S_AM}, {(f % RB)*SLOT}")
        p(f"v_lshl_add_u32 v{IDX(f)}, v{IDX(f)}, 6, v{V_CH}")
        p.vmem(f"buffer_load_dwordx4 v{IDX(f)}, s[{S_TAB}:{S_TAB+3}], 0 offen{' nt' if f < cfg.nta else ''} lds", f"F{f}")
    def b_dma(f, u, T):
        if u == 1:
            if f: p(f"s_add_u32 s{S_SB}, s{S_SB}, 53248")
            sk = L("np")
            if T != 6:
                if T == 0:
                    p(f"s_cmp_ge_u32 s{S_WAVE}, 4")
                    p(f"s_cselect_b32 s{S_X}, {f & 3}, s{S_WR}")
                    p(f"s_cmp_lg_u32 s{S_X}, {f & 3}")
                else: p(f"s_cmp_lg_u32 s{S_WR}, {f & 3}")
                p(f"s_cbranch_scc1 {sk}")
            p(f"s_add_u32 m0, s{S_M1}, {(f % RB)*SLOT}")
            p("s_nop 0")
            p(f"buffer_load_dwordx4 v{VO(1)}, s[{S_W1}:{S_W1+3}], s{S_SB} offen lds")
            if T == 6: p.vm.issue(f"F{f}")
            else: p.label(sk)
        else:
            p(f"s_add_u32 m0, s{S_M0}, {(f % RB)*SLOT}")
            p("s_nop 0")
            p.vmem(f"buffer_load_dwordx4 v{VO(0)}, s[{S_W1}:{S_W1+3}], s{S_SB} offen lds", f"F{f}")
    def fill(f, T): a_dma(f); b_dma(f, 1, T); b_dma(f, 0, T)
    BWO = IDXO
    p(f"s_cmp_ge_u32 s{S_WAVE}, {0 if cfg.dbench else 2}")
    p("s_cbranch_scc1 L_nobw")
    p(f"s_mul_i32 s{S_X}, s{S_CP}, 416")
    p(f"s_cmp_eq_u32 s{S_WAVE}, 0")
    p(f"s_cselect_b64 s[{S_W2}:{S_W2+1}], s[{S_B1}:{S_B1+1}], s[{S_W2}:{S_W2+1}]")
    p(f"s_mov_b32 m0, s{S_W}")
    p("s_mov_b64 exec, 0xfffffff")
    p("s_waitcnt lgkmcnt(0)")
    p(f"buffer_load_dwordx4 v{V_L}, s[{S_W2}:{S_W2+3}], s{S_X} offen lds")
    p("s_mov_b64 exec, -1")
    p.label("L_nobw")
    if cfg.sw < 26:
        p(f"v_lshlrev_b32 v{V_C}, 2, v{V_LANE}")
        p(f"v_add_u32 v{V_C}, {IDXO + 2*1664}, v{V_C}")
        p(f"v_mov_b32 v{V_ONE}, 1")
        p(f"s_cmp_lg_u32 s{S_WAVE}, 2")
        p("s_cbranch_scc1 L_noz")
        p(f"v_mov_b32 v{V_POLL}, 0")
        p("s_waitcnt lgkmcnt(0)")
        p(f"ds_write_b32 v{V_C}, v{V_POLL}")
        p("s_waitcnt lgkmcnt(0)")
        p.label("L_noz")
    def lo(f): return (f % RB)//3, ((f % RB) % 3)*SLOT
    def b_read1(f, t, r2):
        k, off = lo(f)
        p.lds(f"ds_read_b64_tr_b16 v[{BF(t)+2*r2}:{BF(t)+2*r2+1}], v{V_B[k]} offset:{off + 32*t + 3328*r2}", f"b{f}_{t}")
    def a_read(f):
        k, off = lo(f)
        for q in range(2):
            p.lds(f"ds_read_b128 v[{AR(f, q)}:{AR(f, q)+3}], v{V_A[k]} offset:{off + 1024*q}", f"a{f}")
    p(f"s_cmp_ge_u32 s{S_WAVE}, 4")
    p("s_cbranch_scc1 L_dnn6")
    W2R = lambda t, r: 170 + 4*t + r
    def w2_unpack():
        return [x for t in range(7) for h in range(2) for x in
                (f"v_lshlrev_b32 v{W2R(t,2*h)}, 16, v{RAW2+2*t+h}", f"v_and_b32 v{W2R(t,2*h+1)}, 0xffff0000, v{RAW2+2*t+h}")]
    vm0, lg0 = list(p.vm.q), list(p.lg.q)
    def dnn_main(T):
        p.vm.q, p.lg.q = list(vm0), list(lg0)
        fill(0, T)
        fill(1, T)
        p.wait(vm="F0")
        p("s_barrier")
        stamp(12)
        for t in range(T):
            p.lds(f"ds_read_b64 v[{RAW+2*t}:{RAW+2*t+1}], v{V_G8} offset:{32*t}", "bias")
        a_read(0)
        for t in range(T):
            for r2 in range(2): b_read1(0, t, r2)
        p.wait(lg="bias")
        for t in range(T):
            for h in range(2):
                p(f"v_lshlrev_b32 v{ACC(t,0)+2*h}, 16, v{RAW+2*t+h}")
                p(f"v_and_b32 v{ACC(t,0)+2*h+1}, 0xffff0000, v{RAW+2*t+h}")
        for f in range(2, cfg.look): fill(f, T)
        p.wait(vm=tuple(f"F{k}" for k in range(cfg.barp + 1)))
        p("s_barrier")
        if T == 6 and cfg.prio_hi: p(f"s_setprio {cfg.prio_hi}")
        stamp(2)
        nxt = cfg.look
        w2ops = w2_unpack()
        free = -1; landed = cfg.barp
        for f in range(26):
            todo = []
            soft = f > cfg.sw and f <= 23
            top = f < cfg.early or (cfg.dpos == 4 and T == 6) or (cfg.dpos == 1 and T == 7)
            lim = (f - 1 if soft and not top else free) + RB
            nfill = 2 if (cfg.cmask >> f & 1 if cfg.cmask else cfg.catch0 <= f < cfg.catch0 + cfg.catch) else 1
            if f >= cfg.b2: nfill = (2 if (f % 2 == 0) == ((T == 6) == (cfg.dpos == 4)) else 0)
            for _ in range(nfill):
                if nxt < 26 and nxt <= lim:
                    todo += [(a_dma, (nxt,)), (b_dma, (nxt, 1, T)), (b_dma, (nxt, 0, T))]; nxt += 1
            if cfg.nodma and f >= 4:
                keep = []
                for fn, ar in todo:
                    if (fn is a_dma and cfg.nodma & 1) or (fn is b_dma and cfg.nodma & 2): continue
                    keep.append((fn, ar))
                todo[:] = keep
            n_it = len(todo)
            if f < cfg.early: at = [-1]*n_it
            elif cfg.dpos == 0: at = list(range(n_it))
            elif cfg.dpos == 1: at = [-1]*n_it if T == 7 else [T-1]*n_it
            elif cfg.dpos == 2: at = [(2*i + (T == 6)) if n_it <= 3 else i for i in range(n_it)]
            elif cfg.dpos == 3: at = [0]*n_it if T == 7 else [T-1]*n_it
            elif cfg.dpos == 4: at = [T-1]*n_it if T == 7 else [-1]*n_it
            elif cfg.dpos == 5: at = [i//(2 if n_it > 3 else 1) for i in range(n_it)] if T == 7 else [3 + i//(2 if n_it > 3 else 1) for i in range(n_it)]
            if soft and not top: at = [min(max(a, cfg.chk + i*(cfg.dpos in (0, 2))), T-1) for i, a in enumerate(at)]
            assert f == 25 or f + 1 <= landed
            def drain(t):
                while todo and at[0] <= t:
                    at.pop(0); fn, ar = todo.pop(0); fn(*ar)
            drain(-1)
            for t in range(T):
                p.wait(lg=(f"b{f}_{t}", f"a{f}"))
                b = f"v[{BF(t)}:{BF(t)+3}]"
                a0, a1 = ACC(t, 0), ACC(t, 1)
                c1 = a0 if f == 0 else a1
                p(f"v_mfma_f32_16x16x32_bf16 v[{a1}:{a1+3}], {b}, v[{AR(f,1)}:{AR(f,1)+3}], v[{c1}:{c1+3}]")
                if t and f < 25: b_read1(f+1, t-1, 1)
                elif t == 0 and f: b_read1(f, T-1, 1)
                p(f"v_mfma_f32_16x16x32_bf16 v[{a0}:{a0+3}], {b}, v[{AR(f,0)}:{AR(f,0)+3}], v[{a0}:{a0+3}]")
                if f < 25: b_read1(f+1, t, 0)
                if t == cfg.arp and f < 25: a_read(f + 1)
                if soft and t == cfg.chk - 2: poll_issue(4*(f-1))
                if soft and t == cfg.chk:
                    check(4*(f-1), 8, issued=True)
                    free = f - 1; landed = f + 2
                drain(t)
                if f == 21:
                    for tt in ([t] if t < T - 1 else range(t, 7)):
                        p.lds(f"ds_read_b64 v[{RAW2+2*tt}:{RAW2+2*tt+1}], v{V_G8} offset:{1664 + 32*tt}", "w2")
                if cfg.w2early and f in (23, 24):
                    if f == 23 and t == 0: p.wait(lg="w2")
                    for _ in range(3):
                        if w2ops: p(w2ops.pop(0))
            assert not todo
            if f >= cfg.sw:
                if f <= 22:
                    assert nxt > f + 3
                    p.wait(vm=tuple(f"F{k}" for k in range(f + 4)))
                    arrive(4*f)
            elif f <= cfg.lb and (f + 1) % cfg.barp == 0 and (f < cfg.b2 or f % 2):
                last = min(f + 1 + cfg.barp + (f + 1 == cfg.sw or f + 1 >= cfg.b2), 25) if f < cfg.lb else 25
                assert nxt > last
                p.wait(vm=tuple(f"F{k}" for k in range(last + 1)))
                if not cfg.nobar: p("s_barrier")
                free = f; landed = last
            if f == cfg.lb and cfg.tailprio is not None and T == cfg.tailprio: p("s_setprio 1")
            if f % 4 == 0 and (not cfg.dbench or f in (8, 20)): stamp(14 + f//4)
        assert nxt == 26 and not (cfg.w2early and w2ops)
    dnn_main(7)
    p("s_branch L_gelu")
    p(".p2align 6")
    p.label("L_dnn6")
    dnn_main(6)
    p.label("L_gelu")
    if cfg.dbench:
        p("s_barrier")
        p(f"s_mul_i32 s{S_SB}, s{S_CP}, 416")
        p("s_add_u32 s3, s3, 1")
        p("s_cmp_lt_u32 s3, 2")
        p("s_cbranch_scc1 L_again")
    stamp(3)
    flags_load(128)
    if not cfg.w2early:
        p.wait0(vm=True)
        for x in w2_unpack(): p(x)
    k0 = -2.0*math.sqrt(2.0/math.pi)*math.log2(math.e)
    T1, T2, SUM, VC = 56, 64, 92, 72
    P = lambda a: f"v[{a}:{a+1}]"
    for r, c in enumerate((k0*0.044715, k0)):
        for h in range(2): p(f"v_mov_b32 v{VC+2*r+h}, {f2h(c)}")
    for r in range(4): p(f"v_mov_b32 v{SUM+r}, 0")
    for t in range(7):
        if t == 6:
            p(f"s_cmp_ge_u32 s{S_WAVE}, 4")
            p("s_cbranch_scc1 L_gelu6")
        x = ACC(t, 0)
        if cfg.pk:
            for r in range(0, 8, 2): p(f"v_pk_mul_f32 {P(T1+r)}, {P(x+r)}, {P(x+r)}")
            for r in range(0, 8, 2): p(f"v_pk_fma_f32 {P(T1+r)}, {P(T1+r)}, {P(VC)}, {P(VC+2)}")
            for r in range(0, 8, 2): p(f"v_pk_mul_f32 {P(T1+r)}, {P(T1+r)}, {P(x+r)}")
            for r in range(8): p(f"v_exp_f32 v{T1+r}, v{T1+r}")
            for r in range(0, 8, 2): p(f"v_pk_mul_f32 {P(T2+r)}, {P(x+r)}, {P(W2R(t, r & 3))}")
            for r in range(0, 8, 2): p(f"v_pk_add_f32 {P(T1+r)}, {P(T1+r)}, 1.0 op_sel_hi:[1,0]")
            for r in range(8): p(f"v_rcp_f32 v{T1+r}, v{T1+r}")
            for r in (0, 4, 2, 6): p(f"v_pk_fma_f32 {P(SUM+2*(r >> 2))}, {P(T1+r)}, {P(T2+r)}, {P(SUM+2*(r >> 2))}")
        else:
            for r in range(8): p(f"v_mul_f32 v{T1+r}, v{x+r}, v{x+r}")
            for r in range(8): p(f"v_fma_f32 v{T1+r}, v{T1+r}, v{VC}, v{VC+2}")
            for r in range(8): p(f"v_mul_f32 v{T1+r}, v{T1+r}, v{x+r}")
            for r in range(8): p(f"v_exp_f32 v{T1+r}, v{T1+r}")
            for r in range(8): p(f"v_mul_f32 v{T2+r}, v{x+r}, v{W2R(t, r & 3)}")
            for r in range(8): p(f"v_add_f32 v{T1+r}, 1.0, v{T1+r}")
            for r in range(8): p(f"v_rcp_f32 v{T1+r}, v{T1+r}")
            for r in range(8): p(f"v_fmac_f32 v{SUM+2*(r >> 2)+(r & 1)}, v{T1+r}, v{T2+r}")
    p.label("L_gelu6")
    p(f"v_add_f32 v{SUM}, v{SUM}, v{SUM+1}")
    p(f"v_add_f32 v{SUM+2}, v{SUM+2}, v{SUM+3}")
    p(f"v_and_b32 v84, 15, v{V_LANE}")
    p(f"v_lshrrev_b32 v85, 5, v{V_LANE}")
    p(f"v_permlane32_swap_b32 v{SUM}, v{SUM+2}")
    p("v_lshl_add_u32 v84, v85, 4, v84")
    p(f"v_add_f32 v{SUM}, v{SUM}, v{SUM+2}")
    p(f"v_bfe_u32 v85, v{V_LANE}, 4, 1")
    p(f"v_mov_b32 v{SUM+1}, v{SUM}")
    p("v_lshlrev_b32 v84, 2, v84")
    p("v_lshl_add_u32 v84, v85, 30, v84")
    p(f"v_permlane16_swap_b32 v{SUM}, v{SUM+1}")
    p(f"s_lshl2_add_u32 s{S_T}, s{S_RG}, s{S_CP}")
    p(f"v_add_f32 v{SUM}, v{SUM}, v{SUM+1}")
    p(f"s_lshl3_add_u32 s{S_T}, s{S_T}, s{S_WAVE}")
    p(f"s_lshl_b32 s{S_T}, s{S_T}, 7")
    p(f"v_min_u32 v{SUM}, -2, v{SUM}")
    p("s_waitcnt lgkmcnt(0)")
    if cfg.noprep or cfg.dbench: p("s_branch L_pub")
    flags_test()
    p("s_cbranch_scc1 L_pub")
    p(f"v_min_u32 v85, 25, v{V_LANE}")
    p.label("L_dflag")
    p(f"global_load_ubyte v86, v85, s[{S_DBG}:{S_DBG+1}] offset:128 sc1")
    p("s_waitcnt vmcnt(0)")
    p("v_cmp_eq_u32 vcc, 0, v86")
    p("s_nop 1")
    p("s_cmp_eq_u64 vcc, 0")
    p("s_cbranch_scc1 L_pub")
    p("s_sleep 4")
    p(f"s_sub_u32 s{S_SPIN}, s{S_SPIN}, 1")
    p("s_cbranch_scc0 L_dflag")
    p("s_endpgm")
    p.label("L_pub")
    p(f"buffer_store_dword v{SUM}, v84, s[{S_WS}:{S_WS+3}], s{S_T} offen sc1")
    stamp(4)
    if cfg.probe:
        p("s_cmp_lg_u32 s2, 0")
        p("s_cbranch_scc1 L_pr2")
        p(f"v_lshlrev_b32 v1, 2, v{V_LANE}")
        p(f"global_load_dword v2, v1, s[{S_DBG}:{S_DBG+1}] offset:8 sc1")
        p("s_waitcnt vmcnt(0)")
        for i in range(8): p(f"v_readlane_b32 s{80+i}, v2, {i}")
        p("s_mov_b32 s90, s80"); p("s_mov_b32 s91, s80")
        for i in range(1, 8):
            p(f"s_min_u32 s90, s90, s{80+i}"); p(f"s_max_u32 s91, s91, s{80+i}")
        if cfg.probe == 1: p("s_sub_u32 s90, s91, s90")
        else: p(f"s_sub_u32 s90, s{80+cfg.probe-2}, s90")
        p("s_mul_i32 s90, s90, 20")
        p("s_min_u32 s90, s90, 20000")
        p("s_memrealtime s[92:93]"); p("s_waitcnt lgkmcnt(0)")
        p("s_add_u32 s92, s92, s90")
        p.label("L_pr")
        p("s_memrealtime s[94:95]"); p("s_waitcnt lgkmcnt(0)")
        p("s_cmp_lt_u32 s94, s92")
        p("s_cbranch_scc1 L_pr")
        p.label("L_pr2")
    stamps_out()
    p("s_endpgm")

    p(".p2align 6")
    p(".type gather_table,@object")
    p.label("gather_table")
    zt = P_Z - PS
    for role in range(2):
        for lane in range(64):
            s, half = lane >> 1, lane & 1
            ad = []
            for e in range(8):
                pr = slot_pair(s, half, e) if s < (24 if role == 0 else 22) else None
                at = (lambda j, k: P_D1 - PS + k*144 + j*4) if role == 0 else (lambda j, k: P_W1 - PS + (j*26 + k)*2)
                if pr is None: ad += [zt, zt]
                elif pr[1] is None: ad += [at(pr[0], 26), zt]
                elif pr[0] == pr[1] or norm(pr) == (24, 25): ad += [at(*pr), zt]
                else: ad += [at(pr[0], pr[1]), at(pr[1], pr[0])]
            p(".short " + ", ".join(str(a) for a in ad))
    p(".size gather_table, 4096")
    return p

def header():
    return """; xDeepFM (CIN + DNN) forward, one launch, 256 workgroups (S1).
; Kernarg: idx, table, ws_cin, w_cin_out, w_dnn1, b_dnn1, w_dnn2, b_out, out, debug, ws
; @launch grid=(256,1,1) block=(512,1,1) lds=%d
.amdgcn_target "amdgcn-amd-amdhsa--gfx950"
.text
""" % LDS_SIZE
def footer():
    nv = 256
    return f""".section .rodata,"a"
.p2align 6
.amdhsa_kernel {NAME}
  .amdhsa_next_free_vgpr {nv}
  .amdhsa_next_free_sgpr 102
  .amdhsa_accum_offset {nv}
  .amdhsa_group_segment_fixed_size 0
  .amdhsa_kernarg_size 88
  .amdhsa_user_sgpr_count 2
  .amdhsa_user_sgpr_kernarg_segment_ptr 1
  .amdhsa_system_sgpr_workgroup_id_x 1
  .amdhsa_float_denorm_mode_32 3
.end_amdhsa_kernel
"""
if __name__ == "__main__":
    out = sys.argv[1]
    for a in sys.argv[2:]:
        k, v = a.split("=")
        setattr(cfg, k, type(getattr(cfg, k))(int(v)))
    open(out, "w").write(header() + build().text() + footer())
```

```python
import sys, struct, math
from asmlib import *
from slots import *

NAME = "standalone__deep_cross_xdeepfm__recsys_kernel"
class Cfg:
    stamps = 0
    NRES = 31
    R = 3
    prio_prep = 3
    prio_hi = 0
    poll_sleep = 2
    idle_sleep = 1
    gon = 4
    bal = 0
    lt0 = 2
    lt1 = 5
    early = 4
    look = 3
    cmask = 0
    catch0 = 4
    catch = 4
    etouch = 0
    dtouch = 1
    mtouch = 1
    ttouch = 0
    xwin = 4
    pfcode = 1
    flip = 2
    w2early = 1
    dpos = 4
    ltouch = 0
    pk = 1
    ctouch = 1
    wrot = 1
    direct = 1
    w3last = 1
    ntx = 0
    nta = 0
    nti = 0
    pre = 0
    pst = -1
    pcyc = 0
    pxa = -1
    plat = 0
    pwg = 0
    pwave = 0
    probe = 0
    dbench = 0
    nodma = 0
    nobar = 0
    lb = 21
    tailprio = 0
    b2 = 26
    sw = 26
    chk = 3
    barp = 1
    arp = 1
    noprep = 0
    clrpos = 1
    xstart = 0
    xbar = 4
    pdelay = 1
    hold = 0
cfg = Cfg()

LDS_SIZE = 163840
XO = 0
WO = 8*7168
PS = WO + 96*528
P_W3 = PS; P_M3T = PS + 36864; P_D1 = PS + 38912; P_W1 = PS + 43520; P_Z = PS + 45568; P_DUM = PS + 45824
CO = LDS_SIZE - 512
IX2 = PS + 46080
assert P_DUM + 256 <= CO
C_PA, C_PB, C_XL, C_FLAG, C_GO, C_G0, C_PI = 0, 4, 8, 12, 16, 20, 24
RB = 7
BSZ = 13312
SLOT = BSZ + 8192
IDXO = RB*SLOT
assert IDXO + 8*1664 == LDS_SIZE
MBOX = 0; WS_W = 131072; BLK = 1664; WS_END = WS_W + 26*BLK; WS_STAMP = 1 << 20
S_IDX, S_TAB, S_W1, S_WCIN, S_WCO, S_B1, S_W2, S_WS = 4, 8, 12, 16, 20, 24, 28, 32
S_OUT, S_DBG, S_BOUT = 36, 38, 40
S_WAVE, S_RG, S_CP, S_FB, S_COL, S_W = 42, 43, 44, 45, 46, 47
S_PC, S_SPIN, S_X = 48, 50, 51
KA = 52
S_T = 52
S_ST = 70
V_C, V_ONE, V_POLL, V_L = 162, 163, 164, 165
FRM = "0x20000"

def f2h(x): return "0x%08x" % struct.unpack("<I", struct.pack("<f", x))[0]

def build():
    p = Prog()
    lab = [0]
    def L(n):
        lab[0] += 1
        return f"L_{n}_{lab[0]}"
    def stamp(i):
        if cfg.pst == i:
            p("s_memtime s[92:93]" if cfg.pcyc else "s_memrealtime s[92:93]")
            p.wait0(lg=True)
        if cfg.stamps and (cfg.stamps != 3 or i == 8):
            p(f"s_memrealtime s[68:69]" if cfg.stamps != 2 or i == 8 else "s_memtime s[68:69]")
            p.wait0(lg=True)
            if cfg.stamps != 2 or i == 8: p(f"s_mov_b32 s{S_ST+i}, s68")
            else:
                p("s_sub_u32 s68, s68, s100")
                p("s_lshr_b32 s68, s68, 4")
                p(f"s_add_u32 s{S_ST+i}, s68, s{S_ST}")
    def stamps_out():
        if cfg.pst >= 0:
            stamp(8)
            sk = L("npr"); lp = L("pr")
            p(f"s_cmp_lg_u32 s2, {cfg.pwg}")
            p(f"s_cbranch_scc1 {sk}")
            p(f"s_cmp_lg_u32 s{S_WAVE}, {cfg.pwave}")
            p(f"s_cbranch_scc1 {sk}")
            if cfg.pst == 0: p("s_mov_b32 s92, s96")
            if cfg.pst == 28:
                p(f"s_cmp_lg_u32 s{S_ST+27}, 0")
                p("s_cselect_b32 s92, 125, 0")
                p(f"s_cmp_ge_u32 s{S_ST+27}, 100")
                p("s_cselect_b32 s92, 250, s92")
                p(f"s_cmp_ge_u32 s{S_ST+27}, 101")
                p("s_cselect_b32 s92, 375, s92")
                p("s_add_u32 s92, s92, s96")
            if cfg.pxa >= 0:
                p("s_mov_b64 exec, -1")
                p("v_mov_b32 v1, 0")
                p(f"global_load_dword v2, v1, s[{S_DBG}:{S_DBG+1}] offset:8 sc1")
                p("s_waitcnt vmcnt(0)")
                p("v_readfirstlane_b32 s90, v2")
                p("s_cmp_lg_u32 s90, s91")
                p("s_cselect_b32 s90, 250, 0")
                p("s_add_u32 s92, s92, s90")
            if cfg.pcyc:
                p("s_sub_u32 s90, s92, s98")
                p("s_lshr_b32 s90, s90, 3")
            else:
                p("s_sub_u32 s90, s92, s96")
                p("s_mul_i32 s90, s90, 4")
            p("s_mov_b64 exec, 1")
            p("v_mov_b32 v1, 0")
            p("v_mov_b32 v2, s90")
            p(f"global_store_dword v1, v2, s[{S_DBG}:{S_DBG+1}] offset:4")
            p("s_add_u32 s90, s90, 2000")
            p("s_min_u32 s90, s90, 20000")
            p("s_add_u32 s90, s90, s96")
            p.label(lp)
            p("s_sleep 1")
            p("s_memrealtime s[94:95]"); p("s_waitcnt lgkmcnt(0)")
            p("s_cmp_lt_u32 s94, s90")
            p(f"s_cbranch_scc1 {lp}")
            p.label(sk)
        if not cfg.stamps: return
        stamp(8)
        p("s_mov_b64 exec, 1")
        p(f"s_lshl4_add_u32 s{S_T}, s2, s{S_WAVE}")
        p(f"s_lshl_b32 s{S_T}, s{S_T}, 7")
        p(f"s_add_u32 s{S_T}, s{S_T}, {WS_STAMP}")
        p(f"v_mov_b32 v1, s{S_T}")
        p("s_memtime s[68:69]")
        p("s_waitcnt lgkmcnt(0)")
        p(f"s_sub_u32 s{S_ST+29}, s68, s100")
        for i in range(30):
            p(f"v_mov_b32 v2, s{S_ST+i}")
            p(f"global_store_dword v1, v2, s[{S_WS}:{S_WS+1}] offset:{4*i}")
    def arrive(*offs):
        p("s_mov_b64 exec, 1")
        for off in offs: p.lds(f"ds_add_u32 v{V_C}, v{V_ONE} offset:{off}", "arr")
        p("s_mov_b64 exec, -1")
    def poll_issue(off):
        p.lds(f"ds_read_b32 v{V_POLL}, v{V_C} offset:{off}", "poll")
    def check(off, target, issued=False, sleep=0):
        ok = L("ok"); sp = L("spin")
        if issued:
            p.wait(lg="poll")
            p(f"v_readfirstlane_b32 s{S_X}, v{V_POLL}")
            p(f"s_cmp_ge_u32 s{S_X}, {target}")
            p(f"s_cbranch_scc1 {ok}")
        p.label(sp)
        if sleep: p(f"s_sleep {sleep}")
        p(f"ds_read_b32 v{V_POLL}, v{V_C} offset:{off}")
        p("s_waitcnt lgkmcnt(0)")
        p(f"v_readfirstlane_b32 s{S_X}, v{V_POLL}")
        p(f"s_sub_u32 s{S_SPIN}, s{S_SPIN}, 1")
        p("s_cbranch_scc1 L_end")
        p(f"s_cmp_ge_u32 s{S_X}, {target}")
        p(f"s_cbranch_scc0 {sp}")
        if not issued: p.lg.clear()
        p.label(ok)
    def srd(s, ka, n):
        if ka is not None: p(f"s_mov_b64 s[{s}:{s+1}], s[{KA+ka}:{KA+ka+1}]")
        p(f"s_mov_b32 s{s+2}, {n}")
        p(f"s_mov_b32 s{s+3}, {FRM}")
    def touch(vaddr, soff, mask):
        p(f"s_mov_b64 exec, {mask}" if mask < (1 << 31) else f"s_mov_b32 exec_hi, {hex(mask >> 32)}")
        p(f"buffer_load_dword v250, v{vaddr}, s[{S_W1}:{S_W1+3}], s{soff} offen")
        p("s_mov_b64 exec, -1")

    def producer_index():
        p(f"s_lshr_b32 s{S_FB}, s2, 6")
        p(f"s_sub_u32 s{S_FB}, s{S_RG}, s{S_FB}")
        p(f"s_sub_u32 s{S_FB}, s{S_FB}, 1")
        p(f"s_and_b32 s{S_X}, s2, 0x37")
        p(f"s_sub_u32 s{S_X}, s{S_X}, 1")
        p(f"s_cmp_lt_u32 s{S_X}, 7")
        p(f"s_cselect_b32 s{S_FB}, s{S_FB}, 99")

    S_FL = 16
    def flags_load(off): p(f"global_load_dword v11, v10, s[{S_DBG}:{S_DBG+1}] sc1")
    def flags_test():
        p("s_waitcnt vmcnt(0)")
        p(f"v_readfirstlane_b32 s{S_FL}, v11")
        p(f"s_cmp_ge_u32 s{S_FL}, 26")

    p(f".globl {NAME}\n.p2align 8\n.type {NAME},@function")
    p.label(NAME)
    p(f"s_load_dwordx16 s[{KA}:{KA+15}], s[0:1], 0")
    p(f"s_load_dwordx4 s[{S_OUT}:{S_OUT+3}], s[0:1], 64")
    p(f"s_load_dwordx2 s[{S_WS}:{S_WS+1}], s[0:1], 80")
    if cfg.probe or cfg.pst >= 0: p("s_memrealtime s[96:97]" if cfg.pst != 28 else "s_memrealtime s[96:97]")
    if cfg.pcyc: p("s_memtime s[98:99]")
    if cfg.stamps:
        p(f"s_memrealtime s[{S_ST}:{S_ST+1}]")
        p(f"s_memtime s[100:101]")
    p("v_lshrrev_b32 v1, 6, v0")
    p("v_and_b32 v0, 63, v0")
    p(f"v_readfirstlane_b32 s{S_WAVE}, v1")
    p("s_cmp_ge_u32 s2, 0x100")
    p("s_cbranch_scc1 L_end")
    p(f"s_and_b32 s3, s2, 7")
    p(f"s_lshr_b32 s{S_RG}, s2, 6")
    p(f"s_lshl3_add_u32 s{S_RG}, s{S_RG}, s3")
    p(f"s_bfe_u32 s{S_CP}, s2, 0x20004")
    p(f"v_lshlrev_b32 v{V_L}, 4, v0")
    p(f"v_lshlrev_b32 v160, 7, v0")
    srd(S_IDX, None, 4096*104)
    srd(S_W1, None, 832*1664)
    p("s_bitcmp1_b32 s2, 3")
    p("s_cbranch_scc1 L_cin")
    p(f"s_lshl3_add_u32 s3, s{S_RG}, s{S_WAVE}")
    p(f"s_mul_i32 s3, s3, 1664")
    p(f"s_mul_i32 s{S_W}, s{S_WAVE}, 1664")
    p(f"s_add_u32 m0, s{S_W}, {IDXO}")
    p(f"s_lshr_b32 s{S_X}, s2, 4")
    p(f"s_lshl3_add_u32 s{S_X}, s{S_X}, s{S_WAVE}")
    p(f"s_mul_i32 s{S_X}, s{S_X}, 2560")
    p.wait0(lg=True)
    p(f"s_mov_b64 s[{S_IDX}:{S_IDX+1}], s[{KA}:{KA+1}]")
    p(f"s_mov_b64 s[{S_W1}:{S_W1+1}], s[{KA+8}:{KA+9}]")
    for n in range(2):
        if n: p("s_mov_b32 exec_hi, 0xff")
        p.vmem(f"buffer_load_dwordx4 v{V_L}, s[{S_IDX}:{S_IDX+3}], s3 offen offset:{1024*n}{' nt' if cfg.nti else ''} lds", "idx")
    if not cfg.dtouch: p("s_mov_b32 exec_hi, -1")
    if cfg.dtouch:
        touch(160, S_X, 0xfffff); p.vm.issue("t")
    p("s_branch L_dnn")
    dnn_vm = list(p.vm.q)

    p.vm.clear(); p.lg.clear()
    p.label("L_cin")
    if cfg.dbench: p("s_endpgm")
    S_C = S_WAVE
    W3A, TBL, VV, AQ, VF, GA, MB, VT, CRAW = 28, 32, 40, 56, 72, 80, 96, 170, 152
    srd(S_WCO, None, 156)
    srd(S_WS, None, WS_END)
    p(f"s_mov_b32 s{S_SPIN}, 0x40000")
    p(f"v_lshlrev_b32 v{V_C}, 2, v0")
    p(f"v_add_u32 v{V_C}, {CO}, v{V_C}")
    p(f"v_mov_b32 v{V_ONE}, 1")
    p(f"s_cmp_ge_u32 s{S_WAVE}, 4")
    p("s_cbranch_scc1 L_xwave")
    srd(S_WCIN, None, 105456)
    producer_index()
    if cfg.noprep: p(f"s_mov_b32 s{S_FB}, 99")
    p(f"s_getpc_b64 s[{S_PC}:{S_PC+1}]")
    p.label("L_pc")
    p.wait0(lg=True)
    p(f"s_mov_b64 s[{S_WCIN}:{S_WCIN+1}], s[{KA+4}:{KA+5}]")
    if cfg.ttouch: srd(S_TAB, 2, 6400000)
    p(f"s_mov_b64 s[{S_W1}:{S_W1+1}], s[{KA+8}:{KA+9}]")
    p(f"s_mov_b64 s[{S_WCO}:{S_WCO+1}], s[{KA+6}:{KA+7}]")
    p(f"s_mov_b64 s[{S_BOUT}:{S_BOUT+1}], s[{KA+14}:{KA+15}]")
    def cinit_loads():
        p(f"v_lshrrev_b32 v8, 5, v0")
        p(f"v_lshlrev_b32 v9, 3, v8")
        p(f"v_lshlrev_b32 v8, 1, v8")
        for a in range(3):
            p(f"buffer_load_dwordx2 v[{CRAW+2*a}:{CRAW+2*a+1}], v9, s[{S_WCO}:{S_WCO+3}], 0 offen offset:{16*a}")
        p(f"buffer_load_ushort v{CRAW+6}, v8, s[{S_WCO}:{S_WCO+3}], 0 offen offset:48")
        p(f"v_mov_b32 v8, 0")
        p(f"global_load_ushort v{CRAW+7}, v8, s[{S_BOUT}:{S_BOUT+1}]")
    if cfg.mtouch or cfg.ttouch or cfg.ctouch:
        p(f"s_cmp_eq_u32 s{S_CP}, 0")
        p("s_cbranch_scc1 L_nomt")
        p(f"s_mul_i32 s{S_T}, s{S_RG}, 3")
        p(f"s_add_u32 s{S_T}, s{S_T}, s{S_CP}")
        p(f"s_lshl2_add_u32 s{S_T}, s{S_T}, s{S_C}")
        p(f"s_sub_u32 s{S_T}, s{S_T}, 4")
        if cfg.ctouch:
            p(f"s_lshr_b32 s{S_T+1}, s2, 6")
            p(f"s_mul_i32 s{S_T+1}, s{S_T+1}, 3")
            p(f"s_add_u32 s{S_T+1}, s{S_T+1}, s{S_CP}")
            p(f"s_lshl2_add_u32 s{S_T+1}, s{S_T+1}, s{S_C}")
            p(f"s_mul_i32 s{S_T+1}, s{S_T+1}, {6*128}")
            p(f"s_add_u32 s{S_T+1}, s{S_T+1}, {(549 - 24)*128}")
            p("s_mov_b64 exec, 63")
            p(f"buffer_load_dword v250, v160, s[{S_WCIN}:{S_WCIN+3}], s{S_T+1} offen")
            p("s_mov_b64 exec, -1")
        if cfg.mtouch:
            p(f"s_mul_i32 s{S_T+1}, s{S_T}, {22*128}")
            p(f"s_add_u32 s{S_T+1}, s{S_T+1}, {2496*128}")
            touch(160, S_T+1, (1 << 22) - 1)
        if cfg.ttouch:
            p(f"s_mul_i32 s{S_T+1}, s{S_T}, {cfg.ttouch*128}")
            p(f"s_mov_b64 exec, {(1 << cfg.ttouch) - 1}" if cfg.ttouch < 31 else f"s_mov_b32 exec_hi, {hex(((1 << cfg.ttouch) - 1) >> 32)}")
            p(f"buffer_load_dword v250, v160, s[{S_TAB}:{S_TAB+3}], s{S_T+1} offen")
            p("s_mov_b64 exec, -1")
        p("s_branch L_cbar")
        p.label("L_nomt")
    p(f"s_cmp_ge_u32 s{S_FB}, 26")
    p("s_cbranch_scc1 L_cbar")
    if cfg.prio_prep: p(f"s_setprio {cfg.prio_prep}")
    p(f"s_mul_i32 s{S_T+2}, s{S_FB}, {BLK}")
    p(f"s_add_u32 s{S_T+2}, s{S_T+2}, {WS_W}")
    def w3_dma():
        p(f"s_mul_i32 s{S_T}, s{S_C}, 9216")
        p(f"s_add_u32 s{S_T+1}, s{S_T}, 70304")
        p(f"s_add_u32 s{S_T}, s{S_T}, {P_W3}")
        for u in range(9):
            if u % 4 == 0:
                if u: p(f"s_add_u32 s{S_T+1}, s{S_T+1}, 0x1000")
                p(f"s_add_u32 m0, s{S_T}, {1024*u}")
                p("s_nop 0")
            p(f"buffer_load_dwordx4 v{V_L}, s[{S_WCIN}:{S_WCIN+3}], s{S_T+1} offen offset:{1024*(u % 4)} lds")
    if not cfg.w3last: w3_dma()
    p("v_and_b32 v2, 0x30, v0")
    p("v_bfe_u32 v1, v0, 2, 2")
    for q in range(4):
        p(f"v_xor_b32 v3, {q}, v1")
        p("v_lshl_add_u32 v3, v3, 28, v2")
        p(f"buffer_load_dwordx4 v[{AQ+4*q}:{AQ+4*q+3}], v3, s[{S_WCO}:{S_WCO+3}], 0 offen offset:104")
    p(f"s_cmp_ge_u32 s{S_C}, 2")
    p("s_cbranch_scc1 L_p23")
    p(f"s_lshl_b32 s{S_T}, s{S_C}, 11")
    p(f"s_add_u32 s{S_T}, s{S_T}, gather_table-L_pc")
    p(f"v_lshl_add_u32 v1, v0, 5, s{S_T}")
    p(f"global_load_dwordx4 v[{TBL}:{TBL+3}], v1, s[{S_PC}:{S_PC+1}]")
    p(f"global_load_dwordx4 v[{TBL+4}:{TBL+7}], v1, s[{S_PC}:{S_PC+1}] offset:16")
    p(f"s_cmp_lg_u32 s{S_C}, 0")
    p("s_cbranch_scc1 L_p1")
    p("v_lshrrev_b32 v3, 5, v0")
    p("v_mul_u32_u24 v3, 0x2a40, v3")
    p("v_and_b32 v2, 31, v0")
    p("v_lshl_add_u32 v3, v2, 1, v3")
    p(f"s_mul_i32 s{S_T}, s{S_FB}, 52")
    p(f"s_add_u32 s{S_T}, s{S_T}, 35152")
    for u in range(16):
        if u and u % 4 == 0:
            p(f"s_add_u32 s{S_T}, s{S_T}, {(4 if u != 8 else 12)*1352}")
        p(f"buffer_load_ushort v{VV+u}, v3, s[{S_WCIN}:{S_WCIN+3}], s{S_T} offen offset:{1352*(u % 4)}")
    p("s_branch L_pz")
    p.label("L_p1")
    p(f"s_mul_i32 s{S_T}, s{S_FB}, 1352")
    p(f"s_mov_b32 m0, {P_W1}")
    p("s_nop 0")
    for u in range(2):
        p(f"buffer_load_dwordx4 v{V_L}, s[{S_WCIN}:{S_WCIN+3}], s{S_T} offen offset:{1024*u} lds")
    p("s_branch L_pz")
    p.label("L_p23")
    p(f"s_cmp_lg_u32 s{S_C}, 3")
    p("s_cbranch_scc1 L_pz")
    p("v_lshlrev_b32 v1, 2, v0")
    p(f"buffer_load_dword v27, v1, s[{S_WCO}:{S_WCO+3}], 0 offen offset:52")
    for r in range(4): p(f"v_mov_b32 v{4+r}, -1")
    p(f"buffer_store_dwordx4 v[4:7], v{V_L}, s[{S_WS}:{S_WS+3}], s{S_T+2} offen sc1")
    p("s_mov_b32 exec_hi, 0xff")
    p(f"buffer_store_dwordx4 v[4:7], v{V_L}, s[{S_WS}:{S_WS+3}], s{S_T+2} offen offset:1024 sc1")
    p("s_mov_b32 exec_hi, -1")
    p(f"s_mul_i32 s{S_T}, s{S_FB}, 5120")
    p(f"s_min_u32 s{S_T}, s{S_T}, {131072 - 5120}")
    p(f"s_add_u32 s{S_T+1}, s{S_T}, 0x1000")
    for u in range(5):
        p(f"buffer_store_dwordx4 v[4:7], v{V_L}, s[{S_WS}:{S_WS+3}], s{S_T+u//4} offen offset:{1024*(u % 4)} sc1")
    p.label("L_pz")
    if cfg.w3last: w3_dma()
    p("v_mov_b32 v2, 0")
    p("v_mov_b32 v3, 0")
    p(f"s_lshl_b32 s{S_T}, s{S_C}, 9")
    p(f"s_add_u32 s{S_T}, s{S_T}, {P_M3T}")
    p(f"v_lshl_add_u32 v1, v0, 3, s{S_T}")
    p("ds_write_b64 v1, v[2:3]")
    p(f"v_add_u32 v1, {P_Z - CO}, v{V_C}")
    p("ds_write_b32 v1, v2")
    p.label("L_cbar")
    if cfg.pfcode:
        sk = L("nopf")
        p(f"s_cmp_lg_u32 s{S_C}, 2")
        p(f"s_cbranch_scc1 {sk}")
        p(f"s_lshr_b32 s{S_T}, s2, 4")
        p(f"s_mul_i32 s{S_T}, s{S_T}, 2560")
        p(f"v_add_u32 v2, s{S_T}, v160")
        p(f"v_min_u32 v2, gather_table-L_pc+4092, v2")
        p("s_mov_b64 exec, 0xfffff")
        p(f"global_load_dword v161, v2, s[{S_PC}:{S_PC+1}]")
        p("s_mov_b64 exec, -1")
        p.label(sk)
    p("v_mov_b32 v2, 0")
    p(f"ds_write_b32 v{V_C}, v2")
    p.wait0(lg=True)
    p("s_barrier")
    stamp(1)
    p(f"s_cmp_lt_u32 s{S_FB}, 26")
    p("s_cbranch_scc1 L_prep")
    cinit_loads()
    p("s_waitcnt vmcnt(0)")
    p("s_branch L_setup")
    p.label("L_prep")
    p("v_bfe_u32 v1, v0, 2, 2")
    p("v_lshrrev_b32 v4, 4, v0")
    p("v_lshl_add_u32 v4, v4, 3, v1")
    p("v_add_u32 v5, 4, v4")
    p("v_min_u32 v4, 25, v4")
    p("v_min_u32 v5, 25, v5")
    p("v_and_b32 v6, 3, v0")
    p(f"s_mul_i32 s{S_T}, s{S_C}, 384")
    p(f"s_add_u32 s{S_T}, s{S_T}, {P_W3}")
    p(f"v_lshl_add_u32 v6, v6, 3, s{S_T}")
    p(f"s_movk_i32 s{S_T+1}, 1352")
    p(f"v_mad_u32_u24 v2, v4, s{S_T+1}, v6")
    p(f"v_mad_u32_u24 v3, v5, s{S_T+1}, v6")
    p(f"s_mul_i32 s{S_T}, s{S_C}, 192")
    p(f"s_movk_i32 s{S_T+1}, -1662")
    p(f"v_mov_b32 v7, {P_DUM}")
    for u in range(3):
        p(f"v_add_u32 v4, s{S_T}, v0")
        if u < 2: p(f"s_add_u32 s{S_T}, s{S_T}, 64")
        p("v_mul_u32_u24 v5, 2521, v4")
        p("v_lshrrev_b32 v5, 16, v5")
        p("v_cmp_gt_u32 vcc, 0x2a4, v4")
        p("v_lshlrev_b32 v4, 6, v4")
        p(f"v_mad_i32_i24 v4, v5, s{S_T+1}, v4")
        p(f"v_add_u32 v4, {P_M3T}, v4")
        p(f"v_cndmask_b32 v{8+u}, v7, v4, vcc")
    p("v_and_b32 v5, 31, v0")
    p("v_lshrrev_b32 v4, 5, v0")
    p("v_lshlrev_b32 v6, 6, v5")
    p("v_lshl_add_u32 v6, v4, 4, v6")
    p(f"v_add_u32 v28, {P_M3T}, v6")
    p("v_mul_u32_u24 v5, 0x90, v5")
    p("v_lshl_add_u32 v5, v4, 4, v5")
    p(f"v_add_u32 v29, {P_D1}, v5")
    p("v_lshrrev_b32 v1, 1, v0")
    p("v_lshl_add_u32 v4, v1, 1, 1")
    p("v_add_u32 v5, 22, v1")
    p("v_min_u32 v4, v5, v4")
    p("v_lshlrev_b32 v5, 1, v1")
    p(f"s_cmp_eq_u32 s{S_C}, 0")
    p("s_cselect_b64 vcc, -1, 0")
    p("v_and_b32 v6, 1, v0")
    p(f"v_mov_b32 v11, {PS}")
    p("v_cndmask_b32 v4, v5, v4, vcc")
    p("v_lshl_add_u32 v4, v4, 1, v6")
    p("v_lshlrev_b32 v30, 4, v4")
    p(f"v_add_u32 v4, {P_M3T + 26*64 - CO}, v{V_C}")
    p(f"s_cmp_lg_u32 s{S_C}, 3")
    p("s_cbranch_scc1 L_w0")
    assert cfg.w3last
    p("s_waitcnt vmcnt(9)")
    p("s_mov_b64 exec, 0x1fff")
    p("ds_write_b32 v4, v27")
    p("v_mov_b32 v4, 0")
    p("s_mov_b64 exec, 1")
    p(f"global_atomic_add v4, v{V_ONE}, s[{S_DBG}:{S_DBG+1}] sc1")
    p("s_mov_b64 exec, -1")
    stamp(13)
    p("s_waitcnt vmcnt(1)")
    p("s_branch L_w1")
    p.label("L_w0")
    p.wait0(vm=True)
    p.label("L_w1")
    stamp(10)
    p("s_barrier")
    extra = []
    for u in range(8):
        extra.append(f"v_add_u32_sdwa v{GA+2*u}, v11, v{TBL+u} dst_sel:DWORD dst_unused:UNUSED_PAD src0_sel:DWORD src1_sel:WORD_0")
        extra.append(f"v_add_u32_sdwa v{GA+2*u+1}, v11, v{TBL+u} dst_sel:DWORD dst_unused:UNUSED_PAD src0_sel:DWORD src1_sel:WORD_1")
    for u in range(8): extra.append(f"v_lshl_or_b32 v{VF+u}, v{VV+2*u+1}, 16, v{VV+2*u}")
    def m3_mfma(U):
        u, q = divmod(U, 4)
        p.wait(lg=f"m{U}")
        cc = "0" if q == 0 else f"v[{12+4*u}:{15+4*u}]"
        p(f"v_mfma_f32_16x16x32_bf16 v[{12+4*u}:{15+4*u}], v[{AQ+4*q}:{AQ+4*q+3}], v[{MB+4*U}:{MB+4*U+3}], {cc}")
    for T in range(12):
        p.lds(f"ds_read_b64_tr_b16 v[{MB+4*T}:{MB+4*T+1}], v2 offset:{32*T}", f"m{T}")
        p.lds(f"ds_read_b64_tr_b16 v[{MB+4*T+2}:{MB+4*T+3}], v3 offset:{32*T}", f"m{T}")
        if T == 5:
            for _ in range(8): p(extra.pop(0))
        if T >= 6: m3_mfma(T - 6)
    for U in range(6, 12):
        m3_mfma(U)
        if U == 8:
            p("v_cvt_pk_bf16_f32 v24, v12, v12")
            p("ds_write_b16 v8, v24")
        else:
            for _ in range(2): p(extra.pop(0))
    p("v_cvt_pk_bf16_f32 v25, v16, v16")
    p("ds_write_b16 v9, v25")
    while extra: p(extra.pop(0))
    p(f"v_cvt_pk_bf16_f32 v26, v20, v20")
    p(f"ds_write_b16 v10, v26")
    p.wait0(lg=True)
    p("s_barrier")
    stamp(11)
    p(f"s_cmp_eq_u32 s{S_C}, 0")
    p("s_cbranch_scc1 L_pT")
    p(f"s_cmp_lg_u32 s{S_C}, 1")
    p("s_cbranch_scc1 L_pdone")
    for u in range(16): p(f"v_mov_b32 v{MB+16+u}, 0")
    for u in range(16): p(f"ds_read_u16_d16_hi v{MB+16+u}, v{GA+u}")
    p("s_mov_b32 exec_hi, 0xfff")
    p("s_branch L_pst")
    p.label("L_pT")
    p("ds_read_b128 v[12:15], v28")
    p("ds_read_b128 v[16:19], v28 offset:32")
    p("s_waitcnt lgkmcnt(1)")
    p(f"v_mfma_f32_32x32x16_bf16 v[{MB}:{MB+15}], v[{VF}:{VF+3}], v[12:15], 0")
    p("s_waitcnt lgkmcnt(0)")
    p(f"v_mfma_f32_32x32x16_bf16 v[{MB}:{MB+15}], v[{VF+4}:{VF+7}], v[16:19], v[{MB}:{MB+15}]")
    p("s_nop 11")
    for a in range(4): p(f"ds_write_b128 v29, v[{MB+4*a}:{MB+4*a+3}] offset:{32*a}")
    for u in range(16): p(f"ds_read_b32 v{MB+16+u}, v{GA+u}")
    p("s_mov_b32 exec_hi, 0xffff")
    p.label("L_pst")
    for e in range(8):
        if e % 2 == 0: p(f"s_waitcnt lgkmcnt({12 - 2*e})")
        p(f"v_add_f32 v{MB+16+2*e}, v{MB+16+2*e}, v{MB+16+2*e+1}")
        if e % 2:
            p(f"v_cvt_pk_bf16_f32 v{4+e//2}, v{MB+14+2*e}, v{MB+16+2*e}")
            p(f"v_min_u32 v{4+e//2}, -2, v{4+e//2}")
    p(f"buffer_store_dwordx4 v[4:7], v30, s[{S_WS}:{S_WS+3}], s{S_T+2} offen sc1")
    p(f"v_mov_b32 v8, s{S_C}")
    p("v_lshlrev_b32 v8, 2, v8")
    p("s_mov_b64 exec, 1")
    p(f"buffer_store_dword v{V_ONE}, v8, s[{S_WS}:{S_WS+3}], s{S_T+2} offen offset:1536 sc1")
    p.label("L_pdx")
    p("s_mov_b64 exec, -1")
    p.label("L_pdone")
    stamp(21)
    cinit_loads()
    p("s_waitcnt vmcnt(0)")
    p("s_branch L_setup")
    p.label("L_xwave")
    S_J, S_XA, S_XB, S_XM, S_TB = S_W, S_T+2, S_T+3, S_T+4, S_T+5
    p(f"s_sub_u32 s{S_J}, s{S_WAVE}, 4")
    p(f"s_lshl3_add_u32 s3, s{S_RG}, s{S_CP}")
    p(f"s_lshr_b32 s{S_FB}, s{S_J}, 1")
    p(f"s_lshl2_add_u32 s3, s{S_FB}, s3")
    p(f"s_mul_i32 s3, s3, 1664")
    p(f"s_and_b32 s{S_X}, s{S_J}, 1")
    p(f"s_mul_i32 s{S_X}, s{S_X}, 832")
    p(f"s_add_u32 s3, s3, s{S_X}")
    p(f"s_mul_i32 s{S_X}, s{S_J}, 832")
    p(f"s_add_u32 m0, s{S_X}, {IX2}")
    p(f"s_lshr_b32 s{S_X}, s2, 6")
    p(f"s_mul_i32 s{S_X}, s{S_X}, 3")
    p(f"s_add_u32 s{S_X}, s{S_X}, s{S_CP}")
    p(f"s_lshl2_add_u32 s{S_X}, s{S_X}, s{S_J}")
    p(f"s_mul_i32 s{S_X}, s{S_X}, {52*128}")
    p(f"s_add_u32 s{S_X}, s{S_X}, {(2496 - 4*52)*128}")
    p.wait0(lg=True)
    p(f"s_mov_b64 s[{S_IDX}:{S_IDX+1}], s[{KA}:{KA+1}]")
    p(f"s_mov_b64 s[{S_W1}:{S_W1+1}], s[{KA+8}:{KA+9}]")
    p("s_mov_b32 exec_hi, 0xfffff")
    p(f"buffer_load_dwordx4 v{V_L}, s[{S_IDX}:{S_IDX+3}], s3 offen{' nt' if cfg.nti else ''} lds")
    p("s_mov_b32 exec_hi, -1")
    p(f"s_mov_b64 s[{S_WCO}:{S_WCO+1}], s[{KA+6}:{KA+7}]")
    p(f"s_mov_b64 s[{S_BOUT}:{S_BOUT+1}], s[{KA+14}:{KA+15}]")
    srd(S_TAB, 2, 6400000)
    if cfg.etouch:
        p(f"s_cmp_eq_u32 s{S_CP}, 0")
        p("s_cbranch_scc1 L_noet")
        touch(160, S_X, (1 << 52) - 1)
        p("s_waitcnt vmcnt(1)")
        p.label("L_noet")
    p("v_lshrrev_b32 v1, 4, v0")
    p("v_and_b32 v2, 12, v0")
    p(f"s_mul_i32 s3, s{S_J}, 104")
    p(f"s_add_u32 s3, s3, {IX2}")
    p(f"v_add_u32 v2, s3, v2")
    p(f"s_movk_i32 s{S_X}, 416")
    p(f"v_mad_u32_u24 v3, v1, s{S_X}, v2")
    if cfg.bal:
        p(f"s_cmp_eq_u32 s{S_J}, 3")
        p(f"s_cselect_b32 s{S_X}, 104, 312")
        p(f"s_cselect_b32 s3, {13*104}, {20*104}")
        p(f"v_add_u32 v2, s3, v2")
        p(f"v_mad_u32_u24 v4, v1, s{S_X}, v2")
    else: p("v_add_u32 v4, 0x680, v3")
    p("v_and_b32 v1, 3, v0")
    p("v_lshlrev_b32 v5, 4, v1")
    p("v_bfe_u32 v1, v0, 3, 1")
    p("v_lshl_add_u32 v6, v1, 30, v5")
    p(f"s_mul_i32 s{S_XM}, s{S_J}, 7168")
    p(f"s_lshr_b32 s{S_TB}, s2, 4")
    p(f"s_lshl2_add_u32 s{S_TB}, s{S_TB}, s{S_J}")
    p(f"s_mul_i32 s{S_TB}, s{S_TB}, {46*128}")
    p(f"s_add_u32 s{S_TB}, s{S_TB}, {4992*128}")
    assert not cfg.etouch
    producer_index()
    p("s_waitcnt vmcnt(0)")
    p("s_barrier")
    for u in range(2):
        for Q in range(0, 6, 2): p(f"ds_read2_b32 v[{VT+7*u+u+Q}:{VT+7*u+u+Q+1}], v{3+u} offset0:{4*Q} offset1:{4*Q+4}")
        p(f"ds_read_b32 v{VT+8*u+6}, v{3+u} offset:96")
    stamp(1)
    p.vm.clear()
    assert cfg.xwin < 14
    p.wait0(lg=True)
    go_done = False; g0_done = False
    for Q in range(7):
        for u in range(2):
            n = 2*Q + u
            if n == cfg.xbar and not cfg.noprep:
                p(f"s_cmp_ge_u32 s{S_FB}, 26")
                p("s_cbranch_scc1 L_nobar")
                p("s_barrier")
                p("s_barrier")
                p.label("L_nobar")
            if n == cfg.xstart and n: p.wait(vm="x0")
            if n >= cfg.xwin:
                p.wait(vm=f"x{n - cfg.xwin}")
                if n - cfg.xwin == 2*cfg.gon + 1: arrive(C_GO); go_done = True
                if cfg.pre and n - cfg.xwin == 2*(cfg.gon - cfg.pre) + 1: arrive(C_G0); g0_done = True
            p(f"s_add_u32 m0, s{S_XM}, {XO + 4*7168*u + 1024*Q}")
            p(f"v_lshl_add_u32 v{VT+8*u+Q}, v{VT+8*u+Q}, 6, v{6 if Q == 6 else 5}")
            p.vmem(f"buffer_load_dwordx4 v{VT+8*u+Q}, s[{S_TAB}:{S_TAB+3}], 0 offen{' nt' if cfg.ntx else ''} lds", f"x{n}")
        for u, at in enumerate((cfg.lt0, cfg.lt1)):
            if at == Q and cfg.ltouch:
                touch(160, S_TB, (1 << 46) - 1); p.vm.issue("t")
                p(f"s_add_u32 s{S_TB}, s{S_TB}, {2944*128}")
    def late_touch():
        touch(160, S_TB, (1 << 46) - 1); p.vm.issue("t")
        p(f"s_add_u32 s{S_TB}, s{S_TB}, {2944*128}")
    cinit_loads()
    for _ in range(5): p.vm.issue("ci")
    if cfg.pre and not g0_done:
        p.wait(vm=f"x{2*(cfg.gon - cfg.pre)+1}")
        arrive(C_G0)
    if not go_done:
        p.wait(vm=f"x{2*cfg.gon+1}")
        arrive(C_GO)
    p.wait(vm="x13")
    arrive(C_XL)
    p.wait(vm="ci")
    for at in (cfg.lt0, cfg.lt1):
        if at == 7 and cfg.ltouch: late_touch()
    if cfg.ltouch and cfg.lt1 == 8: p(f"s_mov_b32 s{S_FB}, s{S_TB}")
    stamp(6)

    p.label("L_setup")
    if cfg.stamps or cfg.pst == 28: p(f"s_mov_b32 s{S_ST+27}, 0")
    p(f"s_setprio {cfg.prio_prep}")
    p.vm.clear(); p.lg.clear()
    AX, AT, CI, X0 = 0, 16, 32, 48
    Z = [74, 78]; PT = 82; ZL = 90
    XA = {1: 98, -3: 99, -1: 100}; WA = 101; SM = [102, 103, 104, 105]; MBX = 106; VMB = 110; VBO = 111
    RING = 112; RES = RING + 4*cfg.R
    WT = 112
    assert RES + 4*cfg.NRES <= 256
    NR = 4
    S_N, S_MB, S_O = S_T+7, S_T+9, S_T+11
    S_NR = S_T + 12
    p(f"s_and_b32 s{S_T+3}, s{S_WAVE}, 3")
    p(f"s_lshl_b32 s{S_T+2}, s{S_T+3}, 2")
    p(f"s_lshl_b32 s{S_T}, s{S_T+3}, 8")
    p(f"s_mov_b32 s{S_N}, 4")
    p(f"s_add_u32 s{S_T+2}, s{S_T+2}, 3")
    p(f"s_cmp_lt_u32 s{S_WAVE}, 4")
    p("s_cbranch_scc1 L_rowp")
    p(f"s_add_u32 s{S_T}, s{S_T}, {4*7168}")
    if cfg.bal:
        p(f"s_mov_b32 s{S_N}, 3")
        p(f"s_mul_i32 s{S_T+2}, s{S_T+3}, 3")
        p(f"s_add_u32 s{S_T+2}, s{S_T+2}, 70")
    else: p(f"s_add_u32 s{S_T+2}, s{S_T+2}, 64")
    p.label("L_rowp")
    p(f"s_lshl4_add_u32 s{S_T+2}, s{S_CP}, s{S_T+2}")
    p.label("L_setup2")
    p(f"s_mov_b32 s{S_NR}, s{S_N}")
    p("v_and_b32 v1, 31, v0")
    p("v_lshrrev_b32 v2, 5, v0")
    p(f"v_lshl_add_u32 v3, v1, 1, s{S_T}")
    p(f"v_lshl_add_u32 v{XA[1]}, v2, 6, v3")
    p("v_mul_u32_u24 v4, 0xc0, v2")
    p(f"v_sub_u32 v{XA[-3]}, v3, v4")
    p("v_lshlrev_b32 v4, 6, v2")
    p(f"v_sub_u32 v{XA[-1]}, v3, v4")
    p("v_mul_u32_u24 v4, 0x210, v2")
    p("v_lshl_add_u32 v4, v1, 4, v4")
    p(f"v_add_u32 v{WA}, {WO}, v4")
    for r in range(26): p(f"v_mov_b32 v{X0+r}, 0")
    for a in range(3):
        for h in range(2):
            p(f"v_lshlrev_b32 v{CI+4*a+2*h}, 16, v{CRAW+2*a+h}")
            p(f"v_and_b32 v{CI+4*a+2*h+1}, 0xffff0000, v{CRAW+2*a+h}")
    p(f"v_lshlrev_b32 v{CI+12}, 16, v{CRAW+6}")
    for r in range(13, 16): p(f"v_mov_b32 v{CI+r}, 0")
    p(f"v_lshlrev_b32 v{VBO}, 16, v{CRAW+7}")
    p("v_lshrrev_b32 v1, 3, v0")
    p("v_min_u32 v3, 1, v1")
    p("v_lshlrev_b32 v2, 9, v0")
    p(f"v_lshl_add_u32 v{VMB}, v3, 30, v2")
    p(f"s_lshl_b32 s{S_T+1}, s{S_RG}, 7")
    p(f"s_add_u32 s{S_T+1}, s{S_T+1}, s{S_T+2}")
    p(f"s_lshl_b32 s{S_O}, s{S_T+1}, 1")
    p(f"s_lshl_b32 s{S_T}, s{S_RG}, 10")
    p(f"s_add_u32 s{S_MB}, s{S_T+2}, s{S_T}")
    p(f"s_sub_u32 s{S_MB}, s{S_MB}, 3")
    p(f"s_lshl_b32 s{S_MB}, s{S_MB}, 2")
    p(f"v_mov_b32 v{ZL+7}, 0")
    p(f"s_cmp_ge_u32 s{S_WAVE}, 4")
    p("s_cbranch_scc1 L_xz")
    p("v_and_b32 v2, 7, v0")
    p(f"v_mul_u32_u24 v3, {BLK}, v1")
    p("v_lshl_add_u32 v3, v2, 4, v3")
    p("v_mul_u32_u24 v4, 0x210, v2")
    p(f"s_mul_i32 s{S_T}, s{S_C}, {24*528}")
    p(f"s_add_u32 s{S_T}, s{S_T}, {WO}")
    p(f"v_add_u32 v4, s{S_T}, v4")
    p("v_lshl_add_u32 v5, v1, 4, v4")
    p("v_cmp_eq_u32 vcc, 1, v1")
    p("v_add_u32 v6, 48, v5")
    p("v_subrev_u32 v7, 48, v5")
    p("v_cndmask_b32 v6, v5, v6, vcc")
    p("v_cmp_eq_u32 vcc, 4, v1")
    p(f"s_cmp_eq_u32 s{S_C}, 3")
    p(f"s_cselect_b32 s{S_T+1}, 4, 0")
    p("v_cndmask_b32 v6, v6, v7, vcc")
    p(f"v_and_b32 v7, s{S_T+1}, v2")
    p("v_lshl_add_u32 v7, v7, 28, v3")
    p("v_and_b32 v8, 31, v0")
    p("v_lshrrev_b32 v9, 5, v0")
    p(f"v_mul_u32_u24 v8, {BLK}, v8")
    p("v_lshl_add_u32 v8, v9, 2, v8")
    p(f"s_mul_i32 s{S_T}, s{S_C}, 384")
    p(f"s_add_u32 s{S_T}, s{S_T}, {WS_W}")
    p(f"s_and_b32 s{S_T+1}, s{S_CP}, {1 if cfg.wrot else 0}")
    p(f"s_mul_i32 s{S_T+2}, s{S_T+1}, 26624")
    for k in range(4):
        p(f"s_xor_b32 s{S_T+3+k}, s{S_T+2}, {26624*(k >> 1)}")
        p(f"s_add_u32 s{S_T+3+k}, s{S_T+3+k}, s{S_T}")
        if k & 1: p(f"s_add_u32 s{S_T+3+k}, s{S_T+3+k}, 13312")
    p(f"s_lshl_b32 s{S_T+2}, s{S_T+1}, 8")
    p(f"s_cmp_eq_u32 s{S_T+1}, 0")
    p("s_cselect_b64 vcc, -1, 0")
    p(f"v_add_u32 v12, s{S_T+2}, v5")
    p(f"s_xor_b32 s{S_T+2}, s{S_T+2}, 0x100")
    p("v_add_u32 v6, 0x180, v6")
    p("v_add_u32 v15, 0x80, v5")
    p(f"v_add_u32 v14, s{S_T+2}, v5")
    p("v_cndmask_b32 v13, v6, v15, vcc")
    p("v_cndmask_b32 v15, v15, v6, vcc")
    p("v_mov_b32 v10, 0")
    if cfg.pre:
        check(C_G0, 4, sleep=2)
        flags_load(192)
    check(C_GO, 4, sleep=2)
    stamp(22)
    p(f"s_mov_b32 s{S_T+13}, {WS_W}")
    if cfg.noprep: p("s_branch L_wload")
    if cfg.direct:
        if not cfg.pre:
            flags_load(192)
        flags_test()
        p("s_cbranch_scc1 L_wload")
        if cfg.stamps or cfg.pst == 28: p(f"s_add_u32 s{S_ST+27}, s{S_ST+27}, 100")
    p(f"s_cmp_lg_u32 s{S_C}, 0")
    p("s_cbranch_scc1 L_pw")
    p.label("L_probe")
    p(f"global_load_dword v11, v10, s[{S_DBG}:{S_DBG+1}] sc1")
    p(f"buffer_load_dword v9, v8, s[{S_WS}:{S_WS+3}], s{S_T+13} offen offset:1536 sc1")
    p("s_waitcnt vmcnt(0)")
    p("v_cmp_gt_u32 vcc, 26, v11")
    p(f"v_cmp_eq_u32 s[{S_FL}:{S_FL+1}], -1, v9")
    p("s_nop 1")
    p(f"s_or_b64 vcc, vcc, s[{S_FL}:{S_FL+1}]")
    p("s_cmp_eq_u64 vcc, 0")
    p("s_cbranch_scc1 L_wload")
    p.label("L_retry")
    if cfg.stamps or cfg.pst == 28: p(f"s_add_u32 s{S_ST+27}, s{S_ST+27}, 1")
    p(f"s_sleep {cfg.poll_sleep}")
    p(f"s_sub_u32 s{S_SPIN}, s{S_SPIN}, 1")
    p("s_cbranch_scc0 L_probe")
    p("s_endpgm")
    p.label("L_pw")
    check(C_FLAG, 1, sleep=2)
    p("s_branch L_wl2")
    p.label("L_wload")
    arrive(C_FLAG)
    p.label("L_wl2")
    stamp(2)
    for J in range(4):
        for Fi in range(3):
            r = WT + 4*(3*J + Fi)
            p.vmem(f"buffer_load_dwordx4 v[{r}:{r+3}], v{7 if Fi == 2 else 3}, s[{S_WS}:{S_WS+3}], s{S_T+3+J} offen offset:{128*Fi} sc1", f"w{J}{Fi}")
    first = True
    for J in range(4):
        for Fi in range(3):
            r = WT + 4*(3*J + Fi)
            p.wait(vm=f"w{J}{Fi}")
            p(f"ds_write_b128 v{12+J}, v[{r}:{r+3}] offset:{4224*Fi}")
            if first: p(f"v_max_u32 v9, v{r}, v{r+1}")
            else: p(f"v_max3_u32 v9, v{r}, v{r+1}, v9")
            p(f"v_max3_u32 v9, v{r+2}, v{r+3}, v9")
            first = False
    p("v_cmp_eq_u32 vcc, -1, v9")
    p("s_nop 1")
    p("s_cmp_eq_u64 vcc, 0")
    p("s_cbranch_scc0 L_retry")
    p.label("L_xz")
    check(C_XL, 4, sleep=cfg.idle_sleep)
    def x_read(r):
        p.lds(f"ds_read_u16_d16_hi v{X0+r}, v{XA[pi(r)-r]} offset:{1024*(r >> 2) + 64*(r & 3)}", f"x{r}")
    for r in range(26): x_read(r)
    def z_ops(n):
        ops = []
        for e in range(4):
            t = PT + 2*(e % 4)
            (a, b), (c, d) = S[8*n + 2*e], S[8*n + 2*e + 1]
            ops.append(("v", f"v_mul_f32 v{t}, v{X0+a}, v{X0+b}", (a, b)))
            ops.append(("v", f"v_mul_f32 v{t+1}, v{X0+c}, v{X0+d}", (c, d)))
        cv = [("v", f"v_cvt_pk_bf16_f32 v{Z[n % 2]+e}, v{PT+2*e}, v{PT+2*e+1}", ()) for e in range(4)]
        return ops[0:4] + cv[0:1] + ops[4:6] + cv[1:2] + ops[6:8] + cv[2:4]
    for o in z_ops(0):
        p.wait(lg=tuple(f"x{r}" for r in o[2]))
        p(o[1])
    for d in XA.values(): p(f"v_add_u32 v{d}, 0x1c00, v{d}")
    p.wait0(lg=True)
    p("s_barrier")
    if cfg.ltouch and cfg.lt1 == 8:
        p(f"s_cmp_lt_u32 s{S_WAVE}, 4")
        p("s_cbranch_scc1 L_go")
        touch(160, S_FB, (1 << 46) - 1)
    p.label("L_go")
    p("s_setprio 0")
    if cfg.flip:
        p(f"s_cmp_lt_u32 s{S_WAVE}, 4")
        p("s_cbranch_scc1 L_prio")
        p(f"s_setprio 1")
        p.label("L_prio")
    stamp(3)
    order = []
    for n in range(22):
        order.append(("X", n)); order.append(("T", n))
        if n == 14: order.append(("T", 22))
        if n == 18: order.append(("T", 23))
    fr_of = lambda k, n: (2*n if k == "X" else 2*n + 1) if n < 22 else n + 22
    nn = 46 - cfg.NRES
    assert nn % cfg.R == 0
    nonres = [int((u + 0.5)*46/nn) for u in range(nn)]
    wreg = {}; rr = 0
    for k in range(46):
        if k in nonres: wreg[k] = RING + 4*(nonres.index(k) % cfg.R)
        else: wreg[k] = RES + 4*rr; rr += 1
    def w_read(k):
        p.lds(f"ds_read_b128 v[{wreg[k]}:{wreg[k]+3}], v{WA} offset:{1056*fr_of(*order[k])}", f"w{k}")
    for k in range(46):
        if k not in nonres or nonres.index(k) < cfg.R: w_read(k)
    p.wait0(lg=True)
    stamp(5)
    def mfma(k):
        kind, n = order[k]
        zb = Z[n % 2] if n < 22 else ZL + 4*(n - 22)
        acc = AX if kind == "X" else AT
        cc = f"v[{acc}:{acc+15}]"
        if n == 0: cc = "0" if kind == "X" else f"v[{CI}:{CI+15}]"
        return f"v_mfma_f32_32x32x16_bf16 v[{acc}:{acc+15}], v[{wreg[k]}:{wreg[k]+3}], v[{zb}:{zb+3}], {cc}"
    lin_ops = []
    for u in range(8):
        a = LIN[min(2*u, 12)]; b = LIN[min(2*u + 1, 12)]
        lin_ops.append(("v", f"v_cvt_pk_bf16_f32 v{ZL+u}, v{X0+a}, v{X0+b}", (a, b)))
    def body(emit_mb):
        groups = [z_ops(n) for n in range(1, 22)] + [z_ops(0)]
        groups[10] = lin_ops[:7] + groups[10]
        flat = [(g, o) for g, ops in enumerate(groups) for o in ops]
        lastuse = {}
        for i, (g, o) in enumerate(flat):
            if g < 21:
                for r in o[2]: lastuse[r] = i
        for r in range(26): lastuse.setdefault(r, -1)
        for g, ops in enumerate(groups):
            mf = [kk for kk in range(46) if order[kk] in (("X", g), ("T", g))]
            if g == 14: mf.append(order.index(("T", 22)))
            if g == 18: mf.append(order.index(("T", 23)))
            items = []
            base = sum(len(x) for x in groups[:g])
            if g == 0:
                for r in range(26):
                    if lastuse[r] == -1: items.append(("x", r))
            for i, o in enumerate(ops):
                items.append(o)
                for r in range(26):
                    if lastuse[r] == base + i: items.append(("x", r))
            if g == 21:
                pos = [0, 0]
            else:
                n_it = len(items)
                pos = [2 + (j*n_it)//len(mf) for j in range(len(mf))]
            j = 0
            for i, it in enumerate(items + [None]):
                while j < len(mf) and pos[j] <= i:
                    kk = mf[j]
                    if g == 21 and j == 0: p("s_nop 1")
                    p.wait(lg=f"w{kk}")
                    p(mfma(kk))
                    if kk in nonres:
                        w_read(nonres[(nonres.index(kk) + cfg.R) % nn])
                    j += 1
                if it is None: break
                if it[0] == "x": x_read(it[1])
                else:
                    p.wait(lg=tuple(f"x{r}" for r in it[2]))
                    p(it[1])
            if g == 15: emit_mb()
        for k in range(NR - 1): p(f"v_mov_b32 v{SM[k]}, v{SM[k+1]}")
        for d in XA.values(): p(f"v_add_u32 v{d}, 0x1c00, v{d}")
        s0 = SM[NR-1]
        p(f"v_mul_f32 v{s0}, v{AX}, v{AT}")
        p(f"v_mul_f32 v{PT}, v{AX+1}, v{AT+1}")
        for r in range(2, 13):
            p(f"v_fmac_f32 v{s0 if r % 2 == 0 else PT}, v{AX+r}, v{AT+r}")
        p(f"s_sub_u32 s{S_N}, s{S_N}, 1")
        p(f"v_add_f32 v{s0}, v{s0}, v{PT}")
    def mb_loads():
        p(f"buffer_load_dwordx{NR} v[{MBX}:{MBX+NR-1}], v{VMB}, s[{S_WS}:{S_WS+3}], s{S_MB} offen sc1")
    def emit_mb():
        sk = L("nomb")
        p(f"s_cmp_lg_u32 s{S_N}, 1")
        p(f"s_cbranch_scc1 {sk}")
        mb_loads()
        p.label(sk)
    save = p.L; p.L = []
    body(lambda: None)
    st1 = list(p.lg.q)
    p.L = save
    p(".p2align 3")
    p.label("L_row")
    body(emit_mb)
    assert st1 == p.lg.q
    if cfg.stamps in (1, 2):
        for i in range(3): p(f"s_mov_b32 s{S_ST+23+i}, s{S_ST+24+i}")
        stamp(26)
    if cfg.flip:
        p(f"s_cmp_lg_u32 s{S_N}, {4 - cfg.flip}")
        p("s_cbranch_scc1 L_noflip")
        p("s_setprio 0")
        p.label("L_noflip")
    p(f"s_cmp_lg_u32 s{S_N}, 0")
    p("s_cbranch_scc1 L_row")
    p.label("L_mbw")
    p("s_waitcnt vmcnt(0)")
    if NR == 4:
        p(f"v_max3_u32 v1, v{MBX}, v{MBX+1}, v{MBX+2}")
        p(f"v_max_u32 v1, v1, v{MBX+3}")
    else: p(f"v_max_u32 v1, v{MBX}, v{MBX+1}")
    p("v_cmp_eq_u32 vcc, -1, v1")
    p("s_nop 1")
    p("s_cmp_eq_u64 vcc, 0")
    p("s_cbranch_scc1 L_mbok")
    p("s_sleep 1")
    mb_loads()
    p(f"s_sub_u32 s{S_SPIN}, s{S_SPIN}, 1")
    p("s_cbranch_scc0 L_mbw")
    p("s_endpgm")
    p.label("L_mbok")
    for k in range(NR): p(f"v_add_f32 v{SM[k]}, v{SM[k]}, v{MBX+k}")
    for ctl in ("quad_perm:[1,0,3,2] row_mask:0xf", "quad_perm:[2,3,0,1] row_mask:0xf", "row_half_mirror row_mask:0xf",
                "row_mirror row_mask:0xf", "row_bcast:15 row_mask:0xa", "row_bcast:31 row_mask:0xc"):
        if NR == 2: p("s_nop 0")
        for k in range(NR): p(f"v_add_f32_dpp v{SM[k]}, v{SM[k]}, v{SM[k]} {ctl} bank_mask:0xf")
    for k in range(NR): p(f"v_add_f32 v{SM[k]}, v{SM[k]}, v{VBO}")
    p(f"v_cvt_pk_bf16_f32 v2, v{SM[0]}, v{SM[1]}")
    p(f"v_cvt_pk_bf16_f32 v3, v{SM[2]}, v{SM[3]}")
    p(f"v_mov_b32 v1, s{S_O}")
    p("s_mov_b32 exec_lo, 0")
    p("s_mov_b32 exec_hi, 0x80000000")
    if cfg.bal:
        p(f"s_cmp_eq_u32 s{S_NR}, 4")
        p("s_cbranch_scc1 L_st4")
        p(f"global_store_short_d16_hi v1, v3, s[{S_OUT}:{S_OUT+1}]")
        p(f"s_cmp_eq_u32 s{S_NR}, 1")
        p("s_cbranch_scc1 L_std")
        p(f"global_store_short v1, v3, s[{S_OUT}:{S_OUT+1}] offset:-2")
        p(f"global_store_short_d16_hi v1, v2, s[{S_OUT}:{S_OUT+1}] offset:-4")
        p("s_branch L_std")
        p.label("L_st4")
    p(f"global_store_dwordx2 v1, v[2:3], s[{S_OUT}:{S_OUT+1}] offset:-6")
    p.label("L_std")
    stamps_out()
    p.label("L_end")
    p("s_endpgm")

    p.vm.q = dnn_vm; p.lg.clear()
    p(".p2align 6")
    p.label("L_dnn")
    ACC = lambda t, q: 8*t + 4*q
    BF = lambda t: 56 + 4*t
    AR = lambda f, q: 84 + 8*(f % 2) + 4*q
    IDX = lambda f: 100 + f
    VO = lambda u: 128 + u
    V_B, V_A, V_CH, V_LANE, V_G8 = [130, 131, 132], [133, 134, 135], 136, 137, 138
    RAW = 140; RAW2 = 200
    S_SB, S_M0, S_AM = S_T+2, S_T+3, S_T+4
    if cfg.probe:
        p("s_cmp_ge_u32 s2, 8")
        p("s_cbranch_scc1 L_pr1")
        p("s_lshl_b32 s90, s2, 2")
        p("v_mov_b32 v1, s90")
        p("v_mov_b32 v2, s96")
        p(f"global_store_dword v1, v2, s[{S_DBG}:{S_DBG+1}] offset:8 sc1")
        p("s_waitcnt vmcnt(0)")
        p.label("L_pr1")
    srd(S_B1, 10, 1664)
    srd(S_TAB, 2, 6400000)
    srd(S_W2, 12, 1664)
    srd(S_WS, None, WS_END)
    if cfg.pxa >= 0:
        p("s_getreg_b32 s91, hwreg(HW_REG_XCC_ID)")
        p("s_and_b32 s91, s91, 15")
        p(f"s_cmp_lg_u32 s2, {cfg.pxa}")
        p("s_cbranch_scc1 L_pxa")
        p("v_mov_b32 v1, 0")
        p("v_mov_b32 v2, s91")
        p(f"global_store_dword v1, v2, s[{S_DBG}:{S_DBG+1}] offset:8 sc1")
        p("s_waitcnt vmcnt(0)")
        p.label("L_pxa")
    if cfg.plat:
        sr_, off = {1: (S_TAB, 3000320), 2: (S_W1, 1300096), 3: (S_WS, 4096), 4: (S_TAB, 5000320)}[cfg.plat]
        p("s_waitcnt vmcnt(0)")
        p(f"v_mov_b32 v1, {off}")
        p(f"buffer_load_dword v2, v1, s[{sr_}:{sr_+3}], 0 offen offset:2048")
        p("s_waitcnt vmcnt(0)")
        p("s_lshl_b32 s90, s2, 7")
        p("s_memrealtime s[94:95]")
        p("s_waitcnt lgkmcnt(0)")
        p(f"buffer_load_dword v2, v1, s[{sr_}:{sr_+3}], s90 offen offset:4)".replace(")", ""))
        p("s_waitcnt vmcnt(0)")
        p("s_memrealtime s[92:93]")
        p("s_waitcnt lgkmcnt(0)")
        p("s_sub_u32 s92, s92, s94")
        p("s_mul_i32 s92, s92, 10")
        p("s_add_u32 s92, s92, s96")
    stamp(10)
    p(f"s_mov_b32 s{S_SPIN}, 0x40000")
    p(f"s_mul_i32 s{S_COL}, s{S_CP}, 416")
    S_M1, S_WR = S_T+5, S_T+6
    p(f"s_mov_b32 s{S_SB}, s{S_COL}")
    p(f"s_and_b32 s{S_WR}, s{S_WAVE}, 3")
    p(f"s_lshl_b32 s{S_T}, s{S_WAVE}, 1")
    p(f"s_sub_u32 s{S_T}, s{S_T}, 4")
    p(f"s_add_u32 s{S_T+1}, s{S_T}, 1")
    p(f"s_cmp_lt_u32 s{S_WAVE}, 4")
    p(f"s_cselect_b32 s{S_M0}, s{S_WAVE}, s{S_T}")
    p(f"s_cselect_b32 s{S_M1}, 12, s{S_T+1}")
    p(f"s_lshl_b32 s{S_M0}, s{S_M0}, 10")
    p(f"s_lshl_b32 s{S_M1}, s{S_M1}, 10")
    p(f"s_lshl_b32 s{S_AM}, s{S_WAVE}, 10")
    p(f"s_add_u32 s{S_AM}, s{S_AM}, {BSZ}")
    p(f"s_lshr_b32 s{S_T}, s{S_WAVE}, 2")
    p(f"s_mul_i32 s{S_T}, s{S_T}, 224")
    p(f"s_add_u32 s{S_COL}, s{S_COL}, s{S_T}")
    p(f"s_movk_i32 s{S_T+1}, 1248")
    p(f"s_movk_i32 s{S_T+7}, 6656")
    for u in range(2):
        p(f"v_add_u32 v3, s{(S_M0, S_M1)[u]}, v{V_L}")
        p("v_lshlrev_b32 v4, 4, v3")
        p("v_mul_hi_u32_u24 v4, 0x9d89e, v4")
        p("v_bfe_u32 v5, v4, 2, 1")
        p("v_bfe_i32 v6, v4, 3, 1")
        p("v_add_u32 v5, v5, v6")
        p(f"v_mad_i32_i24 v5, v5, s{S_T+7}, v3")
        p(f"v_mad_u32_u24 v{VO(u)}, v4, s{S_T+1}, v5")
    p("v_lshrrev_b32 v1, 4, v0")
    p(f"s_add_u32 s{S_T+1}, s{S_T}, {IDXO}")
    p(f"v_lshl_add_u32 v{V_G8}, v1, 3, s{S_T+1}")
    p("v_lshrrev_b32 v2, 2, v0")
    p(f"v_mul_u32_u24 v2, 104, v2")
    p(f"s_add_u32 s{S_W}, s{S_W}, {IDXO}")
    p(f"v_add_u32 v139, s{S_W}, v2")
    p("v_lshrrev_b32 v2, 5, v0")
    p("v_mul_u32_u24 v3, 3, v2")
    p("v_xor_b32 v3, v3, v0")
    p("v_and_b32 v3, 3, v3")
    p(f"v_lshlrev_b32 v{V_CH}, 4, v3")
    p("v_bfe_u32 v3, v0, 3, 1")
    p("v_mul_u32_u24 v3, 3, v3")
    p("v_xor_b32 v3, v3, v1")
    p("v_and_b32 v4, 15, v0")
    p("v_lshlrev_b32 v4, 6, v4")
    p("v_lshl_add_u32 v3, v3, 4, v4")
    p(f"s_and_b32 s{S_T+1}, s{S_WAVE}, 3")
    p(f"s_lshl_b32 s{S_T+1}, s{S_T+1}, 11")
    p(f"s_add_u32 s{S_T+1}, s{S_T+1}, {BSZ}")
    p(f"v_add_u32 v{V_A[0]}, s{S_T+1}, v3")
    p("v_bfe_u32 v3, v0, 2, 3")
    p("v_lshl_add_u32 v2, v2, 4, v3")
    p("v_mul_u32_u24 v2, 0x1a0, v2")
    p("v_and_b32 v3, 3, v0")
    p("v_lshl_add_u32 v2, v3, 3, v2")
    p(f"v_add_u32 v{V_B[0]}, s{S_T}, v2")
    for k in (1, 2):
        p(f"v_add_u32 v{V_A[k]}, {3*k*SLOT}, v{V_A[0]}")
        p(f"v_add_u32 v{V_B[k]}, {3*k*SLOT}, v{V_B[0]}")
    p(f"v_mov_b32 v{V_LANE}, v0")
    p.wait(vm="idx")
    stamp(1)
    if cfg.dbench:
        p("s_mov_b32 s3, 0")
        p.label("L_again")
    for m in range(6):
        p.lds(f"ds_read2_b64 v[{100+4*m}:{103+4*m}], v139 offset0:{2*m} offset1:{2*m+1}", f"ix{m}")
    p.lds("ds_read_b64 v[124:125], v139 offset:96", "ix6")
    def a_dma(f):
        p.wait(lg=f"ix{f >> 2}")
        p(f"s_add_u32 m0, s{S_AM}, {(f % RB)*SLOT}")
        p(f"v_lshl_add_u32 v{IDX(f)}, v{IDX(f)}, 6, v{V_CH}")
        p.vmem(f"buffer_load_dwordx4 v{IDX(f)}, s[{S_TAB}:{S_TAB+3}], 0 offen{' nt' if f < cfg.nta else ''} lds", f"F{f}")
    def b_dma(f, u, T):
        if u == 1:
            if f: p(f"s_add_u32 s{S_SB}, s{S_SB}, 53248")
            sk = L("np")
            if T != 6:
                if T == 0:
                    p(f"s_cmp_ge_u32 s{S_WAVE}, 4")
                    p(f"s_cselect_b32 s{S_X}, {f & 3}, s{S_WR}")
                    p(f"s_cmp_lg_u32 s{S_X}, {f & 3}")
                else: p(f"s_cmp_lg_u32 s{S_WR}, {f & 3}")
                p(f"s_cbranch_scc1 {sk}")
            p(f"s_add_u32 m0, s{S_M1}, {(f % RB)*SLOT}")
            p("s_nop 0")
            p(f"buffer_load_dwordx4 v{VO(1)}, s[{S_W1}:{S_W1+3}], s{S_SB} offen lds")
            if T == 6: p.vm.issue(f"F{f}")
            else: p.label(sk)
        else:
            p(f"s_add_u32 m0, s{S_M0}, {(f % RB)*SLOT}")
            p("s_nop 0")
            p.vmem(f"buffer_load_dwordx4 v{VO(0)}, s[{S_W1}:{S_W1+3}], s{S_SB} offen lds", f"F{f}")
    def fill(f, T): a_dma(f); b_dma(f, 1, T); b_dma(f, 0, T)
    BWO = IDXO
    p(f"s_cmp_ge_u32 s{S_WAVE}, {0 if cfg.dbench else 2}")
    p("s_cbranch_scc1 L_nobw")
    p(f"s_mul_i32 s{S_X}, s{S_CP}, 416")
    p(f"s_cmp_eq_u32 s{S_WAVE}, 0")
    p(f"s_cselect_b64 s[{S_W2}:{S_W2+1}], s[{S_B1}:{S_B1+1}], s[{S_W2}:{S_W2+1}]")
    p(f"s_mov_b32 m0, s{S_W}")
    p("s_mov_b64 exec, 0xfffffff")
    p("s_waitcnt lgkmcnt(0)")
    p(f"buffer_load_dwordx4 v{V_L}, s[{S_W2}:{S_W2+3}], s{S_X} offen lds")
    p("s_mov_b64 exec, -1")
    p.label("L_nobw")
    if cfg.sw < 26:
        p(f"v_lshlrev_b32 v{V_C}, 2, v{V_LANE}")
        p(f"v_add_u32 v{V_C}, {IDXO + 2*1664}, v{V_C}")
        p(f"v_mov_b32 v{V_ONE}, 1")
        p(f"s_cmp_lg_u32 s{S_WAVE}, 2")
        p("s_cbranch_scc1 L_noz")
        p(f"v_mov_b32 v{V_POLL}, 0")
        p("s_waitcnt lgkmcnt(0)")
        p(f"ds_write_b32 v{V_C}, v{V_POLL}")
        p("s_waitcnt lgkmcnt(0)")
        p.label("L_noz")
    def lo(f): return (f % RB)//3, ((f % RB) % 3)*SLOT
    def b_read1(f, t, r2):
        k, off = lo(f)
        p.lds(f"ds_read_b64_tr_b16 v[{BF(t)+2*r2}:{BF(t)+2*r2+1}], v{V_B[k]} offset:{off + 32*t + 3328*r2}", f"b{f}_{t}")
    def a_read(f):
        k, off = lo(f)
        for q in range(2):
            p.lds(f"ds_read_b128 v[{AR(f, q)}:{AR(f, q)+3}], v{V_A[k]} offset:{off + 1024*q}", f"a{f}")
    p(f"s_cmp_ge_u32 s{S_WAVE}, 4")
    p("s_cbranch_scc1 L_dnn6")
    W2R = lambda t, r: 170 + 4*t + r
    def w2_unpack():
        return [x for t in range(7) for h in range(2) for x in
                (f"v_lshlrev_b32 v{W2R(t,2*h)}, 16, v{RAW2+2*t+h}", f"v_and_b32 v{W2R(t,2*h+1)}, 0xffff0000, v{RAW2+2*t+h}")]
    vm0, lg0 = list(p.vm.q), list(p.lg.q)
    def dnn_main(T):
        p.vm.q, p.lg.q = list(vm0), list(lg0)
        fill(0, T)
        fill(1, T)
        p.wait(vm="F0")
        p("s_barrier")
        stamp(12)
        for t in range(T):
            p.lds(f"ds_read_b64 v[{RAW+2*t}:{RAW+2*t+1}], v{V_G8} offset:{32*t}", "bias")
        a_read(0)
        for t in range(T):
            for r2 in range(2): b_read1(0, t, r2)
        p.wait(lg="bias")
        for t in range(T):
            for h in range(2):
                p(f"v_lshlrev_b32 v{ACC(t,0)+2*h}, 16, v{RAW+2*t+h}")
                p(f"v_and_b32 v{ACC(t,0)+2*h+1}, 0xffff0000, v{RAW+2*t+h}")
        for f in range(2, cfg.look): fill(f, T)
        p.wait(vm=tuple(f"F{k}" for k in range(cfg.barp + 1)))
        p("s_barrier")
        if T == 6 and cfg.prio_hi: p(f"s_setprio {cfg.prio_hi}")
        stamp(2)
        nxt = cfg.look
        w2ops = w2_unpack()
        free = -1; landed = cfg.barp
        for f in range(26):
            todo = []
            soft = f > cfg.sw and f <= 23
            top = f < cfg.early or (cfg.dpos == 4 and T == 6) or (cfg.dpos == 1 and T == 7)
            lim = (f - 1 if soft and not top else free) + RB
            nfill = 2 if (cfg.cmask >> f & 1 if cfg.cmask else cfg.catch0 <= f < cfg.catch0 + cfg.catch) else 1
            if f >= cfg.b2: nfill = (2 if (f % 2 == 0) == ((T == 6) == (cfg.dpos == 4)) else 0)
            for _ in range(nfill):
                if nxt < 26 and nxt <= lim:
                    todo += [(a_dma, (nxt,)), (b_dma, (nxt, 1, T)), (b_dma, (nxt, 0, T))]; nxt += 1
            if cfg.nodma and f >= 4:
                keep = []
                for fn, ar in todo:
                    if (fn is a_dma and cfg.nodma & 1) or (fn is b_dma and cfg.nodma & 2): continue
                    keep.append((fn, ar))
                todo[:] = keep
            n_it = len(todo)
            if f < cfg.early: at = [-1]*n_it
            elif cfg.dpos == 0: at = list(range(n_it))
            elif cfg.dpos == 1: at = [-1]*n_it if T == 7 else [T-1]*n_it
            elif cfg.dpos == 2: at = [(2*i + (T == 6)) if n_it <= 3 else i for i in range(n_it)]
            elif cfg.dpos == 3: at = [0]*n_it if T == 7 else [T-1]*n_it
            elif cfg.dpos == 4: at = [T-1]*n_it if T == 7 else [-1]*n_it
            elif cfg.dpos == 5: at = [i//(2 if n_it > 3 else 1) for i in range(n_it)] if T == 7 else [3 + i//(2 if n_it > 3 else 1) for i in range(n_it)]
            if soft and not top: at = [min(max(a, cfg.chk + i*(cfg.dpos in (0, 2))), T-1) for i, a in enumerate(at)]
            assert f == 25 or f + 1 <= landed
            def drain(t):
                while todo and at[0] <= t:
                    at.pop(0); fn, ar = todo.pop(0); fn(*ar)
            drain(-1)
            for t in range(T):
                p.wait(lg=(f"b{f}_{t}", f"a{f}"))
                b = f"v[{BF(t)}:{BF(t)+3}]"
                a0, a1 = ACC(t, 0), ACC(t, 1)
                c1 = a0 if f == 0 else a1
                p(f"v_mfma_f32_16x16x32_bf16 v[{a1}:{a1+3}], {b}, v[{AR(f,1)}:{AR(f,1)+3}], v[{c1}:{c1+3}]")
                if t and f < 25: b_read1(f+1, t-1, 1)
                elif t == 0 and f: b_read1(f, T-1, 1)
                p(f"v_mfma_f32_16x16x32_bf16 v[{a0}:{a0+3}], {b}, v[{AR(f,0)}:{AR(f,0)+3}], v[{a0}:{a0+3}]")
                if f < 25: b_read1(f+1, t, 0)
                if t == cfg.arp and f < 25: a_read(f + 1)
                if soft and t == cfg.chk - 2: poll_issue(4*(f-1))
                if soft and t == cfg.chk:
                    check(4*(f-1), 8, issued=True)
                    free = f - 1; landed = f + 2
                drain(t)
                if f == 21:
                    for tt in ([t] if t < T - 1 else range(t, 7)):
                        p.lds(f"ds_read_b64 v[{RAW2+2*tt}:{RAW2+2*tt+1}], v{V_G8} offset:{1664 + 32*tt}", "w2")
                if cfg.w2early and f in (23, 24):
                    if f == 23 and t == 0: p.wait(lg="w2")
                    for _ in range(3):
                        if w2ops: p(w2ops.pop(0))
            assert not todo
            if f >= cfg.sw:
                if f <= 22:
                    assert nxt > f + 3
                    p.wait(vm=tuple(f"F{k}" for k in range(f + 4)))
                    arrive(4*f)
            elif f <= cfg.lb and (f + 1) % cfg.barp == 0 and (f < cfg.b2 or f % 2):
                last = min(f + 1 + cfg.barp + (f + 1 == cfg.sw or f + 1 >= cfg.b2), 25) if f < cfg.lb else 25
                assert nxt > last
                p.wait(vm=tuple(f"F{k}" for k in range(last + 1)))
                if not cfg.nobar: p("s_barrier")
                free = f; landed = last
            if f == cfg.lb and cfg.tailprio is not None and T == cfg.tailprio: p("s_setprio 1")
            if f % 4 == 0 and (not cfg.dbench or f in (8, 20)): stamp(14 + f//4)
        assert nxt == 26 and not (cfg.w2early and w2ops)
    dnn_main(7)
    p("s_branch L_gelu")
    p(".p2align 6")
    p.label("L_dnn6")
    dnn_main(6)
    p.label("L_gelu")
    if cfg.dbench:
        p("s_barrier")
        p(f"s_mul_i32 s{S_SB}, s{S_CP}, 416")
        p("s_add_u32 s3, s3, 1")
        p("s_cmp_lt_u32 s3, 2")
        p("s_cbranch_scc1 L_again")
    stamp(3)
    p("v_mov_b32 v98, 0")
    p(f"global_load_dword v99, v98, s[{S_DBG}:{S_DBG+1}] sc1")
    if not cfg.w2early:
        p.wait0(vm=True)
        for x in w2_unpack(): p(x)
    k0 = -2.0*math.sqrt(2.0/math.pi)*math.log2(math.e)
    T1, T2, SUM, VC = 56, 64, 92, 72
    P = lambda a: f"v[{a}:{a+1}]"
    for r, c in enumerate((k0*0.044715, k0)):
        for h in range(2): p(f"v_mov_b32 v{VC+2*r+h}, {f2h(c)}")
    for r in range(4): p(f"v_mov_b32 v{SUM+r}, 0")
    for t in range(7):
        if t == 6:
            p(f"s_cmp_ge_u32 s{S_WAVE}, 4")
            p("s_cbranch_scc1 L_gelu6")
        x = ACC(t, 0)
        if cfg.pk:
            for r in range(0, 8, 2): p(f"v_pk_mul_f32 {P(T1+r)}, {P(x+r)}, {P(x+r)}")
            for r in range(0, 8, 2): p(f"v_pk_fma_f32 {P(T1+r)}, {P(T1+r)}, {P(VC)}, {P(VC+2)}")
            for r in range(0, 8, 2): p(f"v_pk_mul_f32 {P(T1+r)}, {P(T1+r)}, {P(x+r)}")
            for r in range(8): p(f"v_exp_f32 v{T1+r}, v{T1+r}")
            for r in range(0, 8, 2): p(f"v_pk_mul_f32 {P(T2+r)}, {P(x+r)}, {P(W2R(t, r & 3))}")
            for r in range(0, 8, 2): p(f"v_pk_add_f32 {P(T1+r)}, {P(T1+r)}, 1.0 op_sel_hi:[1,0]")
            for r in range(8): p(f"v_rcp_f32 v{T1+r}, v{T1+r}")
            for r in (0, 4, 2, 6): p(f"v_pk_fma_f32 {P(SUM+2*(r >> 2))}, {P(T1+r)}, {P(T2+r)}, {P(SUM+2*(r >> 2))}")
        else:
            for r in range(8): p(f"v_mul_f32 v{T1+r}, v{x+r}, v{x+r}")
            for r in range(8): p(f"v_fma_f32 v{T1+r}, v{T1+r}, v{VC}, v{VC+2}")
            for r in range(8): p(f"v_mul_f32 v{T1+r}, v{T1+r}, v{x+r}")
            for r in range(8): p(f"v_exp_f32 v{T1+r}, v{T1+r}")
            for r in range(8): p(f"v_mul_f32 v{T2+r}, v{x+r}, v{W2R(t, r & 3)}")
            for r in range(8): p(f"v_add_f32 v{T1+r}, 1.0, v{T1+r}")
            for r in range(8): p(f"v_rcp_f32 v{T1+r}, v{T1+r}")
            for r in range(8): p(f"v_fmac_f32 v{SUM+2*(r >> 2)+(r & 1)}, v{T1+r}, v{T2+r}")
    p.label("L_gelu6")
    p(f"v_add_f32 v{SUM}, v{SUM}, v{SUM+1}")
    p(f"v_add_f32 v{SUM+2}, v{SUM+2}, v{SUM+3}")
    p(f"v_and_b32 v84, 15, v{V_LANE}")
    p(f"v_lshrrev_b32 v85, 5, v{V_LANE}")
    p(f"v_permlane32_swap_b32 v{SUM}, v{SUM+2}")
    p("v_lshl_add_u32 v84, v85, 4, v84")
    p(f"v_add_f32 v{SUM}, v{SUM}, v{SUM+2}")
    p(f"v_bfe_u32 v85, v{V_LANE}, 4, 1")
    p(f"v_mov_b32 v{SUM+1}, v{SUM}")
    p("v_lshlrev_b32 v84, 2, v84")
    p("v_lshl_add_u32 v84, v85, 30, v84")
    p(f"v_permlane16_swap_b32 v{SUM}, v{SUM+1}")
    p(f"s_lshl2_add_u32 s{S_T}, s{S_RG}, s{S_CP}")
    p(f"v_add_f32 v{SUM}, v{SUM}, v{SUM+1}")
    p(f"s_lshl3_add_u32 s{S_T}, s{S_T}, s{S_WAVE}")
    p(f"s_lshl_b32 s{S_T}, s{S_T}, 7")
    p(f"v_min_u32 v{SUM}, -2, v{SUM}")
    if cfg.noprep or cfg.dbench: p("s_branch L_pub")
    p.label("L_dflag")
    p("s_waitcnt vmcnt(0)")
    p(f"v_readfirstlane_b32 s{S_X}, v99")
    p(f"s_cmp_ge_u32 s{S_X}, 26")
    p("s_cbranch_scc1 L_pub")
    p(f"global_load_dword v99, v98, s[{S_DBG}:{S_DBG+1}] sc1")
    p("s_sleep 4")
    p(f"s_sub_u32 s{S_SPIN}, s{S_SPIN}, 1")
    p("s_cbranch_scc0 L_dflag")
    p("s_endpgm")
    p.label("L_pub")
    p(f"buffer_store_dword v{SUM}, v84, s[{S_WS}:{S_WS+3}], s{S_T} offen sc1")
    stamp(4)
    if cfg.probe:
        p("s_cmp_lg_u32 s2, 0")
        p("s_cbranch_scc1 L_pr2")
        p(f"v_lshlrev_b32 v1, 2, v{V_LANE}")
        p(f"global_load_dword v2, v1, s[{S_DBG}:{S_DBG+1}] offset:8 sc1")
        p("s_waitcnt vmcnt(0)")
        for i in range(8): p(f"v_readlane_b32 s{80+i}, v2, {i}")
        p("s_mov_b32 s90, s80"); p("s_mov_b32 s91, s80")
        for i in range(1, 8):
            p(f"s_min_u32 s90, s90, s{80+i}"); p(f"s_max_u32 s91, s91, s{80+i}")
        if cfg.probe == 1: p("s_sub_u32 s90, s91, s90")
        else: p(f"s_sub_u32 s90, s{80+cfg.probe-2}, s90")
        p("s_mul_i32 s90, s90, 20")
        p("s_min_u32 s90, s90, 20000")
        p("s_memrealtime s[92:93]"); p("s_waitcnt lgkmcnt(0)")
        p("s_add_u32 s92, s92, s90")
        p.label("L_pr")
        p("s_memrealtime s[94:95]"); p("s_waitcnt lgkmcnt(0)")
        p("s_cmp_lt_u32 s94, s92")
        p("s_cbranch_scc1 L_pr")
        p.label("L_pr2")
    stamps_out()
    p("s_endpgm")

    p(".p2align 6")
    p(".type gather_table,@object")
    p.label("gather_table")
    zt = P_Z - PS
    for role in range(2):
        for lane in range(64):
            s, half = lane >> 1, lane & 1
            ad = []
            for e in range(8):
                pr = slot_pair(s, half, e) if s < (24 if role == 0 else 22) else None
                at = (lambda j, k: P_D1 - PS + k*144 + j*4) if role == 0 else (lambda j, k: P_W1 - PS + (j*26 + k)*2)
                if pr is None: ad += [zt, zt]
                elif pr[1] is None: ad += [at(pr[0], 26), zt]
                elif pr[0] == pr[1] or norm(pr) == (24, 25): ad += [at(*pr), zt]
                else: ad += [at(pr[0], pr[1]), at(pr[1], pr[0])]
            p(".short " + ", ".join(str(a) for a in ad))
    p(".size gather_table, 4096")
    return p

def header():
    return """; xDeepFM (CIN + DNN) forward, one launch, 256 workgroups (S1).
; Kernarg: idx, table, ws_cin, w_cin_out, w_dnn1, b_dnn1, w_dnn2, b_out, out, debug, ws
; @launch grid=(256,1,1) block=(512,1,1) lds=%d
.amdgcn_target "amdgcn-amd-amdhsa--gfx950"
.text
""" % LDS_SIZE
def footer():
    nv = 256
    return f""".section .rodata,"a"
.p2align 6
.amdhsa_kernel {NAME}
  .amdhsa_next_free_vgpr {nv}
  .amdhsa_next_free_sgpr 102
  .amdhsa_accum_offset {nv}
  .amdhsa_group_segment_fixed_size 0
  .amdhsa_kernarg_size 88
  .amdhsa_user_sgpr_count 2
  .amdhsa_user_sgpr_kernarg_segment_ptr 1
  .amdhsa_system_sgpr_workgroup_id_x 1
  .amdhsa_float_denorm_mode_32 3
.end_amdhsa_kernel
"""
if __name__ == "__main__":
    out = sys.argv[1]
    for a in sys.argv[2:]:
        k, v = a.split("=")
        setattr(cfg, k, type(getattr(cfg, k))(int(v)))
    open(out, "w").write(header() + build().text() + footer())
```

```python
import sys, struct, math
from asmlib import *
from slots import *

NAME = "standalone__deep_cross_xdeepfm__recsys_kernel"
class Cfg:
    stamps = 0
    NRES = 31
    R = 3
    prio_prep = 3
    prio_hi = 0
    poll_sleep = 2
    idle_sleep = 1
    gon = 4
    bal = 0
    lt0 = 2
    lt1 = 5
    early = 4
    look = 3
    cmask = 0
    catch0 = 4
    catch = 4
    etouch = 0
    dtouch = 1
    mtouch = 1
    ttouch = 0
    xwin = 4
    pfcode = 1
    flip = 2
    w2early = 1
    dpos = 4
    ltouch = 0
    pk = 1
    ctouch = 1
    wrot = 1
    direct = 1
    w3last = 1
    ntx = 0
    nta = 0
    nti = 0
    pre = 0
    pst = -1
    pcyc = 0
    pxa = -1
    plat = 0
    wsoff = 0
    dwarm = 0
    pwg = 0
    pwave = 0
    probe = 0
    dbench = 0
    nodma = 0
    nobar = 0
    lb = 21
    tailprio = 0
    b2 = 26
    sw = 26
    chk = 3
    barp = 1
    arp = 1
    noprep = 0
    clrpos = 1
    xstart = 0
    xbar = 4
    pdelay = 1
    hold = 0
cfg = Cfg()

LDS_SIZE = 163840
XO = 0
WO = 8*7168
PS = WO + 96*528
P_W3 = PS; P_M3T = PS + 36864; P_D1 = PS + 38912; P_W1 = PS + 43520; P_Z = PS + 45568; P_DUM = PS + 45824
CO = LDS_SIZE - 512
IX2 = PS + 46080
assert P_DUM + 256 <= CO
C_PA, C_PB, C_XL, C_FLAG, C_GO, C_G0, C_PI = 0, 4, 8, 12, 16, 20, 24
RB = 7
BSZ = 13312
SLOT = BSZ + 8192
IDXO = RB*SLOT
assert IDXO + 8*1664 == LDS_SIZE
MBOX = 0; WS_W = 131072; BLK = 1664; WS_END = WS_W + 26*BLK; WS_STAMP = 1 << 20
S_IDX, S_TAB, S_W1, S_WCIN, S_WCO, S_B1, S_W2, S_WS = 4, 8, 12, 16, 20, 24, 28, 32
S_OUT, S_DBG, S_BOUT = 36, 38, 40
S_WAVE, S_RG, S_CP, S_FB, S_COL, S_W = 42, 43, 44, 45, 46, 47
S_PC, S_SPIN, S_X = 48, 50, 51
KA = 52
S_T = 52
S_ST = 70
V_C, V_ONE, V_POLL, V_L = 162, 163, 164, 165
FRM = "0x20000"

def f2h(x): return "0x%08x" % struct.unpack("<I", struct.pack("<f", x))[0]

def build():
    p = Prog()
    lab = [0]
    def L(n):
        lab[0] += 1
        return f"L_{n}_{lab[0]}"
    def stamp(i):
        if cfg.pst == i:
            p("s_memtime s[92:93]" if cfg.pcyc else "s_memrealtime s[92:93]")
            p.wait0(lg=True)
        if cfg.stamps and (cfg.stamps != 3 or i == 8):
            p(f"s_memrealtime s[68:69]" if cfg.stamps != 2 or i == 8 else "s_memtime s[68:69]")
            p.wait0(lg=True)
            if cfg.stamps != 2 or i == 8: p(f"s_mov_b32 s{S_ST+i}, s68")
            else:
                p("s_sub_u32 s68, s68, s100")
                p("s_lshr_b32 s68, s68, 4")
                p(f"s_add_u32 s{S_ST+i}, s68, s{S_ST}")
    def stamps_out():
        if cfg.pst >= 0:
            stamp(8)
            sk = L("npr"); lp = L("pr")
            p(f"s_cmp_lg_u32 s2, {cfg.pwg}")
            p(f"s_cbranch_scc1 {sk}")
            p(f"s_cmp_lg_u32 s{S_WAVE}, {cfg.pwave}")
            p(f"s_cbranch_scc1 {sk}")
            if cfg.pst == 0: p("s_mov_b32 s92, s96")
            if cfg.pst == 28:
                p(f"s_cmp_lg_u32 s{S_ST+27}, 0")
                p("s_cselect_b32 s92, 125, 0")
                p(f"s_cmp_ge_u32 s{S_ST+27}, 100")
                p("s_cselect_b32 s92, 250, s92")
                p(f"s_cmp_ge_u32 s{S_ST+27}, 101")
                p("s_cselect_b32 s92, 375, s92")
                p("s_add_u32 s92, s92, s96")
            if cfg.pxa >= 0:
                p("s_mov_b64 exec, -1")
                p("v_mov_b32 v1, 0")
                p(f"global_load_dword v2, v1, s[{S_DBG}:{S_DBG+1}] offset:8 sc1")
                p("s_waitcnt vmcnt(0)")
                p("v_readfirstlane_b32 s90, v2")
                p("s_cmp_lg_u32 s90, s91")
                p("s_cselect_b32 s90, 250, 0")
                p("s_add_u32 s92, s92, s90")
            if cfg.pcyc:
                p("s_sub_u32 s90, s92, s98")
                p("s_lshr_b32 s90, s90, 3")
            else:
                p("s_sub_u32 s90, s92, s96")
                p("s_mul_i32 s90, s90, 4")
            p("s_mov_b64 exec, 1")
            p("v_mov_b32 v1, 0")
            p("v_mov_b32 v2, s90")
            p(f"global_store_dword v1, v2, s[{S_DBG}:{S_DBG+1}] offset:4")
            p("s_add_u32 s90, s90, 2000")
            p("s_min_u32 s90, s90, 20000")
            p("s_add_u32 s90, s90, s96")
            p.label(lp)
            p("s_sleep 1")
            p("s_memrealtime s[94:95]"); p("s_waitcnt lgkmcnt(0)")
            p("s_cmp_lt_u32 s94, s90")
            p(f"s_cbranch_scc1 {lp}")
            p.label(sk)
        if not cfg.stamps: return
        stamp(8)
        p("s_mov_b64 exec, 1")
        p(f"s_lshl4_add_u32 s{S_T}, s2, s{S_WAVE}")
        p(f"s_lshl_b32 s{S_T}, s{S_T}, 7")
        p(f"s_add_u32 s{S_T}, s{S_T}, {WS_STAMP}")
        p(f"v_mov_b32 v1, s{S_T}")
        p("s_memtime s[68:69]")
        p("s_waitcnt lgkmcnt(0)")
        p(f"s_sub_u32 s{S_ST+29}, s68, s100")
        for i in range(30):
            p(f"v_mov_b32 v2, s{S_ST+i}")
            p(f"global_store_dword v1, v2, s[{S_WS}:{S_WS+1}] offset:{4*i}")
    def arrive(*offs):
        p("s_mov_b64 exec, 1")
        for off in offs: p.lds(f"ds_add_u32 v{V_C}, v{V_ONE} offset:{off}", "arr")
        p("s_mov_b64 exec, -1")
    def poll_issue(off):
        p.lds(f"ds_read_b32 v{V_POLL}, v{V_C} offset:{off}", "poll")
    def check(off, target, issued=False, sleep=0):
        ok = L("ok"); sp = L("spin")
        if issued:
            p.wait(lg="poll")
            p(f"v_readfirstlane_b32 s{S_X}, v{V_POLL}")
            p(f"s_cmp_ge_u32 s{S_X}, {target}")
            p(f"s_cbranch_scc1 {ok}")
        p.label(sp)
        if sleep: p(f"s_sleep {sleep}")
        p(f"ds_read_b32 v{V_POLL}, v{V_C} offset:{off}")
        p("s_waitcnt lgkmcnt(0)")
        p(f"v_readfirstlane_b32 s{S_X}, v{V_POLL}")
        p(f"s_sub_u32 s{S_SPIN}, s{S_SPIN}, 1")
        p("s_cbranch_scc1 L_end")
        p(f"s_cmp_ge_u32 s{S_X}, {target}")
        p(f"s_cbranch_scc0 {sp}")
        if not issued: p.lg.clear()
        p.label(ok)
    def srd(s, ka, n):
        if ka is not None: p(f"s_mov_b64 s[{s}:{s+1}], s[{KA+ka}:{KA+ka+1}]")
        p(f"s_mov_b32 s{s+2}, {n}")
        p(f"s_mov_b32 s{s+3}, {FRM}")
    def touch(vaddr, soff, mask):
        p(f"s_mov_b64 exec, {mask}" if mask < (1 << 31) else f"s_mov_b32 exec_hi, {hex(mask >> 32)}")
        p(f"buffer_load_dword v250, v{vaddr}, s[{S_W1}:{S_W1+3}], s{soff} offen")
        p("s_mov_b64 exec, -1")

    def ws_shift():
        if cfg.wsoff:
            p(f"s_add_u32 s{S_WS}, s{S_WS}, {cfg.wsoff << 20}")
            p(f"s_addc_u32 s{S_WS+1}, s{S_WS+1}, 0")
    def producer_index():
        p(f"s_lshr_b32 s{S_FB}, s2, 6")
        p(f"s_sub_u32 s{S_FB}, s{S_RG}, s{S_FB}")
        p(f"s_sub_u32 s{S_FB}, s{S_FB}, 1")
        p(f"s_and_b32 s{S_X}, s2, 0x37")
        p(f"s_sub_u32 s{S_X}, s{S_X}, 1")
        p(f"s_cmp_lt_u32 s{S_X}, 7")
        p(f"s_cselect_b32 s{S_FB}, s{S_FB}, 99")

    S_FL = 16
    def flags_load(off): p(f"global_load_dword v11, v10, s[{S_DBG}:{S_DBG+1}] sc1")
    def flags_test():
        p("s_waitcnt vmcnt(0)")
        p(f"v_readfirstlane_b32 s{S_FL}, v11")
        p(f"s_cmp_ge_u32 s{S_FL}, 26")

    p(f".globl {NAME}\n.p2align 8\n.type {NAME},@function")
    p.label(NAME)
    p(f"s_load_dwordx16 s[{KA}:{KA+15}], s[0:1], 0")
    p(f"s_load_dwordx4 s[{S_OUT}:{S_OUT+3}], s[0:1], 64")
    p(f"s_load_dwordx2 s[{S_WS}:{S_WS+1}], s[0:1], 80")
    if cfg.probe or cfg.pst >= 0: p("s_memrealtime s[96:97]" if cfg.pst != 28 else "s_memrealtime s[96:97]")
    if cfg.pcyc: p("s_memtime s[98:99]")
    if cfg.stamps:
        p(f"s_memrealtime s[{S_ST}:{S_ST+1}]")
        p(f"s_memtime s[100:101]")
    p("v_lshrrev_b32 v1, 6, v0")
    p("v_and_b32 v0, 63, v0")
    p(f"v_readfirstlane_b32 s{S_WAVE}, v1")
    p("s_cmp_ge_u32 s2, 0x100")
    p("s_cbranch_scc1 L_end")
    p(f"s_and_b32 s3, s2, 7")
    p(f"s_lshr_b32 s{S_RG}, s2, 6")
    p(f"s_lshl3_add_u32 s{S_RG}, s{S_RG}, s3")
    p(f"s_bfe_u32 s{S_CP}, s2, 0x20004")
    p(f"v_lshlrev_b32 v{V_L}, 4, v0")
    p(f"v_lshlrev_b32 v160, 7, v0")
    srd(S_IDX, None, 4096*104)
    srd(S_W1, None, 832*1664)
    p("s_bitcmp1_b32 s2, 3")
    p("s_cbranch_scc1 L_cin")
    p(f"s_lshl3_add_u32 s3, s{S_RG}, s{S_WAVE}")
    p(f"s_mul_i32 s3, s3, 1664")
    p(f"s_mul_i32 s{S_W}, s{S_WAVE}, 1664")
    p(f"s_add_u32 m0, s{S_W}, {IDXO}")
    p(f"s_lshr_b32 s{S_X}, s2, 4")
    p(f"s_lshl3_add_u32 s{S_X}, s{S_X}, s{S_WAVE}")
    p(f"s_mul_i32 s{S_X}, s{S_X}, 2560")
    p.wait0(lg=True)
    p(f"s_mov_b64 s[{S_IDX}:{S_IDX+1}], s[{KA}:{KA+1}]")
    p(f"s_mov_b64 s[{S_W1}:{S_W1+1}], s[{KA+8}:{KA+9}]")
    for n in range(2):
        if n: p("s_mov_b32 exec_hi, 0xff")
        p.vmem(f"buffer_load_dwordx4 v{V_L}, s[{S_IDX}:{S_IDX+3}], s3 offen offset:{1024*n}{' nt' if cfg.nti else ''} lds", "idx")
    if not cfg.dtouch: p("s_mov_b32 exec_hi, -1")
    if cfg.dtouch:
        touch(160, S_X, 0xfffff); p.vm.issue("t")
    p("s_branch L_dnn")
    dnn_vm = list(p.vm.q)

    p.vm.clear(); p.lg.clear()
    p.label("L_cin")
    if cfg.dbench: p("s_endpgm")
    S_C = S_WAVE
    W3A, TBL, VV, AQ, VF, GA, MB, VT, CRAW = 28, 32, 40, 56, 72, 80, 96, 170, 152
    srd(S_WCO, None, 156)
    srd(S_WS, None, WS_END)
    p(f"s_mov_b32 s{S_SPIN}, 0x40000")
    p(f"v_lshlrev_b32 v{V_C}, 2, v0")
    p(f"v_add_u32 v{V_C}, {CO}, v{V_C}")
    p(f"v_mov_b32 v{V_ONE}, 1")
    p(f"s_cmp_ge_u32 s{S_WAVE}, 4")
    p("s_cbranch_scc1 L_xwave")
    srd(S_WCIN, None, 105456)
    producer_index()
    if cfg.noprep: p(f"s_mov_b32 s{S_FB}, 99")
    p(f"s_getpc_b64 s[{S_PC}:{S_PC+1}]")
    p.label("L_pc")
    p.wait0(lg=True)
    p(f"s_mov_b64 s[{S_WCIN}:{S_WCIN+1}], s[{KA+4}:{KA+5}]")
    ws_shift()
    if cfg.ttouch: srd(S_TAB, 2, 6400000)
    p(f"s_mov_b64 s[{S_W1}:{S_W1+1}], s[{KA+8}:{KA+9}]")
    p(f"s_mov_b64 s[{S_WCO}:{S_WCO+1}], s[{KA+6}:{KA+7}]")
    p(f"s_mov_b64 s[{S_BOUT}:{S_BOUT+1}], s[{KA+14}:{KA+15}]")
    def cinit_loads():
        p(f"v_lshrrev_b32 v8, 5, v0")
        p(f"v_lshlrev_b32 v9, 3, v8")
        p(f"v_lshlrev_b32 v8, 1, v8")
        for a in range(3):
            p(f"buffer_load_dwordx2 v[{CRAW+2*a}:{CRAW+2*a+1}], v9, s[{S_WCO}:{S_WCO+3}], 0 offen offset:{16*a}")
        p(f"buffer_load_ushort v{CRAW+6}, v8, s[{S_WCO}:{S_WCO+3}], 0 offen offset:48")
        p(f"v_mov_b32 v8, 0")
        p(f"global_load_ushort v{CRAW+7}, v8, s[{S_BOUT}:{S_BOUT+1}]")
    if cfg.mtouch or cfg.ttouch or cfg.ctouch:
        p(f"s_cmp_eq_u32 s{S_CP}, 0")
        p("s_cbranch_scc1 L_nomt")
        p(f"s_mul_i32 s{S_T}, s{S_RG}, 3")
        p(f"s_add_u32 s{S_T}, s{S_T}, s{S_CP}")
        p(f"s_lshl2_add_u32 s{S_T}, s{S_T}, s{S_C}")
        p(f"s_sub_u32 s{S_T}, s{S_T}, 4")
        if cfg.ctouch:
            p(f"s_lshr_b32 s{S_T+1}, s2, 6")
            p(f"s_mul_i32 s{S_T+1}, s{S_T+1}, 3")
            p(f"s_add_u32 s{S_T+1}, s{S_T+1}, s{S_CP}")
            p(f"s_lshl2_add_u32 s{S_T+1}, s{S_T+1}, s{S_C}")
            p(f"s_mul_i32 s{S_T+1}, s{S_T+1}, {6*128}")
            p(f"s_add_u32 s{S_T+1}, s{S_T+1}, {(549 - 24)*128}")
            p("s_mov_b64 exec, 63")
            p(f"buffer_load_dword v250, v160, s[{S_WCIN}:{S_WCIN+3}], s{S_T+1} offen")
            p("s_mov_b64 exec, -1")
        if cfg.mtouch:
            p(f"s_mul_i32 s{S_T+1}, s{S_T}, {22*128}")
            p(f"s_add_u32 s{S_T+1}, s{S_T+1}, {2496*128}")
            touch(160, S_T+1, (1 << 22) - 1)
        if cfg.ttouch:
            p(f"s_mul_i32 s{S_T+1}, s{S_T}, {cfg.ttouch*128}")
            p(f"s_mov_b64 exec, {(1 << cfg.ttouch) - 1}" if cfg.ttouch < 31 else f"s_mov_b32 exec_hi, {hex(((1 << cfg.ttouch) - 1) >> 32)}")
            p(f"buffer_load_dword v250, v160, s[{S_TAB}:{S_TAB+3}], s{S_T+1} offen")
            p("s_mov_b64 exec, -1")
        p("s_branch L_cbar")
        p.label("L_nomt")
    p(f"s_cmp_ge_u32 s{S_FB}, 26")
    p("s_cbranch_scc1 L_cbar")
    if cfg.prio_prep: p(f"s_setprio {cfg.prio_prep}")
    p(f"s_mul_i32 s{S_T+2}, s{S_FB}, {BLK}")
    p(f"s_add_u32 s{S_T+2}, s{S_T+2}, {WS_W}")
    def w3_dma():
        p(f"s_mul_i32 s{S_T}, s{S_C}, 9216")
        p(f"s_add_u32 s{S_T+1}, s{S_T}, 70304")
        p(f"s_add_u32 s{S_T}, s{S_T}, {P_W3}")
        for u in range(9):
            if u % 4 == 0:
                if u: p(f"s_add_u32 s{S_T+1}, s{S_T+1}, 0x1000")
                p(f"s_add_u32 m0, s{S_T}, {1024*u}")
                p("s_nop 0")
            p(f"buffer_load_dwordx4 v{V_L}, s[{S_WCIN}:{S_WCIN+3}], s{S_T+1} offen offset:{1024*(u % 4)} lds")
    if not cfg.w3last: w3_dma()
    p("v_and_b32 v2, 0x30, v0")
    p("v_bfe_u32 v1, v0, 2, 2")
    for q in range(4):
        p(f"v_xor_b32 v3, {q}, v1")
        p("v_lshl_add_u32 v3, v3, 28, v2")
        p(f"buffer_load_dwordx4 v[{AQ+4*q}:{AQ+4*q+3}], v3, s[{S_WCO}:{S_WCO+3}], 0 offen offset:104")
    p(f"s_cmp_ge_u32 s{S_C}, 2")
    p("s_cbranch_scc1 L_p23")
    p(f"s_lshl_b32 s{S_T}, s{S_C}, 11")
    p(f"s_add_u32 s{S_T}, s{S_T}, gather_table-L_pc")
    p(f"v_lshl_add_u32 v1, v0, 5, s{S_T}")
    p(f"global_load_dwordx4 v[{TBL}:{TBL+3}], v1, s[{S_PC}:{S_PC+1}]")
    p(f"global_load_dwordx4 v[{TBL+4}:{TBL+7}], v1, s[{S_PC}:{S_PC+1}] offset:16")
    p(f"s_cmp_lg_u32 s{S_C}, 0")
    p("s_cbranch_scc1 L_p1")
    p("v_lshrrev_b32 v3, 5, v0")
    p("v_mul_u32_u24 v3, 0x2a40, v3")
    p("v_and_b32 v2, 31, v0")
    p("v_lshl_add_u32 v3, v2, 1, v3")
    p(f"s_mul_i32 s{S_T}, s{S_FB}, 52")
    p(f"s_add_u32 s{S_T}, s{S_T}, 35152")
    for u in range(16):
        if u and u % 4 == 0:
            p(f"s_add_u32 s{S_T}, s{S_T}, {(4 if u != 8 else 12)*1352}")
        p(f"buffer_load_ushort v{VV+u}, v3, s[{S_WCIN}:{S_WCIN+3}], s{S_T} offen offset:{1352*(u % 4)}")
    p("s_branch L_pz")
    p.label("L_p1")
    p(f"s_mul_i32 s{S_T}, s{S_FB}, 1352")
    p(f"s_mov_b32 m0, {P_W1}")
    p("s_nop 0")
    for u in range(2):
        p(f"buffer_load_dwordx4 v{V_L}, s[{S_WCIN}:{S_WCIN+3}], s{S_T} offen offset:{1024*u} lds")
    p("s_branch L_pz")
    p.label("L_p23")
    p(f"s_cmp_lg_u32 s{S_C}, 3")
    p("s_cbranch_scc1 L_pz")
    p("v_lshlrev_b32 v1, 2, v0")
    p(f"buffer_load_dword v27, v1, s[{S_WCO}:{S_WCO+3}], 0 offen offset:52")
    if cfg.dwarm:
        p(f"s_cmp_lg_u32 s{S_FB}, 0")
        p("s_cbranch_scc1 L_nodw")
        p("v_mov_b32 v4, 0")
        p("s_mov_b64 exec, 1")
        p(f"global_atomic_add v4, v4, s[{S_DBG}:{S_DBG+1}] sc1")
        p("s_mov_b64 exec, -1")
        p.label("L_nodw")
    for r in range(4): p(f"v_mov_b32 v{4+r}, -1")
    p(f"buffer_store_dwordx4 v[4:7], v{V_L}, s[{S_WS}:{S_WS+3}], s{S_T+2} offen sc1")
    p("s_mov_b32 exec_hi, 0xff")
    p(f"buffer_store_dwordx4 v[4:7], v{V_L}, s[{S_WS}:{S_WS+3}], s{S_T+2} offen offset:1024 sc1")
    p("s_mov_b32 exec_hi, -1")
    p(f"s_mul_i32 s{S_T}, s{S_FB}, 5120")
    p(f"s_min_u32 s{S_T}, s{S_T}, {131072 - 5120}")
    p(f"s_add_u32 s{S_T+1}, s{S_T}, 0x1000")
    for u in range(5):
        p(f"buffer_store_dwordx4 v[4:7], v{V_L}, s[{S_WS}:{S_WS+3}], s{S_T+u//4} offen offset:{1024*(u % 4)} sc1")
    p.label("L_pz")
    if cfg.w3last: w3_dma()
    p("v_mov_b32 v2, 0")
    p("v_mov_b32 v3, 0")
    p(f"s_lshl_b32 s{S_T}, s{S_C}, 9")
    p(f"s_add_u32 s{S_T}, s{S_T}, {P_M3T}")
    p(f"v_lshl_add_u32 v1, v0, 3, s{S_T}")
    p("ds_write_b64 v1, v[2:3]")
    p(f"v_add_u32 v1, {P_Z - CO}, v{V_C}")
    p("ds_write_b32 v1, v2")
    p.label("L_cbar")
    if cfg.pfcode:
        sk = L("nopf")
        p(f"s_cmp_lg_u32 s{S_C}, 2")
        p(f"s_cbranch_scc1 {sk}")
        p(f"s_lshr_b32 s{S_T}, s2, 4")
        p(f"s_mul_i32 s{S_T}, s{S_T}, 2560")
        p(f"v_add_u32 v2, s{S_T}, v160")
        p(f"v_min_u32 v2, gather_table-L_pc+4092, v2")
        p("s_mov_b64 exec, 0xfffff")
        p(f"global_load_dword v161, v2, s[{S_PC}:{S_PC+1}]")
        p("s_mov_b64 exec, -1")
        p.label(sk)
    p("v_mov_b32 v2, 0")
    p(f"ds_write_b32 v{V_C}, v2")
    p.wait0(lg=True)
    p("s_barrier")
    stamp(1)
    p(f"s_cmp_lt_u32 s{S_FB}, 26")
    p("s_cbranch_scc1 L_prep")
    cinit_loads()
    p("s_waitcnt vmcnt(0)")
    p("s_branch L_setup")
    p.label("L_prep")
    p("v_bfe_u32 v1, v0, 2, 2")
    p("v_lshrrev_b32 v4, 4, v0")
    p("v_lshl_add_u32 v4, v4, 3, v1")
    p("v_add_u32 v5, 4, v4")
    p("v_min_u32 v4, 25, v4")
    p("v_min_u32 v5, 25, v5")
    p("v_and_b32 v6, 3, v0")
    p(f"s_mul_i32 s{S_T}, s{S_C}, 384")
    p(f"s_add_u32 s{S_T}, s{S_T}, {P_W3}")
    p(f"v_lshl_add_u32 v6, v6, 3, s{S_T}")
    p(f"s_movk_i32 s{S_T+1}, 1352")
    p(f"v_mad_u32_u24 v2, v4, s{S_T+1}, v6")
    p(f"v_mad_u32_u24 v3, v5, s{S_T+1}, v6")
    p(f"s_mul_i32 s{S_T}, s{S_C}, 192")
    p(f"s_movk_i32 s{S_T+1}, -1662")
    p(f"v_mov_b32 v7, {P_DUM}")
    for u in range(3):
        p(f"v_add_u32 v4, s{S_T}, v0")
        if u < 2: p(f"s_add_u32 s{S_T}, s{S_T}, 64")
        p("v_mul_u32_u24 v5, 2521, v4")
        p("v_lshrrev_b32 v5, 16, v5")
        p("v_cmp_gt_u32 vcc, 0x2a4, v4")
        p("v_lshlrev_b32 v4, 6, v4")
        p(f"v_mad_i32_i24 v4, v5, s{S_T+1}, v4")
        p(f"v_add_u32 v4, {P_M3T}, v4")
        p(f"v_cndmask_b32 v{8+u}, v7, v4, vcc")
    p("v_and_b32 v5, 31, v0")
    p("v_lshrrev_b32 v4, 5, v0")
    p("v_lshlrev_b32 v6, 6, v5")
    p("v_lshl_add_u32 v6, v4, 4, v6")
    p(f"v_add_u32 v28, {P_M3T}, v6")
    p("v_mul_u32_u24 v5, 0x90, v5")
    p("v_lshl_add_u32 v5, v4, 4, v5")
    p(f"v_add_u32 v29, {P_D1}, v5")
    p("v_lshrrev_b32 v1, 1, v0")
    p("v_lshl_add_u32 v4, v1, 1, 1")
    p("v_add_u32 v5, 22, v1")
    p("v_min_u32 v4, v5, v4")
    p("v_lshlrev_b32 v5, 1, v1")
    p(f"s_cmp_eq_u32 s{S_C}, 0")
    p("s_cselect_b64 vcc, -1, 0")
    p("v_and_b32 v6, 1, v0")
    p(f"v_mov_b32 v11, {PS}")
    p("v_cndmask_b32 v4, v5, v4, vcc")
    p("v_lshl_add_u32 v4, v4, 1, v6")
    p("v_lshlrev_b32 v30, 4, v4")
    p(f"v_add_u32 v4, {P_M3T + 26*64 - CO}, v{V_C}")
    p(f"s_cmp_lg_u32 s{S_C}, 3")
    p("s_cbranch_scc1 L_w0")
    assert cfg.w3last
    p("s_waitcnt vmcnt(9)")
    p("s_mov_b64 exec, 0x1fff")
    p("ds_write_b32 v4, v27")
    p("v_mov_b32 v4, 0")
    p("s_mov_b64 exec, 1")
    p(f"global_atomic_add v4, v{V_ONE}, s[{S_DBG}:{S_DBG+1}] sc1")
    p("s_mov_b64 exec, -1")
    stamp(13)
    if cfg.pst == 12:
        p("s_waitcnt vmcnt(0)")
        stamp(12)
    p("s_waitcnt vmcnt(1)")
    p("s_branch L_w1")
    p.label("L_w0")
    p.wait0(vm=True)
    p.label("L_w1")
    stamp(10)
    p("s_barrier")
    extra = []
    for u in range(8):
        extra.append(f"v_add_u32_sdwa v{GA+2*u}, v11, v{TBL+u} dst_sel:DWORD dst_unused:UNUSED_PAD src0_sel:DWORD src1_sel:WORD_0")
        extra.append(f"v_add_u32_sdwa v{GA+2*u+1}, v11, v{TBL+u} dst_sel:DWORD dst_unused:UNUSED_PAD src0_sel:DWORD src1_sel:WORD_1")
    for u in range(8): extra.append(f"v_lshl_or_b32 v{VF+u}, v{VV+2*u+1}, 16, v{VV+2*u}")
    def m3_mfma(U):
        u, q = divmod(U, 4)
        p.wait(lg=f"m{U}")
        cc = "0" if q == 0 else f"v[{12+4*u}:{15+4*u}]"
        p(f"v_mfma_f32_16x16x32_bf16 v[{12+4*u}:{15+4*u}], v[{AQ+4*q}:{AQ+4*q+3}], v[{MB+4*U}:{MB+4*U+3}], {cc}")
    for T in range(12):
        p.lds(f"ds_read_b64_tr_b16 v[{MB+4*T}:{MB+4*T+1}], v2 offset:{32*T}", f"m{T}")
        p.lds(f"ds_read_b64_tr_b16 v[{MB+4*T+2}:{MB+4*T+3}], v3 offset:{32*T}", f"m{T}")
        if T == 5:
            for _ in range(8): p(extra.pop(0))
        if T >= 6: m3_mfma(T - 6)
    for U in range(6, 12):
        m3_mfma(U)
        if U == 8:
            p("v_cvt_pk_bf16_f32 v24, v12, v12")
            p("ds_write_b16 v8, v24")
        else:
            for _ in range(2): p(extra.pop(0))
    p("v_cvt_pk_bf16_f32 v25, v16, v16")
    p("ds_write_b16 v9, v25")
    while extra: p(extra.pop(0))
    p(f"v_cvt_pk_bf16_f32 v26, v20, v20")
    p(f"ds_write_b16 v10, v26")
    p.wait0(lg=True)
    p("s_barrier")
    stamp(11)
    p(f"s_cmp_eq_u32 s{S_C}, 0")
    p("s_cbranch_scc1 L_pT")
    p(f"s_cmp_lg_u32 s{S_C}, 1")
    p("s_cbranch_scc1 L_pdone")
    for u in range(16): p(f"v_mov_b32 v{MB+16+u}, 0")
    for u in range(16): p(f"ds_read_u16_d16_hi v{MB+16+u}, v{GA+u}")
    p("s_mov_b32 exec_hi, 0xfff")
    p("s_branch L_pst")
    p.label("L_pT")
    p("ds_read_b128 v[12:15], v28")
    p("ds_read_b128 v[16:19], v28 offset:32")
    p("s_waitcnt lgkmcnt(1)")
    p(f"v_mfma_f32_32x32x16_bf16 v[{MB}:{MB+15}], v[{VF}:{VF+3}], v[12:15], 0")
    p("s_waitcnt lgkmcnt(0)")
    p(f"v_mfma_f32_32x32x16_bf16 v[{MB}:{MB+15}], v[{VF+4}:{VF+7}], v[16:19], v[{MB}:{MB+15}]")
    p("s_nop 11")
    for a in range(4): p(f"ds_write_b128 v29, v[{MB+4*a}:{MB+4*a+3}] offset:{32*a}")
    for u in range(16): p(f"ds_read_b32 v{MB+16+u}, v{GA+u}")
    p("s_mov_b32 exec_hi, 0xffff")
    p.label("L_pst")
    for e in range(8):
        if e % 2 == 0: p(f"s_waitcnt lgkmcnt({12 - 2*e})")
        p(f"v_add_f32 v{MB+16+2*e}, v{MB+16+2*e}, v{MB+16+2*e+1}")
        if e % 2:
            p(f"v_cvt_pk_bf16_f32 v{4+e//2}, v{MB+14+2*e}, v{MB+16+2*e}")
            p(f"v_min_u32 v{4+e//2}, -2, v{4+e//2}")
    p(f"buffer_store_dwordx4 v[4:7], v30, s[{S_WS}:{S_WS+3}], s{S_T+2} offen sc1")
    p(f"v_mov_b32 v8, s{S_C}")
    p("v_lshlrev_b32 v8, 2, v8")
    p("s_mov_b64 exec, 1")
    p(f"buffer_store_dword v{V_ONE}, v8, s[{S_WS}:{S_WS+3}], s{S_T+2} offen offset:1536 sc1")
    p.label("L_pdx")
    p("s_mov_b64 exec, -1")
    p.label("L_pdone")
    stamp(21)
    cinit_loads()
    p("s_waitcnt vmcnt(0)")
    p("s_branch L_setup")
    p.label("L_xwave")
    S_J, S_XA, S_XB, S_XM, S_TB = S_W, S_T+2, S_T+3, S_T+4, S_T+5
    p(f"s_sub_u32 s{S_J}, s{S_WAVE}, 4")
    p(f"s_lshl3_add_u32 s3, s{S_RG}, s{S_CP}")
    p(f"s_lshr_b32 s{S_FB}, s{S_J}, 1")
    p(f"s_lshl2_add_u32 s3, s{S_FB}, s3")
    p(f"s_mul_i32 s3, s3, 1664")
    p(f"s_and_b32 s{S_X}, s{S_J}, 1")
    p(f"s_mul_i32 s{S_X}, s{S_X}, 832")
    p(f"s_add_u32 s3, s3, s{S_X}")
    p(f"s_mul_i32 s{S_X}, s{S_J}, 832")
    p(f"s_add_u32 m0, s{S_X}, {IX2}")
    p(f"s_lshr_b32 s{S_X}, s2, 6")
    p(f"s_mul_i32 s{S_X}, s{S_X}, 3")
    p(f"s_add_u32 s{S_X}, s{S_X}, s{S_CP}")
    p(f"s_lshl2_add_u32 s{S_X}, s{S_X}, s{S_J}")
    p(f"s_mul_i32 s{S_X}, s{S_X}, {52*128}")
    p(f"s_add_u32 s{S_X}, s{S_X}, {(2496 - 4*52)*128}")
    p.wait0(lg=True)
    p(f"s_mov_b64 s[{S_IDX}:{S_IDX+1}], s[{KA}:{KA+1}]")
    p(f"s_mov_b64 s[{S_W1}:{S_W1+1}], s[{KA+8}:{KA+9}]")
    p("s_mov_b32 exec_hi, 0xfffff")
    p(f"buffer_load_dwordx4 v{V_L}, s[{S_IDX}:{S_IDX+3}], s3 offen{' nt' if cfg.nti else ''} lds")
    p("s_mov_b32 exec_hi, -1")
    p(f"s_mov_b64 s[{S_WCO}:{S_WCO+1}], s[{KA+6}:{KA+7}]")
    p(f"s_mov_b64 s[{S_BOUT}:{S_BOUT+1}], s[{KA+14}:{KA+15}]")
    ws_shift()
    srd(S_TAB, 2, 6400000)
    if cfg.etouch:
        p(f"s_cmp_eq_u32 s{S_CP}, 0")
        p("s_cbranch_scc1 L_noet")
        touch(160, S_X, (1 << 52) - 1)
        p("s_waitcnt vmcnt(1)")
        p.label("L_noet")
    p("v_lshrrev_b32 v1, 4, v0")
    p("v_and_b32 v2, 12, v0")
    p(f"s_mul_i32 s3, s{S_J}, 104")
    p(f"s_add_u32 s3, s3, {IX2}")
    p(f"v_add_u32 v2, s3, v2")
    p(f"s_movk_i32 s{S_X}, 416")
    p(f"v_mad_u32_u24 v3, v1, s{S_X}, v2")
    if cfg.bal:
        p(f"s_cmp_eq_u32 s{S_J}, 3")
        p(f"s_cselect_b32 s{S_X}, 104, 312")
        p(f"s_cselect_b32 s3, {13*104}, {20*104}")
        p(f"v_add_u32 v2, s3, v2")
        p(f"v_mad_u32_u24 v4, v1, s{S_X}, v2")
    else: p("v_add_u32 v4, 0x680, v3")
    p("v_and_b32 v1, 3, v0")
    p("v_lshlrev_b32 v5, 4, v1")
    p("v_bfe_u32 v1, v0, 3, 1")
    p("v_lshl_add_u32 v6, v1, 30, v5")
    p(f"s_mul_i32 s{S_XM}, s{S_J}, 7168")
    p(f"s_lshr_b32 s{S_TB}, s2, 4")
    p(f"s_lshl2_add_u32 s{S_TB}, s{S_TB}, s{S_J}")
    p(f"s_mul_i32 s{S_TB}, s{S_TB}, {46*128}")
    p(f"s_add_u32 s{S_TB}, s{S_TB}, {4992*128}")
    assert not cfg.etouch
    producer_index()
    p("s_waitcnt vmcnt(0)")
    p("s_barrier")
    for u in range(2):
        for Q in range(0, 6, 2): p(f"ds_read2_b32 v[{VT+7*u+u+Q}:{VT+7*u+u+Q+1}], v{3+u} offset0:{4*Q} offset1:{4*Q+4}")
        p(f"ds_read_b32 v{VT+8*u+6}, v{3+u} offset:96")
    stamp(1)
    p.vm.clear()
    assert cfg.xwin < 14
    p.wait0(lg=True)
    go_done = False; g0_done = False
    for Q in range(7):
        for u in range(2):
            n = 2*Q + u
            if n == cfg.xbar and not cfg.noprep:
                p(f"s_cmp_ge_u32 s{S_FB}, 26")
                p("s_cbranch_scc1 L_nobar")
                p("s_barrier")
                p("s_barrier")
                p.label("L_nobar")
            if n == cfg.xstart and n: p.wait(vm="x0")
            if n >= cfg.xwin:
                p.wait(vm=f"x{n - cfg.xwin}")
                if n - cfg.xwin == 2*cfg.gon + 1: arrive(C_GO); go_done = True
                if cfg.pre and n - cfg.xwin == 2*(cfg.gon - cfg.pre) + 1: arrive(C_G0); g0_done = True
            p(f"s_add_u32 m0, s{S_XM}, {XO + 4*7168*u + 1024*Q}")
            p(f"v_lshl_add_u32 v{VT+8*u+Q}, v{VT+8*u+Q}, 6, v{6 if Q == 6 else 5}")
            p.vmem(f"buffer_load_dwordx4 v{VT+8*u+Q}, s[{S_TAB}:{S_TAB+3}], 0 offen{' nt' if cfg.ntx else ''} lds", f"x{n}")
        for u, at in enumerate((cfg.lt0, cfg.lt1)):
            if at == Q and cfg.ltouch:
                touch(160, S_TB, (1 << 46) - 1); p.vm.issue("t")
                p(f"s_add_u32 s{S_TB}, s{S_TB}, {2944*128}")
    def late_touch():
        touch(160, S_TB, (1 << 46) - 1); p.vm.issue("t")
        p(f"s_add_u32 s{S_TB}, s{S_TB}, {2944*128}")
    cinit_loads()
    for _ in range(5): p.vm.issue("ci")
    if cfg.pre and not g0_done:
        p.wait(vm=f"x{2*(cfg.gon - cfg.pre)+1}")
        arrive(C_G0)
    if not go_done:
        p.wait(vm=f"x{2*cfg.gon+1}")
        arrive(C_GO)
    p.wait(vm="x13")
    arrive(C_XL)
    p.wait(vm="ci")
    for at in (cfg.lt0, cfg.lt1):
        if at == 7 and cfg.ltouch: late_touch()
    if cfg.ltouch and cfg.lt1 == 8: p(f"s_mov_b32 s{S_FB}, s{S_TB}")
    stamp(6)

    p.label("L_setup")
    if cfg.stamps or cfg.pst == 28: p(f"s_mov_b32 s{S_ST+27}, 0")
    p(f"s_setprio {cfg.prio_prep}")
    p.vm.clear(); p.lg.clear()
    AX, AT, CI, X0 = 0, 16, 32, 48
    Z = [74, 78]; PT = 82; ZL = 90
    XA = {1: 98, -3: 99, -1: 100}; WA = 101; SM = [102, 103, 104, 105]; MBX = 106; VMB = 110; VBO = 111
    RING = 112; RES = RING + 4*cfg.R
    WT = 112
    assert RES + 4*cfg.NRES <= 256
    NR = 4
    S_N, S_MB, S_O = S_T+7, S_T+9, S_T+11
    S_NR = S_T + 12
    p(f"s_and_b32 s{S_T+3}, s{S_WAVE}, 3")
    p(f"s_lshl_b32 s{S_T+2}, s{S_T+3}, 2")
    p(f"s_lshl_b32 s{S_T}, s{S_T+3}, 8")
    p(f"s_mov_b32 s{S_N}, 4")
    p(f"s_add_u32 s{S_T+2}, s{S_T+2}, 3")
    p(f"s_cmp_lt_u32 s{S_WAVE}, 4")
    p("s_cbranch_scc1 L_rowp")
    p(f"s_add_u32 s{S_T}, s{S_T}, {4*7168}")
    if cfg.bal:
        p(f"s_mov_b32 s{S_N}, 3")
        p(f"s_mul_i32 s{S_T+2}, s{S_T+3}, 3")
        p(f"s_add_u32 s{S_T+2}, s{S_T+2}, 70")
    else: p(f"s_add_u32 s{S_T+2}, s{S_T+2}, 64")
    p.label("L_rowp")
    p(f"s_lshl4_add_u32 s{S_T+2}, s{S_CP}, s{S_T+2}")
    p.label("L_setup2")
    p(f"s_mov_b32 s{S_NR}, s{S_N}")
    p("v_and_b32 v1, 31, v0")
    p("v_lshrrev_b32 v2, 5, v0")
    p(f"v_lshl_add_u32 v3, v1, 1, s{S_T}")
    p(f"v_lshl_add_u32 v{XA[1]}, v2, 6, v3")
    p("v_mul_u32_u24 v4, 0xc0, v2")
    p(f"v_sub_u32 v{XA[-3]}, v3, v4")
    p("v_lshlrev_b32 v4, 6, v2")
    p(f"v_sub_u32 v{XA[-1]}, v3, v4")
    p("v_mul_u32_u24 v4, 0x210, v2")
    p("v_lshl_add_u32 v4, v1, 4, v4")
    p(f"v_add_u32 v{WA}, {WO}, v4")
    for r in range(26): p(f"v_mov_b32 v{X0+r}, 0")
    for a in range(3):
        for h in range(2):
            p(f"v_lshlrev_b32 v{CI+4*a+2*h}, 16, v{CRAW+2*a+h}")
            p(f"v_and_b32 v{CI+4*a+2*h+1}, 0xffff0000, v{CRAW+2*a+h}")
    p(f"v_lshlrev_b32 v{CI+12}, 16, v{CRAW+6}")
    for r in range(13, 16): p(f"v_mov_b32 v{CI+r}, 0")
    p(f"v_lshlrev_b32 v{VBO}, 16, v{CRAW+7}")
    p("v_lshrrev_b32 v1, 3, v0")
    p("v_min_u32 v3, 1, v1")
    p("v_lshlrev_b32 v2, 9, v0")
    p(f"v_lshl_add_u32 v{VMB}, v3, 30, v2")
    p(f"s_lshl_b32 s{S_T+1}, s{S_RG}, 7")
    p(f"s_add_u32 s{S_T+1}, s{S_T+1}, s{S_T+2}")
    p(f"s_lshl_b32 s{S_O}, s{S_T+1}, 1")
    p(f"s_lshl_b32 s{S_T}, s{S_RG}, 10")
    p(f"s_add_u32 s{S_MB}, s{S_T+2}, s{S_T}")
    p(f"s_sub_u32 s{S_MB}, s{S_MB}, 3")
    p(f"s_lshl_b32 s{S_MB}, s{S_MB}, 2")
    p(f"v_mov_b32 v{ZL+7}, 0")
    p(f"s_cmp_ge_u32 s{S_WAVE}, 4")
    p("s_cbranch_scc1 L_xz")
    p("v_and_b32 v2, 7, v0")
    p(f"v_mul_u32_u24 v3, {BLK}, v1")
    p("v_lshl_add_u32 v3, v2, 4, v3")
    p("v_mul_u32_u24 v4, 0x210, v2")
    p(f"s_mul_i32 s{S_T}, s{S_C}, {24*528}")
    p(f"s_add_u32 s{S_T}, s{S_T}, {WO}")
    p(f"v_add_u32 v4, s{S_T}, v4")
    p("v_lshl_add_u32 v5, v1, 4, v4")
    p("v_cmp_eq_u32 vcc, 1, v1")
    p("v_add_u32 v6, 48, v5")
    p("v_subrev_u32 v7, 48, v5")
    p("v_cndmask_b32 v6, v5, v6, vcc")
    p("v_cmp_eq_u32 vcc, 4, v1")
    p(f"s_cmp_eq_u32 s{S_C}, 3")
    p(f"s_cselect_b32 s{S_T+1}, 4, 0")
    p("v_cndmask_b32 v6, v6, v7, vcc")
    p(f"v_and_b32 v7, s{S_T+1}, v2")
    p("v_lshl_add_u32 v7, v7, 28, v3")
    p("v_and_b32 v8, 31, v0")
    p("v_lshrrev_b32 v9, 5, v0")
    p(f"v_mul_u32_u24 v8, {BLK}, v8")
    p("v_lshl_add_u32 v8, v9, 2, v8")
    p(f"s_mul_i32 s{S_T}, s{S_C}, 384")
    p(f"s_add_u32 s{S_T}, s{S_T}, {WS_W}")
    p(f"s_and_b32 s{S_T+1}, s{S_CP}, {1 if cfg.wrot else 0}")
    p(f"s_mul_i32 s{S_T+2}, s{S_T+1}, 26624")
    for k in range(4):
        p(f"s_xor_b32 s{S_T+3+k}, s{S_T+2}, {26624*(k >> 1)}")
        p(f"s_add_u32 s{S_T+3+k}, s{S_T+3+k}, s{S_T}")
        if k & 1: p(f"s_add_u32 s{S_T+3+k}, s{S_T+3+k}, 13312")
    p(f"s_lshl_b32 s{S_T+2}, s{S_T+1}, 8")
    p(f"s_cmp_eq_u32 s{S_T+1}, 0")
    p("s_cselect_b64 vcc, -1, 0")
    p(f"v_add_u32 v12, s{S_T+2}, v5")
    p(f"s_xor_b32 s{S_T+2}, s{S_T+2}, 0x100")
    p("v_add_u32 v6, 0x180, v6")
    p("v_add_u32 v15, 0x80, v5")
    p(f"v_add_u32 v14, s{S_T+2}, v5")
    p("v_cndmask_b32 v13, v6, v15, vcc")
    p("v_cndmask_b32 v15, v15, v6, vcc")
    p("v_mov_b32 v10, 0")
    if cfg.pre:
        check(C_G0, 4, sleep=2)
        flags_load(192)
    check(C_GO, 4, sleep=2)
    stamp(22)
    p(f"s_mov_b32 s{S_T+13}, {WS_W}")
    if cfg.noprep: p("s_branch L_wload")
    if cfg.direct:
        if not cfg.pre:
            flags_load(192)
        flags_test()
        p("s_cbranch_scc1 L_wload")
        if cfg.stamps or cfg.pst == 28: p(f"s_add_u32 s{S_ST+27}, s{S_ST+27}, 100")
    p(f"s_cmp_lg_u32 s{S_C}, 0")
    p("s_cbranch_scc1 L_pw")
    p.label("L_probe")
    p(f"global_load_dword v11, v10, s[{S_DBG}:{S_DBG+1}] sc1")
    p(f"buffer_load_dword v9, v8, s[{S_WS}:{S_WS+3}], s{S_T+13} offen offset:1536 sc1")
    p("s_waitcnt vmcnt(0)")
    p("v_cmp_gt_u32 vcc, 26, v11")
    p(f"v_cmp_eq_u32 s[{S_FL}:{S_FL+1}], -1, v9")
    p("s_nop 1")
    p(f"s_or_b64 vcc, vcc, s[{S_FL}:{S_FL+1}]")
    p("s_cmp_eq_u64 vcc, 0")
    p("s_cbranch_scc1 L_wload")
    p.label("L_retry")
    if cfg.stamps or cfg.pst == 28: p(f"s_add_u32 s{S_ST+27}, s{S_ST+27}, 1")
    p(f"s_sleep {cfg.poll_sleep}")
    p(f"s_sub_u32 s{S_SPIN}, s{S_SPIN}, 1")
    p("s_cbranch_scc0 L_probe")
    p("s_endpgm")
    p.label("L_pw")
    check(C_FLAG, 1, sleep=2)
    p("s_branch L_wl2")
    p.label("L_wload")
    arrive(C_FLAG)
    p.label("L_wl2")
    stamp(2)
    for J in range(4):
        for Fi in range(3):
            r = WT + 4*(3*J + Fi)
            p.vmem(f"buffer_load_dwordx4 v[{r}:{r+3}], v{7 if Fi == 2 else 3}, s[{S_WS}:{S_WS+3}], s{S_T+3+J} offen offset:{128*Fi} sc1", f"w{J}{Fi}")
    first = True
    for J in range(4):
        for Fi in range(3):
            r = WT + 4*(3*J + Fi)
            p.wait(vm=f"w{J}{Fi}")
            p(f"ds_write_b128 v{12+J}, v[{r}:{r+3}] offset:{4224*Fi}")
            if first: p(f"v_max_u32 v9, v{r}, v{r+1}")
            else: p(f"v_max3_u32 v9, v{r}, v{r+1}, v9")
            p(f"v_max3_u32 v9, v{r+2}, v{r+3}, v9")
            first = False
    p("v_cmp_eq_u32 vcc, -1, v9")
    p("s_nop 1")
    p("s_cmp_eq_u64 vcc, 0")
    p("s_cbranch_scc0 L_retry")
    p.label("L_xz")
    check(C_XL, 4, sleep=cfg.idle_sleep)
    def x_read(r):
        p.lds(f"ds_read_u16_d16_hi v{X0+r}, v{XA[pi(r)-r]} offset:{1024*(r >> 2) + 64*(r & 3)}", f"x{r}")
    for r in range(26): x_read(r)
    def z_ops(n):
        ops = []
        for e in range(4):
            t = PT + 2*(e % 4)
            (a, b), (c, d) = S[8*n + 2*e], S[8*n + 2*e + 1]
            ops.append(("v", f"v_mul_f32 v{t}, v{X0+a}, v{X0+b}", (a, b)))
            ops.append(("v", f"v_mul_f32 v{t+1}, v{X0+c}, v{X0+d}", (c, d)))
        cv = [("v", f"v_cvt_pk_bf16_f32 v{Z[n % 2]+e}, v{PT+2*e}, v{PT+2*e+1}", ()) for e in range(4)]
        return ops[0:4] + cv[0:1] + ops[4:6] + cv[1:2] + ops[6:8] + cv[2:4]
    for o in z_ops(0):
        p.wait(lg=tuple(f"x{r}" for r in o[2]))
        p(o[1])
    for d in XA.values(): p(f"v_add_u32 v{d}, 0x1c00, v{d}")
    p.wait0(lg=True)
    p("s_barrier")
    if cfg.ltouch and cfg.lt1 == 8:
        p(f"s_cmp_lt_u32 s{S_WAVE}, 4")
        p("s_cbranch_scc1 L_go")
        touch(160, S_FB, (1 << 46) - 1)
    p.label("L_go")
    p("s_setprio 0")
    if cfg.flip:
        p(f"s_cmp_lt_u32 s{S_WAVE}, 4")
        p("s_cbranch_scc1 L_prio")
        p(f"s_setprio 1")
        p.label("L_prio")
    stamp(3)
    order = []
    for n in range(22):
        order.append(("X", n)); order.append(("T", n))
        if n == 14: order.append(("T", 22))
        if n == 18: order.append(("T", 23))
    fr_of = lambda k, n: (2*n if k == "X" else 2*n + 1) if n < 22 else n + 22
    nn = 46 - cfg.NRES
    assert nn % cfg.R == 0
    nonres = [int((u + 0.5)*46/nn) for u in range(nn)]
    wreg = {}; rr = 0
    for k in range(46):
        if k in nonres: wreg[k] = RING + 4*(nonres.index(k) % cfg.R)
        else: wreg[k] = RES + 4*rr; rr += 1
    def w_read(k):
        p.lds(f"ds_read_b128 v[{wreg[k]}:{wreg[k]+3}], v{WA} offset:{1056*fr_of(*order[k])}", f"w{k}")
    for k in range(46):
        if k not in nonres or nonres.index(k) < cfg.R: w_read(k)
    p.wait0(lg=True)
    stamp(5)
    def mfma(k):
        kind, n = order[k]
        zb = Z[n % 2] if n < 22 else ZL + 4*(n - 22)
        acc = AX if kind == "X" else AT
        cc = f"v[{acc}:{acc+15}]"
        if n == 0: cc = "0" if kind == "X" else f"v[{CI}:{CI+15}]"
        return f"v_mfma_f32_32x32x16_bf16 v[{acc}:{acc+15}], v[{wreg[k]}:{wreg[k]+3}], v[{zb}:{zb+3}], {cc}"
    lin_ops = []
    for u in range(8):
        a = LIN[min(2*u, 12)]; b = LIN[min(2*u + 1, 12)]
        lin_ops.append(("v", f"v_cvt_pk_bf16_f32 v{ZL+u}, v{X0+a}, v{X0+b}", (a, b)))
    def body(emit_mb):
        groups = [z_ops(n) for n in range(1, 22)] + [z_ops(0)]
        groups[10] = lin_ops[:7] + groups[10]
        flat = [(g, o) for g, ops in enumerate(groups) for o in ops]
        lastuse = {}
        for i, (g, o) in enumerate(flat):
            if g < 21:
                for r in o[2]: lastuse[r] = i
        for r in range(26): lastuse.setdefault(r, -1)
        for g, ops in enumerate(groups):
            mf = [kk for kk in range(46) if order[kk] in (("X", g), ("T", g))]
            if g == 14: mf.append(order.index(("T", 22)))
            if g == 18: mf.append(order.index(("T", 23)))
            items = []
            base = sum(len(x) for x in groups[:g])
            if g == 0:
                for r in range(26):
                    if lastuse[r] == -1: items.append(("x", r))
            for i, o in enumerate(ops):
                items.append(o)
                for r in range(26):
                    if lastuse[r] == base + i: items.append(("x", r))
            if g == 21:
                pos = [0, 0]
            else:
                n_it = len(items)
                pos = [2 + (j*n_it)//len(mf) for j in range(len(mf))]
            j = 0
            for i, it in enumerate(items + [None]):
                while j < len(mf) and pos[j] <= i:
                    kk = mf[j]
                    if g == 21 and j == 0: p("s_nop 1")
                    p.wait(lg=f"w{kk}")
                    p(mfma(kk))
                    if kk in nonres:
                        w_read(nonres[(nonres.index(kk) + cfg.R) % nn])
                    j += 1
                if it is None: break
                if it[0] == "x": x_read(it[1])
                else:
                    p.wait(lg=tuple(f"x{r}" for r in it[2]))
                    p(it[1])
            if g == 15: emit_mb()
        for k in range(NR - 1): p(f"v_mov_b32 v{SM[k]}, v{SM[k+1]}")
        for d in XA.values(): p(f"v_add_u32 v{d}, 0x1c00, v{d}")
        s0 = SM[NR-1]
        p(f"v_mul_f32 v{s0}, v{AX}, v{AT}")
        p(f"v_mul_f32 v{PT}, v{AX+1}, v{AT+1}")
        for r in range(2, 13):
            p(f"v_fmac_f32 v{s0 if r % 2 == 0 else PT}, v{AX+r}, v{AT+r}")
        p(f"s_sub_u32 s{S_N}, s{S_N}, 1")
        p(f"v_add_f32 v{s0}, v{s0}, v{PT}")
    def mb_loads():
        p(f"buffer_load_dwordx{NR} v[{MBX}:{MBX+NR-1}], v{VMB}, s[{S_WS}:{S_WS+3}], s{S_MB} offen sc1")
    def emit_mb():
        sk = L("nomb")
        p(f"s_cmp_lg_u32 s{S_N}, 1")
        p(f"s_cbranch_scc1 {sk}")
        mb_loads()
        p.label(sk)
    save = p.L; p.L = []
    body(lambda: None)
    st1 = list(p.lg.q)
    p.L = save
    p(".p2align 3")
    p.label("L_row")
    body(emit_mb)
    assert st1 == p.lg.q
    if cfg.stamps in (1, 2):
        for i in range(3): p(f"s_mov_b32 s{S_ST+23+i}, s{S_ST+24+i}")
        stamp(26)
    if cfg.flip:
        p(f"s_cmp_lg_u32 s{S_N}, {4 - cfg.flip}")
        p("s_cbranch_scc1 L_noflip")
        p("s_setprio 0")
        p.label("L_noflip")
    p(f"s_cmp_lg_u32 s{S_N}, 0")
    p("s_cbranch_scc1 L_row")
    p.label("L_mbw")
    p("s_waitcnt vmcnt(0)")
    if NR == 4:
        p(f"v_max3_u32 v1, v{MBX}, v{MBX+1}, v{MBX+2}")
        p(f"v_max_u32 v1, v1, v{MBX+3}")
    else: p(f"v_max_u32 v1, v{MBX}, v{MBX+1}")
    p("v_cmp_eq_u32 vcc, -1, v1")
    p("s_nop 1")
    p("s_cmp_eq_u64 vcc, 0")
    p("s_cbranch_scc1 L_mbok")
    p("s_sleep 1")
    mb_loads()
    p(f"s_sub_u32 s{S_SPIN}, s{S_SPIN}, 1")
    p("s_cbranch_scc0 L_mbw")
    p("s_endpgm")
    p.label("L_mbok")
    for k in range(NR): p(f"v_add_f32 v{SM[k]}, v{SM[k]}, v{MBX+k}")
    for ctl in ("quad_perm:[1,0,3,2] row_mask:0xf", "quad_perm:[2,3,0,1] row_mask:0xf", "row_half_mirror row_mask:0xf",
                "row_mirror row_mask:0xf", "row_bcast:15 row_mask:0xa", "row_bcast:31 row_mask:0xc"):
        if NR == 2: p("s_nop 0")
        for k in range(NR): p(f"v_add_f32_dpp v{SM[k]}, v{SM[k]}, v{SM[k]} {ctl} bank_mask:0xf")
    for k in range(NR): p(f"v_add_f32 v{SM[k]}, v{SM[k]}, v{VBO}")
    p(f"v_cvt_pk_bf16_f32 v2, v{SM[0]}, v{SM[1]}")
    p(f"v_cvt_pk_bf16_f32 v3, v{SM[2]}, v{SM[3]}")
    p(f"v_mov_b32 v1, s{S_O}")
    p("s_mov_b32 exec_lo, 0")
    p("s_mov_b32 exec_hi, 0x80000000")
    if cfg.bal:
        p(f"s_cmp_eq_u32 s{S_NR}, 4")
        p("s_cbranch_scc1 L_st4")
        p(f"global_store_short_d16_hi v1, v3, s[{S_OUT}:{S_OUT+1}]")
        p(f"s_cmp_eq_u32 s{S_NR}, 1")
        p("s_cbranch_scc1 L_std")
        p(f"global_store_short v1, v3, s[{S_OUT}:{S_OUT+1}] offset:-2")
        p(f"global_store_short_d16_hi v1, v2, s[{S_OUT}:{S_OUT+1}] offset:-4")
        p("s_branch L_std")
        p.label("L_st4")
    p(f"global_store_dwordx2 v1, v[2:3], s[{S_OUT}:{S_OUT+1}] offset:-6")
    p.label("L_std")
    stamps_out()
    p.label("L_end")
    p("s_endpgm")

    p.vm.q = dnn_vm; p.lg.clear()
    p(".p2align 6")
    p.label("L_dnn")
    ACC = lambda t, q: 8*t + 4*q
    BF = lambda t: 56 + 4*t
    AR = lambda f, q: 84 + 8*(f % 2) + 4*q
    IDX = lambda f: 100 + f
    VO = lambda u: 128 + u
    V_B, V_A, V_CH, V_LANE, V_G8 = [130, 131, 132], [133, 134, 135], 136, 137, 138
    RAW = 140; RAW2 = 200
    S_SB, S_M0, S_AM = S_T+2, S_T+3, S_T+4
    if cfg.probe:
        p("s_cmp_ge_u32 s2, 8")
        p("s_cbranch_scc1 L_pr1")
        p("s_lshl_b32 s90, s2, 2")
        p("v_mov_b32 v1, s90")
        p("v_mov_b32 v2, s96")
        p(f"global_store_dword v1, v2, s[{S_DBG}:{S_DBG+1}] offset:8 sc1")
        p("s_waitcnt vmcnt(0)")
        p.label("L_pr1")
    srd(S_B1, 10, 1664)
    srd(S_TAB, 2, 6400000)
    srd(S_W2, 12, 1664)
    srd(S_WS, None, WS_END)
    ws_shift()
    if cfg.pxa >= 0:
        p("s_getreg_b32 s91, hwreg(HW_REG_XCC_ID)")
        p("s_and_b32 s91, s91, 15")
        p(f"s_cmp_lg_u32 s2, {cfg.pxa}")
        p("s_cbranch_scc1 L_pxa")
        p("v_mov_b32 v1, 0")
        p("v_mov_b32 v2, s91")
        p(f"global_store_dword v1, v2, s[{S_DBG}:{S_DBG+1}] offset:8 sc1")
        p("s_waitcnt vmcnt(0)")
        p.label("L_pxa")
    if cfg.plat:
        sr_, off = {1: (S_TAB, 3000320), 2: (S_W1, 1300096), 3: (S_WS, 4096), 5: (S_DBG+0, 0), 4: (S_TAB, 5000320)}[cfg.plat]
        p("s_waitcnt vmcnt(0)")
        p(f"v_mov_b32 v1, {off}")
        p(f"buffer_load_dword v2, v1, s[{sr_}:{sr_+3}], 0 offen offset:2048")
        p("s_waitcnt vmcnt(0)")
        p("s_lshl_b32 s90, s2, 7")
        p("s_memrealtime s[94:95]")
        p("s_waitcnt lgkmcnt(0)")
        p(f"buffer_load_dword v2, v1, s[{sr_}:{sr_+3}], s90 offen offset:4)".replace(")", ""))
        p("s_waitcnt vmcnt(0)")
        p("s_memrealtime s[92:93]")
        p("s_waitcnt lgkmcnt(0)")
        p("s_sub_u32 s92, s92, s94")
        p("s_mul_i32 s92, s92, 10")
        p("s_add_u32 s92, s92, s96")
    stamp(10)
    p(f"s_mov_b32 s{S_SPIN}, 0x40000")
    p(f"s_mul_i32 s{S_COL}, s{S_CP}, 416")
    S_M1, S_WR = S_T+5, S_T+6
    p(f"s_mov_b32 s{S_SB}, s{S_COL}")
    p(f"s_and_b32 s{S_WR}, s{S_WAVE}, 3")
    p(f"s_lshl_b32 s{S_T}, s{S_WAVE}, 1")
    p(f"s_sub_u32 s{S_T}, s{S_T}, 4")
    p(f"s_add_u32 s{S_T+1}, s{S_T}, 1")
    p(f"s_cmp_lt_u32 s{S_WAVE}, 4")
    p(f"s_cselect_b32 s{S_M0}, s{S_WAVE}, s{S_T}")
    p(f"s_cselect_b32 s{S_M1}, 12, s{S_T+1}")
    p(f"s_lshl_b32 s{S_M0}, s{S_M0}, 10")
    p(f"s_lshl_b32 s{S_M1}, s{S_M1}, 10")
    p(f"s_lshl_b32 s{S_AM}, s{S_WAVE}, 10")
    p(f"s_add_u32 s{S_AM}, s{S_AM}, {BSZ}")
    p(f"s_lshr_b32 s{S_T}, s{S_WAVE}, 2")
    p(f"s_mul_i32 s{S_T}, s{S_T}, 224")
    p(f"s_add_u32 s{S_COL}, s{S_COL}, s{S_T}")
    p(f"s_movk_i32 s{S_T+1}, 1248")
    p(f"s_movk_i32 s{S_T+7}, 6656")
    for u in range(2):
        p(f"v_add_u32 v3, s{(S_M0, S_M1)[u]}, v{V_L}")
        p("v_lshlrev_b32 v4, 4, v3")
        p("v_mul_hi_u32_u24 v4, 0x9d89e, v4")
        p("v_bfe_u32 v5, v4, 2, 1")
        p("v_bfe_i32 v6, v4, 3, 1")
        p("v_add_u32 v5, v5, v6")
        p(f"v_mad_i32_i24 v5, v5, s{S_T+7}, v3")
        p(f"v_mad_u32_u24 v{VO(u)}, v4, s{S_T+1}, v5")
    p("v_lshrrev_b32 v1, 4, v0")
    p(f"s_add_u32 s{S_T+1}, s{S_T}, {IDXO}")
    p(f"v_lshl_add_u32 v{V_G8}, v1, 3, s{S_T+1}")
    p("v_lshrrev_b32 v2, 2, v0")
    p(f"v_mul_u32_u24 v2, 104, v2")
    p(f"s_add_u32 s{S_W}, s{S_W}, {IDXO}")
    p(f"v_add_u32 v139, s{S_W}, v2")
    p("v_lshrrev_b32 v2, 5, v0")
    p("v_mul_u32_u24 v3, 3, v2")
    p("v_xor_b32 v3, v3, v0")
    p("v_and_b32 v3, 3, v3")
    p(f"v_lshlrev_b32 v{V_CH}, 4, v3")
    p("v_bfe_u32 v3, v0, 3, 1")
    p("v_mul_u32_u24 v3, 3, v3")
    p("v_xor_b32 v3, v3, v1")
    p("v_and_b32 v4, 15, v0")
    p("v_lshlrev_b32 v4, 6, v4")
    p("v_lshl_add_u32 v3, v3, 4, v4")
    p(f"s_and_b32 s{S_T+1}, s{S_WAVE}, 3")
    p(f"s_lshl_b32 s{S_T+1}, s{S_T+1}, 11")
    p(f"s_add_u32 s{S_T+1}, s{S_T+1}, {BSZ}")
    p(f"v_add_u32 v{V_A[0]}, s{S_T+1}, v3")
    p("v_bfe_u32 v3, v0, 2, 3")
    p("v_lshl_add_u32 v2, v2, 4, v3")
    p("v_mul_u32_u24 v2, 0x1a0, v2")
    p("v_and_b32 v3, 3, v0")
    p("v_lshl_add_u32 v2, v3, 3, v2")
    p(f"v_add_u32 v{V_B[0]}, s{S_T}, v2")
    for k in (1, 2):
        p(f"v_add_u32 v{V_A[k]}, {3*k*SLOT}, v{V_A[0]}")
        p(f"v_add_u32 v{V_B[k]}, {3*k*SLOT}, v{V_B[0]}")
    p(f"v_mov_b32 v{V_LANE}, v0")
    p.wait(vm="idx")
    stamp(1)
    if cfg.dbench:
        p("s_mov_b32 s3, 0")
        p.label("L_again")
    for m in range(6):
        p.lds(f"ds_read2_b64 v[{100+4*m}:{103+4*m}], v139 offset0:{2*m} offset1:{2*m+1}", f"ix{m}")
    p.lds("ds_read_b64 v[124:125], v139 offset:96", "ix6")
    def a_dma(f):
        p.wait(lg=f"ix{f >> 2}")
        p(f"s_add_u32 m0, s{S_AM}, {(f % RB)*SLOT}")
        p(f"v_lshl_add_u32 v{IDX(f)}, v{IDX(f)}, 6, v{V_CH}")
        p.vmem(f"buffer_load_dwordx4 v{IDX(f)}, s[{S_TAB}:{S_TAB+3}], 0 offen{' nt' if f < cfg.nta else ''} lds", f"F{f}")
    def b_dma(f, u, T):
        if u == 1:
            if f: p(f"s_add_u32 s{S_SB}, s{S_SB}, 53248")
            sk = L("np")
            if T != 6:
                if T == 0:
                    p(f"s_cmp_ge_u32 s{S_WAVE}, 4")
                    p(f"s_cselect_b32 s{S_X}, {f & 3}, s{S_WR}")
                    p(f"s_cmp_lg_u32 s{S_X}, {f & 3}")
                else: p(f"s_cmp_lg_u32 s{S_WR}, {f & 3}")
                p(f"s_cbranch_scc1 {sk}")
            p(f"s_add_u32 m0, s{S_M1}, {(f % RB)*SLOT}")
            p("s_nop 0")
            p(f"buffer_load_dwordx4 v{VO(1)}, s[{S_W1}:{S_W1+3}], s{S_SB} offen lds")
            if T == 6: p.vm.issue(f"F{f}")
            else: p.label(sk)
        else:
            p(f"s_add_u32 m0, s{S_M0}, {(f % RB)*SLOT}")
            p("s_nop 0")
            p.vmem(f"buffer_load_dwordx4 v{VO(0)}, s[{S_W1}:{S_W1+3}], s{S_SB} offen lds", f"F{f}")
    def fill(f, T): a_dma(f); b_dma(f, 1, T); b_dma(f, 0, T)
    BWO = IDXO
    p(f"s_cmp_ge_u32 s{S_WAVE}, {0 if cfg.dbench else 2}")
    p("s_cbranch_scc1 L_nobw")
    p(f"s_mul_i32 s{S_X}, s{S_CP}, 416")
    p(f"s_cmp_eq_u32 s{S_WAVE}, 0")
    p(f"s_cselect_b64 s[{S_W2}:{S_W2+1}], s[{S_B1}:{S_B1+1}], s[{S_W2}:{S_W2+1}]")
    p(f"s_mov_b32 m0, s{S_W}")
    p("s_mov_b64 exec, 0xfffffff")
    p("s_waitcnt lgkmcnt(0)")
    p(f"buffer_load_dwordx4 v{V_L}, s[{S_W2}:{S_W2+3}], s{S_X} offen lds")
    p("s_mov_b64 exec, -1")
    p.label("L_nobw")
    if cfg.sw < 26:
        p(f"v_lshlrev_b32 v{V_C}, 2, v{V_LANE}")
        p(f"v_add_u32 v{V_C}, {IDXO + 2*1664}, v{V_C}")
        p(f"v_mov_b32 v{V_ONE}, 1")
        p(f"s_cmp_lg_u32 s{S_WAVE}, 2")
        p("s_cbranch_scc1 L_noz")
        p(f"v_mov_b32 v{V_POLL}, 0")
        p("s_waitcnt lgkmcnt(0)")
        p(f"ds_write_b32 v{V_C}, v{V_POLL}")
        p("s_waitcnt lgkmcnt(0)")
        p.label("L_noz")
    def lo(f): return (f % RB)//3, ((f % RB) % 3)*SLOT
    def b_read1(f, t, r2):
        k, off = lo(f)
        p.lds(f"ds_read_b64_tr_b16 v[{BF(t)+2*r2}:{BF(t)+2*r2+1}], v{V_B[k]} offset:{off + 32*t + 3328*r2}", f"b{f}_{t}")
    def a_read(f):
        k, off = lo(f)
        for q in range(2):
            p.lds(f"ds_read_b128 v[{AR(f, q)}:{AR(f, q)+3}], v{V_A[k]} offset:{off + 1024*q}", f"a{f}")
    p(f"s_cmp_ge_u32 s{S_WAVE}, 4")
    p("s_cbranch_scc1 L_dnn6")
    W2R = lambda t, r: 170 + 4*t + r
    def w2_unpack():
        return [x for t in range(7) for h in range(2) for x in
                (f"v_lshlrev_b32 v{W2R(t,2*h)}, 16, v{RAW2+2*t+h}", f"v_and_b32 v{W2R(t,2*h+1)}, 0xffff0000, v{RAW2+2*t+h}")]
    vm0, lg0 = list(p.vm.q), list(p.lg.q)
    def dnn_main(T):
        p.vm.q, p.lg.q = list(vm0), list(lg0)
        fill(0, T)
        fill(1, T)
        p.wait(vm="F0")
        p("s_barrier")
        stamp(12)
        for t in range(T):
            p.lds(f"ds_read_b64 v[{RAW+2*t}:{RAW+2*t+1}], v{V_G8} offset:{32*t}", "bias")
        a_read(0)
        for t in range(T):
            for r2 in range(2): b_read1(0, t, r2)
        p.wait(lg="bias")
        for t in range(T):
            for h in range(2):
                p(f"v_lshlrev_b32 v{ACC(t,0)+2*h}, 16, v{RAW+2*t+h}")
                p(f"v_and_b32 v{ACC(t,0)+2*h+1}, 0xffff0000, v{RAW+2*t+h}")
        for f in range(2, cfg.look): fill(f, T)
        p.wait(vm=tuple(f"F{k}" for k in range(cfg.barp + 1)))
        p("s_barrier")
        if T == 6 and cfg.prio_hi: p(f"s_setprio {cfg.prio_hi}")
        stamp(2)
        nxt = cfg.look
        w2ops = w2_unpack()
        free = -1; landed = cfg.barp
        for f in range(26):
            todo = []
            soft = f > cfg.sw and f <= 23
            top = f < cfg.early or (cfg.dpos == 4 and T == 6) or (cfg.dpos == 1 and T == 7)
            lim = (f - 1 if soft and not top else free) + RB
            nfill = 2 if (cfg.cmask >> f & 1 if cfg.cmask else cfg.catch0 <= f < cfg.catch0 + cfg.catch) else 1
            if f >= cfg.b2: nfill = (2 if (f % 2 == 0) == ((T == 6) == (cfg.dpos == 4)) else 0)
            for _ in range(nfill):
                if nxt < 26 and nxt <= lim:
                    todo += [(a_dma, (nxt,)), (b_dma, (nxt, 1, T)), (b_dma, (nxt, 0, T))]; nxt += 1
            if cfg.nodma and f >= 4:
                keep = []
                for fn, ar in todo:
                    if (fn is a_dma and cfg.nodma & 1) or (fn is b_dma and cfg.nodma & 2): continue
                    keep.append((fn, ar))
                todo[:] = keep
            n_it = len(todo)
            if f < cfg.early: at = [-1]*n_it
            elif cfg.dpos == 0: at = list(range(n_it))
            elif cfg.dpos == 1: at = [-1]*n_it if T == 7 else [T-1]*n_it
            elif cfg.dpos == 2: at = [(2*i + (T == 6)) if n_it <= 3 else i for i in range(n_it)]
            elif cfg.dpos == 3: at = [0]*n_it if T == 7 else [T-1]*n_it
            elif cfg.dpos == 4: at = [T-1]*n_it if T == 7 else [-1]*n_it
            elif cfg.dpos == 5: at = [i//(2 if n_it > 3 else 1) for i in range(n_it)] if T == 7 else [3 + i//(2 if n_it > 3 else 1) for i in range(n_it)]
            if soft and not top: at = [min(max(a, cfg.chk + i*(cfg.dpos in (0, 2))), T-1) for i, a in enumerate(at)]
            assert f == 25 or f + 1 <= landed
            def drain(t):
                while todo and at[0] <= t:
                    at.pop(0); fn, ar = todo.pop(0); fn(*ar)
            drain(-1)
            for t in range(T):
                p.wait(lg=(f"b{f}_{t}", f"a{f}"))
                b = f"v[{BF(t)}:{BF(t)+3}]"
                a0, a1 = ACC(t, 0), ACC(t, 1)
                c1 = a0 if f == 0 else a1
                p(f"v_mfma_f32_16x16x32_bf16 v[{a1}:{a1+3}], {b}, v[{AR(f,1)}:{AR(f,1)+3}], v[{c1}:{c1+3}]")
                if t and f < 25: b_read1(f+1, t-1, 1)
                elif t == 0 and f: b_read1(f, T-1, 1)
                p(f"v_mfma_f32_16x16x32_bf16 v[{a0}:{a0+3}], {b}, v[{AR(f,0)}:{AR(f,0)+3}], v[{a0}:{a0+3}]")
                if f < 25: b_read1(f+1, t, 0)
                if t == cfg.arp and f < 25: a_read(f + 1)
                if soft and t == cfg.chk - 2: poll_issue(4*(f-1))
                if soft and t == cfg.chk:
                    check(4*(f-1), 8, issued=True)
                    free = f - 1; landed = f + 2
                drain(t)
                if f == 21:
                    for tt in ([t] if t < T - 1 else range(t, 7)):
                        p.lds(f"ds_read_b64 v[{RAW2+2*tt}:{RAW2+2*tt+1}], v{V_G8} offset:{1664 + 32*tt}", "w2")
                if cfg.w2early and f in (23, 24):
                    if f == 23 and t == 0: p.wait(lg="w2")
                    for _ in range(3):
                        if w2ops: p(w2ops.pop(0))
            assert not todo
            if f >= cfg.sw:
                if f <= 22:
                    assert nxt > f + 3
                    p.wait(vm=tuple(f"F{k}" for k in range(f + 4)))
                    arrive(4*f)
            elif f <= cfg.lb and (f + 1) % cfg.barp == 0 and (f < cfg.b2 or f % 2):
                last = min(f + 1 + cfg.barp + (f + 1 == cfg.sw or f + 1 >= cfg.b2), 25) if f < cfg.lb else 25
                assert nxt > last
                p.wait(vm=tuple(f"F{k}" for k in range(last + 1)))
                if not cfg.nobar: p("s_barrier")
                free = f; landed = last
            if f == cfg.lb and cfg.tailprio is not None and T == cfg.tailprio: p("s_setprio 1")
            if f % 4 == 0 and (not cfg.dbench or f in (8, 20)): stamp(14 + f//4)
        assert nxt == 26 and not (cfg.w2early and w2ops)
    dnn_main(7)
    p("s_branch L_gelu")
    p(".p2align 6")
    p.label("L_dnn6")
    dnn_main(6)
    p.label("L_gelu")
    if cfg.dbench:
        p("s_barrier")
        p(f"s_mul_i32 s{S_SB}, s{S_CP}, 416")
        p("s_add_u32 s3, s3, 1")
        p("s_cmp_lt_u32 s3, 2")
        p("s_cbranch_scc1 L_again")
    stamp(3)
    p("v_mov_b32 v98, 0")
    p(f"global_load_dword v99, v98, s[{S_DBG}:{S_DBG+1}] sc1")
    if not cfg.w2early:
        p.wait0(vm=True)
        for x in w2_unpack(): p(x)
    k0 = -2.0*math.sqrt(2.0/math.pi)*math.log2(math.e)
    T1, T2, SUM, VC = 56, 64, 92, 72
    P = lambda a: f"v[{a}:{a+1}]"
    for r, c in enumerate((k0*0.044715, k0)):
        for h in range(2): p(f"v_mov_b32 v{VC+2*r+h}, {f2h(c)}")
    for r in range(4): p(f"v_mov_b32 v{SUM+r}, 0")
    for t in range(7):
        if t == 6:
            p(f"s_cmp_ge_u32 s{S_WAVE}, 4")
            p("s_cbranch_scc1 L_gelu6")
        x = ACC(t, 0)
        if cfg.pk:
            for r in range(0, 8, 2): p(f"v_pk_mul_f32 {P(T1+r)}, {P(x+r)}, {P(x+r)}")
            for r in range(0, 8, 2): p(f"v_pk_fma_f32 {P(T1+r)}, {P(T1+r)}, {P(VC)}, {P(VC+2)}")
            for r in range(0, 8, 2): p(f"v_pk_mul_f32 {P(T1+r)}, {P(T1+r)}, {P(x+r)}")
            for r in range(8): p(f"v_exp_f32 v{T1+r}, v{T1+r}")
            for r in range(0, 8, 2): p(f"v_pk_mul_f32 {P(T2+r)}, {P(x+r)}, {P(W2R(t, r & 3))}")
            for r in range(0, 8, 2): p(f"v_pk_add_f32 {P(T1+r)}, {P(T1+r)}, 1.0 op_sel_hi:[1,0]")
            for r in range(8): p(f"v_rcp_f32 v{T1+r}, v{T1+r}")
            for r in (0, 4, 2, 6): p(f"v_pk_fma_f32 {P(SUM+2*(r >> 2))}, {P(T1+r)}, {P(T2+r)}, {P(SUM+2*(r >> 2))}")
        else:
            for r in range(8): p(f"v_mul_f32 v{T1+r}, v{x+r}, v{x+r}")
            for r in range(8): p(f"v_fma_f32 v{T1+r}, v{T1+r}, v{VC}, v{VC+2}")
            for r in range(8): p(f"v_mul_f32 v{T1+r}, v{T1+r}, v{x+r}")
            for r in range(8): p(f"v_exp_f32 v{T1+r}, v{T1+r}")
            for r in range(8): p(f"v_mul_f32 v{T2+r}, v{x+r}, v{W2R(t, r & 3)}")
            for r in range(8): p(f"v_add_f32 v{T1+r}, 1.0, v{T1+r}")
            for r in range(8): p(f"v_rcp_f32 v{T1+r}, v{T1+r}")
            for r in range(8): p(f"v_fmac_f32 v{SUM+2*(r >> 2)+(r & 1)}, v{T1+r}, v{T2+r}")
    p.label("L_gelu6")
    p(f"v_add_f32 v{SUM}, v{SUM}, v{SUM+1}")
    p(f"v_add_f32 v{SUM+2}, v{SUM+2}, v{SUM+3}")
    p(f"v_and_b32 v84, 15, v{V_LANE}")
    p(f"v_lshrrev_b32 v85, 5, v{V_LANE}")
    p(f"v_permlane32_swap_b32 v{SUM}, v{SUM+2}")
    p("v_lshl_add_u32 v84, v85, 4, v84")
    p(f"v_add_f32 v{SUM}, v{SUM}, v{SUM+2}")
    p(f"v_bfe_u32 v85, v{V_LANE}, 4, 1")
    p(f"v_mov_b32 v{SUM+1}, v{SUM}")
    p("v_lshlrev_b32 v84, 2, v84")
    p("v_lshl_add_u32 v84, v85, 30, v84")
    p(f"v_permlane16_swap_b32 v{SUM}, v{SUM+1}")
    p(f"s_lshl2_add_u32 s{S_T}, s{S_RG}, s{S_CP}")
    p(f"v_add_f32 v{SUM}, v{SUM}, v{SUM+1}")
    p(f"s_lshl3_add_u32 s{S_T}, s{S_T}, s{S_WAVE}")
    p(f"s_lshl_b32 s{S_T}, s{S_T}, 7")
    p(f"v_min_u32 v{SUM}, -2, v{SUM}")
    if cfg.noprep or cfg.dbench: p("s_branch L_pub")
    p.label("L_dflag")
    p("s_waitcnt vmcnt(0)")
    p(f"v_readfirstlane_b32 s{S_X}, v99")
    p(f"s_cmp_ge_u32 s{S_X}, 26")
    p("s_cbranch_scc1 L_pub")
    p(f"global_load_dword v99, v98, s[{S_DBG}:{S_DBG+1}] sc1")
    p("s_sleep 4")
    p(f"s_sub_u32 s{S_SPIN}, s{S_SPIN}, 1")
    p("s_cbranch_scc0 L_dflag")
    p("s_endpgm")
    p.label("L_pub")
    p(f"buffer_store_dword v{SUM}, v84, s[{S_WS}:{S_WS+3}], s{S_T} offen sc1")
    stamp(4)
    if cfg.probe:
        p("s_cmp_lg_u32 s2, 0")
        p("s_cbranch_scc1 L_pr2")
        p(f"v_lshlrev_b32 v1, 2, v{V_LANE}")
        p(f"global_load_dword v2, v1, s[{S_DBG}:{S_DBG+1}] offset:8 sc1")
        p("s_waitcnt vmcnt(0)")
        for i in range(8): p(f"v_readlane_b32 s{80+i}, v2, {i}")
        p("s_mov_b32 s90, s80"); p("s_mov_b32 s91, s80")
        for i in range(1, 8):
            p(f"s_min_u32 s90, s90, s{80+i}"); p(f"s_max_u32 s91, s91, s{80+i}")
        if cfg.probe == 1: p("s_sub_u32 s90, s91, s90")
        else: p(f"s_sub_u32 s90, s{80+cfg.probe-2}, s90")
        p("s_mul_i32 s90, s90, 20")
        p("s_min_u32 s90, s90, 20000")
        p("s_memrealtime s[92:93]"); p("s_waitcnt lgkmcnt(0)")
        p("s_add_u32 s92, s92, s90")
        p.label("L_pr")
        p("s_memrealtime s[94:95]"); p("s_waitcnt lgkmcnt(0)")
        p("s_cmp_lt_u32 s94, s92")
        p("s_cbranch_scc1 L_pr")
        p.label("L_pr2")
    stamps_out()
    p("s_endpgm")

    p(".p2align 6")
    p(".type gather_table,@object")
    p.label("gather_table")
    zt = P_Z - PS
    for role in range(2):
        for lane in range(64):
            s, half = lane >> 1, lane & 1
            ad = []
            for e in range(8):
                pr = slot_pair(s, half, e) if s < (24 if role == 0 else 22) else None
                at = (lambda j, k: P_D1 - PS + k*144 + j*4) if role == 0 else (lambda j, k: P_W1 - PS + (j*26 + k)*2)
                if pr is None: ad += [zt, zt]
                elif pr[1] is None: ad += [at(pr[0], 26), zt]
                elif pr[0] == pr[1] or norm(pr) == (24, 25): ad += [at(*pr), zt]
                else: ad += [at(pr[0], pr[1]), at(pr[1], pr[0])]
            p(".short " + ", ".join(str(a) for a in ad))
    p(".size gather_table, 4096")
    return p

def header():
    return """; xDeepFM (CIN + DNN) forward, one launch, 256 workgroups (S1).
; Kernarg: idx, table, ws_cin, w_cin_out, w_dnn1, b_dnn1, w_dnn2, b_out, out, debug, ws
; @launch grid=(256,1,1) block=(512,1,1) lds=%d
.amdgcn_target "amdgcn-amd-amdhsa--gfx950"
.text
""" % LDS_SIZE
def footer():
    nv = 256
    return f""".section .rodata,"a"
.p2align 6
.amdhsa_kernel {NAME}
  .amdhsa_next_free_vgpr {nv}
  .amdhsa_next_free_sgpr 102
  .amdhsa_accum_offset {nv}
  .amdhsa_group_segment_fixed_size 0
  .amdhsa_kernarg_size 88
  .amdhsa_user_sgpr_count 2
  .amdhsa_user_sgpr_kernarg_segment_ptr 1
  .amdhsa_system_sgpr_workgroup_id_x 1
  .amdhsa_float_denorm_mode_32 3
.end_amdhsa_kernel
"""
if __name__ == "__main__":
    out = sys.argv[1]
    for a in sys.argv[2:]:
        k, v = a.split("=")
        setattr(cfg, k, type(getattr(cfg, k))(int(v)))
    open(out, "w").write(header() + build().text() + footer())
```

```python
import sys, struct, math
from asmlib import *
from slots import *

NAME = "standalone__deep_cross_xdeepfm__recsys_kernel"
class Cfg:
    stamps = 0
    NRES = 31
    R = 3
    prio_prep = 3
    prio_hi = 0
    poll_sleep = 2
    idle_sleep = 1
    gon = 5
    bal = 0
    lt0 = 2
    lt1 = 5
    early = 4
    look = 3
    cmask = 0
    catch0 = 4
    catch = 4
    etouch = 0
    dtouch = 1
    mtouch = 1
    ttouch = 0
    xwin = 4
    pfcode = 1
    pfn = 6
    pf0 = 0
    flip = 2
    w2early = 1
    dpos = 4
    ltouch = 0
    pk = 1
    ctouch = 1
    wrot = 1
    direct = 1
    two = 1
    sflag = 0
    w3last = 1
    ntx = 0
    nta = 0
    nti = 0
    pre = 0
    pst = -1
    pcyc = 0
    pxa = -1
    plat = 0
    wsoff = 0
    dwarm = 1
    pwg = 0
    pwave = 0
    probe = 0
    dbench = 0
    nodma = 0
    nobar = 0
    lb = 21
    tailprio = 0
    b2 = 26
    sw = 26
    chk = 3
    barp = 1
    arp = 1
    noprep = 0
    clrpos = 1
    xstart = 0
    xbar = 4
    pdelay = 1
    hold = 0
cfg = Cfg()

LDS_SIZE = 163840
XO = 0
WO = 8*7168
PS = WO + 96*528
P_W3 = PS; P_M3T = PS + 36864; P_D1 = PS + 38912; P_W1 = PS + 43520; P_Z = PS + 45568; P_DUM = PS + 45824
CO = LDS_SIZE - 512
IX2 = PS + 46080
assert P_DUM + 256 <= CO
C_PA, C_PB, C_XL, C_FLAG, C_GO, C_G0, C_PI = 0, 4, 8, 12, 16, 20, 24
RB = 7
BSZ = 13312
SLOT = BSZ + 8192
IDXO = RB*SLOT
assert IDXO + 8*1664 == LDS_SIZE
MBOX = 0; WS_W = 131072; BLK = 1664; WS_END = WS_W + 26*BLK; WS_STAMP = 1 << 20
S_IDX, S_TAB, S_W1, S_WCIN, S_WCO, S_B1, S_W2, S_WS = 4, 8, 12, 16, 20, 24, 28, 32
S_OUT, S_DBG, S_BOUT = 36, 38, 40
S_WAVE, S_RG, S_CP, S_FB, S_COL, S_W = 42, 43, 44, 45, 46, 47
S_PC, S_SPIN, S_X = 48, 50, 51
KA = 52
S_T = 52
S_ST = 70
V_C, V_ONE, V_POLL, V_L = 162, 163, 164, 165
FRM = "0x20000"

def f2h(x): return "0x%08x" % struct.unpack("<I", struct.pack("<f", x))[0]

def build():
    p = Prog()
    lab = [0]
    def L(n):
        lab[0] += 1
        return f"L_{n}_{lab[0]}"
    def stamp(i):
        if cfg.pst == i:
            p("s_memtime s[92:93]" if cfg.pcyc else "s_memrealtime s[92:93]")
            p.wait0(lg=True)
        if cfg.stamps and (cfg.stamps != 3 or i == 8):
            p(f"s_memrealtime s[68:69]" if cfg.stamps != 2 or i == 8 else "s_memtime s[68:69]")
            p.wait0(lg=True)
            if cfg.stamps != 2 or i == 8: p(f"s_mov_b32 s{S_ST+i}, s68")
            else:
                p("s_sub_u32 s68, s68, s100")
                p("s_lshr_b32 s68, s68, 4")
                p(f"s_add_u32 s{S_ST+i}, s68, s{S_ST}")
    def stamps_out():
        if cfg.pst >= 0:
            stamp(8)
            sk = L("npr"); lp = L("pr")
            p(f"s_cmp_lg_u32 s2, {cfg.pwg}")
            p(f"s_cbranch_scc1 {sk}")
            p(f"s_cmp_lg_u32 s{S_WAVE}, {cfg.pwave}")
            p(f"s_cbranch_scc1 {sk}")
            if cfg.pst == 0: p("s_mov_b32 s92, s96")
            if cfg.pst == 28:
                p(f"s_cmp_lg_u32 s{S_ST+27}, 0")
                p("s_cselect_b32 s92, 125, 0")
                p(f"s_cmp_ge_u32 s{S_ST+27}, 100")
                p("s_cselect_b32 s92, 250, s92")
                p(f"s_cmp_ge_u32 s{S_ST+27}, 101")
                p("s_cselect_b32 s92, 375, s92")
                p("s_add_u32 s92, s92, s96")
            if cfg.pxa >= 0:
                p("s_mov_b64 exec, -1")
                p("v_mov_b32 v1, 0")
                p(f"global_load_dword v2, v1, s[{S_DBG}:{S_DBG+1}] offset:8 sc1")
                p("s_waitcnt vmcnt(0)")
                p("v_readfirstlane_b32 s90, v2")
                p("s_cmp_lg_u32 s90, s91")
                p("s_cselect_b32 s90, 250, 0")
                p("s_add_u32 s92, s92, s90")
            if cfg.pcyc:
                p("s_sub_u32 s90, s92, s98")
                p("s_lshr_b32 s90, s90, 3")
            else:
                p("s_sub_u32 s90, s92, s96")
                p("s_mul_i32 s90, s90, 4")
            p("s_mov_b64 exec, 1")
            p("v_mov_b32 v1, 0")
            p("v_mov_b32 v2, s90")
            p(f"global_store_dword v1, v2, s[{S_DBG}:{S_DBG+1}] offset:4")
            p("s_add_u32 s90, s90, 2000")
            p("s_min_u32 s90, s90, 20000")
            p("s_add_u32 s90, s90, s96")
            p.label(lp)
            p("s_sleep 1")
            p("s_memrealtime s[94:95]"); p("s_waitcnt lgkmcnt(0)")
            p("s_cmp_lt_u32 s94, s90")
            p(f"s_cbranch_scc1 {lp}")
            p.label(sk)
        if not cfg.stamps: return
        stamp(8)
        p("s_mov_b64 exec, 1")
        p(f"s_lshl4_add_u32 s{S_T}, s2, s{S_WAVE}")
        p(f"s_lshl_b32 s{S_T}, s{S_T}, 7")
        p(f"s_add_u32 s{S_T}, s{S_T}, {WS_STAMP}")
        p(f"v_mov_b32 v1, s{S_T}")
        p("s_memtime s[68:69]")
        p("s_waitcnt lgkmcnt(0)")
        p(f"s_sub_u32 s{S_ST+29}, s68, s100")
        for i in range(30):
            p(f"v_mov_b32 v2, s{S_ST+i}")
            p(f"global_store_dword v1, v2, s[{S_WS}:{S_WS+1}] offset:{4*i}")
    def arrive(*offs):
        p("s_mov_b64 exec, 1")
        for off in offs: p.lds(f"ds_add_u32 v{V_C}, v{V_ONE} offset:{off}", "arr")
        p("s_mov_b64 exec, -1")
    def poll_issue(off):
        p.lds(f"ds_read_b32 v{V_POLL}, v{V_C} offset:{off}", "poll")
    def check(off, target, issued=False, sleep=0):
        ok = L("ok"); sp = L("spin")
        if issued:
            p.wait(lg="poll")
            p(f"v_readfirstlane_b32 s{S_X}, v{V_POLL}")
            p(f"s_cmp_ge_u32 s{S_X}, {target}")
            p(f"s_cbranch_scc1 {ok}")
        p.label(sp)
        if sleep: p(f"s_sleep {sleep}")
        p(f"ds_read_b32 v{V_POLL}, v{V_C} offset:{off}")
        p("s_waitcnt lgkmcnt(0)")
        p(f"v_readfirstlane_b32 s{S_X}, v{V_POLL}")
        p(f"s_sub_u32 s{S_SPIN}, s{S_SPIN}, 1")
        p("s_cbranch_scc1 L_end")
        p(f"s_cmp_ge_u32 s{S_X}, {target}")
        p(f"s_cbranch_scc0 {sp}")
        if not issued: p.lg.clear()
        p.label(ok)
    def srd(s, ka, n):
        if ka is not None: p(f"s_mov_b64 s[{s}:{s+1}], s[{KA+ka}:{KA+ka+1}]")
        p(f"s_mov_b32 s{s+2}, {n}")
        p(f"s_mov_b32 s{s+3}, {FRM}")
    def touch(vaddr, soff, mask):
        p(f"s_mov_b64 exec, {mask}" if mask < (1 << 31) else f"s_mov_b32 exec_hi, {hex(mask >> 32)}")
        p(f"buffer_load_dword v250, v{vaddr}, s[{S_W1}:{S_W1+3}], s{soff} offen")
        p("s_mov_b64 exec, -1")

    def ws_shift():
        if cfg.wsoff:
            p(f"s_add_u32 s{S_WS}, s{S_WS}, {cfg.wsoff << 20}")
            p(f"s_addc_u32 s{S_WS+1}, s{S_WS+1}, 0")
    def producer_index():
        p(f"s_lshr_b32 s{S_FB}, s2, 6")
        p(f"s_sub_u32 s{S_FB}, s{S_RG}, s{S_FB}")
        p(f"s_sub_u32 s{S_FB}, s{S_FB}, 1")
        p(f"s_and_b32 s{S_X}, s2, 0x37")
        p(f"s_sub_u32 s{S_X}, s{S_X}, 1")
        p(f"s_cmp_lt_u32 s{S_X}, 7")
        p(f"s_cselect_b32 s{S_FB}, s{S_FB}, 99")

    S_FL = 16
    FO = 128 if cfg.two else 0
    def flags_load(off):
        if cfg.sflag: p(f"s_load_dword s{S_FL}, s[{S_DBG}:{S_DBG+1}], {FO}")
        else: p(f"global_load_dword v11, v10, s[{S_DBG}:{S_DBG+1}] offset:{FO} sc1")
    def flags_test():
        if cfg.sflag: p("s_waitcnt lgkmcnt(0)")
        else:
            p("s_waitcnt vmcnt(0)")
            p(f"v_readfirstlane_b32 s{S_FL}, v11")
        p(f"s_cmp_ge_u32 s{S_FL}, 26")

    p(f".globl {NAME}\n.p2align 8\n.type {NAME},@function")
    p.label(NAME)
    p(f"s_load_dwordx16 s[{KA}:{KA+15}], s[0:1], 0")
    p(f"s_load_dwordx4 s[{S_OUT}:{S_OUT+3}], s[0:1], 64")
    p(f"s_load_dwordx2 s[{S_WS}:{S_WS+1}], s[0:1], 80")
    if cfg.probe or cfg.pst >= 0: p("s_memrealtime s[96:97]" if cfg.pst != 28 else "s_memrealtime s[96:97]")
    if cfg.pcyc: p("s_memtime s[98:99]")
    if cfg.stamps:
        p(f"s_memrealtime s[{S_ST}:{S_ST+1}]")
        p(f"s_memtime s[100:101]")
    p("v_lshrrev_b32 v1, 6, v0")
    p("v_and_b32 v0, 63, v0")
    p(f"v_readfirstlane_b32 s{S_WAVE}, v1")
    p("s_cmp_ge_u32 s2, 0x100")
    p("s_cbranch_scc1 L_end")
    p(f"s_and_b32 s3, s2, 7")
    p(f"s_lshr_b32 s{S_RG}, s2, 6")
    p(f"s_lshl3_add_u32 s{S_RG}, s{S_RG}, s3")
    p(f"s_bfe_u32 s{S_CP}, s2, 0x20004")
    p(f"v_lshlrev_b32 v{V_L}, 4, v0")
    p(f"v_lshlrev_b32 v160, 7, v0")
    srd(S_IDX, None, 4096*104)
    srd(S_W1, None, 832*1664)
    p("s_bitcmp1_b32 s2, 3")
    p("s_cbranch_scc1 L_cin")
    p(f"s_lshl3_add_u32 s3, s{S_RG}, s{S_WAVE}")
    p(f"s_mul_i32 s3, s3, 1664")
    p(f"s_mul_i32 s{S_W}, s{S_WAVE}, 1664")
    p(f"s_add_u32 m0, s{S_W}, {IDXO}")
    p(f"s_lshr_b32 s{S_X}, s2, 4")
    p(f"s_lshl3_add_u32 s{S_X}, s{S_X}, s{S_WAVE}")
    p(f"s_mul_i32 s{S_X}, s{S_X}, 2560")
    p.wait0(lg=True)
    p(f"s_mov_b64 s[{S_IDX}:{S_IDX+1}], s[{KA}:{KA+1}]")
    p(f"s_mov_b64 s[{S_W1}:{S_W1+1}], s[{KA+8}:{KA+9}]")
    for n in range(2):
        if n: p("s_mov_b32 exec_hi, 0xff")
        p.vmem(f"buffer_load_dwordx4 v{V_L}, s[{S_IDX}:{S_IDX+3}], s3 offen offset:{1024*n}{' nt' if cfg.nti else ''} lds", "idx")
    if not cfg.dtouch: p("s_mov_b32 exec_hi, -1")
    if cfg.dtouch:
        touch(160, S_X, 0xfffff); p.vm.issue("t")
    p("s_branch L_dnn")
    dnn_vm = list(p.vm.q)

    p.vm.clear(); p.lg.clear()
    p.label("L_cin")
    if cfg.dbench: p("s_endpgm")
    S_C = S_WAVE
    W3A, TBL, VV, AQ, VF, GA, MB, VT, CRAW = 28, 32, 40, 56, 72, 80, 96, 170, 152
    srd(S_WCO, None, 156)
    srd(S_WS, None, WS_END)
    p(f"s_mov_b32 s{S_SPIN}, 0x40000")
    p(f"v_lshlrev_b32 v{V_C}, 2, v0")
    p(f"v_add_u32 v{V_C}, {CO}, v{V_C}")
    p(f"v_mov_b32 v{V_ONE}, 1")
    p(f"s_cmp_ge_u32 s{S_WAVE}, 4")
    p("s_cbranch_scc1 L_xwave")
    srd(S_WCIN, None, 105456)
    producer_index()
    if cfg.noprep: p(f"s_mov_b32 s{S_FB}, 99")
    p(f"s_getpc_b64 s[{S_PC}:{S_PC+1}]")
    p.label("L_pc")
    p.wait0(lg=True)
    p(f"s_mov_b64 s[{S_WCIN}:{S_WCIN+1}], s[{KA+4}:{KA+5}]")
    ws_shift()
    if cfg.ttouch: srd(S_TAB, 2, 6400000)
    p(f"s_mov_b64 s[{S_W1}:{S_W1+1}], s[{KA+8}:{KA+9}]")
    p(f"s_mov_b64 s[{S_WCO}:{S_WCO+1}], s[{KA+6}:{KA+7}]")
    p(f"s_mov_b64 s[{S_BOUT}:{S_BOUT+1}], s[{KA+14}:{KA+15}]")
    def cinit_loads():
        p(f"v_lshrrev_b32 v8, 5, v0")
        p(f"v_lshlrev_b32 v9, 3, v8")
        p(f"v_lshlrev_b32 v8, 1, v8")
        for a in range(3):
            p(f"buffer_load_dwordx2 v[{CRAW+2*a}:{CRAW+2*a+1}], v9, s[{S_WCO}:{S_WCO+3}], 0 offen offset:{16*a}")
        p(f"buffer_load_ushort v{CRAW+6}, v8, s[{S_WCO}:{S_WCO+3}], 0 offen offset:48")
        p(f"v_mov_b32 v8, 0")
        p(f"global_load_ushort v{CRAW+7}, v8, s[{S_BOUT}:{S_BOUT+1}]")
    if cfg.mtouch or cfg.ttouch or cfg.ctouch:
        p(f"s_cmp_eq_u32 s{S_CP}, 0")
        p("s_cbranch_scc1 L_nomt")
        p(f"s_mul_i32 s{S_T}, s{S_RG}, 3")
        p(f"s_add_u32 s{S_T}, s{S_T}, s{S_CP}")
        p(f"s_lshl2_add_u32 s{S_T}, s{S_T}, s{S_C}")
        p(f"s_sub_u32 s{S_T}, s{S_T}, 4")
        if cfg.ctouch:
            p(f"s_lshr_b32 s{S_T+1}, s2, 6")
            p(f"s_mul_i32 s{S_T+1}, s{S_T+1}, 3")
            p(f"s_add_u32 s{S_T+1}, s{S_T+1}, s{S_CP}")
            p(f"s_lshl2_add_u32 s{S_T+1}, s{S_T+1}, s{S_C}")
            p(f"s_mul_i32 s{S_T+1}, s{S_T+1}, {6*128}")
            p(f"s_add_u32 s{S_T+1}, s{S_T+1}, {(549 - 24)*128}")
            p("s_mov_b64 exec, 63")
            p(f"buffer_load_dword v250, v160, s[{S_WCIN}:{S_WCIN+3}], s{S_T+1} offen")
            p("s_mov_b64 exec, -1")
        if cfg.mtouch:
            p(f"s_mul_i32 s{S_T+1}, s{S_T}, {22*128}")
            p(f"s_add_u32 s{S_T+1}, s{S_T+1}, {2496*128}")
            touch(160, S_T+1, (1 << 22) - 1)
        if cfg.ttouch:
            p(f"s_mul_i32 s{S_T+1}, s{S_T}, {cfg.ttouch*128}")
            p(f"s_mov_b64 exec, {(1 << cfg.ttouch) - 1}" if cfg.ttouch < 31 else f"s_mov_b32 exec_hi, {hex(((1 << cfg.ttouch) - 1) >> 32)}")
            p(f"buffer_load_dword v250, v160, s[{S_TAB}:{S_TAB+3}], s{S_T+1} offen")
            p("s_mov_b64 exec, -1")
        if cfg.pfcode == 2:
            p(f"s_lshr_b32 s{S_T+1}, s2, 6")
            p(f"s_mul_i32 s{S_T+1}, s{S_T+1}, 3")
            p(f"s_add_u32 s{S_T+1}, s{S_T+1}, s{S_CP}")
            p(f"s_lshl2_add_u32 s{S_T+1}, s{S_T+1}, s{S_C}")
            p(f"s_sub_u32 s{S_T+1}, s{S_T+1}, 4")
            p(f"s_mul_i32 s{S_T+1}, s{S_T+1}, {cfg.pfn*128}")
            p(f"s_add_u32 s{S_T+1}, s{S_T+1}, {cfg.pf0}")
            p(f"s_min_u32 s{S_T+1}, s{S_T+1}, gather_table-L_pc-{cfg.pfn*128}")
            p(f"s_add_u32 s{S_T+4}, s{S_PC}, s{S_T+1}")
            p(f"s_addc_u32 s{S_T+5}, s{S_PC+1}, 0")
            for u in range(cfg.pfn): p(f"s_load_dword s{S_T+6}, s[{S_T+4}:{S_T+5}], {128*u}")
        p("s_branch L_cbar")
        p.label("L_nomt")
    p(f"s_cmp_ge_u32 s{S_FB}, 26")
    p("s_cbranch_scc1 L_cbar")
    if cfg.prio_prep: p(f"s_setprio {cfg.prio_prep}")
    p(f"s_mul_i32 s{S_T+2}, s{S_FB}, {BLK}")
    p(f"s_add_u32 s{S_T+2}, s{S_T+2}, {WS_W}")
    def w3_dma():
        p(f"s_mul_i32 s{S_T}, s{S_C}, 9216")
        p(f"s_add_u32 s{S_T+1}, s{S_T}, 70304")
        p(f"s_add_u32 s{S_T}, s{S_T}, {P_W3}")
        for u in range(9):
            if u % 4 == 0:
                if u: p(f"s_add_u32 s{S_T+1}, s{S_T+1}, 0x1000")
                p(f"s_add_u32 m0, s{S_T}, {1024*u}")
                p("s_nop 0")
            p(f"buffer_load_dwordx4 v{V_L}, s[{S_WCIN}:{S_WCIN+3}], s{S_T+1} offen offset:{1024*(u % 4)} lds")
    if not cfg.w3last: w3_dma()
    p("v_and_b32 v2, 0x30, v0")
    p("v_bfe_u32 v1, v0, 2, 2")
    for q in range(4):
        p(f"v_xor_b32 v3, {q}, v1")
        p("v_lshl_add_u32 v3, v3, 28, v2")
        p(f"buffer_load_dwordx4 v[{AQ+4*q}:{AQ+4*q+3}], v3, s[{S_WCO}:{S_WCO+3}], 0 offen offset:104")
    p(f"s_cmp_ge_u32 s{S_C}, 2")
    p("s_cbranch_scc1 L_p23")
    p(f"s_lshl_b32 s{S_T}, s{S_C}, 11")
    p(f"s_add_u32 s{S_T}, s{S_T}, gather_table-L_pc")
    p(f"v_lshl_add_u32 v1, v0, 5, s{S_T}")
    p(f"global_load_dwordx4 v[{TBL}:{TBL+3}], v1, s[{S_PC}:{S_PC+1}]")
    p(f"global_load_dwordx4 v[{TBL+4}:{TBL+7}], v1, s[{S_PC}:{S_PC+1}] offset:16")
    p(f"s_cmp_lg_u32 s{S_C}, 0")
    p("s_cbranch_scc1 L_p1")
    p("v_lshrrev_b32 v3, 5, v0")
    p("v_mul_u32_u24 v3, 0x2a40, v3")
    p("v_and_b32 v2, 31, v0")
    p("v_lshl_add_u32 v3, v2, 1, v3")
    p(f"s_mul_i32 s{S_T}, s{S_FB}, 52")
    p(f"s_add_u32 s{S_T}, s{S_T}, 35152")
    for u in range(16):
        if u and u % 4 == 0:
            p(f"s_add_u32 s{S_T}, s{S_T}, {(4 if u != 8 else 12)*1352}")
        p(f"buffer_load_ushort v{VV+u}, v3, s[{S_WCIN}:{S_WCIN+3}], s{S_T} offen offset:{1352*(u % 4)}")
    p("s_branch L_pz")
    p.label("L_p1")
    p(f"s_mul_i32 s{S_T}, s{S_FB}, 1352")
    p(f"s_mov_b32 m0, {P_W1}")
    p("s_nop 0")
    for u in range(2):
        p(f"buffer_load_dwordx4 v{V_L}, s[{S_WCIN}:{S_WCIN+3}], s{S_T} offen offset:{1024*u} lds")
    p("s_branch L_pz")
    p.label("L_p23")
    p(f"s_cmp_lg_u32 s{S_C}, 3")
    p("s_cbranch_scc1 L_pz")
    p("v_lshlrev_b32 v1, 2, v0")
    p(f"buffer_load_dword v27, v1, s[{S_WCO}:{S_WCO+3}], 0 offen offset:52")
    if cfg.dwarm:
        p(f"s_cmp_lg_u32 s{S_FB}, 0")
        p("s_cbranch_scc1 L_nodw")
        p("v_mov_b32 v4, 0")
        p("s_mov_b64 exec, 1")
        p(f"global_atomic_add v4, v4, s[{S_DBG}:{S_DBG+1}] sc1")
        p("s_mov_b64 exec, -1")
        p.label("L_nodw")
    for r in range(4): p(f"v_mov_b32 v{4+r}, -1")
    p(f"buffer_store_dwordx4 v[4:7], v{V_L}, s[{S_WS}:{S_WS+3}], s{S_T+2} offen sc1")
    p("s_mov_b32 exec_hi, 0xff")
    p(f"buffer_store_dwordx4 v[4:7], v{V_L}, s[{S_WS}:{S_WS+3}], s{S_T+2} offen offset:1024 sc1")
    p("s_mov_b32 exec_hi, -1")
    p(f"s_mul_i32 s{S_T}, s{S_FB}, 5120")
    p(f"s_min_u32 s{S_T}, s{S_T}, {131072 - 5120}")
    p(f"s_add_u32 s{S_T+1}, s{S_T}, 0x1000")
    for u in range(5):
        p(f"buffer_store_dwordx4 v[4:7], v{V_L}, s[{S_WS}:{S_WS+3}], s{S_T+u//4} offen offset:{1024*(u % 4)} sc1")
    p.label("L_pz")
    if cfg.w3last: w3_dma()
    p("v_mov_b32 v2, 0")
    p("v_mov_b32 v3, 0")
    p(f"s_lshl_b32 s{S_T}, s{S_C}, 9")
    p(f"s_add_u32 s{S_T}, s{S_T}, {P_M3T}")
    p(f"v_lshl_add_u32 v1, v0, 3, s{S_T}")
    p("ds_write_b64 v1, v[2:3]")
    p(f"v_add_u32 v1, {P_Z - CO}, v{V_C}")
    p("ds_write_b32 v1, v2")
    p.label("L_cbar")
    if cfg.pfcode == 1:
        sk = L("nopf")
        p(f"s_cmp_lg_u32 s{S_C}, 2")
        p(f"s_cbranch_scc1 {sk}")
        p(f"s_lshr_b32 s{S_T}, s2, 4")
        p(f"s_mul_i32 s{S_T}, s{S_T}, 2560")
        p(f"v_add_u32 v2, s{S_T}, v160")
        p(f"v_min_u32 v2, gather_table-L_pc+4092, v2")
        p("s_mov_b64 exec, 0xfffff")
        p(f"global_load_dword v161, v2, s[{S_PC}:{S_PC+1}]")
        p("s_mov_b64 exec, -1")
        p.label(sk)
    p("v_mov_b32 v2, 0")
    p(f"ds_write_b32 v{V_C}, v2")
    p.wait0(lg=True)
    p("s_barrier")
    stamp(1)
    p(f"s_cmp_lt_u32 s{S_FB}, 26")
    p("s_cbranch_scc1 L_prep")
    cinit_loads()
    p("s_waitcnt vmcnt(0)")
    p("s_branch L_setup")
    p.label("L_prep")
    p("v_bfe_u32 v1, v0, 2, 2")
    p("v_lshrrev_b32 v4, 4, v0")
    p("v_lshl_add_u32 v4, v4, 3, v1")
    p("v_add_u32 v5, 4, v4")
    p("v_min_u32 v4, 25, v4")
    p("v_min_u32 v5, 25, v5")
    p("v_and_b32 v6, 3, v0")
    p(f"s_mul_i32 s{S_T}, s{S_C}, 384")
    p(f"s_add_u32 s{S_T}, s{S_T}, {P_W3}")
    p(f"v_lshl_add_u32 v6, v6, 3, s{S_T}")
    p(f"s_movk_i32 s{S_T+1}, 1352")
    p(f"v_mad_u32_u24 v2, v4, s{S_T+1}, v6")
    p(f"v_mad_u32_u24 v3, v5, s{S_T+1}, v6")
    p(f"s_mul_i32 s{S_T}, s{S_C}, 192")
    p(f"s_movk_i32 s{S_T+1}, -1662")
    p(f"v_mov_b32 v7, {P_DUM}")
    for u in range(3):
        p(f"v_add_u32 v4, s{S_T}, v0")
        if u < 2: p(f"s_add_u32 s{S_T}, s{S_T}, 64")
        p("v_mul_u32_u24 v5, 2521, v4")
        p("v_lshrrev_b32 v5, 16, v5")
        p("v_cmp_gt_u32 vcc, 0x2a4, v4")
        p("v_lshlrev_b32 v4, 6, v4")
        p(f"v_mad_i32_i24 v4, v5, s{S_T+1}, v4")
        p(f"v_add_u32 v4, {P_M3T}, v4")
        p(f"v_cndmask_b32 v{8+u}, v7, v4, vcc")
    p("v_and_b32 v5, 31, v0")
    p("v_lshrrev_b32 v4, 5, v0")
    p("v_lshlrev_b32 v6, 6, v5")
    p("v_lshl_add_u32 v6, v4, 4, v6")
    p(f"v_add_u32 v28, {P_M3T}, v6")
    p("v_mul_u32_u24 v5, 0x90, v5")
    p("v_lshl_add_u32 v5, v4, 4, v5")
    p(f"v_add_u32 v29, {P_D1}, v5")
    p(f"s_cmp_eq_u32 s{S_C}, 0")
    p(f"s_cselect_b32 s{S_T}, 768, 0")
    p(f"v_add_u32 v30, s{S_T}, v{V_L}")
    p(f"v_mov_b32 v11, {PS}")
    p(f"v_add_u32 v4, {P_M3T + 26*64 - CO}, v{V_C}")
    p(f"s_cmp_lg_u32 s{S_C}, 3")
    p("s_cbranch_scc1 L_w0")
    assert cfg.w3last
    p("s_waitcnt vmcnt(9)")
    p("s_mov_b64 exec, 0x1fff")
    p("ds_write_b32 v4, v27")
    p("v_mov_b32 v4, 0")
    p("s_mov_b64 exec, 1")
    if cfg.two: p(f"global_atomic_add v27, v4, v{V_ONE}, s[{S_DBG}:{S_DBG+1}] sc0 sc1")
    else: p(f"global_atomic_add v4, v{V_ONE}, s[{S_DBG}:{S_DBG+1}] sc1")
    p("s_mov_b64 exec, -1")
    stamp(13)
    if cfg.pst == 12:
        p("s_waitcnt vmcnt(0)")
        stamp(12)
    p("s_waitcnt vmcnt(1)")
    p("s_branch L_w1")
    p.label("L_w0")
    p.wait0(vm=True)
    p.label("L_w1")
    stamp(10)
    p("s_barrier")
    extra = []
    for u in range(8):
        extra.append(f"v_add_u32_sdwa v{GA+2*u}, v11, v{TBL+u} dst_sel:DWORD dst_unused:UNUSED_PAD src0_sel:DWORD src1_sel:WORD_0")
        extra.append(f"v_add_u32_sdwa v{GA+2*u+1}, v11, v{TBL+u} dst_sel:DWORD dst_unused:UNUSED_PAD src0_sel:DWORD src1_sel:WORD_1")
    for u in range(8): extra.append(f"v_lshl_or_b32 v{VF+u}, v{VV+2*u+1}, 16, v{VV+2*u}")
    def m3_mfma(U):
        u, q = divmod(U, 4)
        p.wait(lg=f"m{U}")
        cc = "0" if q == 0 else f"v[{12+4*u}:{15+4*u}]"
        p(f"v_mfma_f32_16x16x32_bf16 v[{12+4*u}:{15+4*u}], v[{AQ+4*q}:{AQ+4*q+3}], v[{MB+4*U}:{MB+4*U+3}], {cc}")
    for T in range(12):
        p.lds(f"ds_read_b64_tr_b16 v[{MB+4*T}:{MB+4*T+1}], v2 offset:{32*T}", f"m{T}")
        p.lds(f"ds_read_b64_tr_b16 v[{MB+4*T+2}:{MB+4*T+3}], v3 offset:{32*T}", f"m{T}")
        if T == 5:
            for _ in range(8): p(extra.pop(0))
        if T >= 6: m3_mfma(T - 6)
    for U in range(6, 12):
        m3_mfma(U)
        if U == 8:
            p("v_cvt_pk_bf16_f32 v24, v12, v12")
            p("ds_write_b16 v8, v24")
        else:
            for _ in range(2): p(extra.pop(0))
    p("v_cvt_pk_bf16_f32 v25, v16, v16")
    p("ds_write_b16 v9, v25")
    while extra: p(extra.pop(0))
    p(f"v_cvt_pk_bf16_f32 v26, v20, v20")
    p(f"ds_write_b16 v10, v26")
    p.wait0(lg=True)
    p("s_barrier")
    stamp(11)
    p(f"s_cmp_eq_u32 s{S_C}, 0")
    p("s_cbranch_scc1 L_pT")
    if cfg.two:
        p(f"s_cmp_lg_u32 s{S_C}, 3")
        p("s_cbranch_scc1 L_n3")
        p("v_mov_b32 v2, 0")
        p("v_mov_b32 v3, 26")
        p("s_waitcnt vmcnt(0)")
        p(f"v_readfirstlane_b32 s{S_X}, v27")
        p("s_mov_b64 exec, 1")
        p(f"s_cmp_lt_u32 s{S_X}, 25")
        p("s_cbranch_scc1 L_pdx")
        p(f"global_store_dword v2, v3, s[{S_DBG}:{S_DBG+1}] offset:128 sc1")
        p("s_branch L_pdx")
        p.label("L_n3")
    p(f"s_cmp_lg_u32 s{S_C}, 1")
    p("s_cbranch_scc1 L_pdone")
    for u in range(16): p(f"v_mov_b32 v{MB+16+u}, 0")
    for u in range(16): p(f"ds_read_u16_d16_hi v{MB+16+u}, v{GA+u}")
    p("s_branch L_pst")
    p.label("L_pT")
    p("ds_read_b128 v[12:15], v28")
    p("ds_read_b128 v[16:19], v28 offset:32")
    p("s_waitcnt lgkmcnt(1)")
    p(f"v_mfma_f32_32x32x16_bf16 v[{MB}:{MB+15}], v[{VF}:{VF+3}], v[12:15], 0")
    p("s_waitcnt lgkmcnt(0)")
    p(f"v_mfma_f32_32x32x16_bf16 v[{MB}:{MB+15}], v[{VF+4}:{VF+7}], v[16:19], v[{MB}:{MB+15}]")
    p("s_nop 11")
    for a in range(4): p(f"ds_write_b128 v29, v[{MB+4*a}:{MB+4*a+3}] offset:{32*a}")
    for u in range(16): p(f"ds_read_b32 v{MB+16+u}, v{GA+u}")
    p.label("L_pst")
    p("s_mov_b32 exec_hi, 0xffff")
    for e in range(8):
        if e % 2 == 0: p(f"s_waitcnt lgkmcnt({12 - 2*e})")
        p(f"v_add_f32 v{MB+16+2*e}, v{MB+16+2*e}, v{MB+16+2*e+1}")
        if e % 2:
            p(f"v_cvt_pk_bf16_f32 v{4+e//2}, v{MB+14+2*e}, v{MB+16+2*e}")
            p(f"v_min_u32 v{4+e//2}, -2, v{4+e//2}")
    p(f"buffer_store_dwordx4 v[4:7], v30, s[{S_WS}:{S_WS+3}], s{S_T+2} offen sc1")
    p(f"s_cmp_lg_u32 s{S_C}, 0")
    p("s_cbranch_scc1 L_pdx")
    p("v_lshlrev_b32 v8, 2, v0")
    p("s_mov_b32 exec_hi, 0")
    p(f"buffer_store_dword v{V_ONE}, v8, s[{S_WS}:{S_WS+3}], s{S_T+2} offen offset:1536 sc1")
    p.label("L_pdx")
    p("s_mov_b64 exec, -1")
    p.label("L_pdone")
    stamp(21)
    cinit_loads()
    p("s_waitcnt vmcnt(0)")
    p("s_branch L_setup")
    p.label("L_xwave")
    S_J, S_XA, S_XB, S_XM, S_TB = S_W, S_T+2, S_T+3, S_T+4, S_T+5
    p(f"s_sub_u32 s{S_J}, s{S_WAVE}, 4")
    p(f"s_lshl3_add_u32 s3, s{S_RG}, s{S_CP}")
    p(f"s_lshr_b32 s{S_FB}, s{S_J}, 1")
    p(f"s_lshl2_add_u32 s3, s{S_FB}, s3")
    p(f"s_mul_i32 s3, s3, 1664")
    p(f"s_and_b32 s{S_X}, s{S_J}, 1")
    p(f"s_mul_i32 s{S_X}, s{S_X}, 832")
    p(f"s_add_u32 s3, s3, s{S_X}")
    p(f"s_mul_i32 s{S_X}, s{S_J}, 832")
    p(f"s_add_u32 m0, s{S_X}, {IX2}")
    p(f"s_lshr_b32 s{S_X}, s2, 6")
    p(f"s_mul_i32 s{S_X}, s{S_X}, 3")
    p(f"s_add_u32 s{S_X}, s{S_X}, s{S_CP}")
    p(f"s_lshl2_add_u32 s{S_X}, s{S_X}, s{S_J}")
    p(f"s_mul_i32 s{S_X}, s{S_X}, {52*128}")
    p(f"s_add_u32 s{S_X}, s{S_X}, {(2496 - 4*52)*128}")
    p.wait0(lg=True)
    p(f"s_mov_b64 s[{S_IDX}:{S_IDX+1}], s[{KA}:{KA+1}]")
    p(f"s_mov_b64 s[{S_W1}:{S_W1+1}], s[{KA+8}:{KA+9}]")
    p("s_mov_b32 exec_hi, 0xfffff")
    p(f"buffer_load_dwordx4 v{V_L}, s[{S_IDX}:{S_IDX+3}], s3 offen{' nt' if cfg.nti else ''} lds")
    p("s_mov_b32 exec_hi, -1")
    p(f"s_mov_b64 s[{S_WCO}:{S_WCO+1}], s[{KA+6}:{KA+7}]")
    p(f"s_mov_b64 s[{S_BOUT}:{S_BOUT+1}], s[{KA+14}:{KA+15}]")
    ws_shift()
    srd(S_TAB, 2, 6400000)
    if cfg.etouch:
        p(f"s_cmp_eq_u32 s{S_CP}, 0")
        p("s_cbranch_scc1 L_noet")
        touch(160, S_X, (1 << 52) - 1)
        p("s_waitcnt vmcnt(1)")
        p.label("L_noet")
    p("v_lshrrev_b32 v1, 4, v0")
    p("v_and_b32 v2, 12, v0")
    p(f"s_mul_i32 s3, s{S_J}, 104")
    p(f"s_add_u32 s3, s3, {IX2}")
    p(f"v_add_u32 v2, s3, v2")
    p(f"s_movk_i32 s{S_X}, 416")
    p(f"v_mad_u32_u24 v3, v1, s{S_X}, v2")
    if cfg.bal:
        p(f"s_cmp_eq_u32 s{S_J}, 3")
        p(f"s_cselect_b32 s{S_X}, 104, 312")
        p(f"s_cselect_b32 s3, {13*104}, {20*104}")
        p(f"v_add_u32 v2, s3, v2")
        p(f"v_mad_u32_u24 v4, v1, s{S_X}, v2")
    else: p("v_add_u32 v4, 0x680, v3")
    p("v_and_b32 v1, 3, v0")
    p("v_lshlrev_b32 v5, 4, v1")
    p("v_bfe_u32 v1, v0, 3, 1")
    p("v_lshl_add_u32 v6, v1, 30, v5")
    p(f"s_mul_i32 s{S_XM}, s{S_J}, 7168")
    p(f"s_lshr_b32 s{S_TB}, s2, 4")
    p(f"s_lshl2_add_u32 s{S_TB}, s{S_TB}, s{S_J}")
    p(f"s_mul_i32 s{S_TB}, s{S_TB}, {46*128}")
    p(f"s_add_u32 s{S_TB}, s{S_TB}, {4992*128}")
    assert not cfg.etouch
    producer_index()
    p("s_waitcnt vmcnt(0)")
    p("s_barrier")
    for u in range(2):
        for Q in range(0, 6, 2): p(f"ds_read2_b32 v[{VT+7*u+u+Q}:{VT+7*u+u+Q+1}], v{3+u} offset0:{4*Q} offset1:{4*Q+4}")
        p(f"ds_read_b32 v{VT+8*u+6}, v{3+u} offset:96")
    stamp(1)
    p.vm.clear()
    assert cfg.xwin < 14
    p.wait0(lg=True)
    go_done = False; g0_done = False
    for Q in range(7):
        for u in range(2):
            n = 2*Q + u
            if n == cfg.xbar and not cfg.noprep:
                p(f"s_cmp_ge_u32 s{S_FB}, 26")
                p("s_cbranch_scc1 L_nobar")
                p("s_barrier")
                p("s_barrier")
                p.label("L_nobar")
            if n == cfg.xstart and n: p.wait(vm="x0")
            if n >= cfg.xwin:
                p.wait(vm=f"x{n - cfg.xwin}")
                if n - cfg.xwin == 2*cfg.gon + 1: arrive(C_GO); go_done = True
                if cfg.pre and n - cfg.xwin == 2*(cfg.gon - cfg.pre) + 1: arrive(C_G0); g0_done = True
            p(f"s_add_u32 m0, s{S_XM}, {XO + 4*7168*u + 1024*Q}")
            p(f"v_lshl_add_u32 v{VT+8*u+Q}, v{VT+8*u+Q}, 6, v{6 if Q == 6 else 5}")
            p.vmem(f"buffer_load_dwordx4 v{VT+8*u+Q}, s[{S_TAB}:{S_TAB+3}], 0 offen{' nt' if cfg.ntx else ''} lds", f"x{n}")
        for u, at in enumerate((cfg.lt0, cfg.lt1)):
            if at == Q and cfg.ltouch:
                touch(160, S_TB, (1 << 46) - 1); p.vm.issue("t")
                p(f"s_add_u32 s{S_TB}, s{S_TB}, {2944*128}")
    def late_touch():
        touch(160, S_TB, (1 << 46) - 1); p.vm.issue("t")
        p(f"s_add_u32 s{S_TB}, s{S_TB}, {2944*128}")
    cinit_loads()
    for _ in range(5): p.vm.issue("ci")
    if cfg.pre and not g0_done:
        p.wait(vm=f"x{2*(cfg.gon - cfg.pre)+1}")
        arrive(C_G0)
    if not go_done:
        p.wait(vm=f"x{2*cfg.gon+1}")
        arrive(C_GO)
    p.wait(vm="x13")
    arrive(C_XL)
    p.wait(vm="ci")
    for at in (cfg.lt0, cfg.lt1):
        if at == 7 and cfg.ltouch: late_touch()
    if cfg.ltouch and cfg.lt1 == 8: p(f"s_mov_b32 s{S_FB}, s{S_TB}")
    stamp(6)

    p.label("L_setup")
    if cfg.stamps or cfg.pst == 28: p(f"s_mov_b32 s{S_ST+27}, 0")
    p(f"s_setprio {cfg.prio_prep}")
    p.vm.clear(); p.lg.clear()
    AX, AT, CI, X0 = 0, 16, 32, 48
    Z = [74, 78]; PT = 82; ZL = 90
    XA = {1: 98, -3: 99, -1: 100}; WA = 101; SM = [102, 103, 104, 105]; MBX = 106; VMB = 110; VBO = 111
    RING = 112; RES = RING + 4*cfg.R
    WT = 112
    assert RES + 4*cfg.NRES <= 256
    NR = 4
    S_N, S_MB, S_O = S_T+7, S_T+9, S_T+11
    S_NR = S_T + 12
    p(f"s_and_b32 s{S_T+3}, s{S_WAVE}, 3")
    p(f"s_lshl_b32 s{S_T+2}, s{S_T+3}, 2")
    p(f"s_lshl_b32 s{S_T}, s{S_T+3}, 8")
    p(f"s_mov_b32 s{S_N}, 4")
    p(f"s_add_u32 s{S_T+2}, s{S_T+2}, 3")
    p(f"s_cmp_lt_u32 s{S_WAVE}, 4")
    p("s_cbranch_scc1 L_rowp")
    p(f"s_add_u32 s{S_T}, s{S_T}, {4*7168}")
    if cfg.bal:
        p(f"s_mov_b32 s{S_N}, 3")
        p(f"s_mul_i32 s{S_T+2}, s{S_T+3}, 3")
        p(f"s_add_u32 s{S_T+2}, s{S_T+2}, 70")
    else: p(f"s_add_u32 s{S_T+2}, s{S_T+2}, 64")
    p.label("L_rowp")
    p(f"s_lshl4_add_u32 s{S_T+2}, s{S_CP}, s{S_T+2}")
    p.label("L_setup2")
    p(f"s_mov_b32 s{S_NR}, s{S_N}")
    p("v_and_b32 v1, 31, v0")
    p("v_lshrrev_b32 v2, 5, v0")
    p(f"v_lshl_add_u32 v3, v1, 1, s{S_T}")
    p(f"v_lshl_add_u32 v{XA[1]}, v2, 6, v3")
    p("v_mul_u32_u24 v4, 0xc0, v2")
    p(f"v_sub_u32 v{XA[-3]}, v3, v4")
    p("v_lshlrev_b32 v4, 6, v2")
    p(f"v_sub_u32 v{XA[-1]}, v3, v4")
    p("v_mul_u32_u24 v4, 0x210, v2")
    p("v_lshl_add_u32 v4, v1, 4, v4")
    p(f"v_add_u32 v{WA}, {WO}, v4")
    for r in range(26): p(f"v_mov_b32 v{X0+r}, 0")
    for a in range(3):
        for h in range(2):
            p(f"v_lshlrev_b32 v{CI+4*a+2*h}, 16, v{CRAW+2*a+h}")
            p(f"v_and_b32 v{CI+4*a+2*h+1}, 0xffff0000, v{CRAW+2*a+h}")
    p(f"v_lshlrev_b32 v{CI+12}, 16, v{CRAW+6}")
    for r in range(13, 16): p(f"v_mov_b32 v{CI+r}, 0")
    p(f"v_lshlrev_b32 v{VBO}, 16, v{CRAW+7}")
    p("v_lshrrev_b32 v1, 3, v0")
    p("v_min_u32 v3, 1, v1")
    p("v_lshlrev_b32 v2, 9, v0")
    p(f"v_lshl_add_u32 v{VMB}, v3, 30, v2")
    p(f"s_lshl_b32 s{S_T+1}, s{S_RG}, 7")
    p(f"s_add_u32 s{S_T+1}, s{S_T+1}, s{S_T+2}")
    p(f"s_lshl_b32 s{S_O}, s{S_T+1}, 1")
    p(f"s_lshl_b32 s{S_T}, s{S_RG}, 10")
    p(f"s_add_u32 s{S_MB}, s{S_T+2}, s{S_T}")
    p(f"s_sub_u32 s{S_MB}, s{S_MB}, 3")
    p(f"s_lshl_b32 s{S_MB}, s{S_MB}, 2")
    p(f"v_mov_b32 v{ZL+7}, 0")
    p(f"s_cmp_ge_u32 s{S_WAVE}, 4")
    p("s_cbranch_scc1 L_xz")
    p("v_and_b32 v2, 7, v0")
    p(f"v_mul_u32_u24 v3, {BLK}, v1")
    p("v_lshl_add_u32 v3, v2, 4, v3")
    p("v_mul_u32_u24 v4, 0x210, v2")
    p(f"s_mul_i32 s{S_T}, s{S_C}, {24*528}")
    p(f"s_add_u32 s{S_T}, s{S_T}, {WO}")
    p(f"v_add_u32 v4, s{S_T}, v4")
    p("v_lshl_add_u32 v5, v1, 4, v4")
    p("v_cmp_eq_u32 vcc, 1, v1")
    p("v_add_u32 v6, 48, v5")
    p("v_subrev_u32 v7, 48, v5")
    p("v_cndmask_b32 v6, v5, v6, vcc")
    p("v_cmp_eq_u32 vcc, 4, v1")
    p(f"v_mul_u32_u24 v8, {BLK}, v0")
    p("s_nop 0")
    p("v_cndmask_b32 v6, v6, v7, vcc")
    p(f"s_mul_i32 s{S_T}, s{S_C}, 384")
    p(f"s_add_u32 s{S_T}, s{S_T}, {WS_W}")
    p(f"s_and_b32 s{S_T+1}, s{S_CP}, {1 if cfg.wrot else 0}")
    p(f"s_mul_i32 s{S_T+2}, s{S_T+1}, 26624")
    for k in range(4):
        p(f"s_xor_b32 s{S_T+3+k}, s{S_T+2}, {26624*(k >> 1)}")
        p(f"s_add_u32 s{S_T+3+k}, s{S_T+3+k}, s{S_T}")
        if k & 1: p(f"s_add_u32 s{S_T+3+k}, s{S_T+3+k}, 13312")
    p(f"s_lshl_b32 s{S_T+2}, s{S_T+1}, 8")
    p(f"s_cmp_eq_u32 s{S_T+1}, 0")
    p("s_cselect_b64 vcc, -1, 0")
    p(f"v_add_u32 v12, s{S_T+2}, v5")
    p(f"s_xor_b32 s{S_T+2}, s{S_T+2}, 0x100")
    p("v_add_u32 v6, 0x180, v6")
    p("v_add_u32 v15, 0x80, v5")
    p(f"v_add_u32 v14, s{S_T+2}, v5")
    p("v_cndmask_b32 v13, v6, v15, vcc")
    p("v_cndmask_b32 v15, v15, v6, vcc")
    p("v_mov_b32 v10, 0")
    if cfg.pre:
        check(C_G0, 4, sleep=2)
        flags_load(192)
    check(C_GO, 4, sleep=2)
    stamp(22)
    p(f"s_mov_b32 s{S_T+13}, {WS_W}")
    if cfg.noprep: p("s_branch L_wload")
    if cfg.direct:
        if not cfg.pre:
            flags_load(192)
        flags_test()
        p("s_cbranch_scc1 L_wload")
        if cfg.stamps or cfg.pst == 28: p(f"s_add_u32 s{S_ST+27}, s{S_ST+27}, 100")
    p(f"s_cmp_lg_u32 s{S_C}, 0")
    p("s_cbranch_scc1 L_pw")
    p.label("L_probe")
    p(f"global_load_dword v11, v10, s[{S_DBG}:{S_DBG+1}] offset:{FO} sc1")
    p(f"buffer_load_dword v9, v8, s[{S_WS}:{S_WS+3}], s{S_T+13} offen offset:1536 sc1")
    p("s_waitcnt vmcnt(0)")
    p("v_cmp_gt_u32 vcc, 26, v11")
    p(f"v_cmp_eq_u32 s[{S_FL}:{S_FL+1}], -1, v9")
    p("s_nop 1")
    p(f"s_or_b64 vcc, vcc, s[{S_FL}:{S_FL+1}]")
    p("s_cmp_eq_u64 vcc, 0")
    p("s_cbranch_scc1 L_wload")
    p.label("L_retry")
    if cfg.stamps or cfg.pst == 28: p(f"s_add_u32 s{S_ST+27}, s{S_ST+27}, 1")
    p(f"s_sleep {cfg.poll_sleep}")
    p(f"s_sub_u32 s{S_SPIN}, s{S_SPIN}, 1")
    p("s_cbranch_scc0 L_probe")
    p("s_endpgm")
    p.label("L_pw")
    check(C_FLAG, 1, sleep=2)
    p("s_branch L_wl2")
    p.label("L_wload")
    arrive(C_FLAG)
    p.label("L_wl2")
    stamp(2)
    for J in range(4):
        for Fi in range(3):
            r = WT + 4*(3*J + Fi)
            p.vmem(f"buffer_load_dwordx4 v[{r}:{r+3}], v3, s[{S_WS}:{S_WS+3}], s{S_T+3+J} offen offset:{128*Fi} sc1", f"w{J}{Fi}")
    first = True
    for J in range(4):
        for Fi in range(3):
            r = WT + 4*(3*J + Fi)
            p.wait(vm=f"w{J}{Fi}")
            p(f"ds_write_b128 v{12+J}, v[{r}:{r+3}] offset:{4224*Fi}")
            if first: p(f"v_max_u32 v9, v{r}, v{r+1}")
            else: p(f"v_max3_u32 v9, v{r}, v{r+1}, v9")
            p(f"v_max3_u32 v9, v{r+2}, v{r+3}, v9")
            first = False
    p("v_cmp_eq_u32 vcc, -1, v9")
    p("s_nop 1")
    p("s_cmp_eq_u64 vcc, 0")
    p("s_cbranch_scc0 L_retry")
    p.label("L_xz")
    check(C_XL, 4, sleep=cfg.idle_sleep)
    def x_read(r):
        p.lds(f"ds_read_u16_d16_hi v{X0+r}, v{XA[pi(r)-r]} offset:{1024*(r >> 2) + 64*(r & 3)}", f"x{r}")
    for r in range(26): x_read(r)
    def z_ops(n):
        ops = []
        for e in range(4):
            t = PT + 2*(e % 4)
            (a, b), (c, d) = S[8*n + 2*e], S[8*n + 2*e + 1]
            ops.append(("v", f"v_mul_f32 v{t}, v{X0+a}, v{X0+b}", (a, b)))
            ops.append(("v", f"v_mul_f32 v{t+1}, v{X0+c}, v{X0+d}", (c, d)))
        cv = [("v", f"v_cvt_pk_bf16_f32 v{Z[n % 2]+e}, v{PT+2*e}, v{PT+2*e+1}", ()) for e in range(4)]
        return ops[0:4] + cv[0:1] + ops[4:6] + cv[1:2] + ops[6:8] + cv[2:4]
    for o in z_ops(0):
        p.wait(lg=tuple(f"x{r}" for r in o[2]))
        p(o[1])
    for d in XA.values(): p(f"v_add_u32 v{d}, 0x1c00, v{d}")
    p.wait0(lg=True)
    p("s_barrier")
    if cfg.ltouch and cfg.lt1 == 8:
        p(f"s_cmp_lt_u32 s{S_WAVE}, 4")
        p("s_cbranch_scc1 L_go")
        touch(160, S_FB, (1 << 46) - 1)
    p.label("L_go")
    p("s_setprio 0")
    if cfg.flip:
        p(f"s_cmp_lt_u32 s{S_WAVE}, 4")
        p("s_cbranch_scc1 L_prio")
        p(f"s_setprio 1")
        p.label("L_prio")
    stamp(3)
    order = []
    for n in range(22):
        order.append(("X", n)); order.append(("T", n))
        if n == 14: order.append(("T", 22))
        if n == 18: order.append(("T", 23))
    fr_of = lambda k, n: n if k == "X" else n + 24
    nn = 46 - cfg.NRES
    assert nn % cfg.R == 0
    nonres = [int((u + 0.5)*46/nn) for u in range(nn)]
    wreg = {}; rr = 0
    for k in range(46):
        if k in nonres: wreg[k] = RING + 4*(nonres.index(k) % cfg.R)
        else: wreg[k] = RES + 4*rr; rr += 1
    def w_read(k):
        p.lds(f"ds_read_b128 v[{wreg[k]}:{wreg[k]+3}], v{WA} offset:{1056*fr_of(*order[k])}", f"w{k}")
    for k in range(46):
        if k not in nonres or nonres.index(k) < cfg.R: w_read(k)
    p.wait0(lg=True)
    stamp(5)
    def mfma(k):
        kind, n = order[k]
        zb = Z[n % 2] if n < 22 else ZL + 4*(n - 22)
        acc = AX if kind == "X" else AT
        cc = f"v[{acc}:{acc+15}]"
        if n == 0: cc = "0" if kind == "X" else f"v[{CI}:{CI+15}]"
        return f"v_mfma_f32_32x32x16_bf16 v[{acc}:{acc+15}], v[{wreg[k]}:{wreg[k]+3}], v[{zb}:{zb+3}], {cc}"
    lin_ops = []
    for u in range(8):
        a = LIN[min(2*u, 12)]; b = LIN[min(2*u + 1, 12)]
        lin_ops.append(("v", f"v_cvt_pk_bf16_f32 v{ZL+u}, v{X0+a}, v{X0+b}", (a, b)))
    def body(emit_mb):
        groups = [z_ops(n) for n in range(1, 22)] + [z_ops(0)]
        groups[10] = lin_ops[:7] + groups[10]
        flat = [(g, o) for g, ops in enumerate(groups) for o in ops]
        lastuse = {}
        for i, (g, o) in enumerate(flat):
            if g < 21:
                for r in o[2]: lastuse[r] = i
        for r in range(26): lastuse.setdefault(r, -1)
        for g, ops in enumerate(groups):
            mf = [kk for kk in range(46) if order[kk] in (("X", g), ("T", g))]
            if g == 14: mf.append(order.index(("T", 22)))
            if g == 18: mf.append(order.index(("T", 23)))
            items = []
            base = sum(len(x) for x in groups[:g])
            if g == 0:
                for r in range(26):
                    if lastuse[r] == -1: items.append(("x", r))
            for i, o in enumerate(ops):
                items.append(o)
                for r in range(26):
                    if lastuse[r] == base + i: items.append(("x", r))
            if g == 21:
                pos = [0, 0]
            else:
                n_it = len(items)
                pos = [2 + (j*n_it)//len(mf) for j in range(len(mf))]
            j = 0
            for i, it in enumerate(items + [None]):
                while j < len(mf) and pos[j] <= i:
                    kk = mf[j]
                    if g == 21 and j == 0: p("s_nop 1")
                    p.wait(lg=f"w{kk}")
                    p(mfma(kk))
                    if kk in nonres:
                        w_read(nonres[(nonres.index(kk) + cfg.R) % nn])
                    j += 1
                if it is None: break
                if it[0] == "x": x_read(it[1])
                else:
                    p.wait(lg=tuple(f"x{r}" for r in it[2]))
                    p(it[1])
            if g == 15: emit_mb()
        for k in range(NR - 1): p(f"v_mov_b32 v{SM[k]}, v{SM[k+1]}")
        for d in XA.values(): p(f"v_add_u32 v{d}, 0x1c00, v{d}")
        s0 = SM[NR-1]
        p(f"v_mul_f32 v{s0}, v{AX}, v{AT}")
        p(f"v_mul_f32 v{PT}, v{AX+1}, v{AT+1}")
        for r in range(2, 13):
            p(f"v_fmac_f32 v{s0 if r % 2 == 0 else PT}, v{AX+r}, v{AT+r}")
        p(f"s_sub_u32 s{S_N}, s{S_N}, 1")
        p(f"v_add_f32 v{s0}, v{s0}, v{PT}")
    def mb_loads():
        p(f"buffer_load_dwordx{NR} v[{MBX}:{MBX+NR-1}], v{VMB}, s[{S_WS}:{S_WS+3}], s{S_MB} offen sc1")
    def emit_mb():
        sk = L("nomb")
        p(f"s_cmp_lg_u32 s{S_N}, 1")
        p(f"s_cbranch_scc1 {sk}")
        mb_loads()
        p.label(sk)
    save = p.L; p.L = []
    body(lambda: None)
    st1 = list(p.lg.q)
    p.L = save
    p(".p2align 3")
    p.label("L_row")
    body(emit_mb)
    assert st1 == p.lg.q
    if cfg.stamps in (1, 2):
        for i in range(3): p(f"s_mov_b32 s{S_ST+23+i}, s{S_ST+24+i}")
        stamp(26)
    if cfg.flip:
        p(f"s_cmp_lg_u32 s{S_N}, {4 - cfg.flip}")
        p("s_cbranch_scc1 L_noflip")
        p("s_setprio 0")
        p.label("L_noflip")
    p(f"s_cmp_lg_u32 s{S_N}, 0")
    p("s_cbranch_scc1 L_row")
    p.label("L_mbw")
    p("s_waitcnt vmcnt(0)")
    if NR == 4:
        p(f"v_max3_u32 v1, v{MBX}, v{MBX+1}, v{MBX+2}")
        p(f"v_max_u32 v1, v1, v{MBX+3}")
    else: p(f"v_max_u32 v1, v{MBX}, v{MBX+1}")
    p("v_cmp_eq_u32 vcc, -1, v1")
    p("s_nop 1")
    p("s_cmp_eq_u64 vcc, 0")
    p("s_cbranch_scc1 L_mbok")
    p("s_sleep 1")
    mb_loads()
    p(f"s_sub_u32 s{S_SPIN}, s{S_SPIN}, 1")
    p("s_cbranch_scc0 L_mbw")
    p("s_endpgm")
    p.label("L_mbok")
    for k in range(NR): p(f"v_add_f32 v{SM[k]}, v{SM[k]}, v{MBX+k}")
    for ctl in ("quad_perm:[1,0,3,2] row_mask:0xf", "quad_perm:[2,3,0,1] row_mask:0xf", "row_half_mirror row_mask:0xf",
                "row_mirror row_mask:0xf", "row_bcast:15 row_mask:0xa", "row_bcast:31 row_mask:0xc"):
        if NR == 2: p("s_nop 0")
        for k in range(NR): p(f"v_add_f32_dpp v{SM[k]}, v{SM[k]}, v{SM[k]} {ctl} bank_mask:0xf")
    for k in range(NR): p(f"v_add_f32 v{SM[k]}, v{SM[k]}, v{VBO}")
    p(f"v_cvt_pk_bf16_f32 v2, v{SM[0]}, v{SM[1]}")
    p(f"v_cvt_pk_bf16_f32 v3, v{SM[2]}, v{SM[3]}")
    p(f"v_mov_b32 v1, s{S_O}")
    p("s_mov_b32 exec_lo, 0")
    p("s_mov_b32 exec_hi, 0x80000000")
    if cfg.bal:
        p(f"s_cmp_eq_u32 s{S_NR}, 4")
        p("s_cbranch_scc1 L_st4")
        p(f"global_store_short_d16_hi v1, v3, s[{S_OUT}:{S_OUT+1}]")
        p(f"s_cmp_eq_u32 s{S_NR}, 1")
        p("s_cbranch_scc1 L_std")
        p(f"global_store_short v1, v3, s[{S_OUT}:{S_OUT+1}] offset:-2")
        p(f"global_store_short_d16_hi v1, v2, s[{S_OUT}:{S_OUT+1}] offset:-4")
        p("s_branch L_std")
        p.label("L_st4")
    p(f"global_store_dwordx2 v1, v[2:3], s[{S_OUT}:{S_OUT+1}] offset:-6")
    p.label("L_std")
    stamps_out()
    p.label("L_end")
    p("s_endpgm")

    p.vm.q = dnn_vm; p.lg.clear()
    p(".p2align 6")
    p.label("L_dnn")
    ACC = lambda t, q: 8*t + 4*q
    BF = lambda t: 56 + 4*t
    AR = lambda f, q: 84 + 8*(f % 2) + 4*q
    IDX = lambda f: 100 + f
    VO = lambda u: 128 + u
    V_B, V_A, V_CH, V_LANE, V_G8 = [130, 131, 132], [133, 134, 135], 136, 137, 138
    RAW = 140; RAW2 = 200
    S_SB, S_M0, S_AM = S_T+2, S_T+3, S_T+4
    if cfg.probe:
        p("s_cmp_ge_u32 s2, 8")
        p("s_cbranch_scc1 L_pr1")
        p("s_lshl_b32 s90, s2, 2")
        p("v_mov_b32 v1, s90")
        p("v_mov_b32 v2, s96")
        p(f"global_store_dword v1, v2, s[{S_DBG}:{S_DBG+1}] offset:8 sc1")
        p("s_waitcnt vmcnt(0)")
        p.label("L_pr1")
    srd(S_B1, 10, 1664)
    srd(S_TAB, 2, 6400000)
    srd(S_W2, 12, 1664)
    srd(S_WS, None, WS_END)
    ws_shift()
    if cfg.pxa >= 0:
        p("s_getreg_b32 s91, hwreg(HW_REG_XCC_ID)")
        p("s_and_b32 s91, s91, 15")
        p(f"s_cmp_lg_u32 s2, {cfg.pxa}")
        p("s_cbranch_scc1 L_pxa")
        p("v_mov_b32 v1, 0")
        p("v_mov_b32 v2, s91")
        p(f"global_store_dword v1, v2, s[{S_DBG}:{S_DBG+1}] offset:8 sc1")
        p("s_waitcnt vmcnt(0)")
        p.label("L_pxa")
    if cfg.plat:
        sr_, off = {1: (S_TAB, 3000320), 2: (S_W1, 1300096), 3: (S_WS, 4096), 5: (S_DBG+0, 0), 4: (S_TAB, 5000320)}[cfg.plat]
        p("s_waitcnt vmcnt(0)")
        p(f"v_mov_b32 v1, {off}")
        p(f"buffer_load_dword v2, v1, s[{sr_}:{sr_+3}], 0 offen offset:2048")
        p("s_waitcnt vmcnt(0)")
        p("s_lshl_b32 s90, s2, 7")
        p("s_memrealtime s[94:95]")
        p("s_waitcnt lgkmcnt(0)")
        p(f"buffer_load_dword v2, v1, s[{sr_}:{sr_+3}], s90 offen offset:4)".replace(")", ""))
        p("s_waitcnt vmcnt(0)")
        p("s_memrealtime s[92:93]")
        p("s_waitcnt lgkmcnt(0)")
        p("s_sub_u32 s92, s92, s94")
        p("s_mul_i32 s92, s92, 10")
        p("s_add_u32 s92, s92, s96")
    stamp(10)
    p(f"s_mov_b32 s{S_SPIN}, 0x40000")
    p(f"s_mul_i32 s{S_COL}, s{S_CP}, 416")
    S_M1, S_WR = S_T+5, S_T+6
    p(f"s_mov_b32 s{S_SB}, s{S_COL}")
    p(f"s_and_b32 s{S_WR}, s{S_WAVE}, 3")
    p(f"s_lshl_b32 s{S_T}, s{S_WAVE}, 1")
    p(f"s_sub_u32 s{S_T}, s{S_T}, 4")
    p(f"s_add_u32 s{S_T+1}, s{S_T}, 1")
    p(f"s_cmp_lt_u32 s{S_WAVE}, 4")
    p(f"s_cselect_b32 s{S_M0}, s{S_WAVE}, s{S_T}")
    p(f"s_cselect_b32 s{S_M1}, 12, s{S_T+1}")
    p(f"s_lshl_b32 s{S_M0}, s{S_M0}, 10")
    p(f"s_lshl_b32 s{S_M1}, s{S_M1}, 10")
    p(f"s_lshl_b32 s{S_AM}, s{S_WAVE}, 10")
    p(f"s_add_u32 s{S_AM}, s{S_AM}, {BSZ}")
    p(f"s_lshr_b32 s{S_T}, s{S_WAVE}, 2")
    p(f"s_mul_i32 s{S_T}, s{S_T}, 224")
    p(f"s_add_u32 s{S_COL}, s{S_COL}, s{S_T}")
    p(f"s_movk_i32 s{S_T+1}, 1248")
    p(f"s_movk_i32 s{S_T+7}, 6656")
    for u in range(2):
        p(f"v_add_u32 v3, s{(S_M0, S_M1)[u]}, v{V_L}")
        p("v_lshlrev_b32 v4, 4, v3")
        p("v_mul_hi_u32_u24 v4, 0x9d89e, v4")
        p("v_bfe_u32 v5, v4, 2, 1")
        p("v_bfe_i32 v6, v4, 3, 1")
        p("v_add_u32 v5, v5, v6")
        p(f"v_mad_i32_i24 v5, v5, s{S_T+7}, v3")
        p(f"v_mad_u32_u24 v{VO(u)}, v4, s{S_T+1}, v5")
    p("v_lshrrev_b32 v1, 4, v0")
    p(f"s_add_u32 s{S_T+1}, s{S_T}, {IDXO}")
    p(f"v_lshl_add_u32 v{V_G8}, v1, 3, s{S_T+1}")
    p("v_lshrrev_b32 v2, 2, v0")
    p(f"v_mul_u32_u24 v2, 104, v2")
    p(f"s_add_u32 s{S_W}, s{S_W}, {IDXO}")
    p(f"v_add_u32 v139, s{S_W}, v2")
    p("v_lshrrev_b32 v2, 5, v0")
    p("v_mul_u32_u24 v3, 3, v2")
    p("v_xor_b32 v3, v3, v0")
    p("v_and_b32 v3, 3, v3")
    p(f"v_lshlrev_b32 v{V_CH}, 4, v3")
    p("v_bfe_u32 v3, v0, 3, 1")
    p("v_mul_u32_u24 v3, 3, v3")
    p("v_xor_b32 v3, v3, v1")
    p("v_and_b32 v4, 15, v0")
    p("v_lshlrev_b32 v4, 6, v4")
    p("v_lshl_add_u32 v3, v3, 4, v4")
    p(f"s_and_b32 s{S_T+1}, s{S_WAVE}, 3")
    p(f"s_lshl_b32 s{S_T+1}, s{S_T+1}, 11")
    p(f"s_add_u32 s{S_T+1}, s{S_T+1}, {BSZ}")
    p(f"v_add_u32 v{V_A[0]}, s{S_T+1}, v3")
    p("v_bfe_u32 v3, v0, 2, 3")
    p("v_lshl_add_u32 v2, v2, 4, v3")
    p("v_mul_u32_u24 v2, 0x1a0, v2")
    p("v_and_b32 v3, 3, v0")
    p("v_lshl_add_u32 v2, v3, 3, v2")
    p(f"v_add_u32 v{V_B[0]}, s{S_T}, v2")
    for k in (1, 2):
        p(f"v_add_u32 v{V_A[k]}, {3*k*SLOT}, v{V_A[0]}")
        p(f"v_add_u32 v{V_B[k]}, {3*k*SLOT}, v{V_B[0]}")
    p(f"v_mov_b32 v{V_LANE}, v0")
    p.wait(vm="idx")
    stamp(1)
    if cfg.dbench:
        p("s_mov_b32 s3, 0")
        p.label("L_again")
    for m in range(6):
        p.lds(f"ds_read2_b64 v[{100+4*m}:{103+4*m}], v139 offset0:{2*m} offset1:{2*m+1}", f"ix{m}")
    p.lds("ds_read_b64 v[124:125], v139 offset:96", "ix6")
    def a_dma(f):
        p.wait(lg=f"ix{f >> 2}")
        p(f"s_add_u32 m0, s{S_AM}, {(f % RB)*SLOT}")
        p(f"v_lshl_add_u32 v{IDX(f)}, v{IDX(f)}, 6, v{V_CH}")
        p.vmem(f"buffer_load_dwordx4 v{IDX(f)}, s[{S_TAB}:{S_TAB+3}], 0 offen{' nt' if f < cfg.nta else ''} lds", f"F{f}")
    def b_dma(f, u, T):
        if u == 1:
            if f: p(f"s_add_u32 s{S_SB}, s{S_SB}, 53248")
            sk = L("np")
            if T != 6:
                if T == 0:
                    p(f"s_cmp_ge_u32 s{S_WAVE}, 4")
                    p(f"s_cselect_b32 s{S_X}, {f & 3}, s{S_WR}")
                    p(f"s_cmp_lg_u32 s{S_X}, {f & 3}")
                else: p(f"s_cmp_lg_u32 s{S_WR}, {f & 3}")
                p(f"s_cbranch_scc1 {sk}")
            p(f"s_add_u32 m0, s{S_M1}, {(f % RB)*SLOT}")
            p("s_nop 0")
            p(f"buffer_load_dwordx4 v{VO(1)}, s[{S_W1}:{S_W1+3}], s{S_SB} offen lds")
            if T == 6: p.vm.issue(f"F{f}")
            else: p.label(sk)
        else:
            p(f"s_add_u32 m0, s{S_M0}, {(f % RB)*SLOT}")
            p("s_nop 0")
            p.vmem(f"buffer_load_dwordx4 v{VO(0)}, s[{S_W1}:{S_W1+3}], s{S_SB} offen lds", f"F{f}")
    def fill(f, T): a_dma(f); b_dma(f, 1, T); b_dma(f, 0, T)
    BWO = IDXO
    p(f"s_cmp_ge_u32 s{S_WAVE}, {0 if cfg.dbench else 2}")
    p("s_cbranch_scc1 L_nobw")
    p(f"s_mul_i32 s{S_X}, s{S_CP}, 416")
    p(f"s_cmp_eq_u32 s{S_WAVE}, 0")
    p(f"s_cselect_b64 s[{S_W2}:{S_W2+1}], s[{S_B1}:{S_B1+1}], s[{S_W2}:{S_W2+1}]")
    p(f"s_mov_b32 m0, s{S_W}")
    p("s_mov_b64 exec, 0xfffffff")
    p("s_waitcnt lgkmcnt(0)")
    p(f"buffer_load_dwordx4 v{V_L}, s[{S_W2}:{S_W2+3}], s{S_X} offen lds")
    p("s_mov_b64 exec, -1")
    p.label("L_nobw")
    if cfg.sw < 26:
        p(f"v_lshlrev_b32 v{V_C}, 2, v{V_LANE}")
        p(f"v_add_u32 v{V_C}, {IDXO + 2*1664}, v{V_C}")
        p(f"v_mov_b32 v{V_ONE}, 1")
        p(f"s_cmp_lg_u32 s{S_WAVE}, 2")
        p("s_cbranch_scc1 L_noz")
        p(f"v_mov_b32 v{V_POLL}, 0")
        p("s_waitcnt lgkmcnt(0)")
        p(f"ds_write_b32 v{V_C}, v{V_POLL}")
        p("s_waitcnt lgkmcnt(0)")
        p.label("L_noz")
    def lo(f): return (f % RB)//3, ((f % RB) % 3)*SLOT
    def b_read1(f, t, r2):
        k, off = lo(f)
        p.lds(f"ds_read_b64_tr_b16 v[{BF(t)+2*r2}:{BF(t)+2*r2+1}], v{V_B[k]} offset:{off + 32*t + 3328*r2}", f"b{f}_{t}")
    def a_read(f):
        k, off = lo(f)
        for q in range(2):
            p.lds(f"ds_read_b128 v[{AR(f, q)}:{AR(f, q)+3}], v{V_A[k]} offset:{off + 1024*q}", f"a{f}")
    p(f"s_cmp_ge_u32 s{S_WAVE}, 4")
    p("s_cbranch_scc1 L_dnn6")
    W2R = lambda t, r: 170 + 4*t + r
    def w2_unpack():
        return [x for t in range(7) for h in range(2) for x in
                (f"v_lshlrev_b32 v{W2R(t,2*h)}, 16, v{RAW2+2*t+h}", f"v_and_b32 v{W2R(t,2*h+1)}, 0xffff0000, v{RAW2+2*t+h}")]
    vm0, lg0 = list(p.vm.q), list(p.lg.q)
    def dnn_main(T):
        p.vm.q, p.lg.q = list(vm0), list(lg0)
        fill(0, T)
        fill(1, T)
        p.wait(vm="F0")
        p("s_barrier")
        stamp(12)
        for t in range(T):
            p.lds(f"ds_read_b64 v[{RAW+2*t}:{RAW+2*t+1}], v{V_G8} offset:{32*t}", "bias")
        a_read(0)
        for t in range(T):
            for r2 in range(2): b_read1(0, t, r2)
        p.wait(lg="bias")
        for t in range(T):
            for h in range(2):
                p(f"v_lshlrev_b32 v{ACC(t,0)+2*h}, 16, v{RAW+2*t+h}")
                p(f"v_and_b32 v{ACC(t,0)+2*h+1}, 0xffff0000, v{RAW+2*t+h}")
        for f in range(2, cfg.look): fill(f, T)
        p.wait(vm=tuple(f"F{k}" for k in range(cfg.barp + 1)))
        p("s_barrier")
        if T == 6 and cfg.prio_hi: p(f"s_setprio {cfg.prio_hi}")
        stamp(2)
        nxt = cfg.look
        w2ops = w2_unpack()
        free = -1; landed = cfg.barp
        for f in range(26):
            todo = []
            soft = f > cfg.sw and f <= 23
            top = f < cfg.early or (cfg.dpos == 4 and T == 6) or (cfg.dpos == 1 and T == 7)
            lim = (f - 1 if soft and not top else free) + RB
            nfill = 2 if (cfg.cmask >> f & 1 if cfg.cmask else cfg.catch0 <= f < cfg.catch0 + cfg.catch) else 1
            if f >= cfg.b2: nfill = (2 if (f % 2 == 0) == ((T == 6) == (cfg.dpos == 4)) else 0)
            for _ in range(nfill):
                if nxt < 26 and nxt <= lim:
                    todo += [(a_dma, (nxt,)), (b_dma, (nxt, 1, T)), (b_dma, (nxt, 0, T))]; nxt += 1
            if cfg.nodma and f >= 4:
                keep = []
                for fn, ar in todo:
                    if (fn is a_dma and cfg.nodma & 1) or (fn is b_dma and cfg.nodma & 2): continue
                    keep.append((fn, ar))
                todo[:] = keep
            n_it = len(todo)
            if f < cfg.early: at = [-1]*n_it
            elif cfg.dpos == 0: at = list(range(n_it))
            elif cfg.dpos == 1: at = [-1]*n_it if T == 7 else [T-1]*n_it
            elif cfg.dpos == 2: at = [(2*i + (T == 6)) if n_it <= 3 else i for i in range(n_it)]
            elif cfg.dpos == 3: at = [0]*n_it if T == 7 else [T-1]*n_it
            elif cfg.dpos == 4: at = [T-1]*n_it if T == 7 else [-1]*n_it
            elif cfg.dpos == 5: at = [i//(2 if n_it > 3 else 1) for i in range(n_it)] if T == 7 else [3 + i//(2 if n_it > 3 else 1) for i in range(n_it)]
            if soft and not top: at = [min(max(a, cfg.chk + i*(cfg.dpos in (0, 2))), T-1) for i, a in enumerate(at)]
            assert f == 25 or f + 1 <= landed
            def drain(t):
                while todo and at[0] <= t:
                    at.pop(0); fn, ar = todo.pop(0); fn(*ar)
            drain(-1)
            for t in range(T):
                p.wait(lg=(f"b{f}_{t}", f"a{f}"))
                b = f"v[{BF(t)}:{BF(t)+3}]"
                a0, a1 = ACC(t, 0), ACC(t, 1)
                c1 = a0 if f == 0 else a1
                p(f"v_mfma_f32_16x16x32_bf16 v[{a1}:{a1+3}], {b}, v[{AR(f,1)}:{AR(f,1)+3}], v[{c1}:{c1+3}]")
                if t and f < 25: b_read1(f+1, t-1, 1)
                elif t == 0 and f: b_read1(f, T-1, 1)
                p(f"v_mfma_f32_16x16x32_bf16 v[{a0}:{a0+3}], {b}, v[{AR(f,0)}:{AR(f,0)+3}], v[{a0}:{a0+3}]")
                if f < 25: b_read1(f+1, t, 0)
                if t == cfg.arp and f < 25: a_read(f + 1)
                if soft and t == cfg.chk - 2: poll_issue(4*(f-1))
                if soft and t == cfg.chk:
                    check(4*(f-1), 8, issued=True)
                    free = f - 1; landed = f + 2
                drain(t)
                if f == 21:
                    for tt in ([t] if t < T - 1 else range(t, 7)):
                        p.lds(f"ds_read_b64 v[{RAW2+2*tt}:{RAW2+2*tt+1}], v{V_G8} offset:{1664 + 32*tt}", "w2")
                if cfg.w2early and f in (23, 24):
                    if f == 23 and t == 0: p.wait(lg="w2")
                    for _ in range(3):
                        if w2ops: p(w2ops.pop(0))
            assert not todo
            if f >= cfg.sw:
                if f <= 22:
                    assert nxt > f + 3
                    p.wait(vm=tuple(f"F{k}" for k in range(f + 4)))
                    arrive(4*f)
            elif f <= cfg.lb and (f + 1) % cfg.barp == 0 and (f < cfg.b2 or f % 2):
                last = min(f + 1 + cfg.barp + (f + 1 == cfg.sw or f + 1 >= cfg.b2), 25) if f < cfg.lb else 25
                assert nxt > last
                p.wait(vm=tuple(f"F{k}" for k in range(last + 1)))
                if not cfg.nobar: p("s_barrier")
                free = f; landed = last
            if f == cfg.lb and cfg.tailprio is not None and T == cfg.tailprio: p("s_setprio 1")
            if f % 4 == 0 and (not cfg.dbench or f in (8, 20)): stamp(14 + f//4)
        assert nxt == 26 and not (cfg.w2early and w2ops)
    dnn_main(7)
    p("s_branch L_gelu")
    p(".p2align 6")
    p.label("L_dnn6")
    dnn_main(6)
    p.label("L_gelu")
    if cfg.dbench:
        p("s_barrier")
        p(f"s_mul_i32 s{S_SB}, s{S_CP}, 416")
        p("s_add_u32 s3, s3, 1")
        p("s_cmp_lt_u32 s3, 2")
        p("s_cbranch_scc1 L_again")
    stamp(3)
    p("v_mov_b32 v98, 0")
    p(f"global_load_dword v99, v98, s[{S_DBG}:{S_DBG+1}] offset:{FO} sc1")
    if not cfg.w2early:
        p.wait0(vm=True)
        for x in w2_unpack(): p(x)
    k0 = -2.0*math.sqrt(2.0/math.pi)*math.log2(math.e)
    T1, T2, SUM, VC = 56, 64, 92, 72
    P = lambda a: f"v[{a}:{a+1}]"
    for r, c in enumerate((k0*0.044715, k0)):
        for h in range(2): p(f"v_mov_b32 v{VC+2*r+h}, {f2h(c)}")
    for r in range(4): p(f"v_mov_b32 v{SUM+r}, 0")
    for t in range(7):
        if t == 6:
            p(f"s_cmp_ge_u32 s{S_WAVE}, 4")
            p("s_cbranch_scc1 L_gelu6")
        x = ACC(t, 0)
        if cfg.pk:
            for r in range(0, 8, 2): p(f"v_pk_mul_f32 {P(T1+r)}, {P(x+r)}, {P(x+r)}")
            for r in range(0, 8, 2): p(f"v_pk_fma_f32 {P(T1+r)}, {P(T1+r)}, {P(VC)}, {P(VC+2)}")
            for r in range(0, 8, 2): p(f"v_pk_mul_f32 {P(T1+r)}, {P(T1+r)}, {P(x+r)}")
            for r in range(8): p(f"v_exp_f32 v{T1+r}, v{T1+r}")
            for r in range(0, 8, 2): p(f"v_pk_mul_f32 {P(T2+r)}, {P(x+r)}, {P(W2R(t, r & 3))}")
            for r in range(0, 8, 2): p(f"v_pk_add_f32 {P(T1+r)}, {P(T1+r)}, 1.0 op_sel_hi:[1,0]")
            for r in range(8): p(f"v_rcp_f32 v{T1+r}, v{T1+r}")
            for r in (0, 4, 2, 6): p(f"v_pk_fma_f32 {P(SUM+2*(r >> 2))}, {P(T1+r)}, {P(T2+r)}, {P(SUM+2*(r >> 2))}")
        else:
            for r in range(8): p(f"v_mul_f32 v{T1+r}, v{x+r}, v{x+r}")
            for r in range(8): p(f"v_fma_f32 v{T1+r}, v{T1+r}, v{VC}, v{VC+2}")
            for r in range(8): p(f"v_mul_f32 v{T1+r}, v{T1+r}, v{x+r}")
            for r in range(8): p(f"v_exp_f32 v{T1+r}, v{T1+r}")
            for r in range(8): p(f"v_mul_f32 v{T2+r}, v{x+r}, v{W2R(t, r & 3)}")
            for r in range(8): p(f"v_add_f32 v{T1+r}, 1.0, v{T1+r}")
            for r in range(8): p(f"v_rcp_f32 v{T1+r}, v{T1+r}")
            for r in range(8): p(f"v_fmac_f32 v{SUM+2*(r >> 2)+(r & 1)}, v{T1+r}, v{T2+r}")
    p.label("L_gelu6")
    p(f"v_add_f32 v{SUM}, v{SUM}, v{SUM+1}")
    p(f"v_add_f32 v{SUM+2}, v{SUM+2}, v{SUM+3}")
    p(f"v_and_b32 v84, 15, v{V_LANE}")
    p(f"v_lshrrev_b32 v85, 5, v{V_LANE}")
    p(f"v_permlane32_swap_b32 v{SUM}, v{SUM+2}")
    p("v_lshl_add_u32 v84, v85, 4, v84")
    p(f"v_add_f32 v{SUM}, v{SUM}, v{SUM+2}")
    p(f"v_bfe_u32 v85, v{V_LANE}, 4, 1")
    p(f"v_mov_b32 v{SUM+1}, v{SUM}")
    p("v_lshlrev_b32 v84, 2, v84")
    p("v_lshl_add_u32 v84, v85, 30, v84")
    p(f"v_permlane16_swap_b32 v{SUM}, v{SUM+1}")
    p(f"s_lshl2_add_u32 s{S_T}, s{S_RG}, s{S_CP}")
    p(f"v_add_f32 v{SUM}, v{SUM}, v{SUM+1}")
    p(f"s_lshl3_add_u32 s{S_T}, s{S_T}, s{S_WAVE}")
    p(f"s_lshl_b32 s{S_T}, s{S_T}, 7")
    p(f"v_min_u32 v{SUM}, -2, v{SUM}")
    if cfg.noprep or cfg.dbench: p("s_branch L_pub")
    p.label("L_dflag")
    p("s_waitcnt vmcnt(0)")
    p(f"v_readfirstlane_b32 s{S_X}, v99")
    p(f"s_cmp_ge_u32 s{S_X}, 26")
    p("s_cbranch_scc1 L_pub")
    p(f"global_load_dword v99, v98, s[{S_DBG}:{S_DBG+1}] offset:{FO} sc1")
    p("s_sleep 4")
    p(f"s_sub_u32 s{S_SPIN}, s{S_SPIN}, 1")
    p("s_cbranch_scc0 L_dflag")
    p("s_endpgm")
    p.label("L_pub")
    p(f"buffer_store_dword v{SUM}, v84, s[{S_WS}:{S_WS+3}], s{S_T} offen sc1")
    stamp(4)
    if cfg.probe:
        p("s_cmp_lg_u32 s2, 0")
        p("s_cbranch_scc1 L_pr2")
        p(f"v_lshlrev_b32 v1, 2, v{V_LANE}")
        p(f"global_load_dword v2, v1, s[{S_DBG}:{S_DBG+1}] offset:8 sc1")
        p("s_waitcnt vmcnt(0)")
        for i in range(8): p(f"v_readlane_b32 s{80+i}, v2, {i}")
        p("s_mov_b32 s90, s80"); p("s_mov_b32 s91, s80")
        for i in range(1, 8):
            p(f"s_min_u32 s90, s90, s{80+i}"); p(f"s_max_u32 s91, s91, s{80+i}")
        if cfg.probe == 1: p("s_sub_u32 s90, s91, s90")
        else: p(f"s_sub_u32 s90, s{80+cfg.probe-2}, s90")
        p("s_mul_i32 s90, s90, 20")
        p("s_min_u32 s90, s90, 20000")
        p("s_memrealtime s[92:93]"); p("s_waitcnt lgkmcnt(0)")
        p("s_add_u32 s92, s92, s90")
        p.label("L_pr")
        p("s_memrealtime s[94:95]"); p("s_waitcnt lgkmcnt(0)")
        p("s_cmp_lt_u32 s94, s92")
        p("s_cbranch_scc1 L_pr")
        p.label("L_pr2")
    stamps_out()
    p("s_endpgm")

    p(".p2align 6")
    p(".type gather_table,@object")
    p.label("gather_table")
    zt = P_Z - PS
    for role in range(2):
        for lane in range(64):
            s, half = lane >> 1, lane & 1
            ad = []
            for e in range(8):
                pr = slot_pair(s, half, e) if s < (24 if role == 0 else 22) else None
                at = (lambda j, k: P_D1 - PS + k*144 + j*4) if role == 0 else (lambda j, k: P_W1 - PS + (j*26 + k)*2)
                if pr is None: ad += [zt, zt]
                elif pr[1] is None: ad += [at(pr[0], 26), zt]
                elif pr[0] == pr[1] or norm(pr) == (24, 25): ad += [at(*pr), zt]
                else: ad += [at(pr[0], pr[1]), at(pr[1], pr[0])]
            p(".short " + ", ".join(str(a) for a in ad))
    p(".size gather_table, 4096")
    return p

def header():
    return """; xDeepFM (CIN + DNN) forward, one launch, 256 workgroups (S1).
; Kernarg: idx, table, ws_cin, w_cin_out, w_dnn1, b_dnn1, w_dnn2, b_out, out, debug, ws
; @launch grid=(256,1,1) block=(512,1,1) lds=%d
.amdgcn_target "amdgcn-amd-amdhsa--gfx950"
.text
""" % LDS_SIZE
def footer():
    nv = 256
    return f""".section .rodata,"a"
.p2align 6
.amdhsa_kernel {NAME}
  .amdhsa_next_free_vgpr {nv}
  .amdhsa_next_free_sgpr 102
  .amdhsa_accum_offset {nv}
  .amdhsa_group_segment_fixed_size 0
  .amdhsa_kernarg_size 88
  .amdhsa_user_sgpr_count 2
  .amdhsa_user_sgpr_kernarg_segment_ptr 1
  .amdhsa_system_sgpr_workgroup_id_x 1
  .amdhsa_float_denorm_mode_32 3
.end_amdhsa_kernel
"""
if __name__ == "__main__":
    out = sys.argv[1]
    for a in sys.argv[2:]:
        k, v = a.split("=")
        setattr(cfg, k, type(getattr(cfg, k))(int(v)))
    open(out, "w").write(header() + build().text() + footer())
```

```python
import sys, struct, math
from asmlib import *
from slots import *

NAME = "standalone__deep_cross_xdeepfm__recsys_kernel"
class Cfg:
    stamps = 0
    NRES = 34
    R = 2
    prio_prep = 3
    prio_hi = 0
    poll_sleep = 2
    idle_sleep = 1
    gon = 5
    bal = 0
    lt0 = 2
    lt1 = 5
    early = 6
    look = 3
    cmask = 0
    catch0 = 4
    catch = 4
    etouch = 0
    dtouch = 1
    mtouch = 1
    ttouch = 0
    xwin = 4
    pfcode = 3
    pfn = 6
    pf0 = 0
    flip = 3
    w2early = 1
    dpos = 4
    ltouch = 0
    pk = 1
    ctouch = 2
    wrot = 1
    direct = 1
    pl = 1
    fast = 1
    msleep = 1
    tlbo = 0
    tlbw = 0
    ost = 0
    zfirst = 0
    two = 1
    sflag = 1
    w3last = 1
    ntx = 0
    nta = 0
    nti = 0
    pre = 0
    pst = -1
    pcyc = 0
    pxa = -1
    plat = 0
    wsoff = 0
    dwarm = 1
    pwg = 0
    pwave = 0
    probe = 0
    dbench = 0
    nodma = 0
    nobar = 0
    lb = 21
    tailprio = 0
    b2 = 26
    sw = 26
    chk = 3
    barp = 1
    arp = 1
    noprep = 0
    clrpos = 1
    xstart = 0
    xbar = 4
    pdelay = 1
    hold = 0
cfg = Cfg()

LDS_SIZE = 163840
XO = 0
WO = 8*7168
PS = WO + 96*528
P_W3 = PS; P_M3T = PS + 36864; P_D1 = PS + 38912; P_W1 = PS + 43520; P_Z = PS + 45568; P_DUM = PS + 45824
CO = LDS_SIZE - 512
IX2 = PS + 46080
assert P_DUM + 256 <= CO
C_PA, C_PB, C_XL, C_FLAG, C_GO, C_G0, C_PI = 0, 4, 8, 12, 16, 20, 24
RB = 7
BSZ = 13312
SLOT = BSZ + 8192
IDXO = RB*SLOT
assert IDXO + 8*1664 == LDS_SIZE
MBOX = 0; WS_W = 262144; BLK = 1664; WS_END = WS_W + 26*BLK; WS_STAMP = 1 << 20
S_IDX, S_TAB, S_W1, S_WCIN, S_WCO, S_B1, S_W2, S_WS = 4, 8, 12, 16, 20, 24, 28, 32
S_OUT, S_DBG, S_BOUT = 36, 38, 40
S_WAVE, S_RG, S_CP, S_FB, S_COL, S_W = 42, 43, 44, 45, 46, 47
S_PC, S_SPIN, S_X = 48, 50, 51
KA = 52
S_T = 52
S_ST = 70
V_C, V_ONE, V_POLL, V_L = 162, 163, 164, 165
FRM = "0x20000"

def f2h(x): return "0x%08x" % struct.unpack("<I", struct.pack("<f", x))[0]

def build():
    p = Prog()
    lab = [0]
    def L(n):
        lab[0] += 1
        return f"L_{n}_{lab[0]}"
    def stamp(i):
        if cfg.pst == i:
            p("s_memtime s[92:93]" if cfg.pcyc else "s_memrealtime s[92:93]")
            p.wait0(lg=True)
        if cfg.stamps and (cfg.stamps < 3 or i == 8 or (cfg.stamps == 4 and i in (4, 26))):
            p(f"s_memrealtime s[68:69]" if cfg.stamps != 2 or i == 8 else "s_memtime s[68:69]")
            p.wait0(lg=True)
            if cfg.stamps != 2 or i == 8: p(f"s_mov_b32 s{S_ST+i}, s68")
            else:
                p("s_sub_u32 s68, s68, s100")
                p("s_lshr_b32 s68, s68, 4")
                p(f"s_add_u32 s{S_ST+i}, s68, s{S_ST}")
    def stamps_out():
        if cfg.pst >= 0:
            stamp(8)
            sk = L("npr"); lp = L("pr")
            p(f"s_cmp_lg_u32 s2, {cfg.pwg}")
            p(f"s_cbranch_scc1 {sk}")
            p(f"s_cmp_lg_u32 s{S_WAVE}, {cfg.pwave}")
            p(f"s_cbranch_scc1 {sk}")
            if cfg.pst == 0: p("s_mov_b32 s92, s96")
            if cfg.pst == 28:
                p(f"s_cmp_lg_u32 s{S_ST+27}, 0")
                p("s_cselect_b32 s92, 125, 0")
                p(f"s_cmp_ge_u32 s{S_ST+27}, 100")
                p("s_cselect_b32 s92, 250, s92")
                p(f"s_cmp_ge_u32 s{S_ST+27}, 101")
                p("s_cselect_b32 s92, 375, s92")
                p("s_add_u32 s92, s92, s96")
            if cfg.pxa >= 0:
                p("s_mov_b64 exec, -1")
                p("v_mov_b32 v1, 0")
                p(f"global_load_dword v2, v1, s[{S_DBG}:{S_DBG+1}] offset:8 sc1")
                p("s_waitcnt vmcnt(0)")
                p("v_readfirstlane_b32 s90, v2")
                p("s_cmp_lg_u32 s90, s91")
                p("s_cselect_b32 s90, 250, 0")
                p("s_add_u32 s92, s92, s90")
            if cfg.pcyc:
                p("s_sub_u32 s90, s92, s98")
                p("s_lshr_b32 s90, s90, 3")
            else:
                p("s_sub_u32 s90, s92, s96")
                p("s_mul_i32 s90, s90, 4")
            p("s_mov_b64 exec, 1")
            p("v_mov_b32 v1, 0")
            p("v_mov_b32 v2, s90")
            p(f"global_store_dword v1, v2, s[{S_DBG}:{S_DBG+1}] offset:4")
            p("s_add_u32 s90, s90, 2000")
            p("s_min_u32 s90, s90, 20000")
            p("s_add_u32 s90, s90, s96")
            p.label(lp)
            p("s_sleep 1")
            p("s_memrealtime s[94:95]"); p("s_waitcnt lgkmcnt(0)")
            p("s_cmp_lt_u32 s94, s90")
            p(f"s_cbranch_scc1 {lp}")
            p.label(sk)
        if not cfg.stamps: return
        stamp(8)
        p("s_mov_b64 exec, 1")
        p(f"s_lshl4_add_u32 s{S_T}, s2, s{S_WAVE}")
        p(f"s_lshl_b32 s{S_T}, s{S_T}, 7")
        p(f"s_add_u32 s{S_T}, s{S_T}, {WS_STAMP}")
        p(f"v_mov_b32 v1, s{S_T}")
        p("s_memtime s[68:69]")
        p("s_waitcnt lgkmcnt(0)")
        p(f"s_sub_u32 s{S_ST+29}, s68, s100")
        for i in range(30):
            p(f"v_mov_b32 v2, s{S_ST+i}")
            p(f"global_store_dword v1, v2, s[{S_WS}:{S_WS+1}] offset:{4*i}")
    def arrive(*offs):
        p("s_mov_b64 exec, 1")
        for off in offs: p.lds(f"ds_add_u32 v{V_C}, v{V_ONE} offset:{off}", "arr")
        p("s_mov_b64 exec, -1")
    def poll_issue(off):
        p.lds(f"ds_read_b32 v{V_POLL}, v{V_C} offset:{off}", "poll")
    def check(off, target, issued=False, sleep=0):
        ok = L("ok"); sp = L("spin")
        if issued:
            p.wait(lg="poll")
            p(f"v_readfirstlane_b32 s{S_X}, v{V_POLL}")
            p(f"s_cmp_ge_u32 s{S_X}, {target}")
            p(f"s_cbranch_scc1 {ok}")
        p.label(sp)
        if sleep: p(f"s_sleep {sleep}")
        p(f"ds_read_b32 v{V_POLL}, v{V_C} offset:{off}")
        p("s_waitcnt lgkmcnt(0)")
        p(f"v_readfirstlane_b32 s{S_X}, v{V_POLL}")
        p(f"s_sub_u32 s{S_SPIN}, s{S_SPIN}, 1")
        p("s_cbranch_scc1 L_end")
        p(f"s_cmp_ge_u32 s{S_X}, {target}")
        p(f"s_cbranch_scc0 {sp}")
        if not issued: p.lg.clear()
        p.label(ok)
    def srd(s, ka, n):
        if ka is not None: p(f"s_mov_b64 s[{s}:{s+1}], s[{KA+ka}:{KA+ka+1}]")
        p(f"s_mov_b32 s{s+2}, {n}")
        p(f"s_mov_b32 s{s+3}, {FRM}")
    def touch(vaddr, soff, mask):
        p(f"s_mov_b64 exec, {mask}" if mask < (1 << 31) else f"s_mov_b32 exec_hi, {hex(mask >> 32)}")
        p(f"buffer_load_dword v250, v{vaddr}, s[{S_W1}:{S_W1+3}], s{soff} offen")
        p("s_mov_b64 exec, -1")

    def ws_shift():
        if cfg.wsoff:
            p(f"s_add_u32 s{S_WS}, s{S_WS}, {cfg.wsoff << 20}")
            p(f"s_addc_u32 s{S_WS+1}, s{S_WS+1}, 0")
    def producer_index():
        if cfg.pl:
            p(f"s_lshr_b32 s{S_FB}, s2, 6")
            p(f"s_lshl2_add_u32 s{S_FB}, s{S_CP}, s{S_FB}")
            p(f"s_mul_i32 s{S_FB}, s{S_FB}, 3")
            p(f"s_and_b32 s{S_X}, s2, 7")
            p(f"s_sub_u32 s{S_X}, s{S_X}, 1")
            p(f"s_add_u32 s{S_FB}, s{S_FB}, s{S_X}")
            p(f"s_cmp_lt_u32 s{S_X}, 3")
            p(f"s_cselect_b32 s{S_FB}, s{S_FB}, 99")
            return
        p(f"s_lshr_b32 s{S_FB}, s2, 6")
        p(f"s_sub_u32 s{S_FB}, s{S_RG}, s{S_FB}")
        p(f"s_sub_u32 s{S_FB}, s{S_FB}, 1")
        p(f"s_and_b32 s{S_X}, s2, 0x37")
        p(f"s_sub_u32 s{S_X}, s{S_X}, 1")
        p(f"s_cmp_lt_u32 s{S_X}, 7")
        p(f"s_cselect_b32 s{S_FB}, s{S_FB}, 99")

    S_FL = 16
    FO = 128 if cfg.two else 0
    def flags_load(off):
        if cfg.sflag: p(f"s_load_dword s{S_FL}, s[{S_DBG}:{S_DBG+1}], {FO}")
        else: p(f"global_load_dword v11, v10, s[{S_DBG}:{S_DBG+1}] offset:{FO} sc1")
    def flags_test():
        if cfg.sflag: p("s_waitcnt lgkmcnt(0)")
        else:
            p("s_waitcnt vmcnt(0)")
            p(f"v_readfirstlane_b32 s{S_FL}, v11")
        p(f"s_cmp_ge_u32 s{S_FL}, 26")

    p(f".globl {NAME}\n.p2align 8\n.type {NAME},@function")
    p.label(NAME)
    p(f"s_load_dwordx16 s[{KA}:{KA+15}], s[0:1], 0")
    p(f"s_load_dwordx4 s[{S_OUT}:{S_OUT+3}], s[0:1], 64")
    p(f"s_load_dwordx2 s[{S_WS}:{S_WS+1}], s[0:1], 80")
    if cfg.probe or cfg.pst >= 0: p("s_memrealtime s[96:97]" if cfg.pst != 28 else "s_memrealtime s[96:97]")
    if cfg.pcyc: p("s_memtime s[98:99]")
    if cfg.stamps:
        p(f"s_memrealtime s[{S_ST}:{S_ST+1}]")
        p(f"s_memtime s[100:101]")
    p("v_lshrrev_b32 v1, 6, v0")
    p("v_and_b32 v0, 63, v0")
    p(f"v_readfirstlane_b32 s{S_WAVE}, v1")
    p("s_cmp_ge_u32 s2, 0x100")
    p("s_cbranch_scc1 L_end")
    p(f"s_and_b32 s3, s2, 7")
    p(f"s_lshr_b32 s{S_RG}, s2, 6")
    p(f"s_lshl3_add_u32 s{S_RG}, s{S_RG}, s3")
    p(f"s_bfe_u32 s{S_CP}, s2, 0x20004")
    p(f"v_lshlrev_b32 v{V_L}, 4, v0")
    p(f"v_lshlrev_b32 v160, 7, v0")
    srd(S_IDX, None, 4096*104)
    srd(S_W1, None, 832*1664)
    p("s_bitcmp1_b32 s2, 3")
    p("s_cbranch_scc1 L_cin")
    p(f"s_lshl3_add_u32 s3, s{S_RG}, s{S_WAVE}")
    p(f"s_mul_i32 s3, s3, 1664")
    p(f"s_mul_i32 s{S_W}, s{S_WAVE}, 1664")
    p(f"s_add_u32 m0, s{S_W}, {IDXO}")
    p(f"s_lshr_b32 s{S_X}, s2, 4")
    p(f"s_lshl3_add_u32 s{S_X}, s{S_X}, s{S_WAVE}")
    p(f"s_mul_i32 s{S_X}, s{S_X}, 2560")
    p.wait0(lg=True)
    p(f"s_mov_b64 s[{S_IDX}:{S_IDX+1}], s[{KA}:{KA+1}]")
    p(f"s_mov_b64 s[{S_W1}:{S_W1+1}], s[{KA+8}:{KA+9}]")
    for n in range(2):
        if n: p("s_mov_b32 exec_hi, 0xff")
        p.vmem(f"buffer_load_dwordx4 v{V_L}, s[{S_IDX}:{S_IDX+3}], s3 offen offset:{1024*n}{' nt' if cfg.nti else ''} lds", "idx")
    if cfg.ctouch == 2:
        srd(S_WCIN, 4, 105456)
        p(f"s_lshr_b32 s3, s2, 4")
        p(f"s_lshl3_add_u32 s3, s3, s{S_WAVE}")
        p(f"s_mul_i32 s3, s3, 384")
        p(f"s_add_u32 s3, s3, {549*128}")
        p("s_mov_b64 exec, 7")
        p(f"buffer_load_dword v250, v160, s[{S_WCIN}:{S_WCIN+3}], s3 offen"); p.vm.issue("t")
    if not cfg.dtouch: p("s_mov_b64 exec, -1")
    if cfg.dtouch:
        touch(160, S_X, 0xfffff); p.vm.issue("t")
    p("s_branch L_dnn")
    dnn_vm = list(p.vm.q)

    p.vm.clear(); p.lg.clear()
    p.label("L_cin")
    if cfg.dbench: p("s_endpgm")
    S_C = S_WAVE
    W3A, TBL, VV, AQ, VF, GA, MB, VT, CRAW = 28, 32, 40, 56, 72, 80, 96, 170, 152
    S_J = S_W
    p(f"s_sub_u32 s{S_J}, s{S_WAVE}, 4")
    p("s_cbranch_scc1 L_pwave")
    p(f"s_lshl3_add_u32 s3, s{S_RG}, s{S_CP}")
    p(f"s_lshr_b32 s{S_FB}, s{S_J}, 1")
    p(f"s_lshl2_add_u32 s3, s{S_FB}, s3")
    p(f"s_and_b32 s{S_X}, s{S_J}, 1")
    p(f"s_lshl1_add_u32 s3, s3, s{S_X}")
    p(f"s_mul_i32 s3, s3, 832")
    p(f"s_mul_i32 s{S_X}, s{S_J}, 832")
    p(f"s_add_u32 m0, s{S_X}, {IX2}")
    p("s_mov_b32 exec_hi, 0xfffff")
    p.wait0(lg=True)
    p(f"s_mov_b64 s[{S_IDX}:{S_IDX+1}], s[{KA}:{KA+1}]")
    p(f"buffer_load_dwordx4 v{V_L}, s[{S_IDX}:{S_IDX+3}], s3 offen{' nt' if cfg.nti else ''} lds")
    if cfg.pfcode == 3:
        p(f"s_getpc_b64 s[{S_PC}:{S_PC+1}]")
        p.label("L_pc3")
        p(f"s_lshr_b32 s{S_X}, s2, 4")
        p(f"s_lshl2_add_u32 s{S_X}, s{S_X}, s{S_J}")
        p(f"s_mul_i32 s{S_X}, s{S_X}, 640")
        p(f"v_add_u32 v2, s{S_X}, v160")
        p(f"v_min_u32 v2, gather_table-L_pc3+4092, v2")
        p("s_mov_b64 exec, 31")
        p(f"global_load_dword v250, v2, s[{S_PC}:{S_PC+1}]")
    p("s_branch L_xwave")
    def cin_common():
        srd(S_WCO, None, 156)
        srd(S_WS, None, WS_END)
        p(f"s_mov_b32 s{S_SPIN}, 0x40000")
        p(f"v_lshlrev_b32 v{V_C}, 2, v0")
        p(f"v_add_u32 v{V_C}, {CO}, v{V_C}")
        p(f"v_mov_b32 v{V_ONE}, 1")
    p.label("L_pwave")
    cin_common()
    srd(S_WCIN, None, 105456)
    producer_index()
    if cfg.noprep: p(f"s_mov_b32 s{S_FB}, 99")
    p(f"s_getpc_b64 s[{S_PC}:{S_PC+1}]")
    p.label("L_pc")
    p.wait0(lg=True)
    p(f"s_mov_b64 s[{S_WCIN}:{S_WCIN+1}], s[{KA+4}:{KA+5}]")
    ws_shift()
    if cfg.ttouch: srd(S_TAB, 2, 6400000)
    p(f"s_mov_b64 s[{S_W1}:{S_W1+1}], s[{KA+8}:{KA+9}]")
    p(f"s_mov_b64 s[{S_WCO}:{S_WCO+1}], s[{KA+6}:{KA+7}]")
    p(f"s_mov_b64 s[{S_BOUT}:{S_BOUT+1}], s[{KA+14}:{KA+15}]")
    def cinit_loads():
        p(f"v_lshrrev_b32 v8, 5, v0")
        p(f"v_lshlrev_b32 v9, 3, v8")
        p(f"v_lshlrev_b32 v8, 1, v8")
        for a in range(3):
            p(f"buffer_load_dwordx2 v[{CRAW+2*a}:{CRAW+2*a+1}], v9, s[{S_WCO}:{S_WCO+3}], 0 offen offset:{16*a}")
        p(f"buffer_load_ushort v{CRAW+6}, v8, s[{S_WCO}:{S_WCO+3}], 0 offen offset:48")
        p(f"v_mov_b32 v8, 0")
        if cfg.tlbo: p(f"global_load_dword v250, v8, s[{S_OUT}:{S_OUT+1}]")
        p(f"global_load_ushort v{CRAW+7}, v8, s[{S_BOUT}:{S_BOUT+1}]")
    if cfg.mtouch:
        p(f"s_cmp_lt_u32 s{S_CP}, 2")
        p("s_cbranch_scc1 L_nomt")
        p(f"s_lshl1_add_u32 s{S_T}, s{S_RG}, s{S_CP}")
        p(f"s_lshl2_add_u32 s{S_T}, s{S_T}, s{S_C}")
        p(f"s_mul_i32 s{S_T+1}, s{S_T}, {33*128}")
        p(f"s_add_u32 s{S_T+1}, s{S_T+1}, {(2496 - 8*33)*128}")
        touch(160, S_T+1, (1 << 33) - 1)
        p.label("L_nomt")
    p(f"s_cmp_ge_u32 s{S_FB}, 26")
    p("s_cbranch_scc1 L_cbar")
    if cfg.prio_prep: p(f"s_setprio {cfg.prio_prep}")
    p(f"s_mul_i32 s{S_T+2}, s{S_FB}, {BLK}")
    p(f"s_add_u32 s{S_T+2}, s{S_T+2}, {WS_W}")
    def w3_dma():
        p(f"s_mul_i32 s{S_T}, s{S_C}, 9216")
        p(f"s_add_u32 s{S_T+1}, s{S_T}, 70304")
        p(f"s_add_u32 s{S_T}, s{S_T}, {P_W3}")
        for u in range(9):
            if u % 4 == 0:
                if u: p(f"s_add_u32 s{S_T+1}, s{S_T+1}, 0x1000")
                p(f"s_add_u32 m0, s{S_T}, {1024*u}")
                p("s_nop 0")
            p(f"buffer_load_dwordx4 v{V_L}, s[{S_WCIN}:{S_WCIN+3}], s{S_T+1} offen offset:{1024*(u % 4)} lds")
    if not cfg.w3last: w3_dma()
    p("v_and_b32 v2, 0x30, v0")
    p("v_bfe_u32 v1, v0, 2, 2")
    for q in range(4):
        p(f"v_xor_b32 v3, {q}, v1")
        p("v_lshl_add_u32 v3, v3, 28, v2")
        p(f"buffer_load_dwordx4 v[{AQ+4*q}:{AQ+4*q+3}], v3, s[{S_WCO}:{S_WCO+3}], 0 offen offset:104")
    p(f"s_cmp_ge_u32 s{S_C}, 2")
    p("s_cbranch_scc1 L_p23")
    p(f"s_lshl_b32 s{S_T}, s{S_C}, 11")
    p(f"s_add_u32 s{S_T}, s{S_T}, gather_table-L_pc")
    p(f"v_lshl_add_u32 v1, v0, 5, s{S_T}")
    p(f"global_load_dwordx4 v[{TBL}:{TBL+3}], v1, s[{S_PC}:{S_PC+1}]")
    p(f"global_load_dwordx4 v[{TBL+4}:{TBL+7}], v1, s[{S_PC}:{S_PC+1}] offset:16")
    p(f"s_cmp_lg_u32 s{S_C}, 0")
    p("s_cbranch_scc1 L_p1")
    p("v_lshrrev_b32 v3, 5, v0")
    p("v_mul_u32_u24 v3, 0x2a40, v3")
    p("v_and_b32 v2, 31, v0")
    p("v_lshl_add_u32 v3, v2, 1, v3")
    p(f"s_mul_i32 s{S_T}, s{S_FB}, 52")
    p(f"s_add_u32 s{S_T}, s{S_T}, 35152")
    for u in range(16):
        if u and u % 4 == 0:
            p(f"s_add_u32 s{S_T}, s{S_T}, {(4 if u != 8 else 12)*1352}")
        p(f"buffer_load_ushort v{VV+u}, v3, s[{S_WCIN}:{S_WCIN+3}], s{S_T} offen offset:{1352*(u % 4)}")
    p("s_branch L_pz")
    p.label("L_p1")
    p(f"s_mul_i32 s{S_T}, s{S_FB}, 1352")
    p(f"s_mov_b32 m0, {P_W1}")
    p("s_nop 0")
    for u in range(2):
        p(f"buffer_load_dwordx4 v{V_L}, s[{S_WCIN}:{S_WCIN+3}], s{S_T} offen offset:{1024*u} lds")
    p("s_branch L_pz")
    p.label("L_p23")
    p(f"s_cmp_lg_u32 s{S_C}, 3")
    p("s_cbranch_scc1 L_pz")
    p("v_lshlrev_b32 v1, 2, v0")
    p(f"buffer_load_dword v27, v1, s[{S_WCO}:{S_WCO+3}], 0 offen offset:52")
    if cfg.dwarm:
        p(f"s_cmp_lg_u32 s{S_FB}, 0")
        p("s_cbranch_scc1 L_nodw")
        p("v_mov_b32 v4, 0")
        p("s_mov_b64 exec, 1")
        p(f"global_atomic_add v4, v4, s[{S_DBG}:{S_DBG+1}] sc1")
        p("s_mov_b64 exec, -1")
        p.label("L_nodw")
    for r in range(4): p(f"v_mov_b32 v{4+r}, -1")
    p(f"buffer_store_dwordx4 v[4:7], v{V_L}, s[{S_WS}:{S_WS+3}], s{S_T+2} offen sc1")
    p("s_mov_b32 exec_hi, 0xff")
    p(f"buffer_store_dwordx4 v[4:7], v{V_L}, s[{S_WS}:{S_WS+3}], s{S_T+2} offen offset:1024 sc1")
    p("s_mov_b32 exec_hi, -1")
    nk = 10 if cfg.fast else 5
    p(f"s_mul_i32 s{S_T}, s{S_FB}, {1024*nk}")
    p(f"s_min_u32 s{S_T}, s{S_T}, {131072*nk//5 - 1024*nk}")
    for u in range(nk):
        if u and u % 4 == 0: p(f"s_add_u32 s{S_T}, s{S_T}, 0x1000")
        p(f"buffer_store_dwordx4 v[4:7], v{V_L}, s[{S_WS}:{S_WS+3}], s{S_T} offen offset:{1024*(u % 4)} sc1")
    p.label("L_pz")
    if cfg.w3last: w3_dma()
    p("v_mov_b32 v2, 0")
    p("v_mov_b32 v3, 0")
    p(f"s_lshl_b32 s{S_T}, s{S_C}, 9")
    p(f"s_add_u32 s{S_T}, s{S_T}, {P_M3T}")
    p(f"v_lshl_add_u32 v1, v0, 3, s{S_T}")
    p("ds_write_b64 v1, v[2:3]")
    p(f"v_add_u32 v1, {P_Z - CO}, v{V_C}")
    p("ds_write_b32 v1, v2")
    p.label("L_cbar")
    if cfg.pfcode == 1:
        sk = L("nopf")
        p(f"s_cmp_lg_u32 s{S_C}, 2")
        p(f"s_cbranch_scc1 {sk}")
        p(f"s_lshr_b32 s{S_T}, s2, 4")
        p(f"s_mul_i32 s{S_T}, s{S_T}, 2560")
        p(f"v_add_u32 v2, s{S_T}, v160")
        p(f"v_min_u32 v2, gather_table-L_pc+4092, v2")
        p("s_mov_b64 exec, 0xfffff")
        p(f"global_load_dword v161, v2, s[{S_PC}:{S_PC+1}]")
        p("s_mov_b64 exec, -1")
        p.label(sk)
    p("v_mov_b32 v2, 0")
    p(f"ds_write_b32 v{V_C}, v2")
    p.wait0(lg=True)
    p("s_barrier")
    stamp(1)
    p(f"s_cmp_lt_u32 s{S_FB}, 26")
    p("s_cbranch_scc1 L_prep")
    cinit_loads()
    p("s_waitcnt vmcnt(0)")
    p("s_branch L_setup")
    p.label("L_prep")
    p("v_bfe_u32 v1, v0, 2, 2")
    p("v_lshrrev_b32 v4, 4, v0")
    p("v_lshl_add_u32 v4, v4, 3, v1")
    p("v_add_u32 v5, 4, v4")
    p("v_min_u32 v4, 25, v4")
    p("v_min_u32 v5, 25, v5")
    p("v_and_b32 v6, 3, v0")
    p(f"s_mul_i32 s{S_T}, s{S_C}, 384")
    p(f"s_add_u32 s{S_T}, s{S_T}, {P_W3}")
    p(f"v_lshl_add_u32 v6, v6, 3, s{S_T}")
    p(f"s_movk_i32 s{S_T+1}, 1352")
    p(f"v_mad_u32_u24 v2, v4, s{S_T+1}, v6")
    p(f"v_mad_u32_u24 v3, v5, s{S_T+1}, v6")
    p(f"s_mul_i32 s{S_T}, s{S_C}, 192")
    p(f"s_movk_i32 s{S_T+1}, -1662")
    p(f"v_mov_b32 v7, {P_DUM}")
    for u in range(3):
        p(f"v_add_u32 v4, s{S_T}, v0")
        if u < 2: p(f"s_add_u32 s{S_T}, s{S_T}, 64")
        p("v_mul_u32_u24 v5, 2521, v4")
        p("v_lshrrev_b32 v5, 16, v5")
        p("v_cmp_gt_u32 vcc, 0x2a4, v4")
        p("v_lshlrev_b32 v4, 6, v4")
        p(f"v_mad_i32_i24 v4, v5, s{S_T+1}, v4")
        p(f"v_add_u32 v4, {P_M3T}, v4")
        p(f"v_cndmask_b32 v{8+u}, v7, v4, vcc")
    p("v_and_b32 v5, 31, v0")
    p("v_lshrrev_b32 v4, 5, v0")
    p("v_lshlrev_b32 v6, 6, v5")
    p("v_lshl_add_u32 v6, v4, 4, v6")
    p(f"v_add_u32 v28, {P_M3T}, v6")
    p("v_mul_u32_u24 v5, 0x90, v5")
    p("v_lshl_add_u32 v5, v4, 4, v5")
    p(f"v_add_u32 v29, {P_D1}, v5")
    p(f"s_cmp_eq_u32 s{S_C}, 0")
    p(f"s_cselect_b32 s{S_T}, 768, 0")
    p(f"v_add_u32 v30, s{S_T}, v{V_L}")
    p(f"v_mov_b32 v11, {PS}")
    p(f"v_add_u32 v4, {P_M3T + 26*64 - CO}, v{V_C}")
    p(f"s_cmp_lg_u32 s{S_C}, 3")
    p("s_cbranch_scc1 L_w0")
    assert cfg.w3last
    p("s_waitcnt vmcnt(9)")
    p("s_mov_b64 exec, 0x1fff")
    p("ds_write_b32 v4, v27")
    p("v_mov_b32 v4, 0")
    p("s_mov_b64 exec, 1")
    if cfg.two: p(f"global_atomic_add v27, v4, v{V_ONE}, s[{S_DBG}:{S_DBG+1}] sc0 sc1")
    else: p(f"global_atomic_add v4, v{V_ONE}, s[{S_DBG}:{S_DBG+1}] sc1")
    p("s_mov_b64 exec, -1")
    stamp(13)
    if cfg.pst == 12:
        p("s_waitcnt vmcnt(0)")
        stamp(12)
    p("s_waitcnt vmcnt(1)")
    p("s_branch L_w1")
    p.label("L_w0")
    p.wait0(vm=True)
    p.label("L_w1")
    stamp(10)
    p("s_barrier")
    extra = []
    for u in range(8):
        extra.append(f"v_add_u32_sdwa v{GA+2*u}, v11, v{TBL+u} dst_sel:DWORD dst_unused:UNUSED_PAD src0_sel:DWORD src1_sel:WORD_0")
        extra.append(f"v_add_u32_sdwa v{GA+2*u+1}, v11, v{TBL+u} dst_sel:DWORD dst_unused:UNUSED_PAD src0_sel:DWORD src1_sel:WORD_1")
    for u in range(8): extra.append(f"v_lshl_or_b32 v{VF+u}, v{VV+2*u+1}, 16, v{VV+2*u}")
    def m3_mfma(U):
        u, q = divmod(U, 4)
        p.wait(lg=f"m{U}")
        cc = "0" if q == 0 else f"v[{12+4*u}:{15+4*u}]"
        p(f"v_mfma_f32_16x16x32_bf16 v[{12+4*u}:{15+4*u}], v[{AQ+4*q}:{AQ+4*q+3}], v[{MB+4*U}:{MB+4*U+3}], {cc}")
    for T in range(12):
        p.lds(f"ds_read_b64_tr_b16 v[{MB+4*T}:{MB+4*T+1}], v2 offset:{32*T}", f"m{T}")
        p.lds(f"ds_read_b64_tr_b16 v[{MB+4*T+2}:{MB+4*T+3}], v3 offset:{32*T}", f"m{T}")
        if T == 5:
            for _ in range(8): p(extra.pop(0))
        if T >= 6: m3_mfma(T - 6)
    for U in range(6, 12):
        m3_mfma(U)
        if U == 8:
            p("v_cvt_pk_bf16_f32 v24, v12, v12")
            p("ds_write_b16 v8, v24")
        else:
            for _ in range(2): p(extra.pop(0))
    p("v_cvt_pk_bf16_f32 v25, v16, v16")
    p("ds_write_b16 v9, v25")
    while extra: p(extra.pop(0))
    p(f"v_cvt_pk_bf16_f32 v26, v20, v20")
    p(f"ds_write_b16 v10, v26")
    p.wait0(lg=True)
    p("s_barrier")
    stamp(11)
    p(f"s_cmp_eq_u32 s{S_C}, 0")
    p("s_cbranch_scc1 L_pT")
    if cfg.two:
        p(f"s_cmp_lg_u32 s{S_C}, 3")
        p("s_cbranch_scc1 L_n3")
        p("v_mov_b32 v2, 0")
        p("v_mov_b32 v3, 26")
        p("s_waitcnt vmcnt(0)")
        p(f"v_readfirstlane_b32 s{S_X}, v27")
        p("s_mov_b64 exec, 1")
        p(f"s_cmp_lt_u32 s{S_X}, 25")
        p("s_cbranch_scc1 L_pdx")
        p(f"global_store_dword v2, v3, s[{S_DBG}:{S_DBG+1}] offset:128 sc1")
        p("s_branch L_pdx")
        p.label("L_n3")
    p(f"s_cmp_lg_u32 s{S_C}, 1")
    p("s_cbranch_scc1 L_pdone")
    for u in range(16): p(f"v_mov_b32 v{MB+16+u}, 0")
    for u in range(16): p(f"ds_read_u16_d16_hi v{MB+16+u}, v{GA+u}")
    p("s_branch L_pst")
    p.label("L_pT")
    p("ds_read_b128 v[12:15], v28")
    p("ds_read_b128 v[16:19], v28 offset:32")
    p("s_waitcnt lgkmcnt(1)")
    p(f"v_mfma_f32_32x32x16_bf16 v[{MB}:{MB+15}], v[{VF}:{VF+3}], v[12:15], 0")
    p("s_waitcnt lgkmcnt(0)")
    p(f"v_mfma_f32_32x32x16_bf16 v[{MB}:{MB+15}], v[{VF+4}:{VF+7}], v[16:19], v[{MB}:{MB+15}]")
    p("s_nop 11")
    for a in range(4): p(f"ds_write_b128 v29, v[{MB+4*a}:{MB+4*a+3}] offset:{32*a}")
    for u in range(16): p(f"ds_read_b32 v{MB+16+u}, v{GA+u}")
    p.label("L_pst")
    p("s_mov_b32 exec_hi, 0xffff")
    for e in range(8):
        if e % 2 == 0: p(f"s_waitcnt lgkmcnt({12 - 2*e})")
        p(f"v_add_f32 v{MB+16+2*e}, v{MB+16+2*e}, v{MB+16+2*e+1}")
        if e % 2:
            p(f"v_cvt_pk_bf16_f32 v{4+e//2}, v{MB+14+2*e}, v{MB+16+2*e}")
            p(f"v_min_u32 v{4+e//2}, -2, v{4+e//2}")
    p(f"buffer_store_dwordx4 v[4:7], v30, s[{S_WS}:{S_WS+3}], s{S_T+2} offen sc1")
    p(f"s_cmp_lg_u32 s{S_C}, 0")
    p("s_cbranch_scc1 L_pdx")
    p("v_lshlrev_b32 v8, 2, v0")
    p("s_mov_b32 exec_hi, 0")
    p(f"buffer_store_dword v{V_ONE}, v8, s[{S_WS}:{S_WS+3}], s{S_T+2} offen offset:1536 sc1")
    p.label("L_pdx")
    p("s_mov_b64 exec, -1")
    p.label("L_pdone")
    stamp(21)
    cinit_loads()
    p("s_waitcnt vmcnt(0)")
    p("s_branch L_setup")
    p.label("L_xwave")
    S_XM, S_TB = S_T+4, S_T+5
    p("s_mov_b64 exec, -1")
    cin_common()
    p(f"s_mov_b64 s[{S_W1}:{S_W1+1}], s[{KA+8}:{KA+9}]")
    p(f"s_mov_b64 s[{S_WCO}:{S_WCO+1}], s[{KA+6}:{KA+7}]")
    p(f"s_mov_b64 s[{S_BOUT}:{S_BOUT+1}], s[{KA+14}:{KA+15}]")
    ws_shift()
    srd(S_TAB, 2, 6400000)
    if cfg.etouch:
        p(f"s_cmp_eq_u32 s{S_CP}, 0")
        p("s_cbranch_scc1 L_noet")
        touch(160, S_X, (1 << 52) - 1)
        p("s_waitcnt vmcnt(1)")
        p.label("L_noet")
    p("v_lshrrev_b32 v1, 4, v0")
    p("v_and_b32 v2, 12, v0")
    p(f"s_mul_i32 s3, s{S_J}, 104")
    p(f"s_add_u32 s3, s3, {IX2}")
    p(f"v_add_u32 v2, s3, v2")
    p(f"s_movk_i32 s{S_X}, 416")
    p(f"v_mad_u32_u24 v3, v1, s{S_X}, v2")
    if cfg.bal:
        p(f"s_cmp_eq_u32 s{S_J}, 3")
        p(f"s_cselect_b32 s{S_X}, 104, 312")
        p(f"s_cselect_b32 s3, {13*104}, {20*104}")
        p(f"v_add_u32 v2, s3, v2")
        p(f"v_mad_u32_u24 v4, v1, s{S_X}, v2")
    else: p("v_add_u32 v4, 0x680, v3")
    p("v_and_b32 v1, 3, v0")
    p("v_lshlrev_b32 v5, 4, v1")
    p("v_bfe_u32 v1, v0, 3, 1")
    p("v_lshl_add_u32 v6, v1, 30, v5")
    p(f"s_mul_i32 s{S_XM}, s{S_J}, 7168")
    p(f"s_lshr_b32 s{S_TB}, s2, 4")
    p(f"s_lshl2_add_u32 s{S_TB}, s{S_TB}, s{S_J}")
    p(f"s_mul_i32 s{S_TB}, s{S_TB}, {46*128}")
    p(f"s_add_u32 s{S_TB}, s{S_TB}, {4992*128}")
    assert not cfg.etouch
    producer_index()
    p("s_waitcnt vmcnt(1)" if cfg.pfcode == 3 else "s_waitcnt vmcnt(0)")
    p("s_barrier")
    for u in range(2):
        for Q in range(0, 6, 2): p(f"ds_read2_b32 v[{VT+7*u+u+Q}:{VT+7*u+u+Q+1}], v{3+u} offset0:{4*Q} offset1:{4*Q+4}")
        p(f"ds_read_b32 v{VT+8*u+6}, v{3+u} offset:96")
    stamp(1)
    p.vm.clear()
    assert cfg.xwin < 14
    p.wait0(lg=True)
    go_done = False; g0_done = False
    for Q in range(7):
        for u in range(2):
            n = 2*Q + u
            if n == cfg.xbar and not cfg.noprep:
                p(f"s_cmp_ge_u32 s{S_FB}, 26")
                p("s_cbranch_scc1 L_nobar")
                p("s_barrier")
                p("s_barrier")
                p.label("L_nobar")
            if n == cfg.xstart and n: p.wait(vm="x0")
            if n >= cfg.xwin:
                p.wait(vm=f"x{n - cfg.xwin}")
                if n - cfg.xwin == 2*cfg.gon + 1: arrive(C_GO); go_done = True
                if cfg.pre and n - cfg.xwin == 2*(cfg.gon - cfg.pre) + 1: arrive(C_G0); g0_done = True
            p(f"s_add_u32 m0, s{S_XM}, {XO + 4*7168*u + 1024*Q}")
            p(f"v_lshl_add_u32 v{VT+8*u+Q}, v{VT+8*u+Q}, 6, v{6 if Q == 6 else 5}")
            p.vmem(f"buffer_load_dwordx4 v{VT+8*u+Q}, s[{S_TAB}:{S_TAB+3}], 0 offen{' nt' if cfg.ntx else ''} lds", f"x{n}")
        for u, at in enumerate((cfg.lt0, cfg.lt1)):
            if at == Q and cfg.ltouch:
                touch(160, S_TB, (1 << 46) - 1); p.vm.issue("t")
                p(f"s_add_u32 s{S_TB}, s{S_TB}, {2944*128}")
    def late_touch():
        touch(160, S_TB, (1 << 46) - 1); p.vm.issue("t")
        p(f"s_add_u32 s{S_TB}, s{S_TB}, {2944*128}")
    cinit_loads()
    for _ in range(5 + cfg.tlbo): p.vm.issue("ci")
    if cfg.pre and not g0_done:
        p.wait(vm=f"x{2*(cfg.gon - cfg.pre)+1}")
        arrive(C_G0)
    if not go_done:
        p.wait(vm=f"x{2*cfg.gon+1}")
        arrive(C_GO)
    p.wait(vm="x13")
    arrive(C_XL)
    p.wait(vm="ci")
    for at in (cfg.lt0, cfg.lt1):
        if at == 7 and cfg.ltouch: late_touch()
    if cfg.ltouch and cfg.lt1 == 8: p(f"s_mov_b32 s{S_FB}, s{S_TB}")
    stamp(6)

    p.label("L_setup")
    if cfg.stamps or cfg.pst == 28: p(f"s_mov_b32 s{S_ST+27}, 0")
    p(f"s_setprio {cfg.prio_prep}")
    p.vm.clear(); p.lg.clear()
    AX, AT, CI, X0 = 0, 16, 32, 48
    Z = [74, 78]; PT = 82; ZL = 90
    XA = {1: 98, -3: 99, -1: 100}; WA = 101; SM = [102, 103, 104, 105]; MBX = 106; VMB = 110; VBO = 111
    RING = 112; RES = RING + 4*cfg.R
    WT = 112
    assert RES + 4*cfg.NRES <= 256
    NR = 4
    S_N, S_MB, S_O = S_T+7, S_T+9, S_T+11
    S_NR = S_T + 12
    p(f"s_and_b32 s{S_T+3}, s{S_WAVE}, 3")
    p(f"s_lshl_b32 s{S_T+2}, s{S_T+3}, 2")
    p(f"s_lshl_b32 s{S_T}, s{S_T+3}, 8")
    p(f"s_mov_b32 s{S_N}, 4")
    p(f"s_add_u32 s{S_T+2}, s{S_T+2}, 3")
    p(f"s_cmp_lt_u32 s{S_WAVE}, 4")
    p("s_cbranch_scc1 L_rowp")
    p(f"s_add_u32 s{S_T}, s{S_T}, {4*7168}")
    if cfg.bal:
        p(f"s_mov_b32 s{S_N}, 3")
        p(f"s_mul_i32 s{S_T+2}, s{S_T+3}, 3")
        p(f"s_add_u32 s{S_T+2}, s{S_T+2}, 70")
    else: p(f"s_add_u32 s{S_T+2}, s{S_T+2}, 64")
    p.label("L_rowp")
    p(f"s_lshl4_add_u32 s{S_T+2}, s{S_CP}, s{S_T+2}")
    p.label("L_setup2")
    p(f"s_mov_b32 s{S_NR}, s{S_N}")
    p("v_and_b32 v1, 31, v0")
    p("v_lshrrev_b32 v2, 5, v0")
    p(f"v_lshl_add_u32 v3, v1, 1, s{S_T}")
    p(f"v_lshl_add_u32 v{XA[1]}, v2, 6, v3")
    p("v_mul_u32_u24 v4, 0xc0, v2")
    p(f"v_sub_u32 v{XA[-3]}, v3, v4")
    p("v_lshlrev_b32 v4, 6, v2")
    p(f"v_sub_u32 v{XA[-1]}, v3, v4")
    p("v_mul_u32_u24 v4, 0x210, v2")
    p("v_lshl_add_u32 v4, v1, 4, v4")
    p(f"v_add_u32 v{WA}, {WO}, v4")
    for r in range(26): p(f"v_mov_b32 v{X0+r}, 0")
    for a in range(3):
        for h in range(2):
            p(f"v_lshlrev_b32 v{CI+4*a+2*h}, 16, v{CRAW+2*a+h}")
            p(f"v_and_b32 v{CI+4*a+2*h+1}, 0xffff0000, v{CRAW+2*a+h}")
    p(f"v_lshlrev_b32 v{CI+12}, 16, v{CRAW+6}")
    for r in range(13, 16): p(f"v_mov_b32 v{CI+r}, 0")
    p(f"v_lshlrev_b32 v{VBO}, 16, v{CRAW+7}")
    p("v_lshrrev_b32 v1, 3, v0")
    p("v_min_u32 v3, 1, v1")
    p("v_lshlrev_b32 v2, 9, v0")
    p(f"v_lshl_add_u32 v{VMB}, v3, 30, v2")
    p(f"s_lshl_b32 s{S_T+1}, s{S_RG}, 7")
    p(f"s_add_u32 s{S_T+1}, s{S_T+1}, s{S_T+2}")
    p(f"s_lshl_b32 s{S_O}, s{S_T+1}, 1")
    p(f"s_lshl_b32 s{S_T}, s{S_RG}, 10")
    p(f"s_add_u32 s{S_MB}, s{S_T+2}, s{S_T}")
    p(f"s_sub_u32 s{S_MB}, s{S_MB}, 3")
    p(f"s_lshl_b32 s{S_MB}, s{S_MB}, 2")
    p(f"s_add_u32 s{S_MB+1}, s{S_MB}, 0x20000")
    p(f"v_mov_b32 v{ZL+7}, 0")
    def x_read(r):
        p.lds(f"ds_read_u16_d16_hi v{X0+r}, v{XA[pi(r)-r]} offset:{1024*(r >> 2) + 64*(r & 3)}", f"x{r}")
    def z_ops(n):
        ops = []
        for e in range(4):
            t = PT + 2*(e % 4)
            (a, b), (c, d) = S[8*n + 2*e], S[8*n + 2*e + 1]
            ops.append(("v", f"v_mul_f32 v{t}, v{X0+a}, v{X0+b}", (a, b)))
            ops.append(("v", f"v_mul_f32 v{t+1}, v{X0+c}, v{X0+d}", (c, d)))
        cv = [("v", f"v_cvt_pk_bf16_f32 v{Z[n % 2]+e}, v{PT+2*e}, v{PT+2*e+1}", ()) for e in range(4)]
        return ops[0:4] + cv[0:1] + ops[4:6] + cv[1:2] + ops[6:8] + cv[2:4]
    def first_row():
        check(C_XL, 4, sleep=cfg.idle_sleep)
        for r in range(26): x_read(r)
        for o in z_ops(0):
            p.wait(lg=tuple(f"x{r}" for r in o[2]))
            p(o[1])
        for d in XA.values(): p(f"v_add_u32 v{d}, 0x1c00, v{d}")
    if cfg.zfirst:
        first_row()
        p.wait0(lg=True)
    p(f"s_cmp_ge_u32 s{S_WAVE}, 4")
    p("s_cbranch_scc1 L_xz")
    p("v_and_b32 v2, 7, v0")
    p(f"v_mul_u32_u24 v3, {BLK}, v1")
    p("v_lshl_add_u32 v3, v2, 4, v3")
    p("v_mul_u32_u24 v4, 0x210, v2")
    p(f"s_mul_i32 s{S_T}, s{S_C}, {24*528}")
    p(f"s_add_u32 s{S_T}, s{S_T}, {WO}")
    p(f"v_add_u32 v4, s{S_T}, v4")
    p("v_lshl_add_u32 v5, v1, 4, v4")
    p("v_cmp_eq_u32 vcc, 1, v1")
    p("v_add_u32 v6, 48, v5")
    p("v_subrev_u32 v7, 48, v5")
    p("v_cndmask_b32 v6, v5, v6, vcc")
    p("v_cmp_eq_u32 vcc, 4, v1")
    p(f"v_mul_u32_u24 v8, {BLK}, v0")
    p("s_nop 0")
    p("v_cndmask_b32 v6, v6, v7, vcc")
    p(f"s_mul_i32 s{S_T}, s{S_C}, 384")
    p(f"s_add_u32 s{S_T}, s{S_T}, {WS_W}")
    p(f"s_and_b32 s{S_T+1}, s{S_CP}, {1 if cfg.wrot else 0}")
    p(f"s_mul_i32 s{S_T+2}, s{S_T+1}, 26624")
    for k in range(4):
        p(f"s_xor_b32 s{S_T+3+k}, s{S_T+2}, {26624*(k >> 1)}")
        p(f"s_add_u32 s{S_T+3+k}, s{S_T+3+k}, s{S_T}")
        if k & 1: p(f"s_add_u32 s{S_T+3+k}, s{S_T+3+k}, 13312")
    p(f"s_lshl_b32 s{S_T+2}, s{S_T+1}, 8")
    p(f"s_cmp_eq_u32 s{S_T+1}, 0")
    p("s_cselect_b64 vcc, -1, 0")
    p(f"v_add_u32 v12, s{S_T+2}, v5")
    p(f"s_xor_b32 s{S_T+2}, s{S_T+2}, 0x100")
    p("v_add_u32 v6, 0x180, v6")
    p("v_add_u32 v15, 0x80, v5")
    p(f"v_add_u32 v14, s{S_T+2}, v5")
    p("v_cndmask_b32 v13, v6, v15, vcc")
    p("v_cndmask_b32 v15, v15, v6, vcc")
    p("v_mov_b32 v10, 0")
    if cfg.pre:
        check(C_G0, 4, sleep=2)
        flags_load(192)
    check(C_GO, 4, sleep=2)
    stamp(22)
    p(f"s_mov_b32 s{S_T+13}, {WS_W}")
    if cfg.noprep: p("s_branch L_wload")
    if cfg.direct:
        if not cfg.pre:
            flags_load(192)
        flags_test()
        p("s_cbranch_scc1 L_wload")
        if cfg.stamps or cfg.pst == 28: p(f"s_add_u32 s{S_ST+27}, s{S_ST+27}, 100")
    p(f"s_cmp_lg_u32 s{S_C}, 0")
    p("s_cbranch_scc1 L_pw")
    p.label("L_probe")
    p(f"global_load_dword v11, v10, s[{S_DBG}:{S_DBG+1}] offset:{FO} sc1")
    p(f"buffer_load_dword v9, v8, s[{S_WS}:{S_WS+3}], s{S_T+13} offen offset:1536 sc1")
    p("s_waitcnt vmcnt(0)")
    p("v_cmp_gt_u32 vcc, 26, v11")
    p(f"v_cmp_eq_u32 s[{S_FL}:{S_FL+1}], -1, v9")
    p("s_nop 1")
    p(f"s_or_b64 vcc, vcc, s[{S_FL}:{S_FL+1}]")
    p("s_cmp_eq_u64 vcc, 0")
    p("s_cbranch_scc1 L_wload")
    p.label("L_retry")
    if cfg.stamps or cfg.pst == 28: p(f"s_add_u32 s{S_ST+27}, s{S_ST+27}, 1")
    p(f"s_sleep {cfg.poll_sleep}")
    p(f"s_sub_u32 s{S_SPIN}, s{S_SPIN}, 1")
    p("s_cbranch_scc0 L_probe")
    p("s_endpgm")
    p.label("L_pw")
    check(C_FLAG, 1, sleep=2)
    p("s_branch L_wl2")
    p.label("L_wload")
    arrive(C_FLAG)
    p.label("L_wl2")
    stamp(2)
    for J in range(4):
        for Fi in range(3):
            r = WT + 4*(3*J + Fi)
            p.vmem(f"buffer_load_dwordx4 v[{r}:{r+3}], v3, s[{S_WS}:{S_WS+3}], s{S_T+3+J} offen offset:{128*Fi} sc1", f"w{J}{Fi}")
    first = True
    for J in range(4):
        for Fi in range(3):
            r = WT + 4*(3*J + Fi)
            p.wait(vm=f"w{J}{Fi}")
            p(f"ds_write_b128 v{12+J}, v[{r}:{r+3}] offset:{4224*Fi}")
            if first: p(f"v_max_u32 v9, v{r}, v{r+1}")
            else: p(f"v_max3_u32 v9, v{r}, v{r+1}, v9")
            p(f"v_max3_u32 v9, v{r+2}, v{r+3}, v9")
            first = False
    p("v_cmp_eq_u32 vcc, -1, v9")
    p("s_nop 1")
    p("s_cmp_eq_u64 vcc, 0")
    p("s_cbranch_scc0 L_retry")
    p.label("L_xz")
    if not cfg.zfirst: first_row()
    p.wait0(lg=True)
    p("s_barrier")
    if cfg.ltouch and cfg.lt1 == 8:
        assert RES + 4*cfg.NRES <= 250
        p(f"s_cmp_lt_u32 s{S_WAVE}, 4")
        p("s_cbranch_scc1 L_go")
        touch(160, S_FB, (1 << 46) - 1)
    p.label("L_go")
    p("s_setprio 0")
    if cfg.flip:
        p(f"s_cmp_lt_u32 s{S_WAVE}, 4")
        p("s_cbranch_scc1 L_prio")
        p(f"s_setprio 1")
        p.label("L_prio")
    stamp(3)
    order = []
    for n in range(22):
        order.append(("X", n)); order.append(("T", n))
        if n == 14: order.append(("T", 22))
        if n == 18: order.append(("T", 23))
    fr_of = lambda k, n: n if k == "X" else n + 24
    nn = 46 - cfg.NRES
    assert nn % cfg.R == 0
    nonres = [int((u + 0.5)*46/nn) for u in range(nn)]
    wreg = {}; rr = 0
    for k in range(46):
        if k in nonres: wreg[k] = RING + 4*(nonres.index(k) % cfg.R)
        else: wreg[k] = RES + 4*rr; rr += 1
    def w_read(k):
        p.lds(f"ds_read_b128 v[{wreg[k]}:{wreg[k]+3}], v{WA} offset:{1056*fr_of(*order[k])}", f"w{k}")
    for k in range(46):
        if k not in nonres or nonres.index(k) < cfg.R: w_read(k)
    p.wait0(lg=True)
    stamp(5)
    def mfma(k):
        kind, n = order[k]
        zb = Z[n % 2] if n < 22 else ZL + 4*(n - 22)
        acc = AX if kind == "X" else AT
        cc = f"v[{acc}:{acc+15}]"
        if n == 0: cc = "0" if kind == "X" else f"v[{CI}:{CI+15}]"
        return f"v_mfma_f32_32x32x16_bf16 v[{acc}:{acc+15}], v[{wreg[k]}:{wreg[k]+3}], v[{zb}:{zb+3}], {cc}"
    lin_ops = []
    for u in range(8):
        a = LIN[min(2*u, 12)]; b = LIN[min(2*u + 1, 12)]
        lin_ops.append(("v", f"v_cvt_pk_bf16_f32 v{ZL+u}, v{X0+a}, v{X0+b}", (a, b)))
    def body(emit_mb):
        groups = [z_ops(n) for n in range(1, 22)] + [z_ops(0)]
        groups[10] = lin_ops[:7] + groups[10]
        flat = [(g, o) for g, ops in enumerate(groups) for o in ops]
        lastuse = {}
        for i, (g, o) in enumerate(flat):
            if g < 21:
                for r in o[2]: lastuse[r] = i
        for r in range(26): lastuse.setdefault(r, -1)
        for g, ops in enumerate(groups):
            mf = [kk for kk in range(46) if order[kk] in (("X", g), ("T", g))]
            if g == 14: mf.append(order.index(("T", 22)))
            if g == 18: mf.append(order.index(("T", 23)))
            items = []
            base = sum(len(x) for x in groups[:g])
            if g == 0:
                for r in range(26):
                    if lastuse[r] == -1: items.append(("x", r))
            for i, o in enumerate(ops):
                items.append(o)
                for r in range(26):
                    if lastuse[r] == base + i: items.append(("x", r))
            if g == 21:
                pos = [0, 0]
            else:
                n_it = len(items)
                pos = [2 + (j*n_it)//len(mf) for j in range(len(mf))]
            j = 0
            for i, it in enumerate(items + [None]):
                while j < len(mf) and pos[j] <= i:
                    kk = mf[j]
                    if g == 21 and j == 0: p("s_nop 1")
                    p.wait(lg=f"w{kk}")
                    p(mfma(kk))
                    if kk in nonres:
                        w_read(nonres[(nonres.index(kk) + cfg.R) % nn])
                    j += 1
                if it is None: break
                if it[0] == "x": x_read(it[1])
                else:
                    p.wait(lg=tuple(f"x{r}" for r in it[2]))
                    p(it[1])
            if g == 15: emit_mb()
        for k in range(NR - 1): p(f"v_mov_b32 v{SM[k]}, v{SM[k+1]}")
        for d in XA.values(): p(f"v_add_u32 v{d}, 0x1c00, v{d}")
        s0 = SM[NR-1]
        p(f"v_mul_f32 v{s0}, v{AX}, v{AT}")
        p(f"v_mul_f32 v{PT}, v{AX+1}, v{AT+1}")
        for r in range(2, 13):
            p(f"v_fmac_f32 v{s0 if r % 2 == 0 else PT}, v{AX+r}, v{AT+r}")
        p(f"s_sub_u32 s{S_N}, s{S_N}, 1")
        p(f"v_add_f32 v{s0}, v{s0}, v{PT}")
    def mb_loads(so=None):
        p(f"buffer_load_dwordx{NR} v[{MBX}:{MBX+NR-1}], v{VMB}, s[{S_WS}:{S_WS+3}], s{so or (S_MB+1 if cfg.fast else S_MB)} offen sc1")
    def emit_mb():
        sk = L("nomb")
        p(f"s_cmp_lg_u32 s{S_N}, 1")
        p(f"s_cbranch_scc1 {sk}")
        mb_loads()
        p.label(sk)
    save = p.L; p.L = []
    body(lambda: None)
    st1 = list(p.lg.q)
    p.L = save
    p(".p2align 3")
    p.label("L_row")
    body(emit_mb)
    assert st1 == p.lg.q
    if cfg.stamps in (1, 2):
        for i in range(3): p(f"s_mov_b32 s{S_ST+23+i}, s{S_ST+24+i}")
        stamp(26)
    if cfg.stamps == 4:
        p(f"s_cmp_lg_u32 s{S_N}, 0")
        p("s_cbranch_scc1 L_ns4")
        stamp(26)
        p.label("L_ns4")
    if cfg.flip:
        p(f"s_cmp_lg_u32 s{S_N}, {4 - cfg.flip}")
        p("s_cbranch_scc1 L_noflip")
        p("s_setprio 0")
        p.label("L_noflip")
    p(f"s_cmp_lg_u32 s{S_N}, 0")
    p("s_cbranch_scc1 L_row")
    p.label("L_mbw")
    p("s_waitcnt vmcnt(0)")
    if NR == 4:
        p(f"v_max3_u32 v1, v{MBX}, v{MBX+1}, v{MBX+2}")
        p(f"v_max_u32 v1, v1, v{MBX+3}")
    else: p(f"v_max_u32 v1, v{MBX}, v{MBX+1}")
    p("v_cmp_eq_u32 vcc, -1, v1")
    p("s_nop 1")
    p("s_cmp_eq_u64 vcc, 0")
    p("s_cbranch_scc1 L_mbok")
    if cfg.msleep: p(f"s_sleep {cfg.msleep}")
    if cfg.fast:
        p(f"s_add_u32 s{S_N}, s{S_N}, 1")
        p(f"s_and_b32 s{S_X}, s{S_N}, 7")
        p(f"s_cselect_b32 s{S_X}, s{S_MB+1}, s{S_MB}")
        mb_loads(S_X)
    else: mb_loads()
    p(f"s_sub_u32 s{S_SPIN}, s{S_SPIN}, 1")
    p("s_cbranch_scc0 L_mbw")
    p("s_endpgm")
    p.label("L_mbok")
    for k in range(NR): p(f"v_add_f32 v{SM[k]}, v{SM[k]}, v{MBX+k}")
    for ctl in ("quad_perm:[1,0,3,2] row_mask:0xf", "quad_perm:[2,3,0,1] row_mask:0xf", "row_half_mirror row_mask:0xf",
                "row_mirror row_mask:0xf", "row_bcast:15 row_mask:0xa", "row_bcast:31 row_mask:0xc"):
        if NR == 2: p("s_nop 0")
        for k in range(NR): p(f"v_add_f32_dpp v{SM[k]}, v{SM[k]}, v{SM[k]} {ctl} bank_mask:0xf")
    for k in range(NR): p(f"v_add_f32 v{SM[k]}, v{SM[k]}, v{VBO}")
    p(f"v_cvt_pk_bf16_f32 v2, v{SM[0]}, v{SM[1]}")
    p(f"v_cvt_pk_bf16_f32 v3, v{SM[2]}, v{SM[3]}")
    p(f"v_mov_b32 v1, s{S_O}")
    p("s_mov_b32 exec_lo, 0")
    p("s_mov_b32 exec_hi, 0x80000000")
    if cfg.bal:
        p(f"s_cmp_eq_u32 s{S_NR}, 4")
        p("s_cbranch_scc1 L_st4")
        p(f"global_store_short_d16_hi v1, v3, s[{S_OUT}:{S_OUT+1}]")
        p(f"s_cmp_eq_u32 s{S_NR}, 1")
        p("s_cbranch_scc1 L_std")
        p(f"global_store_short v1, v3, s[{S_OUT}:{S_OUT+1}] offset:-2")
        p(f"global_store_short_d16_hi v1, v2, s[{S_OUT}:{S_OUT+1}] offset:-4")
        p("s_branch L_std")
        p.label("L_st4")
    p(f"global_store_dwordx2 v1, v[2:3], s[{S_OUT}:{S_OUT+1}] offset:-6" + ("", " sc1", " nt", " sc0 sc1")[cfg.ost])
    p.label("L_std")
    stamps_out()
    p.label("L_end")
    p("s_endpgm")

    p.vm.q = dnn_vm; p.lg.clear()
    p(".p2align 6")
    p.label("L_dnn")
    ACC = lambda t, q: 8*t + 4*q
    BF = lambda t: 56 + 4*t
    AR = lambda f, q: 84 + 8*(f % 2) + 4*q
    IDX = lambda f: 100 + f
    VO = lambda u: 128 + u
    V_B, V_A, V_CH, V_LANE, V_G8 = [130, 131, 132], [133, 134, 135], 136, 137, 138
    RAW = 140; RAW2 = 200
    S_SB, S_M0, S_AM = S_T+2, S_T+3, S_T+4
    if cfg.probe:
        p("s_cmp_ge_u32 s2, 8")
        p("s_cbranch_scc1 L_pr1")
        p("s_lshl_b32 s90, s2, 2")
        p("v_mov_b32 v1, s90")
        p("v_mov_b32 v2, s96")
        p(f"global_store_dword v1, v2, s[{S_DBG}:{S_DBG+1}] offset:8 sc1")
        p("s_waitcnt vmcnt(0)")
        p.label("L_pr1")
    srd(S_B1, 10, 1664)
    srd(S_TAB, 2, 6400000)
    srd(S_W2, 12, 1664)
    srd(S_WS, None, WS_END)
    ws_shift()
    if cfg.pxa >= 0:
        p("s_getreg_b32 s91, hwreg(HW_REG_XCC_ID)")
        p("s_and_b32 s91, s91, 15")
        p(f"s_cmp_lg_u32 s2, {cfg.pxa}")
        p("s_cbranch_scc1 L_pxa")
        p("v_mov_b32 v1, 0")
        p("v_mov_b32 v2, s91")
        p(f"global_store_dword v1, v2, s[{S_DBG}:{S_DBG+1}] offset:8 sc1")
        p("s_waitcnt vmcnt(0)")
        p.label("L_pxa")
    if cfg.plat:
        sr_, off = {1: (S_TAB, 3000320), 2: (S_W1, 1300096), 3: (S_WS, 4096), 5: (S_DBG+0, 0), 4: (S_TAB, 5000320)}[cfg.plat]
        p("s_waitcnt vmcnt(0)")
        p(f"v_mov_b32 v1, {off}")
        p(f"buffer_load_dword v2, v1, s[{sr_}:{sr_+3}], 0 offen offset:2048")
        p("s_waitcnt vmcnt(0)")
        p("s_lshl_b32 s90, s2, 7")
        p("s_memrealtime s[94:95]")
        p("s_waitcnt lgkmcnt(0)")
        p(f"buffer_load_dword v2, v1, s[{sr_}:{sr_+3}], s90 offen offset:4)".replace(")", ""))
        p("s_waitcnt vmcnt(0)")
        p("s_memrealtime s[92:93]")
        p("s_waitcnt lgkmcnt(0)")
        p("s_sub_u32 s92, s92, s94")
        p("s_mul_i32 s92, s92, 10")
        p("s_add_u32 s92, s92, s96")
    stamp(10)
    p(f"s_mov_b32 s{S_SPIN}, 0x40000")
    p(f"s_mul_i32 s{S_COL}, s{S_CP}, 416")
    S_M1, S_WR = S_T+5, S_T+6
    p(f"s_mov_b32 s{S_SB}, s{S_COL}")
    p(f"s_and_b32 s{S_WR}, s{S_WAVE}, 3")
    p(f"s_lshl_b32 s{S_T}, s{S_WAVE}, 1")
    p(f"s_sub_u32 s{S_T}, s{S_T}, 4")
    p(f"s_add_u32 s{S_T+1}, s{S_T}, 1")
    p(f"s_cmp_lt_u32 s{S_WAVE}, 4")
    p(f"s_cselect_b32 s{S_M0}, s{S_WAVE}, s{S_T}")
    p(f"s_cselect_b32 s{S_M1}, 12, s{S_T+1}")
    p(f"s_lshl_b32 s{S_M0}, s{S_M0}, 10")
    p(f"s_lshl_b32 s{S_M1}, s{S_M1}, 10")
    p(f"s_lshl_b32 s{S_AM}, s{S_WAVE}, 10")
    p(f"s_add_u32 s{S_AM}, s{S_AM}, {BSZ}")
    p(f"s_lshr_b32 s{S_T}, s{S_WAVE}, 2")
    p(f"s_mul_i32 s{S_T}, s{S_T}, 224")
    p(f"s_add_u32 s{S_COL}, s{S_COL}, s{S_T}")
    p(f"s_movk_i32 s{S_T+1}, 1248")
    p(f"s_movk_i32 s{S_T+7}, 6656")
    for u in range(2):
        p(f"v_add_u32 v3, s{(S_M0, S_M1)[u]}, v{V_L}")
        p("v_lshlrev_b32 v4, 4, v3")
        p("v_mul_hi_u32_u24 v4, 0x9d89e, v4")
        p("v_bfe_u32 v5, v4, 2, 1")
        p("v_bfe_i32 v6, v4, 3, 1")
        p("v_add_u32 v5, v5, v6")
        p(f"v_mad_i32_i24 v5, v5, s{S_T+7}, v3")
        p(f"v_mad_u32_u24 v{VO(u)}, v4, s{S_T+1}, v5")
    p("v_lshrrev_b32 v2, 2, v0")
    p(f"v_mul_u32_u24 v2, 104, v2")
    p(f"s_add_u32 s{S_W}, s{S_W}, {IDXO}")
    p(f"v_add_u32 v139, s{S_W}, v2")
    p("v_lshrrev_b32 v2, 5, v0")
    p("v_mul_u32_u24 v3, 3, v2")
    p("v_xor_b32 v3, v3, v0")
    p("v_and_b32 v3, 3, v3")
    p(f"v_lshlrev_b32 v{V_CH}, 4, v3")
    p.wait(vm="idx")
    stamp(1)
    if cfg.dbench:
        p("s_mov_b32 s3, 0")
        p.label("L_again")
    for m in range(6):
        p.lds(f"ds_read2_b64 v[{100+4*m}:{103+4*m}], v139 offset0:{2*m} offset1:{2*m+1}", f"ix{m}")
    p.lds("ds_read_b64 v[124:125], v139 offset:96", "ix6")
    def a_dma(f):
        p.wait(lg=f"ix{f >> 2}")
        p(f"s_add_u32 m0, s{S_AM}, {(f % RB)*SLOT}")
        p(f"v_lshl_add_u32 v{IDX(f)}, v{IDX(f)}, 6, v{V_CH}")
        p.vmem(f"buffer_load_dwordx4 v{IDX(f)}, s[{S_TAB}:{S_TAB+3}], 0 offen{' nt' if f < cfg.nta else ''} lds", f"F{f}")
    def b_dma(f, u, T):
        if u == 1:
            if f: p(f"s_add_u32 s{S_SB}, s{S_SB}, 53248")
            sk = L("np")
            if T != 6:
                if T == 0:
                    p(f"s_cmp_ge_u32 s{S_WAVE}, 4")
                    p(f"s_cselect_b32 s{S_X}, {f & 3}, s{S_WR}")
                    p(f"s_cmp_lg_u32 s{S_X}, {f & 3}")
                else: p(f"s_cmp_lg_u32 s{S_WR}, {f & 3}")
                p(f"s_cbranch_scc1 {sk}")
            p(f"s_add_u32 m0, s{S_M1}, {(f % RB)*SLOT}")
            p("s_nop 0")
            p(f"buffer_load_dwordx4 v{VO(1)}, s[{S_W1}:{S_W1+3}], s{S_SB} offen lds")
            if T == 6: p.vm.issue(f"F{f}")
            else: p.label(sk)
        else:
            p(f"s_add_u32 m0, s{S_M0}, {(f % RB)*SLOT}")
            p("s_nop 0")
            p.vmem(f"buffer_load_dwordx4 v{VO(0)}, s[{S_W1}:{S_W1+3}], s{S_SB} offen lds", f"F{f}")
    def fill(f, T): a_dma(f); b_dma(f, 1, T); b_dma(f, 0, T)
    BWO = IDXO
    p(f"s_cmp_ge_u32 s{S_WAVE}, {0 if cfg.dbench else 2}")
    p("s_cbranch_scc1 L_nobw")
    p(f"s_mul_i32 s{S_X}, s{S_CP}, 416")
    p(f"s_cmp_eq_u32 s{S_WAVE}, 0")
    p(f"s_cselect_b64 s[{S_W2}:{S_W2+1}], s[{S_B1}:{S_B1+1}], s[{S_W2}:{S_W2+1}]")
    p(f"s_mov_b32 m0, s{S_W}")
    p("s_mov_b64 exec, 0xfffffff")
    p("s_waitcnt lgkmcnt(0)")
    p(f"buffer_load_dwordx4 v{V_L}, s[{S_W2}:{S_W2+3}], s{S_X} offen lds")
    p("s_mov_b64 exec, -1")
    p.label("L_nobw")
    if cfg.sw < 26:
        p(f"v_lshlrev_b32 v{V_C}, 2, v{V_LANE}")
        p(f"v_add_u32 v{V_C}, {IDXO + 2*1664}, v{V_C}")
        p(f"v_mov_b32 v{V_ONE}, 1")
        p(f"s_cmp_lg_u32 s{S_WAVE}, 2")
        p("s_cbranch_scc1 L_noz")
        p(f"v_mov_b32 v{V_POLL}, 0")
        p("s_waitcnt lgkmcnt(0)")
        p(f"ds_write_b32 v{V_C}, v{V_POLL}")
        p("s_waitcnt lgkmcnt(0)")
        p.label("L_noz")
    def lo(f): return (f % RB)//3, ((f % RB) % 3)*SLOT
    def b_read1(f, t, r2):
        k, off = lo(f)
        p.lds(f"ds_read_b64_tr_b16 v[{BF(t)+2*r2}:{BF(t)+2*r2+1}], v{V_B[k]} offset:{off + 32*t + 3328*r2}", f"b{f}_{t}")
    def a_read(f):
        k, off = lo(f)
        for q in range(2):
            p.lds(f"ds_read_b128 v[{AR(f, q)}:{AR(f, q)+3}], v{V_A[k]} offset:{off + 1024*q}", f"a{f}")
    q0 = list(p.vm.q)
    fill(0, 0)
    p("v_lshrrev_b32 v1, 4, v0")
    p(f"s_add_u32 s{S_T+1}, s{S_T}, {IDXO}")
    p(f"v_lshl_add_u32 v{V_G8}, v1, 3, s{S_T+1}")
    p("v_bfe_u32 v3, v0, 3, 1")
    p("v_mul_u32_u24 v3, 3, v3")
    p("v_xor_b32 v3, v3, v1")
    p("v_and_b32 v4, 15, v0")
    p("v_lshlrev_b32 v4, 6, v4")
    p("v_lshl_add_u32 v3, v3, 4, v4")
    p(f"s_and_b32 s{S_T+1}, s{S_WAVE}, 3")
    p(f"s_lshl_b32 s{S_T+1}, s{S_T+1}, 11")
    p(f"s_add_u32 s{S_T+1}, s{S_T+1}, {BSZ}")
    p(f"v_add_u32 v{V_A[0]}, s{S_T+1}, v3")
    p("v_bfe_u32 v3, v0, 2, 3")
    p("v_lshl_add_u32 v2, v2, 4, v3")
    p("v_mul_u32_u24 v2, 0x1a0, v2")
    p("v_and_b32 v3, 3, v0")
    p("v_lshl_add_u32 v2, v3, 3, v2")
    p(f"v_add_u32 v{V_B[0]}, s{S_T}, v2")
    for k in (1, 2):
        p(f"v_add_u32 v{V_A[k]}, {3*k*SLOT}, v{V_A[0]}")
        p(f"v_add_u32 v{V_B[k]}, {3*k*SLOT}, v{V_B[0]}")
    p(f"v_mov_b32 v{V_LANE}, v0")
    fill(1, 0)
    p(f"s_cmp_ge_u32 s{S_WAVE}, 4")
    p("s_cbranch_scc1 L_dnn6")
    W2R = lambda t, r: 170 + 4*t + r
    def w2_unpack():
        return [x for t in range(7) for h in range(2) for x in
                (f"v_lshlrev_b32 v{W2R(t,2*h)}, 16, v{RAW2+2*t+h}", f"v_and_b32 v{W2R(t,2*h+1)}, 0xffff0000, v{RAW2+2*t+h}")]
    vm0, lg0 = list(p.vm.q), list(p.lg.q)
    def dnn_main(T):
        p.vm.q, p.lg.q = q0 + ["F0"]*(9 - T) + ["F1"]*(9 - T), list(lg0)
        p.wait(vm="F0")
        p("s_barrier")
        stamp(12)
        for t in range(T):
            p.lds(f"ds_read_b64 v[{RAW+2*t}:{RAW+2*t+1}], v{V_G8} offset:{32*t}", "bias")
        a_read(0)
        for t in range(T):
            for r2 in range(2): b_read1(0, t, r2)
        p.wait(lg="bias")
        for t in range(T):
            for h in range(2):
                p(f"v_lshlrev_b32 v{ACC(t,0)+2*h}, 16, v{RAW+2*t+h}")
                p(f"v_and_b32 v{ACC(t,0)+2*h+1}, 0xffff0000, v{RAW+2*t+h}")
        for f in range(2, cfg.look): fill(f, T)
        p.wait(vm=tuple(f"F{k}" for k in range(cfg.barp + 1)))
        p("s_barrier")
        if T == 6 and cfg.prio_hi: p(f"s_setprio {cfg.prio_hi}")
        stamp(2)
        nxt = cfg.look
        w2ops = w2_unpack()
        free = -1; landed = cfg.barp
        for f in range(26):
            todo = []
            soft = f > cfg.sw and f <= 23
            top = f < cfg.early or (cfg.dpos == 4 and T == 6) or (cfg.dpos == 1 and T == 7)
            lim = (f - 1 if soft and not top else free) + RB
            nfill = 2 if (cfg.cmask >> f & 1 if cfg.cmask else cfg.catch0 <= f < cfg.catch0 + cfg.catch) else 1
            if f >= cfg.b2: nfill = (2 if (f % 2 == 0) == ((T == 6) == (cfg.dpos == 4)) else 0)
            for _ in range(nfill):
                if nxt < 26 and nxt <= lim:
                    todo += [(a_dma, (nxt,)), (b_dma, (nxt, 1, T)), (b_dma, (nxt, 0, T))]; nxt += 1
            if cfg.nodma and f >= 4:
                keep = []
                for fn, ar in todo:
                    if (fn is a_dma and cfg.nodma & 1) or (fn is b_dma and cfg.nodma & 2): continue
                    keep.append((fn, ar))
                todo[:] = keep
            n_it = len(todo)
            if f < cfg.early: at = [-1]*n_it
            elif cfg.dpos == 0: at = list(range(n_it))
            elif cfg.dpos == 1: at = [-1]*n_it if T == 7 else [T-1]*n_it
            elif cfg.dpos == 2: at = [(2*i + (T == 6)) if n_it <= 3 else i for i in range(n_it)]
            elif cfg.dpos == 3: at = [0]*n_it if T == 7 else [T-1]*n_it
            elif cfg.dpos == 4: at = [T-1]*n_it if T == 7 else [-1]*n_it
            elif cfg.dpos == 5: at = [i//(2 if n_it > 3 else 1) for i in range(n_it)] if T == 7 else [3 + i//(2 if n_it > 3 else 1) for i in range(n_it)]
            if soft and not top: at = [min(max(a, cfg.chk + i*(cfg.dpos in (0, 2))), T-1) for i, a in enumerate(at)]
            assert f == 25 or f + 1 <= landed
            def drain(t):
                while todo and at[0] <= t:
                    at.pop(0); fn, ar = todo.pop(0); fn(*ar)
            drain(-1)
            for t in range(T):
                p.wait(lg=(f"b{f}_{t}", f"a{f}"))
                b = f"v[{BF(t)}:{BF(t)+3}]"
                a0, a1 = ACC(t, 0), ACC(t, 1)
                c1 = a0 if f == 0 else a1
                p(f"v_mfma_f32_16x16x32_bf16 v[{a1}:{a1+3}], {b}, v[{AR(f,1)}:{AR(f,1)+3}], v[{c1}:{c1+3}]")
                if t and f < 25: b_read1(f+1, t-1, 1)
                elif t == 0 and f: b_read1(f, T-1, 1)
                p(f"v_mfma_f32_16x16x32_bf16 v[{a0}:{a0+3}], {b}, v[{AR(f,0)}:{AR(f,0)+3}], v[{a0}:{a0+3}]")
                if f < 25: b_read1(f+1, t, 0)
                if t == cfg.arp and f < 25: a_read(f + 1)
                if soft and t == cfg.chk - 2: poll_issue(4*(f-1))
                if soft and t == cfg.chk:
                    check(4*(f-1), 8, issued=True)
                    free = f - 1; landed = f + 2
                drain(t)
                if f == 12 and t == 0 and cfg.tlbw:
                    p(f"v_mov_b32 v251, {WS_END - 4}")
                    p(f"buffer_load_dword v250, v251, s[{S_WS}:{S_WS+3}], 0 offen")
                if f == 21:
                    for tt in ([t] if t < T - 1 else range(t, 7)):
                        p.lds(f"ds_read_b64 v[{RAW2+2*tt}:{RAW2+2*tt+1}], v{V_G8} offset:{1664 + 32*tt}", "w2")
                if cfg.w2early and f in (23, 24):
                    if f == 23 and t == 0: p.wait(lg="w2")
                    for _ in range(3):
                        if w2ops: p(w2ops.pop(0))
            assert not todo
            if f >= cfg.sw:
                if f <= 22:
                    assert nxt > f + 3
                    p.wait(vm=tuple(f"F{k}" for k in range(f + 4)))
                    arrive(4*f)
            elif f <= cfg.lb and (f + 1) % cfg.barp == 0 and (f < cfg.b2 or f % 2):
                last = min(f + 1 + cfg.barp + (f + 1 == cfg.sw or f + 1 >= cfg.b2), 25) if f < cfg.lb else 25
                assert nxt > last
                p.wait(vm=tuple(f"F{k}" for k in range(last + 1)))
                if not cfg.nobar: p("s_barrier")
                free = f; landed = last
            if f == cfg.lb and cfg.tailprio is not None and T == cfg.tailprio: p("s_setprio 1")
            if f % 4 == 0 and (not cfg.dbench or f in (8, 20)): stamp(14 + f//4)
        assert nxt == 26 and not (cfg.w2early and w2ops)
    dnn_main(7)
    p("s_branch L_gelu")
    p(".p2align 6")
    p.label("L_dnn6")
    dnn_main(6)
    p.label("L_gelu")
    if cfg.dbench:
        p("s_barrier")
        p(f"s_mul_i32 s{S_SB}, s{S_CP}, 416")
        p("s_add_u32 s3, s3, 1")
        p("s_cmp_lt_u32 s3, 2")
        p("s_cbranch_scc1 L_again")
    stamp(3)
    p("v_mov_b32 v98, 0")
    p(f"global_load_dword v99, v98, s[{S_DBG}:{S_DBG+1}] offset:{FO} sc1")
    if not cfg.w2early:
        p.wait0(vm=True)
        for x in w2_unpack(): p(x)
    k0 = -2.0*math.sqrt(2.0/math.pi)*math.log2(math.e)
    T1, T2, SUM, VC = 56, 64, 92, 72
    P = lambda a: f"v[{a}:{a+1}]"
    for r, c in enumerate((k0*0.044715, k0)):
        for h in range(2): p(f"v_mov_b32 v{VC+2*r+h}, {f2h(c)}")
    for r in range(4): p(f"v_mov_b32 v{SUM+r}, 0")
    for t in range(7):
        if t == 6:
            p(f"s_cmp_ge_u32 s{S_WAVE}, 4")
            p("s_cbranch_scc1 L_gelu6")
        x = ACC(t, 0)
        if cfg.pk:
            for r in range(0, 8, 2): p(f"v_pk_mul_f32 {P(T1+r)}, {P(x+r)}, {P(x+r)}")
            for r in range(0, 8, 2): p(f"v_pk_fma_f32 {P(T1+r)}, {P(T1+r)}, {P(VC)}, {P(VC+2)}")
            for r in range(0, 8, 2): p(f"v_pk_mul_f32 {P(T1+r)}, {P(T1+r)}, {P(x+r)}")
            for r in range(8): p(f"v_exp_f32 v{T1+r}, v{T1+r}")
            for r in range(0, 8, 2): p(f"v_pk_mul_f32 {P(T2+r)}, {P(x+r)}, {P(W2R(t, r & 3))}")
            for r in range(0, 8, 2): p(f"v_pk_add_f32 {P(T1+r)}, {P(T1+r)}, 1.0 op_sel_hi:[1,0]")
            for r in range(8): p(f"v_rcp_f32 v{T1+r}, v{T1+r}")
            for r in (0, 4, 2, 6): p(f"v_pk_fma_f32 {P(SUM+2*(r >> 2))}, {P(T1+r)}, {P(T2+r)}, {P(SUM+2*(r >> 2))}")
        else:
            for r in range(8): p(f"v_mul_f32 v{T1+r}, v{x+r}, v{x+r}")
            for r in range(8): p(f"v_fma_f32 v{T1+r}, v{T1+r}, v{VC}, v{VC+2}")
            for r in range(8): p(f"v_mul_f32 v{T1+r}, v{T1+r}, v{x+r}")
            for r in range(8): p(f"v_exp_f32 v{T1+r}, v{T1+r}")
            for r in range(8): p(f"v_mul_f32 v{T2+r}, v{x+r}, v{W2R(t, r & 3)}")
            for r in range(8): p(f"v_add_f32 v{T1+r}, 1.0, v{T1+r}")
            for r in range(8): p(f"v_rcp_f32 v{T1+r}, v{T1+r}")
            for r in range(8): p(f"v_fmac_f32 v{SUM+2*(r >> 2)+(r & 1)}, v{T1+r}, v{T2+r}")
    p.label("L_gelu6")
    p(f"v_add_f32 v{SUM}, v{SUM}, v{SUM+1}")
    p(f"v_add_f32 v{SUM+2}, v{SUM+2}, v{SUM+3}")
    p(f"v_and_b32 v84, 15, v{V_LANE}")
    p(f"v_lshrrev_b32 v85, 5, v{V_LANE}")
    p(f"v_permlane32_swap_b32 v{SUM}, v{SUM+2}")
    p("v_lshl_add_u32 v84, v85, 4, v84")
    p(f"v_add_f32 v{SUM}, v{SUM}, v{SUM+2}")
    p(f"v_bfe_u32 v85, v{V_LANE}, 4, 1")
    p(f"v_mov_b32 v{SUM+1}, v{SUM}")
    p("v_lshlrev_b32 v84, 2, v84")
    p("v_lshl_add_u32 v84, v85, 30, v84")
    p(f"v_permlane16_swap_b32 v{SUM}, v{SUM+1}")
    p(f"s_lshl2_add_u32 s{S_T}, s{S_RG}, s{S_CP}")
    p(f"v_add_f32 v{SUM}, v{SUM}, v{SUM+1}")
    p(f"s_lshl3_add_u32 s{S_T}, s{S_T}, s{S_WAVE}")
    p(f"s_lshl_b32 s{S_T}, s{S_T}, 7")
    p(f"v_min_u32 v{SUM}, -2, v{SUM}")
    if cfg.noprep or cfg.dbench: p("s_branch L_pub")
    p.label("L_dflag")
    p("s_waitcnt vmcnt(0)")
    p(f"v_readfirstlane_b32 s{S_X}, v99")
    p(f"s_cmp_ge_u32 s{S_X}, 26")
    p("s_cbranch_scc1 L_pub")
    p(f"global_load_dword v99, v98, s[{S_DBG}:{S_DBG+1}] offset:{FO} sc1")
    p("s_sleep 4")
    p(f"s_sub_u32 s{S_SPIN}, s{S_SPIN}, 1")
    p("s_cbranch_scc0 L_dflag")
    p("s_endpgm")
    p.label("L_pub")
    if cfg.fast:
        p(f"s_add_u32 s{S_T+1}, s{S_T}, 0x20000")
        p(f"buffer_store_dword v{SUM}, v84, s[{S_WS}:{S_WS+3}], s{S_T+1} offen")
    p(f"buffer_store_dword v{SUM}, v84, s[{S_WS}:{S_WS+3}], s{S_T} offen sc1")
    stamp(4)
    if cfg.probe:
        p("s_cmp_lg_u32 s2, 0")
        p("s_cbranch_scc1 L_pr2")
        p(f"v_lshlrev_b32 v1, 2, v{V_LANE}")
        p(f"global_load_dword v2, v1, s[{S_DBG}:{S_DBG+1}] offset:8 sc1")
        p("s_waitcnt vmcnt(0)")
        for i in range(8): p(f"v_readlane_b32 s{80+i}, v2, {i}")
        p("s_mov_b32 s90, s80"); p("s_mov_b32 s91, s80")
        for i in range(1, 8):
            p(f"s_min_u32 s90, s90, s{80+i}"); p(f"s_max_u32 s91, s91, s{80+i}")
        if cfg.probe == 1: p("s_sub_u32 s90, s91, s90")
        else: p(f"s_sub_u32 s90, s{80+cfg.probe-2}, s90")
        p("s_mul_i32 s90, s90, 20")
        p("s_min_u32 s90, s90, 20000")
        p("s_memrealtime s[92:93]"); p("s_waitcnt lgkmcnt(0)")
        p("s_add_u32 s92, s92, s90")
        p.label("L_pr")
        p("s_memrealtime s[94:95]"); p("s_waitcnt lgkmcnt(0)")
        p("s_cmp_lt_u32 s94, s92")
        p("s_cbranch_scc1 L_pr")
        p.label("L_pr2")
    stamps_out()
    p("s_endpgm")

    p(".p2align 6")
    p(".type gather_table,@object")
    p.label("gather_table")
    zt = P_Z - PS
    for role in range(2):
        for lane in range(64):
            s, half = lane >> 1, lane & 1
            ad = []
            for e in range(8):
                pr = slot_pair(s, half, e) if s < (24 if role == 0 else 22) else None
                at = (lambda j, k: P_D1 - PS + k*144 + j*4) if role == 0 else (lambda j, k: P_W1 - PS + (j*26 + k)*2)
                if pr is None: ad += [zt, zt]
                elif pr[1] is None: ad += [at(pr[0], 26), zt]
                elif pr[0] == pr[1] or norm(pr) == (24, 25): ad += [at(*pr), zt]
                else: ad += [at(pr[0], pr[1]), at(pr[1], pr[0])]
            p(".short " + ", ".join(str(a) for a in ad))
    p(".size gather_table, 4096")
    return p

def header():
    return """; xDeepFM (CIN + DNN) forward, one launch, 256 workgroups (S1).
; Kernarg: idx, table, ws_cin, w_cin_out, w_dnn1, b_dnn1, w_dnn2, b_out, out, debug, ws
; @launch grid=(256,1,1) block=(512,1,1) lds=%d
.amdgcn_target "amdgcn-amd-amdhsa--gfx950"
.text
""" % LDS_SIZE
def footer():
    nv = 256
    return f""".section .rodata,"a"
.p2align 6
.amdhsa_kernel {NAME}
  .amdhsa_next_free_vgpr {nv}
  .amdhsa_next_free_sgpr 102
  .amdhsa_accum_offset {nv}
  .amdhsa_group_segment_fixed_size 0
  .amdhsa_kernarg_size 88
  .amdhsa_user_sgpr_count 2
  .amdhsa_user_sgpr_kernarg_segment_ptr 1
  .amdhsa_system_sgpr_workgroup_id_x 1
  .amdhsa_float_denorm_mode_32 3
.end_amdhsa_kernel
"""
if __name__ == "__main__":
    out = sys.argv[1]
    for a in sys.argv[2:]:
        k, v = a.split("=")
        setattr(cfg, k, type(getattr(cfg, k))(int(v)))
    open(out, "w").write(header() + build().text() + footer())
```

```python
import sys, struct, math
from asmlib import *
from slots import *

NAME = "standalone__deep_cross_xdeepfm__recsys_kernel"
class Cfg:
    stamps = 0
    NRES = 34
    R = 2
    prio_prep = 3
    prio_hi = 0
    poll_sleep = 2
    idle_sleep = 1
    gon = 5
    bal = 0
    lt0 = 2
    lt1 = 5
    early = 6
    look = 3
    cmask = 0
    catch0 = 4
    catch = 4
    etouch = 0
    dtouch = 1
    mtouch = 1
    ttouch = 0
    xwin = 4
    pfcode = 3
    pfn = 6
    pf0 = 0
    flip = 3
    w2early = 1
    dpos = 4
    ltouch = 0
    pk = 1
    ctouch = 2
    wrot = 1
    direct = 1
    wpre = 0
    wplain = 0
    w8 = 0
    zmid = 1
    late0 = 0
    g0 = 0
    pl = 0
    fast = 1
    msleep = 1
    tlbo = 0
    tlbw = 0
    ost = 0
    zfirst = 0
    two = 1
    sflag = 1
    w3last = 1
    ntx = 0
    nta = 0
    nti = 0
    pre = 0
    pst = -1
    pcyc = 0
    pxa = -1
    plat = 0
    wsoff = 0
    dwarm = 0
    pwg = 0
    pwave = 0
    probe = 0
    dbench = 0
    nodma = 0
    nobar = 0
    lb = 21
    tailprio = 0
    b2 = 26
    sw = 26
    chk = 3
    barp = 1
    arp = 1
    noprep = 0
    clrpos = 1
    xstart = 0
    xbar = 4
    pdelay = 1
    hold = 0
cfg = Cfg()

LDS_SIZE = 163840
XO = 0
WO = 8*7168
PS = WO + 96*528
P_W3 = PS; P_M3T = PS + 36864; P_D1 = PS + 38912; P_W1 = PS + 43520; P_Z = PS + 45568; P_DUM = PS + 45824
CO = LDS_SIZE - 512
IX2 = PS + 46080
assert P_DUM + 256 <= CO
C_PA, C_PB, C_XL, C_FLAG, C_GO, C_G0, C_PI = 0, 4, 8, 12, 16, 20, 24
RB = 7
BSZ = 13312
SLOT = BSZ + 8192
IDXO = RB*SLOT
assert IDXO + 8*1664 == LDS_SIZE
MBOX = 0; WS_W = 262144; BLK = 1664; WS_END = WS_W + 26*BLK; WS_STAMP = 1 << 20
S_IDX, S_TAB, S_W1, S_WCIN, S_WCO, S_B1, S_W2, S_WS = 4, 8, 12, 16, 20, 24, 28, 32
S_OUT, S_DBG, S_BOUT = 36, 38, 40
S_WAVE, S_RG, S_CP, S_FB, S_COL, S_W = 42, 43, 44, 45, 46, 47
S_PC, S_SPIN, S_X = 48, 50, 51
KA = 52
S_T = 52
S_ST = 70
V_C, V_ONE, V_POLL, V_L = 162, 163, 164, 165
FRM = "0x20000"

def f2h(x): return "0x%08x" % struct.unpack("<I", struct.pack("<f", x))[0]

def build():
    p = Prog()
    lab = [0]
    def L(n):
        lab[0] += 1
        return f"L_{n}_{lab[0]}"
    def stamp(i):
        if cfg.pst == i:
            p("s_memtime s[92:93]" if cfg.pcyc else "s_memrealtime s[92:93]")
            p.wait0(lg=True)
        if cfg.stamps and (cfg.stamps < 3 or i == 8 or (cfg.stamps == 4 and i in (4, 26))):
            p(f"s_memrealtime s[68:69]" if cfg.stamps != 2 or i == 8 else "s_memtime s[68:69]")
            p.wait0(lg=True)
            if cfg.stamps != 2 or i == 8: p(f"s_mov_b32 s{S_ST+i}, s68")
            else:
                p("s_sub_u32 s68, s68, s100")
                p("s_lshr_b32 s68, s68, 4")
                p(f"s_add_u32 s{S_ST+i}, s68, s{S_ST}")
    def stamps_out():
        if cfg.pst >= 0:
            stamp(8)
            sk = L("npr"); lp = L("pr")
            p(f"s_cmp_lg_u32 s2, {cfg.pwg}")
            p(f"s_cbranch_scc1 {sk}")
            p(f"s_cmp_lg_u32 s{S_WAVE}, {cfg.pwave}")
            p(f"s_cbranch_scc1 {sk}")
            if cfg.pst == 0: p("s_mov_b32 s92, s96")
            if cfg.pst == 28:
                p(f"s_cmp_lg_u32 s{S_ST+27}, 0")
                p("s_cselect_b32 s92, 125, 0")
                p(f"s_cmp_ge_u32 s{S_ST+27}, 100")
                p("s_cselect_b32 s92, 250, s92")
                p(f"s_cmp_ge_u32 s{S_ST+27}, 101")
                p("s_cselect_b32 s92, 375, s92")
                p("s_add_u32 s92, s92, s96")
            if cfg.pxa >= 0:
                p("s_mov_b64 exec, -1")
                p("v_mov_b32 v1, 0")
                p(f"global_load_dword v2, v1, s[{S_DBG}:{S_DBG+1}] offset:8 sc1")
                p("s_waitcnt vmcnt(0)")
                p("v_readfirstlane_b32 s90, v2")
                p("s_cmp_lg_u32 s90, s91")
                p("s_cselect_b32 s90, 250, 0")
                p("s_add_u32 s92, s92, s90")
            if cfg.pcyc:
                p("s_sub_u32 s90, s92, s98")
                p("s_lshr_b32 s90, s90, 3")
            else:
                p("s_sub_u32 s90, s92, s96")
                p("s_mul_i32 s90, s90, 4")
            p("s_mov_b64 exec, 1")
            p("v_mov_b32 v1, 0")
            p("v_mov_b32 v2, s90")
            p(f"global_store_dword v1, v2, s[{S_DBG}:{S_DBG+1}] offset:4")
            p("s_add_u32 s90, s90, 2000")
            p("s_min_u32 s90, s90, 20000")
            p("s_add_u32 s90, s90, s96")
            p.label(lp)
            p("s_sleep 1")
            p("s_memrealtime s[94:95]"); p("s_waitcnt lgkmcnt(0)")
            p("s_cmp_lt_u32 s94, s90")
            p(f"s_cbranch_scc1 {lp}")
            p.label(sk)
        if not cfg.stamps: return
        stamp(8)
        p("s_mov_b64 exec, 1")
        p(f"s_lshl4_add_u32 s{S_T}, s2, s{S_WAVE}")
        p(f"s_lshl_b32 s{S_T}, s{S_T}, 7")
        p(f"s_add_u32 s{S_T}, s{S_T}, {WS_STAMP}")
        p(f"v_mov_b32 v1, s{S_T}")
        p("s_memtime s[68:69]")
        p("s_waitcnt lgkmcnt(0)")
        p(f"s_sub_u32 s{S_ST+29}, s68, s100")
        for i in range(30):
            p(f"v_mov_b32 v2, s{S_ST+i}")
            p(f"global_store_dword v1, v2, s[{S_WS}:{S_WS+1}] offset:{4*i}")
    def arrive(*offs):
        p("s_mov_b64 exec, 1")
        for off in offs: p.lds(f"ds_add_u32 v{V_C}, v{V_ONE} offset:{off}", "arr")
        p("s_mov_b64 exec, -1")
    def poll_issue(off):
        p.lds(f"ds_read_b32 v{V_POLL}, v{V_C} offset:{off}", "poll")
    def check(off, target, issued=False, sleep=0):
        ok = L("ok"); sp = L("spin")
        if issued:
            p.wait(lg="poll")
            p(f"v_readfirstlane_b32 s{S_X}, v{V_POLL}")
            p(f"s_cmp_ge_u32 s{S_X}, {target}")
            p(f"s_cbranch_scc1 {ok}")
        p.label(sp)
        if sleep: p(f"s_sleep {sleep}")
        p(f"ds_read_b32 v{V_POLL}, v{V_C} offset:{off}")
        p("s_waitcnt lgkmcnt(0)")
        p(f"v_readfirstlane_b32 s{S_X}, v{V_POLL}")
        p(f"s_sub_u32 s{S_SPIN}, s{S_SPIN}, 1")
        p("s_cbranch_scc1 L_end")
        p(f"s_cmp_ge_u32 s{S_X}, {target}")
        p(f"s_cbranch_scc0 {sp}")
        if not issued: p.lg.clear()
        p.label(ok)
    def srd(s, ka, n):
        if ka is not None: p(f"s_mov_b64 s[{s}:{s+1}], s[{KA+ka}:{KA+ka+1}]")
        p(f"s_mov_b32 s{s+2}, {n}")
        p(f"s_mov_b32 s{s+3}, {FRM}")
    def touch(vaddr, soff, mask):
        p(f"s_mov_b64 exec, {mask}" if mask < (1 << 31) else f"s_mov_b32 exec_hi, {hex(mask >> 32)}")
        p(f"buffer_load_dword v250, v{vaddr}, s[{S_W1}:{S_W1+3}], s{soff} offen")
        p("s_mov_b64 exec, -1")

    def ws_shift():
        if cfg.wsoff:
            p(f"s_add_u32 s{S_WS}, s{S_WS}, {cfg.wsoff << 20}")
            p(f"s_addc_u32 s{S_WS+1}, s{S_WS+1}, 0")
    def producer_index():
        if cfg.pl:
            p(f"s_lshr_b32 s{S_FB}, s2, 6")
            p(f"s_lshl2_add_u32 s{S_FB}, s{S_CP}, s{S_FB}")
            p(f"s_mul_i32 s{S_FB}, s{S_FB}, 3")
            p(f"s_and_b32 s{S_X}, s2, 7")
            p(f"s_sub_u32 s{S_X}, s{S_X}, 1")
            p(f"s_add_u32 s{S_FB}, s{S_FB}, s{S_X}")
            p(f"s_cmp_lt_u32 s{S_X}, 3")
            p(f"s_cselect_b32 s{S_FB}, s{S_FB}, 99")
            return
        p(f"s_lshr_b32 s{S_FB}, s2, 6")
        p(f"s_sub_u32 s{S_FB}, s{S_RG}, s{S_FB}")
        p(f"s_sub_u32 s{S_FB}, s{S_FB}, 1")
        p(f"s_and_b32 s{S_X}, s2, 0x37")
        p(f"s_sub_u32 s{S_X}, s{S_X}, 1")
        p(f"s_cmp_lt_u32 s{S_X}, 7")
        p(f"s_cselect_b32 s{S_FB}, s{S_FB}, 99")

    S_FL = 16
    FO = 128 if cfg.two else 0
    def flags_load(off):
        if cfg.sflag: p(f"s_load_dword s{S_FL}, s[{S_DBG}:{S_DBG+1}], {FO}")
        else: p(f"global_load_dword v11, v10, s[{S_DBG}:{S_DBG+1}] offset:{FO} sc1")
    def flags_test():
        if cfg.sflag: p("s_waitcnt lgkmcnt(0)")
        else:
            p("s_waitcnt vmcnt(0)")
            p(f"v_readfirstlane_b32 s{S_FL}, v11")
        p(f"s_cmp_ge_u32 s{S_FL}, 26")

    p(f".globl {NAME}\n.p2align 8\n.type {NAME},@function")
    p.label(NAME)
    p(f"s_load_dwordx16 s[{KA}:{KA+15}], s[0:1], 0")
    p(f"s_load_dwordx4 s[{S_OUT}:{S_OUT+3}], s[0:1], 64")
    p(f"s_load_dwordx2 s[{S_WS}:{S_WS+1}], s[0:1], 80")
    if cfg.probe or cfg.pst >= 0: p("s_memrealtime s[96:97]" if cfg.pst != 28 else "s_memrealtime s[96:97]")
    if cfg.pcyc: p("s_memtime s[98:99]")
    if cfg.stamps:
        p(f"s_memrealtime s[{S_ST}:{S_ST+1}]")
        p(f"s_memtime s[100:101]")
    p("v_lshrrev_b32 v1, 6, v0")
    p("v_and_b32 v0, 63, v0")
    p(f"v_readfirstlane_b32 s{S_WAVE}, v1")
    p("s_cmp_ge_u32 s2, 0x100")
    p("s_cbranch_scc1 L_end")
    p(f"s_and_b32 s3, s2, 7")
    if cfg.late0:
        p("s_cbranch_scc1 L_nl0")
        p("s_waitcnt lgkmcnt(0)")
        p(f"s_add_u32 s68, s{S_ST}, {cfg.late0}")
        p.label("L_l0")
        p("s_memrealtime s[98:99]"); p("s_waitcnt lgkmcnt(0)")
        p("s_cmp_lt_u32 s98, s68")
        p("s_cbranch_scc1 L_l0")
        p.label("L_nl0")
    p(f"s_lshr_b32 s{S_RG}, s2, 6")
    p(f"s_lshl3_add_u32 s{S_RG}, s{S_RG}, s3")
    p(f"s_bfe_u32 s{S_CP}, s2, 0x20004")
    p(f"v_lshlrev_b32 v{V_L}, 4, v0")
    p(f"v_lshlrev_b32 v160, 7, v0")
    srd(S_IDX, None, 4096*104)
    srd(S_W1, None, 832*1664)
    p("s_bitcmp1_b32 s2, 3")
    p("s_cbranch_scc1 L_cin")
    p(f"s_lshl3_add_u32 s3, s{S_RG}, s{S_WAVE}")
    p(f"s_mul_i32 s3, s3, 1664")
    p(f"s_mul_i32 s{S_W}, s{S_WAVE}, 1664")
    p(f"s_add_u32 m0, s{S_W}, {IDXO}")
    p(f"s_lshr_b32 s{S_X}, s2, 4")
    p(f"s_lshl3_add_u32 s{S_X}, s{S_X}, s{S_WAVE}")
    p(f"s_mul_i32 s{S_X}, s{S_X}, 2560")
    p.wait0(lg=True)
    p(f"s_mov_b64 s[{S_IDX}:{S_IDX+1}], s[{KA}:{KA+1}]")
    p(f"s_mov_b64 s[{S_W1}:{S_W1+1}], s[{KA+8}:{KA+9}]")
    for n in range(2):
        if n: p("s_mov_b32 exec_hi, 0xff")
        p.vmem(f"buffer_load_dwordx4 v{V_L}, s[{S_IDX}:{S_IDX+3}], s3 offen offset:{1024*n}{' nt' if cfg.nti else ''} lds", "idx")
    if cfg.ctouch == 2:
        srd(S_WCIN, 4, 105456)
        p(f"s_lshr_b32 s3, s2, 4")
        p(f"s_lshl3_add_u32 s3, s3, s{S_WAVE}")
        p(f"s_mul_i32 s3, s3, 384")
        p(f"s_add_u32 s3, s3, {549*128}")
        p("s_mov_b64 exec, 7")
        p(f"buffer_load_dword v250, v160, s[{S_WCIN}:{S_WCIN+3}], s3 offen"); p.vm.issue("t")
    if not cfg.dtouch: p("s_mov_b64 exec, -1")
    if cfg.dtouch:
        touch(160, S_X, 0xfffff); p.vm.issue("t")
    p("s_branch L_dnn")
    dnn_vm = list(p.vm.q)

    p.vm.clear(); p.lg.clear()
    p.label("L_cin")
    if cfg.dbench: p("s_endpgm")
    S_C = S_WAVE
    W3A, TBL, VV, AQ, VF, GA, MB, VT, CRAW = 28, 32, 40, 56, 72, 80, 96, 170, 152
    S_J = S_W
    p(f"s_sub_u32 s{S_J}, s{S_WAVE}, 4")
    p("s_cbranch_scc1 L_pwave")
    p(f"s_lshl3_add_u32 s3, s{S_RG}, s{S_CP}")
    p(f"s_lshr_b32 s{S_FB}, s{S_J}, 1")
    p(f"s_lshl2_add_u32 s3, s{S_FB}, s3")
    p(f"s_and_b32 s{S_X}, s{S_J}, 1")
    p(f"s_lshl1_add_u32 s3, s3, s{S_X}")
    p(f"s_mul_i32 s3, s3, 832")
    p(f"s_mul_i32 s{S_X}, s{S_J}, 832")
    p(f"s_add_u32 m0, s{S_X}, {IX2}")
    p("s_mov_b32 exec_hi, 0xfffff")
    p.wait0(lg=True)
    p(f"s_mov_b64 s[{S_IDX}:{S_IDX+1}], s[{KA}:{KA+1}]")
    p(f"buffer_load_dwordx4 v{V_L}, s[{S_IDX}:{S_IDX+3}], s3 offen{' nt' if cfg.nti else ''} lds")
    if cfg.pfcode == 3:
        p(f"s_getpc_b64 s[{S_PC}:{S_PC+1}]")
        p.label("L_pc3")
        p(f"s_lshr_b32 s{S_X}, s2, 4")
        p(f"s_lshl2_add_u32 s{S_X}, s{S_X}, s{S_J}")
        p(f"s_mul_i32 s{S_X}, s{S_X}, 640")
        p(f"v_add_u32 v2, s{S_X}, v160")
        p(f"v_min_u32 v2, gather_table-L_pc3+4092, v2")
        p("s_mov_b64 exec, 31")
        p(f"global_load_dword v250, v2, s[{S_PC}:{S_PC+1}]")
    p("s_branch L_xwave")
    def cin_common():
        srd(S_WCO, None, 156)
        srd(S_WS, None, WS_END)
        p(f"s_mov_b32 s{S_SPIN}, 0x40000")
        p(f"v_lshlrev_b32 v{V_C}, 2, v0")
        p(f"v_add_u32 v{V_C}, {CO}, v{V_C}")
        p(f"v_mov_b32 v{V_ONE}, 1")
    p.label("L_pwave")
    cin_common()
    srd(S_WCIN, None, 105456)
    producer_index()
    if cfg.noprep: p(f"s_mov_b32 s{S_FB}, 99")
    p(f"s_getpc_b64 s[{S_PC}:{S_PC+1}]")
    p.label("L_pc")
    p.wait0(lg=True)
    p(f"s_mov_b64 s[{S_WCIN}:{S_WCIN+1}], s[{KA+4}:{KA+5}]")
    ws_shift()
    if cfg.ttouch: srd(S_TAB, 2, 6400000)
    p(f"s_mov_b64 s[{S_W1}:{S_W1+1}], s[{KA+8}:{KA+9}]")
    p(f"s_mov_b64 s[{S_WCO}:{S_WCO+1}], s[{KA+6}:{KA+7}]")
    p(f"s_mov_b64 s[{S_BOUT}:{S_BOUT+1}], s[{KA+14}:{KA+15}]")
    def cinit_loads():
        p(f"v_lshrrev_b32 v8, 5, v0")
        p(f"v_lshlrev_b32 v9, 3, v8")
        p(f"v_lshlrev_b32 v8, 1, v8")
        for a in range(3):
            p(f"buffer_load_dwordx2 v[{CRAW+2*a}:{CRAW+2*a+1}], v9, s[{S_WCO}:{S_WCO+3}], 0 offen offset:{16*a}")
        p(f"buffer_load_ushort v{CRAW+6}, v8, s[{S_WCO}:{S_WCO+3}], 0 offen offset:48")
        p(f"v_mov_b32 v8, 0")
        if cfg.tlbo: p(f"global_load_dword v250, v8, s[{S_OUT}:{S_OUT+1}]")
        p(f"global_load_ushort v{CRAW+7}, v8, s[{S_BOUT}:{S_BOUT+1}]")
    if cfg.mtouch:
        p(f"s_cmp_lt_u32 s{S_CP}, 2")
        p("s_cbranch_scc1 L_nomt")
        p(f"s_lshl1_add_u32 s{S_T}, s{S_RG}, s{S_CP}")
        p(f"s_lshl2_add_u32 s{S_T}, s{S_T}, s{S_C}")
        p(f"s_mul_i32 s{S_T+1}, s{S_T}, {33*128}")
        p(f"s_add_u32 s{S_T+1}, s{S_T+1}, {(2496 - 8*33)*128}")
        touch(160, S_T+1, (1 << 33) - 1)
        p.label("L_nomt")
    p(f"s_cmp_ge_u32 s{S_FB}, 26")
    p("s_cbranch_scc1 L_cbar")
    if cfg.prio_prep: p(f"s_setprio {cfg.prio_prep}")
    p(f"s_mul_i32 s{S_T+2}, s{S_FB}, {BLK}")
    p(f"s_add_u32 s{S_T+2}, s{S_T+2}, {WS_W}")
    def w3_dma():
        p(f"s_mul_i32 s{S_T}, s{S_C}, 9216")
        p(f"s_add_u32 s{S_T+1}, s{S_T}, 70304")
        p(f"s_add_u32 s{S_T}, s{S_T}, {P_W3}")
        for u in range(9):
            if u % 4 == 0:
                if u: p(f"s_add_u32 s{S_T+1}, s{S_T+1}, 0x1000")
                p(f"s_add_u32 m0, s{S_T}, {1024*u}")
                p("s_nop 0")
            p(f"buffer_load_dwordx4 v{V_L}, s[{S_WCIN}:{S_WCIN+3}], s{S_T+1} offen offset:{1024*(u % 4)} lds")
    if not cfg.w3last: w3_dma()
    p("v_and_b32 v2, 0x30, v0")
    p("v_bfe_u32 v1, v0, 2, 2")
    for q in range(4):
        p(f"v_xor_b32 v3, {q}, v1")
        p("v_lshl_add_u32 v3, v3, 28, v2")
        p(f"buffer_load_dwordx4 v[{AQ+4*q}:{AQ+4*q+3}], v3, s[{S_WCO}:{S_WCO+3}], 0 offen offset:104")
    p(f"s_cmp_ge_u32 s{S_C}, 2")
    p("s_cbranch_scc1 L_p23")
    p(f"s_lshl_b32 s{S_T}, s{S_C}, 11")
    p(f"s_add_u32 s{S_T}, s{S_T}, gather_table-L_pc")
    p(f"v_lshl_add_u32 v1, v0, 5, s{S_T}")
    p(f"global_load_dwordx4 v[{TBL}:{TBL+3}], v1, s[{S_PC}:{S_PC+1}]")
    p(f"global_load_dwordx4 v[{TBL+4}:{TBL+7}], v1, s[{S_PC}:{S_PC+1}] offset:16")
    p(f"s_cmp_lg_u32 s{S_C}, 0")
    p("s_cbranch_scc1 L_p1")
    p("v_lshrrev_b32 v3, 5, v0")
    p("v_mul_u32_u24 v3, 0x2a40, v3")
    p("v_and_b32 v2, 31, v0")
    p("v_lshl_add_u32 v3, v2, 1, v3")
    p(f"s_mul_i32 s{S_T}, s{S_FB}, 52")
    p(f"s_add_u32 s{S_T}, s{S_T}, 35152")
    for u in range(16):
        if u and u % 4 == 0:
            p(f"s_add_u32 s{S_T}, s{S_T}, {(4 if u != 8 else 12)*1352}")
        p(f"buffer_load_ushort v{VV+u}, v3, s[{S_WCIN}:{S_WCIN+3}], s{S_T} offen offset:{1352*(u % 4)}")
    p("s_branch L_pz")
    p.label("L_p1")
    p(f"s_mul_i32 s{S_T}, s{S_FB}, 1352")
    p(f"s_mov_b32 m0, {P_W1}")
    p("s_nop 0")
    for u in range(2):
        p(f"buffer_load_dwordx4 v{V_L}, s[{S_WCIN}:{S_WCIN+3}], s{S_T} offen offset:{1024*u} lds")
    p("s_branch L_pz")
    p.label("L_p23")
    p(f"s_cmp_lg_u32 s{S_C}, 3")
    p("s_cbranch_scc1 L_pz")
    p("v_lshlrev_b32 v1, 2, v0")
    p(f"buffer_load_dword v27, v1, s[{S_WCO}:{S_WCO+3}], 0 offen offset:52")
    if cfg.dwarm:
        p(f"s_cmp_lg_u32 s{S_FB}, 0")
        p("s_cbranch_scc1 L_nodw")
        p("v_mov_b32 v4, 0")
        p("s_mov_b64 exec, 1")
        p(f"global_atomic_add v4, v4, s[{S_DBG}:{S_DBG+1}] sc1")
        p("s_mov_b64 exec, -1")
        p.label("L_nodw")
    if cfg.wpre == 1:
        p("s_mov_b64 exec, 0x1fff")
        p(f"buffer_load_dword v250, v160, s[{S_WS}:{S_WS+3}], s{S_T+2} offen")
        p("s_mov_b64 exec, -1")
    for r in range(4): p(f"v_mov_b32 v{4+r}, -1")
    p(f"buffer_store_dwordx4 v[4:7], v{V_L}, s[{S_WS}:{S_WS+3}], s{S_T+2} offen sc1")
    p("s_mov_b32 exec_hi, 0xff")
    p(f"buffer_store_dwordx4 v[4:7], v{V_L}, s[{S_WS}:{S_WS+3}], s{S_T+2} offen offset:1024 sc1")
    p("s_mov_b32 exec_hi, -1")
    p.label("L_pz")
    if cfg.w3last: w3_dma()
    p("v_mov_b32 v2, 0")
    p("v_mov_b32 v3, 0")
    p(f"s_lshl_b32 s{S_T}, s{S_C}, 9")
    p(f"s_add_u32 s{S_T}, s{S_T}, {P_M3T}")
    p(f"v_lshl_add_u32 v1, v0, 3, s{S_T}")
    p("ds_write_b64 v1, v[2:3]")
    p(f"v_add_u32 v1, {P_Z - CO}, v{V_C}")
    p("ds_write_b32 v1, v2")
    p.label("L_cbar")
    if cfg.pfcode == 1:
        sk = L("nopf")
        p(f"s_cmp_lg_u32 s{S_C}, 2")
        p(f"s_cbranch_scc1 {sk}")
        p(f"s_lshr_b32 s{S_T}, s2, 4")
        p(f"s_mul_i32 s{S_T}, s{S_T}, 2560")
        p(f"v_add_u32 v2, s{S_T}, v160")
        p(f"v_min_u32 v2, gather_table-L_pc+4092, v2")
        p("s_mov_b64 exec, 0xfffff")
        p(f"global_load_dword v161, v2, s[{S_PC}:{S_PC+1}]")
        p("s_mov_b64 exec, -1")
        p.label(sk)
    p("v_mov_b32 v2, 0")
    p(f"ds_write_b32 v{V_C}, v2")
    p.wait0(lg=True)
    p("s_barrier")
    stamp(1)
    p(f"s_cmp_lt_u32 s{S_FB}, 26")
    p("s_cbranch_scc1 L_prep")
    cinit_loads()
    p("s_waitcnt vmcnt(0)")
    p("s_branch L_setup")
    p.label("L_prep")
    p(f"s_cmp_lg_u32 s{S_C}, 2")
    p("s_cbranch_scc1 L_nmb")
    for r in range(4): p(f"v_mov_b32 v{4+r}, -1")
    nk = 10 if cfg.fast else 5
    p(f"s_mul_i32 s{S_T}, s{S_FB}, {1024*nk}")
    p(f"s_min_u32 s{S_T}, s{S_T}, {131072*nk//5 - 1024*nk}")
    for u in range(nk):
        if u and u % 4 == 0: p(f"s_add_u32 s{S_T}, s{S_T}, 0x1000")
        p(f"buffer_store_dwordx4 v[4:7], v{V_L}, s[{S_WS}:{S_WS+3}], s{S_T} offen offset:{1024*(u % 4)} sc1")
    p("s_nop 0")
    p.label("L_nmb")
    p("v_bfe_u32 v1, v0, 2, 2")
    p("v_lshrrev_b32 v4, 4, v0")
    p("v_lshl_add_u32 v4, v4, 3, v1")
    p("v_add_u32 v5, 4, v4")
    p("v_min_u32 v4, 25, v4")
    p("v_min_u32 v5, 25, v5")
    p("v_and_b32 v6, 3, v0")
    p(f"s_mul_i32 s{S_T}, s{S_C}, 384")
    p(f"s_add_u32 s{S_T}, s{S_T}, {P_W3}")
    p(f"v_lshl_add_u32 v6, v6, 3, s{S_T}")
    p(f"s_movk_i32 s{S_T+1}, 1352")
    p(f"v_mad_u32_u24 v2, v4, s{S_T+1}, v6")
    p(f"v_mad_u32_u24 v3, v5, s{S_T+1}, v6")
    p(f"s_mul_i32 s{S_T}, s{S_C}, 192")
    p(f"s_movk_i32 s{S_T+1}, -1662")
    p(f"v_mov_b32 v7, {P_DUM}")
    for u in range(3):
        p(f"v_add_u32 v4, s{S_T}, v0")
        if u < 2: p(f"s_add_u32 s{S_T}, s{S_T}, 64")
        p("v_mul_u32_u24 v5, 2521, v4")
        p("v_lshrrev_b32 v5, 16, v5")
        p("v_cmp_gt_u32 vcc, 0x2a4, v4")
        p("v_lshlrev_b32 v4, 6, v4")
        p(f"v_mad_i32_i24 v4, v5, s{S_T+1}, v4")
        p(f"v_add_u32 v4, {P_M3T}, v4")
        p(f"v_cndmask_b32 v{8+u}, v7, v4, vcc")
    p("v_and_b32 v5, 31, v0")
    p("v_lshrrev_b32 v4, 5, v0")
    p("v_lshlrev_b32 v6, 6, v5")
    p("v_lshl_add_u32 v6, v4, 4, v6")
    p(f"v_add_u32 v28, {P_M3T}, v6")
    p("v_mul_u32_u24 v5, 0x90, v5")
    p("v_lshl_add_u32 v5, v4, 4, v5")
    p(f"v_add_u32 v29, {P_D1}, v5")
    p(f"s_cmp_eq_u32 s{S_C}, 0")
    p(f"s_cselect_b32 s{S_T}, 768, 0")
    p(f"v_add_u32 v30, s{S_T}, v{V_L}")
    p(f"v_mov_b32 v11, {PS}")
    p(f"v_add_u32 v4, {P_M3T + 26*64 - CO}, v{V_C}")
    p(f"s_cmp_lg_u32 s{S_C}, 3")
    p("s_cbranch_scc1 L_w0")
    assert cfg.w3last
    p("s_waitcnt vmcnt(9)")
    p("s_mov_b64 exec, 0x1fff")
    p("ds_write_b32 v4, v27")
    p("v_mov_b32 v4, 0")
    p("s_mov_b64 exec, 1")
    if cfg.two: p(f"global_atomic_add v27, v4, v{V_ONE}, s[{S_DBG}:{S_DBG+1}] sc0 sc1")
    else: p(f"global_atomic_add v4, v{V_ONE}, s[{S_DBG}:{S_DBG+1}] sc1")
    p("s_mov_b64 exec, -1")
    stamp(27)
    if cfg.pst == 12:
        p("s_waitcnt vmcnt(0)")
        stamp(12)
    p("s_waitcnt vmcnt(1)")
    p("s_branch L_w1")
    p.label("L_w0")
    p(f"s_cmp_lg_u32 s{S_C}, 2")
    p("s_cbranch_scc1 L_w2")
    p(f"s_waitcnt vmcnt({nk})")
    p("s_branch L_w1")
    p.label("L_w2")
    p.wait0(vm=True)
    p.label("L_w1")
    stamp(10)
    p("s_barrier")
    extra = []
    for u in range(8):
        extra.append(f"v_add_u32_sdwa v{GA+2*u}, v11, v{TBL+u} dst_sel:DWORD dst_unused:UNUSED_PAD src0_sel:DWORD src1_sel:WORD_0")
        extra.append(f"v_add_u32_sdwa v{GA+2*u+1}, v11, v{TBL+u} dst_sel:DWORD dst_unused:UNUSED_PAD src0_sel:DWORD src1_sel:WORD_1")
    for u in range(8): extra.append(f"v_lshl_or_b32 v{VF+u}, v{VV+2*u+1}, 16, v{VV+2*u}")
    def m3_mfma(U):
        u, q = divmod(U, 4)
        p.wait(lg=f"m{U}")
        cc = "0" if q == 0 else f"v[{12+4*u}:{15+4*u}]"
        p(f"v_mfma_f32_16x16x32_bf16 v[{12+4*u}:{15+4*u}], v[{AQ+4*q}:{AQ+4*q+3}], v[{MB+4*U}:{MB+4*U+3}], {cc}")
    for T in range(12):
        p.lds(f"ds_read_b64_tr_b16 v[{MB+4*T}:{MB+4*T+1}], v2 offset:{32*T}", f"m{T}")
        p.lds(f"ds_read_b64_tr_b16 v[{MB+4*T+2}:{MB+4*T+3}], v3 offset:{32*T}", f"m{T}")
        if T == 5:
            for _ in range(8): p(extra.pop(0))
        if T >= 6: m3_mfma(T - 6)
    for U in range(6, 12):
        m3_mfma(U)
        if U == 8:
            p("v_cvt_pk_bf16_f32 v24, v12, v12")
            p("ds_write_b16 v8, v24")
        else:
            for _ in range(2): p(extra.pop(0))
    p("v_cvt_pk_bf16_f32 v25, v16, v16")
    p("ds_write_b16 v9, v25")
    while extra: p(extra.pop(0))
    p(f"v_cvt_pk_bf16_f32 v26, v20, v20")
    p(f"ds_write_b16 v10, v26")
    p.wait0(lg=True)
    p("s_barrier")
    stamp(11)
    p(f"s_cmp_eq_u32 s{S_C}, 0")
    p("s_cbranch_scc1 L_pT")
    assert cfg.two
    p(f"s_cmp_eq_u32 s{S_C}, 1")
    p("s_cbranch_scc1 L_pX")
    p(f"s_cmp_eq_u32 s{S_C}, 3")
    p(f"s_cselect_b32 s{S_T}, 128, 64")
    p(f"v_mov_b32 v2, s{S_T}")
    p("v_mov_b32 v3, 26")
    p("s_mov_b64 exec, 1")
    p("s_cbranch_scc1 L_n2")
    p("v_mov_b32 v4, 4")
    p("s_waitcnt vmcnt(0)")
    p(f"global_atomic_add v27, v4, v{V_ONE}, s[{S_DBG}:{S_DBG+1}] sc0 sc1")
    p.label("L_n2")
    p("s_waitcnt vmcnt(0)")
    stamp(9)
    p(f"v_readfirstlane_b32 s{S_X}, v27")
    p(f"s_cmp_lt_u32 s{S_X}, 25")
    p("s_cbranch_scc1 L_pdx")
    p(f"global_store_dword v2, v3, s[{S_DBG}:{S_DBG+1}] sc1")
    p("s_branch L_pdx")
    p.label("L_pX")
    for u in range(16): p(f"v_mov_b32 v{MB+16+u}, 0")
    for u in range(16): p(f"ds_read_u16_d16_hi v{MB+16+u}, v{GA+u}")
    p("s_branch L_pst")
    p.label("L_pT")
    p("ds_read_b128 v[12:15], v28")
    p("ds_read_b128 v[16:19], v28 offset:32")
    p("s_waitcnt lgkmcnt(1)")
    p(f"v_mfma_f32_32x32x16_bf16 v[{MB}:{MB+15}], v[{VF}:{VF+3}], v[12:15], 0")
    p("s_waitcnt lgkmcnt(0)")
    p(f"v_mfma_f32_32x32x16_bf16 v[{MB}:{MB+15}], v[{VF+4}:{VF+7}], v[16:19], v[{MB}:{MB+15}]")
    p("s_nop 11")
    for a in range(4): p(f"ds_write_b128 v29, v[{MB+4*a}:{MB+4*a+3}] offset:{32*a}")
    for u in range(16): p(f"ds_read_b32 v{MB+16+u}, v{GA+u}")
    p.label("L_pst")
    p("s_mov_b32 exec_hi, 0xffff")
    for e in range(8):
        if e % 2 == 0: p(f"s_waitcnt lgkmcnt({12 - 2*e})")
        p(f"v_add_f32 v{MB+16+2*e}, v{MB+16+2*e}, v{MB+16+2*e+1}")
        if e % 2:
            p(f"v_cvt_pk_bf16_f32 v{4+e//2}, v{MB+14+2*e}, v{MB+16+2*e}")
            p(f"v_min_u32 v{4+e//2}, -2, v{4+e//2}")
    p(f"buffer_store_dwordx4 v[4:7], v30, s[{S_WS}:{S_WS+3}], s{S_T+2} offen sc1")
    if cfg.wpre == 2:
        p(f"buffer_load_dword v250, v30, s[{S_WS}:{S_WS+3}], s{S_T+2} offen sc1")
    p(f"s_cmp_lg_u32 s{S_C}, 0")
    p("s_cbranch_scc1 L_pdx")
    p("v_lshlrev_b32 v8, 2, v0")
    p("s_mov_b32 exec_hi, 0")
    p(f"buffer_store_dword v{V_ONE}, v8, s[{S_WS}:{S_WS+3}], s{S_T+2} offen offset:1536 sc1")
    p.label("L_pdx")
    p("s_mov_b64 exec, -1")
    p.label("L_pdone")
    stamp(21)
    cinit_loads()
    p("s_waitcnt vmcnt(0)")
    p("s_branch L_setup")
    p.label("L_xwave")
    S_XM, S_TB = S_T+4, S_T+5
    p("s_mov_b64 exec, -1")
    cin_common()
    p(f"s_mov_b64 s[{S_W1}:{S_W1+1}], s[{KA+8}:{KA+9}]")
    p(f"s_mov_b64 s[{S_WCO}:{S_WCO+1}], s[{KA+6}:{KA+7}]")
    p(f"s_mov_b64 s[{S_BOUT}:{S_BOUT+1}], s[{KA+14}:{KA+15}]")
    ws_shift()
    srd(S_TAB, 2, 6400000)
    if cfg.etouch:
        p(f"s_cmp_eq_u32 s{S_CP}, 0")
        p("s_cbranch_scc1 L_noet")
        touch(160, S_X, (1 << 52) - 1)
        p("s_waitcnt vmcnt(1)")
        p.label("L_noet")
    p("v_lshrrev_b32 v1, 4, v0")
    p("v_and_b32 v2, 12, v0")
    p(f"s_mul_i32 s3, s{S_J}, 104")
    p(f"s_add_u32 s3, s3, {IX2}")
    p(f"v_add_u32 v2, s3, v2")
    p(f"s_movk_i32 s{S_X}, 416")
    p(f"v_mad_u32_u24 v3, v1, s{S_X}, v2")
    if cfg.bal:
        p(f"s_cmp_eq_u32 s{S_J}, 3")
        p(f"s_cselect_b32 s{S_X}, 104, 312")
        p(f"s_cselect_b32 s3, {13*104}, {20*104}")
        p(f"v_add_u32 v2, s3, v2")
        p(f"v_mad_u32_u24 v4, v1, s{S_X}, v2")
    else: p("v_add_u32 v4, 0x680, v3")
    p("v_and_b32 v1, 3, v0")
    p("v_lshlrev_b32 v5, 4, v1")
    p("v_bfe_u32 v1, v0, 3, 1")
    p("v_lshl_add_u32 v6, v1, 30, v5")
    p(f"s_mul_i32 s{S_XM}, s{S_J}, 7168")
    p(f"s_lshr_b32 s{S_TB}, s2, 4")
    p(f"s_lshl2_add_u32 s{S_TB}, s{S_TB}, s{S_J}")
    p(f"s_mul_i32 s{S_TB}, s{S_TB}, {46*128}")
    p(f"s_add_u32 s{S_TB}, s{S_TB}, {4992*128}")
    assert not cfg.etouch
    producer_index()
    p("s_waitcnt vmcnt(1)" if cfg.pfcode == 3 else "s_waitcnt vmcnt(0)")
    p("s_barrier")
    for u in range(2):
        for Q in range(0, 6, 2): p(f"ds_read2_b32 v[{VT+7*u+u+Q}:{VT+7*u+u+Q+1}], v{3+u} offset0:{4*Q} offset1:{4*Q+4}")
        p(f"ds_read_b32 v{VT+8*u+6}, v{3+u} offset:96")
    stamp(1)
    p.vm.clear()
    assert cfg.xwin < 14
    p.wait0(lg=True)
    go_done = False; g0_done = False
    for Q in range(7):
        for u in range(2):
            n = 2*Q + u
            if n == cfg.xbar and not cfg.noprep:
                p(f"s_cmp_ge_u32 s{S_FB}, 26")
                p("s_cbranch_scc1 L_nobar")
                p("s_barrier")
                p("s_barrier")
                p.label("L_nobar")
            if n == cfg.xstart and n: p.wait(vm="x0")
            if n >= cfg.xwin:
                p.wait(vm=f"x{n - cfg.xwin}")
                if n - cfg.xwin == 2*cfg.gon + 1: arrive(C_GO); go_done = True
                if cfg.pre and n - cfg.xwin == 2*(cfg.gon - cfg.pre) + 1: arrive(C_G0); g0_done = True
                if cfg.g0 and n - cfg.xwin == 2*(cfg.gon - cfg.g0) + 1:
                    p("s_and_b32 s3, s2, 7")
                    p("s_cbranch_scc1 L_ng0")
                    arrive(C_GO)
                    p.label("L_ng0")
            p(f"s_add_u32 m0, s{S_XM}, {XO + 4*7168*u + 1024*Q}")
            p(f"v_lshl_add_u32 v{VT+8*u+Q}, v{VT+8*u+Q}, 6, v{6 if Q == 6 else 5}")
            p.vmem(f"buffer_load_dwordx4 v{VT+8*u+Q}, s[{S_TAB}:{S_TAB+3}], 0 offen{' nt' if cfg.ntx else ''} lds", f"x{n}")
        for u, at in enumerate((cfg.lt0, cfg.lt1)):
            if at == Q and cfg.ltouch:
                touch(160, S_TB, (1 << 46) - 1); p.vm.issue("t")
                p(f"s_add_u32 s{S_TB}, s{S_TB}, {2944*128}")
    def late_touch():
        touch(160, S_TB, (1 << 46) - 1); p.vm.issue("t")
        p(f"s_add_u32 s{S_TB}, s{S_TB}, {2944*128}")
    cinit_loads()
    for _ in range(5 + cfg.tlbo): p.vm.issue("ci")
    if cfg.pre and not g0_done:
        p.wait(vm=f"x{2*(cfg.gon - cfg.pre)+1}")
        arrive(C_G0)
    if not go_done:
        p.wait(vm=f"x{2*cfg.gon+1}")
        arrive(C_GO)
    p.wait(vm="x13")
    arrive(C_XL)
    p.wait(vm="ci")
    for at in (cfg.lt0, cfg.lt1):
        if at == 7 and cfg.ltouch: late_touch()
    if cfg.ltouch and cfg.lt1 == 8: p(f"s_mov_b32 s{S_FB}, s{S_TB}")
    stamp(6)

    p.label("L_setup")
    if cfg.stamps or cfg.pst == 28: p(f"s_mov_b32 s{S_ST+27}, 0")
    p(f"s_setprio {cfg.prio_prep}")
    p.vm.clear(); p.lg.clear()
    AX, AT, CI, X0 = 0, 16, 32, 48
    Z = [74, 78]; PT = 82; ZL = 90
    XA = {1: 98, -3: 99, -1: 100}; WA = 101; SM = [102, 103, 104, 105]; MBX = 106; VMB = 110; VBO = 111
    RING = 112; RES = RING + 4*cfg.R
    WT = 112
    assert RES + 4*cfg.NRES <= 256
    NR = 4
    S_N, S_MB, S_O = S_T+7, S_T+9, S_T+11
    S_NR = S_T + 12
    p(f"s_and_b32 s{S_T+3}, s{S_WAVE}, 3")
    p(f"s_lshl_b32 s{S_T+2}, s{S_T+3}, 2")
    p(f"s_lshl_b32 s{S_T}, s{S_T+3}, 8")
    p(f"s_mov_b32 s{S_N}, 4")
    p(f"s_add_u32 s{S_T+2}, s{S_T+2}, 3")
    p(f"s_cmp_lt_u32 s{S_WAVE}, 4")
    p("s_cbranch_scc1 L_rowp")
    p(f"s_add_u32 s{S_T}, s{S_T}, {4*7168}")
    if cfg.bal:
        p(f"s_mov_b32 s{S_N}, 3")
        p(f"s_mul_i32 s{S_T+2}, s{S_T+3}, 3")
        p(f"s_add_u32 s{S_T+2}, s{S_T+2}, 70")
    else: p(f"s_add_u32 s{S_T+2}, s{S_T+2}, 64")
    p.label("L_rowp")
    p(f"s_lshl4_add_u32 s{S_T+2}, s{S_CP}, s{S_T+2}")
    p.label("L_setup2")
    p(f"s_mov_b32 s{S_NR}, s{S_N}")
    p("v_and_b32 v1, 31, v0")
    p("v_lshrrev_b32 v2, 5, v0")
    p(f"v_lshl_add_u32 v3, v1, 1, s{S_T}")
    p(f"v_lshl_add_u32 v{XA[1]}, v2, 6, v3")
    p("v_mul_u32_u24 v4, 0xc0, v2")
    p(f"v_sub_u32 v{XA[-3]}, v3, v4")
    p("v_lshlrev_b32 v4, 6, v2")
    p(f"v_sub_u32 v{XA[-1]}, v3, v4")
    p("v_mul_u32_u24 v4, 0x210, v2")
    p("v_lshl_add_u32 v4, v1, 4, v4")
    p(f"v_add_u32 v{WA}, {WO}, v4")
    for r in range(26): p(f"v_mov_b32 v{X0+r}, 0")
    for a in range(3):
        for h in range(2):
            p(f"v_lshlrev_b32 v{CI+4*a+2*h}, 16, v{CRAW+2*a+h}")
            p(f"v_and_b32 v{CI+4*a+2*h+1}, 0xffff0000, v{CRAW+2*a+h}")
    p(f"v_lshlrev_b32 v{CI+12}, 16, v{CRAW+6}")
    for r in range(13, 16): p(f"v_mov_b32 v{CI+r}, 0")
    p(f"v_lshlrev_b32 v{VBO}, 16, v{CRAW+7}")
    p("v_lshrrev_b32 v1, 3, v0")
    p("v_min_u32 v3, 1, v1")
    p("v_lshlrev_b32 v2, 9, v0")
    p(f"v_lshl_add_u32 v{VMB}, v3, 30, v2")
    p(f"s_lshl_b32 s{S_T+1}, s{S_RG}, 7")
    p(f"s_add_u32 s{S_T+1}, s{S_T+1}, s{S_T+2}")
    p(f"s_lshl_b32 s{S_O}, s{S_T+1}, 1")
    p(f"s_lshl_b32 s{S_T}, s{S_RG}, 10")
    p(f"s_add_u32 s{S_MB}, s{S_T+2}, s{S_T}")
    p(f"s_sub_u32 s{S_MB}, s{S_MB}, 3")
    p(f"s_lshl_b32 s{S_MB}, s{S_MB}, 2")
    p(f"s_add_u32 s{S_MB+1}, s{S_MB}, 0x20000")
    p(f"v_mov_b32 v{ZL+7}, 0")
    p(f"v_mov_b32 v{MBX+1}, 0")
    def x_read(r):
        p.lds(f"ds_read_u16_d16_hi v{X0+r}, v{XA[pi(r)-r]} offset:{1024*(r >> 2) + 64*(r & 3)}", f"x{r}")
    def z_ops(n):
        ops = []
        for e in range(4):
            t = PT + 2*(e % 4)
            (a, b), (c, d) = S[8*n + 2*e], S[8*n + 2*e + 1]
            ops.append(("v", f"v_mul_f32 v{t}, v{X0+a}, v{X0+b}", (a, b)))
            ops.append(("v", f"v_mul_f32 v{t+1}, v{X0+c}, v{X0+d}", (c, d)))
        cv = [("v", f"v_cvt_pk_bf16_f32 v{Z[n % 2]+e}, v{PT+2*e}, v{PT+2*e+1}", ()) for e in range(4)]
        return ops[0:4] + cv[0:1] + ops[4:6] + cv[1:2] + ops[6:8] + cv[2:4]
    def first_row(tag=''):
        check(C_XL, 4, sleep=cfg.idle_sleep)
        for r in range(26): x_read(r)
        for o in z_ops(0):
            p.wait(lg=tuple(f"x{r}" for r in o[2]))
            p(o[1])
        for d in XA.values(): p(f"v_add_u32 v{d}, 0x1c00, v{d}")
    if cfg.zfirst:
        first_row()
        p.wait0(lg=True)
    S_C4 = S_T + 14
    p(f"s_and_b32 s{S_C4}, s{S_WAVE}, 3")
    if not cfg.w8:
        p(f"s_cmp_ge_u32 s{S_WAVE}, 4")
        p("s_cbranch_scc1 L_xz")
    p("v_and_b32 v2, 7, v0")
    p(f"v_mul_u32_u24 v3, {BLK}, v1")
    p("v_lshl_add_u32 v3, v2, 4, v3")
    p("v_mul_u32_u24 v4, 0x210, v2")
    p(f"s_mul_i32 s{S_T}, s{S_C4}, {24*528}")
    p(f"s_add_u32 s{S_T}, s{S_T}, {WO}")
    p(f"v_add_u32 v4, s{S_T}, v4")
    p("v_lshl_add_u32 v5, v1, 4, v4")
    p("v_cmp_eq_u32 vcc, 1, v1")
    p("v_add_u32 v6, 48, v5")
    p("v_subrev_u32 v7, 48, v5")
    p("v_cndmask_b32 v6, v5, v6, vcc")
    p("v_cmp_eq_u32 vcc, 4, v1")
    p(f"v_mul_u32_u24 v8, {BLK}, v0")
    p("s_nop 0")
    p("v_cndmask_b32 v6, v6, v7, vcc")
    p(f"s_mul_i32 s{S_T}, s{S_C4}, 384")
    p(f"s_add_u32 s{S_T}, s{S_T}, {WS_W}")
    if cfg.w8: p(f"s_lshr_b32 s{S_T+1}, s{S_WAVE}, 2")
    else: p(f"s_and_b32 s{S_T+1}, s{S_CP}, {1 if cfg.wrot else 0}")
    p(f"s_mul_i32 s{S_T+2}, s{S_T+1}, 26624")
    for k in range(4):
        p(f"s_xor_b32 s{S_T+3+k}, s{S_T+2}, {26624*(k >> 1)}")
        p(f"s_add_u32 s{S_T+3+k}, s{S_T+3+k}, s{S_T}")
        if k & 1: p(f"s_add_u32 s{S_T+3+k}, s{S_T+3+k}, 13312")
    p(f"s_lshl_b32 s{S_T+2}, s{S_T+1}, 8")
    p(f"s_cmp_eq_u32 s{S_T+1}, 0")
    p("s_cselect_b64 vcc, -1, 0")
    p(f"v_add_u32 v12, s{S_T+2}, v5")
    p(f"s_xor_b32 s{S_T+2}, s{S_T+2}, 0x100")
    p("v_add_u32 v6, 0x180, v6")
    p("v_add_u32 v15, 0x80, v5")
    p(f"v_add_u32 v14, s{S_T+2}, v5")
    p("v_cndmask_b32 v13, v6, v15, vcc")
    p("v_cndmask_b32 v15, v15, v6, vcc")
    p("v_mov_b32 v10, 0")
    if cfg.pre:
        check(C_G0, 4, sleep=2)
        flags_load(192)
    check(C_GO, 4, sleep=2)
    stamp(22)
    p(f"s_mov_b32 s{S_T+13}, {WS_W}")
    if cfg.noprep: p("s_branch L_wload")
    if cfg.direct:
        if not cfg.pre:
            flags_load(192)
        flags_test()
        p("s_cbranch_scc1 L_wload")
        if cfg.stamps or cfg.pst == 28: p(f"s_add_u32 s{S_ST+27}, s{S_ST+27}, 100")
    p(f"s_cmp_lg_u32 s{S_C}, 0")
    p("s_cbranch_scc1 L_pw")
    p.label("L_probe")
    p(f"global_load_dword v11, v10, s[{S_DBG}:{S_DBG+1}] offset:{FO} sc1")
    p(f"buffer_load_dword v9, v8, s[{S_WS}:{S_WS+3}], s{S_T+13} offen offset:1536 sc1")
    p("s_waitcnt vmcnt(0)")
    p("v_cmp_gt_u32 vcc, 26, v11")
    p(f"v_cmp_eq_u32 s[{S_FL}:{S_FL+1}], -1, v9")
    p("s_nop 1")
    p(f"s_or_b64 vcc, vcc, s[{S_FL}:{S_FL+1}]")
    p("s_cmp_eq_u64 vcc, 0")
    p("s_cbranch_scc1 L_wload")
    p.label("L_retry")
    if cfg.stamps or cfg.pst == 28: p(f"s_add_u32 s{S_ST+27}, s{S_ST+27}, 1")
    p(f"s_sleep {cfg.poll_sleep}")
    p(f"s_sub_u32 s{S_SPIN}, s{S_SPIN}, 1")
    p("s_cbranch_scc0 L_probe")
    p("s_endpgm")
    p.label("L_pw")
    check(C_FLAG, 1, sleep=2)
    p("s_branch L_wl2")
    p.label("L_wload")
    arrive(C_FLAG)
    p.label("L_wl2")
    stamp(2)
    NJ = 2 if cfg.w8 else 4
    for J in range(NJ):
        for Fi in range(3):
            r = WT + 4*(3*J + Fi)
            p.vmem(f"buffer_load_dwordx4 v[{r}:{r+3}], v3, s[{S_WS}:{S_WS+3}], s{S_T+3+J} offen offset:{128*Fi}{'' if cfg.wplain else ' sc1'}", f"w{J}{Fi}")
    if cfg.zmid:
        p(f"s_cmp_lg_u32 s{S_C4}, 99")
        p("s_cbranch_scc0 L_zd")
        first_row("a")
        p(f"s_mov_b32 s{S_C4}, 99")
        p.label("L_zd")
    first = True
    for J in range(NJ):
        for Fi in range(3):
            r = WT + 4*(3*J + Fi)
            p.wait(vm=f"w{J}{Fi}")
            if (J, Fi) == (0, 0): stamp(12)
            if (J, Fi) == (NJ-1, 2): stamp(13)
            p(f"ds_write_b128 v{12+J}, v[{r}:{r+3}] offset:{4224*Fi}")
            if first: p(f"v_max_u32 v9, v{r}, v{r+1}")
            else: p(f"v_max3_u32 v9, v{r}, v{r+1}, v9")
            p(f"v_max3_u32 v9, v{r+2}, v{r+3}, v9")
            first = False
    p("v_cmp_eq_u32 vcc, -1, v9")
    p("s_nop 1")
    p("s_cmp_eq_u64 vcc, 0")
    p("s_cbranch_scc0 L_retry")
    if cfg.zmid and not cfg.w8: p("s_branch L_xz2")
    p.label("L_xz")
    if not cfg.zfirst and not (cfg.zmid and cfg.w8): first_row()
    p.label("L_xz2")
    p.wait0(lg=True)
    p("s_barrier")
    if cfg.ltouch and cfg.lt1 == 8:
        assert RES + 4*cfg.NRES <= 250
        p(f"s_cmp_lt_u32 s{S_WAVE}, 4")
        p("s_cbranch_scc1 L_go")
        touch(160, S_FB, (1 << 46) - 1)
    p.label("L_go")
    p("s_setprio 0")
    if cfg.flip:
        p(f"s_cmp_lt_u32 s{S_WAVE}, 4")
        p("s_cbranch_scc1 L_prio")
        p(f"s_setprio 1")
        p.label("L_prio")
    stamp(3)
    order = []
    for n in range(22):
        order.append(("X", n)); order.append(("T", n))
        if n == 14: order.append(("T", 22))
        if n == 18: order.append(("T", 23))
    fr_of = lambda k, n: n if k == "X" else n + 24
    nn = 46 - cfg.NRES
    assert nn % cfg.R == 0
    nonres = [int((u + 0.5)*46/nn) for u in range(nn)]
    wreg = {}; rr = 0
    for k in range(46):
        if k in nonres: wreg[k] = RING + 4*(nonres.index(k) % cfg.R)
        else: wreg[k] = RES + 4*rr; rr += 1
    def w_read(k):
        p.lds(f"ds_read_b128 v[{wreg[k]}:{wreg[k]+3}], v{WA} offset:{1056*fr_of(*order[k])}", f"w{k}")
    for k in range(46):
        if k not in nonres or nonres.index(k) < cfg.R: w_read(k)
    p.wait0(lg=True)
    stamp(5)
    def mfma(k):
        kind, n = order[k]
        zb = Z[n % 2] if n < 22 else ZL + 4*(n - 22)
        acc = AX if kind == "X" else AT
        cc = f"v[{acc}:{acc+15}]"
        if n == 0: cc = "0" if kind == "X" else f"v[{CI}:{CI+15}]"
        return f"v_mfma_f32_32x32x16_bf16 v[{acc}:{acc+15}], v[{wreg[k]}:{wreg[k]+3}], v[{zb}:{zb+3}], {cc}"
    lin_ops = []
    for u in range(8):
        a = LIN[min(2*u, 12)]; b = LIN[min(2*u + 1, 12)]
        lin_ops.append(("v", f"v_cvt_pk_bf16_f32 v{ZL+u}, v{X0+a}, v{X0+b}", (a, b)))
    def body(emit_mb):
        groups = [z_ops(n) for n in range(1, 22)] + [z_ops(0)]
        groups[10] = lin_ops[:7] + groups[10]
        flat = [(g, o) for g, ops in enumerate(groups) for o in ops]
        lastuse = {}
        for i, (g, o) in enumerate(flat):
            if g < 21:
                for r in o[2]: lastuse[r] = i
        for r in range(26): lastuse.setdefault(r, -1)
        for g, ops in enumerate(groups):
            mf = [kk for kk in range(46) if order[kk] in (("X", g), ("T", g))]
            if g == 14: mf.append(order.index(("T", 22)))
            if g == 18: mf.append(order.index(("T", 23)))
            items = []
            base = sum(len(x) for x in groups[:g])
            if g == 0:
                for r in range(26):
                    if lastuse[r] == -1: items.append(("x", r))
            for i, o in enumerate(ops):
                items.append(o)
                for r in range(26):
                    if lastuse[r] == base + i: items.append(("x", r))
            if g == 21:
                pos = [0, 0]
            else:
                n_it = len(items)
                pos = [2 + (j*n_it)//len(mf) for j in range(len(mf))]
            j = 0
            for i, it in enumerate(items + [None]):
                while j < len(mf) and pos[j] <= i:
                    kk = mf[j]
                    if g == 21 and j == 0: p("s_nop 1")
                    p.wait(lg=f"w{kk}")
                    p(mfma(kk))
                    if kk in nonres:
                        w_read(nonres[(nonres.index(kk) + cfg.R) % nn])
                    j += 1
                if it is None: break
                if it[0] == "x": x_read(it[1])
                else:
                    p.wait(lg=tuple(f"x{r}" for r in it[2]))
                    p(it[1])
            if g == 15: emit_mb()
        for k in range(NR - 1): p(f"v_mov_b32 v{SM[k]}, v{SM[k+1]}")
        for d in XA.values(): p(f"v_add_u32 v{d}, 0x1c00, v{d}")
        s0 = SM[NR-1]
        p(f"v_mul_f32 v{s0}, v{AX}, v{AT}")
        p(f"v_mul_f32 v{PT}, v{AX+1}, v{AT+1}")
        for r in range(2, 13):
            p(f"v_fmac_f32 v{s0 if r % 2 == 0 else PT}, v{AX+r}, v{AT+r}")
        p(f"s_sub_u32 s{S_N}, s{S_N}, 1")
        p(f"v_add_f32 v{s0}, v{s0}, v{PT}")
    def mb_loads(so=None):
        p(f"buffer_load_dwordx{NR} v[{MBX}:{MBX+NR-1}], v{VMB}, s[{S_WS}:{S_WS+3}], s{so or (S_MB+1 if cfg.fast else S_MB)} offen sc1")
    def emit_mb():
        sk = L("nomb"); l1 = L("mb1"); lp = L("mbf"); ok = L("mbk")
        p(f"s_cmp_gt_u32 s{S_N}, 2")
        p(f"s_cbranch_scc1 {sk}")
        p(f"s_cmp_eq_u32 s{S_N}, 1")
        p(f"s_cbranch_scc1 {l1}")
        p(f"global_load_dword v{MBX}, v{MBX+1}, s[{S_DBG}:{S_DBG+1}] offset:64 sc1")
        p(f"s_branch {sk}")
        p.label(lp)
        p(f"global_load_dword v{MBX}, v{MBX+1}, s[{S_DBG}:{S_DBG+1}] offset:64 sc1")
        p(f"s_sub_u32 s{S_SPIN}, s{S_SPIN}, 1")
        p("s_cbranch_scc1 L_end")
        p.label(l1)
        p("s_waitcnt vmcnt(0)")
        p(f"v_readfirstlane_b32 s{S_X}, v{MBX}")
        p(f"s_cmp_ge_u32 s{S_X}, 26")
        p(f"s_cbranch_scc0 {lp}")
        mb_loads()
        p.label(sk)
    save = p.L; p.L = []
    body(lambda: None)
    st1 = list(p.lg.q)
    p.L = save
    p(".p2align 3")
    p.label("L_row")
    body(emit_mb)
    assert st1 == p.lg.q
    if cfg.stamps in (1, 2):
        for i in range(3): p(f"s_mov_b32 s{S_ST+23+i}, s{S_ST+24+i}")
        stamp(26)
    if cfg.stamps == 4 or cfg.pst == 26:
        p(f"s_cmp_lg_u32 s{S_N}, 0")
        p("s_cbranch_scc1 L_ns4")
        stamp(26)
        p.label("L_ns4")
    if cfg.flip:
        p(f"s_cmp_lg_u32 s{S_N}, {4 - cfg.flip}")
        p("s_cbranch_scc1 L_noflip")
        p("s_setprio 0")
        p.label("L_noflip")
    p(f"s_cmp_lg_u32 s{S_N}, 0")
    p("s_cbranch_scc1 L_row")
    p.label("L_mbw")
    p("s_waitcnt vmcnt(0)")
    if NR == 4:
        p(f"v_max3_u32 v1, v{MBX}, v{MBX+1}, v{MBX+2}")
        p(f"v_max_u32 v1, v1, v{MBX+3}")
    else: p(f"v_max_u32 v1, v{MBX}, v{MBX+1}")
    p("v_cmp_eq_u32 vcc, -1, v1")
    p("s_nop 1")
    p("s_cmp_eq_u64 vcc, 0")
    p("s_cbranch_scc1 L_mbok")
    if cfg.msleep: p(f"s_sleep {cfg.msleep}")
    if cfg.fast:
        p(f"s_add_u32 s{S_N}, s{S_N}, 1")
        p(f"s_and_b32 s{S_X}, s{S_N}, 7")
        p(f"s_cselect_b32 s{S_X}, s{S_MB+1}, s{S_MB}")
        mb_loads(S_X)
    else: mb_loads()
    p(f"s_sub_u32 s{S_SPIN}, s{S_SPIN}, 1")
    p("s_cbranch_scc0 L_mbw")
    p("s_endpgm")
    p.label("L_mbok")
    for k in range(NR): p(f"v_add_f32 v{SM[k]}, v{SM[k]}, v{MBX+k}")
    for ctl in ("quad_perm:[1,0,3,2] row_mask:0xf", "quad_perm:[2,3,0,1] row_mask:0xf", "row_half_mirror row_mask:0xf",
                "row_mirror row_mask:0xf", "row_bcast:15 row_mask:0xa", "row_bcast:31 row_mask:0xc"):
        if NR == 2: p("s_nop 0")
        for k in range(NR): p(f"v_add_f32_dpp v{SM[k]}, v{SM[k]}, v{SM[k]} {ctl} bank_mask:0xf")
    for k in range(NR): p(f"v_add_f32 v{SM[k]}, v{SM[k]}, v{VBO}")
    p(f"v_cvt_pk_bf16_f32 v2, v{SM[0]}, v{SM[1]}")
    p(f"v_cvt_pk_bf16_f32 v3, v{SM[2]}, v{SM[3]}")
    p(f"v_mov_b32 v1, s{S_O}")
    p("s_mov_b32 exec_lo, 0")
    p("s_mov_b32 exec_hi, 0x80000000")
    if cfg.bal:
        p(f"s_cmp_eq_u32 s{S_NR}, 4")
        p("s_cbranch_scc1 L_st4")
        p(f"global_store_short_d16_hi v1, v3, s[{S_OUT}:{S_OUT+1}]")
        p(f"s_cmp_eq_u32 s{S_NR}, 1")
        p("s_cbranch_scc1 L_std")
        p(f"global_store_short v1, v3, s[{S_OUT}:{S_OUT+1}] offset:-2")
        p(f"global_store_short_d16_hi v1, v2, s[{S_OUT}:{S_OUT+1}] offset:-4")
        p("s_branch L_std")
        p.label("L_st4")
    p(f"global_store_dwordx2 v1, v[2:3], s[{S_OUT}:{S_OUT+1}] offset:-6" + ("", " sc1", " nt", " sc0 sc1")[cfg.ost])
    p.label("L_std")
    stamps_out()
    p.label("L_end")
    p("s_endpgm")

    p.vm.q = dnn_vm; p.lg.clear()
    p(".p2align 6")
    p.label("L_dnn")
    ACC = lambda t, q: 8*t + 4*q
    BF = lambda t: 56 + 4*t
    AR = lambda f, q: 84 + 8*(f % 2) + 4*q
    IDX = lambda f: 100 + f
    VO = lambda u: 128 + u
    V_B, V_A, V_CH, V_LANE, V_G8 = [130, 131, 132], [133, 134, 135], 136, 137, 138
    RAW = 140; RAW2 = 200
    S_SB, S_M0, S_AM = S_T+2, S_T+3, S_T+4
    if cfg.probe:
        p("s_cmp_ge_u32 s2, 8")
        p("s_cbranch_scc1 L_pr1")
        p("s_lshl_b32 s90, s2, 2")
        p("v_mov_b32 v1, s90")
        p("v_mov_b32 v2, s96")
        p(f"global_store_dword v1, v2, s[{S_DBG}:{S_DBG+1}] offset:8 sc1")
        p("s_waitcnt vmcnt(0)")
        p.label("L_pr1")
    srd(S_B1, 10, 1664)
    srd(S_TAB, 2, 6400000)
    srd(S_W2, 12, 1664)
    srd(S_WS, None, WS_END)
    ws_shift()
    if cfg.pxa >= 0:
        p("s_getreg_b32 s91, hwreg(HW_REG_XCC_ID)")
        p("s_and_b32 s91, s91, 15")
        p(f"s_cmp_lg_u32 s2, {cfg.pxa}")
        p("s_cbranch_scc1 L_pxa")
        p("v_mov_b32 v1, 0")
        p("v_mov_b32 v2, s91")
        p(f"global_store_dword v1, v2, s[{S_DBG}:{S_DBG+1}] offset:8 sc1")
        p("s_waitcnt vmcnt(0)")
        p.label("L_pxa")
    if cfg.plat:
        sr_, off = {1: (S_TAB, 3000320), 2: (S_W1, 1300096), 3: (S_WS, 4096), 5: (S_DBG+0, 0), 4: (S_TAB, 5000320)}[cfg.plat]
        p("s_waitcnt vmcnt(0)")
        p(f"v_mov_b32 v1, {off}")
        p(f"buffer_load_dword v2, v1, s[{sr_}:{sr_+3}], 0 offen offset:2048")
        p("s_waitcnt vmcnt(0)")
        p("s_lshl_b32 s90, s2, 7")
        p("s_memrealtime s[94:95]")
        p("s_waitcnt lgkmcnt(0)")
        p(f"buffer_load_dword v2, v1, s[{sr_}:{sr_+3}], s90 offen offset:4)".replace(")", ""))
        p("s_waitcnt vmcnt(0)")
        p("s_memrealtime s[92:93]")
        p("s_waitcnt lgkmcnt(0)")
        p("s_sub_u32 s92, s92, s94")
        p("s_mul_i32 s92, s92, 10")
        p("s_add_u32 s92, s92, s96")
    stamp(10)
    p(f"s_mov_b32 s{S_SPIN}, 0x40000")
    p(f"s_mul_i32 s{S_COL}, s{S_CP}, 416")
    S_M1, S_WR = S_T+5, S_T+6
    p(f"s_mov_b32 s{S_SB}, s{S_COL}")
    p(f"s_and_b32 s{S_WR}, s{S_WAVE}, 3")
    p(f"s_lshl_b32 s{S_T}, s{S_WAVE}, 1")
    p(f"s_sub_u32 s{S_T}, s{S_T}, 4")
    p(f"s_add_u32 s{S_T+1}, s{S_T}, 1")
    p(f"s_cmp_lt_u32 s{S_WAVE}, 4")
    p(f"s_cselect_b32 s{S_M0}, s{S_WAVE}, s{S_T}")
    p(f"s_cselect_b32 s{S_M1}, 12, s{S_T+1}")
    p(f"s_lshl_b32 s{S_M0}, s{S_M0}, 10")
    p(f"s_lshl_b32 s{S_M1}, s{S_M1}, 10")
    p(f"s_lshl_b32 s{S_AM}, s{S_WAVE}, 10")
    p(f"s_add_u32 s{S_AM}, s{S_AM}, {BSZ}")
    p(f"s_lshr_b32 s{S_T}, s{S_WAVE}, 2")
    p(f"s_mul_i32 s{S_T}, s{S_T}, 224")
    p(f"s_add_u32 s{S_COL}, s{S_COL}, s{S_T}")
    p(f"s_movk_i32 s{S_T+1}, 1248")
    p(f"s_movk_i32 s{S_T+7}, 6656")
    for u in range(2):
        p(f"v_add_u32 v3, s{(S_M0, S_M1)[u]}, v{V_L}")
        p("v_lshlrev_b32 v4, 4, v3")
        p("v_mul_hi_u32_u24 v4, 0x9d89e, v4")
        p("v_bfe_u32 v5, v4, 2, 1")
        p("v_bfe_i32 v6, v4, 3, 1")
        p("v_add_u32 v5, v5, v6")
        p(f"v_mad_i32_i24 v5, v5, s{S_T+7}, v3")
        p(f"v_mad_u32_u24 v{VO(u)}, v4, s{S_T+1}, v5")
    p("v_lshrrev_b32 v2, 2, v0")
    p(f"v_mul_u32_u24 v2, 104, v2")
    p(f"s_add_u32 s{S_W}, s{S_W}, {IDXO}")
    p(f"v_add_u32 v139, s{S_W}, v2")
    p("v_lshrrev_b32 v2, 5, v0")
    p("v_mul_u32_u24 v3, 3, v2")
    p("v_xor_b32 v3, v3, v0")
    p("v_and_b32 v3, 3, v3")
    p(f"v_lshlrev_b32 v{V_CH}, 4, v3")
    p.wait(vm="idx")
    stamp(1)
    if cfg.dbench:
        p("s_mov_b32 s3, 0")
        p.label("L_again")
    for m in range(6):
        p.lds(f"ds_read2_b64 v[{100+4*m}:{103+4*m}], v139 offset0:{2*m} offset1:{2*m+1}", f"ix{m}")
    p.lds("ds_read_b64 v[124:125], v139 offset:96", "ix6")
    def a_dma(f):
        p.wait(lg=f"ix{f >> 2}")
        p(f"s_add_u32 m0, s{S_AM}, {(f % RB)*SLOT}")
        p(f"v_lshl_add_u32 v{IDX(f)}, v{IDX(f)}, 6, v{V_CH}")
        p.vmem(f"buffer_load_dwordx4 v{IDX(f)}, s[{S_TAB}:{S_TAB+3}], 0 offen{' nt' if f < cfg.nta else ''} lds", f"F{f}")
    def b_dma(f, u, T):
        if u == 1:
            if f: p(f"s_add_u32 s{S_SB}, s{S_SB}, 53248")
            sk = L("np")
            if T != 6:
                if T == 0:
                    p(f"s_cmp_ge_u32 s{S_WAVE}, 4")
                    p(f"s_cselect_b32 s{S_X}, {f & 3}, s{S_WR}")
                    p(f"s_cmp_lg_u32 s{S_X}, {f & 3}")
                else: p(f"s_cmp_lg_u32 s{S_WR}, {f & 3}")
                p(f"s_cbranch_scc1 {sk}")
            p(f"s_add_u32 m0, s{S_M1}, {(f % RB)*SLOT}")
            p("s_nop 0")
            p(f"buffer_load_dwordx4 v{VO(1)}, s[{S_W1}:{S_W1+3}], s{S_SB} offen lds")
            if T == 6: p.vm.issue(f"F{f}")
            else: p.label(sk)
        else:
            p(f"s_add_u32 m0, s{S_M0}, {(f % RB)*SLOT}")
            p("s_nop 0")
            p.vmem(f"buffer_load_dwordx4 v{VO(0)}, s[{S_W1}:{S_W1+3}], s{S_SB} offen lds", f"F{f}")
    def fill(f, T): a_dma(f); b_dma(f, 1, T); b_dma(f, 0, T)
    BWO = IDXO
    p(f"s_cmp_ge_u32 s{S_WAVE}, {0 if cfg.dbench else 2}")
    p("s_cbranch_scc1 L_nobw")
    p(f"s_mul_i32 s{S_X}, s{S_CP}, 416")
    p(f"s_cmp_eq_u32 s{S_WAVE}, 0")
    p(f"s_cselect_b64 s[{S_W2}:{S_W2+1}], s[{S_B1}:{S_B1+1}], s[{S_W2}:{S_W2+1}]")
    p(f"s_mov_b32 m0, s{S_W}")
    p("s_mov_b64 exec, 0xfffffff")
    p("s_waitcnt lgkmcnt(0)")
    p(f"buffer_load_dwordx4 v{V_L}, s[{S_W2}:{S_W2+3}], s{S_X} offen lds")
    p("s_mov_b64 exec, -1")
    p.label("L_nobw")
    if cfg.sw < 26:
        p(f"v_lshlrev_b32 v{V_C}, 2, v{V_LANE}")
        p(f"v_add_u32 v{V_C}, {IDXO + 2*1664}, v{V_C}")
        p(f"v_mov_b32 v{V_ONE}, 1")
        p(f"s_cmp_lg_u32 s{S_WAVE}, 2")
        p("s_cbranch_scc1 L_noz")
        p(f"v_mov_b32 v{V_POLL}, 0")
        p("s_waitcnt lgkmcnt(0)")
        p(f"ds_write_b32 v{V_C}, v{V_POLL}")
        p("s_waitcnt lgkmcnt(0)")
        p.label("L_noz")
    def lo(f): return (f % RB)//3, ((f % RB) % 3)*SLOT
    def b_read1(f, t, r2):
        k, off = lo(f)
        p.lds(f"ds_read_b64_tr_b16 v[{BF(t)+2*r2}:{BF(t)+2*r2+1}], v{V_B[k]} offset:{off + 32*t + 3328*r2}", f"b{f}_{t}")
    def a_read(f):
        k, off = lo(f)
        for q in range(2):
            p.lds(f"ds_read_b128 v[{AR(f, q)}:{AR(f, q)+3}], v{V_A[k]} offset:{off + 1024*q}", f"a{f}")
    q0 = list(p.vm.q)
    fill(0, 0)
    p("v_lshrrev_b32 v1, 4, v0")
    p(f"s_add_u32 s{S_T+1}, s{S_T}, {IDXO}")
    p(f"v_lshl_add_u32 v{V_G8}, v1, 3, s{S_T+1}")
    p("v_bfe_u32 v3, v0, 3, 1")
    p("v_mul_u32_u24 v3, 3, v3")
    p("v_xor_b32 v3, v3, v1")
    p("v_and_b32 v4, 15, v0")
    p("v_lshlrev_b32 v4, 6, v4")
    p("v_lshl_add_u32 v3, v3, 4, v4")
    p(f"s_and_b32 s{S_T+1}, s{S_WAVE}, 3")
    p(f"s_lshl_b32 s{S_T+1}, s{S_T+1}, 11")
    p(f"s_add_u32 s{S_T+1}, s{S_T+1}, {BSZ}")
    p(f"v_add_u32 v{V_A[0]}, s{S_T+1}, v3")
    p("v_bfe_u32 v3, v0, 2, 3")
    p("v_lshl_add_u32 v2, v2, 4, v3")
    p("v_mul_u32_u24 v2, 0x1a0, v2")
    p("v_and_b32 v3, 3, v0")
    p("v_lshl_add_u32 v2, v3, 3, v2")
    p(f"v_add_u32 v{V_B[0]}, s{S_T}, v2")
    for k in (1, 2):
        p(f"v_add_u32 v{V_A[k]}, {3*k*SLOT}, v{V_A[0]}")
        p(f"v_add_u32 v{V_B[k]}, {3*k*SLOT}, v{V_B[0]}")
    p(f"v_mov_b32 v{V_LANE}, v0")
    fill(1, 0)
    p(f"s_cmp_ge_u32 s{S_WAVE}, 4")
    p("s_cbranch_scc1 L_dnn6")
    W2R = lambda t, r: 170 + 4*t + r
    def w2_unpack():
        return [x for t in range(7) for h in range(2) for x in
                (f"v_lshlrev_b32 v{W2R(t,2*h)}, 16, v{RAW2+2*t+h}", f"v_and_b32 v{W2R(t,2*h+1)}, 0xffff0000, v{RAW2+2*t+h}")]
    vm0, lg0 = list(p.vm.q), list(p.lg.q)
    def dnn_main(T):
        p.vm.q, p.lg.q = q0 + ["F0"]*(9 - T) + ["F1"]*(9 - T), list(lg0)
        p.wait(vm="F0")
        p("s_barrier")
        stamp(12)
        for t in range(T):
            p.lds(f"ds_read_b64 v[{RAW+2*t}:{RAW+2*t+1}], v{V_G8} offset:{32*t}", "bias")
        a_read(0)
        for t in range(T):
            for r2 in range(2): b_read1(0, t, r2)
        p.wait(lg="bias")
        for t in range(T):
            for h in range(2):
                p(f"v_lshlrev_b32 v{ACC(t,0)+2*h}, 16, v{RAW+2*t+h}")
                p(f"v_and_b32 v{ACC(t,0)+2*h+1}, 0xffff0000, v{RAW+2*t+h}")
        for f in range(2, cfg.look): fill(f, T)
        p.wait(vm=tuple(f"F{k}" for k in range(cfg.barp + 1)))
        p("s_barrier")
        if T == 6 and cfg.prio_hi: p(f"s_setprio {cfg.prio_hi}")
        stamp(2)
        nxt = cfg.look
        w2ops = w2_unpack()
        free = -1; landed = cfg.barp
        for f in range(26):
            todo = []
            soft = f > cfg.sw and f <= 23
            top = f < cfg.early or (cfg.dpos == 4 and T == 6) or (cfg.dpos == 1 and T == 7)
            lim = (f - 1 if soft and not top else free) + RB
            nfill = 2 if (cfg.cmask >> f & 1 if cfg.cmask else cfg.catch0 <= f < cfg.catch0 + cfg.catch) else 1
            if f >= cfg.b2: nfill = (2 if (f % 2 == 0) == ((T == 6) == (cfg.dpos == 4)) else 0)
            for _ in range(nfill):
                if nxt < 26 and nxt <= lim:
                    todo += [(a_dma, (nxt,)), (b_dma, (nxt, 1, T)), (b_dma, (nxt, 0, T))]; nxt += 1
            if cfg.nodma and f >= 4:
                keep = []
                for fn, ar in todo:
                    if (fn is a_dma and cfg.nodma & 1) or (fn is b_dma and cfg.nodma & 2): continue
                    keep.append((fn, ar))
                todo[:] = keep
            n_it = len(todo)
            if f < cfg.early: at = [-1]*n_it
            elif cfg.dpos == 0: at = list(range(n_it))
            elif cfg.dpos == 1: at = [-1]*n_it if T == 7 else [T-1]*n_it
            elif cfg.dpos == 2: at = [(2*i + (T == 6)) if n_it <= 3 else i for i in range(n_it)]
            elif cfg.dpos == 3: at = [0]*n_it if T == 7 else [T-1]*n_it
            elif cfg.dpos == 4: at = [T-1]*n_it if T == 7 else [-1]*n_it
            elif cfg.dpos == 5: at = [i//(2 if n_it > 3 else 1) for i in range(n_it)] if T == 7 else [3 + i//(2 if n_it > 3 else 1) for i in range(n_it)]
            if soft and not top: at = [min(max(a, cfg.chk + i*(cfg.dpos in (0, 2))), T-1) for i, a in enumerate(at)]
            assert f == 25 or f + 1 <= landed
            def drain(t):
                while todo and at[0] <= t:
                    at.pop(0); fn, ar = todo.pop(0); fn(*ar)
            drain(-1)
            for t in range(T):
                p.wait(lg=(f"b{f}_{t}", f"a{f}"))
                b = f"v[{BF(t)}:{BF(t)+3}]"
                a0, a1 = ACC(t, 0), ACC(t, 1)
                c1 = a0 if f == 0 else a1
                p(f"v_mfma_f32_16x16x32_bf16 v[{a1}:{a1+3}], {b}, v[{AR(f,1)}:{AR(f,1)+3}], v[{c1}:{c1+3}]")
                if t and f < 25: b_read1(f+1, t-1, 1)
                elif t == 0 and f: b_read1(f, T-1, 1)
                p(f"v_mfma_f32_16x16x32_bf16 v[{a0}:{a0+3}], {b}, v[{AR(f,0)}:{AR(f,0)+3}], v[{a0}:{a0+3}]")
                if f < 25: b_read1(f+1, t, 0)
                if t == cfg.arp and f < 25: a_read(f + 1)
                if soft and t == cfg.chk - 2: poll_issue(4*(f-1))
                if soft and t == cfg.chk:
                    check(4*(f-1), 8, issued=True)
                    free = f - 1; landed = f + 2
                drain(t)
                if f == 12 and t == 0 and cfg.tlbw:
                    p(f"v_mov_b32 v251, {WS_END - 4}")
                    p(f"buffer_load_dword v250, v251, s[{S_WS}:{S_WS+3}], 0 offen")
                if f == 21:
                    for tt in ([t] if t < T - 1 else range(t, 7)):
                        p.lds(f"ds_read_b64 v[{RAW2+2*tt}:{RAW2+2*tt+1}], v{V_G8} offset:{1664 + 32*tt}", "w2")
                if cfg.w2early and f in (23, 24):
                    if f == 23 and t == 0: p.wait(lg="w2")
                    for _ in range(3):
                        if w2ops: p(w2ops.pop(0))
            assert not todo
            if f >= cfg.sw:
                if f <= 22:
                    assert nxt > f + 3
                    p.wait(vm=tuple(f"F{k}" for k in range(f + 4)))
                    arrive(4*f)
            elif f <= cfg.lb and (f + 1) % cfg.barp == 0 and (f < cfg.b2 or f % 2):
                last = min(f + 1 + cfg.barp + (f + 1 == cfg.sw or f + 1 >= cfg.b2), 25) if f < cfg.lb else 25
                assert nxt > last
                p.wait(vm=tuple(f"F{k}" for k in range(last + 1)))
                if not cfg.nobar: p("s_barrier")
                free = f; landed = last
            if f == cfg.lb and cfg.tailprio is not None and T == cfg.tailprio: p("s_setprio 1")
            if f % 4 == 0 and (not cfg.dbench or f in (8, 20)): stamp(14 + f//4)
        assert nxt == 26 and not (cfg.w2early and w2ops)
    dnn_main(7)
    p("s_branch L_gelu")
    p(".p2align 6")
    p.label("L_dnn6")
    dnn_main(6)
    p.label("L_gelu")
    if cfg.dbench:
        p("s_barrier")
        p(f"s_mul_i32 s{S_SB}, s{S_CP}, 416")
        p("s_add_u32 s3, s3, 1")
        p("s_cmp_lt_u32 s3, 2")
        p("s_cbranch_scc1 L_again")
    stamp(3)
    p("v_mov_b32 v98, 0")
    p(f"global_load_dword v99, v98, s[{S_DBG}:{S_DBG+1}] offset:64 sc1")
    if not cfg.w2early:
        p.wait0(vm=True)
        for x in w2_unpack(): p(x)
    k0 = -2.0*math.sqrt(2.0/math.pi)*math.log2(math.e)
    T1, T2, SUM, VC = 56, 64, 92, 72
    P = lambda a: f"v[{a}:{a+1}]"
    for r, c in enumerate((k0*0.044715, k0)):
        for h in range(2): p(f"v_mov_b32 v{VC+2*r+h}, {f2h(c)}")
    for r in range(4): p(f"v_mov_b32 v{SUM+r}, 0")
    for t in range(7):
        if t == 6:
            p(f"s_cmp_ge_u32 s{S_WAVE}, 4")
            p("s_cbranch_scc1 L_gelu6")
        x = ACC(t, 0)
        if cfg.pk:
            for r in range(0, 8, 2): p(f"v_pk_mul_f32 {P(T1+r)}, {P(x+r)}, {P(x+r)}")
            for r in range(0, 8, 2): p(f"v_pk_fma_f32 {P(T1+r)}, {P(T1+r)}, {P(VC)}, {P(VC+2)}")
            for r in range(0, 8, 2): p(f"v_pk_mul_f32 {P(T1+r)}, {P(T1+r)}, {P(x+r)}")
            for r in range(8): p(f"v_exp_f32 v{T1+r}, v{T1+r}")
            for r in range(0, 8, 2): p(f"v_pk_mul_f32 {P(T2+r)}, {P(x+r)}, {P(W2R(t, r & 3))}")
            for r in range(0, 8, 2): p(f"v_pk_add_f32 {P(T1+r)}, {P(T1+r)}, 1.0 op_sel_hi:[1,0]")
            for r in range(8): p(f"v_rcp_f32 v{T1+r}, v{T1+r}")
            for r in (0, 4, 2, 6): p(f"v_pk_fma_f32 {P(SUM+2*(r >> 2))}, {P(T1+r)}, {P(T2+r)}, {P(SUM+2*(r >> 2))}")
        else:
            for r in range(8): p(f"v_mul_f32 v{T1+r}, v{x+r}, v{x+r}")
            for r in range(8): p(f"v_fma_f32 v{T1+r}, v{T1+r}, v{VC}, v{VC+2}")
            for r in range(8): p(f"v_mul_f32 v{T1+r}, v{T1+r}, v{x+r}")
            for r in range(8): p(f"v_exp_f32 v{T1+r}, v{T1+r}")
            for r in range(8): p(f"v_mul_f32 v{T2+r}, v{x+r}, v{W2R(t, r & 3)}")
            for r in range(8): p(f"v_add_f32 v{T1+r}, 1.0, v{T1+r}")
            for r in range(8): p(f"v_rcp_f32 v{T1+r}, v{T1+r}")
            for r in range(8): p(f"v_fmac_f32 v{SUM+2*(r >> 2)+(r & 1)}, v{T1+r}, v{T2+r}")
    p.label("L_gelu6")
    p(f"v_add_f32 v{SUM}, v{SUM}, v{SUM+1}")
    p(f"v_add_f32 v{SUM+2}, v{SUM+2}, v{SUM+3}")
    p(f"v_and_b32 v84, 15, v{V_LANE}")
    p(f"v_lshrrev_b32 v85, 5, v{V_LANE}")
    p(f"v_permlane32_swap_b32 v{SUM}, v{SUM+2}")
    p("v_lshl_add_u32 v84, v85, 4, v84")
    p(f"v_add_f32 v{SUM}, v{SUM}, v{SUM+2}")
    p(f"v_bfe_u32 v85, v{V_LANE}, 4, 1")
    p(f"v_mov_b32 v{SUM+1}, v{SUM}")
    p("v_lshlrev_b32 v84, 2, v84")
    p("v_lshl_add_u32 v84, v85, 30, v84")
    p(f"v_permlane16_swap_b32 v{SUM}, v{SUM+1}")
    p(f"s_lshl2_add_u32 s{S_T}, s{S_RG}, s{S_CP}")
    p(f"v_add_f32 v{SUM}, v{SUM}, v{SUM+1}")
    p(f"s_lshl3_add_u32 s{S_T}, s{S_T}, s{S_WAVE}")
    p(f"s_lshl_b32 s{S_T}, s{S_T}, 7")
    p(f"v_min_u32 v{SUM}, -2, v{SUM}")
    if cfg.noprep or cfg.dbench: p("s_branch L_pub")
    p.label("L_dflag")
    p("s_waitcnt vmcnt(0)")
    p(f"v_readfirstlane_b32 s{S_X}, v99")
    p(f"s_cmp_ge_u32 s{S_X}, 26")
    p("s_cbranch_scc1 L_pub")
    p(f"global_load_dword v99, v98, s[{S_DBG}:{S_DBG+1}] offset:64 sc1")
    p("s_sleep 4")
    p(f"s_sub_u32 s{S_SPIN}, s{S_SPIN}, 1")
    p("s_cbranch_scc0 L_dflag")
    p("s_endpgm")
    p.label("L_pub")
    if cfg.fast:
        p(f"s_add_u32 s{S_T+1}, s{S_T}, 0x20000")
        p(f"buffer_store_dword v{SUM}, v84, s[{S_WS}:{S_WS+3}], s{S_T+1} offen")
    p(f"buffer_store_dword v{SUM}, v84, s[{S_WS}:{S_WS+3}], s{S_T} offen sc1")
    stamp(4)
    if cfg.probe:
        p("s_cmp_lg_u32 s2, 0")
        p("s_cbranch_scc1 L_pr2")
        p(f"v_lshlrev_b32 v1, 2, v{V_LANE}")
        p(f"global_load_dword v2, v1, s[{S_DBG}:{S_DBG+1}] offset:8 sc1")
        p("s_waitcnt vmcnt(0)")
        for i in range(8): p(f"v_readlane_b32 s{80+i}, v2, {i}")
        p("s_mov_b32 s90, s80"); p("s_mov_b32 s91, s80")
        for i in range(1, 8):
            p(f"s_min_u32 s90, s90, s{80+i}"); p(f"s_max_u32 s91, s91, s{80+i}")
        if cfg.probe == 1: p("s_sub_u32 s90, s91, s90")
        else: p(f"s_sub_u32 s90, s{80+cfg.probe-2}, s90")
        p("s_mul_i32 s90, s90, 20")
        p("s_min_u32 s90, s90, 20000")
        p("s_memrealtime s[92:93]"); p("s_waitcnt lgkmcnt(0)")
        p("s_add_u32 s92, s92, s90")
        p.label("L_pr")
        p("s_memrealtime s[94:95]"); p("s_waitcnt lgkmcnt(0)")
        p("s_cmp_lt_u32 s94, s92")
        p("s_cbranch_scc1 L_pr")
        p.label("L_pr2")
    stamps_out()
    p("s_endpgm")

    p(".p2align 6")
    p(".type gather_table,@object")
    p.label("gather_table")
    zt = P_Z - PS
    for role in range(2):
        for lane in range(64):
            s, half = lane >> 1, lane & 1
            ad = []
            for e in range(8):
                pr = slot_pair(s, half, e) if s < (24 if role == 0 else 22) else None
                at = (lambda j, k: P_D1 - PS + k*144 + j*4) if role == 0 else (lambda j, k: P_W1 - PS + (j*26 + k)*2)
                if pr is None: ad += [zt, zt]
                elif pr[1] is None: ad += [at(pr[0], 26), zt]
                elif pr[0] == pr[1] or norm(pr) == (24, 25): ad += [at(*pr), zt]
                else: ad += [at(pr[0], pr[1]), at(pr[1], pr[0])]
            p(".short " + ", ".join(str(a) for a in ad))
    p(".size gather_table, 4096")
    return p

def header():
    return """; xDeepFM (CIN + DNN) forward, one launch, 256 workgroups (S1).
; Kernarg: idx, table, ws_cin, w_cin_out, w_dnn1, b_dnn1, w_dnn2, b_out, out, debug, ws
; @launch grid=(256,1,1) block=(512,1,1) lds=%d
.amdgcn_target "amdgcn-amd-amdhsa--gfx950"
.text
""" % LDS_SIZE
def footer():
    nv = 256
    return f""".section .rodata,"a"
.p2align 6
.amdhsa_kernel {NAME}
  .amdhsa_next_free_vgpr {nv}
  .amdhsa_next_free_sgpr 102
  .amdhsa_accum_offset {nv}
  .amdhsa_group_segment_fixed_size 0
  .amdhsa_kernarg_size 88
  .amdhsa_user_sgpr_count 2
  .amdhsa_user_sgpr_kernarg_segment_ptr 1
  .amdhsa_system_sgpr_workgroup_id_x 1
  .amdhsa_float_denorm_mode_32 3
.end_amdhsa_kernel
"""
if __name__ == "__main__":
    out = sys.argv[1]
    for a in sys.argv[2:]:
        k, v = a.split("=")
        setattr(cfg, k, type(getattr(cfg, k))(int(v)))
    open(out, "w").write(header() + build().text() + footer())
```

```python
import sys, struct, math
from asmlib import *
from slots import *

NAME = "standalone__deep_cross_xdeepfm__recsys_kernel"
class Cfg:
    stamps = 0
    NRES = 38
    R = 2
    prio_prep = 3
    prio_hi = 0
    poll_sleep = 2
    idle_sleep = 1
    gon = 5
    bal = 0
    lt0 = 2
    lt1 = 5
    early = 6
    look = 3
    cmask = 0
    catch0 = 4
    catch = 4
    etouch = 0
    dtouch = 1
    dn = 20
    mtouch = 1
    ttouch = 0
    xwin = 4
    pfcode = 3
    pfn = 6
    pf0 = 0
    flipg = -1
    flip = 3
    w2early = 1
    dpos = 4
    ltouch = 0
    pk = 1
    ctouch = 2
    wrot = 1
    direct = 1
    wpre = 0
    wplain = 0
    w8 = 0
    zmid = 1
    late0 = 0
    g0 = 0
    pl = 0
    fast = 1
    msleep = 1
    tlbo = 0
    tlbw = 0
    ost = 0
    zfirst = 0
    two = 1
    sflag = 1
    w3last = 1
    ntx = 0
    nta = 0
    nti = 0
    pre = 0
    pst = -1
    pcyc = 0
    pxa = -1
    plat = 0
    wsoff = 0
    dwarm = 0
    pwg = 0
    pwave = 0
    probe = 0
    dbench = 0
    nodma = 0
    nobar = 0
    lb = 21
    tailprio = 0
    bp6 = 0
    bp7 = 0
    nonop = 0
    b2 = 26
    sw = 26
    chk = 3
    barp = 1
    arp = 1
    noprep = 0
    clrpos = 1
    xstart = 0
    xbar = 4
    pdelay = 1
    hold = 0
cfg = Cfg()

LDS_SIZE = 163840
XO = 0
WO = 8*7168
PS = WO + 96*528
P_W3 = PS; P_M3T = PS + 36864; P_D1 = PS + 38912; P_W1 = PS + 43520; P_Z = PS + 45568; P_DUM = PS + 45824
CO = LDS_SIZE - 512
IX2 = PS + 46080
assert P_DUM + 256 <= CO
C_PA, C_PB, C_XL, C_FLAG, C_GO, C_G0, C_PI = 0, 4, 8, 12, 16, 20, 24
RB = 7
BSZ = 13312
SLOT = BSZ + 8192
IDXO = RB*SLOT
assert IDXO + 8*1664 == LDS_SIZE
MBOX = 0; WS_W = 262144; BLK = 1664; WS_END = WS_W + 26*BLK; WS_STAMP = 1 << 20
S_IDX, S_TAB, S_W1, S_WCIN, S_WCO, S_B1, S_W2, S_WS = 4, 8, 12, 16, 20, 24, 28, 32
S_OUT, S_DBG, S_BOUT = 36, 38, 40
S_WAVE, S_RG, S_CP, S_FB, S_COL, S_W = 42, 43, 44, 45, 46, 47
S_PC, S_SPIN, S_X = 48, 50, 51
KA = 52
S_T = 52
S_ST = 70
V_C, V_ONE, V_POLL, V_L = 162, 163, 164, 165
FRM = "0x20000"

def f2h(x): return "0x%08x" % struct.unpack("<I", struct.pack("<f", x))[0]

def build():
    p = Prog()
    lab = [0]
    def L(n):
        lab[0] += 1
        return f"L_{n}_{lab[0]}"
    def stamp(i):
        if cfg.pst == i:
            p("s_memtime s[92:93]" if cfg.pcyc else "s_memrealtime s[92:93]")
            p.wait0(lg=True)
        if cfg.stamps and (cfg.stamps < 3 or i == 8 or (cfg.stamps == 4 and i in (4, 26))):
            p(f"s_memrealtime s[68:69]" if cfg.stamps != 2 or i == 8 else "s_memtime s[68:69]")
            p.wait0(lg=True)
            if cfg.stamps != 2 or i == 8: p(f"s_mov_b32 s{S_ST+i}, s68")
            else:
                p("s_sub_u32 s68, s68, s100")
                p("s_lshr_b32 s68, s68, 4")
                p(f"s_add_u32 s{S_ST+i}, s68, s{S_ST}")
    def stamps_out():
        if cfg.pst >= 0:
            stamp(8)
            sk = L("npr"); lp = L("pr")
            p(f"s_cmp_lg_u32 s2, {cfg.pwg}")
            p(f"s_cbranch_scc1 {sk}")
            p(f"s_cmp_lg_u32 s{S_WAVE}, {cfg.pwave}")
            p(f"s_cbranch_scc1 {sk}")
            if cfg.pst == 0: p("s_mov_b32 s92, s96")
            if cfg.pst == 28:
                p(f"s_cmp_lg_u32 s{S_ST+27}, 0")
                p("s_cselect_b32 s92, 125, 0")
                p(f"s_cmp_ge_u32 s{S_ST+27}, 100")
                p("s_cselect_b32 s92, 250, s92")
                p(f"s_cmp_ge_u32 s{S_ST+27}, 101")
                p("s_cselect_b32 s92, 375, s92")
                p("s_add_u32 s92, s92, s96")
            if cfg.pxa >= 0:
                p("s_mov_b64 exec, -1")
                p("v_mov_b32 v1, 0")
                p(f"global_load_dword v2, v1, s[{S_DBG}:{S_DBG+1}] offset:8 sc1")
                p("s_waitcnt vmcnt(0)")
                p("v_readfirstlane_b32 s90, v2")
                p("s_cmp_lg_u32 s90, s91")
                p("s_cselect_b32 s90, 250, 0")
                p("s_add_u32 s92, s92, s90")
            if cfg.pcyc:
                p("s_sub_u32 s90, s92, s98")
                p("s_lshr_b32 s90, s90, 3")
            else:
                p("s_sub_u32 s90, s92, s96")
                p("s_mul_i32 s90, s90, 4")
            p("s_mov_b64 exec, 1")
            p("v_mov_b32 v1, 0")
            p("v_mov_b32 v2, s90")
            p(f"global_store_dword v1, v2, s[{S_DBG}:{S_DBG+1}] offset:4")
            p("s_add_u32 s90, s90, 2000")
            p("s_min_u32 s90, s90, 20000")
            p("s_add_u32 s90, s90, s96")
            p.label(lp)
            p("s_sleep 1")
            p("s_memrealtime s[94:95]"); p("s_waitcnt lgkmcnt(0)")
            p("s_cmp_lt_u32 s94, s90")
            p(f"s_cbranch_scc1 {lp}")
            p.label(sk)
        if not cfg.stamps: return
        stamp(8)
        p("s_mov_b64 exec, 1")
        p(f"s_lshl4_add_u32 s{S_T}, s2, s{S_WAVE}")
        p(f"s_lshl_b32 s{S_T}, s{S_T}, 7")
        p(f"s_add_u32 s{S_T}, s{S_T}, {WS_STAMP}")
        p(f"v_mov_b32 v1, s{S_T}")
        p("s_memtime s[68:69]")
        p("s_waitcnt lgkmcnt(0)")
        p(f"s_sub_u32 s{S_ST+29}, s68, s100")
        for i in range(30):
            p(f"v_mov_b32 v2, s{S_ST+i}")
            p(f"global_store_dword v1, v2, s[{S_WS}:{S_WS+1}] offset:{4*i}")
    def arrive(*offs):
        p("s_mov_b64 exec, 1")
        for off in offs: p.lds(f"ds_add_u32 v{V_C}, v{V_ONE} offset:{off}", "arr")
        p("s_mov_b64 exec, -1")
    def poll_issue(off):
        p.lds(f"ds_read_b32 v{V_POLL}, v{V_C} offset:{off}", "poll")
    def check(off, target, issued=False, sleep=0):
        ok = L("ok"); sp = L("spin")
        if issued:
            p.wait(lg="poll")
            p(f"v_readfirstlane_b32 s{S_X}, v{V_POLL}")
            p(f"s_cmp_ge_u32 s{S_X}, {target}")
            p(f"s_cbranch_scc1 {ok}")
        p.label(sp)
        if sleep: p(f"s_sleep {sleep}")
        p(f"ds_read_b32 v{V_POLL}, v{V_C} offset:{off}")
        p("s_waitcnt lgkmcnt(0)")
        p(f"v_readfirstlane_b32 s{S_X}, v{V_POLL}")
        p(f"s_sub_u32 s{S_SPIN}, s{S_SPIN}, 1")
        p("s_cbranch_scc1 L_end")
        p(f"s_cmp_ge_u32 s{S_X}, {target}")
        p(f"s_cbranch_scc0 {sp}")
        if not issued: p.lg.clear()
        p.label(ok)
    def srd(s, ka, n):
        if ka is not None: p(f"s_mov_b64 s[{s}:{s+1}], s[{KA+ka}:{KA+ka+1}]")
        p(f"s_mov_b32 s{s+2}, {n}")
        p(f"s_mov_b32 s{s+3}, {FRM}")
    def touch(vaddr, soff, mask):
        p(f"s_mov_b64 exec, {mask}" if mask < (1 << 31) else f"s_mov_b32 exec_hi, {hex(mask >> 32)}")
        p(f"buffer_load_dword v250, v{vaddr}, s[{S_W1}:{S_W1+3}], s{soff} offen")
        p("s_mov_b64 exec, -1")

    def ws_shift():
        if cfg.wsoff:
            p(f"s_add_u32 s{S_WS}, s{S_WS}, {cfg.wsoff << 20}")
            p(f"s_addc_u32 s{S_WS+1}, s{S_WS+1}, 0")
    def producer_index():
        if cfg.pl:
            p(f"s_lshr_b32 s{S_FB}, s2, 6")
            p(f"s_lshl2_add_u32 s{S_FB}, s{S_CP}, s{S_FB}")
            p(f"s_mul_i32 s{S_FB}, s{S_FB}, 3")
            p(f"s_and_b32 s{S_X}, s2, 7")
            p(f"s_sub_u32 s{S_X}, s{S_X}, 1")
            p(f"s_add_u32 s{S_FB}, s{S_FB}, s{S_X}")
            p(f"s_cmp_lt_u32 s{S_X}, 3")
            p(f"s_cselect_b32 s{S_FB}, s{S_FB}, 99")
            return
        p(f"s_lshr_b32 s{S_FB}, s2, 6")
        p(f"s_sub_u32 s{S_FB}, s{S_RG}, s{S_FB}")
        p(f"s_sub_u32 s{S_FB}, s{S_FB}, 1")
        p(f"s_and_b32 s{S_X}, s2, 0x37")
        p(f"s_sub_u32 s{S_X}, s{S_X}, 1")
        p(f"s_cmp_lt_u32 s{S_X}, 7")
        p(f"s_cselect_b32 s{S_FB}, s{S_FB}, 99")

    S_FL = 16
    FO = 128 if cfg.two else 0
    def flags_load(off):
        if cfg.sflag: p(f"s_load_dword s{S_FL}, s[{S_DBG}:{S_DBG+1}], {FO}")
        else: p(f"global_load_dword v11, v10, s[{S_DBG}:{S_DBG+1}] offset:{FO} sc1")
    def flags_test():
        if cfg.sflag: p("s_waitcnt lgkmcnt(0)")
        else:
            p("s_waitcnt vmcnt(0)")
            p(f"v_readfirstlane_b32 s{S_FL}, v11")
        p(f"s_cmp_ge_u32 s{S_FL}, 26")

    p(f".globl {NAME}\n.p2align 8\n.type {NAME},@function")
    p.label(NAME)
    p(f"s_load_dwordx16 s[{KA}:{KA+15}], s[0:1], 0")
    p(f"s_load_dwordx4 s[{S_OUT}:{S_OUT+3}], s[0:1], 64")
    p(f"s_load_dwordx2 s[{S_WS}:{S_WS+1}], s[0:1], 80")
    if cfg.probe or cfg.pst >= 0: p("s_memrealtime s[96:97]" if cfg.pst != 28 else "s_memrealtime s[96:97]")
    if cfg.pcyc: p("s_memtime s[98:99]")
    if cfg.stamps:
        p(f"s_memrealtime s[{S_ST}:{S_ST+1}]")
        p(f"s_memtime s[100:101]")
    p("v_lshrrev_b32 v1, 6, v0")
    p("v_and_b32 v0, 63, v0")
    p(f"v_readfirstlane_b32 s{S_WAVE}, v1")
    p("s_cmp_ge_u32 s2, 0x100")
    p("s_cbranch_scc1 L_end")
    p(f"s_and_b32 s3, s2, 7")
    if cfg.late0:
        p("s_cbranch_scc1 L_nl0")
        p("s_waitcnt lgkmcnt(0)")
        p(f"s_add_u32 s68, s{S_ST}, {cfg.late0}")
        p.label("L_l0")
        p("s_memrealtime s[98:99]"); p("s_waitcnt lgkmcnt(0)")
        p("s_cmp_lt_u32 s98, s68")
        p("s_cbranch_scc1 L_l0")
        p.label("L_nl0")
    p(f"s_lshr_b32 s{S_RG}, s2, 6")
    p(f"s_lshl3_add_u32 s{S_RG}, s{S_RG}, s3")
    p(f"s_bfe_u32 s{S_CP}, s2, 0x20004")
    p(f"v_lshlrev_b32 v{V_L}, 4, v0")
    p(f"v_lshlrev_b32 v160, 7, v0")
    srd(S_IDX, None, 4096*104)
    srd(S_W1, None, 832*1664)
    p("s_bitcmp1_b32 s2, 3")
    p("s_cbranch_scc1 L_cin")
    p(f"s_lshl3_add_u32 s3, s{S_RG}, s{S_WAVE}")
    p(f"s_mul_i32 s3, s3, 1664")
    p(f"s_mul_i32 s{S_W}, s{S_WAVE}, 1664")
    p(f"s_add_u32 m0, s{S_W}, {IDXO}")
    p(f"s_lshr_b32 s{S_X}, s2, 4")
    p(f"s_lshl3_add_u32 s{S_X}, s{S_X}, s{S_WAVE}")
    p(f"s_mul_i32 s{S_X}, s{S_X}, {cfg.dn*128}")
    p.wait0(lg=True)
    p(f"s_mov_b64 s[{S_IDX}:{S_IDX+1}], s[{KA}:{KA+1}]")
    p(f"s_mov_b64 s[{S_W1}:{S_W1+1}], s[{KA+8}:{KA+9}]")
    for n in range(2):
        if n: p("s_mov_b32 exec_hi, 0xff")
        p.vmem(f"buffer_load_dwordx4 v{V_L}, s[{S_IDX}:{S_IDX+3}], s3 offen offset:{1024*n}{' nt' if cfg.nti else ''} lds", "idx")
    if cfg.ctouch == 2:
        srd(S_WCIN, 4, 105456)
        p(f"s_lshr_b32 s3, s2, 4")
        p(f"s_lshl3_add_u32 s3, s3, s{S_WAVE}")
        p(f"s_mul_i32 s3, s3, 384")
        p(f"s_add_u32 s3, s3, {549*128}")
        p("s_mov_b64 exec, 7")
        p(f"buffer_load_dword v250, v160, s[{S_WCIN}:{S_WCIN+3}], s3 offen"); p.vm.issue("t")
    if not cfg.dtouch: p("s_mov_b64 exec, -1")
    if cfg.dtouch:
        touch(160, S_X, (1 << cfg.dn) - 1); p.vm.issue("t")
    p("s_branch L_dnn")
    dnn_vm = list(p.vm.q)

    p.vm.clear(); p.lg.clear()
    p.label("L_cin")
    if cfg.dbench: p("s_endpgm")
    S_C = S_WAVE
    W3A, TBL, VV, AQ, VF, GA, MB, VT, CRAW = 28, 32, 40, 56, 72, 80, 96, 170, 152
    S_J = S_W
    p(f"s_sub_u32 s{S_J}, s{S_WAVE}, 4")
    p("s_cbranch_scc1 L_pwave")
    p(f"s_lshl3_add_u32 s3, s{S_RG}, s{S_CP}")
    p(f"s_lshr_b32 s{S_FB}, s{S_J}, 1")
    p(f"s_lshl2_add_u32 s3, s{S_FB}, s3")
    p(f"s_and_b32 s{S_X}, s{S_J}, 1")
    p(f"s_lshl1_add_u32 s3, s3, s{S_X}")
    p(f"s_mul_i32 s3, s3, 832")
    p(f"s_mul_i32 s{S_X}, s{S_J}, 832")
    p(f"s_add_u32 m0, s{S_X}, {IX2}")
    p("s_mov_b32 exec_hi, 0xfffff")
    p.wait0(lg=True)
    p(f"s_mov_b64 s[{S_IDX}:{S_IDX+1}], s[{KA}:{KA+1}]")
    p(f"buffer_load_dwordx4 v{V_L}, s[{S_IDX}:{S_IDX+3}], s3 offen{' nt' if cfg.nti else ''} lds")
    if cfg.pfcode == 3:
        p(f"s_getpc_b64 s[{S_PC}:{S_PC+1}]")
        p.label("L_pc3")
        p(f"s_lshr_b32 s{S_X}, s2, 4")
        p(f"s_lshl2_add_u32 s{S_X}, s{S_X}, s{S_J}")
        p(f"s_mul_i32 s{S_X}, s{S_X}, 640")
        p(f"v_add_u32 v2, s{S_X}, v160")
        p(f"v_min_u32 v2, gather_table-L_pc3+4092, v2")
        p("s_mov_b64 exec, 31")
        p(f"global_load_dword v250, v2, s[{S_PC}:{S_PC+1}]")
    p("s_branch L_xwave")
    def cin_common():
        srd(S_WCO, None, 156)
        srd(S_WS, None, WS_END)
        p(f"s_mov_b32 s{S_SPIN}, 0x40000")
        p(f"v_lshlrev_b32 v{V_C}, 2, v0")
        p(f"v_add_u32 v{V_C}, {CO}, v{V_C}")
        p(f"v_mov_b32 v{V_ONE}, 1")
    p.label("L_pwave")
    cin_common()
    srd(S_WCIN, None, 105456)
    producer_index()
    if cfg.noprep: p(f"s_mov_b32 s{S_FB}, 99")
    p(f"s_getpc_b64 s[{S_PC}:{S_PC+1}]")
    p.label("L_pc")
    p.wait0(lg=True)
    p(f"s_mov_b64 s[{S_WCIN}:{S_WCIN+1}], s[{KA+4}:{KA+5}]")
    ws_shift()
    if cfg.ttouch: srd(S_TAB, 2, 6400000)
    p(f"s_mov_b64 s[{S_W1}:{S_W1+1}], s[{KA+8}:{KA+9}]")
    p(f"s_mov_b64 s[{S_WCO}:{S_WCO+1}], s[{KA+6}:{KA+7}]")
    p(f"s_load_dword s{S_BOUT}, s[{KA+14}:{KA+15}], 0")
    if cfg.mtouch:
        p(f"s_cmp_lt_u32 s{S_CP}, 2")
        p("s_cbranch_scc1 L_nomt")
        p(f"s_lshl1_add_u32 s{S_T}, s{S_RG}, s{S_CP}")
        p(f"s_lshl2_add_u32 s{S_T}, s{S_T}, s{S_C}")
        mn = -(-(10816 - 128*cfg.dn)//256)
        p(f"s_mul_i32 s{S_T+1}, s{S_T}, {mn*128}")
        p(f"s_add_u32 s{S_T+1}, s{S_T+1}, {(128*cfg.dn - 8*mn)*128}")
        touch(160, S_T+1, (1 << mn) - 1)
        p.label("L_nomt")
    p(f"s_cmp_ge_u32 s{S_FB}, 26")
    p("s_cbranch_scc1 L_cbar")
    if cfg.prio_prep: p(f"s_setprio {cfg.prio_prep}")
    p(f"s_mul_i32 s{S_T+2}, s{S_FB}, {BLK}")
    p(f"s_add_u32 s{S_T+2}, s{S_T+2}, {WS_W}")
    p(f"s_lshr_b32 s{S_T+3}, s{S_FB}, 1")
    p(f"s_lshl_b32 s{S_T+3}, s{S_T+3}, 2")
    p(f"s_load_dword s{S_T+4}, s[{S_WCO}:{S_WCO+1}], s{S_T+3}")
    def w3_dma():
        p(f"s_mul_i32 s{S_T}, s{S_C}, 9216")
        p(f"s_add_u32 s{S_T+1}, s{S_T}, 70304")
        p(f"s_add_u32 s{S_T}, s{S_T}, {P_W3}")
        for u in range(9):
            if u % 4 == 0:
                if u: p(f"s_add_u32 s{S_T+1}, s{S_T+1}, 0x1000")
                p(f"s_add_u32 m0, s{S_T}, {1024*u}")
                p("s_nop 0")
            p(f"buffer_load_dwordx4 v{V_L}, s[{S_WCIN}:{S_WCIN+3}], s{S_T+1} offen offset:{1024*(u % 4)} lds")
    if not cfg.w3last: w3_dma()
    p("v_and_b32 v2, 0x30, v0")
    p("v_bfe_u32 v1, v0, 2, 2")
    for q in range(4):
        p(f"v_xor_b32 v3, {q}, v1")
        p("v_lshl_add_u32 v3, v3, 28, v2")
        p(f"buffer_load_dwordx4 v[{AQ+4*q}:{AQ+4*q+3}], v3, s[{S_WCO}:{S_WCO+3}], 0 offen offset:104")
    p(f"s_cmp_ge_u32 s{S_C}, 2")
    p("s_cbranch_scc1 L_p23")
    p(f"s_lshl_b32 s{S_T}, s{S_C}, 11")
    p(f"s_add_u32 s{S_T}, s{S_T}, gather_table-L_pc")
    p(f"v_lshl_add_u32 v1, v0, 5, s{S_T}")
    p(f"global_load_dwordx4 v[{TBL}:{TBL+3}], v1, s[{S_PC}:{S_PC+1}]")
    p(f"global_load_dwordx4 v[{TBL+4}:{TBL+7}], v1, s[{S_PC}:{S_PC+1}] offset:16")
    p(f"s_cmp_lg_u32 s{S_C}, 0")
    p("s_cbranch_scc1 L_p1")
    p("v_lshrrev_b32 v3, 5, v0")
    p("v_mul_u32_u24 v3, 0x2a40, v3")
    p("v_and_b32 v2, 31, v0")
    p("v_lshl_add_u32 v3, v2, 1, v3")
    p(f"s_mul_i32 s{S_T}, s{S_FB}, 52")
    p(f"s_add_u32 s{S_T}, s{S_T}, 35152")
    for u in range(16):
        if u and u % 4 == 0:
            p(f"s_add_u32 s{S_T}, s{S_T}, {(4 if u != 8 else 12)*1352}")
        p(f"buffer_load_ushort v{VV+u}, v3, s[{S_WCIN}:{S_WCIN+3}], s{S_T} offen offset:{1352*(u % 4)}")
    p("s_branch L_pz")
    p.label("L_p1")
    p(f"s_mul_i32 s{S_T}, s{S_FB}, 1352")
    p(f"s_mov_b32 m0, {P_W1}")
    p("s_nop 0")
    for u in range(2):
        p(f"buffer_load_dwordx4 v{V_L}, s[{S_WCIN}:{S_WCIN+3}], s{S_T} offen offset:{1024*u} lds")
    p("s_branch L_pz")
    p.label("L_p23")
    p(f"s_cmp_lg_u32 s{S_C}, 3")
    p("s_cbranch_scc1 L_pz")
    p("v_lshlrev_b32 v1, 2, v0")
    p(f"buffer_load_dword v27, v1, s[{S_WCO}:{S_WCO+3}], 0 offen offset:52")
    if cfg.dwarm:
        p(f"s_cmp_lg_u32 s{S_FB}, 0")
        p("s_cbranch_scc1 L_nodw")
        p("v_mov_b32 v4, 0")
        p("s_mov_b64 exec, 1")
        p(f"global_atomic_add v4, v4, s[{S_DBG}:{S_DBG+1}] sc1")
        p("s_mov_b64 exec, -1")
        p.label("L_nodw")
    if cfg.wpre == 1:
        p("s_mov_b64 exec, 0x1fff")
        p(f"buffer_load_dword v250, v160, s[{S_WS}:{S_WS+3}], s{S_T+2} offen")
        p("s_mov_b64 exec, -1")
    for r in range(4): p(f"v_mov_b32 v{4+r}, -1")
    p(f"buffer_store_dwordx4 v[4:7], v{V_L}, s[{S_WS}:{S_WS+3}], s{S_T+2} offen sc1")
    p("s_mov_b32 exec_hi, 0xff")
    p(f"buffer_store_dwordx4 v[4:7], v{V_L}, s[{S_WS}:{S_WS+3}], s{S_T+2} offen offset:1024 sc1")
    p("s_mov_b32 exec_hi, -1")
    p.label("L_pz")
    if cfg.w3last: w3_dma()
    p("v_mov_b32 v2, 0")
    p("v_mov_b32 v3, 0")
    p(f"s_lshl_b32 s{S_T}, s{S_C}, 9")
    p(f"s_add_u32 s{S_T}, s{S_T}, {P_M3T}")
    p(f"v_lshl_add_u32 v1, v0, 3, s{S_T}")
    p("ds_write_b64 v1, v[2:3]")
    p(f"v_add_u32 v1, {P_Z - CO}, v{V_C}")
    p("ds_write_b32 v1, v2")
    p.label("L_cbar")
    if cfg.pfcode == 1:
        sk = L("nopf")
        p(f"s_cmp_lg_u32 s{S_C}, 2")
        p(f"s_cbranch_scc1 {sk}")
        p(f"s_lshr_b32 s{S_T}, s2, 4")
        p(f"s_mul_i32 s{S_T}, s{S_T}, 2560")
        p(f"v_add_u32 v2, s{S_T}, v160")
        p(f"v_min_u32 v2, gather_table-L_pc+4092, v2")
        p("s_mov_b64 exec, 0xfffff")
        p(f"global_load_dword v161, v2, s[{S_PC}:{S_PC+1}]")
        p("s_mov_b64 exec, -1")
        p.label(sk)
    p("v_mov_b32 v2, 0")
    p(f"ds_write_b32 v{V_C}, v2")
    p.wait0(lg=True)
    p("s_barrier")
    stamp(1)
    p(f"s_cmp_lt_u32 s{S_FB}, 26")
    p("s_cbranch_scc1 L_prep")
    p("s_branch L_setup")
    p.label("L_prep")
    p(f"s_cmp_lg_u32 s{S_C}, 2")
    p("s_cbranch_scc1 L_nmb")
    for r in range(4): p(f"v_mov_b32 v{4+r}, -1")
    nk = 10 if cfg.fast else 5
    p(f"s_mul_i32 s{S_T}, s{S_FB}, {1024*nk}")
    p(f"s_min_u32 s{S_T}, s{S_T}, {131072*nk//5 - 1024*nk}")
    for u in range(nk):
        if u and u % 4 == 0: p(f"s_add_u32 s{S_T}, s{S_T}, 0x1000")
        p(f"buffer_store_dwordx4 v[4:7], v{V_L}, s[{S_WS}:{S_WS+3}], s{S_T} offen offset:{1024*(u % 4)} sc1")
    p("s_nop 0")
    p.label("L_nmb")
    p(f"s_lshl_b32 s{S_T+3}, s{S_T+4}, 16")
    p(f"s_and_b32 s{S_T+4}, s{S_T+4}, 0xffff0000")
    p(f"s_bitcmp1_b32 s{S_FB}, 0")
    p(f"s_cselect_b32 s{S_T+3}, s{S_T+4}, s{S_T+3}")
    p(f"v_mov_b32 v1, {P_Z + 128}")
    p(f"v_mov_b32 v2, s{S_T+3}")
    p("ds_write_b32 v1, v2")
    p("v_bfe_u32 v1, v0, 2, 2")
    p("v_lshrrev_b32 v4, 4, v0")
    p("v_lshl_add_u32 v4, v4, 3, v1")
    p("v_add_u32 v5, 4, v4")
    p("v_min_u32 v4, 25, v4")
    p("v_min_u32 v5, 25, v5")
    p("v_and_b32 v6, 3, v0")
    p(f"s_mul_i32 s{S_T}, s{S_C}, 384")
    p(f"s_add_u32 s{S_T}, s{S_T}, {P_W3}")
    p(f"v_lshl_add_u32 v6, v6, 3, s{S_T}")
    p(f"s_movk_i32 s{S_T+1}, 1352")
    p(f"v_mad_u32_u24 v2, v4, s{S_T+1}, v6")
    p(f"v_mad_u32_u24 v3, v5, s{S_T+1}, v6")
    p(f"s_mul_i32 s{S_T}, s{S_C}, 192")
    p(f"s_movk_i32 s{S_T+1}, -1662")
    p(f"v_mov_b32 v7, {P_DUM}")
    for u in range(3):
        p(f"v_add_u32 v4, s{S_T}, v0")
        if u < 2: p(f"s_add_u32 s{S_T}, s{S_T}, 64")
        p("v_mul_u32_u24 v5, 2521, v4")
        p("v_lshrrev_b32 v5, 16, v5")
        p("v_cmp_gt_u32 vcc, 0x2a4, v4")
        p("v_lshlrev_b32 v4, 6, v4")
        p(f"v_mad_i32_i24 v4, v5, s{S_T+1}, v4")
        p(f"v_add_u32 v4, {P_M3T}, v4")
        p(f"v_cndmask_b32 v{8+u}, v7, v4, vcc")
    p("v_and_b32 v5, 31, v0")
    p("v_lshrrev_b32 v4, 5, v0")
    p("v_lshlrev_b32 v6, 6, v5")
    p("v_lshl_add_u32 v6, v4, 4, v6")
    p(f"v_add_u32 v28, {P_M3T}, v6")
    p("v_mul_u32_u24 v5, 0x90, v5")
    p("v_lshl_add_u32 v5, v4, 4, v5")
    p(f"v_add_u32 v29, {P_D1}, v5")
    p(f"s_cmp_eq_u32 s{S_C}, 0")
    p(f"s_cselect_b32 s{S_T}, 768, 0")
    p(f"v_add_u32 v30, s{S_T}, v{V_L}")
    p(f"v_mov_b32 v11, {PS}")
    p(f"v_add_u32 v4, {P_M3T + 26*64 - CO}, v{V_C}")
    p(f"s_cmp_lg_u32 s{S_C}, 3")
    p("s_cbranch_scc1 L_w0")
    assert cfg.w3last
    p("s_waitcnt vmcnt(9)")
    p("s_mov_b64 exec, 0x1fff")
    p("ds_write_b32 v4, v27")
    p("v_mov_b32 v4, 0")
    p("s_mov_b64 exec, 1")
    if cfg.two: p(f"global_atomic_add v27, v4, v{V_ONE}, s[{S_DBG}:{S_DBG+1}] sc0 sc1")
    else: p(f"global_atomic_add v4, v{V_ONE}, s[{S_DBG}:{S_DBG+1}] sc1")
    p("s_mov_b64 exec, -1")
    stamp(27)
    if cfg.pst == 12:
        p("s_waitcnt vmcnt(0)")
        stamp(12)
    p("s_waitcnt vmcnt(1)")
    p("s_branch L_w1")
    p.label("L_w0")
    p(f"s_cmp_lg_u32 s{S_C}, 2")
    p("s_cbranch_scc1 L_w2")
    p(f"s_waitcnt vmcnt({nk})")
    p("s_branch L_w1")
    p.label("L_w2")
    p.wait0(vm=True)
    p.label("L_w1")
    stamp(10)
    p("s_barrier")
    extra = []
    for u in range(8):
        extra.append(f"v_add_u32_sdwa v{GA+2*u}, v11, v{TBL+u} dst_sel:DWORD dst_unused:UNUSED_PAD src0_sel:DWORD src1_sel:WORD_0")
        extra.append(f"v_add_u32_sdwa v{GA+2*u+1}, v11, v{TBL+u} dst_sel:DWORD dst_unused:UNUSED_PAD src0_sel:DWORD src1_sel:WORD_1")
    for u in range(8): extra.append(f"v_lshl_or_b32 v{VF+u}, v{VV+2*u+1}, 16, v{VV+2*u}")
    def m3_mfma(U):
        u, q = divmod(U, 4)
        p.wait(lg=f"m{U}")
        cc = "0" if q == 0 else f"v[{12+4*u}:{15+4*u}]"
        p(f"v_mfma_f32_16x16x32_bf16 v[{12+4*u}:{15+4*u}], v[{AQ+4*q}:{AQ+4*q+3}], v[{MB+4*U}:{MB+4*U+3}], {cc}")
    for T in range(12):
        p.lds(f"ds_read_b64_tr_b16 v[{MB+4*T}:{MB+4*T+1}], v2 offset:{32*T}", f"m{T}")
        p.lds(f"ds_read_b64_tr_b16 v[{MB+4*T+2}:{MB+4*T+3}], v3 offset:{32*T}", f"m{T}")
        if T == 5:
            for _ in range(8): p(extra.pop(0))
        if T >= 6: m3_mfma(T - 6)
    for U in range(6, 12):
        m3_mfma(U)
        if U == 8:
            p("v_cvt_pk_bf16_f32 v24, v12, v12")
            p("ds_write_b16 v8, v24")
        else:
            for _ in range(2): p(extra.pop(0))
    p("v_cvt_pk_bf16_f32 v25, v16, v16")
    p("ds_write_b16 v9, v25")
    while extra: p(extra.pop(0))
    p(f"v_cvt_pk_bf16_f32 v26, v20, v20")
    p(f"ds_write_b16 v10, v26")
    p.wait0(lg=True)
    p("s_barrier")
    stamp(11)
    p(f"s_cmp_eq_u32 s{S_C}, 0")
    p("s_cbranch_scc1 L_pT")
    assert cfg.two
    p(f"s_cmp_eq_u32 s{S_C}, 1")
    p("s_cbranch_scc1 L_pX")
    p(f"s_cmp_eq_u32 s{S_C}, 3")
    p(f"s_cselect_b32 s{S_T}, 128, 64")
    p(f"v_mov_b32 v2, s{S_T}")
    p("v_mov_b32 v3, 26")
    p("s_mov_b64 exec, 1")
    p("s_cbranch_scc1 L_n2")
    p("v_mov_b32 v4, 4")
    p("s_waitcnt vmcnt(0)")
    p(f"global_atomic_add v27, v4, v{V_ONE}, s[{S_DBG}:{S_DBG+1}] sc0 sc1")
    p.label("L_n2")
    p("s_waitcnt vmcnt(0)")
    stamp(9)
    p(f"v_readfirstlane_b32 s{S_X}, v27")
    p(f"s_cmp_lt_u32 s{S_X}, 25")
    p("s_cbranch_scc1 L_pdx")
    p(f"global_store_dword v2, v3, s[{S_DBG}:{S_DBG+1}] sc1")
    p("s_branch L_pdx")
    p.label("L_pX")
    for u in range(16): p(f"v_mov_b32 v{MB+16+u}, 0")
    for u in range(16): p(f"ds_read_u16_d16_hi v{MB+16+u}, v{GA+u}")
    p("s_branch L_pst")
    p.label("L_pT")
    p("ds_read_b128 v[12:15], v28")
    p("ds_read_b128 v[16:19], v28 offset:32")
    p("s_waitcnt lgkmcnt(1)")
    p(f"v_mfma_f32_32x32x16_bf16 v[{MB}:{MB+15}], v[{VF}:{VF+3}], v[12:15], 0")
    p("s_waitcnt lgkmcnt(0)")
    p(f"v_mfma_f32_32x32x16_bf16 v[{MB}:{MB+15}], v[{VF+4}:{VF+7}], v[16:19], v[{MB}:{MB+15}]")
    p("s_nop 11")
    for a in range(4): p(f"ds_write_b128 v29, v[{MB+4*a}:{MB+4*a+3}] offset:{32*a}")
    for u in range(16): p(f"ds_read_b32 v{MB+16+u}, v{GA+u}")
    p.label("L_pst")
    p("s_mov_b32 exec_hi, 0xffff")
    for e in range(8):
        if e % 2 == 0: p(f"s_waitcnt lgkmcnt({12 - 2*e})")
        p(f"v_add_f32 v{MB+16+2*e}, v{MB+16+2*e}, v{MB+16+2*e+1}")
        if e % 2:
            p(f"v_cvt_pk_bf16_f32 v{4+e//2}, v{MB+14+2*e}, v{MB+16+2*e}")
            p(f"v_min_u32 v{4+e//2}, -2, v{4+e//2}")
    p(f"buffer_store_dwordx4 v[4:7], v30, s[{S_WS}:{S_WS+3}], s{S_T+2} offen sc1")
    if cfg.wpre == 2:
        p(f"buffer_load_dword v250, v30, s[{S_WS}:{S_WS+3}], s{S_T+2} offen sc1")
    p(f"s_cmp_lg_u32 s{S_C}, 0")
    p("s_cbranch_scc1 L_pdx")
    p("v_lshlrev_b32 v8, 2, v0")
    p("s_mov_b32 exec_hi, 0")
    p(f"buffer_store_dword v{V_ONE}, v8, s[{S_WS}:{S_WS+3}], s{S_T+2} offen offset:1536 sc1")
    p.label("L_pdx")
    p("s_mov_b64 exec, -1")
    p.label("L_pdone")
    stamp(21)
    p("s_branch L_setup")
    p.label("L_xwave")
    S_XM, S_TB = S_T+4, S_T+5
    p("s_mov_b64 exec, -1")
    cin_common()
    p(f"s_mov_b64 s[{S_W1}:{S_W1+1}], s[{KA+8}:{KA+9}]")
    p(f"s_mov_b64 s[{S_WCO}:{S_WCO+1}], s[{KA+6}:{KA+7}]")
    p(f"s_load_dword s{S_BOUT}, s[{KA+14}:{KA+15}], 0")
    ws_shift()
    srd(S_TAB, 2, 6400000)
    if cfg.etouch:
        p(f"s_cmp_eq_u32 s{S_CP}, 0")
        p("s_cbranch_scc1 L_noet")
        touch(160, S_X, (1 << 52) - 1)
        p("s_waitcnt vmcnt(1)")
        p.label("L_noet")
    p("v_lshrrev_b32 v1, 4, v0")
    p("v_and_b32 v2, 12, v0")
    p(f"s_mul_i32 s3, s{S_J}, 104")
    p(f"s_add_u32 s3, s3, {IX2}")
    p(f"v_add_u32 v2, s3, v2")
    p(f"s_movk_i32 s{S_X}, 416")
    p(f"v_mad_u32_u24 v3, v1, s{S_X}, v2")
    if cfg.bal:
        p(f"s_cmp_eq_u32 s{S_J}, 3")
        p(f"s_cselect_b32 s{S_X}, 104, 312")
        p(f"s_cselect_b32 s3, {13*104}, {20*104}")
        p(f"v_add_u32 v2, s3, v2")
        p(f"v_mad_u32_u24 v4, v1, s{S_X}, v2")
    else: p("v_add_u32 v4, 0x680, v3")
    p("v_and_b32 v1, 3, v0")
    p("v_lshlrev_b32 v5, 4, v1")
    p("v_bfe_u32 v1, v0, 3, 1")
    p("v_lshl_add_u32 v6, v1, 30, v5")
    p(f"s_mul_i32 s{S_XM}, s{S_J}, 7168")
    p(f"s_lshr_b32 s{S_TB}, s2, 4")
    p(f"s_lshl2_add_u32 s{S_TB}, s{S_TB}, s{S_J}")
    p(f"s_mul_i32 s{S_TB}, s{S_TB}, {46*128}")
    p(f"s_add_u32 s{S_TB}, s{S_TB}, {4992*128}")
    assert not cfg.etouch
    producer_index()
    p("s_waitcnt vmcnt(1)" if cfg.pfcode == 3 else "s_waitcnt vmcnt(0)")
    p("s_barrier")
    for u in range(2):
        for Q in range(0, 6, 2): p(f"ds_read2_b32 v[{VT+7*u+u+Q}:{VT+7*u+u+Q+1}], v{3+u} offset0:{4*Q} offset1:{4*Q+4}")
        p(f"ds_read_b32 v{VT+8*u+6}, v{3+u} offset:96")
    stamp(1)
    p.vm.clear()
    assert cfg.xwin < 14
    p.wait0(lg=True)
    go_done = False; g0_done = False
    for Q in range(7):
        for u in range(2):
            n = 2*Q + u
            if n == cfg.xbar and not cfg.noprep:
                p(f"s_cmp_ge_u32 s{S_FB}, 26")
                p("s_cbranch_scc1 L_nobar")
                p("s_barrier")
                p("s_barrier")
                p.label("L_nobar")
            if n == cfg.xstart and n: p.wait(vm="x0")
            if n >= cfg.xwin:
                p.wait(vm=f"x{n - cfg.xwin}")
                if n - cfg.xwin == 2*cfg.gon + 1: arrive(C_GO); go_done = True
                if cfg.pre and n - cfg.xwin == 2*(cfg.gon - cfg.pre) + 1: arrive(C_G0); g0_done = True
                if cfg.g0 and n - cfg.xwin == 2*(cfg.gon - cfg.g0) + 1:
                    p("s_and_b32 s3, s2, 7")
                    p("s_cbranch_scc1 L_ng0")
                    arrive(C_GO)
                    p.label("L_ng0")
            p(f"s_add_u32 m0, s{S_XM}, {XO + 4*7168*u + 1024*Q}")
            p(f"v_lshl_add_u32 v{VT+8*u+Q}, v{VT+8*u+Q}, 6, v{6 if Q == 6 else 5}")
            p.vmem(f"buffer_load_dwordx4 v{VT+8*u+Q}, s[{S_TAB}:{S_TAB+3}], 0 offen{' nt' if cfg.ntx else ''} lds", f"x{n}")
        for u, at in enumerate((cfg.lt0, cfg.lt1)):
            if at == Q and cfg.ltouch:
                touch(160, S_TB, (1 << 46) - 1); p.vm.issue("t")
                p(f"s_add_u32 s{S_TB}, s{S_TB}, {2944*128}")
    def late_touch():
        touch(160, S_TB, (1 << 46) - 1); p.vm.issue("t")
        p(f"s_add_u32 s{S_TB}, s{S_TB}, {2944*128}")
    if cfg.pre and not g0_done:
        p.wait(vm=f"x{2*(cfg.gon - cfg.pre)+1}")
        arrive(C_G0)
    if not go_done:
        p.wait(vm=f"x{2*cfg.gon+1}")
        arrive(C_GO)
    p.wait(vm="x13")
    arrive(C_XL)
    for at in (cfg.lt0, cfg.lt1):
        if at == 7 and cfg.ltouch: late_touch()
    if cfg.ltouch and cfg.lt1 == 8: p(f"s_mov_b32 s{S_FB}, s{S_TB}")
    stamp(6)

    p.label("L_setup")
    if cfg.stamps or cfg.pst == 28: p(f"s_mov_b32 s{S_ST+27}, 0")
    p(f"s_setprio {cfg.prio_prep}")
    p.vm.clear(); p.lg.clear()
    AX, AT, CI, X0 = 0, 16, 32, 48
    Z = [74, 78]; PT = 82; ZL = 90
    XA = {1: 98, -3: 99, -1: 100}; WA = 101; SM = [102, 103, 104, 105]; MBX = 106; VMB = 110; VBO = 111
    RING = 112; RES = RING + 4*cfg.R
    WT = 112
    POOL = [32, 36, 40, 44] + list(range(RES, 253, 4))
    assert cfg.NRES <= len(POOL)
    NR = 4
    S_N, S_MB, S_O = S_T+7, S_T+9, S_T+11
    S_NR = S_T + 12
    p(f"s_and_b32 s{S_T+3}, s{S_WAVE}, 3")
    p(f"s_lshl_b32 s{S_T+2}, s{S_T+3}, 2")
    p(f"s_lshl_b32 s{S_T}, s{S_T+3}, 8")
    p(f"s_mov_b32 s{S_N}, 4")
    p(f"s_add_u32 s{S_T+2}, s{S_T+2}, 3")
    p(f"s_cmp_lt_u32 s{S_WAVE}, 4")
    p("s_cbranch_scc1 L_rowp")
    p(f"s_add_u32 s{S_T}, s{S_T}, {4*7168}")
    if cfg.bal:
        p(f"s_mov_b32 s{S_N}, 3")
        p(f"s_mul_i32 s{S_T+2}, s{S_T+3}, 3")
        p(f"s_add_u32 s{S_T+2}, s{S_T+2}, 70")
    else: p(f"s_add_u32 s{S_T+2}, s{S_T+2}, 64")
    p.label("L_rowp")
    p(f"s_lshl4_add_u32 s{S_T+2}, s{S_CP}, s{S_T+2}")
    p.label("L_setup2")
    p(f"s_mov_b32 s{S_NR}, s{S_N}")
    p("v_and_b32 v1, 31, v0")
    p("v_lshrrev_b32 v2, 5, v0")
    p(f"v_lshl_add_u32 v3, v1, 1, s{S_T}")
    p(f"v_lshl_add_u32 v{XA[1]}, v2, 6, v3")
    p("v_mul_u32_u24 v4, 0xc0, v2")
    p(f"v_sub_u32 v{XA[-3]}, v3, v4")
    p("v_lshlrev_b32 v4, 6, v2")
    p(f"v_sub_u32 v{XA[-1]}, v3, v4")
    p("v_mul_u32_u24 v4, 0x210, v2")
    p("v_lshl_add_u32 v4, v1, 4, v4")
    p(f"v_add_u32 v{WA}, {WO}, v4")
    for r in range(26): p(f"v_mov_b32 v{X0+r}, 0")
    p(f"s_lshl_b32 s{S_BOUT}, s{S_BOUT}, 16")
    p("v_lshrrev_b32 v1, 3, v0")
    p("v_min_u32 v3, 1, v1")
    p("v_lshlrev_b32 v2, 9, v0")
    p(f"v_lshl_add_u32 v{VMB}, v3, 30, v2")
    p(f"s_lshl_b32 s{S_T+1}, s{S_RG}, 7")
    p(f"s_add_u32 s{S_T+1}, s{S_T+1}, s{S_T+2}")
    p(f"s_lshl_b32 s{S_O}, s{S_T+1}, 1")
    p(f"s_lshl_b32 s{S_T}, s{S_RG}, 10")
    p(f"s_add_u32 s{S_MB}, s{S_T+2}, s{S_T}")
    p(f"s_sub_u32 s{S_MB}, s{S_MB}, 3")
    p(f"s_lshl_b32 s{S_MB}, s{S_MB}, 2")
    p(f"s_add_u32 s{S_MB+1}, s{S_MB}, 0x20000")
    p(f"v_mov_b32 v{ZL+7}, 0")
    p(f"v_mov_b32 v{MBX+1}, 0")
    def x_read(r):
        p.lds(f"ds_read_u16_d16_hi v{X0+r}, v{XA[pi(r)-r]} offset:{1024*(r >> 2) + 64*(r & 3)}", f"x{r}")
    def z_ops(n):
        ops = []
        for e in range(4):
            t = PT + 2*(e % 4)
            (a, b), (c, d) = S[8*n + 2*e], S[8*n + 2*e + 1]
            ops.append(("v", f"v_mul_f32 v{t}, v{X0+a}, v{X0+b}", (a, b)))
            ops.append(("v", f"v_mul_f32 v{t+1}, v{X0+c}, v{X0+d}", (c, d)))
        cv = [("v", f"v_cvt_pk_bf16_f32 v{Z[n % 2]+e}, v{PT+2*e}, v{PT+2*e+1}", ()) for e in range(4)]
        return ops[0:4] + cv[0:1] + ops[4:6] + cv[1:2] + ops[6:8] + cv[2:4]
    def first_row(tag=''):
        check(C_XL, 4, sleep=cfg.idle_sleep)
        for r in range(26): x_read(r)
        for o in z_ops(0):
            p.wait(lg=tuple(f"x{r}" for r in o[2]))
            p(o[1])
        for d in XA.values(): p(f"v_add_u32 v{d}, 0x1c00, v{d}")
    if cfg.zfirst:
        first_row()
        p.wait0(lg=True)
    S_C4 = S_T + 14
    p(f"s_and_b32 s{S_C4}, s{S_WAVE}, 3")
    if not cfg.w8:
        p(f"s_cmp_ge_u32 s{S_WAVE}, 4")
        p("s_cbranch_scc1 L_xz")
    p("v_and_b32 v2, 7, v0")
    p(f"v_mul_u32_u24 v3, {BLK}, v1")
    p("v_lshl_add_u32 v3, v2, 4, v3")
    p("v_mul_u32_u24 v4, 0x210, v2")
    p(f"s_mul_i32 s{S_T}, s{S_C4}, {24*528}")
    p(f"s_add_u32 s{S_T}, s{S_T}, {WO}")
    p(f"v_add_u32 v4, s{S_T}, v4")
    p("v_lshl_add_u32 v5, v1, 4, v4")
    p("v_cmp_eq_u32 vcc, 1, v1")
    p("v_add_u32 v6, 48, v5")
    p("v_subrev_u32 v7, 48, v5")
    p("v_cndmask_b32 v6, v5, v6, vcc")
    p("v_cmp_eq_u32 vcc, 4, v1")
    p(f"v_mul_u32_u24 v8, {BLK}, v0")
    p("s_nop 0")
    p("v_cndmask_b32 v6, v6, v7, vcc")
    p(f"s_mul_i32 s{S_T}, s{S_C4}, 384")
    p(f"s_add_u32 s{S_T}, s{S_T}, {WS_W}")
    if cfg.w8: p(f"s_lshr_b32 s{S_T+1}, s{S_WAVE}, 2")
    else: p(f"s_and_b32 s{S_T+1}, s{S_CP}, {1 if cfg.wrot else 0}")
    p(f"s_mul_i32 s{S_T+2}, s{S_T+1}, 26624")
    for k in range(4):
        p(f"s_xor_b32 s{S_T+3+k}, s{S_T+2}, {26624*(k >> 1)}")
        p(f"s_add_u32 s{S_T+3+k}, s{S_T+3+k}, s{S_T}")
        if k & 1: p(f"s_add_u32 s{S_T+3+k}, s{S_T+3+k}, 13312")
    p(f"s_lshl_b32 s{S_T+2}, s{S_T+1}, 8")
    p(f"s_cmp_eq_u32 s{S_T+1}, 0")
    p("s_cselect_b64 vcc, -1, 0")
    p(f"v_add_u32 v12, s{S_T+2}, v5")
    p(f"s_xor_b32 s{S_T+2}, s{S_T+2}, 0x100")
    p("v_add_u32 v6, 0x180, v6")
    p("v_add_u32 v15, 0x80, v5")
    p(f"v_add_u32 v14, s{S_T+2}, v5")
    p("v_cndmask_b32 v13, v6, v15, vcc")
    p("v_cndmask_b32 v15, v15, v6, vcc")
    p("v_mov_b32 v10, 0")
    if cfg.pre:
        check(C_G0, 4, sleep=2)
        flags_load(192)
    check(C_GO, 4, sleep=2)
    stamp(22)
    p(f"s_mov_b32 s{S_T+13}, {WS_W}")
    if cfg.noprep: p("s_branch L_wload")
    if cfg.direct:
        if not cfg.pre:
            flags_load(192)
        flags_test()
        p("s_cbranch_scc1 L_wload")
        if cfg.stamps or cfg.pst == 28: p(f"s_add_u32 s{S_ST+27}, s{S_ST+27}, 100")
    p(f"s_cmp_lg_u32 s{S_C}, 0")
    p("s_cbranch_scc1 L_pw")
    p.label("L_probe")
    p(f"global_load_dword v11, v10, s[{S_DBG}:{S_DBG+1}] offset:{FO} sc1")
    p(f"buffer_load_dword v9, v8, s[{S_WS}:{S_WS+3}], s{S_T+13} offen offset:1536 sc1")
    p("s_waitcnt vmcnt(0)")
    p("v_cmp_gt_u32 vcc, 26, v11")
    p(f"v_cmp_eq_u32 s[{S_FL}:{S_FL+1}], -1, v9")
    p("s_nop 1")
    p(f"s_or_b64 vcc, vcc, s[{S_FL}:{S_FL+1}]")
    p("s_cmp_eq_u64 vcc, 0")
    p("s_cbranch_scc1 L_wload")
    p.label("L_retry")
    if cfg.stamps or cfg.pst == 28: p(f"s_add_u32 s{S_ST+27}, s{S_ST+27}, 1")
    p(f"s_sleep {cfg.poll_sleep}")
    p(f"s_sub_u32 s{S_SPIN}, s{S_SPIN}, 1")
    p("s_cbranch_scc0 L_probe")
    p("s_endpgm")
    p.label("L_pw")
    check(C_FLAG, 1, sleep=2)
    p("s_branch L_wl2")
    p.label("L_wload")
    arrive(C_FLAG)
    p.label("L_wl2")
    stamp(2)
    NJ = 2 if cfg.w8 else 4
    for J in range(NJ):
        for Fi in range(3):
            r = WT + 4*(3*J + Fi)
            p.vmem(f"buffer_load_dwordx4 v[{r}:{r+3}], v3, s[{S_WS}:{S_WS+3}], s{S_T+3+J} offen offset:{128*Fi}{'' if cfg.wplain else ' sc1'}", f"w{J}{Fi}")
    if cfg.zmid:
        p(f"s_cmp_lg_u32 s{S_C4}, 99")
        p("s_cbranch_scc0 L_zd")
        first_row("a")
        p(f"s_mov_b32 s{S_C4}, 99")
        p.label("L_zd")
    first = True
    for J in range(NJ):
        for Fi in range(3):
            r = WT + 4*(3*J + Fi)
            p.wait(vm=f"w{J}{Fi}")
            if (J, Fi) == (0, 0): stamp(12)
            if (J, Fi) == (NJ-1, 2): stamp(13)
            p(f"ds_write_b128 v{12+J}, v[{r}:{r+3}] offset:{4224*Fi}")
            if first: p(f"v_max_u32 v9, v{r}, v{r+1}")
            else: p(f"v_max3_u32 v9, v{r}, v{r+1}, v9")
            p(f"v_max3_u32 v9, v{r+2}, v{r+3}, v9")
            first = False
    p("v_cmp_eq_u32 vcc, -1, v9")
    p("s_nop 1")
    p("s_cmp_eq_u64 vcc, 0")
    p("s_cbranch_scc0 L_retry")
    if cfg.zmid and not cfg.w8: p("s_branch L_xz2")
    p.label("L_xz")
    if not cfg.zfirst and not (cfg.zmid and cfg.w8): first_row()
    p.label("L_xz2")
    p.wait0(lg=True)
    p("s_barrier")
    if cfg.ltouch and cfg.lt1 == 8:
        assert POOL[cfg.NRES-1] + 4 <= 250
        p(f"s_cmp_lt_u32 s{S_WAVE}, 4")
        p("s_cbranch_scc1 L_go")
        touch(160, S_FB, (1 << 46) - 1)
    p.label("L_go")
    p("s_setprio 0")
    if cfg.flip:
        p(f"s_cmp_lt_u32 s{S_WAVE}, 4")
        p("s_cbranch_scc1 L_prio")
        p(f"s_setprio 1")
        p.label("L_prio")
    stamp(3)
    order = []
    for n in range(22):
        order.append(("X", n)); order.append(("T", n))
        if n == 14: order.append(("T", 22))
        if n == 18: order.append(("T", 23))
    fr_of = lambda k, n: n if k == "X" else n + 24
    nn = 46 - cfg.NRES
    assert nn % cfg.R == 0
    nonres = [int((u + 0.5)*46/nn) for u in range(nn)]
    wreg = {}; rr = 0
    for k in range(46):
        if k in nonres: wreg[k] = RING + 4*(nonres.index(k) % cfg.R)
        else: wreg[k] = POOL[rr]; rr += 1
    def w_read(k):
        p.lds(f"ds_read_b128 v[{wreg[k]}:{wreg[k]+3}], v{WA} offset:{1056*fr_of(*order[k])}", f"w{k}")
    for k in range(46):
        if k not in nonres or nonres.index(k) < cfg.R: w_read(k)
    p.wait0(lg=True)
    stamp(5)
    def mfma(k):
        kind, n = order[k]
        zb = Z[n % 2] if n < 22 else ZL + 4*(n - 22)
        acc = AX if kind == "X" else AT
        cc = f"v[{acc}:{acc+15}]"
        if n == 0: cc = "0"
        return f"v_mfma_f32_32x32x16_bf16 v[{acc}:{acc+15}], v[{wreg[k]}:{wreg[k]+3}], v[{zb}:{zb+3}], {cc}"
    lin_ops = []
    for u in range(8):
        a = LIN[min(2*u, 12)]; b = LIN[min(2*u + 1, 12)]
        lin_ops.append(("v", f"v_cvt_pk_bf16_f32 v{ZL+u}, v{X0+a}, " + (f"v{X0+b}" if u < 6 else "1.0"), (a, b)))
    def body(emit_mb):
        groups = [z_ops(n) for n in range(1, 22)] + [z_ops(0)]
        groups[10] = lin_ops[:7] + groups[10]
        flat = [(g, o) for g, ops in enumerate(groups) for o in ops]
        lastuse = {}
        for i, (g, o) in enumerate(flat):
            if g < 21:
                for r in o[2]: lastuse[r] = i
        for r in range(26): lastuse.setdefault(r, -1)
        for g, ops in enumerate(groups):
            mf = [kk for kk in range(46) if order[kk] in (("X", g), ("T", g))]
            if g == 14: mf.append(order.index(("T", 22)))
            if g == 18: mf.append(order.index(("T", 23)))
            items = []
            base = sum(len(x) for x in groups[:g])
            if g == 0:
                for r in range(26):
                    if lastuse[r] == -1: items.append(("x", r))
            for i, o in enumerate(ops):
                items.append(o)
                for r in range(26):
                    if lastuse[r] == base + i: items.append(("x", r))
            if g == 21:
                pos = [0, 0]
            else:
                n_it = len(items)
                pos = [2 + (j*n_it)//len(mf) for j in range(len(mf))]
            j = 0
            for i, it in enumerate(items + [None]):
                while j < len(mf) and pos[j] <= i:
                    kk = mf[j]
                    if g == 21 and j == 0: p("s_nop 1")
                    p.wait(lg=f"w{kk}")
                    p(mfma(kk))
                    if kk in nonres:
                        w_read(nonres[(nonres.index(kk) + cfg.R) % nn])
                    j += 1
                if it is None: break
                if it[0] == "x": x_read(it[1])
                else:
                    p.wait(lg=tuple(f"x{r}" for r in it[2]))
                    p(it[1])
            if g == 15: emit_mb()
            if g == cfg.flipg and cfg.flip:
                sk = L("nfl")
                p(f"s_cmp_lg_u32 s{S_N}, {5 - cfg.flip}")
                p(f"s_cbranch_scc1 {sk}")
                p("s_setprio 0")
                p.label(sk)
        for k in range(NR - 1): p(f"v_mov_b32 v{SM[k]}, v{SM[k+1]}")
        for d in XA.values(): p(f"v_add_u32 v{d}, 0x1c00, v{d}")
        s0 = SM[NR-1]
        p(f"v_mul_f32 v{s0}, v{AX}, v{AT}")
        p(f"v_mul_f32 v{PT}, v{AX+1}, v{AT+1}")
        for r in range(2, 13):
            p(f"v_fmac_f32 v{s0 if r % 2 == 0 else PT}, v{AX+r}, v{AT+r}")
        p(f"s_sub_u32 s{S_N}, s{S_N}, 1")
        p(f"v_add_f32 v{s0}, v{s0}, v{PT}")
    def mb_loads(so=None):
        p(f"buffer_load_dwordx{NR} v[{MBX}:{MBX+NR-1}], v{VMB}, s[{S_WS}:{S_WS+3}], s{so or (S_MB+1 if cfg.fast else S_MB)} offen sc1")
    def emit_mb():
        sk = L("nomb"); l1 = L("mb1"); lp = L("mbf"); ok = L("mbk")
        p(f"s_cmp_gt_u32 s{S_N}, 2")
        p(f"s_cbranch_scc1 {sk}")
        p(f"s_cmp_eq_u32 s{S_N}, 1")
        p(f"s_cbranch_scc1 {l1}")
        p(f"global_load_dword v{MBX}, v{MBX+1}, s[{S_DBG}:{S_DBG+1}] offset:64 sc1")
        p(f"s_branch {sk}")
        p.label(lp)
        p(f"global_load_dword v{MBX}, v{MBX+1}, s[{S_DBG}:{S_DBG+1}] offset:64 sc1")
        p(f"s_sub_u32 s{S_SPIN}, s{S_SPIN}, 1")
        p("s_cbranch_scc1 L_end")
        p.label(l1)
        p("s_waitcnt vmcnt(0)")
        p(f"v_readfirstlane_b32 s{S_X}, v{MBX}")
        p(f"s_cmp_ge_u32 s{S_X}, 26")
        p(f"s_cbranch_scc0 {lp}")
        mb_loads()
        p.label(sk)
    save = p.L; p.L = []
    body(lambda: None)
    st1 = list(p.lg.q)
    p.L = save
    p(".p2align 3")
    p.label("L_row")
    body(emit_mb)
    assert st1 == p.lg.q
    if cfg.stamps in (1, 2):
        for i in range(3): p(f"s_mov_b32 s{S_ST+23+i}, s{S_ST+24+i}")
        stamp(26)
    if cfg.stamps == 4 or cfg.pst == 26:
        p(f"s_cmp_lg_u32 s{S_N}, 0")
        p("s_cbranch_scc1 L_ns4")
        stamp(26)
        p.label("L_ns4")
    if cfg.flip and cfg.flipg < 0:
        p(f"s_cmp_lg_u32 s{S_N}, {4 - cfg.flip}")
        p("s_cbranch_scc1 L_noflip")
        p("s_setprio 0")
        p.label("L_noflip")
    p(f"s_cmp_lg_u32 s{S_N}, 0")
    p("s_cbranch_scc1 L_row")
    p.label("L_mbw")
    p("s_waitcnt vmcnt(0)")
    if NR == 4:
        p(f"v_max3_u32 v1, v{MBX}, v{MBX+1}, v{MBX+2}")
        p(f"v_max_u32 v1, v1, v{MBX+3}")
    else: p(f"v_max_u32 v1, v{MBX}, v{MBX+1}")
    p("v_cmp_eq_u32 vcc, -1, v1")
    p("s_nop 1")
    p("s_cmp_eq_u64 vcc, 0")
    p("s_cbranch_scc1 L_mbok")
    if cfg.msleep: p(f"s_sleep {cfg.msleep}")
    if cfg.fast:
        p(f"s_add_u32 s{S_N}, s{S_N}, 1")
        p(f"s_and_b32 s{S_X}, s{S_N}, 7")
        p(f"s_cselect_b32 s{S_X}, s{S_MB+1}, s{S_MB}")
        mb_loads(S_X)
    else: mb_loads()
    p(f"s_sub_u32 s{S_SPIN}, s{S_SPIN}, 1")
    p("s_cbranch_scc0 L_mbw")
    p("s_endpgm")
    p.label("L_mbok")
    for k in range(NR): p(f"v_add_f32 v{SM[k]}, v{SM[k]}, v{MBX+k}")
    for ctl in ("quad_perm:[1,0,3,2] row_mask:0xf", "quad_perm:[2,3,0,1] row_mask:0xf", "row_half_mirror row_mask:0xf",
                "row_mirror row_mask:0xf", "row_bcast:15 row_mask:0xa", "row_bcast:31 row_mask:0xc"):
        if NR == 2: p("s_nop 0")
        for k in range(NR): p(f"v_add_f32_dpp v{SM[k]}, v{SM[k]}, v{SM[k]} {ctl} bank_mask:0xf")
    for k in range(NR): p(f"v_add_f32 v{SM[k]}, s{S_BOUT}, v{SM[k]}")
    p(f"v_cvt_pk_bf16_f32 v2, v{SM[0]}, v{SM[1]}")
    p(f"v_cvt_pk_bf16_f32 v3, v{SM[2]}, v{SM[3]}")
    p(f"v_mov_b32 v1, s{S_O}")
    p("s_mov_b32 exec_lo, 0")
    p("s_mov_b32 exec_hi, 0x80000000")
    if cfg.bal:
        p(f"s_cmp_eq_u32 s{S_NR}, 4")
        p("s_cbranch_scc1 L_st4")
        p(f"global_store_short_d16_hi v1, v3, s[{S_OUT}:{S_OUT+1}]")
        p(f"s_cmp_eq_u32 s{S_NR}, 1")
        p("s_cbranch_scc1 L_std")
        p(f"global_store_short v1, v3, s[{S_OUT}:{S_OUT+1}] offset:-2")
        p(f"global_store_short_d16_hi v1, v2, s[{S_OUT}:{S_OUT+1}] offset:-4")
        p("s_branch L_std")
        p.label("L_st4")
    p(f"global_store_dwordx2 v1, v[2:3], s[{S_OUT}:{S_OUT+1}] offset:-6" + ("", " sc1", " nt", " sc0 sc1")[cfg.ost])
    p.label("L_std")
    stamps_out()
    p.label("L_end")
    p("s_endpgm")

    p.vm.q = dnn_vm; p.lg.clear()
    p(".p2align 6")
    p.label("L_dnn")
    ACC = lambda t, q: 8*t + 4*q
    BF = lambda t: 56 + 4*t
    AR = lambda f, q: 84 + 8*(f % 2) + 4*q
    IDX = lambda f: 100 + f
    VO = lambda u: 128 + u
    V_B, V_A, V_CH, V_LANE, V_G8 = [130, 131, 132], [133, 134, 135], 136, 137, 138
    RAW = 140; RAW2 = 200
    S_SB, S_M0, S_AM = S_T+2, S_T+3, S_T+4
    if cfg.probe:
        p("s_cmp_ge_u32 s2, 8")
        p("s_cbranch_scc1 L_pr1")
        p("s_lshl_b32 s90, s2, 2")
        p("v_mov_b32 v1, s90")
        p("v_mov_b32 v2, s96")
        p(f"global_store_dword v1, v2, s[{S_DBG}:{S_DBG+1}] offset:8 sc1")
        p("s_waitcnt vmcnt(0)")
        p.label("L_pr1")
    srd(S_B1, 10, 1664)
    srd(S_TAB, 2, 6400000)
    srd(S_W2, 12, 1664)
    srd(S_WS, None, WS_END)
    ws_shift()
    if cfg.pxa >= 0:
        p("s_getreg_b32 s91, hwreg(HW_REG_XCC_ID)")
        p("s_and_b32 s91, s91, 15")
        p(f"s_cmp_lg_u32 s2, {cfg.pxa}")
        p("s_cbranch_scc1 L_pxa")
        p("v_mov_b32 v1, 0")
        p("v_mov_b32 v2, s91")
        p(f"global_store_dword v1, v2, s[{S_DBG}:{S_DBG+1}] offset:8 sc1")
        p("s_waitcnt vmcnt(0)")
        p.label("L_pxa")
    if cfg.plat:
        sr_, off = {1: (S_TAB, 3000320), 2: (S_W1, 1300096), 3: (S_WS, 4096), 5: (S_DBG+0, 0), 4: (S_TAB, 5000320)}[cfg.plat]
        p("s_waitcnt vmcnt(0)")
        p(f"v_mov_b32 v1, {off}")
        p(f"buffer_load_dword v2, v1, s[{sr_}:{sr_+3}], 0 offen offset:2048")
        p("s_waitcnt vmcnt(0)")
        p("s_lshl_b32 s90, s2, 7")
        p("s_memrealtime s[94:95]")
        p("s_waitcnt lgkmcnt(0)")
        p(f"buffer_load_dword v2, v1, s[{sr_}:{sr_+3}], s90 offen offset:4)".replace(")", ""))
        p("s_waitcnt vmcnt(0)")
        p("s_memrealtime s[92:93]")
        p("s_waitcnt lgkmcnt(0)")
        p("s_sub_u32 s92, s92, s94")
        p("s_mul_i32 s92, s92, 10")
        p("s_add_u32 s92, s92, s96")
    stamp(10)
    p(f"s_mov_b32 s{S_SPIN}, 0x40000")
    p(f"s_mul_i32 s{S_COL}, s{S_CP}, 416")
    S_M1, S_WR = S_T+5, S_T+6
    p(f"s_mov_b32 s{S_SB}, s{S_COL}")
    p(f"s_and_b32 s{S_WR}, s{S_WAVE}, 3")
    p(f"s_lshl_b32 s{S_T}, s{S_WAVE}, 1")
    p(f"s_sub_u32 s{S_T}, s{S_T}, 4")
    p(f"s_add_u32 s{S_T+1}, s{S_T}, 1")
    p(f"s_cmp_lt_u32 s{S_WAVE}, 4")
    p(f"s_cselect_b32 s{S_M0}, s{S_WAVE}, s{S_T}")
    p(f"s_cselect_b32 s{S_M1}, 12, s{S_T+1}")
    p(f"s_lshl_b32 s{S_M0}, s{S_M0}, 10")
    p(f"s_lshl_b32 s{S_M1}, s{S_M1}, 10")
    p(f"s_lshl_b32 s{S_AM}, s{S_WAVE}, 10")
    p(f"s_add_u32 s{S_AM}, s{S_AM}, {BSZ}")
    p(f"s_lshr_b32 s{S_T}, s{S_WAVE}, 2")
    p(f"s_mul_i32 s{S_T}, s{S_T}, 224")
    p(f"s_add_u32 s{S_COL}, s{S_COL}, s{S_T}")
    p(f"s_movk_i32 s{S_T+1}, 1248")
    p(f"s_movk_i32 s{S_T+7}, 6656")
    for u in range(2):
        p(f"v_add_u32 v3, s{(S_M0, S_M1)[u]}, v{V_L}")
        p("v_lshlrev_b32 v4, 4, v3")
        p("v_mul_hi_u32_u24 v4, 0x9d89e, v4")
        p("v_bfe_u32 v5, v4, 2, 1")
        p("v_bfe_i32 v6, v4, 3, 1")
        p("v_add_u32 v5, v5, v6")
        p(f"v_mad_i32_i24 v5, v5, s{S_T+7}, v3")
        p(f"v_mad_u32_u24 v{VO(u)}, v4, s{S_T+1}, v5")
    p("v_lshrrev_b32 v2, 2, v0")
    p(f"v_mul_u32_u24 v2, 104, v2")
    p(f"s_add_u32 s{S_W}, s{S_W}, {IDXO}")
    p(f"v_add_u32 v139, s{S_W}, v2")
    p("v_lshrrev_b32 v2, 5, v0")
    p("v_mul_u32_u24 v3, 3, v2")
    p("v_xor_b32 v3, v3, v0")
    p("v_and_b32 v3, 3, v3")
    p(f"v_lshlrev_b32 v{V_CH}, 4, v3")
    p.wait(vm="idx")
    stamp(1)
    if cfg.dbench:
        p("s_mov_b32 s3, 0")
        p.label("L_again")
    for m in range(6):
        p.lds(f"ds_read2_b64 v[{100+4*m}:{103+4*m}], v139 offset0:{2*m} offset1:{2*m+1}", f"ix{m}")
    p.lds("ds_read_b64 v[124:125], v139 offset:96", "ix6")
    def a_dma(f):
        p.wait(lg=f"ix{f >> 2}")
        p(f"s_add_u32 m0, s{S_AM}, {(f % RB)*SLOT}")
        p(f"v_lshl_add_u32 v{IDX(f)}, v{IDX(f)}, 6, v{V_CH}")
        p.vmem(f"buffer_load_dwordx4 v{IDX(f)}, s[{S_TAB}:{S_TAB+3}], 0 offen{' nt' if f < cfg.nta else ''} lds", f"F{f}")
    def b_dma(f, u, T):
        if u == 1:
            late_add = cfg.nonop and T == 6 and f
            if f and not late_add: p(f"s_add_u32 s{S_SB}, s{S_SB}, 53248")
            sk = L("np")
            if T != 6:
                if T == 0:
                    p(f"s_cmp_ge_u32 s{S_WAVE}, 4")
                    p(f"s_cselect_b32 s{S_X}, {f & 3}, s{S_WR}")
                    p(f"s_cmp_lg_u32 s{S_X}, {f & 3}")
                else: p(f"s_cmp_lg_u32 s{S_WR}, {f & 3}")
                p(f"s_cbranch_scc1 {sk}")
            p(f"s_add_u32 m0, s{S_M1}, {(f % RB)*SLOT}")
            p(f"s_add_u32 s{S_SB}, s{S_SB}, 53248" if late_add else "s_nop 0")
            p(f"buffer_load_dwordx4 v{VO(1)}, s[{S_W1}:{S_W1+3}], s{S_SB} offen lds")
            if T == 6: p.vm.issue(f"F{f}")
            else: p.label(sk)
        else:
            p(f"s_add_u32 m0, s{S_M0}, {(f % RB)*SLOT}")
            p("s_nop 0")
            p.vmem(f"buffer_load_dwordx4 v{VO(0)}, s[{S_W1}:{S_W1+3}], s{S_SB} offen lds", f"F{f}")
    def fill(f, T): a_dma(f); b_dma(f, 1, T); b_dma(f, 0, T)
    BWO = IDXO
    p(f"s_cmp_ge_u32 s{S_WAVE}, {0 if cfg.dbench else 2}")
    p("s_cbranch_scc1 L_nobw")
    p(f"s_mul_i32 s{S_X}, s{S_CP}, 416")
    p(f"s_cmp_eq_u32 s{S_WAVE}, 0")
    p(f"s_cselect_b64 s[{S_W2}:{S_W2+1}], s[{S_B1}:{S_B1+1}], s[{S_W2}:{S_W2+1}]")
    p(f"s_mov_b32 m0, s{S_W}")
    p("s_mov_b64 exec, 0xfffffff")
    p("s_waitcnt lgkmcnt(0)")
    p(f"buffer_load_dwordx4 v{V_L}, s[{S_W2}:{S_W2+3}], s{S_X} offen lds")
    p("s_mov_b64 exec, -1")
    p.label("L_nobw")
    if cfg.sw < 26:
        p(f"v_lshlrev_b32 v{V_C}, 2, v{V_LANE}")
        p(f"v_add_u32 v{V_C}, {IDXO + 2*1664}, v{V_C}")
        p(f"v_mov_b32 v{V_ONE}, 1")
        p(f"s_cmp_lg_u32 s{S_WAVE}, 2")
        p("s_cbranch_scc1 L_noz")
        p(f"v_mov_b32 v{V_POLL}, 0")
        p("s_waitcnt lgkmcnt(0)")
        p(f"ds_write_b32 v{V_C}, v{V_POLL}")
        p("s_waitcnt lgkmcnt(0)")
        p.label("L_noz")
    def lo(f): return (f % RB)//3, ((f % RB) % 3)*SLOT
    def b_read1(f, t, r2):
        k, off = lo(f)
        p.lds(f"ds_read_b64_tr_b16 v[{BF(t)+2*r2}:{BF(t)+2*r2+1}], v{V_B[k]} offset:{off + 32*t + 3328*r2}", f"b{f}_{t}")
    def a_read(f):
        k, off = lo(f)
        for q in range(2):
            p.lds(f"ds_read_b128 v[{AR(f, q)}:{AR(f, q)+3}], v{V_A[k]} offset:{off + 1024*q}", f"a{f}")
    q0 = list(p.vm.q)
    fill(0, 0)
    p("v_lshrrev_b32 v1, 4, v0")
    p(f"s_add_u32 s{S_T+1}, s{S_T}, {IDXO}")
    p(f"v_lshl_add_u32 v{V_G8}, v1, 3, s{S_T+1}")
    p("v_bfe_u32 v3, v0, 3, 1")
    p("v_mul_u32_u24 v3, 3, v3")
    p("v_xor_b32 v3, v3, v1")
    p("v_and_b32 v4, 15, v0")
    p("v_lshlrev_b32 v4, 6, v4")
    p("v_lshl_add_u32 v3, v3, 4, v4")
    p(f"s_and_b32 s{S_T+1}, s{S_WAVE}, 3")
    p(f"s_lshl_b32 s{S_T+1}, s{S_T+1}, 11")
    p(f"s_add_u32 s{S_T+1}, s{S_T+1}, {BSZ}")
    p(f"v_add_u32 v{V_A[0]}, s{S_T+1}, v3")
    p("v_bfe_u32 v3, v0, 2, 3")
    p("v_lshl_add_u32 v2, v2, 4, v3")
    p("v_mul_u32_u24 v2, 0x1a0, v2")
    p("v_and_b32 v3, 3, v0")
    p("v_lshl_add_u32 v2, v3, 3, v2")
    p(f"v_add_u32 v{V_B[0]}, s{S_T}, v2")
    for k in (1, 2):
        p(f"v_add_u32 v{V_A[k]}, {3*k*SLOT}, v{V_A[0]}")
        p(f"v_add_u32 v{V_B[k]}, {3*k*SLOT}, v{V_B[0]}")
    p(f"v_mov_b32 v{V_LANE}, v0")
    fill(1, 0)
    p(f"s_cmp_ge_u32 s{S_WAVE}, 4")
    p("s_cbranch_scc1 L_dnn6")
    W2R = lambda t, r: 170 + 4*t + r
    def w2_unpack():
        return [x for t in range(7) for h in range(2) for x in
                (f"v_lshlrev_b32 v{W2R(t,2*h)}, 16, v{RAW2+2*t+h}", f"v_and_b32 v{W2R(t,2*h+1)}, 0xffff0000, v{RAW2+2*t+h}")]
    vm0, lg0 = list(p.vm.q), list(p.lg.q)
    def dnn_main(T):
        p.vm.q, p.lg.q = q0 + ["F0"]*(9 - T) + ["F1"]*(9 - T), list(lg0)
        p.wait(vm="F0")
        p("s_barrier")
        stamp(12)
        for t in range(T):
            p.lds(f"ds_read_b64 v[{RAW+2*t}:{RAW+2*t+1}], v{V_G8} offset:{32*t}", "bias")
        a_read(0)
        for t in range(T):
            for r2 in range(2): b_read1(0, t, r2)
        p.wait(lg="bias")
        for t in range(T):
            for h in range(2):
                p(f"v_lshlrev_b32 v{ACC(t,0)+2*h}, 16, v{RAW+2*t+h}")
                p(f"v_and_b32 v{ACC(t,0)+2*h+1}, 0xffff0000, v{RAW+2*t+h}")
        for f in range(2, cfg.look): fill(f, T)
        p.wait(vm=tuple(f"F{k}" for k in range(cfg.barp + 1)))
        p("s_barrier")
        if T == 6 and cfg.prio_hi: p(f"s_setprio {cfg.prio_hi}")
        stamp(2)
        nxt = cfg.look
        w2ops = w2_unpack()
        free = -1; landed = cfg.barp
        for f in range(26):
            todo = []
            soft = f > cfg.sw and f <= 23
            top = f < cfg.early or (cfg.dpos == 4 and T == 6) or (cfg.dpos == 1 and T == 7)
            lim = (f - 1 if soft and not top else free) + RB
            nfill = 2 if (cfg.cmask >> f & 1 if cfg.cmask else cfg.catch0 <= f < cfg.catch0 + cfg.catch) else 1
            if f >= cfg.b2: nfill = (2 if (f % 2 == 0) == ((T == 6) == (cfg.dpos == 4)) else 0)
            for _ in range(nfill):
                if nxt < 26 and nxt <= lim:
                    todo += [(a_dma, (nxt,)), (b_dma, (nxt, 1, T)), (b_dma, (nxt, 0, T))]; nxt += 1
            if cfg.nodma and f >= 4:
                keep = []
                for fn, ar in todo:
                    if (fn is a_dma and cfg.nodma & 1) or (fn is b_dma and cfg.nodma & 2): continue
                    keep.append((fn, ar))
                todo[:] = keep
            n_it = len(todo)
            if f < cfg.early: at = [-1]*n_it
            elif cfg.dpos == 0: at = list(range(n_it))
            elif cfg.dpos == 1: at = [-1]*n_it if T == 7 else [T-1]*n_it
            elif cfg.dpos == 2: at = [(2*i + (T == 6)) if n_it <= 3 else i for i in range(n_it)]
            elif cfg.dpos == 3: at = [0]*n_it if T == 7 else [T-1]*n_it
            elif cfg.dpos == 4: at = [T-1]*n_it if T == 7 else [-1]*n_it
            elif cfg.dpos == 5: at = [i//(2 if n_it > 3 else 1) for i in range(n_it)] if T == 7 else [3 + i//(2 if n_it > 3 else 1) for i in range(n_it)]
            if soft and not top: at = [min(max(a, cfg.chk + i*(cfg.dpos in (0, 2))), T-1) for i, a in enumerate(at)]
            assert f == 25 or f + 1 <= landed
            def drain(t):
                while todo and at[0] <= t:
                    at.pop(0); fn, ar = todo.pop(0); fn(*ar)
            done_bar = [False]
            def end_sync():
                nonlocal free, landed
                done_bar[0] = True
                if f >= cfg.sw:
                    if f <= 22:
                        assert nxt > f + 3
                        p.wait(vm=tuple(f"F{k}" for k in range(f + 4)))
                        arrive(4*f)
                elif f <= cfg.lb and (f + 1) % cfg.barp == 0 and (f < cfg.b2 or f % 2):
                    last = min(f + 1 + cfg.barp + (f + 1 == cfg.sw or f + 1 >= cfg.b2), 25) if f < cfg.lb else 25
                    assert nxt > last
                    p.wait(vm=tuple(f"F{k}" for k in range(last + 1)))
                    if not cfg.nobar: p("s_barrier")
                    free = f; landed = last
            bp = (cfg.bp6 if T == 6 else cfg.bp7) if cfg.early <= f < cfg.lb else 0
            drain(-1)
            for t in range(T):
                p.wait(lg=(f"b{f}_{t}", f"a{f}"))
                b = f"v[{BF(t)}:{BF(t)+3}]"
                a0, a1 = ACC(t, 0), ACC(t, 1)
                c1 = a0 if f == 0 else a1
                p(f"v_mfma_f32_16x16x32_bf16 v[{a1}:{a1+3}], {b}, v[{AR(f,1)}:{AR(f,1)+3}], v[{c1}:{c1+3}]")
                if t and f < 25: b_read1(f+1, t-1, 1)
                elif t == 0 and f: b_read1(f, T-1, 1)
                p(f"v_mfma_f32_16x16x32_bf16 v[{a0}:{a0+3}], {b}, v[{AR(f,0)}:{AR(f,0)+3}], v[{a0}:{a0+3}]")
                if f < 25: b_read1(f+1, t, 0)
                if t == cfg.arp and f < 25: a_read(f + 1)
                if soft and t == cfg.chk - 2: poll_issue(4*(f-1))
                if soft and t == cfg.chk:
                    check(4*(f-1), 8, issued=True)
                    free = f - 1; landed = f + 2
                drain(t)
                if bp and t == T - 1 - bp:
                    assert not todo
                    p.wait(lg=tuple(f"b{f}_{k}" for k in range(T)))
                    end_sync()
                if f == 12 and t == 0 and cfg.tlbw:
                    p(f"v_mov_b32 v251, {WS_END - 4}")
                    p(f"buffer_load_dword v250, v251, s[{S_WS}:{S_WS+3}], 0 offen")
                if f == 21:
                    for tt in ([t] if t < T - 1 else range(t, 7)):
                        p.lds(f"ds_read_b64 v[{RAW2+2*tt}:{RAW2+2*tt+1}], v{V_G8} offset:{1664 + 32*tt}", "w2")
                if cfg.w2early and f in (23, 24):
                    if f == 23 and t == 0: p.wait(lg="w2")
                    for _ in range(3):
                        if w2ops: p(w2ops.pop(0))
            assert not todo
            if not done_bar[0]: end_sync()
            if f == cfg.lb and cfg.tailprio is not None and T == cfg.tailprio: p("s_setprio 1")
            if f % 4 == 0 and (not cfg.dbench or f in (8, 20)): stamp(14 + f//4)
        assert nxt == 26 and not (cfg.w2early and w2ops)
    dnn_main(7)
    p("s_branch L_gelu")
    p(".p2align 6")
    p.label("L_dnn6")
    dnn_main(6)
    p.label("L_gelu")
    if cfg.dbench:
        p("s_barrier")
        p(f"s_mul_i32 s{S_SB}, s{S_CP}, 416")
        p("s_add_u32 s3, s3, 1")
        p("s_cmp_lt_u32 s3, 2")
        p("s_cbranch_scc1 L_again")
    stamp(3)
    p("v_mov_b32 v98, 0")
    p(f"global_load_dword v99, v98, s[{S_DBG}:{S_DBG+1}] offset:64 sc1")
    if not cfg.w2early:
        p.wait0(vm=True)
        for x in w2_unpack(): p(x)
    k0 = -2.0*math.sqrt(2.0/math.pi)*math.log2(math.e)
    T1, T2, SUM, VC = 56, 64, 92, 72
    P = lambda a: f"v[{a}:{a+1}]"
    for r, c in enumerate((k0*0.044715, k0)):
        for h in range(2): p(f"v_mov_b32 v{VC+2*r+h}, {f2h(c)}")
    for r in range(4): p(f"v_mov_b32 v{SUM+r}, 0")
    for t in range(7):
        if t == 6:
            p(f"s_cmp_ge_u32 s{S_WAVE}, 4")
            p("s_cbranch_scc1 L_gelu6")
        x = ACC(t, 0)
        if cfg.pk:
            for r in range(0, 8, 2): p(f"v_pk_mul_f32 {P(T1+r)}, {P(x+r)}, {P(x+r)}")
            for r in range(0, 8, 2): p(f"v_pk_fma_f32 {P(T1+r)}, {P(T1+r)}, {P(VC)}, {P(VC+2)}")
            for r in range(0, 8, 2): p(f"v_pk_mul_f32 {P(T1+r)}, {P(T1+r)}, {P(x+r)}")
            for r in range(8): p(f"v_exp_f32 v{T1+r}, v{T1+r}")
            for r in range(0, 8, 2): p(f"v_pk_mul_f32 {P(T2+r)}, {P(x+r)}, {P(W2R(t, r & 3))}")
            for r in range(0, 8, 2): p(f"v_pk_add_f32 {P(T1+r)}, {P(T1+r)}, 1.0 op_sel_hi:[1,0]")
            for r in range(8): p(f"v_rcp_f32 v{T1+r}, v{T1+r}")
            for r in (0, 4, 2, 6): p(f"v_pk_fma_f32 {P(SUM+2*(r >> 2))}, {P(T1+r)}, {P(T2+r)}, {P(SUM+2*(r >> 2))}")
        else:
            for r in range(8): p(f"v_mul_f32 v{T1+r}, v{x+r}, v{x+r}")
            for r in range(8): p(f"v_fma_f32 v{T1+r}, v{T1+r}, v{VC}, v{VC+2}")
            for r in range(8): p(f"v_mul_f32 v{T1+r}, v{T1+r}, v{x+r}")
            for r in range(8): p(f"v_exp_f32 v{T1+r}, v{T1+r}")
            for r in range(8): p(f"v_mul_f32 v{T2+r}, v{x+r}, v{W2R(t, r & 3)}")
            for r in range(8): p(f"v_add_f32 v{T1+r}, 1.0, v{T1+r}")
            for r in range(8): p(f"v_rcp_f32 v{T1+r}, v{T1+r}")
            for r in range(8): p(f"v_fmac_f32 v{SUM+2*(r >> 2)+(r & 1)}, v{T1+r}, v{T2+r}")
    p.label("L_gelu6")
    p(f"v_add_f32 v{SUM}, v{SUM}, v{SUM+1}")
    p(f"v_add_f32 v{SUM+2}, v{SUM+2}, v{SUM+3}")
    p(f"v_and_b32 v84, 15, v{V_LANE}")
    p(f"v_lshrrev_b32 v85, 5, v{V_LANE}")
    p(f"v_permlane32_swap_b32 v{SUM}, v{SUM+2}")
    p("v_lshl_add_u32 v84, v85, 4, v84")
    p(f"v_add_f32 v{SUM}, v{SUM}, v{SUM+2}")
    p(f"v_bfe_u32 v85, v{V_LANE}, 4, 1")
    p(f"v_mov_b32 v{SUM+1}, v{SUM}")
    p("v_lshlrev_b32 v84, 2, v84")
    p("v_lshl_add_u32 v84, v85, 30, v84")
    p(f"v_permlane16_swap_b32 v{SUM}, v{SUM+1}")
    p(f"s_lshl2_add_u32 s{S_T}, s{S_RG}, s{S_CP}")
    p(f"v_add_f32 v{SUM}, v{SUM}, v{SUM+1}")
    p(f"s_lshl3_add_u32 s{S_T}, s{S_T}, s{S_WAVE}")
    p(f"s_lshl_b32 s{S_T}, s{S_T}, 7")
    p(f"v_min_u32 v{SUM}, -2, v{SUM}")
    if cfg.noprep or cfg.dbench: p("s_branch L_pub")
    p.label("L_dflag")
    p("s_waitcnt vmcnt(0)")
    p(f"v_readfirstlane_b32 s{S_X}, v99")
    p(f"s_cmp_ge_u32 s{S_X}, 26")
    p("s_cbranch_scc1 L_pub")
    p(f"global_load_dword v99, v98, s[{S_DBG}:{S_DBG+1}] offset:64 sc1")
    p("s_sleep 4")
    p(f"s_sub_u32 s{S_SPIN}, s{S_SPIN}, 1")
    p("s_cbranch_scc0 L_dflag")
    p("s_endpgm")
    p.label("L_pub")
    if cfg.fast:
        p(f"s_add_u32 s{S_T+1}, s{S_T}, 0x20000")
        p(f"buffer_store_dword v{SUM}, v84, s[{S_WS}:{S_WS+3}], s{S_T+1} offen")
    p(f"buffer_store_dword v{SUM}, v84, s[{S_WS}:{S_WS+3}], s{S_T} offen sc1")
    stamp(4)
    if cfg.probe:
        p("s_cmp_lg_u32 s2, 0")
        p("s_cbranch_scc1 L_pr2")
        p(f"v_lshlrev_b32 v1, 2, v{V_LANE}")
        p(f"global_load_dword v2, v1, s[{S_DBG}:{S_DBG+1}] offset:8 sc1")
        p("s_waitcnt vmcnt(0)")
        for i in range(8): p(f"v_readlane_b32 s{80+i}, v2, {i}")
        p("s_mov_b32 s90, s80"); p("s_mov_b32 s91, s80")
        for i in range(1, 8):
            p(f"s_min_u32 s90, s90, s{80+i}"); p(f"s_max_u32 s91, s91, s{80+i}")
        if cfg.probe == 1: p("s_sub_u32 s90, s91, s90")
        else: p(f"s_sub_u32 s90, s{80+cfg.probe-2}, s90")
        p("s_mul_i32 s90, s90, 20")
        p("s_min_u32 s90, s90, 20000")
        p("s_memrealtime s[92:93]"); p("s_waitcnt lgkmcnt(0)")
        p("s_add_u32 s92, s92, s90")
        p.label("L_pr")
        p("s_memrealtime s[94:95]"); p("s_waitcnt lgkmcnt(0)")
        p("s_cmp_lt_u32 s94, s92")
        p("s_cbranch_scc1 L_pr")
        p.label("L_pr2")
    stamps_out()
    p("s_endpgm")

    p(".p2align 6")
    p(".type gather_table,@object")
    p.label("gather_table")
    zt = P_Z - PS
    for role in range(2):
        for lane in range(64):
            s, half = lane >> 1, lane & 1
            ad = []
            for e in range(8):
                pr = slot_pair(s, half, e) if s < (24 if role == 0 else 22) else None
                at = (lambda j, k: P_D1 - PS + k*144 + j*4) if role == 0 else (lambda j, k: P_W1 - PS + (j*26 + k)*2)
                if role == 0 and (s, half, e) == (23, 0, 5): ad += [zt + 128, zt]
                elif pr is None: ad += [zt, zt]
                elif pr[1] is None: ad += [at(pr[0], 26), zt]
                elif pr[0] == pr[1] or norm(pr) == (24, 25): ad += [at(*pr), zt]
                else: ad += [at(pr[0], pr[1]), at(pr[1], pr[0])]
            p(".short " + ", ".join(str(a) for a in ad))
    p(".size gather_table, 4096")
    return p

def header():
    return """; xDeepFM (CIN + DNN) forward in one launch: 256 workgroups x 8 waves (S1).
; Kernarg: idx, table, ws_cin, w_cin_out, w_dnn1, b_dnn1, w_dnn2, b_out, out, debug, ws
;
; CIN, rewritten exactly: logit_cin = sum_d sum_i x1[i] * t[i], where x1 (layer 1) and
;   t[i] = w[i] + sum_j A[i,j] x[j] + sum_jk T[i,j,k] x[j] x[k]   (A, T fold layers 2, 3 and w_cin_out)
;   are quadratic forms of the 26 fields, evaluated as one GEMM over the 351 products x[j]*x[k].
; Workgroups with id bit 3 clear: DNN tile of 128 rows x 208 columns (LDS ring fed by LDS-DMA), GELU,
;   dot with w_dnn2, partial sums to a mailbox in d_ws.
; Workgroups with id bit 3 set: CIN for 32 rows; 26 of them first build the folded weights (one output
;   index each) and publish them in d_ws; they add the mailbox sums and write the output.
; Hand-offs: every word is first set to a marker (0xffffffff), a counter/flag pair in d_debug says that
;   the markers are in place, and a reader accepts a word only when it is no longer the marker.
; @launch grid=(256,1,1) block=(512,1,1) lds=%d
.amdgcn_target "amdgcn-amd-amdhsa--gfx950"
.text
""" % LDS_SIZE
def footer():
    nv = 256
    return f""".section .rodata,"a"
.p2align 6
.amdhsa_kernel {NAME}
  .amdhsa_next_free_vgpr {nv}
  .amdhsa_next_free_sgpr 102
  .amdhsa_accum_offset {nv}
  .amdhsa_group_segment_fixed_size 0
  .amdhsa_kernarg_size 88
  .amdhsa_user_sgpr_count 2
  .amdhsa_user_sgpr_kernarg_segment_ptr 1
  .amdhsa_system_sgpr_workgroup_id_x 1
  .amdhsa_float_denorm_mode_32 3
.end_amdhsa_kernel
"""
if __name__ == "__main__":
    out = sys.argv[1]
    for a in sys.argv[2:]:
        k, v = a.split("=")
        setattr(cfg, k, type(getattr(cfg, k))(int(v)))
    open(out, "w").write(header() + build().text() + footer())
```

```python
import sys, struct, math
from asmlib import *
from slots import *

NAME = "standalone__deep_cross_xdeepfm__recsys_kernel"
class Cfg:
    stamps = 0
    NRES = 38
    R = 2
    prio_prep = 3
    prio_hi = 0
    poll_sleep = 2
    idle_sleep = 1
    gon = 5
    bal = 0
    lt0 = 2
    lt1 = 5
    early = 6
    look = 3
    cmask = 0
    catch0 = 4
    catch = 4
    etouch = 0
    dtouch = 1
    dn = 20
    mtouch = 1
    ttouch = 0
    xwin = 4
    pfcode = 3
    pfn = 6
    pf0 = 0
    flipg = -1
    peel = 6
    flip = 3
    w2early = 1
    dpos = 4
    ltouch = 0
    pk = 1
    ctouch = 2
    wrot = 1
    direct = 1
    wpre = 0
    wplain = 0
    w8 = 0
    zmid = 1
    late0 = 0
    g0 = 0
    pl = 0
    noslow = 0
    fast = 1
    msleep = 0
    mper = 32
    fin2 = 0
    tlbo = 0
    tlbw = 0
    ost = 0
    zfirst = 0
    two = 1
    sflag = 1
    w3last = 1
    ntx = 0
    nta = 0
    nti = 0
    pre = 0
    pst = -1
    pcyc = 0
    pxa = -1
    plat = 0
    wsoff = 0
    dwarm = 0
    pwg = 0
    pwave = 0
    probe = 0
    dbench = 0
    nodma = 0
    nobar = 0
    lb = 21
    tailprio = 0
    bp6 = 0
    bp7 = 0
    nonop = 0
    b2 = 26
    sw = 26
    chk = 3
    barp = 1
    arp = 1
    noprep = 0
    clrpos = 1
    xstart = 0
    xbar = 4
    pdelay = 1
    hold = 0
cfg = Cfg()

LDS_SIZE = 163840
XO = 0
WO = 8*7168
PS = WO + 96*528
P_W3 = PS; P_M3T = PS + 36864; P_D1 = PS + 38912; P_W1 = PS + 43520; P_Z = PS + 45568; P_DUM = PS + 45824
CO = LDS_SIZE - 512
IX2 = PS + 46080
assert P_DUM + 256 <= CO
C_PA, C_PB, C_XL, C_FLAG, C_GO, C_G0, C_PI = 0, 4, 8, 12, 16, 20, 24
RB = 7
BSZ = 13312
SLOT = BSZ + 8192
IDXO = RB*SLOT
assert IDXO + 8*1664 == LDS_SIZE
MBOX = 0; WS_W = 262144; BLK = 1664; WS_END = WS_W + 26*BLK; WS_STAMP = 1 << 20
S_IDX, S_TAB, S_W1, S_WCIN, S_WCO, S_B1, S_W2, S_WS = 4, 8, 12, 16, 20, 24, 28, 32
S_OUT, S_DBG, S_BOUT = 36, 38, 40
S_WAVE, S_RG, S_CP, S_FB, S_COL, S_W = 42, 43, 44, 45, 46, 47
S_PC, S_SPIN, S_X = 48, 50, 51
KA = 52
S_T = 52
S_ST = 70
V_C, V_ONE, V_POLL, V_L = 162, 163, 164, 165
FRM = "0x20000"

def f2h(x): return "0x%08x" % struct.unpack("<I", struct.pack("<f", x))[0]

def build():
    p = Prog()
    lab = [0]
    def L(n):
        lab[0] += 1
        return f"L_{n}_{lab[0]}"
    def stamp(i):
        if cfg.pst == i:
            p("s_memtime s[92:93]" if cfg.pcyc else "s_memrealtime s[92:93]")
            p.wait0(lg=True)
        if cfg.stamps and (cfg.stamps < 3 or i == 8 or (cfg.stamps == 4 and i in (4, 26))):
            p(f"s_memrealtime s[68:69]" if cfg.stamps != 2 or i == 8 else "s_memtime s[68:69]")
            p.wait0(lg=True)
            if cfg.stamps != 2 or i == 8: p(f"s_mov_b32 s{S_ST+i}, s68")
            else:
                p("s_sub_u32 s68, s68, s100")
                p("s_lshr_b32 s68, s68, 4")
                p(f"s_add_u32 s{S_ST+i}, s68, s{S_ST}")
    def stamps_out():
        if cfg.pst >= 0:
            stamp(8)
            sk = L("npr"); lp = L("pr")
            p(f"s_cmp_lg_u32 s2, {cfg.pwg}")
            p(f"s_cbranch_scc1 {sk}")
            p(f"s_cmp_lg_u32 s{S_WAVE}, {cfg.pwave}")
            p(f"s_cbranch_scc1 {sk}")
            if cfg.pst == 0: p("s_mov_b32 s92, s96")
            if cfg.pst == 28:
                p(f"s_cmp_lg_u32 s{S_ST+27}, 0")
                p("s_cselect_b32 s92, 125, 0")
                p(f"s_cmp_ge_u32 s{S_ST+27}, 100")
                p("s_cselect_b32 s92, 250, s92")
                p(f"s_cmp_ge_u32 s{S_ST+27}, 101")
                p("s_cselect_b32 s92, 375, s92")
                p("s_add_u32 s92, s92, s96")
            if cfg.pxa >= 0:
                p("s_mov_b64 exec, -1")
                p("v_mov_b32 v1, 0")
                p(f"global_load_dword v2, v1, s[{S_DBG}:{S_DBG+1}] offset:8 sc1")
                p("s_waitcnt vmcnt(0)")
                p("v_readfirstlane_b32 s90, v2")
                p("s_cmp_lg_u32 s90, s91")
                p("s_cselect_b32 s90, 250, 0")
                p("s_add_u32 s92, s92, s90")
            if cfg.pcyc:
                p("s_sub_u32 s90, s92, s98")
                p("s_lshr_b32 s90, s90, 3")
            else:
                p("s_sub_u32 s90, s92, s96")
                p("s_mul_i32 s90, s90, 4")
            p("s_mov_b64 exec, 1")
            p("v_mov_b32 v1, 0")
            p("v_mov_b32 v2, s90")
            p(f"global_store_dword v1, v2, s[{S_DBG}:{S_DBG+1}] offset:4")
            p("s_add_u32 s90, s90, 2000")
            p("s_min_u32 s90, s90, 20000")
            p("s_add_u32 s90, s90, s96")
            p.label(lp)
            p("s_sleep 1")
            p("s_memrealtime s[94:95]"); p("s_waitcnt lgkmcnt(0)")
            p("s_cmp_lt_u32 s94, s90")
            p(f"s_cbranch_scc1 {lp}")
            p.label(sk)
        if not cfg.stamps: return
        stamp(8)
        p("s_mov_b64 exec, 1")
        p(f"s_lshl4_add_u32 s{S_T}, s2, s{S_WAVE}")
        p(f"s_lshl_b32 s{S_T}, s{S_T}, 7")
        p(f"s_add_u32 s{S_T}, s{S_T}, {WS_STAMP}")
        p(f"v_mov_b32 v1, s{S_T}")
        p("s_memtime s[68:69]")
        p("s_waitcnt lgkmcnt(0)")
        p(f"s_sub_u32 s{S_ST+29}, s68, s100")
        for i in range(30):
            p(f"v_mov_b32 v2, s{S_ST+i}")
            p(f"global_store_dword v1, v2, s[{S_WS}:{S_WS+1}] offset:{4*i}")
    def arrive(*offs):
        p("s_mov_b64 exec, 1")
        for off in offs: p.lds(f"ds_add_u32 v{V_C}, v{V_ONE} offset:{off}", "arr")
        p("s_mov_b64 exec, -1")
    def poll_issue(off):
        p.lds(f"ds_read_b32 v{V_POLL}, v{V_C} offset:{off}", "poll")
    def check(off, target, issued=False, sleep=0):
        ok = L("ok"); sp = L("spin")
        if issued:
            p.wait(lg="poll")
            p(f"v_readfirstlane_b32 s{S_X}, v{V_POLL}")
            p(f"s_cmp_ge_u32 s{S_X}, {target}")
            p(f"s_cbranch_scc1 {ok}")
        p.label(sp)
        if sleep: p(f"s_sleep {sleep}")
        p(f"ds_read_b32 v{V_POLL}, v{V_C} offset:{off}")
        p("s_waitcnt lgkmcnt(0)")
        p(f"v_readfirstlane_b32 s{S_X}, v{V_POLL}")
        p(f"s_sub_u32 s{S_SPIN}, s{S_SPIN}, 1")
        p("s_cbranch_scc1 L_end")
        p(f"s_cmp_ge_u32 s{S_X}, {target}")
        p(f"s_cbranch_scc0 {sp}")
        if not issued: p.lg.clear()
        p.label(ok)
    def srd(s, ka, n):
        if ka is not None: p(f"s_mov_b64 s[{s}:{s+1}], s[{KA+ka}:{KA+ka+1}]")
        p(f"s_mov_b32 s{s+2}, {n}")
        p(f"s_mov_b32 s{s+3}, {FRM}")
    def touch(vaddr, soff, mask):
        p(f"s_mov_b64 exec, {mask}" if mask < (1 << 31) else f"s_mov_b32 exec_hi, {hex(mask >> 32)}")
        p(f"buffer_load_dword v250, v{vaddr}, s[{S_W1}:{S_W1+3}], s{soff} offen")
        p("s_mov_b64 exec, -1")

    def ws_shift():
        if cfg.wsoff:
            p(f"s_add_u32 s{S_WS}, s{S_WS}, {cfg.wsoff << 20}")
            p(f"s_addc_u32 s{S_WS+1}, s{S_WS+1}, 0")
    def producer_index():
        if cfg.pl:
            p(f"s_lshr_b32 s{S_FB}, s2, 6")
            p(f"s_lshl2_add_u32 s{S_FB}, s{S_CP}, s{S_FB}")
            p(f"s_mul_i32 s{S_FB}, s{S_FB}, 3")
            p(f"s_and_b32 s{S_X}, s2, 7")
            p(f"s_sub_u32 s{S_X}, s{S_X}, 1")
            p(f"s_add_u32 s{S_FB}, s{S_FB}, s{S_X}")
            p(f"s_cmp_lt_u32 s{S_X}, 3")
            p(f"s_cselect_b32 s{S_FB}, s{S_FB}, 99")
            return
        p(f"s_lshr_b32 s{S_FB}, s2, 6")
        p(f"s_sub_u32 s{S_FB}, s{S_RG}, s{S_FB}")
        p(f"s_sub_u32 s{S_FB}, s{S_FB}, 1")
        p(f"s_and_b32 s{S_X}, s2, 0x37")
        p(f"s_sub_u32 s{S_X}, s{S_X}, 1")
        p(f"s_cmp_lt_u32 s{S_X}, 7")
        p(f"s_cselect_b32 s{S_FB}, s{S_FB}, 99")

    S_FL = 16
    FO = 128 if cfg.two else 0
    def flags_load(off):
        if cfg.sflag: p(f"s_load_dword s{S_FL}, s[{S_DBG}:{S_DBG+1}], {FO}")
        else: p(f"global_load_dword v11, v10, s[{S_DBG}:{S_DBG+1}] offset:{FO} sc1")
    def flags_test():
        if cfg.sflag: p("s_waitcnt lgkmcnt(0)")
        else:
            p("s_waitcnt vmcnt(0)")
            p(f"v_readfirstlane_b32 s{S_FL}, v11")
        p(f"s_cmp_ge_u32 s{S_FL}, 26")

    p(f".globl {NAME}\n.p2align 8\n.type {NAME},@function")
    p.label(NAME)
    p(f"s_load_dwordx16 s[{KA}:{KA+15}], s[0:1], 0")
    p(f"s_load_dwordx4 s[{S_OUT}:{S_OUT+3}], s[0:1], 64")
    p(f"s_load_dwordx2 s[{S_WS}:{S_WS+1}], s[0:1], 80")
    if cfg.probe or cfg.pst >= 0: p("s_memrealtime s[96:97]" if cfg.pst != 28 else "s_memrealtime s[96:97]")
    if cfg.pcyc: p("s_memtime s[98:99]")
    if cfg.stamps:
        p(f"s_memrealtime s[{S_ST}:{S_ST+1}]")
        p(f"s_memtime s[100:101]")
    p("v_lshrrev_b32 v1, 6, v0")
    p("v_and_b32 v0, 63, v0")
    p(f"v_readfirstlane_b32 s{S_WAVE}, v1")
    p("s_cmp_ge_u32 s2, 0x100")
    p("s_cbranch_scc1 L_end")
    p(f"s_and_b32 s3, s2, 7")
    if cfg.late0:
        p("s_cbranch_scc1 L_nl0")
        p("s_waitcnt lgkmcnt(0)")
        p(f"s_add_u32 s68, s{S_ST}, {cfg.late0}")
        p.label("L_l0")
        p("s_memrealtime s[98:99]"); p("s_waitcnt lgkmcnt(0)")
        p("s_cmp_lt_u32 s98, s68")
        p("s_cbranch_scc1 L_l0")
        p.label("L_nl0")
    p(f"s_lshr_b32 s{S_RG}, s2, 6")
    p(f"s_lshl3_add_u32 s{S_RG}, s{S_RG}, s3")
    p(f"s_bfe_u32 s{S_CP}, s2, 0x20004")
    p(f"v_lshlrev_b32 v{V_L}, 4, v0")
    p(f"v_lshlrev_b32 v160, 7, v0")
    srd(S_IDX, None, 4096*104)
    srd(S_W1, None, 832*1664)
    p("s_bitcmp1_b32 s2, 3")
    p("s_cbranch_scc1 L_cin")
    p(f"s_lshl3_add_u32 s3, s{S_RG}, s{S_WAVE}")
    p(f"s_mul_i32 s3, s3, 1664")
    p(f"s_mul_i32 s{S_W}, s{S_WAVE}, 1664")
    p(f"s_add_u32 m0, s{S_W}, {IDXO}")
    p(f"s_lshr_b32 s{S_X}, s2, 4")
    p(f"s_lshl3_add_u32 s{S_X}, s{S_X}, s{S_WAVE}")
    p(f"s_mul_i32 s{S_X}, s{S_X}, {cfg.dn*128}")
    p.wait0(lg=True)
    p(f"s_mov_b64 s[{S_IDX}:{S_IDX+1}], s[{KA}:{KA+1}]")
    p(f"s_mov_b64 s[{S_W1}:{S_W1+1}], s[{KA+8}:{KA+9}]")
    for n in range(2):
        if n: p("s_mov_b32 exec_hi, 0xff")
        p.vmem(f"buffer_load_dwordx4 v{V_L}, s[{S_IDX}:{S_IDX+3}], s3 offen offset:{1024*n}{' nt' if cfg.nti else ''} lds", "idx")
    if cfg.ctouch == 2:
        srd(S_WCIN, 4, 105456)
        p(f"s_lshr_b32 s3, s2, 4")
        p(f"s_lshl3_add_u32 s3, s3, s{S_WAVE}")
        p(f"s_mul_i32 s3, s3, 384")
        p(f"s_add_u32 s3, s3, {549*128}")
        p("s_mov_b64 exec, 7")
        p(f"buffer_load_dword v250, v160, s[{S_WCIN}:{S_WCIN+3}], s3 offen"); p.vm.issue("t")
    if not cfg.dtouch: p("s_mov_b64 exec, -1")
    if cfg.dtouch:
        touch(160, S_X, (1 << cfg.dn) - 1); p.vm.issue("t")
    p("s_branch L_dnn")
    dnn_vm = list(p.vm.q)

    p.vm.clear(); p.lg.clear()
    p.label("L_cin")
    if cfg.dbench: p("s_endpgm")
    S_C = S_WAVE
    W3A, TBL, VV, AQ, VF, GA, MB, VT, CRAW = 28, 32, 40, 56, 72, 80, 96, 170, 152
    S_J = S_W
    p(f"s_sub_u32 s{S_J}, s{S_WAVE}, 4")
    p("s_cbranch_scc1 L_pwave")
    p(f"s_lshl3_add_u32 s3, s{S_RG}, s{S_CP}")
    p(f"s_lshr_b32 s{S_FB}, s{S_J}, 1")
    p(f"s_lshl2_add_u32 s3, s{S_FB}, s3")
    p(f"s_and_b32 s{S_X}, s{S_J}, 1")
    p(f"s_lshl1_add_u32 s3, s3, s{S_X}")
    p(f"s_mul_i32 s3, s3, 832")
    p(f"s_mul_i32 s{S_X}, s{S_J}, 832")
    p(f"s_add_u32 m0, s{S_X}, {IX2}")
    p("s_mov_b32 exec_hi, 0xfffff")
    p.wait0(lg=True)
    p(f"s_mov_b64 s[{S_IDX}:{S_IDX+1}], s[{KA}:{KA+1}]")
    p(f"buffer_load_dwordx4 v{V_L}, s[{S_IDX}:{S_IDX+3}], s3 offen{' nt' if cfg.nti else ''} lds")
    if cfg.pfcode == 3:
        p(f"s_getpc_b64 s[{S_PC}:{S_PC+1}]")
        p.label("L_pc3")
        p(f"s_lshr_b32 s{S_X}, s2, 4")
        p(f"s_lshl2_add_u32 s{S_X}, s{S_X}, s{S_J}")
        p(f"s_mul_i32 s{S_X}, s{S_X}, 640")
        p(f"v_add_u32 v2, s{S_X}, v160")
        p(f"v_min_u32 v2, gather_table-L_pc3+4092, v2")
        p("s_mov_b64 exec, 31")
        p(f"global_load_dword v250, v2, s[{S_PC}:{S_PC+1}]")
    p("s_branch L_xwave")
    def cin_common():
        srd(S_WCO, None, 156)
        srd(S_WS, None, WS_END)
        p(f"s_mov_b32 s{S_SPIN}, 0x40000")
        p(f"v_lshlrev_b32 v{V_C}, 2, v0")
        p(f"v_add_u32 v{V_C}, {CO}, v{V_C}")
        p(f"v_mov_b32 v{V_ONE}, 1")
    p.label("L_pwave")
    cin_common()
    srd(S_WCIN, None, 105456)
    producer_index()
    if cfg.noprep: p(f"s_mov_b32 s{S_FB}, 99")
    p(f"s_getpc_b64 s[{S_PC}:{S_PC+1}]")
    p.label("L_pc")
    p.wait0(lg=True)
    p(f"s_mov_b64 s[{S_WCIN}:{S_WCIN+1}], s[{KA+4}:{KA+5}]")
    ws_shift()
    if cfg.ttouch: srd(S_TAB, 2, 6400000)
    p(f"s_mov_b64 s[{S_W1}:{S_W1+1}], s[{KA+8}:{KA+9}]")
    p(f"s_mov_b64 s[{S_WCO}:{S_WCO+1}], s[{KA+6}:{KA+7}]")
    p(f"s_load_dword s{S_BOUT}, s[{KA+14}:{KA+15}], 0")
    if cfg.mtouch:
        p(f"s_cmp_lt_u32 s{S_CP}, 2")
        p("s_cbranch_scc1 L_nomt")
        p(f"s_lshl1_add_u32 s{S_T}, s{S_RG}, s{S_CP}")
        p(f"s_lshl2_add_u32 s{S_T}, s{S_T}, s{S_C}")
        mn = -(-(10816 - 128*cfg.dn)//256)
        p(f"s_mul_i32 s{S_T+1}, s{S_T}, {mn*128}")
        p(f"s_add_u32 s{S_T+1}, s{S_T+1}, {(128*cfg.dn - 8*mn)*128}")
        touch(160, S_T+1, (1 << mn) - 1)
        p.label("L_nomt")
    p(f"s_cmp_ge_u32 s{S_FB}, 26")
    p("s_cbranch_scc1 L_cbar")
    if cfg.prio_prep: p(f"s_setprio {cfg.prio_prep}")
    p(f"s_mul_i32 s{S_T+2}, s{S_FB}, {BLK}")
    p(f"s_add_u32 s{S_T+2}, s{S_T+2}, {WS_W}")
    p(f"s_lshr_b32 s{S_T+3}, s{S_FB}, 1")
    p(f"s_lshl_b32 s{S_T+3}, s{S_T+3}, 2")
    p(f"s_load_dword s{S_T+4}, s[{S_WCO}:{S_WCO+1}], s{S_T+3}")
    def w3_dma():
        p(f"s_mul_i32 s{S_T}, s{S_C}, 9216")
        p(f"s_add_u32 s{S_T+1}, s{S_T}, 70304")
        p(f"s_add_u32 s{S_T}, s{S_T}, {P_W3}")
        for u in range(9):
            if u % 4 == 0:
                if u: p(f"s_add_u32 s{S_T+1}, s{S_T+1}, 0x1000")
                p(f"s_add_u32 m0, s{S_T}, {1024*u}")
                p("s_nop 0")
            p(f"buffer_load_dwordx4 v{V_L}, s[{S_WCIN}:{S_WCIN+3}], s{S_T+1} offen offset:{1024*(u % 4)} lds")
    if not cfg.w3last: w3_dma()
    p("v_and_b32 v2, 0x30, v0")
    p("v_bfe_u32 v1, v0, 2, 2")
    for q in range(4):
        p(f"v_xor_b32 v3, {q}, v1")
        p("v_lshl_add_u32 v3, v3, 28, v2")
        p(f"buffer_load_dwordx4 v[{AQ+4*q}:{AQ+4*q+3}], v3, s[{S_WCO}:{S_WCO+3}], 0 offen offset:104")
    p(f"s_cmp_ge_u32 s{S_C}, 2")
    p("s_cbranch_scc1 L_p23")
    p(f"s_lshl_b32 s{S_T}, s{S_C}, 11")
    p(f"s_add_u32 s{S_T}, s{S_T}, gather_table-L_pc")
    p(f"v_lshl_add_u32 v1, v0, 5, s{S_T}")
    p(f"global_load_dwordx4 v[{TBL}:{TBL+3}], v1, s[{S_PC}:{S_PC+1}]")
    p(f"global_load_dwordx4 v[{TBL+4}:{TBL+7}], v1, s[{S_PC}:{S_PC+1}] offset:16")
    p(f"s_cmp_lg_u32 s{S_C}, 0")
    p("s_cbranch_scc1 L_p1")
    p("v_lshrrev_b32 v3, 5, v0")
    p("v_mul_u32_u24 v3, 0x2a40, v3")
    p("v_and_b32 v2, 31, v0")
    p("v_lshl_add_u32 v3, v2, 1, v3")
    p(f"s_mul_i32 s{S_T}, s{S_FB}, 52")
    p(f"s_add_u32 s{S_T}, s{S_T}, 35152")
    for u in range(16):
        if u and u % 4 == 0:
            p(f"s_add_u32 s{S_T}, s{S_T}, {(4 if u != 8 else 12)*1352}")
        p(f"buffer_load_ushort v{VV+u}, v3, s[{S_WCIN}:{S_WCIN+3}], s{S_T} offen offset:{1352*(u % 4)}")
    p("s_branch L_pz")
    p.label("L_p1")
    p(f"s_mul_i32 s{S_T}, s{S_FB}, 1352")
    p(f"s_mov_b32 m0, {P_W1}")
    p("s_nop 0")
    for u in range(2):
        p(f"buffer_load_dwordx4 v{V_L}, s[{S_WCIN}:{S_WCIN+3}], s{S_T} offen offset:{1024*u} lds")
    p("s_branch L_pz")
    p.label("L_p23")
    p(f"s_cmp_lg_u32 s{S_C}, 3")
    p("s_cbranch_scc1 L_pz")
    p("v_lshlrev_b32 v1, 2, v0")
    p(f"buffer_load_dword v27, v1, s[{S_WCO}:{S_WCO+3}], 0 offen offset:52")
    if cfg.dwarm:
        p(f"s_cmp_lg_u32 s{S_FB}, 0")
        p("s_cbranch_scc1 L_nodw")
        p("v_mov_b32 v4, 0")
        p("s_mov_b64 exec, 1")
        p(f"global_atomic_add v4, v4, s[{S_DBG}:{S_DBG+1}] sc1")
        p("s_mov_b64 exec, -1")
        p.label("L_nodw")
    if cfg.wpre == 1:
        p("s_mov_b64 exec, 0x1fff")
        p(f"buffer_load_dword v250, v160, s[{S_WS}:{S_WS+3}], s{S_T+2} offen")
        p("s_mov_b64 exec, -1")
    for r in range(4): p(f"v_mov_b32 v{4+r}, -1")
    p(f"buffer_store_dwordx4 v[4:7], v{V_L}, s[{S_WS}:{S_WS+3}], s{S_T+2} offen sc1")
    p("s_mov_b32 exec_hi, 0xff")
    p(f"buffer_store_dwordx4 v[4:7], v{V_L}, s[{S_WS}:{S_WS+3}], s{S_T+2} offen offset:1024 sc1")
    p("s_mov_b32 exec_hi, -1")
    p.label("L_pz")
    if cfg.w3last: w3_dma()
    p("v_mov_b32 v2, 0")
    p("v_mov_b32 v3, 0")
    p(f"s_lshl_b32 s{S_T}, s{S_C}, 9")
    p(f"s_add_u32 s{S_T}, s{S_T}, {P_M3T}")
    p(f"v_lshl_add_u32 v1, v0, 3, s{S_T}")
    p("ds_write_b64 v1, v[2:3]")
    p(f"v_add_u32 v1, {P_Z - CO}, v{V_C}")
    p("ds_write_b32 v1, v2")
    p.label("L_cbar")
    if cfg.pfcode == 1:
        sk = L("nopf")
        p(f"s_cmp_lg_u32 s{S_C}, 2")
        p(f"s_cbranch_scc1 {sk}")
        p(f"s_lshr_b32 s{S_T}, s2, 4")
        p(f"s_mul_i32 s{S_T}, s{S_T}, 2560")
        p(f"v_add_u32 v2, s{S_T}, v160")
        p(f"v_min_u32 v2, gather_table-L_pc+4092, v2")
        p("s_mov_b64 exec, 0xfffff")
        p(f"global_load_dword v161, v2, s[{S_PC}:{S_PC+1}]")
        p("s_mov_b64 exec, -1")
        p.label(sk)
    p("v_mov_b32 v2, 0")
    p(f"ds_write_b32 v{V_C}, v2")
    p.wait0(lg=True)
    p("s_barrier")
    stamp(1)
    p(f"s_cmp_lt_u32 s{S_FB}, 26")
    p("s_cbranch_scc1 L_prep")
    p("s_branch L_setup")
    p.label("L_prep")
    p(f"s_cmp_lg_u32 s{S_C}, 2")
    p("s_cbranch_scc1 L_nmb")
    for r in range(4): p(f"v_mov_b32 v{4+r}, -1")
    nk = 10 if cfg.fast else 5
    p(f"s_mul_i32 s{S_T}, s{S_FB}, {1024*nk}")
    p(f"s_min_u32 s{S_T}, s{S_T}, {131072*nk//5 - 1024*nk}")
    for u in range(nk):
        if u and u % 4 == 0: p(f"s_add_u32 s{S_T}, s{S_T}, 0x1000")
        p(f"buffer_store_dwordx4 v[4:7], v{V_L}, s[{S_WS}:{S_WS+3}], s{S_T} offen offset:{1024*(u % 4)} sc1")
    p("s_nop 0")
    p.label("L_nmb")
    p(f"s_lshl_b32 s{S_T+3}, s{S_T+4}, 16")
    p(f"s_and_b32 s{S_T+4}, s{S_T+4}, 0xffff0000")
    p(f"s_bitcmp1_b32 s{S_FB}, 0")
    p(f"s_cselect_b32 s{S_T+3}, s{S_T+4}, s{S_T+3}")
    p(f"v_mov_b32 v1, {P_Z + 128}")
    p(f"v_mov_b32 v2, s{S_T+3}")
    p("ds_write_b32 v1, v2")
    p("v_bfe_u32 v1, v0, 2, 2")
    p("v_lshrrev_b32 v4, 4, v0")
    p("v_lshl_add_u32 v4, v4, 3, v1")
    p("v_add_u32 v5, 4, v4")
    p("v_min_u32 v4, 25, v4")
    p("v_min_u32 v5, 25, v5")
    p("v_and_b32 v6, 3, v0")
    p(f"s_mul_i32 s{S_T}, s{S_C}, 384")
    p(f"s_add_u32 s{S_T}, s{S_T}, {P_W3}")
    p(f"v_lshl_add_u32 v6, v6, 3, s{S_T}")
    p(f"s_movk_i32 s{S_T+1}, 1352")
    p(f"v_mad_u32_u24 v2, v4, s{S_T+1}, v6")
    p(f"v_mad_u32_u24 v3, v5, s{S_T+1}, v6")
    p(f"s_mul_i32 s{S_T}, s{S_C}, 192")
    p(f"s_movk_i32 s{S_T+1}, -1662")
    p(f"v_mov_b32 v7, {P_DUM}")
    for u in range(3):
        p(f"v_add_u32 v4, s{S_T}, v0")
        if u < 2: p(f"s_add_u32 s{S_T}, s{S_T}, 64")
        p("v_mul_u32_u24 v5, 2521, v4")
        p("v_lshrrev_b32 v5, 16, v5")
        p("v_cmp_gt_u32 vcc, 0x2a4, v4")
        p("v_lshlrev_b32 v4, 6, v4")
        p(f"v_mad_i32_i24 v4, v5, s{S_T+1}, v4")
        p(f"v_add_u32 v4, {P_M3T}, v4")
        p(f"v_cndmask_b32 v{8+u}, v7, v4, vcc")
    p("v_and_b32 v5, 31, v0")
    p("v_lshrrev_b32 v4, 5, v0")
    p("v_lshlrev_b32 v6, 6, v5")
    p("v_lshl_add_u32 v6, v4, 4, v6")
    p(f"v_add_u32 v28, {P_M3T}, v6")
    p("v_mul_u32_u24 v5, 0x90, v5")
    p("v_lshl_add_u32 v5, v4, 4, v5")
    p(f"v_add_u32 v29, {P_D1}, v5")
    p(f"s_cmp_eq_u32 s{S_C}, 0")
    p(f"s_cselect_b32 s{S_T}, 768, 0")
    p(f"v_add_u32 v30, s{S_T}, v{V_L}")
    p(f"v_mov_b32 v11, {PS}")
    p(f"v_add_u32 v4, {P_M3T + 26*64 - CO}, v{V_C}")
    p(f"s_cmp_lg_u32 s{S_C}, 3")
    p("s_cbranch_scc1 L_w0")
    assert cfg.w3last
    p("s_waitcnt vmcnt(9)")
    p("s_mov_b64 exec, 0x1fff")
    p("ds_write_b32 v4, v27")
    p("v_mov_b32 v4, 0")
    p("s_mov_b64 exec, 1")
    if cfg.two: p(f"global_atomic_add v27, v4, v{V_ONE}, s[{S_DBG}:{S_DBG+1}] sc0 sc1")
    else: p(f"global_atomic_add v4, v{V_ONE}, s[{S_DBG}:{S_DBG+1}] sc1")
    p("s_mov_b64 exec, -1")
    stamp(27)
    if cfg.pst == 12:
        p("s_waitcnt vmcnt(0)")
        stamp(12)
    p("s_waitcnt vmcnt(1)")
    p("s_branch L_w1")
    p.label("L_w0")
    p(f"s_cmp_lg_u32 s{S_C}, 2")
    p("s_cbranch_scc1 L_w2")
    p(f"s_waitcnt vmcnt({nk})")
    p("s_branch L_w1")
    p.label("L_w2")
    p.wait0(vm=True)
    p.label("L_w1")
    stamp(10)
    p("s_barrier")
    extra = []
    for u in range(8):
        extra.append(f"v_add_u32_sdwa v{GA+2*u}, v11, v{TBL+u} dst_sel:DWORD dst_unused:UNUSED_PAD src0_sel:DWORD src1_sel:WORD_0")
        extra.append(f"v_add_u32_sdwa v{GA+2*u+1}, v11, v{TBL+u} dst_sel:DWORD dst_unused:UNUSED_PAD src0_sel:DWORD src1_sel:WORD_1")
    for u in range(8): extra.append(f"v_lshl_or_b32 v{VF+u}, v{VV+2*u+1}, 16, v{VV+2*u}")
    def m3_mfma(U):
        u, q = divmod(U, 4)
        p.wait(lg=f"m{U}")
        cc = "0" if q == 0 else f"v[{12+4*u}:{15+4*u}]"
        p(f"v_mfma_f32_16x16x32_bf16 v[{12+4*u}:{15+4*u}], v[{AQ+4*q}:{AQ+4*q+3}], v[{MB+4*U}:{MB+4*U+3}], {cc}")
    for T in range(12):
        p.lds(f"ds_read_b64_tr_b16 v[{MB+4*T}:{MB+4*T+1}], v2 offset:{32*T}", f"m{T}")
        p.lds(f"ds_read_b64_tr_b16 v[{MB+4*T+2}:{MB+4*T+3}], v3 offset:{32*T}", f"m{T}")
        if T == 5:
            for _ in range(8): p(extra.pop(0))
        if T >= 6: m3_mfma(T - 6)
    for U in range(6, 12):
        m3_mfma(U)
        if U == 8:
            p("v_cvt_pk_bf16_f32 v24, v12, v12")
            p("ds_write_b16 v8, v24")
        else:
            for _ in range(2): p(extra.pop(0))
    p("v_cvt_pk_bf16_f32 v25, v16, v16")
    p("ds_write_b16 v9, v25")
    while extra: p(extra.pop(0))
    p(f"v_cvt_pk_bf16_f32 v26, v20, v20")
    p(f"ds_write_b16 v10, v26")
    p.wait0(lg=True)
    p("s_barrier")
    stamp(11)
    p(f"s_cmp_eq_u32 s{S_C}, 0")
    p("s_cbranch_scc1 L_pT")
    assert cfg.two
    p(f"s_cmp_eq_u32 s{S_C}, 1")
    p("s_cbranch_scc1 L_pX")
    p(f"s_cmp_eq_u32 s{S_C}, 3")
    p(f"s_cselect_b32 s{S_T}, 128, 64")
    p(f"v_mov_b32 v2, s{S_T}")
    p("v_mov_b32 v3, 26")
    p("s_mov_b64 exec, 1")
    p("s_cbranch_scc1 L_n2")
    p("v_mov_b32 v4, 4")
    p("s_waitcnt vmcnt(0)")
    p(f"global_atomic_add v27, v4, v{V_ONE}, s[{S_DBG}:{S_DBG+1}] sc0 sc1")
    p.label("L_n2")
    p("s_waitcnt vmcnt(0)")
    stamp(9)
    p(f"v_readfirstlane_b32 s{S_X}, v27")
    p(f"s_cmp_lt_u32 s{S_X}, 25")
    p("s_cbranch_scc1 L_pdx")
    p(f"global_store_dword v2, v3, s[{S_DBG}:{S_DBG+1}] sc1")
    p("s_branch L_pdx")
    p.label("L_pX")
    for u in range(16): p(f"v_mov_b32 v{MB+16+u}, 0")
    for u in range(16): p(f"ds_read_u16_d16_hi v{MB+16+u}, v{GA+u}")
    p("s_branch L_pst")
    p.label("L_pT")
    p("ds_read_b128 v[12:15], v28")
    p("ds_read_b128 v[16:19], v28 offset:32")
    p("s_waitcnt lgkmcnt(1)")
    p(f"v_mfma_f32_32x32x16_bf16 v[{MB}:{MB+15}], v[{VF}:{VF+3}], v[12:15], 0")
    p("s_waitcnt lgkmcnt(0)")
    p(f"v_mfma_f32_32x32x16_bf16 v[{MB}:{MB+15}], v[{VF+4}:{VF+7}], v[16:19], v[{MB}:{MB+15}]")
    p("s_nop 11")
    for a in range(4): p(f"ds_write_b128 v29, v[{MB+4*a}:{MB+4*a+3}] offset:{32*a}")
    for u in range(16): p(f"ds_read_b32 v{MB+16+u}, v{GA+u}")
    p.label("L_pst")
    p("s_mov_b32 exec_hi, 0xffff")
    for e in range(8):
        if e % 2 == 0: p(f"s_waitcnt lgkmcnt({12 - 2*e})")
        p(f"v_add_f32 v{MB+16+2*e}, v{MB+16+2*e}, v{MB+16+2*e+1}")
        if e % 2:
            p(f"v_cvt_pk_bf16_f32 v{4+e//2}, v{MB+14+2*e}, v{MB+16+2*e}")
            p(f"v_min_u32 v{4+e//2}, -2, v{4+e//2}")
    p(f"buffer_store_dwordx4 v[4:7], v30, s[{S_WS}:{S_WS+3}], s{S_T+2} offen sc1")
    if cfg.wpre == 2:
        p(f"buffer_load_dword v250, v30, s[{S_WS}:{S_WS+3}], s{S_T+2} offen sc1")
    p(f"s_cmp_lg_u32 s{S_C}, 0")
    p("s_cbranch_scc1 L_pdx")
    p("v_lshlrev_b32 v8, 2, v0")
    p("s_mov_b32 exec_hi, 0")
    p(f"buffer_store_dword v{V_ONE}, v8, s[{S_WS}:{S_WS+3}], s{S_T+2} offen offset:1536 sc1")
    p.label("L_pdx")
    p("s_mov_b64 exec, -1")
    p.label("L_pdone")
    stamp(21)
    p("s_branch L_setup")
    p.label("L_xwave")
    S_XM, S_TB = S_T+4, S_T+5
    p("s_mov_b64 exec, -1")
    cin_common()
    p(f"s_mov_b64 s[{S_W1}:{S_W1+1}], s[{KA+8}:{KA+9}]")
    p(f"s_mov_b64 s[{S_WCO}:{S_WCO+1}], s[{KA+6}:{KA+7}]")
    p(f"s_load_dword s{S_BOUT}, s[{KA+14}:{KA+15}], 0")
    ws_shift()
    srd(S_TAB, 2, 6400000)
    if cfg.etouch:
        p(f"s_cmp_eq_u32 s{S_CP}, 0")
        p("s_cbranch_scc1 L_noet")
        touch(160, S_X, (1 << 52) - 1)
        p("s_waitcnt vmcnt(1)")
        p.label("L_noet")
    p("v_lshrrev_b32 v1, 4, v0")
    p("v_and_b32 v2, 12, v0")
    p(f"s_mul_i32 s3, s{S_J}, 104")
    p(f"s_add_u32 s3, s3, {IX2}")
    p(f"v_add_u32 v2, s3, v2")
    p(f"s_movk_i32 s{S_X}, 416")
    p(f"v_mad_u32_u24 v3, v1, s{S_X}, v2")
    if cfg.bal:
        p(f"s_cmp_eq_u32 s{S_J}, 3")
        p(f"s_cselect_b32 s{S_X}, 104, 312")
        p(f"s_cselect_b32 s3, {13*104}, {20*104}")
        p(f"v_add_u32 v2, s3, v2")
        p(f"v_mad_u32_u24 v4, v1, s{S_X}, v2")
    else: p("v_add_u32 v4, 0x680, v3")
    p("v_and_b32 v1, 3, v0")
    p("v_lshlrev_b32 v5, 4, v1")
    p("v_bfe_u32 v1, v0, 3, 1")
    p("v_lshl_add_u32 v6, v1, 30, v5")
    p(f"s_mul_i32 s{S_XM}, s{S_J}, 7168")
    p(f"s_lshr_b32 s{S_TB}, s2, 4")
    p(f"s_lshl2_add_u32 s{S_TB}, s{S_TB}, s{S_J}")
    p(f"s_mul_i32 s{S_TB}, s{S_TB}, {46*128}")
    p(f"s_add_u32 s{S_TB}, s{S_TB}, {4992*128}")
    assert not cfg.etouch
    producer_index()
    p("s_waitcnt vmcnt(1)" if cfg.pfcode == 3 else "s_waitcnt vmcnt(0)")
    p("s_barrier")
    for u in range(2):
        for Q in range(0, 6, 2): p(f"ds_read2_b32 v[{VT+7*u+u+Q}:{VT+7*u+u+Q+1}], v{3+u} offset0:{4*Q} offset1:{4*Q+4}")
        p(f"ds_read_b32 v{VT+8*u+6}, v{3+u} offset:96")
    stamp(1)
    p.vm.clear()
    assert cfg.xwin < 14
    p.wait0(lg=True)
    go_done = False; g0_done = False
    for Q in range(7):
        for u in range(2):
            n = 2*Q + u
            if n == cfg.xbar and not cfg.noprep:
                p(f"s_cmp_ge_u32 s{S_FB}, 26")
                p("s_cbranch_scc1 L_nobar")
                p("s_barrier")
                p("s_barrier")
                p.label("L_nobar")
            if n == cfg.xstart and n: p.wait(vm="x0")
            if n >= cfg.xwin:
                p.wait(vm=f"x{n - cfg.xwin}")
                if n - cfg.xwin == 2*cfg.gon + 1: arrive(C_GO); go_done = True
                if cfg.pre and n - cfg.xwin == 2*(cfg.gon - cfg.pre) + 1: arrive(C_G0); g0_done = True
                if cfg.g0 and n - cfg.xwin == 2*(cfg.gon - cfg.g0) + 1:
                    p("s_and_b32 s3, s2, 7")
                    p("s_cbranch_scc1 L_ng0")
                    arrive(C_GO)
                    p.label("L_ng0")
            p(f"s_add_u32 m0, s{S_XM}, {XO + 4*7168*u + 1024*Q}")
            p(f"v_lshl_add_u32 v{VT+8*u+Q}, v{VT+8*u+Q}, 6, v{6 if Q == 6 else 5}")
            p.vmem(f"buffer_load_dwordx4 v{VT+8*u+Q}, s[{S_TAB}:{S_TAB+3}], 0 offen{' nt' if cfg.ntx else ''} lds", f"x{n}")
        for u, at in enumerate((cfg.lt0, cfg.lt1)):
            if at == Q and cfg.ltouch:
                touch(160, S_TB, (1 << 46) - 1); p.vm.issue("t")
                p(f"s_add_u32 s{S_TB}, s{S_TB}, {2944*128}")
    def late_touch():
        touch(160, S_TB, (1 << 46) - 1); p.vm.issue("t")
        p(f"s_add_u32 s{S_TB}, s{S_TB}, {2944*128}")
    if cfg.pre and not g0_done:
        p.wait(vm=f"x{2*(cfg.gon - cfg.pre)+1}")
        arrive(C_G0)
    if not go_done:
        p.wait(vm=f"x{2*cfg.gon+1}")
        arrive(C_GO)
    p.wait(vm="x13")
    arrive(C_XL)
    for at in (cfg.lt0, cfg.lt1):
        if at == 7 and cfg.ltouch: late_touch()
    if cfg.ltouch and cfg.lt1 == 8: p(f"s_mov_b32 s{S_FB}, s{S_TB}")
    stamp(6)

    p.label("L_setup")
    if cfg.stamps or cfg.pst == 28: p(f"s_mov_b32 s{S_ST+27}, 0")
    p(f"s_setprio {cfg.prio_prep}")
    p.vm.clear(); p.lg.clear()
    AX, AT, CI, X0 = 0, 16, 32, 48
    Z = [74, 78]; PT = 82; ZL = 90
    XA = {1: 98, -3: 99, -1: 100}; WA = 101; SM = [102, 103, 104, 105]; MBX = 106; VMB = 110; VBO = 111
    RING = 112; RES = RING + 4*cfg.R
    WT = 112
    POOL = [32, 36, 40, 44] + list(range(RES, 253, 4))
    assert cfg.NRES <= len(POOL)
    NR = 4
    S_N, S_MB, S_O = S_T+7, S_T+9, S_T+11
    S_NR = S_T + 12
    p(f"s_and_b32 s{S_T+3}, s{S_WAVE}, 3")
    p(f"s_lshl_b32 s{S_T+2}, s{S_T+3}, 2")
    p(f"s_lshl_b32 s{S_T}, s{S_T+3}, 8")
    p(f"s_mov_b32 s{S_N}, 4")
    p(f"s_add_u32 s{S_T+2}, s{S_T+2}, 3")
    p(f"s_cmp_lt_u32 s{S_WAVE}, 4")
    p("s_cbranch_scc1 L_rowp")
    p(f"s_add_u32 s{S_T}, s{S_T}, {4*7168}")
    if cfg.bal:
        p(f"s_mov_b32 s{S_N}, 3")
        p(f"s_mul_i32 s{S_T+2}, s{S_T+3}, 3")
        p(f"s_add_u32 s{S_T+2}, s{S_T+2}, 70")
    else: p(f"s_add_u32 s{S_T+2}, s{S_T+2}, 64")
    p.label("L_rowp")
    p(f"s_lshl4_add_u32 s{S_T+2}, s{S_CP}, s{S_T+2}")
    p.label("L_setup2")
    p(f"s_mov_b32 s{S_NR}, s{S_N}")
    p("v_and_b32 v1, 31, v0")
    p("v_lshrrev_b32 v2, 5, v0")
    p(f"v_lshl_add_u32 v3, v1, 1, s{S_T}")
    p(f"v_lshl_add_u32 v{XA[1]}, v2, 6, v3")
    p("v_mul_u32_u24 v4, 0xc0, v2")
    p(f"v_sub_u32 v{XA[-3]}, v3, v4")
    p("v_lshlrev_b32 v4, 6, v2")
    p(f"v_sub_u32 v{XA[-1]}, v3, v4")
    p("v_mul_u32_u24 v4, 0x210, v2")
    p("v_lshl_add_u32 v4, v1, 4, v4")
    p(f"v_add_u32 v{WA}, {WO}, v4")
    for r in range(26): p(f"v_mov_b32 v{X0+r}, 0")
    p(f"s_lshl_b32 s{S_BOUT}, s{S_BOUT}, 16")
    p("v_lshrrev_b32 v1, 3, v0")
    p("v_min_u32 v3, 1, v1")
    p("v_lshlrev_b32 v2, 9, v0")
    p(f"v_lshl_add_u32 v{VMB}, v3, 30, v2")
    p(f"s_lshl_b32 s{S_T+1}, s{S_RG}, 7")
    p(f"s_add_u32 s{S_T+1}, s{S_T+1}, s{S_T+2}")
    p(f"s_lshl_b32 s{S_O}, s{S_T+1}, 1")
    p(f"s_lshl_b32 s{S_T}, s{S_RG}, 10")
    p(f"s_add_u32 s{S_MB}, s{S_T+2}, s{S_T}")
    p(f"s_sub_u32 s{S_MB}, s{S_MB}, 3")
    p(f"s_lshl_b32 s{S_MB}, s{S_MB}, 2")
    p(f"s_add_u32 s{S_MB+1}, s{S_MB}, 0x20000")
    p(f"v_mov_b32 v{ZL+7}, 0")
    p(f"v_mov_b32 v{MBX+1}, 0")
    def x_read(r):
        p.lds(f"ds_read_u16_d16_hi v{X0+r}, v{XA[pi(r)-r]} offset:{1024*(r >> 2) + 64*(r & 3)}", f"x{r}")
    def z_ops(n):
        ops = []
        for e in range(4):
            t = PT + 2*(e % 4)
            (a, b), (c, d) = S[8*n + 2*e], S[8*n + 2*e + 1]
            ops.append(("v", f"v_mul_f32 v{t}, v{X0+a}, v{X0+b}", (a, b)))
            ops.append(("v", f"v_mul_f32 v{t+1}, v{X0+c}, v{X0+d}", (c, d)))
        cv = [("v", f"v_cvt_pk_bf16_f32 v{Z[n % 2]+e}, v{PT+2*e}, v{PT+2*e+1}", ()) for e in range(4)]
        return ops[0:4] + cv[0:1] + ops[4:6] + cv[1:2] + ops[6:8] + cv[2:4]
    def first_row(tag=''):
        check(C_XL, 4, sleep=cfg.idle_sleep)
        for r in range(26): x_read(r)
        for o in z_ops(0):
            p.wait(lg=tuple(f"x{r}" for r in o[2]))
            p(o[1])
        for d in XA.values(): p(f"v_add_u32 v{d}, 0x1c00, v{d}")
    if cfg.zfirst:
        first_row()
        p.wait0(lg=True)
    S_C4 = S_T + 14
    p(f"s_and_b32 s{S_C4}, s{S_WAVE}, 3")
    if not cfg.w8:
        p(f"s_cmp_ge_u32 s{S_WAVE}, 4")
        p("s_cbranch_scc1 L_xz")
    p("v_and_b32 v2, 7, v0")
    p(f"v_mul_u32_u24 v3, {BLK}, v1")
    p("v_lshl_add_u32 v3, v2, 4, v3")
    p("v_mul_u32_u24 v4, 0x210, v2")
    p(f"s_mul_i32 s{S_T}, s{S_C4}, {24*528}")
    p(f"s_add_u32 s{S_T}, s{S_T}, {WO}")
    p(f"v_add_u32 v4, s{S_T}, v4")
    p("v_lshl_add_u32 v5, v1, 4, v4")
    p("v_cmp_eq_u32 vcc, 1, v1")
    p("v_add_u32 v6, 48, v5")
    p("v_subrev_u32 v7, 48, v5")
    p("v_cndmask_b32 v6, v5, v6, vcc")
    p("v_cmp_eq_u32 vcc, 4, v1")
    p(f"v_mul_u32_u24 v8, {BLK}, v0")
    p("s_nop 0")
    p("v_cndmask_b32 v6, v6, v7, vcc")
    p(f"s_mul_i32 s{S_T}, s{S_C4}, 384")
    p(f"s_add_u32 s{S_T}, s{S_T}, {WS_W}")
    if cfg.w8: p(f"s_lshr_b32 s{S_T+1}, s{S_WAVE}, 2")
    else: p(f"s_and_b32 s{S_T+1}, s{S_CP}, {1 if cfg.wrot else 0}")
    p(f"s_mul_i32 s{S_T+2}, s{S_T+1}, 26624")
    for k in range(4):
        p(f"s_xor_b32 s{S_T+3+k}, s{S_T+2}, {26624*(k >> 1)}")
        p(f"s_add_u32 s{S_T+3+k}, s{S_T+3+k}, s{S_T}")
        if k & 1: p(f"s_add_u32 s{S_T+3+k}, s{S_T+3+k}, 13312")
    p(f"s_lshl_b32 s{S_T+2}, s{S_T+1}, 8")
    p(f"s_cmp_eq_u32 s{S_T+1}, 0")
    p("s_cselect_b64 vcc, -1, 0")
    p(f"v_add_u32 v12, s{S_T+2}, v5")
    p(f"s_xor_b32 s{S_T+2}, s{S_T+2}, 0x100")
    p("v_add_u32 v6, 0x180, v6")
    p("v_add_u32 v15, 0x80, v5")
    p(f"v_add_u32 v14, s{S_T+2}, v5")
    p("v_cndmask_b32 v13, v6, v15, vcc")
    p("v_cndmask_b32 v15, v15, v6, vcc")
    p("v_mov_b32 v10, 0")
    if cfg.pre:
        check(C_G0, 4, sleep=2)
        flags_load(192)
    check(C_GO, 4, sleep=2)
    stamp(22)
    p(f"s_mov_b32 s{S_T+13}, {WS_W}")
    if cfg.noprep: p("s_branch L_wload")
    if cfg.direct:
        if not cfg.pre:
            flags_load(192)
        flags_test()
        p("s_cbranch_scc1 L_wload")
        if cfg.stamps or cfg.pst == 28: p(f"s_add_u32 s{S_ST+27}, s{S_ST+27}, 100")
    p(f"s_cmp_lg_u32 s{S_C}, 0")
    p("s_cbranch_scc1 L_pw")
    p.label("L_probe")
    p(f"global_load_dword v11, v10, s[{S_DBG}:{S_DBG+1}] offset:{FO} sc1")
    p(f"buffer_load_dword v9, v8, s[{S_WS}:{S_WS+3}], s{S_T+13} offen offset:1536 sc1")
    p("s_waitcnt vmcnt(0)")
    p("v_cmp_gt_u32 vcc, 26, v11")
    p(f"v_cmp_eq_u32 s[{S_FL}:{S_FL+1}], -1, v9")
    p("s_nop 1")
    p(f"s_or_b64 vcc, vcc, s[{S_FL}:{S_FL+1}]")
    p("s_cmp_eq_u64 vcc, 0")
    p("s_cbranch_scc1 L_wload")
    p.label("L_retry")
    if cfg.stamps or cfg.pst == 28: p(f"s_add_u32 s{S_ST+27}, s{S_ST+27}, 1")
    p(f"s_sleep {cfg.poll_sleep}")
    p(f"s_sub_u32 s{S_SPIN}, s{S_SPIN}, 1")
    p("s_cbranch_scc0 L_probe")
    p("s_endpgm")
    p.label("L_pw")
    check(C_FLAG, 1, sleep=2)
    p("s_branch L_wl2")
    p.label("L_wload")
    arrive(C_FLAG)
    p.label("L_wl2")
    stamp(2)
    NJ = 2 if cfg.w8 else 4
    for J in range(NJ):
        for Fi in range(3):
            r = WT + 4*(3*J + Fi)
            p.vmem(f"buffer_load_dwordx4 v[{r}:{r+3}], v3, s[{S_WS}:{S_WS+3}], s{S_T+3+J} offen offset:{128*Fi}{'' if cfg.wplain else ' sc1'}", f"w{J}{Fi}")
    if cfg.zmid:
        p(f"s_cmp_lg_u32 s{S_C4}, 99")
        p("s_cbranch_scc0 L_zd")
        first_row("a")
        p(f"s_mov_b32 s{S_C4}, 99")
        p.label("L_zd")
    first = True
    for J in range(NJ):
        for Fi in range(3):
            r = WT + 4*(3*J + Fi)
            p.wait(vm=f"w{J}{Fi}")
            if (J, Fi) == (0, 0): stamp(12)
            if (J, Fi) == (NJ-1, 2): stamp(13)
            p(f"ds_write_b128 v{12+J}, v[{r}:{r+3}] offset:{4224*Fi}")
            if first: p(f"v_max_u32 v9, v{r}, v{r+1}")
            else: p(f"v_max3_u32 v9, v{r}, v{r+1}, v9")
            p(f"v_max3_u32 v9, v{r+2}, v{r+3}, v9")
            first = False
    p("v_cmp_eq_u32 vcc, -1, v9")
    p("s_nop 1")
    p("s_cmp_eq_u64 vcc, 0")
    p("s_cbranch_scc0 L_retry")
    if cfg.zmid and not cfg.w8: p("s_branch L_xz2")
    p.label("L_xz")
    if not cfg.zfirst and not (cfg.zmid and cfg.w8): first_row()
    p.label("L_xz2")
    p.wait0(lg=True)
    p("s_barrier")
    if cfg.ltouch and cfg.lt1 == 8:
        assert POOL[cfg.NRES-1] + 4 <= 250
        p(f"s_cmp_lt_u32 s{S_WAVE}, 4")
        p("s_cbranch_scc1 L_go")
        touch(160, S_FB, (1 << 46) - 1)
    p.label("L_go")
    p("s_setprio 0")
    if cfg.flip:
        p(f"s_cmp_lt_u32 s{S_WAVE}, 4")
        p("s_cbranch_scc1 L_prio")
        p(f"s_setprio 1")
        p.label("L_prio")
    stamp(3)
    order = []
    for n in range(22):
        order.append(("X", n)); order.append(("T", n))
        if n == 14: order.append(("T", 22))
        if n == 18: order.append(("T", 23))
    fr_of = lambda k, n: n if k == "X" else n + 24
    nn = 46 - cfg.NRES
    assert nn % cfg.R == 0
    nonres = [int((u + 0.5)*46/nn) for u in range(nn)]
    wreg = {}; rr = 0
    for k in range(46):
        if k in nonres: wreg[k] = RING + 4*(nonres.index(k) % cfg.R)
        else: wreg[k] = POOL[rr]; rr += 1
    def w_read(k):
        p.lds(f"ds_read_b128 v[{wreg[k]}:{wreg[k]+3}], v{WA} offset:{1056*fr_of(*order[k])}", f"w{k}")
    pend = [k for k in range(46) if k not in nonres or nonres.index(k) < cfg.R]
    while pend and (not cfg.peel or pend[0] < cfg.peel): w_read(pend.pop(0))
    if not cfg.peel: p.wait0(lg=True)
    stamp(5)
    def mfma(k):
        kind, n = order[k]
        zb = Z[n % 2] if n < 22 else ZL + 4*(n - 22)
        acc = AX if kind == "X" else AT
        cc = f"v[{acc}:{acc+15}]"
        if n == 0: cc = "0"
        return f"v_mfma_f32_32x32x16_bf16 v[{acc}:{acc+15}], v[{wreg[k]}:{wreg[k]+3}], v[{zb}:{zb+3}], {cc}"
    lin_ops = []
    for u in range(8):
        a = LIN[min(2*u, 12)]; b = LIN[min(2*u + 1, 12)]
        lin_ops.append(("v", f"v_cvt_pk_bf16_f32 v{ZL+u}, v{X0+a}, " + (f"v{X0+b}" if u < 6 else "1.0"), (a, b)))
    def body(emit_mb):
        groups = [z_ops(n) for n in range(1, 22)] + [z_ops(0)]
        groups[10] = lin_ops[:7] + groups[10]
        flat = [(g, o) for g, ops in enumerate(groups) for o in ops]
        lastuse = {}
        for i, (g, o) in enumerate(flat):
            if g < 21:
                for r in o[2]: lastuse[r] = i
        for r in range(26): lastuse.setdefault(r, -1)
        for g, ops in enumerate(groups):
            mf = [kk for kk in range(46) if order[kk] in (("X", g), ("T", g))]
            if g == 14: mf.append(order.index(("T", 22)))
            if g == 18: mf.append(order.index(("T", 23)))
            items = []
            base = sum(len(x) for x in groups[:g])
            if g == 0:
                for r in range(26):
                    if lastuse[r] == -1: items.append(("x", r))
            for i, o in enumerate(ops):
                items.append(o)
                for r in range(26):
                    if lastuse[r] == base + i: items.append(("x", r))
            if g == 21:
                pos = [0, 0]
            else:
                n_it = len(items)
                pos = [2 + (j*n_it)//len(mf) for j in range(len(mf))]
            j = 0
            for i, it in enumerate(items + [None]):
                while j < len(mf) and pos[j] <= i:
                    kk = mf[j]
                    if g == 21 and j == 0: p("s_nop 1")
                    p.wait(lg=f"w{kk}")
                    p(mfma(kk))
                    if kk in nonres:
                        w_read(nonres[(nonres.index(kk) + cfg.R) % nn])
                    while pend and pend[0] <= kk + cfg.peel: w_read(pend.pop(0))
                    j += 1
                if it is None: break
                if it[0] == "x": x_read(it[1])
                else:
                    p.wait(lg=tuple(f"x{r}" for r in it[2]))
                    p(it[1])
            if g == 15: emit_mb()
            if g == cfg.flipg and cfg.flip:
                sk = L("nfl")
                p(f"s_cmp_lg_u32 s{S_N}, {5 - cfg.flip}")
                p(f"s_cbranch_scc1 {sk}")
                p("s_setprio 0")
                p.label(sk)
        for k in range(NR - 1): p(f"v_mov_b32 v{SM[k]}, v{SM[k+1]}")
        for d in XA.values(): p(f"v_add_u32 v{d}, 0x1c00, v{d}")
        s0 = SM[NR-1]
        p(f"v_mul_f32 v{s0}, v{AX}, v{AT}")
        p(f"v_mul_f32 v{PT}, v{AX+1}, v{AT+1}")
        for r in range(2, 13):
            p(f"v_fmac_f32 v{s0 if r % 2 == 0 else PT}, v{AX+r}, v{AT+r}")
        p(f"s_sub_u32 s{S_N}, s{S_N}, 1")
        p(f"v_add_f32 v{s0}, v{s0}, v{PT}")
    def mb_loads(so=None):
        p(f"buffer_load_dwordx{NR} v[{MBX}:{MBX+NR-1}], v{VMB}, s[{S_WS}:{S_WS+3}], s{so or (S_MB+1 if cfg.fast else S_MB)} offen sc1")
    def emit_mb():
        sk = L("nomb"); l1 = L("mb1"); lp = L("mbf"); ok = L("mbk")
        p(f"s_cmp_gt_u32 s{S_N}, 2")
        p(f"s_cbranch_scc1 {sk}")
        p(f"s_cmp_eq_u32 s{S_N}, 1")
        p(f"s_cbranch_scc1 {l1}")
        p(f"global_load_dword v{MBX}, v{MBX+1}, s[{S_DBG}:{S_DBG+1}] offset:64 sc1")
        p(f"s_branch {sk}")
        p.label(lp)
        p(f"global_load_dword v{MBX}, v{MBX+1}, s[{S_DBG}:{S_DBG+1}] offset:64 sc1")
        p(f"s_sub_u32 s{S_SPIN}, s{S_SPIN}, 1")
        p("s_cbranch_scc1 L_end")
        p.label(l1)
        p("s_waitcnt vmcnt(0)")
        p(f"v_readfirstlane_b32 s{S_X}, v{MBX}")
        p(f"s_cmp_ge_u32 s{S_X}, 26")
        p(f"s_cbranch_scc0 {lp}")
        mb_loads()
        p.label(sk)
    if cfg.peel:
        body(lambda: None)
        assert not pend
        if cfg.stamps in (1, 2): stamp(26)
    st0 = list(p.lg.q)
    save = p.L; p.L = []
    body(lambda: None)
    st1 = list(p.lg.q)
    assert not cfg.peel or cfg.stamps in (1, 2) or st0 == st1[len(st1) - len(st0):]
    p.L = save
    p(".p2align 3")
    p.label("L_row")
    body(emit_mb)
    assert st1 == p.lg.q
    if cfg.stamps in (1, 2):
        for i in range(3): p(f"s_mov_b32 s{S_ST+23+i}, s{S_ST+24+i}")
        stamp(26)
    if cfg.stamps == 4 or cfg.pst == 26:
        p(f"s_cmp_lg_u32 s{S_N}, 0")
        p("s_cbranch_scc1 L_ns4")
        stamp(26)
        p.label("L_ns4")
    if cfg.flip and cfg.flipg < 0:
        p(f"s_cmp_lg_u32 s{S_N}, {4 - cfg.flip}")
        p("s_cbranch_scc1 L_noflip")
        p("s_setprio 0")
        p.label("L_noflip")
    p(f"s_cmp_lg_u32 s{S_N}, 0")
    p("s_cbranch_scc1 L_row")
    DPP = ("quad_perm:[1,0,3,2] row_mask:0xf", "quad_perm:[2,3,0,1] row_mask:0xf", "row_half_mirror row_mask:0xf",
           "row_mirror row_mask:0xf", "row_bcast:15 row_mask:0xa", "row_bcast:31 row_mask:0xc")
    p(f"v_mov_b32 v4, s{S_O}")
    if cfg.fin2:
        p("s_nop 0")
        for ctl in DPP:
            for k in (3, 0, 1, 2)[::-1]: p(f"v_add_f32_dpp v{SM[k]}, v{SM[k]}, v{SM[k]} {ctl} bank_mask:0xf")
        for k in range(NR): p(f"v_add_f32 v{SM[k]}, s{S_BOUT}, v{SM[k]}")
        for k in range(NR): p(f"v_readlane_b32 s{S_FL+k}, v{SM[k]}, 63")
    p.label("L_mbw")
    p("s_waitcnt vmcnt(0)")
    if NR == 4:
        p(f"v_max3_u32 v1, v{MBX}, v{MBX+1}, v{MBX+2}")
        p(f"v_max_u32 v1, v1, v{MBX+3}")
    else: p(f"v_max_u32 v1, v{MBX}, v{MBX+1}")
    p("v_cmp_eq_u32 vcc, -1, v1")
    p("s_nop 1")
    p("s_cmp_eq_u64 vcc, 0")
    p("s_cbranch_scc1 L_mbok")
    if cfg.msleep: p(f"s_sleep {cfg.msleep}")
    if cfg.fast:
        p(f"s_add_u32 s{S_N}, s{S_N}, 1")
        p(f"s_and_b32 s{S_X}, s{S_N}, {cfg.mper - 1}")
        p(f"s_cselect_b32 s{S_X}, s{S_MB+1}, s{S_MB}")
        mb_loads(S_X)
    else: mb_loads()
    p(f"s_sub_u32 s{S_SPIN}, s{S_SPIN}, 1")
    p("s_cbranch_scc0 L_mbw")
    p("s_endpgm")
    p.label("L_mbok")
    if cfg.fin2:
        for ctl in DPP[:3]:
            for k in range(NR): p(f"v_add_f32_dpp v{MBX+k}, v{MBX+k}, v{MBX+k} {ctl} bank_mask:0xf")
        for k in range(NR): p(f"v_add_f32 v{SM[k]}, s{S_FL+k}, v{MBX+k}")
    else:
        for k in range(NR): p(f"v_add_f32 v{SM[k]}, v{SM[k]}, v{MBX+k}")
        for ctl in DPP:
            for k in range(NR): p(f"v_add_f32_dpp v{SM[k]}, v{SM[k]}, v{SM[k]} {ctl} bank_mask:0xf")
        for k in range(NR): p(f"v_add_f32 v{SM[k]}, s{S_BOUT}, v{SM[k]}")
    p(f"v_cvt_pk_bf16_f32 v2, v{SM[0]}, v{SM[1]}")
    p(f"v_cvt_pk_bf16_f32 v3, v{SM[2]}, v{SM[3]}")
    if cfg.fin2: p("s_mov_b64 exec, 1")
    else:
        p("s_mov_b32 exec_lo, 0")
        p("s_mov_b32 exec_hi, 0x80000000")
    if cfg.bal:
        p(f"s_cmp_eq_u32 s{S_NR}, 4")
        p("s_cbranch_scc1 L_st4")
        p(f"global_store_short_d16_hi v1, v3, s[{S_OUT}:{S_OUT+1}]")
        p(f"s_cmp_eq_u32 s{S_NR}, 1")
        p("s_cbranch_scc1 L_std")
        p(f"global_store_short v1, v3, s[{S_OUT}:{S_OUT+1}] offset:-2")
        p(f"global_store_short_d16_hi v1, v2, s[{S_OUT}:{S_OUT+1}] offset:-4")
        p("s_branch L_std")
        p.label("L_st4")
    p(f"global_store_dwordx2 v4, v[2:3], s[{S_OUT}:{S_OUT+1}] offset:-6" + ("", " sc1", " nt", " sc0 sc1")[cfg.ost])
    p.label("L_std")
    stamps_out()
    p.label("L_end")
    p("s_endpgm")

    p.vm.q = dnn_vm; p.lg.clear()
    p(".p2align 6")
    p.label("L_dnn")
    ACC = lambda t, q: 8*t + 4*q
    BF = lambda t: 56 + 4*t
    AR = lambda f, q: 84 + 8*(f % 2) + 4*q
    IDX = lambda f: 100 + f
    VO = lambda u: 128 + u
    V_B, V_A, V_CH, V_LANE, V_G8 = [130, 131, 132], [133, 134, 135], 136, 137, 138
    RAW = 140; RAW2 = 200
    S_SB, S_M0, S_AM = S_T+2, S_T+3, S_T+4
    if cfg.probe:
        p("s_cmp_ge_u32 s2, 8")
        p("s_cbranch_scc1 L_pr1")
        p("s_lshl_b32 s90, s2, 2")
        p("v_mov_b32 v1, s90")
        p("v_mov_b32 v2, s96")
        p(f"global_store_dword v1, v2, s[{S_DBG}:{S_DBG+1}] offset:8 sc1")
        p("s_waitcnt vmcnt(0)")
        p.label("L_pr1")
    srd(S_B1, 10, 1664)
    srd(S_TAB, 2, 6400000)
    srd(S_W2, 12, 1664)
    srd(S_WS, None, WS_END)
    ws_shift()
    if cfg.pxa >= 0:
        p("s_getreg_b32 s91, hwreg(HW_REG_XCC_ID)")
        p("s_and_b32 s91, s91, 15")
        p(f"s_cmp_lg_u32 s2, {cfg.pxa}")
        p("s_cbranch_scc1 L_pxa")
        p("v_mov_b32 v1, 0")
        p("v_mov_b32 v2, s91")
        p(f"global_store_dword v1, v2, s[{S_DBG}:{S_DBG+1}] offset:8 sc1")
        p("s_waitcnt vmcnt(0)")
        p.label("L_pxa")
    if cfg.plat >= 6:
        base = {6: S_OUT, 7: S_WS, 8: S_DBG, 9: S_B1, 10: S_WS}[cfg.plat]
        p("s_waitcnt vmcnt(0)")
        p(f"v_mov_b32 v1, {0x4000000 if cfg.plat == 10 else 192}")
        p("s_memrealtime s[94:95]")
        p("s_waitcnt lgkmcnt(0)")
        p(f"global_load_dword v2, v1, s[{base}:{base+1}]")
        p("s_waitcnt vmcnt(0)")
        p("s_memrealtime s[92:93]")
        p("s_waitcnt lgkmcnt(0)")
        p("s_sub_u32 s92, s92, s94")
        p("s_mul_i32 s92, s92, 10")
        p("s_add_u32 s92, s92, s96")
    elif cfg.plat:
        sr_, off = {1: (S_TAB, 3000320), 2: (S_W1, 1300096), 3: (S_WS, 4096), 5: (S_DBG+0, 0), 4: (S_TAB, 5000320)}[cfg.plat]
        p("s_waitcnt vmcnt(0)")
        p(f"v_mov_b32 v1, {off}")
        p(f"buffer_load_dword v2, v1, s[{sr_}:{sr_+3}], 0 offen offset:2048")
        p("s_waitcnt vmcnt(0)")
        p("s_lshl_b32 s90, s2, 7")
        p("s_memrealtime s[94:95]")
        p("s_waitcnt lgkmcnt(0)")
        p(f"buffer_load_dword v2, v1, s[{sr_}:{sr_+3}], s90 offen offset:4)".replace(")", ""))
        p("s_waitcnt vmcnt(0)")
        p("s_memrealtime s[92:93]")
        p("s_waitcnt lgkmcnt(0)")
        p("s_sub_u32 s92, s92, s94")
        p("s_mul_i32 s92, s92, 10")
        p("s_add_u32 s92, s92, s96")
    stamp(10)
    p(f"s_mov_b32 s{S_SPIN}, 0x40000")
    p(f"s_mul_i32 s{S_COL}, s{S_CP}, 416")
    S_M1, S_WR = S_T+5, S_T+6
    p(f"s_mov_b32 s{S_SB}, s{S_COL}")
    p(f"s_and_b32 s{S_WR}, s{S_WAVE}, 3")
    p(f"s_lshl_b32 s{S_T}, s{S_WAVE}, 1")
    p(f"s_sub_u32 s{S_T}, s{S_T}, 4")
    p(f"s_add_u32 s{S_T+1}, s{S_T}, 1")
    p(f"s_cmp_lt_u32 s{S_WAVE}, 4")
    p(f"s_cselect_b32 s{S_M0}, s{S_WAVE}, s{S_T}")
    p(f"s_cselect_b32 s{S_M1}, 12, s{S_T+1}")
    p(f"s_lshl_b32 s{S_M0}, s{S_M0}, 10")
    p(f"s_lshl_b32 s{S_M1}, s{S_M1}, 10")
    p(f"s_lshl_b32 s{S_AM}, s{S_WAVE}, 10")
    p(f"s_add_u32 s{S_AM}, s{S_AM}, {BSZ}")
    p(f"s_lshr_b32 s{S_T}, s{S_WAVE}, 2")
    p(f"s_mul_i32 s{S_T}, s{S_T}, 224")
    p(f"s_add_u32 s{S_COL}, s{S_COL}, s{S_T}")
    p(f"s_movk_i32 s{S_T+1}, 1248")
    p(f"s_movk_i32 s{S_T+7}, 6656")
    for u in range(2):
        p(f"v_add_u32 v3, s{(S_M0, S_M1)[u]}, v{V_L}")
        p("v_lshlrev_b32 v4, 4, v3")
        p("v_mul_hi_u32_u24 v4, 0x9d89e, v4")
        p("v_bfe_u32 v5, v4, 2, 1")
        p("v_bfe_i32 v6, v4, 3, 1")
        p("v_add_u32 v5, v5, v6")
        p(f"v_mad_i32_i24 v5, v5, s{S_T+7}, v3")
        p(f"v_mad_u32_u24 v{VO(u)}, v4, s{S_T+1}, v5")
    p("v_lshrrev_b32 v2, 2, v0")
    p(f"v_mul_u32_u24 v2, 104, v2")
    p(f"s_add_u32 s{S_W}, s{S_W}, {IDXO}")
    p(f"v_add_u32 v139, s{S_W}, v2")
    p("v_lshrrev_b32 v2, 5, v0")
    p("v_mul_u32_u24 v3, 3, v2")
    p("v_xor_b32 v3, v3, v0")
    p("v_and_b32 v3, 3, v3")
    p(f"v_lshlrev_b32 v{V_CH}, 4, v3")
    p.wait(vm="idx")
    stamp(1)
    if cfg.dbench:
        p("s_mov_b32 s3, 0")
        p.label("L_again")
    for m in range(6):
        p.lds(f"ds_read2_b64 v[{100+4*m}:{103+4*m}], v139 offset0:{2*m} offset1:{2*m+1}", f"ix{m}")
    p.lds("ds_read_b64 v[124:125], v139 offset:96", "ix6")
    def a_dma(f):
        p.wait(lg=f"ix{f >> 2}")
        p(f"s_add_u32 m0, s{S_AM}, {(f % RB)*SLOT}")
        p(f"v_lshl_add_u32 v{IDX(f)}, v{IDX(f)}, 6, v{V_CH}")
        p.vmem(f"buffer_load_dwordx4 v{IDX(f)}, s[{S_TAB}:{S_TAB+3}], 0 offen{' nt' if f < cfg.nta else ''} lds", f"F{f}")
    def b_dma(f, u, T):
        if u == 1:
            late_add = cfg.nonop and T == 6 and f
            if f and not late_add: p(f"s_add_u32 s{S_SB}, s{S_SB}, 53248")
            sk = L("np")
            if T != 6:
                if T == 0:
                    p(f"s_cmp_ge_u32 s{S_WAVE}, 4")
                    p(f"s_cselect_b32 s{S_X}, {f & 3}, s{S_WR}")
                    p(f"s_cmp_lg_u32 s{S_X}, {f & 3}")
                else: p(f"s_cmp_lg_u32 s{S_WR}, {f & 3}")
                p(f"s_cbranch_scc1 {sk}")
            p(f"s_add_u32 m0, s{S_M1}, {(f % RB)*SLOT}")
            p(f"s_add_u32 s{S_SB}, s{S_SB}, 53248" if late_add else "s_nop 0")
            p(f"buffer_load_dwordx4 v{VO(1)}, s[{S_W1}:{S_W1+3}], s{S_SB} offen lds")
            if T == 6: p.vm.issue(f"F{f}")
            else: p.label(sk)
        else:
            p(f"s_add_u32 m0, s{S_M0}, {(f % RB)*SLOT}")
            p("s_nop 0")
            p.vmem(f"buffer_load_dwordx4 v{VO(0)}, s[{S_W1}:{S_W1+3}], s{S_SB} offen lds", f"F{f}")
    def fill(f, T): a_dma(f); b_dma(f, 1, T); b_dma(f, 0, T)
    BWO = IDXO
    p(f"s_cmp_ge_u32 s{S_WAVE}, {0 if cfg.dbench else 2}")
    p("s_cbranch_scc1 L_nobw")
    p(f"s_mul_i32 s{S_X}, s{S_CP}, 416")
    p(f"s_cmp_eq_u32 s{S_WAVE}, 0")
    p(f"s_cselect_b64 s[{S_W2}:{S_W2+1}], s[{S_B1}:{S_B1+1}], s[{S_W2}:{S_W2+1}]")
    p(f"s_mov_b32 m0, s{S_W}")
    p("s_mov_b64 exec, 0xfffffff")
    p("s_waitcnt lgkmcnt(0)")
    p(f"buffer_load_dwordx4 v{V_L}, s[{S_W2}:{S_W2+3}], s{S_X} offen lds")
    p("s_mov_b64 exec, -1")
    p.label("L_nobw")
    if cfg.sw < 26:
        p(f"v_lshlrev_b32 v{V_C}, 2, v{V_LANE}")
        p(f"v_add_u32 v{V_C}, {IDXO + 2*1664}, v{V_C}")
        p(f"v_mov_b32 v{V_ONE}, 1")
        p(f"s_cmp_lg_u32 s{S_WAVE}, 2")
        p("s_cbranch_scc1 L_noz")
        p(f"v_mov_b32 v{V_POLL}, 0")
        p("s_waitcnt lgkmcnt(0)")
        p(f"ds_write_b32 v{V_C}, v{V_POLL}")
        p("s_waitcnt lgkmcnt(0)")
        p.label("L_noz")
    def lo(f): return (f % RB)//3, ((f % RB) % 3)*SLOT
    def b_read1(f, t, r2):
        k, off = lo(f)
        p.lds(f"ds_read_b64_tr_b16 v[{BF(t)+2*r2}:{BF(t)+2*r2+1}], v{V_B[k]} offset:{off + 32*t + 3328*r2}", f"b{f}_{t}")
    def a_read(f):
        k, off = lo(f)
        for q in range(2):
            p.lds(f"ds_read_b128 v[{AR(f, q)}:{AR(f, q)+3}], v{V_A[k]} offset:{off + 1024*q}", f"a{f}")
    q0 = list(p.vm.q)
    fill(0, 0)
    p("v_lshrrev_b32 v1, 4, v0")
    p(f"s_add_u32 s{S_T+1}, s{S_T}, {IDXO}")
    p(f"v_lshl_add_u32 v{V_G8}, v1, 3, s{S_T+1}")
    p("v_bfe_u32 v3, v0, 3, 1")
    p("v_mul_u32_u24 v3, 3, v3")
    p("v_xor_b32 v3, v3, v1")
    p("v_and_b32 v4, 15, v0")
    p("v_lshlrev_b32 v4, 6, v4")
    p("v_lshl_add_u32 v3, v3, 4, v4")
    p(f"s_and_b32 s{S_T+1}, s{S_WAVE}, 3")
    p(f"s_lshl_b32 s{S_T+1}, s{S_T+1}, 11")
    p(f"s_add_u32 s{S_T+1}, s{S_T+1}, {BSZ}")
    p(f"v_add_u32 v{V_A[0]}, s{S_T+1}, v3")
    p("v_bfe_u32 v3, v0, 2, 3")
    p("v_lshl_add_u32 v2, v2, 4, v3")
    p("v_mul_u32_u24 v2, 0x1a0, v2")
    p("v_and_b32 v3, 3, v0")
    p("v_lshl_add_u32 v2, v3, 3, v2")
    p(f"v_add_u32 v{V_B[0]}, s{S_T}, v2")
    for k in (1, 2):
        p(f"v_add_u32 v{V_A[k]}, {3*k*SLOT}, v{V_A[0]}")
        p(f"v_add_u32 v{V_B[k]}, {3*k*SLOT}, v{V_B[0]}")
    p(f"v_mov_b32 v{V_LANE}, v0")
    fill(1, 0)
    p(f"s_cmp_ge_u32 s{S_WAVE}, 4")
    p("s_cbranch_scc1 L_dnn6")
    W2R = lambda t, r: 170 + 4*t + r
    def w2_unpack():
        return [x for t in range(7) for h in range(2) for x in
                (f"v_lshlrev_b32 v{W2R(t,2*h)}, 16, v{RAW2+2*t+h}", f"v_and_b32 v{W2R(t,2*h+1)}, 0xffff0000, v{RAW2+2*t+h}")]
    vm0, lg0 = list(p.vm.q), list(p.lg.q)
    def dnn_main(T):
        p.vm.q, p.lg.q = q0 + ["F0"]*(9 - T) + ["F1"]*(9 - T), list(lg0)
        p.wait(vm="F0")
        p("s_barrier")
        stamp(12)
        for t in range(T):
            p.lds(f"ds_read_b64 v[{RAW+2*t}:{RAW+2*t+1}], v{V_G8} offset:{32*t}", "bias")
        a_read(0)
        for t in range(T):
            for r2 in range(2): b_read1(0, t, r2)
        p.wait(lg="bias")
        for t in range(T):
            for h in range(2):
                p(f"v_lshlrev_b32 v{ACC(t,0)+2*h}, 16, v{RAW+2*t+h}")
                p(f"v_and_b32 v{ACC(t,0)+2*h+1}, 0xffff0000, v{RAW+2*t+h}")
        for f in range(2, cfg.look): fill(f, T)
        p.wait(vm=tuple(f"F{k}" for k in range(cfg.barp + 1)))
        p("s_barrier")
        if T == 6 and cfg.prio_hi: p(f"s_setprio {cfg.prio_hi}")
        stamp(2)
        nxt = cfg.look
        w2ops = w2_unpack()
        free = -1; landed = cfg.barp
        for f in range(26):
            todo = []
            soft = f > cfg.sw and f <= 23
            top = f < cfg.early or (cfg.dpos == 4 and T == 6) or (cfg.dpos == 1 and T == 7)
            lim = (f - 1 if soft and not top else free) + RB
            nfill = 2 if (cfg.cmask >> f & 1 if cfg.cmask else cfg.catch0 <= f < cfg.catch0 + cfg.catch) else 1
            if f >= cfg.b2: nfill = (2 if (f % 2 == 0) == ((T == 6) == (cfg.dpos == 4)) else 0)
            for _ in range(nfill):
                if nxt < 26 and nxt <= lim:
                    todo += [(a_dma, (nxt,)), (b_dma, (nxt, 1, T)), (b_dma, (nxt, 0, T))]; nxt += 1
            if cfg.nodma and f >= 4:
                keep = []
                for fn, ar in todo:
                    if (fn is a_dma and cfg.nodma & 1) or (fn is b_dma and cfg.nodma & 2): continue
                    keep.append((fn, ar))
                todo[:] = keep
            n_it = len(todo)
            if f < cfg.early: at = [-1]*n_it
            elif cfg.dpos == 0: at = list(range(n_it))
            elif cfg.dpos == 1: at = [-1]*n_it if T == 7 else [T-1]*n_it
            elif cfg.dpos == 2: at = [(2*i + (T == 6)) if n_it <= 3 else i for i in range(n_it)]
            elif cfg.dpos == 3: at = [0]*n_it if T == 7 else [T-1]*n_it
            elif cfg.dpos == 4: at = [T-1]*n_it if T == 7 else [-1]*n_it
            elif cfg.dpos == 5: at = [i//(2 if n_it > 3 else 1) for i in range(n_it)] if T == 7 else [3 + i//(2 if n_it > 3 else 1) for i in range(n_it)]
            if soft and not top: at = [min(max(a, cfg.chk + i*(cfg.dpos in (0, 2))), T-1) for i, a in enumerate(at)]
            assert f == 25 or f + 1 <= landed
            def drain(t):
                while todo and at[0] <= t:
                    at.pop(0); fn, ar = todo.pop(0); fn(*ar)
            done_bar = [False]
            def end_sync():
                nonlocal free, landed
                done_bar[0] = True
                if f >= cfg.sw:
                    if f <= 22:
                        assert nxt > f + 3
                        p.wait(vm=tuple(f"F{k}" for k in range(f + 4)))
                        arrive(4*f)
                elif f <= cfg.lb and (f + 1) % cfg.barp == 0 and (f < cfg.b2 or f % 2):
                    last = min(f + 1 + cfg.barp + (f + 1 == cfg.sw or f + 1 >= cfg.b2), 25) if f < cfg.lb else 25
                    assert nxt > last
                    p.wait(vm=tuple(f"F{k}" for k in range(last + 1)))
                    if not cfg.nobar: p("s_barrier")
                    free = f; landed = last
            bp = (cfg.bp6 if T == 6 else cfg.bp7) if cfg.early <= f < cfg.lb else 0
            drain(-1)
            for t in range(T):
                p.wait(lg=(f"b{f}_{t}", f"a{f}"))
                b = f"v[{BF(t)}:{BF(t)+3}]"
                a0, a1 = ACC(t, 0), ACC(t, 1)
                c1 = a0 if f == 0 else a1
                p(f"v_mfma_f32_16x16x32_bf16 v[{a1}:{a1+3}], {b}, v[{AR(f,1)}:{AR(f,1)+3}], v[{c1}:{c1+3}]")
                if t and f < 25: b_read1(f+1, t-1, 1)
                elif t == 0 and f: b_read1(f, T-1, 1)
                p(f"v_mfma_f32_16x16x32_bf16 v[{a0}:{a0+3}], {b}, v[{AR(f,0)}:{AR(f,0)+3}], v[{a0}:{a0+3}]")
                if f < 25: b_read1(f+1, t, 0)
                if t == cfg.arp and f < 25: a_read(f + 1)
                if soft and t == cfg.chk - 2: poll_issue(4*(f-1))
                if soft and t == cfg.chk:
                    check(4*(f-1), 8, issued=True)
                    free = f - 1; landed = f + 2
                drain(t)
                if bp and t == T - 1 - bp:
                    assert not todo
                    p.wait(lg=tuple(f"b{f}_{k}" for k in range(T)))
                    end_sync()
                if f == 12 and t == 0 and cfg.tlbw:
                    p(f"v_mov_b32 v251, {WS_END - 4}")
                    p(f"buffer_load_dword v250, v251, s[{S_WS}:{S_WS+3}], 0 offen")
                if f == 21:
                    for tt in ([t] if t < T - 1 else range(t, 7)):
                        p.lds(f"ds_read_b64 v[{RAW2+2*tt}:{RAW2+2*tt+1}], v{V_G8} offset:{1664 + 32*tt}", "w2")
                if cfg.w2early and f in (23, 24):
                    if f == 23 and t == 0: p.wait(lg="w2")
                    for _ in range(3):
                        if w2ops: p(w2ops.pop(0))
            assert not todo
            if not done_bar[0]: end_sync()
            if f == cfg.lb and cfg.tailprio is not None and T == cfg.tailprio: p("s_setprio 1")
            if f % 4 == 0 and (not cfg.dbench or f in (8, 20)): stamp(14 + f//4)
        assert nxt == 26 and not (cfg.w2early and w2ops)
    dnn_main(7)
    p("s_branch L_gelu")
    p(".p2align 6")
    p.label("L_dnn6")
    dnn_main(6)
    p.label("L_gelu")
    if cfg.dbench:
        p("s_barrier")
        p(f"s_mul_i32 s{S_SB}, s{S_CP}, 416")
        p("s_add_u32 s3, s3, 1")
        p("s_cmp_lt_u32 s3, 2")
        p("s_cbranch_scc1 L_again")
    stamp(3)
    p("v_mov_b32 v98, 0")
    p(f"global_load_dword v99, v98, s[{S_DBG}:{S_DBG+1}] offset:64 sc1")
    if not cfg.w2early:
        p.wait0(vm=True)
        for x in w2_unpack(): p(x)
    k0 = -2.0*math.sqrt(2.0/math.pi)*math.log2(math.e)
    T1, T2, SUM, VC = 56, 64, 92, 72
    P = lambda a: f"v[{a}:{a+1}]"
    for r, c in enumerate((k0*0.044715, k0)):
        for h in range(2): p(f"v_mov_b32 v{VC+2*r+h}, {f2h(c)}")
    for r in range(4): p(f"v_mov_b32 v{SUM+r}, 0")
    for t in range(7):
        if t == 6:
            p(f"s_cmp_ge_u32 s{S_WAVE}, 4")
            p("s_cbranch_scc1 L_gelu6")
        x = ACC(t, 0)
        if cfg.pk:
            for r in range(0, 8, 2): p(f"v_pk_mul_f32 {P(T1+r)}, {P(x+r)}, {P(x+r)}")
            for r in range(0, 8, 2): p(f"v_pk_fma_f32 {P(T1+r)}, {P(T1+r)}, {P(VC)}, {P(VC+2)}")
            for r in range(0, 8, 2): p(f"v_pk_mul_f32 {P(T1+r)}, {P(T1+r)}, {P(x+r)}")
            for r in range(8): p(f"v_exp_f32 v{T1+r}, v{T1+r}")
            for r in range(0, 8, 2): p(f"v_pk_mul_f32 {P(T2+r)}, {P(x+r)}, {P(W2R(t, r & 3))}")
            for r in range(0, 8, 2): p(f"v_pk_add_f32 {P(T1+r)}, {P(T1+r)}, 1.0 op_sel_hi:[1,0]")
            for r in range(8): p(f"v_rcp_f32 v{T1+r}, v{T1+r}")
            for r in (0, 4, 2, 6): p(f"v_pk_fma_f32 {P(SUM+2*(r >> 2))}, {P(T1+r)}, {P(T2+r)}, {P(SUM+2*(r >> 2))}")
        else:
            for r in range(8): p(f"v_mul_f32 v{T1+r}, v{x+r}, v{x+r}")
            for r in range(8): p(f"v_fma_f32 v{T1+r}, v{T1+r}, v{VC}, v{VC+2}")
            for r in range(8): p(f"v_mul_f32 v{T1+r}, v{T1+r}, v{x+r}")
            for r in range(8): p(f"v_exp_f32 v{T1+r}, v{T1+r}")
            for r in range(8): p(f"v_mul_f32 v{T2+r}, v{x+r}, v{W2R(t, r & 3)}")
            for r in range(8): p(f"v_add_f32 v{T1+r}, 1.0, v{T1+r}")
            for r in range(8): p(f"v_rcp_f32 v{T1+r}, v{T1+r}")
            for r in range(8): p(f"v_fmac_f32 v{SUM+2*(r >> 2)+(r & 1)}, v{T1+r}, v{T2+r}")
    p.label("L_gelu6")
    p(f"v_add_f32 v{SUM}, v{SUM}, v{SUM+1}")
    p(f"v_add_f32 v{SUM+2}, v{SUM+2}, v{SUM+3}")
    p(f"v_and_b32 v84, 15, v{V_LANE}")
    p(f"v_lshrrev_b32 v85, 5, v{V_LANE}")
    p(f"v_permlane32_swap_b32 v{SUM}, v{SUM+2}")
    p("v_lshl_add_u32 v84, v85, 4, v84")
    p(f"v_add_f32 v{SUM}, v{SUM}, v{SUM+2}")
    p(f"v_bfe_u32 v85, v{V_LANE}, 4, 1")
    p(f"v_mov_b32 v{SUM+1}, v{SUM}")
    p("v_lshlrev_b32 v84, 2, v84")
    p("v_lshl_add_u32 v84, v85, 30, v84")
    p(f"v_permlane16_swap_b32 v{SUM}, v{SUM+1}")
    p(f"s_lshl2_add_u32 s{S_T}, s{S_RG}, s{S_CP}")
    p(f"v_add_f32 v{SUM}, v{SUM}, v{SUM+1}")
    p(f"s_lshl3_add_u32 s{S_T}, s{S_T}, s{S_WAVE}")
    p(f"s_lshl_b32 s{S_T}, s{S_T}, 7")
    p(f"v_min_u32 v{SUM}, -2, v{SUM}")
    if cfg.noprep or cfg.dbench: p("s_branch L_pub")
    p.label("L_dflag")
    p("s_waitcnt vmcnt(0)")
    p(f"v_readfirstlane_b32 s{S_X}, v99")
    p(f"s_cmp_ge_u32 s{S_X}, 26")
    p("s_cbranch_scc1 L_pub")
    p(f"global_load_dword v99, v98, s[{S_DBG}:{S_DBG+1}] offset:64 sc1")
    p("s_sleep 4")
    p(f"s_sub_u32 s{S_SPIN}, s{S_SPIN}, 1")
    p("s_cbranch_scc0 L_dflag")
    p("s_endpgm")
    p.label("L_pub")
    if cfg.fast:
        p(f"s_add_u32 s{S_T+1}, s{S_T}, 0x20000")
        p(f"buffer_store_dword v{SUM}, v84, s[{S_WS}:{S_WS+3}], s{S_T+1} offen")
    if not cfg.noslow: p(f"buffer_store_dword v{SUM}, v84, s[{S_WS}:{S_WS+3}], s{S_T} offen sc1")
    stamp(4)
    if cfg.probe:
        p("s_cmp_lg_u32 s2, 0")
        p("s_cbranch_scc1 L_pr2")
        p(f"v_lshlrev_b32 v1, 2, v{V_LANE}")
        p(f"global_load_dword v2, v1, s[{S_DBG}:{S_DBG+1}] offset:8 sc1")
        p("s_waitcnt vmcnt(0)")
        for i in range(8): p(f"v_readlane_b32 s{80+i}, v2, {i}")
        p("s_mov_b32 s90, s80"); p("s_mov_b32 s91, s80")
        for i in range(1, 8):
            p(f"s_min_u32 s90, s90, s{80+i}"); p(f"s_max_u32 s91, s91, s{80+i}")
        if cfg.probe == 1: p("s_sub_u32 s90, s91, s90")
        else: p(f"s_sub_u32 s90, s{80+cfg.probe-2}, s90")
        p("s_mul_i32 s90, s90, 20")
        p("s_min_u32 s90, s90, 20000")
        p("s_memrealtime s[92:93]"); p("s_waitcnt lgkmcnt(0)")
        p("s_add_u32 s92, s92, s90")
        p.label("L_pr")
        p("s_memrealtime s[94:95]"); p("s_waitcnt lgkmcnt(0)")
        p("s_cmp_lt_u32 s94, s92")
        p("s_cbranch_scc1 L_pr")
        p.label("L_pr2")
    stamps_out()
    p("s_endpgm")

    p(".p2align 6")
    p(".type gather_table,@object")
    p.label("gather_table")
    zt = P_Z - PS
    for role in range(2):
        for lane in range(64):
            s, half = lane >> 1, lane & 1
            ad = []
            for e in range(8):
                pr = slot_pair(s, half, e) if s < (24 if role == 0 else 22) else None
                at = (lambda j, k: P_D1 - PS + k*144 + j*4) if role == 0 else (lambda j, k: P_W1 - PS + (j*26 + k)*2)
                if role == 0 and (s, half, e) == (23, 0, 5): ad += [zt + 128, zt]
                elif pr is None: ad += [zt, zt]
                elif pr[1] is None: ad += [at(pr[0], 26), zt]
                elif pr[0] == pr[1] or norm(pr) == (24, 25): ad += [at(*pr), zt]
                else: ad += [at(pr[0], pr[1]), at(pr[1], pr[0])]
            p(".short " + ", ".join(str(a) for a in ad))
    p(".size gather_table, 4096")
    return p

def header():
    return """; xDeepFM (CIN + DNN) forward in one launch: 256 workgroups x 8 waves (S1).
; Kernarg: idx, table, ws_cin, w_cin_out, w_dnn1, b_dnn1, w_dnn2, b_out, out, debug, ws
;
; CIN, rewritten exactly: logit_cin = sum_d sum_i x1[i] * t[i], where x1 (layer 1) and
;   t[i] = w[i] + sum_j A[i,j] x[j] + sum_jk T[i,j,k] x[j] x[k]   (A, T fold layers 2, 3 and w_cin_out)
;   are quadratic forms of the 26 fields, evaluated as one GEMM over the 351 products x[j]*x[k].
; Workgroups with id bit 3 clear: DNN tile of 128 rows x 208 columns (LDS ring fed by LDS-DMA), GELU,
;   dot with w_dnn2, partial sums to a mailbox in d_ws.
; Workgroups with id bit 3 set: CIN for 32 rows; 26 of them first build the folded weights (one output
;   index each) and publish them in d_ws; they add the mailbox sums and write the output.
; Hand-offs: every word is first set to a marker (0xffffffff), a counter/flag pair in d_debug says that
;   the markers are in place, and a reader accepts a word only when it is no longer the marker.
; @launch grid=(256,1,1) block=(512,1,1) lds=%d
.amdgcn_target "amdgcn-amd-amdhsa--gfx950"
.text
""" % LDS_SIZE
def footer():
    nv = 256
    return f""".section .rodata,"a"
.p2align 6
.amdhsa_kernel {NAME}
  .amdhsa_next_free_vgpr {nv}
  .amdhsa_next_free_sgpr 102
  .amdhsa_accum_offset {nv}
  .amdhsa_group_segment_fixed_size 0
  .amdhsa_kernarg_size 88
  .amdhsa_user_sgpr_count 2
  .amdhsa_user_sgpr_kernarg_segment_ptr 1
  .amdhsa_system_sgpr_workgroup_id_x 1
  .amdhsa_float_denorm_mode_32 3
.end_amdhsa_kernel
"""
if __name__ == "__main__":
    out = sys.argv[1]
    for a in sys.argv[2:]:
        k, v = a.split("=")
        setattr(cfg, k, type(getattr(cfg, k))(int(v)))
    open(out, "w").write(header() + build().text() + footer())
```

```python
import sys, struct, math
from asmlib import *
from slots import *

NAME = "standalone__deep_cross_xdeepfm__recsys_kernel"
class Cfg:
    stamps = 0
    NRES = 38
    R = 2
    prio_prep = 3
    prio_hi = 0
    poll_sleep = 2
    idle_sleep = 1
    gon = 5
    bal = 0
    lt0 = 2
    lt1 = 5
    early = 6
    look = 3
    cmask = 0
    catch0 = 4
    catch = 4
    etouch = 0
    dtouch = 1
    dn = 20
    mtouch = 1
    ttouch = 0
    xwin = 4
    pfcode = 3
    pfn = 6
    pf0 = 0
    flipg = -1
    peel = 6
    flip = 3
    w2early = 1
    dpos = 4
    ltouch = 0
    pk = 1
    ctouch = 2
    wrot = 1
    direct = 1
    wpre = 0
    wplain = 0
    w8 = 0
    zmid = 1
    late0 = 0
    g0 = 0
    pl = 0
    noslow = 0
    fast = 1
    msleep = 0
    mper = 32
    fin2 = 0
    tlbo = 0
    tlbw = 0
    ost = 0
    zfirst = 0
    two = 1
    sflag = 1
    w3last = 1
    ntx = 0
    nta = 0
    nti = 0
    pre = 0
    pst = -1
    pcyc = 0
    pxa = -1
    plat = 0
    wsoff = 0
    dwarm = 0
    pwg = 0
    pwave = 0
    probe = 0
    dbench = 0
    nodma = 0
    nobar = 0
    lb = 21
    tailprio = 0
    bp6 = 0
    bp7 = 0
    nonop = 0
    b2 = 26
    sw = 26
    chk = 3
    barp = 1
    arp = 1
    noprep = 0
    clrpos = 1
    xstart = 0
    xbar = 4
    pdelay = 1
    hold = 0
cfg = Cfg()

LDS_SIZE = 163840
XO = 0
WO = 8*7168
PS = WO + 96*528
P_W3 = PS; P_M3T = PS + 36864; P_D1 = PS + 38912; P_W1 = PS + 43520; P_Z = PS + 45568; P_DUM = PS + 45824
CO = LDS_SIZE - 512
IX2 = PS + 46080
assert P_DUM + 256 <= CO
C_PA, C_PB, C_XL, C_FLAG, C_GO, C_G0, C_PI = 0, 4, 8, 12, 16, 20, 24
RB = 7
BSZ = 13312
SLOT = BSZ + 8192
IDXO = RB*SLOT
assert IDXO + 8*1664 == LDS_SIZE
MBOX = 0; WS_W = 262144; BLK = 1664; WS_END = WS_W + 26*BLK; WS_STAMP = 1 << 20
S_IDX, S_TAB, S_W1, S_WCIN, S_WCO, S_B1, S_W2, S_WS = 4, 8, 12, 16, 20, 24, 28, 32
S_OUT, S_DBG, S_BOUT = 36, 38, 40
S_WAVE, S_RG, S_CP, S_FB, S_COL, S_W = 42, 43, 44, 45, 46, 47
S_PC, S_SPIN, S_X = 48, 50, 51
KA = 52
S_T = 52
S_ST = 70
V_C, V_ONE, V_POLL, V_L = 162, 163, 164, 165
FRM = "0x20000"

def f2h(x): return "0x%08x" % struct.unpack("<I", struct.pack("<f", x))[0]

def build():
    p = Prog()
    lab = [0]
    def L(n):
        lab[0] += 1
        return f"L_{n}_{lab[0]}"
    def stamp(i):
        if cfg.pst == i:
            p("s_memtime s[92:93]" if cfg.pcyc else "s_memrealtime s[92:93]")
            p.wait0(lg=True)
        if cfg.stamps and (cfg.stamps < 3 or i == 8 or (cfg.stamps == 4 and i in (4, 26))):
            p(f"s_memrealtime s[68:69]" if cfg.stamps != 2 or i == 8 else "s_memtime s[68:69]")
            p.wait0(lg=True)
            if cfg.stamps != 2 or i == 8: p(f"s_mov_b32 s{S_ST+i}, s68")
            else:
                p("s_sub_u32 s68, s68, s100")
                p("s_lshr_b32 s68, s68, 4")
                p(f"s_add_u32 s{S_ST+i}, s68, s{S_ST}")
    def stamps_out():
        if cfg.pst >= 0:
            stamp(8)
            sk = L("npr"); lp = L("pr")
            p(f"s_cmp_lg_u32 s2, {cfg.pwg}")
            p(f"s_cbranch_scc1 {sk}")
            p(f"s_cmp_lg_u32 s{S_WAVE}, {cfg.pwave}")
            p(f"s_cbranch_scc1 {sk}")
            if cfg.pst == 0: p("s_mov_b32 s92, s96")
            if cfg.pst == 28:
                p(f"s_cmp_lg_u32 s{S_ST+27}, 0")
                p("s_cselect_b32 s92, 125, 0")
                p(f"s_cmp_ge_u32 s{S_ST+27}, 100")
                p("s_cselect_b32 s92, 250, s92")
                p(f"s_cmp_ge_u32 s{S_ST+27}, 101")
                p("s_cselect_b32 s92, 375, s92")
                p("s_add_u32 s92, s92, s96")
            if cfg.pxa >= 0:
                p("s_mov_b64 exec, -1")
                p("v_mov_b32 v1, 0")
                p(f"global_load_dword v2, v1, s[{S_DBG}:{S_DBG+1}] offset:8 sc1")
                p("s_waitcnt vmcnt(0)")
                p("v_readfirstlane_b32 s90, v2")
                p("s_cmp_lg_u32 s90, s91")
                p("s_cselect_b32 s90, 250, 0")
                p("s_add_u32 s92, s92, s90")
            if cfg.pcyc:
                p("s_sub_u32 s90, s92, s98")
                p("s_lshr_b32 s90, s90, 3")
            else:
                p("s_sub_u32 s90, s92, s96")
                p("s_mul_i32 s90, s90, 4")
            p("s_mov_b64 exec, 1")
            p("v_mov_b32 v1, 0")
            p("v_mov_b32 v2, s90")
            p(f"global_store_dword v1, v2, s[{S_DBG}:{S_DBG+1}] offset:4")
            p("s_add_u32 s90, s90, 2000")
            p("s_min_u32 s90, s90, 20000")
            p("s_add_u32 s90, s90, s96")
            p.label(lp)
            p("s_sleep 1")
            p("s_memrealtime s[94:95]"); p("s_waitcnt lgkmcnt(0)")
            p("s_cmp_lt_u32 s94, s90")
            p(f"s_cbranch_scc1 {lp}")
            p.label(sk)
        if not cfg.stamps: return
        stamp(8)
        p("s_mov_b64 exec, 1")
        p(f"s_lshl4_add_u32 s{S_T}, s2, s{S_WAVE}")
        p(f"s_lshl_b32 s{S_T}, s{S_T}, 7")
        p(f"s_add_u32 s{S_T}, s{S_T}, {WS_STAMP}")
        p(f"v_mov_b32 v1, s{S_T}")
        p("s_memtime s[68:69]")
        p("s_waitcnt lgkmcnt(0)")
        p(f"s_sub_u32 s{S_ST+29}, s68, s100")
        for i in range(30):
            p(f"v_mov_b32 v2, s{S_ST+i}")
            p(f"global_store_dword v1, v2, s[{S_WS}:{S_WS+1}] offset:{4*i}")
    def arrive(*offs):
        p("s_mov_b64 exec, 1")
        for off in offs: p.lds(f"ds_add_u32 v{V_C}, v{V_ONE} offset:{off}", "arr")
        p("s_mov_b64 exec, -1")
    def poll_issue(off):
        p.lds(f"ds_read_b32 v{V_POLL}, v{V_C} offset:{off}", "poll")
    def check(off, target, issued=False, sleep=0):
        ok = L("ok"); sp = L("spin")
        if issued:
            p.wait(lg="poll")
            p(f"v_readfirstlane_b32 s{S_X}, v{V_POLL}")
            p(f"s_cmp_ge_u32 s{S_X}, {target}")
            p(f"s_cbranch_scc1 {ok}")
        p.label(sp)
        if sleep: p(f"s_sleep {sleep}")
        p(f"ds_read_b32 v{V_POLL}, v{V_C} offset:{off}")
        p("s_waitcnt lgkmcnt(0)")
        p(f"v_readfirstlane_b32 s{S_X}, v{V_POLL}")
        p(f"s_sub_u32 s{S_SPIN}, s{S_SPIN}, 1")
        p("s_cbranch_scc1 L_end")
        p(f"s_cmp_ge_u32 s{S_X}, {target}")
        p(f"s_cbranch_scc0 {sp}")
        if not issued: p.lg.clear()
        p.label(ok)
    def srd(s, ka, n):
        if ka is not None: p(f"s_mov_b64 s[{s}:{s+1}], s[{KA+ka}:{KA+ka+1}]")
        p(f"s_mov_b32 s{s+2}, {n}")
        p(f"s_mov_b32 s{s+3}, {FRM}")
    def touch(vaddr, soff, mask):
        p(f"s_mov_b64 exec, {mask}" if mask < (1 << 31) else f"s_mov_b32 exec_hi, {hex(mask >> 32)}")
        p(f"buffer_load_dword v250, v{vaddr}, s[{S_W1}:{S_W1+3}], s{soff} offen")
        p("s_mov_b64 exec, -1")

    def ws_shift():
        if cfg.wsoff:
            p(f"s_add_u32 s{S_WS}, s{S_WS}, {cfg.wsoff << 20}")
            p(f"s_addc_u32 s{S_WS+1}, s{S_WS+1}, 0")
    def producer_index():
        if cfg.pl:
            p(f"s_lshr_b32 s{S_FB}, s2, 6")
            p(f"s_lshl2_add_u32 s{S_FB}, s{S_CP}, s{S_FB}")
            p(f"s_mul_i32 s{S_FB}, s{S_FB}, 3")
            p(f"s_and_b32 s{S_X}, s2, 7")
            p(f"s_sub_u32 s{S_X}, s{S_X}, 1")
            p(f"s_add_u32 s{S_FB}, s{S_FB}, s{S_X}")
            p(f"s_cmp_lt_u32 s{S_X}, 3")
            p(f"s_cselect_b32 s{S_FB}, s{S_FB}, 99")
            return
        p(f"s_lshr_b32 s{S_FB}, s2, 6")
        p(f"s_sub_u32 s{S_FB}, s{S_RG}, s{S_FB}")
        p(f"s_sub_u32 s{S_FB}, s{S_FB}, 1")
        p(f"s_and_b32 s{S_X}, s2, 0x37")
        p(f"s_sub_u32 s{S_X}, s{S_X}, 1")
        p(f"s_cmp_lt_u32 s{S_X}, 7")
        p(f"s_cselect_b32 s{S_FB}, s{S_FB}, 99")

    S_FL = 16
    FO = 128 if cfg.two else 0
    def flags_load(off):
        if cfg.sflag: p(f"s_load_dword s{S_FL}, s[{S_DBG}:{S_DBG+1}], {FO}")
        else: p(f"global_load_dword v11, v10, s[{S_DBG}:{S_DBG+1}] offset:{FO} sc1")
    def flags_test():
        if cfg.sflag: p("s_waitcnt lgkmcnt(0)")
        else:
            p("s_waitcnt vmcnt(0)")
            p(f"v_readfirstlane_b32 s{S_FL}, v11")
        p(f"s_cmp_ge_u32 s{S_FL}, 26")

    p(f".globl {NAME}\n.p2align 8\n.type {NAME},@function")
    p.label(NAME)
    p(f"s_load_dwordx16 s[{KA}:{KA+15}], s[0:1], 0")
    p(f"s_load_dwordx4 s[{S_OUT}:{S_OUT+3}], s[0:1], 64")
    p(f"s_load_dwordx2 s[{S_WS}:{S_WS+1}], s[0:1], 80")
    if cfg.probe or cfg.pst >= 0: p("s_memrealtime s[96:97]" if cfg.pst != 28 else "s_memrealtime s[96:97]")
    if cfg.pcyc: p("s_memtime s[98:99]")
    if cfg.stamps:
        p(f"s_memrealtime s[{S_ST}:{S_ST+1}]")
        p(f"s_memtime s[100:101]")
    p("v_lshrrev_b32 v1, 6, v0")
    p("v_and_b32 v0, 63, v0")
    p(f"v_readfirstlane_b32 s{S_WAVE}, v1")
    p("s_cmp_ge_u32 s2, 0x100")
    p("s_cbranch_scc1 L_end")
    p(f"s_and_b32 s3, s2, 7")
    if cfg.late0:
        p("s_cbranch_scc1 L_nl0")
        p("s_waitcnt lgkmcnt(0)")
        p(f"s_add_u32 s68, s{S_ST}, {cfg.late0}")
        p.label("L_l0")
        p("s_memrealtime s[98:99]"); p("s_waitcnt lgkmcnt(0)")
        p("s_cmp_lt_u32 s98, s68")
        p("s_cbranch_scc1 L_l0")
        p.label("L_nl0")
    p(f"s_lshr_b32 s{S_RG}, s2, 6")
    p(f"s_lshl3_add_u32 s{S_RG}, s{S_RG}, s3")
    p(f"s_bfe_u32 s{S_CP}, s2, 0x20004")
    p(f"v_lshlrev_b32 v{V_L}, 4, v0")
    p(f"v_lshlrev_b32 v160, 7, v0")
    srd(S_IDX, None, 4096*104)
    srd(S_W1, None, 832*1664)
    p("s_bitcmp1_b32 s2, 3")
    p("s_cbranch_scc1 L_cin")
    p(f"s_lshl3_add_u32 s3, s{S_RG}, s{S_WAVE}")
    p(f"s_mul_i32 s3, s3, 1664")
    p(f"s_mul_i32 s{S_W}, s{S_WAVE}, 1664")
    p(f"s_add_u32 m0, s{S_W}, {IDXO}")
    p(f"s_lshr_b32 s{S_X}, s2, 4")
    p(f"s_lshl3_add_u32 s{S_X}, s{S_X}, s{S_WAVE}")
    p(f"s_mul_i32 s{S_X}, s{S_X}, {cfg.dn*128}")
    p.wait0(lg=True)
    p(f"s_mov_b64 s[{S_IDX}:{S_IDX+1}], s[{KA}:{KA+1}]")
    p(f"s_mov_b64 s[{S_W1}:{S_W1+1}], s[{KA+8}:{KA+9}]")
    for n in range(2):
        if n: p("s_mov_b32 exec_hi, 0xff")
        p.vmem(f"buffer_load_dwordx4 v{V_L}, s[{S_IDX}:{S_IDX+3}], s3 offen offset:{1024*n}{' nt' if cfg.nti else ''} lds", "idx")
    if cfg.ctouch == 2:
        srd(S_WCIN, 4, 105456)
        p(f"s_lshr_b32 s3, s2, 4")
        p(f"s_lshl3_add_u32 s3, s3, s{S_WAVE}")
        p(f"s_mul_i32 s3, s3, 384")
        p(f"s_add_u32 s3, s3, {549*128}")
        p("s_mov_b64 exec, 7")
        p(f"buffer_load_dword v250, v160, s[{S_WCIN}:{S_WCIN+3}], s3 offen"); p.vm.issue("t")
    if not cfg.dtouch: p("s_mov_b64 exec, -1")
    if cfg.dtouch:
        touch(160, S_X, (1 << cfg.dn) - 1); p.vm.issue("t")
    p("s_branch L_dnn")
    dnn_vm = list(p.vm.q)

    p.vm.clear(); p.lg.clear()
    p.label("L_cin")
    if cfg.dbench: p("s_endpgm")
    S_C = S_WAVE
    W3A, TBL, VV, AQ, VF, GA, MB, VT, CRAW = 28, 32, 40, 56, 72, 80, 96, 170, 152
    S_J = S_W
    p(f"s_sub_u32 s{S_J}, s{S_WAVE}, 4")
    p("s_cbranch_scc1 L_pwave")
    p(f"s_lshl3_add_u32 s3, s{S_RG}, s{S_CP}")
    p(f"s_lshr_b32 s{S_FB}, s{S_J}, 1")
    p(f"s_lshl2_add_u32 s3, s{S_FB}, s3")
    p(f"s_and_b32 s{S_X}, s{S_J}, 1")
    p(f"s_lshl1_add_u32 s3, s3, s{S_X}")
    p(f"s_mul_i32 s3, s3, 832")
    p(f"s_mul_i32 s{S_X}, s{S_J}, 832")
    p(f"s_add_u32 m0, s{S_X}, {IX2}")
    p("s_mov_b32 exec_hi, 0xfffff")
    p.wait0(lg=True)
    p(f"s_mov_b64 s[{S_IDX}:{S_IDX+1}], s[{KA}:{KA+1}]")
    p(f"buffer_load_dwordx4 v{V_L}, s[{S_IDX}:{S_IDX+3}], s3 offen{' nt' if cfg.nti else ''} lds")
    if cfg.pfcode == 3:
        p(f"s_getpc_b64 s[{S_PC}:{S_PC+1}]")
        p.label("L_pc3")
        p(f"s_lshr_b32 s{S_X}, s2, 4")
        p(f"s_lshl2_add_u32 s{S_X}, s{S_X}, s{S_J}")
        p(f"s_mul_i32 s{S_X}, s{S_X}, 640")
        p(f"v_add_u32 v2, s{S_X}, v160")
        p(f"v_min_u32 v2, gather_table-L_pc3+4092, v2")
        p("s_mov_b64 exec, 31")
        p(f"global_load_dword v250, v2, s[{S_PC}:{S_PC+1}]")
    p("s_branch L_xwave")
    def cin_common():
        srd(S_WCO, None, 156)
        srd(S_WS, None, WS_END)
        p(f"s_mov_b32 s{S_SPIN}, 0x40000")
        p(f"v_lshlrev_b32 v{V_C}, 2, v0")
        p(f"v_add_u32 v{V_C}, {CO}, v{V_C}")
        p(f"v_mov_b32 v{V_ONE}, 1")
    p.label("L_pwave")
    cin_common()
    srd(S_WCIN, None, 105456)
    producer_index()
    if cfg.noprep: p(f"s_mov_b32 s{S_FB}, 99")
    p(f"s_getpc_b64 s[{S_PC}:{S_PC+1}]")
    p.label("L_pc")
    p.wait0(lg=True)
    p(f"s_mov_b64 s[{S_WCIN}:{S_WCIN+1}], s[{KA+4}:{KA+5}]")
    ws_shift()
    if cfg.ttouch: srd(S_TAB, 2, 6400000)
    p(f"s_mov_b64 s[{S_W1}:{S_W1+1}], s[{KA+8}:{KA+9}]")
    p(f"s_mov_b64 s[{S_WCO}:{S_WCO+1}], s[{KA+6}:{KA+7}]")
    p(f"s_load_dword s{S_BOUT}, s[{KA+14}:{KA+15}], 0")
    if cfg.mtouch:
        p(f"s_cmp_lt_u32 s{S_CP}, 2")
        p("s_cbranch_scc1 L_nomt")
        p(f"s_lshl1_add_u32 s{S_T}, s{S_RG}, s{S_CP}")
        p(f"s_lshl2_add_u32 s{S_T}, s{S_T}, s{S_C}")
        mn = -(-(10816 - 128*cfg.dn)//256)
        p(f"s_mul_i32 s{S_T+1}, s{S_T}, {mn*128}")
        p(f"s_add_u32 s{S_T+1}, s{S_T+1}, {(128*cfg.dn - 8*mn)*128}")
        touch(160, S_T+1, (1 << mn) - 1)
        p.label("L_nomt")
    p(f"s_cmp_ge_u32 s{S_FB}, 26")
    p("s_cbranch_scc1 L_cbar")
    if cfg.prio_prep: p(f"s_setprio {cfg.prio_prep}")
    p(f"s_mul_i32 s{S_T+2}, s{S_FB}, {BLK}")
    p(f"s_add_u32 s{S_T+2}, s{S_T+2}, {WS_W}")
    p(f"s_lshr_b32 s{S_T+3}, s{S_FB}, 1")
    p(f"s_lshl_b32 s{S_T+3}, s{S_T+3}, 2")
    p(f"s_load_dword s{S_T+4}, s[{S_WCO}:{S_WCO+1}], s{S_T+3}")
    def w3_dma():
        p(f"s_mul_i32 s{S_T}, s{S_C}, 9216")
        p(f"s_add_u32 s{S_T+1}, s{S_T}, 70304")
        p(f"s_add_u32 s{S_T}, s{S_T}, {P_W3}")
        for u in range(9):
            if u % 4 == 0:
                if u: p(f"s_add_u32 s{S_T+1}, s{S_T+1}, 0x1000")
                p(f"s_add_u32 m0, s{S_T}, {1024*u}")
                p("s_nop 0")
            p(f"buffer_load_dwordx4 v{V_L}, s[{S_WCIN}:{S_WCIN+3}], s{S_T+1} offen offset:{1024*(u % 4)} lds")
    if not cfg.w3last: w3_dma()
    p("v_and_b32 v2, 0x30, v0")
    p("v_bfe_u32 v1, v0, 2, 2")
    for q in range(4):
        p(f"v_xor_b32 v3, {q}, v1")
        p("v_lshl_add_u32 v3, v3, 28, v2")
        p(f"buffer_load_dwordx4 v[{AQ+4*q}:{AQ+4*q+3}], v3, s[{S_WCO}:{S_WCO+3}], 0 offen offset:104")
    p(f"s_cmp_ge_u32 s{S_C}, 2")
    p("s_cbranch_scc1 L_p23")
    p(f"s_lshl_b32 s{S_T}, s{S_C}, 11")
    p(f"s_add_u32 s{S_T}, s{S_T}, gather_table-L_pc")
    p(f"v_lshl_add_u32 v1, v0, 5, s{S_T}")
    p(f"global_load_dwordx4 v[{TBL}:{TBL+3}], v1, s[{S_PC}:{S_PC+1}]")
    p(f"global_load_dwordx4 v[{TBL+4}:{TBL+7}], v1, s[{S_PC}:{S_PC+1}] offset:16")
    p(f"s_cmp_lg_u32 s{S_C}, 0")
    p("s_cbranch_scc1 L_p1")
    p("v_lshrrev_b32 v3, 5, v0")
    p("v_mul_u32_u24 v3, 0x2a40, v3")
    p("v_and_b32 v2, 31, v0")
    p("v_lshl_add_u32 v3, v2, 1, v3")
    p(f"s_mul_i32 s{S_T}, s{S_FB}, 52")
    p(f"s_add_u32 s{S_T}, s{S_T}, 35152")
    for u in range(16):
        if u and u % 4 == 0:
            p(f"s_add_u32 s{S_T}, s{S_T}, {(4 if u != 8 else 12)*1352}")
        p(f"buffer_load_ushort v{VV+u}, v3, s[{S_WCIN}:{S_WCIN+3}], s{S_T} offen offset:{1352*(u % 4)}")
    p("s_branch L_pz")
    p.label("L_p1")
    p(f"s_mul_i32 s{S_T}, s{S_FB}, 1352")
    p(f"s_mov_b32 m0, {P_W1}")
    p("s_nop 0")
    for u in range(2):
        p(f"buffer_load_dwordx4 v{V_L}, s[{S_WCIN}:{S_WCIN+3}], s{S_T} offen offset:{1024*u} lds")
    p("s_branch L_pz")
    p.label("L_p23")
    p(f"s_cmp_lg_u32 s{S_C}, 3")
    p("s_cbranch_scc1 L_pz")
    p("v_lshlrev_b32 v1, 2, v0")
    p(f"buffer_load_dword v27, v1, s[{S_WCO}:{S_WCO+3}], 0 offen offset:52")
    if cfg.dwarm:
        p(f"s_cmp_lg_u32 s{S_FB}, 0")
        p("s_cbranch_scc1 L_nodw")
        p("v_mov_b32 v4, 0")
        p("s_mov_b64 exec, 1")
        p(f"global_atomic_add v4, v4, s[{S_DBG}:{S_DBG+1}] sc1")
        p("s_mov_b64 exec, -1")
        p.label("L_nodw")
    if cfg.wpre == 1:
        p("s_mov_b64 exec, 0x1fff")
        p(f"buffer_load_dword v250, v160, s[{S_WS}:{S_WS+3}], s{S_T+2} offen")
        p("s_mov_b64 exec, -1")
    for r in range(4): p(f"v_mov_b32 v{4+r}, -1")
    p(f"buffer_store_dwordx4 v[4:7], v{V_L}, s[{S_WS}:{S_WS+3}], s{S_T+2} offen sc1")
    p("s_mov_b32 exec_hi, 0xff")
    p(f"buffer_store_dwordx4 v[4:7], v{V_L}, s[{S_WS}:{S_WS+3}], s{S_T+2} offen offset:1024 sc1")
    p("s_mov_b32 exec_hi, -1")
    p.label("L_pz")
    if cfg.w3last: w3_dma()
    p("v_mov_b32 v2, 0")
    p("v_mov_b32 v3, 0")
    p(f"s_lshl_b32 s{S_T}, s{S_C}, 9")
    p(f"s_add_u32 s{S_T}, s{S_T}, {P_M3T}")
    p(f"v_lshl_add_u32 v1, v0, 3, s{S_T}")
    p("ds_write_b64 v1, v[2:3]")
    p(f"v_add_u32 v1, {P_Z - CO}, v{V_C}")
    p("ds_write_b32 v1, v2")
    p.label("L_cbar")
    if cfg.pfcode == 1:
        sk = L("nopf")
        p(f"s_cmp_lg_u32 s{S_C}, 2")
        p(f"s_cbranch_scc1 {sk}")
        p(f"s_lshr_b32 s{S_T}, s2, 4")
        p(f"s_mul_i32 s{S_T}, s{S_T}, 2560")
        p(f"v_add_u32 v2, s{S_T}, v160")
        p(f"v_min_u32 v2, gather_table-L_pc+4092, v2")
        p("s_mov_b64 exec, 0xfffff")
        p(f"global_load_dword v161, v2, s[{S_PC}:{S_PC+1}]")
        p("s_mov_b64 exec, -1")
        p.label(sk)
    p("v_mov_b32 v2, 0")
    p(f"ds_write_b32 v{V_C}, v2")
    p.wait0(lg=True)
    p("s_barrier")
    stamp(1)
    p(f"s_cmp_lt_u32 s{S_FB}, 26")
    p("s_cbranch_scc1 L_prep")
    p("s_branch L_setup")
    p.label("L_prep")
    p(f"s_cmp_lg_u32 s{S_C}, 2")
    p("s_cbranch_scc1 L_nmb")
    for r in range(4): p(f"v_mov_b32 v{4+r}, -1")
    nk = 10 if cfg.fast else 5
    p(f"s_mul_i32 s{S_T}, s{S_FB}, {1024*nk}")
    p(f"s_min_u32 s{S_T}, s{S_T}, {131072*nk//5 - 1024*nk}")
    for u in range(nk):
        if u and u % 4 == 0: p(f"s_add_u32 s{S_T}, s{S_T}, 0x1000")
        p(f"buffer_store_dwordx4 v[4:7], v{V_L}, s[{S_WS}:{S_WS+3}], s{S_T} offen offset:{1024*(u % 4)} sc1")
    p("s_nop 0")
    p.label("L_nmb")
    p(f"s_lshl_b32 s{S_T+3}, s{S_T+4}, 16")
    p(f"s_and_b32 s{S_T+4}, s{S_T+4}, 0xffff0000")
    p(f"s_bitcmp1_b32 s{S_FB}, 0")
    p(f"s_cselect_b32 s{S_T+3}, s{S_T+4}, s{S_T+3}")
    p(f"v_mov_b32 v1, {P_Z + 128}")
    p(f"v_mov_b32 v2, s{S_T+3}")
    p("ds_write_b32 v1, v2")
    p("v_bfe_u32 v1, v0, 2, 2")
    p("v_lshrrev_b32 v4, 4, v0")
    p("v_lshl_add_u32 v4, v4, 3, v1")
    p("v_add_u32 v5, 4, v4")
    p("v_min_u32 v4, 25, v4")
    p("v_min_u32 v5, 25, v5")
    p("v_and_b32 v6, 3, v0")
    p(f"s_mul_i32 s{S_T}, s{S_C}, 384")
    p(f"s_add_u32 s{S_T}, s{S_T}, {P_W3}")
    p(f"v_lshl_add_u32 v6, v6, 3, s{S_T}")
    p(f"s_movk_i32 s{S_T+1}, 1352")
    p(f"v_mad_u32_u24 v2, v4, s{S_T+1}, v6")
    p(f"v_mad_u32_u24 v3, v5, s{S_T+1}, v6")
    p(f"s_mul_i32 s{S_T}, s{S_C}, 192")
    p(f"s_movk_i32 s{S_T+1}, -1662")
    p(f"v_mov_b32 v7, {P_DUM}")
    for u in range(3):
        p(f"v_add_u32 v4, s{S_T}, v0")
        if u < 2: p(f"s_add_u32 s{S_T}, s{S_T}, 64")
        p("v_mul_u32_u24 v5, 2521, v4")
        p("v_lshrrev_b32 v5, 16, v5")
        p("v_cmp_gt_u32 vcc, 0x2a4, v4")
        p("v_lshlrev_b32 v4, 6, v4")
        p(f"v_mad_i32_i24 v4, v5, s{S_T+1}, v4")
        p(f"v_add_u32 v4, {P_M3T}, v4")
        p(f"v_cndmask_b32 v{8+u}, v7, v4, vcc")
    p("v_and_b32 v5, 31, v0")
    p("v_lshrrev_b32 v4, 5, v0")
    p("v_lshlrev_b32 v6, 6, v5")
    p("v_lshl_add_u32 v6, v4, 4, v6")
    p(f"v_add_u32 v28, {P_M3T}, v6")
    p("v_mul_u32_u24 v5, 0x90, v5")
    p("v_lshl_add_u32 v5, v4, 4, v5")
    p(f"v_add_u32 v29, {P_D1}, v5")
    p(f"s_cmp_eq_u32 s{S_C}, 0")
    p(f"s_cselect_b32 s{S_T}, 768, 0")
    p(f"v_add_u32 v30, s{S_T}, v{V_L}")
    p(f"v_mov_b32 v11, {PS}")
    p(f"v_add_u32 v4, {P_M3T + 26*64 - CO}, v{V_C}")
    p(f"s_cmp_lg_u32 s{S_C}, 3")
    p("s_cbranch_scc1 L_w0")
    assert cfg.w3last
    p("s_waitcnt vmcnt(9)")
    p("s_mov_b64 exec, 0x1fff")
    p("ds_write_b32 v4, v27")
    p("v_mov_b32 v4, 0")
    p("s_mov_b64 exec, 1")
    if cfg.two: p(f"global_atomic_add v27, v4, v{V_ONE}, s[{S_DBG}:{S_DBG+1}] sc0 sc1")
    else: p(f"global_atomic_add v4, v{V_ONE}, s[{S_DBG}:{S_DBG+1}] sc1")
    p("s_mov_b64 exec, -1")
    stamp(27)
    if cfg.pst == 12:
        p("s_waitcnt vmcnt(0)")
        stamp(12)
    p("s_waitcnt vmcnt(1)")
    p("s_branch L_w1")
    p.label("L_w0")
    p(f"s_cmp_lg_u32 s{S_C}, 2")
    p("s_cbranch_scc1 L_w2")
    p(f"s_waitcnt vmcnt({nk})")
    p("s_branch L_w1")
    p.label("L_w2")
    p.wait0(vm=True)
    p.label("L_w1")
    stamp(10)
    p("s_barrier")
    extra = []
    for u in range(8):
        extra.append(f"v_add_u32_sdwa v{GA+2*u}, v11, v{TBL+u} dst_sel:DWORD dst_unused:UNUSED_PAD src0_sel:DWORD src1_sel:WORD_0")
        extra.append(f"v_add_u32_sdwa v{GA+2*u+1}, v11, v{TBL+u} dst_sel:DWORD dst_unused:UNUSED_PAD src0_sel:DWORD src1_sel:WORD_1")
    for u in range(8): extra.append(f"v_lshl_or_b32 v{VF+u}, v{VV+2*u+1}, 16, v{VV+2*u}")
    def m3_mfma(U):
        u, q = divmod(U, 4)
        p.wait(lg=f"m{U}")
        cc = "0" if q == 0 else f"v[{12+4*u}:{15+4*u}]"
        p(f"v_mfma_f32_16x16x32_bf16 v[{12+4*u}:{15+4*u}], v[{AQ+4*q}:{AQ+4*q+3}], v[{MB+4*U}:{MB+4*U+3}], {cc}")
    for T in range(12):
        p.lds(f"ds_read_b64_tr_b16 v[{MB+4*T}:{MB+4*T+1}], v2 offset:{32*T}", f"m{T}")
        p.lds(f"ds_read_b64_tr_b16 v[{MB+4*T+2}:{MB+4*T+3}], v3 offset:{32*T}", f"m{T}")
        if T == 5:
            for _ in range(8): p(extra.pop(0))
        if T >= 6: m3_mfma(T - 6)
    for U in range(6, 12):
        m3_mfma(U)
        if U == 8:
            p("v_cvt_pk_bf16_f32 v24, v12, v12")
            p("ds_write_b16 v8, v24")
        else:
            for _ in range(2): p(extra.pop(0))
    p("v_cvt_pk_bf16_f32 v25, v16, v16")
    p("ds_write_b16 v9, v25")
    while extra: p(extra.pop(0))
    p(f"v_cvt_pk_bf16_f32 v26, v20, v20")
    p(f"ds_write_b16 v10, v26")
    p.wait0(lg=True)
    p("s_barrier")
    stamp(11)
    p(f"s_cmp_eq_u32 s{S_C}, 0")
    p("s_cbranch_scc1 L_pT")
    assert cfg.two
    p(f"s_cmp_eq_u32 s{S_C}, 1")
    p("s_cbranch_scc1 L_pX")
    p(f"s_cmp_eq_u32 s{S_C}, 3")
    p(f"s_cselect_b32 s{S_T}, 128, 64")
    p(f"v_mov_b32 v2, s{S_T}")
    p("v_mov_b32 v3, 26")
    p("s_mov_b64 exec, 1")
    p("s_cbranch_scc1 L_n2")
    p("v_mov_b32 v4, 4")
    p("s_waitcnt vmcnt(0)")
    p(f"global_atomic_add v27, v4, v{V_ONE}, s[{S_DBG}:{S_DBG+1}] sc0 sc1")
    p.label("L_n2")
    p("s_waitcnt vmcnt(0)")
    stamp(9)
    p(f"v_readfirstlane_b32 s{S_X}, v27")
    p(f"s_cmp_lt_u32 s{S_X}, 25")
    p("s_cbranch_scc1 L_pdx")
    p(f"global_store_dword v2, v3, s[{S_DBG}:{S_DBG+1}] sc1")
    p("s_branch L_pdx")
    p.label("L_pX")
    for u in range(16): p(f"v_mov_b32 v{MB+16+u}, 0")
    for u in range(16): p(f"ds_read_u16_d16_hi v{MB+16+u}, v{GA+u}")
    p("s_branch L_pst")
    p.label("L_pT")
    p("ds_read_b128 v[12:15], v28")
    p("ds_read_b128 v[16:19], v28 offset:32")
    p("s_waitcnt lgkmcnt(1)")
    p(f"v_mfma_f32_32x32x16_bf16 v[{MB}:{MB+15}], v[{VF}:{VF+3}], v[12:15], 0")
    p("s_waitcnt lgkmcnt(0)")
    p(f"v_mfma_f32_32x32x16_bf16 v[{MB}:{MB+15}], v[{VF+4}:{VF+7}], v[16:19], v[{MB}:{MB+15}]")
    p("s_nop 11")
    for a in range(4): p(f"ds_write_b128 v29, v[{MB+4*a}:{MB+4*a+3}] offset:{32*a}")
    for u in range(16): p(f"ds_read_b32 v{MB+16+u}, v{GA+u}")
    p.label("L_pst")
    p("s_mov_b32 exec_hi, 0xffff")
    for e in range(8):
        if e % 2 == 0: p(f"s_waitcnt lgkmcnt({12 - 2*e})")
        p(f"v_add_f32 v{MB+16+2*e}, v{MB+16+2*e}, v{MB+16+2*e+1}")
        if e % 2:
            p(f"v_cvt_pk_bf16_f32 v{4+e//2}, v{MB+14+2*e}, v{MB+16+2*e}")
            p(f"v_min_u32 v{4+e//2}, -2, v{4+e//2}")
    p(f"buffer_store_dwordx4 v[4:7], v30, s[{S_WS}:{S_WS+3}], s{S_T+2} offen sc1")
    if cfg.wpre == 2:
        p(f"buffer_load_dword v250, v30, s[{S_WS}:{S_WS+3}], s{S_T+2} offen sc1")
    p(f"s_cmp_lg_u32 s{S_C}, 0")
    p("s_cbranch_scc1 L_pdx")
    p("v_lshlrev_b32 v8, 2, v0")
    p("s_mov_b32 exec_hi, 0")
    p(f"buffer_store_dword v{V_ONE}, v8, s[{S_WS}:{S_WS+3}], s{S_T+2} offen offset:1536 sc1")
    p.label("L_pdx")
    p("s_mov_b64 exec, -1")
    p.label("L_pdone")
    stamp(21)
    p("s_branch L_setup")
    p.label("L_xwave")
    S_XM, S_TB = S_T+4, S_T+5
    p("s_mov_b64 exec, -1")
    cin_common()
    p(f"s_mov_b64 s[{S_W1}:{S_W1+1}], s[{KA+8}:{KA+9}]")
    p(f"s_mov_b64 s[{S_WCO}:{S_WCO+1}], s[{KA+6}:{KA+7}]")
    p(f"s_load_dword s{S_BOUT}, s[{KA+14}:{KA+15}], 0")
    ws_shift()
    srd(S_TAB, 2, 6400000)
    if cfg.etouch:
        p(f"s_cmp_eq_u32 s{S_CP}, 0")
        p("s_cbranch_scc1 L_noet")
        touch(160, S_X, (1 << 52) - 1)
        p("s_waitcnt vmcnt(1)")
        p.label("L_noet")
    p("v_lshrrev_b32 v1, 4, v0")
    p("v_and_b32 v2, 12, v0")
    p(f"s_mul_i32 s3, s{S_J}, 104")
    p(f"s_add_u32 s3, s3, {IX2}")
    p(f"v_add_u32 v2, s3, v2")
    p(f"s_movk_i32 s{S_X}, 416")
    p(f"v_mad_u32_u24 v3, v1, s{S_X}, v2")
    if cfg.bal:
        p(f"s_cmp_eq_u32 s{S_J}, 3")
        p(f"s_cselect_b32 s{S_X}, 104, 312")
        p(f"s_cselect_b32 s3, {13*104}, {20*104}")
        p(f"v_add_u32 v2, s3, v2")
        p(f"v_mad_u32_u24 v4, v1, s{S_X}, v2")
    else: p("v_add_u32 v4, 0x680, v3")
    p("v_and_b32 v1, 3, v0")
    p("v_lshlrev_b32 v5, 4, v1")
    p("v_bfe_u32 v1, v0, 3, 1")
    p("v_lshl_add_u32 v6, v1, 30, v5")
    p(f"s_mul_i32 s{S_XM}, s{S_J}, 7168")
    p(f"s_lshr_b32 s{S_TB}, s2, 4")
    p(f"s_lshl2_add_u32 s{S_TB}, s{S_TB}, s{S_J}")
    p(f"s_mul_i32 s{S_TB}, s{S_TB}, {46*128}")
    p(f"s_add_u32 s{S_TB}, s{S_TB}, {4992*128}")
    assert not cfg.etouch
    producer_index()
    p("s_waitcnt vmcnt(1)" if cfg.pfcode == 3 else "s_waitcnt vmcnt(0)")
    p("s_barrier")
    for u in range(2):
        for Q in range(0, 6, 2): p(f"ds_read2_b32 v[{VT+7*u+u+Q}:{VT+7*u+u+Q+1}], v{3+u} offset0:{4*Q} offset1:{4*Q+4}")
        p(f"ds_read_b32 v{VT+8*u+6}, v{3+u} offset:96")
    stamp(1)
    p.vm.clear()
    assert cfg.xwin < 14
    p.wait0(lg=True)
    go_done = False; g0_done = False
    for Q in range(7):
        for u in range(2):
            n = 2*Q + u
            if n == cfg.xbar and not cfg.noprep:
                p(f"s_cmp_ge_u32 s{S_FB}, 26")
                p("s_cbranch_scc1 L_nobar")
                p("s_barrier")
                p("s_barrier")
                p.label("L_nobar")
            if n == cfg.xstart and n: p.wait(vm="x0")
            if n >= cfg.xwin:
                p.wait(vm=f"x{n - cfg.xwin}")
                if n - cfg.xwin == 2*cfg.gon + 1: arrive(C_GO); go_done = True
                if cfg.pre and n - cfg.xwin == 2*(cfg.gon - cfg.pre) + 1: arrive(C_G0); g0_done = True
                if cfg.g0 and n - cfg.xwin == 2*(cfg.gon - cfg.g0) + 1:
                    p("s_and_b32 s3, s2, 7")
                    p("s_cbranch_scc1 L_ng0")
                    arrive(C_GO)
                    p.label("L_ng0")
            p(f"s_add_u32 m0, s{S_XM}, {XO + 4*7168*u + 1024*Q}")
            p(f"v_lshl_add_u32 v{VT+8*u+Q}, v{VT+8*u+Q}, 6, v{6 if Q == 6 else 5}")
            p.vmem(f"buffer_load_dwordx4 v{VT+8*u+Q}, s[{S_TAB}:{S_TAB+3}], 0 offen{' nt' if cfg.ntx else ''} lds", f"x{n}")
        for u, at in enumerate((cfg.lt0, cfg.lt1)):
            if at == Q and cfg.ltouch:
                touch(160, S_TB, (1 << 46) - 1); p.vm.issue("t")
                p(f"s_add_u32 s{S_TB}, s{S_TB}, {2944*128}")
    def late_touch():
        touch(160, S_TB, (1 << 46) - 1); p.vm.issue("t")
        p(f"s_add_u32 s{S_TB}, s{S_TB}, {2944*128}")
    if cfg.pre and not g0_done:
        p.wait(vm=f"x{2*(cfg.gon - cfg.pre)+1}")
        arrive(C_G0)
    if not go_done:
        p.wait(vm=f"x{2*cfg.gon+1}")
        arrive(C_GO)
    p.wait(vm="x13")
    arrive(C_XL)
    for at in (cfg.lt0, cfg.lt1):
        if at == 7 and cfg.ltouch: late_touch()
    if cfg.ltouch and cfg.lt1 == 8: p(f"s_mov_b32 s{S_FB}, s{S_TB}")
    stamp(6)

    p.label("L_setup")
    if cfg.stamps or cfg.pst == 28: p(f"s_mov_b32 s{S_ST+27}, 0")
    p(f"s_setprio {cfg.prio_prep}")
    p.vm.clear(); p.lg.clear()
    AX, AT, CI, X0 = 0, 16, 32, 48
    Z = [74, 78]; PT = 82; ZL = 90
    XA = {1: 98, -3: 99, -1: 100}; WA = 101; SM = [102, 103, 104, 105]; MBX = 106; VMB = 110; VBO = 111
    RING = 112; RES = RING + 4*cfg.R
    WT = 112
    POOL = [32, 36, 40, 44] + list(range(RES, 253, 4))
    assert cfg.NRES <= len(POOL)
    NR = 4
    S_N, S_MB, S_O = S_T+7, S_T+9, S_T+11
    S_NR = S_T + 12
    p(f"s_and_b32 s{S_T+3}, s{S_WAVE}, 3")
    p(f"s_lshl_b32 s{S_T+2}, s{S_T+3}, 2")
    p(f"s_lshl_b32 s{S_T}, s{S_T+3}, 8")
    p(f"s_mov_b32 s{S_N}, 4")
    p(f"s_add_u32 s{S_T+2}, s{S_T+2}, 3")
    p(f"s_cmp_lt_u32 s{S_WAVE}, 4")
    p("s_cbranch_scc1 L_rowp")
    p(f"s_add_u32 s{S_T}, s{S_T}, {4*7168}")
    if cfg.bal:
        p(f"s_mov_b32 s{S_N}, 3")
        p(f"s_mul_i32 s{S_T+2}, s{S_T+3}, 3")
        p(f"s_add_u32 s{S_T+2}, s{S_T+2}, 70")
    else: p(f"s_add_u32 s{S_T+2}, s{S_T+2}, 64")
    p.label("L_rowp")
    p(f"s_lshl4_add_u32 s{S_T+2}, s{S_CP}, s{S_T+2}")
    p.label("L_setup2")
    p(f"s_mov_b32 s{S_NR}, s{S_N}")
    p("v_and_b32 v1, 31, v0")
    p("v_lshrrev_b32 v2, 5, v0")
    p(f"v_lshl_add_u32 v3, v1, 1, s{S_T}")
    p(f"v_lshl_add_u32 v{XA[1]}, v2, 6, v3")
    p("v_mul_u32_u24 v4, 0xc0, v2")
    p(f"v_sub_u32 v{XA[-3]}, v3, v4")
    p("v_lshlrev_b32 v4, 6, v2")
    p(f"v_sub_u32 v{XA[-1]}, v3, v4")
    p("v_mul_u32_u24 v4, 0x210, v2")
    p("v_lshl_add_u32 v4, v1, 4, v4")
    p(f"v_add_u32 v{WA}, {WO}, v4")
    for r in range(26): p(f"v_mov_b32 v{X0+r}, 0")
    p(f"s_lshl_b32 s{S_BOUT}, s{S_BOUT}, 16")
    p("v_lshrrev_b32 v1, 3, v0")
    p("v_min_u32 v3, 1, v1")
    p("v_lshlrev_b32 v2, 9, v0")
    p(f"v_lshl_add_u32 v{VMB}, v3, 30, v2")
    p(f"s_lshl_b32 s{S_T+1}, s{S_RG}, 7")
    p(f"s_add_u32 s{S_T+1}, s{S_T+1}, s{S_T+2}")
    p(f"s_lshl_b32 s{S_O}, s{S_T+1}, 1")
    p(f"s_lshl_b32 s{S_T}, s{S_RG}, 10")
    p(f"s_add_u32 s{S_MB}, s{S_T+2}, s{S_T}")
    p(f"s_sub_u32 s{S_MB}, s{S_MB}, 3")
    p(f"s_lshl_b32 s{S_MB}, s{S_MB}, 2")
    p(f"s_add_u32 s{S_MB+1}, s{S_MB}, 0x20000")
    p(f"v_mov_b32 v{ZL+7}, 0")
    p(f"v_mov_b32 v{MBX+1}, 0")
    def x_read(r):
        p.lds(f"ds_read_u16_d16_hi v{X0+r}, v{XA[pi(r)-r]} offset:{1024*(r >> 2) + 64*(r & 3)}", f"x{r}")
    def z_ops(n):
        ops = []
        for e in range(4):
            t = PT + 2*(e % 4)
            (a, b), (c, d) = S[8*n + 2*e], S[8*n + 2*e + 1]
            ops.append(("v", f"v_mul_f32 v{t}, v{X0+a}, v{X0+b}", (a, b)))
            ops.append(("v", f"v_mul_f32 v{t+1}, v{X0+c}, v{X0+d}", (c, d)))
        cv = [("v", f"v_cvt_pk_bf16_f32 v{Z[n % 2]+e}, v{PT+2*e}, v{PT+2*e+1}", ()) for e in range(4)]
        return ops[0:4] + cv[0:1] + ops[4:6] + cv[1:2] + ops[6:8] + cv[2:4]
    def first_row(tag=''):
        check(C_XL, 4, sleep=cfg.idle_sleep)
        for r in range(26): x_read(r)
        for o in z_ops(0):
            p.wait(lg=tuple(f"x{r}" for r in o[2]))
            p(o[1])
        for d in XA.values(): p(f"v_add_u32 v{d}, 0x1c00, v{d}")
    if cfg.zfirst:
        first_row()
        p.wait0(lg=True)
    S_C4 = S_T + 14
    p(f"s_and_b32 s{S_C4}, s{S_WAVE}, 3")
    if not cfg.w8:
        p(f"s_cmp_ge_u32 s{S_WAVE}, 4")
        p("s_cbranch_scc1 L_xz")
    p("v_and_b32 v2, 7, v0")
    p(f"v_mul_u32_u24 v3, {BLK}, v1")
    p("v_lshl_add_u32 v3, v2, 4, v3")
    p("v_mul_u32_u24 v4, 0x210, v2")
    p(f"s_mul_i32 s{S_T}, s{S_C4}, {24*528}")
    p(f"s_add_u32 s{S_T}, s{S_T}, {WO}")
    p(f"v_add_u32 v4, s{S_T}, v4")
    p("v_lshl_add_u32 v5, v1, 4, v4")
    p("v_cmp_eq_u32 vcc, 1, v1")
    p("v_add_u32 v6, 48, v5")
    p("v_subrev_u32 v7, 48, v5")
    p("v_cndmask_b32 v6, v5, v6, vcc")
    p("v_cmp_eq_u32 vcc, 4, v1")
    p(f"v_mul_u32_u24 v8, {BLK}, v0")
    p("s_nop 0")
    p("v_cndmask_b32 v6, v6, v7, vcc")
    p(f"s_mul_i32 s{S_T}, s{S_C4}, 384")
    p(f"s_add_u32 s{S_T}, s{S_T}, {WS_W}")
    if cfg.w8: p(f"s_lshr_b32 s{S_T+1}, s{S_WAVE}, 2")
    else: p(f"s_and_b32 s{S_T+1}, s{S_CP}, {1 if cfg.wrot else 0}")
    p(f"s_mul_i32 s{S_T+2}, s{S_T+1}, 26624")
    for k in range(4):
        p(f"s_xor_b32 s{S_T+3+k}, s{S_T+2}, {26624*(k >> 1)}")
        p(f"s_add_u32 s{S_T+3+k}, s{S_T+3+k}, s{S_T}")
        if k & 1: p(f"s_add_u32 s{S_T+3+k}, s{S_T+3+k}, 13312")
    p(f"s_lshl_b32 s{S_T+2}, s{S_T+1}, 8")
    p(f"s_cmp_eq_u32 s{S_T+1}, 0")
    p("s_cselect_b64 vcc, -1, 0")
    p(f"v_add_u32 v12, s{S_T+2}, v5")
    p(f"s_xor_b32 s{S_T+2}, s{S_T+2}, 0x100")
    p("v_add_u32 v6, 0x180, v6")
    p("v_add_u32 v15, 0x80, v5")
    p(f"v_add_u32 v14, s{S_T+2}, v5")
    p("v_cndmask_b32 v13, v6, v15, vcc")
    p("v_cndmask_b32 v15, v15, v6, vcc")
    p("v_mov_b32 v10, 0")
    if cfg.pre:
        check(C_G0, 4, sleep=2)
        flags_load(192)
    check(C_GO, 4, sleep=2)
    stamp(22)
    p(f"s_mov_b32 s{S_T+13}, {WS_W}")
    if cfg.noprep: p("s_branch L_wload")
    if cfg.direct:
        if not cfg.pre:
            flags_load(192)
        flags_test()
        p("s_cbranch_scc1 L_wload")
        if cfg.stamps or cfg.pst == 28: p(f"s_add_u32 s{S_ST+27}, s{S_ST+27}, 100")
    p(f"s_cmp_lg_u32 s{S_C}, 0")
    p("s_cbranch_scc1 L_pw")
    p.label("L_probe")
    p(f"global_load_dword v11, v10, s[{S_DBG}:{S_DBG+1}] offset:{FO} sc1")
    p(f"buffer_load_dword v9, v8, s[{S_WS}:{S_WS+3}], s{S_T+13} offen offset:1536 sc1")
    p("s_waitcnt vmcnt(0)")
    p("v_cmp_gt_u32 vcc, 26, v11")
    p(f"v_cmp_eq_u32 s[{S_FL}:{S_FL+1}], -1, v9")
    p("s_nop 1")
    p(f"s_or_b64 vcc, vcc, s[{S_FL}:{S_FL+1}]")
    p("s_cmp_eq_u64 vcc, 0")
    p("s_cbranch_scc1 L_wload")
    p.label("L_retry")
    if cfg.stamps or cfg.pst == 28: p(f"s_add_u32 s{S_ST+27}, s{S_ST+27}, 1")
    p(f"s_sleep {cfg.poll_sleep}")
    p(f"s_sub_u32 s{S_SPIN}, s{S_SPIN}, 1")
    p("s_cbranch_scc0 L_probe")
    p("s_endpgm")
    p.label("L_pw")
    check(C_FLAG, 1, sleep=2)
    p("s_branch L_wl2")
    p.label("L_wload")
    arrive(C_FLAG)
    p.label("L_wl2")
    stamp(2)
    NJ = 2 if cfg.w8 else 4
    for J in range(NJ):
        for Fi in range(3):
            r = WT + 4*(3*J + Fi)
            p.vmem(f"buffer_load_dwordx4 v[{r}:{r+3}], v3, s[{S_WS}:{S_WS+3}], s{S_T+3+J} offen offset:{128*Fi}{'' if cfg.wplain else ' sc1'}", f"w{J}{Fi}")
    if cfg.zmid:
        p(f"s_cmp_lg_u32 s{S_C4}, 99")
        p("s_cbranch_scc0 L_zd")
        first_row("a")
        p(f"s_mov_b32 s{S_C4}, 99")
        p.label("L_zd")
    first = True
    for J in range(NJ):
        for Fi in range(3):
            r = WT + 4*(3*J + Fi)
            p.wait(vm=f"w{J}{Fi}")
            if (J, Fi) == (0, 0): stamp(12)
            if (J, Fi) == (NJ-1, 2): stamp(13)
            p(f"ds_write_b128 v{12+J}, v[{r}:{r+3}] offset:{4224*Fi}")
            if first: p(f"v_max_u32 v9, v{r}, v{r+1}")
            else: p(f"v_max3_u32 v9, v{r}, v{r+1}, v9")
            p(f"v_max3_u32 v9, v{r+2}, v{r+3}, v9")
            first = False
    p("v_cmp_eq_u32 vcc, -1, v9")
    p("s_nop 1")
    p("s_cmp_eq_u64 vcc, 0")
    p("s_cbranch_scc0 L_retry")
    if cfg.zmid and not cfg.w8: p("s_branch L_xz2")
    p.label("L_xz")
    if not cfg.zfirst and not (cfg.zmid and cfg.w8): first_row()
    p.label("L_xz2")
    p.wait0(lg=True)
    p("s_barrier")
    if cfg.ltouch and cfg.lt1 == 8:
        assert POOL[cfg.NRES-1] + 4 <= 250
        p(f"s_cmp_lt_u32 s{S_WAVE}, 4")
        p("s_cbranch_scc1 L_go")
        touch(160, S_FB, (1 << 46) - 1)
    p.label("L_go")
    p("s_setprio 0")
    if cfg.flip:
        p(f"s_cmp_lt_u32 s{S_WAVE}, 4")
        p("s_cbranch_scc1 L_prio")
        p(f"s_setprio 1")
        p.label("L_prio")
    stamp(3)
    order = []
    for n in range(22):
        order.append(("X", n)); order.append(("T", n))
        if n == 14: order.append(("T", 22))
        if n == 18: order.append(("T", 23))
    fr_of = lambda k, n: n if k == "X" else n + 24
    nn = 46 - cfg.NRES
    assert nn % cfg.R == 0
    nonres = [int((u + 0.5)*46/nn) for u in range(nn)]
    wreg = {}; rr = 0
    for k in range(46):
        if k in nonres: wreg[k] = RING + 4*(nonres.index(k) % cfg.R)
        else: wreg[k] = POOL[rr]; rr += 1
    def w_read(k):
        p.lds(f"ds_read_b128 v[{wreg[k]}:{wreg[k]+3}], v{WA} offset:{1056*fr_of(*order[k])}", f"w{k}")
    pend = [k for k in range(46) if k not in nonres or nonres.index(k) < cfg.R]
    while pend and (not cfg.peel or pend[0] < cfg.peel): w_read(pend.pop(0))
    if not cfg.peel: p.wait0(lg=True)
    stamp(5)
    def mfma(k):
        kind, n = order[k]
        zb = Z[n % 2] if n < 22 else ZL + 4*(n - 22)
        acc = AX if kind == "X" else AT
        cc = f"v[{acc}:{acc+15}]"
        if n == 0: cc = "0"
        return f"v_mfma_f32_32x32x16_bf16 v[{acc}:{acc+15}], v[{wreg[k]}:{wreg[k]+3}], v[{zb}:{zb+3}], {cc}"
    lin_ops = []
    for u in range(8):
        a = LIN[min(2*u, 12)]; b = LIN[min(2*u + 1, 12)]
        lin_ops.append(("v", f"v_cvt_pk_bf16_f32 v{ZL+u}, v{X0+a}, " + (f"v{X0+b}" if u < 6 else "1.0"), (a, b)))
    def body(emit_mb):
        groups = [z_ops(n) for n in range(1, 22)] + [z_ops(0)]
        groups[10] = lin_ops[:7] + groups[10]
        flat = [(g, o) for g, ops in enumerate(groups) for o in ops]
        lastuse = {}
        for i, (g, o) in enumerate(flat):
            if g < 21:
                for r in o[2]: lastuse[r] = i
        for r in range(26): lastuse.setdefault(r, -1)
        for g, ops in enumerate(groups):
            mf = [kk for kk in range(46) if order[kk] in (("X", g), ("T", g))]
            if g == 14: mf.append(order.index(("T", 22)))
            if g == 18: mf.append(order.index(("T", 23)))
            items = []
            base = sum(len(x) for x in groups[:g])
            if g == 0:
                for r in range(26):
                    if lastuse[r] == -1: items.append(("x", r))
            for i, o in enumerate(ops):
                items.append(o)
                for r in range(26):
                    if lastuse[r] == base + i: items.append(("x", r))
            if g == 21:
                pos = [0, 0]
            else:
                n_it = len(items)
                pos = [2 + (j*n_it)//len(mf) for j in range(len(mf))]
            j = 0
            for i, it in enumerate(items + [None]):
                while j < len(mf) and pos[j] <= i:
                    kk = mf[j]
                    if g == 21 and j == 0: p("s_nop 1")
                    p.wait(lg=f"w{kk}")
                    p(mfma(kk))
                    if kk in nonres:
                        w_read(nonres[(nonres.index(kk) + cfg.R) % nn])
                    while pend and pend[0] <= kk + cfg.peel: w_read(pend.pop(0))
                    j += 1
                if it is None: break
                if it[0] == "x": x_read(it[1])
                else:
                    p.wait(lg=tuple(f"x{r}" for r in it[2]))
                    p(it[1])
            if g == 15: emit_mb()
            if g == cfg.flipg and cfg.flip:
                sk = L("nfl")
                p(f"s_cmp_lg_u32 s{S_N}, {5 - cfg.flip}")
                p(f"s_cbranch_scc1 {sk}")
                p("s_setprio 0")
                p.label(sk)
        for k in range(NR - 1): p(f"v_mov_b32 v{SM[k]}, v{SM[k+1]}")
        for d in XA.values(): p(f"v_add_u32 v{d}, 0x1c00, v{d}")
        s0 = SM[NR-1]
        p(f"v_mul_f32 v{s0}, v{AX}, v{AT}")
        p(f"v_mul_f32 v{PT}, v{AX+1}, v{AT+1}")
        for r in range(2, 13):
            p(f"v_fmac_f32 v{s0 if r % 2 == 0 else PT}, v{AX+r}, v{AT+r}")
        p(f"s_sub_u32 s{S_N}, s{S_N}, 1")
        p(f"v_add_f32 v{s0}, v{s0}, v{PT}")
    def mb_loads(so=None):
        p(f"buffer_load_dwordx{NR} v[{MBX}:{MBX+NR-1}], v{VMB}, s[{S_WS}:{S_WS+3}], s{so or (S_MB+1 if cfg.fast else S_MB)} offen sc1")
    def emit_mb():
        sk = L("nomb"); l1 = L("mb1"); lp = L("mbf"); ok = L("mbk")
        p(f"s_cmp_gt_u32 s{S_N}, 2")
        p(f"s_cbranch_scc1 {sk}")
        p(f"s_cmp_eq_u32 s{S_N}, 1")
        p(f"s_cbranch_scc1 {l1}")
        p(f"global_load_dword v{MBX}, v{MBX+1}, s[{S_DBG}:{S_DBG+1}] offset:64 sc1")
        p(f"s_branch {sk}")
        p.label(lp)
        p(f"global_load_dword v{MBX}, v{MBX+1}, s[{S_DBG}:{S_DBG+1}] offset:64 sc1")
        p(f"s_sub_u32 s{S_SPIN}, s{S_SPIN}, 1")
        p("s_cbranch_scc1 L_end")
        p.label(l1)
        p("s_waitcnt vmcnt(0)")
        p(f"v_readfirstlane_b32 s{S_X}, v{MBX}")
        p(f"s_cmp_ge_u32 s{S_X}, 26")
        p(f"s_cbranch_scc0 {lp}")
        mb_loads()
        p.label(sk)
    if cfg.peel:
        body(lambda: None)
        assert not pend
        if cfg.stamps in (1, 2): stamp(26)
    st0 = list(p.lg.q)
    save = p.L; p.L = []
    body(lambda: None)
    st1 = list(p.lg.q)
    assert not cfg.peel or cfg.stamps in (1, 2) or st0 == st1[len(st1) - len(st0):]
    p.L = save
    p(".p2align 3")
    p.label("L_row")
    body(emit_mb)
    assert st1 == p.lg.q
    if cfg.stamps in (1, 2):
        for i in range(3): p(f"s_mov_b32 s{S_ST+23+i}, s{S_ST+24+i}")
        stamp(26)
    if cfg.stamps == 4 or cfg.pst == 26:
        p(f"s_cmp_lg_u32 s{S_N}, 0")
        p("s_cbranch_scc1 L_ns4")
        stamp(26)
        p.label("L_ns4")
    if cfg.flip and cfg.flipg < 0:
        p(f"s_cmp_lg_u32 s{S_N}, {4 - cfg.flip}")
        p("s_cbranch_scc1 L_noflip")
        p("s_setprio 0")
        p.label("L_noflip")
    p(f"s_cmp_lg_u32 s{S_N}, 0")
    p("s_cbranch_scc1 L_row")
    DPP = ("quad_perm:[1,0,3,2] row_mask:0xf", "quad_perm:[2,3,0,1] row_mask:0xf", "row_half_mirror row_mask:0xf",
           "row_mirror row_mask:0xf", "row_bcast:15 row_mask:0xa", "row_bcast:31 row_mask:0xc")
    p(f"v_mov_b32 v4, s{S_O}")
    if cfg.fin2:
        p("s_nop 0")
        for ctl in DPP:
            for k in (3, 0, 1, 2)[::-1]: p(f"v_add_f32_dpp v{SM[k]}, v{SM[k]}, v{SM[k]} {ctl} bank_mask:0xf")
        for k in range(NR): p(f"v_add_f32 v{SM[k]}, s{S_BOUT}, v{SM[k]}")
        for k in range(NR): p(f"v_readlane_b32 s{S_FL+k}, v{SM[k]}, 63")
    p.label("L_mbw")
    p("s_waitcnt vmcnt(0)")
    if NR == 4:
        p(f"v_max3_u32 v1, v{MBX}, v{MBX+1}, v{MBX+2}")
        p(f"v_max_u32 v1, v1, v{MBX+3}")
    else: p(f"v_max_u32 v1, v{MBX}, v{MBX+1}")
    p("v_cmp_eq_u32 vcc, -1, v1")
    p("s_nop 1")
    p("s_cmp_eq_u64 vcc, 0")
    p("s_cbranch_scc1 L_mbok")
    if cfg.msleep: p(f"s_sleep {cfg.msleep}")
    if cfg.fast:
        p(f"s_add_u32 s{S_N}, s{S_N}, 1")
        p(f"s_and_b32 s{S_X}, s{S_N}, {cfg.mper - 1}")
        p(f"s_cselect_b32 s{S_X}, s{S_MB+1}, s{S_MB}")
        mb_loads(S_X)
    else: mb_loads()
    p(f"s_sub_u32 s{S_SPIN}, s{S_SPIN}, 1")
    p("s_cbranch_scc0 L_mbw")
    p("s_endpgm")
    p.label("L_mbok")
    if cfg.fin2:
        for ctl in DPP[:3]:
            for k in range(NR): p(f"v_add_f32_dpp v{MBX+k}, v{MBX+k}, v{MBX+k} {ctl} bank_mask:0xf")
        for k in range(NR): p(f"v_add_f32 v{SM[k]}, s{S_FL+k}, v{MBX+k}")
    else:
        for k in range(NR): p(f"v_add_f32 v{SM[k]}, v{SM[k]}, v{MBX+k}")
        for ctl in DPP:
            for k in range(NR): p(f"v_add_f32_dpp v{SM[k]}, v{SM[k]}, v{SM[k]} {ctl} bank_mask:0xf")
        for k in range(NR): p(f"v_add_f32 v{SM[k]}, s{S_BOUT}, v{SM[k]}")
    p(f"v_cvt_pk_bf16_f32 v2, v{SM[0]}, v{SM[1]}")
    p(f"v_cvt_pk_bf16_f32 v3, v{SM[2]}, v{SM[3]}")
    if cfg.fin2: p("s_mov_b64 exec, 1")
    else:
        p("s_mov_b32 exec_lo, 0")
        p("s_mov_b32 exec_hi, 0x80000000")
    if cfg.bal:
        p(f"s_cmp_eq_u32 s{S_NR}, 4")
        p("s_cbranch_scc1 L_st4")
        p(f"global_store_short_d16_hi v1, v3, s[{S_OUT}:{S_OUT+1}]")
        p(f"s_cmp_eq_u32 s{S_NR}, 1")
        p("s_cbranch_scc1 L_std")
        p(f"global_store_short v1, v3, s[{S_OUT}:{S_OUT+1}] offset:-2")
        p(f"global_store_short_d16_hi v1, v2, s[{S_OUT}:{S_OUT+1}] offset:-4")
        p("s_branch L_std")
        p.label("L_st4")
    p(f"global_store_dwordx2 v4, v[2:3], s[{S_OUT}:{S_OUT+1}] offset:-6" + ("", " sc1", " nt", " sc0 sc1")[cfg.ost])
    p.label("L_std")
    stamps_out()
    p.label("L_end")
    p("s_endpgm")

    p.vm.q = dnn_vm; p.lg.clear()
    p(".p2align 6")
    p.label("L_dnn")
    ACC = lambda t, q: 8*t + 4*q
    BF = lambda t: 56 + 4*t
    AR = lambda f, q: 84 + 8*(f % 2) + 4*q
    IDX = lambda f: 100 + f
    VO = lambda u: 128 + u
    V_B, V_A, V_CH, V_LANE, V_G8 = [130, 131, 132], [133, 134, 135], 136, 137, 138
    RAW = 140; RAW2 = 200
    S_SB, S_M0, S_AM = S_T+2, S_T+3, S_T+4
    if cfg.probe:
        p("s_cmp_ge_u32 s2, 8")
        p("s_cbranch_scc1 L_pr1")
        p("s_lshl_b32 s90, s2, 2")
        p("v_mov_b32 v1, s90")
        p("v_mov_b32 v2, s96")
        p(f"global_store_dword v1, v2, s[{S_DBG}:{S_DBG+1}] offset:8 sc1")
        p("s_waitcnt vmcnt(0)")
        p.label("L_pr1")
    srd(S_B1, 10, 1664)
    srd(S_TAB, 2, 6400000)
    srd(S_W2, 12, 1664)
    srd(S_WS, None, WS_END)
    ws_shift()
    if cfg.pxa >= 0:
        p("s_getreg_b32 s91, hwreg(HW_REG_XCC_ID)")
        p("s_and_b32 s91, s91, 15")
        p(f"s_cmp_lg_u32 s2, {cfg.pxa}")
        p("s_cbranch_scc1 L_pxa")
        p("v_mov_b32 v1, 0")
        p("v_mov_b32 v2, s91")
        p(f"global_store_dword v1, v2, s[{S_DBG}:{S_DBG+1}] offset:8 sc1")
        p("s_waitcnt vmcnt(0)")
        p.label("L_pxa")
    if cfg.plat:
        sr_, off = {1: (S_TAB, 3000320), 2: (S_W1, 1300096), 3: (S_WS, 4096), 5: (S_DBG+0, 0), 4: (S_TAB, 5000320)}[cfg.plat]
        p("s_waitcnt vmcnt(0)")
        p(f"v_mov_b32 v1, {off}")
        p(f"buffer_load_dword v2, v1, s[{sr_}:{sr_+3}], 0 offen offset:2048")
        p("s_waitcnt vmcnt(0)")
        p("s_lshl_b32 s90, s2, 7")
        p("s_memrealtime s[94:95]")
        p("s_waitcnt lgkmcnt(0)")
        p(f"buffer_load_dword v2, v1, s[{sr_}:{sr_+3}], s90 offen offset:4)".replace(")", ""))
        p("s_waitcnt vmcnt(0)")
        p("s_memrealtime s[92:93]")
        p("s_waitcnt lgkmcnt(0)")
        p("s_sub_u32 s92, s92, s94")
        p("s_mul_i32 s92, s92, 10")
        p("s_add_u32 s92, s92, s96")
    stamp(10)
    p(f"s_mov_b32 s{S_SPIN}, 0x40000")
    p(f"s_mul_i32 s{S_COL}, s{S_CP}, 416")
    S_M1, S_WR = S_T+5, S_T+6
    p(f"s_mov_b32 s{S_SB}, s{S_COL}")
    p(f"s_and_b32 s{S_WR}, s{S_WAVE}, 3")
    p(f"s_lshl_b32 s{S_T}, s{S_WAVE}, 1")
    p(f"s_sub_u32 s{S_T}, s{S_T}, 4")
    p(f"s_add_u32 s{S_T+1}, s{S_T}, 1")
    p(f"s_cmp_lt_u32 s{S_WAVE}, 4")
    p(f"s_cselect_b32 s{S_M0}, s{S_WAVE}, s{S_T}")
    p(f"s_cselect_b32 s{S_M1}, 12, s{S_T+1}")
    p(f"s_lshl_b32 s{S_M0}, s{S_M0}, 10")
    p(f"s_lshl_b32 s{S_M1}, s{S_M1}, 10")
    p(f"s_lshl_b32 s{S_AM}, s{S_WAVE}, 10")
    p(f"s_add_u32 s{S_AM}, s{S_AM}, {BSZ}")
    p(f"s_lshr_b32 s{S_T}, s{S_WAVE}, 2")
    p(f"s_mul_i32 s{S_T}, s{S_T}, 224")
    p(f"s_add_u32 s{S_COL}, s{S_COL}, s{S_T}")
    p(f"s_movk_i32 s{S_T+1}, 1248")
    p(f"s_movk_i32 s{S_T+7}, 6656")
    for u in range(2):
        p(f"v_add_u32 v3, s{(S_M0, S_M1)[u]}, v{V_L}")
        p("v_lshlrev_b32 v4, 4, v3")
        p("v_mul_hi_u32_u24 v4, 0x9d89e, v4")
        p("v_bfe_u32 v5, v4, 2, 1")
        p("v_bfe_i32 v6, v4, 3, 1")
        p("v_add_u32 v5, v5, v6")
        p(f"v_mad_i32_i24 v5, v5, s{S_T+7}, v3")
        p(f"v_mad_u32_u24 v{VO(u)}, v4, s{S_T+1}, v5")
    p("v_lshrrev_b32 v2, 2, v0")
    p(f"v_mul_u32_u24 v2, 104, v2")
    p(f"s_add_u32 s{S_W}, s{S_W}, {IDXO}")
    p(f"v_add_u32 v139, s{S_W}, v2")
    p("v_lshrrev_b32 v2, 5, v0")
    p("v_mul_u32_u24 v3, 3, v2")
    p("v_xor_b32 v3, v3, v0")
    p("v_and_b32 v3, 3, v3")
    p(f"v_lshlrev_b32 v{V_CH}, 4, v3")
    p.wait(vm="idx")
    stamp(1)
    if cfg.dbench:
        p("s_mov_b32 s3, 0")
        p.label("L_again")
    for m in range(6):
        p.lds(f"ds_read2_b64 v[{100+4*m}:{103+4*m}], v139 offset0:{2*m} offset1:{2*m+1}", f"ix{m}")
    p.lds("ds_read_b64 v[124:125], v139 offset:96", "ix6")
    def a_dma(f):
        p.wait(lg=f"ix{f >> 2}")
        p(f"s_add_u32 m0, s{S_AM}, {(f % RB)*SLOT}")
        p(f"v_lshl_add_u32 v{IDX(f)}, v{IDX(f)}, 6, v{V_CH}")
        p.vmem(f"buffer_load_dwordx4 v{IDX(f)}, s[{S_TAB}:{S_TAB+3}], 0 offen{' nt' if f < cfg.nta else ''} lds", f"F{f}")
    def b_dma(f, u, T):
        if u == 1:
            late_add = cfg.nonop and T == 6 and f
            if f and not late_add: p(f"s_add_u32 s{S_SB}, s{S_SB}, 53248")
            sk = L("np")
            if T != 6:
                if T == 0:
                    p(f"s_cmp_ge_u32 s{S_WAVE}, 4")
                    p(f"s_cselect_b32 s{S_X}, {f & 3}, s{S_WR}")
                    p(f"s_cmp_lg_u32 s{S_X}, {f & 3}")
                else: p(f"s_cmp_lg_u32 s{S_WR}, {f & 3}")
                p(f"s_cbranch_scc1 {sk}")
            p(f"s_add_u32 m0, s{S_M1}, {(f % RB)*SLOT}")
            p(f"s_add_u32 s{S_SB}, s{S_SB}, 53248" if late_add else "s_nop 0")
            p(f"buffer_load_dwordx4 v{VO(1)}, s[{S_W1}:{S_W1+3}], s{S_SB} offen lds")
            if T == 6: p.vm.issue(f"F{f}")
            else: p.label(sk)
        else:
            p(f"s_add_u32 m0, s{S_M0}, {(f % RB)*SLOT}")
            p("s_nop 0")
            p.vmem(f"buffer_load_dwordx4 v{VO(0)}, s[{S_W1}:{S_W1+3}], s{S_SB} offen lds", f"F{f}")
    def fill(f, T): a_dma(f); b_dma(f, 1, T); b_dma(f, 0, T)
    BWO = IDXO
    p(f"s_cmp_ge_u32 s{S_WAVE}, {0 if cfg.dbench else 2}")
    p("s_cbranch_scc1 L_nobw")
    p(f"s_mul_i32 s{S_X}, s{S_CP}, 416")
    p(f"s_cmp_eq_u32 s{S_WAVE}, 0")
    p(f"s_cselect_b64 s[{S_W2}:{S_W2+1}], s[{S_B1}:{S_B1+1}], s[{S_W2}:{S_W2+1}]")
    p(f"s_mov_b32 m0, s{S_W}")
    p("s_mov_b64 exec, 0xfffffff")
    p("s_waitcnt lgkmcnt(0)")
    p(f"buffer_load_dwordx4 v{V_L}, s[{S_W2}:{S_W2+3}], s{S_X} offen lds")
    p("s_mov_b64 exec, -1")
    p.label("L_nobw")
    if cfg.sw < 26:
        p(f"v_lshlrev_b32 v{V_C}, 2, v{V_LANE}")
        p(f"v_add_u32 v{V_C}, {IDXO + 2*1664}, v{V_C}")
        p(f"v_mov_b32 v{V_ONE}, 1")
        p(f"s_cmp_lg_u32 s{S_WAVE}, 2")
        p("s_cbranch_scc1 L_noz")
        p(f"v_mov_b32 v{V_POLL}, 0")
        p("s_waitcnt lgkmcnt(0)")
        p(f"ds_write_b32 v{V_C}, v{V_POLL}")
        p("s_waitcnt lgkmcnt(0)")
        p.label("L_noz")
    def lo(f): return (f % RB)//3, ((f % RB) % 3)*SLOT
    def b_read1(f, t, r2):
        k, off = lo(f)
        p.lds(f"ds_read_b64_tr_b16 v[{BF(t)+2*r2}:{BF(t)+2*r2+1}], v{V_B[k]} offset:{off + 32*t + 3328*r2}", f"b{f}_{t}")
    def a_read(f):
        k, off = lo(f)
        for q in range(2):
            p.lds(f"ds_read_b128 v[{AR(f, q)}:{AR(f, q)+3}], v{V_A[k]} offset:{off + 1024*q}", f"a{f}")
    q0 = list(p.vm.q)
    fill(0, 0)
    p("v_lshrrev_b32 v1, 4, v0")
    p(f"s_add_u32 s{S_T+1}, s{S_T}, {IDXO}")
    p(f"v_lshl_add_u32 v{V_G8}, v1, 3, s{S_T+1}")
    p("v_bfe_u32 v3, v0, 3, 1")
    p("v_mul_u32_u24 v3, 3, v3")
    p("v_xor_b32 v3, v3, v1")
    p("v_and_b32 v4, 15, v0")
    p("v_lshlrev_b32 v4, 6, v4")
    p("v_lshl_add_u32 v3, v3, 4, v4")
    p(f"s_and_b32 s{S_T+1}, s{S_WAVE}, 3")
    p(f"s_lshl_b32 s{S_T+1}, s{S_T+1}, 11")
    p(f"s_add_u32 s{S_T+1}, s{S_T+1}, {BSZ}")
    p(f"v_add_u32 v{V_A[0]}, s{S_T+1}, v3")
    p("v_bfe_u32 v3, v0, 2, 3")
    p("v_lshl_add_u32 v2, v2, 4, v3")
    p("v_mul_u32_u24 v2, 0x1a0, v2")
    p("v_and_b32 v3, 3, v0")
    p("v_lshl_add_u32 v2, v3, 3, v2")
    p(f"v_add_u32 v{V_B[0]}, s{S_T}, v2")
    for k in (1, 2):
        p(f"v_add_u32 v{V_A[k]}, {3*k*SLOT}, v{V_A[0]}")
        p(f"v_add_u32 v{V_B[k]}, {3*k*SLOT}, v{V_B[0]}")
    p(f"v_mov_b32 v{V_LANE}, v0")
    fill(1, 0)
    p(f"s_cmp_ge_u32 s{S_WAVE}, 4")
    p("s_cbranch_scc1 L_dnn6")
    W2R = lambda t, r: 170 + 4*t + r
    def w2_unpack():
        return [x for t in range(7) for h in range(2) for x in
                (f"v_lshlrev_b32 v{W2R(t,2*h)}, 16, v{RAW2+2*t+h}", f"v_and_b32 v{W2R(t,2*h+1)}, 0xffff0000, v{RAW2+2*t+h}")]
    vm0, lg0 = list(p.vm.q), list(p.lg.q)
    def dnn_main(T):
        p.vm.q, p.lg.q = q0 + ["F0"]*(9 - T) + ["F1"]*(9 - T), list(lg0)
        p.wait(vm="F0")
        p("s_barrier")
        stamp(12)
        for t in range(T):
            p.lds(f"ds_read_b64 v[{RAW+2*t}:{RAW+2*t+1}], v{V_G8} offset:{32*t}", "bias")
        a_read(0)
        for t in range(T):
            for r2 in range(2): b_read1(0, t, r2)
        p.wait(lg="bias")
        for t in range(T):
            for h in range(2):
                p(f"v_lshlrev_b32 v{ACC(t,0)+2*h}, 16, v{RAW+2*t+h}")
                p(f"v_and_b32 v{ACC(t,0)+2*h+1}, 0xffff0000, v{RAW+2*t+h}")
        for f in range(2, cfg.look): fill(f, T)
        p.wait(vm=tuple(f"F{k}" for k in range(cfg.barp + 1)))
        p("s_barrier")
        if T == 6 and cfg.prio_hi: p(f"s_setprio {cfg.prio_hi}")
        stamp(2)
        nxt = cfg.look
        w2ops = w2_unpack()
        free = -1; landed = cfg.barp
        for f in range(26):
            todo = []
            soft = f > cfg.sw and f <= 23
            top = f < cfg.early or (cfg.dpos == 4 and T == 6) or (cfg.dpos == 1 and T == 7)
            lim = (f - 1 if soft and not top else free) + RB
            nfill = 2 if (cfg.cmask >> f & 1 if cfg.cmask else cfg.catch0 <= f < cfg.catch0 + cfg.catch) else 1
            if f >= cfg.b2: nfill = (2 if (f % 2 == 0) == ((T == 6) == (cfg.dpos == 4)) else 0)
            for _ in range(nfill):
                if nxt < 26 and nxt <= lim:
                    todo += [(a_dma, (nxt,)), (b_dma, (nxt, 1, T)), (b_dma, (nxt, 0, T))]; nxt += 1
            if cfg.nodma and f >= 4:
                keep = []
                for fn, ar in todo:
                    if (fn is a_dma and cfg.nodma & 1) or (fn is b_dma and cfg.nodma & 2): continue
                    keep.append((fn, ar))
                todo[:] = keep
            n_it = len(todo)
            if f < cfg.early: at = [-1]*n_it
            elif cfg.dpos == 0: at = list(range(n_it))
            elif cfg.dpos == 1: at = [-1]*n_it if T == 7 else [T-1]*n_it
            elif cfg.dpos == 2: at = [(2*i + (T == 6)) if n_it <= 3 else i for i in range(n_it)]
            elif cfg.dpos == 3: at = [0]*n_it if T == 7 else [T-1]*n_it
            elif cfg.dpos == 4: at = [T-1]*n_it if T == 7 else [-1]*n_it
            elif cfg.dpos == 5: at = [i//(2 if n_it > 3 else 1) for i in range(n_it)] if T == 7 else [3 + i//(2 if n_it > 3 else 1) for i in range(n_it)]
            if soft and not top: at = [min(max(a, cfg.chk + i*(cfg.dpos in (0, 2))), T-1) for i, a in enumerate(at)]
            assert f == 25 or f + 1 <= landed
            def drain(t):
                while todo and at[0] <= t:
                    at.pop(0); fn, ar = todo.pop(0); fn(*ar)
            done_bar = [False]
            def end_sync():
                nonlocal free, landed
                done_bar[0] = True
                if f >= cfg.sw:
                    if f <= 22:
                        assert nxt > f + 3
                        p.wait(vm=tuple(f"F{k}" for k in range(f + 4)))
                        arrive(4*f)
                elif f <= cfg.lb and (f + 1) % cfg.barp == 0 and (f < cfg.b2 or f % 2):
                    last = min(f + 1 + cfg.barp + (f + 1 == cfg.sw or f + 1 >= cfg.b2), 25) if f < cfg.lb else 25
                    assert nxt > last
                    p.wait(vm=tuple(f"F{k}" for k in range(last + 1)))
                    if not cfg.nobar: p("s_barrier")
                    free = f; landed = last
            bp = (cfg.bp6 if T == 6 else cfg.bp7) if cfg.early <= f < cfg.lb else 0
            drain(-1)
            for t in range(T):
                p.wait(lg=(f"b{f}_{t}", f"a{f}"))
                b = f"v[{BF(t)}:{BF(t)+3}]"
                a0, a1 = ACC(t, 0), ACC(t, 1)
                c1 = a0 if f == 0 else a1
                p(f"v_mfma_f32_16x16x32_bf16 v[{a1}:{a1+3}], {b}, v[{AR(f,1)}:{AR(f,1)+3}], v[{c1}:{c1+3}]")
                if t and f < 25: b_read1(f+1, t-1, 1)
                elif t == 0 and f: b_read1(f, T-1, 1)
                p(f"v_mfma_f32_16x16x32_bf16 v[{a0}:{a0+3}], {b}, v[{AR(f,0)}:{AR(f,0)+3}], v[{a0}:{a0+3}]")
                if f < 25: b_read1(f+1, t, 0)
                if t == cfg.arp and f < 25: a_read(f + 1)
                if soft and t == cfg.chk - 2: poll_issue(4*(f-1))
                if soft and t == cfg.chk:
                    check(4*(f-1), 8, issued=True)
                    free = f - 1; landed = f + 2
                drain(t)
                if bp and t == T - 1 - bp:
                    assert not todo
                    p.wait(lg=tuple(f"b{f}_{k}" for k in range(T)))
                    end_sync()
                if f == 12 and t == 0 and cfg.tlbw:
                    p(f"v_mov_b32 v251, {WS_END - 4}")
                    p(f"buffer_load_dword v250, v251, s[{S_WS}:{S_WS+3}], 0 offen")
                if f == 21:
                    for tt in ([t] if t < T - 1 else range(t, 7)):
                        p.lds(f"ds_read_b64 v[{RAW2+2*tt}:{RAW2+2*tt+1}], v{V_G8} offset:{1664 + 32*tt}", "w2")
                if cfg.w2early and f in (23, 24):
                    if f == 23 and t == 0: p.wait(lg="w2")
                    for _ in range(3):
                        if w2ops: p(w2ops.pop(0))
            assert not todo
            if not done_bar[0]: end_sync()
            if f == cfg.lb and cfg.tailprio is not None and T == cfg.tailprio: p("s_setprio 1")
            if f % 4 == 0 and (not cfg.dbench or f in (8, 20)): stamp(14 + f//4)
        assert nxt == 26 and not (cfg.w2early and w2ops)
    dnn_main(7)
    p("s_branch L_gelu")
    p(".p2align 6")
    p.label("L_dnn6")
    dnn_main(6)
    p.label("L_gelu")
    if cfg.dbench:
        p("s_barrier")
        p(f"s_mul_i32 s{S_SB}, s{S_CP}, 416")
        p("s_add_u32 s3, s3, 1")
        p("s_cmp_lt_u32 s3, 2")
        p("s_cbranch_scc1 L_again")
    stamp(3)
    p("v_mov_b32 v98, 0")
    p(f"global_load_dword v99, v98, s[{S_DBG}:{S_DBG+1}] offset:64 sc1")
    if not cfg.w2early:
        p.wait0(vm=True)
        for x in w2_unpack(): p(x)
    k0 = -2.0*math.sqrt(2.0/math.pi)*math.log2(math.e)
    T1, T2, SUM, VC = 56, 64, 92, 72
    P = lambda a: f"v[{a}:{a+1}]"
    for r, c in enumerate((k0*0.044715, k0)):
        for h in range(2): p(f"v_mov_b32 v{VC+2*r+h}, {f2h(c)}")
    for r in range(4): p(f"v_mov_b32 v{SUM+r}, 0")
    for t in range(7):
        if t == 6:
            p(f"s_cmp_ge_u32 s{S_WAVE}, 4")
            p("s_cbranch_scc1 L_gelu6")
        x = ACC(t, 0)
        if cfg.pk:
            for r in range(0, 8, 2): p(f"v_pk_mul_f32 {P(T1+r)}, {P(x+r)}, {P(x+r)}")
            for r in range(0, 8, 2): p(f"v_pk_fma_f32 {P(T1+r)}, {P(T1+r)}, {P(VC)}, {P(VC+2)}")
            for r in range(0, 8, 2): p(f"v_pk_mul_f32 {P(T1+r)}, {P(T1+r)}, {P(x+r)}")
            for r in range(8): p(f"v_exp_f32 v{T1+r}, v{T1+r}")
            for r in range(0, 8, 2): p(f"v_pk_mul_f32 {P(T2+r)}, {P(x+r)}, {P(W2R(t, r & 3))}")
            for r in range(0, 8, 2): p(f"v_pk_add_f32 {P(T1+r)}, {P(T1+r)}, 1.0 op_sel_hi:[1,0]")
            for r in range(8): p(f"v_rcp_f32 v{T1+r}, v{T1+r}")
            for r in (0, 4, 2, 6): p(f"v_pk_fma_f32 {P(SUM+2*(r >> 2))}, {P(T1+r)}, {P(T2+r)}, {P(SUM+2*(r >> 2))}")
        else:
            for r in range(8): p(f"v_mul_f32 v{T1+r}, v{x+r}, v{x+r}")
            for r in range(8): p(f"v_fma_f32 v{T1+r}, v{T1+r}, v{VC}, v{VC+2}")
            for r in range(8): p(f"v_mul_f32 v{T1+r}, v{T1+r}, v{x+r}")
            for r in range(8): p(f"v_exp_f32 v{T1+r}, v{T1+r}")
            for r in range(8): p(f"v_mul_f32 v{T2+r}, v{x+r}, v{W2R(t, r & 3)}")
            for r in range(8): p(f"v_add_f32 v{T1+r}, 1.0, v{T1+r}")
            for r in range(8): p(f"v_rcp_f32 v{T1+r}, v{T1+r}")
            for r in range(8): p(f"v_fmac_f32 v{SUM+2*(r >> 2)+(r & 1)}, v{T1+r}, v{T2+r}")
    p.label("L_gelu6")
    p(f"v_add_f32 v{SUM}, v{SUM}, v{SUM+1}")
    p(f"v_add_f32 v{SUM+2}, v{SUM+2}, v{SUM+3}")
    p(f"v_and_b32 v84, 15, v{V_LANE}")
    p(f"v_lshrrev_b32 v85, 5, v{V_LANE}")
    p(f"v_permlane32_swap_b32 v{SUM}, v{SUM+2}")
    p("v_lshl_add_u32 v84, v85, 4, v84")
    p(f"v_add_f32 v{SUM}, v{SUM}, v{SUM+2}")
    p(f"v_bfe_u32 v85, v{V_LANE}, 4, 1")
    p(f"v_mov_b32 v{SUM+1}, v{SUM}")
    p("v_lshlrev_b32 v84, 2, v84")
    p("v_lshl_add_u32 v84, v85, 30, v84")
    p(f"v_permlane16_swap_b32 v{SUM}, v{SUM+1}")
    p(f"s_lshl2_add_u32 s{S_T}, s{S_RG}, s{S_CP}")
    p(f"v_add_f32 v{SUM}, v{SUM}, v{SUM+1}")
    p(f"s_lshl3_add_u32 s{S_T}, s{S_T}, s{S_WAVE}")
    p(f"s_lshl_b32 s{S_T}, s{S_T}, 7")
    p(f"v_min_u32 v{SUM}, -2, v{SUM}")
    if cfg.noprep or cfg.dbench: p("s_branch L_pub")
    p.label("L_dflag")
    p("s_waitcnt vmcnt(0)")
    p(f"v_readfirstlane_b32 s{S_X}, v99")
    p(f"s_cmp_ge_u32 s{S_X}, 26")
    p("s_cbranch_scc1 L_pub")
    p(f"global_load_dword v99, v98, s[{S_DBG}:{S_DBG+1}] offset:64 sc1")
    p("s_sleep 4")
    p(f"s_sub_u32 s{S_SPIN}, s{S_SPIN}, 1")
    p("s_cbranch_scc0 L_dflag")
    p("s_endpgm")
    p.label("L_pub")
    if cfg.fast:
        p(f"s_add_u32 s{S_T+1}, s{S_T}, 0x20000")
        p(f"buffer_store_dword v{SUM}, v84, s[{S_WS}:{S_WS+3}], s{S_T+1} offen")
    if not cfg.noslow: p(f"buffer_store_dword v{SUM}, v84, s[{S_WS}:{S_WS+3}], s{S_T} offen sc1")
    stamp(4)
    if cfg.probe:
        p("s_cmp_lg_u32 s2, 0")
        p("s_cbranch_scc1 L_pr2")
        p(f"v_lshlrev_b32 v1, 2, v{V_LANE}")
        p(f"global_load_dword v2, v1, s[{S_DBG}:{S_DBG+1}] offset:8 sc1")
        p("s_waitcnt vmcnt(0)")
        for i in range(8): p(f"v_readlane_b32 s{80+i}, v2, {i}")
        p("s_mov_b32 s90, s80"); p("s_mov_b32 s91, s80")
        for i in range(1, 8):
            p(f"s_min_u32 s90, s90, s{80+i}"); p(f"s_max_u32 s91, s91, s{80+i}")
        if cfg.probe == 1: p("s_sub_u32 s90, s91, s90")
        else: p(f"s_sub_u32 s90, s{80+cfg.probe-2}, s90")
        p("s_mul_i32 s90, s90, 20")
        p("s_min_u32 s90, s90, 20000")
        p("s_memrealtime s[92:93]"); p("s_waitcnt lgkmcnt(0)")
        p("s_add_u32 s92, s92, s90")
        p.label("L_pr")
        p("s_memrealtime s[94:95]"); p("s_waitcnt lgkmcnt(0)")
        p("s_cmp_lt_u32 s94, s92")
        p("s_cbranch_scc1 L_pr")
        p.label("L_pr2")
    stamps_out()
    p("s_endpgm")

    p(".p2align 6")
    p(".type gather_table,@object")
    p.label("gather_table")
    zt = P_Z - PS
    for role in range(2):
        for lane in range(64):
            s, half = lane >> 1, lane & 1
            ad = []
            for e in range(8):
                pr = slot_pair(s, half, e) if s < (24 if role == 0 else 22) else None
                at = (lambda j, k: P_D1 - PS + k*144 + j*4) if role == 0 else (lambda j, k: P_W1 - PS + (j*26 + k)*2)
                if role == 0 and (s, half, e) == (23, 0, 5): ad += [zt + 128, zt]
                elif pr is None: ad += [zt, zt]
                elif pr[1] is None: ad += [at(pr[0], 26), zt]
                elif pr[0] == pr[1] or norm(pr) == (24, 25): ad += [at(*pr), zt]
                else: ad += [at(pr[0], pr[1]), at(pr[1], pr[0])]
            p(".short " + ", ".join(str(a) for a in ad))
    p(".size gather_table, 4096")
    return p

def header():
    return """; xDeepFM (CIN + DNN) forward in one launch: 256 workgroups x 8 waves (S1).
; Kernarg: idx, table, ws_cin, w_cin_out, w_dnn1, b_dnn1, w_dnn2, b_out, out, debug, ws
;
; CIN, rewritten exactly: logit_cin = sum_d sum_i x1[i] * t[i], where x1 (layer 1) and
;   t[i] = w[i] + sum_j A[i,j] x[j] + sum_jk T[i,j,k] x[j] x[k]   (A, T fold layers 2, 3 and w_cin_out)
;   are quadratic forms of the 26 fields, evaluated as one GEMM over the 351 products x[j]*x[k].
; Workgroups with id bit 3 clear: DNN tile of 128 rows x 208 columns (LDS ring fed by LDS-DMA), GELU,
;   dot with w_dnn2, partial sums to a mailbox in d_ws.
; Workgroups with id bit 3 set: CIN for 32 rows; 26 of them first build the folded weights (one output
;   index each) and publish them in d_ws; they add the mailbox sums and write the output.
; Hand-offs: every word is first set to a marker (0xffffffff), a counter/flag pair in d_debug says that
;   the markers are in place, and a reader accepts a word only when it is no longer the marker.
; @launch grid=(256,1,1) block=(512,1,1) lds=%d
.amdgcn_target "amdgcn-amd-amdhsa--gfx950"
.text
""" % LDS_SIZE
def footer():
    nv = 256
    return f""".section .rodata,"a"
.p2align 6
.amdhsa_kernel {NAME}
  .amdhsa_next_free_vgpr {nv}
  .amdhsa_next_free_sgpr 102
  .amdhsa_accum_offset {nv}
  .amdhsa_group_segment_fixed_size 0
  .amdhsa_kernarg_size 88
  .amdhsa_user_sgpr_count 2
  .amdhsa_user_sgpr_kernarg_segment_ptr 1
  .amdhsa_system_sgpr_workgroup_id_x 1
  .amdhsa_float_denorm_mode_32 3
.end_amdhsa_kernel
"""
if __name__ == "__main__":
    out = sys.argv[1]
    for a in sys.argv[2:]:
        k, v = a.split("=")
        setattr(cfg, k, type(getattr(cfg, k))(int(v)))
    open(out, "w").write(header() + build().text() + footer())
```
